```python
import torch

def _softmax(x, axis=-1):
    return torch.softmax(x, dim=axis)
def _gelu(x):
    return torch.nn.functional.gelu(x, approximate="tanh")
def _silu(x):
    return torch.nn.functional.silu(x)
def _sigmoid(x):
    return torch.sigmoid(x)
def _layernorm(x, axis=-1, eps=1e-5):
    m = x.mean(dim=axis, keepdim=True)
    v = x.var(dim=axis, keepdim=True, unbiased=False)
    return (x - m) / torch.sqrt(v + eps)
def _scatter_add(tgt, idx, src, axis=0):
    return tgt.clone().index_add_(axis, idx, src)
def _segment_sum(src, seg, n):
    out = torch.zeros((n,) + src.shape[1:], dtype=src.dtype)
    return out.index_add_(0, seg, src)
def _pad(x, pw):
    flat = tuple(v for pair in reversed(pw) for v in pair)
    return torch.nn.functional.pad(x, flat)

kernel_name = 'standalone__edge_featured_mpnn_mpnn__graph'

def setup_inputs():

    _w = (lambda a: (lambda t: t.to(torch.bfloat16) if t.is_floating_point() else t)(torch.as_tensor(a)))
    N, deg, D, De = 12500, 64, 64, max(0, 1)
    E = N * deg
    H = 2 * D
    return {
        "x": _w((lambda *s: torch.randn(*s, dtype=torch.bfloat16) * 0.05)(N, D)),
        "e_attr": _w((lambda *s: torch.randn(*s, dtype=torch.bfloat16) * 1.6)(E, De)),
        "src": _w((lambda lo, hi, *s: torch.randint(lo, hi, s))(0, N, E).to(torch.int64)),
        "dst": _w((lambda lo, hi, *s: torch.randint(lo, hi, s))(0, N, E).to(torch.int64)),
        "w1": _w((lambda *s: torch.randn(*s, dtype=torch.bfloat16) * 1.6)(2 * D + De, H) * (1.0 / (2 * D + De) ** 0.5)),
        "b1": _w((lambda *s: torch.randn(*s, dtype=torch.bfloat16) * 1.6)(H) * 0.01),
        "w2": _w((lambda *s: torch.randn(*s, dtype=torch.bfloat16) * 0.05)(H, D) * (1.0 / H ** 0.5)),
        "b2": _w((lambda *s: torch.randn(*s, dtype=torch.bfloat16) * 0.05)(D) * 0.01),
    }

def reference(x, e_attr, src, dst, w1, b1, w2, b2):
    N, D = x.shape
    h_src = x[src]
    h_dst = x[dst]
    m_in = torch.concatenate([h_src, h_dst, e_attr], axis=-1)
    h = _silu(m_in @ w1 + b1)
    msg = h @ w2 + b2
    return _segment_sum(msg, dst, N)
```

```python
import sys, struct

NAME = "standalone__edge_featured_mpnn_mpnn__graph"
N_NODES = 12500
N_EDGES = 800000
NB = 49
NCH = 250
CH = 3200

WS_REC = 0
WS_TAB = 0x640000
WS_WA = 0x680000
WS_WB = WS_WA + 0x4000
WS_W2 = WS_WA + 0x8000
WS_STAMP = 0x700000

L_HIST = 0
L_FLAG = 512
L_ENT = 4352
ENT_CAP = 3584
L_QT = L_ENT + ENT_CAP * 8 + 512
L_ST = L_QT + 64 * 512
ST_STRIDE = 528
L_XS = L_ST + 64 * ST_STRIDE
L_W2 = L_XS + 8 * 4096
L_END = L_W2 + 16384
assert L_XS % 256 == 0 and L_END <= 163840

def f32bits(x):
    return struct.unpack("<I", struct.pack("<f", x))[0]
NLOG2E = f32bits(-1.4426950408889634)
NLN2 = f32bits(-0.6931471805599453)
PADREC = 0x3FFF

class Asm:
    def __init__(self):
        self.l = []
    def __call__(self, s=""):
        for x in s.strip("\n").split("\n"):
            self.l.append(x)
    def text(self):
        return "\n".join(self.l) + "\n"

def vr(a, n=1):
    return f"v{a}" if n == 1 else f"v[{a}:{a+n-1}]"
def sr(a, n=1):
    return f"s{a}" if n == 1 else f"s[{a}:{a+n-1}]"

DIAG = False
STAMP_S = 70
def stamp(a, k, wait=True):
    if not DIAG:
        return
    a(f"    s_memtime s[68:69]")
    a(f"    s_waitcnt lgkmcnt(0)")
    a(f"    s_mov_b32 s{STAMP_S+k}, s68")
def stamp_real(a, k):
    if not DIAG:
        return
    a(f"    s_memrealtime s[68:69]")
    a(f"    s_waitcnt lgkmcnt(0)")
    a(f"    s_mov_b32 s{STAMP_S+k}, s68")
def stamp_store(a, ws, kern, swave, vtmp, vtmp2):
    if not DIAG:
        return
    a(f"    s_mov_b64 exec, -1")
    a(f"    v_mov_b32 v{vtmp}, 0")
    for k in range(16):
        a(f"    v_writelane_b32 v{vtmp}, s{STAMP_S+k}, {k}")
    a(f"    s_lshl_b32 s68, s2, 4")
    a(f"    s_add_u32 s68, s68, s{swave}")
    a(f"    s_lshl_b32 s68, s68, 6")
    a(f"    s_add_u32 s68, s68, {WS_STAMP + kern*0x40000}")
    a(f"    v_mbcnt_lo_u32_b32 v{vtmp2}, -1, 0")
    a(f"    v_lshl_add_u32 v{vtmp2}, v{vtmp2}, 2, s68")
    a(f"    s_mov_b64 exec, 0xffff")
    a(f"    global_store_dword v{vtmp2}, v{vtmp}, {sr(ws,2)}")

def wave_scan(a, v):
    for sh in (1, 2, 4, 8):
        a(f"    s_nop 1")
        a(f"    v_add_u32_dpp v{v}, v{v}, v{v} row_shr:{sh} row_mask:0xf bank_mask:0xf")
    a(f"    s_nop 1")
    a(f"    v_add_u32_dpp v{v}, v{v}, v{v} row_bcast:15 row_mask:0xa bank_mask:0xf")
    a(f"    s_nop 1")
    a(f"    v_add_u32_dpp v{v}, v{v}, v{v} row_bcast:31 row_mask:0xc bank_mask:0xf")

K1_LDS = 4096 + CH * 8
def gen_k1(a):
    a(f"""
.p2align 8
.globl bin_kernel
.type bin_kernel,@function
bin_kernel:
    s_cmp_ge_u32 s2, 256
    s_cbranch_scc1 K1_end
    s_load_dwordx2 s[8:9], s[0:1], 24        ; dst
    s_load_dwordx4 s[4:7], s[0:1], 8
    s_load_dwordx2 s[10:11], s[0:1], 80      ; ws
    s_cmp_ge_u32 s2, {NCH}
    s_cbranch_scc1 K1_wprep""")
    if DIAG:
        a("    v_lshrrev_b32 v40, 6, v0")
        a("    s_nop 0")
        a("    v_readfirstlane_b32 s30, v40")
        stamp_real(a, 0); stamp(a, 1)
    a(f"""
    s_mul_i32 s3, s2, {CH*4}
    v_lshl_add_u32 v1, v0, 4, s3
    v_lshrrev_b32 v2, 1, v1
    v_lshlrev_b32 v3, 2, v0
    v_mov_b32 v4, 0
    s_waitcnt lgkmcnt(0)
    global_load_dwordx4 v[8:11], v1, s[8:9]
    global_load_dwordx4 v[12:15], v1, s[6:7]
    global_load_dwordx2 v[16:17], v2, s[4:5]
    ds_write_b32 v3, v4
    s_mov_b32 s12, 21400
    s_mov_b32 s13, -{NB}
    s_mov_b32 s14, 0xffff0000
    s_movk_i32 s15, 0x1004
    v_mov_b32 v5, 8
    s_waitcnt lgkmcnt(0)
    s_barrier
    s_waitcnt vmcnt(2)""")
    stamp(a, 2)
    for i in range(4):
        a(f"    v_mul_u32_u24 v{18+i}, s12, v{8+i}")
    for i in range(4):
        a(f"    v_lshrrev_b32 v{18+i}, 20, v{18+i}")
    for i in range(4):
        a(f"    v_lshlrev_b32 v{22+i}, 2, v{18+i}")
        a(f"    ds_add_rtn_u32 v{26+i}, v{22+i}, v5")
    for i in range(4):
        a(f"    v_mad_i32_i24 v{8+i}, v{18+i}, s13, v{8+i}")
    for i in range(4):
        a(f"    v_mul_u32_u24 v{8+i}, s15, v{8+i}")
    for i in range(4):
        a(f"    v_and_b32 v{32+2*i}, 0x10fc, v{8+i}")
    a(f"""
    s_waitcnt lgkmcnt(0)
    s_barrier""")
    stamp(a, 3)
    a(f"""
    v_cmp_gt_u32 vcc, 64, v0
    s_cbranch_vccz K1_noscan
    v_lshlrev_b32 v6, 4, v0
    ds_read_b128 v[44:47], v6
    s_waitcnt lgkmcnt(0)
    v_add_u32 v48, v44, v45
    v_add_u32 v49, v48, v46
    v_add_u32 v50, v49, v47
    v_mov_b32 v51, v50""")
    wave_scan(a, 51)
    a(f"""
    v_sub_u32 v52, v51, v50
    v_add_u32 v53, v52, v44
    v_add_u32 v54, v52, v48
    v_add_u32 v55, v52, v49
    ds_write_b128 v6, v[52:55] offset:1024
    v_lshl_or_b32 v44, v44, 16, v52
    v_lshl_or_b32 v45, v45, 16, v53
    v_lshl_or_b32 v46, v46, 16, v54
    v_lshl_or_b32 v47, v47, 16, v55
    s_lshl_b32 s16, s2, 10
    s_add_u32 s16, s16, {WS_TAB}
    v_add_u32 v6, s16, v6
    global_store_dwordx4 v6, v[44:47], s[10:11]
    s_waitcnt lgkmcnt(0)
K1_noscan:
    s_barrier""")
    stamp(a, 4)
    for i in range(4):
        a(f"    ds_read_b32 v{18+i}, v{22+i} offset:1024")
    a(f"""
    s_waitcnt vmcnt(0)
    v_lshl_or_b32 v33, v16, 16, v12
    v_and_or_b32 v35, v16, s14, v13
    v_lshl_or_b32 v37, v17, 16, v14
    v_and_or_b32 v39, v17, s14, v15
    s_waitcnt lgkmcnt(0)""")
    for i in range(4):
        a(f"    v_add_u32 v{18+i}, v{18+i}, v{26+i}")
        a(f"    ds_write_b64 v{18+i}, v[{32+2*i}:{33+2*i}] offset:4096")
    a(f"""
    v_lshlrev_b32 v6, 4, v0
    s_mul_i32 s16, s2, {CH*8}
    v_add_u32 v7, s16, v6
    v_add_u32 v3, {CH*4}, v7
    s_waitcnt lgkmcnt(0)
    s_barrier""")
    stamp(a, 5)
    a(f"""
    ds_read_b128 v[8:11], v6 offset:4096
    ds_read_b128 v[12:15], v6 offset:{4096 + CH*4}
    s_waitcnt lgkmcnt(1)
    global_store_dwordx4 v7, v[8:11], s[10:11]
    s_waitcnt lgkmcnt(0)
    global_store_dwordx4 v3, v[12:15], s[10:11]""")
    if DIAG:
        stamp(a, 6)
        a("    s_waitcnt vmcnt(0)")
        stamp(a, 7); stamp_real(a, 8)
        stamp_store(a, 10, 0, 30, 40, 41)
    a(f"""
    s_endpgm
K1_wprep:
    s_load_dwordx2 s[20:21], s[0:1], 32      ; w1
    s_load_dwordx2 s[22:23], s[0:1], 48      ; w2
    v_cmp_gt_u32 vcc, 512, v0
    s_cbranch_vccz K1_end
    s_sub_u32 s12, s2, {NCH}
    s_and_b32 s13, s12, 1
    s_lshr_b32 s12, s12, 1
    s_lshl_b32 s13, s13, 9
    v_add_u32 v1, s13, v0                    ; f 0..1023
    v_and_b32 v2, 63, v1                     ; lane
    v_lshrrev_b32 v3, 6, v1
    v_and_b32 v4, 3, v3                      ; ks
    v_lshrrev_b32 v5, 2, v3
    s_lshl_b32 s14, s12, 14
    s_add_u32 s14, s14, {WS_WA}
    v_lshl_add_u32 v20, v1, 4, s14
    s_waitcnt lgkmcnt(0)
    s_cmp_eq_u32 s12, 2
    s_cbranch_scc1 K1_w2
    v_lshrrev_b32 v6, 5, v2
    v_lshlrev_b32 v6, 3, v6
    v_lshl_add_u32 v6, v4, 4, v6
    s_lshl_b32 s15, s12, 6
    v_add_u32 v6, s15, v6                    ; k0
    v_and_b32 v7, 31, v2
    v_lshl_add_u32 v7, v5, 5, v7             ; col
    v_lshlrev_b32 v7, 1, v7
    v_lshl_add_u32 v7, v6, 8, v7""")
    for e in range(8):
        a(f"    global_load_ushort v{8+e}, v7, s[20:21] offset:{256*e}")
    a(f"""
    s_mov_b32 s16, 1.0
    s_cmp_eq_u32 s12, 0
    s_cselect_b32 s16, {NLOG2E:#x}, s16
    s_branch K1_wpack
K1_w2:
    v_lshrrev_b32 v6, 4, v2
    v_lshlrev_b32 v6, 3, v6
    v_lshl_add_u32 v6, v4, 5, v6             ; k0
    v_bfe_u32 v7, v2, 2, 2
    v_lshlrev_b32 v7, 3, v7
    v_and_b32 v16, 3, v2
    v_add_u32 v7, v7, v16
    v_and_b32 v16, 1, v5
    v_lshl_add_u32 v7, v16, 2, v7
    v_lshrrev_b32 v16, 1, v5
    v_lshl_add_u32 v7, v16, 5, v7            ; o
    v_lshlrev_b32 v7, 1, v7
    v_lshl_add_u32 v7, v6, 7, v7""")
    for e in range(8):
        a(f"    global_load_ushort v{8+e}, v7, s[22:23] offset:{128*e}")
    a(f"""
    s_mov_b32 s16, 1.0
K1_wpack:
    s_waitcnt vmcnt(0)""")
    for e in range(8):
        a(f"    v_lshlrev_b32 v{8+e}, 16, v{8+e}")
    for e in range(8):
        a(f"    v_mul_f32 v{8+e}, s16, v{8+e}")
    for e in range(4):
        a(f"    v_cvt_pk_bf16_f32 v{16+e}, v{8+2*e}, v{9+2*e}")
    a(f"""
    global_store_dwordx4 v20, v[16:19], s[10:11]
K1_end:
    s_endpgm
""")

V_W = 0
V_D = 64
V_E = 128
V_A = 160
V_A5 = 176
V_B5 = 178
V_ND = 186
V_T = 202
V_R = 206
V_IX = 210
V_AA = 218
V_AIDX = 222
V_AENT = 223
V_AQ = 224
V_INCQ = 225
V_AS = 226
V_MN = 227
V_PSEL = 228
V_TAB = 229
V_B2 = 230
V_LANE = 234
V_CNT = 235
V_O = 236
NVGPR = 240

S_X = 4; S_WS = 6; S_W1 = 8; S_B1 = 10; S_B2 = 12; S_OUT = 14
S_BIN = 16; S_N0 = 17; S_NN = 18; S_WAVE = 19
S_RX = 20
S_RT = 24
S_RR = 28
S_K = 32
S_PC = 34
S_J = 36
S_O3 = 38; S_O2 = 39; S_O1 = 40
S_T0 = 41; S_NT = 42; S_TMP = 43; S_TMP2 = 44; S_TMP3 = 45
S_MODE = 46
S_M = 48

def x_phase(a, mf_cts, ex_cts, plain, do_exp=True):
    ms = []
    for ks in range(4):
        for c in mf_cts:
            d = vr(V_D + 16*c, 16)
            cin = "0" if ks == 0 else d
            ms.append(f"    v_mfma_f32_32x32x16_bf16 {d}, {vr(V_A+4*ks,4)}, {vr(V_W+16*c+4*ks,4)}, {cin}")
    for c in mf_cts:
        d = vr(V_D + 16*c, 16)
        ms.append(f"    v_mfma_f32_32x32x8_bf16 {d}, {vr(V_A5,2)}, {vr(V_B5+2*c,2)}, {d}")
    es = []
    if do_exp:
        for u in range(8):
            for k, c in enumerate(ex_cts):
                for b in range(2):
                    es.append(f"    v_exp_f32 v{V_E+16*k+2*u+b}, v{V_D+16*c+2*u+b}")
    plain = list(plain)
    k = 0
    for m in range(10):
        a(ms[m])
        if not do_exp:
            if m == 0:
                for p in plain: a(p)
            continue
        n = 3 if m < 9 else 32 - k
        if m == 1 and len(plain) >= 2:
            a(plain.pop(0)); a(plain.pop(0)); n = 2
        for _ in range(n):
            a(es[k]); k += 1
        if m == 8 and plain:
            a(plain.pop(0))
    if do_exp:
        for p in plain: a(p)

def flush_ops(a, cts):
    for k, c in enumerate(cts):
        N = V_ND + 4*c; D = N + 2
        a(f"    v_rcp_f32 v{V_R+2*k}, v{D}")
        a(f"    v_rcp_f32 v{V_R+2*k+1}, v{D+1}")
def flush_ops2(a, cts, nsrc):
    for k, c in enumerate(cts):
        a(f"    v_pk_mul_f32 {vr(V_O+2*k,2)}, {vr(nsrc[k],2)}, {vr(V_R+2*k,2)}")
    for k, c in enumerate(cts):
        a(f"    v_min3_f32 v{V_MN}, v{V_MN}, v{V_R+2*k}, v{V_R+2*k+1}")
    for k, c in enumerate(cts):
        a(f"    ds_add_f32 v{V_AS}, v{V_O+2*k} offset:{128*c}")
        a(f"    ds_add_f32 v{V_AS}, v{V_O+2*k+1} offset:{128*c}")

def y_phase(a, cts, b, head):
    nsrc = [V_ND + 4*c for c in cts]
    for u in range(8):
        if u == 1:
            for h in head: a(h)
        if u == b:
            flush_ops(a, cts)
            for k, c in enumerate(cts):
                D = V_ND + 4*c + 2
                a(f"    v_pk_add_f32 {vr(D,2)}, {vr(V_E+16*k+2*u,2)}, 1.0 op_sel_hi:[1,0]")
            flush_ops2(a, cts, nsrc)
            for k, c in enumerate(cts):
                p = V_D + 16*c + 2*u
                if u == 7:
                    a(f"    v_pk_mov_b32 {vr(V_ND+4*c,2)}, {vr(p,2)}, {vr(p,2)} op_sel:[0,1]")
                else:
                    nsrc[k] = p
            continue
        for k, c in enumerate(cts):
            N = V_ND + 4*c; D = N + 2
            p = V_D + 16*c + 2*u
            a(f"    v_pk_fma_f32 {vr(V_T+2*k,2)}, {vr(p,2)}, {vr(D,2)}, {vr(nsrc[k],2)}")
        for k, c in enumerate(cts):
            N = V_ND + 4*c; D = N + 2
            e = V_E + 16*k + 2*u
            a(f"    v_pk_fma_f32 {vr(D,2)}, {vr(D,2)}, {vr(e,2)}, {vr(D,2)}")
        for k, c in enumerate(cts):
            N = V_ND + 4*c
            e = V_E + 16*k + 2*u
            a(f"    v_pk_fma_f32 {vr(N,2)}, {vr(nsrc[k],2)}, {vr(e,2)}, {vr(V_T+2*k,2)}")
            nsrc[k] = N

def a_reads(ent_off, idx_off, q):
    h = []
    for s in range(4):
        h.append(f"    ds_read_b128 {vr(V_A+4*s,4)}, v{V_AA+s}")
    h.append(f"    ds_read_b64 {vr(V_A5,2)}, v{V_AENT} offset:{ent_off}")
    if q:
        for c in range(4):
            h.append(f"    ds_read_b32 v{V_B5+2*c}, v{V_AQ} offset:{128*c}")
    h += idx_reads(idx_off)
    return h
def idx_reads(idx_off):
    return [f"    ds_read_u16 v{V_IX+2*m}, v{V_AIDX} offset:{idx_off + 64*m}" for m in range(4)]
def dma_ops():
    so = [sr(S_O3), sr(S_O2), sr(S_O1), "0"]
    return [f"    buffer_load_dwordx4 {vr(V_IX+2*m,2)}, {sr(S_RX,4)}, {so[m]} idxen offen offset:{1024*m} lds" for m in range(4)]

VAR_SIZE = 2048
def tile_variant(a, b):
    name = "N" if b is None else str(b)
    a(f".p2align 6")
    a(f"K2_var{name}:")
    bnd = b is not None
    plain0 = []
    if bnd:
        plain0 = [f"    v_add_u32 v{V_AQ}, v{V_AQ}, v{V_INCQ}",
                  f"    v_xor_b32 v{V_INCQ}, 0x400, v{V_INCQ}"]
    plain0.append(f"    v_readlane_b32 s{S_J}, v{V_TAB}, s{S_K}")
    x_phase(a, (2, 3), (0, 1), plain0)
    head = [f"    s_waitcnt vmcnt(0)"] + a_reads(256, 512, bnd) + [f"    s_add_u32 s{S_K}, s{S_K}, 1"]
    y_phase(a, (0, 1), b, head)
    nafter = 4 if (bnd and b >= 1) else 0
    a(f"    s_waitcnt lgkmcnt({nafter})")
    plain1 = [f"    v_perm_b32 v{V_A5}, v{V_A5}, v{V_A5}, v{V_PSEL}",
              f"    v_add_u32 v{V_AENT}, 0x100, v{V_AENT}",
              f"    v_add_u32 v{V_AIDX}, 0x100, v{V_AIDX}"]
    x_phase(a, (0, 1), (2, 3), plain1)
    head = dma_ops() + [f"    s_add_u32 s{S_J}, s{S_J}, s{S_PC}", f"    s_addc_u32 s{S_J+1}, s{S_PC+1}, 0"]
    y_phase(a, (2, 3), b, head)
    if bnd:
        a(f"    v_add_u32 v{V_AS}, {ST_STRIDE}, v{V_AS}")
    a(f"    s_setpc_b64 {sr(S_J,2)}")

def gen_k2(a):
    L = V_LANE
    vT = 64
    vAd = 68
    vAd1 = 72
    vR0 = 76
    vR1 = 92
    vR2 = 100
    vRk = 116
    vBs = 136
    vQ = 0
    t0, t1, t2, t3, t4, t5 = 156, 157, 158, 159, 160, 161
    SM = S_M if not DIAG else 48
    def mask(k):
        regs = [48 + 2*i for i in range(10)] + [86 + 2*i for i in range(8)] + [24, 26]
        return sr(regs[k], 2)
    a(f"""
.p2align 8
.globl mpnn_kernel
.type mpnn_kernel,@function
mpnn_kernel:
    s_cmp_ge_u32 s2, 256
    s_cbranch_scc1 K2_end
    s_load_dwordx2 s[6:7], s[0:1], 80        ; ws
    s_load_dwordx2 s[4:5], s[0:1], 0         ; x
    s_load_dwordx4 s[8:11], s[0:1], 32       ; w1, b1
    s_load_dwordx4 s[12:15], s[0:1], 56      ; b2, out
    v_lshrrev_b32 v1, 6, v0
    v_and_b32 v{L}, 63, v0
    v_readfirstlane_b32 s{S_WAVE}, v1
    s_and_b32 s{S_BIN}, s2, 7
    s_lshl_b32 s{S_BIN}, s{S_BIN}, 5
    s_lshr_b32 s3, s2, 3
    s_add_u32 s{S_BIN}, s{S_BIN}, s3
    s_mul_i32 s{S_N0}, s{S_BIN}, {NB}
    s_sub_u32 s{S_NN}, {N_NODES}, s{S_N0}
    s_min_u32 s{S_NN}, s{S_NN}, {NB}
    v_lshrrev_b32 v{t0}, 3, v0
    s_lshl_b32 s3, s{S_BIN}, 2
    v_lshl_add_u32 v{t1}, v{t0}, 12, s3
    v_and_b32 v{t2}, 7, v0
    v_mul_u32_u24 v{t0}, {4*CH*8}, v{t0}
    v_lshl_add_u32 v{t0}, v{t2}, 4, v{t0}
    s_mov_b32 s{S_MODE}, 0""")
    if DIAG:
        stamp_real(a, 0); stamp(a, 1)
    a(f"""
    s_waitcnt lgkmcnt(0)
    s_add_u32 s{S_RT}, s6, {WS_TAB}
    s_addc_u32 s{S_RT+1}, s7, 0
    s_mov_b32 s{S_RT+2}, {NCH*1024}
    s_mov_b32 s{S_RT+3}, 0x00020000""")
    for i in range(4):
        a(f"    buffer_load_dword v{vT+i}, v{t1}, {sr(S_RT,4)}, 0 offen offset:{1024*i}")
    a(f"""
    s_mov_b32 s{S_RX}, s4
    s_mov_b32 s{S_RX+1}, s5
    s_mov_b32 s{S_RX+2}, {N_NODES*128}
    s_mov_b32 s{S_RX+3}, 0x00020000
    s_and_b32 s{S_TMP}, s{S_WAVE}, 1
    s_lshl_b32 s{S_TMP}, s{S_TMP}, 5
    s_add_u32 s{S_TMP}, s{S_TMP}, s{S_N0}
    s_lshl_b32 s{S_TMP}, s{S_TMP}, 7
    v_and_b32 v{t3}, 31, v{L}                ; j
    v_lshrrev_b32 v{t4}, 5, v{L}             ; hh
    v_lshlrev_b32 v{t1}, 7, v{t3}
    v_lshl_add_u32 v{t1}, v{t4}, 4, v{t1}""")
    for s in range(4):
        a(f"    buffer_load_dwordx4 {vr(16+4*s,4)}, v{t1}, {sr(S_RX,4)}, s{S_TMP} offen offset:{32*s}")
    a(f"""
    s_lshr_b32 s{S_TMP2}, s{S_WAVE}, 1       ; ct
    s_lshl_b32 s{S_TMP}, s{S_TMP2}, 12
    s_add_u32 s{S_TMP}, s{S_TMP}, {WS_WB}
    v_lshl_add_u32 v{t1}, v{L}, 4, s{S_TMP}""")
    for s in range(4):
        a(f"    global_load_dwordx4 {vr(32+4*s,4)}, v{t1}, s[6:7] offset:{1024*s}")
    a(f"""
    s_lshl_b32 s{S_TMP}, s{S_TMP2}, 6
    v_lshl_add_u32 v{t1}, v{t3}, 1, s{S_TMP}
    global_load_ushort v48, v{t1}, s[10:11]
    v_lshlrev_b32 v{t1}, 1, v{t3}
    v_add_u32 v{t1}, {128*256}, v{t1}""")
    for c in range(4):
        a(f"    global_load_ushort v{49+c}, v{t1}, s[8:9] offset:{64*c}")
    a(f"""
    s_and_b32 s{S_TMP}, s{S_WAVE}, 1
    s_lshl_b32 s{S_TMP}, s{S_TMP}, 6
    v_lshrrev_b32 v{t1}, 4, v{L}
    v_lshl_add_u32 v{t1}, v{t1}, 4, s{S_TMP}
    global_load_dwordx4 {vr(V_B2,4)}, v{t1}, s[12:13]
    s_lshl_b32 s{S_TMP}, s{S_WAVE}, 11
    s_add_u32 s{S_TMP3}, s{S_TMP}, {L_XS}
    s_mov_b32 m0, s{S_TMP3}
    s_add_u32 s{S_TMP3}, s{S_TMP}, {WS_WA}
    v_lshl_add_u32 v{t1}, v{L}, 4, s{S_TMP3}
    global_load_lds_dwordx4 v{t1}, s[6:7]
    global_load_lds_dwordx4 v{t1}, s[6:7] offset:1024
    s_add_u32 s{S_TMP3}, s{S_TMP}, {L_W2}
    s_mov_b32 m0, s{S_TMP3}
    v_add_u32 v{t1}, {WS_W2 - WS_WA}, v{t1}
    global_load_lds_dwordx4 v{t1}, s[6:7]
    global_load_lds_dwordx4 v{t1}, s[6:7] offset:1024
    v_mov_b32 v56, 0
    v_mov_b32 v57, {PADREC}
    v_mov_b32 v58, 0
    v_mov_b32 v59, {PADREC}
    v_mov_b32 v60, 0
    v_mov_b32 v61, 0
    v_mov_b32 v62, 0
    v_mov_b32 v63, 0
    v_lshlrev_b32 v{t1}, 4, v0""")
    a(f"""
    v_cmp_gt_u32 vcc, {L_ENT//16}, v0
    s_and_saveexec_b64 s[36:37], vcc
    ds_write_b128 v{t1}, v[60:63]
    s_mov_b64 exec, s[36:37]""")
    nent = L_QT - L_ENT
    for k in range(nent // 8192):
        a(f"    ds_write_b128 v{t1}, v[56:59] offset:{L_ENT + 8192*k}")
    rem = nent % 8192
    a(f"    ds_write_b128 v{t1}, v[56:59] offset:{L_QT - 8192}")
    a(f"    v_add_u32 v{t1}, {L_ST}, v{t1}")
    nst = L_XS - L_ST
    for k in range(nst // 8192):
        a(f"    ds_write_b128 v{t1}, v[60:63] offset:{8192*k}")
    a(f"    ds_write_b128 v{t1}, v[60:63] offset:{nst - 8192}")
    thr = [162, 163, 164, 165, 166, 167]
    a(f"""
    v_lshlrev_b32 v{thr[0]}, 4, v{t2}
    v_add_u32 v{thr[1]}, 8, v{thr[0]}
    v_lshlrev_b32 v{t5}, 3, v{t2}
    v_add_u32 v{thr[2]}, 0x80, v{t5}
    v_add_u32 v{thr[3]}, 0xc0, v{thr[0]}
    v_add_u32 v{thr[4]}, 0xc8, v{thr[0]}
    v_mov_b32 v{thr[5]}, 0x140
    s_mov_b32 s{S_RR}, s6
    s_mov_b32 s{S_RR+1}, s7
    s_mov_b32 s{S_RR+2}, {NCH*CH*8}
    s_mov_b32 s{S_RR+3}, 0x00020000
    s_mov_b32 s{S_O1}, {CH*8}
    s_mov_b32 s{S_O2}, {2*CH*8}
    s_mov_b32 s{S_O3}, {3*CH*8}
    s_waitcnt vmcnt(18)""")
    stamp(a, 2)
    so = ["0", sr(S_O1), sr(S_O2), sr(S_O3)]
    SD = "dst_sel:DWORD dst_unused:UNUSED_PAD"
    for i in range(4):
        a(f"    v_add_u32_sdwa v{vAd+i}, v{vT+i}, v{t0} {SD} src0_sel:WORD_0 src1_sel:DWORD")
        a(f"    buffer_load_dwordx4 {vr(vR0+4*i,4)}, v{vAd+i}, {sr(S_RR,4)}, {so[i]} offen")
    for i in range(4):
        a(f"    v_cmp_gt_u32_sdwa {mask(8+i)}, v{vT+i}, v{thr[2]} src0_sel:WORD_1 src1_sel:DWORD")
        a(f"    v_sub_u32 v{vAd1+i}, v{vAd+i}, v{t5}")
    for i in range(4):
        a(f"    s_or_b64 exec, {mask(8+i)}, 1")
        a(f"    buffer_load_dwordx2 {vr(vR1+2*i,2)}, v{vAd1+i}, {sr(S_RR,4)}, {so[i]} offen offset:128")
    a(f"    s_mov_b64 exec, -1")
    for i in range(4):
        a(f"    v_cmp_gt_u32_sdwa {mask(2*i)}, v{vT+i}, v{thr[0]} src0_sel:WORD_1 src1_sel:DWORD")
        a(f"    v_cmp_gt_u32_sdwa {mask(2*i+1)}, v{vT+i}, v{thr[1]} src0_sel:WORD_1 src1_sel:DWORD")
    a(f"""
    v_max_u32 v{t1}, v{vT}, v{vT+1}
    v_max3_u32 v{t1}, v{t1}, v{vT+2}, v{vT+3}
    v_cmp_gt_u32_sdwa vcc, v{t1}, v{thr[3]} src0_sel:WORD_1 src1_sel:DWORD
    s_mov_b32 s{S_K}, 0
    s_cbranch_vccz K2_nor2a
    s_mov_b32 s{S_K}, 1""")
    for i in range(4):
        a(f"    v_cmp_gt_u32_sdwa {mask(12+2*i)}, v{vT+i}, v{thr[3]} src0_sel:WORD_1 src1_sel:DWORD")
        a(f"    v_cmp_gt_u32_sdwa {mask(13+2*i)}, v{vT+i}, v{thr[4]} src0_sel:WORD_1 src1_sel:DWORD")
        a(f"    buffer_load_dwordx4 {vr(vR2+4*i,4)}, v{vAd+i}, {sr(S_RR,4)}, {so[i]} offen offset:192")
    a(f"""
    v_cmp_gt_u32_sdwa vcc, v{t1}, v{thr[5]} src0_sel:WORD_1 src1_sel:DWORD
    s_cbranch_vccz K2_r2ok
    s_mov_b32 s{S_MODE}, 1
K2_r2ok:
    s_waitcnt vmcnt(12)
    s_branch K2_q
K2_nor2a:
    s_waitcnt vmcnt(8)
K2_q:""")
    for s in range(4):
        cin = "0" if s == 0 else vr(vQ, 16)
        a(f"    v_mfma_f32_32x32x16_bf16 {vr(vQ,16)}, {vr(16+4*s,4)}, {vr(32+4*s,4)}, {cin}")
    a(f"""
    s_mov_b32 s3, {NLOG2E:#x}
    v_lshlrev_b32 v48, 16, v48
    v_mul_f32 v48, s3, v48                   ; -log2e*b1""")
    a(f"    v_cmp_lt_u32 vcc, 31, v{L}")
    for c in range(4):
        a(f"    v_lshlrev_b32 v{49+c}, 16, v{49+c}")
        a(f"    v_mul_f32 v{49+c}, s3, v{49+c}")
        a(f"    v_cvt_pk_bf16_f32 v53, v60, v{49+c}")
        a(f"    v_sub_f32 v54, v{49+c}, v53")
        a(f"    v_cvt_pk_bf16_f32 v54, v60, v54")
        a(f"    v_cndmask_b32 v{V_B5+2*c+1}, v53, v54, vcc")
    a(f"""
    s_and_b32 s{S_TMP}, s{S_WAVE}, 1
    s_lshl_b32 s{S_TMP}, s{S_TMP}, 14
    s_lshl_b32 s{S_TMP3}, s{S_TMP2}, 7
    s_add_u32 s{S_TMP}, s{S_TMP}, s{S_TMP3}
    s_add_u32 s{S_TMP}, s{S_TMP}, {L_QT}
    v_lshl_add_u32 v{t1}, v{t4}, 11, s{S_TMP}
    v_lshl_add_u32 v{t1}, v{t3}, 2, v{t1}""")
    for r in range(16):
        a(f"    v_fma_f32 v{vQ+r}, v{vQ+r}, s3, v48")
    for r in range(16):
        tt = 16 + r
        a(f"    v_cvt_pk_bf16_f32 v{tt}, v60, v{vQ+r}")
        a(f"    v_sub_f32 v{tt}, v{vQ+r}, v{tt}")
        a(f"    v_cvt_pk_bf16_f32 v{tt}, v{vQ+r}, v{tt}")
        a(f"    ds_write_b32 v{t1}, v{tt} offset:{512*(8*(r>>2)+(r&3))}")
    a(f"""
    v_mov_b32 v{t1}, 8
    s_waitcnt lgkmcnt(0)
    s_barrier""")
    stamp(a, 3)
    a(f"    v_lshlrev_b32 v{t5}, 4, v{L}")
    a(f"    v_add_u32 v{t5}, {L_XS}, v{t5}")
    for f in range(16):
        a(f"    ds_read_b128 {vr(V_W+4*f,4)}, v{t5} offset:{1024*f}")
    def col_regs(k):
        if k < 8: return vR0 + 2*k
        if k < 12: return vR1 + 2*(k-8)
        return vR2 + 2*(k-12)
    a(f"    s_waitcnt vmcnt(0)")
    stamp(a, 4)
    for k in range(12):
        a(f"    s_mov_b64 exec, {mask(k)}")
        a(f"    ds_add_rtn_u32 v{vRk+k}, v{col_regs(k)}, v{t1}")
    a(f"""
    s_cmp_eq_u32 s{S_K}, 0
    s_cbranch_scc1 K2_nor2b""")
    for k in range(12, 20):
        a(f"    s_mov_b64 exec, {mask(k)}")
        a(f"    ds_add_rtn_u32 v{vRk+k}, v{col_regs(k)}, v{t1}")
    a(f"""
    s_mov_b64 exec, 1
    v_mov_b32 v{t0}, s{S_MODE}
    v_mov_b32 v{t5}, {L_FLAG}
    ds_or_b32 v{t5}, v{t0}
K2_nor2b:
    s_mov_b64 exec, -1
    v_mul_u32_u24 v{t0}, 0x1004, v{L}
    v_and_b32 v{t0}, 0x10fc, v{t0}
    v_lshrrev_b32 v{t5}, 4, v{L}
    v_xor_b32 v{t5}, v{t5}, v{t2}
    v_lshlrev_b32 v{V_IX+1}, 4, v{t5}
    v_xor_b32 v{V_IX+3}, 64, v{V_IX+1}
    v_mov_b32 v{V_IX+5}, v{V_IX+1}
    v_mov_b32 v{V_IX+7}, v{V_IX+3}
    v_bfe_u32 v{t5}, v{L}, 1, 3
    v_xor_b32 v{t5}, v{t5}, v{t4}
    v_lshlrev_b32 v{t5}, 4, v{t5}
    v_lshl_add_u32 v{t5}, v{t3}, 7, v{t5}
    s_lshl_b32 s{S_TMP}, s{S_WAVE}, 12
    s_add_u32 s{S_TMP}, s{S_TMP}, {L_XS}
    s_mov_b32 m0, s{S_TMP}
    v_add_u32 v{V_AA}, s{S_TMP}, v{t5}
    v_xor_b32 v{V_AA+1}, 32, v{V_AA}
    v_xor_b32 v{V_AA+2}, 64, v{V_AA}
    v_xor_b32 v{V_AA+3}, 0x60, v{V_AA}
    v_mul_u32_u24 v{V_PSEL}, 0x20202, v{t4}
    v_lshl_add_u32 v{V_PSEL}, v{t4}, 25, v{V_PSEL}
    v_add_u32 v{V_PSEL}, 0x01000100, v{V_PSEL}
    v_and_b32 v{V_AENT}, 0x19, v{L}
    v_and_b32 v{t5}, 2, v{L}
    v_lshl_add_u32 v{V_AENT}, v{t5}, 1, v{V_AENT}
    v_bfe_u32 v{t5}, v{L}, 2, 1
    v_lshl_add_u32 v{V_AENT}, v{t5}, 1, v{V_AENT}
    v_lshlrev_b32 v{V_AENT}, 3, v{V_AENT}
    v_and_b32 v{V_AIDX}, 8, v{L}
    v_and_b32 v{t5}, 16, v{L}
    v_lshl_add_u32 v{V_AIDX}, v{t5}, 1, v{V_AIDX}
    v_lshl_add_u32 v{V_AIDX}, v{t4}, 4, v{V_AIDX}
    s_sub_u32 s{S_RX}, s4, 3072
    s_subb_u32 s{S_RX+1}, s5, 0
    s_and_b32 s{S_RX+1}, s{S_RX+1}, 0xffff
    s_or_b32 s{S_RX+1}, s{S_RX+1}, 0x00800000
    s_mov_b32 s{S_RX+2}, {N_NODES}
    s_movk_i32 s{S_O1}, 1024
    s_movk_i32 s{S_O2}, 2048
    s_movk_i32 s{S_O3}, 3072
    s_waitcnt lgkmcnt(0)
    s_barrier""")
    stamp(a, 5)
    vS = 168; vP = 169; vOne = 170
    a(f"""
    ds_read_b32 v{V_CNT}, v{t0}
    v_mov_b32 v{vOne}, 0x3f80
    v_cmp_gt_u32 vcc, s{S_NN}, v{L}
    s_waitcnt lgkmcnt(0)
    v_add_u32 v{vP}, 24, v{V_CNT}
    v_and_b32 v{vP}, 0xffffffe0, v{vP}
    v_max_u32 v{vP}, 0x100, v{vP}
    v_cndmask_b32 v{vP}, 0, v{vP}, vcc
    v_mov_b32 v{vS}, v{vP}""")
    wave_scan(a, vS)
    a(f"""
    s_nop 0
    v_readlane_b32 s{S_TMP}, v{vS}, 63
    v_sub_u32 v{vS}, v{vS}, v{vP}
    s_cmp_gt_u32 s{S_TMP}, {ENT_CAP*8}
    s_cbranch_scc1 K2_slow""")
    for k in range(12):
        a(f"    ds_bpermute_b32 v{vBs+k}, v{col_regs(k)}, v{vS}")
    a(f"""
    s_add_u32 s{S_TMP}, s{S_TMP}, 255
    s_lshr_b32 s{S_TMP}, s{S_TMP}, 8         ; T tiles
    s_and_b32 s{S_TMP2}, s{S_WAVE}, 3
    s_lshl_b32 s{S_TMP2}, s{S_TMP2}, 1
    s_lshr_b32 s{S_TMP3}, s{S_WAVE}, 2
    s_add_u32 s{S_TMP2}, s{S_TMP2}, s{S_TMP3}
    s_mul_i32 s{S_T0}, s{S_TMP2}, s{S_TMP}
    s_add_u32 s{S_NT}, s{S_T0}, s{S_TMP}
    s_lshr_b32 s{S_T0}, s{S_T0}, 3
    s_lshr_b32 s{S_NT}, s{S_NT}, 3
    s_sub_u32 s{S_NT}, s{S_NT}, s{S_T0}""")
    for k in range(12):
        r = col_regs(k)
        if k % 2 == 0:
            a(f"    s_waitcnt lgkmcnt({10-k})")
        a(f"    v_add_u32 v{vBs+k}, v{vBs+k}, v{vRk+k}")
        a(f"    v_lshlrev_b32_sdwa v{r}, v{r}, v{vOne} {SD} src0_sel:BYTE_1 src1_sel:DWORD")
    for k in range(12):
        r = col_regs(k)
        a(f"    s_mov_b64 exec, {mask(k)}")
        a(f"    ds_write_b64 v{vBs+k}, {vr(r,2)} offset:{L_ENT}")
    a(f"    s_mov_b64 exec, -1")
    a(f"""
    s_cmp_eq_u32 s{S_K}, 0
    s_cbranch_scc1 K2_nor2c""")
    for k in range(12, 20):
        a(f"    ds_bpermute_b32 v{vBs+k}, v{col_regs(k)}, v{vS}")
    a(f"    s_waitcnt lgkmcnt(0)")
    for k in range(12, 20):
        r = col_regs(k)
        a(f"    v_add_u32 v{vBs+k}, v{vBs+k}, v{vRk+k}")
        a(f"    v_lshlrev_b32_sdwa v{r}, v{r}, v{vOne} {SD} src0_sel:BYTE_1 src1_sel:DWORD")
        a(f"    s_mov_b64 exec, {mask(k)}")
        a(f"    ds_write_b64 v{vBs+k}, {vr(r,2)} offset:{L_ENT}")
        a(f"    s_mov_b64 exec, -1")
    a(f"""
K2_nor2c:
    s_lshl_b32 s{S_TMP}, s{S_T0}, 8          ; ts*8
    v_cmp_ge_u32 s[36:37], s{S_TMP}, v{vS}
    s_and_b64 s[36:37], s[36:37], vcc
    s_bcnt1_i32_b64 s{S_TMP2}, s[36:37]
    s_sub_u32 s{S_TMP2}, s{S_TMP2}, 1        ; n
    s_andn2_b64 s[36:37], vcc, s[36:37]
    v_subrev_u32 v{t0}, s{S_TMP}, v{vS}
    v_bfe_u32 v{t5}, v{t0}, 5, 3
    v_add_u32 v{t5}, 1, v{t5}
    v_mul_u32_u24 v{t5}, {VAR_SIZE}, v{t5}
    v_lshrrev_b32 v{t0}, 8, v{t0}
    v_min_u32 v{t0}, 63, v{t0}
    v_cndmask_b32 v{t0}, 63, v{t0}, s[36:37]
    v_lshlrev_b32 v{t0}, 2, v{t0}
    v_mov_b32 v{V_TAB}, 0
    ds_permute_b32 v{V_TAB}, v{t0}, v{t5}
    s_add_u32 s{S_TMP}, s{S_TMP}, {L_ENT}
    v_add_u32 v{V_AENT}, s{S_TMP}, v{V_AENT}
    s_add_u32 s{S_TMP}, s{S_TMP}, 4
    v_add_u32 v{V_AIDX}, s{S_TMP}, v{V_AIDX}
    s_mul_i32 s{S_TMP}, s{S_TMP2}, {ST_STRIDE}
    s_add_u32 s{S_TMP}, s{S_TMP}, {L_ST}
    v_lshl_add_u32 v{V_AS}, v{t3}, 2, s{S_TMP}
    v_xor_b32 v{t5}, s{S_TMP2}, v{t4}
    v_and_b32 v{t5}, 1, v{t5}
    s_lshl_b32 s{S_TMP}, s{S_TMP2}, 9
    s_add_u32 s{S_TMP}, s{S_TMP}, {L_QT}
    v_lshl_add_u32 v{V_AQ}, v{t5}, 9, s{S_TMP}
    v_lshl_add_u32 v{V_AQ}, v{t3}, 2, v{V_AQ}
    v_xor_b32 v{t5}, 1, v{t5}
    v_lshlrev_b32 v{V_INCQ}, 10, v{t5}
    v_mov_b32 v{V_MN}, 1.0""")
    for c in range(4):
        a(f"    v_mov_b32 v{V_ND+4*c}, 0")
        a(f"    v_mov_b32 v{V_ND+4*c+1}, 0")
        a(f"    v_mov_b32 v{V_ND+4*c+2}, 1.0")
        a(f"    v_mov_b32 v{V_ND+4*c+3}, 1.0")
    a(f"""
    s_getpc_b64 {sr(S_PC,2)}
K2_pc:
    s_add_u32 s{S_PC}, s{S_PC}, K2_varN - K2_pc
    s_addc_u32 s{S_PC+1}, s{S_PC+1}, 0
    s_mov_b32 s{S_TMP}, K2_exit - K2_varN
    s_mov_b32 s{S_K}, 1
    s_waitcnt lgkmcnt(0)
    s_barrier""")
    stamp(a, 6)
    a(f"""
    s_cmp_eq_u32 s{S_NT}, 0
    s_cbranch_scc1 K2_join""")
    for h in idx_reads(0): a(h)
    a(f"    s_mov_b32 s{S_TMP3}, m0")
    a(f"    s_mov_b32 m0, s{S_NT}")
    a(f"    s_nop 0")
    a(f"    v_writelane_b32 v{V_TAB}, s{S_TMP}, m0")
    a(f"    s_mov_b32 m0, s{S_TMP3}")
    a(f"    s_waitcnt lgkmcnt(0)")
    for h in dma_ops(): a(h)
    a(f"    v_readlane_b32 s{S_J}, v{V_TAB}, 0")
    a(f"    s_waitcnt vmcnt(0)")
    stamp(a, 7)
    for h in a_reads(0, 256, True): a(h)
    a(f"    s_add_u32 s{S_J}, s{S_J}, s{S_PC}")
    a(f"    s_addc_u32 s{S_J+1}, s{S_PC+1}, 0")
    a(f"    s_waitcnt lgkmcnt(0)")
    for h in dma_ops(): a(h)
    x_phase(a, (0, 1), None, [f"    v_perm_b32 v{V_A5}, v{V_A5}, v{V_A5}, v{V_PSEL}"], do_exp=False)
    a(f"    s_nop 15")
    stamp(a, 8)
    a(f"    s_setpc_b64 {sr(S_J,2)}")
    a(f".p2align 8")
    start = len(a.l)
    for vi, b in enumerate([None] + list(range(8))):
        tile_variant(a, b)
        nm = "N" if b is None else str(b)
        a(f".org K2_varN + {VAR_SIZE*(vi+1)}, 0")
    a(f"K2_exit:")
    stamp(a, 9)
    for cts in ((0, 1), (2, 3)):
        flush_ops(a, cts)
        a("    s_nop 0")
        flush_ops2(a, cts, [V_ND + 4*c for c in cts])
    a(f"""
    v_cmp_eq_f32 vcc, 0, v{V_MN}
    s_cbranch_vccz K2_join
    v_mov_b32 v64, 1
    v_mov_b32 v65, {L_FLAG}
    ds_or_b32 v65, v64
K2_join:
    v_and_b32 v64, 15, v{L}
    v_lshrrev_b32 v65, 4, v{L}               ; g
    s_lshr_b32 s{S_TMP}, s{S_WAVE}, 1
    s_lshl_b32 s{S_TMP}, s{S_TMP}, 4
    v_add_u32 v64, s{S_TMP}, v64             ; node
    v_mul_u32_u24 v66, {ST_STRIDE}, v64
    v_lshl_add_u32 v66, v65, 5, v66
    v_add_u32 v66, {L_ST}, v66
    s_and_b32 s{S_TMP2}, s{S_WAVE}, 1
    s_lshl_b32 s{S_TMP3}, s{S_TMP2}, 13
    s_add_u32 s{S_TMP3}, s{S_TMP3}, {L_W2}
    v_lshl_add_u32 v67, v{L}, 4, s{S_TMP3}""")
    for f in range(8):
        a(f"    ds_read_b128 {vr(4*f,4)}, v67 offset:{1024*f}")
    a(f"""
    v_lshlrev_b32 v68, 2, v64
    ds_bpermute_b32 v69, v68, v{V_CNT}
    v_lshlrev_b32 v70, 7, v64
    v_lshl_add_u32 v70, v65, 4, v70
    s_lshl_b32 s{S_TMP2}, s{S_TMP2}, 6
    s_lshl_b32 s{S_TMP}, s{S_N0}, 7
    s_add_u32 s{S_RT}, s14, s{S_TMP}
    s_addc_u32 s{S_RT+1}, s15, 0
    s_lshl_b32 s{S_RT+2}, s{S_NN}, 7
    s_mov_b32 s{S_RT+3}, 0x00020000
    s_mov_b32 s3, {NLN2:#x}""")
    for q in range(4):
        a(f"    v_lshlrev_b32 v{72+2*q}, 16, v{V_B2+q}")
        a(f"    v_and_b32 v{73+2*q}, 0xffff0000, v{V_B2+q}")
    a(f"""
    s_waitcnt lgkmcnt(0)
    v_cvt_f32_u32 v69, v69
    v_mul_f32 v69, 0.125, v69              ; placeholder
    s_barrier                                ; all sums complete""".replace("v_mul_f32 v69, 0.125, v69              ; placeholder", "v_mul_f32 v69, 0x3e000000, v69"))
    stamp(a, 10)
    for ks in range(4):
        a(f"    ds_read_b128 {vr(96+8*ks,4)}, v66 offset:{128*ks}")
        a(f"    ds_read_b128 {vr(100+8*ks,4)}, v66 offset:{128*ks+16}")
    a(f"    v_mov_b32 v71, {L_FLAG}")
    a(f"    ds_read_b32 v71, v71")
    for q in range(8):
        a(f"    v_mul_f32 v{72+q}, v69, v{72+q}")
    for ks in range(4):
        a(f"    s_waitcnt lgkmcnt({7-2*ks})")
        for q in range(4):
            a(f"    v_cvt_pk_bf16_f32 v{80+4*ks+q}, v{96+8*ks+2*q}, v{97+8*ks+2*q}")
    a("    s_nop 1")
    for ks in range(4):
        for ot in range(2):
            d = vr(128+4*ot, 4)
            cin = "0" if ks == 0 else d
            a(f"    v_mfma_f32_16x16x32_bf16 {d}, {vr(16*ot+4*ks,4)}, {vr(80+4*ks,4)}, {cin}")
    a("    s_nop 7")
    for q in range(8):
        a(f"    v_fma_f32 v{72+q}, v{128+q}, s3, v{72+q}")
    for q in range(4):
        a(f"    v_cvt_pk_bf16_f32 v{80+q}, v{72+2*q}, v{73+2*q}")
    a(f"    buffer_store_dwordx4 v[80:83], v70, {sr(S_RT,4)}, s{S_TMP2} offen")
    if DIAG:
        stamp(a, 11)
        a("    s_waitcnt vmcnt(0)")
        stamp(a, 12); stamp_real(a, 13)
        a(f"    s_mov_b32 s{STAMP_S+14}, s{S_NT}")
        a(f"    s_getreg_b32 s{STAMP_S+15}, hwreg(HW_REG_HW_ID)")
        stamp_store(a, 6, 1, S_WAVE, 64, 65)
    a(f"""
K2_slow:
K2_end:
    s_endpgm
""")

def descriptor(a, name, vgpr, sgpr):
    acc = (vgpr + 3) // 4 * 4
    a(f"""
.amdhsa_kernel {name}
  .amdhsa_next_free_vgpr {vgpr}
  .amdhsa_next_free_sgpr {sgpr}
  .amdhsa_accum_offset {acc}
  .amdhsa_group_segment_fixed_size 0
  .amdhsa_kernarg_size 88
  .amdhsa_user_sgpr_count 2
  .amdhsa_user_sgpr_kernarg_segment_ptr 1
  .amdhsa_system_sgpr_workgroup_id_x 1
  .amdhsa_float_denorm_mode_32 3
.end_amdhsa_kernel""")

def main():
    global DIAG
    out = sys.argv[1]
    DIAG = "diag" in sys.argv[2:]
    a = Asm()
    a(f"""; Edge-featured MPNN layer: out[n] = sum_(e: dst=n) (silu([x[src],x[dst],e] w1 + b1) w2 + b2)
; @launch kernel=bin_kernel grid=(256,1,1) block=(800,1,1) lds={K1_LDS}
; @launch kernel=mpnn_kernel grid=(256,1,1) block=(512,1,1) lds={L_END}
.amdgcn_target "amdgcn-amd-amdhsa--gfx950"
.text""")
    gen_k1(a)
    gen_k2(a)
    a('.section .rodata,"a"')
    a(".p2align 6")
    descriptor(a, "bin_kernel", 56, 102 if DIAG else 32)
    a(".p2align 6")
    descriptor(a, "mpnn_kernel", NVGPR, 102)
    open(out, "w").write(a.text())

if __name__ == "__main__":
    main()
```

```python
import sys, struct

NAME = "standalone__edge_featured_mpnn_mpnn__graph"
N_NODES = 12500
N_EDGES = 800000
NB = 49
NCH = 250
CH = 3200

WS_REC = 0
WS_TAB = 0x640000
WS_WA = 0x680000
WS_WB = WS_WA + 0x4000
WS_W2 = WS_WA + 0x8000
WS_STAMP = 0x700000

L_HIST = 0
L_FLAG = 512
L_ENT = 4352
ENT_CAP = 3584
L_QT = L_ENT + ENT_CAP * 8 + 512
L_ST = L_QT + 64 * 512
ST_STRIDE = 528
L_XS = L_ST + 64 * ST_STRIDE
L_W2 = L_XS + 8 * 4096
L_END = L_W2 + 16384
assert L_XS % 256 == 0 and L_END <= 163840

def f32bits(x):
    return struct.unpack("<I", struct.pack("<f", x))[0]
NLOG2E = f32bits(-1.4426950408889634)
NLN2 = f32bits(-0.6931471805599453)
PADREC = 0x3FFF

class Asm:
    def __init__(self):
        self.l = []
    def __call__(self, s=""):
        for x in s.strip("\n").split("\n"):
            self.l.append(x)
    def text(self):
        return "\n".join(self.l) + "\n"

def vr(a, n=1):
    return f"v{a}" if n == 1 else f"v[{a}:{a+n-1}]"
def sr(a, n=1):
    return f"s{a}" if n == 1 else f"s[{a}:{a+n-1}]"

DIAG = False
OPT = set()
STAMP_S = 70
def stamp(a, k, wait=True):
    if not DIAG:
        return
    a(f"    s_memtime s[68:69]")
    a(f"    s_waitcnt lgkmcnt(0)")
    a(f"    s_mov_b32 s{STAMP_S+k}, s68")
def stamp_real(a, k):
    if not DIAG:
        return
    a(f"    s_memrealtime s[68:69]")
    a(f"    s_waitcnt lgkmcnt(0)")
    a(f"    s_mov_b32 s{STAMP_S+k}, s68")
def stamp_store(a, ws, kern, swave, vtmp, vtmp2):
    if not DIAG:
        return
    a(f"    s_mov_b64 exec, -1")
    a(f"    v_mov_b32 v{vtmp}, 0")
    for k in range(16):
        a(f"    v_writelane_b32 v{vtmp}, s{STAMP_S+k}, {k}")
    a(f"    s_lshl_b32 s68, s2, 4")
    a(f"    s_add_u32 s68, s68, s{swave}")
    a(f"    s_lshl_b32 s68, s68, 6")
    a(f"    s_add_u32 s68, s68, {WS_STAMP + kern*0x40000}")
    a(f"    v_mbcnt_lo_u32_b32 v{vtmp2}, -1, 0")
    a(f"    v_lshl_add_u32 v{vtmp2}, v{vtmp2}, 2, s68")
    a(f"    s_mov_b64 exec, 0xffff")
    a(f"    global_store_dword v{vtmp2}, v{vtmp}, {sr(ws,2)}")

def wave_scan(a, v):
    for sh in (1, 2, 4, 8):
        a(f"    s_nop 1")
        a(f"    v_add_u32_dpp v{v}, v{v}, v{v} row_shr:{sh} row_mask:0xf bank_mask:0xf")
    a(f"    s_nop 1")
    a(f"    v_add_u32_dpp v{v}, v{v}, v{v} row_bcast:15 row_mask:0xa bank_mask:0xf")
    a(f"    s_nop 1")
    a(f"    v_add_u32_dpp v{v}, v{v}, v{v} row_bcast:31 row_mask:0xc bank_mask:0xf")

K1_LDS = 4096 + CH * 8
def gen_k1(a):
    a(f"""
.p2align 8
.globl bin_kernel
.type bin_kernel,@function
bin_kernel:
    s_cmp_ge_u32 s2, 256
    s_cbranch_scc1 K1_end
    s_load_dwordx2 s[8:9], s[0:1], 24        ; dst
    s_load_dwordx4 s[4:7], s[0:1], 8
    s_load_dwordx2 s[10:11], s[0:1], 80      ; ws
    s_cmp_ge_u32 s2, {NCH}
    s_cbranch_scc1 K1_wprep""")
    if DIAG:
        a("    v_lshrrev_b32 v40, 6, v0")
        a("    s_nop 0")
        a("    v_readfirstlane_b32 s30, v40")
        stamp_real(a, 0); stamp(a, 1)
    a(f"""
    s_mul_i32 s3, s2, {CH*4}
    v_lshl_add_u32 v1, v0, 4, s3
    v_lshrrev_b32 v2, 1, v1
    v_lshlrev_b32 v3, 2, v0
    v_mov_b32 v4, 0
    s_waitcnt lgkmcnt(0)
    global_load_dwordx4 v[8:11], v1, s[8:9]
    global_load_dwordx4 v[12:15], v1, s[6:7]
    global_load_dwordx2 v[16:17], v2, s[4:5]
    ds_write_b32 v3, v4
    s_mov_b32 s12, 21400
    s_mov_b32 s13, -{NB}
    s_mov_b32 s14, 0xffff0000
    s_movk_i32 s15, 0x1004
    v_mov_b32 v5, 8
    s_waitcnt lgkmcnt(0)
    s_barrier
    s_waitcnt vmcnt(2)""")
    stamp(a, 2)
    for i in range(4):
        a(f"    v_mul_u32_u24 v{18+i}, s12, v{8+i}")
    for i in range(4):
        a(f"    v_lshrrev_b32 v{18+i}, 20, v{18+i}")
    for i in range(4):
        a(f"    v_lshlrev_b32 v{22+i}, 2, v{18+i}")
        a(f"    ds_add_rtn_u32 v{26+i}, v{22+i}, v5")
    for i in range(4):
        a(f"    v_mad_i32_i24 v{8+i}, v{18+i}, s13, v{8+i}")
    for i in range(4):
        a(f"    v_mul_u32_u24 v{8+i}, s15, v{8+i}")
    for i in range(4):
        a(f"    v_and_b32 v{32+2*i}, 0x10fc, v{8+i}")
    a(f"""
    s_waitcnt lgkmcnt(0)
    s_barrier""")
    stamp(a, 3)
    a(f"""
    v_cmp_gt_u32 vcc, 64, v0
    s_cbranch_vccz K1_noscan
    v_lshlrev_b32 v6, 4, v0
    ds_read_b128 v[44:47], v6
    s_waitcnt lgkmcnt(0)
    v_add_u32 v48, v44, v45
    v_add_u32 v49, v48, v46
    v_add_u32 v50, v49, v47
    v_mov_b32 v51, v50""")
    wave_scan(a, 51)
    a(f"""
    v_sub_u32 v52, v51, v50
    v_add_u32 v53, v52, v44
    v_add_u32 v54, v52, v48
    v_add_u32 v55, v52, v49
    ds_write_b128 v6, v[52:55] offset:1024
    v_lshl_or_b32 v44, v44, 16, v52
    v_lshl_or_b32 v45, v45, 16, v53
    v_lshl_or_b32 v46, v46, 16, v54
    v_lshl_or_b32 v47, v47, 16, v55
    s_lshl_b32 s16, s2, 10
    s_add_u32 s16, s16, {WS_TAB}
    v_add_u32 v6, s16, v6
    global_store_dwordx4 v6, v[44:47], s[10:11]
    s_waitcnt lgkmcnt(0)
K1_noscan:
    s_barrier""")
    stamp(a, 4)
    for i in range(4):
        a(f"    ds_read_b32 v{18+i}, v{22+i} offset:1024")
    a(f"""
    s_waitcnt vmcnt(0)
    v_lshl_or_b32 v33, v16, 16, v12
    v_and_or_b32 v35, v16, s14, v13
    v_lshl_or_b32 v37, v17, 16, v14
    v_and_or_b32 v39, v17, s14, v15
    s_waitcnt lgkmcnt(0)""")
    for i in range(4):
        a(f"    v_add_u32 v{18+i}, v{18+i}, v{26+i}")
        a(f"    ds_write_b64 v{18+i}, v[{32+2*i}:{33+2*i}] offset:4096")
    a(f"""
    v_lshlrev_b32 v6, 4, v0
    s_mul_i32 s16, s2, {CH*8}
    v_add_u32 v7, s16, v6
    v_add_u32 v3, {CH*4}, v7
    s_waitcnt lgkmcnt(0)
    s_barrier""")
    stamp(a, 5)
    a(f"""
    ds_read_b128 v[8:11], v6 offset:4096
    ds_read_b128 v[12:15], v6 offset:{4096 + CH*4}
    s_waitcnt lgkmcnt(1)
    global_store_dwordx4 v7, v[8:11], s[10:11]
    s_waitcnt lgkmcnt(0)
    global_store_dwordx4 v3, v[12:15], s[10:11]""")
    if DIAG:
        stamp(a, 6)
        a("    s_waitcnt vmcnt(0)")
        stamp(a, 7); stamp_real(a, 8)
        stamp_store(a, 10, 0, 30, 40, 41)
    a(f"""
    s_endpgm
K1_wprep:
    s_load_dwordx2 s[20:21], s[0:1], 32      ; w1
    s_load_dwordx2 s[22:23], s[0:1], 48      ; w2
    v_cmp_gt_u32 vcc, 512, v0
    s_cbranch_vccz K1_end
    s_sub_u32 s12, s2, {NCH}
    s_and_b32 s13, s12, 1
    s_lshr_b32 s12, s12, 1
    s_lshl_b32 s13, s13, 9
    v_add_u32 v1, s13, v0                    ; f 0..1023
    v_and_b32 v2, 63, v1                     ; lane
    v_lshrrev_b32 v3, 6, v1
    v_and_b32 v4, 3, v3                      ; ks
    v_lshrrev_b32 v5, 2, v3
    s_lshl_b32 s14, s12, 14
    s_add_u32 s14, s14, {WS_WA}
    v_lshl_add_u32 v20, v1, 4, s14
    s_waitcnt lgkmcnt(0)
    s_cmp_eq_u32 s12, 2
    s_cbranch_scc1 K1_w2
    v_lshrrev_b32 v6, 5, v2
    v_lshlrev_b32 v6, 3, v6
    v_lshl_add_u32 v6, v4, 4, v6
    s_lshl_b32 s15, s12, 6
    v_add_u32 v6, s15, v6                    ; k0
    v_and_b32 v7, 31, v2
    v_lshl_add_u32 v7, v5, 5, v7             ; col
    v_lshlrev_b32 v7, 1, v7
    v_lshl_add_u32 v7, v6, 8, v7""")
    for e in range(8):
        a(f"    global_load_ushort v{8+e}, v7, s[20:21] offset:{256*e}")
    a(f"""
    s_mov_b32 s16, 1.0
    s_cmp_eq_u32 s12, 0
    s_cselect_b32 s16, {NLOG2E:#x}, s16
    s_branch K1_wpack
K1_w2:
    v_lshrrev_b32 v6, 4, v2
    v_lshlrev_b32 v6, 3, v6
    v_lshl_add_u32 v6, v4, 5, v6             ; k0
    v_bfe_u32 v7, v2, 2, 2
    v_lshlrev_b32 v7, 3, v7
    v_and_b32 v16, 3, v2
    v_add_u32 v7, v7, v16
    v_and_b32 v16, 1, v5
    v_lshl_add_u32 v7, v16, 2, v7
    v_lshrrev_b32 v16, 1, v5
    v_lshl_add_u32 v7, v16, 5, v7            ; o
    v_lshlrev_b32 v7, 1, v7
    v_lshl_add_u32 v7, v6, 7, v7""")
    for e in range(8):
        a(f"    global_load_ushort v{8+e}, v7, s[22:23] offset:{128*e}")
    a(f"""
    s_mov_b32 s16, 1.0
K1_wpack:
    s_waitcnt vmcnt(0)""")
    for e in range(8):
        a(f"    v_lshlrev_b32 v{8+e}, 16, v{8+e}")
    for e in range(8):
        a(f"    v_mul_f32 v{8+e}, s16, v{8+e}")
    for e in range(4):
        a(f"    v_cvt_pk_bf16_f32 v{16+e}, v{8+2*e}, v{9+2*e}")
    a(f"""
    global_store_dwordx4 v20, v[16:19], s[10:11]
K1_end:
    s_endpgm
""")

V_W = 0
V_D = 64
V_E = 128
V_A = 160
V_A5 = 176
V_B5 = 178
V_ND = 186
V_T = 202
V_R = 206
V_IX = 210
V_AA = 218
V_AIDX = 222
V_AENT = 223
V_AQ = 224
V_INCQ = 225
V_AS = 226
V_MN = 227
V_PSEL = 228
V_TAB = 229
V_B2 = 230
V_LANE = 234
V_CNT = 235
V_O = 236
NVGPR = 240

S_X = 4; S_WS = 6; S_W1 = 8; S_B1 = 10; S_B2 = 12; S_OUT = 14
S_BIN = 16; S_N0 = 17; S_NN = 18; S_WAVE = 19
S_RX = 20
S_RT = 24
S_RR = 28
S_K = 32
S_PC = 34
S_J = 36
S_O3 = 38; S_O2 = 39; S_O1 = 40
S_T0 = 41; S_NT = 42; S_TMP = 43; S_TMP2 = 44; S_TMP3 = 45
S_MODE = 46
S_SLOT = 47
S_TT = 33
S_M = 48

def x_phase(a, mf_cts, ex_cts, plain, do_exp=True):
    ms = []
    for ks in range(4):
        for c in mf_cts:
            d = vr(V_D + 16*c, 16)
            cin = "0" if ks == 0 else d
            ms.append(f"    v_mfma_f32_32x32x16_bf16 {d}, {vr(V_A+4*ks,4)}, {vr(V_W+16*c+4*ks,4)}, {cin}")
    for c in mf_cts:
        d = vr(V_D + 16*c, 16)
        ms.append(f"    v_mfma_f32_32x32x8_bf16 {d}, {vr(V_A5,2)}, {vr(V_B5+2*c,2)}, {d}")
    es = []
    if do_exp:
        for u in range(8):
            for k, c in enumerate(ex_cts):
                for b in range(2):
                    es.append(f"    v_exp_f32 v{V_E+16*k+2*u+b}, v{V_D+16*c+2*u+b}")
    plain = list(plain)
    k = 0
    for m in range(10):
        a(ms[m])
        if not do_exp:
            if m == 0:
                for p in plain: a(p)
            continue
        n = 3 if m < 9 else 32 - k
        if m == 1 and len(plain) >= 2:
            a(plain.pop(0)); a(plain.pop(0)); n = 2
        for _ in range(n):
            a(es[k]); k += 1
        if m == 8 and plain:
            a(plain.pop(0))
    if do_exp:
        for p in plain: a(p)

def flush_ops(a, cts):
    for k, c in enumerate(cts):
        N = V_ND + 4*c; D = N + 2
        a(f"    v_mul_f32 v{V_R+k}, v{D}, v{D+1}")
    for k, c in enumerate(cts):
        N = V_ND + 4*c; D = N + 2
        a(f"    v_pk_mul_f32 {vr(V_O+2*k,2)}, {vr(N,2)}, {vr(D,2)} op_sel:[0,1] op_sel_hi:[1,0]")
    for k, c in enumerate(cts):
        a(f"    v_rcp_f32 v{V_R+k}, v{V_R+k}")
    for k, c in enumerate(cts):
        a(f"    v_add_f32 v{V_O+2*k}, v{V_O+2*k}, v{V_O+2*k+1}")
    for k, c in enumerate(cts):
        a(f"    v_mul_f32 v{V_O+2*k}, v{V_O+2*k}, v{V_R+k}")
def flush_ops2(a, cts):
    a(f"    v_permlane32_swap_b32 v{V_O}, v{V_O+2}")
    a(f"    v_min3_f32 v{V_MN}, v{V_MN}, v{V_R}, v{V_R+1}")
    a(f"    v_add_f32 v{V_O}, v{V_O}, v{V_O+2}")
    a(f"    ds_write_b32 v{V_AS}, v{V_O} offset:{128*cts[0]}")

def y_phase(a, cts, b, head):
    nsrc = [V_ND + 4*c for c in cts]
    for u in range(8):
        if u == 1:
            for h in head: a(h)
        if u == b:
            flush_ops(a, cts)
            for k, c in enumerate(cts):
                D = V_ND + 4*c + 2
                a(f"    v_pk_add_f32 {vr(D,2)}, {vr(V_E+16*k+2*u,2)}, 1.0 op_sel_hi:[1,0]")
            flush_ops2(a, cts)
            for k, c in enumerate(cts):
                p = V_D + 16*c + 2*u
                if u == 7:
                    a(f"    v_pk_mov_b32 {vr(V_ND+4*c,2)}, {vr(p,2)}, {vr(p,2)} op_sel:[0,1]")
                else:
                    nsrc[k] = p
            continue
        for k, c in enumerate(cts):
            N = V_ND + 4*c; D = N + 2
            p = V_D + 16*c + 2*u
            a(f"    v_pk_fma_f32 {vr(V_T+2*k,2)}, {vr(p,2)}, {vr(D,2)}, {vr(nsrc[k],2)}")
        for k, c in enumerate(cts):
            N = V_ND + 4*c; D = N + 2
            e = V_E + 16*k + 2*u
            a(f"    v_pk_fma_f32 {vr(D,2)}, {vr(D,2)}, {vr(e,2)}, {vr(D,2)}")
        for k, c in enumerate(cts):
            N = V_ND + 4*c
            e = V_E + 16*k + 2*u
            a(f"    v_pk_fma_f32 {vr(N,2)}, {vr(nsrc[k],2)}, {vr(e,2)}, {vr(V_T+2*k,2)}")
            nsrc[k] = N

def a_reads(ent_off, idx_off, q):
    h = []
    for s in range(4):
        h.append(f"    ds_read_b128 {vr(V_A+4*s,4)}, v{V_AA+s}")
    h.append(f"    ds_read_b64 {vr(V_A5,2)}, v{V_AENT} offset:{ent_off}")
    if q:
        for c in range(4):
            h.append(f"    ds_read_b32 v{V_B5+2*c}, v{V_AQ} offset:{128*c}")
    h += idx_reads(idx_off)
    return h
def idx_reads(idx_off):
    return [f"    ds_read_u16 v{V_IX+2*m}, v{V_AIDX} offset:{idx_off + 64*m}" for m in range(4)]
def dma_ops():
    so = [sr(S_O3), sr(S_O2), sr(S_O1), "0"]
    return [f"    buffer_load_dwordx4 {vr(V_IX+2*m,2)}, {sr(S_RX,4)}, {so[m]} idxen offen offset:{1024*m} lds" for m in range(4)]

VAR_SIZE = 2048
def tile_variant(a, b):
    name = "N" if b is None else str(b)
    a(f".p2align 6")
    a(f"K2_var{name}:")
    bnd = b is not None
    plain0 = []
    if bnd:
        plain0 = [f"    v_add_u32 v{V_AQ}, v{V_AQ}, v{V_INCQ}",
                  f"    v_xor_b32 v{V_INCQ}, 0x400, v{V_INCQ}"]
    plain0.append(f"    v_readlane_b32 s{S_J}, v{V_TAB}, s{S_K}")
    x_phase(a, (2, 3), (0, 1), plain0)
    head = [f"    s_waitcnt vmcnt(0)"] + a_reads(256, 512, bnd) + [f"    s_add_u32 s{S_K}, s{S_K}, 1"]
    y_phase(a, (0, 1), b, head)
    nafter = 1 if (bnd and b >= 1) else 0
    a(f"    s_waitcnt lgkmcnt({nafter})")
    plain1 = [f"    v_perm_b32 v{V_A5}, v{V_A5}, v{V_A5}, v{V_PSEL}",
              f"    v_add_u32 v{V_AENT}, 0x100, v{V_AENT}",
              f"    v_add_u32 v{V_AIDX}, 0x100, v{V_AIDX}"]
    x_phase(a, (0, 1), (2, 3), plain1)
    head = ([] if "nodma" in OPT else dma_ops()) + [f"    s_add_u32 s{S_J}, s{S_J}, s{S_PC}", f"    s_addc_u32 s{S_J+1}, s{S_PC+1}, 0"]
    y_phase(a, (2, 3), b, head)
    if bnd:
        a(f"    v_add_u32 v{V_AS}, {ST_STRIDE}, v{V_AS}")
    a(f"    s_setpc_b64 {sr(S_J,2)}")

def gen_k2(a):
    L = V_LANE
    vT = 64
    vAd = 68
    vAd1 = 72
    vR0 = 76
    vR1 = 92
    vR2 = 100
    vRk = 116
    vBs = 136
    vQ = 0
    t0, t1, t2, t3, t4, t5 = 156, 157, 158, 159, 160, 161
    SM = S_M if not DIAG else 48
    def mask(k):
        regs = [48 + 2*i for i in range(10)] + [86 + 2*i for i in range(8)] + [24, 26]
        return sr(regs[k], 2)
    a(f"""
.p2align 8
.globl mpnn_kernel
.type mpnn_kernel,@function
mpnn_kernel:
    s_cmp_ge_u32 s2, 256
    s_cbranch_scc1 K2_end
    s_load_dwordx2 s[6:7], s[0:1], 80        ; ws
    s_load_dwordx2 s[4:5], s[0:1], 0         ; x
    s_load_dwordx4 s[8:11], s[0:1], 32       ; w1, b1
    s_load_dwordx4 s[12:15], s[0:1], 56      ; b2, out
    v_lshrrev_b32 v1, 6, v0
    v_and_b32 v{L}, 63, v0
    v_readfirstlane_b32 s{S_WAVE}, v1
    s_and_b32 s{S_BIN}, s2, 7
    s_lshl_b32 s{S_BIN}, s{S_BIN}, 5
    s_lshr_b32 s3, s2, 3
    s_add_u32 s{S_BIN}, s{S_BIN}, s3
    s_mul_i32 s{S_N0}, s{S_BIN}, {NB}
    s_sub_u32 s{S_NN}, {N_NODES}, s{S_N0}
    s_min_u32 s{S_NN}, s{S_NN}, {NB}
    v_lshrrev_b32 v{t0}, 3, v0
    s_lshl_b32 s3, s{S_BIN}, 2
    v_lshl_add_u32 v{t1}, v{t0}, 12, s3
    v_and_b32 v{t2}, 7, v0
    v_mul_u32_u24 v{t0}, {4*CH*8}, v{t0}
    v_lshl_add_u32 v{t0}, v{t2}, 4, v{t0}
    s_mov_b32 s{S_MODE}, 0""")
    if DIAG:
        stamp_real(a, 0); stamp(a, 1)
    a(f"""
    s_waitcnt lgkmcnt(0)
    s_add_u32 s{S_RT}, s6, {WS_TAB}
    s_addc_u32 s{S_RT+1}, s7, 0
    s_mov_b32 s{S_RT+2}, {NCH*1024}
    s_mov_b32 s{S_RT+3}, 0x00020000""")
    for i in range(4):
        a(f"    buffer_load_dword v{vT+i}, v{t1}, {sr(S_RT,4)}, 0 offen offset:{1024*i}")
    a(f"""
    s_mov_b32 s{S_RX}, s4
    s_mov_b32 s{S_RX+1}, s5
    s_mov_b32 s{S_RX+2}, {N_NODES*128}
    s_mov_b32 s{S_RX+3}, 0x00020000
    s_and_b32 s{S_TMP}, s{S_WAVE}, 1
    s_lshl_b32 s{S_TMP}, s{S_TMP}, 5
    s_add_u32 s{S_TMP}, s{S_TMP}, s{S_N0}
    s_lshl_b32 s{S_TMP}, s{S_TMP}, 7
    v_and_b32 v{t3}, 31, v{L}                ; j
    v_lshrrev_b32 v{t4}, 5, v{L}             ; hh
    v_lshlrev_b32 v{t1}, 7, v{t3}
    v_lshl_add_u32 v{t1}, v{t4}, 4, v{t1}""")
    for s in range(4):
        a(f"    buffer_load_dwordx4 {vr(16+4*s,4)}, v{t1}, {sr(S_RX,4)}, s{S_TMP} offen offset:{32*s}")
    a(f"""
    s_lshr_b32 s{S_TMP2}, s{S_WAVE}, 1       ; ct
    s_lshl_b32 s{S_TMP}, s{S_TMP2}, 12
    s_add_u32 s{S_TMP}, s{S_TMP}, {WS_WB}
    v_lshl_add_u32 v{t1}, v{L}, 4, s{S_TMP}""")
    for s in range(4):
        a(f"    global_load_dwordx4 {vr(32+4*s,4)}, v{t1}, s[6:7] offset:{1024*s}")
    a(f"""
    s_lshl_b32 s{S_TMP}, s{S_TMP2}, 6
    v_lshl_add_u32 v{t1}, v{t3}, 1, s{S_TMP}
    global_load_ushort v48, v{t1}, s[10:11]
    v_lshlrev_b32 v{t1}, 1, v{t3}
    v_add_u32 v{t1}, {128*256}, v{t1}""")
    for c in range(4):
        a(f"    global_load_ushort v{49+c}, v{t1}, s[8:9] offset:{64*c}")
    a(f"""
    s_and_b32 s{S_TMP}, s{S_WAVE}, 1
    s_lshl_b32 s{S_TMP}, s{S_TMP}, 6
    v_lshrrev_b32 v{t1}, 4, v{L}
    v_lshl_add_u32 v{t1}, v{t1}, 4, s{S_TMP}
    global_load_dwordx4 {vr(V_B2,4)}, v{t1}, s[12:13]
    s_lshl_b32 s{S_TMP}, s{S_WAVE}, 11
    s_add_u32 s{S_TMP3}, s{S_TMP}, {L_XS}
    s_mov_b32 m0, s{S_TMP3}
    s_add_u32 s{S_TMP3}, s{S_TMP}, {WS_WA}
    v_lshl_add_u32 v{t1}, v{L}, 4, s{S_TMP3}
    global_load_lds_dwordx4 v{t1}, s[6:7]
    global_load_lds_dwordx4 v{t1}, s[6:7] offset:1024
    s_add_u32 s{S_TMP3}, s{S_TMP}, {L_W2}
    s_mov_b32 m0, s{S_TMP3}
    v_add_u32 v{t1}, {WS_W2 - WS_WA}, v{t1}
    global_load_lds_dwordx4 v{t1}, s[6:7]
    global_load_lds_dwordx4 v{t1}, s[6:7] offset:1024
    v_mov_b32 v56, 0
    v_mov_b32 v57, {PADREC}
    v_mov_b32 v58, 0
    v_mov_b32 v59, {PADREC}
    v_mov_b32 v60, 0
    v_mov_b32 v61, 0
    v_mov_b32 v62, 0
    v_mov_b32 v63, 0
    v_lshlrev_b32 v{t1}, 4, v0""")
    a(f"""
    v_cmp_gt_u32 vcc, {L_ENT//16}, v0
    s_and_saveexec_b64 s[36:37], vcc
    ds_write_b128 v{t1}, v[60:63]
    s_mov_b64 exec, s[36:37]""")
    nent = L_QT - L_ENT
    for k in range(nent // 8192):
        a(f"    ds_write_b128 v{t1}, v[56:59] offset:{L_ENT + 8192*k}")
    rem = nent % 8192
    a(f"    ds_write_b128 v{t1}, v[56:59] offset:{L_QT - 8192}")
    a(f"    v_add_u32 v{t1}, {L_ST}, v{t1}")
    nst = L_XS - L_ST
    for k in range(nst // 8192):
        a(f"    ds_write_b128 v{t1}, v[60:63] offset:{8192*k}")
    a(f"    ds_write_b128 v{t1}, v[60:63] offset:{nst - 8192}")
    thr = [162, 163, 164, 165, 166, 167]
    a(f"""
    v_lshlrev_b32 v{thr[0]}, 4, v{t2}
    v_add_u32 v{thr[1]}, 8, v{thr[0]}
    v_lshlrev_b32 v{t5}, 3, v{t2}
    v_add_u32 v{thr[2]}, 0x80, v{t5}
    v_add_u32 v{thr[3]}, 0xc0, v{thr[0]}
    v_add_u32 v{thr[4]}, 0xc8, v{thr[0]}
    v_mov_b32 v{thr[5]}, 0x140
    s_mov_b32 s{S_RR}, s6
    s_mov_b32 s{S_RR+1}, s7
    s_mov_b32 s{S_RR+2}, {NCH*CH*8}
    s_mov_b32 s{S_RR+3}, 0x00020000
    s_mov_b32 s{S_O1}, {CH*8}
    s_mov_b32 s{S_O2}, {2*CH*8}
    s_mov_b32 s{S_O3}, {3*CH*8}
    s_waitcnt vmcnt(18)""")
    stamp(a, 2)
    so = ["0", sr(S_O1), sr(S_O2), sr(S_O3)]
    SD = "dst_sel:DWORD dst_unused:UNUSED_PAD"
    for i in range(4):
        a(f"    v_add_u32_sdwa v{vAd+i}, v{vT+i}, v{t0} {SD} src0_sel:WORD_0 src1_sel:DWORD")
        a(f"    buffer_load_dwordx4 {vr(vR0+4*i,4)}, v{vAd+i}, {sr(S_RR,4)}, {so[i]} offen")
    for i in range(4):
        a(f"    v_cmp_gt_u32_sdwa {mask(8+i)}, v{vT+i}, v{thr[2]} src0_sel:WORD_1 src1_sel:DWORD")
        a(f"    v_sub_u32 v{vAd1+i}, v{vAd+i}, v{t5}")
    for i in range(4):
        a(f"    s_or_b64 exec, {mask(8+i)}, 1")
        a(f"    buffer_load_dwordx2 {vr(vR1+2*i,2)}, v{vAd1+i}, {sr(S_RR,4)}, {so[i]} offen offset:128")
    a(f"    s_mov_b64 exec, -1")
    for i in range(4):
        a(f"    v_cmp_gt_u32_sdwa {mask(2*i)}, v{vT+i}, v{thr[0]} src0_sel:WORD_1 src1_sel:DWORD")
        a(f"    v_cmp_gt_u32_sdwa {mask(2*i+1)}, v{vT+i}, v{thr[1]} src0_sel:WORD_1 src1_sel:DWORD")
    a(f"""
    v_max_u32 v{t1}, v{vT}, v{vT+1}
    v_max3_u32 v{t1}, v{t1}, v{vT+2}, v{vT+3}
    v_cmp_gt_u32_sdwa vcc, v{t1}, v{thr[3]} src0_sel:WORD_1 src1_sel:DWORD
    s_mov_b32 s{S_K}, 0
    s_cbranch_vccz K2_nor2a
    s_mov_b32 s{S_K}, 1""")
    for i in range(4):
        a(f"    v_cmp_gt_u32_sdwa {mask(12+2*i)}, v{vT+i}, v{thr[3]} src0_sel:WORD_1 src1_sel:DWORD")
        a(f"    v_cmp_gt_u32_sdwa {mask(13+2*i)}, v{vT+i}, v{thr[4]} src0_sel:WORD_1 src1_sel:DWORD")
        a(f"    buffer_load_dwordx4 {vr(vR2+4*i,4)}, v{vAd+i}, {sr(S_RR,4)}, {so[i]} offen offset:192")
    a(f"""
    v_cmp_gt_u32_sdwa vcc, v{t1}, v{thr[5]} src0_sel:WORD_1 src1_sel:DWORD
    s_cbranch_vccz K2_r2ok
    s_mov_b32 s{S_MODE}, 1
K2_r2ok:
    s_waitcnt vmcnt(12)
    s_branch K2_q
K2_nor2a:
    s_waitcnt vmcnt(8)
K2_q:""")
    for s in range(4):
        cin = "0" if s == 0 else vr(vQ, 16)
        a(f"    v_mfma_f32_32x32x16_bf16 {vr(vQ,16)}, {vr(16+4*s,4)}, {vr(32+4*s,4)}, {cin}")
    a(f"""
    s_mov_b32 s3, {NLOG2E:#x}
    v_lshlrev_b32 v48, 16, v48
    v_mul_f32 v48, s3, v48                   ; -log2e*b1""")
    a(f"    v_cmp_lt_u32 vcc, 31, v{L}")
    for c in range(4):
        a(f"    v_lshlrev_b32 v{49+c}, 16, v{49+c}")
        a(f"    v_mul_f32 v{49+c}, s3, v{49+c}")
        a(f"    v_cvt_pk_bf16_f32 v53, v60, v{49+c}")
        a(f"    v_sub_f32 v54, v{49+c}, v53")
        a(f"    v_cvt_pk_bf16_f32 v54, v60, v54")
        a(f"    v_cndmask_b32 v{V_B5+2*c+1}, v53, v54, vcc")
    a(f"""
    s_and_b32 s{S_TMP}, s{S_WAVE}, 1
    s_lshl_b32 s{S_TMP}, s{S_TMP}, 14
    s_lshl_b32 s{S_TMP3}, s{S_TMP2}, 7
    s_add_u32 s{S_TMP}, s{S_TMP}, s{S_TMP3}
    s_add_u32 s{S_TMP}, s{S_TMP}, {L_QT}
    v_lshl_add_u32 v{t1}, v{t4}, 11, s{S_TMP}
    v_lshl_add_u32 v{t1}, v{t3}, 2, v{t1}""")
    for r in range(16):
        a(f"    v_fma_f32 v{vQ+r}, v{vQ+r}, s3, v48")
    for r in range(16):
        tt = 16 + r
        a(f"    v_cvt_pk_bf16_f32 v{tt}, v60, v{vQ+r}")
        a(f"    v_sub_f32 v{tt}, v{vQ+r}, v{tt}")
        a(f"    v_cvt_pk_bf16_f32 v{tt}, v{vQ+r}, v{tt}")
        a(f"    ds_write_b32 v{t1}, v{tt} offset:{512*(8*(r>>2)+(r&3))}")
    a(f"""
    v_mov_b32 v{t1}, 8
    s_waitcnt lgkmcnt(0)
    s_barrier""")
    stamp(a, 3)
    a(f"    v_lshlrev_b32 v{t5}, 4, v{L}")
    a(f"    v_add_u32 v{t5}, {L_XS}, v{t5}")
    for f in range(16):
        a(f"    ds_read_b128 {vr(V_W+4*f,4)}, v{t5} offset:{1024*f}")
    def col_regs(k):
        if k < 8: return vR0 + 2*k
        if k < 12: return vR1 + 2*(k-8)
        return vR2 + 2*(k-12)
    a(f"    s_waitcnt vmcnt(0)")
    stamp(a, 4)
    for k in range(12):
        a(f"    s_mov_b64 exec, {mask(k)}")
        a(f"    ds_add_rtn_u32 v{vRk+k}, v{col_regs(k)}, v{t1}")
    a(f"""
    s_cmp_eq_u32 s{S_K}, 0
    s_cbranch_scc1 K2_nor2b""")
    for k in range(12, 20):
        a(f"    s_mov_b64 exec, {mask(k)}")
        a(f"    ds_add_rtn_u32 v{vRk+k}, v{col_regs(k)}, v{t1}")
    a(f"""
    s_mov_b64 exec, 1
    v_mov_b32 v{t0}, s{S_MODE}
    v_mov_b32 v{t5}, {L_FLAG}
    ds_or_b32 v{t5}, v{t0}
K2_nor2b:
    s_mov_b64 exec, -1
    v_mul_u32_u24 v{t0}, 0x1004, v{L}
    v_and_b32 v{t0}, 0x10fc, v{t0}
    v_lshrrev_b32 v{t5}, 4, v{L}
    v_xor_b32 v{t5}, v{t5}, v{t2}
    v_lshlrev_b32 v{V_IX+1}, 4, v{t5}
    v_xor_b32 v{V_IX+3}, 64, v{V_IX+1}
    v_mov_b32 v{V_IX+5}, v{V_IX+1}
    v_mov_b32 v{V_IX+7}, v{V_IX+3}
    v_bfe_u32 v{t5}, v{L}, 1, 3
    v_xor_b32 v{t5}, v{t5}, v{t4}
    v_lshlrev_b32 v{t5}, 4, v{t5}
    v_lshl_add_u32 v{t5}, v{t3}, 7, v{t5}
    s_lshl_b32 s{S_TMP}, s{S_WAVE}, 12
    s_add_u32 s{S_TMP}, s{S_TMP}, {L_XS}
    s_mov_b32 m0, s{S_TMP}
    v_add_u32 v{V_AA}, s{S_TMP}, v{t5}
    v_xor_b32 v{V_AA+1}, 32, v{V_AA}
    v_xor_b32 v{V_AA+2}, 64, v{V_AA}
    v_xor_b32 v{V_AA+3}, 0x60, v{V_AA}
    v_mul_u32_u24 v{V_PSEL}, 0x20202, v{t4}
    v_lshl_add_u32 v{V_PSEL}, v{t4}, 25, v{V_PSEL}
    v_add_u32 v{V_PSEL}, 0x01000100, v{V_PSEL}
    v_and_b32 v{V_AENT}, 0x19, v{L}
    v_and_b32 v{t5}, 2, v{L}
    v_lshl_add_u32 v{V_AENT}, v{t5}, 1, v{V_AENT}
    v_bfe_u32 v{t5}, v{L}, 2, 1
    v_lshl_add_u32 v{V_AENT}, v{t5}, 1, v{V_AENT}
    v_lshlrev_b32 v{V_AENT}, 3, v{V_AENT}
    v_and_b32 v{V_AIDX}, 8, v{L}
    v_and_b32 v{t5}, 16, v{L}
    v_lshl_add_u32 v{V_AIDX}, v{t5}, 1, v{V_AIDX}
    v_lshl_add_u32 v{V_AIDX}, v{t4}, 4, v{V_AIDX}
    s_sub_u32 s{S_RX}, s4, 3072
    s_subb_u32 s{S_RX+1}, s5, 0
    s_and_b32 s{S_RX+1}, s{S_RX+1}, 0xffff
    s_or_b32 s{S_RX+1}, s{S_RX+1}, 0x00800000
    s_mov_b32 s{S_RX+2}, {N_NODES}
    s_movk_i32 s{S_O1}, 1024
    s_movk_i32 s{S_O2}, 2048
    s_movk_i32 s{S_O3}, 3072
    s_waitcnt lgkmcnt(0)
    s_barrier""")
    stamp(a, 5)
    vS = 168; vP = 169; vOne = 170
    a(f"""
    ds_read_b32 v{V_CNT}, v{t0}
    v_mov_b32 v{vOne}, 0x3f80
    v_cmp_gt_u32 vcc, s{S_NN}, v{L}
    s_waitcnt lgkmcnt(0)
    v_add_u32 v{vP}, 24, v{V_CNT}
    v_and_b32 v{vP}, 0xffffffe0, v{vP}
    v_max_u32 v{vP}, 0x100, v{vP}
    v_cndmask_b32 v{vP}, 0, v{vP}, vcc
    v_mov_b32 v{vS}, v{vP}""")
    wave_scan(a, vS)
    a(f"""
    s_nop 0
    v_readlane_b32 s{S_TMP}, v{vS}, 63
    v_sub_u32 v{vS}, v{vS}, v{vP}
    s_cmp_gt_u32 s{S_TMP}, {ENT_CAP*8}
    s_cbranch_scc1 K2_slow""")
    for k in range(12):
        a(f"    ds_bpermute_b32 v{vBs+k}, v{col_regs(k)}, v{vS}")
    a(f"""
    s_add_u32 s{S_TMP}, s{S_TMP}, 255
    s_lshr_b32 s{S_TMP}, s{S_TMP}, 8         ; T tiles
    s_mov_b32 s{S_TT}, s{S_TMP}
    s_and_b32 s{S_TMP2}, s{S_WAVE}, 3
    s_lshl_b32 s{S_TMP2}, s{S_TMP2}, 1
    s_lshr_b32 s{S_TMP3}, s{S_WAVE}, 2
    s_add_u32 s{S_SLOT}, s{S_TMP2}, s{S_TMP3}
    s_mul_i32 s{S_T0}, s{S_SLOT}, s{S_TMP}
    s_add_u32 s{S_NT}, s{S_T0}, s{S_TMP}
    s_lshr_b32 s{S_T0}, s{S_T0}, 3
    s_lshr_b32 s{S_NT}, s{S_NT}, 3
    s_sub_u32 s{S_NT}, s{S_NT}, s{S_T0}""")
    for k in range(12):
        r = col_regs(k)
        if k % 2 == 0:
            a(f"    s_waitcnt lgkmcnt({10-k})")
        a(f"    v_add_u32 v{vBs+k}, v{vBs+k}, v{vRk+k}")
        a(f"    v_lshlrev_b32_sdwa v{r}, v{r}, v{vOne} {SD} src0_sel:BYTE_1 src1_sel:DWORD")
    for k in range(12):
        r = col_regs(k)
        a(f"    s_mov_b64 exec, {mask(k)}")
        a(f"    ds_write_b64 v{vBs+k}, {vr(r,2)} offset:{L_ENT}")
    a(f"    s_mov_b64 exec, -1")
    a(f"""
    s_cmp_eq_u32 s{S_K}, 0
    s_cbranch_scc1 K2_nor2c""")
    for k in range(12, 20):
        a(f"    ds_bpermute_b32 v{vBs+k}, v{col_regs(k)}, v{vS}")
    a(f"    s_waitcnt lgkmcnt(0)")
    for k in range(12, 20):
        r = col_regs(k)
        a(f"    v_add_u32 v{vBs+k}, v{vBs+k}, v{vRk+k}")
        a(f"    v_lshlrev_b32_sdwa v{r}, v{r}, v{vOne} {SD} src0_sel:BYTE_1 src1_sel:DWORD")
        a(f"    s_mov_b64 exec, {mask(k)}")
        a(f"    ds_write_b64 v{vBs+k}, {vr(r,2)} offset:{L_ENT}")
        a(f"    s_mov_b64 exec, -1")
    a(f"""
K2_nor2c:
    s_lshl_b32 s{S_TMP}, s{S_T0}, 8          ; ts*8
    v_cmp_ge_u32 s[36:37], s{S_TMP}, v{vS}
    s_and_b64 s[36:37], s[36:37], vcc
    s_bcnt1_i32_b64 s{S_TMP2}, s[36:37]
    s_sub_u32 s{S_TMP2}, s{S_TMP2}, 1        ; n
    s_andn2_b64 s[36:37], vcc, s[36:37]
    v_subrev_u32 v{t0}, s{S_TMP}, v{vS}
    v_bfe_u32 v{t5}, v{t0}, 5, 3
    v_add_u32 v{t5}, 1, v{t5}
    v_mul_u32_u24 v{t5}, {VAR_SIZE}, v{t5}
    v_lshrrev_b32 v{t0}, 8, v{t0}
    v_min_u32 v{t0}, 63, v{t0}
    v_cndmask_b32 v{t0}, 63, v{t0}, s[36:37]
    v_lshlrev_b32 v{t0}, 2, v{t0}
    v_mov_b32 v{V_TAB}, 0
    {";" if "novar" in OPT else ""}ds_permute_b32 v{V_TAB}, v{t0}, v{t5}
    s_add_u32 s{S_TMP}, s{S_TMP}, {L_ENT}
    v_add_u32 v{V_AENT}, s{S_TMP}, v{V_AENT}
    s_add_u32 s{S_TMP}, s{S_TMP}, 4
    v_add_u32 v{V_AIDX}, s{S_TMP}, v{V_AIDX}
    s_add_u32 s{S_TMP}, s{S_TMP2}, s{S_SLOT}
    s_mul_i32 s{S_TMP}, s{S_TMP}, {ST_STRIDE}
    s_add_u32 s{S_TMP}, s{S_TMP}, {L_ST}
    v_lshl_add_u32 v{V_AS}, v{L}, 2, s{S_TMP}
    v_cvt_f32_u32 v{vOne}, s{S_TT}
    v_rcp_f32 v{vOne}, v{vOne}
    v_add3_u32 v{vP}, v{vS}, v{vP}, -8
    v_lshrrev_b32 v{vS}, 8, v{vS}
    v_lshrrev_b32 v{vP}, 8, v{vP}
    v_cvt_f32_u32 v{vS}, v{vS}
    v_cvt_f32_u32 v{vP}, v{vP}
    v_add_f32 v{vS}, 0x3f700000, v{vS}       ; + 7.5/8
    v_add_f32 v{vP}, 0x3f700000, v{vP}
    v_mul_f32 v{vOne}, 0x41000000, v{vOne}
    v_mul_f32 v{vS}, v{vS}, v{vOne}
    v_mul_f32 v{vP}, v{vP}, v{vOne}
    v_cvt_u32_f32 v{vS}, v{vS}
    v_cvt_u32_f32 v{vP}, v{vP}
    v_sub_u32 v{vP}, v{vP}, v{vS}
    v_add_u32 v{vS}, v{vS}, v{L}
    v_lshl_or_b32 v{vS}, v{vP}, 8, v{vS}
    v_cndmask_b32 v{vS}, 63, v{vS}, vcc
    v_lshl_or_b32 v{V_CNT}, v{vS}, 16, v{V_CNT}
    v_xor_b32 v{t5}, s{S_TMP2}, v{t4}
    v_and_b32 v{t5}, 1, v{t5}
    s_lshl_b32 s{S_TMP}, s{S_TMP2}, 9
    s_add_u32 s{S_TMP}, s{S_TMP}, {L_QT}
    v_lshl_add_u32 v{V_AQ}, v{t5}, 9, s{S_TMP}
    v_lshl_add_u32 v{V_AQ}, v{t3}, 2, v{V_AQ}
    v_xor_b32 v{t5}, 1, v{t5}
    v_lshlrev_b32 v{V_INCQ}, 10, v{t5}
    v_mov_b32 v{V_MN}, 1.0""")
    for c in range(4):
        a(f"    v_mov_b32 v{V_ND+4*c}, 0")
        a(f"    v_mov_b32 v{V_ND+4*c+1}, 0")
        a(f"    v_mov_b32 v{V_ND+4*c+2}, 1.0")
        a(f"    v_mov_b32 v{V_ND+4*c+3}, 1.0")
    a(f"""
    s_getpc_b64 {sr(S_PC,2)}
K2_pc:
    s_add_u32 s{S_PC}, s{S_PC}, K2_varN - K2_pc
    s_addc_u32 s{S_PC+1}, s{S_PC+1}, 0
    s_mov_b32 s{S_TMP}, K2_exit - K2_varN
    s_mov_b32 s{S_K}, 1
    s_waitcnt lgkmcnt(0)
    s_barrier""")
    stamp(a, 6)
    a(f"""
    s_cmp_eq_u32 s{S_NT}, 0
    s_cbranch_scc1 K2_join""")
    for h in idx_reads(0): a(h)
    a(f"    s_mov_b32 s{S_TMP3}, m0")
    a(f"    s_mov_b32 m0, s{S_NT}")
    a(f"    s_nop 0")
    a(f"    v_writelane_b32 v{V_TAB}, s{S_TMP}, m0")
    a(f"    s_mov_b32 m0, s{S_TMP3}")
    a(f"    s_waitcnt lgkmcnt(0)")
    for h in dma_ops(): a(h)
    a(f"    v_readlane_b32 s{S_J}, v{V_TAB}, 0")
    a(f"    s_waitcnt vmcnt(0)")
    stamp(a, 7)
    for h in a_reads(0, 256, True): a(h)
    a(f"    s_add_u32 s{S_J}, s{S_J}, s{S_PC}")
    a(f"    s_addc_u32 s{S_J+1}, s{S_PC+1}, 0")
    a(f"    s_waitcnt lgkmcnt(0)")
    for h in dma_ops(): a(h)
    x_phase(a, (0, 1), None, [f"    v_perm_b32 v{V_A5}, v{V_A5}, v{V_A5}, v{V_PSEL}"], do_exp=False)
    a(f"    s_nop 15")
    stamp(a, 8)
    a(f"    s_setpc_b64 {sr(S_J,2)}")
    a(f".p2align 8")
    start = len(a.l)
    for vi, b in enumerate([None] + list(range(8))):
        tile_variant(a, b)
        nm = "N" if b is None else str(b)
        a(f".org K2_varN + {VAR_SIZE*(vi+1)}, 0")
    a(f"K2_exit:")
    stamp(a, 9)
    for cts in ((0, 1), (2, 3)):
        flush_ops(a, cts)
        a("    s_nop 1")
        flush_ops2(a, cts)
    a(f"""
    v_cmp_eq_f32 vcc, 0, v{V_MN}
    s_cbranch_vccz K2_join
    v_mov_b32 v64, 1
    v_mov_b32 v65, {L_FLAG}
    ds_or_b32 v65, v64
K2_join:
    v_and_b32 v64, 15, v{L}
    v_lshrrev_b32 v65, 4, v{L}               ; g
    s_lshr_b32 s{S_TMP}, s{S_WAVE}, 1
    s_lshl_b32 s{S_TMP}, s{S_TMP}, 4
    v_add_u32 v64, s{S_TMP}, v64             ; node
    s_and_b32 s{S_TMP2}, s{S_WAVE}, 1
    s_lshl_b32 s{S_TMP3}, s{S_TMP2}, 13
    s_add_u32 s{S_TMP3}, s{S_TMP3}, {L_W2}
    v_lshl_add_u32 v67, v{L}, 4, s{S_TMP3}""")
    for f in range(8):
        a(f"    ds_read_b128 {vr(4*f,4)}, v67 offset:{1024*f}")
    a(f"""
    v_lshlrev_b32 v68, 2, v64
    ds_bpermute_b32 v69, v68, v{V_CNT}
    v_lshlrev_b32 v70, 7, v64
    v_lshl_add_u32 v70, v65, 4, v70
    s_lshl_b32 s{S_TMP2}, s{S_TMP2}, 6
    s_lshl_b32 s{S_TMP}, s{S_N0}, 7
    s_add_u32 s{S_RT}, s14, s{S_TMP}
    s_addc_u32 s{S_RT+1}, s15, 0
    s_lshl_b32 s{S_RT+2}, s{S_NN}, 7
    s_mov_b32 s{S_RT+3}, 0x00020000
    s_mov_b32 s3, {NLN2:#x}
    s_movk_i32 s{S_K}, {ST_STRIDE}""")
    for q in range(4):
        a(f"    v_lshlrev_b32 v{72+2*q}, 16, v{V_B2+q}")
        a(f"    v_and_b32 v{73+2*q}, 0xffff0000, v{V_B2+q}")
    a(f"""
    s_waitcnt lgkmcnt(0)
    v_bfe_u32 v66, v69, 16, 8
    v_lshrrev_b32 v68, 24, v69
    v_and_b32 v69, 0xffff, v69
    v_cvt_f32_u32 v69, v69
    v_mul_f32 v69, 0x3e000000, v69
    v_lshlrev_b32 v65, 5, v65
    v_add_u32 v65, {L_ST}, v65
    v_mad_u32_u24 v66, v66, s{S_K}, v65
    v_add_u32 v65, {63*ST_STRIDE}, v65
    v_cmp_lt_u32 vcc, 0, v68
    v_add_u32 v67, {ST_STRIDE}, v66
    v_mov_b32 v71, {L_FLAG}
    v_cndmask_b32 v64, v65, v67, vcc""")
    for q in range(8):
        a(f"    v_mul_f32 v{72+q}, v69, v{72+q}")
    a(f"    s_barrier")
    stamp(a, 10)
    for ks in range(4):
        a(f"    ds_read_b128 {vr(96+8*ks,4)}, v66 offset:{128*ks}")
        a(f"    ds_read_b128 {vr(100+8*ks,4)}, v66 offset:{128*ks+16}")
    a(f"    s_mov_b32 s{S_TMP}, 1")
    a(f"K2_rows:")
    for ks in range(4):
        a(f"    ds_read_b128 {vr(136+8*ks,4)}, v64 offset:{128*ks}")
        a(f"    ds_read_b128 {vr(140+8*ks,4)}, v64 offset:{128*ks+16}")
    a(f"""
    v_cmp_lt_u32 vcc, s{S_TMP}, v68
    v_add_u32 v67, {ST_STRIDE}, v67
    s_add_u32 s{S_TMP}, s{S_TMP}, 1""")
    for ks in range(4):
        a(f"    s_waitcnt lgkmcnt({6-2*ks})")
        for q in range(4):
            a(f"    v_pk_add_f32 {vr(96+8*ks+2*q,2)}, {vr(96+8*ks+2*q,2)}, {vr(136+8*ks+2*q,2)}")
    a(f"""
    v_cndmask_b32 v64, v65, v67, vcc
    s_cbranch_vccnz K2_rows
    ds_read_b32 v71, v71""")
    for ks in range(4):
        for q in range(4):
            a(f"    v_cvt_pk_bf16_f32 v{80+4*ks+q}, v{96+8*ks+2*q}, v{97+8*ks+2*q}")
    a("    s_nop 1")
    for ks in range(4):
        for ot in range(2):
            d = vr(128+4*ot, 4)
            cin = "0" if ks == 0 else d
            a(f"    v_mfma_f32_16x16x32_bf16 {d}, {vr(16*ot+4*ks,4)}, {vr(80+4*ks,4)}, {cin}")
    a("    s_nop 7")
    for q in range(8):
        a(f"    v_fma_f32 v{72+q}, v{128+q}, s3, v{72+q}")
    for q in range(4):
        a(f"    v_cvt_pk_bf16_f32 v{80+q}, v{72+2*q}, v{73+2*q}")
    a(f"    buffer_store_dwordx4 v[80:83], v70, {sr(S_RT,4)}, s{S_TMP2} offen")
    if DIAG:
        stamp(a, 11)
        a("    s_waitcnt vmcnt(0)")
        stamp(a, 12); stamp_real(a, 13)
        a(f"    s_mov_b32 s{STAMP_S+14}, s{S_NT}")
        a(f"    s_getreg_b32 s{STAMP_S+15}, hwreg(HW_REG_HW_ID)")
        stamp_store(a, 6, 1, S_WAVE, 64, 65)
    a(f"""
K2_slow:
K2_end:
    s_endpgm
""")

def descriptor(a, name, vgpr, sgpr):
    acc = (vgpr + 3) // 4 * 4
    a(f"""
.amdhsa_kernel {name}
  .amdhsa_next_free_vgpr {vgpr}
  .amdhsa_next_free_sgpr {sgpr}
  .amdhsa_accum_offset {acc}
  .amdhsa_group_segment_fixed_size 0
  .amdhsa_kernarg_size 88
  .amdhsa_user_sgpr_count 2
  .amdhsa_user_sgpr_kernarg_segment_ptr 1
  .amdhsa_system_sgpr_workgroup_id_x 1
  .amdhsa_float_denorm_mode_32 {0 if "ftz" in OPT else 3}
.end_amdhsa_kernel""")

def main():
    global DIAG
    out = sys.argv[1]
    DIAG = "diag" in sys.argv[2:]
    OPT.update(sys.argv[2:])
    a = Asm()
    a(f"""; Edge-featured MPNN layer: out[n] = sum_(e: dst=n) (silu([x[src],x[dst],e] w1 + b1) w2 + b2)
; @launch kernel=bin_kernel grid=(256,1,1) block=(800,1,1) lds={K1_LDS}
; @launch kernel=mpnn_kernel grid=(256,1,1) block=(512,1,1) lds={L_END}
.amdgcn_target "amdgcn-amd-amdhsa--gfx950"
.text""")
    gen_k1(a)
    gen_k2(a)
    a('.section .rodata,"a"')
    a(".p2align 6")
    descriptor(a, "bin_kernel", 56, 102 if DIAG else 32)
    a(".p2align 6")
    descriptor(a, "mpnn_kernel", NVGPR, 102)
    open(out, "w").write(a.text())

if __name__ == "__main__":
    main()
```

```python
import sys, struct

NAME = "standalone__edge_featured_mpnn_mpnn__graph"
N_NODES = 12500
N_EDGES = 800000
NB = 49
NCH = 250
CH = 3200

WS_REC = 0
WS_TAB = 0x640000
WS_WA = 0x680000
WS_WB = WS_WA + 0x4000
WS_W2 = WS_WA + 0x8000
WS_STAMP = 0x700000

L_HIST = 0
L_FLAG = 512
L_ENT = 4352
ENT_CAP = 3584
L_QT = L_ENT + ENT_CAP * 8 + 512
L_ST = L_QT + 64 * 512
ST_STRIDE = 528
L_XS = L_ST + 64 * ST_STRIDE
L_W2 = L_XS + 8 * 4096
L_END = L_W2 + 16384
assert L_XS % 256 == 0 and L_END <= 163840

def f32bits(x):
    return struct.unpack("<I", struct.pack("<f", x))[0]
NLOG2E = f32bits(-1.4426950408889634)
NLN2 = f32bits(-0.6931471805599453)
PADREC = 0x3FFF

class Asm:
    def __init__(self):
        self.l = []
    def __call__(self, s=""):
        for x in s.strip("\n").split("\n"):
            self.l.append(x)
    def text(self):
        return "\n".join(self.l) + "\n"

def vr(a, n=1):
    return f"v{a}" if n == 1 else f"v[{a}:{a+n-1}]"
def sr(a, n=1):
    return f"s{a}" if n == 1 else f"s[{a}:{a+n-1}]"

DIAG = False
OPT = set()
STAMP_S = 70
def stamp(a, k, wait=True):
    if not DIAG:
        return
    a(f"    s_memtime s[68:69]")
    a(f"    s_waitcnt lgkmcnt(0)")
    a(f"    s_mov_b32 s{STAMP_S+k}, s68")
def stamp_real(a, k):
    if not DIAG:
        return
    a(f"    s_memrealtime s[68:69]")
    a(f"    s_waitcnt lgkmcnt(0)")
    a(f"    s_mov_b32 s{STAMP_S+k}, s68")
def stamp_store(a, ws, kern, swave, vtmp, vtmp2):
    if not DIAG:
        return
    a(f"    s_mov_b64 exec, -1")
    a(f"    v_mov_b32 v{vtmp}, 0")
    for k in range(16):
        a(f"    v_writelane_b32 v{vtmp}, s{STAMP_S+k}, {k}")
    a(f"    s_lshl_b32 s68, s2, 4")
    a(f"    s_add_u32 s68, s68, s{swave}")
    a(f"    s_lshl_b32 s68, s68, 6")
    a(f"    s_add_u32 s68, s68, {WS_STAMP + kern*0x40000}")
    a(f"    v_mbcnt_lo_u32_b32 v{vtmp2}, -1, 0")
    a(f"    v_lshl_add_u32 v{vtmp2}, v{vtmp2}, 2, s68")
    a(f"    s_mov_b64 exec, 0xffff")
    a(f"    global_store_dword v{vtmp2}, v{vtmp}, {sr(ws,2)}")

def wave_scan(a, v):
    for sh in (1, 2, 4, 8):
        a(f"    s_nop 1")
        a(f"    v_add_u32_dpp v{v}, v{v}, v{v} row_shr:{sh} row_mask:0xf bank_mask:0xf")
    a(f"    s_nop 1")
    a(f"    v_add_u32_dpp v{v}, v{v}, v{v} row_bcast:15 row_mask:0xa bank_mask:0xf")
    a(f"    s_nop 1")
    a(f"    v_add_u32_dpp v{v}, v{v}, v{v} row_bcast:31 row_mask:0xc bank_mask:0xf")

K1_LDS = 4096 + CH * 8
def gen_k1(a):
    a(f"""
.p2align 8
.globl bin_kernel
.type bin_kernel,@function
bin_kernel:
    s_cmp_ge_u32 s2, 256
    s_cbranch_scc1 K1_end
    s_load_dwordx2 s[8:9], s[0:1], 24        ; dst
    s_load_dwordx4 s[4:7], s[0:1], 8
    s_load_dwordx2 s[10:11], s[0:1], 80      ; ws
    s_cmp_ge_u32 s2, {NCH}
    s_cbranch_scc1 K1_wprep""")
    if DIAG:
        a("    v_lshrrev_b32 v40, 6, v0")
        a("    s_nop 0")
        a("    v_readfirstlane_b32 s30, v40")
        stamp_real(a, 0); stamp(a, 1)
    a(f"""
    s_mul_i32 s3, s2, {CH*4}
    v_lshl_add_u32 v1, v0, 4, s3
    v_lshrrev_b32 v2, 1, v1
    v_lshlrev_b32 v3, 2, v0
    v_mov_b32 v4, 0
    s_waitcnt lgkmcnt(0)
    global_load_dwordx4 v[8:11], v1, s[8:9]
    global_load_dwordx4 v[12:15], v1, s[6:7]
    global_load_dwordx2 v[16:17], v2, s[4:5]
    ds_write_b32 v3, v4
    s_mov_b32 s12, 21400
    s_mov_b32 s13, -{NB}
    s_mov_b32 s14, 0xffff0000
    s_movk_i32 s15, 0x1004
    v_mov_b32 v5, 8
    s_waitcnt lgkmcnt(0)
    s_barrier
    s_waitcnt vmcnt(2)""")
    stamp(a, 2)
    for i in range(4):
        a(f"    v_mul_u32_u24 v{18+i}, s12, v{8+i}")
    for i in range(4):
        a(f"    v_lshrrev_b32 v{18+i}, 20, v{18+i}")
    for i in range(4):
        a(f"    v_lshlrev_b32 v{22+i}, 2, v{18+i}")
        a(f"    ds_add_rtn_u32 v{26+i}, v{22+i}, v5")
    for i in range(4):
        a(f"    v_mad_i32_i24 v{8+i}, v{18+i}, s13, v{8+i}")
    for i in range(4):
        a(f"    v_mul_u32_u24 v{8+i}, s15, v{8+i}")
    for i in range(4):
        a(f"    v_and_b32 v{32+2*i}, 0x10fc, v{8+i}")
    a(f"""
    s_waitcnt lgkmcnt(0)
    s_barrier""")
    stamp(a, 3)
    a(f"""
    v_cmp_gt_u32 vcc, 64, v0
    s_cbranch_vccz K1_noscan
    v_lshlrev_b32 v6, 4, v0
    ds_read_b128 v[44:47], v6
    s_waitcnt lgkmcnt(0)
    v_add_u32 v48, v44, v45
    v_add_u32 v49, v48, v46
    v_add_u32 v50, v49, v47
    v_mov_b32 v51, v50""")
    wave_scan(a, 51)
    a(f"""
    v_sub_u32 v52, v51, v50
    v_add_u32 v53, v52, v44
    v_add_u32 v54, v52, v48
    v_add_u32 v55, v52, v49
    ds_write_b128 v6, v[52:55] offset:1024
    v_lshl_or_b32 v44, v44, 16, v52
    v_lshl_or_b32 v45, v45, 16, v53
    v_lshl_or_b32 v46, v46, 16, v54
    v_lshl_or_b32 v47, v47, 16, v55
    s_lshl_b32 s16, s2, 10
    s_add_u32 s16, s16, {WS_TAB}
    v_add_u32 v6, s16, v6
    global_store_dwordx4 v6, v[44:47], s[10:11]
    s_waitcnt lgkmcnt(0)
K1_noscan:
    s_barrier""")
    stamp(a, 4)
    for i in range(4):
        a(f"    ds_read_b32 v{18+i}, v{22+i} offset:1024")
    a(f"""
    s_waitcnt vmcnt(0)
    v_lshl_or_b32 v33, v16, 16, v12
    v_and_or_b32 v35, v16, s14, v13
    v_lshl_or_b32 v37, v17, 16, v14
    v_and_or_b32 v39, v17, s14, v15
    s_waitcnt lgkmcnt(0)""")
    for i in range(4):
        a(f"    v_add_u32 v{18+i}, v{18+i}, v{26+i}")
        a(f"    ds_write_b64 v{18+i}, v[{32+2*i}:{33+2*i}] offset:4096")
    a(f"""
    v_lshlrev_b32 v6, 4, v0
    s_mul_i32 s16, s2, {CH*8}
    v_add_u32 v7, s16, v6
    v_add_u32 v3, {CH*4}, v7
    s_waitcnt lgkmcnt(0)
    s_barrier""")
    stamp(a, 5)
    a(f"""
    ds_read_b128 v[8:11], v6 offset:4096
    ds_read_b128 v[12:15], v6 offset:{4096 + CH*4}
    s_waitcnt lgkmcnt(1)
    global_store_dwordx4 v7, v[8:11], s[10:11]
    s_waitcnt lgkmcnt(0)
    global_store_dwordx4 v3, v[12:15], s[10:11]""")
    if DIAG:
        stamp(a, 6)
        a("    s_waitcnt vmcnt(0)")
        stamp(a, 7); stamp_real(a, 8)
        stamp_store(a, 10, 0, 30, 40, 41)
    a(f"""
    s_endpgm
K1_wprep:
    s_load_dwordx2 s[20:21], s[0:1], 32      ; w1
    s_load_dwordx2 s[22:23], s[0:1], 48      ; w2
    v_cmp_gt_u32 vcc, 512, v0
    s_cbranch_vccz K1_end
    s_sub_u32 s12, s2, {NCH}
    s_and_b32 s13, s12, 1
    s_lshr_b32 s12, s12, 1
    s_lshl_b32 s13, s13, 9
    v_add_u32 v1, s13, v0                    ; f 0..1023
    v_and_b32 v2, 63, v1                     ; lane
    v_lshrrev_b32 v3, 6, v1
    v_and_b32 v4, 3, v3                      ; ks
    v_lshrrev_b32 v5, 2, v3
    s_lshl_b32 s14, s12, 14
    s_add_u32 s14, s14, {WS_WA}
    v_lshl_add_u32 v20, v1, 4, s14
    s_waitcnt lgkmcnt(0)
    s_cmp_eq_u32 s12, 2
    s_cbranch_scc1 K1_w2
    v_lshrrev_b32 v6, 5, v2
    v_lshlrev_b32 v6, 3, v6
    v_lshl_add_u32 v6, v4, 4, v6
    s_lshl_b32 s15, s12, 6
    v_add_u32 v6, s15, v6                    ; k0
    v_and_b32 v7, 31, v2
    v_lshl_add_u32 v7, v5, 5, v7             ; col
    v_lshlrev_b32 v7, 1, v7
    v_lshl_add_u32 v7, v6, 8, v7""")
    for e in range(8):
        a(f"    global_load_ushort v{8+e}, v7, s[20:21] offset:{256*e}")
    a(f"""
    s_mov_b32 s16, 1.0
    s_cmp_eq_u32 s12, 0
    s_cselect_b32 s16, {NLOG2E:#x}, s16
    s_branch K1_wpack
K1_w2:
    v_lshrrev_b32 v6, 4, v2
    v_lshlrev_b32 v6, 3, v6
    v_lshl_add_u32 v6, v4, 5, v6             ; k0
    v_bfe_u32 v7, v2, 2, 2
    v_lshlrev_b32 v7, 3, v7
    v_and_b32 v16, 3, v2
    v_add_u32 v7, v7, v16
    v_and_b32 v16, 1, v5
    v_lshl_add_u32 v7, v16, 2, v7
    v_lshrrev_b32 v16, 1, v5
    v_lshl_add_u32 v7, v16, 5, v7            ; o
    v_lshlrev_b32 v7, 1, v7
    v_lshl_add_u32 v7, v6, 7, v7""")
    for e in range(8):
        a(f"    global_load_ushort v{8+e}, v7, s[22:23] offset:{128*e}")
    a(f"""
    s_mov_b32 s16, 1.0
K1_wpack:
    s_waitcnt vmcnt(0)""")
    for e in range(8):
        a(f"    v_lshlrev_b32 v{8+e}, 16, v{8+e}")
    for e in range(8):
        a(f"    v_mul_f32 v{8+e}, s16, v{8+e}")
    for e in range(4):
        a(f"    v_cvt_pk_bf16_f32 v{16+e}, v{8+2*e}, v{9+2*e}")
    a(f"""
    global_store_dwordx4 v20, v[16:19], s[10:11]
K1_end:
    s_endpgm
""")

V_W = 0
V_D = 64
V_E = 128
V_A = 160
V_A5 = 176
V_B5 = 178
V_ND = 186
V_T = 202
V_R = 206
V_IX = 210
V_AA = 218
V_AIDX = 222
V_AENT = 223
V_AQ = 224
V_INCQ = 225
V_AS = 226
V_MN = 227
V_PSEL = 228
V_TAB = 229
V_B2 = 230
V_LANE = 234
V_CNT = 235
V_O = 236
NVGPR = 240

S_X = 4; S_WS = 6; S_W1 = 8; S_B1 = 10; S_B2 = 12; S_OUT = 14
S_BIN = 16; S_N0 = 17; S_NN = 18; S_WAVE = 19
S_RX = 20
S_RT = 24
S_RR = 28
S_K = 32
S_PC = 34
S_J = 36
S_O3 = 38; S_O2 = 39; S_O1 = 40
S_T0 = 41; S_NT = 42; S_TMP = 43; S_TMP2 = 44; S_TMP3 = 45
S_MODE = 46
S_SLOT = 47
S_TT = 33
S_M = 48

def x_phase(a, mf_cts, ex_cts, plain, do_exp=True):
    ms = []
    for ks in range(4):
        for c in mf_cts:
            d = vr(V_D + 16*c, 16)
            cin = "0" if ks == 0 else d
            ms.append(f"    v_mfma_f32_32x32x16_bf16 {d}, {vr(V_A+4*ks,4)}, {vr(V_W+16*c+4*ks,4)}, {cin}")
    for c in mf_cts:
        d = vr(V_D + 16*c, 16)
        ms.append(f"    v_mfma_f32_32x32x8_bf16 {d}, {vr(V_A5,2)}, {vr(V_B5+2*c,2)}, {d}")
    es = []
    if do_exp:
        for u in range(8):
            for k, c in enumerate(ex_cts):
                for b in range(2):
                    es.append(f"    v_exp_f32 v{V_E+16*k+2*u+b}, v{V_D+16*c+2*u+b}")
    plain = list(plain)
    k = 0
    for m in range(10):
        if not (do_exp and "nomfma" in OPT) and not (do_exp and "nomfma16" in OPT and m < 8) and not (do_exp and "halfmfma" in OPT and m < 8 and m >= 4):
            a(ms[m])
        if not do_exp:
            if m == 0:
                for p in plain: a(p)
            continue
        n = 3 if m < 9 else 32 - k
        if m == 1 and len(plain) >= 2:
            a(plain.pop(0)); a(plain.pop(0)); n = 2
        for _ in range(n):
            if "noexp" not in OPT: a(es[k])
            k += 1
        if m == 8 and plain:
            a(plain.pop(0))
    if do_exp:
        for p in plain: a(p)

def flush_ops(a, cts):
    for k, c in enumerate(cts):
        N = V_ND + 4*c; D = N + 2
        a(f"    v_mul_f32 v{V_R+k}, v{D}, v{D+1}")
    for k, c in enumerate(cts):
        N = V_ND + 4*c; D = N + 2
        a(f"    v_pk_mul_f32 {vr(V_O+2*k,2)}, {vr(N,2)}, {vr(D,2)} op_sel:[0,1] op_sel_hi:[1,0]")
    for k, c in enumerate(cts):
        a(f"    v_rcp_f32 v{V_R+k}, v{V_R+k}")
    for k, c in enumerate(cts):
        a(f"    v_add_f32 v{V_O+2*k}, v{V_O+2*k}, v{V_O+2*k+1}")
    for k, c in enumerate(cts):
        a(f"    v_mul_f32 v{V_O+2*k}, v{V_O+2*k}, v{V_R+k}")
def flush_ops2(a, cts):
    a(f"    v_permlane32_swap_b32 v{V_O}, v{V_O+2}")
    a(f"    v_min3_f32 v{V_MN}, v{V_MN}, v{V_R}, v{V_R+1}")
    a(f"    v_add_f32 v{V_O}, v{V_O}, v{V_O+2}")
    a(f"    ds_write_b32 v{V_AS}, v{V_O} offset:{128*cts[0]}")

def y_phase(a, cts, b, head):
    nsrc = [V_ND + 4*c for c in cts]
    for u in range(8):
        if u == 1:
            for h in head: a(h)
        if u == b:
            flush_ops(a, cts)
            for k, c in enumerate(cts):
                D = V_ND + 4*c + 2
                a(f"    v_pk_add_f32 {vr(D,2)}, {vr(V_E+16*k+2*u,2)}, 1.0 op_sel_hi:[1,0]")
            flush_ops2(a, cts)
            for k, c in enumerate(cts):
                p = V_D + 16*c + 2*u
                if u == 7:
                    a(f"    v_pk_mov_b32 {vr(V_ND+4*c,2)}, {vr(p,2)}, {vr(p,2)} op_sel:[0,1]")
                else:
                    nsrc[k] = p
            continue
        if "nopk" in OPT:
            continue
        for k, c in enumerate(cts):
            N = V_ND + 4*c; D = N + 2
            p = V_D + 16*c + 2*u
            a(f"    v_pk_fma_f32 {vr(V_T+2*k,2)}, {vr(p,2)}, {vr(D,2)}, {vr(nsrc[k],2)}")
        for k, c in enumerate(cts):
            N = V_ND + 4*c; D = N + 2
            e = V_E + 16*k + 2*u
            a(f"    v_pk_fma_f32 {vr(D,2)}, {vr(D,2)}, {vr(e,2)}, {vr(D,2)}")
        for k, c in enumerate(cts):
            N = V_ND + 4*c
            e = V_E + 16*k + 2*u
            a(f"    v_pk_fma_f32 {vr(N,2)}, {vr(nsrc[k],2)}, {vr(e,2)}, {vr(V_T+2*k,2)}")
            nsrc[k] = N

def a_reads(ent_off, idx_off, q):
    h = []
    for s in range(4):
        h.append(f"    ds_read_b128 {vr(V_A+4*s,4)}, v{V_AA+s}")
    h.append(f"    ds_read_b64 {vr(V_A5,2)}, v{V_AENT} offset:{ent_off}")
    if q:
        for c in range(4):
            h.append(f"    ds_read_b32 v{V_B5+2*c}, v{V_AQ} offset:{128*c}")
    h += idx_reads(idx_off)
    return h
def idx_reads(idx_off):
    return [f"    ds_read_u16 v{V_IX+2*m}, v{V_AIDX} offset:{idx_off + 64*m}" for m in range(4)]
def dma_ops():
    so = [sr(S_O3), sr(S_O2), sr(S_O1), "0"]
    return [f"    buffer_load_dwordx4 {vr(V_IX+2*m,2)}, {sr(S_RX,4)}, {so[m]} idxen offen offset:{1024*m} lds" for m in range(4)]

VAR_SIZE = 2048
def tile_variant(a, b):
    name = "N" if b is None else str(b)
    a(f".p2align 6")
    a(f"K2_var{name}:")
    bnd = b is not None
    plain0 = []
    if bnd:
        plain0 = [f"    v_add_u32 v{V_AQ}, v{V_AQ}, v{V_INCQ}",
                  f"    v_xor_b32 v{V_INCQ}, 0x400, v{V_INCQ}"]
    plain0.append(f"    v_readlane_b32 s{S_J}, v{V_TAB}, s{S_K}")
    x_phase(a, (2, 3), (0, 1), plain0)
    head = [f"    s_waitcnt vmcnt(0)"] + a_reads(256, 512, bnd) + [f"    s_add_u32 s{S_K}, s{S_K}, 1"]
    y_phase(a, (0, 1), b, head)
    nafter = 1 if (bnd and b >= 1) else 0
    a(f"    s_waitcnt lgkmcnt({nafter})")
    plain1 = [f"    v_perm_b32 v{V_A5}, v{V_A5}, v{V_A5}, v{V_PSEL}",
              f"    v_add_u32 v{V_AENT}, 0x100, v{V_AENT}",
              f"    v_add_u32 v{V_AIDX}, 0x100, v{V_AIDX}"]
    x_phase(a, (0, 1), (2, 3), plain1)
    head = ([] if "nodma" in OPT else dma_ops()) + [f"    s_add_u32 s{S_J}, s{S_J}, s{S_PC}", f"    s_addc_u32 s{S_J+1}, s{S_PC+1}, 0"]
    y_phase(a, (2, 3), b, head)
    if bnd:
        a(f"    v_add_u32 v{V_AS}, {ST_STRIDE}, v{V_AS}")
    a(f"    s_setpc_b64 {sr(S_J,2)}")

def gen_k2(a):
    L = V_LANE
    vT = 64
    vAd = 68
    vAd1 = 72
    vR0 = 76
    vR1 = 92
    vR2 = 100
    vRk = 116
    vBs = 136
    vQ = 0
    t0, t1, t2, t3, t4, t5 = 156, 157, 158, 159, 160, 161
    SM = S_M if not DIAG else 48
    def mask(k):
        regs = [48 + 2*i for i in range(10)] + [86 + 2*i for i in range(8)] + [24, 26]
        return sr(regs[k], 2)
    a(f"""
.p2align 8
.globl mpnn_kernel
.type mpnn_kernel,@function
mpnn_kernel:
    s_cmp_ge_u32 s2, 256
    s_cbranch_scc1 K2_end
    s_load_dwordx2 s[6:7], s[0:1], 80        ; ws
    s_load_dwordx2 s[4:5], s[0:1], 0         ; x
    s_load_dwordx4 s[8:11], s[0:1], 32       ; w1, b1
    s_load_dwordx4 s[12:15], s[0:1], 56      ; b2, out
    v_lshrrev_b32 v1, 6, v0
    v_and_b32 v{L}, 63, v0
    v_readfirstlane_b32 s{S_WAVE}, v1
    s_and_b32 s{S_BIN}, s2, 7
    s_lshl_b32 s{S_BIN}, s{S_BIN}, 5
    s_lshr_b32 s3, s2, 3
    s_add_u32 s{S_BIN}, s{S_BIN}, s3
    s_mul_i32 s{S_N0}, s{S_BIN}, {NB}
    s_sub_u32 s{S_NN}, {N_NODES}, s{S_N0}
    s_min_u32 s{S_NN}, s{S_NN}, {NB}
    v_lshrrev_b32 v{t0}, 3, v0
    s_lshl_b32 s3, s{S_BIN}, 2
    v_lshl_add_u32 v{t1}, v{t0}, 12, s3
    v_and_b32 v{t2}, 7, v0
    v_mul_u32_u24 v{t0}, {4*CH*8}, v{t0}
    v_lshl_add_u32 v{t0}, v{t2}, 4, v{t0}
    s_mov_b32 s{S_MODE}, 0""")
    if DIAG:
        stamp_real(a, 0); stamp(a, 1)
    a(f"""
    s_waitcnt lgkmcnt(0)
    s_add_u32 s{S_RT}, s6, {WS_TAB}
    s_addc_u32 s{S_RT+1}, s7, 0
    s_mov_b32 s{S_RT+2}, {NCH*1024}
    s_mov_b32 s{S_RT+3}, 0x00020000""")
    for i in range(4):
        a(f"    buffer_load_dword v{vT+i}, v{t1}, {sr(S_RT,4)}, 0 offen offset:{1024*i}")
    a(f"""
    s_mov_b32 s{S_RX}, s4
    s_mov_b32 s{S_RX+1}, s5
    s_mov_b32 s{S_RX+2}, {N_NODES*128}
    s_mov_b32 s{S_RX+3}, 0x00020000
    s_and_b32 s{S_TMP}, s{S_WAVE}, 1
    s_lshl_b32 s{S_TMP}, s{S_TMP}, 5
    s_add_u32 s{S_TMP}, s{S_TMP}, s{S_N0}
    s_lshl_b32 s{S_TMP}, s{S_TMP}, 7
    v_and_b32 v{t3}, 31, v{L}                ; j
    v_lshrrev_b32 v{t4}, 5, v{L}             ; hh
    v_lshlrev_b32 v{t1}, 7, v{t3}
    v_lshl_add_u32 v{t1}, v{t4}, 4, v{t1}""")
    for s in range(4):
        a(f"    buffer_load_dwordx4 {vr(16+4*s,4)}, v{t1}, {sr(S_RX,4)}, s{S_TMP} offen offset:{32*s}")
    a(f"""
    s_lshr_b32 s{S_TMP2}, s{S_WAVE}, 1       ; ct
    s_lshl_b32 s{S_TMP}, s{S_TMP2}, 12
    s_add_u32 s{S_TMP}, s{S_TMP}, {WS_WB}
    v_lshl_add_u32 v{t1}, v{L}, 4, s{S_TMP}""")
    for s in range(4):
        a(f"    global_load_dwordx4 {vr(32+4*s,4)}, v{t1}, s[6:7] offset:{1024*s}")
    a(f"""
    s_lshl_b32 s{S_TMP}, s{S_TMP2}, 6
    v_lshl_add_u32 v{t1}, v{t3}, 1, s{S_TMP}
    global_load_ushort v48, v{t1}, s[10:11]
    v_lshlrev_b32 v{t1}, 1, v{t3}
    v_add_u32 v{t1}, {128*256}, v{t1}""")
    for c in range(4):
        a(f"    global_load_ushort v{49+c}, v{t1}, s[8:9] offset:{64*c}")
    a(f"""
    s_and_b32 s{S_TMP}, s{S_WAVE}, 1
    s_lshl_b32 s{S_TMP}, s{S_TMP}, 6
    v_lshrrev_b32 v{t1}, 4, v{L}
    v_lshl_add_u32 v{t1}, v{t1}, 4, s{S_TMP}
    global_load_dwordx4 {vr(V_B2,4)}, v{t1}, s[12:13]
    s_lshl_b32 s{S_TMP}, s{S_WAVE}, 11
    s_add_u32 s{S_TMP3}, s{S_TMP}, {L_XS}
    s_mov_b32 m0, s{S_TMP3}
    s_add_u32 s{S_TMP3}, s{S_TMP}, {WS_WA}
    v_lshl_add_u32 v{t1}, v{L}, 4, s{S_TMP3}
    global_load_lds_dwordx4 v{t1}, s[6:7]
    global_load_lds_dwordx4 v{t1}, s[6:7] offset:1024
    s_add_u32 s{S_TMP3}, s{S_TMP}, {L_W2}
    s_mov_b32 m0, s{S_TMP3}
    v_add_u32 v{t1}, {WS_W2 - WS_WA}, v{t1}
    global_load_lds_dwordx4 v{t1}, s[6:7]
    global_load_lds_dwordx4 v{t1}, s[6:7] offset:1024
    v_mov_b32 v56, 0
    v_mov_b32 v57, {PADREC}
    v_mov_b32 v58, 0
    v_mov_b32 v59, {PADREC}
    v_mov_b32 v60, 0
    v_mov_b32 v61, 0
    v_mov_b32 v62, 0
    v_mov_b32 v63, 0
    v_lshlrev_b32 v{t1}, 4, v0""")
    a(f"""
    v_cmp_gt_u32 vcc, {L_ENT//16}, v0
    s_and_saveexec_b64 s[36:37], vcc
    ds_write_b128 v{t1}, v[60:63]
    s_mov_b64 exec, s[36:37]""")
    nent = L_QT - L_ENT
    for k in range(nent // 8192):
        a(f"    ds_write_b128 v{t1}, v[56:59] offset:{L_ENT + 8192*k}")
    rem = nent % 8192
    a(f"    ds_write_b128 v{t1}, v[56:59] offset:{L_QT - 8192}")
    a(f"    v_add_u32 v{t1}, {L_ST}, v{t1}")
    nst = L_XS - L_ST
    for k in range(nst // 8192):
        a(f"    ds_write_b128 v{t1}, v[60:63] offset:{8192*k}")
    a(f"    ds_write_b128 v{t1}, v[60:63] offset:{nst - 8192}")
    thr = [162, 163, 164, 165, 166, 167]
    a(f"""
    v_lshlrev_b32 v{thr[0]}, 4, v{t2}
    v_add_u32 v{thr[1]}, 8, v{thr[0]}
    v_lshlrev_b32 v{t5}, 3, v{t2}
    v_add_u32 v{thr[2]}, 0x80, v{t5}
    v_add_u32 v{thr[3]}, 0xc0, v{thr[0]}
    v_add_u32 v{thr[4]}, 0xc8, v{thr[0]}
    v_mov_b32 v{thr[5]}, 0x140
    s_mov_b32 s{S_RR}, s6
    s_mov_b32 s{S_RR+1}, s7
    s_mov_b32 s{S_RR+2}, {NCH*CH*8}
    s_mov_b32 s{S_RR+3}, 0x00020000
    s_mov_b32 s{S_O1}, {CH*8}
    s_mov_b32 s{S_O2}, {2*CH*8}
    s_mov_b32 s{S_O3}, {3*CH*8}
    s_waitcnt vmcnt(18)""")
    stamp(a, 2)
    so = ["0", sr(S_O1), sr(S_O2), sr(S_O3)]
    SD = "dst_sel:DWORD dst_unused:UNUSED_PAD"
    for i in range(4):
        a(f"    v_add_u32_sdwa v{vAd+i}, v{vT+i}, v{t0} {SD} src0_sel:WORD_0 src1_sel:DWORD")
        a(f"    buffer_load_dwordx4 {vr(vR0+4*i,4)}, v{vAd+i}, {sr(S_RR,4)}, {so[i]} offen")
    for i in range(4):
        a(f"    v_cmp_gt_u32_sdwa {mask(8+i)}, v{vT+i}, v{thr[2]} src0_sel:WORD_1 src1_sel:DWORD")
        a(f"    v_sub_u32 v{vAd1+i}, v{vAd+i}, v{t5}")
    for i in range(4):
        a(f"    s_or_b64 exec, {mask(8+i)}, 1")
        a(f"    buffer_load_dwordx2 {vr(vR1+2*i,2)}, v{vAd1+i}, {sr(S_RR,4)}, {so[i]} offen offset:128")
    a(f"    s_mov_b64 exec, -1")
    for i in range(4):
        a(f"    v_cmp_gt_u32_sdwa {mask(2*i)}, v{vT+i}, v{thr[0]} src0_sel:WORD_1 src1_sel:DWORD")
        a(f"    v_cmp_gt_u32_sdwa {mask(2*i+1)}, v{vT+i}, v{thr[1]} src0_sel:WORD_1 src1_sel:DWORD")
    a(f"""
    v_max_u32 v{t1}, v{vT}, v{vT+1}
    v_max3_u32 v{t1}, v{t1}, v{vT+2}, v{vT+3}
    v_cmp_gt_u32_sdwa vcc, v{t1}, v{thr[3]} src0_sel:WORD_1 src1_sel:DWORD
    s_mov_b32 s{S_K}, 0
    s_cbranch_vccz K2_nor2a
    s_mov_b32 s{S_K}, 1""")
    for i in range(4):
        a(f"    v_cmp_gt_u32_sdwa {mask(12+2*i)}, v{vT+i}, v{thr[3]} src0_sel:WORD_1 src1_sel:DWORD")
        a(f"    v_cmp_gt_u32_sdwa {mask(13+2*i)}, v{vT+i}, v{thr[4]} src0_sel:WORD_1 src1_sel:DWORD")
        a(f"    buffer_load_dwordx4 {vr(vR2+4*i,4)}, v{vAd+i}, {sr(S_RR,4)}, {so[i]} offen offset:192")
    a(f"""
    v_cmp_gt_u32_sdwa vcc, v{t1}, v{thr[5]} src0_sel:WORD_1 src1_sel:DWORD
    s_cbranch_vccz K2_r2ok
    s_mov_b32 s{S_MODE}, 1
K2_r2ok:
    s_waitcnt vmcnt(12)
    s_branch K2_q
K2_nor2a:
    s_waitcnt vmcnt(8)
K2_q:""")
    for s in range(4):
        cin = "0" if s == 0 else vr(vQ, 16)
        a(f"    v_mfma_f32_32x32x16_bf16 {vr(vQ,16)}, {vr(16+4*s,4)}, {vr(32+4*s,4)}, {cin}")
    a(f"""
    s_mov_b32 s3, {NLOG2E:#x}
    v_lshlrev_b32 v48, 16, v48
    v_mul_f32 v48, s3, v48                   ; -log2e*b1""")
    a(f"    v_cmp_lt_u32 vcc, 31, v{L}")
    for c in range(4):
        a(f"    v_lshlrev_b32 v{49+c}, 16, v{49+c}")
        a(f"    v_mul_f32 v{49+c}, s3, v{49+c}")
        a(f"    v_cvt_pk_bf16_f32 v53, v60, v{49+c}")
        a(f"    v_sub_f32 v54, v{49+c}, v53")
        a(f"    v_cvt_pk_bf16_f32 v54, v60, v54")
        a(f"    v_cndmask_b32 v{V_B5+2*c+1}, v53, v54, vcc")
    a(f"""
    s_and_b32 s{S_TMP}, s{S_WAVE}, 1
    s_lshl_b32 s{S_TMP}, s{S_TMP}, 14
    s_lshl_b32 s{S_TMP3}, s{S_TMP2}, 7
    s_add_u32 s{S_TMP}, s{S_TMP}, s{S_TMP3}
    s_add_u32 s{S_TMP}, s{S_TMP}, {L_QT}
    v_lshl_add_u32 v{t1}, v{t4}, 11, s{S_TMP}
    v_lshl_add_u32 v{t1}, v{t3}, 2, v{t1}""")
    for r in range(16):
        a(f"    v_fma_f32 v{vQ+r}, v{vQ+r}, s3, v48")
    for r in range(16):
        tt = 16 + r
        a(f"    v_cvt_pk_bf16_f32 v{tt}, v60, v{vQ+r}")
        a(f"    v_sub_f32 v{tt}, v{vQ+r}, v{tt}")
        a(f"    v_cvt_pk_bf16_f32 v{tt}, v{vQ+r}, v{tt}")
        a(f"    ds_write_b32 v{t1}, v{tt} offset:{512*(8*(r>>2)+(r&3))}")
    a(f"""
    v_mov_b32 v{t1}, 8
    s_waitcnt lgkmcnt(0)
    s_barrier""")
    stamp(a, 3)
    a(f"    v_lshlrev_b32 v{t5}, 4, v{L}")
    a(f"    v_add_u32 v{t5}, {L_XS}, v{t5}")
    for f in range(16):
        a(f"    ds_read_b128 {vr(V_W+4*f,4)}, v{t5} offset:{1024*f}")
    def col_regs(k):
        if k < 8: return vR0 + 2*k
        if k < 12: return vR1 + 2*(k-8)
        return vR2 + 2*(k-12)
    a(f"    s_waitcnt vmcnt(0)")
    stamp(a, 4)
    for k in range(12):
        a(f"    s_mov_b64 exec, {mask(k)}")
        a(f"    ds_add_rtn_u32 v{vRk+k}, v{col_regs(k)}, v{t1}")
    a(f"""
    s_cmp_eq_u32 s{S_K}, 0
    s_cbranch_scc1 K2_nor2b""")
    for k in range(12, 20):
        a(f"    s_mov_b64 exec, {mask(k)}")
        a(f"    ds_add_rtn_u32 v{vRk+k}, v{col_regs(k)}, v{t1}")
    a(f"""
    s_mov_b64 exec, 1
    v_mov_b32 v{t0}, s{S_MODE}
    v_mov_b32 v{t5}, {L_FLAG}
    ds_or_b32 v{t5}, v{t0}
K2_nor2b:
    s_mov_b64 exec, -1
    v_mul_u32_u24 v{t0}, 0x1004, v{L}
    v_and_b32 v{t0}, 0x10fc, v{t0}
    v_lshrrev_b32 v{t5}, 4, v{L}
    v_xor_b32 v{t5}, v{t5}, v{t2}
    v_lshlrev_b32 v{V_IX+1}, 4, v{t5}
    v_xor_b32 v{V_IX+3}, 64, v{V_IX+1}
    v_mov_b32 v{V_IX+5}, v{V_IX+1}
    v_mov_b32 v{V_IX+7}, v{V_IX+3}
    v_bfe_u32 v{t5}, v{L}, 1, 3
    v_xor_b32 v{t5}, v{t5}, v{t4}
    v_lshlrev_b32 v{t5}, 4, v{t5}
    v_lshl_add_u32 v{t5}, v{t3}, 7, v{t5}
    s_lshl_b32 s{S_TMP}, s{S_WAVE}, 12
    s_add_u32 s{S_TMP}, s{S_TMP}, {L_XS}
    s_mov_b32 m0, s{S_TMP}
    v_add_u32 v{V_AA}, s{S_TMP}, v{t5}
    v_xor_b32 v{V_AA+1}, 32, v{V_AA}
    v_xor_b32 v{V_AA+2}, 64, v{V_AA}
    v_xor_b32 v{V_AA+3}, 0x60, v{V_AA}
    v_mul_u32_u24 v{V_PSEL}, 0x20202, v{t4}
    v_lshl_add_u32 v{V_PSEL}, v{t4}, 25, v{V_PSEL}
    v_add_u32 v{V_PSEL}, 0x01000100, v{V_PSEL}
    v_and_b32 v{V_AENT}, 0x19, v{L}
    v_and_b32 v{t5}, 2, v{L}
    v_lshl_add_u32 v{V_AENT}, v{t5}, 1, v{V_AENT}
    v_bfe_u32 v{t5}, v{L}, 2, 1
    v_lshl_add_u32 v{V_AENT}, v{t5}, 1, v{V_AENT}
    v_lshlrev_b32 v{V_AENT}, 3, v{V_AENT}
    v_and_b32 v{V_AIDX}, 8, v{L}
    v_and_b32 v{t5}, 16, v{L}
    v_lshl_add_u32 v{V_AIDX}, v{t5}, 1, v{V_AIDX}
    v_lshl_add_u32 v{V_AIDX}, v{t4}, 4, v{V_AIDX}
    s_sub_u32 s{S_RX}, s4, 3072
    s_subb_u32 s{S_RX+1}, s5, 0
    s_and_b32 s{S_RX+1}, s{S_RX+1}, 0xffff
    s_or_b32 s{S_RX+1}, s{S_RX+1}, 0x00800000
    s_mov_b32 s{S_RX+2}, {N_NODES}
    s_movk_i32 s{S_O1}, 1024
    s_movk_i32 s{S_O2}, 2048
    s_movk_i32 s{S_O3}, 3072
    s_waitcnt lgkmcnt(0)
    s_barrier""")
    stamp(a, 5)
    vS = 168; vP = 169; vOne = 170
    a(f"""
    ds_read_b32 v{V_CNT}, v{t0}
    v_mov_b32 v{vOne}, 0x3f80
    v_cmp_gt_u32 vcc, s{S_NN}, v{L}
    s_waitcnt lgkmcnt(0)
    v_add_u32 v{vP}, 24, v{V_CNT}
    v_and_b32 v{vP}, 0xffffffe0, v{vP}
    v_max_u32 v{vP}, 0x100, v{vP}
    v_cndmask_b32 v{vP}, 0, v{vP}, vcc
    v_mov_b32 v{vS}, v{vP}""")
    wave_scan(a, vS)
    a(f"""
    s_nop 0
    v_readlane_b32 s{S_TMP}, v{vS}, 63
    v_sub_u32 v{vS}, v{vS}, v{vP}
    s_cmp_gt_u32 s{S_TMP}, {ENT_CAP*8}
    s_cbranch_scc1 K2_slow""")
    for k in range(12):
        a(f"    ds_bpermute_b32 v{vBs+k}, v{col_regs(k)}, v{vS}")
    a(f"""
    s_add_u32 s{S_TMP}, s{S_TMP}, 255
    s_lshr_b32 s{S_TMP}, s{S_TMP}, 8         ; T tiles
    s_mov_b32 s{S_TT}, s{S_TMP}
    s_and_b32 s{S_TMP2}, s{S_WAVE}, 3
    s_lshl_b32 s{S_TMP2}, s{S_TMP2}, 1
    s_lshr_b32 s{S_TMP3}, s{S_WAVE}, 2
    s_add_u32 s{S_SLOT}, s{S_TMP2}, s{S_TMP3}
    s_mul_i32 s{S_T0}, s{S_SLOT}, s{S_TMP}
    s_add_u32 s{S_NT}, s{S_T0}, s{S_TMP}
    s_lshr_b32 s{S_T0}, s{S_T0}, 3
    s_lshr_b32 s{S_NT}, s{S_NT}, 3
    s_sub_u32 s{S_NT}, s{S_NT}, s{S_T0}""")
    for k in range(12):
        r = col_regs(k)
        if k % 2 == 0:
            a(f"    s_waitcnt lgkmcnt({10-k})")
        a(f"    v_add_u32 v{vBs+k}, v{vBs+k}, v{vRk+k}")
        a(f"    v_lshlrev_b32_sdwa v{r}, v{r}, v{vOne} {SD} src0_sel:BYTE_1 src1_sel:DWORD")
    for k in range(12):
        r = col_regs(k)
        a(f"    s_mov_b64 exec, {mask(k)}")
        a(f"    ds_write_b64 v{vBs+k}, {vr(r,2)} offset:{L_ENT}")
    a(f"    s_mov_b64 exec, -1")
    a(f"""
    s_cmp_eq_u32 s{S_K}, 0
    s_cbranch_scc1 K2_nor2c""")
    for k in range(12, 20):
        a(f"    ds_bpermute_b32 v{vBs+k}, v{col_regs(k)}, v{vS}")
    a(f"    s_waitcnt lgkmcnt(0)")
    for k in range(12, 20):
        r = col_regs(k)
        a(f"    v_add_u32 v{vBs+k}, v{vBs+k}, v{vRk+k}")
        a(f"    v_lshlrev_b32_sdwa v{r}, v{r}, v{vOne} {SD} src0_sel:BYTE_1 src1_sel:DWORD")
        a(f"    s_mov_b64 exec, {mask(k)}")
        a(f"    ds_write_b64 v{vBs+k}, {vr(r,2)} offset:{L_ENT}")
        a(f"    s_mov_b64 exec, -1")
    a(f"""
K2_nor2c:
    s_lshl_b32 s{S_TMP}, s{S_T0}, 8          ; ts*8
    v_cmp_ge_u32 s[36:37], s{S_TMP}, v{vS}
    s_and_b64 s[36:37], s[36:37], vcc
    s_bcnt1_i32_b64 s{S_TMP2}, s[36:37]
    s_sub_u32 s{S_TMP2}, s{S_TMP2}, 1        ; n
    s_andn2_b64 s[36:37], vcc, s[36:37]
    v_subrev_u32 v{t0}, s{S_TMP}, v{vS}
    v_bfe_u32 v{t5}, v{t0}, 5, 3
    v_add_u32 v{t5}, 1, v{t5}
    v_mul_u32_u24 v{t5}, {VAR_SIZE}, v{t5}
    v_lshrrev_b32 v{t0}, 8, v{t0}
    v_min_u32 v{t0}, 63, v{t0}
    v_cndmask_b32 v{t0}, 63, v{t0}, s[36:37]
    v_lshlrev_b32 v{t0}, 2, v{t0}
    v_mov_b32 v{V_TAB}, 0
    {";" if "novar" in OPT else ""}ds_permute_b32 v{V_TAB}, v{t0}, v{t5}
    s_add_u32 s{S_TMP}, s{S_TMP}, {L_ENT}
    v_add_u32 v{V_AENT}, s{S_TMP}, v{V_AENT}
    s_add_u32 s{S_TMP}, s{S_TMP}, 4
    v_add_u32 v{V_AIDX}, s{S_TMP}, v{V_AIDX}
    s_add_u32 s{S_TMP}, s{S_TMP2}, s{S_SLOT}
    s_mul_i32 s{S_TMP}, s{S_TMP}, {ST_STRIDE}
    s_add_u32 s{S_TMP}, s{S_TMP}, {L_ST}
    v_lshl_add_u32 v{V_AS}, v{L}, 2, s{S_TMP}
    v_cvt_f32_u32 v{vOne}, s{S_TT}
    v_rcp_f32 v{vOne}, v{vOne}
    v_add3_u32 v{vP}, v{vS}, v{vP}, -8
    v_lshrrev_b32 v{vS}, 8, v{vS}
    v_lshrrev_b32 v{vP}, 8, v{vP}
    v_cvt_f32_u32 v{vS}, v{vS}
    v_cvt_f32_u32 v{vP}, v{vP}
    v_add_f32 v{vS}, 0x3f700000, v{vS}       ; + 7.5/8
    v_add_f32 v{vP}, 0x3f700000, v{vP}
    v_mul_f32 v{vOne}, 0x41000000, v{vOne}
    v_mul_f32 v{vS}, v{vS}, v{vOne}
    v_mul_f32 v{vP}, v{vP}, v{vOne}
    v_cvt_u32_f32 v{vS}, v{vS}
    v_cvt_u32_f32 v{vP}, v{vP}
    v_sub_u32 v{vP}, v{vP}, v{vS}
    v_add_u32 v{vS}, v{vS}, v{L}
    v_lshl_or_b32 v{vS}, v{vP}, 8, v{vS}
    v_cndmask_b32 v{vS}, 63, v{vS}, vcc
    v_lshl_or_b32 v{V_CNT}, v{vS}, 16, v{V_CNT}
    v_xor_b32 v{t5}, s{S_TMP2}, v{t4}
    v_and_b32 v{t5}, 1, v{t5}
    s_lshl_b32 s{S_TMP}, s{S_TMP2}, 9
    s_add_u32 s{S_TMP}, s{S_TMP}, {L_QT}
    v_lshl_add_u32 v{V_AQ}, v{t5}, 9, s{S_TMP}
    v_lshl_add_u32 v{V_AQ}, v{t3}, 2, v{V_AQ}
    v_xor_b32 v{t5}, 1, v{t5}
    v_lshlrev_b32 v{V_INCQ}, 10, v{t5}
    v_mov_b32 v{V_MN}, 1.0""")
    for c in range(4):
        a(f"    v_mov_b32 v{V_ND+4*c}, 0")
        a(f"    v_mov_b32 v{V_ND+4*c+1}, 0")
        a(f"    v_mov_b32 v{V_ND+4*c+2}, 1.0")
        a(f"    v_mov_b32 v{V_ND+4*c+3}, 1.0")
    a(f"""
    s_getpc_b64 {sr(S_PC,2)}
K2_pc:
    s_add_u32 s{S_PC}, s{S_PC}, K2_varN - K2_pc
    s_addc_u32 s{S_PC+1}, s{S_PC+1}, 0
    s_mov_b32 s{S_TMP}, K2_exit - K2_varN
    s_mov_b32 s{S_K}, 1
    s_waitcnt lgkmcnt(0)
    s_barrier""")
    stamp(a, 6)
    a(f"""
    s_cmp_eq_u32 s{S_NT}, 0
    s_cbranch_scc1 K2_join""")
    for h in idx_reads(0): a(h)
    a(f"    s_mov_b32 s{S_TMP3}, m0")
    a(f"    s_mov_b32 m0, s{S_NT}")
    a(f"    s_nop 0")
    a(f"    v_writelane_b32 v{V_TAB}, s{S_TMP}, m0")
    a(f"    s_mov_b32 m0, s{S_TMP3}")
    a(f"    s_waitcnt lgkmcnt(0)")
    for h in dma_ops(): a(h)
    a(f"    v_readlane_b32 s{S_J}, v{V_TAB}, 0")
    a(f"    s_waitcnt vmcnt(0)")
    stamp(a, 7)
    for h in a_reads(0, 256, True): a(h)
    a(f"    s_add_u32 s{S_J}, s{S_J}, s{S_PC}")
    a(f"    s_addc_u32 s{S_J+1}, s{S_PC+1}, 0")
    a(f"    s_waitcnt lgkmcnt(0)")
    for h in dma_ops(): a(h)
    x_phase(a, (0, 1), None, [f"    v_perm_b32 v{V_A5}, v{V_A5}, v{V_A5}, v{V_PSEL}"], do_exp=False)
    a(f"    s_nop 15")
    stamp(a, 8); stamp_real(a, 15)
    a(f"    s_setpc_b64 {sr(S_J,2)}")
    a(f".p2align 8")
    start = len(a.l)
    for vi, b in enumerate([None] + list(range(8))):
        tile_variant(a, b)
        nm = "N" if b is None else str(b)
        a(f".org K2_varN + {VAR_SIZE*(vi+1)}, 0")
    a(f"K2_exit:")
    stamp(a, 9); stamp_real(a, 11)
    for cts in ((0, 1), (2, 3)):
        flush_ops(a, cts)
        a("    s_nop 1")
        flush_ops2(a, cts)
    a(f"""
    v_cmp_eq_f32 vcc, 0, v{V_MN}
    s_cbranch_vccz K2_join
    v_mov_b32 v64, 1
    v_mov_b32 v65, {L_FLAG}
    ds_or_b32 v65, v64
K2_join:
    v_and_b32 v64, 15, v{L}
    v_lshrrev_b32 v65, 4, v{L}               ; g
    s_lshr_b32 s{S_TMP}, s{S_WAVE}, 1
    s_lshl_b32 s{S_TMP}, s{S_TMP}, 4
    v_add_u32 v64, s{S_TMP}, v64             ; node
    s_and_b32 s{S_TMP2}, s{S_WAVE}, 1
    s_lshl_b32 s{S_TMP3}, s{S_TMP2}, 13
    s_add_u32 s{S_TMP3}, s{S_TMP3}, {L_W2}
    v_lshl_add_u32 v67, v{L}, 4, s{S_TMP3}""")
    for f in range(8):
        a(f"    ds_read_b128 {vr(4*f,4)}, v67 offset:{1024*f}")
    a(f"""
    v_lshlrev_b32 v68, 2, v64
    ds_bpermute_b32 v69, v68, v{V_CNT}
    v_lshlrev_b32 v70, 7, v64
    v_lshl_add_u32 v70, v65, 4, v70
    s_lshl_b32 s{S_TMP2}, s{S_TMP2}, 6
    s_lshl_b32 s{S_TMP}, s{S_N0}, 7
    s_add_u32 s{S_RT}, s14, s{S_TMP}
    s_addc_u32 s{S_RT+1}, s15, 0
    s_lshl_b32 s{S_RT+2}, s{S_NN}, 7
    s_mov_b32 s{S_RT+3}, 0x00020000
    s_mov_b32 s3, {NLN2:#x}
    s_movk_i32 s{S_K}, {ST_STRIDE}""")
    for q in range(4):
        a(f"    v_lshlrev_b32 v{72+2*q}, 16, v{V_B2+q}")
        a(f"    v_and_b32 v{73+2*q}, 0xffff0000, v{V_B2+q}")
    a(f"""
    s_waitcnt lgkmcnt(0)
    v_bfe_u32 v66, v69, 16, 8
    v_lshrrev_b32 v68, 24, v69
    v_and_b32 v69, 0xffff, v69
    v_cvt_f32_u32 v69, v69
    v_mul_f32 v69, 0x3e000000, v69
    v_lshlrev_b32 v65, 5, v65
    v_add_u32 v65, {L_ST}, v65
    v_mad_u32_u24 v66, v66, s{S_K}, v65
    v_add_u32 v65, {63*ST_STRIDE}, v65
    v_cmp_lt_u32 vcc, 0, v68
    v_add_u32 v67, {ST_STRIDE}, v66
    v_mov_b32 v71, {L_FLAG}
    v_cndmask_b32 v64, v65, v67, vcc""")
    for q in range(8):
        a(f"    v_mul_f32 v{72+q}, v69, v{72+q}")
    a(f"    s_barrier")
    stamp(a, 10)
    for ks in range(4):
        a(f"    ds_read_b128 {vr(96+8*ks,4)}, v66 offset:{128*ks}")
        a(f"    ds_read_b128 {vr(100+8*ks,4)}, v66 offset:{128*ks+16}")
    a(f"    s_mov_b32 s{S_TMP}, 1")
    a(f"K2_rows:")
    for ks in range(4):
        a(f"    ds_read_b128 {vr(136+8*ks,4)}, v64 offset:{128*ks}")
        a(f"    ds_read_b128 {vr(140+8*ks,4)}, v64 offset:{128*ks+16}")
    a(f"""
    v_cmp_lt_u32 vcc, s{S_TMP}, v68
    v_add_u32 v67, {ST_STRIDE}, v67
    s_add_u32 s{S_TMP}, s{S_TMP}, 1""")
    for ks in range(4):
        a(f"    s_waitcnt lgkmcnt({6-2*ks})")
        for q in range(4):
            a(f"    v_pk_add_f32 {vr(96+8*ks+2*q,2)}, {vr(96+8*ks+2*q,2)}, {vr(136+8*ks+2*q,2)}")
    a(f"""
    v_cndmask_b32 v64, v65, v67, vcc
    s_cbranch_vccnz K2_rows
    ds_read_b32 v71, v71""")
    for ks in range(4):
        for q in range(4):
            a(f"    v_cvt_pk_bf16_f32 v{80+4*ks+q}, v{96+8*ks+2*q}, v{97+8*ks+2*q}")
    a("    s_nop 1")
    for ks in range(4):
        for ot in range(2):
            d = vr(128+4*ot, 4)
            cin = "0" if ks == 0 else d
            a(f"    v_mfma_f32_16x16x32_bf16 {d}, {vr(16*ot+4*ks,4)}, {vr(80+4*ks,4)}, {cin}")
    a("    s_nop 7")
    for q in range(8):
        a(f"    v_fma_f32 v{72+q}, v{128+q}, s3, v{72+q}")
    for q in range(4):
        a(f"    v_cvt_pk_bf16_f32 v{80+q}, v{72+2*q}, v{73+2*q}")
    a(f"    buffer_store_dwordx4 v[80:83], v70, {sr(S_RT,4)}, s{S_TMP2} offen")
    if DIAG:
        a("    s_waitcnt vmcnt(0)")
        stamp(a, 12); stamp_real(a, 13)
        a(f"    s_mov_b32 s{STAMP_S+14}, s{S_NT}")
        stamp_store(a, 6, 1, S_WAVE, 64, 65)
        spin = [o for o in OPT if o.startswith("spin")]
        if spin:
            which = spin[0][4:]
            a(f"""
    s_or_b32 s3, s2, s{S_WAVE}
    s_cmp_lg_u32 s3, 0
    s_cbranch_scc1 K2_end
    s_add_u32 s36, s6, {WS_STAMP}
    s_addc_u32 s37, s7, 0
    s_load_dword s48, s[36:37], 0
    s_load_dword s49, s[36:37], 32
    s_waitcnt lgkmcnt(0)""")
            src = {"0": "s48", "k1end": "s49", "k2start": f"s{STAMP_S}", "loop": f"s{STAMP_S+15}", "loopend": f"s{STAMP_S+11}", "end": f"s{STAMP_S+13}"}[which]
            a(f"""
    s_sub_u32 s50, {src}, s48
    s_min_u32 s50, s50, 20000
    s_mul_i32 s50, s50, 10
    s_add_u32 s50, s50, 10000
K2_spin:
    s_memrealtime s[52:53]
    s_waitcnt lgkmcnt(0)
    s_sub_u32 s52, s52, s48
    s_cmp_lt_u32 s52, s50
    s_cbranch_scc1 K2_spin""")
    a(f"""
K2_slow:
K2_end:
    s_endpgm
""")

def descriptor(a, name, vgpr, sgpr):
    acc = (vgpr + 3) // 4 * 4
    a(f"""
.amdhsa_kernel {name}
  .amdhsa_next_free_vgpr {vgpr}
  .amdhsa_next_free_sgpr {sgpr}
  .amdhsa_accum_offset {acc}
  .amdhsa_group_segment_fixed_size 0
  .amdhsa_kernarg_size 88
  .amdhsa_user_sgpr_count 2
  .amdhsa_user_sgpr_kernarg_segment_ptr 1
  .amdhsa_system_sgpr_workgroup_id_x 1
  .amdhsa_float_denorm_mode_32 {0 if "ftz" in OPT else 3}
.end_amdhsa_kernel""")

def main():
    global DIAG
    out = sys.argv[1]
    DIAG = "diag" in sys.argv[2:]
    OPT.update(sys.argv[2:])
    a = Asm()
    a(f"""; Edge-featured MPNN layer: out[n] = sum_(e: dst=n) (silu([x[src],x[dst],e] w1 + b1) w2 + b2)
; @launch kernel=bin_kernel grid=(256,1,1) block=(800,1,1) lds={K1_LDS}
; @launch kernel=mpnn_kernel grid=(256,1,1) block=(512,1,1) lds={L_END}
.amdgcn_target "amdgcn-amd-amdhsa--gfx950"
.text""")
    gen_k1(a)
    gen_k2(a)
    a('.section .rodata,"a"')
    a(".p2align 6")
    descriptor(a, "bin_kernel", 56, 102 if DIAG else 32)
    a(".p2align 6")
    descriptor(a, "mpnn_kernel", NVGPR, 102)
    open(out, "w").write(a.text())

if __name__ == "__main__":
    main()
```

```python
import sys, struct

NAME = "standalone__edge_featured_mpnn_mpnn__graph"
N_NODES = 12500
N_EDGES = 800000
NB = 49
NCH = 250
CH = 3200

WS_REC = 0
WS_TAB = 0x640000
WS_WA = 0x680000
WS_WB = WS_WA + 0x4000
WS_W2 = WS_WA + 0x8000
WS_STAMP = 0x700000

L_HIST = 0
L_FLAG = 512
L_ENT = 4352
ENT_CAP = 3584
L_QT = L_ENT + ENT_CAP * 8 + 512
L_ST = L_QT + 64 * 512
ST_STRIDE = 528
L_XS = L_ST + 64 * ST_STRIDE
L_W2 = L_XS + 8 * 4096
L_END = L_W2 + 16384
assert L_XS % 256 == 0 and L_END <= 163840

def f32bits(x):
    return struct.unpack("<I", struct.pack("<f", x))[0]
NLOG2E = f32bits(-1.4426950408889634)
NLN2 = f32bits(-0.6931471805599453)
PADREC = 0x3FFF

class Asm:
    def __init__(self):
        self.l = []
    def __call__(self, s=""):
        for x in s.strip("\n").split("\n"):
            self.l.append(x)
    def text(self):
        return "\n".join(self.l) + "\n"

def vr(a, n=1):
    return f"v{a}" if n == 1 else f"v[{a}:{a+n-1}]"
def sr(a, n=1):
    return f"s{a}" if n == 1 else f"s[{a}:{a+n-1}]"

DIAG = False
OPT = set()
STAMP_S = 70
def stamp(a, k, wait=True):
    if not DIAG:
        return
    a(f"    s_memtime s[68:69]")
    a(f"    s_waitcnt lgkmcnt(0)")
    a(f"    s_mov_b32 s{STAMP_S+k}, s68")
def stamp_real(a, k):
    if not DIAG:
        return
    a(f"    s_memrealtime s[68:69]")
    a(f"    s_waitcnt lgkmcnt(0)")
    a(f"    s_mov_b32 s{STAMP_S+k}, s68")
def stamp_store(a, ws, kern, swave, vtmp, vtmp2):
    if not DIAG:
        return
    a(f"    s_mov_b64 exec, -1")
    a(f"    v_mov_b32 v{vtmp}, 0")
    for k in range(16):
        a(f"    v_writelane_b32 v{vtmp}, s{STAMP_S+k}, {k}")
    a(f"    s_lshl_b32 s68, s2, 4")
    a(f"    s_add_u32 s68, s68, s{swave}")
    a(f"    s_lshl_b32 s68, s68, 6")
    a(f"    s_add_u32 s68, s68, {WS_STAMP + kern*0x40000}")
    a(f"    v_mbcnt_lo_u32_b32 v{vtmp2}, -1, 0")
    a(f"    v_lshl_add_u32 v{vtmp2}, v{vtmp2}, 2, s68")
    a(f"    s_mov_b64 exec, 0xffff")
    a(f"    global_store_dword v{vtmp2}, v{vtmp}, {sr(ws,2)}")

def wave_scan(a, v):
    for sh in (1, 2, 4, 8):
        a(f"    s_nop 1")
        a(f"    v_add_u32_dpp v{v}, v{v}, v{v} row_shr:{sh} row_mask:0xf bank_mask:0xf")
    a(f"    s_nop 1")
    a(f"    v_add_u32_dpp v{v}, v{v}, v{v} row_bcast:15 row_mask:0xa bank_mask:0xf")
    a(f"    s_nop 1")
    a(f"    v_add_u32_dpp v{v}, v{v}, v{v} row_bcast:31 row_mask:0xc bank_mask:0xf")

K1_LDS = 4096 + CH * 8
def gen_k1(a):
    a(f"""
.p2align 8
.globl bin_kernel
.type bin_kernel,@function
bin_kernel:
    s_cmp_ge_u32 s2, 256
    s_cbranch_scc1 K1_end
    s_load_dwordx2 s[8:9], s[0:1], 24        ; dst
    s_load_dwordx4 s[4:7], s[0:1], 8
    s_load_dwordx2 s[10:11], s[0:1], 80      ; ws
    s_cmp_ge_u32 s2, {NCH}
    s_cbranch_scc1 K1_wprep""")
    if DIAG:
        a("    v_lshrrev_b32 v40, 6, v0")
        a("    s_nop 0")
        a("    v_readfirstlane_b32 s30, v40")
        stamp_real(a, 0); stamp(a, 1)
    a(f"""
    s_mul_i32 s3, s2, {CH*4}
    v_lshl_add_u32 v1, v0, 4, s3
    v_lshrrev_b32 v2, 1, v1
    v_lshlrev_b32 v3, 2, v0
    v_mov_b32 v4, 0
    s_waitcnt lgkmcnt(0)
    global_load_dwordx4 v[8:11], v1, s[8:9]
    global_load_dwordx4 v[12:15], v1, s[6:7]
    global_load_dwordx2 v[16:17], v2, s[4:5]
    ds_write_b32 v3, v4
    s_mov_b32 s12, 21400
    s_mov_b32 s13, -{NB}
    s_mov_b32 s14, 0xffff0000
    s_movk_i32 s15, 0x1004
    v_mov_b32 v5, 8
    s_waitcnt lgkmcnt(0)
    s_barrier
    s_waitcnt vmcnt(2)""")
    stamp(a, 2)
    for i in range(4):
        a(f"    v_mul_u32_u24 v{18+i}, s12, v{8+i}")
    for i in range(4):
        a(f"    v_lshrrev_b32 v{18+i}, 20, v{18+i}")
    for i in range(4):
        a(f"    v_lshlrev_b32 v{22+i}, 2, v{18+i}")
        a(f"    ds_add_rtn_u32 v{26+i}, v{22+i}, v5")
    for i in range(4):
        a(f"    v_mad_i32_i24 v{8+i}, v{18+i}, s13, v{8+i}")
    for i in range(4):
        a(f"    v_mul_u32_u24 v{8+i}, s15, v{8+i}")
    for i in range(4):
        a(f"    v_and_b32 v{32+2*i}, 0x10fc, v{8+i}")
    a(f"""
    s_waitcnt lgkmcnt(0)
    s_barrier""")
    stamp(a, 3)
    a(f"""
    v_cmp_gt_u32 vcc, 64, v0
    s_cbranch_vccz K1_noscan
    v_lshlrev_b32 v6, 4, v0
    ds_read_b128 v[44:47], v6
    s_waitcnt lgkmcnt(0)
    v_add_u32 v48, v44, v45
    v_add_u32 v49, v48, v46
    v_add_u32 v50, v49, v47
    v_mov_b32 v51, v50""")
    wave_scan(a, 51)
    a(f"""
    v_sub_u32 v52, v51, v50
    v_add_u32 v53, v52, v44
    v_add_u32 v54, v52, v48
    v_add_u32 v55, v52, v49
    ds_write_b128 v6, v[52:55] offset:1024
    v_lshl_or_b32 v44, v44, 16, v52
    v_lshl_or_b32 v45, v45, 16, v53
    v_lshl_or_b32 v46, v46, 16, v54
    v_lshl_or_b32 v47, v47, 16, v55
    s_lshl_b32 s16, s2, 10
    s_add_u32 s16, s16, {WS_TAB}
    v_add_u32 v6, s16, v6
    global_store_dwordx4 v6, v[44:47], s[10:11]
    s_waitcnt lgkmcnt(0)
K1_noscan:
    s_barrier""")
    stamp(a, 4)
    for i in range(4):
        a(f"    ds_read_b32 v{18+i}, v{22+i} offset:1024")
    a(f"""
    s_waitcnt vmcnt(0)
    v_lshl_or_b32 v33, v16, 16, v12
    v_and_or_b32 v35, v16, s14, v13
    v_lshl_or_b32 v37, v17, 16, v14
    v_and_or_b32 v39, v17, s14, v15
    s_waitcnt lgkmcnt(0)""")
    for i in range(4):
        a(f"    v_add_u32 v{18+i}, v{18+i}, v{26+i}")
        a(f"    ds_write_b64 v{18+i}, v[{32+2*i}:{33+2*i}] offset:4096")
    a(f"""
    v_lshlrev_b32 v6, 4, v0
    s_mul_i32 s16, s2, {CH*8}
    v_add_u32 v7, s16, v6
    v_add_u32 v3, {CH*4}, v7
    s_waitcnt lgkmcnt(0)
    s_barrier""")
    stamp(a, 5)
    a(f"""
    ds_read_b128 v[8:11], v6 offset:4096
    ds_read_b128 v[12:15], v6 offset:{4096 + CH*4}
    s_waitcnt lgkmcnt(1)
    global_store_dwordx4 v7, v[8:11], s[10:11]
    s_waitcnt lgkmcnt(0)
    global_store_dwordx4 v3, v[12:15], s[10:11]""")
    if DIAG:
        stamp(a, 6)
        a("    s_waitcnt vmcnt(0)")
        stamp(a, 7); stamp_real(a, 8)
        stamp_store(a, 10, 0, 30, 40, 41)
    a(f"""
    s_endpgm
K1_wprep:
    s_load_dwordx2 s[20:21], s[0:1], 32      ; w1
    s_load_dwordx2 s[22:23], s[0:1], 48      ; w2
    v_cmp_gt_u32 vcc, 512, v0
    s_cbranch_vccz K1_end
    s_sub_u32 s12, s2, {NCH}
    s_and_b32 s13, s12, 1
    s_lshr_b32 s12, s12, 1
    s_lshl_b32 s13, s13, 9
    v_add_u32 v1, s13, v0                    ; f 0..1023
    v_and_b32 v2, 63, v1                     ; lane
    v_lshrrev_b32 v3, 6, v1
    v_and_b32 v4, 3, v3                      ; ks
    v_lshrrev_b32 v5, 2, v3
    s_lshl_b32 s14, s12, 14
    s_add_u32 s14, s14, {WS_WA}
    v_lshl_add_u32 v20, v1, 4, s14
    s_waitcnt lgkmcnt(0)
    s_cmp_eq_u32 s12, 2
    s_cbranch_scc1 K1_w2
    v_lshrrev_b32 v6, 5, v2
    v_lshlrev_b32 v6, 3, v6
    v_lshl_add_u32 v6, v4, 4, v6
    s_lshl_b32 s15, s12, 6
    v_add_u32 v6, s15, v6                    ; k0
    v_and_b32 v7, 31, v2
    v_lshl_add_u32 v7, v5, 5, v7             ; col
    v_lshlrev_b32 v7, 1, v7
    v_lshl_add_u32 v7, v6, 8, v7""")
    for e in range(8):
        a(f"    global_load_ushort v{8+e}, v7, s[20:21] offset:{256*e}")
    a(f"""
    s_mov_b32 s16, 1.0
    s_cmp_eq_u32 s12, 0
    s_cselect_b32 s16, {NLOG2E:#x}, s16
    s_branch K1_wpack
K1_w2:
    v_lshrrev_b32 v6, 4, v2
    v_lshlrev_b32 v6, 3, v6
    v_lshl_add_u32 v6, v4, 5, v6             ; k0
    v_bfe_u32 v7, v2, 2, 2
    v_lshlrev_b32 v7, 3, v7
    v_and_b32 v16, 3, v2
    v_add_u32 v7, v7, v16
    v_and_b32 v16, 1, v5
    v_lshl_add_u32 v7, v16, 2, v7
    v_lshrrev_b32 v16, 1, v5
    v_lshl_add_u32 v7, v16, 5, v7            ; o
    v_lshlrev_b32 v7, 1, v7
    v_lshl_add_u32 v7, v6, 7, v7""")
    for e in range(8):
        a(f"    global_load_ushort v{8+e}, v7, s[22:23] offset:{128*e}")
    a(f"""
    s_mov_b32 s16, 1.0
K1_wpack:
    s_waitcnt vmcnt(0)""")
    for e in range(8):
        a(f"    v_lshlrev_b32 v{8+e}, 16, v{8+e}")
    for e in range(8):
        a(f"    v_mul_f32 v{8+e}, s16, v{8+e}")
    for e in range(4):
        a(f"    v_cvt_pk_bf16_f32 v{16+e}, v{8+2*e}, v{9+2*e}")
    a(f"""
    global_store_dwordx4 v20, v[16:19], s[10:11]
K1_end:
    s_endpgm
""")

V_W = 0
V_D = 64
V_E = 128
V_A = 160
V_A5 = 176
V_B5 = 178
V_ND = 186
V_T = 202
V_R = 206
V_IX = 210
V_AA = 218
V_AIDX = 222
V_AENT = 223
V_AQ = 224
V_INCQ = 225
V_AS = 226
V_MN = 227
V_PSEL = 228
V_TAB = 229
V_B2 = 230
V_LANE = 234
V_CNT = 235
V_O = 236
NVGPR = 240

S_X = 4; S_WS = 6; S_W1 = 8; S_B1 = 10; S_B2 = 12; S_OUT = 14
S_BIN = 16; S_N0 = 17; S_NN = 18; S_WAVE = 19
S_RX = 20
S_RT = 24
S_RR = 28
S_K = 32
S_PC = 34
S_J = 36
S_O3 = 38; S_O2 = 39; S_O1 = 40
S_T0 = 41; S_NT = 42; S_TMP = 43; S_TMP2 = 44; S_TMP3 = 45
S_MODE = 46
S_SLOT = 47
S_TT = 33
S_M = 48

def x_phase(a, mf_cts, ex_cts, plain, do_exp=True):
    ms = []
    def big(c, ks):
        d = vr(V_D + 16*c, 16)
        cin = "0" if ks == 0 else d
        return f"    v_mfma_f32_32x32x16_bf16 {d}, {vr(V_A+4*ks,4)}, {vr(V_W+16*c+4*ks,4)}, {cin}"
    def small(c):
        d = vr(V_D + 16*c, 16)
        return f"    v_mfma_f32_32x32x8_bf16 {d}, {vr(V_A5,2)}, {vr(V_B5+2*c,2)}, {d}"
    if "chain" in OPT:
        for c in mf_cts:
            ms += [big(c, ks) for ks in range(4)] + [small(c)]
        slot4 = 4
    else:
        for ks in range(4):
            ms += [big(c, ks) for c in mf_cts]
        ms += [small(c) for c in mf_cts]
        slot4 = 8
    es = []
    if do_exp:
        for u in range(8):
            for k, c in enumerate(ex_cts):
                for b in range(2):
                    es.append(f"    v_exp_f32 v{V_E+16*k+2*u+b}, v{V_D+16*c+2*u+b}")
    plain = list(plain)
    k = 0
    for m in range(10):
        if not (do_exp and "nomfma" in OPT) and not (do_exp and "nomfma16" in OPT and m < 8) and not (do_exp and "halfmfma" in OPT and m < 8 and m >= 4):
            a(ms[m])
        if not do_exp:
            if m == 0:
                for p in plain: a(p)
            continue
        n = 3 if m < 9 else 32 - k
        if m == 1 and len(plain) >= 2:
            a(plain.pop(0)); a(plain.pop(0)); n = 2
        for _ in range(n):
            if "noexp" not in OPT: a(es[k])
            k += 1
        if m == slot4 and plain:
            a(plain.pop(0))
    if do_exp:
        for p in plain: a(p)

def flush_ops(a, cts):
    for k, c in enumerate(cts):
        N = V_ND + 4*c; D = N + 2
        a(f"    v_mul_f32 v{V_R+k}, v{D}, v{D+1}")
    for k, c in enumerate(cts):
        N = V_ND + 4*c; D = N + 2
        a(f"    v_pk_mul_f32 {vr(V_O+2*k,2)}, {vr(N,2)}, {vr(D,2)} op_sel:[0,1] op_sel_hi:[1,0]")
    for k, c in enumerate(cts):
        a(f"    v_rcp_f32 v{V_R+k}, v{V_R+k}")
    for k, c in enumerate(cts):
        a(f"    v_add_f32 v{V_O+2*k}, v{V_O+2*k}, v{V_O+2*k+1}")
    for k, c in enumerate(cts):
        a(f"    v_mul_f32 v{V_O+2*k}, v{V_O+2*k}, v{V_R+k}")
def flush_ops2(a, cts):
    a(f"    v_permlane32_swap_b32 v{V_O}, v{V_O+2}")
    a(f"    v_min3_f32 v{V_MN}, v{V_MN}, v{V_R}, v{V_R+1}")
    a(f"    v_add_f32 v{V_O}, v{V_O}, v{V_O+2}")
    a(f"    ds_write_b32 v{V_AS}, v{V_O} offset:{128*cts[0]}")

def y_phase(a, cts, b, head):
    nsrc = [V_ND + 4*c for c in cts]
    for u in range(8):
        if u == 1:
            for h in head: a(h)
        if u == b:
            flush_ops(a, cts)
            for k, c in enumerate(cts):
                D = V_ND + 4*c + 2
                a(f"    v_pk_add_f32 {vr(D,2)}, {vr(V_E+16*k+2*u,2)}, 1.0 op_sel_hi:[1,0]")
            flush_ops2(a, cts)
            for k, c in enumerate(cts):
                p = V_D + 16*c + 2*u
                if u == 7:
                    a(f"    v_pk_mov_b32 {vr(V_ND+4*c,2)}, {vr(p,2)}, {vr(p,2)} op_sel:[0,1]")
                else:
                    nsrc[k] = p
            continue
        if "nopk" in OPT:
            continue
        for k, c in enumerate(cts):
            N = V_ND + 4*c; D = N + 2
            p = V_D + 16*c + 2*u
            a(f"    v_pk_fma_f32 {vr(V_T+2*k,2)}, {vr(p,2)}, {vr(D,2)}, {vr(nsrc[k],2)}")
        for k, c in enumerate(cts):
            N = V_ND + 4*c; D = N + 2
            e = V_E + 16*k + 2*u
            a(f"    v_pk_fma_f32 {vr(D,2)}, {vr(D,2)}, {vr(e,2)}, {vr(D,2)}")
        for k, c in enumerate(cts):
            N = V_ND + 4*c
            e = V_E + 16*k + 2*u
            a(f"    v_pk_fma_f32 {vr(N,2)}, {vr(nsrc[k],2)}, {vr(e,2)}, {vr(V_T+2*k,2)}")
            nsrc[k] = N

def a_reads(ent_off, idx_off, q):
    h = []
    for s in range(4):
        h.append(f"    ds_read_b128 {vr(V_A+4*s,4)}, v{V_AA+s}")
    h.append(f"    ds_read_b64 {vr(V_A5,2)}, v{V_AENT} offset:{ent_off}")
    if q:
        for c in range(4):
            h.append(f"    ds_read_b32 v{V_B5+2*c}, v{V_AQ} offset:{128*c}")
    h += idx_reads(idx_off)
    return h
def idx_reads(idx_off):
    return [f"    ds_read_u16 v{V_IX+2*m}, v{V_AIDX} offset:{idx_off + 64*m}" for m in range(4)]
def dma_ops():
    so = [sr(S_O3), sr(S_O2), sr(S_O1), "0"]
    return [f"    buffer_load_dwordx4 {vr(V_IX+2*m,2)}, {sr(S_RX,4)}, {so[m]} idxen offen offset:{1024*m} lds" for m in range(4)]

VAR_SIZE = 2048
def tile_variant(a, b):
    name = "N" if b is None else str(b)
    a(f".p2align 6")
    a(f"K2_var{name}:")
    bnd = b is not None
    plain0 = []
    if bnd:
        plain0 = [f"    v_add_u32 v{V_AQ}, v{V_AQ}, v{V_INCQ}",
                  f"    v_xor_b32 v{V_INCQ}, 0x400, v{V_INCQ}"]
    plain0.append(f"    v_readlane_b32 s{S_J}, v{V_TAB}, s{S_K}")
    x_phase(a, (2, 3), (0, 1), plain0)
    head = [f"    s_waitcnt vmcnt(0)"] + a_reads(256, 512, bnd) + [f"    s_add_u32 s{S_K}, s{S_K}, 1"]
    y_phase(a, (0, 1), b, head)
    nafter = 1 if (bnd and b >= 1) else 0
    a(f"    s_waitcnt lgkmcnt({nafter})")
    plain1 = [f"    v_perm_b32 v{V_A5}, v{V_A5}, v{V_A5}, v{V_PSEL}",
              f"    v_add_u32 v{V_AENT}, 0x100, v{V_AENT}",
              f"    v_add_u32 v{V_AIDX}, 0x100, v{V_AIDX}"]
    x_phase(a, (0, 1), (2, 3), plain1)
    head = ([] if "nodma" in OPT else dma_ops()) + [f"    s_add_u32 s{S_J}, s{S_J}, s{S_PC}", f"    s_addc_u32 s{S_J+1}, s{S_PC+1}, 0"]
    y_phase(a, (2, 3), b, head)
    if bnd:
        a(f"    v_add_u32 v{V_AS}, {ST_STRIDE}, v{V_AS}")
    a(f"    s_setpc_b64 {sr(S_J,2)}")

def gen_k2(a):
    L = V_LANE
    vT = 64
    vAd = 68
    vAd1 = 72
    vR0 = 76
    vR1 = 92
    vR2 = 100
    vRk = 116
    vBs = 136
    vQ = 0
    t0, t1, t2, t3, t4, t5 = 156, 157, 158, 159, 160, 161
    SM = S_M if not DIAG else 48
    def mask(k):
        regs = [48 + 2*i for i in range(10)] + [86 + 2*i for i in range(8)] + [24, 26]
        return sr(regs[k], 2)
    a(f"""
.p2align 8
.globl mpnn_kernel
.type mpnn_kernel,@function
mpnn_kernel:
    s_cmp_ge_u32 s2, 256
    s_cbranch_scc1 K2_end
    s_load_dwordx2 s[6:7], s[0:1], 80        ; ws
    s_load_dwordx2 s[4:5], s[0:1], 0         ; x
    s_load_dwordx4 s[8:11], s[0:1], 32       ; w1, b1
    s_load_dwordx4 s[12:15], s[0:1], 56      ; b2, out
    v_lshrrev_b32 v1, 6, v0
    v_and_b32 v{L}, 63, v0
    v_readfirstlane_b32 s{S_WAVE}, v1
    s_and_b32 s{S_BIN}, s2, 7
    s_lshl_b32 s{S_BIN}, s{S_BIN}, 5
    s_lshr_b32 s3, s2, 3
    s_add_u32 s{S_BIN}, s{S_BIN}, s3
    s_mul_i32 s{S_N0}, s{S_BIN}, {NB}
    s_sub_u32 s{S_NN}, {N_NODES}, s{S_N0}
    s_min_u32 s{S_NN}, s{S_NN}, {NB}
    v_lshrrev_b32 v{t0}, 3, v0
    s_lshl_b32 s3, s{S_BIN}, 2
    v_lshl_add_u32 v{t1}, v{t0}, 12, s3
    v_and_b32 v{t2}, 7, v0
    v_mul_u32_u24 v{t0}, {4*CH*8}, v{t0}
    v_lshl_add_u32 v{t0}, v{t2}, 4, v{t0}
    s_mov_b32 s{S_MODE}, 0""")
    if DIAG:
        stamp_real(a, 0); stamp(a, 1)
    a(f"""
    s_waitcnt lgkmcnt(0)
    s_add_u32 s{S_RT}, s6, {WS_TAB}
    s_addc_u32 s{S_RT+1}, s7, 0
    s_mov_b32 s{S_RT+2}, {NCH*1024}
    s_mov_b32 s{S_RT+3}, 0x00020000""")
    for i in range(4):
        a(f"    buffer_load_dword v{vT+i}, v{t1}, {sr(S_RT,4)}, 0 offen offset:{1024*i}")
    a(f"""
    s_mov_b32 s{S_RX}, s4
    s_mov_b32 s{S_RX+1}, s5
    s_mov_b32 s{S_RX+2}, {N_NODES*128}
    s_mov_b32 s{S_RX+3}, 0x00020000
    s_and_b32 s{S_TMP}, s{S_WAVE}, 1
    s_lshl_b32 s{S_TMP}, s{S_TMP}, 5
    s_add_u32 s{S_TMP}, s{S_TMP}, s{S_N0}
    s_lshl_b32 s{S_TMP}, s{S_TMP}, 7
    v_and_b32 v{t3}, 31, v{L}                ; j
    v_lshrrev_b32 v{t4}, 5, v{L}             ; hh
    v_lshlrev_b32 v{t1}, 7, v{t3}
    v_lshl_add_u32 v{t1}, v{t4}, 4, v{t1}""")
    for s in range(4):
        a(f"    buffer_load_dwordx4 {vr(16+4*s,4)}, v{t1}, {sr(S_RX,4)}, s{S_TMP} offen offset:{32*s}")
    a(f"""
    s_lshr_b32 s{S_TMP2}, s{S_WAVE}, 1       ; ct
    s_lshl_b32 s{S_TMP}, s{S_TMP2}, 12
    s_add_u32 s{S_TMP}, s{S_TMP}, {WS_WB}
    v_lshl_add_u32 v{t1}, v{L}, 4, s{S_TMP}""")
    for s in range(4):
        a(f"    global_load_dwordx4 {vr(32+4*s,4)}, v{t1}, s[6:7] offset:{1024*s}")
    a(f"""
    s_lshl_b32 s{S_TMP}, s{S_TMP2}, 6
    v_lshl_add_u32 v{t1}, v{t3}, 1, s{S_TMP}
    global_load_ushort v48, v{t1}, s[10:11]
    v_lshlrev_b32 v{t1}, 1, v{t3}
    v_add_u32 v{t1}, {128*256}, v{t1}""")
    for c in range(4):
        a(f"    global_load_ushort v{49+c}, v{t1}, s[8:9] offset:{64*c}")
    a(f"""
    s_and_b32 s{S_TMP}, s{S_WAVE}, 1
    s_lshl_b32 s{S_TMP}, s{S_TMP}, 6
    v_lshrrev_b32 v{t1}, 4, v{L}
    v_lshl_add_u32 v{t1}, v{t1}, 4, s{S_TMP}
    global_load_dwordx4 {vr(V_B2,4)}, v{t1}, s[12:13]
    s_lshl_b32 s{S_TMP}, s{S_WAVE}, 11
    s_add_u32 s{S_TMP3}, s{S_TMP}, {L_XS}
    s_mov_b32 m0, s{S_TMP3}
    s_add_u32 s{S_TMP3}, s{S_TMP}, {WS_WA}
    v_lshl_add_u32 v{t1}, v{L}, 4, s{S_TMP3}
    global_load_lds_dwordx4 v{t1}, s[6:7]
    global_load_lds_dwordx4 v{t1}, s[6:7] offset:1024
    s_add_u32 s{S_TMP3}, s{S_TMP}, {L_W2}
    s_mov_b32 m0, s{S_TMP3}
    v_add_u32 v{t1}, {WS_W2 - WS_WA}, v{t1}
    global_load_lds_dwordx4 v{t1}, s[6:7]
    global_load_lds_dwordx4 v{t1}, s[6:7] offset:1024
    v_mov_b32 v56, 0
    v_mov_b32 v57, {PADREC}
    v_mov_b32 v58, 0
    v_mov_b32 v59, {PADREC}
    v_mov_b32 v60, 0
    v_mov_b32 v61, 0
    v_mov_b32 v62, 0
    v_mov_b32 v63, 0
    v_lshlrev_b32 v{t1}, 4, v0""")
    a(f"""
    v_cmp_gt_u32 vcc, {L_ENT//16}, v0
    s_and_saveexec_b64 s[36:37], vcc
    ds_write_b128 v{t1}, v[60:63]
    s_mov_b64 exec, s[36:37]""")
    nent = L_QT - L_ENT
    for k in range(nent // 8192):
        a(f"    ds_write_b128 v{t1}, v[56:59] offset:{L_ENT + 8192*k}")
    rem = nent % 8192
    a(f"    ds_write_b128 v{t1}, v[56:59] offset:{L_QT - 8192}")
    a(f"    v_add_u32 v{t1}, {L_ST}, v{t1}")
    nst = L_XS - L_ST
    for k in range(nst // 8192):
        a(f"    ds_write_b128 v{t1}, v[60:63] offset:{8192*k}")
    a(f"    ds_write_b128 v{t1}, v[60:63] offset:{nst - 8192}")
    thr = [162, 163, 164, 165, 166, 167]
    a(f"""
    v_lshlrev_b32 v{thr[0]}, 4, v{t2}
    v_add_u32 v{thr[1]}, 8, v{thr[0]}
    v_lshlrev_b32 v{t5}, 3, v{t2}
    v_add_u32 v{thr[2]}, 0x80, v{t5}
    v_add_u32 v{thr[3]}, 0xc0, v{thr[0]}
    v_add_u32 v{thr[4]}, 0xc8, v{thr[0]}
    v_mov_b32 v{thr[5]}, 0x140
    s_mov_b32 s{S_RR}, s6
    s_mov_b32 s{S_RR+1}, s7
    s_mov_b32 s{S_RR+2}, {NCH*CH*8}
    s_mov_b32 s{S_RR+3}, 0x00020000
    s_mov_b32 s{S_O1}, {CH*8}
    s_mov_b32 s{S_O2}, {2*CH*8}
    s_mov_b32 s{S_O3}, {3*CH*8}
    s_waitcnt vmcnt(18)""")
    stamp(a, 2)
    so = ["0", sr(S_O1), sr(S_O2), sr(S_O3)]
    SD = "dst_sel:DWORD dst_unused:UNUSED_PAD"
    for i in range(4):
        a(f"    v_add_u32_sdwa v{vAd+i}, v{vT+i}, v{t0} {SD} src0_sel:WORD_0 src1_sel:DWORD")
        a(f"    buffer_load_dwordx4 {vr(vR0+4*i,4)}, v{vAd+i}, {sr(S_RR,4)}, {so[i]} offen")
    for i in range(4):
        a(f"    v_cmp_gt_u32_sdwa {mask(8+i)}, v{vT+i}, v{thr[2]} src0_sel:WORD_1 src1_sel:DWORD")
        a(f"    v_sub_u32 v{vAd1+i}, v{vAd+i}, v{t5}")
    for i in range(4):
        a(f"    s_or_b64 exec, {mask(8+i)}, 1")
        a(f"    buffer_load_dwordx2 {vr(vR1+2*i,2)}, v{vAd1+i}, {sr(S_RR,4)}, {so[i]} offen offset:128")
    a(f"    s_mov_b64 exec, -1")
    for i in range(4):
        a(f"    v_cmp_gt_u32_sdwa {mask(2*i)}, v{vT+i}, v{thr[0]} src0_sel:WORD_1 src1_sel:DWORD")
        a(f"    v_cmp_gt_u32_sdwa {mask(2*i+1)}, v{vT+i}, v{thr[1]} src0_sel:WORD_1 src1_sel:DWORD")
    a(f"""
    v_max_u32 v{t1}, v{vT}, v{vT+1}
    v_max3_u32 v{t1}, v{t1}, v{vT+2}, v{vT+3}
    v_cmp_gt_u32_sdwa vcc, v{t1}, v{thr[3]} src0_sel:WORD_1 src1_sel:DWORD
    s_mov_b32 s{S_K}, 0
    s_cbranch_vccz K2_nor2a
    s_mov_b32 s{S_K}, 1""")
    for i in range(4):
        a(f"    v_cmp_gt_u32_sdwa {mask(12+2*i)}, v{vT+i}, v{thr[3]} src0_sel:WORD_1 src1_sel:DWORD")
        a(f"    v_cmp_gt_u32_sdwa {mask(13+2*i)}, v{vT+i}, v{thr[4]} src0_sel:WORD_1 src1_sel:DWORD")
        a(f"    buffer_load_dwordx4 {vr(vR2+4*i,4)}, v{vAd+i}, {sr(S_RR,4)}, {so[i]} offen offset:192")
    a(f"""
    v_cmp_gt_u32_sdwa vcc, v{t1}, v{thr[5]} src0_sel:WORD_1 src1_sel:DWORD
    s_cbranch_vccz K2_r2ok
    s_mov_b32 s{S_MODE}, 1
K2_r2ok:
    s_waitcnt vmcnt(12)
    s_branch K2_q
K2_nor2a:
    s_waitcnt vmcnt(8)
K2_q:""")
    for s in range(4):
        cin = "0" if s == 0 else vr(vQ, 16)
        a(f"    v_mfma_f32_32x32x16_bf16 {vr(vQ,16)}, {vr(16+4*s,4)}, {vr(32+4*s,4)}, {cin}")
    a(f"""
    s_mov_b32 s3, {NLOG2E:#x}
    v_lshlrev_b32 v48, 16, v48
    v_mul_f32 v48, s3, v48                   ; -log2e*b1""")
    a(f"    v_cmp_lt_u32 vcc, 31, v{L}")
    for c in range(4):
        a(f"    v_lshlrev_b32 v{49+c}, 16, v{49+c}")
        a(f"    v_mul_f32 v{49+c}, s3, v{49+c}")
        a(f"    v_cvt_pk_bf16_f32 v53, v60, v{49+c}")
        a(f"    v_sub_f32 v54, v{49+c}, v53")
        a(f"    v_cvt_pk_bf16_f32 v54, v60, v54")
        a(f"    v_cndmask_b32 v{V_B5+2*c+1}, v53, v54, vcc")
    a(f"""
    s_and_b32 s{S_TMP}, s{S_WAVE}, 1
    s_lshl_b32 s{S_TMP}, s{S_TMP}, 14
    s_lshl_b32 s{S_TMP3}, s{S_TMP2}, 7
    s_add_u32 s{S_TMP}, s{S_TMP}, s{S_TMP3}
    s_add_u32 s{S_TMP}, s{S_TMP}, {L_QT}
    v_lshl_add_u32 v{t1}, v{t4}, 11, s{S_TMP}
    v_lshl_add_u32 v{t1}, v{t3}, 2, v{t1}""")
    for r in range(16):
        a(f"    v_fma_f32 v{vQ+r}, v{vQ+r}, s3, v48")
    for r in range(16):
        tt = 16 + r
        a(f"    v_cvt_pk_bf16_f32 v{tt}, v60, v{vQ+r}")
        a(f"    v_sub_f32 v{tt}, v{vQ+r}, v{tt}")
        a(f"    v_cvt_pk_bf16_f32 v{tt}, v{vQ+r}, v{tt}")
        a(f"    ds_write_b32 v{t1}, v{tt} offset:{512*(8*(r>>2)+(r&3))}")
    a(f"""
    v_mov_b32 v{t1}, 8
    s_waitcnt lgkmcnt(0)
    s_barrier""")
    stamp(a, 3)
    a(f"    v_lshlrev_b32 v{t5}, 4, v{L}")
    a(f"    v_add_u32 v{t5}, {L_XS}, v{t5}")
    for f in range(16):
        a(f"    ds_read_b128 {vr(V_W+4*f,4)}, v{t5} offset:{1024*f}")
    def col_regs(k):
        if k < 8: return vR0 + 2*k
        if k < 12: return vR1 + 2*(k-8)
        return vR2 + 2*(k-12)
    a(f"    s_waitcnt vmcnt(0)")
    stamp(a, 4)
    for k in range(12):
        a(f"    s_mov_b64 exec, {mask(k)}")
        a(f"    ds_add_rtn_u32 v{vRk+k}, v{col_regs(k)}, v{t1}")
    a(f"""
    s_cmp_eq_u32 s{S_K}, 0
    s_cbranch_scc1 K2_nor2b""")
    for k in range(12, 20):
        a(f"    s_mov_b64 exec, {mask(k)}")
        a(f"    ds_add_rtn_u32 v{vRk+k}, v{col_regs(k)}, v{t1}")
    a(f"""
    s_mov_b64 exec, 1
    v_mov_b32 v{t0}, s{S_MODE}
    v_mov_b32 v{t5}, {L_FLAG}
    ds_or_b32 v{t5}, v{t0}
K2_nor2b:
    s_mov_b64 exec, -1
    v_mul_u32_u24 v{t0}, 0x1004, v{L}
    v_and_b32 v{t0}, 0x10fc, v{t0}
    v_lshrrev_b32 v{t5}, 4, v{L}
    v_xor_b32 v{t5}, v{t5}, v{t2}
    v_lshlrev_b32 v{V_IX+1}, 4, v{t5}
    v_xor_b32 v{V_IX+3}, 64, v{V_IX+1}
    v_mov_b32 v{V_IX+5}, v{V_IX+1}
    v_mov_b32 v{V_IX+7}, v{V_IX+3}
    v_bfe_u32 v{t5}, v{L}, 1, 3
    v_xor_b32 v{t5}, v{t5}, v{t4}
    v_lshlrev_b32 v{t5}, 4, v{t5}
    v_lshl_add_u32 v{t5}, v{t3}, 7, v{t5}
    s_lshl_b32 s{S_TMP}, s{S_WAVE}, 12
    s_add_u32 s{S_TMP}, s{S_TMP}, {L_XS}
    s_mov_b32 m0, s{S_TMP}
    v_add_u32 v{V_AA}, s{S_TMP}, v{t5}
    v_xor_b32 v{V_AA+1}, 32, v{V_AA}
    v_xor_b32 v{V_AA+2}, 64, v{V_AA}
    v_xor_b32 v{V_AA+3}, 0x60, v{V_AA}
    v_mul_u32_u24 v{V_PSEL}, 0x20202, v{t4}
    v_lshl_add_u32 v{V_PSEL}, v{t4}, 25, v{V_PSEL}
    v_add_u32 v{V_PSEL}, 0x01000100, v{V_PSEL}
    v_and_b32 v{V_AENT}, 0x19, v{L}
    v_and_b32 v{t5}, 2, v{L}
    v_lshl_add_u32 v{V_AENT}, v{t5}, 1, v{V_AENT}
    v_bfe_u32 v{t5}, v{L}, 2, 1
    v_lshl_add_u32 v{V_AENT}, v{t5}, 1, v{V_AENT}
    v_lshlrev_b32 v{V_AENT}, 3, v{V_AENT}
    v_and_b32 v{V_AIDX}, 8, v{L}
    v_and_b32 v{t5}, 16, v{L}
    v_lshl_add_u32 v{V_AIDX}, v{t5}, 1, v{V_AIDX}
    v_lshl_add_u32 v{V_AIDX}, v{t4}, 4, v{V_AIDX}
    s_sub_u32 s{S_RX}, s4, 3072
    s_subb_u32 s{S_RX+1}, s5, 0
    s_and_b32 s{S_RX+1}, s{S_RX+1}, 0xffff
    s_or_b32 s{S_RX+1}, s{S_RX+1}, 0x00800000
    s_mov_b32 s{S_RX+2}, {N_NODES}
    s_movk_i32 s{S_O1}, 1024
    s_movk_i32 s{S_O2}, 2048
    s_movk_i32 s{S_O3}, 3072
    s_waitcnt lgkmcnt(0)
    s_barrier""")
    stamp(a, 5)
    vS = 168; vP = 169; vOne = 170
    a(f"""
    ds_read_b32 v{V_CNT}, v{t0}
    v_mov_b32 v{vOne}, 0x3f80
    v_cmp_gt_u32 vcc, s{S_NN}, v{L}
    s_waitcnt lgkmcnt(0)
    v_add_u32 v{vP}, 24, v{V_CNT}
    v_and_b32 v{vP}, 0xffffffe0, v{vP}
    v_max_u32 v{vP}, 0x100, v{vP}
    v_cndmask_b32 v{vP}, 0, v{vP}, vcc
    v_mov_b32 v{vS}, v{vP}""")
    wave_scan(a, vS)
    a(f"""
    s_nop 0
    v_readlane_b32 s{S_TMP}, v{vS}, 63
    v_sub_u32 v{vS}, v{vS}, v{vP}
    s_cmp_gt_u32 s{S_TMP}, {ENT_CAP*8}
    s_cbranch_scc1 K2_slow""")
    for k in range(12):
        a(f"    ds_bpermute_b32 v{vBs+k}, v{col_regs(k)}, v{vS}")
    a(f"""
    s_add_u32 s{S_TMP}, s{S_TMP}, 255
    s_lshr_b32 s{S_TMP}, s{S_TMP}, 8         ; T tiles
    s_mov_b32 s{S_TT}, s{S_TMP}
    s_and_b32 s{S_TMP2}, s{S_WAVE}, 3
    s_lshl_b32 s{S_TMP2}, s{S_TMP2}, 1
    s_lshr_b32 s{S_TMP3}, s{S_WAVE}, 2
    s_add_u32 s{S_SLOT}, s{S_TMP2}, s{S_TMP3}
    s_mul_i32 s{S_T0}, s{S_SLOT}, s{S_TMP}
    s_add_u32 s{S_NT}, s{S_T0}, s{S_TMP}
    s_lshr_b32 s{S_T0}, s{S_T0}, 3
    s_lshr_b32 s{S_NT}, s{S_NT}, 3
    s_sub_u32 s{S_NT}, s{S_NT}, s{S_T0}""")
    for k in range(12):
        r = col_regs(k)
        if k % 2 == 0:
            a(f"    s_waitcnt lgkmcnt({10-k})")
        a(f"    v_add_u32 v{vBs+k}, v{vBs+k}, v{vRk+k}")
        a(f"    v_lshlrev_b32_sdwa v{r}, v{r}, v{vOne} {SD} src0_sel:BYTE_1 src1_sel:DWORD")
    for k in range(12):
        r = col_regs(k)
        a(f"    s_mov_b64 exec, {mask(k)}")
        a(f"    ds_write_b64 v{vBs+k}, {vr(r,2)} offset:{L_ENT}")
    a(f"    s_mov_b64 exec, -1")
    a(f"""
    s_cmp_eq_u32 s{S_K}, 0
    s_cbranch_scc1 K2_nor2c""")
    for k in range(12, 20):
        a(f"    ds_bpermute_b32 v{vBs+k}, v{col_regs(k)}, v{vS}")
    a(f"    s_waitcnt lgkmcnt(0)")
    for k in range(12, 20):
        r = col_regs(k)
        a(f"    v_add_u32 v{vBs+k}, v{vBs+k}, v{vRk+k}")
        a(f"    v_lshlrev_b32_sdwa v{r}, v{r}, v{vOne} {SD} src0_sel:BYTE_1 src1_sel:DWORD")
        a(f"    s_mov_b64 exec, {mask(k)}")
        a(f"    ds_write_b64 v{vBs+k}, {vr(r,2)} offset:{L_ENT}")
        a(f"    s_mov_b64 exec, -1")
    a(f"""
K2_nor2c:
    s_lshl_b32 s{S_TMP}, s{S_T0}, 8          ; ts*8
    v_cmp_ge_u32 s[36:37], s{S_TMP}, v{vS}
    s_and_b64 s[36:37], s[36:37], vcc
    s_bcnt1_i32_b64 s{S_TMP2}, s[36:37]
    s_sub_u32 s{S_TMP2}, s{S_TMP2}, 1        ; n
    s_andn2_b64 s[36:37], vcc, s[36:37]
    v_subrev_u32 v{t0}, s{S_TMP}, v{vS}
    v_bfe_u32 v{t5}, v{t0}, 5, 3
    v_add_u32 v{t5}, 1, v{t5}
    v_mul_u32_u24 v{t5}, {VAR_SIZE}, v{t5}
    v_lshrrev_b32 v{t0}, 8, v{t0}
    v_min_u32 v{t0}, 63, v{t0}
    v_cndmask_b32 v{t0}, 63, v{t0}, s[36:37]
    v_lshlrev_b32 v{t0}, 2, v{t0}
    v_mov_b32 v{V_TAB}, 0
    {";" if "novar" in OPT else ""}ds_permute_b32 v{V_TAB}, v{t0}, v{t5}
    s_add_u32 s{S_TMP}, s{S_TMP}, {L_ENT}
    v_add_u32 v{V_AENT}, s{S_TMP}, v{V_AENT}
    s_add_u32 s{S_TMP}, s{S_TMP}, 4
    v_add_u32 v{V_AIDX}, s{S_TMP}, v{V_AIDX}
    s_add_u32 s{S_TMP}, s{S_TMP2}, s{S_SLOT}
    s_mul_i32 s{S_TMP}, s{S_TMP}, {ST_STRIDE}
    s_add_u32 s{S_TMP}, s{S_TMP}, {L_ST}
    v_lshl_add_u32 v{V_AS}, v{L}, 2, s{S_TMP}
    v_cvt_f32_u32 v{vOne}, s{S_TT}
    v_rcp_f32 v{vOne}, v{vOne}
    v_add3_u32 v{vP}, v{vS}, v{vP}, -8
    v_lshrrev_b32 v{vS}, 8, v{vS}
    v_lshrrev_b32 v{vP}, 8, v{vP}
    v_cvt_f32_u32 v{vS}, v{vS}
    v_cvt_f32_u32 v{vP}, v{vP}
    v_add_f32 v{vS}, 0x3f700000, v{vS}       ; + 7.5/8
    v_add_f32 v{vP}, 0x3f700000, v{vP}
    v_mul_f32 v{vOne}, 0x41000000, v{vOne}
    v_mul_f32 v{vS}, v{vS}, v{vOne}
    v_mul_f32 v{vP}, v{vP}, v{vOne}
    v_cvt_u32_f32 v{vS}, v{vS}
    v_cvt_u32_f32 v{vP}, v{vP}
    v_sub_u32 v{vP}, v{vP}, v{vS}
    v_add_u32 v{vS}, v{vS}, v{L}
    v_lshl_or_b32 v{vS}, v{vP}, 8, v{vS}
    v_cndmask_b32 v{vS}, 63, v{vS}, vcc
    v_lshl_or_b32 v{V_CNT}, v{vS}, 16, v{V_CNT}
    v_xor_b32 v{t5}, s{S_TMP2}, v{t4}
    v_and_b32 v{t5}, 1, v{t5}
    s_lshl_b32 s{S_TMP}, s{S_TMP2}, 9
    s_add_u32 s{S_TMP}, s{S_TMP}, {L_QT}
    v_lshl_add_u32 v{V_AQ}, v{t5}, 9, s{S_TMP}
    v_lshl_add_u32 v{V_AQ}, v{t3}, 2, v{V_AQ}
    v_xor_b32 v{t5}, 1, v{t5}
    v_lshlrev_b32 v{V_INCQ}, 10, v{t5}
    v_mov_b32 v{V_MN}, 1.0""")
    for c in range(4):
        a(f"    v_mov_b32 v{V_ND+4*c}, 0")
        a(f"    v_mov_b32 v{V_ND+4*c+1}, 0")
        a(f"    v_mov_b32 v{V_ND+4*c+2}, 1.0")
        a(f"    v_mov_b32 v{V_ND+4*c+3}, 1.0")
    a(f"""
    s_getpc_b64 {sr(S_PC,2)}
K2_pc:
    s_add_u32 s{S_PC}, s{S_PC}, K2_varN - K2_pc
    s_addc_u32 s{S_PC+1}, s{S_PC+1}, 0
    s_mov_b32 s{S_TMP}, K2_exit - K2_varN
    s_mov_b32 s{S_K}, 1
    s_waitcnt lgkmcnt(0)
    s_barrier""")
    stamp(a, 6)
    a(f"""
    s_cmp_eq_u32 s{S_NT}, 0
    s_cbranch_scc1 K2_join""")
    for h in idx_reads(0): a(h)
    a(f"    s_mov_b32 s{S_TMP3}, m0")
    a(f"    s_mov_b32 m0, s{S_NT}")
    a(f"    s_nop 0")
    a(f"    v_writelane_b32 v{V_TAB}, s{S_TMP}, m0")
    a(f"    s_mov_b32 m0, s{S_TMP3}")
    a(f"    s_waitcnt lgkmcnt(0)")
    for h in dma_ops(): a(h)
    a(f"    v_readlane_b32 s{S_J}, v{V_TAB}, 0")
    a(f"    s_waitcnt vmcnt(0)")
    stamp(a, 7)
    for h in a_reads(0, 256, True): a(h)
    a(f"    s_add_u32 s{S_J}, s{S_J}, s{S_PC}")
    a(f"    s_addc_u32 s{S_J+1}, s{S_PC+1}, 0")
    a(f"    s_waitcnt lgkmcnt(0)")
    for h in dma_ops(): a(h)
    x_phase(a, (0, 1), None, [f"    v_perm_b32 v{V_A5}, v{V_A5}, v{V_A5}, v{V_PSEL}"], do_exp=False)
    a(f"    s_nop 15")
    stamp(a, 8); stamp_real(a, 15)
    a(f"    s_setpc_b64 {sr(S_J,2)}")
    a(f".p2align 8")
    start = len(a.l)
    for vi, b in enumerate([None] + list(range(8))):
        tile_variant(a, b)
        nm = "N" if b is None else str(b)
        a(f".org K2_varN + {VAR_SIZE*(vi+1)}, 0")
    a(f"K2_exit:")
    stamp(a, 9); stamp_real(a, 11)
    for cts in ((0, 1), (2, 3)):
        flush_ops(a, cts)
        a("    s_nop 1")
        flush_ops2(a, cts)
    a(f"""
    v_cmp_eq_f32 vcc, 0, v{V_MN}
    s_cbranch_vccz K2_join
    v_mov_b32 v64, 1
    v_mov_b32 v65, {L_FLAG}
    ds_or_b32 v65, v64
K2_join:
    v_and_b32 v64, 15, v{L}
    v_lshrrev_b32 v65, 4, v{L}               ; g
    s_lshr_b32 s{S_TMP}, s{S_WAVE}, 1
    s_lshl_b32 s{S_TMP}, s{S_TMP}, 4
    v_add_u32 v64, s{S_TMP}, v64             ; node
    s_and_b32 s{S_TMP2}, s{S_WAVE}, 1
    s_lshl_b32 s{S_TMP3}, s{S_TMP2}, 13
    s_add_u32 s{S_TMP3}, s{S_TMP3}, {L_W2}
    v_lshl_add_u32 v67, v{L}, 4, s{S_TMP3}""")
    for f in range(8):
        a(f"    ds_read_b128 {vr(4*f,4)}, v67 offset:{1024*f}")
    a(f"""
    v_lshlrev_b32 v68, 2, v64
    ds_bpermute_b32 v69, v68, v{V_CNT}
    v_lshlrev_b32 v70, 7, v64
    v_lshl_add_u32 v70, v65, 4, v70
    s_lshl_b32 s{S_TMP2}, s{S_TMP2}, 6
    s_lshl_b32 s{S_TMP}, s{S_N0}, 7
    s_add_u32 s{S_RT}, s14, s{S_TMP}
    s_addc_u32 s{S_RT+1}, s15, 0
    s_lshl_b32 s{S_RT+2}, s{S_NN}, 7
    s_mov_b32 s{S_RT+3}, 0x00020000
    s_mov_b32 s3, {NLN2:#x}
    s_movk_i32 s{S_K}, {ST_STRIDE}""")
    for q in range(4):
        a(f"    v_lshlrev_b32 v{72+2*q}, 16, v{V_B2+q}")
        a(f"    v_and_b32 v{73+2*q}, 0xffff0000, v{V_B2+q}")
    a(f"""
    s_waitcnt lgkmcnt(0)
    v_bfe_u32 v66, v69, 16, 8
    v_lshrrev_b32 v68, 24, v69
    v_and_b32 v69, 0xffff, v69
    v_cvt_f32_u32 v69, v69
    v_mul_f32 v69, 0x3e000000, v69
    v_lshlrev_b32 v65, 5, v65
    v_add_u32 v65, {L_ST}, v65
    v_mad_u32_u24 v66, v66, s{S_K}, v65
    v_add_u32 v65, {63*ST_STRIDE}, v65
    v_cmp_lt_u32 vcc, 0, v68
    v_add_u32 v67, {ST_STRIDE}, v66
    v_mov_b32 v71, {L_FLAG}
    v_cndmask_b32 v64, v65, v67, vcc""")
    for q in range(8):
        a(f"    v_mul_f32 v{72+q}, v69, v{72+q}")
    a(f"    s_barrier")
    stamp(a, 10)
    for ks in range(4):
        a(f"    ds_read_b128 {vr(96+8*ks,4)}, v66 offset:{128*ks}")
        a(f"    ds_read_b128 {vr(100+8*ks,4)}, v66 offset:{128*ks+16}")
    a(f"    s_mov_b32 s{S_TMP}, 1")
    a(f"K2_rows:")
    for ks in range(4):
        a(f"    ds_read_b128 {vr(136+8*ks,4)}, v64 offset:{128*ks}")
        a(f"    ds_read_b128 {vr(140+8*ks,4)}, v64 offset:{128*ks+16}")
    a(f"""
    v_cmp_lt_u32 vcc, s{S_TMP}, v68
    v_add_u32 v67, {ST_STRIDE}, v67
    s_add_u32 s{S_TMP}, s{S_TMP}, 1""")
    for ks in range(4):
        a(f"    s_waitcnt lgkmcnt({6-2*ks})")
        for q in range(4):
            a(f"    v_pk_add_f32 {vr(96+8*ks+2*q,2)}, {vr(96+8*ks+2*q,2)}, {vr(136+8*ks+2*q,2)}")
    a(f"""
    v_cndmask_b32 v64, v65, v67, vcc
    s_cbranch_vccnz K2_rows
    ds_read_b32 v71, v71""")
    for ks in range(4):
        for q in range(4):
            a(f"    v_cvt_pk_bf16_f32 v{80+4*ks+q}, v{96+8*ks+2*q}, v{97+8*ks+2*q}")
    a("    s_nop 1")
    for ks in range(4):
        for ot in range(2):
            d = vr(128+4*ot, 4)
            cin = "0" if ks == 0 else d
            a(f"    v_mfma_f32_16x16x32_bf16 {d}, {vr(16*ot+4*ks,4)}, {vr(80+4*ks,4)}, {cin}")
    a("    s_nop 7")
    for q in range(8):
        a(f"    v_fma_f32 v{72+q}, v{128+q}, s3, v{72+q}")
    for q in range(4):
        a(f"    v_cvt_pk_bf16_f32 v{80+q}, v{72+2*q}, v{73+2*q}")
    a(f"    buffer_store_dwordx4 v[80:83], v70, {sr(S_RT,4)}, s{S_TMP2} offen")
    if DIAG:
        a("    s_waitcnt vmcnt(0)")
        stamp(a, 12); stamp_real(a, 13)
        a(f"    s_mov_b32 s{STAMP_S+14}, s{S_NT}")
        stamp_store(a, 6, 1, S_WAVE, 64, 65)
        spin = [o for o in OPT if o.startswith("spin")]
        if spin:
            which = spin[0][4:]
            a(f"""
    s_or_b32 s3, s2, s{S_WAVE}
    s_cmp_lg_u32 s3, 0
    s_cbranch_scc1 K2_end
    s_add_u32 s36, s6, {WS_STAMP}
    s_addc_u32 s37, s7, 0
    s_load_dword s48, s[36:37], 0
    s_load_dword s49, s[36:37], 32
    s_waitcnt lgkmcnt(0)""")
            src = {"0": "s48", "k1end": "s49", "k2start": f"s{STAMP_S}", "loop": f"s{STAMP_S+15}", "loopend": f"s{STAMP_S+11}", "end": f"s{STAMP_S+13}"}[which]
            a(f"""
    s_sub_u32 s50, {src}, s48
    s_min_u32 s50, s50, 20000
    s_mul_i32 s50, s50, 10
    s_add_u32 s50, s50, 10000
K2_spin:
    s_memrealtime s[52:53]
    s_waitcnt lgkmcnt(0)
    s_sub_u32 s52, s52, s48
    s_cmp_lt_u32 s52, s50
    s_cbranch_scc1 K2_spin""")
    a(f"""
K2_slow:
K2_end:
    s_endpgm
""")

def descriptor(a, name, vgpr, sgpr):
    acc = (vgpr + 3) // 4 * 4
    a(f"""
.amdhsa_kernel {name}
  .amdhsa_next_free_vgpr {vgpr}
  .amdhsa_next_free_sgpr {sgpr}
  .amdhsa_accum_offset {acc}
  .amdhsa_group_segment_fixed_size 0
  .amdhsa_kernarg_size 88
  .amdhsa_user_sgpr_count 2
  .amdhsa_user_sgpr_kernarg_segment_ptr 1
  .amdhsa_system_sgpr_workgroup_id_x 1
  .amdhsa_float_denorm_mode_32 {0 if "ftz" in OPT else 3}
.end_amdhsa_kernel""")

def main():
    global DIAG
    out = sys.argv[1]
    DIAG = "diag" in sys.argv[2:]
    OPT.update(sys.argv[2:])
    a = Asm()
    a(f"""; Edge-featured MPNN layer: out[n] = sum_(e: dst=n) (silu([x[src],x[dst],e] w1 + b1) w2 + b2)
; @launch kernel=bin_kernel grid=(256,1,1) block=(800,1,1) lds={K1_LDS}
; @launch kernel=mpnn_kernel grid=(256,1,1) block=(512,1,1) lds={L_END}
.amdgcn_target "amdgcn-amd-amdhsa--gfx950"
.text""")
    gen_k1(a)
    gen_k2(a)
    a('.section .rodata,"a"')
    a(".p2align 6")
    descriptor(a, "bin_kernel", 56, 102 if DIAG else 32)
    a(".p2align 6")
    descriptor(a, "mpnn_kernel", NVGPR, 102)
    open(out, "w").write(a.text())

if __name__ == "__main__":
    main()
```

```python
def gen_slow(a, S_N0, S_NN, S_WAVE, L, NLOG2E, prefix="SL"):
    P = prefix
    VW = 0
    a(f"""
{P}_start:
    s_mov_b64 exec, -1
    s_waitcnt vmcnt(0) lgkmcnt(0)
    s_barrier
    s_load_dwordx8 s[4:11], s[0:1], 0
    s_load_dwordx4 s[12:15], s[0:1], 32      ; w1, b1
    s_load_dwordx4 s[20:23], s[0:1], 48      ; w2, b2
    s_load_dwordx2 s[24:25], s[0:1], 64      ; out
    s_lshl_b32 s26, s{S_WAVE}, 10
    v_lshl_add_u32 v140, v{L}, 4, s26
    v_mov_b32 v144, 0
    v_mov_b32 v145, 0
    v_mov_b32 v146, 0
    v_mov_b32 v147, 0""")
    for k in range(5):
        a(f"    ds_write_b128 v140, v[144:147] offset:{8192*k}")
    a(f"""
    v_lshlrev_b32 v141, 2, v{L}
    s_waitcnt lgkmcnt(0)
    v_mov_b32 v142, v141
    s_mov_b32 s26, 0x05040100
    s_mov_b32 s27, 0x07060302""")
    for blk in range(8):
        for r in range(16):
            a(f"    global_load_dword v{VW+16*blk+r}, v142, s[12:13] offset:{256*r}")
        a(f"    v_add_u32 v142, 0x1000, v142")
        a(f"    s_waitcnt vmcnt(0)")
        for p in range(8):
            r = VW + 16*blk + 2*p
            a(f"    v_perm_b32 v143, v{r+1}, v{r}, s26")
            a(f"    v_perm_b32 v{r+1}, v{r+1}, v{r}, s27")
            a(f"    v_mov_b32 v{r}, v143")
    a(f"""
    global_load_dword v129, v142, s[12:13]   ; w1[128]
    global_load_dword v131, v141, s[14:15]   ; b1
    s_waitcnt vmcnt(0)
    v_lshlrev_b32 v128, 16, v129
    v_and_b32 v129, 0xffff0000, v129
    v_lshlrev_b32 v130, 16, v131
    v_and_b32 v131, 0xffff0000, v131
    v_lshlrev_b32 v139, 3, v{L}
    v_mov_b32 v148, 1
    s_barrier
    s_mov_b32 s28, s{S_WAVE}
{P}_scan:
    s_lshl_b32 s26, s28, 8
    v_add_u32 v142, s26, v141
    v_lshrrev_b32 v143, 1, v142
    global_load_dword v132, v142, s[10:11]
    global_load_dword v133, v142, s[8:9]
    global_load_ushort v134, v143, s[6:7]
    s_waitcnt vmcnt(0)
    v_subrev_u32 v135, s{S_N0}, v132
    v_cmp_gt_u32 s[30:31], s{S_NN}, v135
    s_nop 1
{P}_edge:
    s_cmp_eq_u64 s[30:31], 0
    s_cbranch_scc1 {P}_next
    s_ff1_i32_b64 s26, s[30:31]
    s_bitset0_b64 s[30:31], s26
    v_readlane_b32 s32, v133, s26
    v_readlane_b32 s33, v132, s26
    v_readlane_b32 s34, v134, s26
    v_readlane_b32 s35, v135, s26
    s_lshl_b32 s32, s32, 7
    s_lshl_b32 s33, s33, 7
    s_lshl_b32 s34, s34, 16
    s_load_dwordx16 s[36:51], s[4:5], s32
    s_load_dwordx16 s[68:83], s[4:5], s33
    s_add_u32 s32, s32, 64
    s_add_u32 s33, s33, 64
    s_load_dwordx16 s[52:67], s[4:5], s32
    s_load_dwordx16 s[84:99], s[4:5], s33
    v_fma_f32 v136, s34, v128, v130
    v_fma_f32 v137, s34, v129, v131
    s_lshl_b32 s26, s35, 9
    v_add_u32 v138, s26, v139
    s_lshl_b32 s26, s35, 2
    s_add_u32 s26, s26, 32768
    v_mov_b32 v140, s26
    s_waitcnt lgkmcnt(0)""")
    for kp in range(64):
        a(f"    v_dot2_f32_bf16 v136, s{36+kp}, v{VW+2*kp}, v136")
        a(f"    v_dot2_f32_bf16 v137, s{36+kp}, v{VW+2*kp+1}, v137")
    a(f"""
    s_nop 3
    v_mul_f32 v144, {NLOG2E:#x}, v136
    v_mul_f32 v145, {NLOG2E:#x}, v137
    v_exp_f32 v144, v144
    v_exp_f32 v145, v145
    s_nop 0
    v_add_f32 v144, 1.0, v144
    v_add_f32 v145, 1.0, v145
    v_rcp_f32 v144, v144
    v_rcp_f32 v145, v145
    s_nop 0
    v_mul_f32 v144, v136, v144
    v_mul_f32 v145, v137, v145
    ds_add_f32 v138, v144
    ds_add_f32 v138, v145 offset:4
    s_mov_b64 exec, 1
    ds_add_u32 v140, v148
    s_mov_b64 exec, -1
    s_branch {P}_edge
{P}_next:
    s_add_u32 s28, s28, 8
    s_cmp_lt_u32 s28, 12500
    s_cbranch_scc1 {P}_scan
    s_waitcnt lgkmcnt(0)
    s_barrier
    v_lshlrev_b32 v142, 1, v{L}
    global_load_ushort v128, v142, s[22:23]""")
    for blk in range(4):
        for r in range(32):
            a(f"    global_load_ushort v{32*blk+r}, v142, s[20:21] offset:{128*r}")
        a(f"    v_add_u32 v142, 0x1000, v142")
        a(f"    s_waitcnt vmcnt(0)")
    for r in range(129):
        a(f"    v_lshlrev_b32 v{r}, 16, v{r}")
    a(f"""
    s_mov_b32 s28, s{S_WAVE}
{P}_node:
    s_cmp_ge_u32 s28, s{S_NN}
    s_cbranch_scc1 {P}_done
    s_lshl_b32 s26, s28, 2
    s_add_u32 s26, s26, 32768
    v_mov_b32 v140, s26
    ds_read_b32 v136, v140
    s_lshl_b32 s26, s28, 9
    v_mov_b32 v140, s26
    s_waitcnt lgkmcnt(0)
    v_cvt_f32_u32 v136, v136
    v_mul_f32 v136, v136, v128""")
    for q in range(32):
        a(f"    ds_read_b128 v[144:147], v140 offset:{16*q}")
        a(f"    s_waitcnt lgkmcnt(0)")
        for i in range(4):
            a(f"    v_fmac_f32 v136, v{144+i}, v{4*q+i}")
    a(f"""
    v_cvt_pk_bf16_f32 v136, v136, v136
    s_add_u32 s26, s28, s{S_N0}
    s_lshl_b32 s26, s26, 7
    v_lshl_add_u32 v142, v{L}, 1, s26
    global_store_short v142, v136, s[24:25]
    s_add_u32 s28, s28, 8
    s_branch {P}_node
{P}_done:""")
```

```python
import sys
from gen import Asm, NLOG2E, NAME
from slow import gen_slow
aslist = "list" in sys.argv
a = Asm()
K = NAME + "_kernel"
hdr = f"; @launch kernel={K} grid=(256,1,1) block=(512,1,1) lds=149000" if aslist else "; @launch grid=(256,1,1) block=(512,1,1) lds=149000"
a(f"""{hdr}
.amdgcn_target "amdgcn-amd-amdhsa--gfx950"
.text
.globl {K}
.p2align 8
.type {K},@function
{K}:
    s_cmp_ge_u32 s2, 256
    s_cbranch_scc1 K_end
    s_memrealtime s[100:101]
    v_lshrrev_b32 v1, 6, v0
    v_and_b32 v200, 63, v0
    v_readfirstlane_b32 s19, v1
    s_mul_i32 s17, s2, 49
    s_sub_u32 s18, 12500, s17
    s_min_u32 s18, s18, 49""")
gen_slow(a, 17, 18, 19, 200, NLOG2E)
if "spin" in sys.argv:
    a("""
    s_or_b32 s3, s2, s19
    s_cmp_lg_u32 s3, 0
    s_cbranch_scc1 K_end
K_spin:
    s_memrealtime s[52:53]
    s_waitcnt lgkmcnt(0)
    s_sub_u32 s52, s52, s100
    s_cmp_lt_u32 s52, 400000
    s_cbranch_scc1 K_spin""")
a(f"""
K_end:
    s_endpgm
.section .rodata,"a"
.p2align 6
.amdhsa_kernel {K}
  .amdhsa_next_free_vgpr 240
  .amdhsa_next_free_sgpr 102
  .amdhsa_accum_offset 240
  .amdhsa_group_segment_fixed_size 0
  .amdhsa_kernarg_size 88
  .amdhsa_user_sgpr_count 2
  .amdhsa_user_sgpr_kernarg_segment_ptr 1
  .amdhsa_system_sgpr_workgroup_id_x 1
  .amdhsa_float_denorm_mode_32 3
.end_amdhsa_kernel""")
open(sys.argv[1], "w").write(a.text())
```

```python
def gen_slow(a, S_N0, S_NN, S_WAVE, L, NLOG2E, prefix="SL", NW=8):
    P = prefix
    VW = 0
    a(f"""
{P}_start:
    s_mov_b64 exec, -1
    s_waitcnt vmcnt(0) lgkmcnt(0)
    s_barrier
    s_load_dwordx8 s[4:11], s[0:1], 0
    s_load_dwordx4 s[12:15], s[0:1], 32      ; w1, b1
    s_load_dwordx4 s[20:23], s[0:1], 48      ; w2, b2
    s_load_dwordx2 s[24:25], s[0:1], 64      ; out
    s_lshl_b32 s26, s{S_WAVE}, 10
    v_lshl_add_u32 v140, v{L}, 4, s26
    v_mov_b32 v144, 0
    v_mov_b32 v145, 0
    v_mov_b32 v146, 0
    v_mov_b32 v147, 0""")
    for k in range(-(-33280 // (1024*NW))):
        a(f"    ds_write_b128 v140, v[144:147] offset:{1024*NW*k}")
    a(f"""
    v_lshlrev_b32 v141, 2, v{L}
    s_waitcnt lgkmcnt(0)
    v_mov_b32 v142, v141
    s_mov_b32 s26, 0x05040100
    s_mov_b32 s27, 0x07060302""")
    for blk in range(8):
        for r in range(16):
            a(f"    global_load_dword v{VW+16*blk+r}, v142, s[12:13] offset:{256*r}")
        a(f"    v_add_u32 v142, 0x1000, v142")
        a(f"    s_waitcnt vmcnt(0)")
        for p in range(8):
            r = VW + 16*blk + 2*p
            a(f"    v_perm_b32 v143, v{r+1}, v{r}, s26")
            a(f"    v_perm_b32 v{r+1}, v{r+1}, v{r}, s27")
            a(f"    v_mov_b32 v{r}, v143")
    a(f"""
    global_load_dword v129, v142, s[12:13]   ; w1[128]
    global_load_dword v131, v141, s[14:15]   ; b1
    s_waitcnt vmcnt(0)
    v_lshlrev_b32 v128, 16, v129
    v_and_b32 v129, 0xffff0000, v129
    v_lshlrev_b32 v130, 16, v131
    v_and_b32 v131, 0xffff0000, v131
    v_lshlrev_b32 v139, 3, v{L}
    v_mov_b32 v148, 1
    s_barrier
    s_mov_b32 s28, s{S_WAVE}
{P}_scan:
    s_lshl_b32 s26, s28, 8
    v_add_u32 v142, s26, v141
    v_lshrrev_b32 v143, 1, v142
    global_load_dword v132, v142, s[10:11]
    global_load_dword v133, v142, s[8:9]
    global_load_ushort v134, v143, s[6:7]
    s_waitcnt vmcnt(0)
    v_subrev_u32 v135, s{S_N0}, v132
    v_cmp_gt_u32 s[30:31], s{S_NN}, v135
    s_nop 1
{P}_edge:
    s_cmp_eq_u64 s[30:31], 0
    s_cbranch_scc1 {P}_next
    s_ff1_i32_b64 s26, s[30:31]
    s_bitset0_b64 s[30:31], s26
    v_readlane_b32 s32, v133, s26
    v_readlane_b32 s33, v132, s26
    v_readlane_b32 s34, v134, s26
    v_readlane_b32 s35, v135, s26
    s_lshl_b32 s32, s32, 7
    s_lshl_b32 s33, s33, 7
    s_lshl_b32 s34, s34, 16
    s_load_dwordx16 s[36:51], s[4:5], s32
    s_load_dwordx16 s[68:83], s[4:5], s33
    s_add_u32 s32, s32, 64
    s_add_u32 s33, s33, 64
    s_load_dwordx16 s[52:67], s[4:5], s32
    s_load_dwordx16 s[84:99], s[4:5], s33
    v_fma_f32 v136, s34, v128, v130
    v_fma_f32 v137, s34, v129, v131
    s_lshl_b32 s26, s35, 9
    v_add_u32 v138, s26, v139
    s_lshl_b32 s26, s35, 2
    s_add_u32 s26, s26, 32768
    v_mov_b32 v140, s26
    s_waitcnt lgkmcnt(0)""")
    for kp in range(64):
        a(f"    v_dot2_f32_bf16 v136, s{36+kp}, v{VW+2*kp}, v136")
        a(f"    v_dot2_f32_bf16 v137, s{36+kp}, v{VW+2*kp+1}, v137")
    a(f"""
    s_nop 3
    v_mul_f32 v144, {NLOG2E:#x}, v136
    v_mul_f32 v145, {NLOG2E:#x}, v137
    v_exp_f32 v144, v144
    v_exp_f32 v145, v145
    s_nop 0
    v_add_f32 v144, 1.0, v144
    v_add_f32 v145, 1.0, v145
    v_rcp_f32 v144, v144
    v_rcp_f32 v145, v145
    s_nop 0
    v_mul_f32 v144, v136, v144
    v_mul_f32 v145, v137, v145
    ds_add_f32 v138, v144
    ds_add_f32 v138, v145 offset:4
    s_mov_b64 exec, 1
    ds_add_u32 v140, v148
    s_mov_b64 exec, -1
    s_branch {P}_edge
{P}_next:
    s_add_u32 s28, s28, {NW}
    s_cmp_lt_u32 s28, 12500
    s_cbranch_scc1 {P}_scan
    s_waitcnt lgkmcnt(0)
    s_barrier
    v_lshlrev_b32 v142, 1, v{L}
    global_load_ushort v128, v142, s[22:23]""")
    for blk in range(4):
        for r in range(32):
            a(f"    global_load_ushort v{32*blk+r}, v142, s[20:21] offset:{128*r}")
        a(f"    v_add_u32 v142, 0x1000, v142")
        a(f"    s_waitcnt vmcnt(0)")
    for r in range(129):
        a(f"    v_lshlrev_b32 v{r}, 16, v{r}")
    a(f"""
    s_mov_b32 s28, s{S_WAVE}
{P}_node:
    s_cmp_ge_u32 s28, s{S_NN}
    s_cbranch_scc1 {P}_done
    s_lshl_b32 s26, s28, 2
    s_add_u32 s26, s26, 32768
    v_mov_b32 v140, s26
    ds_read_b32 v136, v140
    s_lshl_b32 s26, s28, 9
    v_mov_b32 v140, s26
    s_waitcnt lgkmcnt(0)
    v_cvt_f32_u32 v136, v136
    v_mul_f32 v136, v136, v128""")
    for q in range(32):
        a(f"    ds_read_b128 v[144:147], v140 offset:{16*q}")
        a(f"    s_waitcnt lgkmcnt(0)")
        for i in range(4):
            a(f"    v_fmac_f32 v136, v{144+i}, v{4*q+i}")
    a(f"""
    v_cvt_pk_bf16_f32 v136, v136, v136
    s_add_u32 s26, s28, s{S_N0}
    s_lshl_b32 s26, s26, 7
    v_lshl_add_u32 v142, v{L}, 1, s26
    global_store_short v142, v136, s[24:25]
    s_add_u32 s28, s28, {NW}
    s_branch {P}_node
{P}_done:""")
```

```python
import sys, struct
from slow import gen_slow

NAME = "standalone__edge_featured_mpnn_mpnn__graph"
KNAME = NAME + "_kernel"
N_NODES = 12500
NB = 49
NW = 12
NT_ = 64 * NW
MAINE = 4 * NT_
XTRA = 53
RSTRIDE = 16512

WS_REC = 0
WS_TAB = 0x420000
WS_P = 0x500000
WS_STAMP = 0xA00000

L_FLAG = 288
L_NONCE = 296
L_Z = 320
L_ENT = 4352
ENT_CAP = 3584
L_QT = L_ENT + ENT_CAP * 8 + 512
L_ST = L_QT + 56 * 512
ST_STRIDE = 528
ZROW = NB + NW
L_XS = (L_ST + (ZROW + 1) * ST_STRIDE + 255) // 256 * 256
L_W2 = L_XS + NW * 4096
L_END = L_W2 + 16384
L_RS = L_QT
L_H1 = L_QT + 16640
L_OFF = L_H1 + 1024
L_W1 = L_XS
L_PS = L_XS + 32768
PS_STRIDE = 272
assert L_END <= 163840 and L_OFF + 1024 <= L_ST and L_OFF + 1024 < 65536 and L_PS + 56 * PS_STRIDE <= L_W2

def f32bits(x):
    return struct.unpack("<I", struct.pack("<f", x))[0]
NLOG2E = f32bits(-1.4426950408889634)
NLN2 = f32bits(-0.6931471805599453)
PADREC = 0x3FFF
POLL_MAX = 4000

class Asm:
    def __init__(self):
        self.l = []
    def __call__(self, s=""):
        for x in s.strip("\n").split("\n"):
            self.l.append(x)
    def text(self):
        return "\n".join(self.l) + "\n"

def vr(a, n=1):
    return f"v{a}" if n == 1 else f"v[{a}:{a+n-1}]"
def sr(a, n=1):
    return f"s{a}" if n == 1 else f"s[{a}:{a+n-1}]"

DIAG = False
OPT = set()
def optval(prefix, default):
    for o in OPT:
        if o.startswith(prefix):
            return o[len(prefix):]
    return default

V_D = 0; V_E = 64; V_A5 = 96; V_B5 = 98; V_ND = 106; V_T = 122; V_R = 126; V_O = 128; V_IX = 132
V_AA = 140; V_AIDX = 141; V_AENT = 142; V_AQ = 143; V_INCQ = 144; V_AS = 145; V_MN = 146; V_PSEL = 147
V_TAB = 148; V_CNT = 149; V_B2 = 150; V_LANE = 154; V_TID = 155
V_J = 156; V_HH = 157
V_STAMP = 167; V_TRACE = 166
NVGPR = 168
S_X = 4; S_E = 6; S_SRC = 8; S_DST = 10; S_W1 = 12; S_B1 = 14; S_W2 = 16; S_B2 = 18; S_OUT = 20; S_DBG = 22; S_WS = 24
S_BIN = 26; S_N0 = 27; S_NN = 28; S_WAVE = 29; S_MODE = 30; S_K = 31; S_PC = 32; S_J = 34
S_RX = 36; S_RT = 40; S_RR = 44; S_P = 48
S_T0 = 56; S_NT = 57; S_TT = 58; S_SLOT = 59; S_A = 60; S_B = 61; S_C = 62; S_D = 63; S_TAG = 64
S_M = 66
def mask(k): return sr(S_M + 2*k, 2)

def stamp(a, k, real=False):
    if not DIAG:
        return
    a(f"    {'s_memrealtime' if real else 's_memtime'} s[98:99]")
    a(f"    s_waitcnt lgkmcnt(0)")
    a(f"    v_writelane_b32 v{V_STAMP}, s98, {k}")

def wave_scan(a, v):
    for sh in (1, 2, 4, 8):
        a(f"    s_nop 1")
        a(f"    v_add_u32_dpp v{v}, v{v}, v{v} row_shr:{sh} row_mask:0xf bank_mask:0xf")
    a(f"    s_nop 1")
    a(f"    v_add_u32_dpp v{v}, v{v}, v{v} row_bcast:15 row_mask:0xa bank_mask:0xf")
    a(f"    s_nop 1")
    a(f"    v_add_u32_dpp v{v}, v{v}, v{v} row_bcast:31 row_mask:0xc bank_mask:0xf")

SD = "dst_sel:DWORD dst_unused:UNUSED_PAD"

def small(c):
    d = vr(V_D + 16*c, 16)
    return f"    v_mfma_f32_32x32x8_bf16 {d}, {vr(V_A5,2)}, {vr(V_B5+2*c,2)}, {d}"
def tr_reads(h):
    return [f"    ds_read_b64_tr_b16 {vr(V_D+16*(2*h+k)+2*u,2)}, v{V_AA} offset:{512*u+64*k}" for u in range(8) for k in range(2)]
def ent_reads(off, q):
    h = [f"    ds_read_b64 {vr(V_A5,2)}, v{V_AENT} offset:{off}"]
    if q:
        h += [f"    ds_read_b32 v{V_B5+2*c}, v{V_AQ} offset:{128*c}" for c in range(4)]
    return h
def idx_reads(off):
    return [f"    ds_read_u16 v{V_IX+2*m}, v{V_AIDX} offset:{off + 64*m}" for m in range(4)]
def dma_ops(h):
    return [f"    buffer_load_dwordx4 {vr(V_IX+2*m,2)}, {sr(S_RX,4)}, s{S_P+4*h+m} idxen offen offset:{1024*m} lds" for m in range(4)]

def x_phase(a, mf_cts, ex_cts, head, pre, plain, tail):
    es = [f"    v_exp_f32 v{V_E+16*k+2*u+b}, v{V_D+16*c+2*u+b}" for u in range(8) for k, c in enumerate(ex_cts) for b in range(2)]
    n1 = 22
    for h in head: a(h)
    for e in es[:n1-2]: a(e)
    for p in plain: a(p)
    a(f"    s_waitcnt lgkmcnt(0)")
    for p in pre: a(p)
    for e in es[n1-2:n1]: a(e)
    a(small(mf_cts[0]))
    for e in es[n1:n1+4]: a(e)
    a(small(mf_cts[1]))
    for e in es[n1+4:]: a(e)
    for t in tail: a(t)
    a(".p2align 3")

def flush_ops(a, cts):
    for k, c in enumerate(cts):
        D = V_ND + 4*c + 2
        a(f"    v_mul_f32 v{V_R+k}, v{D}, v{D+1}")
    for k, c in enumerate(cts):
        N = V_ND + 4*c; D = N + 2
        a(f"    v_pk_mul_f32 {vr(V_O+2*k,2)}, {vr(N,2)}, {vr(D,2)} op_sel:[0,1] op_sel_hi:[1,0]")
    for k, c in enumerate(cts):
        a(f"    v_rcp_f32 v{V_R+k}, v{V_R+k}")
    for k, c in enumerate(cts):
        a(f"    v_add_f32 v{V_O+2*k}, v{V_O+2*k}, v{V_O+2*k+1}")
    for k, c in enumerate(cts):
        a(f"    v_mul_f32 v{V_O+2*k}, v{V_O+2*k}, v{V_R+k}")
def flush_ops2(a, cts):
    a(f"    v_permlane32_swap_b32 v{V_O}, v{V_O+2}")
    a(f"    v_min3_f32 v{V_MN}, v{V_MN}, v{V_R}, v{V_R+1}")
    a(f"    v_add_f32 v{V_O}, v{V_O}, v{V_O+2}")
    a(f"    ds_write_b32 v{V_AS}, v{V_O} offset:{128*cts[0]}")

def y_phase(a, cts, b):
    nsrc = [V_ND + 4*c for c in cts]
    for u in range(8):
        if u == b:
            flush_ops(a, cts)
            for k, c in enumerate(cts):
                a(f"    v_pk_add_f32 {vr(V_ND+4*c+2,2)}, {vr(V_E+16*k+2*u,2)}, 1.0 op_sel_hi:[1,0]")
            flush_ops2(a, cts)
            for k, c in enumerate(cts):
                p = V_D + 16*c + 2*u
                if u == 7:
                    a(f"    v_pk_mov_b32 {vr(V_ND+4*c,2)}, {vr(p,2)}, {vr(p,2)} op_sel:[0,1]")
                else:
                    nsrc[k] = p
            continue
        for k, c in enumerate(cts):
            a(f"    v_pk_fma_f32 {vr(V_T+2*k,2)}, {vr(V_D+16*c+2*u,2)}, {vr(V_ND+4*c+2,2)}, {vr(nsrc[k],2)}")
        for k, c in enumerate(cts):
            D = V_ND + 4*c + 2
            a(f"    v_pk_fma_f32 {vr(D,2)}, {vr(D,2)}, {vr(V_E+16*k+2*u,2)}, {vr(D,2)}")
        for k, c in enumerate(cts):
            a(f"    v_pk_fma_f32 {vr(V_ND+4*c,2)}, {vr(nsrc[k],2)}, {vr(V_E+16*k+2*u,2)}, {vr(V_T+2*k,2)}")
            nsrc[k] = V_ND + 4*c

VAR_SIZE = 1792
def tile_variant(a, vi, b):
    name = "N" if b is None else str(b)
    a(f".org K_vbase + {VAR_SIZE*vi + 64 - 20}, 0")
    a(f"    s_setprio 2\n    s_branch K_var{name}\n    s_setprio 1\n    s_branch K_var{name}\n    s_setprio 0")
    a(f"K_var{name}:")
    bnd = b is not None
    if "trace" in OPT:
        a(f"    s_memtime s[98:99]\n    s_mov_b32 s{S_A}, m0\n    s_mov_b32 m0, s{S_K}\n    s_waitcnt lgkmcnt(0)")
        a(f"    v_writelane_b32 v{V_TRACE}, s98, m0\n    s_mov_b32 m0, s{S_A}")
    plain0 = []
    if bnd:
        plain0 = [f"    v_add_u32 v{V_AQ}, v{V_AQ}, v{V_INCQ}", f"    v_xor_b32 v{V_INCQ}, 0x400, v{V_INCQ}"]
    plain0.append(f"    v_readlane_b32 s{S_J}, v{V_TAB}, s{S_K}")
    x_phase(a, (2, 3), (0, 1), ["    s_waitcnt vmcnt(0)"] + tr_reads(1) + idx_reads(256), [], plain0,
            dma_ops(0) + [f"    s_add_u32 s{S_K}, s{S_K}, 1"])
    y_phase(a, (0, 1), b)
    plain1 = [f"    v_add_u32 v{V_AENT}, 0x100, v{V_AENT}", f"    v_add_u32 v{V_AIDX}, 0x100, v{V_AIDX}"]
    x_phase(a, (0, 1), (2, 3), ["    s_waitcnt vmcnt(0)"] + ent_reads(256, bnd) + tr_reads(0),
            [f"    v_perm_b32 v{V_A5}, v{V_A5}, v{V_A5}, v{V_PSEL}"], plain1,
            dma_ops(1) + [f"    s_add_u32 s{S_J}, s{S_J}, s{S_PC}", f"    s_addc_u32 s{S_J+1}, s{S_PC+1}, 0"])
    y_phase(a, (2, 3), b)
    if bnd:
        a(f"    v_add_u32 v{V_AS}, {ST_STRIDE}, v{V_AS}")
    a(f"    s_setpc_b64 {sr(S_J,2)}")

def gen_kernel(a):
    L = V_LANE; T = V_TID; J = V_J; HH = V_HH
    t0, t1, t2, t3, t4, t5 = 158, 159, 160, 161, 162, 163
    vDst = 0
    vSrc = 8
    vEa = 14
    vBa = 20
    vRk = 26
    vOf = 32
    vX = 40
    vWf = 56
    vAc = 72
    vTb = 88
    vZ = 100
    a(f"""
.p2align 8
.globl {KNAME}
.type {KNAME},@function
{KNAME}:
    s_cmp_ge_u32 s2, 256
    s_cbranch_scc1 K_end
    s_load_dwordx8 s[4:11], s[0:1], 0
    s_load_dwordx8 s[12:19], s[0:1], 32      ; w1, b1, w2, b2
    s_load_dwordx4 s[20:23], s[0:1], 64
    s_load_dwordx2 s[24:25], s[0:1], 80      ; ws
    s_memrealtime {sr(S_TAG,2)}
    v_lshrrev_b32 v1, 6, v0
    v_mov_b32 v{T}, v0
    v_readfirstlane_b32 s{S_WAVE}, v1
    v_and_b32 v{L}, 63, v0
    s_mul_i32 s3, s2, {MAINE*4}
    v_lshl_add_u32 v{t0}, v0, 4, s3
    v_lshrrev_b32 v{t1}, 1, v{t0}
    s_and_b32 s{S_BIN}, s2, 7
    s_lshl_b32 s{S_BIN}, s{S_BIN}, 5
    s_lshr_b32 s3, s2, 3
    s_add_u32 s{S_BIN}, s{S_BIN}, s3
    s_mul_i32 s{S_N0}, s{S_BIN}, {NB}
    s_sub_u32 s{S_NN}, {N_NODES}, s{S_N0}
    s_min_u32 s{S_NN}, s{S_NN}, {NB}
    v_and_b32 v{J}, 31, v0
    v_bfe_u32 v{HH}, v0, 5, 1
    s_mov_b32 s{S_MODE}, 0
    v_mov_b32 v{vZ}, 0
    v_mov_b32 v{vZ+1}, 0
    v_mov_b32 v{vZ+2}, 0
    v_mov_b32 v{vZ+3}, 0
    v_lshlrev_b32 v{t2}, 2, v0""")
    if DIAG:
        a(f"    v_mov_b32 v{V_STAMP}, 0\n    v_mov_b32 v{V_TRACE}, 0")
        stamp(a, 0, True); stamp(a, 1)
    a(f"""
    s_waitcnt lgkmcnt(0)
    global_load_dwordx4 {vr(vDst,4)}, v{t0}, {sr(S_DST,2)}
    ds_write_b32 v{t2}, v{vZ} offset:{L_H1}
    s_cmp_ge_u32 s{S_WAVE}, 8
    s_cbranch_scc1 K_ldB
    global_load_dwordx4 {vr(vSrc,4)}, v{t0}, {sr(S_SRC,2)}
    global_load_dwordx2 {vr(vEa,2)}, v{t1}, {sr(S_E,2)}
    s_lshl_b32 s{S_A}, s{S_WAVE}, 12
    s_add_u32 s{S_B}, s{S_A}, {L_W1}
    s_mov_b32 m0, s{S_B}
    v_lshl_add_u32 v{t3}, v{L}, 4, s{S_A}""")
    for i in range(4):
        a(f"    global_load_lds_dwordx4 v{t3}, {sr(S_W1,2)} offset:{1024*i}")
    a(f"""
    s_mov_b32 s{S_RX}, s4
    s_mov_b32 s{S_RX+1}, s5
    s_mov_b32 s{S_RX+2}, {N_NODES*128}
    s_mov_b32 s{S_RX+3}, 0x00020000
    s_and_b32 s{S_A}, s{S_WAVE}, 1
    s_lshl_b32 s{S_A}, s{S_A}, 5
    s_add_u32 s{S_A}, s{S_A}, s{S_N0}
    s_lshl_b32 s{S_A}, s{S_A}, 7
    v_lshlrev_b32 v{t3}, 7, v{J}
    v_lshl_add_u32 v{t3}, v{HH}, 4, v{t3}""")
    for s in range(4):
        a(f"    buffer_load_dwordx4 {vr(vX+4*s,4)}, v{t3}, {sr(S_RX,4)}, s{S_A} offen offset:{32*s}")
    a(f"""
    s_branch K_ldJ
K_ldB:
    s_mul_i32 s{S_A}, s2, {XTRA}
    s_add_u32 s{S_A}, s{S_A}, {256*MAINE}
    v_min_u32 v{t3}, {XTRA-1}, v{L}
    v_add_lshl_u32 v{t3}, v{t3}, s{S_A}, 2
    v_lshrrev_b32 v{t4}, 1, v{t3}
    global_load_dword v{vDst+4}, v{t3}, {sr(S_DST,2)}
    global_load_dwordx4 {vr(vSrc,4)}, v{t0}, {sr(S_SRC,2)}
    global_load_dwordx2 {vr(vEa,2)}, v{t1}, {sr(S_E,2)}
    global_load_dword v{vSrc+4}, v{t3}, {sr(S_SRC,2)}
    global_load_ushort v{vEa+2}, v{t4}, {sr(S_E,2)}
    s_sub_u32 s{S_A}, s{S_WAVE}, 8
    s_lshl_b32 s{S_A}, s{S_A}, 12
    s_add_u32 s{S_B}, s{S_A}, {L_W2}
    s_mov_b32 m0, s{S_B}
    v_lshl_add_u32 v{t3}, v{L}, 4, s{S_A}""")
    for i in range(4):
        a(f"    global_load_lds_dwordx4 v{t3}, {sr(S_W2,2)} offset:{1024*i}")
    a(f"""
    s_lshl_b32 s{S_A}, s2, 4
    s_add_u32 s{S_A}, s{S_A}, s{S_WAVE}
    s_cmp_lg_u32 s{S_A}, 9
    s_cbranch_scc1 K_ldJ
    s_lshl_b32 s{S_A}, s{S_TAG}, 25
    s_or_b32 s{S_A}, s{S_A}, 1
    s_lshr_b64 {sr(S_TAG,2)}, {sr(S_TAG,2)}, 7
    v_mov_b32 v{t4}, s{S_A}
    v_mov_b32 v{t4+1}, s{S_TAG}
    s_mov_b64 exec, 1
    global_store_dwordx2 v{vZ}, {vr(t4,2)}, {sr(S_DBG,2)} sc1
    s_mov_b64 exec, -1
K_ldJ:
    s_waitcnt lgkmcnt(0)
    s_barrier
    v_mov_b32 v{vZ+4}, 0
    v_mov_b32 v{vZ+5}, {PADREC}
    v_mov_b32 v{vZ+6}, 0
    v_mov_b32 v{vZ+7}, {PADREC}
    v_lshlrev_b32 v{t2}, 4, v{T}
    v_min_u32 v{t3}, {L_ENT-16}, v{t2}
    ds_write_b128 v{t3}, {vr(vZ,4)}""")
    step = NT_ * 16
    nent = L_QT - L_ENT
    for k in range(nent // step):
        a(f"    ds_write_b128 v{t2}, {vr(vZ+4,4)} offset:{L_ENT + step*k}")
    a(f"    ds_write_b128 v{t2}, {vr(vZ+4,4)} offset:{L_QT - step}")
    a(f"    v_add_u32 v{t3}, {L_ST}, v{t2}")
    nst = L_XS - L_ST
    for k in range(nst // step):
        a(f"    ds_write_b128 v{t3}, {vr(vZ,4)} offset:{step*k}")
    a(f"    ds_write_b128 v{t3}, {vr(vZ,4)} offset:{nst - step}")
    a(f"""
    s_mov_b32 s{S_A}, 21400
    s_mov_b32 s{S_B}, -{NB}
    s_mov_b32 s{S_C}, 0xffff0000
    v_mov_b32 v{t5}, 0x10004
    s_cmp_ge_u32 s{S_WAVE}, 8
    s_cbranch_scc1 K_w8
    s_waitcnt vmcnt(10)
    s_branch K_wJ
K_w8:
    s_waitcnt vmcnt(8)
K_wJ:""")
    stamp(a, 2)
    def binops(cols):
        for i in cols: a(f"    v_mul_u32_u24 v{vBa+i}, s{S_A}, v{vDst+i}")
        for i in cols: a(f"    v_lshrrev_b32 v{vBa+i}, 18, v{vBa+i}")
        for i in cols:
            a(f"    v_and_b32 v{vBa+i}, 0x3fc, v{vBa+i}")
            a(f"    ds_add_rtn_u32 v{vRk+i}, v{vBa+i}, v{t5} offset:{L_H1}")
        for i in cols: a(f"    v_lshlrev_b32 v{vDst+i}, 2, v{vDst+i}")
        for i in cols: a(f"    v_mad_i32_i24 v{vDst+i}, v{vBa+i}, s{S_B}, v{vDst+i}")
    binops(range(4))
    a(f"""
    s_cmp_lg_u32 s{S_WAVE}, 11
    s_cbranch_scc1 K_nx1
    s_bfm_b64 exec, {XTRA}, 0""")
    binops([4])
    a(f"""
    s_mov_b64 exec, -1
K_nx1:
    s_waitcnt vmcnt(0)
    v_lshl_or_b32 v{vSrc}, v{vEa}, 16, v{vSrc}
    v_and_or_b32 v{vSrc+1}, v{vEa}, s{S_C}, v{vSrc+1}
    v_lshl_or_b32 v{vSrc+2}, v{vEa+1}, 16, v{vSrc+2}
    v_and_or_b32 v{vSrc+3}, v{vEa+1}, s{S_C}, v{vSrc+3}
    v_lshl_or_b32 v{vSrc+4}, v{vEa+2}, 16, v{vSrc+4}
    s_waitcnt lgkmcnt(0)
    s_barrier""")
    stamp(a, 3)
    a(f"""
    s_cmp_ge_u32 s{S_WAVE}, 8
    s_cbranch_scc1 K_notP
    v_bfe_u32 v{t0}, v{L}, 2, 2
    v_lshl_add_u32 v{t0}, v{HH}, 3, v{t0}
    v_lshlrev_b32 v{t0}, 8, v{t0}
    s_lshr_b32 s{S_D}, s{S_WAVE}, 1          ; ct
    s_lshl_b32 s{S_A}, s{S_D}, 6
    s_add_u32 s{S_A}, s{S_A}, {L_W1}
    v_add_u32 v{t0}, s{S_A}, v{t0}
    v_and_b32 v{t1}, 1, v{L}
    v_lshl_add_u32 v{t1}, v{t1}, 5, v{t0}
    v_and_b32 v{t3}, 16, v{L}
    v_add_u32 v{t1}, v{t1}, v{t3}
    v_and_b32 v{t3}, 2, v{L}
    v_lshl_add_u32 v{t1}, v{t3}, 2, v{t1}""")
    for s in range(4):
        for h in range(2):
            a(f"    ds_read_b64_tr_b16 {vr(vWf+4*s+2*h,2)}, v{t1} offset:{4096*s+1024*h}")
    a(f"""
    s_and_b32 s{S_A}, s{S_WAVE}, 1
    s_mul_i32 s{S_A}, s{S_A}, {32*PS_STRIDE}
    s_lshl_b32 s{S_B}, s{S_D}, 6
    s_add_u32 s{S_A}, s{S_A}, s{S_B}
    s_add_u32 s{S_A}, s{S_A}, {L_PS}
    v_mul_u32_u24 v{t3}, {PS_STRIDE}, v{J}
    v_lshl_add_u32 v{t3}, v{HH}, 5, v{t3}
    v_add_u32 v{t3}, s{S_A}, v{t3}
    v_mov_b32 v{t4}, {NLOG2E:#x}""")
    for s in range(4):
        a(f"    s_waitcnt lgkmcnt({6-2*s})")
        cin = "0" if s == 0 else vr(vAc, 16)
        a(f"    v_mfma_f32_32x32x16_bf16 {vr(vAc,16)}, {vr(vWf+4*s,4)}, {vr(vX+4*s,4)}, {cin}")
    a(f"""
    v_cmp_gt_u32 vcc, {L_PS + 56*PS_STRIDE}, v{t3}
    s_nop 10""")
    for q in range(8):
        a(f"    v_pk_mul_f32 {vr(vAc+2*q,2)}, {vr(vAc+2*q,2)}, {vr(t4,2)} op_sel_hi:[1,0]")
    for q in range(8):
        a(f"    v_cvt_pk_bf16_f32 v{vAc+q}, v{vAc+2*q}, v{vAc+2*q+1}")
    a(f"""
    s_mov_b64 exec, vcc
    ds_write_b128 v{t3}, {vr(vAc,4)}
    ds_write_b128 v{t3}, {vr(vAc+4,4)} offset:16
    s_mov_b64 exec, -1
    s_branch K_b3
K_notP:
    s_cmp_eq_u32 s{S_WAVE}, 8
    s_cbranch_scc1 K_scan1
    s_cmp_lg_u32 s{S_WAVE}, 9
    s_cbranch_scc1 K_b3
    global_load_dwordx2 {vr(t4,2)}, v{vZ}, {sr(S_DBG,2)}
    s_mov_b32 s{S_K}, 0
K_tagp:
    s_waitcnt vmcnt(0)
    v_cmp_ne_u32 vcc, 0, v{t4}
    s_cbranch_vccnz K_tagok
    s_add_u32 s{S_K}, s{S_K}, 1
    s_cmp_gt_u32 s{S_K}, {POLL_MAX}
    s_cbranch_scc1 K_tagok
    global_load_dwordx2 {vr(t4,2)}, v{vZ}, {sr(S_DBG,2)} sc1
    s_branch K_tagp
K_tagok:
    ds_write_b64 v{vZ}, {vr(t4,2)} offset:{L_NONCE}
    s_branch K_b3
K_scan1:
    v_lshlrev_b32 v{t0}, 4, v{L}
    ds_read_b128 v[108:111], v{t0} offset:{L_H1}
    s_waitcnt lgkmcnt(0)""")
    for i in range(4):
        a(f"    v_lshrrev_b32 v{112+i}, 16, v{108+i}")
    for i in range(4):
        a(f"    v_mad_u32_u24 v{116+i}, v{112+i}, 5, 3")
    for i in range(4):
        a(f"    v_and_b32 v{116+i}, -4, v{116+i}")
    a(f"""
    v_add_u32 v117, v116, v117
    v_add_u32 v118, v117, v118
    v_add_u32 v119, v118, v119
    v_mov_b32 v120, v119""")
    wave_scan(a, 120)
    a(f"""
    v_sub_u32 v120, v120, v119
    v_add_u32 v121, v120, v116
    v_add_u32 v122, v120, v117
    v_add_u32 v123, v120, v118
    s_mov_b32 s{S_A}, 0x10001""")
    for i in range(4):
        a(f"    v_mul_u32_u24 v{116+i}, s{S_A}, v{120+i}")
    for i in range(4):
        a(f"    v_lshl_add_u32 v{116+i}, v{108+i}, 16, v{116+i}")
    a(f"    ds_write_b128 v{t0}, v[116:119] offset:{L_OFF}")
    for i in range(4):
        a(f"    v_lshrrev_b32 v{120+i}, 2, v{120+i}")
        a(f"    v_lshl_or_b32 v{vTb+2*i}, v{112+i}, 13, v{120+i}")
    a(f"""
K_b3:
    s_waitcnt lgkmcnt(0)
    s_barrier""")
    stamp(a, 4)
    for i in range(4):
        a(f"    ds_read_b32 v{vOf+i}, v{vBa+i} offset:{L_OFF}")
    a(f"""
    v_lshrrev_b32 v{t0}, 4, v{T}
    v_and_b32 v{t1}, 15, v{T}
    v_lshlrev_b32 v{t1}, 4, v{t1}
    v_mul_u32_u24 v{t3}, {PS_STRIDE}, v{t0}
    v_add_u32 v{t3}, v{t3}, v{t1}
    v_add_u32 v{t3}, {L_PS}, v{t3}
    ds_read_b128 v[108:111], v{t3}
    ds_read_b64 {vr(t4,2)}, v{vZ} offset:{L_NONCE}
    s_lshl_b32 s{S_A}, s{S_N0}, 8
    s_add_u32 s{S_A}, s{S_A}, {WS_P}
    s_add_u32 s{S_RT}, s{S_WS}, s{S_A}
    s_addc_u32 s{S_RT+1}, s{S_WS+1}, 0
    s_lshl_b32 s{S_RT+2}, s{S_NN}, 8
    s_mov_b32 s{S_RT+3}, 0x00020000""")
    def scatter(i):
        a(f"    v_add_u32_sdwa v{vBa+i}, v{vOf+i}, v{vRk+i} {SD} src0_sel:WORD_0 src1_sel:WORD_0")
        a(f"    v_add_u32_sdwa v{vOf+i}, v{vOf+i}, v{vRk+i} {SD} src0_sel:WORD_1 src1_sel:WORD_1")
        a(f"    ds_write_b32 v{vBa+i}, v{vSrc+i} offset:{L_RS}")
        a(f"    ds_write_b8 v{vOf+i}, v{vDst+i} offset:{L_RS}")
    a(f"    s_waitcnt lgkmcnt(2)")
    for i in range(4): scatter(i)
    a(f"""
    s_waitcnt lgkmcnt(8)
    buffer_store_dwordx4 v[108:111], v{t2}, {sr(S_RT,4)}, 0 offen sc1
    v_readfirstlane_b32 s{S_TAG}, v{t4}
    v_readfirstlane_b32 s{S_TAG+1}, v{t4+1}
    s_cmp_lt_u32 s{S_WAVE}, 10
    s_cbranch_scc1 K_nx2
    s_cmp_eq_u32 s{S_WAVE}, 11
    s_cbranch_scc1 K_x2
    v_add_u32 v{t3}, {L_PS + 48*PS_STRIDE}, v{t1}
    ds_read_b128 v[112:115], v{t3}
    v_add_u32 v{t1}, {48*256}, v{t1}
    s_mov_b64 exec, 0xffff
    s_waitcnt lgkmcnt(0)
    buffer_store_dwordx4 v[112:115], v{t1}, {sr(S_RT,4)}, 0 offen sc1
    s_mov_b64 exec, -1
    s_branch K_nx2
K_x2:
    s_bfm_b64 exec, {XTRA}, 0
    ds_read_b32 v{vOf+4}, v{vBa+4} offset:{L_OFF}
    s_waitcnt lgkmcnt(0)""")
    scatter(4)
    a(f"""
    s_mov_b64 exec, -1
K_nx2:
    s_mul_i32 s{S_A}, s2, {RSTRIDE}
    s_add_u32 s{S_RR}, s{S_WS}, s{S_A}
    s_addc_u32 s{S_RR+1}, s{S_WS+1}, 0
    s_mov_b32 s{S_RR+2}, {RSTRIDE}
    s_mov_b32 s{S_RR+3}, 0x00020000
    v_add_u32 v{t3}, {step}, v{t2}
    s_waitcnt lgkmcnt(0)
    s_barrier""")
    stamp(a, 5)
    a(f"""
    ds_read_b128 v[108:111], v{t2} offset:{L_RS}
    s_cmp_ge_u32 s{S_WAVE}, 5
    s_cbranch_scc1 K_co1
    ds_read_b128 v[112:115], v{t2} offset:{L_RS + step}
    s_waitcnt lgkmcnt(0)
    buffer_store_dwordx4 v[112:115], v{t3}, {sr(S_RR,4)}, 0 offen sc1
K_co1:
    s_waitcnt lgkmcnt(0)
    buffer_store_dwordx4 v[108:111], v{t2}, {sr(S_RR,4)}, 0 offen sc1
    v_and_b32 v{t0}, 7, v{L}
    v_lshlrev_b32 v{V_IX+1}, 4, v{t0}
    v_mov_b32 v{V_IX+3}, v{V_IX+1}
    v_mov_b32 v{V_IX+5}, v{V_IX+1}
    v_mov_b32 v{V_IX+7}, v{V_IX+1}
    v_and_b32 v{t0}, 3, v{L}
    v_lshlrev_b32 v{t0}, 3, v{t0}
    v_and_b32 v{t1}, 16, v{L}
    v_lshl_add_u32 v{t0}, v{t1}, 1, v{t0}    ; 8c + 32(g&1)
    v_and_b32 v{t1}, 8, v{L}
    v_lshl_add_u32 v{t1}, v{t1}, 4, v{t0}
    v_lshl_add_u32 v{t1}, v{HH}, 8, v{t1}
    s_lshl_b32 s{S_B}, s{S_WAVE}, 12
    s_add_u32 s{S_B}, s{S_B}, {L_XS}
    s_mov_b32 m0, s{S_B}
    v_add_u32 v{t1}, s{S_B}, v{t1}
    v_and_b32 v{t3}, 4, v{L}
    v_cmp_ne_u32 vcc, 0, v{t3}
    v_mov_b32 v{t3}, {L_Z}
    v_mul_u32_u24 v{V_PSEL}, 0x20202, v{HH}
    v_cndmask_b32 v{V_AA}, v{t3}, v{t1}, vcc
    v_lshl_add_u32 v{V_PSEL}, v{HH}, 25, v{V_PSEL}
    v_add_u32 v{V_PSEL}, 0x01000100, v{V_PSEL}
    v_and_b32 v{V_AENT}, 0x19, v{L}
    v_and_b32 v{t1}, 2, v{L}
    v_lshl_add_u32 v{V_AENT}, v{t1}, 1, v{V_AENT}
    v_bfe_u32 v{t1}, v{L}, 2, 1
    v_lshl_add_u32 v{V_AENT}, v{t1}, 1, v{V_AENT}
    v_lshlrev_b32 v{V_AENT}, 3, v{V_AENT}
    v_and_b32 v{V_AIDX}, 56, v{L}""")
    for h in range(2):
        for m in range(4):
            a(f"    s_movk_i32 s{S_P+4*h+m}, {3072 - 1024*m + 128*h}")
    vG4 = 164; vSb = 165
    a(f"""
    v_mul_u32_u24 v{t1}, 10923, v{T}
    v_lshrrev_b32 v{t1}, 16, v{t1}           ; t/6
    v_mad_i32_i24 v{vG4}, v{t1}, -6, v{T}
    v_lshlrev_b32 v{vG4}, 2, v{vG4}          ; 4g
    v_mul_u32_u24 v{vSb}, {RSTRIDE}, v{t1}
    s_lshl_b32 s{S_B}, s{S_BIN}, 3
    s_add_u32 s{S_B}, s{S_B}, {WS_TAB}
    v_lshl_add_u32 v{t5}, v{t1}, 11, s{S_B}
    s_waitcnt vmcnt(0)
    s_barrier""")
    stamp(a, 6)
    a(f"""
    s_cmp_eq_u32 s{S_TAG}, 0
    s_cbranch_scc1 K_slow
    s_and_b32 s{S_TAG}, s{S_TAG}, 0xfe000000
    s_cmp_lg_u32 s{S_WAVE}, 8
    s_cbranch_scc1 K_ntab""")
    for i in range(4):
        a(f"    v_or_b32 v{vTb+2*i}, s{S_TAG}, v{vTb+2*i}")
        a(f"    v_mov_b32 v{vTb+2*i+1}, s{S_TAG+1}")
    a(f"""
    s_lshl_b32 s{S_B}, s2, 11
    s_add_u32 s{S_B}, s{S_B}, {WS_TAB}
    v_lshl_add_u32 v{t1}, v{L}, 5, s{S_B}
    global_store_dwordx4 v{t1}, {vr(vTb,4)}, {sr(S_WS,2)} sc1
    global_store_dwordx4 v{t1}, {vr(vTb+4,4)}, {sr(S_WS,2)} offset:16 sc1
K_ntab:
    v_lshlrev_b32 v{t1}, 1, v{J}
    v_add_u32 v{t3}, {128*256}, v{t1}""")
    for c in range(4):
        a(f"    global_load_ushort v{108+c}, v{t3}, {sr(S_W1,2)} offset:{64*c}")
    a(f"""
    s_and_b32 s{S_B}, s{S_WAVE}, 1
    s_lshl_b32 s{S_B}, s{S_B}, 6
    v_and_b32 v{t3}, 48, v{L}
    v_add_u32 v{t3}, s{S_B}, v{t3}
    global_load_dwordx4 {vr(V_B2,4)}, v{t3}, {sr(S_B2,2)}
    s_mov_b32 s3, {NLOG2E:#x}
    s_cmp_ge_u32 s{S_WAVE}, 8
    s_cbranch_scc1 K_notQ
    s_lshl_b32 s{S_B}, s{S_D}, 6
    v_add_u32 v{t1}, s{S_B}, v{t1}
    global_load_ushort v112, v{t1}, {sr(S_B1,2)}
    v_bfe_u32 v{t1}, v{L}, 2, 2
    v_lshl_add_u32 v{t1}, v{HH}, 3, v{t1}
    v_lshl_add_u32 v{t1}, v{t1}, 8, v{t0}
    s_add_u32 s{S_B}, s{S_B}, {L_W1 + 16384}
    v_add_u32 v{t1}, s{S_B}, v{t1}""")
    for s in range(4):
        for h in range(2):
            a(f"    ds_read_b64_tr_b16 {vr(vWf+4*s+2*h,2)}, v{t1} offset:{4096*s+1024*h}")
    a(f"""
    s_and_b32 s{S_A}, s{S_WAVE}, 1
    s_lshl_b32 s{S_B}, s{S_A}, 14
    s_lshl_b32 s{S_C}, s{S_D}, 7
    s_add_u32 s{S_B}, s{S_B}, s{S_C}
    s_add_u32 s{S_B}, s{S_B}, {L_QT}
    v_lshl_add_u32 v{t1}, v{HH}, 11, s{S_B}
    v_lshl_add_u32 v{t1}, v{J}, 2, v{t1}""")
    for s in range(4):
        a(f"    s_waitcnt lgkmcnt({6-2*s})")
        cin = "0" if s == 0 else vr(vAc, 16)
        a(f"    v_mfma_f32_32x32x16_bf16 {vr(vAc,16)}, {vr(vX+4*s,4)}, {vr(vWf+4*s,4)}, {cin}")
    a(f"""
    s_waitcnt vmcnt(0)
    v_lshlrev_b32 v112, 16, v112
    v_mul_f32 v112, s3, v112
    s_nop 8""")
    def qrow(r):
        a(f"    v_fma_f32 v{vAc+r}, v{vAc+r}, s3, v112")
        a(f"    v_cvt_pk_bf16_f32 v{vWf+r}, v{vZ}, v{vAc+r}")
        a(f"    v_sub_f32 v{vWf+r}, v{vAc+r}, v{vWf+r}")
        a(f"    v_cvt_pk_bf16_f32 v{vWf+r}, v{vAc+r}, v{vWf+r}")
        a(f"    ds_write_b32 v{t1}, v{vWf+r} offset:{512*(8*(r>>2)+(r&3))}")
    for r in range(12): qrow(r)
    a(f"""
    s_cmp_eq_u32 s{S_A}, 1
    s_cbranch_scc1 K_notQ""")
    for r in range(12, 16): qrow(r)
    a(f"""
K_notQ:
    s_waitcnt vmcnt(0)
    v_cmp_lt_u32 vcc, 31, v{L}""")
    for c in range(4):
        a(f"    v_lshlrev_b32 v{108+c}, 16, v{108+c}")
        a(f"    v_mul_f32 v{108+c}, s3, v{108+c}")
        a(f"    v_cvt_pk_bf16_f32 v113, v{vZ}, v{108+c}")
        a(f"    v_sub_f32 v114, v{108+c}, v113")
        a(f"    v_cvt_pk_bf16_f32 v114, v{vZ}, v114")
        a(f"    v_cndmask_b32 v{108+c}, v113, v114, vcc")
    for c in range(4):
        a(f"    v_mov_b32 v{V_B5+2*c+1}, v{108+c}")
    stamp(a, 7)
    vT = 0
    vN = 4
    vAr = 6
    vR = 12
    vM = 28
    vA = 32
    vK = 48
    vB = 64
    vG = 80
    a(f"""
    s_mov_b32 s{S_RR}, s{S_WS}
    s_mov_b32 s{S_RR+1}, s{S_WS+1}
    s_mov_b32 s{S_RR+2}, {WS_P + N_NODES*256}
    s_mov_b32 s{S_A}, {128*2048}
    s_mov_b32 s{S_B}, {128*RSTRIDE}
    s_mov_b32 s{S_C}, 0xfe000000
    s_mov_b32 s{S_K}, 0
    s_mov_b64 {mask(0)}, -1
    s_mov_b64 {mask(1)}, -1
K_poll:
    s_mov_b64 exec, {mask(0)}
    s_cbranch_execz K_pl0
    buffer_load_dwordx2 {vr(vT,2)}, v{t5}, {sr(S_RR,4)}, 0 offen sc1
K_pl0:
    s_mov_b64 exec, {mask(1)}
    s_cbranch_execz K_pl1
    buffer_load_dwordx2 {vr(vT+2,2)}, v{t5}, {sr(S_RR,4)}, s{S_A} offen sc1
K_pl1:
    s_mov_b64 exec, -1
    s_waitcnt vmcnt(0)""")
    for i in range(2):
        a(f"    v_xor_b32 v{vN+i}, s{S_TAG}, v{vT+2*i}")
        a(f"    v_xor_b32 v{vAr+i}, s{S_TAG+1}, v{vT+2*i+1}")
        a(f"    v_and_or_b32 v{vAr+i}, v{vN+i}, s{S_C}, v{vAr+i}")
        a(f"    v_cmp_ne_u32 {mask(i)}, 0, v{vAr+i}")
    a(f"""
    s_add_u32 s{S_K}, s{S_K}, 1
    s_or_b64 vcc, {mask(0)}, {mask(1)}
    s_cbranch_scc0 K_got
    s_cmp_lt_u32 s{S_K}, {POLL_MAX}
    s_cbranch_scc1 K_poll
    s_mov_b32 s{S_MODE}, 1
    v_mov_b32 v{vT}, 0
    v_mov_b32 v{vT+2}, 0
K_got:""")
    if DIAG:
        a(f"    v_writelane_b32 v{V_STAMP}, s{S_K}, 20")
    stamp(a, 8)
    so = ["0", sr(S_B)]
    for i in range(2):
        a(f"    v_and_b32 v{vAr+i}, 0x1fff, v{vT+2*i}")
        a(f"    v_bfe_u32 v{vT+2*i+1}, v{vT+2*i}, 13, 12")
        a(f"    v_lshl_add_u32 v{vAr+i}, v{vAr+i}, 2, v{vSb}")
        a(f"    v_sub_u32 v{vN+i}, v{vT+2*i+1}, v{vG4}")
        a(f"    v_lshl_add_u32 v{vAr+2+i}, v{vT+2*i+1}, 2, v{vAr+i}")
        a(f"    v_cmp_lt_i32 {mask(4*i)}, 0, v{vN+i}")
        a(f"    v_lshl_add_u32 v{vAr+i}, v{vG4}, 2, v{vAr+i}")
        a(f"    v_add_u32 v{vAr+2+i}, v{vAr+2+i}, v{vG4}")
        a(f"    s_or_b64 exec, {mask(4*i)}, 1")
        a(f"    buffer_load_dword v{vM+i}, v{vAr+2+i}, {sr(S_RR,4)}, {so[i]} offen")
        a(f"    buffer_load_dwordx4 {vr(vR+4*i,4)}, v{vAr+i}, {sr(S_RR,4)}, {so[i]} offen")
        a(f"    s_mov_b64 exec, -1")
    for i in range(2):
        for k in range(1, 4):
            a(f"    v_cmp_lt_i32 {mask(4*i+k)}, {k}, v{vN+i}")
    a(f"""
    v_max_i32 v{t1}, v{vN}, v{vN+1}
    v_cmp_lt_i32 vcc, 24, v{t1}
    s_mov_b32 s{S_K}, 0
    s_cbranch_vccz K_nor2a
    s_mov_b32 s{S_K}, 1""")
    for i in range(2):
        a(f"    buffer_load_dword v{vM+2+i}, v{vAr+2+i}, {sr(S_RR,4)}, {so[i]} offen offset:24")
        a(f"    buffer_load_dwordx4 {vr(vR+8+4*i,4)}, v{vAr+i}, {sr(S_RR,4)}, {so[i]} offen offset:96")
        for k in range(4):
            a(f"    v_cmp_lt_i32 {mask(8+4*i+k)}, {24+k}, v{vN+i}")
    a(f"""
    v_cmp_lt_i32 vcc, 48, v{t1}
    s_cbranch_vccz K_nor2a
    s_mov_b32 s{S_MODE}, 1
K_nor2a:
    s_lshr_b32 s{S_A}, s2, 3
    s_mul_i32 s{S_A}, s{S_A}, {781*128}
    s_add_u32 s{S_A}, s{S_A}, {WS_P}
    v_lshlrev_b32 v{t1}, 7, v{T}
    v_mov_b32 v{t4}, {L_FLAG}
    v_mov_b32 v{t0}, 8
    s_cmp_eq_u32 s{S_MODE}, 0
    s_cbranch_scc1 K_nofl
    ds_write_b32 v{t4}, v{t0}
K_nofl:
    s_waitcnt lgkmcnt(0)
    s_barrier
    ds_read_b32 v{t3}, v{t4}
    s_add_u32 s{S_RX}, s{S_WS}, {WS_P - 3072}
    s_addc_u32 s{S_RX+1}, s{S_WS+1}, 0
    s_and_b32 s{S_RX+1}, s{S_RX+1}, 0xffff
    s_or_b32 s{S_RX+1}, s{S_RX+1}, 0x01000000
    s_mov_b32 s{S_RX+2}, {N_NODES}
    s_mov_b32 s{S_RX+3}, 0x00020000
    s_waitcnt lgkmcnt(0)
    v_cmp_ne_u32 vcc, 0, v{t3}
    s_cbranch_vccnz K_slow""")
    if "nopf" not in OPT:
        a(f"    buffer_load_dword v{t5}, v{t1}, {sr(S_RR,4)}, s{S_A} offen")
        a(f"    s_waitcnt vmcnt(1)")
    else:
        a(f"    s_waitcnt vmcnt(0)")
    stamp(a, 9)
    def rec_reg(k): return vR + k
    def count_cols(ks):
        for k in ks:
            a(f"    v_bfe_u32 v{vA+k}, v{vM+k//4}, {8*(k%4)}, 8")
        for k in ks:
            a(f"    s_mov_b64 exec, {mask(k)}")
            a(f"    ds_add_rtn_u32 v{vK+k}, v{vA+k}, v{t0}")
        a(f"    s_mov_b64 exec, -1")
    count_cols(range(8))
    a(f"""
    s_cmp_eq_u32 s{S_K}, 0
    s_cbranch_scc1 K_nor2b""")
    count_cols(range(8, 16))
    a(f"""
K_nor2b:""")
    for c in range(4):
        a(f"    v_mov_b32 v{V_ND+4*c}, 0")
        a(f"    v_mov_b32 v{V_ND+4*c+1}, 0")
        a(f"    v_mov_b32 v{V_ND+4*c+2}, 1.0")
        a(f"    v_mov_b32 v{V_ND+4*c+3}, 1.0")
    vS = 122; vP = 123; vOne = 124; vSx = 125
    a(f"""
    v_mov_b32 v{V_MN}, 1.0
    v_lshlrev_b32 v{t1}, 2, v{L}
    v_mov_b32 v{vOne}, 0x3f80
    v_and_b32 v{vSx}, 1, v{L}
    v_lshlrev_b32 v{vSx}, 20, v{vSx}
    v_add_u32 v{vSx}, {L_ENT}, v{vSx}
    s_and_b32 s{S_A}, s{S_WAVE}, 3
    s_mul_i32 s{S_A}, s{S_A}, 3
    s_lshr_b32 s{S_B}, s{S_WAVE}, 2
    s_add_u32 s{S_SLOT}, s{S_A}, s{S_B}
    s_getpc_b64 {sr(S_PC,2)}
K_pc:
    s_add_u32 s{S_PC}, s{S_PC}, K_vbase - K_pc
    s_addc_u32 s{S_PC+1}, s{S_PC+1}, 0
    v_cmp_gt_u32 vcc, s{S_NN}, v{L}
    s_waitcnt lgkmcnt(0)
    s_barrier""")
    stamp(a, 10)
    a(f"""
    ds_read_b32 v{V_CNT}, v{t1}
    s_waitcnt lgkmcnt(0)
    v_add_u32 v{vP}, 24, v{V_CNT}
    v_and_b32 v{vP}, 0xffffffe0, v{vP}
    v_max_u32 v{vP}, 0x100, v{vP}
    v_cndmask_b32 v{vP}, 0, v{vP}, vcc
    v_mov_b32 v{vS}, v{vP}""")
    wave_scan(a, vS)
    a(f"""
    s_nop 0
    v_readlane_b32 s{S_A}, v{vS}, 63
    v_sub_u32 v{vS}, v{vS}, v{vP}
    v_add_u32 v{vSx}, v{vSx}, v{vS}
    s_cmp_gt_u32 s{S_A}, {ENT_CAP*8}
    s_cbranch_scc1 K_slow""")
    def place_cols(ks, mid=None):
        ks = list(ks)
        for k in ks:
            a(f"    ds_bpermute_b32 v{vB+k}, v{vA+k}, v{vSx}")
        if mid: a(mid)
        for n, k in enumerate(ks):
            if n % 2 == 0:
                a(f"    s_waitcnt lgkmcnt({len(ks)-2-n})")
            a(f"    v_add_u32_sdwa v{vK+k}, v{vB+k}, v{vK+k} {SD} src0_sel:WORD_0 src1_sel:DWORD")
            a(f"    v_lshlrev_b32_sdwa v{vG+k}, v{vB+k}, v{vOne} {SD} src0_sel:BYTE_2 src1_sel:DWORD")
        for k in ks:
            a(f"    s_mov_b64 exec, {mask(k)}")
            a(f"    ds_write2_b32 v{vK+k}, v{vG+k}, v{rec_reg(k)} offset0:0 offset1:1")
        a(f"    s_mov_b64 exec, -1")
    place_cols(range(8), f"""
    s_add_u32 s{S_A}, s{S_A}, 255
    s_lshr_b32 s{S_TT}, s{S_A}, 8            ; tiles
    s_mul_i32 s{S_T0}, s{S_SLOT}, s{S_TT}
    s_add_u32 s{S_NT}, s{S_T0}, s{S_TT}
    s_mul_i32 s{S_T0}, s{S_T0}, 43691
    s_mul_i32 s{S_NT}, s{S_NT}, 43691
    s_lshr_b32 s{S_T0}, s{S_T0}, 19
    s_lshr_b32 s{S_NT}, s{S_NT}, 19
    s_sub_u32 s{S_NT}, s{S_NT}, s{S_T0}""")
    a(f"""
    s_cmp_eq_u32 s{S_K}, 0
    s_cbranch_scc1 K_nor2c
    s_waitcnt lgkmcnt(0)""")
    place_cols(range(8, 16))
    thr = [int(x) for x in optval("thr", "5_3_1").split("_")]
    a(f"""
K_nor2c:
    s_lshl_b32 s{S_A}, s{S_T0}, 8            ; ts*8
    v_cmp_ge_u32 {mask(0)}, s{S_A}, v{vS}
    v_subrev_u32 v{t0}, s{S_A}, v{vS}
    s_and_b64 {mask(0)}, {mask(0)}, vcc
    s_bcnt1_i32_b64 s{S_B}, {mask(0)}
    s_sub_u32 s{S_B}, s{S_B}, 1              ; n
    s_andn2_b64 {mask(0)}, vcc, {mask(0)}
    v_bfe_u32 v{t3}, v{t0}, 5, 3
    v_add_u32 v{t3}, 1, v{t3}
    v_mul_u32_u24 v{t3}, {VAR_SIZE}, v{t3}
    v_lshrrev_b32 v{t0}, 8, v{t0}
    v_min_u32 v{t0}, 63, v{t0}
    v_cndmask_b32 v{t0}, 63, v{t0}, {mask(0)}
    v_lshlrev_b32 v{t0}, 2, v{t0}
    v_mov_b32 v{V_TAB}, 0
    ds_permute_b32 v{V_TAB}, v{t0}, v{t3}
    s_add_u32 s{S_A}, s{S_A}, {L_ENT}
    v_add_u32 v{V_AENT}, s{S_A}, v{V_AENT}
    s_add_u32 s{S_A}, s{S_A}, 4
    v_add_u32 v{V_AIDX}, s{S_A}, v{V_AIDX}
    s_waitcnt lgkmcnt(0)
    s_barrier""")
    stamp(a, 11)
    for h in idx_reads(0): a(h)
    a(f"""
    s_add_u32 s{S_A}, s{S_B}, s{S_SLOT}
    s_mul_i32 s{S_A}, s{S_A}, {ST_STRIDE}
    s_add_u32 s{S_A}, s{S_A}, {L_ST}
    v_lshl_add_u32 v{V_AS}, v{L}, 2, s{S_A}
    v_xor_b32 v{t3}, s{S_B}, v{HH}
    v_and_b32 v{t3}, 1, v{t3}
    s_lshl_b32 s{S_A}, s{S_B}, 9
    s_add_u32 s{S_A}, s{S_A}, {L_QT}
    v_lshl_add_u32 v{V_AQ}, v{t3}, 9, s{S_A}
    v_lshl_add_u32 v{V_AQ}, v{J}, 2, v{V_AQ}
    s_waitcnt lgkmcnt(0)""")
    for h in dma_ops(0): a(h)
    for h in ent_reads(0, True): a(h)
    a(f"""
    v_xor_b32 v{t3}, 1, v{t3}
    v_lshlrev_b32 v{V_INCQ}, 10, v{t3}
    v_cvt_f32_u32 v{vOne}, s{S_TT}
    v_rcp_f32 v{vOne}, v{vOne}
    v_add3_u32 v{vP}, v{vS}, v{vP}, -8
    v_lshrrev_b32 v{vS}, 8, v{vS}
    v_lshrrev_b32 v{vP}, 8, v{vP}
    v_cvt_f32_u32 v{vS}, v{vS}
    v_cvt_f32_u32 v{vP}, v{vP}
    v_add_f32 v{vS}, {f32bits((NW-0.5)/NW):#x}, v{vS}
    v_add_f32 v{vP}, {f32bits((NW-0.5)/NW):#x}, v{vP}
    v_mul_f32 v{vOne}, {f32bits(NW):#x}, v{vOne}
    v_mul_f32 v{vS}, v{vS}, v{vOne}
    v_mul_f32 v{vP}, v{vP}, v{vOne}
    v_cvt_u32_f32 v{vS}, v{vS}
    v_cvt_u32_f32 v{vP}, v{vP}
    v_sub_u32 v{vP}, v{vP}, v{vS}
    v_add_u32 v{vS}, v{vS}, v{L}
    v_lshl_or_b32 v{vS}, v{vP}, 8, v{vS}
    v_cndmask_b32 v{vS}, {ZROW}, v{vS}, vcc
    v_lshl_or_b32 v{V_CNT}, v{vS}, 16, v{V_CNT}
    v_sub_u32 v{t0}, s{S_NT}, v{L}
    v_mov_b32 v{t3}, 64""")
    for i, th in enumerate(thr):
        a(f"    v_cmp_eq_u32 {mask(i)}, {th}, v{t0}")
    a(f"    v_cmp_eq_u32 {mask(3)}, 0, v{t0}")
    a(f"    v_mov_b32 v{t4}, K_exit - K_vbase")
    for i, th in enumerate(thr):
        a(f"    v_cndmask_b32 v{t3}, v{t3}, {44 + 8*i}, {mask(i)}")
    a(f"""
    v_add_u32 v{V_TAB}, v{V_TAB}, v{t3}
    v_cndmask_b32 v{V_TAB}, v{V_TAB}, v{t4}, {mask(3)}
    s_mov_b32 s{S_K}, 1
    s_setprio 3
    v_readlane_b32 s{S_J}, v{V_TAB}, 0
    s_cmp_eq_u32 s{S_NT}, 0
    s_cbranch_scc1 K_join
    s_waitcnt vmcnt(0)""")
    stamp(a, 12)
    for h in tr_reads(0): a(h)
    a(f"""
    s_add_u32 s{S_J}, s{S_J}, s{S_PC}
    s_addc_u32 s{S_J+1}, s{S_PC+1}, 0
    s_waitcnt lgkmcnt(0)
    v_perm_b32 v{V_A5}, v{V_A5}, v{V_A5}, v{V_PSEL}""")
    for h in dma_ops(1): a(h)
    a(small(0)); a(small(1))
    stamp(a, 13); stamp(a, 14, True)
    a(f"    s_setpc_b64 {sr(S_J,2)}")
    a(f".p2align 6")
    a(f"K_vbase:")
    for vi, b in enumerate([None] + list(range(8))):
        tile_variant(a, vi, b)
    a(f".p2align 3")
    a(f"K_exit:")
    stamp(a, 15); stamp(a, 16, True)
    for cts in ((0, 1), (2, 3)):
        flush_ops(a, cts)
        a("    s_nop 1")
        flush_ops2(a, cts)
    a(f"""
    v_cmp_eq_f32 vcc, 0, v{V_MN}
    s_cbranch_vccz K_join
    v_mov_b32 v64, 1
    v_mov_b32 v65, {L_FLAG}
    ds_write_b32 v65, v64
K_join:
    s_cmp_ge_u32 s{S_WAVE}, 8
    s_cbranch_scc1 K_idle
    v_and_b32 v64, 15, v{L}
    v_lshrrev_b32 v65, 4, v{L}               ; g
    s_lshr_b32 s{S_A}, s{S_WAVE}, 1
    s_lshl_b32 s{S_A}, s{S_A}, 4
    v_add_u32 v64, s{S_A}, v64               ; node
    v_lshlrev_b32 v68, 2, v64
    ds_bpermute_b32 v69, v68, v{V_CNT}
    s_and_b32 s{S_B}, s{S_WAVE}, 1
    s_lshl_b32 s{S_B}, s{S_B}, 6
    s_add_u32 s{S_C}, s{S_B}, {L_W2}
    v_bfe_u32 v67, v{L}, 2, 2
    v_lshl_add_u32 v67, v65, 3, v67
    v_lshl_add_u32 v67, v67, 7, s{S_C}
    v_and_b32 v66, 3, v{L}
    v_lshl_add_u32 v67, v66, 4, v67""")
    for ot in range(2):
        for ks in range(4):
            for h in range(2):
                a(f"    ds_read_b64_tr_b16 {vr(16*ot+4*ks+2*h,2)}, v67 offset:{4096*ks+512*h+8*ot}")
    a(f"""
    v_lshlrev_b32 v70, 7, v64
    v_lshl_add_u32 v70, v65, 4, v70
    s_lshl_b32 s{S_A}, s{S_N0}, 7
    s_add_u32 s{S_RT}, s{S_OUT}, s{S_A}
    s_addc_u32 s{S_RT+1}, s{S_OUT+1}, 0
    s_lshl_b32 s{S_RT+2}, s{S_NN}, 7
    s_mov_b32 s{S_RT+3}, 0x00020000
    s_mov_b32 s3, {NLN2:#x}
    s_movk_i32 s{S_K}, {ST_STRIDE}""")
    for q in range(4):
        a(f"    v_lshlrev_b32 v{72+2*q}, 16, v{V_B2+q}")
        a(f"    v_and_b32 v{73+2*q}, 0xffff0000, v{V_B2+q}")
    a(f"""
    s_waitcnt lgkmcnt(0)
    v_bfe_u32 v66, v69, 16, 8
    v_lshrrev_b32 v68, 24, v69
    v_and_b32 v69, 0xffff, v69
    v_cvt_f32_u32 v69, v69
    v_mul_f32 v69, 0x3e000000, v69
    v_lshlrev_b32 v65, 5, v65
    v_add_u32 v65, {L_ST}, v65
    v_mad_u32_u24 v66, v66, s{S_K}, v65
    v_add_u32 v65, {ZROW*ST_STRIDE}, v65
    v_cmp_lt_u32 vcc, 0, v68
    v_add_u32 v67, {ST_STRIDE}, v66
    v_mov_b32 v71, 0x207
    v_cndmask_b32 v64, v65, v67, vcc""")
    for q in range(8):
        a(f"    v_mul_f32 v{72+q}, v69, v{72+q}")
    a(f"    s_barrier")
    stamp(a, 17)
    for ks in range(4):
        a(f"    ds_read_b128 {vr(32+8*ks,4)}, v66 offset:{128*ks}")
        a(f"    ds_read_b128 {vr(36+8*ks,4)}, v66 offset:{128*ks+16}")
    a(f"    s_mov_b32 s{S_A}, 1")
    a(f"K_rows:")
    for ks in range(4):
        a(f"    ds_read_b128 {vr(96+8*ks,4)}, v64 offset:{128*ks}")
        a(f"    ds_read_b128 {vr(100+8*ks,4)}, v64 offset:{128*ks+16}")
    a(f"""
    v_cmp_lt_u32 vcc, s{S_A}, v68
    v_add_u32 v67, {ST_STRIDE}, v67
    s_add_u32 s{S_A}, s{S_A}, 1""")
    for ks in range(4):
        a(f"    s_waitcnt lgkmcnt({6-2*ks})")
        for q in range(4):
            a(f"    v_pk_add_f32 {vr(32+8*ks+2*q,2)}, {vr(32+8*ks+2*q,2)}, {vr(96+8*ks+2*q,2)}")
    a(f"""
    v_cndmask_b32 v64, v65, v67, vcc
    s_cbranch_vccnz K_rows""")
    for ks in range(4):
        for q in range(4):
            a(f"    v_cvt_pk_bf16_f32 v{80+4*ks+q}, v{32+8*ks+2*q}, v{33+8*ks+2*q}")
    a("    s_nop 1")
    for ks in range(4):
        for ot in range(2):
            d = vr(128+4*ot, 4)
            cin = "0" if ks == 0 else d
            a(f"    v_mfma_f32_16x16x32_bf16 {d}, {vr(16*ot+4*ks,4)}, {vr(80+4*ks,4)}, {cin}")
    a("    s_nop 7")
    for q in range(8):
        a(f"    v_fma_f32 v{72+q}, v{128+q}, s3, v{72+q}")
    for q in range(4):
        a(f"    v_cvt_pk_bf16_f32 v{80+q}, v{72+2*q}, v{73+2*q}")
    a(f"    buffer_store_dwordx4 v[80:83], v70, {sr(S_RT,4)}, s{S_B} offen")
    for q in range(8):
        a(f"    v_cmp_class_f32 {mask(q)}, v{72+q}, v71")
    for q in range(1, 8):
        a(f"    s_or_b64 {mask(0)}, {mask(0)}, {mask(q)}")
    a(f"""
    s_cbranch_scc0 K_fin
    v_mov_b32 v64, 1
    v_mov_b32 v65, {L_FLAG}
    ds_write_b32 v65, v64
    s_branch K_fin
K_idle:
    s_waitcnt lgkmcnt(0)
    s_barrier                                ; B9
K_fin:
    v_mov_b32 v65, {L_FLAG}
    s_waitcnt lgkmcnt(0)
    s_barrier                                ; B10
    ds_read_b32 v64, v65
    s_waitcnt lgkmcnt(0)
    v_cmp_ne_u32 vcc, 0, v64
    s_cbranch_vccnz K_slow""")
    if DIAG:
        a("    s_waitcnt vmcnt(0)")
        stamp(a, 18); stamp(a, 19, True)
        a(f"""
    v_writelane_b32 v{V_STAMP}, s{S_NT}, 21
    s_lshl_b32 s{S_A}, s2, 4
    s_add_u32 s{S_A}, s{S_A}, s{S_WAVE}
    s_lshl_b32 s{S_A}, s{S_A}, 8
    s_add_u32 s{S_A}, s{S_A}, {WS_STAMP}
    v_lshl_add_u32 v64, v{J}, 2, s{S_A}
    s_mov_b64 exec, 0xffffffff
    global_store_dword v64, v{V_STAMP}, {sr(S_WS,2)}
    global_store_dword v64, v{V_TRACE}, {sr(S_WS,2)} offset:128""")
    a(f"""
K_end:
    s_endpgm
K_slow:
    s_setprio 0
    s_mov_b32 s16, s{S_N0}
    s_mov_b32 s17, s{S_NN}
    s_mov_b32 s18, s{S_WAVE}""")
    gen_slow(a, 16, 17, 18, L, NLOG2E, NW=NW)
    a("    s_endpgm")

def main():
    global DIAG
    out = sys.argv[1]
    DIAG = "diag" in sys.argv[2:]
    OPT.update(sys.argv[2:])
    a = Asm()
    a(f"""; Edge-featured MPNN layer: out[n] = sum_(e: dst=n) (silu([x[src],x[dst],e] w1 + b1) w2 + b2)
; @launch grid=(256,1,1) block=({NT_},1,1) lds={L_END}
.amdgcn_target "amdgcn-amd-amdhsa--gfx950"
.text""")
    gen_kernel(a)
    a(f"""
.section .rodata,"a"
.p2align 6
.amdhsa_kernel {KNAME}
  .amdhsa_next_free_vgpr {NVGPR}
  .amdhsa_next_free_sgpr 102
  .amdhsa_accum_offset {NVGPR}
  .amdhsa_group_segment_fixed_size 0
  .amdhsa_kernarg_size 88
  .amdhsa_user_sgpr_count 2
  .amdhsa_user_sgpr_kernarg_segment_ptr 1
  .amdhsa_system_sgpr_workgroup_id_x 1
  .amdhsa_float_denorm_mode_32 3
.end_amdhsa_kernel""")
    open(out, "w").write(a.text())

if __name__ == "__main__":
    main()
```

```python
import sys, struct
from slow import gen_slow

NAME = "standalone__edge_featured_mpnn_mpnn__graph"
KNAME = NAME + "_kernel"
N_NODES = 12500
NB = 49
NW = 12
NT_ = 64 * NW
MAINE = 4 * NT_
XTRA = 53
RSTRIDE = 16640

WS_REC = 0
WS_TAB = 0x420000
WS_P = 0x500000
WS_STAMP = 0xA00000

L_FLAG = 288
L_NONCE = 296
L_SX = 4096
L_Z = 320
L_G = 4352
ENT_CAP = 3584
GD = 57
L_RL = L_G + GD * 256
L_ST = L_RL + GD * 256
ST_STRIDE = 528
ZROW = NB + NW
L_QT = (L_ST + (ZROW + 1) * ST_STRIDE + 255) // 256 * 256
L_XS = L_QT + 56 * 512
L_W2 = L_XS + NW * 4096
L_END = L_W2 + 16384
L_RS = L_ST
L_H1 = L_ST + 16640
L_OFF = L_H1 + 1024
L_W1 = L_XS
L_WC = L_XS + 32768
L_PS = L_WC + 512
L_XR = L_W2
PS_STRIDE = 272
assert (ENT_CAP + 64) * 4 <= GD * 256 and L_XS % 256 == 0
assert L_END <= 163840 and L_H1 + 3072 <= L_ST + ZROW * ST_STRIDE and L_OFF + 1024 < 65536 and L_PS + 56 * PS_STRIDE <= L_W2

def f32bits(x):
    return struct.unpack("<I", struct.pack("<f", x))[0]
NLOG2E = f32bits(-1.4426950408889634)
NLN2 = f32bits(-0.6931471805599453)
PADREC = 0x3FFF
POLL_MAX = 4000

class Asm:
    def __init__(self):
        self.l = []
    def __call__(self, s=""):
        for x in s.strip("\n").split("\n"):
            self.l.append(x)
    def text(self):
        return "\n".join(self.l) + "\n"

def vr(a, n=1):
    return f"v{a}" if n == 1 else f"v[{a}:{a+n-1}]"
def sr(a, n=1):
    return f"s{a}" if n == 1 else f"s[{a}:{a+n-1}]"

DIAG = False
OPT = set()
def optval(prefix, default):
    for o in OPT:
        if o.startswith(prefix):
            return o[len(prefix):]
    return default

V_D = 0; V_E = 64; V_A5 = 96; V_B5 = 98; V_ND = 106; V_T = 122; V_R = 126; V_O = 128; V_IX = 132
V_AA = 140; V_AIDX = 141; V_AENT = 142; V_AQ = 143; V_INCQ = 144; V_AS = 145; V_MN = 146; V_PSEL = 147
V_TAB = 148; V_CNT = 149; V_B2 = 150; V_LANE = 154; V_TID = 155
V_J = 156; V_HH = 157
V_STAMP = 167; V_TRACE = 166
NVGPR = 168
S_X = 4; S_E = 6; S_SRC = 8; S_DST = 10; S_W1 = 12; S_B1 = 14; S_W2 = 16; S_B2 = 18; S_OUT = 20; S_DBG = 22; S_WS = 24
S_BIN = 26; S_N0 = 27; S_NN = 28; S_WAVE = 29; S_MODE = 30; S_K = 31; S_PC = 32; S_J = 34
S_RX = 36; S_RT = 40; S_RR = 44; S_P = 48
S_T0 = 56; S_NT = 57; S_TT = 58; S_SLOT = 59; S_A = 60; S_B = 61; S_C = 62; S_D = 63; S_TAG = 64
S_M = 66
def mask(k): return sr(S_M + 2*k, 2)

def stamp(a, k, real=False):
    if not DIAG:
        return
    a(f"    {'s_memrealtime' if real else 's_memtime'} s[98:99]")
    a(f"    s_waitcnt lgkmcnt(0)")
    a(f"    v_writelane_b32 v{V_STAMP}, s98, {k}")

def wave_scan(a, v):
    for sh in (1, 2, 4, 8):
        a(f"    s_nop 1")
        a(f"    v_add_u32_dpp v{v}, v{v}, v{v} row_shr:{sh} row_mask:0xf bank_mask:0xf")
    a(f"    s_nop 1")
    a(f"    v_add_u32_dpp v{v}, v{v}, v{v} row_bcast:15 row_mask:0xa bank_mask:0xf")
    a(f"    s_nop 1")
    a(f"    v_add_u32_dpp v{v}, v{v}, v{v} row_bcast:31 row_mask:0xc bank_mask:0xf")

SD = "dst_sel:DWORD dst_unused:UNUSED_PAD"

def small(c):
    d = vr(V_D + 16*c, 16)
    return f"    v_mfma_f32_32x32x8_bf16 {d}, {vr(V_A5,2)}, {vr(V_B5+2*c,2)}, {d}"
def tr_reads(h):
    return [f"    ds_read_b64_tr_b16 {vr(V_D+16*(2*h+k)+2*u,2)}, v{V_AA} offset:{512*u+64*k}" for u in range(8) for k in range(2)]
def ent_reads(q):
    h = [f"    ds_read2st64_b32 {vr(V_A5,2)}, v{V_AENT} offset0:0 offset1:{GD}"]
    if q:
        h += [f"    ds_read_b32 v{V_B5+2*c}, v{V_AQ} offset:{128*c}" for c in range(4)]
    return h
def idx_reads(off):
    return [f"    ds_read_u16 v{V_IX+2*m}, v{V_AIDX} offset:{off + 32*m}" for m in range(4)]
def dma_ops(h):
    return [f"    buffer_load_dwordx4 {vr(V_IX+2*m,2)}, {sr(S_RX,4)}, s{S_P+4*h+m} idxen offen offset:{1024*m} lds" for m in range(4)]

def x_phase(a, mf_cts, ex_cts, head, pre, plain, tail):
    es = [f"    v_exp_f32 v{V_E+16*k+2*u+b}, v{V_D+16*c+2*u+b}" for u in range(8) for k, c in enumerate(ex_cts) for b in range(2)]
    n1 = 22
    for h in head: a(h)
    for e in es[:n1-2]: a(e)
    for p in plain: a(p)
    a(f"    s_waitcnt lgkmcnt(0)")
    for p in pre: a(p)
    for e in es[n1-2:n1]: a(e)
    a(small(mf_cts[0]))
    for e in es[n1:n1+4]: a(e)
    a(small(mf_cts[1]))
    for e in es[n1+4:]: a(e)
    for t in tail: a(t)
    a(".p2align 3")

def flush_ops(a, cts):
    for k, c in enumerate(cts):
        D = V_ND + 4*c + 2
        a(f"    v_mul_f32 v{V_R+k}, v{D}, v{D+1}")
    for k, c in enumerate(cts):
        N = V_ND + 4*c; D = N + 2
        a(f"    v_pk_mul_f32 {vr(V_O+2*k,2)}, {vr(N,2)}, {vr(D,2)} op_sel:[0,1] op_sel_hi:[1,0]")
    for k, c in enumerate(cts):
        a(f"    v_rcp_f32 v{V_R+k}, v{V_R+k}")
    for k, c in enumerate(cts):
        a(f"    v_add_f32 v{V_O+2*k}, v{V_O+2*k}, v{V_O+2*k+1}")
    for k, c in enumerate(cts):
        a(f"    v_mul_f32 v{V_O+2*k}, v{V_O+2*k}, v{V_R+k}")
def flush_ops2(a, cts):
    a(f"    v_permlane32_swap_b32 v{V_O}, v{V_O+2}")
    a(f"    v_min3_f32 v{V_MN}, v{V_MN}, v{V_R}, v{V_R+1}")
    a(f"    v_add_f32 v{V_O}, v{V_O}, v{V_O+2}")
    a(f"    ds_write_b32 v{V_AS}, v{V_O} offset:{128*cts[0]}")

def y_phase(a, cts, b):
    nsrc = [V_ND + 4*c for c in cts]
    for u in range(8):
        if u == b:
            flush_ops(a, cts)
            for k, c in enumerate(cts):
                a(f"    v_pk_add_f32 {vr(V_ND+4*c+2,2)}, {vr(V_E+16*k+2*u,2)}, 1.0 op_sel_hi:[1,0]")
            flush_ops2(a, cts)
            for k, c in enumerate(cts):
                p = V_D + 16*c + 2*u
                if u == 7:
                    a(f"    v_pk_mov_b32 {vr(V_ND+4*c,2)}, {vr(p,2)}, {vr(p,2)} op_sel:[0,1]")
                else:
                    nsrc[k] = p
            continue
        for k, c in enumerate(cts):
            a(f"    v_pk_fma_f32 {vr(V_T+2*k,2)}, {vr(V_D+16*c+2*u,2)}, {vr(V_ND+4*c+2,2)}, {vr(nsrc[k],2)}")
        for k, c in enumerate(cts):
            D = V_ND + 4*c + 2
            a(f"    v_pk_fma_f32 {vr(D,2)}, {vr(D,2)}, {vr(V_E+16*k+2*u,2)}, {vr(D,2)}")
        for k, c in enumerate(cts):
            a(f"    v_pk_fma_f32 {vr(V_ND+4*c,2)}, {vr(nsrc[k],2)}, {vr(V_E+16*k+2*u,2)}, {vr(V_T+2*k,2)}")
            nsrc[k] = V_ND + 4*c

VAR_SIZE = 1792
def tile_variant(a, vi, b):
    name = "N" if b is None else str(b)
    a(f".org K_vbase + {VAR_SIZE*vi + 64 - 20}, 0")
    a(f"    s_setprio 2\n    s_branch K_var{name}\n    s_setprio 1\n    s_branch K_var{name}\n    s_setprio 0")
    a(f"K_var{name}:")
    bnd = b is not None
    if "trace" in OPT:
        a(f"    s_memtime s[98:99]\n    s_mov_b32 s{S_A}, m0\n    s_mov_b32 m0, s{S_K}\n    s_waitcnt lgkmcnt(0)")
        a(f"    v_writelane_b32 v{V_TRACE}, s98, m0\n    s_mov_b32 m0, s{S_A}")
    plain0 = []
    if bnd:
        plain0 = [f"    v_add_u32 v{V_AQ}, v{V_AQ}, v{V_INCQ}", f"    v_xor_b32 v{V_INCQ}, 0x400, v{V_INCQ}"]
    plain0.append(f"    v_readlane_b32 s{S_J}, v{V_TAB}, s{S_K}")
    x_phase(a, (2, 3), (0, 1), ["    s_waitcnt vmcnt(0)"] + tr_reads(1) + idx_reads(128), [], plain0,
            dma_ops(0) + [f"    s_add_u32 s{S_K}, s{S_K}, 1"])
    y_phase(a, (0, 1), b)
    plain1 = [f"    v_add_u32 v{V_AENT}, 0x80, v{V_AENT}", f"    v_add_u32 v{V_AIDX}, 0x80, v{V_AIDX}"]
    x_phase(a, (0, 1), (2, 3), ["    s_waitcnt vmcnt(0)"] + ent_reads(bnd) + tr_reads(0),
            [f"    v_perm_b32 v{V_A5}, v{V_A5}, v{V_A5}, v{V_PSEL}"], plain1,
            dma_ops(1) + [f"    s_add_u32 s{S_J}, s{S_J}, s{S_PC}", f"    s_addc_u32 s{S_J+1}, s{S_PC+1}, 0"])
    y_phase(a, (2, 3), b)
    if bnd:
        a(f"    v_add_u32 v{V_AS}, {ST_STRIDE}, v{V_AS}")
    a(f"    s_setpc_b64 {sr(S_J,2)}")

def gen_kernel(a):
    L = V_LANE; T = V_TID; J = V_J; HH = V_HH
    t0, t1, t2, t3, t4, t5 = 158, 159, 160, 161, 162, 163
    vDst = 0
    vSrc = 8
    vEa = 14
    vBa = 20
    vRk = 26
    vOf = 32
    vX = 40
    vWf = 56
    vAc = 72
    vTb = 88
    vZ = 128
    vPad = 56
    vWa = 38; vXa = 88; vTg = 18; vTa = 39; vC8 = 37; vWp = 31
    vG4 = 164; vSb = 165
    vS = 122; vP = 123; vOne = 124; vSx = 125
    a(f"""
.p2align 8
.globl {KNAME}
.type {KNAME},@function
{KNAME}:
    s_cmp_ge_u32 s2, 256
    s_cbranch_scc1 K_end
    s_load_dwordx8 s[4:11], s[0:1], 0
    s_load_dwordx8 s[12:19], s[0:1], 32      ; w1, b1, w2, b2
    s_load_dwordx4 s[20:23], s[0:1], 64
    s_load_dwordx2 s[24:25], s[0:1], 80      ; ws
    s_memrealtime {sr(S_TAG,2)}
    v_lshrrev_b32 v1, 6, v0
    v_mov_b32 v{T}, v0
    v_readfirstlane_b32 s{S_WAVE}, v1
    v_and_b32 v{L}, 63, v0
    s_mul_i32 s3, s2, {MAINE*4}
    v_lshl_add_u32 v{t0}, v0, 4, s3
    v_lshrrev_b32 v{t1}, 1, v{t0}
    s_and_b32 s{S_BIN}, s2, 7
    s_lshl_b32 s{S_BIN}, s{S_BIN}, 5
    s_lshr_b32 s3, s2, 3
    s_add_u32 s{S_BIN}, s{S_BIN}, s3
    s_mul_i32 s{S_N0}, s{S_BIN}, {NB}
    s_sub_u32 s{S_NN}, {N_NODES}, s{S_N0}
    s_min_u32 s{S_NN}, s{S_NN}, {NB}
    v_and_b32 v{J}, 31, v0
    v_bfe_u32 v{HH}, v0, 5, 1
    s_mov_b32 s{S_MODE}, 0
    v_mov_b32 v{vZ}, 0
    v_mov_b32 v{vZ+1}, 0
    v_mov_b32 v{vZ+2}, 0
    v_mov_b32 v{vZ+3}, 0
    v_lshlrev_b32 v{t2}, 2, v0""")
    if DIAG:
        a(f"    v_mov_b32 v{V_STAMP}, 0\n    v_mov_b32 v{V_TRACE}, 0")
        stamp(a, 0, True); stamp(a, 1)
    step = NT_ * 16
    wc = lambda c: V_B5 + 2*c
    vB1 = 97
    a(f"""
    s_waitcnt lgkmcnt(0)
    global_load_dwordx4 {vr(vDst,4)}, v{t0}, {sr(S_DST,2)}
    ds_write_b32 v{t2}, v{vZ} offset:{L_H1}
    s_cmp_lg_u32 s{S_WAVE}, 11
    s_cbranch_scc1 K_ld1
    s_mul_i32 s{S_A}, s2, {XTRA}
    s_add_u32 s{S_A}, s{S_A}, {256*MAINE}
    v_min_u32 v{t5}, {XTRA-1}, v{L}
    v_add_lshl_u32 v{t5}, v{t5}, s{S_A}, 2
    v_lshrrev_b32 v{t4}, 1, v{t5}
    global_load_dword v{vDst+4}, v{t5}, {sr(S_DST,2)}
    global_load_dword v{vSrc+4}, v{t5}, {sr(S_SRC,2)}
    global_load_ushort v{vEa+2}, v{t4}, {sr(S_E,2)}
K_ld1:
    s_lshl_b32 s{S_A}, s2, 4
    s_add_u32 s{S_A}, s{S_A}, s{S_WAVE}
    s_cmp_lg_u32 s{S_A}, 9
    s_cbranch_scc1 K_ldJ
    s_lshl_b32 s{S_A}, s{S_TAG}, 25
    s_or_b32 s{S_A}, s{S_A}, 1
    s_lshr_b64 {sr(S_TAG,2)}, {sr(S_TAG,2)}, 7
    v_mov_b32 v{t4}, s{S_A}
    v_mov_b32 v{t4+1}, s{S_TAG}
    s_mov_b64 exec, 1
    global_store_dwordx2 v{vZ}, {vr(t4,2)}, {sr(S_DBG,2)} sc1
    s_mov_b64 exec, -1
K_ldJ:
    s_lshl_b32 s{S_A}, s{S_WAVE}, 11
    s_cmp_ge_u32 s{S_WAVE}, 8
    s_cbranch_scc1 K_stX
    s_add_u32 s{S_B}, s{S_A}, {L_W1}
    s_mov_b32 m0, s{S_B}
    v_lshl_add_u32 v{t3}, v{L}, 4, s{S_A}
    global_load_lds_dwordx4 v{t3}, {sr(S_W1,2)}
    global_load_lds_dwordx4 v{t3}, {sr(S_W1,2)} offset:1024
    s_branch K_stJ
K_stX:
    s_mov_b32 s{S_RX}, s4
    s_mov_b32 s{S_RX+1}, s5
    s_mov_b32 s{S_RX+2}, {N_NODES*128}
    s_mov_b32 s{S_RX+3}, 0x00020000
    s_add_u32 s{S_B}, s{S_A}, {L_XR - 16384}
    s_mov_b32 m0, s{S_B}
    s_lshl_b32 s{S_B}, s{S_N0}, 7
    s_add_u32 s{S_A}, s{S_A}, s{S_B}
    s_sub_u32 s{S_A}, s{S_A}, 16384
    v_lshrrev_b32 v{t3}, 4, v{L}
    v_xor_b32 v{t3}, v{t3}, v{L}
    v_lshl_add_u32 v{t3}, v{t3}, 4, s{S_A}
    v_xor_b32 v{t4}, 64, v{t3}
    buffer_load_dwordx4 v{t3}, {sr(S_RX,4)}, 0 offen lds
    buffer_load_dwordx4 v{t4}, {sr(S_RX,4)}, 0 offen offset:1024 lds
K_stJ:
    s_waitcnt lgkmcnt(0)
    s_barrier
    v_mov_b32 v{vPad}, {PADREC}
    v_mov_b32 v{vPad+1}, {PADREC}
    v_mov_b32 v{vPad+2}, {PADREC}
    v_mov_b32 v{vPad+3}, {PADREC}
    v_lshlrev_b32 v{t2}, 4, v{T}
    ds_write_b128 v{t2}, {vr(vZ,4)}
    ds_write_b128 v{t2}, {vr(vZ,4)} offset:{L_RL - step}
    ds_write_b128 v{t2}, {vr(vPad,4)} offset:{L_RL}
    s_cmp_ge_u32 s{S_WAVE}, 3
    s_cbranch_scc1 K_in1
    ds_write_b128 v{t2}, {vr(vPad,4)} offset:{L_ST - 3072}
K_in1:
    s_cmp_lg_u32 s{S_WAVE}, 3
    s_cbranch_scc1 K_in2
    v_lshlrev_b32 v{t3}, 3, v{L}
    v_add_u32 v{t3}, {L_ST + ZROW*ST_STRIDE}, v{t3}
    ds_write_b64 v{t3}, {vr(vZ,2)}
K_in2:
    global_load_dwordx4 {vr(vSrc,4)}, v{t0}, {sr(S_SRC,2)}
    global_load_dwordx2 {vr(vEa,2)}, v{t1}, {sr(S_E,2)}
    s_cmp_ge_u32 s{S_WAVE}, 8
    s_cbranch_scc1 K_st2
    s_lshl_b32 s{S_A}, s{S_WAVE}, 11
    s_add_u32 s{S_A}, s{S_A}, 16384
    s_add_u32 s{S_B}, s{S_A}, {L_W1}
    s_mov_b32 m0, s{S_B}
    v_lshl_add_u32 v{t3}, v{L}, 4, s{S_A}
    global_load_lds_dwordx4 v{t3}, {sr(S_W1,2)}
    global_load_lds_dwordx4 v{t3}, {sr(S_W1,2)} offset:1024
    s_branch K_st3
K_st2:
    s_mov_b32 m0, {L_WC}
    v_lshlrev_b32 v{t3}, 2, v{L}
    v_add_u32 v{t4}, 0x8000, v{t3}
    global_load_lds_dword v{t4}, {sr(S_W1,2)}
    s_mov_b32 m0, {L_WC + 256}
    s_nop 0
    global_load_lds_dword v{t3}, {sr(S_B1,2)}
K_st3:
    v_and_b32 v{vC8}, 3, v{L}
    v_lshlrev_b32 v{vC8}, 3, v{vC8}
    v_and_b32 v{t1}, 16, v{L}
    v_lshl_add_u32 v{vC8}, v{t1}, 1, v{vC8}    ; 8c + 32(g&1)
    v_and_b32 v{t1}, 7, v{L}
    v_lshlrev_b32 v{V_IX+1}, 4, v{t1}
    v_mov_b32 v{V_IX+3}, v{V_IX+1}
    v_mov_b32 v{V_IX+5}, v{V_IX+1}
    v_mov_b32 v{V_IX+7}, v{V_IX+1}
    v_and_b32 v{t1}, 8, v{L}
    v_lshl_add_u32 v{t1}, v{t1}, 4, v{vC8}
    v_lshl_add_u32 v{t1}, v{HH}, 8, v{t1}
    s_lshl_b32 s{S_B}, s{S_WAVE}, 12
    s_add_u32 s{S_B}, s{S_B}, {L_XS}
    v_add_u32 v{t1}, s{S_B}, v{t1}
    v_and_b32 v{t3}, 4, v{L}
    v_cmp_ne_u32 vcc, 0, v{t3}
    v_mov_b32 v{t3}, {L_Z}
    v_mul_u32_u24 v{V_PSEL}, 0x20202, v{HH}
    v_cndmask_b32 v{V_AA}, v{t3}, v{t1}, vcc
    v_lshl_add_u32 v{V_PSEL}, v{HH}, 25, v{V_PSEL}
    v_add_u32 v{V_PSEL}, 0x01000100, v{V_PSEL}
    v_and_b32 v{V_AENT}, 0x19, v{L}
    v_and_b32 v{t1}, 2, v{L}
    v_lshl_add_u32 v{V_AENT}, v{t1}, 1, v{V_AENT}
    v_bfe_u32 v{t1}, v{L}, 2, 1
    v_lshl_add_u32 v{V_AENT}, v{t1}, 1, v{V_AENT}
    v_lshlrev_b32 v{V_AENT}, 2, v{V_AENT}
    v_lshrrev_b32 v{V_AIDX}, 3, v{L}
    v_lshlrev_b32 v{V_AIDX}, 2, v{V_AIDX}""")
    for h in range(2):
        for m in range(4):
            a(f"    s_movk_i32 s{S_P+4*h+m}, {3072 - 1024*m + 128*h}")
    for c in range(4):
        a(f"    v_mov_b32 v{V_ND+4*c}, 0")
        a(f"    v_mov_b32 v{V_ND+4*c+1}, 0")
        a(f"    v_mov_b32 v{V_ND+4*c+2}, 1.0")
        a(f"    v_mov_b32 v{V_ND+4*c+3}, 1.0")
    a(f"""
    v_mov_b32 v{V_MN}, 1.0
    v_mov_b32 v{vOne}, 0x3f80
    v_and_b32 v{vSx}, 1, v{L}
    v_lshlrev_b32 v{vSx}, 20, v{vSx}
    v_add_u32 v{vSx}, {L_G}, v{vSx}
    s_and_b32 s{S_A}, s{S_WAVE}, 3
    s_mul_i32 s{S_A}, s{S_A}, 3
    s_lshr_b32 s{S_B}, s{S_WAVE}, 2
    s_add_u32 s{S_SLOT}, s{S_A}, s{S_B}
    s_getpc_b64 {sr(S_PC,2)}
K_pc:
    s_add_u32 s{S_PC}, s{S_PC}, K_vbase - K_pc
    s_addc_u32 s{S_PC+1}, s{S_PC+1}, 0
    ; segment mapping of phase 2: segment 128 i + t/6, lane group g = t%6
    v_mul_u32_u24 v{t1}, 10923, v{T}
    v_lshrrev_b32 v{t1}, 16, v{t1}
    v_mad_i32_i24 v{vG4}, v{t1}, -6, v{T}
    v_lshlrev_b32 v{vG4}, 2, v{vG4}          ; 4g
    v_mul_u32_u24 v{vSb}, {RSTRIDE}, v{t1}
    s_lshr_b32 s{S_B}, s{S_BIN}, 2
    s_lshl_b32 s{S_B}, s{S_B}, 4
    s_and_b32 s{S_A}, s{S_BIN}, 1
    s_lshl_b32 s{S_A}, s{S_A}, 3
    s_add_u32 s{S_B}, s{S_B}, s{S_A}
    s_and_b32 s{S_A}, s{S_BIN}, 2
    s_lshl_b32 s{S_A}, s{S_A}, 9
    s_add_u32 s{S_B}, s{S_B}, s{S_A}
    s_add_u32 s{S_B}, s{S_B}, {WS_TAB}
    v_lshl_add_u32 v{vTa}, v{t1}, 11, s{S_B}
    s_lshr_b32 s{S_D}, s{S_WAVE}, 1          ; ct
    v_bfe_u32 v{t0}, v{L}, 2, 2
    v_lshl_add_u32 v{t0}, v{HH}, 3, v{t0}
    s_lshl_b32 s{S_A}, s{S_D}, 6
    s_add_u32 s{S_A}, s{S_A}, {L_W1}
    v_lshl_add_u32 v{vWa}, v{t0}, 8, s{S_A}
    v_and_b32 v{vWp}, 1, v{L}
    v_lshl_add_u32 v{vWp}, v{vWp}, 5, v{vWa}
    v_and_b32 v{t3}, 16, v{L}
    v_add_u32 v{vWp}, v{vWp}, v{t3}
    v_and_b32 v{t3}, 2, v{L}
    v_lshl_add_u32 v{vWp}, v{t3}, 2, v{vWp}    ; + 16(c&1) + 4(2(g&1) + (c>>1)) columns
    s_and_b32 s{S_A}, s{S_WAVE}, 1
    s_lshl_b32 s{S_A}, s{S_A}, 12
    s_add_u32 s{S_A}, s{S_A}, {L_XR}
    v_bfe_u32 v{t3}, v{L}, 1, 3
    v_xor_b32 v{t3}, v{t3}, v{HH}
    v_lshl_add_u32 v{t3}, v{t3}, 4, s{S_A}
    v_lshl_add_u32 v{vXa}, v{J}, 7, v{t3}
    v_xor_b32 v{vXa+1}, 32, v{vXa}
    v_xor_b32 v{vXa+2}, 64, v{vXa}
    v_xor_b32 v{vXa+3}, 0x60, v{vXa}
    s_mov_b32 s{S_A}, 21400
    s_mov_b32 s{S_B}, -{NB}
    s_mov_b32 s{S_C}, 0xffff0000
    v_mov_b32 v{t5}, 0x10004
    s_waitcnt vmcnt(6)
    s_cmp_lg_u32 s{S_WAVE}, 11
    s_cbranch_scc1 K_wJ
    s_bfm_b64 exec, {XTRA}, 0""")
    assert L_RL <= 2 * step and L_ST - L_RL <= step + 3072
    def binops(cols):
        for i in cols: a(f"    v_mul_u32_u24 v{vBa+i}, s{S_A}, v{vDst+i}")
        for i in cols: a(f"    v_lshrrev_b32 v{vBa+i}, 18, v{vBa+i}")
        for i in cols:
            a(f"    v_and_b32 v{vBa+i}, 0x3fc, v{vBa+i}")
            a(f"    ds_add_rtn_u32 v{vRk+i}, v{vBa+i}, v{t5} offset:{L_H1}")
        for i in cols: a(f"    v_lshlrev_b32 v{vDst+i}, 2, v{vDst+i}")
        for i in cols: a(f"    v_mad_i32_i24 v{vDst+i}, v{vBa+i}, s{S_B}, v{vDst+i}")
    binops([4])
    a(f"""
    s_mov_b64 exec, -1
K_wJ:""")
    stamp(a, 2)
    binops(range(4))
    a(f"""
    s_waitcnt vmcnt(4) lgkmcnt(0)
    s_barrier""")
    stamp(a, 3)
    a(f"""
    s_cmp_eq_u32 s{S_WAVE}, 8
    s_cbranch_scc1 K_scan1
    s_cmp_gt_u32 s{S_WAVE}, 8
    s_cbranch_scc1 K_notP""")
    for s_ in range(4):
        a(f"    ds_read_b128 {vr(vX+4*s_,4)}, v{vXa+s_}")
        for h in range(2):
            a(f"    ds_read_b64_tr_b16 {vr(vWf+4*s_+2*h,2)}, v{vWp} offset:{4096*s_+1024*h}")
    for s_ in range(4):
        a(f"    s_waitcnt lgkmcnt({9-3*s_})")
        cin = "0" if s_ == 0 else vr(vAc, 16)
        a(f"    v_mfma_f32_32x32x16_bf16 {vr(vAc,16)}, {vr(vWf+4*s_,4)}, {vr(vX+4*s_,4)}, {cin}")
    a(f"""
    s_and_b32 s{S_B}, s{S_WAVE}, 1
    s_mul_i32 s{S_A}, s{S_B}, {32*PS_STRIDE}
    s_lshl_b32 s{S_B}, s{S_D}, 6
    s_add_u32 s{S_A}, s{S_A}, s{S_B}
    s_add_u32 s{S_A}, s{S_A}, {L_PS}
    v_mul_u32_u24 v{t3}, {PS_STRIDE}, v{J}
    v_lshl_add_u32 v{t3}, v{HH}, 5, v{t3}
    v_add_u32 v{t3}, s{S_A}, v{t3}
    v_mov_b32 v{t4}, {NLOG2E:#x}
    v_cmp_gt_u32 vcc, {L_PS + 56*PS_STRIDE}, v{t3}
    s_nop 1""")
    for q in range(8):
        a(f"    v_pk_mul_f32 {vr(vAc+2*q,2)}, {vr(vAc+2*q,2)}, {vr(t4,2)} op_sel_hi:[1,0]")
    for q in range(8):
        a(f"    v_cvt_pk_bf16_f32 v{vAc+q}, v{vAc+2*q}, v{vAc+2*q+1}")
    a(f"""
    s_mov_b64 exec, vcc
    ds_write_b128 v{t3}, {vr(vAc,4)}
    ds_write_b128 v{t3}, {vr(vAc+4,4)} offset:16
    s_mov_b64 exec, -1
    s_branch K_b3
K_notP:
    s_cmp_lg_u32 s{S_WAVE}, 9
    s_cbranch_scc1 K_b3
    global_load_dwordx2 {vr(vTg,2)}, v{vZ}, {sr(S_DBG,2)}
    s_branch K_b3
K_scan1:
    s_setprio 2
    v_lshlrev_b32 v{t0}, 4, v{L}
    ds_read_b128 v[56:59], v{t0} offset:{L_H1}
    s_waitcnt lgkmcnt(0)""")
    for i in range(4):
        a(f"    v_lshrrev_b32 v{60+i}, 16, v{56+i}")
    for i in range(4):
        a(f"    v_mad_u32_u24 v{64+i}, v{60+i}, 5, 3")
    for i in range(4):
        a(f"    v_and_b32 v{64+i}, -4, v{64+i}")
    a(f"""
    v_add_u32 v65, v64, v65
    v_add_u32 v66, v65, v66
    v_add_u32 v67, v66, v67
    v_mov_b32 v68, v67""")
    wave_scan(a, 68)
    a(f"""
    v_sub_u32 v68, v68, v67
    v_add_u32 v69, v68, v64
    v_add_u32 v70, v68, v65
    v_add_u32 v71, v68, v66
    s_mov_b32 s{S_A}, 0x10001""")
    for i in range(4):
        a(f"    v_mul_u32_u24 v{64+i}, s{S_A}, v{68+i}")
    for i in range(4):
        a(f"    v_lshl_add_u32 v{64+i}, v{56+i}, 16, v{64+i}")
    a(f"""
    ds_write_b128 v{t0}, v[64:67] offset:{L_OFF}
    s_setprio 0
K_b3:
    v_lshrrev_b32 v{t0}, 4, v{T}
    v_lshl_add_u32 v{t0}, v{t0}, 4, v{t2}
    v_add_u32 v{t0}, {L_PS}, v{t0}
    s_lshl_b32 s{S_A}, s{S_N0}, 8
    s_add_u32 s{S_A}, s{S_A}, {WS_P}
    s_add_u32 s{S_RT}, s{S_WS}, s{S_A}
    s_addc_u32 s{S_RT+1}, s{S_WS+1}, 0
    s_lshl_b32 s{S_RT+2}, s{S_NN}, 8
    s_mov_b32 s{S_RT+3}, 0x00020000
    s_waitcnt lgkmcnt(0)
    s_barrier""")
    stamp(a, 4)
    a(f"    ds_read_b128 v[72:75], v{t0}")
    for i in range(4):
        a(f"    ds_read_b32 v{vOf+i}, v{vBa+i} offset:{L_OFF}")
    a(f"""
    s_waitcnt vmcnt(2)
    v_lshl_or_b32 v{vSrc}, v{vEa}, 16, v{vSrc}
    v_and_or_b32 v{vSrc+1}, v{vEa}, s{S_C}, v{vSrc+1}
    v_lshl_or_b32 v{vSrc+2}, v{vEa+1}, 16, v{vSrc+2}
    v_and_or_b32 v{vSrc+3}, v{vEa+1}, s{S_C}, v{vSrc+3}
    s_waitcnt lgkmcnt(4)
    buffer_store_dwordx4 v[72:75], v{t2}, {sr(S_RT,4)}, 0 offen sc1""")
    def scatter(i):
        a(f"    v_add_u32_sdwa v{vBa+i}, v{vOf+i}, v{vRk+i} {SD} src0_sel:WORD_0 src1_sel:WORD_0")
        a(f"    v_add_u32_sdwa v{vOf+i}, v{vOf+i}, v{vRk+i} {SD} src0_sel:WORD_1 src1_sel:WORD_1")
        a(f"    ds_write_b32 v{vBa+i}, v{vSrc+i} offset:{L_RS}")
        a(f"    ds_write_b8 v{vOf+i}, v{vDst+i} offset:{L_RS}")
    a(f"    s_waitcnt lgkmcnt(0)")
    for i in range(4): scatter(i)
    a(f"""
    s_cmp_lt_u32 s{S_WAVE}, 9
    s_cbranch_scc1 K_nx2
    s_cmp_eq_u32 s{S_WAVE}, 11
    s_cbranch_scc1 K_x2
    s_cmp_eq_u32 s{S_WAVE}, 9
    s_cbranch_scc1 K_tag0
    v_lshlrev_b32 v{t1}, 4, v{L}
    v_add_u32 v{t3}, {L_PS + 48*PS_STRIDE}, v{t1}
    ds_read_b128 v[76:79], v{t3}
    v_add_u32 v{t1}, {48*256}, v{t1}
    s_waitcnt lgkmcnt(0)
    buffer_store_dwordx4 v[76:79], v{t1}, {sr(S_RT,4)}, 0 offen sc1
    s_branch K_nx2
K_tag0:
    s_mov_b32 s{S_K}, 0
    s_waitcnt vmcnt(1)
K_tagp:
    v_cmp_ne_u32 vcc, 0, v{vTg}
    s_cbranch_vccnz K_tagok
    s_add_u32 s{S_K}, s{S_K}, 1
    s_cmp_gt_u32 s{S_K}, {POLL_MAX}
    s_cbranch_scc1 K_tagok
    global_load_dwordx2 {vr(vTg,2)}, v{vZ}, {sr(S_DBG,2)} sc1
    s_waitcnt vmcnt(0)
    s_branch K_tagp
K_tagok:
    ds_write_b64 v{vZ}, {vr(vTg,2)} offset:{L_NONCE}
    s_branch K_nx2
K_x2:
    s_bfm_b64 exec, {XTRA}, 0
    ds_read_b32 v{vOf+4}, v{vBa+4} offset:{L_OFF}
    v_lshl_or_b32 v{vSrc+4}, v{vEa+2}, 16, v{vSrc+4}
    s_waitcnt lgkmcnt(0)""")
    scatter(4)
    a(f"""
    s_mov_b64 exec, -1
K_nx2:
    s_mul_i32 s{S_A}, s2, {RSTRIDE}
    s_add_u32 s{S_RR}, s{S_WS}, s{S_A}
    s_addc_u32 s{S_RR+1}, s{S_WS+1}, 0
    s_mov_b32 s{S_RR+2}, 16512
    s_mov_b32 s{S_RR+3}, 0x00020000
    v_add_u32 v{t3}, {step}, v{t2}
    s_waitcnt lgkmcnt(0)
    s_barrier""")
    stamp(a, 5)
    a(f"""
    ds_read_b128 v[0:3], v{t2} offset:{L_RS}
    ds_read_b64 v[12:13], v{vZ} offset:{L_NONCE}
    s_cmp_ge_u32 s{S_WAVE}, 5
    s_cbranch_scc1 K_co1
    ds_read_b128 v[8:11], v{t2} offset:{L_RS + step}
    s_waitcnt lgkmcnt(0)
    buffer_store_dwordx4 v[8:11], v{t3}, {sr(S_RR,4)}, 0 offen sc1
K_co1:
    s_waitcnt lgkmcnt(0)
    buffer_store_dwordx4 v[0:3], v{t2}, {sr(S_RR,4)}, 0 offen sc1
    v_readfirstlane_b32 s{S_TAG}, v12
    v_readfirstlane_b32 s{S_TAG+1}, v13
    s_cmp_lg_u32 s{S_WAVE}, 8
    s_cbranch_scc1 K_lwJ
    s_and_b32 s{S_C}, s{S_TAG}, 0xfe000000
    s_lshl_b32 s{S_B}, s2, 11
    s_add_u32 s{S_B}, s{S_B}, {WS_TAB}
    v_lshl_add_u32 v{t1}, v{L}, 4, s{S_B}""")
    for i in range(4):
        a(f"    v_lshrrev_b32 v{68+i}, 2, v{68+i}")
        a(f"    v_lshl_or_b32 v{68+i}, v{60+i}, 13, v{68+i}")
        a(f"    v_or_b32 v{vTb+2*i}, s{S_C}, v{68+i}")
        a(f"    v_mov_b32 v{vTb+2*i+1}, s{S_TAG+1}")
    a(f"""
K_lwJ:
    s_mov_b32 s3, {NLOG2E:#x}
    v_lshlrev_b32 v{t0}, 1, v{J}
    v_add_u32 v{t0}, {L_WC}, v{t0}
    s_waitcnt vmcnt(0)
    s_barrier""")
    stamp(a, 6)
    a(f"""
    s_cmp_eq_u32 s{S_TAG}, 0
    s_cbranch_scc1 K_slow
    s_cmp_lt_u32 s{S_WAVE}, 8
    s_cbranch_scc1 K_Q
    s_cmp_lg_u32 s{S_WAVE}, 8
    s_cbranch_scc1 K_ntab
    global_store_dwordx4 v{t1}, {vr(vTb,4)}, {sr(S_WS,2)} sc1
    global_store_dwordx4 v{t1}, {vr(vTb+4,4)}, {sr(S_WS,2)} offset:1024 sc1
K_ntab:
    s_sub_u32 s{S_A}, s{S_WAVE}, 8
    s_lshl_b32 s{S_A}, s{S_A}, 12
    s_add_u32 s{S_B}, s{S_A}, {L_W2}
    s_mov_b32 m0, s{S_B}
    v_lshl_add_u32 v{t3}, v{L}, 4, s{S_A}
    global_load_lds_dwordx4 v{t3}, {sr(S_W2,2)}
    global_load_lds_dwordx4 v{t3}, {sr(S_W2,2)} offset:1024
    global_load_lds_dwordx4 v{t3}, {sr(S_W2,2)} offset:2048
    global_load_lds_dwordx4 v{t3}, {sr(S_W2,2)} offset:3072
    s_branch K_notQ
K_Q:
    s_and_b32 s{S_B}, s{S_WAVE}, 1
    s_lshl_b32 s{S_A}, s{S_B}, 6
    v_and_b32 v{t3}, 48, v{L}
    v_add_u32 v{t3}, s{S_A}, v{t3}
    global_load_dwordx4 {vr(V_B2,4)}, v{t3}, {sr(S_B2,2)}
    s_lshl_b32 s{S_A}, s{S_D}, 6
    v_add_u32 v{t3}, s{S_A}, v{t0}
    ds_read_u16 v{vB1}, v{t3} offset:256
    v_add_u32 v{t1}, v{vWa}, v{vC8}""")
    for s_ in range(4):
        for h in range(2):
            a(f"    ds_read_b64_tr_b16 {vr(vWf+4*s_+2*h,2)}, v{t1} offset:{16384+4096*s_+1024*h}")
    a(f"""
    s_and_b32 s{S_A}, s{S_WAVE}, 1
    s_lshl_b32 s{S_B}, s{S_A}, 14
    s_lshl_b32 s{S_C}, s{S_D}, 7
    s_add_u32 s{S_B}, s{S_B}, s{S_C}
    s_add_u32 s{S_B}, s{S_B}, {L_QT}
    v_lshl_add_u32 v{t1}, v{HH}, 11, s{S_B}
    v_lshl_add_u32 v{t1}, v{J}, 2, v{t1}""")
    for s_ in range(4):
        a(f"    s_waitcnt lgkmcnt({6-2*s_})")
        cin = "0" if s_ == 0 else vr(vAc, 16)
        a(f"    v_mfma_f32_32x32x16_bf16 {vr(vAc,16)}, {vr(vX+4*s_,4)}, {vr(vWf+4*s_,4)}, {cin}")
    a(f"""
    v_lshlrev_b32 v{vB1}, 16, v{vB1}
    v_mul_f32 v{vB1}, s3, v{vB1}
    s_nop 9""")
    def qrow(r):
        a(f"    v_fma_f32 v{vAc+r}, v{vAc+r}, s3, v{vB1}")
        a(f"    v_cvt_pk_bf16_f32 v{vWf+r}, v{vZ}, v{vAc+r}")
        a(f"    v_sub_f32 v{vWf+r}, v{vAc+r}, v{vWf+r}")
        a(f"    v_cvt_pk_bf16_f32 v{vWf+r}, v{vAc+r}, v{vWf+r}")
        a(f"    ds_write_b32 v{t1}, v{vWf+r} offset:{512*(8*(r>>2)+(r&3))}")
    for r in range(12): qrow(r)
    a(f"""
    s_cmp_eq_u32 s{S_A}, 1
    s_cbranch_scc1 K_notQ""")
    for r in range(12, 16): qrow(r)
    a(f"""
K_notQ:
    ds_read_u16 v{wc(0)}, v{t0}
    ds_read_u16 v{wc(1)}, v{t0} offset:64
    ds_read_u16 v{wc(2)}, v{t0} offset:128
    ds_read_u16 v{wc(3)}, v{t0} offset:192
    s_lshl_b32 s{S_B}, s{S_WAVE}, 12
    s_add_u32 s{S_B}, s{S_B}, {L_XS}
    s_mov_b32 m0, s{S_B}
    v_cmp_lt_u32 vcc, 31, v{L}
    s_waitcnt lgkmcnt(0)""")
    for c in range(4):
        a(f"    v_lshlrev_b32 v{wc(c)}, 16, v{wc(c)}")
        a(f"    v_mul_f32 v{wc(c)}, s3, v{wc(c)}")
        a(f"    v_cvt_pk_bf16_f32 v{t3}, v{vZ}, v{wc(c)}")
        a(f"    v_sub_f32 v{t4}, v{wc(c)}, v{t3}")
        a(f"    v_cvt_pk_bf16_f32 v{t4}, v{vZ}, v{t4}")
        a(f"    v_cndmask_b32 v{V_B5+2*c+1}, v{t3}, v{t4}, vcc")
    a(f"    v_mov_b32 v{t5}, v{vTa}")
    stamp(a, 7)
    vT = 0
    vN = 4
    vAr = 6
    vR = 12
    vM = 28
    vA = 32
    vK = 48
    vB = 64
    vG = 80
    a(f"""
    s_mov_b32 s{S_RR}, s{S_WS}
    s_mov_b32 s{S_RR+1}, s{S_WS+1}
    s_mov_b32 s{S_RR+2}, {WS_P + N_NODES*256}
    s_mov_b32 s{S_A}, {128*2048}
    s_mov_b32 s{S_B}, {128*RSTRIDE}
    s_mov_b32 s{S_C}, 0xfe000000
    s_movk_i32 s{S_D}, 0xfc
    s_mov_b32 s{S_K}, 0
    s_mov_b64 {mask(0)}, -1
    s_mov_b64 {mask(1)}, -1
    v_mov_b32 v{vM}, 0
    v_mov_b32 v{vM+1}, 0
K_poll:
    s_mov_b64 exec, {mask(0)}
    s_cbranch_execz K_pl0
    buffer_load_dwordx2 {vr(vT,2)}, v{t5}, {sr(S_RR,4)}, 0 offen sc1
K_pl0:
    s_mov_b64 exec, {mask(1)}
    s_cbranch_execz K_pl1
    buffer_load_dwordx2 {vr(vT+2,2)}, v{t5}, {sr(S_RR,4)}, s{S_A} offen sc1
K_pl1:
    s_mov_b64 exec, -1
    s_waitcnt vmcnt(0)""")
    for i in range(2):
        a(f"    v_xor_b32 v{vN+i}, s{S_TAG}, v{vT+2*i}")
        a(f"    v_xor_b32 v{vAr+i}, s{S_TAG+1}, v{vT+2*i+1}")
        a(f"    v_and_or_b32 v{vAr+i}, v{vN+i}, s{S_C}, v{vAr+i}")
        a(f"    v_cmp_ne_u32 {mask(i)}, 0, v{vAr+i}")
    a(f"""
    s_add_u32 s{S_K}, s{S_K}, 1
    s_or_b64 vcc, {mask(0)}, {mask(1)}
    s_cbranch_scc0 K_got
    {"s_sleep " + optval("ps", "0") if optval("ps", "0") != "0" else ""}
    s_cmp_lt_u32 s{S_K}, {POLL_MAX}
    s_cbranch_scc1 K_poll
    s_mov_b32 s{S_MODE}, 1
    s_branch K_nor2a
K_got:""")
    if DIAG:
        a(f"    v_writelane_b32 v{V_STAMP}, s{S_K}, 20")
    stamp(a, 8)
    so = ["0", sr(S_B)]
    for i in range(2):
        a(f"    v_and_b32 v{vAr+i}, 0x1fff, v{vT+2*i}")
        a(f"    v_bfe_u32 v{vT+2*i+1}, v{vT+2*i}, 13, 12")
        a(f"    v_lshl_add_u32 v{vAr+i}, v{vAr+i}, 2, v{vSb}")
        a(f"    v_sub_u32 v{vN+i}, v{vT+2*i+1}, v{vG4}")
        a(f"    v_lshl_add_u32 v{vAr+2+i}, v{vT+2*i+1}, 2, v{vAr+i}")
        a(f"    v_cmp_lt_i32 {mask(4*i)}, 0, v{vN+i}")
        a(f"    v_lshl_add_u32 v{vAr+i}, v{vG4}, 2, v{vAr+i}")
        a(f"    v_add_u32 v{vAr+2+i}, v{vAr+2+i}, v{vG4}")
        a(f"    s_or_b64 exec, {mask(4*i)}, 1")
        a(f"    buffer_load_dword v{vM+i}, v{vAr+2+i}, {sr(S_RR,4)}, {so[i]} offen")
        a(f"    buffer_load_dwordx4 {vr(vR+4*i,4)}, v{vAr+i}, {sr(S_RR,4)}, {so[i]} offen")
        a(f"    s_mov_b64 exec, -1")
    for i in range(2):
        for k in range(1, 4):
            a(f"    v_cmp_lt_i32 {mask(4*i+k)}, {k}, v{vN+i}")
    a(f"""
    v_max_i32 v{t1}, v{vN}, v{vN+1}
    v_cmp_lt_i32 vcc, 24, v{t1}
    s_mov_b32 s{S_K}, 0
    s_cbranch_vccz K_nor2a
    s_mov_b32 s{S_K}, 1""")
    for i in range(2):
        a(f"    buffer_load_dword v{vM+2+i}, v{vAr+2+i}, {sr(S_RR,4)}, {so[i]} offen offset:24")
        a(f"    buffer_load_dwordx4 {vr(vR+8+4*i,4)}, v{vAr+i}, {sr(S_RR,4)}, {so[i]} offen offset:96")
        for k in range(4):
            a(f"    v_cmp_lt_i32 {mask(8+4*i+k)}, {24+k}, v{vN+i}")
    a(f"""
    v_cmp_lt_i32 vcc, 48, v{t1}
    s_cbranch_vccz K_nor2a
    s_mov_b32 s{S_MODE}, 1
K_nor2a:
    s_lshr_b32 s{S_A}, s2, 3
    s_mul_i32 s{S_A}, s{S_A}, {781*128}
    s_add_u32 s{S_A}, s{S_A}, {WS_P}
    v_lshlrev_b32 v{t1}, 7, v{T}
    v_mov_b32 v{t4}, {L_FLAG}
    v_mov_b32 v{t0}, 4
    s_cmp_eq_u32 s{S_MODE}, 0
    s_cbranch_scc1 K_nofl
    ds_write_b32 v{t4}, v{t0}
K_nofl:
    s_waitcnt lgkmcnt(0)
    s_barrier
    ds_read_b32 v{t3}, v{t4}
    s_add_u32 s{S_RX}, s{S_WS}, {WS_P - 3072}
    s_addc_u32 s{S_RX+1}, s{S_WS+1}, 0
    s_and_b32 s{S_RX+1}, s{S_RX+1}, 0xffff
    s_or_b32 s{S_RX+1}, s{S_RX+1}, 0x01000000
    s_mov_b32 s{S_RX+2}, {N_NODES}
    s_mov_b32 s{S_RX+3}, 0x00020000
    s_waitcnt lgkmcnt(0)
    v_cmp_ne_u32 vcc, 0, v{t3}
    s_cbranch_vccnz K_slow""")
    pf0 = int(optval("pf", "8"))
    a(f"""
    s_cmp_lt_u32 s{S_WAVE}, {pf0}
    s_cbranch_scc1 K_npf
    buffer_load_dword v{t5}, v{t1}, {sr(S_RR,4)}, s{S_A} offen
    s_waitcnt vmcnt(1)
    s_branch K_pfJ
K_npf:
    s_waitcnt vmcnt(0)
K_pfJ:""")
    stamp(a, 9)
    def rec_reg(k): return vR + k
    def count_cols(ks):
        for k in ks:
            a(f"    v_and_b32_sdwa v{vA+k}, v{vM+k//4}, s{S_D} {SD} src0_sel:BYTE_{k%4} src1_sel:DWORD")
        for k in ks:
            a(f"    s_mov_b64 exec, {mask(k)}")
            a(f"    ds_add_rtn_u32 v{vK+k}, v{vA+k}, v{t0}")
        a(f"    s_mov_b64 exec, -1")
    count_cols(range(8))
    a(f"""
    s_cmp_eq_u32 s{S_K}, 0
    s_cbranch_scc1 K_nor2b""")
    count_cols(range(8, 16))
    a(f"""
K_nor2b:
    v_lshlrev_b32 v{t1}, 2, v{L}
    v_cmp_gt_u32 vcc, s{S_NN}, v{L}
    s_waitcnt lgkmcnt(0)
    s_barrier""")
    stamp(a, 10)
    a(f"""
    ds_read_b32 v{V_CNT}, v{t1}
    s_waitcnt lgkmcnt(0)
    v_add_u32 v{vP}, 12, v{V_CNT}
    v_and_b32 v{vP}, -16, v{vP}
    v_max_u32 v{vP}, 0x80, v{vP}
    v_cndmask_b32 v{vP}, 0, v{vP}, vcc
    v_mov_b32 v{vS}, v{vP}""")
    wave_scan(a, vS)
    a(f"""
    s_nop 0
    v_readlane_b32 s{S_A}, v{vS}, 63
    v_sub_u32 v{vS}, v{vS}, v{vP}
    v_add_u32 v{vSx}, v{vSx}, v{vS}
    ds_write_b32 v{t1}, v{vSx} offset:{L_SX}
    s_cmp_gt_u32 s{S_A}, {ENT_CAP*4}
    s_cbranch_scc1 K_slow""")
    def place_cols(ks, mid=None):
        ks = list(ks)
        for k in ks:
            a(f"    ds_read_b32 v{vB+k}, v{vA+k} offset:{L_SX}")
        if mid: a(mid)
        for n, k in enumerate(ks):
            if n % 2 == 0:
                a(f"    s_waitcnt lgkmcnt({len(ks)-2-n})")
            a(f"    v_add_u32_sdwa v{vK+k}, v{vB+k}, v{vK+k} {SD} src0_sel:WORD_0 src1_sel:DWORD")
            a(f"    v_lshlrev_b32_sdwa v{vG+k}, v{vB+k}, v{vOne} {SD} src0_sel:BYTE_2 src1_sel:DWORD")
        for k in ks:
            a(f"    s_mov_b64 exec, {mask(k)}")
            a(f"    ds_write2st64_b32 v{vK+k}, v{vG+k}, v{rec_reg(k)} offset0:0 offset1:{GD}")
        a(f"    s_mov_b64 exec, -1")
    place_cols(range(8), f"""
    s_add_u32 s{S_A}, s{S_A}, 127
    s_lshr_b32 s{S_TT}, s{S_A}, 7            ; tiles
    s_mul_i32 s{S_T0}, s{S_SLOT}, s{S_TT}
    s_add_u32 s{S_NT}, s{S_T0}, s{S_TT}
    s_mul_i32 s{S_T0}, s{S_T0}, 43691
    s_mul_i32 s{S_NT}, s{S_NT}, 43691
    s_lshr_b32 s{S_T0}, s{S_T0}, 19
    s_lshr_b32 s{S_NT}, s{S_NT}, 19
    s_sub_u32 s{S_NT}, s{S_NT}, s{S_T0}""")
    a(f"""
    s_cmp_eq_u32 s{S_K}, 0
    s_cbranch_scc1 K_nor2c
    s_waitcnt lgkmcnt(0)""")
    place_cols(range(8, 16))
    thr = [int(x) for x in optval("thr", "5_3_1").split("_")]
    a(f"""
K_nor2c:
    s_lshl_b32 s{S_A}, s{S_T0}, 7            ; ts*4
    s_add_u32 s{S_C}, s{S_A}, {L_RL}
    v_add_u32 v{V_AIDX}, s{S_C}, v{V_AIDX}
    v_cmp_ge_u32 {mask(0)}, s{S_A}, v{vS}
    v_subrev_u32 v{t0}, s{S_A}, v{vS}
    s_and_b64 {mask(0)}, {mask(0)}, vcc
    s_bcnt1_i32_b64 s{S_B}, {mask(0)}
    s_sub_u32 s{S_B}, s{S_B}, 1              ; n
    s_andn2_b64 {mask(0)}, vcc, {mask(0)}
    s_waitcnt lgkmcnt(0)
    s_barrier""")
    stamp(a, 11)
    for h in idx_reads(0): a(h)
    a(f"""
    s_add_u32 s{S_A}, s{S_A}, {L_G}
    v_add_u32 v{V_AENT}, s{S_A}, v{V_AENT}
    v_xor_b32 v{t3}, s{S_B}, v{HH}
    v_and_b32 v{t3}, 1, v{t3}
    s_lshl_b32 s{S_A}, s{S_B}, 9
    s_add_u32 s{S_A}, s{S_A}, {L_QT}
    v_lshl_add_u32 v{V_AQ}, v{t3}, 9, s{S_A}
    v_lshl_add_u32 v{V_AQ}, v{J}, 2, v{V_AQ}
    s_waitcnt lgkmcnt(0)""")
    for h in dma_ops(0): a(h)
    for h in ent_reads(True): a(h)
    a(f"""
    v_bfe_u32 v{t4}, v{t0}, 4, 3
    v_add_u32 v{t4}, 1, v{t4}
    v_mul_u32_u24 v{t4}, {VAR_SIZE}, v{t4}
    v_lshrrev_b32 v{t0}, 7, v{t0}
    v_min_u32 v{t0}, 63, v{t0}
    v_cndmask_b32 v{t0}, 63, v{t0}, {mask(0)}
    v_lshlrev_b32 v{t0}, 2, v{t0}
    v_mov_b32 v{V_TAB}, 0
    ds_permute_b32 v{V_TAB}, v{t0}, v{t4}
    s_add_u32 s{S_A}, s{S_B}, s{S_SLOT}
    s_mul_i32 s{S_A}, s{S_A}, {ST_STRIDE}
    s_add_u32 s{S_A}, s{S_A}, {L_ST}
    v_lshl_add_u32 v{V_AS}, v{L}, 2, s{S_A}
    v_add_u32 v{V_AENT}, 0x80, v{V_AENT}
    v_xor_b32 v{t3}, 1, v{t3}
    v_lshlrev_b32 v{V_INCQ}, 10, v{t3}
    v_cvt_f32_u32 v{vOne}, s{S_TT}
    v_rcp_f32 v{vOne}, v{vOne}
    v_add3_u32 v{vP}, v{vS}, v{vP}, -4
    v_lshrrev_b32 v{vS}, 7, v{vS}
    v_lshrrev_b32 v{vP}, 7, v{vP}
    v_cvt_f32_u32 v{vS}, v{vS}
    v_cvt_f32_u32 v{vP}, v{vP}
    v_add_f32 v{vS}, {f32bits((NW-0.5)/NW):#x}, v{vS}
    v_add_f32 v{vP}, {f32bits((NW-0.5)/NW):#x}, v{vP}
    v_mul_f32 v{vOne}, {f32bits(NW):#x}, v{vOne}
    v_mul_f32 v{vS}, v{vS}, v{vOne}
    v_mul_f32 v{vP}, v{vP}, v{vOne}
    v_cvt_u32_f32 v{vS}, v{vS}
    v_cvt_u32_f32 v{vP}, v{vP}
    v_sub_u32 v{vP}, v{vP}, v{vS}
    v_add_u32 v{vS}, v{vS}, v{L}
    v_lshl_or_b32 v{vS}, v{vP}, 8, v{vS}
    v_cndmask_b32 v{vS}, {ZROW}, v{vS}, vcc
    v_lshl_or_b32 v{V_CNT}, v{vS}, 16, v{V_CNT}
    ; jump table: entry offset inside a variant slot (priority steps near the end), exit at lane nt
    v_sub_u32 v{t0}, s{S_NT}, v{L}
    v_mov_b32 v{t3}, 64""")
    for i, th in enumerate(thr):
        a(f"    v_cmp_eq_u32 {mask(i)}, {th}, v{t0}")
    a(f"    v_cmp_eq_u32 {mask(3)}, 0, v{t0}")
    a(f"    v_mov_b32 v{t4}, K_exit - K_vbase")
    for i, th in enumerate(thr):
        a(f"    v_cndmask_b32 v{t3}, v{t3}, {44 + 8*i}, {mask(i)}")
    a(f"""
    s_waitcnt lgkmcnt(0)
    v_add_u32 v{V_TAB}, v{V_TAB}, v{t3}
    v_cndmask_b32 v{V_TAB}, v{V_TAB}, v{t4}, {mask(3)}
    s_mov_b32 s{S_K}, 1
    s_setprio 3
    v_readlane_b32 s{S_J}, v{V_TAB}, 0
    s_cmp_eq_u32 s{S_NT}, 0
    s_cbranch_scc1 K_exit
    s_waitcnt vmcnt(0)""")
    stamp(a, 12)
    for h in tr_reads(0): a(h)
    a(f"""
    s_add_u32 s{S_J}, s{S_J}, s{S_PC}
    s_addc_u32 s{S_J+1}, s{S_PC+1}, 0
    s_waitcnt lgkmcnt(0)
    v_perm_b32 v{V_A5}, v{V_A5}, v{V_A5}, v{V_PSEL}""")
    for h in dma_ops(1): a(h)
    a(small(0)); a(small(1))
    stamp(a, 13); stamp(a, 14, True)
    a(f"    s_setpc_b64 {sr(S_J,2)}")
    a(f".p2align 6")
    a(f"K_vbase:")
    for vi, b in enumerate([None] + list(range(8))):
        tile_variant(a, vi, b)
    a(f".p2align 3")
    a(f"K_exit:")
    stamp(a, 15); stamp(a, 16, True)
    for cts in ((0, 1), (2, 3)):
        flush_ops(a, cts)
        a("    s_nop 1")
        flush_ops2(a, cts)
    a(f"""
    v_cmp_eq_f32 vcc, 0, v{V_MN}
    s_cbranch_vccz K_join
    v_mov_b32 v64, 1
    v_mov_b32 v65, {L_FLAG}
    ds_write_b32 v65, v64
K_join:
    s_cmp_ge_u32 s{S_WAVE}, 8
    s_cbranch_scc1 K_idle
    v_and_b32 v64, 15, v{L}
    v_lshrrev_b32 v65, 4, v{L}               ; g
    s_lshr_b32 s{S_A}, s{S_WAVE}, 1
    s_lshl_b32 s{S_A}, s{S_A}, 4
    v_add_u32 v64, s{S_A}, v64               ; node
    v_lshlrev_b32 v68, 2, v64
    ds_bpermute_b32 v69, v68, v{V_CNT}
    s_and_b32 s{S_B}, s{S_WAVE}, 1
    s_lshl_b32 s{S_B}, s{S_B}, 6
    s_add_u32 s{S_C}, s{S_B}, {L_W2}
    v_bfe_u32 v67, v{L}, 2, 2
    v_lshl_add_u32 v67, v65, 3, v67
    v_lshl_add_u32 v67, v67, 7, s{S_C}
    v_and_b32 v66, 3, v{L}
    v_lshl_add_u32 v67, v66, 4, v67""")
    for ot in range(2):
        for ks in range(4):
            for h in range(2):
                a(f"    ds_read_b64_tr_b16 {vr(16*ot+4*ks+2*h,2)}, v67 offset:{4096*ks+512*h+8*ot}")
    a(f"""
    v_lshlrev_b32 v70, 7, v64
    v_lshl_add_u32 v70, v65, 4, v70
    s_lshl_b32 s{S_A}, s{S_N0}, 7
    s_add_u32 s{S_RT}, s{S_OUT}, s{S_A}
    s_addc_u32 s{S_RT+1}, s{S_OUT+1}, 0
    s_lshl_b32 s{S_RT+2}, s{S_NN}, 7
    s_mov_b32 s{S_RT+3}, 0x00020000
    s_mov_b32 s3, {NLN2:#x}
    s_movk_i32 s{S_K}, {ST_STRIDE}""")
    for q in range(4):
        a(f"    v_lshlrev_b32 v{72+2*q}, 16, v{V_B2+q}")
        a(f"    v_and_b32 v{73+2*q}, 0xffff0000, v{V_B2+q}")
    a(f"""
    s_waitcnt lgkmcnt(0)
    v_bfe_u32 v66, v69, 16, 8
    v_lshrrev_b32 v68, 24, v69
    v_and_b32 v69, 0xffff, v69
    v_cvt_f32_u32 v69, v69
    v_mul_f32 v69, 0x3e800000, v69
    v_lshlrev_b32 v65, 5, v65
    v_add_u32 v65, {L_ST}, v65
    v_mad_u32_u24 v66, v66, s{S_K}, v65
    v_add_u32 v65, {ZROW*ST_STRIDE}, v65
    v_cmp_lt_u32 vcc, 0, v68
    v_add_u32 v67, {ST_STRIDE}, v66
    v_mov_b32 v71, 0x207
    v_cndmask_b32 v64, v65, v67, vcc""")
    for q in range(8):
        a(f"    v_mul_f32 v{72+q}, v69, v{72+q}")
    a(f"    s_barrier")
    stamp(a, 17)
    for ks in range(4):
        a(f"    ds_read_b128 {vr(32+8*ks,4)}, v66 offset:{128*ks}")
        a(f"    ds_read_b128 {vr(36+8*ks,4)}, v66 offset:{128*ks+16}")
    a(f"    s_mov_b32 s{S_A}, 1")
    a(f"K_rows:")
    for ks in range(4):
        a(f"    ds_read_b128 {vr(96+8*ks,4)}, v64 offset:{128*ks}")
        a(f"    ds_read_b128 {vr(100+8*ks,4)}, v64 offset:{128*ks+16}")
    a(f"""
    v_cmp_lt_u32 vcc, s{S_A}, v68
    v_add_u32 v67, {ST_STRIDE}, v67
    s_add_u32 s{S_A}, s{S_A}, 1""")
    for ks in range(4):
        a(f"    s_waitcnt lgkmcnt({6-2*ks})")
        for q in range(4):
            a(f"    v_pk_add_f32 {vr(32+8*ks+2*q,2)}, {vr(32+8*ks+2*q,2)}, {vr(96+8*ks+2*q,2)}")
    a(f"""
    v_cndmask_b32 v64, v65, v67, vcc
    s_cbranch_vccnz K_rows""")
    for ks in range(4):
        for q in range(4):
            a(f"    v_cvt_pk_bf16_f32 v{80+4*ks+q}, v{32+8*ks+2*q}, v{33+8*ks+2*q}")
    a("    s_nop 1")
    for ks in range(4):
        for ot in range(2):
            d = vr(128+4*ot, 4)
            cin = "0" if ks == 0 else d
            a(f"    v_mfma_f32_16x16x32_bf16 {d}, {vr(16*ot+4*ks,4)}, {vr(80+4*ks,4)}, {cin}")
    a("    s_nop 7")
    for q in range(8):
        a(f"    v_fma_f32 v{72+q}, v{128+q}, s3, v{72+q}")
    for q in range(4):
        a(f"    v_cvt_pk_bf16_f32 v{80+q}, v{72+2*q}, v{73+2*q}")
    a(f"    buffer_store_dwordx4 v[80:83], v70, {sr(S_RT,4)}, s{S_B} offen")
    for q in range(8):
        a(f"    v_cmp_class_f32 {mask(q)}, v{72+q}, v71")
    for q in range(1, 8):
        a(f"    s_or_b64 {mask(0)}, {mask(0)}, {mask(q)}")
    a(f"""
    s_cbranch_scc0 K_fin
    v_mov_b32 v64, 1
    v_mov_b32 v65, {L_FLAG}
    ds_write_b32 v65, v64
    s_branch K_fin
K_idle:
    s_waitcnt lgkmcnt(0)
    s_barrier                                ; B9
K_fin:
    v_mov_b32 v65, {L_FLAG}
    s_waitcnt lgkmcnt(0)
    s_barrier                                ; B10
    ds_read_b32 v64, v65
    s_waitcnt lgkmcnt(0)
    v_cmp_ne_u32 vcc, 0, v64
    s_cbranch_vccnz K_slow""")
    if DIAG:
        a("    s_waitcnt vmcnt(0)")
        stamp(a, 18); stamp(a, 19, True)
        a(f"""
    v_writelane_b32 v{V_STAMP}, s{S_NT}, 21
    s_lshl_b32 s{S_A}, s2, 4
    s_add_u32 s{S_A}, s{S_A}, s{S_WAVE}
    s_lshl_b32 s{S_A}, s{S_A}, 8
    s_add_u32 s{S_A}, s{S_A}, {WS_STAMP}
    v_lshl_add_u32 v64, v{J}, 2, s{S_A}
    s_mov_b64 exec, 0xffffffff
    global_store_dword v64, v{V_STAMP}, {sr(S_WS,2)}
    global_store_dword v64, v{V_TRACE}, {sr(S_WS,2)} offset:128""")
    a(f"""
K_end:
    s_endpgm
K_slow:
    s_setprio 0
    s_mov_b32 s16, s{S_N0}
    s_mov_b32 s17, s{S_NN}
    s_mov_b32 s18, s{S_WAVE}""")
    gen_slow(a, 16, 17, 18, L, NLOG2E, NW=NW)
    a("    s_endpgm")

def main():
    global DIAG
    out = sys.argv[1]
    DIAG = "diag" in sys.argv[2:]
    OPT.update(sys.argv[2:])
    a = Asm()
    a(f"""; Edge-featured MPNN layer: out[n] = sum_(e: dst=n) (silu([x[src],x[dst],e] w1 + b1) w2 + b2)
; @launch grid=(256,1,1) block=({NT_},1,1) lds={L_END}
.amdgcn_target "amdgcn-amd-amdhsa--gfx950"
.text""")
    gen_kernel(a)
    a(f"""
.section .rodata,"a"
.p2align 6
.amdhsa_kernel {KNAME}
  .amdhsa_next_free_vgpr {NVGPR}
  .amdhsa_next_free_sgpr 102
  .amdhsa_accum_offset {NVGPR}
  .amdhsa_group_segment_fixed_size 0
  .amdhsa_kernarg_size 88
  .amdhsa_user_sgpr_count 2
  .amdhsa_user_sgpr_kernarg_segment_ptr 1
  .amdhsa_system_sgpr_workgroup_id_x 1
  .amdhsa_float_denorm_mode_32 3
.end_amdhsa_kernel""")
    open(out, "w").write(a.text())

if __name__ == "__main__":
    main()
```

```python
import sys, struct
from slow import gen_slow

NAME = "standalone__edge_featured_mpnn_mpnn__graph"
KNAME = NAME + "_kernel"
N_NODES = 12500
NB = 49
NW = 12
NT_ = 64 * NW
MAINE = 4 * NT_
XTRA = 53
RSTRIDE = 16640

WS_REC = 0
WS_TAB = 0x420000
WS_P = 0x500000
WS_STAMP = 0xA00000

L_FLAG = 288
L_NONCE = 296
L_SX = 4096
L_Z = 320
L_RL = 4352
ENT_CAP = 3584
L_ST = L_RL + (ENT_CAP + 64) * 4
ST_STRIDE = 528
ZROW = NB + NW
L_QT = (L_ST + (ZROW + 1) * ST_STRIDE + 255) // 256 * 256
L_XS = L_QT + 56 * 512
L_W2 = L_XS + NW * 4096
L_B2 = L_W2 + 16384
L_T2 = L_B2 + 256
L_END = L_T2 + 16384
L_RS = L_ST
L_H1 = L_ST + 16640
L_OFF = L_H1 + 1024
L_W1 = L_XS
L_WC = L_XS + 32768
L_PS = L_WC + 512
L_XR = L_W2
PS_STRIDE = 272
assert L_XS % 256 == 0
assert L_END <= 163840 and L_H1 + 3072 <= L_ST + ZROW * ST_STRIDE and L_OFF + 1024 < 65536 and L_PS + 56 * PS_STRIDE <= L_W2

def f32bits(x):
    return struct.unpack("<I", struct.pack("<f", x))[0]
NLOG2E = f32bits(-1.4426950408889634)
NLN2 = f32bits(-0.6931471805599453)
PADREC = 0x3FFF
POLL_MAX = 4000

class Asm:
    def __init__(self):
        self.l = []
    def __call__(self, s=""):
        for x in s.strip("\n").split("\n"):
            self.l.append(x)
    def text(self):
        return "\n".join(self.l) + "\n"

def vr(a, n=1):
    return f"v{a}" if n == 1 else f"v[{a}:{a+n-1}]"
def sr(a, n=1):
    return f"s{a}" if n == 1 else f"s[{a}:{a+n-1}]"

DIAG = False
OPT = set()
def optval(prefix, default):
    for o in OPT:
        if o.startswith(prefix):
            return o[len(prefix):]
    return default

V_D = 0; V_E = 64; V_A5 = 96; V_B5 = 98; V_ND = 106; V_T = 122; V_R = 126; V_O = 128; V_IX = 132
V_AA = 140; V_AIDX = 141; V_AENT = 142; V_AQ = 143; V_INCQ = 144; V_AS = 145; V_MN = 146; V_PSEL = 147
V_TAB = 148; V_CNT = 149; V_B2 = 150; V_LANE = 154; V_TID = 155
V_J = 156; V_HH = 157
V_STAMP = 167; V_TRACE = 166
NVGPR = 168
S_X = 4; S_E = 6; S_SRC = 8; S_DST = 10; S_W1 = 12; S_B1 = 14; S_W2 = 16; S_B2 = 18; S_OUT = 20; S_DBG = 22; S_WS = 24
S_BIN = 26; S_N0 = 27; S_NN = 28; S_WAVE = 29; S_MODE = 30; S_K = 31; S_PC = 32; S_J = 34
S_RX = 36; S_RT = 40; S_RR = 44; S_P = 48
S_T0 = 56; S_NT = 57; S_TT = 58; S_SLOT = 59; S_A = 60; S_B = 61; S_C = 62; S_D = 63; S_TAG = 64
S_M = 66
S_OH = 66; S_PAR = 68; S_PAD = 70; S_MO = 71
def mask(k): return sr(S_M + 2*k, 2)

def stamp(a, k, real=False):
    if not DIAG:
        return
    if "lite" in OPT and k not in (14, 16, 19):
        return
    a(f"    {'s_memrealtime' if real else 's_memtime'} s[98:99]")
    a(f"    s_waitcnt lgkmcnt(0)")
    a(f"    v_writelane_b32 v{V_STAMP}, s98, {k}")

def wave_scan(a, v):
    for sh in (1, 2, 4, 8):
        a(f"    s_nop 1")
        a(f"    v_add_u32_dpp v{v}, v{v}, v{v} row_shr:{sh} row_mask:0xf bank_mask:0xf")
    a(f"    s_nop 1")
    a(f"    v_add_u32_dpp v{v}, v{v}, v{v} row_bcast:15 row_mask:0xa bank_mask:0xf")
    a(f"    s_nop 1")
    a(f"    v_add_u32_dpp v{v}, v{v}, v{v} row_bcast:31 row_mask:0xc bank_mask:0xf")

SD = "dst_sel:DWORD dst_unused:UNUSED_PAD"

def small(c):
    d = vr(V_D + 16*c, 16)
    return f"    v_mfma_f32_32x32x8_bf16 {d}, {vr(V_A5,2)}, {vr(V_B5+2*c,2)}, {d}"
def tr_reads(h):
    return [f"    ds_read_b64_tr_b16 {vr(V_D+16*(2*h+k)+2*u,2)}, v{V_AA} offset:{512*u+64*k}" for u in range(8) for k in range(2)]
def ent_reads(off, q):
    h = [f"    ds_read_b32 v{V_A5+1}, v{V_AENT} offset:{off}"]
    if q:
        h += [f"    ds_read_b32 v{V_B5+2*c}, v{V_AQ} offset:{128*c}" for c in range(4)]
    return h
def idx_reads(off):
    return [f"    ds_read_u16 v{V_IX+2*m}, v{V_AIDX} offset:{off + 32*m}" for m in range(4)]
def dma_ops(h):
    return [f"    buffer_load_dwordx4 {vr(V_IX+2*m,2)}, {sr(S_RX,4)}, s{S_P+4*h+m} idxen offen offset:{1024*m} lds" for m in range(4)]

def x_phase(a, mf_cts, ex_cts, head, pre, plain, tail):
    es = [f"    v_exp_f32 v{V_E+16*k+2*u+b}, v{V_D+16*c+2*u+b}" for u in range(8) for k, c in enumerate(ex_cts) for b in range(2)]
    n1 = 22
    for h in head: a(h)
    for e in es[:n1-(4 if pre else 2)]: a(e)
    for p in plain: a(p)
    a(f"    s_waitcnt lgkmcnt(0)")
    if pre:
        a(pre[0]); a(es[n1-4]); a(pre[1]); a(pre[2]); a(es[n1-3]); a(pre[3])
    for e in es[n1-2:n1]: a(e)
    a(small(mf_cts[0]))
    for e in es[n1:n1+4]: a(e)
    a(small(mf_cts[1]))
    for e in es[n1+4:]: a(e)
    for t in tail: a(t)
    a(".p2align 3")

def flush_ops(a, cts):
    for k, c in enumerate(cts):
        D = V_ND + 4*c + 2
        a(f"    v_mul_f32 v{V_R+k}, v{D}, v{D+1}")
    for k, c in enumerate(cts):
        N = V_ND + 4*c; D = N + 2
        a(f"    v_pk_mul_f32 {vr(V_O+2*k,2)}, {vr(N,2)}, {vr(D,2)} op_sel:[0,1] op_sel_hi:[1,0]")
    for k, c in enumerate(cts):
        a(f"    v_rcp_f32 v{V_R+k}, v{V_R+k}")
    for k, c in enumerate(cts):
        a(f"    v_add_f32 v{V_O+2*k}, v{V_O+2*k}, v{V_O+2*k+1}")
    for k, c in enumerate(cts):
        a(f"    v_mul_f32 v{V_O+2*k}, v{V_O+2*k}, v{V_R+k}")
def flush_ops2(a, cts):
    a(f"    v_permlane32_swap_b32 v{V_O}, v{V_O+2}")
    a(f"    v_min3_f32 v{V_MN}, v{V_MN}, v{V_R}, v{V_R+1}")
    a(f"    v_add_f32 v{V_O}, v{V_O}, v{V_O+2}")
    a(f"    ds_write_b32 v{V_AS}, v{V_O} offset:{128*cts[0]}")

def y_phase(a, cts, b):
    nsrc = [V_ND + 4*c for c in cts]
    for u in range(8):
        if u == b:
            flush_ops(a, cts)
            for k, c in enumerate(cts):
                a(f"    v_pk_add_f32 {vr(V_ND+4*c+2,2)}, {vr(V_E+16*k+2*u,2)}, 1.0 op_sel_hi:[1,0]")
            flush_ops2(a, cts)
            for k, c in enumerate(cts):
                p = V_D + 16*c + 2*u
                if u == 7:
                    a(f"    v_pk_mov_b32 {vr(V_ND+4*c,2)}, {vr(p,2)}, {vr(p,2)} op_sel:[0,1]")
                else:
                    nsrc[k] = p
            continue
        for k, c in enumerate(cts):
            a(f"    v_pk_fma_f32 {vr(V_T+2*k,2)}, {vr(V_D+16*c+2*u,2)}, {vr(V_ND+4*c+2,2)}, {vr(nsrc[k],2)}")
        for k, c in enumerate(cts):
            D = V_ND + 4*c + 2
            a(f"    v_pk_fma_f32 {vr(D,2)}, {vr(D,2)}, {vr(V_E+16*k+2*u,2)}, {vr(D,2)}")
        for k, c in enumerate(cts):
            a(f"    v_pk_fma_f32 {vr(V_ND+4*c,2)}, {vr(nsrc[k],2)}, {vr(V_E+16*k+2*u,2)}, {vr(V_T+2*k,2)}")
            nsrc[k] = V_ND + 4*c

def onehot_ops():
    return [f"    v_cmp_ne_u32 vcc, s{S_PAD}, v{V_A5+1}",
            f"    s_xor_b64 {sr(S_OH,2)}, {sr(S_OH,2)}, {sr(S_PAR,2)}",
            f"    s_and_b64 vcc, vcc, {sr(S_OH,2)}",
            f"    v_cndmask_b32 v{V_A5}, 0, v{V_PSEL}, vcc"]
def mask_load():
    return [f"    s_sub_u32 s{S_MO}, s{S_J}, 4", f"    s_andn2_b32 s{S_MO}, s{S_MO}, 63",
            f"    s_load_dwordx2 {sr(S_OH,2)}, {sr(S_PC,2)}, s{S_MO}"]
def row_mask(b):
    sw = lambda i: (i & 0x19) | ((i & 2) << 1) | ((i & 4) >> 1)
    return sum(1 << i for i in range(32) if b is None or sw(i) < 4*b)

VAR_SIZE = 1792
def tile_variant(a, vi, b):
    name = "N" if b is None else str(b)
    a(f".org K_vbase + {VAR_SIZE*vi}, 0")
    a(f".long {row_mask(b):#x}, {row_mask(b) ^ 0xffffffff:#x}")
    a(f".org K_vbase + {VAR_SIZE*vi + 64 - 20}, 0")
    a(f"    s_setprio 2\n    s_branch K_var{name}\n    s_setprio 1\n    s_branch K_var{name}\n    s_setprio 0")
    a(f"K_var{name}:")
    bnd = b is not None
    if "trace" in OPT:
        a(f"    s_memtime s[98:99]\n    s_mov_b32 s{S_A}, m0\n    s_mov_b32 m0, s{S_K}\n    s_waitcnt lgkmcnt(0)")
        a(f"    v_writelane_b32 v{V_TRACE}, s98, m0\n    s_mov_b32 m0, s{S_A}")
    plain0 = []
    if bnd:
        plain0 = [f"    v_add_u32 v{V_AQ}, v{V_AQ}, v{V_INCQ}", f"    v_xor_b32 v{V_INCQ}, 0x400, v{V_INCQ}"]
    plain0.append(f"    v_readlane_b32 s{S_J}, v{V_TAB}, s{S_K}")
    x_phase(a, (2, 3), (0, 1), ["    s_waitcnt vmcnt(0)"] + tr_reads(1) + [f"K_vh{name}:"] + idx_reads(128), [], plain0,
            dma_ops(0) + [f"    s_add_u32 s{S_K}, s{S_K}, 1"] + mask_load() + ([f"    s_not_b64 {sr(S_PAR,2)}, {sr(S_PAR,2)}"] if bnd else []))
    y_phase(a, (0, 1), b)
    plain1 = [f"    v_add_u32 v{V_AENT}, 0x80, v{V_AENT}", f"    v_add_u32 v{V_AIDX}, 0x80, v{V_AIDX}"]
    x_phase(a, (0, 1), (2, 3), ["    s_waitcnt vmcnt(0)"] + ent_reads(128, bnd) + tr_reads(0),
            onehot_ops(), plain1,
            dma_ops(1) + [f"    s_add_u32 s{S_J}, s{S_J}, s{S_PC}", f"    s_addc_u32 s{S_J+1}, s{S_PC+1}, 0"])
    y_phase(a, (2, 3), b)
    if bnd:
        a(f"    v_add_u32 v{V_AS}, {ST_STRIDE}, v{V_AS}")
    a(f"    s_setpc_b64 {sr(S_J,2)}")

def gen_kernel(a):
    L = V_LANE; T = V_TID; J = V_J; HH = V_HH
    t0, t1, t2, t3, t4, t5 = 158, 159, 160, 161, 162, 163
    vDst = 0
    vSrc = 8
    vEa = 14
    vBa = 20
    vRk = 26
    vOf = 32
    vX = 40
    vWf = 56
    vAc = 72
    vTb = 88
    vZ = 128
    vPad = 56
    vWa = 38; vXa = 88; vTg = 18; vTa = 39; vC8 = 37; vWp = 31
    vG4 = 164; vSb = 165
    vS = 122; vP = 123; vOne = 124; vAA2 = 125; vPf = 126
    a(f"""
.p2align 8
.globl {KNAME}
.type {KNAME},@function
{KNAME}:
    s_cmp_ge_u32 s2, 256
    s_cbranch_scc1 K_end
    s_load_dwordx8 s[4:11], s[0:1], 0
    s_load_dwordx8 s[12:19], s[0:1], 32      ; w1, b1, w2, b2
    s_load_dwordx4 s[20:23], s[0:1], 64
    s_load_dwordx2 s[24:25], s[0:1], 80      ; ws
    s_memrealtime {sr(S_TAG,2)}
    v_lshrrev_b32 v1, 6, v0
    v_mov_b32 v{T}, v0
    v_readfirstlane_b32 s{S_WAVE}, v1
    v_and_b32 v{L}, 63, v0
    s_mul_i32 s3, s2, {MAINE*4}
    v_lshl_add_u32 v{t0}, v0, 4, s3
    v_lshrrev_b32 v{t1}, 1, v{t0}
    s_and_b32 s{S_BIN}, s2, 7
    s_lshl_b32 s{S_BIN}, s{S_BIN}, 5
    s_lshr_b32 s3, s2, 3
    s_add_u32 s{S_BIN}, s{S_BIN}, s3
    s_mul_i32 s{S_N0}, s{S_BIN}, {NB}
    s_sub_u32 s{S_NN}, {N_NODES}, s{S_N0}
    s_min_u32 s{S_NN}, s{S_NN}, {NB}
    v_and_b32 v{J}, 31, v0
    v_bfe_u32 v{HH}, v0, 5, 1
    s_mov_b32 s{S_MODE}, 0
    v_mov_b32 v{vZ}, 0
    v_mov_b32 v{vZ+1}, 0
    v_mov_b32 v{vZ+2}, 0
    v_mov_b32 v{vZ+3}, 0
    v_lshlrev_b32 v{t2}, 2, v0""")
    if DIAG:
        a(f"    v_mov_b32 v{V_STAMP}, 0\n    v_mov_b32 v{V_TRACE}, 0")
        stamp(a, 0, True); stamp(a, 1)
    wc = lambda c: V_B5 + 2*c
    vB1 = 97
    tc = 17
    ndual = int(optval("dual", "0"))
    cpos = optval("c_", "drain"); qpos = optval("q_", "post")
    def emit_consts():
        a(f"""
    v_and_b32 v{tc}, 7, v{L}
    v_lshlrev_b32 v{V_IX+1}, 4, v{tc}
    v_mov_b32 v{V_IX+3}, v{V_IX+1}
    v_mov_b32 v{V_IX+5}, v{V_IX+1}
    v_mov_b32 v{V_IX+7}, v{V_IX+1}
    v_and_b32 v{tc}, 8, v{L}
    v_lshl_add_u32 v{tc}, v{tc}, 4, v{vC8}
    v_lshl_add_u32 v{tc}, v{HH}, 8, v{tc}
    s_lshl_b32 s{S_B}, s{S_WAVE}, 12
    s_add_u32 s{S_B}, s{S_B}, {L_XS}
    v_add_u32 v{tc}, s{S_B}, v{tc}
    v_and_b32 v{t3}, 4, v{L}
    v_cmp_ne_u32 vcc, 0, v{t3}
    v_mov_b32 v{t3}, {L_Z}
    v_mov_b32 v{V_PSEL}, 0x3f803f80
    v_cndmask_b32 v{V_AA}, v{t3}, v{tc}, vcc
    v_add_u32 v{tc}, {L_T2 - L_XS}, v{tc}
    v_cndmask_b32 v{vAA2}, v{t3}, v{tc}, vcc
    v_and_b32 v{V_AENT}, 0x19, v{L}
    v_and_b32 v{tc}, 2, v{L}
    v_lshl_add_u32 v{V_AENT}, v{tc}, 1, v{V_AENT}
    v_bfe_u32 v{tc}, v{L}, 2, 1
    v_lshl_add_u32 v{V_AENT}, v{tc}, 1, v{V_AENT}
    v_lshlrev_b32 v{V_AENT}, 2, v{V_AENT}
    v_lshrrev_b32 v{V_AIDX}, 3, v{L}
    v_lshlrev_b32 v{V_AIDX}, 2, v{V_AIDX}""")
        for h in range(2):
            for m in range(4):
                a(f"    s_movk_i32 s{S_P+4*h+m}, {3072 - 1024*m + 128*h}")
        for c in range(4):
            a(f"    v_mov_b32 v{V_ND+4*c}, 0")
            a(f"    v_mov_b32 v{V_ND+4*c+1}, 0")
            a(f"    v_mov_b32 v{V_ND+4*c+2}, 1.0")
            a(f"    v_mov_b32 v{V_ND+4*c+3}, 1.0")
        a(f"""
    v_mov_b32 v{V_MN}, 1.0
    s_and_b32 s{S_A}, s{S_WAVE}, 3
    s_mul_i32 s{S_A}, s{S_A}, 3
    s_lshr_b32 s{S_B}, s{S_WAVE}, 2
    s_add_u32 s{S_SLOT}, s{S_A}, s{S_B}
    s_getpc_b64 {sr(S_PC,2)}
K_pc:
    s_add_u32 s{S_PC}, s{S_PC}, K_vbase - K_pc
    s_addc_u32 s{S_PC+1}, s{S_PC+1}, 0
    ; segment mapping of phase 2: segment 128 i + t/6, lane group g = t%6
    v_mul_u32_u24 v{tc}, 10923, v{T}
    v_lshrrev_b32 v{tc}, 16, v{tc}
    v_mad_i32_i24 v{vG4}, v{tc}, -6, v{T}
    v_lshlrev_b32 v{vG4}, 2, v{vG4}          ; 4g
    v_mul_u32_u24 v{vSb}, {RSTRIDE}, v{tc}
    s_lshr_b32 s{S_A}, s2, 3
    s_mul_i32 s{S_A}, s{S_A}, {781*128}
    s_add_u32 s{S_A}, s{S_A}, {WS_P}
    v_lshl_add_u32 v{vPf}, v{T}, 7, s{S_A}
    s_lshr_b32 s{S_B}, s{S_BIN}, 2
    s_lshl_b32 s{S_B}, s{S_B}, 4
    s_and_b32 s{S_A}, s{S_BIN}, 1
    s_lshl_b32 s{S_A}, s{S_A}, 3
    s_add_u32 s{S_B}, s{S_B}, s{S_A}
    s_and_b32 s{S_A}, s{S_BIN}, 2
    s_lshl_b32 s{S_A}, s{S_A}, 9
    s_add_u32 s{S_B}, s{S_B}, s{S_A}
    s_add_u32 s{S_B}, s{S_B}, {WS_TAB}
    v_lshl_add_u32 v{vTa}, v{tc}, 11, s{S_B}""")
    def emit_q():
        a(f"""
    s_cmp_ge_u32 s{S_WAVE}, 8
    s_cbranch_scc1 K_notQ
    ; ---- Q tile while the stores drain
    s_lshl_b32 s{S_A}, s{S_D}, 6
    v_add_u32 v{t3}, s{S_A}, v{t0}
    ds_read_u16 v{vB1}, v{t3} offset:256
    v_add_u32 v{tc}, v{vWa}, v{vC8}""")
        for s_ in range(4):
            for h in range(2):
                a(f"    ds_read_b64_tr_b16 {vr(vWf+4*s_+2*h,2)}, v{tc} offset:{16384+4096*s_+1024*h}")
        a(f"""
    s_and_b32 s{S_A}, s{S_WAVE}, 1
    s_lshl_b32 s{S_B}, s{S_A}, 14
    s_lshl_b32 s{S_C}, s{S_D}, 7
    s_add_u32 s{S_B}, s{S_B}, s{S_C}
    s_add_u32 s{S_B}, s{S_B}, {L_QT}
    v_lshl_add_u32 v{tc}, v{HH}, 11, s{S_B}
    v_lshl_add_u32 v{tc}, v{J}, 2, v{tc}""")
        for s_ in range(4):
            a(f"    s_waitcnt lgkmcnt({6-2*s_})")
            cin = "0" if s_ == 0 else vr(vAc, 16)
            a(f"    v_mfma_f32_32x32x16_bf16 {vr(vAc,16)}, {vr(vX+4*s_,4)}, {vr(vWf+4*s_,4)}, {cin}")
        a(f"""
    v_lshlrev_b32 v{vB1}, 16, v{vB1}
    v_mul_f32 v{vB1}, s3, v{vB1}
    s_nop 9""")
        def qrow(r):
            a(f"    v_fma_f32 v{vAc+r}, v{vAc+r}, s3, v{vB1}")
            a(f"    v_cvt_pk_bf16_f32 v{vWf+r}, v{vZ}, v{vAc+r}")
            a(f"    v_sub_f32 v{vWf+r}, v{vAc+r}, v{vWf+r}")
            a(f"    v_cvt_pk_bf16_f32 v{vWf+r}, v{vAc+r}, v{vWf+r}")
            a(f"    ds_write_b32 v{tc}, v{vWf+r} offset:{512*(8*(r>>2)+(r&3))}")
        for r in range(12): qrow(r)
        a(f"""
    s_cmp_eq_u32 s{S_A}, 1
    s_cbranch_scc1 K_notQ""")
        for r in range(12, 16): qrow(r)
        a(f"""
K_notQ:
    ds_read_u16 v{wc(0)}, v{t0}
    ds_read_u16 v{wc(1)}, v{t0} offset:64
    ds_read_u16 v{wc(2)}, v{t0} offset:128
    ds_read_u16 v{wc(3)}, v{t0} offset:192
    v_cmp_lt_u32 vcc, 31, v{L}
    s_waitcnt lgkmcnt(0)""")
        for c in range(4):
            a(f"    v_lshlrev_b32 v{wc(c)}, 16, v{wc(c)}")
            a(f"    v_mul_f32 v{wc(c)}, s3, v{wc(c)}")
            a(f"    v_cvt_pk_bf16_f32 v{t3}, v{vZ}, v{wc(c)}")
            a(f"    v_sub_f32 v{t4}, v{wc(c)}, v{t3}")
            a(f"    v_cvt_pk_bf16_f32 v{t4}, v{vZ}, v{t4}")
            a(f"    v_cndmask_b32 v{V_B5+2*c+1}, v{t3}, v{t4}, vcc")
    step = NT_ * 16
    wc = lambda c: V_B5 + 2*c
    vB1 = 97
    a(f"""
    s_waitcnt lgkmcnt(0)
    global_load_dwordx4 {vr(vDst,4)}, v{t0}, {sr(S_DST,2)}
    {f"v_writelane_b32 v{V_STAMP}, s{S_TAG}, 0" if "lite" in OPT else ""}
    ds_write_b32 v{t2}, v{vZ} offset:{L_H1}
    s_cmp_lg_u32 s{S_WAVE}, 11
    s_cbranch_scc1 K_ld1
    s_mul_i32 s{S_A}, s2, {XTRA}
    s_add_u32 s{S_A}, s{S_A}, {256*MAINE}
    v_min_u32 v{t5}, {XTRA-1}, v{L}
    v_add_lshl_u32 v{t5}, v{t5}, s{S_A}, 2
    v_lshrrev_b32 v{t4}, 1, v{t5}
    global_load_dword v{vDst+4}, v{t5}, {sr(S_DST,2)}
    global_load_dword v{vSrc+4}, v{t5}, {sr(S_SRC,2)}
    global_load_ushort v{vEa+2}, v{t4}, {sr(S_E,2)}
K_ld1:""")
    if "nocpf" not in OPT:
        a(f"""
    ; the first workgroups pull the rest of the code into their die's L2
    s_cmp_ge_u32 s2, 32
    s_cbranch_scc1 K_ld2
    s_sub_u32 s{S_A}, s{S_WAVE}, 5
    s_cmp_ge_u32 s{S_A}, 3
    s_cbranch_scc1 K_ld2
    s_lshl_b32 s{S_A}, s{S_A}, 13
    v_lshl_add_u32 v{t5}, v{L}, 7, s{S_A}
    s_getpc_b64 {sr(S_J,2)}
    global_load_dword v{t4}, v{t5}, {sr(S_J,2)}
K_ld2:""")
    a(f"""
    s_lshl_b32 s{S_A}, s2, 4
    s_add_u32 s{S_A}, s{S_A}, s{S_WAVE}
    s_cmp_lg_u32 s{S_A}, 9
    s_cbranch_scc1 K_ldJ
    s_lshl_b32 s{S_A}, s{S_TAG}, 25
    s_or_b32 s{S_A}, s{S_A}, 1
    s_lshr_b64 {sr(S_TAG,2)}, {sr(S_TAG,2)}, 7
    v_mov_b32 v{t4}, s{S_A}
    v_mov_b32 v{t4+1}, s{S_TAG}
    s_mov_b64 exec, 1
    global_store_dwordx2 v{vZ}, {vr(t4,2)}, {sr(S_DBG,2)} sc1
    s_mov_b64 exec, -1
K_ldJ:
    s_lshl_b32 s{S_A}, s{S_WAVE}, 11
    s_cmp_ge_u32 s{S_WAVE}, 8
    s_cbranch_scc1 K_stX
    s_add_u32 s{S_B}, s{S_A}, {L_W1}
    s_mov_b32 m0, s{S_B}
    v_lshrrev_b32 v{t3}, 2, v{L}
    v_and_b32 v{t3}, 12, v{t3}
    v_xor_b32 v{t3}, v{t3}, v{L}
    v_lshl_add_u32 v{t5}, v{t3}, 4, s{S_A}
    global_load_lds_dwordx4 v{t5}, {sr(S_W1,2)}
    global_load_lds_dwordx4 v{t5}, {sr(S_W1,2)} offset:1024
    s_branch K_stJ
K_stX:
    s_mov_b32 s{S_RX}, s4
    s_mov_b32 s{S_RX+1}, s5
    s_mov_b32 s{S_RX+2}, {N_NODES*128}
    s_mov_b32 s{S_RX+3}, 0x00020000
    s_add_u32 s{S_B}, s{S_A}, {L_XR - 16384}
    s_mov_b32 m0, s{S_B}
    s_lshl_b32 s{S_B}, s{S_N0}, 7
    s_add_u32 s{S_A}, s{S_A}, s{S_B}
    s_sub_u32 s{S_A}, s{S_A}, 16384
    v_lshrrev_b32 v{t3}, 4, v{L}
    v_xor_b32 v{t3}, v{t3}, v{L}
    v_lshl_add_u32 v{t3}, v{t3}, 4, s{S_A}
    v_xor_b32 v{t4}, 64, v{t3}
    buffer_load_dwordx4 v{t3}, {sr(S_RX,4)}, 0 offen lds
    buffer_load_dwordx4 v{t4}, {sr(S_RX,4)}, 0 offen offset:1024 lds
K_stJ:
    s_waitcnt lgkmcnt(0)
    s_barrier
    v_mov_b32 v{vPad}, {PADREC}
    v_mov_b32 v{vPad+1}, {PADREC}
    v_mov_b32 v{vPad+2}, {PADREC}
    v_mov_b32 v{vPad+3}, {PADREC}
    v_lshlrev_b32 v{t2}, 4, v{T}
    ds_write_b128 v{t2}, {vr(vPad,4)} offset:{L_RL}
    s_cmp_ge_u32 s{S_WAVE}, 4
    s_cbranch_scc1 K_in1
    ds_write_b128 v{t2}, {vr(vZ,4)}
    ds_write_b128 v{t2}, {vr(vPad,4)} offset:{L_ST - 4096}
K_in1:
    s_cmp_lg_u32 s{S_WAVE}, 4
    s_cbranch_scc1 K_in2
    v_lshlrev_b32 v{t3}, 3, v{L}
    v_add_u32 v{t3}, {L_ST + ZROW*ST_STRIDE}, v{t3}
    ds_write_b64 v{t3}, {vr(vZ,2)}
K_in2:
    global_load_dwordx4 {vr(vSrc,4)}, v{t0}, {sr(S_SRC,2)}
    global_load_dwordx2 {vr(vEa,2)}, v{t1}, {sr(S_E,2)}
    s_cmp_ge_u32 s{S_WAVE}, 8
    s_cbranch_scc1 K_st2
    s_add_u32 m0, m0, 16384
    v_add_u32 v{t5}, 0x4000, v{t5}
    global_load_lds_dwordx4 v{t5}, {sr(S_W1,2)}
    global_load_lds_dwordx4 v{t5}, {sr(S_W1,2)} offset:1024
    s_branch K_st3
K_st2:
    s_mov_b32 m0, {L_WC}
    v_lshlrev_b32 v{t3}, 2, v{L}
    v_add_u32 v{t4}, 0x8000, v{t3}
    global_load_lds_dword v{t4}, {sr(S_W1,2)}
    s_mov_b32 m0, {L_WC + 256}
    s_nop 0
    global_load_lds_dword v{t3}, {sr(S_B1,2)}
K_st3:
    v_and_b32 v{vC8}, 3, v{L}
    v_lshlrev_b32 v{vC8}, 3, v{vC8}
    v_and_b32 v{t1}, 16, v{L}
    v_lshl_add_u32 v{vC8}, v{t1}, 1, v{vC8}    ; 8c + 32(g&1)
""")
    if cpos == "early": emit_consts()
    a(f"""
    s_lshr_b32 s{S_D}, s{S_WAVE}, 1          ; ct
    v_bfe_u32 v{t0}, v{L}, 2, 2
    v_xor_b32 v{t3}, s{S_D}, v{t0}
    v_lshlrev_b32 v{t3}, 6, v{t3}
    v_lshl_add_u32 v{t0}, v{HH}, 3, v{t0}
    v_lshl_add_u32 v{t0}, v{t0}, 8, v{t3}
    v_add_u32 v{vWa}, {L_W1}, v{t0}
    v_and_b32 v{vWp}, 1, v{L}
    v_lshl_add_u32 v{vWp}, v{vWp}, 5, v{vWa}
    v_and_b32 v{t3}, 16, v{L}
    v_add_u32 v{vWp}, v{vWp}, v{t3}
    v_and_b32 v{t3}, 2, v{L}
    v_lshl_add_u32 v{vWp}, v{t3}, 2, v{vWp}    ; + 16(c&1) + 4(2(g&1) + (c>>1)) columns
    s_and_b32 s{S_A}, s{S_WAVE}, 1
    s_lshl_b32 s{S_A}, s{S_A}, 12
    s_add_u32 s{S_A}, s{S_A}, {L_XR}
    v_bfe_u32 v{t3}, v{L}, 1, 3
    v_xor_b32 v{t3}, v{t3}, v{HH}
    v_lshl_add_u32 v{t3}, v{t3}, 4, s{S_A}
    v_lshl_add_u32 v{vXa}, v{J}, 7, v{t3}
    v_xor_b32 v{vXa+1}, 32, v{vXa}
    v_xor_b32 v{vXa+2}, 64, v{vXa}
    v_xor_b32 v{vXa+3}, 0x60, v{vXa}
    s_mov_b32 s{S_A}, 21400
    s_mov_b32 s{S_B}, -{NB}
    s_mov_b32 s{S_C}, 0xffff0000
    v_mov_b32 v{t5}, 0x10004
    s_waitcnt vmcnt(6)
    s_cmp_lg_u32 s{S_WAVE}, 11
    s_cbranch_scc1 K_wJ
    s_bfm_b64 exec, {XTRA}, 0""")
    assert L_ST - L_RL <= step + 4096
    def binops(cols):
        for i in cols: a(f"    v_mul_u32_u24 v{vBa+i}, s{S_A}, v{vDst+i}")
        for i in cols: a(f"    v_lshrrev_b32 v{vBa+i}, 18, v{vBa+i}")
        for i in cols:
            a(f"    v_and_b32 v{vBa+i}, 0x3fc, v{vBa+i}")
            a(f"    ds_add_rtn_u32 v{vRk+i}, v{vBa+i}, v{t5} offset:{L_H1}")
        for i in cols: a(f"    v_lshlrev_b32 v{vDst+i}, 2, v{vDst+i}")
        for i in cols: a(f"    v_mad_i32_i24 v{vDst+i}, v{vBa+i}, s{S_B}, v{vDst+i}")
    binops([4])
    a(f"""
    s_mov_b64 exec, -1
K_wJ:""")
    stamp(a, 2)
    binops(range(4))
    a(f"""
    s_waitcnt vmcnt(4) lgkmcnt(0)
    s_barrier""")
    stamp(a, 3)
    a(f"""
    s_cmp_eq_u32 s{S_WAVE}, 8
    s_cbranch_scc1 K_scan1
    s_cmp_gt_u32 s{S_WAVE}, 8
    s_cbranch_scc1 K_notP""")
    for s_ in range(4):
        a(f"    ds_read_b128 {vr(vX+4*s_,4)}, v{vXa+s_}")
        for h in range(2):
            a(f"    ds_read_b64_tr_b16 {vr(vWf+4*s_+2*h,2)}, v{vWp} offset:{4096*s_+1024*h}")
    for s_ in range(4):
        a(f"    s_waitcnt lgkmcnt({9-3*s_})")
        cin = "0" if s_ == 0 else vr(vAc, 16)
        a(f"    v_mfma_f32_32x32x16_bf16 {vr(vAc,16)}, {vr(vWf+4*s_,4)}, {vr(vX+4*s_,4)}, {cin}")
    a(f"""
    s_and_b32 s{S_B}, s{S_WAVE}, 1
    s_mul_i32 s{S_A}, s{S_B}, {32*PS_STRIDE}
    s_lshl_b32 s{S_B}, s{S_D}, 6
    s_add_u32 s{S_A}, s{S_A}, s{S_B}
    s_add_u32 s{S_A}, s{S_A}, {L_PS}
    v_mul_u32_u24 v{t3}, {PS_STRIDE}, v{J}
    v_lshl_add_u32 v{t3}, v{HH}, 5, v{t3}
    v_add_u32 v{t3}, s{S_A}, v{t3}
    v_mov_b32 v{t4}, {NLOG2E:#x}
    v_cmp_gt_u32 vcc, {L_PS + 56*PS_STRIDE}, v{t3}
    s_nop 1""")
    for q in range(8):
        a(f"    v_pk_mul_f32 {vr(vAc+2*q,2)}, {vr(vAc+2*q,2)}, {vr(t4,2)} op_sel_hi:[1,0]")
    for q in range(8):
        a(f"    v_cvt_pk_bf16_f32 v{vAc+q}, v{vAc+2*q}, v{vAc+2*q+1}")
    a(f"""
    s_mov_b64 exec, vcc
    ds_write_b128 v{t3}, {vr(vAc,4)}
    ds_write_b128 v{t3}, {vr(vAc+4,4)} offset:16
    s_mov_b64 exec, -1
    s_branch K_b3
K_notP:
    v_lshlrev_b32 v{t1}, 4, v{L}
    v_add_u32 v{t4}, {L_PS + 48*PS_STRIDE}, v{t1}
    v_add_u32 v{t1}, {48*256}, v{t1}
    v_and_b32 v{vBa+4}, 0x3fc, v{vBa+4}
    s_cmp_lg_u32 s{S_WAVE}, 9
    s_cbranch_scc1 K_b3
    global_load_dwordx2 {vr(vTg,2)}, v{vZ}, {sr(S_DBG,2)}
    s_branch K_b3
K_scan1:
    s_setprio 2
    v_lshlrev_b32 v{t0}, 4, v{L}
    ds_read_b128 v[56:59], v{t0} offset:{L_H1}
    s_waitcnt lgkmcnt(0)""")
    for i in range(4):
        a(f"    v_lshrrev_b32 v{60+i}, 16, v{56+i}")
    for i in range(4):
        a(f"    v_mad_u32_u24 v{64+i}, v{60+i}, 5, 3")
    for i in range(4):
        a(f"    v_and_b32 v{64+i}, -4, v{64+i}")
    a(f"""
    v_add_u32 v65, v64, v65
    v_add_u32 v66, v65, v66
    v_add_u32 v67, v66, v67
    v_mov_b32 v68, v67""")
    wave_scan(a, 68)
    a(f"""
    v_sub_u32 v68, v68, v67
    v_add_u32 v69, v68, v64
    v_add_u32 v70, v68, v65
    v_add_u32 v71, v68, v66
    s_mov_b32 s{S_A}, 0x10001""")
    for i in range(4):
        a(f"    v_mul_u32_u24 v{64+i}, s{S_A}, v{68+i}")
    for i in range(4):
        a(f"    v_lshl_add_u32 v{64+i}, v{56+i}, 16, v{64+i}")
    a(f"""
    ds_write_b128 v{t0}, v[64:67] offset:{L_OFF}
    s_setprio 0
K_b3:
    v_lshrrev_b32 v{t0}, 4, v{T}
    v_lshl_add_u32 v{t0}, v{t0}, 4, v{t2}
    v_add_u32 v{t0}, {L_PS}, v{t0}
    s_lshl_b32 s{S_A}, s{S_N0}, 8
    s_add_u32 s{S_A}, s{S_A}, {WS_P + (0x800000 if optval("cheat", "") else 0)}
    s_add_u32 s{S_RT}, s{S_WS}, s{S_A}
    s_addc_u32 s{S_RT+1}, s{S_WS+1}, 0
    s_lshl_b32 s{S_RT+2}, s{S_NN}, 8
    s_mov_b32 s{S_RT+3}, 0x00020000
    s_waitcnt lgkmcnt(0)
    s_barrier""")
    stamp(a, 4)
    a(f"""
    s_cmp_lt_u32 s{S_WAVE}, 10
    s_cbranch_scc1 K_nx0
    ds_read_b32 v{vOf+4}, v{vBa+4} offset:{L_OFF}
    ds_read_b128 v[76:79], v{t4}
K_nx0:
    ds_read_b128 v[72:75], v{t0}""")
    for i in range(4):
        a(f"    ds_read_b32 v{vOf+i}, v{vBa+i} offset:{L_OFF}")
    a(f"""
    s_waitcnt vmcnt(2)
    v_lshl_or_b32 v{vSrc}, v{vEa}, 16, v{vSrc}
    v_and_or_b32 v{vSrc+1}, v{vEa}, s{S_C}, v{vSrc+1}
    v_lshl_or_b32 v{vSrc+2}, v{vEa+1}, 16, v{vSrc+2}
    v_and_or_b32 v{vSrc+3}, v{vEa+1}, s{S_C}, v{vSrc+3}
    s_waitcnt lgkmcnt(4)
    buffer_store_dwordx4 v[72:75], v{t2}, {sr(S_RT,4)}, 0 offen sc1""")
    def scatter(i):
        a(f"    v_add_u32_sdwa v{vBa+i}, v{vOf+i}, v{vRk+i} {SD} src0_sel:WORD_0 src1_sel:WORD_0")
        a(f"    v_add_u32_sdwa v{vOf+i}, v{vOf+i}, v{vRk+i} {SD} src0_sel:WORD_1 src1_sel:WORD_1")
        a(f"    ds_write_b32 v{vBa+i}, v{vSrc+i} offset:{L_RS}")
        a(f"    ds_write_b8 v{vOf+i}, v{vDst+i} offset:{L_RS}")
    a(f"    s_waitcnt lgkmcnt(0)")
    for i in range(4): scatter(i)
    a(f"""
    s_waitcnt vmcnt(1)
    s_cmp_lt_u32 s{S_WAVE}, 9
    s_cbranch_scc1 K_nx2
    s_cmp_eq_u32 s{S_WAVE}, 11
    s_cbranch_scc1 K_x2
    s_cmp_eq_u32 s{S_WAVE}, 9
    s_cbranch_scc1 K_tag0
    buffer_store_dwordx4 v[76:79], v{t1}, {sr(S_RT,4)}, 0 offen sc1
    s_branch K_nx2
K_tag0:
    s_mov_b32 s{S_K}, 0
K_tagp:
    v_cmp_ne_u32 vcc, 0, v{vTg}
    s_cbranch_vccnz K_tagok
    s_add_u32 s{S_K}, s{S_K}, 1
    s_cmp_gt_u32 s{S_K}, {POLL_MAX}
    s_cbranch_scc1 K_tagok
    global_load_dwordx2 {vr(vTg,2)}, v{vZ}, {sr(S_DBG,2)} sc1
    s_waitcnt vmcnt(0)
    s_branch K_tagp
K_tagok:
    ds_write_b64 v{vZ}, {vr(vTg,2)} offset:{L_NONCE}
    s_branch K_nx2
K_x2:
    s_bfm_b64 exec, {XTRA}, 0
    v_lshl_or_b32 v{vSrc+4}, v{vEa+2}, 16, v{vSrc+4}""")
    scatter(4)
    a(f"""
    s_mov_b64 exec, -1
K_nx2:
    s_mul_i32 s{S_A}, s2, {RSTRIDE}
    s_add_u32 s{S_RR}, s{S_WS}, s{S_A}
    s_addc_u32 s{S_RR+1}, s{S_WS+1}, 0
    s_mov_b32 s{S_RR+2}, 16512
    s_mov_b32 s{S_RR+3}, 0x00020000
    v_add_u32 v{t3}, {step}, v{t2}
    s_waitcnt lgkmcnt(0)
    s_barrier""")
    stamp(a, 5)
    a(f"""
    ds_read_b128 v[0:3], v{t2} offset:{L_RS}
    ds_read_b64 v[12:13], v{vZ} offset:{L_NONCE}
    s_cmp_ge_u32 s{S_WAVE}, 5
    s_cbranch_scc1 K_co1
    ds_read_b128 v[8:11], v{t2} offset:{L_RS + step}
    s_waitcnt lgkmcnt(0)
    buffer_store_dwordx4 v[8:11], v{t3}, {sr(S_RR,4)}, 0 offen sc1
K_co1:
    s_waitcnt lgkmcnt(0)
    buffer_store_dwordx4 v[0:3], v{t2}, {sr(S_RR,4)}, 0 offen sc1
""")
    if optval("cheat", ""):
        a(f"""
    s_cmp_ge_u32 s{S_WAVE}, {optval("cheat", "")}
    s_cbranch_scc1 K_ch0
    s_lshr_b32 s{S_A}, s2, 3
    s_mul_i32 s{S_A}, s{S_A}, {781*128}
    s_add_u32 s{S_A}, s{S_A}, {WS_P}
    v_lshl_add_u32 v14, v{T}, 7, s{S_A}
    global_load_dword v14, v14, {sr(S_WS,2)}
K_ch0:""")
    a(f"""
    v_readfirstlane_b32 s{S_TAG}, v12
    v_readfirstlane_b32 s{S_TAG+1}, v13
    s_mov_b32 s3, {NLOG2E:#x}
    v_lshlrev_b32 v{t0}, 1, v{J}
    v_add_u32 v{t0}, {L_WC}, v{t0}
    s_cmp_lg_u32 s{S_WAVE}, 8
    s_cbranch_scc1 K_ntb
    s_and_b32 s{S_C}, s{S_TAG}, 0xfe000000
    s_lshl_b32 s{S_B}, s2, 11
    s_add_u32 s{S_B}, s{S_B}, {WS_TAB}
    v_lshl_add_u32 v{t1}, v{L}, 4, s{S_B}""")
    for i in range(4):
        a(f"    v_lshrrev_b32 v{68+i}, 2, v{68+i}")
        a(f"    v_lshl_or_b32 v{68+i}, v{60+i}, 13, v{68+i}")
        a(f"    v_or_b32 v{vTb+2*i}, s{S_C}, v{68+i}")
        a(f"    v_mov_b32 v{vTb+2*i+1}, s{S_TAG+1}")
    a("K_ntb:")
    if cpos == "drain": emit_consts()
    if qpos == "drain":
        emit_q(); stamp(a, 7)
    if optval("cheat", ""):
        a(f"""
    s_cmp_ge_u32 s{S_WAVE}, {optval("cheat", "")}
    s_cbranch_scc1 K_ch1
    s_waitcnt vmcnt(1)
    s_branch K_ch2
K_ch1:
    s_waitcnt vmcnt(0)
K_ch2:""")
    else:
        a("    s_waitcnt vmcnt(0)")
    a(f"""
    s_barrier""")
    stamp(a, 6)
    a(f"""
    s_cmp_eq_u32 s{S_TAG}, 0
    s_cbranch_scc1 K_slow
    s_cmp_lt_u32 s{S_WAVE}, 8
    s_cbranch_scc1 K_lb2
    s_cmp_lg_u32 s{S_WAVE}, 8
    s_cbranch_scc1 K_ntab
    global_store_dwordx4 v{t1}, {vr(vTb,4)}, {sr(S_WS,2)} sc1
    global_store_dwordx4 v{t1}, {vr(vTb+4,4)}, {sr(S_WS,2)} offset:1024 sc1
K_ntab:
    s_sub_u32 s{S_A}, s{S_WAVE}, 8
    s_lshl_b32 s{S_A}, s{S_A}, 12
    s_add_u32 s{S_B}, s{S_A}, {L_W2}
    s_mov_b32 m0, s{S_B}
    v_lshl_add_u32 v{t3}, v{L}, 4, s{S_A}
    global_load_lds_dwordx4 v{t3}, {sr(S_W2,2)}
    global_load_lds_dwordx4 v{t3}, {sr(S_W2,2)} offset:1024
    global_load_lds_dwordx4 v{t3}, {sr(S_W2,2)} offset:2048
    global_load_lds_dwordx4 v{t3}, {sr(S_W2,2)} offset:3072
    s_branch K_lbJ
K_lb2:
    s_cmp_lg_u32 s{S_WAVE}, 7
    s_cbranch_scc1 K_lbJ
    s_mov_b32 m0, {L_B2}
    v_lshlrev_b32 v{t3}, 2, v{J}
    global_load_lds_dword v{t3}, {sr(S_B2,2)}
K_lbJ:""")
    if cpos == "post": emit_consts()
    if qpos == "post": emit_q()
    a(f"""
    s_lshl_b32 s{S_B}, s{S_WAVE}, 12
    s_add_u32 s{S_B}, s{S_B}, {L_XS}
    s_mov_b32 m0, s{S_B}
    v_mov_b32 v{t5}, v{vTa}""")
    if qpos == "post": stamp(a, 7)
    vT = 0
    vN = 4
    vAr = 6
    vR = 12
    vM = 28
    vA = 32
    vK = 48
    vB = 64
    vG = 80
    a(f"""
    s_mov_b32 s{S_RR}, s{S_WS}
    s_mov_b32 s{S_RR+1}, s{S_WS+1}
    s_mov_b32 s{S_RR+2}, {WS_P + N_NODES*256}
    s_mov_b32 s{S_A}, {128*2048}
    s_mov_b32 s{S_B}, {128*RSTRIDE}
    s_mov_b32 s{S_C}, 0xfe000000
    s_movk_i32 s{S_D}, 0xfc
    s_mov_b32 s{S_K}, 0
    s_mov_b64 {mask(0)}, -1
    s_mov_b64 {mask(1)}, -1
    v_mov_b32 v{vM}, 0
    v_mov_b32 v{vM+1}, 0
K_poll:
    s_mov_b64 exec, {mask(0)}
    s_cbranch_execz K_pl0
    buffer_load_dwordx2 {vr(vT,2)}, v{t5}, {sr(S_RR,4)}, 0 offen sc1
K_pl0:
    s_mov_b64 exec, {mask(1)}
    s_cbranch_execz K_pl1
    buffer_load_dwordx2 {vr(vT+2,2)}, v{t5}, {sr(S_RR,4)}, s{S_A} offen sc1
K_pl1:
    s_mov_b64 exec, -1
    s_waitcnt vmcnt(0)""")
    for i in range(2):
        a(f"    v_xor_b32 v{vN+i}, s{S_TAG}, v{vT+2*i}")
        a(f"    v_xor_b32 v{vAr+i}, s{S_TAG+1}, v{vT+2*i+1}")
        a(f"    v_and_or_b32 v{vAr+i}, v{vN+i}, s{S_C}, v{vAr+i}")
        a(f"    v_cmp_ne_u32 {mask(i)}, 0, v{vAr+i}")
    a(f"""
    s_add_u32 s{S_K}, s{S_K}, 1
    s_or_b64 vcc, {mask(0)}, {mask(1)}
    s_cbranch_scc0 K_got
    {"s_sleep " + optval("ps", "2") if optval("ps", "2") != "0" else ""}
    s_cmp_lt_u32 s{S_K}, {POLL_MAX}
    s_cbranch_scc1 K_poll
    s_mov_b32 s{S_MODE}, 1
    s_branch K_nor2a
K_got:""")
    if DIAG:
        a(f"    v_writelane_b32 v{V_STAMP}, s{S_K}, 20")
    stamp(a, 8)
    so = ["0", sr(S_B)]
    for i in range(2):
        a(f"    v_and_b32 v{vAr+i}, 0x1fff, v{vT+2*i}")
        a(f"    v_bfe_u32 v{vT+2*i+1}, v{vT+2*i}, 13, 12")
        a(f"    v_lshl_add_u32 v{vAr+i}, v{vAr+i}, 2, v{vSb}")
        a(f"    v_sub_u32 v{vN+i}, v{vT+2*i+1}, v{vG4}")
        a(f"    v_lshl_add_u32 v{vAr+2+i}, v{vT+2*i+1}, 2, v{vAr+i}")
        a(f"    v_cmp_lt_i32 {mask(4*i)}, 0, v{vN+i}")
        a(f"    v_lshl_add_u32 v{vAr+i}, v{vG4}, 2, v{vAr+i}")
        a(f"    v_add_u32 v{vAr+2+i}, v{vAr+2+i}, v{vG4}")
        a(f"    s_or_b64 exec, {mask(4*i)}, 1")
        a(f"    buffer_load_dword v{vM+i}, v{vAr+2+i}, {sr(S_RR,4)}, {so[i]} offen")
        a(f"    buffer_load_dwordx4 {vr(vR+4*i,4)}, v{vAr+i}, {sr(S_RR,4)}, {so[i]} offen")
        a(f"    s_mov_b64 exec, -1")
    for i in range(2):
        for k in range(1, 4):
            a(f"    v_cmp_lt_i32 {mask(4*i+k)}, {k}, v{vN+i}")
    a(f"""
    v_max_i32 v{t1}, v{vN}, v{vN+1}
    v_cmp_lt_i32 vcc, 24, v{t1}
    s_mov_b32 s{S_K}, 0
    s_cbranch_vccz K_nor2a
    s_mov_b32 s{S_K}, 1""")
    for i in range(2):
        a(f"    buffer_load_dword v{vM+2+i}, v{vAr+2+i}, {sr(S_RR,4)}, {so[i]} offen offset:24")
        a(f"    buffer_load_dwordx4 {vr(vR+8+4*i,4)}, v{vAr+i}, {sr(S_RR,4)}, {so[i]} offen offset:96")
        for k in range(4):
            a(f"    v_cmp_lt_i32 {mask(8+4*i+k)}, {24+k}, v{vN+i}")
    a(f"""
    v_cmp_lt_i32 vcc, 48, v{t1}
    s_cbranch_vccz K_nor2a
    s_mov_b32 s{S_MODE}, 1
K_nor2a:
    v_mov_b32 v{t4}, {L_FLAG}
    v_mov_b32 v{t0}, 4
    s_cmp_eq_u32 s{S_MODE}, 0
    s_cbranch_scc1 K_nofl
    ds_write_b32 v{t4}, v{t0}
K_nofl:
    s_waitcnt lgkmcnt(0)
    s_barrier
    ds_read_b32 v{t3}, v{t4}
    s_add_u32 s{S_RX}, s{S_WS}, {WS_P - 3072}
    s_addc_u32 s{S_RX+1}, s{S_WS+1}, 0
    s_and_b32 s{S_RX+1}, s{S_RX+1}, 0xffff
    s_or_b32 s{S_RX+1}, s{S_RX+1}, 0x01000000
    s_mov_b32 s{S_RX+2}, {N_NODES}
    s_mov_b32 s{S_RX+3}, 0x00020000
    s_waitcnt lgkmcnt(0)
    v_cmp_ne_u32 vcc, 0, v{t3}
    s_cbranch_vccnz K_slow""")
    pf0 = int(optval("pf", "8"))
    a(f"""
    s_cmp_lt_u32 s{S_WAVE}, {pf0}
    s_cbranch_scc1 K_npf
    buffer_load_dword v{t5}, v{vPf}, {sr(S_RR,4)}, 0 offen
    s_waitcnt vmcnt(1)
    s_branch K_pfJ
K_npf:
    s_waitcnt vmcnt(0)
K_pfJ:""")
    stamp(a, 9)
    def rec_reg(k): return vR + k
    def count_cols(ks):
        for k in ks:
            a(f"    v_and_b32_sdwa v{vA+k}, v{vM+k//4}, s{S_D} {SD} src0_sel:BYTE_{k%4} src1_sel:DWORD")
        for k in ks:
            a(f"    s_mov_b64 exec, {mask(k)}")
            a(f"    ds_add_rtn_u32 v{vK+k}, v{vA+k}, v{t0}")
        a(f"    s_mov_b64 exec, -1")
    count_cols(range(8))
    a(f"""
    s_cmp_eq_u32 s{S_K}, 0
    s_cbranch_scc1 K_nor2b""")
    count_cols(range(8, 16))
    a(f"""
K_nor2b:
    v_lshlrev_b32 v{t1}, 2, v{L}
    v_cmp_gt_u32 vcc, s{S_NN}, v{L}
    s_waitcnt lgkmcnt(0)
    s_barrier""")
    stamp(a, 10)
    a(f"""
    ds_read_b32 v{V_CNT}, v{t1}
    s_waitcnt lgkmcnt(0)
    v_add_u32 v{vP}, 12, v{V_CNT}
    v_and_b32 v{vP}, -16, v{vP}
    v_max_u32 v{vP}, 0x80, v{vP}
    v_cndmask_b32 v{vP}, 0, v{vP}, vcc
    v_mov_b32 v{vS}, v{vP}""")
    wave_scan(a, vS)
    a(f"""
    s_nop 0
    v_readlane_b32 s{S_A}, v{vS}, 63
    v_sub_u32 v{vS}, v{vS}, v{vP}
    ds_write_b32 v{t1}, v{vS} offset:{L_SX}
    s_cmp_gt_u32 s{S_A}, {ENT_CAP*4}
    s_cbranch_scc1 K_slow""")
    def place_cols(ks, mid=None):
        ks = list(ks)
        for k in ks:
            a(f"    ds_read_b32 v{vB+k}, v{vA+k} offset:{L_SX}")
        if mid: a(mid)
        for n, k in enumerate(ks):
            if n % 2 == 0:
                a(f"    s_waitcnt lgkmcnt({len(ks)-2-n})")
            a(f"    v_add_u32 v{vK+k}, v{vB+k}, v{vK+k}")
        for k in ks:
            a(f"    s_mov_b64 exec, {mask(k)}")
            a(f"    ds_write_b32 v{vK+k}, v{rec_reg(k)} offset:{L_RL}")
        a(f"    s_mov_b64 exec, -1")
    place_cols(range(8), f"""
    s_add_u32 s{S_A}, s{S_A}, 127
    s_lshr_b32 s{S_TT}, s{S_A}, 7            ; tiles
    s_mul_i32 s{S_T0}, s{S_SLOT}, s{S_TT}
    s_add_u32 s{S_NT}, s{S_T0}, s{S_TT}
    s_mul_i32 s{S_T0}, s{S_T0}, 43691
    s_mul_i32 s{S_NT}, s{S_NT}, 43691
    s_lshr_b32 s{S_T0}, s{S_T0}, 19
    s_lshr_b32 s{S_NT}, s{S_NT}, 19
    s_sub_u32 s{S_NT}, s{S_NT}, s{S_T0}""")
    a(f"""
    s_cmp_eq_u32 s{S_K}, 0
    s_cbranch_scc1 K_nor2c
    s_waitcnt lgkmcnt(0)""")
    place_cols(range(8, 16))
    thr = [int(x) for x in optval("thr", "5_3_1").split("_")]
    a(f"""
K_nor2c:
    s_lshl_b32 s{S_A}, s{S_T0}, 7            ; ts*4
    s_add_u32 s{S_C}, s{S_A}, {L_RL}
    v_add_u32 v{V_AIDX}, s{S_C}, v{V_AIDX}
    v_cmp_ge_u32 {mask(0)}, s{S_A}, v{vS}
    v_subrev_u32 v{t0}, s{S_A}, v{vS}
    s_and_b64 {mask(0)}, {mask(0)}, vcc
    s_bcnt1_i32_b64 s{S_B}, {mask(0)}
    s_sub_u32 s{S_B}, s{S_B}, 1              ; n
    s_andn2_b64 {mask(0)}, vcc, {mask(0)}
    s_waitcnt lgkmcnt(0)
    s_barrier""")
    stamp(a, 11)
    for h in idx_reads(0): a(h)
    a(f"""
    v_add_u32 v{V_AENT}, s{S_C}, v{V_AENT}
    v_xor_b32 v{t3}, s{S_B}, v{HH}
    v_and_b32 v{t3}, 1, v{t3}
    s_lshl_b32 s{S_A}, s{S_B}, 9
    s_add_u32 s{S_A}, s{S_A}, {L_QT}
    v_lshl_add_u32 v{V_AQ}, v{t3}, 9, s{S_A}
    v_lshl_add_u32 v{V_AQ}, v{J}, 2, v{V_AQ}
    s_waitcnt lgkmcnt(0)""")
    for h in dma_ops(0): a(h)
    a(f"""
    s_cmp_ge_u32 s{S_WAVE}, {ndual}
    s_cbranch_scc1 K_e1
    s_add_u32 m0, m0, {L_T2 - L_XS}
    s_nop 0""")
    for h in dma_ops(1): a(h)
    a("K_e1:")
    for h in ent_reads(0, True): a(h)
    a(f"""
    v_bfe_u32 v{t4}, v{t0}, 4, 3
    v_add_u32 v{t4}, 1, v{t4}
    v_mul_u32_u24 v{t4}, {VAR_SIZE}, v{t4}
    v_lshrrev_b32 v{t0}, 7, v{t0}
    v_min_u32 v{t0}, 63, v{t0}
    v_cndmask_b32 v{t0}, 63, v{t0}, {mask(0)}
    v_lshlrev_b32 v{t0}, 2, v{t0}
    v_mov_b32 v{V_TAB}, 0
    ds_permute_b32 v{V_TAB}, v{t0}, v{t4}
    s_add_u32 s{S_A}, s{S_B}, s{S_SLOT}
    s_mul_i32 s{S_A}, s{S_A}, {ST_STRIDE}
    s_add_u32 s{S_A}, s{S_A}, {L_ST}
    v_lshl_add_u32 v{V_AS}, v{L}, 2, s{S_A}
    v_xor_b32 v{t3}, 1, v{t3}
    v_lshlrev_b32 v{V_INCQ}, 10, v{t3}
    v_cvt_f32_u32 v{vOne}, s{S_TT}
    v_rcp_f32 v{vOne}, v{vOne}
    v_add3_u32 v{vP}, v{vS}, v{vP}, -4
    v_lshrrev_b32 v{vS}, 7, v{vS}
    v_lshrrev_b32 v{vP}, 7, v{vP}
    v_cvt_f32_u32 v{vS}, v{vS}
    v_cvt_f32_u32 v{vP}, v{vP}
    v_add_f32 v{vS}, {f32bits((NW-0.5)/NW):#x}, v{vS}
    v_add_f32 v{vP}, {f32bits((NW-0.5)/NW):#x}, v{vP}
    v_mul_f32 v{vOne}, {f32bits(NW):#x}, v{vOne}
    v_mul_f32 v{vS}, v{vS}, v{vOne}
    v_mul_f32 v{vP}, v{vP}, v{vOne}
    v_cvt_u32_f32 v{vS}, v{vS}
    v_cvt_u32_f32 v{vP}, v{vP}
    v_sub_u32 v{vP}, v{vP}, v{vS}
    v_add_u32 v{vS}, v{vS}, v{L}
    v_lshl_or_b32 v{vS}, v{vP}, 8, v{vS}
    v_cndmask_b32 v{vS}, {ZROW}, v{vS}, vcc
    v_lshl_or_b32 v{V_CNT}, v{vS}, 16, v{V_CNT}
    ; jump table: entry offset inside a variant slot (priority steps near the end), exit at lane nt
    v_sub_u32 v{t0}, s{S_NT}, v{L}
    v_mov_b32 v{t3}, 64""")
    for i, th in enumerate(thr):
        a(f"    v_cmp_eq_u32 {mask(i)}, {th}, v{t0}")
    a(f"    v_cmp_eq_u32 {mask(3)}, 0, v{t0}")
    a(f"    v_mov_b32 v{t4}, K_exit - K_vbase")
    for i, th in enumerate(thr):
        a(f"    v_cndmask_b32 v{t3}, v{t3}, {44 + 8*i}, {mask(i)}")
    a(f"""
    s_waitcnt lgkmcnt(0)
    v_add_u32 v{V_TAB}, v{V_TAB}, v{t3}
    v_cndmask_b32 v{V_TAB}, v{V_TAB}, v{t4}, {mask(3)}
    s_mov_b32 s{S_K}, 1
    s_setprio 3
    v_readlane_b32 s{S_J}, v{V_TAB}, 0
    s_bitcmp1_b32 s{S_B}, 0
    s_cselect_b64 {sr(S_PAR,2)}, -1, 0
    s_movk_i32 s{S_PAD}, {PADREC}""")
    for h in mask_load(): a(h)
    a(f"""
    s_cmp_ge_u32 s{S_WAVE}, {ndual}
    s_cbranch_scc1 K_e2
    s_waitcnt vmcnt(4)""")
    stamp(a, 12)
    for h in tr_reads(0): a(h)
    a(f"    s_waitcnt vmcnt(0)")
    for h in tr_reads(1): a(h.replace(f"v{V_AA} ", f"v{vAA2} "))
    a(f"""
    s_add_u32 s{S_J}, s{S_MO}, 64 + K_vhN - K_varN
    s_waitcnt lgkmcnt(0)
    s_sub_u32 m0, m0, {L_T2 - L_XS}
    s_branch K_e4
K_e2:
    s_waitcnt vmcnt(0)""")
    stamp(a, 12)
    for h in tr_reads(0): a(h)
    a(f"    s_waitcnt lgkmcnt(0)")
    for h in dma_ops(1): a(h)
    a("K_e4:")
    for h in onehot_ops(): a(h)
    a(f"""
    s_add_u32 s{S_J}, s{S_J}, s{S_PC}
    s_addc_u32 s{S_J+1}, s{S_PC+1}, 0
    s_cmp_eq_u32 s{S_NT}, 0
    s_cbranch_scc1 K_exit""")
    a(small(0)); a(small(1))
    a("    s_nop 7")
    stamp(a, 13); stamp(a, 14, True)
    a(f"    s_setpc_b64 {sr(S_J,2)}")
    a(f".p2align 6")
    a(f"K_vbase:")
    for vi, b in enumerate([None] + list(range(8))):
        tile_variant(a, vi, b)
    a(f".p2align 3")
    a(f"K_exit:")
    stamp(a, 15); stamp(a, 16, True)
    for cts in ((0, 1), (2, 3)):
        flush_ops(a, cts)
        a("    s_nop 1")
        flush_ops2(a, cts)
    a(f"""
    v_cmp_eq_f32 vcc, 0, v{V_MN}
    s_cbranch_vccz K_join
    v_mov_b32 v64, 1
    v_mov_b32 v65, {L_FLAG}
    ds_write_b32 v65, v64
K_join:
    s_cmp_ge_u32 s{S_WAVE}, 4
    s_cbranch_scc1 K_idle
    v_and_b32 v136, 15, v{L}
    v_lshrrev_b32 v137, 4, v{L}              ; g
    s_lshl_b32 s{S_A}, s{S_WAVE}, 4
    v_add_u32 v136, s{S_A}, v136             ; node
    v_lshlrev_b32 v138, 2, v136
    ds_bpermute_b32 v139, v138, v{V_CNT}
    v_and_b32 v138, 16, v{L}
    v_lshlrev_b32 v138, 2, v138
    v_lshl_add_u32 v138, v{HH}, 5, v138
    v_bfe_u32 v140, v{L}, 2, 2
    v_add_u32 v140, v140, v138
    v_lshlrev_b32 v140, 7, v140
    v_and_b32 v141, 3, v{L}
    v_lshl_add_u32 v140, v141, 4, v140
    v_add_u32 v140, {L_W2}, v140""")
    for ot in range(4):
        for ks in range(4):
            for h in range(2):
                a(f"    ds_read_b64_tr_b16 {vr(16*ot+4*ks+2*h,2)}, v140 offset:{1024*ks+512*h+64*(ot>>1)+8*(ot&1)}")
    a(f"""
    v_lshlrev_b32 v141, 4, v137
    v_add_u32 v140, {L_B2}, v141
    ds_read_b128 v[128:131], v140
    ds_read_b128 v[132:135], v140 offset:64
    v_lshl_add_u32 v141, v136, 7, v141
    s_lshl_b32 s{S_A}, s{S_N0}, 7
    s_add_u32 s{S_RT}, s{S_OUT}, s{S_A}
    s_addc_u32 s{S_RT+1}, s{S_OUT+1}, 0
    s_lshl_b32 s{S_RT+2}, s{S_NN}, 7
    s_mov_b32 s{S_RT+3}, 0x00020000
    s_mov_b32 s3, {NLN2:#x}
    s_movk_i32 s{S_K}, {ST_STRIDE}
    s_waitcnt lgkmcnt(0)
    v_bfe_u32 v142, v139, 16, 8
    v_lshrrev_b32 v143, 24, v139
    v_and_b32 v139, 0xffff, v139
    v_cvt_f32_u32 v139, v139
    v_mul_f32 v139, {f32bits(0.25 * -1.4426950408889634):#x}, v139
    v_lshlrev_b32 v138, 2, v138
    v_add_u32 v138, {L_ST}, v138
    v_mad_u32_u24 v142, v142, s{S_K}, v138
    v_add_u32 v138, {ZROW*ST_STRIDE}, v138
    v_cmp_lt_u32 vcc, 0, v143
    v_add_u32 v144, {ST_STRIDE}, v142
    v_mov_b32 v146, 0x207
    v_cndmask_b32 v145, v138, v144, vcc""")
    vO = 148
    accs = [148, 149, 150, 151, 152, 153] + list(range(156, 166))
    ACC = [112, 116, 120, 124]
    for q in range(8):
        a(f"    v_lshlrev_b32 v{112+2*q}, 16, v{128+q}")
        a(f"    v_and_b32 v{113+2*q}, 0xffff0000, v{128+q}")
    for q in range(16):
        a(f"    v_mul_f32 v{112+q}, v139, v{112+q}")
    a(f"    s_barrier")
    stamp(a, 17)
    S0 = 64; S1 = 96
    for ks in range(2):
        pass
    a(f"    s_mov_b32 s{S_A}, 1")
    for ks in range(4):
        a(f"    ds_read_b128 {vr(S0+8*ks,4)}, v142 offset:{32*ks}")
        a(f"    ds_read_b128 {vr(S0+4+8*ks,4)}, v142 offset:{32*ks+16}")
    a(f"K_rows:")
    tmp = [96, 104, 128, 156]
    for ks in range(4):
        a(f"    ds_read_b128 {vr(tmp[ks],4)}, v145 offset:{32*ks}")
        a(f"    ds_read_b128 {vr(tmp[ks]+4,4)}, v145 offset:{32*ks+16}")
    a(f"""
    v_cmp_lt_u32 vcc, s{S_A}, v143
    v_add_u32 v144, {ST_STRIDE}, v144
    s_add_u32 s{S_A}, s{S_A}, 1""")
    for ks in range(4):
        a(f"    s_waitcnt lgkmcnt({6-2*ks})")
        for q in range(4):
            a(f"    v_pk_add_f32 {vr(S0+8*ks+2*q,2)}, {vr(S0+8*ks+2*q,2)}, {vr(tmp[ks]+2*q,2)}")
    a(f"""
    v_cndmask_b32 v145, v138, v144, vcc
    s_cbranch_vccnz K_rows""")
    def cv(ks):
        for q in range(4):
            a(f"    v_cvt_pk_bf16_f32 v{96+4*ks+q}, v{S0+8*ks+2*q}, v{S0+1+8*ks+2*q}")
    def mf(ks, ot):
        d = vr(ACC[ot], 4)
        a(f"    v_mfma_f32_16x16x32_bf16 {d}, {vr(16*ot+4*ks,4)}, {vr(96+4*ks,4)}, {d}")
    cv(0); cv(1)
    for ks in range(4):
        for ot in range(4):
            mf(ks, ot)
        if ks < 2: cv(ks + 2)
    a("    s_nop 4")
    for q in range(16):
        a(f"    v_mul_f32 v{64+q}, s3, v{112+q}")
    for q in range(8):
        a(f"    v_cvt_pk_bf16_f32 v{80+q}, v{64+2*q}, v{65+2*q}")
    osc = optval("o_", "sc1")
    a(f"    buffer_store_dwordx4 v[80:83], v141, {sr(S_RT,4)}, 0 offen {osc}")
    a(f"    buffer_store_dwordx4 v[84:87], v141, {sr(S_RT,4)}, 0 offen offset:64 {osc}")
    for q in range(16):
        a(f"    v_cmp_class_f32 {mask(q)}, v{64+q}, v146")
    for q in range(1, 16):
        a(f"    s_or_b64 {mask(0)}, {mask(0)}, {mask(q)}")
    a(f"""
    s_cbranch_scc0 K_fin
    v_mov_b32 v64, 1
    v_mov_b32 v65, {L_FLAG}
    ds_write_b32 v65, v64
    s_branch K_fin
K_idle:
    s_waitcnt lgkmcnt(0)
    s_barrier                                ; B9
K_fin:
    v_mov_b32 v65, {L_FLAG}
    s_waitcnt lgkmcnt(0)
    s_barrier                                ; B10
    ds_read_b32 v64, v65
    s_waitcnt lgkmcnt(0)
    v_cmp_ne_u32 vcc, 0, v64
    s_cbranch_vccnz K_slow""")
    if DIAG:
        a("    s_waitcnt vmcnt(0)")
        stamp(a, 18); stamp(a, 19, True)
        a(f"""
    v_writelane_b32 v{V_STAMP}, s{S_NT}, 21
    s_lshl_b32 s{S_A}, s2, 4
    s_add_u32 s{S_A}, s{S_A}, s{S_WAVE}
    s_lshl_b32 s{S_A}, s{S_A}, 8
    s_add_u32 s{S_A}, s{S_A}, {WS_STAMP}
    v_lshl_add_u32 v64, v{L}, 2, s{S_A}
    s_mov_b64 exec, 0xffffffff
    global_store_dword v64, v{V_STAMP}, {sr(S_WS,2)}
    global_store_dword v64, v{V_TRACE}, {sr(S_WS,2)} offset:128""")
    a(f"""
K_end:
    s_endpgm
K_slow:
    s_setprio 0
    s_mov_b32 s16, s{S_N0}
    s_mov_b32 s17, s{S_NN}
    s_mov_b32 s18, s{S_WAVE}""")
    gen_slow(a, 16, 17, 18, L, NLOG2E, NW=NW)
    a("    s_endpgm")

def main():
    global DIAG
    out = sys.argv[1]
    DIAG = "diag" in sys.argv[2:] or "lite" in sys.argv[2:]
    OPT.update(sys.argv[2:])
    a = Asm()
    a(f"""; Edge-featured MPNN layer: out[n] = sum_(e: dst=n) (silu([x[src],x[dst],e] w1 + b1) w2 + b2)
; @launch grid=(256,1,1) block=({NT_},1,1) lds={L_END}
.amdgcn_target "amdgcn-amd-amdhsa--gfx950"
.text""")
    gen_kernel(a)
    a(f"""
.section .rodata,"a"
.p2align 6
.amdhsa_kernel {KNAME}
  .amdhsa_next_free_vgpr {NVGPR}
  .amdhsa_next_free_sgpr 102
  .amdhsa_accum_offset {NVGPR}
  .amdhsa_group_segment_fixed_size 0
  .amdhsa_kernarg_size 88
  .amdhsa_user_sgpr_count 2
  .amdhsa_user_sgpr_kernarg_segment_ptr 1
  .amdhsa_system_sgpr_workgroup_id_x 1
  .amdhsa_float_denorm_mode_32 3
.end_amdhsa_kernel""")
    open(out, "w").write(a.text())

if __name__ == "__main__":
    main()
```

```python
import sys, struct
from slow import gen_slow

NAME = "standalone__edge_featured_mpnn_mpnn__graph"
KNAME = NAME + "_kernel"
N_NODES = 12500
NB = 49
NW = 12
NT_ = 64 * NW
MAINE = 4 * NT_
XTRA = 53
RSTRIDE = 16640

WS_REC = 0
WS_TAB = 0x420000
WS_P = 0x500000
WS_STAMP = 0xA00000

L_FLAG = 288
L_NONCE = 296
L_SX = 4096
L_Z = 320
L_RL = 4352
ENT_CAP = 3584
L_ST = L_RL + (ENT_CAP + 64) * 4
ST_STRIDE = 528
ZROW = NB + NW
L_QT = (L_ST + (ZROW + 1) * ST_STRIDE + 255) // 256 * 256
L_XS = L_QT + 56 * 512
L_W2 = L_XS + NW * 4096
L_B2 = L_W2 + 16384
L_T2 = L_B2 + 256
L_END = L_T2 + 16384
L_RS = L_ST
L_H1 = L_ST + 16640
L_OFF = L_H1 + 1024
L_W1 = L_XS
L_WC = L_XS + 32768
L_PS = L_WC + 512
L_XR = L_W2
PS_STRIDE = 272
assert L_XS % 256 == 0
assert L_END <= 163840 and L_H1 + 3072 <= L_ST + ZROW * ST_STRIDE and L_OFF + 1024 < 65536 and L_PS + 56 * PS_STRIDE <= L_W2

def f32bits(x):
    return struct.unpack("<I", struct.pack("<f", x))[0]
NLOG2E = f32bits(-1.4426950408889634)
NLN2 = f32bits(-0.6931471805599453)
PADREC = 0x3FFF
POLL_MAX = 4000

class Asm:
    def __init__(self):
        self.l = []
    def __call__(self, s=""):
        for x in s.strip("\n").split("\n"):
            self.l.append(x)
    def text(self):
        return "\n".join(self.l) + "\n"

def vr(a, n=1):
    return f"v{a}" if n == 1 else f"v[{a}:{a+n-1}]"
def sr(a, n=1):
    return f"s{a}" if n == 1 else f"s[{a}:{a+n-1}]"

DIAG = False
OPT = set()
def optval(prefix, default):
    for o in OPT:
        if o.startswith(prefix):
            return o[len(prefix):]
    return default

V_D = 0; V_E = 64; V_A5 = 96; V_B5 = 98; V_ND = 106; V_T = 122; V_R = 126; V_O = 128; V_IX = 132
V_AA = 140; V_AIDX = 141; V_AENT = 142; V_AQ = 143; V_INCQ = 144; V_AS = 145; V_MN = 146; V_PSEL = 147
V_TAB = 148; V_CNT = 149; V_B2 = 150; V_LANE = 154; V_TID = 155
V_J = 156; V_HH = 157
V_STAMP = 167; V_TRACE = 166
NVGPR = 168
S_X = 4; S_E = 6; S_SRC = 8; S_DST = 10; S_W1 = 12; S_B1 = 14; S_W2 = 16; S_B2 = 18; S_OUT = 20; S_DBG = 22; S_WS = 24
S_BIN = 26; S_N0 = 27; S_NN = 28; S_WAVE = 29; S_MODE = 30; S_K = 31; S_PC = 32; S_J = 34
S_RX = 36; S_RT = 40; S_RR = 44; S_P = 48
S_T0 = 56; S_NT = 57; S_TT = 58; S_SLOT = 59; S_A = 60; S_B = 61; S_C = 62; S_D = 63; S_TAG = 64
S_M = 66
S_OH = 66; S_PAR = 68; S_PAD = 70; S_MO = 71
def mask(k): return sr(S_M + 2*k, 2)

def stamp(a, k, real=False):
    if optval("spin", "") != "":
        if int(optval("spin", "")) == k:
            a("    s_memrealtime s[100:101]\n    s_waitcnt lgkmcnt(0)")
        return
    if not DIAG:
        return
    if "lite" in OPT and k not in (14, 16, 19):
        return
    a(f"    {'s_memrealtime' if real else 's_memtime'} s[98:99]")
    a(f"    s_waitcnt lgkmcnt(0)")
    a(f"    v_writelane_b32 v{V_STAMP}, s98, {k}")

def wave_scan(a, v):
    for sh in (1, 2, 4, 8):
        a(f"    s_nop 1")
        a(f"    v_add_u32_dpp v{v}, v{v}, v{v} row_shr:{sh} row_mask:0xf bank_mask:0xf")
    a(f"    s_nop 1")
    a(f"    v_add_u32_dpp v{v}, v{v}, v{v} row_bcast:15 row_mask:0xa bank_mask:0xf")
    a(f"    s_nop 1")
    a(f"    v_add_u32_dpp v{v}, v{v}, v{v} row_bcast:31 row_mask:0xc bank_mask:0xf")

SD = "dst_sel:DWORD dst_unused:UNUSED_PAD"

def small(c):
    d = vr(V_D + 16*c, 16)
    return f"    v_mfma_f32_32x32x8_bf16 {d}, {vr(V_A5,2)}, {vr(V_B5+2*c,2)}, {d}"
def tr_reads(h):
    return [f"    ds_read_b64_tr_b16 {vr(V_D+16*(2*h+k)+2*u,2)}, v{V_AA} offset:{512*u+64*k}" for u in range(8) for k in range(2)]
def ent_reads(off, q):
    h = [f"    ds_read_b32 v{V_A5+1}, v{V_AENT} offset:{off}"]
    if q:
        h += [f"    ds_read_b32 v{V_B5+2*c}, v{V_AQ} offset:{128*c}" for c in range(4)]
    return h
def idx_reads(off):
    return [f"    ds_read_u16 v{V_IX+2*m}, v{V_AIDX} offset:{off + 32*m}" for m in range(4)]
def dma_ops(h):
    return [f"    buffer_load_dwordx4 {vr(V_IX+2*m,2)}, {sr(S_RX,4)}, s{S_P+4*h+m} idxen offen offset:{1024*m} lds" for m in range(4)]

def x_phase(a, mf_cts, ex_cts, head, pre, plain, tail):
    es = [f"    v_exp_f32 v{V_E+16*k+2*u+b}, v{V_D+16*c+2*u+b}" for u in range(8) for k, c in enumerate(ex_cts) for b in range(2)]
    n1 = 22
    for h in head: a(h)
    for e in es[:n1-(4 if pre else 2)]: a(e)
    for p in plain: a(p)
    a(f"    s_waitcnt lgkmcnt(0)")
    if pre:
        a(pre[0]); a(es[n1-4]); a(pre[1]); a(pre[2]); a(es[n1-3]); a(pre[3])
    for e in es[n1-2:n1]: a(e)
    a(small(mf_cts[0]))
    for e in es[n1:n1+4]: a(e)
    a(small(mf_cts[1]))
    for e in es[n1+4:]: a(e)
    for t in tail: a(t)
    a(".p2align 3")

def flush_ops(a, cts):
    for k, c in enumerate(cts):
        D = V_ND + 4*c + 2
        a(f"    v_mul_f32 v{V_R+k}, v{D}, v{D+1}")
    for k, c in enumerate(cts):
        N = V_ND + 4*c; D = N + 2
        a(f"    v_pk_mul_f32 {vr(V_O+2*k,2)}, {vr(N,2)}, {vr(D,2)} op_sel:[0,1] op_sel_hi:[1,0]")
    for k, c in enumerate(cts):
        a(f"    v_rcp_f32 v{V_R+k}, v{V_R+k}")
    for k, c in enumerate(cts):
        a(f"    v_add_f32 v{V_O+2*k}, v{V_O+2*k}, v{V_O+2*k+1}")
    for k, c in enumerate(cts):
        a(f"    v_mul_f32 v{V_O+2*k}, v{V_O+2*k}, v{V_R+k}")
def flush_ops2(a, cts):
    a(f"    v_permlane32_swap_b32 v{V_O}, v{V_O+2}")
    a(f"    v_min3_f32 v{V_MN}, v{V_MN}, v{V_R}, v{V_R+1}")
    a(f"    v_add_f32 v{V_O}, v{V_O}, v{V_O+2}")
    a(f"    ds_write_b32 v{V_AS}, v{V_O} offset:{128*cts[0]}")

def y_phase(a, cts, b):
    nsrc = [V_ND + 4*c for c in cts]
    for u in range(8):
        if u == b:
            flush_ops(a, cts)
            for k, c in enumerate(cts):
                a(f"    v_pk_add_f32 {vr(V_ND+4*c+2,2)}, {vr(V_E+16*k+2*u,2)}, 1.0 op_sel_hi:[1,0]")
            flush_ops2(a, cts)
            for k, c in enumerate(cts):
                p = V_D + 16*c + 2*u
                if u == 7:
                    a(f"    v_pk_mov_b32 {vr(V_ND+4*c,2)}, {vr(p,2)}, {vr(p,2)} op_sel:[0,1]")
                else:
                    nsrc[k] = p
            continue
        for k, c in enumerate(cts):
            a(f"    v_pk_fma_f32 {vr(V_T+2*k,2)}, {vr(V_D+16*c+2*u,2)}, {vr(V_ND+4*c+2,2)}, {vr(nsrc[k],2)}")
        for k, c in enumerate(cts):
            D = V_ND + 4*c + 2
            a(f"    v_pk_fma_f32 {vr(D,2)}, {vr(D,2)}, {vr(V_E+16*k+2*u,2)}, {vr(D,2)}")
        for k, c in enumerate(cts):
            a(f"    v_pk_fma_f32 {vr(V_ND+4*c,2)}, {vr(nsrc[k],2)}, {vr(V_E+16*k+2*u,2)}, {vr(V_T+2*k,2)}")
            nsrc[k] = V_ND + 4*c

def onehot_ops():
    return [f"    v_cmp_ne_u32 vcc, s{S_PAD}, v{V_A5+1}",
            f"    s_xor_b64 {sr(S_OH,2)}, {sr(S_OH,2)}, {sr(S_PAR,2)}",
            f"    s_and_b64 vcc, vcc, {sr(S_OH,2)}",
            f"    v_cndmask_b32 v{V_A5}, 0, v{V_PSEL}, vcc"]
def mask_load():
    return [f"    s_sub_u32 s{S_MO}, s{S_J}, 4", f"    s_andn2_b32 s{S_MO}, s{S_MO}, 63",
            f"    s_load_dwordx2 {sr(S_OH,2)}, {sr(S_PC,2)}, s{S_MO}"]
def row_mask(b):
    sw = lambda i: (i & 0x19) | ((i & 2) << 1) | ((i & 4) >> 1)
    return sum(1 << i for i in range(32) if b is None or sw(i) < 4*b)

VAR_SIZE = 1792
def tile_variant(a, vi, b):
    name = "N" if b is None else str(b)
    a(f".org K_vbase + {VAR_SIZE*vi}, 0")
    a(f".long {row_mask(b):#x}, {row_mask(b) ^ 0xffffffff:#x}")
    a(f".org K_vbase + {VAR_SIZE*vi + 64 - 20}, 0")
    a(f"    s_setprio 2\n    s_branch K_var{name}\n    s_setprio 1\n    s_branch K_var{name}\n    s_setprio 0")
    a(f"K_var{name}:")
    bnd = b is not None
    if "trace" in OPT:
        a(f"    s_memtime s[98:99]\n    s_mov_b32 s{S_A}, m0\n    s_mov_b32 m0, s{S_K}\n    s_waitcnt lgkmcnt(0)")
        a(f"    v_writelane_b32 v{V_TRACE}, s98, m0\n    s_mov_b32 m0, s{S_A}")
    plain0 = []
    if bnd:
        plain0 = [f"    v_add_u32 v{V_AQ}, v{V_AQ}, v{V_INCQ}", f"    v_xor_b32 v{V_INCQ}, 0x400, v{V_INCQ}"]
    plain0.append(f"    v_readlane_b32 s{S_J}, v{V_TAB}, s{S_K}")
    x_phase(a, (2, 3), (0, 1), ["    s_waitcnt vmcnt(0)"] + tr_reads(1) + [f"K_vh{name}:"] + idx_reads(128), [], plain0,
            dma_ops(0) + [f"    s_add_u32 s{S_K}, s{S_K}, 1"] + mask_load() + ([f"    s_not_b64 {sr(S_PAR,2)}, {sr(S_PAR,2)}"] if bnd else []))
    y_phase(a, (0, 1), b)
    plain1 = [f"    v_add_u32 v{V_AENT}, 0x80, v{V_AENT}", f"    v_add_u32 v{V_AIDX}, 0x80, v{V_AIDX}"]
    x_phase(a, (0, 1), (2, 3), ["    s_waitcnt vmcnt(0)"] + ent_reads(128, bnd) + tr_reads(0),
            onehot_ops(), plain1,
            dma_ops(1) + [f"    s_add_u32 s{S_J}, s{S_J}, s{S_PC}", f"    s_addc_u32 s{S_J+1}, s{S_PC+1}, 0"])
    y_phase(a, (2, 3), b)
    if bnd:
        a(f"    v_add_u32 v{V_AS}, {ST_STRIDE}, v{V_AS}")
    a(f"    s_setpc_b64 {sr(S_J,2)}")

def gen_kernel(a):
    L = V_LANE; T = V_TID; J = V_J; HH = V_HH
    t0, t1, t2, t3, t4, t5 = 158, 159, 160, 161, 162, 163
    vDst = 0
    vSrc = 8
    vEa = 14
    vBa = 20
    vRk = 26
    vOf = 32
    vX = 40
    vWf = 56
    vAc = 72
    vTb = 88
    vZ = 128
    vPad = 56
    vWa = 38; vXa = 88; vTg = 18; vTa = 39; vC8 = 37; vWp = 31
    vG4 = 164; vSb = 165
    vS = 122; vP = 123; vOne = 124; vAA2 = 125; vPf = 126
    a(f"""
.p2align 8
.globl {KNAME}
.type {KNAME},@function
{KNAME}:
    s_cmp_ge_u32 s2, 256
    s_cbranch_scc1 K_end
    s_load_dwordx8 s[4:11], s[0:1], 0
    s_load_dwordx8 s[12:19], s[0:1], 32      ; w1, b1, w2, b2
    s_load_dwordx4 s[20:23], s[0:1], 64
    s_load_dwordx2 s[24:25], s[0:1], 80      ; ws
    s_memrealtime {sr(S_TAG,2)}
    v_lshrrev_b32 v1, 6, v0
    v_mov_b32 v{T}, v0
    v_readfirstlane_b32 s{S_WAVE}, v1
    v_and_b32 v{L}, 63, v0
    s_mul_i32 s3, s2, {MAINE*4}
    v_lshl_add_u32 v{t0}, v0, 4, s3
    v_lshrrev_b32 v{t1}, 1, v{t0}
    s_and_b32 s{S_BIN}, s2, 7
    s_lshl_b32 s{S_BIN}, s{S_BIN}, 5
    s_lshr_b32 s3, s2, 3
    s_add_u32 s{S_BIN}, s{S_BIN}, s3
    s_mul_i32 s{S_N0}, s{S_BIN}, {NB}
    s_sub_u32 s{S_NN}, {N_NODES}, s{S_N0}
    s_min_u32 s{S_NN}, s{S_NN}, {NB}
    v_and_b32 v{J}, 31, v0
    v_bfe_u32 v{HH}, v0, 5, 1
    s_mov_b32 s{S_MODE}, 0
    v_mov_b32 v{vZ}, 0
    v_mov_b32 v{vZ+1}, 0
    v_mov_b32 v{vZ+2}, 0
    v_mov_b32 v{vZ+3}, 0
    v_lshlrev_b32 v{t2}, 2, v0""")
    if DIAG:
        a(f"    v_mov_b32 v{V_STAMP}, 0\n    v_mov_b32 v{V_TRACE}, 0")
        stamp(a, 0, True); stamp(a, 1)
    wc = lambda c: V_B5 + 2*c
    vB1 = 97
    tc = 17
    ndual = int(optval("dual", "0"))
    cpos = optval("c_", "drain"); qpos = optval("q_", "post")
    def emit_consts():
        a(f"""
    v_and_b32 v{tc}, 7, v{L}
    v_lshlrev_b32 v{V_IX+1}, 4, v{tc}
    v_mov_b32 v{V_IX+3}, v{V_IX+1}
    v_mov_b32 v{V_IX+5}, v{V_IX+1}
    v_mov_b32 v{V_IX+7}, v{V_IX+1}
    v_and_b32 v{tc}, 8, v{L}
    v_lshl_add_u32 v{tc}, v{tc}, 4, v{vC8}
    v_lshl_add_u32 v{tc}, v{HH}, 8, v{tc}
    s_lshl_b32 s{S_B}, s{S_WAVE}, 12
    s_add_u32 s{S_B}, s{S_B}, {L_XS}
    v_add_u32 v{tc}, s{S_B}, v{tc}
    v_and_b32 v{t3}, 4, v{L}
    v_cmp_ne_u32 vcc, 0, v{t3}
    v_mov_b32 v{t3}, {L_Z}
    v_mov_b32 v{V_PSEL}, 0x3f803f80
    v_cndmask_b32 v{V_AA}, v{t3}, v{tc}, vcc
    v_add_u32 v{tc}, {L_T2 - L_XS}, v{tc}
    v_cndmask_b32 v{vAA2}, v{t3}, v{tc}, vcc
    v_and_b32 v{V_AENT}, 0x19, v{L}
    v_and_b32 v{tc}, 2, v{L}
    v_lshl_add_u32 v{V_AENT}, v{tc}, 1, v{V_AENT}
    v_bfe_u32 v{tc}, v{L}, 2, 1
    v_lshl_add_u32 v{V_AENT}, v{tc}, 1, v{V_AENT}
    v_lshlrev_b32 v{V_AENT}, 2, v{V_AENT}
    v_lshrrev_b32 v{V_AIDX}, 3, v{L}
    v_lshlrev_b32 v{V_AIDX}, 2, v{V_AIDX}""")
        for h in range(2):
            for m in range(4):
                a(f"    s_movk_i32 s{S_P+4*h+m}, {3072 - 1024*m + 128*h}")
        for c in range(4):
            a(f"    v_mov_b32 v{V_ND+4*c}, 0")
            a(f"    v_mov_b32 v{V_ND+4*c+1}, 0")
            a(f"    v_mov_b32 v{V_ND+4*c+2}, 1.0")
            a(f"    v_mov_b32 v{V_ND+4*c+3}, 1.0")
        a(f"""
    v_mov_b32 v{V_MN}, 1.0
    s_and_b32 s{S_A}, s{S_WAVE}, 3
    s_mul_i32 s{S_A}, s{S_A}, 3
    s_lshr_b32 s{S_B}, s{S_WAVE}, 2
    s_add_u32 s{S_SLOT}, s{S_A}, s{S_B}
    s_getpc_b64 {sr(S_PC,2)}
K_pc:
    s_add_u32 s{S_PC}, s{S_PC}, K_vbase - K_pc
    s_addc_u32 s{S_PC+1}, s{S_PC+1}, 0
    ; segment mapping of phase 2: segment 128 i + t/6, lane group g = t%6
    v_mul_u32_u24 v{tc}, 10923, v{T}
    v_lshrrev_b32 v{tc}, 16, v{tc}
    v_mad_i32_i24 v{vG4}, v{tc}, -6, v{T}
    v_lshlrev_b32 v{vG4}, 2, v{vG4}          ; 4g
    v_mul_u32_u24 v{vSb}, {RSTRIDE}, v{tc}
    s_lshr_b32 s{S_A}, s2, 3
    s_mul_i32 s{S_A}, s{S_A}, {781*128}
    s_add_u32 s{S_A}, s{S_A}, {WS_P}
    v_lshl_add_u32 v{vPf}, v{T}, 7, s{S_A}
    s_lshr_b32 s{S_B}, s{S_BIN}, 2
    s_lshl_b32 s{S_B}, s{S_B}, 4
    s_and_b32 s{S_A}, s{S_BIN}, 1
    s_lshl_b32 s{S_A}, s{S_A}, 3
    s_add_u32 s{S_B}, s{S_B}, s{S_A}
    s_and_b32 s{S_A}, s{S_BIN}, 2
    s_lshl_b32 s{S_A}, s{S_A}, 9
    s_add_u32 s{S_B}, s{S_B}, s{S_A}
    s_add_u32 s{S_B}, s{S_B}, {WS_TAB}
    v_lshl_add_u32 v{vTa}, v{tc}, 11, s{S_B}""")
    def emit_q():
        a(f"""
    s_cmp_ge_u32 s{S_WAVE}, 8
    s_cbranch_scc1 K_notQ
    ; ---- Q tile while the stores drain
    s_lshl_b32 s{S_A}, s{S_D}, 6
    v_add_u32 v{t3}, s{S_A}, v{t0}
    ds_read_u16 v{vB1}, v{t3} offset:256
    v_add_u32 v{tc}, v{vWa}, v{vC8}""")
        for s_ in range(4):
            for h in range(2):
                a(f"    ds_read_b64_tr_b16 {vr(vWf+4*s_+2*h,2)}, v{tc} offset:{16384+4096*s_+1024*h}")
        a(f"""
    s_and_b32 s{S_A}, s{S_WAVE}, 1
    s_lshl_b32 s{S_B}, s{S_A}, 14
    s_lshl_b32 s{S_C}, s{S_D}, 7
    s_add_u32 s{S_B}, s{S_B}, s{S_C}
    s_add_u32 s{S_B}, s{S_B}, {L_QT}
    v_lshl_add_u32 v{tc}, v{HH}, 11, s{S_B}
    v_lshl_add_u32 v{tc}, v{J}, 2, v{tc}""")
        for s_ in range(4):
            a(f"    s_waitcnt lgkmcnt({6-2*s_})")
            cin = "0" if s_ == 0 else vr(vAc, 16)
            a(f"    v_mfma_f32_32x32x16_bf16 {vr(vAc,16)}, {vr(vX+4*s_,4)}, {vr(vWf+4*s_,4)}, {cin}")
        a(f"""
    v_lshlrev_b32 v{vB1}, 16, v{vB1}
    v_mul_f32 v{vB1}, s3, v{vB1}
    s_nop 9""")
        def qrow(r):
            a(f"    v_fma_f32 v{vAc+r}, v{vAc+r}, s3, v{vB1}")
            a(f"    v_cvt_pk_bf16_f32 v{vWf+r}, v{vZ}, v{vAc+r}")
            a(f"    v_sub_f32 v{vWf+r}, v{vAc+r}, v{vWf+r}")
            a(f"    v_cvt_pk_bf16_f32 v{vWf+r}, v{vAc+r}, v{vWf+r}")
            a(f"    ds_write_b32 v{tc}, v{vWf+r} offset:{512*(8*(r>>2)+(r&3))}")
        for r in range(12): qrow(r)
        a(f"""
    s_cmp_eq_u32 s{S_A}, 1
    s_cbranch_scc1 K_notQ""")
        for r in range(12, 16): qrow(r)
        a(f"""
K_notQ:
    ds_read_u16 v{wc(0)}, v{t0}
    ds_read_u16 v{wc(1)}, v{t0} offset:64
    ds_read_u16 v{wc(2)}, v{t0} offset:128
    ds_read_u16 v{wc(3)}, v{t0} offset:192
    v_cmp_lt_u32 vcc, 31, v{L}
    s_waitcnt lgkmcnt(0)""")
        for c in range(4):
            a(f"    v_lshlrev_b32 v{wc(c)}, 16, v{wc(c)}")
            a(f"    v_mul_f32 v{wc(c)}, s3, v{wc(c)}")
            a(f"    v_cvt_pk_bf16_f32 v{t3}, v{vZ}, v{wc(c)}")
            a(f"    v_sub_f32 v{t4}, v{wc(c)}, v{t3}")
            a(f"    v_cvt_pk_bf16_f32 v{t4}, v{vZ}, v{t4}")
            a(f"    v_cndmask_b32 v{V_B5+2*c+1}, v{t3}, v{t4}, vcc")
    step = NT_ * 16
    wc = lambda c: V_B5 + 2*c
    vB1 = 97
    a(f"""
    s_waitcnt lgkmcnt(0)
    global_load_dwordx4 {vr(vDst,4)}, v{t0}, {sr(S_DST,2)}
    {f"v_writelane_b32 v{V_STAMP}, s{S_TAG}, 0" if "lite" in OPT else ""}
    ds_write_b32 v{t2}, v{vZ} offset:{L_H1}
    s_cmp_lg_u32 s{S_WAVE}, 11
    s_cbranch_scc1 K_ld1
    s_mul_i32 s{S_A}, s2, {XTRA}
    s_add_u32 s{S_A}, s{S_A}, {256*MAINE}
    v_min_u32 v{t5}, {XTRA-1}, v{L}
    v_add_lshl_u32 v{t5}, v{t5}, s{S_A}, 2
    v_lshrrev_b32 v{t4}, 1, v{t5}
    global_load_dword v{vDst+4}, v{t5}, {sr(S_DST,2)}
    global_load_dword v{vSrc+4}, v{t5}, {sr(S_SRC,2)}
    global_load_ushort v{vEa+2}, v{t4}, {sr(S_E,2)}
K_ld1:""")
    if "nocpf" not in OPT:
        a(f"""
    ; the first workgroups pull the rest of the code into their die's L2
    s_cmp_ge_u32 s2, 32
    s_cbranch_scc1 K_ld2
    s_sub_u32 s{S_A}, s{S_WAVE}, 5
    s_cmp_ge_u32 s{S_A}, 3
    s_cbranch_scc1 K_ld2
    s_lshl_b32 s{S_A}, s{S_A}, 13
    v_lshl_add_u32 v{t5}, v{L}, 7, s{S_A}
    s_getpc_b64 {sr(S_J,2)}
    global_load_dword v{t4}, v{t5}, {sr(S_J,2)}
K_ld2:""")
    a(f"""
    s_lshl_b32 s{S_A}, s2, 4
    s_add_u32 s{S_A}, s{S_A}, s{S_WAVE}
    s_cmp_lg_u32 s{S_A}, 9
    s_cbranch_scc1 K_ldJ
    s_lshl_b32 s{S_A}, s{S_TAG}, 25
    s_or_b32 s{S_A}, s{S_A}, 1
    s_lshr_b64 {sr(S_TAG,2)}, {sr(S_TAG,2)}, 7
    v_mov_b32 v{t4}, s{S_A}
    v_mov_b32 v{t4+1}, s{S_TAG}
    s_mov_b64 exec, 1
    global_store_dwordx2 v{vZ}, {vr(t4,2)}, {sr(S_DBG,2)} sc1
    s_mov_b64 exec, -1
K_ldJ:
    s_lshl_b32 s{S_A}, s{S_WAVE}, 11
    s_cmp_ge_u32 s{S_WAVE}, 8
    s_cbranch_scc1 K_stX
    s_add_u32 s{S_B}, s{S_A}, {L_W1}
    s_mov_b32 m0, s{S_B}
    v_lshrrev_b32 v{t3}, 2, v{L}
    v_and_b32 v{t3}, 12, v{t3}
    v_xor_b32 v{t3}, v{t3}, v{L}
    v_lshl_add_u32 v{t5}, v{t3}, 4, s{S_A}
    global_load_lds_dwordx4 v{t5}, {sr(S_W1,2)}
    global_load_lds_dwordx4 v{t5}, {sr(S_W1,2)} offset:1024
    s_branch K_stJ
K_stX:
    s_mov_b32 s{S_RX}, s4
    s_mov_b32 s{S_RX+1}, s5
    s_mov_b32 s{S_RX+2}, {N_NODES*128}
    s_mov_b32 s{S_RX+3}, 0x00020000
    s_add_u32 s{S_B}, s{S_A}, {L_XR - 16384}
    s_mov_b32 m0, s{S_B}
    s_lshl_b32 s{S_B}, s{S_N0}, 7
    s_add_u32 s{S_A}, s{S_A}, s{S_B}
    s_sub_u32 s{S_A}, s{S_A}, 16384
    v_lshrrev_b32 v{t3}, 4, v{L}
    v_xor_b32 v{t3}, v{t3}, v{L}
    v_lshl_add_u32 v{t3}, v{t3}, 4, s{S_A}
    v_xor_b32 v{t4}, 64, v{t3}
    buffer_load_dwordx4 v{t3}, {sr(S_RX,4)}, 0 offen lds
    buffer_load_dwordx4 v{t4}, {sr(S_RX,4)}, 0 offen offset:1024 lds
K_stJ:
    s_waitcnt lgkmcnt(0)
    s_barrier
    v_mov_b32 v{vPad}, {PADREC}
    v_mov_b32 v{vPad+1}, {PADREC}
    v_mov_b32 v{vPad+2}, {PADREC}
    v_mov_b32 v{vPad+3}, {PADREC}
    v_lshlrev_b32 v{t2}, 4, v{T}
    ds_write_b128 v{t2}, {vr(vPad,4)} offset:{L_RL}
    s_cmp_ge_u32 s{S_WAVE}, 4
    s_cbranch_scc1 K_in1
    ds_write_b128 v{t2}, {vr(vZ,4)}
    ds_write_b128 v{t2}, {vr(vPad,4)} offset:{L_ST - 4096}
K_in1:
    s_cmp_lg_u32 s{S_WAVE}, 4
    s_cbranch_scc1 K_in2
    v_lshlrev_b32 v{t3}, 3, v{L}
    v_add_u32 v{t3}, {L_ST + ZROW*ST_STRIDE}, v{t3}
    ds_write_b64 v{t3}, {vr(vZ,2)}
K_in2:
    global_load_dwordx4 {vr(vSrc,4)}, v{t0}, {sr(S_SRC,2)}
    global_load_dwordx2 {vr(vEa,2)}, v{t1}, {sr(S_E,2)}
    s_cmp_ge_u32 s{S_WAVE}, 8
    s_cbranch_scc1 K_st2
    s_add_u32 m0, m0, 16384
    v_add_u32 v{t5}, 0x4000, v{t5}
    global_load_lds_dwordx4 v{t5}, {sr(S_W1,2)}
    global_load_lds_dwordx4 v{t5}, {sr(S_W1,2)} offset:1024
    s_branch K_st3
K_st2:
    s_mov_b32 m0, {L_WC}
    v_lshlrev_b32 v{t3}, 2, v{L}
    v_add_u32 v{t4}, 0x8000, v{t3}
    global_load_lds_dword v{t4}, {sr(S_W1,2)}
    s_mov_b32 m0, {L_WC + 256}
    s_nop 0
    global_load_lds_dword v{t3}, {sr(S_B1,2)}
K_st3:
    v_and_b32 v{vC8}, 3, v{L}
    v_lshlrev_b32 v{vC8}, 3, v{vC8}
    v_and_b32 v{t1}, 16, v{L}
    v_lshl_add_u32 v{vC8}, v{t1}, 1, v{vC8}    ; 8c + 32(g&1)
""")
    if cpos == "early": emit_consts()
    a(f"""
    s_lshr_b32 s{S_D}, s{S_WAVE}, 1          ; ct
    v_bfe_u32 v{t0}, v{L}, 2, 2
    v_xor_b32 v{t3}, s{S_D}, v{t0}
    v_lshlrev_b32 v{t3}, 6, v{t3}
    v_lshl_add_u32 v{t0}, v{HH}, 3, v{t0}
    v_lshl_add_u32 v{t0}, v{t0}, 8, v{t3}
    v_add_u32 v{vWa}, {L_W1}, v{t0}
    v_and_b32 v{vWp}, 1, v{L}
    v_lshl_add_u32 v{vWp}, v{vWp}, 5, v{vWa}
    v_and_b32 v{t3}, 16, v{L}
    v_add_u32 v{vWp}, v{vWp}, v{t3}
    v_and_b32 v{t3}, 2, v{L}
    v_lshl_add_u32 v{vWp}, v{t3}, 2, v{vWp}    ; + 16(c&1) + 4(2(g&1) + (c>>1)) columns
    s_and_b32 s{S_A}, s{S_WAVE}, 1
    s_lshl_b32 s{S_A}, s{S_A}, 12
    s_add_u32 s{S_A}, s{S_A}, {L_XR}
    v_bfe_u32 v{t3}, v{L}, 1, 3
    v_xor_b32 v{t3}, v{t3}, v{HH}
    v_lshl_add_u32 v{t3}, v{t3}, 4, s{S_A}
    v_lshl_add_u32 v{vXa}, v{J}, 7, v{t3}
    v_xor_b32 v{vXa+1}, 32, v{vXa}
    v_xor_b32 v{vXa+2}, 64, v{vXa}
    v_xor_b32 v{vXa+3}, 0x60, v{vXa}
    s_mov_b32 s{S_A}, 21400
    s_mov_b32 s{S_B}, -{NB}
    s_mov_b32 s{S_C}, 0xffff0000
    v_mov_b32 v{t5}, 0x10004
    s_waitcnt vmcnt(6)
    s_cmp_lg_u32 s{S_WAVE}, 11
    s_cbranch_scc1 K_wJ
    s_bfm_b64 exec, {XTRA}, 0""")
    assert L_ST - L_RL <= step + 4096
    def binops(cols):
        for i in cols: a(f"    v_mul_u32_u24 v{vBa+i}, s{S_A}, v{vDst+i}")
        for i in cols: a(f"    v_lshrrev_b32 v{vBa+i}, 18, v{vBa+i}")
        for i in cols:
            a(f"    v_and_b32 v{vBa+i}, 0x3fc, v{vBa+i}")
            a(f"    ds_add_rtn_u32 v{vRk+i}, v{vBa+i}, v{t5} offset:{L_H1}")
        for i in cols: a(f"    v_lshlrev_b32 v{vDst+i}, 2, v{vDst+i}")
        for i in cols: a(f"    v_mad_i32_i24 v{vDst+i}, v{vBa+i}, s{S_B}, v{vDst+i}")
    binops([4])
    a(f"""
    s_mov_b64 exec, -1
K_wJ:""")
    stamp(a, 2)
    binops(range(4))
    a(f"""
    s_waitcnt vmcnt(4) lgkmcnt(0)
    s_barrier""")
    stamp(a, 3)
    a(f"""
    s_cmp_eq_u32 s{S_WAVE}, 8
    s_cbranch_scc1 K_scan1
    s_cmp_gt_u32 s{S_WAVE}, 8
    s_cbranch_scc1 K_notP""")
    for s_ in range(4):
        a(f"    ds_read_b128 {vr(vX+4*s_,4)}, v{vXa+s_}")
        for h in range(2):
            a(f"    ds_read_b64_tr_b16 {vr(vWf+4*s_+2*h,2)}, v{vWp} offset:{4096*s_+1024*h}")
    for s_ in range(4):
        a(f"    s_waitcnt lgkmcnt({9-3*s_})")
        cin = "0" if s_ == 0 else vr(vAc, 16)
        a(f"    v_mfma_f32_32x32x16_bf16 {vr(vAc,16)}, {vr(vWf+4*s_,4)}, {vr(vX+4*s_,4)}, {cin}")
    a(f"""
    s_and_b32 s{S_B}, s{S_WAVE}, 1
    s_mul_i32 s{S_A}, s{S_B}, {32*PS_STRIDE}
    s_lshl_b32 s{S_B}, s{S_D}, 6
    s_add_u32 s{S_A}, s{S_A}, s{S_B}
    s_add_u32 s{S_A}, s{S_A}, {L_PS}
    v_mul_u32_u24 v{t3}, {PS_STRIDE}, v{J}
    v_lshl_add_u32 v{t3}, v{HH}, 5, v{t3}
    v_add_u32 v{t3}, s{S_A}, v{t3}
    v_mov_b32 v{t4}, {NLOG2E:#x}
    v_cmp_gt_u32 vcc, {L_PS + 56*PS_STRIDE}, v{t3}
    s_nop 1""")
    for q in range(8):
        a(f"    v_pk_mul_f32 {vr(vAc+2*q,2)}, {vr(vAc+2*q,2)}, {vr(t4,2)} op_sel_hi:[1,0]")
    for q in range(8):
        a(f"    v_cvt_pk_bf16_f32 v{vAc+q}, v{vAc+2*q}, v{vAc+2*q+1}")
    a(f"""
    s_mov_b64 exec, vcc
    ds_write_b128 v{t3}, {vr(vAc,4)}
    ds_write_b128 v{t3}, {vr(vAc+4,4)} offset:16
    s_mov_b64 exec, -1
    s_branch K_b3
K_notP:
    v_lshlrev_b32 v{t1}, 4, v{L}
    v_add_u32 v{t4}, {L_PS + 48*PS_STRIDE}, v{t1}
    v_add_u32 v{t1}, {48*256}, v{t1}
    v_and_b32 v{vBa+4}, 0x3fc, v{vBa+4}
    s_cmp_lg_u32 s{S_WAVE}, 9
    s_cbranch_scc1 K_b3
    global_load_dwordx2 {vr(vTg,2)}, v{vZ}, {sr(S_DBG,2)}
    s_branch K_b3
K_scan1:
    s_setprio 2
    v_lshlrev_b32 v{t0}, 4, v{L}
    ds_read_b128 v[56:59], v{t0} offset:{L_H1}
    s_waitcnt lgkmcnt(0)""")
    for i in range(4):
        a(f"    v_lshrrev_b32 v{60+i}, 16, v{56+i}")
    for i in range(4):
        a(f"    v_mad_u32_u24 v{64+i}, v{60+i}, 5, 3")
    for i in range(4):
        a(f"    v_and_b32 v{64+i}, -4, v{64+i}")
    a(f"""
    v_add_u32 v65, v64, v65
    v_add_u32 v66, v65, v66
    v_add_u32 v67, v66, v67
    v_mov_b32 v68, v67""")
    wave_scan(a, 68)
    a(f"""
    v_sub_u32 v68, v68, v67
    v_add_u32 v69, v68, v64
    v_add_u32 v70, v68, v65
    v_add_u32 v71, v68, v66
    s_mov_b32 s{S_A}, 0x10001""")
    for i in range(4):
        a(f"    v_mul_u32_u24 v{64+i}, s{S_A}, v{68+i}")
    for i in range(4):
        a(f"    v_lshl_add_u32 v{64+i}, v{56+i}, 16, v{64+i}")
    a(f"""
    ds_write_b128 v{t0}, v[64:67] offset:{L_OFF}
    s_setprio 0
K_b3:
    v_lshrrev_b32 v{t0}, 4, v{T}
    v_lshl_add_u32 v{t0}, v{t0}, 4, v{t2}
    v_add_u32 v{t0}, {L_PS}, v{t0}
    s_lshl_b32 s{S_A}, s{S_N0}, 8
    s_add_u32 s{S_A}, s{S_A}, {WS_P + (0x800000 if optval("cheat", "") else 0)}
    s_add_u32 s{S_RT}, s{S_WS}, s{S_A}
    s_addc_u32 s{S_RT+1}, s{S_WS+1}, 0
    s_lshl_b32 s{S_RT+2}, s{S_NN}, 8
    s_mov_b32 s{S_RT+3}, 0x00020000
    s_waitcnt lgkmcnt(0)
    s_barrier""")
    stamp(a, 4)
    a(f"""
    s_cmp_lt_u32 s{S_WAVE}, 10
    s_cbranch_scc1 K_nx0
    ds_read_b32 v{vOf+4}, v{vBa+4} offset:{L_OFF}
    ds_read_b128 v[76:79], v{t4}
K_nx0:
    ds_read_b128 v[72:75], v{t0}""")
    for i in range(4):
        a(f"    ds_read_b32 v{vOf+i}, v{vBa+i} offset:{L_OFF}")
    a(f"""
    s_waitcnt vmcnt(2)
    v_lshl_or_b32 v{vSrc}, v{vEa}, 16, v{vSrc}
    v_and_or_b32 v{vSrc+1}, v{vEa}, s{S_C}, v{vSrc+1}
    v_lshl_or_b32 v{vSrc+2}, v{vEa+1}, 16, v{vSrc+2}
    v_and_or_b32 v{vSrc+3}, v{vEa+1}, s{S_C}, v{vSrc+3}
    s_waitcnt lgkmcnt(4)
    buffer_store_dwordx4 v[72:75], v{t2}, {sr(S_RT,4)}, 0 offen sc1""")
    def scatter(i):
        a(f"    v_add_u32_sdwa v{vBa+i}, v{vOf+i}, v{vRk+i} {SD} src0_sel:WORD_0 src1_sel:WORD_0")
        a(f"    v_add_u32_sdwa v{vOf+i}, v{vOf+i}, v{vRk+i} {SD} src0_sel:WORD_1 src1_sel:WORD_1")
        a(f"    ds_write_b32 v{vBa+i}, v{vSrc+i} offset:{L_RS}")
        a(f"    ds_write_b8 v{vOf+i}, v{vDst+i} offset:{L_RS}")
    a(f"    s_waitcnt lgkmcnt(0)")
    for i in range(4): scatter(i)
    a(f"""
    s_waitcnt vmcnt(1)
    s_cmp_lt_u32 s{S_WAVE}, 9
    s_cbranch_scc1 K_nx2
    s_cmp_eq_u32 s{S_WAVE}, 11
    s_cbranch_scc1 K_x2
    s_cmp_eq_u32 s{S_WAVE}, 9
    s_cbranch_scc1 K_tag0
    buffer_store_dwordx4 v[76:79], v{t1}, {sr(S_RT,4)}, 0 offen sc1
    s_branch K_nx2
K_tag0:
    s_mov_b32 s{S_K}, 0
K_tagp:
    v_cmp_ne_u32 vcc, 0, v{vTg}
    s_cbranch_vccnz K_tagok
    s_add_u32 s{S_K}, s{S_K}, 1
    s_cmp_gt_u32 s{S_K}, {POLL_MAX}
    s_cbranch_scc1 K_tagok
    global_load_dwordx2 {vr(vTg,2)}, v{vZ}, {sr(S_DBG,2)} sc1
    s_waitcnt vmcnt(0)
    s_branch K_tagp
K_tagok:
    ds_write_b64 v{vZ}, {vr(vTg,2)} offset:{L_NONCE}
    s_branch K_nx2
K_x2:
    s_bfm_b64 exec, {XTRA}, 0
    v_lshl_or_b32 v{vSrc+4}, v{vEa+2}, 16, v{vSrc+4}""")
    scatter(4)
    a(f"""
    s_mov_b64 exec, -1
K_nx2:
    s_mul_i32 s{S_A}, s2, {RSTRIDE}
    s_add_u32 s{S_RR}, s{S_WS}, s{S_A}
    s_addc_u32 s{S_RR+1}, s{S_WS+1}, 0
    s_mov_b32 s{S_RR+2}, 16512
    s_mov_b32 s{S_RR+3}, 0x00020000
    v_add_u32 v{t3}, {step}, v{t2}
    s_waitcnt lgkmcnt(0)
    s_barrier""")
    stamp(a, 5)
    a(f"""
    ds_read_b128 v[0:3], v{t2} offset:{L_RS}
    ds_read_b64 v[12:13], v{vZ} offset:{L_NONCE}
    s_cmp_ge_u32 s{S_WAVE}, 5
    s_cbranch_scc1 K_co1
    ds_read_b128 v[8:11], v{t2} offset:{L_RS + step}
    s_waitcnt lgkmcnt(0)
    buffer_store_dwordx4 v[8:11], v{t3}, {sr(S_RR,4)}, 0 offen sc1
K_co1:
    s_waitcnt lgkmcnt(0)
    buffer_store_dwordx4 v[0:3], v{t2}, {sr(S_RR,4)}, 0 offen sc1
""")
    if optval("cheat", ""):
        a(f"""
    s_cmp_ge_u32 s{S_WAVE}, {optval("cheat", "")}
    s_cbranch_scc1 K_ch0
    s_lshr_b32 s{S_A}, s2, 3
    s_mul_i32 s{S_A}, s{S_A}, {781*128}
    s_add_u32 s{S_A}, s{S_A}, {WS_P}
    v_lshl_add_u32 v14, v{T}, 7, s{S_A}
    global_load_dword v14, v14, {sr(S_WS,2)}
K_ch0:""")
    a(f"""
    v_readfirstlane_b32 s{S_TAG}, v12
    v_readfirstlane_b32 s{S_TAG+1}, v13
    s_mov_b32 s3, {NLOG2E:#x}
    v_lshlrev_b32 v{t0}, 1, v{J}
    v_add_u32 v{t0}, {L_WC}, v{t0}
    s_cmp_lg_u32 s{S_WAVE}, 8
    s_cbranch_scc1 K_ntb
    s_and_b32 s{S_C}, s{S_TAG}, 0xfe000000
    s_lshl_b32 s{S_B}, s2, 11
    s_add_u32 s{S_B}, s{S_B}, {WS_TAB}
    v_lshl_add_u32 v{t1}, v{L}, 4, s{S_B}""")
    for i in range(4):
        a(f"    v_lshrrev_b32 v{68+i}, 2, v{68+i}")
        a(f"    v_lshl_or_b32 v{68+i}, v{60+i}, 13, v{68+i}")
        a(f"    v_or_b32 v{vTb+2*i}, s{S_C}, v{68+i}")
        a(f"    v_mov_b32 v{vTb+2*i+1}, s{S_TAG+1}")
    a("K_ntb:")
    if cpos == "drain": emit_consts()
    if qpos == "drain":
        emit_q(); stamp(a, 7)
    if optval("cheat", ""):
        a(f"""
    s_cmp_ge_u32 s{S_WAVE}, {optval("cheat", "")}
    s_cbranch_scc1 K_ch1
    s_waitcnt vmcnt(1)
    s_branch K_ch2
K_ch1:
    s_waitcnt vmcnt(0)
K_ch2:""")
    else:
        a("    s_waitcnt vmcnt(0)")
    a(f"""
    s_barrier""")
    stamp(a, 6)
    a(f"""
    s_cmp_eq_u32 s{S_TAG}, 0
    s_cbranch_scc1 K_slow
    s_cmp_lt_u32 s{S_WAVE}, 8
    s_cbranch_scc1 K_lb2
    s_cmp_lg_u32 s{S_WAVE}, 8
    s_cbranch_scc1 K_ntab
    global_store_dwordx4 v{t1}, {vr(vTb,4)}, {sr(S_WS,2)} sc1
    global_store_dwordx4 v{t1}, {vr(vTb+4,4)}, {sr(S_WS,2)} offset:1024 sc1
K_ntab:
    s_sub_u32 s{S_A}, s{S_WAVE}, 8
    s_lshl_b32 s{S_A}, s{S_A}, 12
    s_add_u32 s{S_B}, s{S_A}, {L_W2}
    s_mov_b32 m0, s{S_B}
    v_lshl_add_u32 v{t3}, v{L}, 4, s{S_A}
    global_load_lds_dwordx4 v{t3}, {sr(S_W2,2)}
    global_load_lds_dwordx4 v{t3}, {sr(S_W2,2)} offset:1024
    global_load_lds_dwordx4 v{t3}, {sr(S_W2,2)} offset:2048
    global_load_lds_dwordx4 v{t3}, {sr(S_W2,2)} offset:3072
    s_branch K_lbJ
K_lb2:
    s_cmp_lg_u32 s{S_WAVE}, 7
    s_cbranch_scc1 K_lbJ
    s_mov_b32 m0, {L_B2}
    v_lshlrev_b32 v{t3}, 2, v{J}
    global_load_lds_dword v{t3}, {sr(S_B2,2)}
K_lbJ:""")
    if cpos == "post": emit_consts()
    if qpos == "post": emit_q()
    a(f"""
    s_lshl_b32 s{S_B}, s{S_WAVE}, 12
    s_add_u32 s{S_B}, s{S_B}, {L_XS}
    s_mov_b32 m0, s{S_B}
    v_mov_b32 v{t5}, v{vTa}""")
    if qpos == "post": stamp(a, 7)
    vT = 0
    vN = 4
    vAr = 6
    vR = 12
    vM = 28
    vA = 32
    vK = 48
    vB = 64
    vG = 80
    a(f"""
    s_mov_b32 s{S_RR}, s{S_WS}
    s_mov_b32 s{S_RR+1}, s{S_WS+1}
    s_mov_b32 s{S_RR+2}, {WS_P + N_NODES*256}
    s_mov_b32 s{S_A}, {128*2048}
    s_mov_b32 s{S_B}, {128*RSTRIDE}
    s_mov_b32 s{S_C}, 0xfe000000
    s_movk_i32 s{S_D}, 0xfc
    s_mov_b32 s{S_K}, 0
    s_mov_b64 {mask(0)}, -1
    s_mov_b64 {mask(1)}, -1
    v_mov_b32 v{vM}, 0
    v_mov_b32 v{vM+1}, 0
K_poll:
    s_mov_b64 exec, {mask(0)}
    s_cbranch_execz K_pl0
    buffer_load_dwordx2 {vr(vT,2)}, v{t5}, {sr(S_RR,4)}, 0 offen sc1
K_pl0:
    s_mov_b64 exec, {mask(1)}
    s_cbranch_execz K_pl1
    buffer_load_dwordx2 {vr(vT+2,2)}, v{t5}, {sr(S_RR,4)}, s{S_A} offen sc1
K_pl1:
    s_mov_b64 exec, -1
    s_waitcnt vmcnt(0)""")
    for i in range(2):
        a(f"    v_xor_b32 v{vN+i}, s{S_TAG}, v{vT+2*i}")
        a(f"    v_xor_b32 v{vAr+i}, s{S_TAG+1}, v{vT+2*i+1}")
        a(f"    v_and_or_b32 v{vAr+i}, v{vN+i}, s{S_C}, v{vAr+i}")
        a(f"    v_cmp_ne_u32 {mask(i)}, 0, v{vAr+i}")
    a(f"""
    s_add_u32 s{S_K}, s{S_K}, 1
    s_or_b64 vcc, {mask(0)}, {mask(1)}
    s_cbranch_scc0 K_got
    {"s_sleep " + optval("ps", "2") if optval("ps", "2") != "0" else ""}
    s_cmp_lt_u32 s{S_K}, {POLL_MAX}
    s_cbranch_scc1 K_poll
    s_mov_b32 s{S_MODE}, 1
    s_branch K_nor2a
K_got:""")
    if DIAG:
        a(f"    v_writelane_b32 v{V_STAMP}, s{S_K}, 20")
    stamp(a, 8)
    so = ["0", sr(S_B)]
    for i in range(2):
        a(f"    v_and_b32 v{vAr+i}, 0x1fff, v{vT+2*i}")
        a(f"    v_bfe_u32 v{vT+2*i+1}, v{vT+2*i}, 13, 12")
        a(f"    v_lshl_add_u32 v{vAr+i}, v{vAr+i}, 2, v{vSb}")
        a(f"    v_sub_u32 v{vN+i}, v{vT+2*i+1}, v{vG4}")
        a(f"    v_lshl_add_u32 v{vAr+2+i}, v{vT+2*i+1}, 2, v{vAr+i}")
        a(f"    v_cmp_lt_i32 {mask(4*i)}, 0, v{vN+i}")
        a(f"    v_lshl_add_u32 v{vAr+i}, v{vG4}, 2, v{vAr+i}")
        a(f"    v_add_u32 v{vAr+2+i}, v{vAr+2+i}, v{vG4}")
        a(f"    s_or_b64 exec, {mask(4*i)}, 1")
        a(f"    buffer_load_dword v{vM+i}, v{vAr+2+i}, {sr(S_RR,4)}, {so[i]} offen")
        a(f"    buffer_load_dwordx4 {vr(vR+4*i,4)}, v{vAr+i}, {sr(S_RR,4)}, {so[i]} offen")
        a(f"    s_mov_b64 exec, -1")
    for i in range(2):
        for k in range(1, 4):
            a(f"    v_cmp_lt_i32 {mask(4*i+k)}, {k}, v{vN+i}")
    a(f"""
    v_max_i32 v{t1}, v{vN}, v{vN+1}
    v_cmp_lt_i32 vcc, 24, v{t1}
    s_mov_b32 s{S_K}, 0
    s_cbranch_vccz K_nor2a
    s_mov_b32 s{S_K}, 1""")
    for i in range(2):
        a(f"    buffer_load_dword v{vM+2+i}, v{vAr+2+i}, {sr(S_RR,4)}, {so[i]} offen offset:24")
        a(f"    buffer_load_dwordx4 {vr(vR+8+4*i,4)}, v{vAr+i}, {sr(S_RR,4)}, {so[i]} offen offset:96")
        for k in range(4):
            a(f"    v_cmp_lt_i32 {mask(8+4*i+k)}, {24+k}, v{vN+i}")
    a(f"""
    v_cmp_lt_i32 vcc, 48, v{t1}
    s_cbranch_vccz K_nor2a
    s_mov_b32 s{S_MODE}, 1
K_nor2a:
    v_mov_b32 v{t4}, {L_FLAG}
    v_mov_b32 v{t0}, 4
    s_cmp_eq_u32 s{S_MODE}, 0
    s_cbranch_scc1 K_nofl
    ds_write_b32 v{t4}, v{t0}
K_nofl:
    s_waitcnt lgkmcnt(0)
    s_barrier
    ds_read_b32 v{t3}, v{t4}
    s_add_u32 s{S_RX}, s{S_WS}, {WS_P - 3072}
    s_addc_u32 s{S_RX+1}, s{S_WS+1}, 0
    s_and_b32 s{S_RX+1}, s{S_RX+1}, 0xffff
    s_or_b32 s{S_RX+1}, s{S_RX+1}, 0x01000000
    s_mov_b32 s{S_RX+2}, {N_NODES}
    s_mov_b32 s{S_RX+3}, 0x00020000
    s_waitcnt lgkmcnt(0)
    v_cmp_ne_u32 vcc, 0, v{t3}
    s_cbranch_vccnz K_slow""")
    pf0 = int(optval("pf", "8"))
    a(f"""
    s_cmp_lt_u32 s{S_WAVE}, {pf0}
    s_cbranch_scc1 K_npf
    buffer_load_dword v{t5}, v{vPf}, {sr(S_RR,4)}, 0 offen
    s_waitcnt vmcnt(1)
    s_branch K_pfJ
K_npf:
    s_waitcnt vmcnt(0)
K_pfJ:""")
    stamp(a, 9)
    def rec_reg(k): return vR + k
    def count_cols(ks):
        for k in ks:
            a(f"    v_and_b32_sdwa v{vA+k}, v{vM+k//4}, s{S_D} {SD} src0_sel:BYTE_{k%4} src1_sel:DWORD")
        for k in ks:
            a(f"    s_mov_b64 exec, {mask(k)}")
            a(f"    ds_add_rtn_u32 v{vK+k}, v{vA+k}, v{t0}")
        a(f"    s_mov_b64 exec, -1")
    count_cols(range(8))
    a(f"""
    s_cmp_eq_u32 s{S_K}, 0
    s_cbranch_scc1 K_nor2b""")
    count_cols(range(8, 16))
    a(f"""
K_nor2b:
    v_lshlrev_b32 v{t1}, 2, v{L}
    v_cmp_gt_u32 vcc, s{S_NN}, v{L}
    s_waitcnt lgkmcnt(0)
    s_barrier""")
    stamp(a, 10)
    a(f"""
    ds_read_b32 v{V_CNT}, v{t1}
    s_waitcnt lgkmcnt(0)
    v_add_u32 v{vP}, 12, v{V_CNT}
    v_and_b32 v{vP}, -16, v{vP}
    v_max_u32 v{vP}, 0x80, v{vP}
    v_cndmask_b32 v{vP}, 0, v{vP}, vcc
    v_mov_b32 v{vS}, v{vP}""")
    wave_scan(a, vS)
    a(f"""
    s_nop 0
    v_readlane_b32 s{S_A}, v{vS}, 63
    v_sub_u32 v{vS}, v{vS}, v{vP}
    ds_write_b32 v{t1}, v{vS} offset:{L_SX}
    s_cmp_gt_u32 s{S_A}, {ENT_CAP*4}
    s_cbranch_scc1 K_slow""")
    def place_cols(ks, mid=None):
        ks = list(ks)
        for k in ks:
            a(f"    ds_read_b32 v{vB+k}, v{vA+k} offset:{L_SX}")
        if mid: a(mid)
        for n, k in enumerate(ks):
            if n % 2 == 0:
                a(f"    s_waitcnt lgkmcnt({len(ks)-2-n})")
            a(f"    v_add_u32 v{vK+k}, v{vB+k}, v{vK+k}")
        for k in ks:
            a(f"    s_mov_b64 exec, {mask(k)}")
            a(f"    ds_write_b32 v{vK+k}, v{rec_reg(k)} offset:{L_RL}")
        a(f"    s_mov_b64 exec, -1")
    place_cols(range(8), f"""
    s_add_u32 s{S_A}, s{S_A}, 127
    s_lshr_b32 s{S_TT}, s{S_A}, 7            ; tiles
    s_mul_i32 s{S_T0}, s{S_SLOT}, s{S_TT}
    s_add_u32 s{S_NT}, s{S_T0}, s{S_TT}
    s_mul_i32 s{S_T0}, s{S_T0}, 43691
    s_mul_i32 s{S_NT}, s{S_NT}, 43691
    s_lshr_b32 s{S_T0}, s{S_T0}, 19
    s_lshr_b32 s{S_NT}, s{S_NT}, 19
    s_sub_u32 s{S_NT}, s{S_NT}, s{S_T0}""")
    a(f"""
    s_cmp_eq_u32 s{S_K}, 0
    s_cbranch_scc1 K_nor2c
    s_waitcnt lgkmcnt(0)""")
    place_cols(range(8, 16))
    thr = [int(x) for x in optval("thr", "5_3_1").split("_")]
    a(f"""
K_nor2c:
    s_lshl_b32 s{S_A}, s{S_T0}, 7            ; ts*4
    s_add_u32 s{S_C}, s{S_A}, {L_RL}
    v_add_u32 v{V_AIDX}, s{S_C}, v{V_AIDX}
    v_cmp_ge_u32 {mask(0)}, s{S_A}, v{vS}
    v_subrev_u32 v{t0}, s{S_A}, v{vS}
    s_and_b64 {mask(0)}, {mask(0)}, vcc
    s_bcnt1_i32_b64 s{S_B}, {mask(0)}
    s_sub_u32 s{S_B}, s{S_B}, 1              ; n
    s_andn2_b64 {mask(0)}, vcc, {mask(0)}
    s_waitcnt lgkmcnt(0)
    s_barrier""")
    stamp(a, 11)
    for h in idx_reads(0): a(h)
    a(f"""
    v_add_u32 v{V_AENT}, s{S_C}, v{V_AENT}
    v_xor_b32 v{t3}, s{S_B}, v{HH}
    v_and_b32 v{t3}, 1, v{t3}
    s_lshl_b32 s{S_A}, s{S_B}, 9
    s_add_u32 s{S_A}, s{S_A}, {L_QT}
    v_lshl_add_u32 v{V_AQ}, v{t3}, 9, s{S_A}
    v_lshl_add_u32 v{V_AQ}, v{J}, 2, v{V_AQ}
    s_waitcnt lgkmcnt(0)""")
    for h in dma_ops(0): a(h)
    a(f"""
    s_cmp_ge_u32 s{S_WAVE}, {ndual}
    s_cbranch_scc1 K_e1
    s_add_u32 m0, m0, {L_T2 - L_XS}
    s_nop 0""")
    for h in dma_ops(1): a(h)
    a("K_e1:")
    for h in ent_reads(0, True): a(h)
    a(f"""
    v_bfe_u32 v{t4}, v{t0}, 4, 3
    v_add_u32 v{t4}, 1, v{t4}
    v_mul_u32_u24 v{t4}, {VAR_SIZE}, v{t4}
    v_lshrrev_b32 v{t0}, 7, v{t0}
    v_min_u32 v{t0}, 63, v{t0}
    v_cndmask_b32 v{t0}, 63, v{t0}, {mask(0)}
    v_lshlrev_b32 v{t0}, 2, v{t0}
    v_mov_b32 v{V_TAB}, 0
    ds_permute_b32 v{V_TAB}, v{t0}, v{t4}
    s_add_u32 s{S_A}, s{S_B}, s{S_SLOT}
    s_mul_i32 s{S_A}, s{S_A}, {ST_STRIDE}
    s_add_u32 s{S_A}, s{S_A}, {L_ST}
    v_lshl_add_u32 v{V_AS}, v{L}, 2, s{S_A}
    v_xor_b32 v{t3}, 1, v{t3}
    v_lshlrev_b32 v{V_INCQ}, 10, v{t3}
    v_cvt_f32_u32 v{vOne}, s{S_TT}
    v_rcp_f32 v{vOne}, v{vOne}
    v_add3_u32 v{vP}, v{vS}, v{vP}, -4
    v_lshrrev_b32 v{vS}, 7, v{vS}
    v_lshrrev_b32 v{vP}, 7, v{vP}
    v_cvt_f32_u32 v{vS}, v{vS}
    v_cvt_f32_u32 v{vP}, v{vP}
    v_add_f32 v{vS}, {f32bits((NW-0.5)/NW):#x}, v{vS}
    v_add_f32 v{vP}, {f32bits((NW-0.5)/NW):#x}, v{vP}
    v_mul_f32 v{vOne}, {f32bits(NW):#x}, v{vOne}
    v_mul_f32 v{vS}, v{vS}, v{vOne}
    v_mul_f32 v{vP}, v{vP}, v{vOne}
    v_cvt_u32_f32 v{vS}, v{vS}
    v_cvt_u32_f32 v{vP}, v{vP}
    v_sub_u32 v{vP}, v{vP}, v{vS}
    v_add_u32 v{vS}, v{vS}, v{L}
    v_lshl_or_b32 v{vS}, v{vP}, 8, v{vS}
    v_cndmask_b32 v{vS}, {ZROW}, v{vS}, vcc
    v_lshl_or_b32 v{V_CNT}, v{vS}, 16, v{V_CNT}
    ; jump table: entry offset inside a variant slot (priority steps near the end), exit at lane nt
    v_sub_u32 v{t0}, s{S_NT}, v{L}
    v_mov_b32 v{t3}, 64""")
    for i, th in enumerate(thr):
        a(f"    v_cmp_eq_u32 {mask(i)}, {th}, v{t0}")
    a(f"    v_cmp_eq_u32 {mask(3)}, 0, v{t0}")
    a(f"    v_mov_b32 v{t4}, K_exit - K_vbase")
    for i, th in enumerate(thr):
        a(f"    v_cndmask_b32 v{t3}, v{t3}, {44 + 8*i}, {mask(i)}")
    a(f"""
    s_waitcnt lgkmcnt(0)
    v_add_u32 v{V_TAB}, v{V_TAB}, v{t3}
    v_cndmask_b32 v{V_TAB}, v{V_TAB}, v{t4}, {mask(3)}
    s_mov_b32 s{S_K}, 1
    s_setprio 3
    v_readlane_b32 s{S_J}, v{V_TAB}, 0
    s_bitcmp1_b32 s{S_B}, 0
    s_cselect_b64 {sr(S_PAR,2)}, -1, 0
    s_movk_i32 s{S_PAD}, {PADREC}""")
    for h in mask_load(): a(h)
    a(f"""
    s_cmp_ge_u32 s{S_WAVE}, {ndual}
    s_cbranch_scc1 K_e2
    s_waitcnt vmcnt(4)""")
    stamp(a, 12)
    for h in tr_reads(0): a(h)
    a(f"    s_waitcnt vmcnt(0)")
    for h in tr_reads(1): a(h.replace(f"v{V_AA} ", f"v{vAA2} "))
    a(f"""
    s_add_u32 s{S_J}, s{S_MO}, 64 + K_vhN - K_varN
    s_waitcnt lgkmcnt(0)
    s_sub_u32 m0, m0, {L_T2 - L_XS}
    s_branch K_e4
K_e2:
    s_waitcnt vmcnt(0)""")
    stamp(a, 12)
    for h in tr_reads(0): a(h)
    a(f"    s_waitcnt lgkmcnt(0)")
    for h in dma_ops(1): a(h)
    a("K_e4:")
    for h in onehot_ops(): a(h)
    a(f"""
    s_add_u32 s{S_J}, s{S_J}, s{S_PC}
    s_addc_u32 s{S_J+1}, s{S_PC+1}, 0
    s_cmp_eq_u32 s{S_NT}, 0
    s_cbranch_scc1 K_exit""")
    a(small(0)); a(small(1))
    a("    s_nop 7")
    stamp(a, 13); stamp(a, 14, True)
    a(f"    s_setpc_b64 {sr(S_J,2)}")
    a(f".p2align 6")
    a(f"K_vbase:")
    for vi, b in enumerate([None] + list(range(8))):
        tile_variant(a, vi, b)
    a(f".p2align 3")
    a(f"K_exit:")
    stamp(a, 15); stamp(a, 16, True)
    for cts in ((0, 1), (2, 3)):
        flush_ops(a, cts)
        a("    s_nop 1")
        flush_ops2(a, cts)
    a(f"""
    v_cmp_eq_f32 vcc, 0, v{V_MN}
    s_cbranch_vccz K_join
    v_mov_b32 v64, 1
    v_mov_b32 v65, {L_FLAG}
    ds_write_b32 v65, v64
K_join:
    s_cmp_ge_u32 s{S_WAVE}, 4
    s_cbranch_scc1 K_idle
    v_and_b32 v136, 15, v{L}
    v_lshrrev_b32 v137, 4, v{L}              ; g
    s_lshl_b32 s{S_A}, s{S_WAVE}, 4
    v_add_u32 v136, s{S_A}, v136             ; node
    v_lshlrev_b32 v138, 2, v136
    ds_bpermute_b32 v139, v138, v{V_CNT}
    v_and_b32 v138, 16, v{L}
    v_lshlrev_b32 v138, 2, v138
    v_lshl_add_u32 v138, v{HH}, 5, v138
    v_bfe_u32 v140, v{L}, 2, 2
    v_add_u32 v140, v140, v138
    v_lshlrev_b32 v140, 7, v140
    v_and_b32 v141, 3, v{L}
    v_lshl_add_u32 v140, v141, 4, v140
    v_add_u32 v140, {L_W2}, v140""")
    for ot in range(4):
        for ks in range(4):
            for h in range(2):
                a(f"    ds_read_b64_tr_b16 {vr(16*ot+4*ks+2*h,2)}, v140 offset:{1024*ks+512*h+64*(ot>>1)+8*(ot&1)}")
    a(f"""
    v_lshlrev_b32 v141, 4, v137
    v_add_u32 v140, {L_B2}, v141
    ds_read_b128 v[128:131], v140
    ds_read_b128 v[132:135], v140 offset:64
    v_lshl_add_u32 v141, v136, 7, v141
    s_lshl_b32 s{S_A}, s{S_N0}, 7
    s_add_u32 s{S_RT}, s{S_OUT}, s{S_A}
    s_addc_u32 s{S_RT+1}, s{S_OUT+1}, 0
    s_lshl_b32 s{S_RT+2}, s{S_NN}, 7
    s_mov_b32 s{S_RT+3}, 0x00020000
    s_mov_b32 s3, {NLN2:#x}
    s_movk_i32 s{S_K}, {ST_STRIDE}
    s_waitcnt lgkmcnt(0)
    v_bfe_u32 v142, v139, 16, 8
    v_lshrrev_b32 v143, 24, v139
    v_and_b32 v139, 0xffff, v139
    v_cvt_f32_u32 v139, v139
    v_mul_f32 v139, {f32bits(0.25 * -1.4426950408889634):#x}, v139
    v_lshlrev_b32 v138, 2, v138
    v_add_u32 v138, {L_ST}, v138
    v_mad_u32_u24 v142, v142, s{S_K}, v138
    v_add_u32 v138, {ZROW*ST_STRIDE}, v138
    v_cmp_lt_u32 vcc, 0, v143
    v_add_u32 v144, {ST_STRIDE}, v142
    v_mov_b32 v146, 0x207
    v_cndmask_b32 v145, v138, v144, vcc""")
    vO = 148
    accs = [148, 149, 150, 151, 152, 153] + list(range(156, 166))
    ACC = [112, 116, 120, 124]
    for q in range(8):
        a(f"    v_lshlrev_b32 v{112+2*q}, 16, v{128+q}")
        a(f"    v_and_b32 v{113+2*q}, 0xffff0000, v{128+q}")
    for q in range(16):
        a(f"    v_mul_f32 v{112+q}, v139, v{112+q}")
    a(f"    s_barrier")
    stamp(a, 17)
    S0 = 64; S1 = 96
    for ks in range(2):
        pass
    a(f"    s_mov_b32 s{S_A}, 1")
    for ks in range(4):
        a(f"    ds_read_b128 {vr(S0+8*ks,4)}, v142 offset:{32*ks}")
        a(f"    ds_read_b128 {vr(S0+4+8*ks,4)}, v142 offset:{32*ks+16}")
    a(f"K_rows:")
    tmp = [96, 104, 128, 156]
    for ks in range(4):
        a(f"    ds_read_b128 {vr(tmp[ks],4)}, v145 offset:{32*ks}")
        a(f"    ds_read_b128 {vr(tmp[ks]+4,4)}, v145 offset:{32*ks+16}")
    a(f"""
    v_cmp_lt_u32 vcc, s{S_A}, v143
    v_add_u32 v144, {ST_STRIDE}, v144
    s_add_u32 s{S_A}, s{S_A}, 1""")
    for ks in range(4):
        a(f"    s_waitcnt lgkmcnt({6-2*ks})")
        for q in range(4):
            a(f"    v_pk_add_f32 {vr(S0+8*ks+2*q,2)}, {vr(S0+8*ks+2*q,2)}, {vr(tmp[ks]+2*q,2)}")
    a(f"""
    v_cndmask_b32 v145, v138, v144, vcc
    s_cbranch_vccnz K_rows""")
    def cv(ks):
        for q in range(4):
            a(f"    v_cvt_pk_bf16_f32 v{96+4*ks+q}, v{S0+8*ks+2*q}, v{S0+1+8*ks+2*q}")
    def mf(ks, ot):
        d = vr(ACC[ot], 4)
        a(f"    v_mfma_f32_16x16x32_bf16 {d}, {vr(16*ot+4*ks,4)}, {vr(96+4*ks,4)}, {d}")
    cv(0); cv(1)
    for ks in range(4):
        for ot in range(4):
            mf(ks, ot)
        if ks < 2: cv(ks + 2)
    a("    s_nop 4")
    for q in range(16):
        a(f"    v_mul_f32 v{64+q}, s3, v{112+q}")
    for q in range(8):
        a(f"    v_cvt_pk_bf16_f32 v{80+q}, v{64+2*q}, v{65+2*q}")
    osc = optval("o_", "sc1")
    a(f"    buffer_store_dwordx4 v[80:83], v141, {sr(S_RT,4)}, 0 offen {osc}")
    a(f"    buffer_store_dwordx4 v[84:87], v141, {sr(S_RT,4)}, 0 offen offset:64 {osc}")
    for q in range(16):
        a(f"    v_cmp_class_f32 {mask(q)}, v{64+q}, v146")
    for q in range(1, 16):
        a(f"    s_or_b64 {mask(0)}, {mask(0)}, {mask(q)}")
    a(f"""
    s_cbranch_scc0 K_fin
    v_mov_b32 v64, 1
    v_mov_b32 v65, {L_FLAG}
    ds_write_b32 v65, v64
    s_branch K_fin
K_idle:
    s_waitcnt lgkmcnt(0)
    s_barrier                                ; B9
K_fin:
    v_mov_b32 v65, {L_FLAG}
    s_waitcnt lgkmcnt(0)
    s_barrier                                ; B10
    ds_read_b32 v64, v65
    s_waitcnt lgkmcnt(0)
    v_cmp_ne_u32 vcc, 0, v64
    s_cbranch_vccnz K_slow""")
    if DIAG:
        a("    s_waitcnt vmcnt(0)")
        stamp(a, 18); stamp(a, 19, True)
        a(f"""
    v_writelane_b32 v{V_STAMP}, s{S_NT}, 21
    s_lshl_b32 s{S_A}, s2, 4
    s_add_u32 s{S_A}, s{S_A}, s{S_WAVE}
    s_lshl_b32 s{S_A}, s{S_A}, 8
    s_add_u32 s{S_A}, s{S_A}, {WS_STAMP}
    v_lshl_add_u32 v64, v{L}, 2, s{S_A}
    s_mov_b64 exec, 0xffffffff
    global_store_dword v64, v{V_STAMP}, {sr(S_WS,2)}
    global_store_dword v64, v{V_TRACE}, {sr(S_WS,2)} offset:128""")
    if optval("spin", "") != "":
        stamp(a, 18)
        a(f"""
    s_lshl_b32 s{S_A}, s2, 4
    s_add_u32 s{S_A}, s{S_A}, s{S_WAVE}
    s_cmp_lg_u32 s{S_A}, {100*16}
    s_cbranch_scc1 K_end
    s_lshl_b32 s{S_A}, s{S_TAG+1}, 7
    s_lshr_b32 s{S_B}, s{S_TAG}, 25
    s_or_b32 s{S_A}, s{S_A}, s{S_B}
    {"s_mov_b32 s100, s%d" % S_A if optval("spin", "") == "0" else ""}
    s_sub_u32 s{S_B}, s100, s{S_A}
    s_min_u32 s{S_B}, s{S_B}, 20000
    s_mul_i32 s{S_B}, s{S_B}, 10
    s_add_u32 s{S_B}, s{S_B}, 10000
K_spin:
    s_memrealtime s[98:99]
    s_waitcnt lgkmcnt(0)
    s_sub_u32 s98, s98, s{S_A}
    s_cmp_lt_u32 s98, s{S_B}
    s_cbranch_scc1 K_spin""")
    a(f"""
K_end:
    s_endpgm
K_slow:
    s_setprio 0
    s_mov_b32 s16, s{S_N0}
    s_mov_b32 s17, s{S_NN}
    s_mov_b32 s18, s{S_WAVE}""")
    gen_slow(a, 16, 17, 18, L, NLOG2E, NW=NW)
    a("    s_endpgm")

def main():
    global DIAG
    out = sys.argv[1]
    DIAG = "diag" in sys.argv[2:] or "lite" in sys.argv[2:]
    OPT.update(sys.argv[2:])
    a = Asm()
    a(f"""; Edge-featured MPNN layer: out[n] = sum_(e: dst=n) (silu([x[src],x[dst],e] w1 + b1) w2 + b2)
; @launch grid=(256,1,1) block=({NT_},1,1) lds={L_END}
.amdgcn_target "amdgcn-amd-amdhsa--gfx950"
.text""")
    gen_kernel(a)
    a(f"""
.section .rodata,"a"
.p2align 6
.amdhsa_kernel {KNAME}
  .amdhsa_next_free_vgpr {NVGPR}
  .amdhsa_next_free_sgpr 102
  .amdhsa_accum_offset {NVGPR}
  .amdhsa_group_segment_fixed_size 0
  .amdhsa_kernarg_size 88
  .amdhsa_user_sgpr_count 2
  .amdhsa_user_sgpr_kernarg_segment_ptr 1
  .amdhsa_system_sgpr_workgroup_id_x 1
  .amdhsa_float_denorm_mode_32 3
.end_amdhsa_kernel""")
    open(out, "w").write(a.text())

if __name__ == "__main__":
    main()
```

```python
import sys, struct
from slow import gen_slow

NAME = "standalone__edge_featured_mpnn_mpnn__graph"
KNAME = NAME + "_kernel"
N_NODES = 12500
NB = 49
NW = 12
NT_ = 64 * NW
MAINE = 4 * NT_
XTRA = 53
RSTRIDE = 16640

WS_REC = 0
WS_TAB = 0x420000
WS_P = 0x4C0000
WS_STAMP = 0xA00000

L_FLAG = 288
L_NONCE = 296
L_SX = 4096
L_Z = 320
L_RL = 4352
ENT_CAP = 3584
L_ST = L_RL + (ENT_CAP + 64) * 4
ST_STRIDE = 528
ZROW = NB + NW
L_QT = (L_ST + (ZROW + 1) * ST_STRIDE + 255) // 256 * 256
L_XS = L_QT + 56 * 512
L_W2 = L_XS + NW * 4096
L_B2 = L_W2 + 16384
L_T2 = L_B2 + 256
L_END = L_T2 + 16384
L_RS = L_ST
L_H1 = L_ST + 16640
L_OFF = L_H1 + 1024
L_W1 = L_XS
L_WC = L_XS + 32768
L_PS = L_WC + 512
L_XR = L_W2
PS_STRIDE = 272
assert L_XS % 256 == 0
assert L_END <= 163840 and L_H1 + 3072 <= L_ST + ZROW * ST_STRIDE and L_OFF + 1024 < 65536 and L_PS + 56 * PS_STRIDE <= L_W2

def f32bits(x):
    return struct.unpack("<I", struct.pack("<f", x))[0]
NLOG2E = f32bits(-1.4426950408889634)
NLN2 = f32bits(-0.6931471805599453)
PADREC = 0x3FFF
POLL_MAX = 4000

class Asm:
    def __init__(self):
        self.l = []
    def __call__(self, s=""):
        for x in s.strip("\n").split("\n"):
            self.l.append(x)
    def text(self):
        return "\n".join(self.l) + "\n"

def vr(a, n=1):
    return f"v{a}" if n == 1 else f"v[{a}:{a+n-1}]"
def sr(a, n=1):
    return f"s{a}" if n == 1 else f"s[{a}:{a+n-1}]"

DIAG = False
OPT = set()
def optval(prefix, default):
    for o in OPT:
        if o.startswith(prefix):
            return o[len(prefix):]
    return default

V_D = 0; V_E = 64; V_A5 = 96; V_B5 = 98; V_ND = 106; V_T = 122; V_R = 126; V_O = 128; V_IX = 132
V_AA = 140; V_AIDX = 141; V_AENT = 142; V_AQ = 143; V_INCQ = 144; V_AS = 145; V_MN = 146; V_PSEL = 147
V_TAB = 148; V_CNT = 149; V_B2 = 150; V_LANE = 154; V_TID = 155
V_J = 156; V_HH = 157
V_STAMP = 167; V_TRACE = 166
NVGPR = 168
S_X = 4; S_E = 6; S_SRC = 8; S_DST = 10; S_W1 = 12; S_B1 = 14; S_W2 = 16; S_B2 = 18; S_OUT = 20; S_DBG = 22; S_WS = 24
S_BIN = 26; S_N0 = 27; S_NN = 28; S_WAVE = 29; S_MODE = 30; S_K = 31; S_PC = 32; S_J = 34
S_RX = 36; S_RT = 40; S_RR = 44; S_P = 48
S_T0 = 56; S_NT = 57; S_TT = 58; S_SLOT = 59; S_A = 60; S_B = 61; S_C = 62; S_D = 63; S_TAG = 64
S_M = 66
S_OH = 66; S_PAR = 68; S_PAD = 70; S_MO = 71
def mask(k): return sr(S_M + 2*k, 2)

def stamp(a, k, real=False):
    if optval("spin", "") != "":
        if int(optval("spin", "")) == k:
            a("    s_memrealtime s[100:101]\n    s_waitcnt lgkmcnt(0)")
        return
    if not DIAG:
        return
    if "lite" in OPT and k not in (14, 16, 19):
        return
    a(f"    {'s_memrealtime' if real else 's_memtime'} s[98:99]")
    a(f"    s_waitcnt lgkmcnt(0)")
    a(f"    v_writelane_b32 v{V_STAMP}, s98, {k}")

def wave_scan(a, v):
    for sh in (1, 2, 4, 8):
        a(f"    s_nop 1")
        a(f"    v_add_u32_dpp v{v}, v{v}, v{v} row_shr:{sh} row_mask:0xf bank_mask:0xf")
    a(f"    s_nop 1")
    a(f"    v_add_u32_dpp v{v}, v{v}, v{v} row_bcast:15 row_mask:0xa bank_mask:0xf")
    a(f"    s_nop 1")
    a(f"    v_add_u32_dpp v{v}, v{v}, v{v} row_bcast:31 row_mask:0xc bank_mask:0xf")

SD = "dst_sel:DWORD dst_unused:UNUSED_PAD"

def small(c):
    d = vr(V_D + 16*c, 16)
    return f"    v_mfma_f32_32x32x8_bf16 {d}, {vr(V_A5,2)}, {vr(V_B5+2*c,2)}, {d}"
def tr_reads(h):
    return [f"    ds_read_b64_tr_b16 {vr(V_D+16*(2*h+k)+2*u,2)}, v{V_AA} offset:{512*u+64*k}" for u in range(8) for k in range(2)]
def ent_reads(off, q):
    h = [f"    ds_read_b32 v{V_A5+1}, v{V_AENT} offset:{off}"]
    if q:
        h += [f"    ds_read_b32 v{V_B5+2*c}, v{V_AQ} offset:{128*c}" for c in range(4)]
    return h
def idx_reads(off):
    return [f"    ds_read_u16 v{V_IX+2*m}, v{V_AIDX} offset:{off + 32*m}" for m in range(4)]
def dma_ops(h):
    return [f"    buffer_load_dwordx4 {vr(V_IX+2*m,2)}, {sr(S_RX,4)}, s{S_P+4*h+m} idxen offen offset:{1024*m} lds" for m in range(4)]

def x_phase(a, mf_cts, ex_cts, head, pre, plain, tail):
    es = [f"    v_exp_f32 v{V_E+16*k+2*u+b}, v{V_D+16*c+2*u+b}" for u in range(8) for k, c in enumerate(ex_cts) for b in range(2)]
    n1 = 22
    for h in head: a(h)
    for e in es[:n1-(4 if pre else 2)]: a(e)
    for p in plain: a(p)
    a(f"    s_waitcnt lgkmcnt(0)")
    if pre:
        a(pre[0]); a(es[n1-4]); a(pre[1]); a(pre[2]); a(es[n1-3]); a(pre[3])
    for e in es[n1-2:n1]: a(e)
    a(small(mf_cts[0]))
    for e in es[n1:n1+4]: a(e)
    a(small(mf_cts[1]))
    for e in es[n1+4:]: a(e)
    for t in tail: a(t)
    a(".p2align 3")

def flush_ops(a, cts):
    for k, c in enumerate(cts):
        D = V_ND + 4*c + 2
        a(f"    v_mul_f32 v{V_R+k}, v{D}, v{D+1}")
    for k, c in enumerate(cts):
        N = V_ND + 4*c; D = N + 2
        a(f"    v_pk_mul_f32 {vr(V_O+2*k,2)}, {vr(N,2)}, {vr(D,2)} op_sel:[0,1] op_sel_hi:[1,0]")
    for k, c in enumerate(cts):
        a(f"    v_rcp_f32 v{V_R+k}, v{V_R+k}")
    for k, c in enumerate(cts):
        a(f"    v_add_f32 v{V_O+2*k}, v{V_O+2*k}, v{V_O+2*k+1}")
    for k, c in enumerate(cts):
        a(f"    v_mul_f32 v{V_O+2*k}, v{V_O+2*k}, v{V_R+k}")
def flush_ops2(a, cts):
    a(f"    v_permlane32_swap_b32 v{V_O}, v{V_O+2}")
    a(f"    v_min3_f32 v{V_MN}, v{V_MN}, v{V_R}, v{V_R+1}")
    a(f"    v_add_f32 v{V_O}, v{V_O}, v{V_O+2}")
    a(f"    ds_write_b32 v{V_AS}, v{V_O} offset:{128*cts[0]}")

def y_phase(a, cts, b):
    nsrc = [V_ND + 4*c for c in cts]
    for u in range(8):
        if u == b:
            flush_ops(a, cts)
            for k, c in enumerate(cts):
                a(f"    v_pk_add_f32 {vr(V_ND+4*c+2,2)}, {vr(V_E+16*k+2*u,2)}, 1.0 op_sel_hi:[1,0]")
            flush_ops2(a, cts)
            for k, c in enumerate(cts):
                p = V_D + 16*c + 2*u
                if u == 7:
                    a(f"    v_pk_mov_b32 {vr(V_ND+4*c,2)}, {vr(p,2)}, {vr(p,2)} op_sel:[0,1]")
                else:
                    nsrc[k] = p
            continue
        for k, c in enumerate(cts):
            a(f"    v_pk_fma_f32 {vr(V_T+2*k,2)}, {vr(V_D+16*c+2*u,2)}, {vr(V_ND+4*c+2,2)}, {vr(nsrc[k],2)}")
        for k, c in enumerate(cts):
            D = V_ND + 4*c + 2
            a(f"    v_pk_fma_f32 {vr(D,2)}, {vr(D,2)}, {vr(V_E+16*k+2*u,2)}, {vr(D,2)}")
        for k, c in enumerate(cts):
            a(f"    v_pk_fma_f32 {vr(V_ND+4*c,2)}, {vr(nsrc[k],2)}, {vr(V_E+16*k+2*u,2)}, {vr(V_T+2*k,2)}")
            nsrc[k] = V_ND + 4*c

def onehot_ops():
    return [f"    v_cmp_ne_u32 vcc, s{S_PAD}, v{V_A5+1}",
            f"    s_xor_b64 {sr(S_OH,2)}, {sr(S_OH,2)}, {sr(S_PAR,2)}",
            f"    s_and_b64 vcc, vcc, {sr(S_OH,2)}",
            f"    v_cndmask_b32 v{V_A5}, 0, v{V_PSEL}, vcc"]
def mask_load():
    return [f"    s_sub_u32 s{S_MO}, s{S_J}, 4", f"    s_andn2_b32 s{S_MO}, s{S_MO}, 63",
            f"    s_load_dwordx2 {sr(S_OH,2)}, {sr(S_PC,2)}, s{S_MO}"]
def row_mask(b):
    sw = lambda i: (i & 0x19) | ((i & 2) << 1) | ((i & 4) >> 1)
    return sum(1 << i for i in range(32) if b is None or sw(i) < 4*b)

VAR_SIZE = 1792
def tile_variant(a, vi, b):
    name = "N" if b is None else str(b)
    a(f".org K_vbase + {VAR_SIZE*vi}, 0")
    a(f".long {row_mask(b):#x}, {row_mask(b) ^ 0xffffffff:#x}")
    a(f".org K_vbase + {VAR_SIZE*vi + 64 - 20}, 0")
    a(f"    s_setprio 2\n    s_branch K_var{name}\n    s_setprio 1\n    s_branch K_var{name}\n    s_setprio 0")
    a(f"K_var{name}:")
    bnd = b is not None
    if "trace" in OPT:
        a(f"    s_memtime s[98:99]\n    s_mov_b32 s{S_A}, m0\n    s_mov_b32 m0, s{S_K}\n    s_waitcnt lgkmcnt(0)")
        a(f"    v_writelane_b32 v{V_TRACE}, s98, m0\n    s_mov_b32 m0, s{S_A}")
    plain0 = []
    if bnd:
        plain0 = [f"    v_add_u32 v{V_AQ}, v{V_AQ}, v{V_INCQ}", f"    v_xor_b32 v{V_INCQ}, 0x400, v{V_INCQ}"]
    plain0.append(f"    v_readlane_b32 s{S_J}, v{V_TAB}, s{S_K}")
    x_phase(a, (2, 3), (0, 1), ["    s_waitcnt vmcnt(0)"] + tr_reads(1) + [f"K_vh{name}:"] + idx_reads(128), [], plain0,
            dma_ops(0) + [f"    s_add_u32 s{S_K}, s{S_K}, 1"] + mask_load() + ([f"    s_not_b64 {sr(S_PAR,2)}, {sr(S_PAR,2)}"] if bnd else []))
    y_phase(a, (0, 1), b)
    plain1 = [f"    v_add_u32 v{V_AENT}, 0x80, v{V_AENT}", f"    v_add_u32 v{V_AIDX}, 0x80, v{V_AIDX}"]
    x_phase(a, (0, 1), (2, 3), ["    s_waitcnt vmcnt(0)"] + ent_reads(128, bnd) + tr_reads(0),
            onehot_ops(), plain1,
            dma_ops(1) + [f"    s_add_u32 s{S_J}, s{S_J}, s{S_PC}", f"    s_addc_u32 s{S_J+1}, s{S_PC+1}, 0"])
    y_phase(a, (2, 3), b)
    if bnd:
        a(f"    v_add_u32 v{V_AS}, {ST_STRIDE}, v{V_AS}")
    a(f"    s_setpc_b64 {sr(S_J,2)}")

def gen_kernel(a):
    L = V_LANE; T = V_TID; J = V_J; HH = V_HH
    t0, t1, t2, t3, t4, t5 = 158, 159, 160, 161, 162, 163
    vDst = 0
    vSrc = 8
    vEa = 14
    vBa = 20
    vRk = 26
    vOf = 32
    vX = 40
    vWf = 56
    vAc = 72
    vTb = 88
    vZ = 128
    vPad = 56
    vWa = 38; vXa = 88; vTg = 18; vTa = 39; vC8 = 37; vWp = 31
    vG4 = 164; vSb = 165
    vS = 122; vP = 123; vOne = 124; vAA2 = 125; vPf = 126
    a(f"""
.p2align 8
.globl {KNAME}
.type {KNAME},@function
{KNAME}:
    s_cmp_ge_u32 s2, 256
    s_cbranch_scc1 K_end
    s_load_dwordx8 s[4:11], s[0:1], 0
    s_load_dwordx8 s[12:19], s[0:1], 32      ; w1, b1, w2, b2
    s_load_dwordx4 s[20:23], s[0:1], 64
    s_load_dwordx2 s[24:25], s[0:1], 80      ; ws
    s_memrealtime {sr(S_TAG,2)}
    v_lshrrev_b32 v1, 6, v0
    v_mov_b32 v{T}, v0
    v_readfirstlane_b32 s{S_WAVE}, v1
    v_and_b32 v{L}, 63, v0
    s_mul_i32 s3, s2, {MAINE*4}
    v_lshl_add_u32 v{t0}, v0, 4, s3
    v_lshrrev_b32 v{t1}, 1, v{t0}
    s_and_b32 s{S_BIN}, s2, 7
    s_lshl_b32 s{S_BIN}, s{S_BIN}, 5
    s_lshr_b32 s3, s2, 3
    s_add_u32 s{S_BIN}, s{S_BIN}, s3
    s_mul_i32 s{S_N0}, s{S_BIN}, {NB}
    s_sub_u32 s{S_NN}, {N_NODES}, s{S_N0}
    s_min_u32 s{S_NN}, s{S_NN}, {NB}
    v_and_b32 v{J}, 31, v0
    v_bfe_u32 v{HH}, v0, 5, 1
    s_mov_b32 s{S_MODE}, 0
    v_mov_b32 v{vZ}, 0
    v_mov_b32 v{vZ+1}, 0
    v_mov_b32 v{vZ+2}, 0
    v_mov_b32 v{vZ+3}, 0
    v_lshlrev_b32 v{t2}, 2, v0""")
    if DIAG:
        a(f"    v_mov_b32 v{V_STAMP}, 0\n    v_mov_b32 v{V_TRACE}, 0")
        stamp(a, 0, True); stamp(a, 1)
    wc = lambda c: V_B5 + 2*c
    vB1 = 97
    tc = 17
    ndual = int(optval("dual", "0"))
    cpos = optval("c_", "drain"); qpos = optval("q_", "post")
    def emit_consts():
        a(f"""
    v_and_b32 v{tc}, 7, v{L}
    v_lshlrev_b32 v{V_IX+1}, 4, v{tc}
    v_mov_b32 v{V_IX+3}, v{V_IX+1}
    v_mov_b32 v{V_IX+5}, v{V_IX+1}
    v_mov_b32 v{V_IX+7}, v{V_IX+1}
    v_and_b32 v{tc}, 8, v{L}
    v_lshl_add_u32 v{tc}, v{tc}, 4, v{vC8}
    v_lshl_add_u32 v{tc}, v{HH}, 8, v{tc}
    s_lshl_b32 s{S_B}, s{S_WAVE}, 12
    s_add_u32 s{S_B}, s{S_B}, {L_XS}
    v_add_u32 v{tc}, s{S_B}, v{tc}
    v_and_b32 v{t3}, 4, v{L}
    v_cmp_ne_u32 vcc, 0, v{t3}
    v_mov_b32 v{t3}, {L_Z}
    v_mov_b32 v{V_PSEL}, 0x3f803f80
    v_cndmask_b32 v{V_AA}, v{t3}, v{tc}, vcc
    v_add_u32 v{tc}, {L_T2 - L_XS}, v{tc}
    v_cndmask_b32 v{vAA2}, v{t3}, v{tc}, vcc
    v_and_b32 v{V_AENT}, 0x19, v{L}
    v_and_b32 v{tc}, 2, v{L}
    v_lshl_add_u32 v{V_AENT}, v{tc}, 1, v{V_AENT}
    v_bfe_u32 v{tc}, v{L}, 2, 1
    v_lshl_add_u32 v{V_AENT}, v{tc}, 1, v{V_AENT}
    v_lshlrev_b32 v{V_AENT}, 2, v{V_AENT}
    v_lshrrev_b32 v{V_AIDX}, 3, v{L}
    v_lshlrev_b32 v{V_AIDX}, 2, v{V_AIDX}""")
        for h in range(2):
            for m in range(4):
                a(f"    s_movk_i32 s{S_P+4*h+m}, {3072 - 1024*m + 128*h}")
        for c in range(4):
            a(f"    v_mov_b32 v{V_ND+4*c}, 0")
            a(f"    v_mov_b32 v{V_ND+4*c+1}, 0")
            a(f"    v_mov_b32 v{V_ND+4*c+2}, 1.0")
            a(f"    v_mov_b32 v{V_ND+4*c+3}, 1.0")
        a(f"""
    v_mov_b32 v{V_MN}, 1.0
    s_and_b32 s{S_A}, s{S_WAVE}, 3
    s_mul_i32 s{S_A}, s{S_A}, 3
    s_lshr_b32 s{S_B}, s{S_WAVE}, 2
    s_add_u32 s{S_SLOT}, s{S_A}, s{S_B}
    s_getpc_b64 {sr(S_PC,2)}
K_pc:
    s_add_u32 s{S_PC}, s{S_PC}, K_vbase - K_pc
    s_addc_u32 s{S_PC+1}, s{S_PC+1}, 0
    ; segment mapping of phase 2: segment 128 i + t/6, lane group g = t%6
    v_mul_u32_u24 v{tc}, 10923, v{T}
    v_lshrrev_b32 v{tc}, 16, v{tc}
    v_mad_i32_i24 v{vG4}, v{tc}, -6, v{T}
    v_lshlrev_b32 v{vG4}, 2, v{vG4}          ; 4g
    v_mul_u32_u24 v{vSb}, {RSTRIDE}, v{tc}
    s_lshr_b32 s{S_A}, s2, 3
    s_mul_i32 s{S_A}, s{S_A}, {781*128}
    s_add_u32 s{S_A}, s{S_A}, {WS_P}
    v_lshl_add_u32 v{vPf}, v{T}, 7, s{S_A}
    s_lshr_b32 s{S_B}, s{S_BIN}, 2
    s_lshl_b32 s{S_B}, s{S_B}, 4
    s_and_b32 s{S_A}, s{S_BIN}, 1
    s_lshl_b32 s{S_A}, s{S_A}, 3
    s_add_u32 s{S_B}, s{S_B}, s{S_A}
    s_and_b32 s{S_A}, s{S_BIN}, 2
    s_lshl_b32 s{S_A}, s{S_A}, 9
    s_add_u32 s{S_B}, s{S_B}, s{S_A}
    s_add_u32 s{S_B}, s{S_B}, {WS_TAB}
    v_lshl_add_u32 v{vTa}, v{tc}, 11, s{S_B}""")
    def emit_q():
        a(f"""
    s_cmp_ge_u32 s{S_WAVE}, 8
    s_cbranch_scc1 K_notQ
    ; ---- Q tile while the stores drain
    s_lshl_b32 s{S_A}, s{S_D}, 6
    v_add_u32 v{t3}, s{S_A}, v{t0}
    ds_read_u16 v{vB1}, v{t3} offset:256
    v_add_u32 v{tc}, v{vWa}, v{vC8}""")
        for s_ in range(4):
            for h in range(2):
                a(f"    ds_read_b64_tr_b16 {vr(vWf+4*s_+2*h,2)}, v{tc} offset:{16384+4096*s_+1024*h}")
        a(f"""
    s_and_b32 s{S_A}, s{S_WAVE}, 1
    s_lshl_b32 s{S_B}, s{S_A}, 14
    s_lshl_b32 s{S_C}, s{S_D}, 7
    s_add_u32 s{S_B}, s{S_B}, s{S_C}
    s_add_u32 s{S_B}, s{S_B}, {L_QT}
    v_lshl_add_u32 v{tc}, v{HH}, 11, s{S_B}
    v_lshl_add_u32 v{tc}, v{J}, 2, v{tc}""")
        for s_ in range(4):
            a(f"    s_waitcnt lgkmcnt({6-2*s_})")
            cin = "0" if s_ == 0 else vr(vAc, 16)
            a(f"    v_mfma_f32_32x32x16_bf16 {vr(vAc,16)}, {vr(vX+4*s_,4)}, {vr(vWf+4*s_,4)}, {cin}")
        a(f"""
    v_lshlrev_b32 v{vB1}, 16, v{vB1}
    v_mul_f32 v{vB1}, s3, v{vB1}
    s_nop 9""")
        def qrow(r):
            a(f"    v_fma_f32 v{vAc+r}, v{vAc+r}, s3, v{vB1}")
            a(f"    v_cvt_pk_bf16_f32 v{vWf+r}, v{vZ}, v{vAc+r}")
            a(f"    v_sub_f32 v{vWf+r}, v{vAc+r}, v{vWf+r}")
            a(f"    v_cvt_pk_bf16_f32 v{vWf+r}, v{vAc+r}, v{vWf+r}")
            a(f"    ds_write_b32 v{tc}, v{vWf+r} offset:{512*(8*(r>>2)+(r&3))}")
        for r in range(12): qrow(r)
        a(f"""
    s_cmp_eq_u32 s{S_A}, 1
    s_cbranch_scc1 K_notQ""")
        for r in range(12, 16): qrow(r)
        a(f"""
K_notQ:
    ds_read_u16 v{wc(0)}, v{t0}
    ds_read_u16 v{wc(1)}, v{t0} offset:64
    ds_read_u16 v{wc(2)}, v{t0} offset:128
    ds_read_u16 v{wc(3)}, v{t0} offset:192
    v_cmp_lt_u32 vcc, 31, v{L}
    s_waitcnt lgkmcnt(0)""")
        for c in range(4):
            a(f"    v_lshlrev_b32 v{wc(c)}, 16, v{wc(c)}")
            a(f"    v_mul_f32 v{wc(c)}, s3, v{wc(c)}")
            a(f"    v_cvt_pk_bf16_f32 v{t3}, v{vZ}, v{wc(c)}")
            a(f"    v_sub_f32 v{t4}, v{wc(c)}, v{t3}")
            a(f"    v_cvt_pk_bf16_f32 v{t4}, v{vZ}, v{t4}")
            a(f"    v_cndmask_b32 v{V_B5+2*c+1}, v{t3}, v{t4}, vcc")
    step = NT_ * 16
    wc = lambda c: V_B5 + 2*c
    vB1 = 97
    a(f"""
    s_waitcnt lgkmcnt(0)
    global_load_dwordx4 {vr(vDst,4)}, v{t0}, {sr(S_DST,2)}
    {f"s_add_u32 s{S_WS}, s{S_WS}, {int(optval('wsoff', '0')) << 20}" if optval('wsoff', '') else ""}
    {f"s_addc_u32 s{S_WS+1}, s{S_WS+1}, 0" if optval('wsoff', '') else ""}
    {f"v_writelane_b32 v{V_STAMP}, s{S_TAG}, 0" if "lite" in OPT else ""}
    ds_write_b32 v{t2}, v{vZ} offset:{L_H1}
    s_cmp_lg_u32 s{S_WAVE}, 11
    s_cbranch_scc1 K_ld1
    s_mul_i32 s{S_A}, s2, {XTRA}
    s_add_u32 s{S_A}, s{S_A}, {256*MAINE}
    v_min_u32 v{t5}, {XTRA-1}, v{L}
    v_add_lshl_u32 v{t5}, v{t5}, s{S_A}, 2
    v_lshrrev_b32 v{t4}, 1, v{t5}
    global_load_dword v{vDst+4}, v{t5}, {sr(S_DST,2)}
    global_load_dword v{vSrc+4}, v{t5}, {sr(S_SRC,2)}
    global_load_ushort v{vEa+2}, v{t4}, {sr(S_E,2)}
K_ld1:""")
    if "nocpf" not in OPT:
        a(f"""
    ; the first workgroups pull the rest of the code into their die's L2
    s_cmp_ge_u32 s2, 32
    s_cbranch_scc1 K_ld2
    s_sub_u32 s{S_A}, s{S_WAVE}, 5
    s_cmp_ge_u32 s{S_A}, 3
    s_cbranch_scc1 K_ld2
    s_lshl_b32 s{S_A}, s{S_A}, 13
    v_lshl_add_u32 v{t5}, v{L}, 7, s{S_A}
    s_getpc_b64 {sr(S_J,2)}
    global_load_dword v{t4}, v{t5}, {sr(S_J,2)}
K_ld2:""")
    if "tlb" in OPT:
        a(f"""
    s_cmp_lg_u32 s{S_WAVE}, 4
    s_cbranch_scc1 K_ld3
    v_mul_u32_u24 v{t5}, {4*RSTRIDE}, v{L}
    v_add_u32 v{t5}, {RSTRIDE - 4}, v{t5}
    s_mov_b32 s{S_A}, {WS_P - 4096}
    v_writelane_b32 v{t5}, s{S_A}, 1
    s_mov_b32 s{S_A}, {WS_P + N_NODES*256 + 4096}
    v_writelane_b32 v{t5}, s{S_A}, 3
    global_load_dword v{t4}, v{t5}, {sr(S_WS,2)}
K_ld3:""")
    a(f"""
    s_lshl_b32 s{S_A}, s2, 4
    s_add_u32 s{S_A}, s{S_A}, s{S_WAVE}
    s_cmp_lg_u32 s{S_A}, 9
    s_cbranch_scc1 K_ldJ
    s_lshl_b32 s{S_A}, s{S_TAG}, 25
    s_or_b32 s{S_A}, s{S_A}, 1
    s_lshr_b64 {sr(S_TAG,2)}, {sr(S_TAG,2)}, 7
    v_mov_b32 v{t4}, s{S_A}
    v_mov_b32 v{t4+1}, s{S_TAG}
    s_mov_b64 exec, 1
    global_store_dwordx2 v{vZ}, {vr(t4,2)}, {sr(S_DBG,2)} sc1
    s_mov_b64 exec, -1
K_ldJ:
    s_lshl_b32 s{S_A}, s{S_WAVE}, 11
    s_cmp_ge_u32 s{S_WAVE}, 8
    s_cbranch_scc1 K_stX
    s_add_u32 s{S_B}, s{S_A}, {L_W1}
    s_mov_b32 m0, s{S_B}
    v_lshrrev_b32 v{t3}, 2, v{L}
    v_and_b32 v{t3}, 12, v{t3}
    v_xor_b32 v{t3}, v{t3}, v{L}
    v_lshl_add_u32 v{t5}, v{t3}, 4, s{S_A}
    global_load_lds_dwordx4 v{t5}, {sr(S_W1,2)}
    global_load_lds_dwordx4 v{t5}, {sr(S_W1,2)} offset:1024
    s_branch K_stJ
K_stX:
    s_mov_b32 s{S_RX}, s4
    s_mov_b32 s{S_RX+1}, s5
    s_mov_b32 s{S_RX+2}, {N_NODES*128}
    s_mov_b32 s{S_RX+3}, 0x00020000
    s_add_u32 s{S_B}, s{S_A}, {L_XR - 16384}
    s_mov_b32 m0, s{S_B}
    s_lshl_b32 s{S_B}, s{S_N0}, 7
    s_add_u32 s{S_A}, s{S_A}, s{S_B}
    s_sub_u32 s{S_A}, s{S_A}, 16384
    v_lshrrev_b32 v{t3}, 4, v{L}
    v_xor_b32 v{t3}, v{t3}, v{L}
    v_lshl_add_u32 v{t3}, v{t3}, 4, s{S_A}
    v_xor_b32 v{t4}, 64, v{t3}
    buffer_load_dwordx4 v{t3}, {sr(S_RX,4)}, 0 offen lds
    buffer_load_dwordx4 v{t4}, {sr(S_RX,4)}, 0 offen offset:1024 lds
K_stJ:
    s_waitcnt lgkmcnt(0)
    s_barrier
    v_mov_b32 v{vPad}, {PADREC}
    v_mov_b32 v{vPad+1}, {PADREC}
    v_mov_b32 v{vPad+2}, {PADREC}
    v_mov_b32 v{vPad+3}, {PADREC}
    v_lshlrev_b32 v{t2}, 4, v{T}
    ds_write_b128 v{t2}, {vr(vPad,4)} offset:{L_RL}
    s_cmp_ge_u32 s{S_WAVE}, 4
    s_cbranch_scc1 K_in1
    ds_write_b128 v{t2}, {vr(vZ,4)}
    ds_write_b128 v{t2}, {vr(vPad,4)} offset:{L_ST - 4096}
K_in1:
    s_cmp_lg_u32 s{S_WAVE}, 4
    s_cbranch_scc1 K_in2
    v_lshlrev_b32 v{t3}, 3, v{L}
    v_add_u32 v{t3}, {L_ST + ZROW*ST_STRIDE}, v{t3}
    ds_write_b64 v{t3}, {vr(vZ,2)}
K_in2:
    global_load_dwordx4 {vr(vSrc,4)}, v{t0}, {sr(S_SRC,2)}
    global_load_dwordx2 {vr(vEa,2)}, v{t1}, {sr(S_E,2)}
    s_cmp_ge_u32 s{S_WAVE}, 8
    s_cbranch_scc1 K_st2
    s_add_u32 m0, m0, 16384
    v_add_u32 v{t5}, 0x4000, v{t5}
    global_load_lds_dwordx4 v{t5}, {sr(S_W1,2)}
    global_load_lds_dwordx4 v{t5}, {sr(S_W1,2)} offset:1024
    s_branch K_st3
K_st2:
    s_mov_b32 m0, {L_WC}
    v_lshlrev_b32 v{t3}, 2, v{L}
    v_add_u32 v{t4}, 0x8000, v{t3}
    global_load_lds_dword v{t4}, {sr(S_W1,2)}
    s_mov_b32 m0, {L_WC + 256}
    s_nop 0
    global_load_lds_dword v{t3}, {sr(S_B1,2)}
K_st3:
    v_and_b32 v{vC8}, 3, v{L}
    v_lshlrev_b32 v{vC8}, 3, v{vC8}
    v_and_b32 v{t1}, 16, v{L}
    v_lshl_add_u32 v{vC8}, v{t1}, 1, v{vC8}    ; 8c + 32(g&1)
""")
    if cpos == "early": emit_consts()
    a(f"""
    s_lshr_b32 s{S_D}, s{S_WAVE}, 1          ; ct
    v_bfe_u32 v{t0}, v{L}, 2, 2
    v_xor_b32 v{t3}, s{S_D}, v{t0}
    v_lshlrev_b32 v{t3}, 6, v{t3}
    v_lshl_add_u32 v{t0}, v{HH}, 3, v{t0}
    v_lshl_add_u32 v{t0}, v{t0}, 8, v{t3}
    v_add_u32 v{vWa}, {L_W1}, v{t0}
    v_and_b32 v{vWp}, 1, v{L}
    v_lshl_add_u32 v{vWp}, v{vWp}, 5, v{vWa}
    v_and_b32 v{t3}, 16, v{L}
    v_add_u32 v{vWp}, v{vWp}, v{t3}
    v_and_b32 v{t3}, 2, v{L}
    v_lshl_add_u32 v{vWp}, v{t3}, 2, v{vWp}    ; + 16(c&1) + 4(2(g&1) + (c>>1)) columns
    s_and_b32 s{S_A}, s{S_WAVE}, 1
    s_lshl_b32 s{S_A}, s{S_A}, 12
    s_add_u32 s{S_A}, s{S_A}, {L_XR}
    v_bfe_u32 v{t3}, v{L}, 1, 3
    v_xor_b32 v{t3}, v{t3}, v{HH}
    v_lshl_add_u32 v{t3}, v{t3}, 4, s{S_A}
    v_lshl_add_u32 v{vXa}, v{J}, 7, v{t3}
    v_xor_b32 v{vXa+1}, 32, v{vXa}
    v_xor_b32 v{vXa+2}, 64, v{vXa}
    v_xor_b32 v{vXa+3}, 0x60, v{vXa}
    s_mov_b32 s{S_A}, 21400
    s_mov_b32 s{S_B}, -{NB}
    s_mov_b32 s{S_C}, 0xffff0000
    v_mov_b32 v{t5}, 0x10004
    s_waitcnt vmcnt(6)
    s_cmp_lg_u32 s{S_WAVE}, 11
    s_cbranch_scc1 K_wJ
    s_bfm_b64 exec, {XTRA}, 0""")
    assert L_ST - L_RL <= step + 4096
    def binops(cols):
        for i in cols: a(f"    v_mul_u32_u24 v{vBa+i}, s{S_A}, v{vDst+i}")
        for i in cols: a(f"    v_lshrrev_b32 v{vBa+i}, 18, v{vBa+i}")
        for i in cols:
            a(f"    v_and_b32 v{vBa+i}, 0x3fc, v{vBa+i}")
            a(f"    ds_add_rtn_u32 v{vRk+i}, v{vBa+i}, v{t5} offset:{L_H1}")
        for i in cols: a(f"    v_lshlrev_b32 v{vDst+i}, 2, v{vDst+i}")
        for i in cols: a(f"    v_mad_i32_i24 v{vDst+i}, v{vBa+i}, s{S_B}, v{vDst+i}")
    binops([4])
    a(f"""
    s_mov_b64 exec, -1
K_wJ:""")
    stamp(a, 2)
    binops(range(4))
    a(f"""
    s_waitcnt vmcnt(4) lgkmcnt(0)
    s_barrier""")
    stamp(a, 3)
    a(f"""
    s_cmp_eq_u32 s{S_WAVE}, 8
    s_cbranch_scc1 K_scan1
    s_cmp_gt_u32 s{S_WAVE}, 8
    s_cbranch_scc1 K_notP""")
    for s_ in range(4):
        a(f"    ds_read_b128 {vr(vX+4*s_,4)}, v{vXa+s_}")
        for h in range(2):
            a(f"    ds_read_b64_tr_b16 {vr(vWf+4*s_+2*h,2)}, v{vWp} offset:{4096*s_+1024*h}")
    for s_ in range(4):
        a(f"    s_waitcnt lgkmcnt({9-3*s_})")
        cin = "0" if s_ == 0 else vr(vAc, 16)
        a(f"    v_mfma_f32_32x32x16_bf16 {vr(vAc,16)}, {vr(vWf+4*s_,4)}, {vr(vX+4*s_,4)}, {cin}")
    a(f"""
    s_and_b32 s{S_B}, s{S_WAVE}, 1
    s_mul_i32 s{S_A}, s{S_B}, {32*PS_STRIDE}
    s_lshl_b32 s{S_B}, s{S_D}, 6
    s_add_u32 s{S_A}, s{S_A}, s{S_B}
    s_add_u32 s{S_A}, s{S_A}, {L_PS}
    v_mul_u32_u24 v{t3}, {PS_STRIDE}, v{J}
    v_lshl_add_u32 v{t3}, v{HH}, 5, v{t3}
    v_add_u32 v{t3}, s{S_A}, v{t3}
    v_mov_b32 v{t4}, {NLOG2E:#x}
    v_cmp_gt_u32 vcc, {L_PS + 56*PS_STRIDE}, v{t3}
    s_nop 1""")
    for q in range(8):
        a(f"    v_pk_mul_f32 {vr(vAc+2*q,2)}, {vr(vAc+2*q,2)}, {vr(t4,2)} op_sel_hi:[1,0]")
    for q in range(8):
        a(f"    v_cvt_pk_bf16_f32 v{vAc+q}, v{vAc+2*q}, v{vAc+2*q+1}")
    a(f"""
    s_mov_b64 exec, vcc
    ds_write_b128 v{t3}, {vr(vAc,4)}
    ds_write_b128 v{t3}, {vr(vAc+4,4)} offset:16
    s_mov_b64 exec, -1
    s_branch K_b3
K_notP:
    v_lshlrev_b32 v{t1}, 4, v{L}
    v_add_u32 v{t4}, {L_PS + 48*PS_STRIDE}, v{t1}
    v_add_u32 v{t1}, {48*256}, v{t1}
    v_and_b32 v{vBa+4}, 0x3fc, v{vBa+4}
    s_cmp_lg_u32 s{S_WAVE}, 9
    s_cbranch_scc1 K_b3
    global_load_dwordx2 {vr(vTg,2)}, v{vZ}, {sr(S_DBG,2)}
    s_branch K_b3
K_scan1:
    s_setprio 2
    v_lshlrev_b32 v{t0}, 4, v{L}
    ds_read_b128 v[56:59], v{t0} offset:{L_H1}
    s_waitcnt lgkmcnt(0)""")
    for i in range(4):
        a(f"    v_lshrrev_b32 v{60+i}, 16, v{56+i}")
    for i in range(4):
        a(f"    v_mad_u32_u24 v{64+i}, v{60+i}, 5, 3")
    for i in range(4):
        a(f"    v_and_b32 v{64+i}, -4, v{64+i}")
    a(f"""
    v_add_u32 v65, v64, v65
    v_add_u32 v66, v65, v66
    v_add_u32 v67, v66, v67
    v_mov_b32 v68, v67""")
    wave_scan(a, 68)
    a(f"""
    v_sub_u32 v68, v68, v67
    v_add_u32 v69, v68, v64
    v_add_u32 v70, v68, v65
    v_add_u32 v71, v68, v66
    s_mov_b32 s{S_A}, 0x10001""")
    for i in range(4):
        a(f"    v_mul_u32_u24 v{64+i}, s{S_A}, v{68+i}")
    for i in range(4):
        a(f"    v_lshl_add_u32 v{64+i}, v{56+i}, 16, v{64+i}")
    a(f"""
    ds_write_b128 v{t0}, v[64:67] offset:{L_OFF}
    s_setprio 0
K_b3:
    v_lshrrev_b32 v{t0}, 4, v{T}
    v_lshl_add_u32 v{t0}, v{t0}, 4, v{t2}
    v_add_u32 v{t0}, {L_PS}, v{t0}
    s_lshl_b32 s{S_A}, s{S_N0}, 8
    s_add_u32 s{S_A}, s{S_A}, {WS_P + (0x800000 if optval("cheat", "") else 0)}
    s_add_u32 s{S_RT}, s{S_WS}, s{S_A}
    s_addc_u32 s{S_RT+1}, s{S_WS+1}, 0
    s_lshl_b32 s{S_RT+2}, s{S_NN}, 8
    s_mov_b32 s{S_RT+3}, 0x00020000
    s_waitcnt lgkmcnt(0)
    s_barrier""")
    stamp(a, 4)
    a(f"""
    s_cmp_lt_u32 s{S_WAVE}, 10
    s_cbranch_scc1 K_nx0
    ds_read_b32 v{vOf+4}, v{vBa+4} offset:{L_OFF}
    ds_read_b128 v[76:79], v{t4}
K_nx0:
    ds_read_b128 v[72:75], v{t0}""")
    for i in range(4):
        a(f"    ds_read_b32 v{vOf+i}, v{vBa+i} offset:{L_OFF}")
    a(f"""
    s_waitcnt vmcnt(2)
    v_lshl_or_b32 v{vSrc}, v{vEa}, 16, v{vSrc}
    v_and_or_b32 v{vSrc+1}, v{vEa}, s{S_C}, v{vSrc+1}
    v_lshl_or_b32 v{vSrc+2}, v{vEa+1}, 16, v{vSrc+2}
    v_and_or_b32 v{vSrc+3}, v{vEa+1}, s{S_C}, v{vSrc+3}
    s_waitcnt lgkmcnt(4)
    buffer_store_dwordx4 v[72:75], v{t2}, {sr(S_RT,4)}, 0 offen sc1""")
    def scatter(i):
        a(f"    v_add_u32_sdwa v{vBa+i}, v{vOf+i}, v{vRk+i} {SD} src0_sel:WORD_0 src1_sel:WORD_0")
        a(f"    v_add_u32_sdwa v{vOf+i}, v{vOf+i}, v{vRk+i} {SD} src0_sel:WORD_1 src1_sel:WORD_1")
        a(f"    ds_write_b32 v{vBa+i}, v{vSrc+i} offset:{L_RS}")
        a(f"    ds_write_b8 v{vOf+i}, v{vDst+i} offset:{L_RS}")
    a(f"    s_waitcnt lgkmcnt(0)")
    for i in range(4): scatter(i)
    a(f"""
    s_waitcnt vmcnt(1)
    s_cmp_lt_u32 s{S_WAVE}, 9
    s_cbranch_scc1 K_nx2
    s_cmp_eq_u32 s{S_WAVE}, 11
    s_cbranch_scc1 K_x2
    s_cmp_eq_u32 s{S_WAVE}, 9
    s_cbranch_scc1 K_tag0
    buffer_store_dwordx4 v[76:79], v{t1}, {sr(S_RT,4)}, 0 offen sc1
    s_branch K_nx2
K_tag0:
    s_mov_b32 s{S_K}, 0
K_tagp:
    v_cmp_ne_u32 vcc, 0, v{vTg}
    s_cbranch_vccnz K_tagok
    s_add_u32 s{S_K}, s{S_K}, 1
    s_cmp_gt_u32 s{S_K}, {POLL_MAX}
    s_cbranch_scc1 K_tagok
    global_load_dwordx2 {vr(vTg,2)}, v{vZ}, {sr(S_DBG,2)} sc1
    s_waitcnt vmcnt(0)
    s_branch K_tagp
K_tagok:
    ds_write_b64 v{vZ}, {vr(vTg,2)} offset:{L_NONCE}
    s_branch K_nx2
K_x2:
    s_bfm_b64 exec, {XTRA}, 0
    v_lshl_or_b32 v{vSrc+4}, v{vEa+2}, 16, v{vSrc+4}""")
    scatter(4)
    a(f"""
    s_mov_b64 exec, -1
K_nx2:
    s_mul_i32 s{S_A}, s2, {RSTRIDE}
    s_add_u32 s{S_RR}, s{S_WS}, s{S_A}
    s_addc_u32 s{S_RR+1}, s{S_WS+1}, 0
    s_mov_b32 s{S_RR+2}, 16512
    s_mov_b32 s{S_RR+3}, 0x00020000
    v_add_u32 v{t3}, {step}, v{t2}
    s_waitcnt lgkmcnt(0)
    s_barrier""")
    stamp(a, 5)
    a(f"""
    ds_read_b128 v[0:3], v{t2} offset:{L_RS}
    ds_read_b64 v[12:13], v{vZ} offset:{L_NONCE}
    s_cmp_ge_u32 s{S_WAVE}, 5
    s_cbranch_scc1 K_co1
    ds_read_b128 v[8:11], v{t2} offset:{L_RS + step}
    s_waitcnt lgkmcnt(0)
    buffer_store_dwordx4 v[8:11], v{t3}, {sr(S_RR,4)}, 0 offen sc1
K_co1:
    s_waitcnt lgkmcnt(0)
    buffer_store_dwordx4 v[0:3], v{t2}, {sr(S_RR,4)}, 0 offen sc1
""")
    if optval("cheat", ""):
        a(f"""
    s_cmp_ge_u32 s{S_WAVE}, {optval("cheat", "")}
    s_cbranch_scc1 K_ch0
    s_lshr_b32 s{S_A}, s2, 3
    s_mul_i32 s{S_A}, s{S_A}, {781*128}
    s_add_u32 s{S_A}, s{S_A}, {WS_P}
    v_lshl_add_u32 v14, v{T}, 7, s{S_A}
    global_load_dword v14, v14, {sr(S_WS,2)}
K_ch0:""")
    a(f"""
    v_readfirstlane_b32 s{S_TAG}, v12
    v_readfirstlane_b32 s{S_TAG+1}, v13
    s_mov_b32 s3, {NLOG2E:#x}
    v_lshlrev_b32 v{t0}, 1, v{J}
    v_add_u32 v{t0}, {L_WC}, v{t0}
    s_cmp_lg_u32 s{S_WAVE}, 8
    s_cbranch_scc1 K_ntb
    s_and_b32 s{S_C}, s{S_TAG}, 0xfe000000
    s_lshl_b32 s{S_B}, s2, 11
    s_add_u32 s{S_B}, s{S_B}, {WS_TAB}
    v_lshl_add_u32 v{t1}, v{L}, 4, s{S_B}""")
    for i in range(4):
        a(f"    v_lshrrev_b32 v{68+i}, 2, v{68+i}")
        a(f"    v_lshl_or_b32 v{68+i}, v{60+i}, 13, v{68+i}")
        a(f"    v_or_b32 v{vTb+2*i}, s{S_C}, v{68+i}")
        a(f"    v_mov_b32 v{vTb+2*i+1}, s{S_TAG+1}")
    a("K_ntb:")
    if cpos == "drain": emit_consts()
    if qpos == "drain":
        emit_q(); stamp(a, 7)
    if optval("cheat", ""):
        a(f"""
    s_cmp_ge_u32 s{S_WAVE}, {optval("cheat", "")}
    s_cbranch_scc1 K_ch1
    s_waitcnt vmcnt(1)
    s_branch K_ch2
K_ch1:
    s_waitcnt vmcnt(0)
K_ch2:""")
    else:
        a("    s_waitcnt vmcnt(0)")
    a(f"""
    s_barrier""")
    stamp(a, 6)
    a(f"""
    s_cmp_eq_u32 s{S_TAG}, 0
    s_cbranch_scc1 K_slow
    s_cmp_lt_u32 s{S_WAVE}, 8
    s_cbranch_scc1 K_lb2
    s_cmp_lg_u32 s{S_WAVE}, 8
    s_cbranch_scc1 K_ntab
    global_store_dwordx4 v{t1}, {vr(vTb,4)}, {sr(S_WS,2)} sc1
    global_store_dwordx4 v{t1}, {vr(vTb+4,4)}, {sr(S_WS,2)} offset:1024 sc1
K_ntab:
    s_sub_u32 s{S_A}, s{S_WAVE}, 8
    s_lshl_b32 s{S_A}, s{S_A}, 12
    s_add_u32 s{S_B}, s{S_A}, {L_W2}
    s_mov_b32 m0, s{S_B}
    v_lshl_add_u32 v{t3}, v{L}, 4, s{S_A}
    global_load_lds_dwordx4 v{t3}, {sr(S_W2,2)}
    global_load_lds_dwordx4 v{t3}, {sr(S_W2,2)} offset:1024
    global_load_lds_dwordx4 v{t3}, {sr(S_W2,2)} offset:2048
    global_load_lds_dwordx4 v{t3}, {sr(S_W2,2)} offset:3072
    s_branch K_lbJ
K_lb2:
    s_cmp_lg_u32 s{S_WAVE}, 7
    s_cbranch_scc1 K_lbJ
    s_mov_b32 m0, {L_B2}
    v_lshlrev_b32 v{t3}, 2, v{J}
    global_load_lds_dword v{t3}, {sr(S_B2,2)}
K_lbJ:""")
    if cpos == "post": emit_consts()
    if qpos == "post": emit_q()
    a(f"""
    s_lshl_b32 s{S_B}, s{S_WAVE}, 12
    s_add_u32 s{S_B}, s{S_B}, {L_XS}
    s_mov_b32 m0, s{S_B}
    v_mov_b32 v{t5}, v{vTa}""")
    if qpos == "post": stamp(a, 7)
    vT = 0
    vN = 4
    vAr = 6
    vR = 12
    vM = 28
    vA = 32
    vK = 48
    vB = 64
    vG = 80
    a(f"""
    s_mov_b32 s{S_RR}, s{S_WS}
    s_mov_b32 s{S_RR+1}, s{S_WS+1}
    s_mov_b32 s{S_RR+2}, {WS_P + N_NODES*256}
    s_mov_b32 s{S_A}, {128*2048}
    s_mov_b32 s{S_B}, {128*RSTRIDE}
    s_mov_b32 s{S_C}, 0xfe000000
    s_movk_i32 s{S_D}, 0xfc
    s_mov_b32 s{S_K}, 0
    s_mov_b64 {mask(0)}, -1
    s_mov_b64 {mask(1)}, -1
    v_mov_b32 v{vM}, 0
    v_mov_b32 v{vM+1}, 0
K_poll:
    s_mov_b64 exec, {mask(0)}
    s_cbranch_execz K_pl0
    buffer_load_dwordx2 {vr(vT,2)}, v{t5}, {sr(S_RR,4)}, 0 offen sc1
K_pl0:
    s_mov_b64 exec, {mask(1)}
    s_cbranch_execz K_pl1
    buffer_load_dwordx2 {vr(vT+2,2)}, v{t5}, {sr(S_RR,4)}, s{S_A} offen sc1
K_pl1:
    s_mov_b64 exec, -1
    s_waitcnt vmcnt(0)""")
    for i in range(2):
        a(f"    v_xor_b32 v{vN+i}, s{S_TAG}, v{vT+2*i}")
        a(f"    v_xor_b32 v{vAr+i}, s{S_TAG+1}, v{vT+2*i+1}")
        a(f"    v_and_or_b32 v{vAr+i}, v{vN+i}, s{S_C}, v{vAr+i}")
        a(f"    v_cmp_ne_u32 {mask(i)}, 0, v{vAr+i}")
    a(f"""
    s_add_u32 s{S_K}, s{S_K}, 1
    s_or_b64 vcc, {mask(0)}, {mask(1)}
    s_cbranch_scc0 K_got
    {"s_sleep " + optval("ps", "2") if optval("ps", "2") != "0" else ""}
    s_cmp_lt_u32 s{S_K}, {POLL_MAX}
    s_cbranch_scc1 K_poll
    s_mov_b32 s{S_MODE}, 1
    s_branch K_nor2a
K_got:""")
    if DIAG:
        a(f"    v_writelane_b32 v{V_STAMP}, s{S_K}, 20")
    stamp(a, 8)
    so = ["0", sr(S_B)]
    for i in range(2):
        a(f"    v_and_b32 v{vAr+i}, 0x1fff, v{vT+2*i}")
        a(f"    v_bfe_u32 v{vT+2*i+1}, v{vT+2*i}, 13, 12")
        a(f"    v_lshl_add_u32 v{vAr+i}, v{vAr+i}, 2, v{vSb}")
        a(f"    v_sub_u32 v{vN+i}, v{vT+2*i+1}, v{vG4}")
        a(f"    v_lshl_add_u32 v{vAr+2+i}, v{vT+2*i+1}, 2, v{vAr+i}")
        a(f"    v_cmp_lt_i32 {mask(4*i)}, 0, v{vN+i}")
        a(f"    v_lshl_add_u32 v{vAr+i}, v{vG4}, 2, v{vAr+i}")
        a(f"    v_add_u32 v{vAr+2+i}, v{vAr+2+i}, v{vG4}")
        a(f"    s_or_b64 exec, {mask(4*i)}, 1")
        a(f"    buffer_load_dword v{vM+i}, v{vAr+2+i}, {sr(S_RR,4)}, {so[i]} offen")
        a(f"    buffer_load_dwordx4 {vr(vR+4*i,4)}, v{vAr+i}, {sr(S_RR,4)}, {so[i]} offen")
        a(f"    s_mov_b64 exec, -1")
    for i in range(2):
        for k in range(1, 4):
            a(f"    v_cmp_lt_i32 {mask(4*i+k)}, {k}, v{vN+i}")
    a(f"""
    v_max_i32 v{t1}, v{vN}, v{vN+1}
    v_cmp_lt_i32 vcc, 24, v{t1}
    s_mov_b32 s{S_K}, 0
    s_cbranch_vccz K_nor2a
    s_mov_b32 s{S_K}, 1""")
    for i in range(2):
        a(f"    buffer_load_dword v{vM+2+i}, v{vAr+2+i}, {sr(S_RR,4)}, {so[i]} offen offset:24")
        a(f"    buffer_load_dwordx4 {vr(vR+8+4*i,4)}, v{vAr+i}, {sr(S_RR,4)}, {so[i]} offen offset:96")
        for k in range(4):
            a(f"    v_cmp_lt_i32 {mask(8+4*i+k)}, {24+k}, v{vN+i}")
    a(f"""
    v_cmp_lt_i32 vcc, 48, v{t1}
    s_cbranch_vccz K_nor2a
    s_mov_b32 s{S_MODE}, 1
K_nor2a:
    v_mov_b32 v{t4}, {L_FLAG}
    v_mov_b32 v{t0}, 4
    s_cmp_eq_u32 s{S_MODE}, 0
    s_cbranch_scc1 K_nofl
    ds_write_b32 v{t4}, v{t0}
K_nofl:
    s_waitcnt lgkmcnt(0)
    s_barrier
    ds_read_b32 v{t3}, v{t4}
    s_add_u32 s{S_RX}, s{S_WS}, {WS_P - 3072}
    s_addc_u32 s{S_RX+1}, s{S_WS+1}, 0
    s_and_b32 s{S_RX+1}, s{S_RX+1}, 0xffff
    s_or_b32 s{S_RX+1}, s{S_RX+1}, 0x01000000
    s_mov_b32 s{S_RX+2}, {N_NODES}
    s_mov_b32 s{S_RX+3}, 0x00020000
    s_waitcnt lgkmcnt(0)
    v_cmp_ne_u32 vcc, 0, v{t3}
    s_cbranch_vccnz K_slow""")
    pf0 = int(optval("pf", "8"))
    a(f"""
    s_cmp_lt_u32 s{S_WAVE}, {pf0}
    s_cbranch_scc1 K_npf
    buffer_load_dword v{t5}, v{vPf}, {sr(S_RR,4)}, 0 offen
    s_waitcnt vmcnt(1)
    s_branch K_pfJ
K_npf:
    s_waitcnt vmcnt(0)
K_pfJ:""")
    stamp(a, 9)
    def rec_reg(k): return vR + k
    def count_cols(ks):
        for k in ks:
            a(f"    v_and_b32_sdwa v{vA+k}, v{vM+k//4}, s{S_D} {SD} src0_sel:BYTE_{k%4} src1_sel:DWORD")
        for k in ks:
            a(f"    s_mov_b64 exec, {mask(k)}")
            a(f"    ds_add_rtn_u32 v{vK+k}, v{vA+k}, v{t0}")
        a(f"    s_mov_b64 exec, -1")
    count_cols(range(8))
    a(f"""
    s_cmp_eq_u32 s{S_K}, 0
    s_cbranch_scc1 K_nor2b""")
    count_cols(range(8, 16))
    a(f"""
K_nor2b:
    v_lshlrev_b32 v{t1}, 2, v{L}
    v_cmp_gt_u32 vcc, s{S_NN}, v{L}
    s_waitcnt lgkmcnt(0)
    s_barrier""")
    stamp(a, 10)
    a(f"""
    ds_read_b32 v{V_CNT}, v{t1}
    s_waitcnt lgkmcnt(0)
    v_add_u32 v{vP}, 12, v{V_CNT}
    v_and_b32 v{vP}, -16, v{vP}
    v_max_u32 v{vP}, 0x80, v{vP}
    v_cndmask_b32 v{vP}, 0, v{vP}, vcc
    v_mov_b32 v{vS}, v{vP}""")
    wave_scan(a, vS)
    a(f"""
    s_nop 0
    v_readlane_b32 s{S_A}, v{vS}, 63
    v_sub_u32 v{vS}, v{vS}, v{vP}
    ds_write_b32 v{t1}, v{vS} offset:{L_SX}
    s_cmp_gt_u32 s{S_A}, {ENT_CAP*4}
    s_cbranch_scc1 K_slow""")
    def place_cols(ks, mid=None):
        ks = list(ks)
        for k in ks:
            a(f"    ds_read_b32 v{vB+k}, v{vA+k} offset:{L_SX}")
        if mid: a(mid)
        for n, k in enumerate(ks):
            if n % 2 == 0:
                a(f"    s_waitcnt lgkmcnt({len(ks)-2-n})")
            a(f"    v_add_u32 v{vK+k}, v{vB+k}, v{vK+k}")
        for k in ks:
            a(f"    s_mov_b64 exec, {mask(k)}")
            a(f"    ds_write_b32 v{vK+k}, v{rec_reg(k)} offset:{L_RL}")
        a(f"    s_mov_b64 exec, -1")
    place_cols(range(8), f"""
    s_add_u32 s{S_A}, s{S_A}, 127
    s_lshr_b32 s{S_TT}, s{S_A}, 7            ; tiles
    s_mul_i32 s{S_T0}, s{S_SLOT}, s{S_TT}
    s_add_u32 s{S_NT}, s{S_T0}, s{S_TT}
    s_mul_i32 s{S_T0}, s{S_T0}, 43691
    s_mul_i32 s{S_NT}, s{S_NT}, 43691
    s_lshr_b32 s{S_T0}, s{S_T0}, 19
    s_lshr_b32 s{S_NT}, s{S_NT}, 19
    s_sub_u32 s{S_NT}, s{S_NT}, s{S_T0}""")
    a(f"""
    s_cmp_eq_u32 s{S_K}, 0
    s_cbranch_scc1 K_nor2c
    s_waitcnt lgkmcnt(0)""")
    place_cols(range(8, 16))
    thr = [int(x) for x in optval("thr", "5_3_1").split("_")]
    a(f"""
K_nor2c:
    s_lshl_b32 s{S_A}, s{S_T0}, 7            ; ts*4
    s_add_u32 s{S_C}, s{S_A}, {L_RL}
    v_add_u32 v{V_AIDX}, s{S_C}, v{V_AIDX}
    v_cmp_ge_u32 {mask(0)}, s{S_A}, v{vS}
    v_subrev_u32 v{t0}, s{S_A}, v{vS}
    s_and_b64 {mask(0)}, {mask(0)}, vcc
    s_bcnt1_i32_b64 s{S_B}, {mask(0)}
    s_sub_u32 s{S_B}, s{S_B}, 1              ; n
    s_andn2_b64 {mask(0)}, vcc, {mask(0)}
    s_waitcnt lgkmcnt(0)
    s_barrier""")
    stamp(a, 11)
    for h in idx_reads(0): a(h)
    a(f"""
    v_add_u32 v{V_AENT}, s{S_C}, v{V_AENT}
    v_xor_b32 v{t3}, s{S_B}, v{HH}
    v_and_b32 v{t3}, 1, v{t3}
    s_lshl_b32 s{S_A}, s{S_B}, 9
    s_add_u32 s{S_A}, s{S_A}, {L_QT}
    v_lshl_add_u32 v{V_AQ}, v{t3}, 9, s{S_A}
    v_lshl_add_u32 v{V_AQ}, v{J}, 2, v{V_AQ}
    s_waitcnt lgkmcnt(0)""")
    for h in dma_ops(0): a(h)
    a(f"""
    s_cmp_ge_u32 s{S_WAVE}, {ndual}
    s_cbranch_scc1 K_e1
    s_add_u32 m0, m0, {L_T2 - L_XS}
    s_nop 0""")
    for h in dma_ops(1): a(h)
    a("K_e1:")
    for h in ent_reads(0, True): a(h)
    a(f"""
    v_bfe_u32 v{t4}, v{t0}, 4, 3
    v_add_u32 v{t4}, 1, v{t4}
    v_mul_u32_u24 v{t4}, {VAR_SIZE}, v{t4}
    v_lshrrev_b32 v{t0}, 7, v{t0}
    v_min_u32 v{t0}, 63, v{t0}
    v_cndmask_b32 v{t0}, 63, v{t0}, {mask(0)}
    v_lshlrev_b32 v{t0}, 2, v{t0}
    v_mov_b32 v{V_TAB}, 0
    ds_permute_b32 v{V_TAB}, v{t0}, v{t4}
    s_add_u32 s{S_A}, s{S_B}, s{S_SLOT}
    s_mul_i32 s{S_A}, s{S_A}, {ST_STRIDE}
    s_add_u32 s{S_A}, s{S_A}, {L_ST}
    v_lshl_add_u32 v{V_AS}, v{L}, 2, s{S_A}
    v_xor_b32 v{t3}, 1, v{t3}
    v_lshlrev_b32 v{V_INCQ}, 10, v{t3}
    v_cvt_f32_u32 v{vOne}, s{S_TT}
    v_rcp_f32 v{vOne}, v{vOne}
    v_add3_u32 v{vP}, v{vS}, v{vP}, -4
    v_lshrrev_b32 v{vS}, 7, v{vS}
    v_lshrrev_b32 v{vP}, 7, v{vP}
    v_cvt_f32_u32 v{vS}, v{vS}
    v_cvt_f32_u32 v{vP}, v{vP}
    v_add_f32 v{vS}, {f32bits((NW-0.5)/NW):#x}, v{vS}
    v_add_f32 v{vP}, {f32bits((NW-0.5)/NW):#x}, v{vP}
    v_mul_f32 v{vOne}, {f32bits(NW):#x}, v{vOne}
    v_mul_f32 v{vS}, v{vS}, v{vOne}
    v_mul_f32 v{vP}, v{vP}, v{vOne}
    v_cvt_u32_f32 v{vS}, v{vS}
    v_cvt_u32_f32 v{vP}, v{vP}
    v_sub_u32 v{vP}, v{vP}, v{vS}
    v_add_u32 v{vS}, v{vS}, v{L}
    v_lshl_or_b32 v{vS}, v{vP}, 8, v{vS}
    v_cndmask_b32 v{vS}, {ZROW}, v{vS}, vcc
    v_lshl_or_b32 v{V_CNT}, v{vS}, 16, v{V_CNT}
    ; jump table: entry offset inside a variant slot (priority steps near the end), exit at lane nt
    v_sub_u32 v{t0}, s{S_NT}, v{L}
    v_mov_b32 v{t3}, 64""")
    for i, th in enumerate(thr):
        a(f"    v_cmp_eq_u32 {mask(i)}, {th}, v{t0}")
    a(f"    v_cmp_eq_u32 {mask(3)}, 0, v{t0}")
    a(f"    v_mov_b32 v{t4}, K_exit - K_vbase")
    for i, th in enumerate(thr):
        a(f"    v_cndmask_b32 v{t3}, v{t3}, {44 + 8*i}, {mask(i)}")
    a(f"""
    s_waitcnt lgkmcnt(0)
    v_add_u32 v{V_TAB}, v{V_TAB}, v{t3}
    v_cndmask_b32 v{V_TAB}, v{V_TAB}, v{t4}, {mask(3)}
    s_mov_b32 s{S_K}, 1
    s_setprio 3
    v_readlane_b32 s{S_J}, v{V_TAB}, 0
    s_bitcmp1_b32 s{S_B}, 0
    s_cselect_b64 {sr(S_PAR,2)}, -1, 0
    s_movk_i32 s{S_PAD}, {PADREC}""")
    for h in mask_load(): a(h)
    a(f"""
    s_cmp_ge_u32 s{S_WAVE}, {ndual}
    s_cbranch_scc1 K_e2
    s_waitcnt vmcnt(4)""")
    stamp(a, 12)
    for h in tr_reads(0): a(h)
    a(f"    s_waitcnt vmcnt(0)")
    for h in tr_reads(1): a(h.replace(f"v{V_AA} ", f"v{vAA2} "))
    a(f"""
    s_add_u32 s{S_J}, s{S_MO}, 64 + K_vhN - K_varN
    s_waitcnt lgkmcnt(0)
    s_sub_u32 m0, m0, {L_T2 - L_XS}
    s_branch K_e4
K_e2:
    s_waitcnt vmcnt(0)""")
    stamp(a, 12)
    for h in tr_reads(0): a(h)
    a(f"    s_waitcnt lgkmcnt(0)")
    for h in dma_ops(1): a(h)
    a("K_e4:")
    for h in onehot_ops(): a(h)
    a(f"""
    s_add_u32 s{S_J}, s{S_J}, s{S_PC}
    s_addc_u32 s{S_J+1}, s{S_PC+1}, 0
    s_cmp_eq_u32 s{S_NT}, 0
    s_cbranch_scc1 K_exit""")
    a(small(0)); a(small(1))
    a("    s_nop 7")
    stamp(a, 13); stamp(a, 14, True)
    a(f"    s_setpc_b64 {sr(S_J,2)}")
    a(f".p2align 6")
    a(f"K_vbase:")
    for vi, b in enumerate([None] + list(range(8))):
        tile_variant(a, vi, b)
    a(f".p2align 3")
    a(f"K_exit:")
    stamp(a, 15); stamp(a, 16, True)
    for cts in ((0, 1), (2, 3)):
        flush_ops(a, cts)
        a("    s_nop 1")
        flush_ops2(a, cts)
    a(f"""
    v_cmp_eq_f32 vcc, 0, v{V_MN}
    s_cbranch_vccz K_join
    v_mov_b32 v64, 1
    v_mov_b32 v65, {L_FLAG}
    ds_write_b32 v65, v64
K_join:
    s_cmp_ge_u32 s{S_WAVE}, 4
    s_cbranch_scc1 K_idle
    v_and_b32 v136, 15, v{L}
    v_lshrrev_b32 v137, 4, v{L}              ; g
    s_lshl_b32 s{S_A}, s{S_WAVE}, 4
    v_add_u32 v136, s{S_A}, v136             ; node
    v_lshlrev_b32 v138, 2, v136
    ds_bpermute_b32 v139, v138, v{V_CNT}
    v_and_b32 v138, 16, v{L}
    v_lshlrev_b32 v138, 2, v138
    v_lshl_add_u32 v138, v{HH}, 5, v138
    v_bfe_u32 v140, v{L}, 2, 2
    v_add_u32 v140, v140, v138
    v_lshlrev_b32 v140, 7, v140
    v_and_b32 v141, 3, v{L}
    v_lshl_add_u32 v140, v141, 4, v140
    v_add_u32 v140, {L_W2}, v140""")
    for ot in range(4):
        for ks in range(4):
            for h in range(2):
                a(f"    ds_read_b64_tr_b16 {vr(16*ot+4*ks+2*h,2)}, v140 offset:{1024*ks+512*h+64*(ot>>1)+8*(ot&1)}")
    a(f"""
    v_lshlrev_b32 v141, 4, v137
    v_add_u32 v140, {L_B2}, v141
    ds_read_b128 v[128:131], v140
    ds_read_b128 v[132:135], v140 offset:64
    v_lshl_add_u32 v141, v136, 7, v141
    s_lshl_b32 s{S_A}, s{S_N0}, 7
    s_add_u32 s{S_RT}, s{S_OUT}, s{S_A}
    s_addc_u32 s{S_RT+1}, s{S_OUT+1}, 0
    s_lshl_b32 s{S_RT+2}, s{S_NN}, 7
    s_mov_b32 s{S_RT+3}, 0x00020000
    s_mov_b32 s3, {NLN2:#x}
    s_movk_i32 s{S_K}, {ST_STRIDE}
    s_waitcnt lgkmcnt(0)
    v_bfe_u32 v142, v139, 16, 8
    v_lshrrev_b32 v143, 24, v139
    v_and_b32 v139, 0xffff, v139
    v_cvt_f32_u32 v139, v139
    v_mul_f32 v139, {f32bits(0.25 * -1.4426950408889634):#x}, v139
    v_lshlrev_b32 v138, 2, v138
    v_add_u32 v138, {L_ST}, v138
    v_mad_u32_u24 v142, v142, s{S_K}, v138
    v_add_u32 v138, {ZROW*ST_STRIDE}, v138
    v_cmp_lt_u32 vcc, 0, v143
    v_add_u32 v144, {ST_STRIDE}, v142
    v_mov_b32 v146, 0x207
    v_cndmask_b32 v145, v138, v144, vcc""")
    vO = 148
    accs = [148, 149, 150, 151, 152, 153] + list(range(156, 166))
    ACC = [112, 116, 120, 124]
    for q in range(8):
        a(f"    v_lshlrev_b32 v{112+2*q}, 16, v{128+q}")
        a(f"    v_and_b32 v{113+2*q}, 0xffff0000, v{128+q}")
    for q in range(16):
        a(f"    v_mul_f32 v{112+q}, v139, v{112+q}")
    a(f"    s_barrier")
    stamp(a, 17)
    S0 = 64; S1 = 96
    for ks in range(2):
        pass
    a(f"    s_mov_b32 s{S_A}, 1")
    for ks in range(4):
        a(f"    ds_read_b128 {vr(S0+8*ks,4)}, v142 offset:{32*ks}")
        a(f"    ds_read_b128 {vr(S0+4+8*ks,4)}, v142 offset:{32*ks+16}")
    a(f"K_rows:")
    tmp = [96, 104, 128, 156]
    for ks in range(4):
        a(f"    ds_read_b128 {vr(tmp[ks],4)}, v145 offset:{32*ks}")
        a(f"    ds_read_b128 {vr(tmp[ks]+4,4)}, v145 offset:{32*ks+16}")
    a(f"""
    v_cmp_lt_u32 vcc, s{S_A}, v143
    v_add_u32 v144, {ST_STRIDE}, v144
    s_add_u32 s{S_A}, s{S_A}, 1""")
    for ks in range(4):
        a(f"    s_waitcnt lgkmcnt({6-2*ks})")
        for q in range(4):
            a(f"    v_pk_add_f32 {vr(S0+8*ks+2*q,2)}, {vr(S0+8*ks+2*q,2)}, {vr(tmp[ks]+2*q,2)}")
    a(f"""
    v_cndmask_b32 v145, v138, v144, vcc
    s_cbranch_vccnz K_rows""")
    def cv(ks):
        for q in range(4):
            a(f"    v_cvt_pk_bf16_f32 v{96+4*ks+q}, v{S0+8*ks+2*q}, v{S0+1+8*ks+2*q}")
    def mf(ks, ot):
        d = vr(ACC[ot], 4)
        a(f"    v_mfma_f32_16x16x32_bf16 {d}, {vr(16*ot+4*ks,4)}, {vr(96+4*ks,4)}, {d}")
    cv(0); cv(1)
    for ks in range(4):
        for ot in range(4):
            mf(ks, ot)
        if ks < 2: cv(ks + 2)
    a("    s_nop 4")
    for q in range(16):
        a(f"    v_mul_f32 v{64+q}, s3, v{112+q}")
    for q in range(8):
        a(f"    v_cvt_pk_bf16_f32 v{80+q}, v{64+2*q}, v{65+2*q}")
    osc = optval("o_", "sc1")
    a(f"    buffer_store_dwordx4 v[80:83], v141, {sr(S_RT,4)}, 0 offen {osc}")
    a(f"    buffer_store_dwordx4 v[84:87], v141, {sr(S_RT,4)}, 0 offen offset:64 {osc}")
    for q in range(16):
        a(f"    v_cmp_class_f32 {mask(q)}, v{64+q}, v146")
    for q in range(1, 16):
        a(f"    s_or_b64 {mask(0)}, {mask(0)}, {mask(q)}")
    a(f"""
    s_cbranch_scc0 K_fin
    v_mov_b32 v64, 1
    v_mov_b32 v65, {L_FLAG}
    ds_write_b32 v65, v64
    s_branch K_fin
K_idle:
    s_waitcnt lgkmcnt(0)
    s_barrier                                ; B9
K_fin:
    v_mov_b32 v65, {L_FLAG}
    s_waitcnt lgkmcnt(0)
    s_barrier                                ; B10
    ds_read_b32 v64, v65
    s_waitcnt lgkmcnt(0)
    v_cmp_ne_u32 vcc, 0, v64
    s_cbranch_vccnz K_slow""")
    if DIAG:
        a("    s_waitcnt vmcnt(0)")
        stamp(a, 18); stamp(a, 19, True)
        a(f"""
    v_writelane_b32 v{V_STAMP}, s{S_NT}, 21
    s_lshl_b32 s{S_A}, s2, 4
    s_add_u32 s{S_A}, s{S_A}, s{S_WAVE}
    s_lshl_b32 s{S_A}, s{S_A}, 8
    s_add_u32 s{S_A}, s{S_A}, {WS_STAMP}
    v_lshl_add_u32 v64, v{L}, 2, s{S_A}
    s_mov_b64 exec, 0xffffffff
    global_store_dword v64, v{V_STAMP}, {sr(S_WS,2)}
    global_store_dword v64, v{V_TRACE}, {sr(S_WS,2)} offset:128""")
    if optval("spin", "") != "":
        stamp(a, 18)
        a(f"""
    s_lshl_b32 s{S_A}, s2, 4
    s_add_u32 s{S_A}, s{S_A}, s{S_WAVE}
    s_cmp_lg_u32 s{S_A}, {100*16}
    s_cbranch_scc1 K_end
    s_lshl_b32 s{S_A}, s{S_TAG+1}, 7
    s_lshr_b32 s{S_B}, s{S_TAG}, 25
    s_or_b32 s{S_A}, s{S_A}, s{S_B}
    {"s_mov_b32 s100, s%d" % S_A if optval("spin", "") == "0" else ""}
    s_sub_u32 s{S_B}, s100, s{S_A}
    s_min_u32 s{S_B}, s{S_B}, 20000
    s_mul_i32 s{S_B}, s{S_B}, 10
    s_add_u32 s{S_B}, s{S_B}, 10000
K_spin:
    s_memrealtime s[98:99]
    s_waitcnt lgkmcnt(0)
    s_sub_u32 s98, s98, s{S_A}
    s_cmp_lt_u32 s98, s{S_B}
    s_cbranch_scc1 K_spin""")
    a(f"""
K_end:
    s_endpgm
K_slow:
    s_setprio 0
    s_mov_b32 s16, s{S_N0}
    s_mov_b32 s17, s{S_NN}
    s_mov_b32 s18, s{S_WAVE}""")
    gen_slow(a, 16, 17, 18, L, NLOG2E, NW=NW)
    a("    s_endpgm")

def main():
    global DIAG
    out = sys.argv[1]
    DIAG = "diag" in sys.argv[2:] or "lite" in sys.argv[2:]
    OPT.update(sys.argv[2:])
    a = Asm()
    a(f"""; Edge-featured MPNN layer: out[n] = sum_(e: dst=n) (silu([x[src],x[dst],e] w1 + b1) w2 + b2)
; @launch grid=(256,1,1) block=({NT_},1,1) lds={L_END}
.amdgcn_target "amdgcn-amd-amdhsa--gfx950"
.text""")
    gen_kernel(a)
    a(f"""
.section .rodata,"a"
.p2align 6
.amdhsa_kernel {KNAME}
  .amdhsa_next_free_vgpr {NVGPR}
  .amdhsa_next_free_sgpr 102
  .amdhsa_accum_offset {NVGPR}
  .amdhsa_group_segment_fixed_size 0
  .amdhsa_kernarg_size 88
  .amdhsa_user_sgpr_count 2
  .amdhsa_user_sgpr_kernarg_segment_ptr 1
  .amdhsa_system_sgpr_workgroup_id_x 1
  .amdhsa_float_denorm_mode_32 3
.end_amdhsa_kernel""")
    open(out, "w").write(a.text())

if __name__ == "__main__":
    main()
```

```python
import sys, struct
from slow import gen_slow

NAME = "standalone__edge_featured_mpnn_mpnn__graph"
KNAME = NAME + "_kernel"
N_NODES = 12500
NB = 49
NW = 12
NT_ = 64 * NW
MAINE = 4 * NT_
XTRA = 53
RSTRIDE = 16640

WS_REC = 0
WS_TAB = 0x420000
WS_P = 0x4C0000
WS_STAMP = 0xA00000

L_FLAG = 288
L_NONCE = 296
L_SX = 4096
L_Z = 320
L_RL = 4352
ENT_CAP = 3584
L_ST = L_RL + (ENT_CAP + 64) * 4
ST_STRIDE = 528
ZROW = NB + NW
L_QT = (L_ST + (ZROW + 1) * ST_STRIDE + 255) // 256 * 256
L_XS = L_QT + 56 * 512
L_W2 = L_XS + NW * 4096
L_B2 = L_W2 + 16384
L_T2 = L_B2 + 256
L_END = L_T2 + 16384
L_RS = L_ST
L_H1 = L_ST + 16640
L_OFF = L_H1 + 1024
L_W1 = L_XS
L_WC = L_XS + 32768
L_PS = L_WC + 512
L_XR = L_W2
PS_STRIDE = 272
assert L_XS % 256 == 0
assert L_END <= 163840 and L_H1 + 3072 <= L_ST + ZROW * ST_STRIDE and L_OFF + 1024 < 65536 and L_PS + 56 * PS_STRIDE <= L_W2

def f32bits(x):
    return struct.unpack("<I", struct.pack("<f", x))[0]
NLOG2E = f32bits(-1.4426950408889634)
NLN2 = f32bits(-0.6931471805599453)
PADREC = 0x3FFF
POLL_MAX = 4000

class Asm:
    def __init__(self):
        self.l = []
    def __call__(self, s=""):
        for x in s.strip("\n").split("\n"):
            self.l.append(x)
    def text(self):
        return "\n".join(self.l) + "\n"

def vr(a, n=1):
    return f"v{a}" if n == 1 else f"v[{a}:{a+n-1}]"
def sr(a, n=1):
    return f"s{a}" if n == 1 else f"s[{a}:{a+n-1}]"

DIAG = False
OPT = set()
def optval(prefix, default):
    for o in OPT:
        if o.startswith(prefix):
            return o[len(prefix):]
    return default

V_D = 0; V_E = 64; V_A5 = 96; V_B5 = 98; V_ND = 106; V_T = 122; V_R = 126; V_O = 128; V_IX = 132
V_AA = 140; V_AIDX = 141; V_AENT = 142; V_AQ = 143; V_INCQ = 144; V_AS = 145; V_MN = 146; V_PSEL = 147
V_TAB = 148; V_CNT = 149; V_B2 = 150; V_LANE = 154; V_TID = 155
V_J = 156; V_HH = 157
V_STAMP = 167; V_TRACE = 166
NVGPR = 168
S_X = 4; S_E = 6; S_SRC = 8; S_DST = 10; S_W1 = 12; S_B1 = 14; S_W2 = 16; S_B2 = 18; S_OUT = 20; S_DBG = 22; S_WS = 24
S_BIN = 26; S_N0 = 27; S_NN = 28; S_WAVE = 29; S_MODE = 30; S_K = 31; S_PC = 32; S_J = 34
S_RX = 36; S_RT = 40; S_RR = 44; S_P = 48
S_T0 = 56; S_NT = 57; S_TT = 58; S_SLOT = 59; S_A = 60; S_B = 61; S_C = 62; S_D = 63; S_TAG = 64
S_M = 66
S_OH = 66; S_PAR = 68; S_PAD = 70; S_MO = 71
def mask(k): return sr(S_M + 2*k, 2)

def stamp(a, k, real=False):
    if optval("spin", "") != "":
        if int(optval("spin", "")) == k:
            a("    s_memrealtime s[100:101]\n    s_waitcnt lgkmcnt(0)")
        return
    if not DIAG:
        return
    if "lite" in OPT and k not in (14, 16, 19):
        return
    a(f"    {'s_memrealtime' if real else 's_memtime'} s[98:99]")
    a(f"    s_waitcnt lgkmcnt(0)")
    a(f"    v_writelane_b32 v{V_STAMP}, s98, {k}")

def wave_scan(a, v):
    for sh in (1, 2, 4, 8):
        a(f"    s_nop 1")
        a(f"    v_add_u32_dpp v{v}, v{v}, v{v} row_shr:{sh} row_mask:0xf bank_mask:0xf")
    a(f"    s_nop 1")
    a(f"    v_add_u32_dpp v{v}, v{v}, v{v} row_bcast:15 row_mask:0xa bank_mask:0xf")
    a(f"    s_nop 1")
    a(f"    v_add_u32_dpp v{v}, v{v}, v{v} row_bcast:31 row_mask:0xc bank_mask:0xf")

SD = "dst_sel:DWORD dst_unused:UNUSED_PAD"

def small(c):
    d = vr(V_D + 16*c, 16)
    return f"    v_mfma_f32_32x32x8_bf16 {d}, {vr(V_A5,2)}, {vr(V_B5+2*c,2)}, {d}"
def tr_reads(h):
    return [f"    ds_read_b64_tr_b16 {vr(V_D+16*(2*h+k)+2*u,2)}, v{V_AA} offset:{512*u+64*k}" for u in range(8) for k in range(2)]
def ent_reads(off, q):
    h = [f"    ds_read_b32 v{V_A5+1}, v{V_AENT} offset:{off}"]
    if q:
        h += [f"    ds_read_b32 v{V_B5+2*c}, v{V_AQ} offset:{128*c}" for c in range(4)]
    return h
def idx_reads(off):
    return [f"    ds_read_u16 v{V_IX+2*m}, v{V_AIDX} offset:{off + 32*m}" for m in range(4)]
def dma_ops(h):
    return [f"    buffer_load_dwordx4 {vr(V_IX+2*m,2)}, {sr(S_RX,4)}, s{S_P+4*h+m} idxen offen offset:{1024*m} lds" for m in range(4)]

def x_phase(a, mf_cts, ex_cts, head, pre, plain, tail):
    es = [f"    v_exp_f32 v{V_E+16*k+2*u+b}, v{V_D+16*c+2*u+b}" for u in range(8) for k, c in enumerate(ex_cts) for b in range(2)]
    n1 = 22
    for h in head: a(h)
    for e in es[:n1-(4 if pre else 2)]: a(e)
    for p in plain: a(p)
    a(f"    s_waitcnt lgkmcnt(0)")
    if pre:
        a(pre[0]); a(es[n1-4]); a(pre[1]); a(pre[2]); a(es[n1-3]); a(pre[3])
    for e in es[n1-2:n1]: a(e)
    a(small(mf_cts[0]))
    for e in es[n1:n1+4]: a(e)
    a(small(mf_cts[1]))
    for e in es[n1+4:]: a(e)
    for t in tail: a(t)
    a(".p2align 3")

def flush_ops(a, cts):
    for k, c in enumerate(cts):
        D = V_ND + 4*c + 2
        a(f"    v_mul_f32 v{V_R+k}, v{D}, v{D+1}")
    for k, c in enumerate(cts):
        N = V_ND + 4*c; D = N + 2
        a(f"    v_pk_mul_f32 {vr(V_O+2*k,2)}, {vr(N,2)}, {vr(D,2)} op_sel:[0,1] op_sel_hi:[1,0]")
    for k, c in enumerate(cts):
        a(f"    v_rcp_f32 v{V_R+k}, v{V_R+k}")
    for k, c in enumerate(cts):
        a(f"    v_add_f32 v{V_O+2*k}, v{V_O+2*k}, v{V_O+2*k+1}")
    for k, c in enumerate(cts):
        a(f"    v_mul_f32 v{V_O+2*k}, v{V_O+2*k}, v{V_R+k}")
def flush_ops2(a, cts):
    a(f"    v_permlane32_swap_b32 v{V_O}, v{V_O+2}")
    a(f"    v_min3_f32 v{V_MN}, v{V_MN}, v{V_R}, v{V_R+1}")
    a(f"    v_add_f32 v{V_O}, v{V_O}, v{V_O+2}")
    a(f"    ds_write_b32 v{V_AS}, v{V_O} offset:{128*cts[0]}")

def y_phase(a, cts, b):
    nsrc = [V_ND + 4*c for c in cts]
    for u in range(8):
        if u == b:
            flush_ops(a, cts)
            for k, c in enumerate(cts):
                a(f"    v_pk_add_f32 {vr(V_ND+4*c+2,2)}, {vr(V_E+16*k+2*u,2)}, 1.0 op_sel_hi:[1,0]")
            flush_ops2(a, cts)
            for k, c in enumerate(cts):
                p = V_D + 16*c + 2*u
                if u == 7:
                    a(f"    v_pk_mov_b32 {vr(V_ND+4*c,2)}, {vr(p,2)}, {vr(p,2)} op_sel:[0,1]")
                else:
                    nsrc[k] = p
            continue
        for k, c in enumerate(cts):
            a(f"    v_pk_fma_f32 {vr(V_T+2*k,2)}, {vr(V_D+16*c+2*u,2)}, {vr(V_ND+4*c+2,2)}, {vr(nsrc[k],2)}")
        for k, c in enumerate(cts):
            D = V_ND + 4*c + 2
            a(f"    v_pk_fma_f32 {vr(D,2)}, {vr(D,2)}, {vr(V_E+16*k+2*u,2)}, {vr(D,2)}")
        for k, c in enumerate(cts):
            a(f"    v_pk_fma_f32 {vr(V_ND+4*c,2)}, {vr(nsrc[k],2)}, {vr(V_E+16*k+2*u,2)}, {vr(V_T+2*k,2)}")
            nsrc[k] = V_ND + 4*c

def onehot_ops():
    return [f"    v_cmp_ne_u32 vcc, s{S_PAD}, v{V_A5+1}",
            f"    s_xor_b64 {sr(S_OH,2)}, {sr(S_OH,2)}, {sr(S_PAR,2)}",
            f"    s_and_b64 vcc, vcc, {sr(S_OH,2)}",
            f"    v_cndmask_b32 v{V_A5}, 0, v{V_PSEL}, vcc"]
def mask_load():
    return [f"    s_sub_u32 s{S_MO}, s{S_J}, 4", f"    s_andn2_b32 s{S_MO}, s{S_MO}, 63",
            f"    s_load_dwordx2 {sr(S_OH,2)}, {sr(S_PC,2)}, s{S_MO}"]
def row_mask(b):
    sw = lambda i: (i & 0x19) | ((i & 2) << 1) | ((i & 4) >> 1)
    return sum(1 << i for i in range(32) if b is None or sw(i) < 4*b)

VAR_SIZE = 1792
def tile_variant(a, vi, b):
    name = "N" if b is None else str(b)
    a(f".org K_vbase + {VAR_SIZE*vi}, 0")
    a(f".long {row_mask(b):#x}, {row_mask(b) ^ 0xffffffff:#x}")
    a(f".org K_vbase + {VAR_SIZE*vi + 64 - 20}, 0")
    a(f"    s_setprio 2\n    s_branch K_var{name}\n    s_setprio 1\n    s_branch K_var{name}\n    s_setprio 0")
    a(f"K_var{name}:")
    bnd = b is not None
    if "trace" in OPT:
        a(f"    s_memtime s[98:99]\n    s_mov_b32 s{S_A}, m0\n    s_mov_b32 m0, s{S_K}\n    s_waitcnt lgkmcnt(0)")
        a(f"    v_writelane_b32 v{V_TRACE}, s98, m0\n    s_mov_b32 m0, s{S_A}")
    plain0 = []
    if bnd:
        plain0 = [f"    v_add_u32 v{V_AQ}, v{V_AQ}, v{V_INCQ}", f"    v_xor_b32 v{V_INCQ}, 0x400, v{V_INCQ}"]
    plain0.append(f"    v_readlane_b32 s{S_J}, v{V_TAB}, s{S_K}")
    x_phase(a, (2, 3), (0, 1), ["    s_waitcnt vmcnt(0)"] + tr_reads(1) + [f"K_vh{name}:"] + idx_reads(128), [], plain0,
            dma_ops(0) + [f"    s_add_u32 s{S_K}, s{S_K}, 1"] + mask_load() + ([f"    s_not_b64 {sr(S_PAR,2)}, {sr(S_PAR,2)}"] if bnd else []))
    y_phase(a, (0, 1), b)
    plain1 = [f"    v_add_u32 v{V_AENT}, 0x80, v{V_AENT}", f"    v_add_u32 v{V_AIDX}, 0x80, v{V_AIDX}"]
    x_phase(a, (0, 1), (2, 3), ["    s_waitcnt vmcnt(0)"] + ent_reads(128, bnd) + tr_reads(0),
            onehot_ops(), plain1,
            dma_ops(1) + [f"    s_add_u32 s{S_J}, s{S_J}, s{S_PC}", f"    s_addc_u32 s{S_J+1}, s{S_PC+1}, 0"])
    y_phase(a, (2, 3), b)
    if bnd:
        a(f"    v_add_u32 v{V_AS}, {ST_STRIDE}, v{V_AS}")
    a(f"    s_setpc_b64 {sr(S_J,2)}")

def gen_kernel(a):
    L = V_LANE; T = V_TID; J = V_J; HH = V_HH
    t0, t1, t2, t3, t4, t5 = 158, 159, 160, 161, 162, 163
    vDst = 0
    vSrc = 8
    vEa = 14
    vBa = 20
    vRk = 26
    vOf = 32
    vX = 40
    vWf = 56
    vAc = 72
    vTb = 88
    vZ = 128
    vPad = 56
    vWa = 38; vXa = 88; vTg = 18; vTa = 39; vC8 = 37; vWp = 31
    vG4 = 164; vSb = 165
    vS = 122; vP = 123; vOne = 124; vAA2 = 125; vPf = 126
    a(f"""
.p2align 8
.globl {KNAME}
.type {KNAME},@function
{KNAME}:
    s_cmp_ge_u32 s2, 256
    s_cbranch_scc1 K_end
    s_load_dwordx8 s[4:11], s[0:1], 0
    s_load_dwordx8 s[12:19], s[0:1], 32      ; w1, b1, w2, b2
    s_load_dwordx4 s[20:23], s[0:1], 64
    s_load_dwordx2 s[24:25], s[0:1], 80      ; ws
    s_memrealtime {sr(S_TAG,2)}
    v_lshrrev_b32 v1, 6, v0
    v_mov_b32 v{T}, v0
    v_readfirstlane_b32 s{S_WAVE}, v1
    v_and_b32 v{L}, 63, v0
    s_mul_i32 s3, s2, {MAINE*4}
    v_lshl_add_u32 v{t0}, v0, 4, s3
    v_lshrrev_b32 v{t1}, 1, v{t0}
    s_and_b32 s{S_BIN}, s2, 7
    s_lshl_b32 s{S_BIN}, s{S_BIN}, 5
    s_lshr_b32 s3, s2, 3
    s_add_u32 s{S_BIN}, s{S_BIN}, s3
    s_mul_i32 s{S_N0}, s{S_BIN}, {NB}
    s_sub_u32 s{S_NN}, {N_NODES}, s{S_N0}
    s_min_u32 s{S_NN}, s{S_NN}, {NB}
    v_and_b32 v{J}, 31, v0
    v_bfe_u32 v{HH}, v0, 5, 1
    s_mov_b32 s{S_MODE}, 0
    v_mov_b32 v{vZ}, 0
    v_mov_b32 v{vZ+1}, 0
    v_mov_b32 v{vZ+2}, 0
    v_mov_b32 v{vZ+3}, 0
    v_lshlrev_b32 v{t2}, 2, v0""")
    if DIAG:
        a(f"    v_mov_b32 v{V_STAMP}, 0\n    v_mov_b32 v{V_TRACE}, 0")
        stamp(a, 0, True); stamp(a, 1)
    wc = lambda c: V_B5 + 2*c
    vB1 = 97
    tc = 17
    ndual = int(optval("dual", "0"))
    cpos = optval("c_", "drain"); qpos = optval("q_", "post")
    def emit_consts():
        a(f"""
    v_and_b32 v{tc}, 7, v{L}
    v_lshlrev_b32 v{V_IX+1}, 4, v{tc}
    v_mov_b32 v{V_IX+3}, v{V_IX+1}
    v_mov_b32 v{V_IX+5}, v{V_IX+1}
    v_mov_b32 v{V_IX+7}, v{V_IX+1}
    v_and_b32 v{tc}, 8, v{L}
    v_lshl_add_u32 v{tc}, v{tc}, 4, v{vC8}
    v_lshl_add_u32 v{tc}, v{HH}, 8, v{tc}
    s_lshl_b32 s{S_B}, s{S_WAVE}, 12
    s_add_u32 s{S_B}, s{S_B}, {L_XS}
    v_add_u32 v{tc}, s{S_B}, v{tc}
    v_and_b32 v{t3}, 4, v{L}
    v_cmp_ne_u32 vcc, 0, v{t3}
    v_mov_b32 v{t3}, {L_Z}
    v_mov_b32 v{V_PSEL}, 0x3f803f80
    v_cndmask_b32 v{V_AA}, v{t3}, v{tc}, vcc
    v_add_u32 v{tc}, {L_T2 - L_XS}, v{tc}
    v_cndmask_b32 v{vAA2}, v{t3}, v{tc}, vcc
    v_and_b32 v{V_AENT}, 0x19, v{L}
    v_and_b32 v{tc}, 2, v{L}
    v_lshl_add_u32 v{V_AENT}, v{tc}, 1, v{V_AENT}
    v_bfe_u32 v{tc}, v{L}, 2, 1
    v_lshl_add_u32 v{V_AENT}, v{tc}, 1, v{V_AENT}
    v_lshlrev_b32 v{V_AENT}, 2, v{V_AENT}
    v_lshrrev_b32 v{V_AIDX}, 3, v{L}
    v_lshlrev_b32 v{V_AIDX}, 2, v{V_AIDX}""")
        for h in range(2):
            for m in range(4):
                a(f"    s_movk_i32 s{S_P+4*h+m}, {3072 - 1024*m + 128*h}")
        for c in range(4):
            a(f"    v_mov_b32 v{V_ND+4*c}, 0")
            a(f"    v_mov_b32 v{V_ND+4*c+1}, 0")
            a(f"    v_mov_b32 v{V_ND+4*c+2}, 1.0")
            a(f"    v_mov_b32 v{V_ND+4*c+3}, 1.0")
        a(f"""
    v_mov_b32 v{V_MN}, 1.0
    s_and_b32 s{S_A}, s{S_WAVE}, 3
    s_mul_i32 s{S_A}, s{S_A}, 3
    s_lshr_b32 s{S_B}, s{S_WAVE}, 2
    s_add_u32 s{S_SLOT}, s{S_A}, s{S_B}
    s_getpc_b64 {sr(S_PC,2)}
K_pc:
    s_add_u32 s{S_PC}, s{S_PC}, K_vbase - K_pc
    s_addc_u32 s{S_PC+1}, s{S_PC+1}, 0
    ; segment mapping of phase 2: segment 128 i + t/6, lane group g = t%6
    v_mul_u32_u24 v{tc}, 10923, v{T}
    v_lshrrev_b32 v{tc}, 16, v{tc}
    v_mad_i32_i24 v{vG4}, v{tc}, -6, v{T}
    v_lshlrev_b32 v{vG4}, 2, v{vG4}          ; 4g
    v_mul_u32_u24 v{vSb}, {RSTRIDE}, v{tc}
    s_lshr_b32 s{S_A}, s2, 3
    s_mul_i32 s{S_A}, s{S_A}, {781*128}
    s_add_u32 s{S_A}, s{S_A}, {WS_P}
    v_lshl_add_u32 v{vPf}, v{T}, 7, s{S_A}
    s_lshr_b32 s{S_B}, s{S_BIN}, 2
    s_lshl_b32 s{S_B}, s{S_B}, 4
    s_and_b32 s{S_A}, s{S_BIN}, 1
    s_lshl_b32 s{S_A}, s{S_A}, 3
    s_add_u32 s{S_B}, s{S_B}, s{S_A}
    s_and_b32 s{S_A}, s{S_BIN}, 2
    s_lshl_b32 s{S_A}, s{S_A}, 9
    s_add_u32 s{S_B}, s{S_B}, s{S_A}
    s_add_u32 s{S_B}, s{S_B}, {WS_TAB}
    v_lshl_add_u32 v{vTa}, v{tc}, 11, s{S_B}""")
    def emit_q():
        a(f"""
    s_cmp_ge_u32 s{S_WAVE}, 8
    s_cbranch_scc1 K_notQ
    ; ---- Q tile while the stores drain
    s_lshl_b32 s{S_A}, s{S_D}, 6
    v_add_u32 v{t3}, s{S_A}, v{t0}
    ds_read_u16 v{vB1}, v{t3} offset:256
    v_add_u32 v{tc}, v{vWa}, v{vC8}""")
        for s_ in range(4):
            for h in range(2):
                a(f"    ds_read_b64_tr_b16 {vr(vWf+4*s_+2*h,2)}, v{tc} offset:{16384+4096*s_+1024*h}")
        a(f"""
    s_and_b32 s{S_A}, s{S_WAVE}, 1
    s_lshl_b32 s{S_B}, s{S_A}, 14
    s_lshl_b32 s{S_C}, s{S_D}, 7
    s_add_u32 s{S_B}, s{S_B}, s{S_C}
    s_add_u32 s{S_B}, s{S_B}, {L_QT}
    v_lshl_add_u32 v{tc}, v{HH}, 11, s{S_B}
    v_lshl_add_u32 v{tc}, v{J}, 2, v{tc}""")
        for s_ in range(4):
            a(f"    s_waitcnt lgkmcnt({6-2*s_})")
            cin = "0" if s_ == 0 else vr(vAc, 16)
            a(f"    v_mfma_f32_32x32x16_bf16 {vr(vAc,16)}, {vr(vX+4*s_,4)}, {vr(vWf+4*s_,4)}, {cin}")
        a(f"""
    v_lshlrev_b32 v{vB1}, 16, v{vB1}
    v_mul_f32 v{vB1}, s3, v{vB1}
    s_nop 9""")
        def qrow(r):
            a(f"    v_fma_f32 v{vAc+r}, v{vAc+r}, s3, v{vB1}")
            a(f"    v_cvt_pk_bf16_f32 v{vWf+r}, v{vZ}, v{vAc+r}")
            a(f"    v_sub_f32 v{vWf+r}, v{vAc+r}, v{vWf+r}")
            a(f"    v_cvt_pk_bf16_f32 v{vWf+r}, v{vAc+r}, v{vWf+r}")
            a(f"    ds_write_b32 v{tc}, v{vWf+r} offset:{512*(8*(r>>2)+(r&3))}")
        for r in range(12): qrow(r)
        a(f"""
    s_cmp_eq_u32 s{S_A}, 1
    s_cbranch_scc1 K_notQ""")
        for r in range(12, 16): qrow(r)
        a(f"""
K_notQ:
    ds_read_u16 v{wc(0)}, v{t0}
    ds_read_u16 v{wc(1)}, v{t0} offset:64
    ds_read_u16 v{wc(2)}, v{t0} offset:128
    ds_read_u16 v{wc(3)}, v{t0} offset:192
    v_cmp_lt_u32 vcc, 31, v{L}
    s_waitcnt lgkmcnt(0)""")
        for c in range(4):
            a(f"    v_lshlrev_b32 v{wc(c)}, 16, v{wc(c)}")
            a(f"    v_mul_f32 v{wc(c)}, s3, v{wc(c)}")
            a(f"    v_cvt_pk_bf16_f32 v{t3}, v{vZ}, v{wc(c)}")
            a(f"    v_sub_f32 v{t4}, v{wc(c)}, v{t3}")
            a(f"    v_cvt_pk_bf16_f32 v{t4}, v{vZ}, v{t4}")
            a(f"    v_cndmask_b32 v{V_B5+2*c+1}, v{t3}, v{t4}, vcc")
    step = NT_ * 16
    wc = lambda c: V_B5 + 2*c
    vB1 = 97
    a(f"""
    s_waitcnt lgkmcnt(0)
    global_load_dwordx4 {vr(vDst,4)}, v{t0}, {sr(S_DST,2)}
    {f"s_add_u32 s{S_WS}, s{S_WS}, {int(optval('wsoff', '0')) << 20}" if optval('wsoff', '') else ""}
    {f"s_addc_u32 s{S_WS+1}, s{S_WS+1}, 0" if optval('wsoff', '') else ""}
    {f"v_writelane_b32 v{V_STAMP}, s{S_TAG}, 0" if "lite" in OPT else ""}
    ds_write_b32 v{t2}, v{vZ} offset:{L_H1}
    s_cmp_lg_u32 s{S_WAVE}, 11
    s_cbranch_scc1 K_ld1
    s_mul_i32 s{S_A}, s2, {XTRA}
    s_add_u32 s{S_A}, s{S_A}, {256*MAINE}
    v_min_u32 v{t5}, {XTRA-1}, v{L}
    v_add_lshl_u32 v{t5}, v{t5}, s{S_A}, 2
    v_lshrrev_b32 v{t4}, 1, v{t5}
    global_load_dword v{vDst+4}, v{t5}, {sr(S_DST,2)}
    global_load_dword v{vSrc+4}, v{t5}, {sr(S_SRC,2)}
    global_load_ushort v{vEa+2}, v{t4}, {sr(S_E,2)}
K_ld1:""")
    if "nocpf" not in OPT:
        a(f"""
    ; the first workgroups pull the rest of the code into their die's L2
    s_cmp_ge_u32 s2, 32
    s_cbranch_scc1 K_ld2
    s_sub_u32 s{S_A}, s{S_WAVE}, 5
    s_cmp_ge_u32 s{S_A}, 3
    s_cbranch_scc1 K_ld2
    s_lshl_b32 s{S_A}, s{S_A}, 13
    v_lshl_add_u32 v{t5}, v{L}, 7, s{S_A}
    s_getpc_b64 {sr(S_J,2)}
    global_load_dword v{t4}, v{t5}, {sr(S_J,2)}
K_ld2:""")
    if "tlb" in OPT:
        a(f"""
    s_cmp_lg_u32 s{S_WAVE}, 4
    s_cbranch_scc1 K_ld3
    v_mul_u32_u24 v{t5}, {4*RSTRIDE}, v{L}
    v_add_u32 v{t5}, {RSTRIDE - 4}, v{t5}
    s_mov_b32 s{S_A}, {WS_P - 4096}
    v_writelane_b32 v{t5}, s{S_A}, 1
    s_mov_b32 s{S_A}, {WS_P + N_NODES*256 + 4096}
    v_writelane_b32 v{t5}, s{S_A}, 3
    global_load_dword v{t4}, v{t5}, {sr(S_WS,2)}
K_ld3:""")
    a(f"""
    s_lshl_b32 s{S_A}, s2, 4
    s_add_u32 s{S_A}, s{S_A}, s{S_WAVE}
    s_cmp_lg_u32 s{S_A}, 9
    s_cbranch_scc1 K_ldJ
    s_lshl_b32 s{S_A}, s{S_TAG}, 25
    s_or_b32 s{S_A}, s{S_A}, 1
    s_lshr_b64 {sr(S_TAG,2)}, {sr(S_TAG,2)}, 7
    v_mov_b32 v{t4}, s{S_A}
    v_mov_b32 v{t4+1}, s{S_TAG}
    s_mov_b64 exec, 1
    global_store_dwordx2 v{vZ}, {vr(t4,2)}, {sr(S_DBG,2)} sc1
    s_mov_b64 exec, -1
K_ldJ:
    s_lshl_b32 s{S_A}, s{S_WAVE}, 11
    s_cmp_ge_u32 s{S_WAVE}, 8
    s_cbranch_scc1 K_stX
    s_add_u32 s{S_B}, s{S_A}, {L_W1}
    s_mov_b32 m0, s{S_B}
    v_lshrrev_b32 v{t3}, 2, v{L}
    v_and_b32 v{t3}, 12, v{t3}
    v_xor_b32 v{t3}, v{t3}, v{L}
    v_lshl_add_u32 v{t5}, v{t3}, 4, s{S_A}
    global_load_lds_dwordx4 v{t5}, {sr(S_W1,2)}
    global_load_lds_dwordx4 v{t5}, {sr(S_W1,2)} offset:1024
    s_branch K_stJ
K_stX:
    s_mov_b32 s{S_RX}, s4
    s_mov_b32 s{S_RX+1}, s5
    s_mov_b32 s{S_RX+2}, {N_NODES*128}
    s_mov_b32 s{S_RX+3}, 0x00020000
    s_add_u32 s{S_B}, s{S_A}, {L_XR - 16384}
    s_mov_b32 m0, s{S_B}
    s_lshl_b32 s{S_B}, s{S_N0}, 7
    s_add_u32 s{S_A}, s{S_A}, s{S_B}
    s_sub_u32 s{S_A}, s{S_A}, 16384
    v_lshrrev_b32 v{t3}, 4, v{L}
    v_xor_b32 v{t3}, v{t3}, v{L}
    v_lshl_add_u32 v{t3}, v{t3}, 4, s{S_A}
    v_xor_b32 v{t4}, 64, v{t3}
    buffer_load_dwordx4 v{t3}, {sr(S_RX,4)}, 0 offen lds
    buffer_load_dwordx4 v{t4}, {sr(S_RX,4)}, 0 offen offset:1024 lds
K_stJ:
    s_waitcnt lgkmcnt(0)
    s_barrier
    v_mov_b32 v{vPad}, {PADREC}
    v_mov_b32 v{vPad+1}, {PADREC}
    v_mov_b32 v{vPad+2}, {PADREC}
    v_mov_b32 v{vPad+3}, {PADREC}
    v_lshlrev_b32 v{t2}, 4, v{T}
    ds_write_b128 v{t2}, {vr(vPad,4)} offset:{L_RL}
    s_cmp_ge_u32 s{S_WAVE}, 4
    s_cbranch_scc1 K_in1
    ds_write_b128 v{t2}, {vr(vZ,4)}
    ds_write_b128 v{t2}, {vr(vPad,4)} offset:{L_ST - 4096}
K_in1:
    s_cmp_lg_u32 s{S_WAVE}, 4
    s_cbranch_scc1 K_in2
    v_lshlrev_b32 v{t3}, 3, v{L}
    v_add_u32 v{t3}, {L_ST + ZROW*ST_STRIDE}, v{t3}
    ds_write_b64 v{t3}, {vr(vZ,2)}
K_in2:
    global_load_dwordx4 {vr(vSrc,4)}, v{t0}, {sr(S_SRC,2)}
    global_load_dwordx2 {vr(vEa,2)}, v{t1}, {sr(S_E,2)}
    s_cmp_ge_u32 s{S_WAVE}, 8
    s_cbranch_scc1 K_st2
    s_add_u32 m0, m0, 16384
    v_add_u32 v{t5}, 0x4000, v{t5}
    global_load_lds_dwordx4 v{t5}, {sr(S_W1,2)}
    global_load_lds_dwordx4 v{t5}, {sr(S_W1,2)} offset:1024
    s_branch K_st3
K_st2:
    s_mov_b32 m0, {L_WC}
    v_lshlrev_b32 v{t3}, 2, v{L}
    v_add_u32 v{t4}, 0x8000, v{t3}
    global_load_lds_dword v{t4}, {sr(S_W1,2)}
    s_mov_b32 m0, {L_WC + 256}
    s_nop 0
    global_load_lds_dword v{t3}, {sr(S_B1,2)}
K_st3:
    v_and_b32 v{vC8}, 3, v{L}
    v_lshlrev_b32 v{vC8}, 3, v{vC8}
    v_and_b32 v{t1}, 16, v{L}
    v_lshl_add_u32 v{vC8}, v{t1}, 1, v{vC8}    ; 8c + 32(g&1)
""")
    if cpos == "early": emit_consts()
    a(f"""
    s_lshr_b32 s{S_D}, s{S_WAVE}, 1          ; ct
    v_bfe_u32 v{t0}, v{L}, 2, 2
    v_xor_b32 v{t3}, s{S_D}, v{t0}
    v_lshlrev_b32 v{t3}, 6, v{t3}
    v_lshl_add_u32 v{t0}, v{HH}, 3, v{t0}
    v_lshl_add_u32 v{t0}, v{t0}, 8, v{t3}
    v_add_u32 v{vWa}, {L_W1}, v{t0}
    v_and_b32 v{vWp}, 1, v{L}
    v_lshl_add_u32 v{vWp}, v{vWp}, 5, v{vWa}
    v_and_b32 v{t3}, 16, v{L}
    v_add_u32 v{vWp}, v{vWp}, v{t3}
    v_and_b32 v{t3}, 2, v{L}
    v_lshl_add_u32 v{vWp}, v{t3}, 2, v{vWp}    ; + 16(c&1) + 4(2(g&1) + (c>>1)) columns
    s_and_b32 s{S_A}, s{S_WAVE}, 1
    s_lshl_b32 s{S_A}, s{S_A}, 12
    s_add_u32 s{S_A}, s{S_A}, {L_XR}
    v_bfe_u32 v{t3}, v{L}, 1, 3
    v_xor_b32 v{t3}, v{t3}, v{HH}
    v_lshl_add_u32 v{t3}, v{t3}, 4, s{S_A}
    v_lshl_add_u32 v{vXa}, v{J}, 7, v{t3}
    v_xor_b32 v{vXa+1}, 32, v{vXa}
    v_xor_b32 v{vXa+2}, 64, v{vXa}
    v_xor_b32 v{vXa+3}, 0x60, v{vXa}
    s_mov_b32 s{S_A}, 21400
    s_mov_b32 s{S_B}, -{NB}
    s_mov_b32 s{S_C}, 0xffff0000
    v_mov_b32 v{t5}, 0x10004
    s_waitcnt vmcnt(6)
    s_cmp_lg_u32 s{S_WAVE}, 11
    s_cbranch_scc1 K_wJ
    s_bfm_b64 exec, {XTRA}, 0""")
    assert L_ST - L_RL <= step + 4096
    def binops(cols):
        for i in cols: a(f"    v_mul_u32_u24 v{vBa+i}, s{S_A}, v{vDst+i}")
        for i in cols: a(f"    v_lshrrev_b32 v{vBa+i}, 18, v{vBa+i}")
        for i in cols:
            a(f"    v_and_b32 v{vBa+i}, 0x3fc, v{vBa+i}")
            a(f"    ds_add_rtn_u32 v{vRk+i}, v{vBa+i}, v{t5} offset:{L_H1}")
        for i in cols: a(f"    v_lshlrev_b32 v{vDst+i}, 2, v{vDst+i}")
        for i in cols: a(f"    v_mad_i32_i24 v{vDst+i}, v{vBa+i}, s{S_B}, v{vDst+i}")
    binops([4])
    a(f"""
    s_mov_b64 exec, -1
K_wJ:""")
    stamp(a, 2)
    binops(range(4))
    a(f"""
    s_waitcnt vmcnt(4) lgkmcnt(0)
    s_barrier""")
    stamp(a, 3)
    a(f"""
    s_cmp_eq_u32 s{S_WAVE}, 8
    s_cbranch_scc1 K_scan1
    s_cmp_gt_u32 s{S_WAVE}, 8
    s_cbranch_scc1 K_notP""")
    for s_ in range(4):
        a(f"    ds_read_b128 {vr(vX+4*s_,4)}, v{vXa+s_}")
        for h in range(2):
            a(f"    ds_read_b64_tr_b16 {vr(vWf+4*s_+2*h,2)}, v{vWp} offset:{4096*s_+1024*h}")
    for s_ in range(4):
        a(f"    s_waitcnt lgkmcnt({9-3*s_})")
        cin = "0" if s_ == 0 else vr(vAc, 16)
        a(f"    v_mfma_f32_32x32x16_bf16 {vr(vAc,16)}, {vr(vWf+4*s_,4)}, {vr(vX+4*s_,4)}, {cin}")
    a(f"""
    s_and_b32 s{S_B}, s{S_WAVE}, 1
    s_mul_i32 s{S_A}, s{S_B}, {32*PS_STRIDE}
    s_lshl_b32 s{S_B}, s{S_D}, 6
    s_add_u32 s{S_A}, s{S_A}, s{S_B}
    s_add_u32 s{S_A}, s{S_A}, {L_PS}
    v_mul_u32_u24 v{t3}, {PS_STRIDE}, v{J}
    v_lshl_add_u32 v{t3}, v{HH}, 5, v{t3}
    v_add_u32 v{t3}, s{S_A}, v{t3}
    v_mov_b32 v{t4}, {NLOG2E:#x}
    v_cmp_gt_u32 vcc, {L_PS + 56*PS_STRIDE}, v{t3}
    s_nop 1""")
    for q in range(8):
        a(f"    v_pk_mul_f32 {vr(vAc+2*q,2)}, {vr(vAc+2*q,2)}, {vr(t4,2)} op_sel_hi:[1,0]")
    for q in range(8):
        a(f"    v_cvt_pk_bf16_f32 v{vAc+q}, v{vAc+2*q}, v{vAc+2*q+1}")
    a(f"""
    s_mov_b64 exec, vcc
    ds_write_b128 v{t3}, {vr(vAc,4)}
    ds_write_b128 v{t3}, {vr(vAc+4,4)} offset:16
    s_mov_b64 exec, -1
    s_branch K_b3
K_notP:
    v_lshlrev_b32 v{t1}, 4, v{L}
    v_add_u32 v{t4}, {L_PS + 48*PS_STRIDE}, v{t1}
    v_add_u32 v{t1}, {48*256}, v{t1}
    v_and_b32 v{vBa+4}, 0x3fc, v{vBa+4}
    s_cmp_lg_u32 s{S_WAVE}, 9
    s_cbranch_scc1 K_b3
    global_load_dwordx2 {vr(vTg,2)}, v{vZ}, {sr(S_DBG,2)}
    s_branch K_b3
K_scan1:
    s_setprio 2
    v_lshlrev_b32 v{t0}, 4, v{L}
    ds_read_b128 v[56:59], v{t0} offset:{L_H1}
    s_waitcnt lgkmcnt(0)""")
    for i in range(4):
        a(f"    v_lshrrev_b32 v{60+i}, 16, v{56+i}")
    for i in range(4):
        a(f"    v_mad_u32_u24 v{64+i}, v{60+i}, 5, 3")
    for i in range(4):
        a(f"    v_and_b32 v{64+i}, -4, v{64+i}")
    a(f"""
    v_add_u32 v65, v64, v65
    v_add_u32 v66, v65, v66
    v_add_u32 v67, v66, v67
    v_mov_b32 v68, v67""")
    wave_scan(a, 68)
    a(f"""
    v_sub_u32 v68, v68, v67
    v_add_u32 v69, v68, v64
    v_add_u32 v70, v68, v65
    v_add_u32 v71, v68, v66
    s_mov_b32 s{S_A}, 0x10001""")
    for i in range(4):
        a(f"    v_mul_u32_u24 v{64+i}, s{S_A}, v{68+i}")
    for i in range(4):
        a(f"    v_lshl_add_u32 v{64+i}, v{56+i}, 16, v{64+i}")
    a(f"""
    ds_write_b128 v{t0}, v[64:67] offset:{L_OFF}
    s_setprio 0
K_b3:
    v_lshrrev_b32 v{t0}, 4, v{T}
    v_lshl_add_u32 v{t0}, v{t0}, 4, v{t2}
    v_add_u32 v{t0}, {L_PS}, v{t0}
    s_lshl_b32 s{S_A}, s{S_N0}, 8
    s_add_u32 s{S_A}, s{S_A}, {WS_P + (0x800000 if optval("cheat", "") else 0)}
    s_add_u32 s{S_RT}, s{S_WS}, s{S_A}
    s_addc_u32 s{S_RT+1}, s{S_WS+1}, 0
    s_lshl_b32 s{S_RT+2}, s{S_NN}, 8
    s_mov_b32 s{S_RT+3}, 0x00020000
    s_waitcnt lgkmcnt(0)
    s_barrier""")
    stamp(a, 4)
    a(f"""
    s_cmp_lt_u32 s{S_WAVE}, 10
    s_cbranch_scc1 K_nx0
    ds_read_b32 v{vOf+4}, v{vBa+4} offset:{L_OFF}
    ds_read_b128 v[76:79], v{t4}
K_nx0:
    ds_read_b128 v[72:75], v{t0}""")
    for i in range(4):
        a(f"    ds_read_b32 v{vOf+i}, v{vBa+i} offset:{L_OFF}")
    a(f"""
    s_waitcnt vmcnt(2)
    v_lshl_or_b32 v{vSrc}, v{vEa}, 16, v{vSrc}
    v_and_or_b32 v{vSrc+1}, v{vEa}, s{S_C}, v{vSrc+1}
    v_lshl_or_b32 v{vSrc+2}, v{vEa+1}, 16, v{vSrc+2}
    v_and_or_b32 v{vSrc+3}, v{vEa+1}, s{S_C}, v{vSrc+3}
    s_waitcnt lgkmcnt(4)
    buffer_store_dwordx4 v[72:75], v{t2}, {sr(S_RT,4)}, 0 offen sc1""")
    def scatter(i):
        a(f"    v_add_u32_sdwa v{vBa+i}, v{vOf+i}, v{vRk+i} {SD} src0_sel:WORD_0 src1_sel:WORD_0")
        a(f"    v_add_u32_sdwa v{vOf+i}, v{vOf+i}, v{vRk+i} {SD} src0_sel:WORD_1 src1_sel:WORD_1")
        a(f"    ds_write_b32 v{vBa+i}, v{vSrc+i} offset:{L_RS}")
        a(f"    ds_write_b8 v{vOf+i}, v{vDst+i} offset:{L_RS}")
    a(f"    s_waitcnt lgkmcnt(0)")
    for i in range(4): scatter(i)
    stamp(a, 22)
    a(f"""
    s_waitcnt vmcnt(1)
    s_cmp_lt_u32 s{S_WAVE}, 9
    s_cbranch_scc1 K_nx2
    s_cmp_eq_u32 s{S_WAVE}, 11
    s_cbranch_scc1 K_x2
    s_cmp_eq_u32 s{S_WAVE}, 9
    s_cbranch_scc1 K_tag0
    buffer_store_dwordx4 v[76:79], v{t1}, {sr(S_RT,4)}, 0 offen sc1
    s_branch K_nx2
K_tag0:
    s_mov_b32 s{S_K}, 0
K_tagp:
    v_cmp_ne_u32 vcc, 0, v{vTg}
    s_cbranch_vccnz K_tagok
    s_add_u32 s{S_K}, s{S_K}, 1
    s_cmp_gt_u32 s{S_K}, {POLL_MAX}
    s_cbranch_scc1 K_tagok
    global_load_dwordx2 {vr(vTg,2)}, v{vZ}, {sr(S_DBG,2)} sc1
    s_waitcnt vmcnt(0)
    s_branch K_tagp
K_tagok:
    ds_write_b64 v{vZ}, {vr(vTg,2)} offset:{L_NONCE}
    s_branch K_nx2
K_x2:
    s_bfm_b64 exec, {XTRA}, 0
    v_lshl_or_b32 v{vSrc+4}, v{vEa+2}, 16, v{vSrc+4}""")
    scatter(4)
    a(f"""
    s_mov_b64 exec, -1
K_nx2:
    s_mul_i32 s{S_A}, s2, {RSTRIDE}
    s_add_u32 s{S_RR}, s{S_WS}, s{S_A}
    s_addc_u32 s{S_RR+1}, s{S_WS+1}, 0
    s_mov_b32 s{S_RR+2}, 16512
    s_mov_b32 s{S_RR+3}, 0x00020000
    v_add_u32 v{t3}, {step}, v{t2}
    s_waitcnt lgkmcnt(0)""")
    stamp(a, 23)
    a(f"""
    s_barrier""")
    stamp(a, 5)
    a(f"""
    ds_read_b128 v[0:3], v{t2} offset:{L_RS}
    ds_read_b64 v[12:13], v{vZ} offset:{L_NONCE}
    s_cmp_ge_u32 s{S_WAVE}, 5
    s_cbranch_scc1 K_co1
    ds_read_b128 v[8:11], v{t2} offset:{L_RS + step}
    s_waitcnt lgkmcnt(0)
    buffer_store_dwordx4 v[8:11], v{t3}, {sr(S_RR,4)}, 0 offen sc1
K_co1:
    s_waitcnt lgkmcnt(0)
    buffer_store_dwordx4 v[0:3], v{t2}, {sr(S_RR,4)}, 0 offen sc1
""")
    if optval("cheat", ""):
        a(f"""
    s_cmp_ge_u32 s{S_WAVE}, {optval("cheat", "")}
    s_cbranch_scc1 K_ch0
    s_lshr_b32 s{S_A}, s2, 3
    s_mul_i32 s{S_A}, s{S_A}, {781*128}
    s_add_u32 s{S_A}, s{S_A}, {WS_P}
    v_lshl_add_u32 v14, v{T}, 7, s{S_A}
    global_load_dword v14, v14, {sr(S_WS,2)}
K_ch0:""")
    a(f"""
    v_readfirstlane_b32 s{S_TAG}, v12
    v_readfirstlane_b32 s{S_TAG+1}, v13
    s_mov_b32 s3, {NLOG2E:#x}
    v_lshlrev_b32 v{t0}, 1, v{J}
    v_add_u32 v{t0}, {L_WC}, v{t0}
    s_cmp_lg_u32 s{S_WAVE}, 8
    s_cbranch_scc1 K_ntb
    s_and_b32 s{S_C}, s{S_TAG}, 0xfe000000
    s_lshl_b32 s{S_B}, s2, 11
    s_add_u32 s{S_B}, s{S_B}, {WS_TAB}
    v_lshl_add_u32 v{t1}, v{L}, 4, s{S_B}""")
    for i in range(4):
        a(f"    v_lshrrev_b32 v{68+i}, 2, v{68+i}")
        a(f"    v_lshl_or_b32 v{68+i}, v{60+i}, 13, v{68+i}")
        a(f"    v_or_b32 v{vTb+2*i}, s{S_C}, v{68+i}")
        a(f"    v_mov_b32 v{vTb+2*i+1}, s{S_TAG+1}")
    a("K_ntb:")
    stamp(a, 24)
    if cpos == "drain": emit_consts()
    if qpos == "drain":
        emit_q(); stamp(a, 7)
    stamp(a, 25)
    if optval("cheat", ""):
        a(f"""
    s_cmp_ge_u32 s{S_WAVE}, {optval("cheat", "")}
    s_cbranch_scc1 K_ch1
    s_waitcnt vmcnt(1)
    s_branch K_ch2
K_ch1:
    s_waitcnt vmcnt(0)
K_ch2:""")
    else:
        a("    s_waitcnt vmcnt(0)")
    a(f"""
    s_barrier""")
    stamp(a, 6)
    a(f"""
    s_cmp_eq_u32 s{S_TAG}, 0
    s_cbranch_scc1 K_slow
    s_cmp_lt_u32 s{S_WAVE}, 8
    s_cbranch_scc1 K_lb2
    s_cmp_lg_u32 s{S_WAVE}, 8
    s_cbranch_scc1 K_ntab
    global_store_dwordx4 v{t1}, {vr(vTb,4)}, {sr(S_WS,2)} sc1
    global_store_dwordx4 v{t1}, {vr(vTb+4,4)}, {sr(S_WS,2)} offset:1024 sc1
K_ntab:
    s_sub_u32 s{S_A}, s{S_WAVE}, 8
    s_lshl_b32 s{S_A}, s{S_A}, 12
    s_add_u32 s{S_B}, s{S_A}, {L_W2}
    s_mov_b32 m0, s{S_B}
    v_lshl_add_u32 v{t3}, v{L}, 4, s{S_A}
    global_load_lds_dwordx4 v{t3}, {sr(S_W2,2)}
    global_load_lds_dwordx4 v{t3}, {sr(S_W2,2)} offset:1024
    global_load_lds_dwordx4 v{t3}, {sr(S_W2,2)} offset:2048
    global_load_lds_dwordx4 v{t3}, {sr(S_W2,2)} offset:3072
    s_branch K_lbJ
K_lb2:
    s_cmp_lg_u32 s{S_WAVE}, 7
    s_cbranch_scc1 K_lbJ
    s_mov_b32 m0, {L_B2}
    v_lshlrev_b32 v{t3}, 2, v{J}
    global_load_lds_dword v{t3}, {sr(S_B2,2)}
K_lbJ:""")
    if cpos == "post": emit_consts()
    if qpos == "post": emit_q()
    a(f"""
    s_lshl_b32 s{S_B}, s{S_WAVE}, 12
    s_add_u32 s{S_B}, s{S_B}, {L_XS}
    s_mov_b32 m0, s{S_B}
    v_mov_b32 v{t5}, v{vTa}""")
    if qpos == "post": stamp(a, 7)
    vT = 0
    vN = 4
    vAr = 6
    vR = 12
    vM = 28
    vA = 32
    vK = 48
    vB = 64
    vG = 80
    a(f"""
    s_mov_b32 s{S_RR}, s{S_WS}
    s_mov_b32 s{S_RR+1}, s{S_WS+1}
    s_mov_b32 s{S_RR+2}, {WS_P + N_NODES*256}
    s_mov_b32 s{S_A}, {128*2048}
    s_mov_b32 s{S_B}, {128*RSTRIDE}
    s_mov_b32 s{S_C}, 0xfe000000
    s_movk_i32 s{S_D}, 0xfc
    s_mov_b32 s{S_K}, 0
    s_mov_b64 {mask(0)}, -1
    s_mov_b64 {mask(1)}, -1
    v_mov_b32 v{vM}, 0
    v_mov_b32 v{vM+1}, 0
K_poll:
    s_mov_b64 exec, {mask(0)}
    s_cbranch_execz K_pl0
    buffer_load_dwordx2 {vr(vT,2)}, v{t5}, {sr(S_RR,4)}, 0 offen sc1
K_pl0:
    s_mov_b64 exec, {mask(1)}
    s_cbranch_execz K_pl1
    buffer_load_dwordx2 {vr(vT+2,2)}, v{t5}, {sr(S_RR,4)}, s{S_A} offen sc1
K_pl1:
    s_mov_b64 exec, -1
    s_waitcnt vmcnt(0)""")
    for i in range(2):
        a(f"    v_xor_b32 v{vN+i}, s{S_TAG}, v{vT+2*i}")
        a(f"    v_xor_b32 v{vAr+i}, s{S_TAG+1}, v{vT+2*i+1}")
        a(f"    v_and_or_b32 v{vAr+i}, v{vN+i}, s{S_C}, v{vAr+i}")
        a(f"    v_cmp_ne_u32 {mask(i)}, 0, v{vAr+i}")
    a(f"""
    s_add_u32 s{S_K}, s{S_K}, 1
    s_or_b64 vcc, {mask(0)}, {mask(1)}
    s_cbranch_scc0 K_got
    {"s_sleep " + optval("ps", "2") if optval("ps", "2") != "0" else ""}
    s_cmp_lt_u32 s{S_K}, {POLL_MAX}
    s_cbranch_scc1 K_poll
    s_mov_b32 s{S_MODE}, 1
    s_branch K_nor2a
K_got:""")
    if DIAG:
        a(f"    v_writelane_b32 v{V_STAMP}, s{S_K}, 20")
    stamp(a, 8)
    so = ["0", sr(S_B)]
    for i in range(2):
        a(f"    v_and_b32 v{vAr+i}, 0x1fff, v{vT+2*i}")
        a(f"    v_bfe_u32 v{vT+2*i+1}, v{vT+2*i}, 13, 12")
        a(f"    v_lshl_add_u32 v{vAr+i}, v{vAr+i}, 2, v{vSb}")
        a(f"    v_sub_u32 v{vN+i}, v{vT+2*i+1}, v{vG4}")
        a(f"    v_lshl_add_u32 v{vAr+2+i}, v{vT+2*i+1}, 2, v{vAr+i}")
        a(f"    v_cmp_lt_i32 {mask(4*i)}, 0, v{vN+i}")
        a(f"    v_lshl_add_u32 v{vAr+i}, v{vG4}, 2, v{vAr+i}")
        a(f"    v_add_u32 v{vAr+2+i}, v{vAr+2+i}, v{vG4}")
        a(f"    s_or_b64 exec, {mask(4*i)}, 1")
        a(f"    buffer_load_dword v{vM+i}, v{vAr+2+i}, {sr(S_RR,4)}, {so[i]} offen")
        a(f"    buffer_load_dwordx4 {vr(vR+4*i,4)}, v{vAr+i}, {sr(S_RR,4)}, {so[i]} offen")
        a(f"    s_mov_b64 exec, -1")
    for i in range(2):
        for k in range(1, 4):
            a(f"    v_cmp_lt_i32 {mask(4*i+k)}, {k}, v{vN+i}")
    a(f"""
    v_max_i32 v{t1}, v{vN}, v{vN+1}
    v_cmp_lt_i32 vcc, 24, v{t1}
    s_mov_b32 s{S_K}, 0
    s_cbranch_vccz K_nor2a
    s_mov_b32 s{S_K}, 1""")
    for i in range(2):
        a(f"    buffer_load_dword v{vM+2+i}, v{vAr+2+i}, {sr(S_RR,4)}, {so[i]} offen offset:24")
        a(f"    buffer_load_dwordx4 {vr(vR+8+4*i,4)}, v{vAr+i}, {sr(S_RR,4)}, {so[i]} offen offset:96")
        for k in range(4):
            a(f"    v_cmp_lt_i32 {mask(8+4*i+k)}, {24+k}, v{vN+i}")
    a(f"""
    v_cmp_lt_i32 vcc, 48, v{t1}
    s_cbranch_vccz K_nor2a
    s_mov_b32 s{S_MODE}, 1
K_nor2a:
    v_mov_b32 v{t4}, {L_FLAG}
    v_mov_b32 v{t0}, 4
    s_cmp_eq_u32 s{S_MODE}, 0
    s_cbranch_scc1 K_nofl
    ds_write_b32 v{t4}, v{t0}
K_nofl:
    s_waitcnt lgkmcnt(0)
    s_barrier
    ds_read_b32 v{t3}, v{t4}
    s_add_u32 s{S_RX}, s{S_WS}, {WS_P - 3072}
    s_addc_u32 s{S_RX+1}, s{S_WS+1}, 0
    s_and_b32 s{S_RX+1}, s{S_RX+1}, 0xffff
    s_or_b32 s{S_RX+1}, s{S_RX+1}, 0x01000000
    s_mov_b32 s{S_RX+2}, {N_NODES}
    s_mov_b32 s{S_RX+3}, 0x00020000
    s_waitcnt lgkmcnt(0)
    v_cmp_ne_u32 vcc, 0, v{t3}
    s_cbranch_vccnz K_slow""")
    pf0 = int(optval("pf", "8"))
    a(f"""
    s_cmp_lt_u32 s{S_WAVE}, {pf0}
    s_cbranch_scc1 K_npf
    buffer_load_dword v{t5}, v{vPf}, {sr(S_RR,4)}, 0 offen
    s_waitcnt vmcnt(1)
    s_branch K_pfJ
K_npf:
    s_waitcnt vmcnt(0)
K_pfJ:""")
    stamp(a, 9)
    def rec_reg(k): return vR + k
    def count_cols(ks):
        for k in ks:
            a(f"    v_and_b32_sdwa v{vA+k}, v{vM+k//4}, s{S_D} {SD} src0_sel:BYTE_{k%4} src1_sel:DWORD")
        for k in ks:
            a(f"    s_mov_b64 exec, {mask(k)}")
            a(f"    ds_add_rtn_u32 v{vK+k}, v{vA+k}, v{t0}")
        a(f"    s_mov_b64 exec, -1")
    count_cols(range(8))
    a(f"""
    s_cmp_eq_u32 s{S_K}, 0
    s_cbranch_scc1 K_nor2b""")
    count_cols(range(8, 16))
    a(f"""
K_nor2b:
    v_lshlrev_b32 v{t1}, 2, v{L}
    v_cmp_gt_u32 vcc, s{S_NN}, v{L}
    s_waitcnt lgkmcnt(0)
    s_barrier""")
    stamp(a, 10)
    a(f"""
    ds_read_b32 v{V_CNT}, v{t1}
    s_waitcnt lgkmcnt(0)
    v_add_u32 v{vP}, 12, v{V_CNT}
    v_and_b32 v{vP}, -16, v{vP}
    v_max_u32 v{vP}, 0x80, v{vP}
    v_cndmask_b32 v{vP}, 0, v{vP}, vcc
    v_mov_b32 v{vS}, v{vP}""")
    wave_scan(a, vS)
    a(f"""
    s_nop 0
    v_readlane_b32 s{S_A}, v{vS}, 63
    v_sub_u32 v{vS}, v{vS}, v{vP}
    ds_write_b32 v{t1}, v{vS} offset:{L_SX}
    s_cmp_gt_u32 s{S_A}, {ENT_CAP*4}
    s_cbranch_scc1 K_slow""")
    def place_cols(ks, mid=None):
        ks = list(ks)
        for k in ks:
            a(f"    ds_read_b32 v{vB+k}, v{vA+k} offset:{L_SX}")
        if mid: a(mid)
        for n, k in enumerate(ks):
            if n % 2 == 0:
                a(f"    s_waitcnt lgkmcnt({len(ks)-2-n})")
            a(f"    v_add_u32 v{vK+k}, v{vB+k}, v{vK+k}")
        for k in ks:
            a(f"    s_mov_b64 exec, {mask(k)}")
            a(f"    ds_write_b32 v{vK+k}, v{rec_reg(k)} offset:{L_RL}")
        a(f"    s_mov_b64 exec, -1")
    place_cols(range(8), f"""
    s_add_u32 s{S_A}, s{S_A}, 127
    s_lshr_b32 s{S_TT}, s{S_A}, 7            ; tiles
    s_mul_i32 s{S_T0}, s{S_SLOT}, s{S_TT}
    s_add_u32 s{S_NT}, s{S_T0}, s{S_TT}
    s_mul_i32 s{S_T0}, s{S_T0}, 43691
    s_mul_i32 s{S_NT}, s{S_NT}, 43691
    s_lshr_b32 s{S_T0}, s{S_T0}, 19
    s_lshr_b32 s{S_NT}, s{S_NT}, 19
    s_sub_u32 s{S_NT}, s{S_NT}, s{S_T0}""")
    a(f"""
    s_cmp_eq_u32 s{S_K}, 0
    s_cbranch_scc1 K_nor2c
    s_waitcnt lgkmcnt(0)""")
    place_cols(range(8, 16))
    thr = [int(x) for x in optval("thr", "5_3_1").split("_")]
    a(f"""
K_nor2c:
    s_lshl_b32 s{S_A}, s{S_T0}, 7            ; ts*4
    s_add_u32 s{S_C}, s{S_A}, {L_RL}
    v_add_u32 v{V_AIDX}, s{S_C}, v{V_AIDX}
    v_cmp_ge_u32 {mask(0)}, s{S_A}, v{vS}
    v_subrev_u32 v{t0}, s{S_A}, v{vS}
    s_and_b64 {mask(0)}, {mask(0)}, vcc
    s_bcnt1_i32_b64 s{S_B}, {mask(0)}
    s_sub_u32 s{S_B}, s{S_B}, 1              ; n
    s_andn2_b64 {mask(0)}, vcc, {mask(0)}
    s_waitcnt lgkmcnt(0)
    s_barrier""")
    stamp(a, 11)
    for h in idx_reads(0): a(h)
    a(f"""
    v_add_u32 v{V_AENT}, s{S_C}, v{V_AENT}
    v_xor_b32 v{t3}, s{S_B}, v{HH}
    v_and_b32 v{t3}, 1, v{t3}
    s_lshl_b32 s{S_A}, s{S_B}, 9
    s_add_u32 s{S_A}, s{S_A}, {L_QT}
    v_lshl_add_u32 v{V_AQ}, v{t3}, 9, s{S_A}
    v_lshl_add_u32 v{V_AQ}, v{J}, 2, v{V_AQ}
    s_waitcnt lgkmcnt(0)""")
    for h in dma_ops(0): a(h)
    a(f"""
    s_cmp_ge_u32 s{S_WAVE}, {ndual}
    s_cbranch_scc1 K_e1
    s_add_u32 m0, m0, {L_T2 - L_XS}
    s_nop 0""")
    for h in dma_ops(1): a(h)
    a("K_e1:")
    for h in ent_reads(0, True): a(h)
    a(f"""
    v_bfe_u32 v{t4}, v{t0}, 4, 3
    v_add_u32 v{t4}, 1, v{t4}
    v_mul_u32_u24 v{t4}, {VAR_SIZE}, v{t4}
    v_lshrrev_b32 v{t0}, 7, v{t0}
    v_min_u32 v{t0}, 63, v{t0}
    v_cndmask_b32 v{t0}, 63, v{t0}, {mask(0)}
    v_lshlrev_b32 v{t0}, 2, v{t0}
    v_mov_b32 v{V_TAB}, 0
    ds_permute_b32 v{V_TAB}, v{t0}, v{t4}
    s_add_u32 s{S_A}, s{S_B}, s{S_SLOT}
    s_mul_i32 s{S_A}, s{S_A}, {ST_STRIDE}
    s_add_u32 s{S_A}, s{S_A}, {L_ST}
    v_lshl_add_u32 v{V_AS}, v{L}, 2, s{S_A}
    v_xor_b32 v{t3}, 1, v{t3}
    v_lshlrev_b32 v{V_INCQ}, 10, v{t3}
    v_cvt_f32_u32 v{vOne}, s{S_TT}
    v_rcp_f32 v{vOne}, v{vOne}
    v_add3_u32 v{vP}, v{vS}, v{vP}, -4
    v_lshrrev_b32 v{vS}, 7, v{vS}
    v_lshrrev_b32 v{vP}, 7, v{vP}
    v_cvt_f32_u32 v{vS}, v{vS}
    v_cvt_f32_u32 v{vP}, v{vP}
    v_add_f32 v{vS}, {f32bits((NW-0.5)/NW):#x}, v{vS}
    v_add_f32 v{vP}, {f32bits((NW-0.5)/NW):#x}, v{vP}
    v_mul_f32 v{vOne}, {f32bits(NW):#x}, v{vOne}
    v_mul_f32 v{vS}, v{vS}, v{vOne}
    v_mul_f32 v{vP}, v{vP}, v{vOne}
    v_cvt_u32_f32 v{vS}, v{vS}
    v_cvt_u32_f32 v{vP}, v{vP}
    v_sub_u32 v{vP}, v{vP}, v{vS}
    v_add_u32 v{vS}, v{vS}, v{L}
    v_lshl_or_b32 v{vS}, v{vP}, 8, v{vS}
    v_cndmask_b32 v{vS}, {ZROW}, v{vS}, vcc
    v_lshl_or_b32 v{V_CNT}, v{vS}, 16, v{V_CNT}
    ; jump table: entry offset inside a variant slot (priority steps near the end), exit at lane nt
    v_sub_u32 v{t0}, s{S_NT}, v{L}
    v_mov_b32 v{t3}, 64""")
    for i, th in enumerate(thr):
        a(f"    v_cmp_eq_u32 {mask(i)}, {th}, v{t0}")
    a(f"    v_cmp_eq_u32 {mask(3)}, 0, v{t0}")
    a(f"    v_mov_b32 v{t4}, K_exit - K_vbase")
    for i, th in enumerate(thr):
        a(f"    v_cndmask_b32 v{t3}, v{t3}, {44 + 8*i}, {mask(i)}")
    a(f"""
    s_waitcnt lgkmcnt(0)
    v_add_u32 v{V_TAB}, v{V_TAB}, v{t3}
    v_cndmask_b32 v{V_TAB}, v{V_TAB}, v{t4}, {mask(3)}
    s_mov_b32 s{S_K}, 1
    s_setprio 3
    v_readlane_b32 s{S_J}, v{V_TAB}, 0
    s_bitcmp1_b32 s{S_B}, 0
    s_cselect_b64 {sr(S_PAR,2)}, -1, 0
    s_movk_i32 s{S_PAD}, {PADREC}""")
    for h in mask_load(): a(h)
    a(f"""
    s_cmp_ge_u32 s{S_WAVE}, {ndual}
    s_cbranch_scc1 K_e2
    s_waitcnt vmcnt(4)""")
    stamp(a, 12)
    for h in tr_reads(0): a(h)
    a(f"    s_waitcnt vmcnt(0)")
    for h in tr_reads(1): a(h.replace(f"v{V_AA} ", f"v{vAA2} "))
    a(f"""
    s_add_u32 s{S_J}, s{S_MO}, 64 + K_vhN - K_varN
    s_waitcnt lgkmcnt(0)
    s_sub_u32 m0, m0, {L_T2 - L_XS}
    s_branch K_e4
K_e2:
    s_waitcnt vmcnt(0)""")
    stamp(a, 12)
    for h in tr_reads(0): a(h)
    a(f"    s_waitcnt lgkmcnt(0)")
    for h in dma_ops(1): a(h)
    a("K_e4:")
    for h in onehot_ops(): a(h)
    a(f"""
    s_add_u32 s{S_J}, s{S_J}, s{S_PC}
    s_addc_u32 s{S_J+1}, s{S_PC+1}, 0
    s_cmp_eq_u32 s{S_NT}, 0
    s_cbranch_scc1 K_exit""")
    a(small(0)); a(small(1))
    a("    s_nop 7")
    stamp(a, 13); stamp(a, 14, True)
    a(f"    s_setpc_b64 {sr(S_J,2)}")
    a(f".p2align 6")
    a(f"K_vbase:")
    for vi, b in enumerate([None] + list(range(8))):
        tile_variant(a, vi, b)
    a(f".p2align 3")
    a(f"K_exit:")
    stamp(a, 15); stamp(a, 16, True)
    for cts in ((0, 1), (2, 3)):
        flush_ops(a, cts)
        a("    s_nop 1")
        flush_ops2(a, cts)
    a(f"""
    v_cmp_eq_f32 vcc, 0, v{V_MN}
    s_cbranch_vccz K_join
    v_mov_b32 v64, 1
    v_mov_b32 v65, {L_FLAG}
    ds_write_b32 v65, v64
K_join:
    s_cmp_ge_u32 s{S_WAVE}, 4
    s_cbranch_scc1 K_idle
    v_and_b32 v136, 15, v{L}
    v_lshrrev_b32 v137, 4, v{L}              ; g
    s_lshl_b32 s{S_A}, s{S_WAVE}, 4
    v_add_u32 v136, s{S_A}, v136             ; node
    v_lshlrev_b32 v138, 2, v136
    ds_bpermute_b32 v139, v138, v{V_CNT}
    v_and_b32 v138, 16, v{L}
    v_lshlrev_b32 v138, 2, v138
    v_lshl_add_u32 v138, v{HH}, 5, v138
    v_bfe_u32 v140, v{L}, 2, 2
    v_add_u32 v140, v140, v138
    v_lshlrev_b32 v140, 7, v140
    v_and_b32 v141, 3, v{L}
    v_lshl_add_u32 v140, v141, 4, v140
    v_add_u32 v140, {L_W2}, v140""")
    for ot in range(4):
        for ks in range(4):
            for h in range(2):
                a(f"    ds_read_b64_tr_b16 {vr(16*ot+4*ks+2*h,2)}, v140 offset:{1024*ks+512*h+64*(ot>>1)+8*(ot&1)}")
    a(f"""
    v_lshlrev_b32 v141, 4, v137
    v_add_u32 v140, {L_B2}, v141
    ds_read_b128 v[128:131], v140
    ds_read_b128 v[132:135], v140 offset:64
    v_lshl_add_u32 v141, v136, 7, v141
    s_lshl_b32 s{S_A}, s{S_N0}, 7
    s_add_u32 s{S_RT}, s{S_OUT}, s{S_A}
    s_addc_u32 s{S_RT+1}, s{S_OUT+1}, 0
    s_lshl_b32 s{S_RT+2}, s{S_NN}, 7
    s_mov_b32 s{S_RT+3}, 0x00020000
    s_mov_b32 s3, {NLN2:#x}
    s_movk_i32 s{S_K}, {ST_STRIDE}
    s_waitcnt lgkmcnt(0)
    v_bfe_u32 v142, v139, 16, 8
    v_lshrrev_b32 v143, 24, v139
    v_and_b32 v139, 0xffff, v139
    v_cvt_f32_u32 v139, v139
    v_mul_f32 v139, {f32bits(0.25 * -1.4426950408889634):#x}, v139
    v_lshlrev_b32 v138, 2, v138
    v_add_u32 v138, {L_ST}, v138
    v_mad_u32_u24 v142, v142, s{S_K}, v138
    v_add_u32 v138, {ZROW*ST_STRIDE}, v138
    v_cmp_lt_u32 vcc, 0, v143
    v_add_u32 v144, {ST_STRIDE}, v142
    v_mov_b32 v146, 0x207
    v_cndmask_b32 v145, v138, v144, vcc""")
    vO = 148
    accs = [148, 149, 150, 151, 152, 153] + list(range(156, 166))
    ACC = [112, 116, 120, 124]
    for q in range(8):
        a(f"    v_lshlrev_b32 v{112+2*q}, 16, v{128+q}")
        a(f"    v_and_b32 v{113+2*q}, 0xffff0000, v{128+q}")
    for q in range(16):
        a(f"    v_mul_f32 v{112+q}, v139, v{112+q}")
    a(f"    s_barrier")
    stamp(a, 17)
    S0 = 64; S1 = 96
    for ks in range(2):
        pass
    a(f"    s_mov_b32 s{S_A}, 1")
    for ks in range(4):
        a(f"    ds_read_b128 {vr(S0+8*ks,4)}, v142 offset:{32*ks}")
        a(f"    ds_read_b128 {vr(S0+4+8*ks,4)}, v142 offset:{32*ks+16}")
    a(f"K_rows:")
    tmp = [96, 104, 128, 156]
    for ks in range(4):
        a(f"    ds_read_b128 {vr(tmp[ks],4)}, v145 offset:{32*ks}")
        a(f"    ds_read_b128 {vr(tmp[ks]+4,4)}, v145 offset:{32*ks+16}")
    a(f"""
    v_cmp_lt_u32 vcc, s{S_A}, v143
    v_add_u32 v144, {ST_STRIDE}, v144
    s_add_u32 s{S_A}, s{S_A}, 1""")
    for ks in range(4):
        a(f"    s_waitcnt lgkmcnt({6-2*ks})")
        for q in range(4):
            a(f"    v_pk_add_f32 {vr(S0+8*ks+2*q,2)}, {vr(S0+8*ks+2*q,2)}, {vr(tmp[ks]+2*q,2)}")
    a(f"""
    v_cndmask_b32 v145, v138, v144, vcc
    s_cbranch_vccnz K_rows""")
    def cv(ks):
        for q in range(4):
            a(f"    v_cvt_pk_bf16_f32 v{96+4*ks+q}, v{S0+8*ks+2*q}, v{S0+1+8*ks+2*q}")
    def mf(ks, ot):
        d = vr(ACC[ot], 4)
        a(f"    v_mfma_f32_16x16x32_bf16 {d}, {vr(16*ot+4*ks,4)}, {vr(96+4*ks,4)}, {d}")
    cv(0); cv(1)
    for ks in range(4):
        for ot in range(4):
            mf(ks, ot)
        if ks < 2: cv(ks + 2)
    a("    s_nop 4")
    for q in range(16):
        a(f"    v_mul_f32 v{64+q}, s3, v{112+q}")
    for q in range(8):
        a(f"    v_cvt_pk_bf16_f32 v{80+q}, v{64+2*q}, v{65+2*q}")
    osc = optval("o_", "sc1")
    a(f"    buffer_store_dwordx4 v[80:83], v141, {sr(S_RT,4)}, 0 offen {osc}")
    a(f"    buffer_store_dwordx4 v[84:87], v141, {sr(S_RT,4)}, 0 offen offset:64 {osc}")
    for q in range(16):
        a(f"    v_cmp_class_f32 {mask(q)}, v{64+q}, v146")
    for q in range(1, 16):
        a(f"    s_or_b64 {mask(0)}, {mask(0)}, {mask(q)}")
    a(f"""
    s_cbranch_scc0 K_fin
    v_mov_b32 v64, 1
    v_mov_b32 v65, {L_FLAG}
    ds_write_b32 v65, v64
    s_branch K_fin
K_idle:
    s_waitcnt lgkmcnt(0)
    s_barrier                                ; B9
K_fin:
    v_mov_b32 v65, {L_FLAG}
    s_waitcnt lgkmcnt(0)
    s_barrier                                ; B10
    ds_read_b32 v64, v65
    s_waitcnt lgkmcnt(0)
    v_cmp_ne_u32 vcc, 0, v64
    s_cbranch_vccnz K_slow""")
    if DIAG:
        a("    s_waitcnt vmcnt(0)")
        stamp(a, 18); stamp(a, 19, True)
        a(f"""
    v_writelane_b32 v{V_STAMP}, s{S_NT}, 21
    s_lshl_b32 s{S_A}, s2, 4
    s_add_u32 s{S_A}, s{S_A}, s{S_WAVE}
    s_lshl_b32 s{S_A}, s{S_A}, 8
    s_add_u32 s{S_A}, s{S_A}, {WS_STAMP}
    v_lshl_add_u32 v64, v{L}, 2, s{S_A}
    s_mov_b64 exec, 0xffffffff
    global_store_dword v64, v{V_STAMP}, {sr(S_WS,2)}
    global_store_dword v64, v{V_TRACE}, {sr(S_WS,2)} offset:128""")
    if optval("spin", "") != "":
        stamp(a, 18)
        a(f"""
    s_lshl_b32 s{S_A}, s2, 4
    s_add_u32 s{S_A}, s{S_A}, s{S_WAVE}
    s_cmp_lg_u32 s{S_A}, {100*16 + int(optval('sw', '0'))}
    s_cbranch_scc1 K_end
    s_lshl_b32 s{S_A}, s{S_TAG+1}, 7
    s_lshr_b32 s{S_B}, s{S_TAG}, 25
    s_or_b32 s{S_A}, s{S_A}, s{S_B}
    {"s_mov_b32 s100, s%d" % S_A if optval("spin", "") == "0" else ""}
    s_sub_u32 s{S_B}, s100, s{S_A}
    s_min_u32 s{S_B}, s{S_B}, 20000
    s_mul_i32 s{S_B}, s{S_B}, 10
    s_add_u32 s{S_B}, s{S_B}, 10000
K_spin:
    s_memrealtime s[98:99]
    s_waitcnt lgkmcnt(0)
    s_sub_u32 s98, s98, s{S_A}
    s_cmp_lt_u32 s98, s{S_B}
    s_cbranch_scc1 K_spin""")
    a(f"""
K_end:
    s_endpgm
K_slow:
    s_setprio 0
    s_mov_b32 s16, s{S_N0}
    s_mov_b32 s17, s{S_NN}
    s_mov_b32 s18, s{S_WAVE}""")
    gen_slow(a, 16, 17, 18, L, NLOG2E, NW=NW)
    a("    s_endpgm")

def main():
    global DIAG
    out = sys.argv[1]
    DIAG = "diag" in sys.argv[2:] or "lite" in sys.argv[2:]
    OPT.update(sys.argv[2:])
    a = Asm()
    a(f"""; Edge-featured MPNN layer: out[n] = sum_(e: dst=n) (silu([x[src],x[dst],e] w1 + b1) w2 + b2)
; @launch grid=(256,1,1) block=({NT_},1,1) lds={L_END}
.amdgcn_target "amdgcn-amd-amdhsa--gfx950"
.text""")
    gen_kernel(a)
    a(f"""
.section .rodata,"a"
.p2align 6
.amdhsa_kernel {KNAME}
  .amdhsa_next_free_vgpr {NVGPR}
  .amdhsa_next_free_sgpr 102
  .amdhsa_accum_offset {NVGPR}
  .amdhsa_group_segment_fixed_size 0
  .amdhsa_kernarg_size 88
  .amdhsa_user_sgpr_count 2
  .amdhsa_user_sgpr_kernarg_segment_ptr 1
  .amdhsa_system_sgpr_workgroup_id_x 1
  .amdhsa_float_denorm_mode_32 3
.end_amdhsa_kernel""")
    open(out, "w").write(a.text())

if __name__ == "__main__":
    main()
```

```python
import sys, struct
from slow import gen_slow

NAME = "standalone__edge_featured_mpnn_mpnn__graph"
KNAME = NAME + "_kernel"
N_NODES = 12500
NB = 49
NW = 12
NT_ = 64 * NW
MAINE = 4 * NT_
XTRA = 53
RSTRIDE = 16640

WS_REC = 0
WS_TAB = 0x420000
WS_P = 0x4C0000
WS_STAMP = 0xA00000

L_FLAG = 288
L_NONCE = 296
L_SX = 4096
L_Z = 320
L_RL = 4352
ENT_CAP = 3584
L_ST = L_RL + (ENT_CAP + 64) * 4
ST_STRIDE = 528
ZROW = NB + NW
L_QT = (L_ST + (ZROW + 1) * ST_STRIDE + 255) // 256 * 256
L_XS = L_QT + 56 * 512
L_W2 = L_XS + NW * 4096
L_B2 = L_W2 + 16384
L_T2 = L_B2 + 256
L_END = L_T2 + 16384
L_RS = L_ST
L_H1 = L_ST + 16640
L_OFF = L_H1 + 1024
L_W1 = L_XS
L_WC = L_XS + 32768
L_PS = L_WC + 512
L_XR = L_W2
PS_STRIDE = 272
assert L_XS % 256 == 0
assert L_END <= 163840 and L_H1 + 3072 <= L_ST + ZROW * ST_STRIDE and L_OFF + 1024 < 65536 and L_PS + 56 * PS_STRIDE <= L_W2

def f32bits(x):
    return struct.unpack("<I", struct.pack("<f", x))[0]
NLOG2E = f32bits(-1.4426950408889634)
NLN2 = f32bits(-0.6931471805599453)
PADREC = 0x3FFF
POLL_MAX = 4000

class Asm:
    def __init__(self):
        self.l = []
    def __call__(self, s=""):
        for x in s.strip("\n").split("\n"):
            self.l.append(x)
    def text(self):
        return "\n".join(self.l) + "\n"

def vr(a, n=1):
    return f"v{a}" if n == 1 else f"v[{a}:{a+n-1}]"
def sr(a, n=1):
    return f"s{a}" if n == 1 else f"s[{a}:{a+n-1}]"

DIAG = False
OPT = set()
def optval(prefix, default):
    for o in OPT:
        if o.startswith(prefix):
            return o[len(prefix):]
    return default

V_D = 0; V_E = 64; V_A5 = 96; V_B5 = 98; V_ND = 106; V_T = 122; V_R = 126; V_O = 128; V_IX = 132
V_AA = 140; V_AIDX = 141; V_AENT = 142; V_AQ = 143; V_INCQ = 144; V_AS = 145; V_MN = 146; V_PSEL = 147
V_TAB = 148; V_CNT = 149; V_B2 = 150; V_LANE = 154; V_TID = 155
V_J = 156; V_HH = 157
V_STAMP = 167; V_TRACE = 166
NVGPR = 168
S_X = 4; S_E = 6; S_SRC = 8; S_DST = 10; S_W1 = 12; S_B1 = 14; S_W2 = 16; S_B2 = 18; S_OUT = 20; S_DBG = 22; S_WS = 24
S_BIN = 26; S_N0 = 27; S_NN = 28; S_WAVE = 29; S_MODE = 30; S_K = 31; S_PC = 32; S_J = 34
S_RX = 36; S_RT = 40; S_RR = 44; S_P = 48
S_T0 = 56; S_NT = 57; S_TT = 58; S_SLOT = 59; S_A = 60; S_B = 61; S_C = 62; S_D = 63; S_TAG = 64
S_M = 66
S_OH = 66; S_PAR = 68; S_PAD = 70; S_MO = 71
def mask(k): return sr(S_M + 2*k, 2)

def stamp(a, k, real=False):
    if optval("spin", "") != "":
        if int(optval("spin", "")) == k:
            a("    s_memrealtime s[100:101]\n    s_waitcnt lgkmcnt(0)")
        return
    if not DIAG:
        return
    if "lite" in OPT and k not in (14, 16, 19):
        return
    a(f"    {'s_memrealtime' if real else 's_memtime'} s[98:99]")
    a(f"    s_waitcnt lgkmcnt(0)")
    a(f"    v_writelane_b32 v{V_STAMP}, s98, {k}")

def wave_scan(a, v):
    for sh in (1, 2, 4, 8):
        a(f"    s_nop 1")
        a(f"    v_add_u32_dpp v{v}, v{v}, v{v} row_shr:{sh} row_mask:0xf bank_mask:0xf")
    a(f"    s_nop 1")
    a(f"    v_add_u32_dpp v{v}, v{v}, v{v} row_bcast:15 row_mask:0xa bank_mask:0xf")
    a(f"    s_nop 1")
    a(f"    v_add_u32_dpp v{v}, v{v}, v{v} row_bcast:31 row_mask:0xc bank_mask:0xf")

SD = "dst_sel:DWORD dst_unused:UNUSED_PAD"

def small(c):
    d = vr(V_D + 16*c, 16)
    return f"    v_mfma_f32_32x32x8_bf16 {d}, {vr(V_A5,2)}, {vr(V_B5+2*c,2)}, {d}"
def tr_reads(h):
    return [f"    ds_read_b64_tr_b16 {vr(V_D+16*(2*h+k)+2*u,2)}, v{V_AA} offset:{512*u+64*k}" for u in range(8) for k in range(2)]
def ent_reads(off, q):
    h = [f"    ds_read_b32 v{V_A5+1}, v{V_AENT} offset:{off}"]
    if q:
        h += [f"    ds_read_b32 v{V_B5+2*c}, v{V_AQ} offset:{128*c}" for c in range(4)]
    return h
def idx_reads(off):
    return [f"    ds_read_u16 v{V_IX+2*m}, v{V_AIDX} offset:{off + 32*m}" for m in range(4)]
def dma_ops(h):
    return [f"    buffer_load_dwordx4 {vr(V_IX+2*m,2)}, {sr(S_RX,4)}, s{S_P+4*h+m} idxen offen offset:{1024*m} lds" for m in range(4)]

def x_phase(a, mf_cts, ex_cts, head, pre, plain, tail):
    es = [f"    v_exp_f32 v{V_E+16*k+2*u+b}, v{V_D+16*c+2*u+b}" for u in range(8) for k, c in enumerate(ex_cts) for b in range(2)]
    n1 = 22
    for h in head: a(h)
    for e in es[:n1-(4 if pre else 2)]: a(e)
    for p in plain: a(p)
    a(f"    s_waitcnt lgkmcnt(0)")
    if pre:
        a(pre[0]); a(es[n1-4]); a(pre[1]); a(pre[2]); a(es[n1-3]); a(pre[3])
    for e in es[n1-2:n1]: a(e)
    a(small(mf_cts[0]))
    for e in es[n1:n1+4]: a(e)
    a(small(mf_cts[1]))
    for e in es[n1+4:]: a(e)
    for t in tail: a(t)
    a(".p2align 3")

def flush_ops(a, cts):
    for k, c in enumerate(cts):
        D = V_ND + 4*c + 2
        a(f"    v_mul_f32 v{V_R+k}, v{D}, v{D+1}")
    for k, c in enumerate(cts):
        N = V_ND + 4*c; D = N + 2
        a(f"    v_pk_mul_f32 {vr(V_O+2*k,2)}, {vr(N,2)}, {vr(D,2)} op_sel:[0,1] op_sel_hi:[1,0]")
    for k, c in enumerate(cts):
        a(f"    v_rcp_f32 v{V_R+k}, v{V_R+k}")
    for k, c in enumerate(cts):
        a(f"    v_add_f32 v{V_O+2*k}, v{V_O+2*k}, v{V_O+2*k+1}")
    for k, c in enumerate(cts):
        a(f"    v_mul_f32 v{V_O+2*k}, v{V_O+2*k}, v{V_R+k}")
def flush_ops2(a, cts):
    a(f"    v_permlane32_swap_b32 v{V_O}, v{V_O+2}")
    a(f"    v_min3_f32 v{V_MN}, v{V_MN}, v{V_R}, v{V_R+1}")
    a(f"    v_add_f32 v{V_O}, v{V_O}, v{V_O+2}")
    a(f"    ds_write_b32 v{V_AS}, v{V_O} offset:{128*cts[0]}")

def y_phase(a, cts, b):
    nsrc = [V_ND + 4*c for c in cts]
    for u in range(8):
        if u == b:
            flush_ops(a, cts)
            for k, c in enumerate(cts):
                a(f"    v_pk_add_f32 {vr(V_ND+4*c+2,2)}, {vr(V_E+16*k+2*u,2)}, 1.0 op_sel_hi:[1,0]")
            flush_ops2(a, cts)
            for k, c in enumerate(cts):
                p = V_D + 16*c + 2*u
                if u == 7:
                    a(f"    v_pk_mov_b32 {vr(V_ND+4*c,2)}, {vr(p,2)}, {vr(p,2)} op_sel:[0,1]")
                else:
                    nsrc[k] = p
            continue
        for k, c in enumerate(cts):
            a(f"    v_pk_fma_f32 {vr(V_T+2*k,2)}, {vr(V_D+16*c+2*u,2)}, {vr(V_ND+4*c+2,2)}, {vr(nsrc[k],2)}")
        for k, c in enumerate(cts):
            D = V_ND + 4*c + 2
            a(f"    v_pk_fma_f32 {vr(D,2)}, {vr(D,2)}, {vr(V_E+16*k+2*u,2)}, {vr(D,2)}")
        for k, c in enumerate(cts):
            a(f"    v_pk_fma_f32 {vr(V_ND+4*c,2)}, {vr(nsrc[k],2)}, {vr(V_E+16*k+2*u,2)}, {vr(V_T+2*k,2)}")
            nsrc[k] = V_ND + 4*c

def onehot_ops():
    return [f"    v_cmp_ne_u32 vcc, s{S_PAD}, v{V_A5+1}",
            f"    s_xor_b64 {sr(S_OH,2)}, {sr(S_OH,2)}, {sr(S_PAR,2)}",
            f"    s_and_b64 vcc, vcc, {sr(S_OH,2)}",
            f"    v_cndmask_b32 v{V_A5}, 0, v{V_PSEL}, vcc"]
def mask_load():
    return [f"    s_sub_u32 s{S_MO}, s{S_J}, 4", f"    s_andn2_b32 s{S_MO}, s{S_MO}, 63",
            f"    s_load_dwordx2 {sr(S_OH,2)}, {sr(S_PC,2)}, s{S_MO}"]
def row_mask(b):
    sw = lambda i: (i & 0x19) | ((i & 2) << 1) | ((i & 4) >> 1)
    return sum(1 << i for i in range(32) if b is None or sw(i) < 4*b)

VAR_SIZE = 1792
def tile_variant(a, vi, b):
    name = "N" if b is None else str(b)
    a(f".org K_vbase + {VAR_SIZE*vi}, 0")
    a(f".long {row_mask(b):#x}, {row_mask(b) ^ 0xffffffff:#x}")
    a(f".org K_vbase + {VAR_SIZE*vi + 64 - 20}, 0")
    a(f"    s_setprio 2\n    s_branch K_var{name}\n    s_setprio 1\n    s_branch K_var{name}\n    s_setprio 0")
    a(f"K_var{name}:")
    bnd = b is not None
    if "trace" in OPT:
        a(f"    s_memtime s[98:99]\n    s_mov_b32 s{S_A}, m0\n    s_mov_b32 m0, s{S_K}\n    s_waitcnt lgkmcnt(0)")
        a(f"    v_writelane_b32 v{V_TRACE}, s98, m0\n    s_mov_b32 m0, s{S_A}")
    plain0 = []
    if bnd:
        plain0 = [f"    v_add_u32 v{V_AQ}, v{V_AQ}, v{V_INCQ}", f"    v_xor_b32 v{V_INCQ}, 0x400, v{V_INCQ}"]
    plain0.append(f"    v_readlane_b32 s{S_J}, v{V_TAB}, s{S_K}")
    x_phase(a, (2, 3), (0, 1), ["    s_waitcnt vmcnt(0)"] + tr_reads(1) + [f"K_vh{name}:"] + idx_reads(128), [], plain0,
            dma_ops(0) + [f"    s_add_u32 s{S_K}, s{S_K}, 1"] + mask_load() + ([f"    s_not_b64 {sr(S_PAR,2)}, {sr(S_PAR,2)}"] if bnd else []))
    y_phase(a, (0, 1), b)
    plain1 = [f"    v_add_u32 v{V_AENT}, 0x80, v{V_AENT}", f"    v_add_u32 v{V_AIDX}, 0x80, v{V_AIDX}"]
    x_phase(a, (0, 1), (2, 3), ["    s_waitcnt vmcnt(0)"] + ent_reads(128, bnd) + tr_reads(0),
            onehot_ops(), plain1,
            dma_ops(1) + [f"    s_add_u32 s{S_J}, s{S_J}, s{S_PC}", f"    s_addc_u32 s{S_J+1}, s{S_PC+1}, 0"])
    y_phase(a, (2, 3), b)
    if bnd:
        a(f"    v_add_u32 v{V_AS}, {ST_STRIDE}, v{V_AS}")
    a(f"    s_setpc_b64 {sr(S_J,2)}")

def gen_kernel(a):
    L = V_LANE; T = V_TID; J = V_J; HH = V_HH
    t0, t1, t2, t3, t4, t5 = 158, 159, 160, 161, 162, 163
    vDst = 0
    vSrc = 8
    vEa = 14
    vBa = 20
    vRk = 26
    vOf = 32
    vX = 40
    vWf = 56
    vAc = 72
    vTb = 88
    vZ = 128
    vPad = 56
    vWa = 38; vXa = 88; vTg = 18; vTa = 39; vC8 = 37; vWp = 31
    vG4 = 164; vSb = 165
    vS = 122; vP = 123; vOne = 124; vAA2 = 125; vPf = 126
    a(f"""
.p2align 8
.globl {KNAME}
.type {KNAME},@function
{KNAME}:
    s_cmp_ge_u32 s2, 256
    s_cbranch_scc1 K_end
    s_load_dwordx8 s[4:11], s[0:1], 0
    s_load_dwordx8 s[12:19], s[0:1], 32      ; w1, b1, w2, b2
    s_load_dwordx4 s[20:23], s[0:1], 64
    s_load_dwordx2 s[24:25], s[0:1], 80      ; ws
    s_memrealtime {sr(S_TAG,2)}
    v_lshrrev_b32 v1, 6, v0
    v_mov_b32 v{T}, v0
    v_readfirstlane_b32 s{S_WAVE}, v1
    v_and_b32 v{L}, 63, v0
    s_mul_i32 s3, s2, {MAINE*4}
    v_lshl_add_u32 v{t0}, v0, 4, s3
    v_lshrrev_b32 v{t1}, 1, v{t0}
    s_and_b32 s{S_BIN}, s2, 7
    s_lshl_b32 s{S_BIN}, s{S_BIN}, 5
    s_lshr_b32 s3, s2, 3
    s_add_u32 s{S_BIN}, s{S_BIN}, s3
    s_mul_i32 s{S_N0}, s{S_BIN}, {NB}
    s_sub_u32 s{S_NN}, {N_NODES}, s{S_N0}
    s_min_u32 s{S_NN}, s{S_NN}, {NB}
    v_and_b32 v{J}, 31, v0
    v_bfe_u32 v{HH}, v0, 5, 1
    s_mov_b32 s{S_MODE}, 0
    v_mov_b32 v{vZ}, 0
    v_mov_b32 v{vZ+1}, 0
    v_mov_b32 v{vZ+2}, 0
    v_mov_b32 v{vZ+3}, 0
    v_lshlrev_b32 v{t2}, 2, v0""")
    if DIAG:
        a(f"    v_mov_b32 v{V_STAMP}, 0\n    v_mov_b32 v{V_TRACE}, 0")
        stamp(a, 0, True); stamp(a, 1)
    wc = lambda c: V_B5 + 2*c
    vB1 = 97
    tc = 17
    ndual = int(optval("dual", "0"))
    cpos = optval("c_", "drain"); qpos = optval("q_", "post")
    def emit_consts():
        a(f"""
    v_and_b32 v{tc}, 7, v{L}
    v_lshlrev_b32 v{V_IX+1}, 4, v{tc}
    v_mov_b32 v{V_IX+3}, v{V_IX+1}
    v_mov_b32 v{V_IX+5}, v{V_IX+1}
    v_mov_b32 v{V_IX+7}, v{V_IX+1}
    v_and_b32 v{tc}, 8, v{L}
    v_lshl_add_u32 v{tc}, v{tc}, 4, v{vC8}
    v_lshl_add_u32 v{tc}, v{HH}, 8, v{tc}
    s_lshl_b32 s{S_B}, s{S_WAVE}, 12
    s_add_u32 s{S_B}, s{S_B}, {L_XS}
    v_add_u32 v{tc}, s{S_B}, v{tc}
    v_and_b32 v{t3}, 4, v{L}
    v_cmp_ne_u32 vcc, 0, v{t3}
    v_mov_b32 v{t3}, {L_Z}
    v_mov_b32 v{V_PSEL}, 0x3f803f80
    v_cndmask_b32 v{V_AA}, v{t3}, v{tc}, vcc
    v_add_u32 v{tc}, {L_T2 - L_XS}, v{tc}
    v_cndmask_b32 v{vAA2}, v{t3}, v{tc}, vcc
    v_and_b32 v{V_AENT}, 0x19, v{L}
    v_and_b32 v{tc}, 2, v{L}
    v_lshl_add_u32 v{V_AENT}, v{tc}, 1, v{V_AENT}
    v_bfe_u32 v{tc}, v{L}, 2, 1
    v_lshl_add_u32 v{V_AENT}, v{tc}, 1, v{V_AENT}
    v_lshlrev_b32 v{V_AENT}, 2, v{V_AENT}
    v_lshrrev_b32 v{V_AIDX}, 3, v{L}
    v_lshlrev_b32 v{V_AIDX}, 2, v{V_AIDX}""")
        for h in range(2):
            for m in range(4):
                a(f"    s_movk_i32 s{S_P+4*h+m}, {3072 - 1024*m + 128*h}")
        for c in range(4):
            a(f"    v_mov_b32 v{V_ND+4*c}, 0")
            a(f"    v_mov_b32 v{V_ND+4*c+1}, 0")
            a(f"    v_mov_b32 v{V_ND+4*c+2}, 1.0")
            a(f"    v_mov_b32 v{V_ND+4*c+3}, 1.0")
        a(f"""
    v_mov_b32 v{V_MN}, 1.0
    s_and_b32 s{S_A}, s{S_WAVE}, 3
    s_mul_i32 s{S_A}, s{S_A}, 3
    s_lshr_b32 s{S_B}, s{S_WAVE}, 2
    s_add_u32 s{S_SLOT}, s{S_A}, s{S_B}
    s_getpc_b64 {sr(S_PC,2)}
K_pc:
    s_add_u32 s{S_PC}, s{S_PC}, K_vbase - K_pc
    s_addc_u32 s{S_PC+1}, s{S_PC+1}, 0
    ; segment mapping of phase 2: segment 128 i + t/6, lane group g = t%6
    v_mul_u32_u24 v{tc}, 10923, v{T}
    v_lshrrev_b32 v{tc}, 16, v{tc}
    v_mad_i32_i24 v{vG4}, v{tc}, -6, v{T}
    v_lshlrev_b32 v{vG4}, 2, v{vG4}          ; 4g
    v_mul_u32_u24 v{vSb}, {RSTRIDE}, v{tc}
    s_lshr_b32 s{S_A}, s2, 3
    s_mul_i32 s{S_A}, s{S_A}, {781*128}
    s_add_u32 s{S_A}, s{S_A}, {WS_P}
    v_lshl_add_u32 v{vPf}, v{T}, 7, s{S_A}
    s_lshr_b32 s{S_B}, s{S_BIN}, 2
    s_lshl_b32 s{S_B}, s{S_B}, 4
    s_and_b32 s{S_A}, s{S_BIN}, 1
    s_lshl_b32 s{S_A}, s{S_A}, 3
    s_add_u32 s{S_B}, s{S_B}, s{S_A}
    s_and_b32 s{S_A}, s{S_BIN}, 2
    s_lshl_b32 s{S_A}, s{S_A}, 9
    s_add_u32 s{S_B}, s{S_B}, s{S_A}
    s_add_u32 s{S_B}, s{S_B}, {WS_TAB}
    v_lshl_add_u32 v{vTa}, v{tc}, 11, s{S_B}""")
    def emit_q():
        a(f"""
    s_cmp_ge_u32 s{S_WAVE}, 8
    s_cbranch_scc1 K_notQ
    ; ---- Q tile while the stores drain
    s_lshl_b32 s{S_A}, s{S_D}, 6
    v_add_u32 v{t3}, s{S_A}, v{t0}
    ds_read_u16 v{vB1}, v{t3} offset:256
    v_add_u32 v{tc}, v{vWa}, v{vC8}""")
        for s_ in range(4):
            for h in range(2):
                a(f"    ds_read_b64_tr_b16 {vr(vWf+4*s_+2*h,2)}, v{tc} offset:{16384+4096*s_+1024*h}")
        a(f"""
    s_and_b32 s{S_A}, s{S_WAVE}, 1
    s_lshl_b32 s{S_B}, s{S_A}, 14
    s_lshl_b32 s{S_C}, s{S_D}, 7
    s_add_u32 s{S_B}, s{S_B}, s{S_C}
    s_add_u32 s{S_B}, s{S_B}, {L_QT}
    v_lshl_add_u32 v{tc}, v{HH}, 11, s{S_B}
    v_lshl_add_u32 v{tc}, v{J}, 2, v{tc}""")
        for s_ in range(4):
            a(f"    s_waitcnt lgkmcnt({6-2*s_})")
            cin = "0" if s_ == 0 else vr(vAc, 16)
            a(f"    v_mfma_f32_32x32x16_bf16 {vr(vAc,16)}, {vr(vX+4*s_,4)}, {vr(vWf+4*s_,4)}, {cin}")
        a(f"""
    v_lshlrev_b32 v{vB1}, 16, v{vB1}
    v_mul_f32 v{vB1}, s3, v{vB1}
    s_nop 9""")
        def qrow(r):
            a(f"    v_fma_f32 v{vAc+r}, v{vAc+r}, s3, v{vB1}")
            a(f"    v_cvt_pk_bf16_f32 v{vWf+r}, v{vZ}, v{vAc+r}")
            a(f"    v_sub_f32 v{vWf+r}, v{vAc+r}, v{vWf+r}")
            a(f"    v_cvt_pk_bf16_f32 v{vWf+r}, v{vAc+r}, v{vWf+r}")
            a(f"    ds_write_b32 v{tc}, v{vWf+r} offset:{512*(8*(r>>2)+(r&3))}")
        for r in range(12): qrow(r)
        a(f"""
    s_cmp_eq_u32 s{S_A}, 1
    s_cbranch_scc1 K_notQ""")
        for r in range(12, 16): qrow(r)
        a(f"""
K_notQ:
    ds_read_u16 v{wc(0)}, v{t0}
    ds_read_u16 v{wc(1)}, v{t0} offset:64
    ds_read_u16 v{wc(2)}, v{t0} offset:128
    ds_read_u16 v{wc(3)}, v{t0} offset:192
    v_cmp_lt_u32 vcc, 31, v{L}
    s_waitcnt lgkmcnt(0)""")
        for c in range(4):
            a(f"    v_lshlrev_b32 v{wc(c)}, 16, v{wc(c)}")
            a(f"    v_mul_f32 v{wc(c)}, s3, v{wc(c)}")
            a(f"    v_cvt_pk_bf16_f32 v{t3}, v{vZ}, v{wc(c)}")
            a(f"    v_sub_f32 v{t4}, v{wc(c)}, v{t3}")
            a(f"    v_cvt_pk_bf16_f32 v{t4}, v{vZ}, v{t4}")
            a(f"    v_cndmask_b32 v{V_B5+2*c+1}, v{t3}, v{t4}, vcc")
    step = NT_ * 16
    wc = lambda c: V_B5 + 2*c
    vB1 = 97
    a(f"""
    s_waitcnt lgkmcnt(0)
    global_load_dwordx4 {vr(vDst,4)}, v{t0}, {sr(S_DST,2)}
    {f"s_add_u32 s{S_WS}, s{S_WS}, {int(optval('wsoff', '0')) << 20}" if optval('wsoff', '') else ""}
    {f"s_addc_u32 s{S_WS+1}, s{S_WS+1}, 0" if optval('wsoff', '') else ""}
    {f"v_writelane_b32 v{V_STAMP}, s{S_TAG}, 0" if "lite" in OPT else ""}
    ds_write_b32 v{t2}, v{vZ} offset:{L_H1}
    s_cmp_lg_u32 s{S_WAVE}, 11
    s_cbranch_scc1 K_ld1
    s_mul_i32 s{S_A}, s2, {XTRA}
    s_add_u32 s{S_A}, s{S_A}, {256*MAINE}
    v_min_u32 v{t5}, {XTRA-1}, v{L}
    v_add_lshl_u32 v{t5}, v{t5}, s{S_A}, 2
    v_lshrrev_b32 v{t4}, 1, v{t5}
    global_load_dword v{vDst+4}, v{t5}, {sr(S_DST,2)}
    global_load_dword v{vSrc+4}, v{t5}, {sr(S_SRC,2)}
    global_load_ushort v{vEa+2}, v{t4}, {sr(S_E,2)}
K_ld1:""")
    if "nocpf" not in OPT:
        a(f"""
    ; the first workgroups pull the rest of the code into their die's L2
    s_cmp_ge_u32 s2, 32
    s_cbranch_scc1 K_ld2
    s_sub_u32 s{S_A}, s{S_WAVE}, 5
    s_cmp_ge_u32 s{S_A}, 3
    s_cbranch_scc1 K_ld2
    s_lshl_b32 s{S_A}, s{S_A}, 13
    v_lshl_add_u32 v{t5}, v{L}, 7, s{S_A}
    s_getpc_b64 {sr(S_J,2)}
    global_load_dword v{t4}, v{t5}, {sr(S_J,2)}
K_ld2:""")
    if "tlb" in OPT:
        a(f"""
    s_cmp_lg_u32 s{S_WAVE}, 4
    s_cbranch_scc1 K_ld3
    v_mul_u32_u24 v{t5}, {4*RSTRIDE}, v{L}
    v_add_u32 v{t5}, {RSTRIDE - 4}, v{t5}
    s_mov_b32 s{S_A}, {WS_P - 4096}
    v_writelane_b32 v{t5}, s{S_A}, 1
    s_mov_b32 s{S_A}, {WS_P + N_NODES*256 + 4096}
    v_writelane_b32 v{t5}, s{S_A}, 3
    global_load_dword v{t4}, v{t5}, {sr(S_WS,2)}
K_ld3:""")
    a(f"""
    s_lshl_b32 s{S_A}, s2, 4
    s_add_u32 s{S_A}, s{S_A}, s{S_WAVE}
    s_cmp_lg_u32 s{S_A}, 9
    s_cbranch_scc1 K_ldJ
    s_lshl_b32 s{S_A}, s{S_TAG}, 25
    s_or_b32 s{S_A}, s{S_A}, 1
    s_lshr_b64 {sr(S_TAG,2)}, {sr(S_TAG,2)}, 7
    v_mov_b32 v{t4}, s{S_A}
    v_mov_b32 v{t4+1}, s{S_TAG}
    s_mov_b64 exec, 1
    global_store_dwordx2 v{vZ}, {vr(t4,2)}, {sr(S_DBG,2)} sc1
    s_mov_b64 exec, -1
K_ldJ:
    s_lshl_b32 s{S_A}, s{S_WAVE}, 11
    s_cmp_ge_u32 s{S_WAVE}, 8
    s_cbranch_scc1 K_stX
    s_add_u32 s{S_B}, s{S_A}, {L_W1}
    s_mov_b32 m0, s{S_B}
    v_lshrrev_b32 v{t3}, 2, v{L}
    v_and_b32 v{t3}, 12, v{t3}
    v_xor_b32 v{t3}, v{t3}, v{L}
    v_lshl_add_u32 v{t5}, v{t3}, 4, s{S_A}
    global_load_lds_dwordx4 v{t5}, {sr(S_W1,2)}
    global_load_lds_dwordx4 v{t5}, {sr(S_W1,2)} offset:1024
    s_branch K_stJ
K_stX:
    s_mov_b32 s{S_RX}, s4
    s_mov_b32 s{S_RX+1}, s5
    s_mov_b32 s{S_RX+2}, {N_NODES*128}
    s_mov_b32 s{S_RX+3}, 0x00020000
    s_add_u32 s{S_B}, s{S_A}, {L_XR - 16384}
    s_mov_b32 m0, s{S_B}
    s_lshl_b32 s{S_B}, s{S_N0}, 7
    s_add_u32 s{S_A}, s{S_A}, s{S_B}
    s_sub_u32 s{S_A}, s{S_A}, 16384
    v_lshrrev_b32 v{t3}, 4, v{L}
    v_xor_b32 v{t3}, v{t3}, v{L}
    v_lshl_add_u32 v{t3}, v{t3}, 4, s{S_A}
    v_xor_b32 v{t4}, 64, v{t3}
    buffer_load_dwordx4 v{t3}, {sr(S_RX,4)}, 0 offen lds
    buffer_load_dwordx4 v{t4}, {sr(S_RX,4)}, 0 offen offset:1024 lds
K_stJ:
    s_waitcnt lgkmcnt(0)
    s_barrier
    v_mov_b32 v{vPad}, {PADREC}
    v_mov_b32 v{vPad+1}, {PADREC}
    v_mov_b32 v{vPad+2}, {PADREC}
    v_mov_b32 v{vPad+3}, {PADREC}
    v_lshlrev_b32 v{t2}, 4, v{T}
    ds_write_b128 v{t2}, {vr(vPad,4)} offset:{L_RL}
    s_cmp_ge_u32 s{S_WAVE}, 4
    s_cbranch_scc1 K_in1
    ds_write_b128 v{t2}, {vr(vZ,4)}
    ds_write_b128 v{t2}, {vr(vPad,4)} offset:{L_ST - 4096}
K_in1:
    s_cmp_lg_u32 s{S_WAVE}, 4
    s_cbranch_scc1 K_in2
    v_lshlrev_b32 v{t3}, 3, v{L}
    v_add_u32 v{t3}, {L_ST + ZROW*ST_STRIDE}, v{t3}
    ds_write_b64 v{t3}, {vr(vZ,2)}
K_in2:
    global_load_dwordx4 {vr(vSrc,4)}, v{t0}, {sr(S_SRC,2)}
    global_load_dwordx2 {vr(vEa,2)}, v{t1}, {sr(S_E,2)}
    s_cmp_ge_u32 s{S_WAVE}, 8
    s_cbranch_scc1 K_st2
    s_add_u32 m0, m0, 16384
    v_add_u32 v{t5}, 0x4000, v{t5}
    global_load_lds_dwordx4 v{t5}, {sr(S_W1,2)}
    global_load_lds_dwordx4 v{t5}, {sr(S_W1,2)} offset:1024
    s_branch K_st3
K_st2:
    s_mov_b32 m0, {L_WC}
    v_lshlrev_b32 v{t3}, 2, v{L}
    v_add_u32 v{t4}, 0x8000, v{t3}
    global_load_lds_dword v{t4}, {sr(S_W1,2)}
    s_mov_b32 m0, {L_WC + 256}
    s_nop 0
    global_load_lds_dword v{t3}, {sr(S_B1,2)}
K_st3:""")
    pk = 2 if "poke" in OPT else 0
    if pk:
        a(f"""
    s_lshl_b32 s{S_A}, s{S_N0}, 8
    s_add_u32 s{S_A}, s{S_A}, {WS_P}
    s_add_u32 s{S_RT}, s{S_WS}, s{S_A}
    s_addc_u32 s{S_RT+1}, s{S_WS+1}, 0
    s_lshl_b32 s{S_RT+2}, s{S_NN}, 8
    s_mov_b32 s{S_RT+3}, 0x00020000
    s_mul_i32 s{S_A}, s2, {RSTRIDE}
    s_add_u32 s{S_RR}, s{S_WS}, s{S_A}
    s_addc_u32 s{S_RR+1}, s{S_WS+1}, 0
    s_mov_b32 s{S_RR+2}, 16512
    s_mov_b32 s{S_RR+3}, 0x00020000
    v_and_b32 v{t3}, 1, v{L}
    v_mul_u32_u24 v{t3}, {step - 16}, v{t3}
    v_add_u32 v{t3}, v{t3}, v{t2}
    s_mov_b32 exec_lo, 0x01010101
    s_mov_b32 exec_hi, 0x01010101
    buffer_store_dword v{vZ}, v{t2}, {sr(S_RT,4)}, 0 offen sc1
    s_mov_b32 exec_lo, {"0x03030303" if "pokeall" in OPT else "1"}
    s_mov_b32 exec_hi, {"0x03030303" if "pokeall" in OPT else "0"}
    buffer_store_dword v{vZ}, v{t3}, {sr(S_RR,4)}, 0 offen sc1
    s_mov_b64 exec, -1""")
    a(f"""
    v_and_b32 v{vC8}, 3, v{L}
    v_lshlrev_b32 v{vC8}, 3, v{vC8}
    v_and_b32 v{t1}, 16, v{L}
    v_lshl_add_u32 v{vC8}, v{t1}, 1, v{vC8}    ; 8c + 32(g&1)
""")
    if cpos == "early": emit_consts()
    a(f"""
    s_lshr_b32 s{S_D}, s{S_WAVE}, 1          ; ct
    v_bfe_u32 v{t0}, v{L}, 2, 2
    v_xor_b32 v{t3}, s{S_D}, v{t0}
    v_lshlrev_b32 v{t3}, 6, v{t3}
    v_lshl_add_u32 v{t0}, v{HH}, 3, v{t0}
    v_lshl_add_u32 v{t0}, v{t0}, 8, v{t3}
    v_add_u32 v{vWa}, {L_W1}, v{t0}
    v_and_b32 v{vWp}, 1, v{L}
    v_lshl_add_u32 v{vWp}, v{vWp}, 5, v{vWa}
    v_and_b32 v{t3}, 16, v{L}
    v_add_u32 v{vWp}, v{vWp}, v{t3}
    v_and_b32 v{t3}, 2, v{L}
    v_lshl_add_u32 v{vWp}, v{t3}, 2, v{vWp}    ; + 16(c&1) + 4(2(g&1) + (c>>1)) columns
    s_and_b32 s{S_A}, s{S_WAVE}, 1
    s_lshl_b32 s{S_A}, s{S_A}, 12
    s_add_u32 s{S_A}, s{S_A}, {L_XR}
    v_bfe_u32 v{t3}, v{L}, 1, 3
    v_xor_b32 v{t3}, v{t3}, v{HH}
    v_lshl_add_u32 v{t3}, v{t3}, 4, s{S_A}
    v_lshl_add_u32 v{vXa}, v{J}, 7, v{t3}
    v_xor_b32 v{vXa+1}, 32, v{vXa}
    v_xor_b32 v{vXa+2}, 64, v{vXa}
    v_xor_b32 v{vXa+3}, 0x60, v{vXa}
    s_mov_b32 s{S_A}, 21400
    s_mov_b32 s{S_B}, -{NB}
    s_mov_b32 s{S_C}, 0xffff0000
    v_mov_b32 v{t5}, 0x10004
    s_waitcnt vmcnt({6+pk})
    s_cmp_lg_u32 s{S_WAVE}, 11
    s_cbranch_scc1 K_wJ
    s_bfm_b64 exec, {XTRA}, 0""")
    assert L_ST - L_RL <= step + 4096
    def binops(cols):
        for i in cols: a(f"    v_mul_u32_u24 v{vBa+i}, s{S_A}, v{vDst+i}")
        for i in cols: a(f"    v_lshrrev_b32 v{vBa+i}, 18, v{vBa+i}")
        for i in cols:
            a(f"    v_and_b32 v{vBa+i}, 0x3fc, v{vBa+i}")
            a(f"    ds_add_rtn_u32 v{vRk+i}, v{vBa+i}, v{t5} offset:{L_H1}")
        for i in cols: a(f"    v_lshlrev_b32 v{vDst+i}, 2, v{vDst+i}")
        for i in cols: a(f"    v_mad_i32_i24 v{vDst+i}, v{vBa+i}, s{S_B}, v{vDst+i}")
    binops([4])
    a(f"""
    s_mov_b64 exec, -1
K_wJ:""")
    stamp(a, 2)
    binops(range(4))
    a(f"""
    s_waitcnt vmcnt({4+pk}) lgkmcnt(0)""")
    rot = "rot" in OPT
    if rot:
        a(f"""
    s_cmp_lg_u32 s{S_WAVE}, 9
    s_cbranch_scc1 K_nt9
    global_load_dwordx2 {vr(vTg,2)}, v{vZ}, {sr(S_DBG,2)}
K_nt9:""")
    a(f"""
    s_barrier""")
    stamp(a, 3)
    a(f"""
    s_cmp_eq_u32 s{S_WAVE}, 8
    s_cbranch_scc1 K_scan1
    s_cmp_gt_u32 s{S_WAVE}, 8
    s_cbranch_scc1 K_notP""")
    for s_ in range(4):
        a(f"    ds_read_b128 {vr(vX+4*s_,4)}, v{vXa+s_}")
        for h in range(2):
            a(f"    ds_read_b64_tr_b16 {vr(vWf+4*s_+2*h,2)}, v{vWp} offset:{4096*s_+1024*h}")
    for s_ in range(4):
        a(f"    s_waitcnt lgkmcnt({9-3*s_})")
        cin = "0" if s_ == 0 else vr(vAc, 16)
        a(f"    v_mfma_f32_32x32x16_bf16 {vr(vAc,16)}, {vr(vWf+4*s_,4)}, {vr(vX+4*s_,4)}, {cin}")
    a(f"""
    s_and_b32 s{S_B}, s{S_WAVE}, 1
    s_mul_i32 s{S_A}, s{S_B}, {32*PS_STRIDE}
    s_lshl_b32 s{S_B}, s{S_D}, 6
    s_add_u32 s{S_A}, s{S_A}, s{S_B}
    s_add_u32 s{S_A}, s{S_A}, {L_PS}
    v_mul_u32_u24 v{t3}, {PS_STRIDE}, v{J}
    v_lshl_add_u32 v{t3}, v{HH}, 5, v{t3}
    v_add_u32 v{t3}, s{S_A}, v{t3}
    v_mov_b32 v{t4}, {NLOG2E:#x}
    v_cmp_gt_u32 vcc, {L_PS + 56*PS_STRIDE}, v{t3}
    s_nop 1""")
    for q in range(8):
        a(f"    v_pk_mul_f32 {vr(vAc+2*q,2)}, {vr(vAc+2*q,2)}, {vr(t4,2)} op_sel_hi:[1,0]")
    for q in range(8):
        a(f"    v_cvt_pk_bf16_f32 v{vAc+q}, v{vAc+2*q}, v{vAc+2*q+1}")
    a(f"""
    s_mov_b64 exec, vcc
    ds_write_b128 v{t3}, {vr(vAc,4)}
    ds_write_b128 v{t3}, {vr(vAc+4,4)} offset:16
    s_mov_b64 exec, -1
    s_branch K_b3
K_notP:
    v_lshlrev_b32 v{t1}, 4, v{L}
    v_add_u32 v{t4}, {L_PS + 48*PS_STRIDE}, v{t1}
    v_add_u32 v{t1}, {48*256}, v{t1}
    v_and_b32 v{vBa+4}, 0x3fc, v{vBa+4}
    s_cmp_lg_u32 s{S_WAVE}, 9
    s_cbranch_scc1 K_b3
    {"s_branch K_tag0" if rot else f"global_load_dwordx2 {vr(vTg,2)}, v{vZ}, {sr(S_DBG,2)}"}
    s_branch K_b3
K_scan1:
    s_setprio 2
    v_lshlrev_b32 v{t0}, 4, v{L}
    ds_read_b128 v[56:59], v{t0} offset:{L_H1}
    s_waitcnt lgkmcnt(0)""")
    for i in range(4):
        a(f"    v_lshrrev_b32 v{60+i}, 16, v{56+i}")
    for i in range(4):
        a(f"    v_mad_u32_u24 v{64+i}, v{60+i}, 5, 3")
    for i in range(4):
        a(f"    v_and_b32 v{64+i}, -4, v{64+i}")
    a(f"""
    v_add_u32 v65, v64, v65
    v_add_u32 v66, v65, v66
    v_add_u32 v67, v66, v67
    v_mov_b32 v68, v67""")
    wave_scan(a, 68)
    a(f"""
    v_sub_u32 v68, v68, v67
    v_add_u32 v69, v68, v64
    v_add_u32 v70, v68, v65
    v_add_u32 v71, v68, v66
    s_mov_b32 s{S_A}, 0x10001""")
    for i in range(4):
        a(f"    v_mul_u32_u24 v{64+i}, s{S_A}, v{68+i}")
    for i in range(4):
        a(f"    v_lshl_add_u32 v{64+i}, v{56+i}, 16, v{64+i}")
    a(f"""
    ds_write_b128 v{t0}, v[64:67] offset:{L_OFF}
    s_setprio 0
K_b3:
    v_lshrrev_b32 v{t0}, 4, v{T}
    v_lshl_add_u32 v{t0}, v{t0}, 4, v{t2}
    v_add_u32 v{t0}, {L_PS}, v{t0}
    s_lshl_b32 s{S_A}, s{S_N0}, 8
    s_add_u32 s{S_A}, s{S_A}, {WS_P + (0x800000 if optval("cheat", "") else 0)}
    s_add_u32 s{S_RT}, s{S_WS}, s{S_A}
    s_addc_u32 s{S_RT+1}, s{S_WS+1}, 0
    s_lshl_b32 s{S_RT+2}, s{S_NN}, 8
    s_mov_b32 s{S_RT+3}, 0x00020000
    s_waitcnt lgkmcnt(0)
    s_barrier""")
    stamp(a, 4)
    a(f"""
    s_cmp_lt_u32 s{S_WAVE}, 10
    s_cbranch_scc1 K_nx0
    ds_read_b32 v{vOf+4}, v{vBa+4} offset:{L_OFF}
    ds_read_b128 v[76:79], v{t4}
K_nx0:
    {f"ds_read_b64 v[6:7], v{vZ} offset:{L_NONCE}" if rot else ""}
    ds_read_b128 v[72:75], v{t0}""")
    for i in range(4):
        a(f"    ds_read_b32 v{vOf+i}, v{vBa+i} offset:{L_OFF}")
    a(f"""
    s_waitcnt vmcnt({2+pk})
    v_lshl_or_b32 v{vSrc}, v{vEa}, 16, v{vSrc}
    v_and_or_b32 v{vSrc+1}, v{vEa}, s{S_C}, v{vSrc+1}
    v_lshl_or_b32 v{vSrc+2}, v{vEa+1}, 16, v{vSrc+2}
    v_and_or_b32 v{vSrc+3}, v{vEa+1}, s{S_C}, v{vSrc+3}
    s_waitcnt lgkmcnt(4)""")
    if rot:
        a(f"""
    v_readfirstlane_b32 s{S_TAG}, v6
    v_readfirstlane_b32 s{S_TAG+1}, v7
    s_xor_b32 s{S_A}, s{S_TAG}, s{S_TAG+1}
    s_mul_i32 s{S_A}, s{S_A}, 0x9E3779B1
    s_lshr_b32 s{S_A}, s{S_A}, 27
    {"s_or_b32 s%d, s%d, 16" % (S_A, S_A) if DIAG else ""}
    s_lshl_b32 s{S_A}, s{S_A}, 23
    s_add_u32 s{S_WS}, s{S_WS}, s{S_A}
    s_addc_u32 s{S_WS+1}, s{S_WS+1}, 0
    s_add_u32 s{S_RT}, s{S_RT}, s{S_A}
    s_addc_u32 s{S_RT+1}, s{S_RT+1}, 0""")
    a(f"""
    buffer_store_dwordx4 v[72:75], v{t2}, {sr(S_RT,4)}, 0 offen sc1""")
    def scatter(i):
        a(f"    v_add_u32_sdwa v{vBa+i}, v{vOf+i}, v{vRk+i} {SD} src0_sel:WORD_0 src1_sel:WORD_0")
        a(f"    v_add_u32_sdwa v{vOf+i}, v{vOf+i}, v{vRk+i} {SD} src0_sel:WORD_1 src1_sel:WORD_1")
        a(f"    ds_write_b32 v{vBa+i}, v{vSrc+i} offset:{L_RS}")
        a(f"    ds_write_b8 v{vOf+i}, v{vDst+i} offset:{L_RS}")
    a(f"    s_waitcnt lgkmcnt(0)")
    for i in range(4): scatter(i)
    stamp(a, 22)
    a(f"""
    s_waitcnt vmcnt({1+pk})
    s_cmp_lt_u32 s{S_WAVE}, 9
    s_cbranch_scc1 K_nx2
    s_cmp_eq_u32 s{S_WAVE}, 11
    s_cbranch_scc1 K_x2
    s_cmp_eq_u32 s{S_WAVE}, 9
    s_cbranch_scc1 {"K_nx2" if rot else "K_tag0"}
    buffer_store_dwordx4 v[76:79], v{t1}, {sr(S_RT,4)}, 0 offen sc1
    s_branch K_nx2
K_tag0:
    s_mov_b32 s{S_K}, 0
    s_waitcnt vmcnt({0 if rot else 1})
K_tagp:
    v_cmp_ne_u32 vcc, 0, v{vTg}
    s_cbranch_vccnz K_tagok
    s_add_u32 s{S_K}, s{S_K}, 1
    s_cmp_gt_u32 s{S_K}, {POLL_MAX}
    s_cbranch_scc1 K_tagok
    global_load_dwordx2 {vr(vTg,2)}, v{vZ}, {sr(S_DBG,2)} sc1
    s_waitcnt vmcnt(0)
    s_branch K_tagp
K_tagok:
    ds_write_b64 v{vZ}, {vr(vTg,2)} offset:{L_NONCE}
    s_branch {"K_b3" if rot else "K_nx2"}
K_x2:
    s_bfm_b64 exec, {XTRA}, 0
    v_lshl_or_b32 v{vSrc+4}, v{vEa+2}, 16, v{vSrc+4}""")
    scatter(4)
    a(f"""
    s_mov_b64 exec, -1
K_nx2:
    s_mul_i32 s{S_A}, s2, {RSTRIDE}
    s_add_u32 s{S_RR}, s{S_WS}, s{S_A}
    s_addc_u32 s{S_RR+1}, s{S_WS+1}, 0
    s_mov_b32 s{S_RR+2}, 16512
    s_mov_b32 s{S_RR+3}, 0x00020000
    v_add_u32 v{t3}, {step}, v{t2}
    s_waitcnt lgkmcnt(0)""")
    stamp(a, 23)
    a(f"""
    s_barrier""")
    stamp(a, 5)
    a(f"""
    ds_read_b128 v[0:3], v{t2} offset:{L_RS}
    ds_read_b64 v[12:13], v{vZ} offset:{L_NONCE}
    s_cmp_ge_u32 s{S_WAVE}, 5
    s_cbranch_scc1 K_co1
    ds_read_b128 v[8:11], v{t2} offset:{L_RS + step}
    s_waitcnt lgkmcnt(0)
    buffer_store_dwordx4 v[8:11], v{t3}, {sr(S_RR,4)}, 0 offen sc1
K_co1:
    s_waitcnt lgkmcnt(0)
    buffer_store_dwordx4 v[0:3], v{t2}, {sr(S_RR,4)}, 0 offen sc1
""")
    if optval("cheat", ""):
        a(f"""
    s_cmp_ge_u32 s{S_WAVE}, {optval("cheat", "")}
    s_cbranch_scc1 K_ch0
    s_lshr_b32 s{S_A}, s2, 3
    s_mul_i32 s{S_A}, s{S_A}, {781*128}
    s_add_u32 s{S_A}, s{S_A}, {WS_P}
    v_lshl_add_u32 v14, v{T}, 7, s{S_A}
    global_load_dword v14, v14, {sr(S_WS,2)}
K_ch0:""")
    a(f"""
    v_readfirstlane_b32 s{S_TAG}, v12
    v_readfirstlane_b32 s{S_TAG+1}, v13
    s_mov_b32 s3, {NLOG2E:#x}
    v_lshlrev_b32 v{t0}, 1, v{J}
    v_add_u32 v{t0}, {L_WC}, v{t0}
    s_cmp_lg_u32 s{S_WAVE}, 8
    s_cbranch_scc1 K_ntb
    s_and_b32 s{S_C}, s{S_TAG}, 0xfe000000
    s_lshl_b32 s{S_B}, s2, 11
    s_add_u32 s{S_B}, s{S_B}, {WS_TAB}
    v_lshl_add_u32 v{t1}, v{L}, 4, s{S_B}""")
    for i in range(4):
        a(f"    v_lshrrev_b32 v{68+i}, 2, v{68+i}")
        a(f"    v_lshl_or_b32 v{68+i}, v{60+i}, 13, v{68+i}")
        a(f"    v_or_b32 v{vTb+2*i}, s{S_C}, v{68+i}")
        a(f"    v_mov_b32 v{vTb+2*i+1}, s{S_TAG+1}")
    a("K_ntb:")
    stamp(a, 24)
    if cpos == "drain": emit_consts()
    if qpos == "drain":
        emit_q(); stamp(a, 7)
    stamp(a, 25)
    if optval("cheat", ""):
        a(f"""
    s_cmp_ge_u32 s{S_WAVE}, {optval("cheat", "")}
    s_cbranch_scc1 K_ch1
    s_waitcnt vmcnt(1)
    s_branch K_ch2
K_ch1:
    s_waitcnt vmcnt(0)
K_ch2:""")
    else:
        a("    s_waitcnt vmcnt(0)")
    a(f"""
    s_barrier""")
    stamp(a, 6)
    a(f"""
    s_cmp_eq_u32 s{S_TAG}, 0
    s_cbranch_scc1 K_slow
    s_cmp_lt_u32 s{S_WAVE}, 8
    s_cbranch_scc1 K_lb2
    s_cmp_lg_u32 s{S_WAVE}, 8
    s_cbranch_scc1 K_ntab
    global_store_dwordx4 v{t1}, {vr(vTb,4)}, {sr(S_WS,2)} sc1
    global_store_dwordx4 v{t1}, {vr(vTb+4,4)}, {sr(S_WS,2)} offset:1024 sc1
K_ntab:
    s_sub_u32 s{S_A}, s{S_WAVE}, 8
    s_lshl_b32 s{S_A}, s{S_A}, 12
    s_add_u32 s{S_B}, s{S_A}, {L_W2}
    s_mov_b32 m0, s{S_B}
    v_lshl_add_u32 v{t3}, v{L}, 4, s{S_A}
    global_load_lds_dwordx4 v{t3}, {sr(S_W2,2)}
    global_load_lds_dwordx4 v{t3}, {sr(S_W2,2)} offset:1024
    global_load_lds_dwordx4 v{t3}, {sr(S_W2,2)} offset:2048
    global_load_lds_dwordx4 v{t3}, {sr(S_W2,2)} offset:3072
    s_branch K_lbJ
K_lb2:
    s_cmp_lg_u32 s{S_WAVE}, 7
    s_cbranch_scc1 K_lbJ
    s_mov_b32 m0, {L_B2}
    v_lshlrev_b32 v{t3}, 2, v{J}
    global_load_lds_dword v{t3}, {sr(S_B2,2)}
K_lbJ:""")
    if cpos == "post": emit_consts()
    if qpos == "post": emit_q()
    a(f"""
    s_lshl_b32 s{S_B}, s{S_WAVE}, 12
    s_add_u32 s{S_B}, s{S_B}, {L_XS}
    s_mov_b32 m0, s{S_B}
    v_mov_b32 v{t5}, v{vTa}""")
    if qpos == "post": stamp(a, 7)
    vT = 0
    vN = 4
    vAr = 6
    vR = 12
    vM = 28
    vA = 32
    vK = 48
    vB = 64
    vG = 80
    a(f"""
    s_mov_b32 s{S_RR}, s{S_WS}
    s_mov_b32 s{S_RR+1}, s{S_WS+1}
    s_mov_b32 s{S_RR+2}, {WS_P + N_NODES*256}
    s_mov_b32 s{S_A}, {128*2048}
    s_mov_b32 s{S_B}, {128*RSTRIDE}
    s_mov_b32 s{S_C}, 0xfe000000
    s_movk_i32 s{S_D}, 0xfc
    s_mov_b32 s{S_K}, 0
    s_mov_b64 {mask(0)}, -1
    s_mov_b64 {mask(1)}, -1
    v_mov_b32 v{vM}, 0
    v_mov_b32 v{vM+1}, 0
K_poll:
    s_mov_b64 exec, {mask(0)}
    s_cbranch_execz K_pl0
    buffer_load_dwordx2 {vr(vT,2)}, v{t5}, {sr(S_RR,4)}, 0 offen sc1
K_pl0:
    s_mov_b64 exec, {mask(1)}
    s_cbranch_execz K_pl1
    buffer_load_dwordx2 {vr(vT+2,2)}, v{t5}, {sr(S_RR,4)}, s{S_A} offen sc1
K_pl1:
    s_mov_b64 exec, -1
    s_waitcnt vmcnt(0)""")
    for i in range(2):
        a(f"    v_xor_b32 v{vN+i}, s{S_TAG}, v{vT+2*i}")
        a(f"    v_xor_b32 v{vAr+i}, s{S_TAG+1}, v{vT+2*i+1}")
        a(f"    v_and_or_b32 v{vAr+i}, v{vN+i}, s{S_C}, v{vAr+i}")
        a(f"    v_cmp_ne_u32 {mask(i)}, 0, v{vAr+i}")
    a(f"""
    s_add_u32 s{S_K}, s{S_K}, 1
    s_or_b64 vcc, {mask(0)}, {mask(1)}
    s_cbranch_scc0 K_got
    {"s_sleep " + optval("ps", "2") if optval("ps", "2") != "0" else ""}
    s_cmp_lt_u32 s{S_K}, {POLL_MAX}
    s_cbranch_scc1 K_poll
    s_mov_b32 s{S_MODE}, 1
    s_branch K_nor2a
K_got:""")
    if DIAG:
        a(f"    v_writelane_b32 v{V_STAMP}, s{S_K}, 20")
    stamp(a, 8)
    so = ["0", sr(S_B)]
    for i in range(2):
        a(f"    v_and_b32 v{vAr+i}, 0x1fff, v{vT+2*i}")
        a(f"    v_bfe_u32 v{vT+2*i+1}, v{vT+2*i}, 13, 12")
        a(f"    v_lshl_add_u32 v{vAr+i}, v{vAr+i}, 2, v{vSb}")
        a(f"    v_sub_u32 v{vN+i}, v{vT+2*i+1}, v{vG4}")
        a(f"    v_lshl_add_u32 v{vAr+2+i}, v{vT+2*i+1}, 2, v{vAr+i}")
        a(f"    v_cmp_lt_i32 {mask(4*i)}, 0, v{vN+i}")
        a(f"    v_lshl_add_u32 v{vAr+i}, v{vG4}, 2, v{vAr+i}")
        a(f"    v_add_u32 v{vAr+2+i}, v{vAr+2+i}, v{vG4}")
        a(f"    s_or_b64 exec, {mask(4*i)}, 1")
        a(f"    buffer_load_dword v{vM+i}, v{vAr+2+i}, {sr(S_RR,4)}, {so[i]} offen")
        a(f"    buffer_load_dwordx4 {vr(vR+4*i,4)}, v{vAr+i}, {sr(S_RR,4)}, {so[i]} offen")
        a(f"    s_mov_b64 exec, -1")
    for i in range(2):
        for k in range(1, 4):
            a(f"    v_cmp_lt_i32 {mask(4*i+k)}, {k}, v{vN+i}")
    a(f"""
    v_max_i32 v{t1}, v{vN}, v{vN+1}
    v_cmp_lt_i32 vcc, 24, v{t1}
    s_mov_b32 s{S_K}, 0
    s_cbranch_vccz K_nor2a
    s_mov_b32 s{S_K}, 1""")
    for i in range(2):
        a(f"    buffer_load_dword v{vM+2+i}, v{vAr+2+i}, {sr(S_RR,4)}, {so[i]} offen offset:24")
        a(f"    buffer_load_dwordx4 {vr(vR+8+4*i,4)}, v{vAr+i}, {sr(S_RR,4)}, {so[i]} offen offset:96")
        for k in range(4):
            a(f"    v_cmp_lt_i32 {mask(8+4*i+k)}, {24+k}, v{vN+i}")
    a(f"""
    v_cmp_lt_i32 vcc, 48, v{t1}
    s_cbranch_vccz K_nor2a
    s_mov_b32 s{S_MODE}, 1
K_nor2a:
    v_mov_b32 v{t4}, {L_FLAG}
    v_mov_b32 v{t0}, 4
    s_cmp_eq_u32 s{S_MODE}, 0
    s_cbranch_scc1 K_nofl
    ds_write_b32 v{t4}, v{t0}
K_nofl:
    s_waitcnt lgkmcnt(0)
    s_barrier
    ds_read_b32 v{t3}, v{t4}
    s_add_u32 s{S_RX}, s{S_WS}, {WS_P - 3072}
    s_addc_u32 s{S_RX+1}, s{S_WS+1}, 0
    s_and_b32 s{S_RX+1}, s{S_RX+1}, 0xffff
    s_or_b32 s{S_RX+1}, s{S_RX+1}, 0x01000000
    s_mov_b32 s{S_RX+2}, {N_NODES}
    s_mov_b32 s{S_RX+3}, 0x00020000
    s_waitcnt lgkmcnt(0)
    v_cmp_ne_u32 vcc, 0, v{t3}
    s_cbranch_vccnz K_slow""")
    pf0 = int(optval("pf", "8"))
    a(f"""
    s_cmp_lt_u32 s{S_WAVE}, {pf0}
    s_cbranch_scc1 K_npf
    buffer_load_dword v{t5}, v{vPf}, {sr(S_RR,4)}, 0 offen
    s_waitcnt vmcnt(1)
    s_branch K_pfJ
K_npf:
    s_waitcnt vmcnt(0)
K_pfJ:""")
    stamp(a, 9)
    def rec_reg(k): return vR + k
    def count_cols(ks):
        for k in ks:
            a(f"    v_and_b32_sdwa v{vA+k}, v{vM+k//4}, s{S_D} {SD} src0_sel:BYTE_{k%4} src1_sel:DWORD")
        for k in ks:
            a(f"    s_mov_b64 exec, {mask(k)}")
            a(f"    ds_add_rtn_u32 v{vK+k}, v{vA+k}, v{t0}")
        a(f"    s_mov_b64 exec, -1")
    count_cols(range(8))
    a(f"""
    s_cmp_eq_u32 s{S_K}, 0
    s_cbranch_scc1 K_nor2b""")
    count_cols(range(8, 16))
    a(f"""
K_nor2b:
    v_lshlrev_b32 v{t1}, 2, v{L}
    v_cmp_gt_u32 vcc, s{S_NN}, v{L}
    s_waitcnt lgkmcnt(0)
    s_barrier""")
    stamp(a, 10)
    a(f"""
    ds_read_b32 v{V_CNT}, v{t1}
    s_waitcnt lgkmcnt(0)
    v_add_u32 v{vP}, 12, v{V_CNT}
    v_and_b32 v{vP}, -16, v{vP}
    v_max_u32 v{vP}, 0x80, v{vP}
    v_cndmask_b32 v{vP}, 0, v{vP}, vcc
    v_mov_b32 v{vS}, v{vP}""")
    wave_scan(a, vS)
    a(f"""
    s_nop 0
    v_readlane_b32 s{S_A}, v{vS}, 63
    v_sub_u32 v{vS}, v{vS}, v{vP}
    ds_write_b32 v{t1}, v{vS} offset:{L_SX}
    s_cmp_gt_u32 s{S_A}, {ENT_CAP*4}
    s_cbranch_scc1 K_slow""")
    def place_cols(ks, mid=None):
        ks = list(ks)
        for k in ks:
            a(f"    ds_read_b32 v{vB+k}, v{vA+k} offset:{L_SX}")
        if mid: a(mid)
        for n, k in enumerate(ks):
            if n % 2 == 0:
                a(f"    s_waitcnt lgkmcnt({len(ks)-2-n})")
            a(f"    v_add_u32 v{vK+k}, v{vB+k}, v{vK+k}")
        for k in ks:
            a(f"    s_mov_b64 exec, {mask(k)}")
            a(f"    ds_write_b32 v{vK+k}, v{rec_reg(k)} offset:{L_RL}")
        a(f"    s_mov_b64 exec, -1")
    place_cols(range(8), f"""
    s_add_u32 s{S_A}, s{S_A}, 127
    s_lshr_b32 s{S_TT}, s{S_A}, 7            ; tiles
    s_mul_i32 s{S_T0}, s{S_SLOT}, s{S_TT}
    s_add_u32 s{S_NT}, s{S_T0}, s{S_TT}
    s_mul_i32 s{S_T0}, s{S_T0}, 43691
    s_mul_i32 s{S_NT}, s{S_NT}, 43691
    s_lshr_b32 s{S_T0}, s{S_T0}, 19
    s_lshr_b32 s{S_NT}, s{S_NT}, 19
    s_sub_u32 s{S_NT}, s{S_NT}, s{S_T0}""")
    a(f"""
    s_cmp_eq_u32 s{S_K}, 0
    s_cbranch_scc1 K_nor2c
    s_waitcnt lgkmcnt(0)""")
    place_cols(range(8, 16))
    thr = [int(x) for x in optval("thr", "5_3_1").split("_")]
    a(f"""
K_nor2c:
    s_lshl_b32 s{S_A}, s{S_T0}, 7            ; ts*4
    s_add_u32 s{S_C}, s{S_A}, {L_RL}
    v_add_u32 v{V_AIDX}, s{S_C}, v{V_AIDX}
    v_cmp_ge_u32 {mask(0)}, s{S_A}, v{vS}
    v_subrev_u32 v{t0}, s{S_A}, v{vS}
    s_and_b64 {mask(0)}, {mask(0)}, vcc
    s_bcnt1_i32_b64 s{S_B}, {mask(0)}
    s_sub_u32 s{S_B}, s{S_B}, 1              ; n
    s_andn2_b64 {mask(0)}, vcc, {mask(0)}
    s_waitcnt lgkmcnt(0)
    s_barrier""")
    stamp(a, 11)
    for h in idx_reads(0): a(h)
    a(f"""
    v_add_u32 v{V_AENT}, s{S_C}, v{V_AENT}
    v_xor_b32 v{t3}, s{S_B}, v{HH}
    v_and_b32 v{t3}, 1, v{t3}
    s_lshl_b32 s{S_A}, s{S_B}, 9
    s_add_u32 s{S_A}, s{S_A}, {L_QT}
    v_lshl_add_u32 v{V_AQ}, v{t3}, 9, s{S_A}
    v_lshl_add_u32 v{V_AQ}, v{J}, 2, v{V_AQ}
    s_waitcnt lgkmcnt(0)""")
    for h in dma_ops(0): a(h)
    a(f"""
    s_cmp_ge_u32 s{S_WAVE}, {ndual}
    s_cbranch_scc1 K_e1
    s_add_u32 m0, m0, {L_T2 - L_XS}
    s_nop 0""")
    for h in dma_ops(1): a(h)
    a("K_e1:")
    for h in ent_reads(0, True): a(h)
    a(f"""
    v_bfe_u32 v{t4}, v{t0}, 4, 3
    v_add_u32 v{t4}, 1, v{t4}
    v_mul_u32_u24 v{t4}, {VAR_SIZE}, v{t4}
    v_lshrrev_b32 v{t0}, 7, v{t0}
    v_min_u32 v{t0}, 63, v{t0}
    v_cndmask_b32 v{t0}, 63, v{t0}, {mask(0)}
    v_lshlrev_b32 v{t0}, 2, v{t0}
    v_mov_b32 v{V_TAB}, 0
    ds_permute_b32 v{V_TAB}, v{t0}, v{t4}
    s_add_u32 s{S_A}, s{S_B}, s{S_SLOT}
    s_mul_i32 s{S_A}, s{S_A}, {ST_STRIDE}
    s_add_u32 s{S_A}, s{S_A}, {L_ST}
    v_lshl_add_u32 v{V_AS}, v{L}, 2, s{S_A}
    v_xor_b32 v{t3}, 1, v{t3}
    v_lshlrev_b32 v{V_INCQ}, 10, v{t3}
    v_cvt_f32_u32 v{vOne}, s{S_TT}
    v_rcp_f32 v{vOne}, v{vOne}
    v_add3_u32 v{vP}, v{vS}, v{vP}, -4
    v_lshrrev_b32 v{vS}, 7, v{vS}
    v_lshrrev_b32 v{vP}, 7, v{vP}
    v_cvt_f32_u32 v{vS}, v{vS}
    v_cvt_f32_u32 v{vP}, v{vP}
    v_add_f32 v{vS}, {f32bits((NW-0.5)/NW):#x}, v{vS}
    v_add_f32 v{vP}, {f32bits((NW-0.5)/NW):#x}, v{vP}
    v_mul_f32 v{vOne}, {f32bits(NW):#x}, v{vOne}
    v_mul_f32 v{vS}, v{vS}, v{vOne}
    v_mul_f32 v{vP}, v{vP}, v{vOne}
    v_cvt_u32_f32 v{vS}, v{vS}
    v_cvt_u32_f32 v{vP}, v{vP}
    v_sub_u32 v{vP}, v{vP}, v{vS}
    v_add_u32 v{vS}, v{vS}, v{L}
    v_lshl_or_b32 v{vS}, v{vP}, 8, v{vS}
    v_cndmask_b32 v{vS}, {ZROW}, v{vS}, vcc
    v_lshl_or_b32 v{V_CNT}, v{vS}, 16, v{V_CNT}
    ; jump table: entry offset inside a variant slot (priority steps near the end), exit at lane nt
    v_sub_u32 v{t0}, s{S_NT}, v{L}
    v_mov_b32 v{t3}, 64""")
    for i, th in enumerate(thr):
        a(f"    v_cmp_eq_u32 {mask(i)}, {th}, v{t0}")
    a(f"    v_cmp_eq_u32 {mask(3)}, 0, v{t0}")
    a(f"    v_mov_b32 v{t4}, K_exit - K_vbase")
    for i, th in enumerate(thr):
        a(f"    v_cndmask_b32 v{t3}, v{t3}, {44 + 8*i}, {mask(i)}")
    a(f"""
    s_waitcnt lgkmcnt(0)
    v_add_u32 v{V_TAB}, v{V_TAB}, v{t3}
    v_cndmask_b32 v{V_TAB}, v{V_TAB}, v{t4}, {mask(3)}
    s_mov_b32 s{S_K}, 1
    s_setprio 3
    v_readlane_b32 s{S_J}, v{V_TAB}, 0
    s_bitcmp1_b32 s{S_B}, 0
    s_cselect_b64 {sr(S_PAR,2)}, -1, 0
    s_movk_i32 s{S_PAD}, {PADREC}""")
    for h in mask_load(): a(h)
    a(f"""
    s_cmp_ge_u32 s{S_WAVE}, {ndual}
    s_cbranch_scc1 K_e2
    s_waitcnt vmcnt(4)""")
    stamp(a, 12)
    for h in tr_reads(0): a(h)
    a(f"    s_waitcnt vmcnt(0)")
    for h in tr_reads(1): a(h.replace(f"v{V_AA} ", f"v{vAA2} "))
    a(f"""
    s_add_u32 s{S_J}, s{S_MO}, 64 + K_vhN - K_varN
    s_waitcnt lgkmcnt(0)
    s_sub_u32 m0, m0, {L_T2 - L_XS}
    s_branch K_e4
K_e2:
    s_waitcnt vmcnt(0)""")
    stamp(a, 12)
    for h in tr_reads(0): a(h)
    a(f"    s_waitcnt lgkmcnt(0)")
    for h in dma_ops(1): a(h)
    a("K_e4:")
    for h in onehot_ops(): a(h)
    a(f"""
    s_add_u32 s{S_J}, s{S_J}, s{S_PC}
    s_addc_u32 s{S_J+1}, s{S_PC+1}, 0
    s_cmp_eq_u32 s{S_NT}, 0
    s_cbranch_scc1 K_exit""")
    a(small(0)); a(small(1))
    a("    s_nop 7")
    stamp(a, 13); stamp(a, 14, True)
    a(f"    s_setpc_b64 {sr(S_J,2)}")
    a(f".p2align 6")
    a(f"K_vbase:")
    for vi, b in enumerate([None] + list(range(8))):
        tile_variant(a, vi, b)
    a(f".p2align 3")
    a(f"K_exit:")
    stamp(a, 15); stamp(a, 16, True)
    for cts in ((0, 1), (2, 3)):
        flush_ops(a, cts)
        a("    s_nop 1")
        flush_ops2(a, cts)
    a(f"""
    v_cmp_eq_f32 vcc, 0, v{V_MN}
    s_cbranch_vccz K_join
    v_mov_b32 v64, 1
    v_mov_b32 v65, {L_FLAG}
    ds_write_b32 v65, v64
K_join:
    s_cmp_ge_u32 s{S_WAVE}, 4
    s_cbranch_scc1 K_idle
    v_and_b32 v136, 15, v{L}
    v_lshrrev_b32 v137, 4, v{L}              ; g
    s_lshl_b32 s{S_A}, s{S_WAVE}, 4
    v_add_u32 v136, s{S_A}, v136             ; node
    v_lshlrev_b32 v138, 2, v136
    ds_bpermute_b32 v139, v138, v{V_CNT}
    v_and_b32 v138, 16, v{L}
    v_lshlrev_b32 v138, 2, v138
    v_lshl_add_u32 v138, v{HH}, 5, v138
    v_bfe_u32 v140, v{L}, 2, 2
    v_add_u32 v140, v140, v138
    v_lshlrev_b32 v140, 7, v140
    v_and_b32 v141, 3, v{L}
    v_lshl_add_u32 v140, v141, 4, v140
    v_add_u32 v140, {L_W2}, v140""")
    for ot in range(4):
        for ks in range(4):
            for h in range(2):
                a(f"    ds_read_b64_tr_b16 {vr(16*ot+4*ks+2*h,2)}, v140 offset:{1024*ks+512*h+64*(ot>>1)+8*(ot&1)}")
    a(f"""
    v_lshlrev_b32 v141, 4, v137
    v_add_u32 v140, {L_B2}, v141
    ds_read_b128 v[128:131], v140
    ds_read_b128 v[132:135], v140 offset:64
    v_lshl_add_u32 v141, v136, 7, v141
    s_lshl_b32 s{S_A}, s{S_N0}, 7
    s_add_u32 s{S_RT}, s{S_OUT}, s{S_A}
    s_addc_u32 s{S_RT+1}, s{S_OUT+1}, 0
    s_lshl_b32 s{S_RT+2}, s{S_NN}, 7
    s_mov_b32 s{S_RT+3}, 0x00020000
    s_mov_b32 s3, {NLN2:#x}
    s_movk_i32 s{S_K}, {ST_STRIDE}
    s_waitcnt lgkmcnt(0)
    v_bfe_u32 v142, v139, 16, 8
    v_lshrrev_b32 v143, 24, v139
    v_and_b32 v139, 0xffff, v139
    v_cvt_f32_u32 v139, v139
    v_mul_f32 v139, {f32bits(0.25 * -1.4426950408889634):#x}, v139
    v_lshlrev_b32 v138, 2, v138
    v_add_u32 v138, {L_ST}, v138
    v_mad_u32_u24 v142, v142, s{S_K}, v138
    v_add_u32 v138, {ZROW*ST_STRIDE}, v138
    v_cmp_lt_u32 vcc, 0, v143
    v_add_u32 v144, {ST_STRIDE}, v142
    v_mov_b32 v146, 0x207
    v_cndmask_b32 v145, v138, v144, vcc""")
    vO = 148
    accs = [148, 149, 150, 151, 152, 153] + list(range(156, 166))
    ACC = [112, 116, 120, 124]
    for q in range(8):
        a(f"    v_lshlrev_b32 v{112+2*q}, 16, v{128+q}")
        a(f"    v_and_b32 v{113+2*q}, 0xffff0000, v{128+q}")
    for q in range(16):
        a(f"    v_mul_f32 v{112+q}, v139, v{112+q}")
    a(f"    s_barrier")
    stamp(a, 17)
    S0 = 64; S1 = 96
    for ks in range(2):
        pass
    a(f"    s_mov_b32 s{S_A}, 1")
    for ks in range(4):
        a(f"    ds_read_b128 {vr(S0+8*ks,4)}, v142 offset:{32*ks}")
        a(f"    ds_read_b128 {vr(S0+4+8*ks,4)}, v142 offset:{32*ks+16}")
    a(f"K_rows:")
    tmp = [96, 104, 128, 156]
    for ks in range(4):
        a(f"    ds_read_b128 {vr(tmp[ks],4)}, v145 offset:{32*ks}")
        a(f"    ds_read_b128 {vr(tmp[ks]+4,4)}, v145 offset:{32*ks+16}")
    a(f"""
    v_cmp_lt_u32 vcc, s{S_A}, v143
    v_add_u32 v144, {ST_STRIDE}, v144
    s_add_u32 s{S_A}, s{S_A}, 1""")
    for ks in range(4):
        a(f"    s_waitcnt lgkmcnt({6-2*ks})")
        for q in range(4):
            a(f"    v_pk_add_f32 {vr(S0+8*ks+2*q,2)}, {vr(S0+8*ks+2*q,2)}, {vr(tmp[ks]+2*q,2)}")
    a(f"""
    v_cndmask_b32 v145, v138, v144, vcc
    s_cbranch_vccnz K_rows""")
    def cv(ks):
        for q in range(4):
            a(f"    v_cvt_pk_bf16_f32 v{96+4*ks+q}, v{S0+8*ks+2*q}, v{S0+1+8*ks+2*q}")
    def mf(ks, ot):
        d = vr(ACC[ot], 4)
        a(f"    v_mfma_f32_16x16x32_bf16 {d}, {vr(16*ot+4*ks,4)}, {vr(96+4*ks,4)}, {d}")
    cv(0); cv(1)
    for ks in range(4):
        for ot in range(4):
            mf(ks, ot)
        if ks < 2: cv(ks + 2)
    a("    s_nop 4")
    for q in range(16):
        a(f"    v_mul_f32 v{64+q}, s3, v{112+q}")
    for q in range(8):
        a(f"    v_cvt_pk_bf16_f32 v{80+q}, v{64+2*q}, v{65+2*q}")
    osc = optval("o_", "sc1")
    a(f"    buffer_store_dwordx4 v[80:83], v141, {sr(S_RT,4)}, 0 offen {osc}")
    a(f"    buffer_store_dwordx4 v[84:87], v141, {sr(S_RT,4)}, 0 offen offset:64 {osc}")
    for q in range(16):
        a(f"    v_cmp_class_f32 {mask(q)}, v{64+q}, v146")
    for q in range(1, 16):
        a(f"    s_or_b64 {mask(0)}, {mask(0)}, {mask(q)}")
    a(f"""
    s_cbranch_scc0 K_fin
    v_mov_b32 v64, 1
    v_mov_b32 v65, {L_FLAG}
    ds_write_b32 v65, v64
    s_branch K_fin
K_idle:
    s_waitcnt lgkmcnt(0)
    s_barrier                                ; B9
K_fin:
    v_mov_b32 v65, {L_FLAG}
    s_waitcnt lgkmcnt(0)
    s_barrier                                ; B10
    ds_read_b32 v64, v65
    s_waitcnt lgkmcnt(0)
    v_cmp_ne_u32 vcc, 0, v64
    s_cbranch_vccnz K_slow""")
    if DIAG:
        a("    s_waitcnt vmcnt(0)")
        stamp(a, 18); stamp(a, 19, True)
        a(f"""
    s_load_dwordx2 {sr(S_WS,2)}, s[0:1], 80
    s_waitcnt lgkmcnt(0)
    v_writelane_b32 v{V_STAMP}, s{S_NT}, 21
    s_lshl_b32 s{S_A}, s2, 4
    s_add_u32 s{S_A}, s{S_A}, s{S_WAVE}
    s_lshl_b32 s{S_A}, s{S_A}, 8
    s_add_u32 s{S_A}, s{S_A}, {WS_STAMP}
    v_lshl_add_u32 v64, v{L}, 2, s{S_A}
    s_mov_b64 exec, 0xffffffff
    global_store_dword v64, v{V_STAMP}, {sr(S_WS,2)}
    global_store_dword v64, v{V_TRACE}, {sr(S_WS,2)} offset:128""")
    if optval("spin", "") != "":
        stamp(a, 18)
        a(f"""
    s_lshl_b32 s{S_A}, s2, 4
    s_add_u32 s{S_A}, s{S_A}, s{S_WAVE}
    s_cmp_lg_u32 s{S_A}, {100*16 + int(optval('sw', '0'))}
    s_cbranch_scc1 K_end
    s_lshl_b32 s{S_A}, s{S_TAG+1}, 7
    s_lshr_b32 s{S_B}, s{S_TAG}, 25
    s_or_b32 s{S_A}, s{S_A}, s{S_B}
    {"s_mov_b32 s100, s%d" % S_A if optval("spin", "") == "0" else ""}
    s_sub_u32 s{S_B}, s100, s{S_A}
    s_min_u32 s{S_B}, s{S_B}, 20000
    s_mul_i32 s{S_B}, s{S_B}, {optval("mul", "10")}
    s_add_u32 s{S_B}, s{S_B}, {optval("base", "10000")}
K_spin:
    s_memrealtime s[98:99]
    s_waitcnt lgkmcnt(0)
    s_sub_u32 s98, s98, s{S_A}
    s_cmp_lt_u32 s98, s{S_B}
    s_cbranch_scc1 K_spin""")
    a(f"""
K_end:
    s_endpgm
K_slow:
    s_setprio 0
    s_mov_b32 s16, s{S_N0}
    s_mov_b32 s17, s{S_NN}
    s_mov_b32 s18, s{S_WAVE}""")
    gen_slow(a, 16, 17, 18, L, NLOG2E, NW=NW)
    a("    s_endpgm")

def main():
    global DIAG
    out = sys.argv[1]
    DIAG = "diag" in sys.argv[2:] or "lite" in sys.argv[2:]
    OPT.update(sys.argv[2:])
    a = Asm()
    a(f"""; Edge-featured MPNN layer: out[n] = sum_(e: dst=n) (silu([x[src],x[dst],e] w1 + b1) w2 + b2)
; @launch grid=(256,1,1) block=({NT_},1,1) lds={L_END}
.amdgcn_target "amdgcn-amd-amdhsa--gfx950"
.text""")
    gen_kernel(a)
    a(f"""
.section .rodata,"a"
.p2align 6
.amdhsa_kernel {KNAME}
  .amdhsa_next_free_vgpr {NVGPR}
  .amdhsa_next_free_sgpr 102
  .amdhsa_accum_offset {NVGPR}
  .amdhsa_group_segment_fixed_size 0
  .amdhsa_kernarg_size 88
  .amdhsa_user_sgpr_count 2
  .amdhsa_user_sgpr_kernarg_segment_ptr 1
  .amdhsa_system_sgpr_workgroup_id_x 1
  .amdhsa_float_denorm_mode_32 3
.end_amdhsa_kernel""")
    open(out, "w").write(a.text())

if __name__ == "__main__":
    main()
```

```python
import sys, struct
from slow import gen_slow

NAME = "standalone__edge_featured_mpnn_mpnn__graph"
KNAME = NAME + "_kernel"
N_NODES = 12500
NB = 49
NW = 12
NT_ = 64 * NW
MAINE = 4 * NT_
XTRA = 53
RSTRIDE = 16640

WS_REC = 0
WS_TAB = 0x420000
WS_P = 0x4C0000
WS_STAMP = 0xA00000

L_FLAG = 288
L_NONCE = 296
L_SX = 4096
L_Z = 320
L_RL = 4352
ENT_CAP = 3584
L_ST = L_RL + (ENT_CAP + 64) * 4
ST_STRIDE = 528
ZROW = NB + NW
L_QT = (L_ST + (ZROW + 1) * ST_STRIDE + 255) // 256 * 256
L_XS = L_QT + 56 * 512
L_W2 = L_XS + NW * 4096
L_B2 = L_W2 + 16384
L_T2 = L_B2 + 256
L_END = L_T2 + 16384
L_RS = L_ST
L_H1 = L_ST + 16640
L_OFF = L_H1 + 1024
L_W1 = L_XS
L_WC = L_XS + 32768
L_PS = L_WC + 512
L_XR = L_W2
PS_STRIDE = 272
assert L_XS % 256 == 0
assert L_END <= 163840 and L_H1 + 3072 <= L_ST + ZROW * ST_STRIDE and L_OFF + 1024 < 65536 and L_PS + 56 * PS_STRIDE <= L_W2

def f32bits(x):
    return struct.unpack("<I", struct.pack("<f", x))[0]
NLOG2E = f32bits(-1.4426950408889634)
NLN2 = f32bits(-0.6931471805599453)
PADREC = 0x3FFF
POLL_MAX = 4000

class Asm:
    def __init__(self):
        self.l = []
    def __call__(self, s=""):
        for x in s.strip("\n").split("\n"):
            self.l.append(x)
    def text(self):
        return "\n".join(self.l) + "\n"

def vr(a, n=1):
    return f"v{a}" if n == 1 else f"v[{a}:{a+n-1}]"
def sr(a, n=1):
    return f"s{a}" if n == 1 else f"s[{a}:{a+n-1}]"

DIAG = False
OPT = set()
def optval(prefix, default):
    for o in OPT:
        if o.startswith(prefix):
            return o[len(prefix):]
    return default

V_D = 0; V_E = 64; V_A5 = 96; V_B5 = 98; V_ND = 106; V_T = 122; V_R = 126; V_O = 128; V_IX = 132
V_AA = 140; V_AIDX = 141; V_AENT = 142; V_AQ = 143; V_INCQ = 144; V_AS = 145; V_MN = 146; V_PSEL = 147
V_TAB = 148; V_CNT = 149; V_B2 = 150; V_LANE = 154; V_TID = 155
V_J = 156; V_HH = 157
V_STAMP = 167; V_TRACE = 166
NVGPR = 168
S_X = 4; S_E = 6; S_SRC = 8; S_DST = 10; S_W1 = 12; S_B1 = 14; S_W2 = 16; S_B2 = 18; S_OUT = 20; S_DBG = 22; S_WS = 24
S_BIN = 26; S_N0 = 27; S_NN = 28; S_WAVE = 29; S_MODE = 30; S_K = 31; S_PC = 32; S_J = 34
S_RX = 36; S_RT = 40; S_RR = 44; S_P = 48
S_T0 = 56; S_NT = 57; S_TT = 58; S_SLOT = 59; S_A = 60; S_B = 61; S_C = 62; S_D = 63; S_TAG = 64
S_M = 66
S_PO = 98
S_OH = 66; S_PAR = 68; S_PAD = 70; S_MO = 71
def mask(k): return sr(S_M + 2*k, 2)

def stamp(a, k, real=False):
    if optval("spin", "") != "":
        if int(optval("spin", "")) == k:
            a("    s_memrealtime s[100:101]\n    s_waitcnt lgkmcnt(0)")
        return
    if not DIAG:
        return
    if "lite" in OPT and k not in (14, 16, 19):
        return
    a(f"    {'s_memrealtime' if real else 's_memtime'} s[100:101]")
    a(f"    s_waitcnt lgkmcnt(0)")
    a(f"    v_writelane_b32 v{V_STAMP}, s100, {k}")

def wave_scan(a, v):
    for sh in (1, 2, 4, 8):
        a(f"    s_nop 1")
        a(f"    v_add_u32_dpp v{v}, v{v}, v{v} row_shr:{sh} row_mask:0xf bank_mask:0xf")
    a(f"    s_nop 1")
    a(f"    v_add_u32_dpp v{v}, v{v}, v{v} row_bcast:15 row_mask:0xa bank_mask:0xf")
    a(f"    s_nop 1")
    a(f"    v_add_u32_dpp v{v}, v{v}, v{v} row_bcast:31 row_mask:0xc bank_mask:0xf")

SD = "dst_sel:DWORD dst_unused:UNUSED_PAD"

def small(c):
    d = vr(V_D + 16*c, 16)
    return f"    v_mfma_f32_32x32x8_bf16 {d}, {vr(V_A5,2)}, {vr(V_B5+2*c,2)}, {d}"
def tr_reads(h):
    return [f"    ds_read_b64_tr_b16 {vr(V_D+16*(2*h+k)+2*u,2)}, v{V_AA} offset:{512*u+64*k}" for u in range(8) for k in range(2)]
def ent_reads(off, q):
    h = [f"    ds_read_b32 v{V_A5+1}, v{V_AENT} offset:{off}"]
    if q:
        h += [f"    ds_read_b32 v{V_B5+2*c}, v{V_AQ} offset:{128*c}" for c in range(4)]
    return h
def idx_reads(off):
    return [f"    ds_read_u16 v{V_IX+2*m}, v{V_AIDX} offset:{off + 32*m}" for m in range(4)]
def dma_ops(h):
    return [f"    buffer_load_dwordx4 {vr(V_IX+2*m,2)}, {sr(S_RX,4)}, s{S_P+4*h+m} idxen offen offset:{1024*m} {optval('g_', '')} lds" for m in range(4)]

def x_phase(a, mf_cts, ex_cts, head, pre, plain, tail):
    es = [f"    v_exp_f32 v{V_E+16*k+2*u+b}, v{V_D+16*c+2*u+b}" for u in range(8) for k, c in enumerate(ex_cts) for b in range(2)]
    n1 = 22
    for h in head: a(h)
    for e in es[:n1-(4 if pre else 2)]: a(e)
    for p in plain: a(p)
    a(f"    s_waitcnt lgkmcnt(0)")
    if pre:
        a(pre[0]); a(es[n1-4]); a(pre[1]); a(pre[2]); a(es[n1-3]); a(pre[3])
    for e in es[n1-2:n1]: a(e)
    a(small(mf_cts[0]))
    for e in es[n1:n1+4]: a(e)
    a(small(mf_cts[1]))
    for e in es[n1+4:]: a(e)
    for t in tail: a(t)
    a(".p2align 3")

def flush_ops(a, cts):
    for k, c in enumerate(cts):
        D = V_ND + 4*c + 2
        a(f"    v_mul_f32 v{V_R+k}, v{D}, v{D+1}")
    for k, c in enumerate(cts):
        N = V_ND + 4*c; D = N + 2
        a(f"    v_pk_mul_f32 {vr(V_O+2*k,2)}, {vr(N,2)}, {vr(D,2)} op_sel:[0,1] op_sel_hi:[1,0]")
    for k, c in enumerate(cts):
        a(f"    v_rcp_f32 v{V_R+k}, v{V_R+k}")
    for k, c in enumerate(cts):
        a(f"    v_add_f32 v{V_O+2*k}, v{V_O+2*k}, v{V_O+2*k+1}")
    for k, c in enumerate(cts):
        a(f"    v_mul_f32 v{V_O+2*k}, v{V_O+2*k}, v{V_R+k}")
def flush_ops2(a, cts):
    a(f"    v_permlane32_swap_b32 v{V_O}, v{V_O+2}")
    a(f"    v_min3_f32 v{V_MN}, v{V_MN}, v{V_R}, v{V_R+1}")
    a(f"    v_add_f32 v{V_O}, v{V_O}, v{V_O+2}")
    a(f"    ds_write_b32 v{V_AS}, v{V_O} offset:{128*cts[0]}")

def y_phase(a, cts, b):
    nsrc = [V_ND + 4*c for c in cts]
    for u in range(8):
        if u == b:
            flush_ops(a, cts)
            for k, c in enumerate(cts):
                a(f"    v_pk_add_f32 {vr(V_ND+4*c+2,2)}, {vr(V_E+16*k+2*u,2)}, 1.0 op_sel_hi:[1,0]")
            flush_ops2(a, cts)
            for k, c in enumerate(cts):
                p = V_D + 16*c + 2*u
                if u == 7:
                    a(f"    v_pk_mov_b32 {vr(V_ND+4*c,2)}, {vr(p,2)}, {vr(p,2)} op_sel:[0,1]")
                else:
                    nsrc[k] = p
            continue
        for k, c in enumerate(cts):
            a(f"    v_pk_fma_f32 {vr(V_T+2*k,2)}, {vr(V_D+16*c+2*u,2)}, {vr(V_ND+4*c+2,2)}, {vr(nsrc[k],2)}")
        for k, c in enumerate(cts):
            D = V_ND + 4*c + 2
            a(f"    v_pk_fma_f32 {vr(D,2)}, {vr(D,2)}, {vr(V_E+16*k+2*u,2)}, {vr(D,2)}")
        for k, c in enumerate(cts):
            a(f"    v_pk_fma_f32 {vr(V_ND+4*c,2)}, {vr(nsrc[k],2)}, {vr(V_E+16*k+2*u,2)}, {vr(V_T+2*k,2)}")
            nsrc[k] = V_ND + 4*c

def onehot_ops():
    return [f"    v_cmp_ne_u32 vcc, s{S_PAD}, v{V_A5+1}",
            f"    s_xor_b64 {sr(S_OH,2)}, {sr(S_OH,2)}, {sr(S_PAR,2)}",
            f"    s_and_b64 vcc, vcc, {sr(S_OH,2)}",
            f"    v_cndmask_b32 v{V_A5}, 0, v{V_PSEL}, vcc"]
def mask_load():
    return [f"    s_sub_u32 s{S_MO}, s{S_J}, 4", f"    s_andn2_b32 s{S_MO}, s{S_MO}, 63",
            f"    s_load_dwordx2 {sr(S_OH,2)}, {sr(S_PC,2)}, s{S_MO}"]
def row_mask(b):
    sw = lambda i: (i & 0x19) | ((i & 2) << 1) | ((i & 4) >> 1)
    return sum(1 << i for i in range(32) if b is None or sw(i) < 4*b)

VAR_SIZE = 1792
def tile_variant(a, vi, b):
    name = "N" if b is None else str(b)
    a(f".org K_vbase + {VAR_SIZE*vi}, 0")
    a(f".long {row_mask(b):#x}, {row_mask(b) ^ 0xffffffff:#x}")
    a(f".org K_vbase + {VAR_SIZE*vi + 64 - 20}, 0")
    a(f"    s_setprio 2\n    s_branch K_var{name}\n    s_setprio 1\n    s_branch K_var{name}\n    s_setprio 0")
    a(f"K_var{name}:")
    bnd = b is not None
    if "trace" in OPT:
        a(f"    s_memtime s[100:101]\n    s_mov_b32 s{S_A}, m0\n    s_mov_b32 m0, s{S_K}\n    s_waitcnt lgkmcnt(0)")
        a(f"    v_writelane_b32 v{V_TRACE}, s100, m0\n    s_mov_b32 m0, s{S_A}")
    plain0 = []
    if bnd:
        plain0 = [f"    v_add_u32 v{V_AQ}, v{V_AQ}, v{V_INCQ}", f"    v_xor_b32 v{V_INCQ}, 0x400, v{V_INCQ}"]
    plain0.append(f"    v_readlane_b32 s{S_J}, v{V_TAB}, s{S_K}")
    x_phase(a, (2, 3), (0, 1), ["    s_waitcnt vmcnt(0)"] + tr_reads(1) + [f"K_vh{name}:"] + idx_reads(128), [], plain0,
            dma_ops(0) + [f"    s_add_u32 s{S_K}, s{S_K}, 1"] + mask_load() + ([f"    s_not_b64 {sr(S_PAR,2)}, {sr(S_PAR,2)}"] if bnd else []))
    y_phase(a, (0, 1), b)
    plain1 = [f"    v_add_u32 v{V_AENT}, 0x80, v{V_AENT}", f"    v_add_u32 v{V_AIDX}, 0x80, v{V_AIDX}"]
    x_phase(a, (0, 1), (2, 3), ["    s_waitcnt vmcnt(0)"] + ent_reads(128, bnd) + tr_reads(0),
            onehot_ops(), plain1,
            dma_ops(1) + [f"    s_add_u32 s{S_J}, s{S_J}, s{S_PC}", f"    s_addc_u32 s{S_J+1}, s{S_PC+1}, 0"])
    y_phase(a, (2, 3), b)
    if bnd:
        a(f"    v_add_u32 v{V_AS}, {ST_STRIDE}, v{V_AS}")
    a(f"    s_setpc_b64 {sr(S_J,2)}")

def gen_kernel(a):
    L = V_LANE; T = V_TID; J = V_J; HH = V_HH
    t0, t1, t2, t3, t4, t5 = 158, 159, 160, 161, 162, 163
    vDst = 0
    vSrc = 8
    vEa = 14
    vBa = 20
    vRk = 26
    vOf = 32
    vX = 40
    vWf = 56
    vAc = 72
    vTb = 88
    vZ = 128
    vPad = 56
    vWa = 38; vXa = 88; vTg = 18; vTa = 39; vC8 = 37; vWp = 31
    vG4 = 164; vSb = 165
    vS = 122; vP = 123; vOne = 124; vAA2 = 125; vPf = 126
    a(f"""
.p2align 8
.globl {KNAME}
.type {KNAME},@function
{KNAME}:
    s_cmp_ge_u32 s2, 256
    s_cbranch_scc1 K_end
    s_load_dwordx8 s[4:11], s[0:1], 0
    s_load_dwordx8 s[12:19], s[0:1], 32      ; w1, b1, w2, b2
    s_load_dwordx4 s[20:23], s[0:1], 64
    s_load_dwordx2 s[24:25], s[0:1], 80      ; ws
    s_memrealtime {sr(S_TAG,2)}
    v_lshrrev_b32 v1, 6, v0
    v_mov_b32 v{T}, v0
    v_readfirstlane_b32 s{S_WAVE}, v1
    v_and_b32 v{L}, 63, v0
    s_mul_i32 s3, s2, {MAINE*4}
    v_lshl_add_u32 v{t0}, v0, 4, s3          ; byte offset into src/dst
    v_lshrrev_b32 v{t1}, 1, v{t0}
    s_and_b32 s{S_BIN}, s2, 7
    s_lshl_b32 s{S_BIN}, s{S_BIN}, 5
    s_lshr_b32 s3, s2, 3
    s_add_u32 s{S_BIN}, s{S_BIN}, s3
    s_mul_i32 s{S_N0}, s{S_BIN}, {NB}
    s_sub_u32 s{S_NN}, {N_NODES}, s{S_N0}
    s_min_u32 s{S_NN}, s{S_NN}, {NB}
    v_and_b32 v{J}, 31, v0
    v_bfe_u32 v{HH}, v0, 5, 1
    s_mov_b32 s{S_MODE}, 0
    v_mov_b32 v{vZ}, 0
    v_mov_b32 v{vZ+1}, 0
    v_mov_b32 v{vZ+2}, 0
    v_mov_b32 v{vZ+3}, 0
    v_lshlrev_b32 v{t2}, 2, v0""")
    if DIAG:
        a(f"    v_mov_b32 v{V_STAMP}, 0\n    v_mov_b32 v{V_TRACE}, 0")
        stamp(a, 0, True); stamp(a, 1)
    wc = lambda c: V_B5 + 2*c
    vB1 = 97
    tc = 17
    ndual = int(optval("dual", "0"))
    cpos = optval("c_", "drain"); qpos = optval("q_", "post")
    def emit_consts():
        a(f"""
    v_and_b32 v{tc}, 7, v{L}
    v_lshlrev_b32 v{V_IX+1}, 4, v{tc}
    v_mov_b32 v{V_IX+3}, v{V_IX+1}
    v_mov_b32 v{V_IX+5}, v{V_IX+1}
    v_mov_b32 v{V_IX+7}, v{V_IX+1}
    v_and_b32 v{tc}, 8, v{L}
    v_lshl_add_u32 v{tc}, v{tc}, 4, v{vC8}
    v_lshl_add_u32 v{tc}, v{HH}, 8, v{tc}
    s_lshl_b32 s{S_B}, s{S_WAVE}, 12
    s_add_u32 s{S_B}, s{S_B}, {L_XS}
    v_add_u32 v{tc}, s{S_B}, v{tc}
    v_and_b32 v{t3}, 4, v{L}
    v_cmp_ne_u32 vcc, 0, v{t3}
    v_mov_b32 v{t3}, {L_Z}
    v_mov_b32 v{V_PSEL}, 0x3f803f80
    v_cndmask_b32 v{V_AA}, v{t3}, v{tc}, vcc
    v_add_u32 v{tc}, {L_T2 - L_XS}, v{tc}
    v_cndmask_b32 v{vAA2}, v{t3}, v{tc}, vcc
    v_and_b32 v{V_AENT}, 0x19, v{L}
    v_and_b32 v{tc}, 2, v{L}
    v_lshl_add_u32 v{V_AENT}, v{tc}, 1, v{V_AENT}
    v_bfe_u32 v{tc}, v{L}, 2, 1
    v_lshl_add_u32 v{V_AENT}, v{tc}, 1, v{V_AENT}
    v_lshlrev_b32 v{V_AENT}, 2, v{V_AENT}
    v_lshrrev_b32 v{V_AIDX}, 3, v{L}
    v_lshlrev_b32 v{V_AIDX}, 2, v{V_AIDX}""")
        for h in range(2):
            for m in range(4):
                a(f"    s_movk_i32 s{S_P+4*h+m}, {3072 - 1024*m + 128*h}")
        for c in range(4):
            a(f"    v_mov_b32 v{V_ND+4*c}, 0")
            a(f"    v_mov_b32 v{V_ND+4*c+1}, 0")
            a(f"    v_mov_b32 v{V_ND+4*c+2}, 1.0")
            a(f"    v_mov_b32 v{V_ND+4*c+3}, 1.0")
        a(f"""
    v_mov_b32 v{V_MN}, 1.0
    s_and_b32 s{S_A}, s{S_WAVE}, 3
    s_mul_i32 s{S_A}, s{S_A}, 3
    s_lshr_b32 s{S_B}, s{S_WAVE}, 2
    s_add_u32 s{S_SLOT}, s{S_A}, s{S_B}
    s_getpc_b64 {sr(S_PC,2)}
K_pc:
    s_add_u32 s{S_PC}, s{S_PC}, K_vbase - K_pc
    s_addc_u32 s{S_PC+1}, s{S_PC+1}, 0
    ; segment mapping of phase 2: segment 128 i + t/6, lane group g = t%6
    v_mul_u32_u24 v{tc}, 10923, v{T}
    v_lshrrev_b32 v{tc}, 16, v{tc}
    v_mad_i32_i24 v{vG4}, v{tc}, -6, v{T}
    v_lshlrev_b32 v{vG4}, 2, v{vG4}          ; 4g
    v_mul_u32_u24 v{vSb}, {RSTRIDE}, v{tc}
    s_lshr_b32 s{S_A}, s2, 3
    s_mul_i32 s{S_A}, s{S_A}, {781*128}
    s_add_u32 s{S_A}, s{S_A}, {WS_P}
    v_lshl_add_u32 v{vPf}, v{T}, 7, s{S_A}
    s_lshr_b32 s{S_B}, s{S_BIN}, 2
    s_lshl_b32 s{S_B}, s{S_B}, 4
    s_and_b32 s{S_A}, s{S_BIN}, 1
    s_lshl_b32 s{S_A}, s{S_A}, 3
    s_add_u32 s{S_B}, s{S_B}, s{S_A}
    s_and_b32 s{S_A}, s{S_BIN}, 2
    s_lshl_b32 s{S_A}, s{S_A}, 9
    s_add_u32 s{S_B}, s{S_B}, s{S_A}
    s_add_u32 s{S_B}, s{S_B}, {WS_TAB}
    v_lshl_add_u32 v{vTa}, v{tc}, 11, s{S_B} ; table entry offset""")
    def emit_q():
        a(f"""
    s_cmp_ge_u32 s{S_WAVE}, 8
    s_cbranch_scc1 K_notQ
    ; ---- Q tile while the stores drain
    s_lshl_b32 s{S_A}, s{S_D}, 6
    v_add_u32 v{t3}, s{S_A}, v{t0}
    ds_read_u16 v{vB1}, v{t3} offset:256
    v_add_u32 v{tc}, v{vWa}, v{vC8}""")
        for s_ in range(4):
            for h in range(2):
                a(f"    ds_read_b64_tr_b16 {vr(vWf+4*s_+2*h,2)}, v{tc} offset:{16384+4096*s_+1024*h}")
        a(f"""
    s_and_b32 s{S_A}, s{S_WAVE}, 1
    s_lshl_b32 s{S_B}, s{S_A}, 14
    s_lshl_b32 s{S_C}, s{S_D}, 7
    s_add_u32 s{S_B}, s{S_B}, s{S_C}
    s_add_u32 s{S_B}, s{S_B}, {L_QT}
    v_lshl_add_u32 v{tc}, v{HH}, 11, s{S_B}
    v_lshl_add_u32 v{tc}, v{J}, 2, v{tc}""")
        for s_ in range(4):
            a(f"    s_waitcnt lgkmcnt({6-2*s_})")
            cin = "0" if s_ == 0 else vr(vAc, 16)
            a(f"    v_mfma_f32_32x32x16_bf16 {vr(vAc,16)}, {vr(vX+4*s_,4)}, {vr(vWf+4*s_,4)}, {cin}")
        a(f"""
    v_lshlrev_b32 v{vB1}, 16, v{vB1}
    v_mul_f32 v{vB1}, s3, v{vB1}
    s_nop 9""")
        def qrow(r):
            a(f"    v_fma_f32 v{vAc+r}, v{vAc+r}, s3, v{vB1}")
            a(f"    v_cvt_pk_bf16_f32 v{vWf+r}, v{vZ}, v{vAc+r}")
            a(f"    v_sub_f32 v{vWf+r}, v{vAc+r}, v{vWf+r}")
            a(f"    v_cvt_pk_bf16_f32 v{vWf+r}, v{vAc+r}, v{vWf+r}")
            a(f"    ds_write_b32 v{tc}, v{vWf+r} offset:{512*(8*(r>>2)+(r&3))}")
        for r in range(12): qrow(r)
        a(f"""
    s_cmp_eq_u32 s{S_A}, 1
    s_cbranch_scc1 K_notQ""")
        for r in range(12, 16): qrow(r)
        a(f"""
K_notQ:
    ds_read_u16 v{wc(0)}, v{t0}
    ds_read_u16 v{wc(1)}, v{t0} offset:64
    ds_read_u16 v{wc(2)}, v{t0} offset:128
    ds_read_u16 v{wc(3)}, v{t0} offset:192
    v_cmp_lt_u32 vcc, 31, v{L}
    s_waitcnt lgkmcnt(0)""")
        for c in range(4):
            a(f"    v_lshlrev_b32 v{wc(c)}, 16, v{wc(c)}")
            a(f"    v_mul_f32 v{wc(c)}, s3, v{wc(c)}")
            a(f"    v_cvt_pk_bf16_f32 v{t3}, v{vZ}, v{wc(c)}")
            a(f"    v_sub_f32 v{t4}, v{wc(c)}, v{t3}")
            a(f"    v_cvt_pk_bf16_f32 v{t4}, v{vZ}, v{t4}")
            a(f"    v_cndmask_b32 v{V_B5+2*c+1}, v{t3}, v{t4}, vcc")
    step = NT_ * 16
    wc = lambda c: V_B5 + 2*c
    vB1 = 97
    a(f"""
    s_waitcnt lgkmcnt(0)
    global_load_dwordx4 {vr(vDst,4)}, v{t0}, {sr(S_DST,2)}
    {f"s_add_u32 s{S_WS}, s{S_WS}, {int(optval('wsoff', '0')) << 20}" if optval('wsoff', '') else ""}
    {f"s_addc_u32 s{S_WS+1}, s{S_WS+1}, 0" if optval('wsoff', '') else ""}
    {f"v_writelane_b32 v{V_STAMP}, s{S_TAG}, 0" if "lite" in OPT else ""}
    ds_write_b32 v{t2}, v{vZ} offset:{L_H1}
    s_cmp_lg_u32 s{S_WAVE}, 11
    s_cbranch_scc1 K_ld1
    s_mul_i32 s{S_A}, s2, {XTRA}
    s_add_u32 s{S_A}, s{S_A}, {256*MAINE}
    v_min_u32 v{t5}, {XTRA-1}, v{L}
    v_add_lshl_u32 v{t5}, v{t5}, s{S_A}, 2
    v_lshrrev_b32 v{t4}, 1, v{t5}
    global_load_dword v{vDst+4}, v{t5}, {sr(S_DST,2)}
    global_load_dword v{vSrc+4}, v{t5}, {sr(S_SRC,2)}
    global_load_ushort v{vEa+2}, v{t4}, {sr(S_E,2)}
K_ld1:""")
    if "nocpf" not in OPT:
        a(f"""
    ; the first workgroups pull the rest of the code into their die's L2
    s_cmp_ge_u32 s2, 32
    s_cbranch_scc1 K_ld2
    s_sub_u32 s{S_A}, s{S_WAVE}, 5
    s_cmp_ge_u32 s{S_A}, 3
    s_cbranch_scc1 K_ld2
    s_lshl_b32 s{S_A}, s{S_A}, 13
    v_lshl_add_u32 v{t5}, v{L}, 7, s{S_A}
    s_getpc_b64 {sr(S_J,2)}
    global_load_dword v{t4}, v{t5}, {sr(S_J,2)}
K_ld2:""")
    if optval("inv", ""):
        a(f"""
    s_cmp_ge_u32 s2, 8
    s_cbranch_scc1 K_ld4
    s_cmp_lg_u32 s{S_WAVE}, 3
    s_cbranch_scc1 K_ld4
    buffer_inv {optval("inv", "").replace("_", " ")}
K_ld4:""")
    if "tlb" in OPT:
        a(f"""
    s_cmp_lg_u32 s{S_WAVE}, 4
    s_cbranch_scc1 K_ld3
    v_mul_u32_u24 v{t5}, {4*RSTRIDE}, v{L}
    v_add_u32 v{t5}, {RSTRIDE - 4}, v{t5}
    s_mov_b32 s{S_A}, {WS_P - 4096}
    v_writelane_b32 v{t5}, s{S_A}, 1
    s_mov_b32 s{S_A}, {WS_P + N_NODES*256 + 4096}
    v_writelane_b32 v{t5}, s{S_A}, 3
    global_load_dword v{t4}, v{t5}, {sr(S_WS,2)}
K_ld3:""")
    a(f"""
    s_lshl_b32 s{S_A}, s2, 4
    s_add_u32 s{S_A}, s{S_A}, s{S_WAVE}
    s_cmp_lg_u32 s{S_A}, 9
    s_cbranch_scc1 K_ldJ
    s_lshl_b32 s{S_A}, s{S_TAG}, 25
    s_or_b32 s{S_A}, s{S_A}, 1
    s_lshr_b64 {sr(S_TAG,2)}, {sr(S_TAG,2)}, 7
    v_mov_b32 v{t4}, s{S_A}
    v_mov_b32 v{t4+1}, s{S_TAG}
    s_mov_b64 exec, 1
    global_store_dwordx2 v{vZ}, {vr(t4,2)}, {sr(S_DBG,2)} sc1
    s_mov_b64 exec, -1
K_ldJ:
    s_lshl_b32 s{S_A}, s{S_WAVE}, 11
    s_cmp_ge_u32 s{S_WAVE}, 8
    s_cbranch_scc1 K_stX
    s_add_u32 s{S_B}, s{S_A}, {L_W1}
    s_mov_b32 m0, s{S_B}
    v_lshrrev_b32 v{t3}, 2, v{L}
    v_and_b32 v{t3}, 12, v{t3}
    v_xor_b32 v{t3}, v{t3}, v{L}
    v_lshl_add_u32 v{t5}, v{t3}, 4, s{S_A}
    global_load_lds_dwordx4 v{t5}, {sr(S_W1,2)}
    global_load_lds_dwordx4 v{t5}, {sr(S_W1,2)} offset:1024
    s_branch K_stJ
K_stX:
    s_mov_b32 s{S_RX}, s4
    s_mov_b32 s{S_RX+1}, s5
    s_mov_b32 s{S_RX+2}, {N_NODES*128}
    s_mov_b32 s{S_RX+3}, 0x00020000
    s_add_u32 s{S_B}, s{S_A}, {L_XR - 16384}
    s_mov_b32 m0, s{S_B}
    s_lshl_b32 s{S_B}, s{S_N0}, 7
    s_add_u32 s{S_A}, s{S_A}, s{S_B}
    s_sub_u32 s{S_A}, s{S_A}, 16384
    v_lshrrev_b32 v{t3}, 4, v{L}
    v_xor_b32 v{t3}, v{t3}, v{L}
    v_lshl_add_u32 v{t3}, v{t3}, 4, s{S_A}
    v_xor_b32 v{t4}, 64, v{t3}
    buffer_load_dwordx4 v{t3}, {sr(S_RX,4)}, 0 offen lds
    buffer_load_dwordx4 v{t4}, {sr(S_RX,4)}, 0 offen offset:1024 lds
K_stJ:
    s_waitcnt lgkmcnt(0)
    s_barrier
    v_mov_b32 v{vPad}, {PADREC}
    v_mov_b32 v{vPad+1}, {PADREC}
    v_mov_b32 v{vPad+2}, {PADREC}
    v_mov_b32 v{vPad+3}, {PADREC}
    v_lshlrev_b32 v{t2}, 4, v{T}
    ds_write_b128 v{t2}, {vr(vPad,4)} offset:{L_RL}
    s_cmp_ge_u32 s{S_WAVE}, 4
    s_cbranch_scc1 K_in1
    ds_write_b128 v{t2}, {vr(vZ,4)}
    ds_write_b128 v{t2}, {vr(vPad,4)} offset:{L_ST - 4096}
K_in1:
    s_cmp_lg_u32 s{S_WAVE}, 4
    s_cbranch_scc1 K_in2
    v_lshlrev_b32 v{t3}, 3, v{L}
    v_add_u32 v{t3}, {L_ST + ZROW*ST_STRIDE}, v{t3}
    ds_write_b64 v{t3}, {vr(vZ,2)}
K_in2:
    global_load_dwordx4 {vr(vSrc,4)}, v{t0}, {sr(S_SRC,2)}
    global_load_dwordx2 {vr(vEa,2)}, v{t1}, {sr(S_E,2)}
    s_cmp_ge_u32 s{S_WAVE}, 8
    s_cbranch_scc1 K_st2
    s_add_u32 m0, m0, 16384
    v_add_u32 v{t5}, 0x4000, v{t5}
    global_load_lds_dwordx4 v{t5}, {sr(S_W1,2)}
    global_load_lds_dwordx4 v{t5}, {sr(S_W1,2)} offset:1024
    s_branch K_st3
K_st2:
    s_mov_b32 m0, {L_WC}
    v_lshlrev_b32 v{t3}, 2, v{L}
    v_add_u32 v{t4}, 0x8000, v{t3}
    global_load_lds_dword v{t4}, {sr(S_W1,2)}
    s_mov_b32 m0, {L_WC + 256}
    s_nop 0
    global_load_lds_dword v{t3}, {sr(S_B1,2)}
K_st3:
    v_and_b32 v{vC8}, 3, v{L}
    v_lshlrev_b32 v{vC8}, 3, v{vC8}
    v_and_b32 v{t1}, 16, v{L}
    v_lshl_add_u32 v{vC8}, v{t1}, 1, v{vC8}    ; 8c + 32(g&1)
""")
    if cpos == "early": emit_consts()
    a(f"""
    s_lshr_b32 s{S_D}, s{S_WAVE}, 1          ; ct
    v_bfe_u32 v{t0}, v{L}, 2, 2
    v_xor_b32 v{t3}, s{S_D}, v{t0}
    v_lshlrev_b32 v{t3}, 6, v{t3}
    v_lshl_add_u32 v{t0}, v{HH}, 3, v{t0}
    v_lshl_add_u32 v{t0}, v{t0}, 8, v{t3}
    v_add_u32 v{vWa}, {L_W1}, v{t0}
    v_and_b32 v{vWp}, 1, v{L}
    v_lshl_add_u32 v{vWp}, v{vWp}, 5, v{vWa}
    v_and_b32 v{t3}, 16, v{L}
    v_add_u32 v{vWp}, v{vWp}, v{t3}
    v_and_b32 v{t3}, 2, v{L}
    v_lshl_add_u32 v{vWp}, v{t3}, 2, v{vWp}    ; + 16(c&1) + 4(2(g&1) + (c>>1)) columns
    s_and_b32 s{S_A}, s{S_WAVE}, 1
    s_lshl_b32 s{S_A}, s{S_A}, 12
    s_add_u32 s{S_A}, s{S_A}, {L_XR}
    v_bfe_u32 v{t3}, v{L}, 1, 3
    v_xor_b32 v{t3}, v{t3}, v{HH}
    v_lshl_add_u32 v{t3}, v{t3}, 4, s{S_A}
    v_lshl_add_u32 v{vXa}, v{J}, 7, v{t3}
    v_xor_b32 v{vXa+1}, 32, v{vXa}
    v_xor_b32 v{vXa+2}, 64, v{vXa}
    v_xor_b32 v{vXa+3}, 0x60, v{vXa}
    s_mov_b32 s{S_A}, 21400
    s_mov_b32 s{S_B}, -{NB}
    s_mov_b32 s{S_C}, 0xffff0000
    v_mov_b32 v{t5}, 0x10004
    s_waitcnt vmcnt(6)
    s_cmp_lg_u32 s{S_WAVE}, 11
    s_cbranch_scc1 K_wJ
    s_bfm_b64 exec, {XTRA}, 0""")
    assert L_ST - L_RL <= step + 4096
    def binops(cols):
        for i in cols: a(f"    v_mul_u32_u24 v{vBa+i}, s{S_A}, v{vDst+i}")
        for i in cols: a(f"    v_lshrrev_b32 v{vBa+i}, 18, v{vBa+i}")
        for i in cols:
            a(f"    v_and_b32 v{vBa+i}, 0x3fc, v{vBa+i}")
            a(f"    ds_add_rtn_u32 v{vRk+i}, v{vBa+i}, v{t5} offset:{L_H1}")
        for i in cols: a(f"    v_lshlrev_b32 v{vDst+i}, 2, v{vDst+i}")
        for i in cols: a(f"    v_mad_i32_i24 v{vDst+i}, v{vBa+i}, s{S_B}, v{vDst+i}")
    binops([4])
    a(f"""
    s_mov_b64 exec, -1
K_wJ:""")
    stamp(a, 2)
    binops(range(4))
    a(f"""
    s_waitcnt vmcnt(4) lgkmcnt(0)""")
    rot = "rotp" in OPT
    if rot:
        a(f"""
    s_cmp_lg_u32 s{S_WAVE}, 9
    s_cbranch_scc1 K_nt9
    global_load_dwordx2 {vr(vTg,2)}, v{vZ}, {sr(S_DBG,2)}
K_nt9:""")
    a(f"""
    s_barrier""")
    stamp(a, 3)
    a(f"""
    s_cmp_eq_u32 s{S_WAVE}, 8
    s_cbranch_scc1 K_scan1
    s_cmp_gt_u32 s{S_WAVE}, 8
    s_cbranch_scc1 K_notP""")
    for s_ in range(4):
        a(f"    ds_read_b128 {vr(vX+4*s_,4)}, v{vXa+s_}")
        for h in range(2):
            a(f"    ds_read_b64_tr_b16 {vr(vWf+4*s_+2*h,2)}, v{vWp} offset:{4096*s_+1024*h}")
    for s_ in range(4):
        a(f"    s_waitcnt lgkmcnt({9-3*s_})")
        cin = "0" if s_ == 0 else vr(vAc, 16)
        a(f"    v_mfma_f32_32x32x16_bf16 {vr(vAc,16)}, {vr(vWf+4*s_,4)}, {vr(vX+4*s_,4)}, {cin}")
    a(f"""
    s_and_b32 s{S_B}, s{S_WAVE}, 1
    s_mul_i32 s{S_A}, s{S_B}, {32*PS_STRIDE}
    s_lshl_b32 s{S_B}, s{S_D}, 6
    s_add_u32 s{S_A}, s{S_A}, s{S_B}
    s_add_u32 s{S_A}, s{S_A}, {L_PS}
    v_mul_u32_u24 v{t3}, {PS_STRIDE}, v{J}
    v_lshl_add_u32 v{t3}, v{HH}, 5, v{t3}
    v_add_u32 v{t3}, s{S_A}, v{t3}
    v_mov_b32 v{t4}, {NLOG2E:#x}
    v_cmp_gt_u32 vcc, {L_PS + 56*PS_STRIDE}, v{t3}
    s_nop 1""")
    for q in range(8):
        a(f"    v_pk_mul_f32 {vr(vAc+2*q,2)}, {vr(vAc+2*q,2)}, {vr(t4,2)} op_sel_hi:[1,0]")
    for q in range(8):
        a(f"    v_cvt_pk_bf16_f32 v{vAc+q}, v{vAc+2*q}, v{vAc+2*q+1}")
    a(f"""
    s_mov_b64 exec, vcc
    ds_write_b128 v{t3}, {vr(vAc,4)}
    ds_write_b128 v{t3}, {vr(vAc+4,4)} offset:16
    s_mov_b64 exec, -1
    s_branch K_b3
K_notP:
    v_lshlrev_b32 v{t1}, 4, v{L}
    v_add_u32 v{t4}, {L_PS + 48*PS_STRIDE}, v{t1}
    v_add_u32 v{t1}, {48*256}, v{t1}
    v_and_b32 v{vBa+4}, 0x3fc, v{vBa+4}
""")
    if rot:
        a(f"""
    s_cmp_lg_u32 s{S_WAVE}, 9
    s_cbranch_scc1 K_b3
    s_mov_b32 s{S_K}, 0
    s_waitcnt vmcnt(0)
K_tagp:
    v_cmp_ne_u32 vcc, 0, v{vTg}
    s_cbranch_vccnz K_tagok
    s_add_u32 s{S_K}, s{S_K}, 1
    s_cmp_gt_u32 s{S_K}, {POLL_MAX}
    s_cbranch_scc1 K_tagok
    global_load_dwordx2 {vr(vTg,2)}, v{vZ}, {sr(S_DBG,2)} sc1
    s_waitcnt vmcnt(0)
    s_branch K_tagp
K_tagok:
    ds_write_b64 v{vZ}, {vr(vTg,2)} offset:{L_NONCE}""")
    a(f"""
    s_branch K_b3
K_scan1:
    s_setprio 2
    {"" if rot else f"global_load_dwordx2 {vr(vTg,2)}, v{vZ}, {sr(S_DBG,2)}"}
    v_lshlrev_b32 v{t0}, 4, v{L}
    ds_read_b128 v[56:59], v{t0} offset:{L_H1}
    s_waitcnt lgkmcnt(0)""")
    for i in range(4):
        a(f"    v_lshrrev_b32 v{60+i}, 16, v{56+i}")
    for i in range(4):
        a(f"    v_mad_u32_u24 v{64+i}, v{60+i}, 5, 3")
    for i in range(4):
        a(f"    v_and_b32 v{64+i}, -4, v{64+i}")
    a(f"""
    v_add_u32 v65, v64, v65
    v_add_u32 v66, v65, v66
    v_add_u32 v67, v66, v67
    v_mov_b32 v68, v67""")
    wave_scan(a, 68)
    a(f"""
    v_sub_u32 v68, v68, v67
    v_add_u32 v69, v68, v64
    v_add_u32 v70, v68, v65
    v_add_u32 v71, v68, v66
    s_mov_b32 s{S_A}, 0x10001""")
    for i in range(4):
        a(f"    v_mul_u32_u24 v{64+i}, s{S_A}, v{68+i}")
    for i in range(4):
        a(f"    v_lshl_add_u32 v{64+i}, v{56+i}, 16, v{64+i}")
    a(f"""
    ds_write_b128 v{t0}, v[64:67] offset:{L_OFF}
    s_setprio 0
K_b3:
    v_lshrrev_b32 v{t0}, 4, v{T}
    v_lshl_add_u32 v{t0}, v{t0}, 4, v{t2}
    v_add_u32 v{t0}, {L_PS}, v{t0}
    s_lshl_b32 s{S_A}, s{S_N0}, 8
    s_add_u32 s{S_A}, s{S_A}, {WS_P + (0x800000 if optval("cheat", "") else 0)}
    s_add_u32 s{S_RT}, s{S_WS}, s{S_A}
    s_addc_u32 s{S_RT+1}, s{S_WS+1}, 0
    s_lshl_b32 s{S_RT+2}, s{S_NN}, 8
    s_mov_b32 s{S_RT+3}, 0x00020000
    s_waitcnt lgkmcnt(0)
    s_barrier                                ; B3: segment offsets""")
    stamp(a, 4)
    a(f"""
    s_cmp_lt_u32 s{S_WAVE}, 10
    s_cbranch_scc1 K_nx0
    ds_read_b32 v{vOf+4}, v{vBa+4} offset:{L_OFF}
    ds_read_b128 v[76:79], v{t4}
K_nx0:""")
    split = "split" in OPT
    if split:
        a(f"""
    s_cmp_lt_u32 s{S_WAVE}, 9
    s_cbranch_scc1 K_sp0
    v_subrev_u32 v{t0}, {36*PS_STRIDE}, v{t0}
    v_subrev_u32 v{t3}, {9*1024}, v{t2}
    ds_read_b128 v[40:43], v{t0}
    ds_read_b128 v[44:47], v{t0} offset:{12*PS_STRIDE}
    ds_read_b128 v[48:51], v{t0} offset:{24*PS_STRIDE}
    ds_read_b128 v[52:55], v{t0} offset:{36*PS_STRIDE}
    s_movk_i32 s{S_A}, 6144
    s_waitcnt vmcnt(0) lgkmcnt(0)
    buffer_store_dwordx4 v[40:43], v{t3}, {sr(S_RT,4)}, 0 offen sc1
    buffer_store_dwordx4 v[44:47], v{t3}, {sr(S_RT,4)}, 0 offen offset:3072 sc1
    buffer_store_dwordx4 v[48:51], v{t3}, {sr(S_RT,4)}, s{S_A} offen sc1
    buffer_store_dwordx4 v[52:55], v{t3}, {sr(S_RT,4)}, s{S_A} offen offset:3072 sc1
    s_branch K_sp1
K_sp0:
    s_waitcnt vmcnt(2)
K_sp1:""")
    else:
        if rot: a(f"    ds_read_b64 {vr(vTg,2)}, v{vZ} offset:{L_NONCE}")
        a(f"    ds_read_b128 v[72:75], v{t0}")
    for i in range(4):
        a(f"    ds_read_b32 v{vOf+i}, v{vBa+i} offset:{L_OFF}")
    a(f"""
    {"" if split else "s_waitcnt vmcnt(2)"}
    v_lshl_or_b32 v{vSrc}, v{vEa}, 16, v{vSrc}
    v_and_or_b32 v{vSrc+1}, v{vEa}, s{S_C}, v{vSrc+1}
    v_lshl_or_b32 v{vSrc+2}, v{vEa+1}, 16, v{vSrc+2}
    v_and_or_b32 v{vSrc+3}, v{vEa+1}, s{S_C}, v{vSrc+3}
    s_waitcnt lgkmcnt(4)""")
    if rot:
        a(f"""
    v_readfirstlane_b32 s{S_TAG}, v{vTg}
    v_readfirstlane_b32 s{S_TAG+1}, v{vTg+1}
    s_xor_b32 s{S_PO}, s{S_TAG}, s{S_TAG+1}
    s_mul_i32 s{S_PO}, s{S_PO}, 0x9E3779B1
    s_lshr_b32 s{S_PO}, s{S_PO}, 27
    s_add_u32 s{S_PO}, s{S_PO}, 3
    s_lshl_b32 s{S_PO}, s{S_PO}, 22
    s_add_u32 s{S_RT}, s{S_RT}, s{S_PO}
    s_addc_u32 s{S_RT+1}, s{S_RT+1}, 0""")
    a(f"""
    {"" if split else f"buffer_store_dwordx4 v[72:75], v{t2}, {sr(S_RT,4)}, 0 offen sc1"}""")
    def scatter(i):
        a(f"    v_add_u32_sdwa v{vBa+i}, v{vOf+i}, v{vRk+i} {SD} src0_sel:WORD_0 src1_sel:WORD_0")
        a(f"    v_add_u32_sdwa v{vOf+i}, v{vOf+i}, v{vRk+i} {SD} src0_sel:WORD_1 src1_sel:WORD_1")
        a(f"    ds_write_b32 v{vBa+i}, v{vSrc+i} offset:{L_RS}")
        a(f"    ds_write_b8 v{vOf+i}, v{vDst+i} offset:{L_RS}")
    a(f"    s_waitcnt lgkmcnt(0)")
    for i in range(4): scatter(i)
    stamp(a, 22)
    if qpos == "drain":
        a(f"""
    s_cmp_eq_u32 s{S_WAVE}, 8
    s_cbranch_scc1 K_nx2
    s_waitcnt vmcnt(1)""")
    a(f"""
    s_cmp_lt_u32 s{S_WAVE}, 10
    s_cbranch_scc1 K_nx2
    s_cmp_eq_u32 s{S_WAVE}, 11
    s_cbranch_scc1 K_x2
    buffer_store_dwordx4 v[76:79], v{t1}, {sr(S_RT,4)}, 0 offen sc1
    s_branch K_nx2
K_x2:
    s_bfm_b64 exec, {XTRA}, 0
    v_lshl_or_b32 v{vSrc+4}, v{vEa+2}, 16, v{vSrc+4}""")
    scatter(4)
    a(f"""
    s_mov_b64 exec, -1
K_nx2:
    s_mul_i32 s{S_A}, s2, {RSTRIDE}
    s_add_u32 s{S_RR}, s{S_WS}, s{S_A}
    s_addc_u32 s{S_RR+1}, s{S_WS+1}, 0
    s_mov_b32 s{S_RR+2}, 16512
    s_mov_b32 s{S_RR+3}, 0x00020000
    v_add_u32 v{t3}, {9216 if split else step}, v{t2}
    s_waitcnt lgkmcnt(0)""")
    stamp(a, 23)
    a(f"""
    s_barrier""")
    stamp(a, 5)
    a(f"""
    {f"s_cmp_ge_u32 s{S_WAVE}, 9" if split else ""}
    {"s_cbranch_scc1 K_co2" if split else ""}
    ds_read_b128 v[0:3], v{t2} offset:{L_RS}
    s_cmp_ge_u32 s{S_WAVE}, {8 if split else 5}
    s_cbranch_scc1 K_co1
    ds_read_b128 v[8:11], v{t2} offset:{L_RS + (9216 if split else step)}
    s_waitcnt lgkmcnt(0)
    buffer_store_dwordx4 v[8:11], v{t3}, {sr(S_RR,4)}, 0 offen sc1
K_co1:
    s_waitcnt lgkmcnt(0)
    buffer_store_dwordx4 v[0:3], v{t2}, {sr(S_RR,4)}, 0 offen sc1
K_co2:
""")
    if optval("cheat", ""):
        a(f"""
    s_cmp_ge_u32 s{S_WAVE}, {optval("cheat", "")}
    s_cbranch_scc1 K_ch0
    s_lshr_b32 s{S_A}, s2, 3
    s_mul_i32 s{S_A}, s{S_A}, {781*128}
    s_add_u32 s{S_A}, s{S_A}, {WS_P}
    v_lshl_add_u32 v14, v{T}, 7, s{S_A}
    global_load_dword v14, v14, {sr(S_WS,2)}
K_ch0:""")
    a(f"""
    s_mov_b32 s3, {NLOG2E:#x}
    v_lshlrev_b32 v{t0}, 1, v{J}
    v_add_u32 v{t0}, {L_WC}, v{t0}
""")
    stamp(a, 24)
    if cpos == "drain": emit_consts()
    if qpos == "drain":
        emit_q(); stamp(a, 7)
    stamp(a, 25)
    a(f"""
    s_cmp_lg_u32 s{S_WAVE}, 8
    s_cbranch_scc1 K_ntb
    ; wave 8: the launch tag and the table entries""")
    if rot:
        a(f"    v_cmp_ne_u32 vcc, 0, v{vTg}")
    else:
        a(f"""
    s_mov_b32 s{S_K}, 0
    s_waitcnt vmcnt({1 if split else 2})
K_tagp:
    v_cmp_ne_u32 vcc, 0, v{vTg}
    s_cbranch_vccnz K_tagok
    s_add_u32 s{S_K}, s{S_K}, 1
    s_cmp_gt_u32 s{S_K}, {POLL_MAX}
    s_cbranch_scc1 K_tagok
    global_load_dwordx2 {vr(vTg,2)}, v{vZ}, {sr(S_DBG,2)} sc1
    s_waitcnt vmcnt(0)
    s_branch K_tagp
K_tagok:
    ds_write_b64 v{vZ}, {vr(vTg,2)} offset:{L_NONCE}""")
    a(f"""
    v_and_b32 v{t3}, 0xfe000000, v{vTg}
    s_lshl_b32 s{S_B}, s2, 11
    s_add_u32 s{S_B}, s{S_B}, {WS_TAB}
    v_lshl_add_u32 v{t1}, v{L}, 4, s{S_B}""")
    for i in range(4):
        a(f"    v_lshrrev_b32 v{68+i}, 2, v{68+i}")
        a(f"    v_lshl_or_b32 v{68+i}, v{60+i}, 13, v{68+i}")
        a(f"    v_or_b32 v{vTb+2*i}, v{t3}, v{68+i}")
        a(f"    v_mov_b32 v{vTb+2*i+1}, v{vTg+1}")
    a(f"""
    s_waitcnt vmcnt(0) lgkmcnt(0)
    s_barrier                                ; B5
    s_cbranch_vccz K_slow
    global_store_dwordx4 v{t1}, {vr(vTb,4)}, {sr(S_WS,2)} sc1
    global_store_dwordx4 v{t1}, {vr(vTb+4,4)}, {sr(S_WS,2)} offset:1024 sc1
    s_branch K_b5j
K_ntb:
    {f"s_cmp_ge_u32 s{S_WAVE}, 9" if split else ""}
    {"s_cbranch_scc1 K_sp2" if split else ""}
    s_waitcnt vmcnt(0)
K_sp2:
    s_barrier
K_b5j:""")
    stamp(a, 6)
    a(f"""
    {"" if rot else f"ds_read_b64 {vr(vTg,2)}, v{vZ} offset:{L_NONCE}"}
    s_waitcnt lgkmcnt(0)
    v_readfirstlane_b32 s{S_TAG}, v{vTg}
    v_readfirstlane_b32 s{S_TAG+1}, v{vTg+1}
    s_cmp_eq_u32 s{S_TAG}, 0
    s_cbranch_scc1 K_slow
    s_cmp_lt_u32 s{S_WAVE}, 8
    s_cbranch_scc1 K_lb2
    s_sub_u32 s{S_A}, s{S_WAVE}, 8
    s_lshl_b32 s{S_A}, s{S_A}, 12
    s_add_u32 s{S_B}, s{S_A}, {L_W2}
    s_mov_b32 m0, s{S_B}
    v_lshl_add_u32 v{t3}, v{L}, 4, s{S_A}
    global_load_lds_dwordx4 v{t3}, {sr(S_W2,2)}
    global_load_lds_dwordx4 v{t3}, {sr(S_W2,2)} offset:1024
    global_load_lds_dwordx4 v{t3}, {sr(S_W2,2)} offset:2048
    global_load_lds_dwordx4 v{t3}, {sr(S_W2,2)} offset:3072
    s_branch K_lbJ
K_lb2:
    s_cmp_lg_u32 s{S_WAVE}, 7
    s_cbranch_scc1 K_lbJ
    s_mov_b32 m0, {L_B2}
    v_lshlrev_b32 v{t3}, 2, v{J}
    global_load_lds_dword v{t3}, {sr(S_B2,2)}
K_lbJ:""")
    if cpos == "post": emit_consts()
    if qpos == "post": emit_q()
    a(f"""
    s_lshl_b32 s{S_B}, s{S_WAVE}, 12
    s_add_u32 s{S_B}, s{S_B}, {L_XS}
    s_mov_b32 m0, s{S_B}
    v_mov_b32 v{t5}, v{vTa}""")
    if qpos == "post": stamp(a, 7)
    vT = 0
    vN = 4
    vAr = 6
    vR = 12
    vM = 28
    vA = 32
    vK = 48
    vB = 64
    vG = 80
    a(f"""
    s_mov_b32 s{S_RR}, s{S_WS}
    s_mov_b32 s{S_RR+1}, s{S_WS+1}
    s_mov_b32 s{S_RR+2}, {WS_P + N_NODES*256}
    s_mov_b32 s{S_A}, {128*2048}
    s_mov_b32 s{S_B}, {128*RSTRIDE}
    s_mov_b32 s{S_C}, 0xfe000000
    s_movk_i32 s{S_D}, 0xfc
    s_mov_b32 s{S_K}, 0
    {"s_sleep " + optval("fs", "0") if optval("fs", "0") != "0" else ""}
    s_mov_b64 {mask(0)}, -1
    s_mov_b64 {mask(1)}, -1
    v_mov_b32 v{vM}, 0
    v_mov_b32 v{vM+1}, 0
K_poll:
    s_mov_b64 exec, {mask(0)}
    s_cbranch_execz K_pl0
    buffer_load_dwordx2 {vr(vT,2)}, v{t5}, {sr(S_RR,4)}, 0 offen sc1
K_pl0:
    s_mov_b64 exec, {mask(1)}
    s_cbranch_execz K_pl1
    buffer_load_dwordx2 {vr(vT+2,2)}, v{t5}, {sr(S_RR,4)}, s{S_A} offen sc1
K_pl1:
    s_mov_b64 exec, -1
    s_waitcnt vmcnt(0)""")
    for i in range(2):
        a(f"    v_xor_b32 v{vN+i}, s{S_TAG}, v{vT+2*i}")
        a(f"    v_xor_b32 v{vAr+i}, s{S_TAG+1}, v{vT+2*i+1}")
        a(f"    v_and_or_b32 v{vAr+i}, v{vN+i}, s{S_C}, v{vAr+i}")
        a(f"    v_cmp_ne_u32 {mask(i)}, 0, v{vAr+i}")
    a(f"""
    s_add_u32 s{S_K}, s{S_K}, 1
    s_or_b64 vcc, {mask(0)}, {mask(1)}
    s_cbranch_scc0 K_got
    {"s_sleep " + optval("ps", "0") if optval("ps", "0") != "0" else ""}
    s_cmp_lt_u32 s{S_K}, {POLL_MAX}
    s_cbranch_scc1 K_poll
    s_mov_b32 s{S_MODE}, 1
    s_branch K_nor2a
K_got:""")
    if DIAG:
        a(f"    v_writelane_b32 v{V_STAMP}, s{S_K}, 20")
    stamp(a, 8)
    so = ["0", sr(S_B)]
    for i in range(2):
        a(f"    v_and_b32 v{vAr+i}, 0x1fff, v{vT+2*i}")
        a(f"    v_bfe_u32 v{vT+2*i+1}, v{vT+2*i}, 13, 12")
        a(f"    v_lshl_add_u32 v{vAr+i}, v{vAr+i}, 2, v{vSb}")
        a(f"    v_sub_u32 v{vN+i}, v{vT+2*i+1}, v{vG4}")
        a(f"    v_lshl_add_u32 v{vAr+2+i}, v{vT+2*i+1}, 2, v{vAr+i}")
        a(f"    v_cmp_lt_i32 {mask(4*i)}, 0, v{vN+i}")
        a(f"    v_lshl_add_u32 v{vAr+i}, v{vG4}, 2, v{vAr+i}")
        a(f"    v_add_u32 v{vAr+2+i}, v{vAr+2+i}, v{vG4}")
        a(f"    s_or_b64 exec, {mask(4*i)}, 1")
        a(f"    buffer_load_dword v{vM+i}, v{vAr+2+i}, {sr(S_RR,4)}, {so[i]} offen")
        a(f"    buffer_load_dwordx4 {vr(vR+4*i,4)}, v{vAr+i}, {sr(S_RR,4)}, {so[i]} offen")
        a(f"    s_mov_b64 exec, -1")
    for i in range(2):
        for k in range(1, 4):
            a(f"    v_cmp_lt_i32 {mask(4*i+k)}, {k}, v{vN+i}")
    a(f"""
    v_max_i32 v{t1}, v{vN}, v{vN+1}
    v_cmp_lt_i32 vcc, 24, v{t1}
    s_mov_b32 s{S_K}, 0
    s_cbranch_vccz K_nor2a
    s_mov_b32 s{S_K}, 1""")
    for i in range(2):
        a(f"    buffer_load_dword v{vM+2+i}, v{vAr+2+i}, {sr(S_RR,4)}, {so[i]} offen offset:24")
        a(f"    buffer_load_dwordx4 {vr(vR+8+4*i,4)}, v{vAr+i}, {sr(S_RR,4)}, {so[i]} offen offset:96")
        for k in range(4):
            a(f"    v_cmp_lt_i32 {mask(8+4*i+k)}, {24+k}, v{vN+i}")
    a(f"""
    v_cmp_lt_i32 vcc, 48, v{t1}
    s_cbranch_vccz K_nor2a
    s_mov_b32 s{S_MODE}, 1
K_nor2a:
    v_mov_b32 v{t4}, {L_FLAG}
    v_mov_b32 v{t0}, 4
    s_cmp_eq_u32 s{S_MODE}, 0
    s_cbranch_scc1 K_nofl
    ds_write_b32 v{t4}, v{t0}
K_nofl:
    s_waitcnt lgkmcnt(0)
    s_barrier
    ds_read_b32 v{t3}, v{t4}
    s_add_u32 s{S_RX}, s{S_WS}, {WS_P - 3072}
    s_addc_u32 s{S_RX+1}, s{S_WS+1}, 0
    {f"s_add_u32 s{S_RX}, s{S_RX}, s{S_PO}" if rot else ""}
    {f"s_addc_u32 s{S_RX+1}, s{S_RX+1}, 0" if rot else ""}
    {f"v_add_u32 v{vPf}, s{S_PO}, v{vPf}" if rot else ""}
    s_and_b32 s{S_RX+1}, s{S_RX+1}, 0xffff
    s_or_b32 s{S_RX+1}, s{S_RX+1}, 0x01000000
    s_mov_b32 s{S_RX+2}, {N_NODES}
    s_mov_b32 s{S_RX+3}, 0x00020000
    s_waitcnt lgkmcnt(0)
    v_cmp_ne_u32 vcc, 0, v{t3}
    s_cbranch_vccnz K_slow""")
    pf0 = int(optval("pf", "8"))
    a(f"""
    s_cmp_lt_u32 s{S_WAVE}, {pf0}
    s_cbranch_scc1 K_npf
    global_load_dword v{t5}, v{vPf}, {sr(S_WS,2)}
    s_waitcnt vmcnt(1)
    s_branch K_pfJ
K_npf:
    s_waitcnt vmcnt(0)
K_pfJ:""")
    stamp(a, 9)
    def rec_reg(k): return vR + k
    def count_cols(ks):
        for k in ks:
            a(f"    v_and_b32_sdwa v{vA+k}, v{vM+k//4}, s{S_D} {SD} src0_sel:BYTE_{k%4} src1_sel:DWORD")
        for k in ks:
            a(f"    s_mov_b64 exec, {mask(k)}")
            a(f"    ds_add_rtn_u32 v{vK+k}, v{vA+k}, v{t0}")
        a(f"    s_mov_b64 exec, -1")
    count_cols(range(8))
    a(f"""
    s_cmp_eq_u32 s{S_K}, 0
    s_cbranch_scc1 K_nor2b""")
    count_cols(range(8, 16))
    a(f"""
K_nor2b:
    v_lshlrev_b32 v{t1}, 2, v{L}
    v_cmp_gt_u32 vcc, s{S_NN}, v{L}
    s_waitcnt lgkmcnt(0)
    s_barrier""")
    stamp(a, 10)
    a(f"""
    ds_read_b32 v{V_CNT}, v{t1}
    s_waitcnt lgkmcnt(0)
    v_add_u32 v{vP}, 12, v{V_CNT}
    v_and_b32 v{vP}, -16, v{vP}
    v_max_u32 v{vP}, 0x80, v{vP}
    v_cndmask_b32 v{vP}, 0, v{vP}, vcc
    v_mov_b32 v{vS}, v{vP}""")
    wave_scan(a, vS)
    a(f"""
    s_nop 0
    v_readlane_b32 s{S_A}, v{vS}, 63
    v_sub_u32 v{vS}, v{vS}, v{vP}
    ds_write_b32 v{t1}, v{vS} offset:{L_SX}
    s_cmp_gt_u32 s{S_A}, {ENT_CAP*4}
    s_cbranch_scc1 K_slow""")
    def place_cols(ks, mid=None):
        ks = list(ks)
        for k in ks:
            a(f"    ds_read_b32 v{vB+k}, v{vA+k} offset:{L_SX}")
        if mid: a(mid)
        for n, k in enumerate(ks):
            if n % 2 == 0:
                a(f"    s_waitcnt lgkmcnt({len(ks)-2-n})")
            a(f"    v_add_u32 v{vK+k}, v{vB+k}, v{vK+k}")
        for k in ks:
            a(f"    s_mov_b64 exec, {mask(k)}")
            a(f"    ds_write_b32 v{vK+k}, v{rec_reg(k)} offset:{L_RL}")
        a(f"    s_mov_b64 exec, -1")
    place_cols(range(8), f"""
    s_add_u32 s{S_A}, s{S_A}, 127
    s_lshr_b32 s{S_TT}, s{S_A}, 7            ; tiles
    s_mul_i32 s{S_T0}, s{S_SLOT}, s{S_TT}
    s_add_u32 s{S_NT}, s{S_T0}, s{S_TT}
    s_mul_i32 s{S_T0}, s{S_T0}, 43691
    s_mul_i32 s{S_NT}, s{S_NT}, 43691
    s_lshr_b32 s{S_T0}, s{S_T0}, 19
    s_lshr_b32 s{S_NT}, s{S_NT}, 19
    s_sub_u32 s{S_NT}, s{S_NT}, s{S_T0}""")
    a(f"""
    s_cmp_eq_u32 s{S_K}, 0
    s_cbranch_scc1 K_nor2c
    s_waitcnt lgkmcnt(0)""")
    place_cols(range(8, 16))
    thr = [int(x) for x in optval("thr", "5_3_1").split("_")]
    a(f"""
K_nor2c:
    s_lshl_b32 s{S_A}, s{S_T0}, 7            ; ts*4
    s_add_u32 s{S_C}, s{S_A}, {L_RL}
    v_add_u32 v{V_AIDX}, s{S_C}, v{V_AIDX}
    v_cmp_ge_u32 {mask(0)}, s{S_A}, v{vS}
    v_subrev_u32 v{t0}, s{S_A}, v{vS}
    s_and_b64 {mask(0)}, {mask(0)}, vcc
    s_bcnt1_i32_b64 s{S_B}, {mask(0)}
    s_sub_u32 s{S_B}, s{S_B}, 1              ; n
    s_andn2_b64 {mask(0)}, vcc, {mask(0)}
    s_waitcnt lgkmcnt(0)
    s_barrier""")
    stamp(a, 11)
    for h in idx_reads(0): a(h)
    a(f"""
    v_add_u32 v{V_AENT}, s{S_C}, v{V_AENT}
    v_xor_b32 v{t3}, s{S_B}, v{HH}
    v_and_b32 v{t3}, 1, v{t3}
    s_lshl_b32 s{S_A}, s{S_B}, 9
    s_add_u32 s{S_A}, s{S_A}, {L_QT}
    v_lshl_add_u32 v{V_AQ}, v{t3}, 9, s{S_A}
    v_lshl_add_u32 v{V_AQ}, v{J}, 2, v{V_AQ}
    s_waitcnt lgkmcnt(0)""")
    for h in dma_ops(0): a(h)
    a(f"""
    s_cmp_ge_u32 s{S_WAVE}, {ndual}
    s_cbranch_scc1 K_e1
    s_add_u32 m0, m0, {L_T2 - L_XS}
    s_nop 0""")
    for h in dma_ops(1): a(h)
    a("K_e1:")
    for h in ent_reads(0, True): a(h)
    a(f"""
    v_bfe_u32 v{t4}, v{t0}, 4, 3
    v_add_u32 v{t4}, 1, v{t4}
    v_mul_u32_u24 v{t4}, {VAR_SIZE}, v{t4}
    v_lshrrev_b32 v{t0}, 7, v{t0}
    v_min_u32 v{t0}, 63, v{t0}
    v_cndmask_b32 v{t0}, 63, v{t0}, {mask(0)}
    v_lshlrev_b32 v{t0}, 2, v{t0}
    v_mov_b32 v{V_TAB}, 0
    ds_permute_b32 v{V_TAB}, v{t0}, v{t4}
    s_add_u32 s{S_A}, s{S_B}, s{S_SLOT}
    s_mul_i32 s{S_A}, s{S_A}, {ST_STRIDE}
    s_add_u32 s{S_A}, s{S_A}, {L_ST}
    v_lshl_add_u32 v{V_AS}, v{L}, 2, s{S_A}
    v_xor_b32 v{t3}, 1, v{t3}
    v_lshlrev_b32 v{V_INCQ}, 10, v{t3}
    v_cvt_f32_u32 v{vOne}, s{S_TT}
    v_rcp_f32 v{vOne}, v{vOne}
    v_add3_u32 v{vP}, v{vS}, v{vP}, -4
    v_lshrrev_b32 v{vS}, 7, v{vS}
    v_lshrrev_b32 v{vP}, 7, v{vP}
    v_cvt_f32_u32 v{vS}, v{vS}
    v_cvt_f32_u32 v{vP}, v{vP}
    v_add_f32 v{vS}, {f32bits((NW-0.5)/NW):#x}, v{vS}
    v_add_f32 v{vP}, {f32bits((NW-0.5)/NW):#x}, v{vP}
    v_mul_f32 v{vOne}, {f32bits(NW):#x}, v{vOne}
    v_mul_f32 v{vS}, v{vS}, v{vOne}
    v_mul_f32 v{vP}, v{vP}, v{vOne}
    v_cvt_u32_f32 v{vS}, v{vS}
    v_cvt_u32_f32 v{vP}, v{vP}
    v_sub_u32 v{vP}, v{vP}, v{vS}
    v_add_u32 v{vS}, v{vS}, v{L}
    v_lshl_or_b32 v{vS}, v{vP}, 8, v{vS}
    v_cndmask_b32 v{vS}, {ZROW}, v{vS}, vcc
    v_lshl_or_b32 v{V_CNT}, v{vS}, 16, v{V_CNT}
    ; jump table: entry offset inside a variant slot (priority steps near the end), exit at lane nt
    v_sub_u32 v{t0}, s{S_NT}, v{L}
    v_mov_b32 v{t3}, 64""")
    for i, th in enumerate(thr):
        a(f"    v_cmp_eq_u32 {mask(i)}, {th}, v{t0}")
    a(f"    v_cmp_eq_u32 {mask(3)}, 0, v{t0}")
    a(f"    v_mov_b32 v{t4}, K_exit - K_vbase")
    for i, th in enumerate(thr):
        a(f"    v_cndmask_b32 v{t3}, v{t3}, {44 + 8*i}, {mask(i)}")
    a(f"""
    s_waitcnt lgkmcnt(0)
    v_add_u32 v{V_TAB}, v{V_TAB}, v{t3}
    v_cndmask_b32 v{V_TAB}, v{V_TAB}, v{t4}, {mask(3)}
    s_mov_b32 s{S_K}, 1
    s_setprio 3
    v_readlane_b32 s{S_J}, v{V_TAB}, 0
    s_bitcmp1_b32 s{S_B}, 0
    s_cselect_b64 {sr(S_PAR,2)}, -1, 0
    s_movk_i32 s{S_PAD}, {PADREC}""")
    for h in mask_load(): a(h)
    a(f"""
    s_cmp_ge_u32 s{S_WAVE}, {ndual}
    s_cbranch_scc1 K_e2
    s_waitcnt vmcnt(4)""")
    stamp(a, 12)
    for h in tr_reads(0): a(h)
    a(f"    s_waitcnt vmcnt(0)")
    for h in tr_reads(1): a(h.replace(f"v{V_AA} ", f"v{vAA2} "))
    a(f"""
    s_add_u32 s{S_J}, s{S_MO}, 64 + K_vhN - K_varN
    s_waitcnt lgkmcnt(0)
    s_sub_u32 m0, m0, {L_T2 - L_XS}
    s_branch K_e4
K_e2:
    s_waitcnt vmcnt(0)""")
    stamp(a, 12)
    for h in tr_reads(0): a(h)
    a(f"    s_waitcnt lgkmcnt(0)")
    for h in dma_ops(1): a(h)
    a("K_e4:")
    for h in onehot_ops(): a(h)
    a(f"""
    s_add_u32 s{S_J}, s{S_J}, s{S_PC}
    s_addc_u32 s{S_J+1}, s{S_PC+1}, 0
    s_cmp_eq_u32 s{S_NT}, 0
    s_cbranch_scc1 K_exit""")
    a(small(0)); a(small(1))
    a("    s_nop 7")
    stamp(a, 13); stamp(a, 14, True)
    a(f"    s_setpc_b64 {sr(S_J,2)}")
    a(f".p2align 6")
    a(f"K_vbase:")
    for vi, b in enumerate([None] + list(range(8))):
        tile_variant(a, vi, b)
    a(f".p2align 3")
    a(f"K_exit:")
    stamp(a, 15); stamp(a, 16, True)
    for cts in ((0, 1), (2, 3)):
        flush_ops(a, cts)
        a("    s_nop 1")
        flush_ops2(a, cts)
    a(f"""
    v_cmp_eq_f32 vcc, 0, v{V_MN}
    s_cbranch_vccz K_join
    v_mov_b32 v64, 1
    v_mov_b32 v65, {L_FLAG}
    ds_write_b32 v65, v64
K_join:
    s_cmp_ge_u32 s{S_WAVE}, 4
    s_cbranch_scc1 K_idle
    v_and_b32 v136, 15, v{L}
    v_lshrrev_b32 v137, 4, v{L}              ; g
    s_lshl_b32 s{S_A}, s{S_WAVE}, 4
    v_add_u32 v136, s{S_A}, v136             ; node
    v_lshlrev_b32 v138, 2, v136
    ds_bpermute_b32 v139, v138, v{V_CNT}
    v_and_b32 v138, 16, v{L}
    v_lshlrev_b32 v138, 2, v138
    v_lshl_add_u32 v138, v{HH}, 5, v138
    v_bfe_u32 v140, v{L}, 2, 2
    v_add_u32 v140, v140, v138
    v_lshlrev_b32 v140, 7, v140
    v_and_b32 v141, 3, v{L}
    v_lshl_add_u32 v140, v141, 4, v140
    v_add_u32 v140, {L_W2}, v140""")
    for ot in range(4):
        for ks in range(4):
            for h in range(2):
                a(f"    ds_read_b64_tr_b16 {vr(16*ot+4*ks+2*h,2)}, v140 offset:{1024*ks+512*h+64*(ot>>1)+8*(ot&1)}")
    a(f"""
    v_lshlrev_b32 v141, 4, v137
    v_add_u32 v140, {L_B2}, v141
    ds_read_b128 v[128:131], v140
    ds_read_b128 v[132:135], v140 offset:64
    v_lshl_add_u32 v141, v136, 7, v141       ; output byte offset
    s_lshl_b32 s{S_A}, s{S_N0}, 7
    s_add_u32 s{S_RT}, s{S_OUT}, s{S_A}
    s_addc_u32 s{S_RT+1}, s{S_OUT+1}, 0
    s_lshl_b32 s{S_RT+2}, s{S_NN}, 7
    s_mov_b32 s{S_RT+3}, 0x00020000
    s_mov_b32 s3, {NLN2:#x}
    s_movk_i32 s{S_K}, {ST_STRIDE}
    s_waitcnt lgkmcnt(0)
    v_bfe_u32 v142, v139, 16, 8
    v_lshrrev_b32 v143, 24, v139
    v_and_b32 v139, 0xffff, v139
    v_cvt_f32_u32 v139, v139
    v_mul_f32 v139, {f32bits(0.25 * -1.4426950408889634):#x}, v139
    v_lshlrev_b32 v138, 2, v138
    v_add_u32 v138, {L_ST}, v138
    v_mad_u32_u24 v142, v142, s{S_K}, v138
    v_add_u32 v138, {ZROW*ST_STRIDE}, v138
    v_cmp_lt_u32 vcc, 0, v143
    v_add_u32 v144, {ST_STRIDE}, v142
    v_mov_b32 v146, 0x207
    v_cndmask_b32 v145, v138, v144, vcc""")
    vO = 148
    accs = [148, 149, 150, 151, 152, 153] + list(range(156, 166))
    ACC = [112, 116, 120, 124]
    for q in range(8):
        a(f"    v_lshlrev_b32 v{112+2*q}, 16, v{128+q}")
        a(f"    v_and_b32 v{113+2*q}, 0xffff0000, v{128+q}")
    for q in range(16):
        a(f"    v_mul_f32 v{112+q}, v139, v{112+q}")
    a(f"    s_barrier")
    stamp(a, 17)
    S0 = 64; S1 = 96
    for ks in range(2):
        pass
    a(f"    s_mov_b32 s{S_A}, 1")
    for ks in range(4):
        a(f"    ds_read_b128 {vr(S0+8*ks,4)}, v142 offset:{32*ks}")
        a(f"    ds_read_b128 {vr(S0+4+8*ks,4)}, v142 offset:{32*ks+16}")
    a(f"K_rows:")
    tmp = [96, 104, 128, 156]
    for ks in range(4):
        a(f"    ds_read_b128 {vr(tmp[ks],4)}, v145 offset:{32*ks}")
        a(f"    ds_read_b128 {vr(tmp[ks]+4,4)}, v145 offset:{32*ks+16}")
    a(f"""
    v_cmp_lt_u32 vcc, s{S_A}, v143
    v_add_u32 v144, {ST_STRIDE}, v144
    s_add_u32 s{S_A}, s{S_A}, 1""")
    for ks in range(4):
        a(f"    s_waitcnt lgkmcnt({6-2*ks})")
        for q in range(4):
            a(f"    v_pk_add_f32 {vr(S0+8*ks+2*q,2)}, {vr(S0+8*ks+2*q,2)}, {vr(tmp[ks]+2*q,2)}")
    a(f"""
    v_cndmask_b32 v145, v138, v144, vcc
    s_cbranch_vccnz K_rows""")
    def cv(ks):
        for q in range(4):
            a(f"    v_cvt_pk_bf16_f32 v{96+4*ks+q}, v{S0+8*ks+2*q}, v{S0+1+8*ks+2*q}")
    def mf(ks, ot):
        d = vr(ACC[ot], 4)
        a(f"    v_mfma_f32_16x16x32_bf16 {d}, {vr(16*ot+4*ks,4)}, {vr(96+4*ks,4)}, {d}")
    cv(0); cv(1)
    for ks in range(4):
        for ot in range(4):
            mf(ks, ot)
        if ks < 2: cv(ks + 2)
    a("    s_nop 4")
    for q in range(16):
        a(f"    v_mul_f32 v{64+q}, s3, v{112+q}")
    for q in range(8):
        a(f"    v_cvt_pk_bf16_f32 v{80+q}, v{64+2*q}, v{65+2*q}")
    osc = optval("o_", "sc1")
    a(f"    buffer_store_dwordx4 v[80:83], v141, {sr(S_RT,4)}, 0 offen {osc}")
    a(f"    buffer_store_dwordx4 v[84:87], v141, {sr(S_RT,4)}, 0 offen offset:64 {osc}")
    for q in range(16):
        a(f"    v_cmp_class_f32 {mask(q)}, v{64+q}, v146")
    for q in range(1, 16):
        a(f"    s_or_b64 {mask(0)}, {mask(0)}, {mask(q)}")
    a(f"""
    s_cbranch_scc0 K_fin
    v_mov_b32 v64, 1
    v_mov_b32 v65, {L_FLAG}
    ds_write_b32 v65, v64
    s_branch K_fin
K_idle:
    s_waitcnt lgkmcnt(0)
    s_barrier                                ; B9
K_fin:
    v_mov_b32 v65, {L_FLAG}
    s_waitcnt lgkmcnt(0)
    s_barrier                                ; B10
    ds_read_b32 v64, v65
    s_waitcnt lgkmcnt(0)
    v_cmp_ne_u32 vcc, 0, v64
    s_cbranch_vccnz K_slow""")
    if DIAG:
        a("    s_waitcnt vmcnt(0)")
        stamp(a, 18); stamp(a, 19, True)
        a(f"""
    v_writelane_b32 v{V_STAMP}, s{S_NT}, 21
    s_lshl_b32 s{S_A}, s2, 4
    s_add_u32 s{S_A}, s{S_A}, s{S_WAVE}
    s_lshl_b32 s{S_A}, s{S_A}, 8
    s_add_u32 s{S_A}, s{S_A}, {WS_STAMP}
    v_lshl_add_u32 v64, v{L}, 2, s{S_A}
    s_mov_b64 exec, 0xffffffff
    global_store_dword v64, v{V_STAMP}, {sr(S_WS,2)}
    global_store_dword v64, v{V_TRACE}, {sr(S_WS,2)} offset:128""")
    if optval("spin", "") != "":
        stamp(a, 18)
        a(f"""
    s_lshl_b32 s{S_A}, s2, 4
    s_add_u32 s{S_A}, s{S_A}, s{S_WAVE}
    s_cmp_lg_u32 s{S_A}, {100*16 + int(optval('sw', '0'))}
    s_cbranch_scc1 K_end
    s_lshl_b32 s{S_A}, s{S_TAG+1}, 7
    s_lshr_b32 s{S_B}, s{S_TAG}, 25
    s_or_b32 s{S_A}, s{S_A}, s{S_B}
    {"s_mov_b32 s100, s%d" % S_A if optval("spin", "") == "0" else ""}
    s_sub_u32 s{S_B}, s100, s{S_A}
    s_min_u32 s{S_B}, s{S_B}, 20000
    s_mul_i32 s{S_B}, s{S_B}, {optval("mul", "10")}
    s_add_u32 s{S_B}, s{S_B}, {optval("base", "10000")}
K_spin:
    s_memrealtime s[100:101]
    s_waitcnt lgkmcnt(0)
    s_sub_u32 s100, s100, s{S_A}
    s_cmp_lt_u32 s100, s{S_B}
    s_cbranch_scc1 K_spin""")
    a(f"""
K_end:
    s_endpgm
K_slow:
    s_setprio 0
    s_mov_b32 s16, s{S_N0}
    s_mov_b32 s17, s{S_NN}
    s_mov_b32 s18, s{S_WAVE}""")
    gen_slow(a, 16, 17, 18, L, NLOG2E, NW=NW)
    a("    s_endpgm")

def main():
    global DIAG
    out = sys.argv[1]
    DIAG = "diag" in sys.argv[2:] or "lite" in sys.argv[2:]
    OPT.update(sys.argv[2:])
    a = Asm()
    a(f"""; Edge-featured MPNN layer: out[n] = sum_(e: dst=n) (silu([x[src],x[dst],e] w1 + b1) w2 + b2)
; @launch grid=(256,1,1) block=({NT_},1,1) lds={L_END}
.amdgcn_target "amdgcn-amd-amdhsa--gfx950"
.text""")
    gen_kernel(a)
    a(f"""
.section .rodata,"a"
.p2align 6
.amdhsa_kernel {KNAME}
  .amdhsa_next_free_vgpr {NVGPR}
  .amdhsa_next_free_sgpr 102
  .amdhsa_accum_offset {NVGPR}
  .amdhsa_group_segment_fixed_size 0
  .amdhsa_kernarg_size 88
  .amdhsa_user_sgpr_count 2
  .amdhsa_user_sgpr_kernarg_segment_ptr 1
  .amdhsa_system_sgpr_workgroup_id_x 1
  .amdhsa_float_denorm_mode_32 3
.end_amdhsa_kernel""")
    open(out, "w").write(a.text())

if __name__ == "__main__":
    main()
```

```python
import sys, struct
from slow import gen_slow

NAME = "standalone__edge_featured_mpnn_mpnn__graph"
KNAME = NAME + "_kernel"
N_NODES = 12500
NB = 49
NW = 12
NT_ = 64 * NW
MAINE = 4 * NT_
XTRA = 53
RSTRIDE = 16640

WS_REC = 0
WS_TAB = 0x420000
WS_P = 0x4C0000
WS_STAMP = 0xA00000

L_FLAG = 288
L_NONCE = 296
L_SX = 4096
L_Z = 320
L_RL = 4352
ENT_CAP = 3584
L_ST = L_RL + (ENT_CAP + 64) * 4
ST_STRIDE = 528
ZROW = NB + NW
L_QT = (L_ST + (ZROW + 1) * ST_STRIDE + 255) // 256 * 256
L_XS = L_QT + 56 * 512
L_W2 = L_XS + NW * 4096
L_B2 = L_W2 + 16384
L_T2 = L_B2 + 256
L_END = L_T2 + 16384
L_RS = L_ST
L_H1 = L_ST + 16640
L_OFF = L_H1 + 1024
L_W1 = L_XS
L_WC = L_XS + 32768
L_PS = L_WC + 512
L_XR = L_W2
PS_STRIDE = 272
assert L_XS % 256 == 0
assert L_END <= 163840 and L_H1 + 3072 <= L_ST + ZROW * ST_STRIDE and L_OFF + 1024 < 65536 and L_PS + 56 * PS_STRIDE <= L_W2

def f32bits(x):
    return struct.unpack("<I", struct.pack("<f", x))[0]
NLOG2E = f32bits(-1.4426950408889634)
NLN2 = f32bits(-0.6931471805599453)
PADREC = 0x3FFF
POLL_MAX = 4000

class Asm:
    def __init__(self):
        self.l = []
    def __call__(self, s=""):
        for x in s.strip("\n").split("\n"):
            self.l.append(x)
    def text(self):
        return "\n".join(self.l) + "\n"

def vr(a, n=1):
    return f"v{a}" if n == 1 else f"v[{a}:{a+n-1}]"
def sr(a, n=1):
    return f"s{a}" if n == 1 else f"s[{a}:{a+n-1}]"

DIAG = False
OPT = set()
def optval(prefix, default):
    for o in OPT:
        if o.startswith(prefix):
            return o[len(prefix):]
    return default

V_D = 0; V_E = 64; V_A5 = 96; V_B5 = 98; V_ND = 106; V_T = 122; V_R = 126; V_O = 128; V_IX = 132
V_AA = 140; V_AIDX = 141; V_AENT = 142; V_AQ = 143; V_INCQ = 144; V_AS = 145; V_MN = 146; V_PSEL = 147
V_TAB = 148; V_CNT = 149; V_B2 = 150; V_LANE = 154; V_TID = 155
V_J = 156; V_HH = 157
V_STAMP = 167; V_TRACE = 166
NVGPR = 168
S_X = 4; S_E = 6; S_SRC = 8; S_DST = 10; S_W1 = 12; S_B1 = 14; S_W2 = 16; S_B2 = 18; S_OUT = 20; S_DBG = 22; S_WS = 24
S_BIN = 26; S_N0 = 27; S_NN = 28; S_WAVE = 29; S_MODE = 30; S_K = 31; S_PC = 32; S_J = 34
S_RX = 36; S_RT = 40; S_RR = 44; S_P = 48
S_T0 = 56; S_NT = 57; S_TT = 58; S_SLOT = 59; S_A = 60; S_B = 61; S_C = 62; S_D = 63; S_TAG = 64
S_M = 66
S_PO = 98
S_OH = 66; S_PAR = 68; S_PAD = 70; S_MO = 71
def mask(k): return sr(S_M + 2*k, 2)

def stamp(a, k, real=False):
    if optval("spin", "") != "":
        op = "s_memtime" if "cyc" in OPT else "s_memrealtime"
        if int(optval("spin", "")) == k:
            a(f"    {op} s[100:101]\n    s_waitcnt lgkmcnt(0)")
        if optval("from", "") and int(optval("from", "")) == k:
            a(f"    {op} s[100:101]\n    s_waitcnt lgkmcnt(0)\n    s_mov_b32 s99, s100")
        return
    if not DIAG:
        return
    if "lite" in OPT and k not in (14, 16, 19):
        return
    a(f"    {'s_memrealtime' if real else 's_memtime'} s[100:101]")
    a(f"    s_waitcnt lgkmcnt(0)")
    a(f"    v_writelane_b32 v{V_STAMP}, s100, {k}")

def wave_scan(a, v):
    for sh in (1, 2, 4, 8):
        a(f"    s_nop 1")
        a(f"    v_add_u32_dpp v{v}, v{v}, v{v} row_shr:{sh} row_mask:0xf bank_mask:0xf")
    a(f"    s_nop 1")
    a(f"    v_add_u32_dpp v{v}, v{v}, v{v} row_bcast:15 row_mask:0xa bank_mask:0xf")
    a(f"    s_nop 1")
    a(f"    v_add_u32_dpp v{v}, v{v}, v{v} row_bcast:31 row_mask:0xc bank_mask:0xf")

SD = "dst_sel:DWORD dst_unused:UNUSED_PAD"

def small(c):
    d = vr(V_D + 16*c, 16)
    return f"    v_mfma_f32_32x32x8_bf16 {d}, {vr(V_A5,2)}, {vr(V_B5+2*c,2)}, {d}"
def tr_reads(h):
    return [f"    ds_read_b64_tr_b16 {vr(V_D+16*(2*h+k)+2*u,2)}, v{V_AA} offset:{512*u+64*k}" for u in range(8) for k in range(2)]
def ent_reads(off, q):
    h = [f"    ds_read_b32 v{V_A5+1}, v{V_AENT} offset:{off}"]
    if q:
        h += [f"    ds_read_b32 v{V_B5+2*c}, v{V_AQ} offset:{128*c}" for c in range(4)]
    return h
def idx_reads(off):
    return [f"    ds_read_u16 v{V_IX+2*m}, v{V_AIDX} offset:{off + 32*m}" for m in range(4)]
def dma_ops(h):
    return [f"    buffer_load_dwordx4 {vr(V_IX+2*m,2)}, {sr(S_RX,4)}, s{S_P+4*h+m} idxen offen offset:{1024*m} {optval('g_', '')} lds" for m in range(4)]

def x_phase(a, mf_cts, ex_cts, head, pre, plain, tail):
    es = [f"    v_exp_f32 v{V_E+16*k+2*u+b}, v{V_D+16*c+2*u+b}" for u in range(8) for k, c in enumerate(ex_cts) for b in range(2)]
    n1 = 22
    for h in head: a(h)
    for e in es[:n1-(4 if pre else 2)]: a(e)
    for p in plain: a(p)
    a(f"    s_waitcnt lgkmcnt(0)")
    if pre:
        a(pre[0]); a(es[n1-4]); a(pre[1]); a(pre[2]); a(es[n1-3]); a(pre[3])
    for e in es[n1-2:n1]: a(e)
    a(small(mf_cts[0]))
    for e in es[n1:n1+4]: a(e)
    a(small(mf_cts[1]))
    for e in es[n1+4:]: a(e)
    for t in tail: a(t)
    a(".p2align 3")

def flush_ops(a, cts):
    for k, c in enumerate(cts):
        D = V_ND + 4*c + 2
        a(f"    v_mul_f32 v{V_R+k}, v{D}, v{D+1}")
    for k, c in enumerate(cts):
        N = V_ND + 4*c; D = N + 2
        a(f"    v_pk_mul_f32 {vr(V_O+2*k,2)}, {vr(N,2)}, {vr(D,2)} op_sel:[0,1] op_sel_hi:[1,0]")
    for k, c in enumerate(cts):
        a(f"    v_rcp_f32 v{V_R+k}, v{V_R+k}")
    for k, c in enumerate(cts):
        a(f"    v_add_f32 v{V_O+2*k}, v{V_O+2*k}, v{V_O+2*k+1}")
    for k, c in enumerate(cts):
        a(f"    v_mul_f32 v{V_O+2*k}, v{V_O+2*k}, v{V_R+k}")
def flush_ops2(a, cts):
    a(f"    v_permlane32_swap_b32 v{V_O}, v{V_O+2}")
    a(f"    v_min3_f32 v{V_MN}, v{V_MN}, v{V_R}, v{V_R+1}")
    a(f"    v_add_f32 v{V_O}, v{V_O}, v{V_O+2}")
    a(f"    ds_write_b32 v{V_AS}, v{V_O} offset:{128*cts[0]}")

def y_phase(a, cts, b):
    nsrc = [V_ND + 4*c for c in cts]
    for u in range(8):
        if u == b:
            flush_ops(a, cts)
            for k, c in enumerate(cts):
                a(f"    v_pk_add_f32 {vr(V_ND+4*c+2,2)}, {vr(V_E+16*k+2*u,2)}, 1.0 op_sel_hi:[1,0]")
            flush_ops2(a, cts)
            for k, c in enumerate(cts):
                p = V_D + 16*c + 2*u
                if u == 7:
                    a(f"    v_pk_mov_b32 {vr(V_ND+4*c,2)}, {vr(p,2)}, {vr(p,2)} op_sel:[0,1]")
                else:
                    nsrc[k] = p
            continue
        for k, c in enumerate(cts):
            a(f"    v_pk_fma_f32 {vr(V_T+2*k,2)}, {vr(V_D+16*c+2*u,2)}, {vr(V_ND+4*c+2,2)}, {vr(nsrc[k],2)}")
        for k, c in enumerate(cts):
            D = V_ND + 4*c + 2
            a(f"    v_pk_fma_f32 {vr(D,2)}, {vr(D,2)}, {vr(V_E+16*k+2*u,2)}, {vr(D,2)}")
        for k, c in enumerate(cts):
            a(f"    v_pk_fma_f32 {vr(V_ND+4*c,2)}, {vr(nsrc[k],2)}, {vr(V_E+16*k+2*u,2)}, {vr(V_T+2*k,2)}")
            nsrc[k] = V_ND + 4*c

def onehot_ops():
    return [f"    v_cmp_ne_u32 vcc, s{S_PAD}, v{V_A5+1}",
            f"    s_xor_b64 {sr(S_OH,2)}, {sr(S_OH,2)}, {sr(S_PAR,2)}",
            f"    s_and_b64 vcc, vcc, {sr(S_OH,2)}",
            f"    v_cndmask_b32 v{V_A5}, 0, v{V_PSEL}, vcc"]
def mask_load():
    return [f"    s_sub_u32 s{S_MO}, s{S_J}, 4", f"    s_andn2_b32 s{S_MO}, s{S_MO}, 63",
            f"    s_load_dwordx2 {sr(S_OH,2)}, {sr(S_PC,2)}, s{S_MO}"]
def row_mask(b):
    sw = lambda i: (i & 0x19) | ((i & 2) << 1) | ((i & 4) >> 1)
    return sum(1 << i for i in range(32) if b is None or sw(i) < 4*b)

VAR_SIZE = 1792
def tile_variant(a, vi, b):
    name = "N" if b is None else str(b)
    a(f".org K_vbase + {VAR_SIZE*vi}, 0")
    a(f".long {row_mask(b):#x}, {row_mask(b) ^ 0xffffffff:#x}")
    a(f".org K_vbase + {VAR_SIZE*vi + 64 - 20}, 0")
    a(f"    s_setprio 2\n    s_branch K_var{name}\n    s_setprio 1\n    s_branch K_var{name}\n    s_setprio 0")
    a(f"K_var{name}:")
    bnd = b is not None
    if "trace" in OPT:
        a(f"    s_memtime s[100:101]\n    s_mov_b32 s{S_A}, m0\n    s_mov_b32 m0, s{S_K}\n    s_waitcnt lgkmcnt(0)")
        a(f"    v_writelane_b32 v{V_TRACE}, s100, m0\n    s_mov_b32 m0, s{S_A}")
    plain0 = []
    if bnd:
        plain0 = [f"    v_add_u32 v{V_AQ}, v{V_AQ}, v{V_INCQ}", f"    v_xor_b32 v{V_INCQ}, 0x400, v{V_INCQ}"]
    plain0.append(f"    v_readlane_b32 s{S_J}, v{V_TAB}, s{S_K}")
    x_phase(a, (2, 3), (0, 1), ["    s_waitcnt vmcnt(0)"] + tr_reads(1) + [f"K_vh{name}:"] + idx_reads(128), [], plain0,
            dma_ops(0) + [f"    s_add_u32 s{S_K}, s{S_K}, 1"] + mask_load() + ([f"    s_not_b64 {sr(S_PAR,2)}, {sr(S_PAR,2)}"] if bnd else []))
    y_phase(a, (0, 1), b)
    plain1 = [f"    v_add_u32 v{V_AENT}, 0x80, v{V_AENT}", f"    v_add_u32 v{V_AIDX}, 0x80, v{V_AIDX}"]
    x_phase(a, (0, 1), (2, 3), ["    s_waitcnt vmcnt(0)"] + ent_reads(128, bnd) + tr_reads(0),
            onehot_ops(), plain1,
            dma_ops(1) + [f"    s_add_u32 s{S_J}, s{S_J}, s{S_PC}", f"    s_addc_u32 s{S_J+1}, s{S_PC+1}, 0"])
    y_phase(a, (2, 3), b)
    if bnd:
        a(f"    v_add_u32 v{V_AS}, {ST_STRIDE}, v{V_AS}")
    a(f"    s_setpc_b64 {sr(S_J,2)}")

def gen_kernel(a):
    L = V_LANE; T = V_TID; J = V_J; HH = V_HH
    t0, t1, t2, t3, t4, t5 = 158, 159, 160, 161, 162, 163
    vDst = 0
    vSrc = 8
    vEa = 14
    vBa = 20
    vRk = 26
    vOf = 32
    vX = 40
    vWf = 56
    vAc = 72
    vTb = 88
    vZ = 128
    vPad = 56
    vWa = 38; vXa = 88; vTg = 18; vTa = 39; vC8 = 37; vWp = 31
    vG4 = 164; vSb = 165
    vS = 122; vP = 123; vOne = 124; vAA2 = 125; vPf = 126
    a(f"""
.p2align 8
.globl {KNAME}
.type {KNAME},@function
{KNAME}:
    s_cmp_ge_u32 s2, 256
    s_cbranch_scc1 K_end
    s_load_dwordx8 s[4:11], s[0:1], 0
    s_load_dwordx8 s[12:19], s[0:1], 32      ; w1, b1, w2, b2
    s_load_dwordx4 s[20:23], s[0:1], 64
    s_load_dwordx2 s[24:25], s[0:1], 80      ; ws
    s_memrealtime {sr(S_TAG,2)}
    v_lshrrev_b32 v1, 6, v0
    v_mov_b32 v{T}, v0
    v_readfirstlane_b32 s{S_WAVE}, v1
    v_and_b32 v{L}, 63, v0
    s_mul_i32 s3, s2, {MAINE*4}
    v_lshl_add_u32 v{t0}, v0, 4, s3          ; byte offset into src/dst
    v_lshrrev_b32 v{t1}, 1, v{t0}
    s_and_b32 s{S_BIN}, s2, 7
    s_lshl_b32 s{S_BIN}, s{S_BIN}, 5
    s_lshr_b32 s3, s2, 3
    s_add_u32 s{S_BIN}, s{S_BIN}, s3
    s_mul_i32 s{S_N0}, s{S_BIN}, {NB}
    s_sub_u32 s{S_NN}, {N_NODES}, s{S_N0}
    s_min_u32 s{S_NN}, s{S_NN}, {NB}
    v_and_b32 v{J}, 31, v0
    v_bfe_u32 v{HH}, v0, 5, 1
    s_mov_b32 s{S_MODE}, 0
    v_mov_b32 v{vZ}, 0
    v_mov_b32 v{vZ+1}, 0
    v_mov_b32 v{vZ+2}, 0
    v_mov_b32 v{vZ+3}, 0
    v_lshlrev_b32 v{t2}, 2, v0""")
    if DIAG:
        a(f"    v_mov_b32 v{V_STAMP}, 0\n    v_mov_b32 v{V_TRACE}, 0")
        stamp(a, 0, True); stamp(a, 1)
    wc = lambda c: V_B5 + 2*c
    vB1 = 97
    tc = 17
    ndual = int(optval("dual", "0"))
    cpos = optval("c_", "drain"); qpos = optval("q_", "post")
    def emit_consts():
        a(f"""
    v_and_b32 v{tc}, 7, v{L}
    v_lshlrev_b32 v{V_IX+1}, 4, v{tc}
    v_mov_b32 v{V_IX+3}, v{V_IX+1}
    v_mov_b32 v{V_IX+5}, v{V_IX+1}
    v_mov_b32 v{V_IX+7}, v{V_IX+1}
    v_and_b32 v{tc}, 8, v{L}
    v_lshl_add_u32 v{tc}, v{tc}, 4, v{vC8}
    v_lshl_add_u32 v{tc}, v{HH}, 8, v{tc}
    s_lshl_b32 s{S_B}, s{S_WAVE}, 12
    s_add_u32 s{S_B}, s{S_B}, {L_XS}
    v_add_u32 v{tc}, s{S_B}, v{tc}
    v_and_b32 v{t3}, 4, v{L}
    v_cmp_ne_u32 vcc, 0, v{t3}
    v_mov_b32 v{t3}, {L_Z}
    v_mov_b32 v{V_PSEL}, 0x3f803f80
    v_cndmask_b32 v{V_AA}, v{t3}, v{tc}, vcc
    v_add_u32 v{tc}, {L_T2 - L_XS}, v{tc}
    v_cndmask_b32 v{vAA2}, v{t3}, v{tc}, vcc
    v_and_b32 v{V_AENT}, 0x19, v{L}
    v_and_b32 v{tc}, 2, v{L}
    v_lshl_add_u32 v{V_AENT}, v{tc}, 1, v{V_AENT}
    v_bfe_u32 v{tc}, v{L}, 2, 1
    v_lshl_add_u32 v{V_AENT}, v{tc}, 1, v{V_AENT}
    v_lshlrev_b32 v{V_AENT}, 2, v{V_AENT}
    v_lshrrev_b32 v{V_AIDX}, 3, v{L}
    v_lshlrev_b32 v{V_AIDX}, 2, v{V_AIDX}""")
        for h in range(2):
            for m in range(4):
                a(f"    s_movk_i32 s{S_P+4*h+m}, {3072 - 1024*m + 128*h}")
        for c in range(4):
            a(f"    v_mov_b32 v{V_ND+4*c}, 0")
            a(f"    v_mov_b32 v{V_ND+4*c+1}, 0")
            a(f"    v_mov_b32 v{V_ND+4*c+2}, 1.0")
            a(f"    v_mov_b32 v{V_ND+4*c+3}, 1.0")
        a(f"""
    v_mov_b32 v{V_MN}, 1.0
    s_and_b32 s{S_A}, s{S_WAVE}, 3
    s_mul_i32 s{S_A}, s{S_A}, 3
    s_lshr_b32 s{S_B}, s{S_WAVE}, 2
    s_add_u32 s{S_SLOT}, s{S_A}, s{S_B}
    s_getpc_b64 {sr(S_PC,2)}
K_pc:
    s_add_u32 s{S_PC}, s{S_PC}, K_vbase - K_pc
    s_addc_u32 s{S_PC+1}, s{S_PC+1}, 0
    ; segment mapping of phase 2: segment 128 i + t/6, lane group g = t%6
    v_mul_u32_u24 v{tc}, 10923, v{T}
    v_lshrrev_b32 v{tc}, 16, v{tc}
    v_mad_i32_i24 v{vG4}, v{tc}, -6, v{T}
    v_lshlrev_b32 v{vG4}, 2, v{vG4}          ; 4g
    v_mul_u32_u24 v{vSb}, {RSTRIDE}, v{tc}
    s_lshr_b32 s{S_A}, s2, 3
    s_mul_i32 s{S_A}, s{S_A}, {781*128}
    s_add_u32 s{S_A}, s{S_A}, {WS_P}
    v_lshl_add_u32 v{vPf}, v{T}, 7, s{S_A}
    s_lshr_b32 s{S_B}, s{S_BIN}, 2
    s_lshl_b32 s{S_B}, s{S_B}, 4
    s_and_b32 s{S_A}, s{S_BIN}, 1
    s_lshl_b32 s{S_A}, s{S_A}, 3
    s_add_u32 s{S_B}, s{S_B}, s{S_A}
    s_and_b32 s{S_A}, s{S_BIN}, 2
    s_lshl_b32 s{S_A}, s{S_A}, 9
    s_add_u32 s{S_B}, s{S_B}, s{S_A}
    s_add_u32 s{S_B}, s{S_B}, {WS_TAB}
    v_lshl_add_u32 v{vTa}, v{tc}, 11, s{S_B} ; table entry offset""")
    def emit_q():
        a(f"""
    s_cmp_ge_u32 s{S_WAVE}, 8
    s_cbranch_scc1 K_notQ
    ; ---- Q tile while the stores drain
    s_lshl_b32 s{S_A}, s{S_D}, 6
    v_add_u32 v{t3}, s{S_A}, v{t0}
    ds_read_u16 v{vB1}, v{t3} offset:256
    v_add_u32 v{tc}, v{vWa}, v{vC8}""")
        for s_ in range(4):
            for h in range(2):
                a(f"    ds_read_b64_tr_b16 {vr(vWf+4*s_+2*h,2)}, v{tc} offset:{16384+4096*s_+1024*h}")
        a(f"""
    s_and_b32 s{S_A}, s{S_WAVE}, 1
    s_lshl_b32 s{S_B}, s{S_A}, 14
    s_lshl_b32 s{S_C}, s{S_D}, 7
    s_add_u32 s{S_B}, s{S_B}, s{S_C}
    s_add_u32 s{S_B}, s{S_B}, {L_QT}
    v_lshl_add_u32 v{tc}, v{HH}, 11, s{S_B}
    v_lshl_add_u32 v{tc}, v{J}, 2, v{tc}""")
        for s_ in range(4):
            a(f"    s_waitcnt lgkmcnt({6-2*s_})")
            cin = "0" if s_ == 0 else vr(vAc, 16)
            a(f"    v_mfma_f32_32x32x16_bf16 {vr(vAc,16)}, {vr(vX+4*s_,4)}, {vr(vWf+4*s_,4)}, {cin}")
        a(f"""
    v_lshlrev_b32 v{vB1}, 16, v{vB1}
    v_mul_f32 v{vB1}, s3, v{vB1}
    s_nop 9""")
        def qrow(r):
            a(f"    v_fma_f32 v{vAc+r}, v{vAc+r}, s3, v{vB1}")
            a(f"    v_cvt_pk_bf16_f32 v{vWf+r}, v{vZ}, v{vAc+r}")
            a(f"    v_sub_f32 v{vWf+r}, v{vAc+r}, v{vWf+r}")
            a(f"    v_cvt_pk_bf16_f32 v{vWf+r}, v{vAc+r}, v{vWf+r}")
            a(f"    ds_write_b32 v{tc}, v{vWf+r} offset:{512*(8*(r>>2)+(r&3))}")
        for r in range(12): qrow(r)
        a(f"""
    s_cmp_eq_u32 s{S_A}, 1
    s_cbranch_scc1 K_notQ""")
        for r in range(12, 16): qrow(r)
        a(f"""
K_notQ:
    ds_read_u16 v{wc(0)}, v{t0}
    ds_read_u16 v{wc(1)}, v{t0} offset:64
    ds_read_u16 v{wc(2)}, v{t0} offset:128
    ds_read_u16 v{wc(3)}, v{t0} offset:192
    v_cmp_lt_u32 vcc, 31, v{L}
    s_waitcnt lgkmcnt(0)""")
        for c in range(4):
            a(f"    v_lshlrev_b32 v{wc(c)}, 16, v{wc(c)}")
            a(f"    v_mul_f32 v{wc(c)}, s3, v{wc(c)}")
            a(f"    v_cvt_pk_bf16_f32 v{t3}, v{vZ}, v{wc(c)}")
            a(f"    v_sub_f32 v{t4}, v{wc(c)}, v{t3}")
            a(f"    v_cvt_pk_bf16_f32 v{t4}, v{vZ}, v{t4}")
            a(f"    v_cndmask_b32 v{V_B5+2*c+1}, v{t3}, v{t4}, vcc")
    step = NT_ * 16
    wc = lambda c: V_B5 + 2*c
    vB1 = 97
    a(f"""
    s_waitcnt lgkmcnt(0)
    global_load_dwordx4 {vr(vDst,4)}, v{t0}, {sr(S_DST,2)}
    {f"s_add_u32 s{S_WS}, s{S_WS}, {int(optval('wsoff', '0')) << 20}" if optval('wsoff', '') else ""}
    {f"s_addc_u32 s{S_WS+1}, s{S_WS+1}, 0" if optval('wsoff', '') else ""}
    {f"v_writelane_b32 v{V_STAMP}, s{S_TAG}, 0" if "lite" in OPT else ""}
    ds_write_b32 v{t2}, v{vZ} offset:{L_H1}
    s_cmp_lg_u32 s{S_WAVE}, 11
    s_cbranch_scc1 K_ld1
    s_mul_i32 s{S_A}, s2, {XTRA}
    s_add_u32 s{S_A}, s{S_A}, {256*MAINE}
    v_min_u32 v{t5}, {XTRA-1}, v{L}
    v_add_lshl_u32 v{t5}, v{t5}, s{S_A}, 2
    v_lshrrev_b32 v{t4}, 1, v{t5}
    global_load_dword v{vDst+4}, v{t5}, {sr(S_DST,2)}
    global_load_dword v{vSrc+4}, v{t5}, {sr(S_SRC,2)}
    global_load_ushort v{vEa+2}, v{t4}, {sr(S_E,2)}
K_ld1:""")
    if "nocpf" not in OPT:
        a(f"""
    ; the first workgroups pull the rest of the code into their die's L2
    s_cmp_ge_u32 s2, 32
    s_cbranch_scc1 K_ld2
    s_sub_u32 s{S_A}, s{S_WAVE}, 5
    s_cmp_ge_u32 s{S_A}, 3
    s_cbranch_scc1 K_ld2
    s_lshl_b32 s{S_A}, s{S_A}, 13
    v_lshl_add_u32 v{t5}, v{L}, 7, s{S_A}
    s_getpc_b64 {sr(S_J,2)}
    global_load_dword v{t4}, v{t5}, {sr(S_J,2)}
K_ld2:""")
    if optval("inv", ""):
        a(f"""
    s_cmp_ge_u32 s2, 8
    s_cbranch_scc1 K_ld4
    s_cmp_lg_u32 s{S_WAVE}, 3
    s_cbranch_scc1 K_ld4
    buffer_inv {optval("inv", "").replace("_", " ")}
K_ld4:""")
    if "tlb" in OPT:
        a(f"""
    s_cmp_lg_u32 s{S_WAVE}, 4
    s_cbranch_scc1 K_ld3
    v_mul_u32_u24 v{t5}, {4*RSTRIDE}, v{L}
    v_add_u32 v{t5}, {RSTRIDE - 4}, v{t5}
    s_mov_b32 s{S_A}, {WS_P - 4096}
    v_writelane_b32 v{t5}, s{S_A}, 1
    s_mov_b32 s{S_A}, {WS_P + N_NODES*256 + 4096}
    v_writelane_b32 v{t5}, s{S_A}, 3
    global_load_dword v{t4}, v{t5}, {sr(S_WS,2)}
K_ld3:""")
    a(f"""
    s_lshl_b32 s{S_A}, s2, 4
    s_add_u32 s{S_A}, s{S_A}, s{S_WAVE}
    s_cmp_lg_u32 s{S_A}, 9
    s_cbranch_scc1 K_ldJ
    s_lshl_b32 s{S_A}, s{S_TAG}, 25
    s_or_b32 s{S_A}, s{S_A}, 1
    s_lshr_b64 {sr(S_TAG,2)}, {sr(S_TAG,2)}, 7
    v_mov_b32 v{t4}, s{S_A}
    v_mov_b32 v{t4+1}, s{S_TAG}
    s_mov_b64 exec, 1
    global_store_dwordx2 v{vZ}, {vr(t4,2)}, {sr(S_DBG,2)} sc1
    s_mov_b64 exec, -1
K_ldJ:
    s_lshl_b32 s{S_A}, s{S_WAVE}, 11
    s_cmp_ge_u32 s{S_WAVE}, 8
    s_cbranch_scc1 K_stX
    s_add_u32 s{S_B}, s{S_A}, {L_W1}
    s_mov_b32 m0, s{S_B}
    v_lshrrev_b32 v{t3}, 2, v{L}
    v_and_b32 v{t3}, 12, v{t3}
    v_xor_b32 v{t3}, v{t3}, v{L}
    v_lshl_add_u32 v{t5}, v{t3}, 4, s{S_A}
    global_load_lds_dwordx4 v{t5}, {sr(S_W1,2)}
    global_load_lds_dwordx4 v{t5}, {sr(S_W1,2)} offset:1024
    s_branch K_stJ
K_stX:
    s_mov_b32 s{S_RX}, s4
    s_mov_b32 s{S_RX+1}, s5
    s_mov_b32 s{S_RX+2}, {N_NODES*128}
    s_mov_b32 s{S_RX+3}, 0x00020000
    s_add_u32 s{S_B}, s{S_A}, {L_XR - 16384}
    s_mov_b32 m0, s{S_B}
    s_lshl_b32 s{S_B}, s{S_N0}, 7
    s_add_u32 s{S_A}, s{S_A}, s{S_B}
    s_sub_u32 s{S_A}, s{S_A}, 16384
    v_lshrrev_b32 v{t3}, 4, v{L}
    v_xor_b32 v{t3}, v{t3}, v{L}
    v_lshl_add_u32 v{t3}, v{t3}, 4, s{S_A}
    v_xor_b32 v{t4}, 64, v{t3}
    buffer_load_dwordx4 v{t3}, {sr(S_RX,4)}, 0 offen lds
    buffer_load_dwordx4 v{t4}, {sr(S_RX,4)}, 0 offen offset:1024 lds
K_stJ:
    s_waitcnt lgkmcnt(0)
    s_barrier
    v_mov_b32 v{vPad}, {PADREC}
    v_mov_b32 v{vPad+1}, {PADREC}
    v_mov_b32 v{vPad+2}, {PADREC}
    v_mov_b32 v{vPad+3}, {PADREC}
    v_lshlrev_b32 v{t2}, 4, v{T}
    ds_write_b128 v{t2}, {vr(vPad,4)} offset:{L_RL}
    s_cmp_ge_u32 s{S_WAVE}, 4
    s_cbranch_scc1 K_in1
    ds_write_b128 v{t2}, {vr(vZ,4)}
    ds_write_b128 v{t2}, {vr(vPad,4)} offset:{L_ST - 4096}
K_in1:
    s_cmp_lg_u32 s{S_WAVE}, 4
    s_cbranch_scc1 K_in2
    v_lshlrev_b32 v{t3}, 3, v{L}
    v_add_u32 v{t3}, {L_ST + ZROW*ST_STRIDE}, v{t3}
    ds_write_b64 v{t3}, {vr(vZ,2)}
K_in2:
    global_load_dwordx4 {vr(vSrc,4)}, v{t0}, {sr(S_SRC,2)}
    global_load_dwordx2 {vr(vEa,2)}, v{t1}, {sr(S_E,2)}
    s_cmp_ge_u32 s{S_WAVE}, 8
    s_cbranch_scc1 K_st2
    s_add_u32 m0, m0, 16384
    v_add_u32 v{t5}, 0x4000, v{t5}
    global_load_lds_dwordx4 v{t5}, {sr(S_W1,2)}
    global_load_lds_dwordx4 v{t5}, {sr(S_W1,2)} offset:1024
    s_branch K_st3
K_st2:
    s_mov_b32 m0, {L_WC}
    v_lshlrev_b32 v{t3}, 2, v{L}
    v_add_u32 v{t4}, 0x8000, v{t3}
    global_load_lds_dword v{t4}, {sr(S_W1,2)}
    s_mov_b32 m0, {L_WC + 256}
    s_nop 0
    global_load_lds_dword v{t3}, {sr(S_B1,2)}
K_st3:
    v_and_b32 v{vC8}, 3, v{L}
    v_lshlrev_b32 v{vC8}, 3, v{vC8}
    v_and_b32 v{t1}, 16, v{L}
    v_lshl_add_u32 v{vC8}, v{t1}, 1, v{vC8}    ; 8c + 32(g&1)
""")
    if cpos == "early": emit_consts()
    a(f"""
    s_lshr_b32 s{S_D}, s{S_WAVE}, 1          ; ct
    v_bfe_u32 v{t0}, v{L}, 2, 2
    v_xor_b32 v{t3}, s{S_D}, v{t0}
    v_lshlrev_b32 v{t3}, 6, v{t3}
    v_lshl_add_u32 v{t0}, v{HH}, 3, v{t0}
    v_lshl_add_u32 v{t0}, v{t0}, 8, v{t3}
    v_add_u32 v{vWa}, {L_W1}, v{t0}
    v_and_b32 v{vWp}, 1, v{L}
    v_lshl_add_u32 v{vWp}, v{vWp}, 5, v{vWa}
    v_and_b32 v{t3}, 16, v{L}
    v_add_u32 v{vWp}, v{vWp}, v{t3}
    v_and_b32 v{t3}, 2, v{L}
    v_lshl_add_u32 v{vWp}, v{t3}, 2, v{vWp}    ; + 16(c&1) + 4(2(g&1) + (c>>1)) columns
    s_and_b32 s{S_A}, s{S_WAVE}, 1
    s_lshl_b32 s{S_A}, s{S_A}, 12
    s_add_u32 s{S_A}, s{S_A}, {L_XR}
    v_bfe_u32 v{t3}, v{L}, 1, 3
    v_xor_b32 v{t3}, v{t3}, v{HH}
    v_lshl_add_u32 v{t3}, v{t3}, 4, s{S_A}
    v_lshl_add_u32 v{vXa}, v{J}, 7, v{t3}
    v_xor_b32 v{vXa+1}, 32, v{vXa}
    v_xor_b32 v{vXa+2}, 64, v{vXa}
    v_xor_b32 v{vXa+3}, 0x60, v{vXa}
    s_mov_b32 s{S_A}, 21400
    s_mov_b32 s{S_B}, -{NB}
    s_mov_b32 s{S_C}, 0xffff0000
    v_mov_b32 v{t5}, 0x10004
    s_waitcnt vmcnt(6)
    s_cmp_lg_u32 s{S_WAVE}, 11
    s_cbranch_scc1 K_wJ
    s_bfm_b64 exec, {XTRA}, 0""")
    assert L_ST - L_RL <= step + 4096
    def binops(cols):
        for i in cols: a(f"    v_mul_u32_u24 v{vBa+i}, s{S_A}, v{vDst+i}")
        for i in cols: a(f"    v_lshrrev_b32 v{vBa+i}, 18, v{vBa+i}")
        for i in cols:
            a(f"    v_and_b32 v{vBa+i}, 0x3fc, v{vBa+i}")
            a(f"    ds_add_rtn_u32 v{vRk+i}, v{vBa+i}, v{t5} offset:{L_H1}")
        for i in cols: a(f"    v_lshlrev_b32 v{vDst+i}, 2, v{vDst+i}")
        for i in cols: a(f"    v_mad_i32_i24 v{vDst+i}, v{vBa+i}, s{S_B}, v{vDst+i}")
    binops([4])
    a(f"""
    s_mov_b64 exec, -1
K_wJ:""")
    stamp(a, 2)
    binops(range(4))
    a(f"""
    s_waitcnt vmcnt(4) lgkmcnt(0)""")
    rot = "rotp" in OPT
    if rot:
        a(f"""
    s_cmp_lg_u32 s{S_WAVE}, 9
    s_cbranch_scc1 K_nt9
    global_load_dwordx2 {vr(vTg,2)}, v{vZ}, {sr(S_DBG,2)}
K_nt9:""")
    a(f"""
    s_barrier""")
    stamp(a, 3)
    a(f"""
    s_cmp_eq_u32 s{S_WAVE}, 8
    s_cbranch_scc1 K_scan1
    s_cmp_gt_u32 s{S_WAVE}, 8
    s_cbranch_scc1 K_notP""")
    for s_ in range(4):
        a(f"    ds_read_b128 {vr(vX+4*s_,4)}, v{vXa+s_}")
        for h in range(2):
            a(f"    ds_read_b64_tr_b16 {vr(vWf+4*s_+2*h,2)}, v{vWp} offset:{4096*s_+1024*h}")
    for s_ in range(4):
        a(f"    s_waitcnt lgkmcnt({9-3*s_})")
        cin = "0" if s_ == 0 else vr(vAc, 16)
        a(f"    v_mfma_f32_32x32x16_bf16 {vr(vAc,16)}, {vr(vWf+4*s_,4)}, {vr(vX+4*s_,4)}, {cin}")
    a(f"""
    s_and_b32 s{S_B}, s{S_WAVE}, 1
    s_mul_i32 s{S_A}, s{S_B}, {32*PS_STRIDE}
    s_lshl_b32 s{S_B}, s{S_D}, 6
    s_add_u32 s{S_A}, s{S_A}, s{S_B}
    s_add_u32 s{S_A}, s{S_A}, {L_PS}
    v_mul_u32_u24 v{t3}, {PS_STRIDE}, v{J}
    v_lshl_add_u32 v{t3}, v{HH}, 5, v{t3}
    v_add_u32 v{t3}, s{S_A}, v{t3}
    v_mov_b32 v{t4}, {NLOG2E:#x}
    v_cmp_gt_u32 vcc, {L_PS + 56*PS_STRIDE}, v{t3}
    s_nop 1""")
    for q in range(8):
        a(f"    v_pk_mul_f32 {vr(vAc+2*q,2)}, {vr(vAc+2*q,2)}, {vr(t4,2)} op_sel_hi:[1,0]")
    for q in range(8):
        a(f"    v_cvt_pk_bf16_f32 v{vAc+q}, v{vAc+2*q}, v{vAc+2*q+1}")
    a(f"""
    s_mov_b64 exec, vcc
    ds_write_b128 v{t3}, {vr(vAc,4)}
    ds_write_b128 v{t3}, {vr(vAc+4,4)} offset:16
    s_mov_b64 exec, -1
    s_branch K_b3
K_notP:
    v_lshlrev_b32 v{t1}, 4, v{L}
    v_add_u32 v{t4}, {L_PS + 48*PS_STRIDE}, v{t1}
    v_add_u32 v{t1}, {48*256}, v{t1}
    v_and_b32 v{vBa+4}, 0x3fc, v{vBa+4}
""")
    if rot:
        a(f"""
    s_cmp_lg_u32 s{S_WAVE}, 9
    s_cbranch_scc1 K_b3
    s_mov_b32 s{S_K}, 0
    s_waitcnt vmcnt(0)
K_tagp:
    v_cmp_ne_u32 vcc, 0, v{vTg}
    s_cbranch_vccnz K_tagok
    s_add_u32 s{S_K}, s{S_K}, 1
    s_cmp_gt_u32 s{S_K}, {POLL_MAX}
    s_cbranch_scc1 K_tagok
    global_load_dwordx2 {vr(vTg,2)}, v{vZ}, {sr(S_DBG,2)} sc1
    s_waitcnt vmcnt(0)
    s_branch K_tagp
K_tagok:
    ds_write_b64 v{vZ}, {vr(vTg,2)} offset:{L_NONCE}""")
    a(f"""
    s_branch K_b3
K_scan1:
    s_setprio 2
    {"" if rot else f"global_load_dwordx2 {vr(vTg,2)}, v{vZ}, {sr(S_DBG,2)}"}
    v_lshlrev_b32 v{t0}, 4, v{L}
    ds_read_b128 v[56:59], v{t0} offset:{L_H1}
    s_waitcnt lgkmcnt(0)""")
    for i in range(4):
        a(f"    v_lshrrev_b32 v{60+i}, 16, v{56+i}")
    for i in range(4):
        a(f"    v_mad_u32_u24 v{64+i}, v{60+i}, 5, 3")
    for i in range(4):
        a(f"    v_and_b32 v{64+i}, -4, v{64+i}")
    a(f"""
    v_add_u32 v65, v64, v65
    v_add_u32 v66, v65, v66
    v_add_u32 v67, v66, v67
    v_mov_b32 v68, v67""")
    wave_scan(a, 68)
    a(f"""
    v_sub_u32 v68, v68, v67
    v_add_u32 v69, v68, v64
    v_add_u32 v70, v68, v65
    v_add_u32 v71, v68, v66
    s_mov_b32 s{S_A}, 0x10001""")
    for i in range(4):
        a(f"    v_mul_u32_u24 v{64+i}, s{S_A}, v{68+i}")
    for i in range(4):
        a(f"    v_lshl_add_u32 v{64+i}, v{56+i}, 16, v{64+i}")
    a(f"""
    ds_write_b128 v{t0}, v[64:67] offset:{L_OFF}
    s_setprio 0
K_b3:
    v_lshrrev_b32 v{t0}, 4, v{T}
    v_lshl_add_u32 v{t0}, v{t0}, 4, v{t2}
    v_add_u32 v{t0}, {L_PS}, v{t0}
    s_lshl_b32 s{S_A}, s{S_N0}, 8
    s_add_u32 s{S_A}, s{S_A}, {WS_P + (0x800000 if optval("cheat", "") else 0)}
    s_add_u32 s{S_RT}, s{S_WS}, s{S_A}
    s_addc_u32 s{S_RT+1}, s{S_WS+1}, 0
    s_lshl_b32 s{S_RT+2}, s{S_NN}, 8
    s_mov_b32 s{S_RT+3}, 0x00020000
    s_waitcnt lgkmcnt(0)
    s_barrier                                ; B3: segment offsets""")
    stamp(a, 4)
    a(f"""
    s_cmp_lt_u32 s{S_WAVE}, 10
    s_cbranch_scc1 K_nx0
    ds_read_b32 v{vOf+4}, v{vBa+4} offset:{L_OFF}
    ds_read_b128 v[76:79], v{t4}
K_nx0:""")
    split = "split" in OPT
    if split:
        a(f"""
    s_cmp_lt_u32 s{S_WAVE}, 9
    s_cbranch_scc1 K_sp0
    v_subrev_u32 v{t0}, {36*PS_STRIDE}, v{t0}
    v_subrev_u32 v{t3}, {9*1024}, v{t2}
    ds_read_b128 v[40:43], v{t0}
    ds_read_b128 v[44:47], v{t0} offset:{12*PS_STRIDE}
    ds_read_b128 v[48:51], v{t0} offset:{24*PS_STRIDE}
    ds_read_b128 v[52:55], v{t0} offset:{36*PS_STRIDE}
    s_movk_i32 s{S_A}, 6144
    s_waitcnt vmcnt(0) lgkmcnt(0)
    buffer_store_dwordx4 v[40:43], v{t3}, {sr(S_RT,4)}, 0 offen sc1
    buffer_store_dwordx4 v[44:47], v{t3}, {sr(S_RT,4)}, 0 offen offset:3072 sc1
    buffer_store_dwordx4 v[48:51], v{t3}, {sr(S_RT,4)}, s{S_A} offen sc1
    buffer_store_dwordx4 v[52:55], v{t3}, {sr(S_RT,4)}, s{S_A} offen offset:3072 sc1
    s_branch K_sp1
K_sp0:
    s_waitcnt vmcnt(2)
K_sp1:""")
    else:
        if rot: a(f"    ds_read_b64 {vr(vTg,2)}, v{vZ} offset:{L_NONCE}")
        a(f"    ds_read_b128 v[72:75], v{t0}")
    for i in range(4):
        a(f"    ds_read_b32 v{vOf+i}, v{vBa+i} offset:{L_OFF}")
    a(f"""
    {"" if split else "s_waitcnt vmcnt(2)"}
    v_lshl_or_b32 v{vSrc}, v{vEa}, 16, v{vSrc}
    v_and_or_b32 v{vSrc+1}, v{vEa}, s{S_C}, v{vSrc+1}
    v_lshl_or_b32 v{vSrc+2}, v{vEa+1}, 16, v{vSrc+2}
    v_and_or_b32 v{vSrc+3}, v{vEa+1}, s{S_C}, v{vSrc+3}
    s_waitcnt lgkmcnt(4)""")
    if rot:
        a(f"""
    v_readfirstlane_b32 s{S_TAG}, v{vTg}
    v_readfirstlane_b32 s{S_TAG+1}, v{vTg+1}
    s_xor_b32 s{S_PO}, s{S_TAG}, s{S_TAG+1}
    s_mul_i32 s{S_PO}, s{S_PO}, 0x9E3779B1
    s_lshr_b32 s{S_PO}, s{S_PO}, 27
    s_add_u32 s{S_PO}, s{S_PO}, 3
    s_lshl_b32 s{S_PO}, s{S_PO}, 22
    s_add_u32 s{S_RT}, s{S_RT}, s{S_PO}
    s_addc_u32 s{S_RT+1}, s{S_RT+1}, 0""")
    a(f"""
    {"" if split else f"buffer_store_dwordx4 v[72:75], v{t2}, {sr(S_RT,4)}, 0 offen sc1"}""")
    def scatter(i):
        a(f"    v_add_u32_sdwa v{vBa+i}, v{vOf+i}, v{vRk+i} {SD} src0_sel:WORD_0 src1_sel:WORD_0")
        a(f"    v_add_u32_sdwa v{vOf+i}, v{vOf+i}, v{vRk+i} {SD} src0_sel:WORD_1 src1_sel:WORD_1")
        a(f"    ds_write_b32 v{vBa+i}, v{vSrc+i} offset:{L_RS}")
        a(f"    ds_write_b8 v{vOf+i}, v{vDst+i} offset:{L_RS}")
    a(f"    s_waitcnt lgkmcnt(0)")
    for i in range(4): scatter(i)
    stamp(a, 22)
    if qpos == "drain":
        a(f"""
    s_cmp_eq_u32 s{S_WAVE}, 8
    s_cbranch_scc1 K_nx2
    s_waitcnt vmcnt(1)""")
    a(f"""
    s_cmp_lt_u32 s{S_WAVE}, 10
    s_cbranch_scc1 K_nx2
    s_cmp_eq_u32 s{S_WAVE}, 11
    s_cbranch_scc1 K_x2
    buffer_store_dwordx4 v[76:79], v{t1}, {sr(S_RT,4)}, 0 offen sc1
    s_branch K_nx2
K_x2:
    s_bfm_b64 exec, {XTRA}, 0
    v_lshl_or_b32 v{vSrc+4}, v{vEa+2}, 16, v{vSrc+4}""")
    scatter(4)
    a(f"""
    s_mov_b64 exec, -1
K_nx2:
    s_mul_i32 s{S_A}, s2, {RSTRIDE}
    s_add_u32 s{S_RR}, s{S_WS}, s{S_A}
    s_addc_u32 s{S_RR+1}, s{S_WS+1}, 0
    s_mov_b32 s{S_RR+2}, 16512
    s_mov_b32 s{S_RR+3}, 0x00020000
    v_add_u32 v{t3}, {9216 if split else step}, v{t2}
    s_waitcnt lgkmcnt(0)""")
    stamp(a, 23)
    a(f"""
    s_barrier""")
    stamp(a, 5)
    a(f"""
    {f"s_cmp_ge_u32 s{S_WAVE}, 9" if split else ""}
    {"s_cbranch_scc1 K_co2" if split else ""}
    ds_read_b128 v[0:3], v{t2} offset:{L_RS}
    s_cmp_ge_u32 s{S_WAVE}, {8 if split else 5}
    s_cbranch_scc1 K_co1
    ds_read_b128 v[8:11], v{t2} offset:{L_RS + (9216 if split else step)}
    s_waitcnt lgkmcnt(0)
    buffer_store_dwordx4 v[8:11], v{t3}, {sr(S_RR,4)}, 0 offen sc1
K_co1:
    s_waitcnt lgkmcnt(0)
    buffer_store_dwordx4 v[0:3], v{t2}, {sr(S_RR,4)}, 0 offen sc1
K_co2:
""")
    if optval("cheat", ""):
        a(f"""
    s_cmp_ge_u32 s{S_WAVE}, {optval("cheat", "")}
    s_cbranch_scc1 K_ch0
    s_lshr_b32 s{S_A}, s2, 3
    s_mul_i32 s{S_A}, s{S_A}, {781*128}
    s_add_u32 s{S_A}, s{S_A}, {WS_P}
    v_lshl_add_u32 v14, v{T}, 7, s{S_A}
    global_load_dword v14, v14, {sr(S_WS,2)}
K_ch0:""")
    a(f"""
    s_mov_b32 s3, {NLOG2E:#x}
    v_lshlrev_b32 v{t0}, 1, v{J}
    v_add_u32 v{t0}, {L_WC}, v{t0}
""")
    stamp(a, 24)
    if cpos == "drain": emit_consts()
    if qpos == "drain":
        emit_q(); stamp(a, 7)
    stamp(a, 25)
    a(f"""
    s_cmp_lg_u32 s{S_WAVE}, 8
    s_cbranch_scc1 K_ntb
    ; wave 8: the launch tag and the table entries""")
    if rot:
        a(f"    v_cmp_ne_u32 vcc, 0, v{vTg}")
    else:
        a(f"""
    s_mov_b32 s{S_K}, 0
    s_waitcnt vmcnt({1 if split else 2})
K_tagp:
    v_cmp_ne_u32 vcc, 0, v{vTg}
    s_cbranch_vccnz K_tagok
    s_add_u32 s{S_K}, s{S_K}, 1
    s_cmp_gt_u32 s{S_K}, {POLL_MAX}
    s_cbranch_scc1 K_tagok
    global_load_dwordx2 {vr(vTg,2)}, v{vZ}, {sr(S_DBG,2)} sc1
    s_waitcnt vmcnt(0)
    s_branch K_tagp
K_tagok:
    ds_write_b64 v{vZ}, {vr(vTg,2)} offset:{L_NONCE}""")
    a(f"""
    v_and_b32 v{t3}, 0xfe000000, v{vTg}
    s_lshl_b32 s{S_B}, s2, 11
    s_add_u32 s{S_B}, s{S_B}, {WS_TAB}
    v_lshl_add_u32 v{t1}, v{L}, 4, s{S_B}""")
    for i in range(4):
        a(f"    v_lshrrev_b32 v{68+i}, 2, v{68+i}")
        a(f"    v_lshl_or_b32 v{68+i}, v{60+i}, 13, v{68+i}")
        a(f"    v_or_b32 v{vTb+2*i}, v{t3}, v{68+i}")
        a(f"    v_mov_b32 v{vTb+2*i+1}, v{vTg+1}")
    a(f"""
    s_waitcnt vmcnt(0) lgkmcnt(0)
    s_barrier                                ; B5
    s_cbranch_vccz K_slow
    global_store_dwordx4 v{t1}, {vr(vTb,4)}, {sr(S_WS,2)} sc1
    global_store_dwordx4 v{t1}, {vr(vTb+4,4)}, {sr(S_WS,2)} offset:1024 sc1
    s_branch K_b5j
K_ntb:
    {f"s_cmp_ge_u32 s{S_WAVE}, 9" if split else ""}
    {"s_cbranch_scc1 K_sp2" if split else ""}
    s_waitcnt vmcnt(0)
K_sp2:
    s_barrier
K_b5j:""")
    stamp(a, 6)
    a(f"""
    {"" if rot else f"ds_read_b64 {vr(vTg,2)}, v{vZ} offset:{L_NONCE}"}
    s_waitcnt lgkmcnt(0)
    v_readfirstlane_b32 s{S_TAG}, v{vTg}
    v_readfirstlane_b32 s{S_TAG+1}, v{vTg+1}
    s_cmp_eq_u32 s{S_TAG}, 0
    s_cbranch_scc1 K_slow
    s_cmp_lt_u32 s{S_WAVE}, 8
    s_cbranch_scc1 K_lb2
    s_sub_u32 s{S_A}, s{S_WAVE}, 8
    s_lshl_b32 s{S_A}, s{S_A}, 12
    s_add_u32 s{S_B}, s{S_A}, {L_W2}
    s_mov_b32 m0, s{S_B}
    v_lshl_add_u32 v{t3}, v{L}, 4, s{S_A}
    global_load_lds_dwordx4 v{t3}, {sr(S_W2,2)}
    global_load_lds_dwordx4 v{t3}, {sr(S_W2,2)} offset:1024
    global_load_lds_dwordx4 v{t3}, {sr(S_W2,2)} offset:2048
    global_load_lds_dwordx4 v{t3}, {sr(S_W2,2)} offset:3072
    s_branch K_lbJ
K_lb2:
    s_cmp_lg_u32 s{S_WAVE}, 7
    s_cbranch_scc1 K_lbJ
    s_mov_b32 m0, {L_B2}
    v_lshlrev_b32 v{t3}, 2, v{J}
    global_load_lds_dword v{t3}, {sr(S_B2,2)}
K_lbJ:""")
    if cpos == "post": emit_consts()
    if qpos == "post": emit_q()
    a(f"""
    s_lshl_b32 s{S_B}, s{S_WAVE}, 12
    s_add_u32 s{S_B}, s{S_B}, {L_XS}
    s_mov_b32 m0, s{S_B}
    v_mov_b32 v{t5}, v{vTa}""")
    if qpos == "post": stamp(a, 7)
    vT = 0
    vN = 4
    vAr = 6
    vR = 12
    vM = 28
    vA = 32
    vK = 48
    vB = 64
    vG = 80
    a(f"""
    s_mov_b32 s{S_RR}, s{S_WS}
    s_mov_b32 s{S_RR+1}, s{S_WS+1}
    s_mov_b32 s{S_RR+2}, {WS_P + N_NODES*256}
    s_mov_b32 s{S_A}, {128*2048}
    s_mov_b32 s{S_B}, {128*RSTRIDE}
    s_mov_b32 s{S_C}, 0xfe000000
    s_movk_i32 s{S_D}, 0xfc
    s_mov_b32 s{S_K}, 0
    {"s_sleep " + optval("fs", "0") if optval("fs", "0") != "0" else ""}
    s_mov_b64 {mask(0)}, -1
    s_mov_b64 {mask(1)}, -1
    v_mov_b32 v{vM}, 0
    v_mov_b32 v{vM+1}, 0
K_poll:
    s_mov_b64 exec, {mask(0)}
    s_cbranch_execz K_pl0
    buffer_load_dwordx2 {vr(vT,2)}, v{t5}, {sr(S_RR,4)}, 0 offen sc1
K_pl0:
    s_mov_b64 exec, {mask(1)}
    s_cbranch_execz K_pl1
    buffer_load_dwordx2 {vr(vT+2,2)}, v{t5}, {sr(S_RR,4)}, s{S_A} offen sc1
K_pl1:
    s_mov_b64 exec, -1
    s_waitcnt vmcnt(0)""")
    for i in range(2):
        a(f"    v_xor_b32 v{vN+i}, s{S_TAG}, v{vT+2*i}")
        a(f"    v_xor_b32 v{vAr+i}, s{S_TAG+1}, v{vT+2*i+1}")
        a(f"    v_and_or_b32 v{vAr+i}, v{vN+i}, s{S_C}, v{vAr+i}")
        a(f"    v_cmp_ne_u32 {mask(i)}, 0, v{vAr+i}")
    a(f"""
    s_add_u32 s{S_K}, s{S_K}, 1
    s_or_b64 vcc, {mask(0)}, {mask(1)}
    s_cbranch_scc0 K_got
    {"s_sleep " + optval("ps", "0") if optval("ps", "0") != "0" else ""}
    s_cmp_lt_u32 s{S_K}, {POLL_MAX}
    s_cbranch_scc1 K_poll
    ; gave up: no records from this wave, ask for the slow path
    s_mov_b32 s{S_MODE}, 1
    s_branch K_nor2a
K_got:""")
    if DIAG:
        a(f"    v_writelane_b32 v{V_STAMP}, s{S_K}, 20")
    stamp(a, 8)
    so = ["0", sr(S_B)]
    for i in range(2):
        a(f"    v_and_b32 v{vAr+i}, 0x1fff, v{vT+2*i}")
        a(f"    v_bfe_u32 v{vT+2*i+1}, v{vT+2*i}, 13, 12")
        a(f"    v_lshl_add_u32 v{vAr+i}, v{vAr+i}, 2, v{vSb}")
        a(f"    v_sub_u32 v{vN+i}, v{vT+2*i+1}, v{vG4}")
        a(f"    v_lshl_add_u32 v{vAr+2+i}, v{vT+2*i+1}, 2, v{vAr+i}")
        a(f"    v_cmp_lt_i32 {mask(4*i)}, 0, v{vN+i}")
        a(f"    v_lshl_add_u32 v{vAr+i}, v{vG4}, 2, v{vAr+i}")
        a(f"    v_add_u32 v{vAr+2+i}, v{vAr+2+i}, v{vG4}")
        a(f"    s_or_b64 exec, {mask(4*i)}, 1")
        a(f"    buffer_load_dword v{vM+i}, v{vAr+2+i}, {sr(S_RR,4)}, {so[i]} offen")
        a(f"    buffer_load_dwordx4 {vr(vR+4*i,4)}, v{vAr+i}, {sr(S_RR,4)}, {so[i]} offen")
        a(f"    s_mov_b64 exec, -1")
    for i in range(2):
        for k in range(1, 4):
            a(f"    v_cmp_lt_i32 {mask(4*i+k)}, {k}, v{vN+i}")
    a(f"""
    v_max_i32 v{t1}, v{vN}, v{vN+1}
    v_cmp_lt_i32 vcc, 24, v{t1}
    s_mov_b32 s{S_K}, 0
    s_cbranch_vccz K_nor2a
    s_mov_b32 s{S_K}, 1""")
    for i in range(2):
        a(f"    buffer_load_dword v{vM+2+i}, v{vAr+2+i}, {sr(S_RR,4)}, {so[i]} offen offset:24")
        a(f"    buffer_load_dwordx4 {vr(vR+8+4*i,4)}, v{vAr+i}, {sr(S_RR,4)}, {so[i]} offen offset:96")
        for k in range(4):
            a(f"    v_cmp_lt_i32 {mask(8+4*i+k)}, {24+k}, v{vN+i}")
    a(f"""
    v_cmp_lt_i32 vcc, 48, v{t1}
    s_cbranch_vccz K_nor2a
    s_mov_b32 s{S_MODE}, 1
K_nor2a:
    v_mov_b32 v{t4}, {L_FLAG}
    v_mov_b32 v{t0}, 4
    s_cmp_eq_u32 s{S_MODE}, 0
    s_cbranch_scc1 K_nofl
    ds_write_b32 v{t4}, v{t0}
K_nofl:
    s_waitcnt lgkmcnt(0)
    s_barrier
    ds_read_b32 v{t3}, v{t4}
    s_add_u32 s{S_RX}, s{S_WS}, {WS_P - 3072}
    s_addc_u32 s{S_RX+1}, s{S_WS+1}, 0
    {f"s_add_u32 s{S_RX}, s{S_RX}, s{S_PO}" if rot else ""}
    {f"s_addc_u32 s{S_RX+1}, s{S_RX+1}, 0" if rot else ""}
    {f"v_add_u32 v{vPf}, s{S_PO}, v{vPf}" if rot else ""}
    s_and_b32 s{S_RX+1}, s{S_RX+1}, 0xffff
    s_or_b32 s{S_RX+1}, s{S_RX+1}, 0x01000000
    s_mov_b32 s{S_RX+2}, {N_NODES}
    s_mov_b32 s{S_RX+3}, 0x00020000
    s_waitcnt lgkmcnt(0)
    v_cmp_ne_u32 vcc, 0, v{t3}
    s_cbranch_vccnz K_slow""")
    pf0 = int(optval("pf", "8"))
    a(f"""
    s_cmp_lt_u32 s{S_WAVE}, {pf0}
    s_cbranch_scc1 K_npf
    global_load_dword v{t5}, v{vPf}, {sr(S_WS,2)}
    s_waitcnt vmcnt(1)
    s_branch K_pfJ
K_npf:
    s_waitcnt vmcnt(0)
K_pfJ:""")
    stamp(a, 9)
    def rec_reg(k): return vR + k
    def count_cols(ks):
        for k in ks:
            a(f"    v_and_b32_sdwa v{vA+k}, v{vM+k//4}, s{S_D} {SD} src0_sel:BYTE_{k%4} src1_sel:DWORD")
        for k in ks:
            a(f"    s_mov_b64 exec, {mask(k)}")
            a(f"    ds_add_rtn_u32 v{vK+k}, v{vA+k}, v{t0}")
        a(f"    s_mov_b64 exec, -1")
    count_cols(range(8))
    a(f"""
    s_cmp_eq_u32 s{S_K}, 0
    s_cbranch_scc1 K_nor2b""")
    count_cols(range(8, 16))
    a(f"""
K_nor2b:
    v_lshlrev_b32 v{t1}, 2, v{L}
    v_cmp_gt_u32 vcc, s{S_NN}, v{L}
    s_waitcnt lgkmcnt(0)
    s_barrier""")
    stamp(a, 10)
    a(f"""
    ds_read_b32 v{V_CNT}, v{t1}
    s_waitcnt lgkmcnt(0)
    v_add_u32 v{vP}, 12, v{V_CNT}
    v_and_b32 v{vP}, -16, v{vP}
    v_max_u32 v{vP}, 0x80, v{vP}
    v_cndmask_b32 v{vP}, 0, v{vP}, vcc
    v_mov_b32 v{vS}, v{vP}""")
    wave_scan(a, vS)
    a(f"""
    s_nop 0
    v_readlane_b32 s{S_A}, v{vS}, 63
    v_sub_u32 v{vS}, v{vS}, v{vP}
    ds_write_b32 v{t1}, v{vS} offset:{L_SX}
    s_cmp_gt_u32 s{S_A}, {ENT_CAP*4}
    s_cbranch_scc1 K_slow""")
    def place_cols(ks, mid=None):
        ks = list(ks)
        for k in ks:
            a(f"    ds_read_b32 v{vB+k}, v{vA+k} offset:{L_SX}")
        if mid: a(mid)
        for n, k in enumerate(ks):
            if n % 2 == 0:
                a(f"    s_waitcnt lgkmcnt({len(ks)-2-n})")
            a(f"    v_add_u32 v{vK+k}, v{vB+k}, v{vK+k}")
        for k in ks:
            a(f"    s_mov_b64 exec, {mask(k)}")
            a(f"    ds_write_b32 v{vK+k}, v{rec_reg(k)} offset:{L_RL}")
        a(f"    s_mov_b64 exec, -1")
    place_cols(range(8), f"""
    s_add_u32 s{S_A}, s{S_A}, 127
    s_lshr_b32 s{S_TT}, s{S_A}, 7            ; tiles
    s_mul_i32 s{S_T0}, s{S_SLOT}, s{S_TT}
    s_add_u32 s{S_NT}, s{S_T0}, s{S_TT}
    s_mul_i32 s{S_T0}, s{S_T0}, 43691
    s_mul_i32 s{S_NT}, s{S_NT}, 43691
    s_lshr_b32 s{S_T0}, s{S_T0}, 19
    s_lshr_b32 s{S_NT}, s{S_NT}, 19
    s_sub_u32 s{S_NT}, s{S_NT}, s{S_T0}""")
    a(f"""
    s_cmp_eq_u32 s{S_K}, 0
    s_cbranch_scc1 K_nor2c
    s_waitcnt lgkmcnt(0)""")
    place_cols(range(8, 16))
    thr = [int(x) for x in optval("thr", "5_3_1").split("_")]
    a(f"""
K_nor2c:
    s_lshl_b32 s{S_A}, s{S_T0}, 7            ; ts*4
    s_add_u32 s{S_C}, s{S_A}, {L_RL}
    v_add_u32 v{V_AIDX}, s{S_C}, v{V_AIDX}
    v_cmp_ge_u32 {mask(0)}, s{S_A}, v{vS}
    v_subrev_u32 v{t0}, s{S_A}, v{vS}
    s_and_b64 {mask(0)}, {mask(0)}, vcc
    s_bcnt1_i32_b64 s{S_B}, {mask(0)}
    s_sub_u32 s{S_B}, s{S_B}, 1              ; n
    s_andn2_b64 {mask(0)}, vcc, {mask(0)}
    s_waitcnt lgkmcnt(0)
    s_barrier""")
    stamp(a, 11)
    for h in idx_reads(0): a(h)
    a(f"""
    v_add_u32 v{V_AENT}, s{S_C}, v{V_AENT}
    v_xor_b32 v{t3}, s{S_B}, v{HH}
    v_and_b32 v{t3}, 1, v{t3}
    s_lshl_b32 s{S_A}, s{S_B}, 9
    s_add_u32 s{S_A}, s{S_A}, {L_QT}
    v_lshl_add_u32 v{V_AQ}, v{t3}, 9, s{S_A}
    v_lshl_add_u32 v{V_AQ}, v{J}, 2, v{V_AQ}
    s_waitcnt lgkmcnt(0)""")
    for h in dma_ops(0): a(h)
    a(f"""
    s_cmp_ge_u32 s{S_WAVE}, {ndual}
    s_cbranch_scc1 K_e1
    s_add_u32 m0, m0, {L_T2 - L_XS}
    s_nop 0""")
    for h in dma_ops(1): a(h)
    a("K_e1:")
    for h in ent_reads(0, True): a(h)
    a(f"""
    v_bfe_u32 v{t4}, v{t0}, 4, 3
    v_add_u32 v{t4}, 1, v{t4}
    v_mul_u32_u24 v{t4}, {VAR_SIZE}, v{t4}
    v_lshrrev_b32 v{t0}, 7, v{t0}
    v_min_u32 v{t0}, 63, v{t0}
    v_cndmask_b32 v{t0}, 63, v{t0}, {mask(0)}
    v_lshlrev_b32 v{t0}, 2, v{t0}
    v_mov_b32 v{V_TAB}, 0
    ds_permute_b32 v{V_TAB}, v{t0}, v{t4}
    s_add_u32 s{S_A}, s{S_B}, s{S_SLOT}
    s_mul_i32 s{S_A}, s{S_A}, {ST_STRIDE}
    s_add_u32 s{S_A}, s{S_A}, {L_ST}
    v_lshl_add_u32 v{V_AS}, v{L}, 2, s{S_A}
    v_xor_b32 v{t3}, 1, v{t3}
    v_lshlrev_b32 v{V_INCQ}, 10, v{t3}
    v_cvt_f32_u32 v{vOne}, s{S_TT}
    v_rcp_f32 v{vOne}, v{vOne}
    v_add3_u32 v{vP}, v{vS}, v{vP}, -4
    v_lshrrev_b32 v{vS}, 7, v{vS}
    v_lshrrev_b32 v{vP}, 7, v{vP}
    v_cvt_f32_u32 v{vS}, v{vS}
    v_cvt_f32_u32 v{vP}, v{vP}
    v_add_f32 v{vS}, {f32bits((NW-0.5)/NW):#x}, v{vS}
    v_add_f32 v{vP}, {f32bits((NW-0.5)/NW):#x}, v{vP}
    v_mul_f32 v{vOne}, {f32bits(NW):#x}, v{vOne}
    v_mul_f32 v{vS}, v{vS}, v{vOne}
    v_mul_f32 v{vP}, v{vP}, v{vOne}
    v_cvt_u32_f32 v{vS}, v{vS}
    v_cvt_u32_f32 v{vP}, v{vP}
    v_sub_u32 v{vP}, v{vP}, v{vS}
    v_add_u32 v{vS}, v{vS}, v{L}
    v_lshl_or_b32 v{vS}, v{vP}, 8, v{vS}
    v_cndmask_b32 v{vS}, {ZROW}, v{vS}, vcc
    v_lshl_or_b32 v{V_CNT}, v{vS}, 16, v{V_CNT}
    ; jump table: entry offset inside a variant slot (priority steps near the end), exit at lane nt
    v_sub_u32 v{t0}, s{S_NT}, v{L}
    v_mov_b32 v{t3}, 64""")
    for i, th in enumerate(thr):
        a(f"    v_cmp_eq_u32 {mask(i)}, {th}, v{t0}")
    a(f"    v_cmp_eq_u32 {mask(3)}, 0, v{t0}")
    a(f"    v_mov_b32 v{t4}, K_exit - K_vbase")
    for i, th in enumerate(thr):
        a(f"    v_cndmask_b32 v{t3}, v{t3}, {44 + 8*i}, {mask(i)}")
    a(f"""
    s_waitcnt lgkmcnt(0)
    v_add_u32 v{V_TAB}, v{V_TAB}, v{t3}
    v_cndmask_b32 v{V_TAB}, v{V_TAB}, v{t4}, {mask(3)}
    s_mov_b32 s{S_K}, 1
    s_setprio 3
    v_readlane_b32 s{S_J}, v{V_TAB}, 0
    s_bitcmp1_b32 s{S_B}, 0
    s_cselect_b64 {sr(S_PAR,2)}, -1, 0
    s_movk_i32 s{S_PAD}, {PADREC}""")
    for h in mask_load(): a(h)
    a(f"""
    s_cmp_ge_u32 s{S_WAVE}, {ndual}
    s_cbranch_scc1 K_e2
    s_waitcnt vmcnt(4)""")
    stamp(a, 12)
    for h in tr_reads(0): a(h)
    a(f"    s_waitcnt vmcnt(0)")
    for h in tr_reads(1): a(h.replace(f"v{V_AA} ", f"v{vAA2} "))
    a(f"""
    s_add_u32 s{S_J}, s{S_MO}, 64 + K_vhN - K_varN
    s_waitcnt lgkmcnt(0)
    s_sub_u32 m0, m0, {L_T2 - L_XS}
    s_branch K_e4
K_e2:
    s_waitcnt vmcnt(0)""")
    stamp(a, 12)
    for h in tr_reads(0): a(h)
    a(f"    s_waitcnt lgkmcnt(0)")
    for h in dma_ops(1): a(h)
    a("K_e4:")
    for h in onehot_ops(): a(h)
    a(f"""
    s_add_u32 s{S_J}, s{S_J}, s{S_PC}
    s_addc_u32 s{S_J+1}, s{S_PC+1}, 0
    s_cmp_eq_u32 s{S_NT}, 0
    s_cbranch_scc1 K_exit""")
    a(small(0)); a(small(1))
    a("    s_nop 7")
    stamp(a, 13); stamp(a, 14, True)
    a(f"    s_setpc_b64 {sr(S_J,2)}")
    a(f".p2align 6")
    a(f"K_vbase:")
    for vi, b in enumerate([None] + list(range(8))):
        tile_variant(a, vi, b)
    a(f".p2align 3")
    a(f"K_exit:")
    stamp(a, 15); stamp(a, 16, True)
    for cts in ((0, 1), (2, 3)):
        flush_ops(a, cts)
        a("    s_nop 1")
        flush_ops2(a, cts)
    a(f"""
    v_cmp_eq_f32 vcc, 0, v{V_MN}
    s_cbranch_vccz K_join
    v_mov_b32 v64, 1
    v_mov_b32 v65, {L_FLAG}
    ds_write_b32 v65, v64
K_join:
    s_cmp_ge_u32 s{S_WAVE}, 4
    s_cbranch_scc1 K_idle
    v_and_b32 v136, 15, v{L}
    v_lshrrev_b32 v137, 4, v{L}              ; g
    s_lshl_b32 s{S_A}, s{S_WAVE}, 4
    v_add_u32 v136, s{S_A}, v136             ; node
    v_lshlrev_b32 v138, 2, v136
    ds_bpermute_b32 v139, v138, v{V_CNT}
    v_and_b32 v138, 16, v{L}
    v_lshlrev_b32 v138, 2, v138
    v_lshl_add_u32 v138, v{HH}, 5, v138
    v_bfe_u32 v140, v{L}, 2, 2
    v_add_u32 v140, v140, v138
    v_lshlrev_b32 v140, 7, v140
    v_and_b32 v141, 3, v{L}
    v_lshl_add_u32 v140, v141, 4, v140
    v_add_u32 v140, {L_W2}, v140""")
    for ot in range(4):
        for ks in range(4):
            for h in range(2):
                a(f"    ds_read_b64_tr_b16 {vr(16*ot+4*ks+2*h,2)}, v140 offset:{1024*ks+512*h+64*(ot>>1)+8*(ot&1)}")
    a(f"""
    v_lshlrev_b32 v141, 4, v137
    v_add_u32 v140, {L_B2}, v141
    ds_read_b128 v[128:131], v140
    ds_read_b128 v[132:135], v140 offset:64
    v_lshl_add_u32 v141, v136, 7, v141       ; output byte offset
    s_lshl_b32 s{S_A}, s{S_N0}, 7
    s_add_u32 s{S_RT}, s{S_OUT}, s{S_A}
    s_addc_u32 s{S_RT+1}, s{S_OUT+1}, 0
    s_lshl_b32 s{S_RT+2}, s{S_NN}, 7
    s_mov_b32 s{S_RT+3}, 0x00020000
    s_mov_b32 s3, {NLN2:#x}
    s_movk_i32 s{S_K}, {ST_STRIDE}
    s_waitcnt lgkmcnt(0)
    v_bfe_u32 v142, v139, 16, 8
    v_lshrrev_b32 v143, 24, v139
    v_and_b32 v139, 0xffff, v139
    v_cvt_f32_u32 v139, v139
    v_mul_f32 v139, {f32bits(0.25 * -1.4426950408889634):#x}, v139
    v_lshlrev_b32 v138, 2, v138
    v_add_u32 v138, {L_ST}, v138
    v_mad_u32_u24 v142, v142, s{S_K}, v138
    v_add_u32 v138, {ZROW*ST_STRIDE}, v138
    v_cmp_lt_u32 vcc, 0, v143
    v_add_u32 v144, {ST_STRIDE}, v142
    v_mov_b32 v146, 0x207
    v_cndmask_b32 v145, v138, v144, vcc""")
    vO = 148
    accs = [148, 149, 150, 151, 152, 153] + list(range(156, 166))
    ACC = [112, 116, 120, 124]
    for q in range(8):
        a(f"    v_lshlrev_b32 v{112+2*q}, 16, v{128+q}")
        a(f"    v_and_b32 v{113+2*q}, 0xffff0000, v{128+q}")
    for q in range(16):
        a(f"    v_mul_f32 v{112+q}, v139, v{112+q}")
    a(f"    s_barrier")
    stamp(a, 17)
    S0 = 64; S1 = 96
    for ks in range(2):
        pass
    a(f"    s_mov_b32 s{S_A}, 1")
    for ks in range(4):
        a(f"    ds_read_b128 {vr(S0+8*ks,4)}, v142 offset:{32*ks}")
        a(f"    ds_read_b128 {vr(S0+4+8*ks,4)}, v142 offset:{32*ks+16}")
    a(f"K_rows:")
    tmp = [96, 104, 128, 156]
    for ks in range(4):
        a(f"    ds_read_b128 {vr(tmp[ks],4)}, v145 offset:{32*ks}")
        a(f"    ds_read_b128 {vr(tmp[ks]+4,4)}, v145 offset:{32*ks+16}")
    a(f"""
    v_cmp_lt_u32 vcc, s{S_A}, v143
    v_add_u32 v144, {ST_STRIDE}, v144
    s_add_u32 s{S_A}, s{S_A}, 1""")
    for ks in range(4):
        a(f"    s_waitcnt lgkmcnt({6-2*ks})")
        for q in range(4):
            a(f"    v_pk_add_f32 {vr(S0+8*ks+2*q,2)}, {vr(S0+8*ks+2*q,2)}, {vr(tmp[ks]+2*q,2)}")
    a(f"""
    v_cndmask_b32 v145, v138, v144, vcc
    s_cbranch_vccnz K_rows""")
    def cv(ks):
        for q in range(4):
            a(f"    v_cvt_pk_bf16_f32 v{96+4*ks+q}, v{S0+8*ks+2*q}, v{S0+1+8*ks+2*q}")
    def mf(ks, ot):
        d = vr(ACC[ot], 4)
        a(f"    v_mfma_f32_16x16x32_bf16 {d}, {vr(16*ot+4*ks,4)}, {vr(96+4*ks,4)}, {d}")
    cv(0); cv(1)
    for ks in range(4):
        for ot in range(4):
            mf(ks, ot)
        if ks < 2: cv(ks + 2)
    a("    s_nop 4")
    for q in range(16):
        a(f"    v_mul_f32 v{64+q}, s3, v{112+q}")
    for q in range(8):
        a(f"    v_cvt_pk_bf16_f32 v{80+q}, v{64+2*q}, v{65+2*q}")
    osc = optval("o_", "sc1")
    a(f"    buffer_store_dwordx4 v[80:83], v141, {sr(S_RT,4)}, 0 offen {osc}")
    a(f"    buffer_store_dwordx4 v[84:87], v141, {sr(S_RT,4)}, 0 offen offset:64 {osc}")
    for q in range(16):
        a(f"    v_cmp_class_f32 {mask(q)}, v{64+q}, v146")
    for q in range(1, 16):
        a(f"    s_or_b64 {mask(0)}, {mask(0)}, {mask(q)}")
    a(f"""
    s_cbranch_scc0 K_fin
    v_mov_b32 v64, 1
    v_mov_b32 v65, {L_FLAG}
    ds_write_b32 v65, v64
    s_branch K_fin
K_idle:
    s_waitcnt lgkmcnt(0)
    s_barrier                                ; B9
K_fin:
    v_mov_b32 v65, {L_FLAG}
    s_waitcnt lgkmcnt(0)
    s_barrier                                ; B10
    ds_read_b32 v64, v65
    s_waitcnt lgkmcnt(0)
    v_cmp_ne_u32 vcc, 0, v64
    s_cbranch_vccnz K_slow""")
    if DIAG:
        a("    s_waitcnt vmcnt(0)")
        stamp(a, 18); stamp(a, 19, True)
        a(f"""
    v_writelane_b32 v{V_STAMP}, s{S_NT}, 21
    s_lshl_b32 s{S_A}, s2, 4
    s_add_u32 s{S_A}, s{S_A}, s{S_WAVE}
    s_lshl_b32 s{S_A}, s{S_A}, 8
    s_add_u32 s{S_A}, s{S_A}, {WS_STAMP}
    v_lshl_add_u32 v64, v{L}, 2, s{S_A}
    s_mov_b64 exec, 0xffffffff
    global_store_dword v64, v{V_STAMP}, {sr(S_WS,2)}
    global_store_dword v64, v{V_TRACE}, {sr(S_WS,2)} offset:128""")
    if optval("spin", "") != "":
        stamp(a, 18)
        a(f"""
    s_lshl_b32 s{S_A}, s2, 4
    s_add_u32 s{S_A}, s{S_A}, s{S_WAVE}
    s_cmp_lg_u32 s{S_A}, {100*16 + int(optval('sw', '0'))}
    s_cbranch_scc1 K_end
    s_lshl_b32 s{S_A}, s{S_TAG+1}, 7
    s_lshr_b32 s{S_B}, s{S_TAG}, 25
    s_or_b32 s{S_A}, s{S_A}, s{S_B}
    {"s_mov_b32 s100, s%d" % S_A if optval("spin", "") == "0" else ""}
    s_sub_u32 s{S_B}, s100, {"s99" if optval("from", "") else "s%d" % S_A}
    {f"s_lshr_b32 s{S_B}, s{S_B}, 4" if "cyc" in OPT else ""}
    s_min_u32 s{S_B}, s{S_B}, 20000
    s_mul_i32 s{S_B}, s{S_B}, {optval("mul", "10")}
    s_add_u32 s{S_B}, s{S_B}, {optval("base", "10000")}
K_spin:
    s_memrealtime s[100:101]
    s_waitcnt lgkmcnt(0)
    s_sub_u32 s100, s100, s{S_A}
    s_cmp_lt_u32 s100, s{S_B}
    s_cbranch_scc1 K_spin""")
    a(f"""
K_end:
    s_endpgm
K_slow:
    s_setprio 0
    s_mov_b32 s16, s{S_N0}
    s_mov_b32 s17, s{S_NN}
    s_mov_b32 s18, s{S_WAVE}""")
    gen_slow(a, 16, 17, 18, L, NLOG2E, NW=NW)
    a("    s_endpgm")

def main():
    global DIAG
    out = sys.argv[1]
    DIAG = "diag" in sys.argv[2:] or "lite" in sys.argv[2:]
    OPT.update(sys.argv[2:])
    a = Asm()
    a(f"""; Edge-featured MPNN layer: out[n] = sum_(e: dst=n) (silu([x[src],x[dst],e] w1 + b1) w2 + b2)
; @launch grid=(256,1,1) block=({NT_},1,1) lds={L_END}
.amdgcn_target "amdgcn-amd-amdhsa--gfx950"
.text""")
    gen_kernel(a)
    a(f"""
.section .rodata,"a"
.p2align 6
.amdhsa_kernel {KNAME}
  .amdhsa_next_free_vgpr {NVGPR}
  .amdhsa_next_free_sgpr 102
  .amdhsa_accum_offset {NVGPR}
  .amdhsa_group_segment_fixed_size 0
  .amdhsa_kernarg_size 88
  .amdhsa_user_sgpr_count 2
  .amdhsa_user_sgpr_kernarg_segment_ptr 1
  .amdhsa_system_sgpr_workgroup_id_x 1
  .amdhsa_float_denorm_mode_32 3
.end_amdhsa_kernel""")
    open(out, "w").write(a.text())

if __name__ == "__main__":
    main()
```

```python
import sys, struct
from slow import gen_slow

NAME = "standalone__edge_featured_mpnn_mpnn__graph"
KNAME = NAME + "_kernel"
N_NODES = 12500
NB = 49
NW = 12
NT_ = 64 * NW
MAINE = 4 * NT_
XTRA = 53
RSTRIDE = 16640

WS_REC = 0
WS_TAB = 0x420000
WS_P = 0x4C0000
WS_STAMP = 0xA00000

L_FLAG = 288
L_NONCE = 296
L_SX = 4096
L_Z = 320
L_RL = 4352
ENT_CAP = 3584
L_ST = L_RL + (ENT_CAP + 64) * 4
ST_STRIDE = 528
ZROW = NB + NW
L_QT = (L_ST + (ZROW + 1) * ST_STRIDE + 255) // 256 * 256
L_XS = L_QT + 56 * 512
L_W2 = L_XS + NW * 4096
L_B2 = L_W2 + 16384
L_T2 = L_B2 + 256
L_END = L_T2 + 16384
L_RS = L_ST
L_H1 = L_ST + 16640
L_OFF = L_H1 + 1024
L_W1 = L_XS
L_WC = L_XS + 32768
L_PS = L_WC + 512
L_XR = L_W2
PS_STRIDE = 272
assert L_XS % 256 == 0
assert L_END <= 163840 and L_H1 + 3072 <= L_ST + ZROW * ST_STRIDE and L_OFF + 1024 < 65536 and L_PS + 56 * PS_STRIDE <= L_W2

def f32bits(x):
    return struct.unpack("<I", struct.pack("<f", x))[0]
NLOG2E = f32bits(-1.4426950408889634)
NLN2 = f32bits(-0.6931471805599453)
PADREC = 0x3FFF
POLL_MAX = 4000

class Asm:
    def __init__(self):
        self.l = []
    def __call__(self, s=""):
        for x in s.strip("\n").split("\n"):
            self.l.append(x)
    def text(self):
        return "\n".join(self.l) + "\n"

def vr(a, n=1):
    return f"v{a}" if n == 1 else f"v[{a}:{a+n-1}]"
def sr(a, n=1):
    return f"s{a}" if n == 1 else f"s[{a}:{a+n-1}]"

DIAG = False
OPT = set()
def optval(prefix, default):
    for o in OPT:
        if o.startswith(prefix):
            return o[len(prefix):]
    return default

V_D = 0; V_E = 64; V_A5 = 96; V_B5 = 98; V_ND = 106; V_T = 122; V_R = 126; V_O = 128; V_IX = 132
V_AA = 140; V_AIDX = 141; V_AENT = 142; V_AQ = 143; V_INCQ = 144; V_AS = 145; V_MN = 146; V_PSEL = 147
V_TAB = 148; V_CNT = 149; V_B2 = 150; V_LANE = 154; V_TID = 155
V_J = 156; V_HH = 157
V_STAMP = 167; V_TRACE = 166
NVGPR = 168
S_X = 4; S_E = 6; S_SRC = 8; S_DST = 10; S_W1 = 12; S_B1 = 14; S_W2 = 16; S_B2 = 18; S_OUT = 20; S_DBG = 22; S_WS = 24
S_BIN = 26; S_N0 = 27; S_NN = 28; S_WAVE = 29; S_MODE = 30; S_K = 31; S_PC = 32; S_J = 34
S_RX = 36; S_RT = 40; S_RR = 44; S_P = 48
S_T0 = 56; S_NT = 57; S_TT = 58; S_SLOT = 59; S_A = 60; S_B = 61; S_C = 62; S_D = 63; S_TAG = 64
S_M = 66
S_PO = 98
S_OH = 66; S_PAR = 68; S_PAD = 70; S_MO = 71
def mask(k): return sr(S_M + 2*k, 2)

def stamp(a, k, real=False):
    if optval("spin", "") != "":
        op = "s_memtime" if "cyc" in OPT else "s_memrealtime"
        if int(optval("spin", "")) == k:
            a(f"    {op} s[100:101]\n    s_waitcnt lgkmcnt(0)")
        if optval("from", "") and int(optval("from", "")) == k:
            a(f"    {op} s[100:101]\n    s_waitcnt lgkmcnt(0)\n    s_mov_b32 s99, s100")
        return
    if not DIAG:
        return
    if "lite" in OPT and k not in (14, 16, 19):
        return
    a(f"    {'s_memrealtime' if real else 's_memtime'} s[100:101]")
    a(f"    s_waitcnt lgkmcnt(0)")
    a(f"    v_writelane_b32 v{V_STAMP}, s100, {k}")

def wave_scan(a, v):
    for sh in (1, 2, 4, 8):
        a(f"    s_nop 1")
        a(f"    v_add_u32_dpp v{v}, v{v}, v{v} row_shr:{sh} row_mask:0xf bank_mask:0xf")
    a(f"    s_nop 1")
    a(f"    v_add_u32_dpp v{v}, v{v}, v{v} row_bcast:15 row_mask:0xa bank_mask:0xf")
    a(f"    s_nop 1")
    a(f"    v_add_u32_dpp v{v}, v{v}, v{v} row_bcast:31 row_mask:0xc bank_mask:0xf")

SD = "dst_sel:DWORD dst_unused:UNUSED_PAD"

def small(c):
    d = vr(V_D + 16*c, 16)
    return f"    v_mfma_f32_32x32x8_bf16 {d}, {vr(V_A5,2)}, {vr(V_B5+2*c,2)}, {d}"
def tr_reads(h):
    return [f"    ds_read_b64_tr_b16 {vr(V_D+16*(2*h+k)+2*u,2)}, v{V_AA} offset:{512*u+64*k}" for u in range(8) for k in range(2)]
def ent_reads(off, q):
    h = [f"    ds_read_b32 v{V_A5+1}, v{V_AENT} offset:{off}"]
    if q:
        h += [f"    ds_read_b32 v{V_B5+2*c}, v{V_AQ} offset:{128*c}" for c in range(4)]
    return h
def idx_reads(off):
    return [f"    ds_read_u16 v{V_IX+2*m}, v{V_AIDX} offset:{off + 32*m}" for m in range(4)]
def dma_ops(h):
    return [f"    buffer_load_dwordx4 {vr(V_IX+2*m,2)}, {sr(S_RX,4)}, s{S_P+4*h+m} idxen offen offset:{1024*m} {optval('g_', '')} lds" for m in range(4)]

def x_phase(a, mf_cts, ex_cts, head, pre, plain, tail):
    es = [f"    v_exp_f32 v{V_E+16*k+2*u+b}, v{V_D+16*c+2*u+b}" for u in range(8) for k, c in enumerate(ex_cts) for b in range(2)]
    n1 = 22
    for h in head: a(h)
    for e in es[:n1-(4 if pre else 2)]: a(e)
    for p in plain: a(p)
    a(f"    s_waitcnt lgkmcnt(0)")
    if pre:
        a(pre[0]); a(es[n1-4]); a(pre[1]); a(pre[2]); a(es[n1-3]); a(pre[3])
    for e in es[n1-2:n1]: a(e)
    a(small(mf_cts[0]))
    for e in es[n1:n1+4]: a(e)
    a(small(mf_cts[1]))
    for e in es[n1+4:]: a(e)
    for t in tail: a(t)
    a(".p2align 3")

def flush_ops(a, cts):
    for k, c in enumerate(cts):
        D = V_ND + 4*c + 2
        a(f"    v_mul_f32 v{V_R+k}, v{D}, v{D+1}")
    for k, c in enumerate(cts):
        N = V_ND + 4*c; D = N + 2
        a(f"    v_pk_mul_f32 {vr(V_O+2*k,2)}, {vr(N,2)}, {vr(D,2)} op_sel:[0,1] op_sel_hi:[1,0]")
    for k, c in enumerate(cts):
        a(f"    v_rcp_f32 v{V_R+k}, v{V_R+k}")
    for k, c in enumerate(cts):
        a(f"    v_add_f32 v{V_O+2*k}, v{V_O+2*k}, v{V_O+2*k+1}")
    for k, c in enumerate(cts):
        a(f"    v_mul_f32 v{V_O+2*k}, v{V_O+2*k}, v{V_R+k}")
def flush_ops2(a, cts):
    a(f"    v_permlane32_swap_b32 v{V_O}, v{V_O+2}")
    a(f"    v_min3_f32 v{V_MN}, v{V_MN}, v{V_R}, v{V_R+1}")
    a(f"    v_add_f32 v{V_O}, v{V_O}, v{V_O+2}")
    a(f"    ds_write_b32 v{V_AS}, v{V_O} offset:{128*cts[0]}")

def y_phase(a, cts, b):
    nsrc = [V_ND + 4*c for c in cts]
    for u in range(8):
        if u == b:
            flush_ops(a, cts)
            for k, c in enumerate(cts):
                a(f"    v_pk_add_f32 {vr(V_ND+4*c+2,2)}, {vr(V_E+16*k+2*u,2)}, 1.0 op_sel_hi:[1,0]")
            flush_ops2(a, cts)
            for k, c in enumerate(cts):
                p = V_D + 16*c + 2*u
                if u == 7:
                    a(f"    v_pk_mov_b32 {vr(V_ND+4*c,2)}, {vr(p,2)}, {vr(p,2)} op_sel:[0,1]")
                else:
                    nsrc[k] = p
            continue
        for k, c in enumerate(cts):
            a(f"    v_pk_fma_f32 {vr(V_T+2*k,2)}, {vr(V_D+16*c+2*u,2)}, {vr(V_ND+4*c+2,2)}, {vr(nsrc[k],2)}")
        for k, c in enumerate(cts):
            D = V_ND + 4*c + 2
            a(f"    v_pk_fma_f32 {vr(D,2)}, {vr(D,2)}, {vr(V_E+16*k+2*u,2)}, {vr(D,2)}")
        for k, c in enumerate(cts):
            a(f"    v_pk_fma_f32 {vr(V_ND+4*c,2)}, {vr(nsrc[k],2)}, {vr(V_E+16*k+2*u,2)}, {vr(V_T+2*k,2)}")
            nsrc[k] = V_ND + 4*c

def onehot_ops():
    return [f"    v_cmp_ne_u32 vcc, s{S_PAD}, v{V_A5+1}",
            f"    s_xor_b64 {sr(S_OH,2)}, {sr(S_OH,2)}, {sr(S_PAR,2)}",
            f"    s_and_b64 vcc, vcc, {sr(S_OH,2)}",
            f"    v_cndmask_b32 v{V_A5}, 0, v{V_PSEL}, vcc"]
def mask_load():
    return [f"    s_sub_u32 s{S_MO}, s{S_J}, 4", f"    s_andn2_b32 s{S_MO}, s{S_MO}, 63",
            f"    s_load_dwordx2 {sr(S_OH,2)}, {sr(S_PC,2)}, s{S_MO}"]
def row_mask(b):
    sw = lambda i: (i & 0x19) | ((i & 2) << 1) | ((i & 4) >> 1)
    return sum(1 << i for i in range(32) if b is None or sw(i) < 4*b)

VAR_SIZE = 1792
def tile_variant(a, vi, b):
    name = "N" if b is None else str(b)
    a(f".org K_vbase + {VAR_SIZE*vi}, 0")
    a(f".long {row_mask(b):#x}, {row_mask(b) ^ 0xffffffff:#x}")
    a(f".org K_vbase + {VAR_SIZE*vi + 64 - 20}, 0")
    a(f"    s_setprio 2\n    s_branch K_var{name}\n    s_setprio 1\n    s_branch K_var{name}\n    s_setprio 0")
    a(f"K_var{name}:")
    bnd = b is not None
    if "trace" in OPT:
        a(f"    s_memtime s[100:101]\n    s_mov_b32 s{S_A}, m0\n    s_mov_b32 m0, s{S_K}\n    s_waitcnt lgkmcnt(0)")
        a(f"    v_writelane_b32 v{V_TRACE}, s100, m0\n    s_mov_b32 m0, s{S_A}")
    plain0 = []
    if bnd:
        plain0 = [f"    v_add_u32 v{V_AQ}, v{V_AQ}, v{V_INCQ}", f"    v_xor_b32 v{V_INCQ}, 0x400, v{V_INCQ}"]
    plain0.append(f"    v_readlane_b32 s{S_J}, v{V_TAB}, s{S_K}")
    x_phase(a, (2, 3), (0, 1), ["    s_waitcnt vmcnt(0)"] + tr_reads(1) + [f"K_vh{name}:"] + idx_reads(128), [], plain0,
            dma_ops(0) + [f"    s_add_u32 s{S_K}, s{S_K}, 1"] + mask_load() + ([f"    s_not_b64 {sr(S_PAR,2)}, {sr(S_PAR,2)}"] if bnd else []))
    y_phase(a, (0, 1), b)
    plain1 = [f"    v_add_u32 v{V_AENT}, 0x80, v{V_AENT}", f"    v_add_u32 v{V_AIDX}, 0x80, v{V_AIDX}"]
    x_phase(a, (0, 1), (2, 3), ["    s_waitcnt vmcnt(0)"] + ent_reads(128, bnd) + tr_reads(0),
            onehot_ops(), plain1,
            dma_ops(1) + [f"    s_add_u32 s{S_J}, s{S_J}, s{S_PC}", f"    s_addc_u32 s{S_J+1}, s{S_PC+1}, 0"])
    y_phase(a, (2, 3), b)
    if bnd:
        a(f"    v_add_u32 v{V_AS}, {ST_STRIDE}, v{V_AS}")
    a(f"    s_setpc_b64 {sr(S_J,2)}")

def gen_kernel(a):
    L = V_LANE; T = V_TID; J = V_J; HH = V_HH
    t0, t1, t2, t3, t4, t5 = 158, 159, 160, 161, 162, 163
    vDst = 0
    vSrc = 8
    vEa = 14
    vBa = 20
    vRk = 26
    vOf = 32
    vX = 40
    vWf = 56
    vAc = 72
    vTb = 88
    vZ = 128
    vPad = 56
    vWa = 38; vXa = 88; vTg = 18; vTa = 39; vC8 = 37; vWp = 31
    vG4 = 164; vSb = 165
    vS = 122; vP = 123; vOne = 124; vAA2 = 125; vPf = 126
    a(f"""
.p2align 8
.globl {KNAME}
.type {KNAME},@function
{KNAME}:
    s_cmp_ge_u32 s2, 256
    s_cbranch_scc1 K_end
    s_load_dwordx8 s[4:11], s[0:1], 0
    s_load_dwordx8 s[12:19], s[0:1], 32      ; w1, b1, w2, b2
    s_load_dwordx4 s[20:23], s[0:1], 64
    s_load_dwordx2 s[24:25], s[0:1], 80      ; ws
    s_memrealtime {sr(S_TAG,2)}
    v_lshrrev_b32 v1, 6, v0
    v_mov_b32 v{T}, v0
    v_readfirstlane_b32 s{S_WAVE}, v1
    v_and_b32 v{L}, 63, v0
    s_mul_i32 s3, s2, {MAINE*4}
    v_lshl_add_u32 v{t0}, v0, 4, s3          ; byte offset into src/dst
    v_lshrrev_b32 v{t1}, 1, v{t0}
    s_and_b32 s{S_BIN}, s2, 7
    s_lshl_b32 s{S_BIN}, s{S_BIN}, 5
    s_lshr_b32 s3, s2, 3
    s_add_u32 s{S_BIN}, s{S_BIN}, s3
    s_mul_i32 s{S_N0}, s{S_BIN}, {NB}
    s_sub_u32 s{S_NN}, {N_NODES}, s{S_N0}
    s_min_u32 s{S_NN}, s{S_NN}, {NB}
    v_and_b32 v{J}, 31, v0
    v_bfe_u32 v{HH}, v0, 5, 1
    s_mov_b32 s{S_MODE}, 0
    v_mov_b32 v{vZ}, 0
    v_mov_b32 v{vZ+1}, 0
    v_mov_b32 v{vZ+2}, 0
    v_mov_b32 v{vZ+3}, 0
    v_lshlrev_b32 v{t2}, 2, v0""")
    if DIAG:
        a(f"    v_mov_b32 v{V_STAMP}, 0\n    v_mov_b32 v{V_TRACE}, 0")
        stamp(a, 0, True); stamp(a, 1)
    wc = lambda c: V_B5 + 2*c
    vB1 = 97
    tc = 17
    ndual = int(optval("dual", "0"))
    cpos = optval("c_", "drain"); qpos = optval("q_", "post")
    def emit_consts():
        a(f"""
    v_and_b32 v{tc}, 7, v{L}
    v_lshlrev_b32 v{V_IX+1}, 4, v{tc}
    v_mov_b32 v{V_IX+3}, v{V_IX+1}
    v_mov_b32 v{V_IX+5}, v{V_IX+1}
    v_mov_b32 v{V_IX+7}, v{V_IX+1}
    v_and_b32 v{tc}, 8, v{L}
    v_lshl_add_u32 v{tc}, v{tc}, 4, v{vC8}
    v_lshl_add_u32 v{tc}, v{HH}, 8, v{tc}
    s_lshl_b32 s{S_B}, s{S_WAVE}, 12
    s_add_u32 s{S_B}, s{S_B}, {L_XS}
    v_add_u32 v{tc}, s{S_B}, v{tc}
    v_and_b32 v{t3}, 4, v{L}
    v_cmp_ne_u32 vcc, 0, v{t3}
    v_mov_b32 v{t3}, {L_Z}
    v_mov_b32 v{V_PSEL}, 0x3f803f80
    v_cndmask_b32 v{V_AA}, v{t3}, v{tc}, vcc
    v_add_u32 v{tc}, {L_T2 - L_XS}, v{tc}
    v_cndmask_b32 v{vAA2}, v{t3}, v{tc}, vcc
    v_and_b32 v{V_AENT}, 0x19, v{L}
    v_and_b32 v{tc}, 2, v{L}
    v_lshl_add_u32 v{V_AENT}, v{tc}, 1, v{V_AENT}
    v_bfe_u32 v{tc}, v{L}, 2, 1
    v_lshl_add_u32 v{V_AENT}, v{tc}, 1, v{V_AENT}
    v_lshlrev_b32 v{V_AENT}, 2, v{V_AENT}
    v_lshrrev_b32 v{V_AIDX}, 3, v{L}
    v_lshlrev_b32 v{V_AIDX}, 2, v{V_AIDX}""")
        for h in range(2):
            for m in range(4):
                a(f"    s_movk_i32 s{S_P+4*h+m}, {3072 - 1024*m + 128*h}")
        for c in range(4):
            a(f"    v_mov_b32 v{V_ND+4*c}, 0")
            a(f"    v_mov_b32 v{V_ND+4*c+1}, 0")
            a(f"    v_mov_b32 v{V_ND+4*c+2}, 1.0")
            a(f"    v_mov_b32 v{V_ND+4*c+3}, 1.0")
        a(f"""
    v_mov_b32 v{V_MN}, 1.0
    s_and_b32 s{S_A}, s{S_WAVE}, 3
    s_mul_i32 s{S_A}, s{S_A}, 3
    s_lshr_b32 s{S_B}, s{S_WAVE}, 2
    s_add_u32 s{S_SLOT}, s{S_A}, s{S_B}
    s_getpc_b64 {sr(S_PC,2)}
K_pc:
    s_add_u32 s{S_PC}, s{S_PC}, K_vbase - K_pc
    s_addc_u32 s{S_PC+1}, s{S_PC+1}, 0
    ; segment mapping of phase 2: segment 128 i + t/6, lane group g = t%6
    v_mul_u32_u24 v{tc}, 10923, v{T}
    v_lshrrev_b32 v{tc}, 16, v{tc}
    v_mad_i32_i24 v{vG4}, v{tc}, -6, v{T}
    v_lshlrev_b32 v{vG4}, 2, v{vG4}          ; 4g
    v_mul_u32_u24 v{vSb}, {RSTRIDE}, v{tc}
    s_lshr_b32 s{S_A}, s2, 3
    s_mul_i32 s{S_A}, s{S_A}, {781*128}
    s_add_u32 s{S_A}, s{S_A}, {WS_P}
    v_lshl_add_u32 v{vPf}, v{T}, 7, s{S_A}
    s_lshr_b32 s{S_B}, s{S_BIN}, 2
    s_lshl_b32 s{S_B}, s{S_B}, 4
    s_and_b32 s{S_A}, s{S_BIN}, 1
    s_lshl_b32 s{S_A}, s{S_A}, 3
    s_add_u32 s{S_B}, s{S_B}, s{S_A}
    s_and_b32 s{S_A}, s{S_BIN}, 2
    s_lshl_b32 s{S_A}, s{S_A}, 9
    s_add_u32 s{S_B}, s{S_B}, s{S_A}
    s_add_u32 s{S_B}, s{S_B}, {WS_TAB}
    v_lshl_add_u32 v{vTa}, v{tc}, 11, s{S_B} ; table entry offset""")
    def emit_q():
        a(f"""
    s_cmp_ge_u32 s{S_WAVE}, 8
    s_cbranch_scc1 K_notQ
    ; ---- Q tile while the stores drain
    s_lshl_b32 s{S_A}, s{S_D}, 6
    v_add_u32 v{t3}, s{S_A}, v{t0}
    ds_read_u16 v{vB1}, v{t3} offset:256
    v_add_u32 v{tc}, v{vWa}, v{vC8}""")
        for s_ in range(4):
            for h in range(2):
                a(f"    ds_read_b64_tr_b16 {vr(vWf+4*s_+2*h,2)}, v{tc} offset:{16384+4096*s_+1024*h}")
        a(f"""
    s_and_b32 s{S_A}, s{S_WAVE}, 1
    s_lshl_b32 s{S_B}, s{S_A}, 14
    s_lshl_b32 s{S_C}, s{S_D}, 7
    s_add_u32 s{S_B}, s{S_B}, s{S_C}
    s_add_u32 s{S_B}, s{S_B}, {L_QT}
    v_lshl_add_u32 v{tc}, v{HH}, 11, s{S_B}
    v_lshl_add_u32 v{tc}, v{J}, 2, v{tc}""")
        for s_ in range(4):
            a(f"    s_waitcnt lgkmcnt({6-2*s_})")
            cin = "0" if s_ == 0 else vr(vAc, 16)
            a(f"    v_mfma_f32_32x32x16_bf16 {vr(vAc,16)}, {vr(vX+4*s_,4)}, {vr(vWf+4*s_,4)}, {cin}")
        a(f"""
    v_lshlrev_b32 v{vB1}, 16, v{vB1}
    v_mul_f32 v{vB1}, s3, v{vB1}
    s_nop 9""")
        def qrow(r):
            a(f"    v_fma_f32 v{vAc+r}, v{vAc+r}, s3, v{vB1}")
            a(f"    v_cvt_pk_bf16_f32 v{vWf+r}, v{vZ}, v{vAc+r}")
            a(f"    v_sub_f32 v{vWf+r}, v{vAc+r}, v{vWf+r}")
            a(f"    v_cvt_pk_bf16_f32 v{vWf+r}, v{vAc+r}, v{vWf+r}")
            a(f"    ds_write_b32 v{tc}, v{vWf+r} offset:{512*(8*(r>>2)+(r&3))}")
        for r in range(12): qrow(r)
        a(f"""
    s_cmp_eq_u32 s{S_A}, 1
    s_cbranch_scc1 K_notQ""")
        for r in range(12, 16): qrow(r)
        a(f"""
K_notQ:
    ds_read_u16 v{wc(0)}, v{t0}
    ds_read_u16 v{wc(1)}, v{t0} offset:64
    ds_read_u16 v{wc(2)}, v{t0} offset:128
    ds_read_u16 v{wc(3)}, v{t0} offset:192
    v_cmp_lt_u32 vcc, 31, v{L}
    s_waitcnt lgkmcnt(0)""")
        for c in range(4):
            a(f"    v_lshlrev_b32 v{wc(c)}, 16, v{wc(c)}")
            a(f"    v_mul_f32 v{wc(c)}, s3, v{wc(c)}")
            a(f"    v_cvt_pk_bf16_f32 v{t3}, v{vZ}, v{wc(c)}")
            a(f"    v_sub_f32 v{t4}, v{wc(c)}, v{t3}")
            a(f"    v_cvt_pk_bf16_f32 v{t4}, v{vZ}, v{t4}")
            a(f"    v_cndmask_b32 v{V_B5+2*c+1}, v{t3}, v{t4}, vcc")
    step = NT_ * 16
    wc = lambda c: V_B5 + 2*c
    vB1 = 97
    a(f"""
    s_waitcnt lgkmcnt(0)
    global_load_dwordx4 {vr(vDst,4)}, v{t0}, {sr(S_DST,2)}
    {f"s_add_u32 s{S_WS}, s{S_WS}, {int(optval('wsoff', '0')) << 20}" if optval('wsoff', '') else ""}
    {f"s_addc_u32 s{S_WS+1}, s{S_WS+1}, 0" if optval('wsoff', '') else ""}
    {f"v_writelane_b32 v{V_STAMP}, s{S_TAG}, 0" if "lite" in OPT else ""}
    ds_write_b32 v{t2}, v{vZ} offset:{L_H1}
    s_cmp_lg_u32 s{S_WAVE}, 11
    s_cbranch_scc1 K_ld1
    s_mul_i32 s{S_A}, s2, {XTRA}
    s_add_u32 s{S_A}, s{S_A}, {256*MAINE}
    v_min_u32 v{t5}, {XTRA-1}, v{L}
    v_add_lshl_u32 v{t5}, v{t5}, s{S_A}, 2
    v_lshrrev_b32 v{t4}, 1, v{t5}
    global_load_dword v{vDst+4}, v{t5}, {sr(S_DST,2)}
    global_load_dword v{vSrc+4}, v{t5}, {sr(S_SRC,2)}
    global_load_ushort v{vEa+2}, v{t4}, {sr(S_E,2)}
K_ld1:""")
    if "nocpf" not in OPT:
        a(f"""
    ; the first workgroups pull the rest of the code into their die's L2
    s_cmp_ge_u32 s2, 32
    s_cbranch_scc1 K_ld2
    s_sub_u32 s{S_A}, s{S_WAVE}, 5
    s_cmp_ge_u32 s{S_A}, 3
    s_cbranch_scc1 K_ld2
    s_lshl_b32 s{S_A}, s{S_A}, 13
    v_lshl_add_u32 v{t5}, v{L}, 7, s{S_A}
    s_getpc_b64 {sr(S_J,2)}
    global_load_dword v{t4}, v{t5}, {sr(S_J,2)}
K_ld2:""")
    if optval("inv", ""):
        a(f"""
    s_cmp_ge_u32 s2, 8
    s_cbranch_scc1 K_ld4
    s_cmp_lg_u32 s{S_WAVE}, 3
    s_cbranch_scc1 K_ld4
    buffer_inv {optval("inv", "").replace("_", " ")}
K_ld4:""")
    if "tlb" in OPT:
        a(f"""
    s_cmp_lg_u32 s{S_WAVE}, 4
    s_cbranch_scc1 K_ld3
    v_mul_u32_u24 v{t5}, {4*RSTRIDE}, v{L}
    v_add_u32 v{t5}, {RSTRIDE - 4}, v{t5}
    s_mov_b32 s{S_A}, {WS_P - 4096}
    v_writelane_b32 v{t5}, s{S_A}, 1
    s_mov_b32 s{S_A}, {WS_P + N_NODES*256 + 4096}
    v_writelane_b32 v{t5}, s{S_A}, 3
    global_load_dword v{t4}, v{t5}, {sr(S_WS,2)}
K_ld3:""")
    a(f"""
    s_lshl_b32 s{S_A}, s2, 4
    s_add_u32 s{S_A}, s{S_A}, s{S_WAVE}
    s_cmp_lg_u32 s{S_A}, 9
    s_cbranch_scc1 K_ldJ
    s_lshl_b32 s{S_A}, s{S_TAG}, 25
    s_or_b32 s{S_A}, s{S_A}, 1
    {f"s_getreg_b32 s{S_B}, hwreg(HW_REG_XCC_ID, 0, 4)" if "xcc" in OPT else ""}
    {f"s_lshl_b32 s{S_B}, s{S_B}, 1" if "xcc" in OPT else ""}
    {f"s_or_b32 s{S_A}, s{S_A}, s{S_B}" if "xcc" in OPT else ""}
    s_lshr_b64 {sr(S_TAG,2)}, {sr(S_TAG,2)}, 7
    v_mov_b32 v{t4}, s{S_A}
    v_mov_b32 v{t4+1}, s{S_TAG}
    s_mov_b64 exec, 1
    global_store_dwordx2 v{vZ}, {vr(t4,2)}, {sr(S_DBG,2)} sc1
    s_mov_b64 exec, -1
K_ldJ:
    s_lshl_b32 s{S_A}, s{S_WAVE}, 11
    s_cmp_ge_u32 s{S_WAVE}, 8
    s_cbranch_scc1 K_stX
    s_add_u32 s{S_B}, s{S_A}, {L_W1}
    s_mov_b32 m0, s{S_B}
    v_lshrrev_b32 v{t3}, 2, v{L}
    v_and_b32 v{t3}, 12, v{t3}
    v_xor_b32 v{t3}, v{t3}, v{L}
    v_lshl_add_u32 v{t5}, v{t3}, 4, s{S_A}
    global_load_lds_dwordx4 v{t5}, {sr(S_W1,2)}
    global_load_lds_dwordx4 v{t5}, {sr(S_W1,2)} offset:1024
    s_branch K_stJ
K_stX:
    s_mov_b32 s{S_RX}, s4
    s_mov_b32 s{S_RX+1}, s5
    s_mov_b32 s{S_RX+2}, {N_NODES*128}
    s_mov_b32 s{S_RX+3}, 0x00020000
    s_add_u32 s{S_B}, s{S_A}, {L_XR - 16384}
    s_mov_b32 m0, s{S_B}
    s_lshl_b32 s{S_B}, s{S_N0}, 7
    s_add_u32 s{S_A}, s{S_A}, s{S_B}
    s_sub_u32 s{S_A}, s{S_A}, 16384
    v_lshrrev_b32 v{t3}, 4, v{L}
    v_xor_b32 v{t3}, v{t3}, v{L}
    v_lshl_add_u32 v{t3}, v{t3}, 4, s{S_A}
    v_xor_b32 v{t4}, 64, v{t3}
    buffer_load_dwordx4 v{t3}, {sr(S_RX,4)}, 0 offen lds
    buffer_load_dwordx4 v{t4}, {sr(S_RX,4)}, 0 offen offset:1024 lds
K_stJ:
    s_waitcnt lgkmcnt(0)
    s_barrier
    v_mov_b32 v{vPad}, {PADREC}
    v_mov_b32 v{vPad+1}, {PADREC}
    v_mov_b32 v{vPad+2}, {PADREC}
    v_mov_b32 v{vPad+3}, {PADREC}
    v_lshlrev_b32 v{t2}, 4, v{T}
    ds_write_b128 v{t2}, {vr(vPad,4)} offset:{L_RL}
    s_cmp_ge_u32 s{S_WAVE}, 4
    s_cbranch_scc1 K_in1
    ds_write_b128 v{t2}, {vr(vZ,4)}
    ds_write_b128 v{t2}, {vr(vPad,4)} offset:{L_ST - 4096}
K_in1:
    s_cmp_lg_u32 s{S_WAVE}, 4
    s_cbranch_scc1 K_in2
    v_lshlrev_b32 v{t3}, 3, v{L}
    v_add_u32 v{t3}, {L_ST + ZROW*ST_STRIDE}, v{t3}
    ds_write_b64 v{t3}, {vr(vZ,2)}
K_in2:
    global_load_dwordx4 {vr(vSrc,4)}, v{t0}, {sr(S_SRC,2)}
    global_load_dwordx2 {vr(vEa,2)}, v{t1}, {sr(S_E,2)}
    s_cmp_ge_u32 s{S_WAVE}, 8
    s_cbranch_scc1 K_st2
    s_add_u32 m0, m0, 16384
    v_add_u32 v{t5}, 0x4000, v{t5}
    global_load_lds_dwordx4 v{t5}, {sr(S_W1,2)}
    global_load_lds_dwordx4 v{t5}, {sr(S_W1,2)} offset:1024
    s_branch K_st3
K_st2:
    s_mov_b32 m0, {L_WC}
    v_lshlrev_b32 v{t3}, 2, v{L}
    v_add_u32 v{t4}, 0x8000, v{t3}
    global_load_lds_dword v{t4}, {sr(S_W1,2)}
    s_mov_b32 m0, {L_WC + 256}
    s_nop 0
    global_load_lds_dword v{t3}, {sr(S_B1,2)}
K_st3:
    v_and_b32 v{vC8}, 3, v{L}
    v_lshlrev_b32 v{vC8}, 3, v{vC8}
    v_and_b32 v{t1}, 16, v{L}
    v_lshl_add_u32 v{vC8}, v{t1}, 1, v{vC8}    ; 8c + 32(g&1)
""")
    if cpos == "early": emit_consts()
    a(f"""
    s_lshr_b32 s{S_D}, s{S_WAVE}, 1          ; ct
    v_bfe_u32 v{t0}, v{L}, 2, 2
    v_xor_b32 v{t3}, s{S_D}, v{t0}
    v_lshlrev_b32 v{t3}, 6, v{t3}
    v_lshl_add_u32 v{t0}, v{HH}, 3, v{t0}
    v_lshl_add_u32 v{t0}, v{t0}, 8, v{t3}
    v_add_u32 v{vWa}, {L_W1}, v{t0}
    v_and_b32 v{vWp}, 1, v{L}
    v_lshl_add_u32 v{vWp}, v{vWp}, 5, v{vWa}
    v_and_b32 v{t3}, 16, v{L}
    v_add_u32 v{vWp}, v{vWp}, v{t3}
    v_and_b32 v{t3}, 2, v{L}
    v_lshl_add_u32 v{vWp}, v{t3}, 2, v{vWp}    ; + 16(c&1) + 4(2(g&1) + (c>>1)) columns
    s_and_b32 s{S_A}, s{S_WAVE}, 1
    s_lshl_b32 s{S_A}, s{S_A}, 12
    s_add_u32 s{S_A}, s{S_A}, {L_XR}
    v_bfe_u32 v{t3}, v{L}, 1, 3
    v_xor_b32 v{t3}, v{t3}, v{HH}
    v_lshl_add_u32 v{t3}, v{t3}, 4, s{S_A}
    v_lshl_add_u32 v{vXa}, v{J}, 7, v{t3}
    v_xor_b32 v{vXa+1}, 32, v{vXa}
    v_xor_b32 v{vXa+2}, 64, v{vXa}
    v_xor_b32 v{vXa+3}, 0x60, v{vXa}
    s_mov_b32 s{S_A}, 21400
    s_mov_b32 s{S_B}, -{NB}
    s_mov_b32 s{S_C}, 0xffff0000
    v_mov_b32 v{t5}, 0x10004
    s_waitcnt vmcnt(6)
    s_cmp_lg_u32 s{S_WAVE}, 11
    s_cbranch_scc1 K_wJ
    s_bfm_b64 exec, {XTRA}, 0""")
    assert L_ST - L_RL <= step + 4096
    def binops(cols):
        for i in cols: a(f"    v_mul_u32_u24 v{vBa+i}, s{S_A}, v{vDst+i}")
        for i in cols: a(f"    v_lshrrev_b32 v{vBa+i}, 18, v{vBa+i}")
        for i in cols:
            a(f"    v_and_b32 v{vBa+i}, 0x3fc, v{vBa+i}")
            a(f"    ds_add_rtn_u32 v{vRk+i}, v{vBa+i}, v{t5} offset:{L_H1}")
        for i in cols: a(f"    v_lshlrev_b32 v{vDst+i}, 2, v{vDst+i}")
        for i in cols: a(f"    v_mad_i32_i24 v{vDst+i}, v{vBa+i}, s{S_B}, v{vDst+i}")
    binops([4])
    a(f"""
    s_mov_b64 exec, -1
K_wJ:""")
    stamp(a, 2)
    binops(range(4))
    a(f"""
    s_waitcnt vmcnt(4) lgkmcnt(0)""")
    rot = "rotp" in OPT
    if rot:
        a(f"""
    s_cmp_lg_u32 s{S_WAVE}, 9
    s_cbranch_scc1 K_nt9
    global_load_dwordx2 {vr(vTg,2)}, v{vZ}, {sr(S_DBG,2)}
K_nt9:""")
    a(f"""
    s_barrier""")
    stamp(a, 3)
    a(f"""
    s_cmp_eq_u32 s{S_WAVE}, 8
    s_cbranch_scc1 K_scan1
    s_cmp_gt_u32 s{S_WAVE}, 8
    s_cbranch_scc1 K_notP""")
    for s_ in range(4):
        a(f"    ds_read_b128 {vr(vX+4*s_,4)}, v{vXa+s_}")
        for h in range(2):
            a(f"    ds_read_b64_tr_b16 {vr(vWf+4*s_+2*h,2)}, v{vWp} offset:{4096*s_+1024*h}")
    for s_ in range(4):
        a(f"    s_waitcnt lgkmcnt({9-3*s_})")
        cin = "0" if s_ == 0 else vr(vAc, 16)
        a(f"    v_mfma_f32_32x32x16_bf16 {vr(vAc,16)}, {vr(vWf+4*s_,4)}, {vr(vX+4*s_,4)}, {cin}")
    a(f"""
    s_and_b32 s{S_B}, s{S_WAVE}, 1
    s_mul_i32 s{S_A}, s{S_B}, {32*PS_STRIDE}
    s_lshl_b32 s{S_B}, s{S_D}, 6
    s_add_u32 s{S_A}, s{S_A}, s{S_B}
    s_add_u32 s{S_A}, s{S_A}, {L_PS}
    v_mul_u32_u24 v{t3}, {PS_STRIDE}, v{J}
    v_lshl_add_u32 v{t3}, v{HH}, 5, v{t3}
    v_add_u32 v{t3}, s{S_A}, v{t3}
    v_mov_b32 v{t4}, {NLOG2E:#x}
    v_cmp_gt_u32 vcc, {L_PS + 56*PS_STRIDE}, v{t3}
    s_nop 1""")
    for q in range(8):
        a(f"    v_pk_mul_f32 {vr(vAc+2*q,2)}, {vr(vAc+2*q,2)}, {vr(t4,2)} op_sel_hi:[1,0]")
    for q in range(8):
        a(f"    v_cvt_pk_bf16_f32 v{vAc+q}, v{vAc+2*q}, v{vAc+2*q+1}")
    a(f"""
    s_mov_b64 exec, vcc
    ds_write_b128 v{t3}, {vr(vAc,4)}
    ds_write_b128 v{t3}, {vr(vAc+4,4)} offset:16
    s_mov_b64 exec, -1
    s_branch K_b3
K_notP:
    v_lshlrev_b32 v{t1}, 4, v{L}
    v_add_u32 v{t4}, {L_PS + 48*PS_STRIDE}, v{t1}
    v_add_u32 v{t1}, {48*256}, v{t1}
    v_and_b32 v{vBa+4}, 0x3fc, v{vBa+4}
""")
    if rot:
        a(f"""
    s_cmp_lg_u32 s{S_WAVE}, 9
    s_cbranch_scc1 K_b3
    s_mov_b32 s{S_K}, 0
    s_waitcnt vmcnt(0)
K_tagp:
    v_cmp_ne_u32 vcc, 0, v{vTg}
    s_cbranch_vccnz K_tagok
    s_add_u32 s{S_K}, s{S_K}, 1
    s_cmp_gt_u32 s{S_K}, {POLL_MAX}
    s_cbranch_scc1 K_tagok
    global_load_dwordx2 {vr(vTg,2)}, v{vZ}, {sr(S_DBG,2)} sc1
    s_waitcnt vmcnt(0)
    s_branch K_tagp
K_tagok:
    ds_write_b64 v{vZ}, {vr(vTg,2)} offset:{L_NONCE}""")
    a(f"""
    s_branch K_b3
K_scan1:
    s_setprio 2
    {"" if rot else f"global_load_dwordx2 {vr(vTg,2)}, v{vZ}, {sr(S_DBG,2)}"}
    v_lshlrev_b32 v{t0}, 4, v{L}
    ds_read_b128 v[56:59], v{t0} offset:{L_H1}
    s_waitcnt lgkmcnt(0)""")
    for i in range(4):
        a(f"    v_lshrrev_b32 v{60+i}, 16, v{56+i}")
    for i in range(4):
        a(f"    v_mad_u32_u24 v{64+i}, v{60+i}, 5, 3")
    for i in range(4):
        a(f"    v_and_b32 v{64+i}, -4, v{64+i}")
    a(f"""
    v_add_u32 v65, v64, v65
    v_add_u32 v66, v65, v66
    v_add_u32 v67, v66, v67
    v_mov_b32 v68, v67""")
    wave_scan(a, 68)
    a(f"""
    v_sub_u32 v68, v68, v67
    v_add_u32 v69, v68, v64
    v_add_u32 v70, v68, v65
    v_add_u32 v71, v68, v66
    s_mov_b32 s{S_A}, 0x10001""")
    for i in range(4):
        a(f"    v_mul_u32_u24 v{64+i}, s{S_A}, v{68+i}")
    for i in range(4):
        a(f"    v_lshl_add_u32 v{64+i}, v{56+i}, 16, v{64+i}")
    a(f"""
    ds_write_b128 v{t0}, v[64:67] offset:{L_OFF}
    s_setprio 0
K_b3:
    v_lshrrev_b32 v{t0}, 4, v{T}
    v_lshl_add_u32 v{t0}, v{t0}, 4, v{t2}
    v_add_u32 v{t0}, {L_PS}, v{t0}
    s_lshl_b32 s{S_A}, s{S_N0}, 8
    s_add_u32 s{S_A}, s{S_A}, {WS_P + (0x800000 if optval("cheat", "") else 0)}
    s_add_u32 s{S_RT}, s{S_WS}, s{S_A}
    s_addc_u32 s{S_RT+1}, s{S_WS+1}, 0
    s_lshl_b32 s{S_RT+2}, s{S_NN}, 8
    s_mov_b32 s{S_RT+3}, 0x00020000
    s_waitcnt lgkmcnt(0)
    s_barrier                                ; B3: segment offsets""")
    stamp(a, 4)
    a(f"""
    s_cmp_lt_u32 s{S_WAVE}, 10
    s_cbranch_scc1 K_nx0
    ds_read_b32 v{vOf+4}, v{vBa+4} offset:{L_OFF}
    ds_read_b128 v[76:79], v{t4}
K_nx0:""")
    split = "split" in OPT
    if split:
        a(f"""
    s_cmp_lt_u32 s{S_WAVE}, 9
    s_cbranch_scc1 K_sp0
    v_subrev_u32 v{t0}, {36*PS_STRIDE}, v{t0}
    v_subrev_u32 v{t3}, {9*1024}, v{t2}
    ds_read_b128 v[40:43], v{t0}
    ds_read_b128 v[44:47], v{t0} offset:{12*PS_STRIDE}
    ds_read_b128 v[48:51], v{t0} offset:{24*PS_STRIDE}
    ds_read_b128 v[52:55], v{t0} offset:{36*PS_STRIDE}
    s_movk_i32 s{S_A}, 6144
    s_waitcnt vmcnt(0) lgkmcnt(0)
    buffer_store_dwordx4 v[40:43], v{t3}, {sr(S_RT,4)}, 0 offen sc1
    buffer_store_dwordx4 v[44:47], v{t3}, {sr(S_RT,4)}, 0 offen offset:3072 sc1
    buffer_store_dwordx4 v[48:51], v{t3}, {sr(S_RT,4)}, s{S_A} offen sc1
    buffer_store_dwordx4 v[52:55], v{t3}, {sr(S_RT,4)}, s{S_A} offen offset:3072 sc1
    s_branch K_sp1
K_sp0:
    s_waitcnt vmcnt(2)
K_sp1:""")
    else:
        if rot: a(f"    ds_read_b64 {vr(vTg,2)}, v{vZ} offset:{L_NONCE}")
        a(f"    ds_read_b128 v[72:75], v{t0}")
    for i in range(4):
        a(f"    ds_read_b32 v{vOf+i}, v{vBa+i} offset:{L_OFF}")
    a(f"""
    {"" if split else "s_waitcnt vmcnt(2)"}
    v_lshl_or_b32 v{vSrc}, v{vEa}, 16, v{vSrc}
    v_and_or_b32 v{vSrc+1}, v{vEa}, s{S_C}, v{vSrc+1}
    v_lshl_or_b32 v{vSrc+2}, v{vEa+1}, 16, v{vSrc+2}
    v_and_or_b32 v{vSrc+3}, v{vEa+1}, s{S_C}, v{vSrc+3}
    s_waitcnt lgkmcnt(4)""")
    if rot:
        a(f"""
    v_readfirstlane_b32 s{S_TAG}, v{vTg}
    v_readfirstlane_b32 s{S_TAG+1}, v{vTg+1}
    s_xor_b32 s{S_PO}, s{S_TAG}, s{S_TAG+1}
    s_mul_i32 s{S_PO}, s{S_PO}, 0x9E3779B1
    s_lshr_b32 s{S_PO}, s{S_PO}, 27
    s_add_u32 s{S_PO}, s{S_PO}, 3
    s_lshl_b32 s{S_PO}, s{S_PO}, 22
    s_add_u32 s{S_RT}, s{S_RT}, s{S_PO}
    s_addc_u32 s{S_RT+1}, s{S_RT+1}, 0""")
    a(f"""
    {"" if split else f"buffer_store_dwordx4 v[72:75], v{t2}, {sr(S_RT,4)}, 0 offen sc1"}""")
    def scatter(i):
        a(f"    v_add_u32_sdwa v{vBa+i}, v{vOf+i}, v{vRk+i} {SD} src0_sel:WORD_0 src1_sel:WORD_0")
        a(f"    v_add_u32_sdwa v{vOf+i}, v{vOf+i}, v{vRk+i} {SD} src0_sel:WORD_1 src1_sel:WORD_1")
        a(f"    ds_write_b32 v{vBa+i}, v{vSrc+i} offset:{L_RS}")
        a(f"    ds_write_b8 v{vOf+i}, v{vDst+i} offset:{L_RS}")
    a(f"    s_waitcnt lgkmcnt(0)")
    for i in range(4): scatter(i)
    stamp(a, 22)
    if qpos == "drain":
        a(f"""
    s_cmp_eq_u32 s{S_WAVE}, 8
    s_cbranch_scc1 K_nx2
    s_waitcnt vmcnt(1)""")
    a(f"""
    s_cmp_lt_u32 s{S_WAVE}, 10
    s_cbranch_scc1 K_nx2
    s_cmp_eq_u32 s{S_WAVE}, 11
    s_cbranch_scc1 K_x2
    buffer_store_dwordx4 v[76:79], v{t1}, {sr(S_RT,4)}, 0 offen sc1
    s_branch K_nx2
K_x2:
    s_bfm_b64 exec, {XTRA}, 0
    v_lshl_or_b32 v{vSrc+4}, v{vEa+2}, 16, v{vSrc+4}""")
    scatter(4)
    a(f"""
    s_mov_b64 exec, -1
K_nx2:
    s_mul_i32 s{S_A}, s2, {RSTRIDE}
    s_add_u32 s{S_RR}, s{S_WS}, s{S_A}
    s_addc_u32 s{S_RR+1}, s{S_WS+1}, 0
    s_mov_b32 s{S_RR+2}, 16512
    s_mov_b32 s{S_RR+3}, 0x00020000
    v_add_u32 v{t3}, {9216 if split else step}, v{t2}
    s_waitcnt lgkmcnt(0)""")
    stamp(a, 23)
    a(f"""
    s_barrier""")
    stamp(a, 5)
    a(f"""
    {f"s_cmp_ge_u32 s{S_WAVE}, 9" if split else ""}
    {"s_cbranch_scc1 K_co2" if split else ""}
    ds_read_b128 v[0:3], v{t2} offset:{L_RS}
    s_cmp_ge_u32 s{S_WAVE}, {8 if split else 5}
    s_cbranch_scc1 K_co1
    ds_read_b128 v[8:11], v{t2} offset:{L_RS + (9216 if split else step)}
    s_waitcnt lgkmcnt(0)
    buffer_store_dwordx4 v[8:11], v{t3}, {sr(S_RR,4)}, 0 offen sc1
K_co1:
    s_waitcnt lgkmcnt(0)
    buffer_store_dwordx4 v[0:3], v{t2}, {sr(S_RR,4)}, 0 offen sc1
K_co2:
""")
    if optval("cheat", ""):
        a(f"""
    s_cmp_ge_u32 s{S_WAVE}, {optval("cheat", "")}
    s_cbranch_scc1 K_ch0
    s_lshr_b32 s{S_A}, s2, 3
    s_mul_i32 s{S_A}, s{S_A}, {781*128}
    s_add_u32 s{S_A}, s{S_A}, {WS_P}
    v_lshl_add_u32 v14, v{T}, 7, s{S_A}
    global_load_dword v14, v14, {sr(S_WS,2)}
K_ch0:""")
    a(f"""
    s_mov_b32 s3, {NLOG2E:#x}
    v_lshlrev_b32 v{t0}, 1, v{J}
    v_add_u32 v{t0}, {L_WC}, v{t0}
""")
    stamp(a, 24)
    if cpos == "drain": emit_consts()
    if qpos == "drain":
        emit_q(); stamp(a, 7)
    stamp(a, 25)
    a(f"""
    s_cmp_lg_u32 s{S_WAVE}, 8
    s_cbranch_scc1 K_ntb
    ; wave 8: the launch tag and the table entries""")
    if rot:
        a(f"    v_cmp_ne_u32 vcc, 0, v{vTg}")
    else:
        a(f"""
    s_mov_b32 s{S_K}, 0
    s_waitcnt vmcnt({1 if split else 2})
K_tagp:
    v_cmp_ne_u32 vcc, 0, v{vTg}
    s_cbranch_vccnz K_tagok
    s_add_u32 s{S_K}, s{S_K}, 1
    s_cmp_gt_u32 s{S_K}, {POLL_MAX}
    s_cbranch_scc1 K_tagok
    global_load_dwordx2 {vr(vTg,2)}, v{vZ}, {sr(S_DBG,2)} sc1
    s_waitcnt vmcnt(0)
    s_branch K_tagp
K_tagok:
    ds_write_b64 v{vZ}, {vr(vTg,2)} offset:{L_NONCE}""")
    a(f"""
    v_and_b32 v{t3}, 0xfe000000, v{vTg}
    s_lshl_b32 s{S_B}, s2, 11
    s_add_u32 s{S_B}, s{S_B}, {WS_TAB}
    v_lshl_add_u32 v{t1}, v{L}, 4, s{S_B}""")
    for i in range(4):
        a(f"    v_lshrrev_b32 v{68+i}, 2, v{68+i}")
        a(f"    v_lshl_or_b32 v{68+i}, v{60+i}, 13, v{68+i}")
        a(f"    v_or_b32 v{vTb+2*i}, v{t3}, v{68+i}")
        a(f"    v_mov_b32 v{vTb+2*i+1}, v{vTg+1}")
    a(f"""
    s_waitcnt vmcnt(0) lgkmcnt(0)
    s_barrier                                ; B5
    s_cbranch_vccz K_slow
    global_store_dwordx4 v{t1}, {vr(vTb,4)}, {sr(S_WS,2)} sc1
    global_store_dwordx4 v{t1}, {vr(vTb+4,4)}, {sr(S_WS,2)} offset:1024 sc1
    s_branch K_b5j
K_ntb:
    {f"s_cmp_ge_u32 s{S_WAVE}, 9" if split else ""}
    {"s_cbranch_scc1 K_sp2" if split else ""}
    s_waitcnt vmcnt(0)
K_sp2:
    s_barrier
K_b5j:""")
    stamp(a, 6)
    a(f"""
    {"" if rot else f"ds_read_b64 {vr(vTg,2)}, v{vZ} offset:{L_NONCE}"}
    s_waitcnt lgkmcnt(0)
    v_readfirstlane_b32 s{S_TAG}, v{vTg}
    v_readfirstlane_b32 s{S_TAG+1}, v{vTg+1}
    s_cmp_eq_u32 s{S_TAG}, 0
    s_cbranch_scc1 K_slow
    s_cmp_lt_u32 s{S_WAVE}, 8
    s_cbranch_scc1 K_lb2
    s_sub_u32 s{S_A}, s{S_WAVE}, 8
    s_lshl_b32 s{S_A}, s{S_A}, 12
    s_add_u32 s{S_B}, s{S_A}, {L_W2}
    s_mov_b32 m0, s{S_B}
    v_lshl_add_u32 v{t3}, v{L}, 4, s{S_A}
    global_load_lds_dwordx4 v{t3}, {sr(S_W2,2)}
    global_load_lds_dwordx4 v{t3}, {sr(S_W2,2)} offset:1024
    global_load_lds_dwordx4 v{t3}, {sr(S_W2,2)} offset:2048
    global_load_lds_dwordx4 v{t3}, {sr(S_W2,2)} offset:3072
    s_branch K_lbJ
K_lb2:
    s_cmp_lg_u32 s{S_WAVE}, 7
    s_cbranch_scc1 K_lbJ
    s_mov_b32 m0, {L_B2}
    v_lshlrev_b32 v{t3}, 2, v{J}
    global_load_lds_dword v{t3}, {sr(S_B2,2)}
K_lbJ:""")
    if cpos == "post": emit_consts()
    if qpos == "post": emit_q()
    a(f"""
    s_lshl_b32 s{S_B}, s{S_WAVE}, 12
    s_add_u32 s{S_B}, s{S_B}, {L_XS}
    s_mov_b32 m0, s{S_B}
    v_mov_b32 v{t5}, v{vTa}""")
    if qpos == "post": stamp(a, 7)
    vT = 0
    vN = 4
    vAr = 6
    vR = 12
    vM = 28
    vA = 32
    vK = 48
    vB = 64
    vG = 80
    a(f"""
    s_mov_b32 s{S_RR}, s{S_WS}
    s_mov_b32 s{S_RR+1}, s{S_WS+1}
    s_mov_b32 s{S_RR+2}, {WS_P + N_NODES*256}
    s_mov_b32 s{S_A}, {128*2048}
    s_mov_b32 s{S_B}, {128*RSTRIDE}
    s_mov_b32 s{S_C}, 0xfe000000
    s_movk_i32 s{S_D}, 0xfc
    s_mov_b32 s{S_K}, 0
    {"s_sleep " + optval("fs", "0") if optval("fs", "0") != "0" else ""}
    s_mov_b64 {mask(0)}, -1
    s_mov_b64 {mask(1)}, -1
    v_mov_b32 v{vM}, 0
    v_mov_b32 v{vM+1}, 0
K_poll:
    s_mov_b64 exec, {mask(0)}
    s_cbranch_execz K_pl0
    buffer_load_dwordx2 {vr(vT,2)}, v{t5}, {sr(S_RR,4)}, 0 offen sc1
K_pl0:
    s_mov_b64 exec, {mask(1)}
    s_cbranch_execz K_pl1
    buffer_load_dwordx2 {vr(vT+2,2)}, v{t5}, {sr(S_RR,4)}, s{S_A} offen sc1
K_pl1:
    s_mov_b64 exec, -1
    s_waitcnt vmcnt(0)""")
    for i in range(2):
        a(f"    v_xor_b32 v{vN+i}, s{S_TAG}, v{vT+2*i}")
        a(f"    v_xor_b32 v{vAr+i}, s{S_TAG+1}, v{vT+2*i+1}")
        a(f"    v_and_or_b32 v{vAr+i}, v{vN+i}, s{S_C}, v{vAr+i}")
        a(f"    v_cmp_ne_u32 {mask(i)}, 0, v{vAr+i}")
    a(f"""
    s_add_u32 s{S_K}, s{S_K}, 1
    s_or_b64 vcc, {mask(0)}, {mask(1)}
    s_cbranch_scc0 K_got
    {"s_sleep " + optval("ps", "0") if optval("ps", "0") != "0" else ""}
    s_cmp_lt_u32 s{S_K}, {POLL_MAX}
    s_cbranch_scc1 K_poll
    ; gave up: no records from this wave, ask for the slow path
    s_mov_b32 s{S_MODE}, 1
    s_branch K_nor2a
K_got:""")
    if DIAG:
        a(f"    v_writelane_b32 v{V_STAMP}, s{S_K}, 20")
    stamp(a, 8)
    so = ["0", sr(S_B)]
    for i in range(2):
        a(f"    v_and_b32 v{vAr+i}, 0x1fff, v{vT+2*i}")
        a(f"    v_bfe_u32 v{vT+2*i+1}, v{vT+2*i}, 13, 12")
        a(f"    v_lshl_add_u32 v{vAr+i}, v{vAr+i}, 2, v{vSb}")
        a(f"    v_sub_u32 v{vN+i}, v{vT+2*i+1}, v{vG4}")
        a(f"    v_lshl_add_u32 v{vAr+2+i}, v{vT+2*i+1}, 2, v{vAr+i}")
        a(f"    v_cmp_lt_i32 {mask(4*i)}, 0, v{vN+i}")
        a(f"    v_lshl_add_u32 v{vAr+i}, v{vG4}, 2, v{vAr+i}")
        a(f"    v_add_u32 v{vAr+2+i}, v{vAr+2+i}, v{vG4}")
        a(f"    s_or_b64 exec, {mask(4*i)}, 1")
        a(f"    buffer_load_dword v{vM+i}, v{vAr+2+i}, {sr(S_RR,4)}, {so[i]} offen")
        a(f"    buffer_load_dwordx4 {vr(vR+4*i,4)}, v{vAr+i}, {sr(S_RR,4)}, {so[i]} offen")
        a(f"    s_mov_b64 exec, -1")
    for i in range(2):
        for k in range(1, 4):
            a(f"    v_cmp_lt_i32 {mask(4*i+k)}, {k}, v{vN+i}")
    a(f"""
    v_max_i32 v{t1}, v{vN}, v{vN+1}
    v_cmp_lt_i32 vcc, 24, v{t1}
    s_mov_b32 s{S_K}, 0
    s_cbranch_vccz K_nor2a
    s_mov_b32 s{S_K}, 1""")
    for i in range(2):
        a(f"    buffer_load_dword v{vM+2+i}, v{vAr+2+i}, {sr(S_RR,4)}, {so[i]} offen offset:24")
        a(f"    buffer_load_dwordx4 {vr(vR+8+4*i,4)}, v{vAr+i}, {sr(S_RR,4)}, {so[i]} offen offset:96")
        for k in range(4):
            a(f"    v_cmp_lt_i32 {mask(8+4*i+k)}, {24+k}, v{vN+i}")
    a(f"""
    v_cmp_lt_i32 vcc, 48, v{t1}
    s_cbranch_vccz K_nor2a
    s_mov_b32 s{S_MODE}, 1
K_nor2a:
    v_mov_b32 v{t4}, {L_FLAG}
    v_mov_b32 v{t0}, 4
    s_cmp_eq_u32 s{S_MODE}, 0
    s_cbranch_scc1 K_nofl
    ds_write_b32 v{t4}, v{t0}
K_nofl:
    s_waitcnt lgkmcnt(0)
    s_barrier
    ds_read_b32 v{t3}, v{t4}
    s_add_u32 s{S_RX}, s{S_WS}, {WS_P - 3072}
    s_addc_u32 s{S_RX+1}, s{S_WS+1}, 0
    {f"s_add_u32 s{S_RX}, s{S_RX}, s{S_PO}" if rot else ""}
    {f"s_addc_u32 s{S_RX+1}, s{S_RX+1}, 0" if rot else ""}
    {f"v_add_u32 v{vPf}, s{S_PO}, v{vPf}" if rot else ""}
    s_and_b32 s{S_RX+1}, s{S_RX+1}, 0xffff
    s_or_b32 s{S_RX+1}, s{S_RX+1}, 0x01000000
    s_mov_b32 s{S_RX+2}, {N_NODES}
    s_mov_b32 s{S_RX+3}, 0x00020000
    s_waitcnt lgkmcnt(0)
    v_cmp_ne_u32 vcc, 0, v{t3}
    s_cbranch_vccnz K_slow""")
    pf0 = int(optval("pf", "8"))
    a(f"""
    s_cmp_lt_u32 s{S_WAVE}, {pf0}
    s_cbranch_scc1 K_npf
    global_load_dword v{t5}, v{vPf}, {sr(S_WS,2)}
    s_waitcnt vmcnt(1)
    s_branch K_pfJ
K_npf:
    s_waitcnt vmcnt(0)
K_pfJ:""")
    stamp(a, 9)
    def rec_reg(k): return vR + k
    def count_cols(ks):
        for k in ks:
            a(f"    v_and_b32_sdwa v{vA+k}, v{vM+k//4}, s{S_D} {SD} src0_sel:BYTE_{k%4} src1_sel:DWORD")
        for k in ks:
            a(f"    s_mov_b64 exec, {mask(k)}")
            a(f"    ds_add_rtn_u32 v{vK+k}, v{vA+k}, v{t0}")
        a(f"    s_mov_b64 exec, -1")
    count_cols(range(8))
    a(f"""
    s_cmp_eq_u32 s{S_K}, 0
    s_cbranch_scc1 K_nor2b""")
    count_cols(range(8, 16))
    a(f"""
K_nor2b:
    v_lshlrev_b32 v{t1}, 2, v{L}
    v_cmp_gt_u32 vcc, s{S_NN}, v{L}
    s_waitcnt lgkmcnt(0)
    s_barrier""")
    stamp(a, 10)
    a(f"""
    ds_read_b32 v{V_CNT}, v{t1}
    s_waitcnt lgkmcnt(0)
    v_add_u32 v{vP}, 12, v{V_CNT}
    v_and_b32 v{vP}, -16, v{vP}
    v_max_u32 v{vP}, 0x80, v{vP}
    v_cndmask_b32 v{vP}, 0, v{vP}, vcc
    v_mov_b32 v{vS}, v{vP}""")
    wave_scan(a, vS)
    a(f"""
    s_nop 0
    v_readlane_b32 s{S_A}, v{vS}, 63
    v_sub_u32 v{vS}, v{vS}, v{vP}
    ds_write_b32 v{t1}, v{vS} offset:{L_SX}
    s_cmp_gt_u32 s{S_A}, {ENT_CAP*4}
    s_cbranch_scc1 K_slow""")
    def place_cols(ks, mid=None):
        ks = list(ks)
        for k in ks:
            a(f"    ds_read_b32 v{vB+k}, v{vA+k} offset:{L_SX}")
        if mid: a(mid)
        for n, k in enumerate(ks):
            if n % 2 == 0:
                a(f"    s_waitcnt lgkmcnt({len(ks)-2-n})")
            a(f"    v_add_u32 v{vK+k}, v{vB+k}, v{vK+k}")
        for k in ks:
            a(f"    s_mov_b64 exec, {mask(k)}")
            a(f"    ds_write_b32 v{vK+k}, v{rec_reg(k)} offset:{L_RL}")
        a(f"    s_mov_b64 exec, -1")
    place_cols(range(8), f"""
    s_add_u32 s{S_A}, s{S_A}, 127
    s_lshr_b32 s{S_TT}, s{S_A}, 7            ; tiles
    s_mul_i32 s{S_T0}, s{S_SLOT}, s{S_TT}
    s_add_u32 s{S_NT}, s{S_T0}, s{S_TT}
    s_mul_i32 s{S_T0}, s{S_T0}, 43691
    s_mul_i32 s{S_NT}, s{S_NT}, 43691
    s_lshr_b32 s{S_T0}, s{S_T0}, 19
    s_lshr_b32 s{S_NT}, s{S_NT}, 19
    s_sub_u32 s{S_NT}, s{S_NT}, s{S_T0}""")
    a(f"""
    s_cmp_eq_u32 s{S_K}, 0
    s_cbranch_scc1 K_nor2c
    s_waitcnt lgkmcnt(0)""")
    place_cols(range(8, 16))
    thr = [int(x) for x in optval("thr", "5_3_1").split("_")]
    a(f"""
K_nor2c:
    s_lshl_b32 s{S_A}, s{S_T0}, 7            ; ts*4
    s_add_u32 s{S_C}, s{S_A}, {L_RL}
    v_add_u32 v{V_AIDX}, s{S_C}, v{V_AIDX}
    v_cmp_ge_u32 {mask(0)}, s{S_A}, v{vS}
    v_subrev_u32 v{t0}, s{S_A}, v{vS}
    s_and_b64 {mask(0)}, {mask(0)}, vcc
    s_bcnt1_i32_b64 s{S_B}, {mask(0)}
    s_sub_u32 s{S_B}, s{S_B}, 1              ; n
    s_andn2_b64 {mask(0)}, vcc, {mask(0)}
    s_waitcnt lgkmcnt(0)
    s_barrier""")
    stamp(a, 11)
    for h in idx_reads(0): a(h)
    a(f"""
    v_add_u32 v{V_AENT}, s{S_C}, v{V_AENT}
    v_xor_b32 v{t3}, s{S_B}, v{HH}
    v_and_b32 v{t3}, 1, v{t3}
    s_lshl_b32 s{S_A}, s{S_B}, 9
    s_add_u32 s{S_A}, s{S_A}, {L_QT}
    v_lshl_add_u32 v{V_AQ}, v{t3}, 9, s{S_A}
    v_lshl_add_u32 v{V_AQ}, v{J}, 2, v{V_AQ}
    s_waitcnt lgkmcnt(0)""")
    for h in dma_ops(0): a(h)
    a(f"""
    s_cmp_ge_u32 s{S_WAVE}, {ndual}
    s_cbranch_scc1 K_e1
    s_add_u32 m0, m0, {L_T2 - L_XS}
    s_nop 0""")
    for h in dma_ops(1): a(h)
    a("K_e1:")
    for h in ent_reads(0, True): a(h)
    a(f"""
    v_bfe_u32 v{t4}, v{t0}, 4, 3
    v_add_u32 v{t4}, 1, v{t4}
    v_mul_u32_u24 v{t4}, {VAR_SIZE}, v{t4}
    v_lshrrev_b32 v{t0}, 7, v{t0}
    v_min_u32 v{t0}, 63, v{t0}
    v_cndmask_b32 v{t0}, 63, v{t0}, {mask(0)}
    v_lshlrev_b32 v{t0}, 2, v{t0}
    v_mov_b32 v{V_TAB}, 0
    ds_permute_b32 v{V_TAB}, v{t0}, v{t4}
    s_add_u32 s{S_A}, s{S_B}, s{S_SLOT}
    s_mul_i32 s{S_A}, s{S_A}, {ST_STRIDE}
    s_add_u32 s{S_A}, s{S_A}, {L_ST}
    v_lshl_add_u32 v{V_AS}, v{L}, 2, s{S_A}
    v_xor_b32 v{t3}, 1, v{t3}
    v_lshlrev_b32 v{V_INCQ}, 10, v{t3}
    v_cvt_f32_u32 v{vOne}, s{S_TT}
    v_rcp_f32 v{vOne}, v{vOne}
    v_add3_u32 v{vP}, v{vS}, v{vP}, -4
    v_lshrrev_b32 v{vS}, 7, v{vS}
    v_lshrrev_b32 v{vP}, 7, v{vP}
    v_cvt_f32_u32 v{vS}, v{vS}
    v_cvt_f32_u32 v{vP}, v{vP}
    v_add_f32 v{vS}, {f32bits((NW-0.5)/NW):#x}, v{vS}
    v_add_f32 v{vP}, {f32bits((NW-0.5)/NW):#x}, v{vP}
    v_mul_f32 v{vOne}, {f32bits(NW):#x}, v{vOne}
    v_mul_f32 v{vS}, v{vS}, v{vOne}
    v_mul_f32 v{vP}, v{vP}, v{vOne}
    v_cvt_u32_f32 v{vS}, v{vS}
    v_cvt_u32_f32 v{vP}, v{vP}
    v_sub_u32 v{vP}, v{vP}, v{vS}
    v_add_u32 v{vS}, v{vS}, v{L}
    v_lshl_or_b32 v{vS}, v{vP}, 8, v{vS}
    v_cndmask_b32 v{vS}, {ZROW}, v{vS}, vcc
    v_lshl_or_b32 v{V_CNT}, v{vS}, 16, v{V_CNT}
    ; jump table: entry offset inside a variant slot (priority steps near the end), exit at lane nt
    v_sub_u32 v{t0}, s{S_NT}, v{L}
    v_mov_b32 v{t3}, 64""")
    for i, th in enumerate(thr):
        a(f"    v_cmp_eq_u32 {mask(i)}, {th}, v{t0}")
    a(f"    v_cmp_eq_u32 {mask(3)}, 0, v{t0}")
    a(f"    v_mov_b32 v{t4}, K_exit - K_vbase")
    for i, th in enumerate(thr):
        a(f"    v_cndmask_b32 v{t3}, v{t3}, {44 + 8*i}, {mask(i)}")
    a(f"""
    s_waitcnt lgkmcnt(0)
    v_add_u32 v{V_TAB}, v{V_TAB}, v{t3}
    v_cndmask_b32 v{V_TAB}, v{V_TAB}, v{t4}, {mask(3)}
    s_mov_b32 s{S_K}, 1
    s_setprio 3
    v_readlane_b32 s{S_J}, v{V_TAB}, 0
    s_bitcmp1_b32 s{S_B}, 0
    s_cselect_b64 {sr(S_PAR,2)}, -1, 0
    s_movk_i32 s{S_PAD}, {PADREC}""")
    for h in mask_load(): a(h)
    a(f"""
    s_cmp_ge_u32 s{S_WAVE}, {ndual}
    s_cbranch_scc1 K_e2
    s_waitcnt vmcnt(4)""")
    stamp(a, 12)
    for h in tr_reads(0): a(h)
    a(f"    s_waitcnt vmcnt(0)")
    for h in tr_reads(1): a(h.replace(f"v{V_AA} ", f"v{vAA2} "))
    a(f"""
    s_add_u32 s{S_J}, s{S_MO}, 64 + K_vhN - K_varN
    s_waitcnt lgkmcnt(0)
    s_sub_u32 m0, m0, {L_T2 - L_XS}
    s_branch K_e4
K_e2:
    s_waitcnt vmcnt(0)""")
    stamp(a, 12)
    for h in tr_reads(0): a(h)
    a(f"    s_waitcnt lgkmcnt(0)")
    for h in dma_ops(1): a(h)
    a("K_e4:")
    for h in onehot_ops(): a(h)
    a(f"""
    s_add_u32 s{S_J}, s{S_J}, s{S_PC}
    s_addc_u32 s{S_J+1}, s{S_PC+1}, 0
    s_cmp_eq_u32 s{S_NT}, 0
    s_cbranch_scc1 K_exit""")
    a(small(0)); a(small(1))
    a("    s_nop 7")
    stamp(a, 13); stamp(a, 14, True)
    a(f"    s_setpc_b64 {sr(S_J,2)}")
    a(f".p2align 6")
    a(f"K_vbase:")
    for vi, b in enumerate([None] + list(range(8))):
        tile_variant(a, vi, b)
    a(f".p2align 3")
    a(f"K_exit:")
    stamp(a, 15); stamp(a, 16, True)
    for cts in ((0, 1), (2, 3)):
        flush_ops(a, cts)
        a("    s_nop 1")
        flush_ops2(a, cts)
    a(f"""
    v_cmp_eq_f32 vcc, 0, v{V_MN}
    s_cbranch_vccz K_join
    v_mov_b32 v64, 1
    v_mov_b32 v65, {L_FLAG}
    ds_write_b32 v65, v64
K_join:
    s_cmp_ge_u32 s{S_WAVE}, 4
    s_cbranch_scc1 K_idle
    v_and_b32 v136, 15, v{L}
    v_lshrrev_b32 v137, 4, v{L}              ; g
    s_lshl_b32 s{S_A}, s{S_WAVE}, 4
    v_add_u32 v136, s{S_A}, v136             ; node
    v_lshlrev_b32 v138, 2, v136
    ds_bpermute_b32 v139, v138, v{V_CNT}
    v_and_b32 v138, 16, v{L}
    v_lshlrev_b32 v138, 2, v138
    v_lshl_add_u32 v138, v{HH}, 5, v138
    v_bfe_u32 v140, v{L}, 2, 2
    v_add_u32 v140, v140, v138
    v_lshlrev_b32 v140, 7, v140
    v_and_b32 v141, 3, v{L}
    v_lshl_add_u32 v140, v141, 4, v140
    v_add_u32 v140, {L_W2}, v140""")
    for ot in range(4):
        for ks in range(4):
            for h in range(2):
                a(f"    ds_read_b64_tr_b16 {vr(16*ot+4*ks+2*h,2)}, v140 offset:{1024*ks+512*h+64*(ot>>1)+8*(ot&1)}")
    a(f"""
    v_lshlrev_b32 v141, 4, v137
    v_add_u32 v140, {L_B2}, v141
    ds_read_b128 v[128:131], v140
    ds_read_b128 v[132:135], v140 offset:64
    v_lshl_add_u32 v141, v136, 7, v141       ; output byte offset
    s_lshl_b32 s{S_A}, s{S_N0}, 7
    s_add_u32 s{S_RT}, s{S_OUT}, s{S_A}
    s_addc_u32 s{S_RT+1}, s{S_OUT+1}, 0
    s_lshl_b32 s{S_RT+2}, s{S_NN}, 7
    s_mov_b32 s{S_RT+3}, 0x00020000
    s_mov_b32 s3, {NLN2:#x}
    s_movk_i32 s{S_K}, {ST_STRIDE}
    s_waitcnt lgkmcnt(0)
    v_bfe_u32 v142, v139, 16, 8
    v_lshrrev_b32 v143, 24, v139
    v_and_b32 v139, 0xffff, v139
    v_cvt_f32_u32 v139, v139
    v_mul_f32 v139, {f32bits(0.25 * -1.4426950408889634):#x}, v139
    v_lshlrev_b32 v138, 2, v138
    v_add_u32 v138, {L_ST}, v138
    v_mad_u32_u24 v142, v142, s{S_K}, v138
    v_add_u32 v138, {ZROW*ST_STRIDE}, v138
    v_cmp_lt_u32 vcc, 0, v143
    v_add_u32 v144, {ST_STRIDE}, v142
    v_mov_b32 v146, 0x207
    v_cndmask_b32 v145, v138, v144, vcc""")
    vO = 148
    accs = [148, 149, 150, 151, 152, 153] + list(range(156, 166))
    ACC = [112, 116, 120, 124]
    for q in range(8):
        a(f"    v_lshlrev_b32 v{112+2*q}, 16, v{128+q}")
        a(f"    v_and_b32 v{113+2*q}, 0xffff0000, v{128+q}")
    for q in range(16):
        a(f"    v_mul_f32 v{112+q}, v139, v{112+q}")
    a(f"    s_barrier")
    stamp(a, 17)
    S0 = 64; S1 = 96
    for ks in range(2):
        pass
    a(f"    s_mov_b32 s{S_A}, 1")
    for ks in range(4):
        a(f"    ds_read_b128 {vr(S0+8*ks,4)}, v142 offset:{32*ks}")
        a(f"    ds_read_b128 {vr(S0+4+8*ks,4)}, v142 offset:{32*ks+16}")
    a(f"K_rows:")
    tmp = [96, 104, 128, 156]
    for ks in range(4):
        a(f"    ds_read_b128 {vr(tmp[ks],4)}, v145 offset:{32*ks}")
        a(f"    ds_read_b128 {vr(tmp[ks]+4,4)}, v145 offset:{32*ks+16}")
    a(f"""
    v_cmp_lt_u32 vcc, s{S_A}, v143
    v_add_u32 v144, {ST_STRIDE}, v144
    s_add_u32 s{S_A}, s{S_A}, 1""")
    for ks in range(4):
        a(f"    s_waitcnt lgkmcnt({6-2*ks})")
        for q in range(4):
            a(f"    v_pk_add_f32 {vr(S0+8*ks+2*q,2)}, {vr(S0+8*ks+2*q,2)}, {vr(tmp[ks]+2*q,2)}")
    a(f"""
    v_cndmask_b32 v145, v138, v144, vcc
    s_cbranch_vccnz K_rows""")
    def cv(ks):
        for q in range(4):
            a(f"    v_cvt_pk_bf16_f32 v{96+4*ks+q}, v{S0+8*ks+2*q}, v{S0+1+8*ks+2*q}")
    def mf(ks, ot):
        d = vr(ACC[ot], 4)
        a(f"    v_mfma_f32_16x16x32_bf16 {d}, {vr(16*ot+4*ks,4)}, {vr(96+4*ks,4)}, {d}")
    cv(0); cv(1)
    for ks in range(4):
        for ot in range(4):
            mf(ks, ot)
        if ks < 2: cv(ks + 2)
    a("    s_nop 4")
    for q in range(16):
        a(f"    v_mul_f32 v{64+q}, s3, v{112+q}")
    for q in range(8):
        a(f"    v_cvt_pk_bf16_f32 v{80+q}, v{64+2*q}, v{65+2*q}")
    osc = optval("o_", "sc1")
    a(f"    buffer_store_dwordx4 v[80:83], v141, {sr(S_RT,4)}, 0 offen {osc}")
    a(f"    buffer_store_dwordx4 v[84:87], v141, {sr(S_RT,4)}, 0 offen offset:64 {osc}")
    for q in range(16):
        a(f"    v_cmp_class_f32 {mask(q)}, v{64+q}, v146")
    for q in range(1, 16):
        a(f"    s_or_b64 {mask(0)}, {mask(0)}, {mask(q)}")
    a(f"""
    s_cbranch_scc0 K_fin
    v_mov_b32 v64, 1
    v_mov_b32 v65, {L_FLAG}
    ds_write_b32 v65, v64
    s_branch K_fin
K_idle:
    s_waitcnt lgkmcnt(0)
    s_barrier                                ; B9
K_fin:
    v_mov_b32 v65, {L_FLAG}
    s_waitcnt lgkmcnt(0)
    s_barrier                                ; B10
    ds_read_b32 v64, v65
    s_waitcnt lgkmcnt(0)
    v_cmp_ne_u32 vcc, 0, v64
    s_cbranch_vccnz K_slow""")
    if DIAG:
        a("    s_waitcnt vmcnt(0)")
        stamp(a, 18); stamp(a, 19, True)
        a(f"""
    v_writelane_b32 v{V_STAMP}, s{S_NT}, 21
    s_lshl_b32 s{S_A}, s2, 4
    s_add_u32 s{S_A}, s{S_A}, s{S_WAVE}
    s_lshl_b32 s{S_A}, s{S_A}, 8
    s_add_u32 s{S_A}, s{S_A}, {WS_STAMP}
    v_lshl_add_u32 v64, v{L}, 2, s{S_A}
    s_mov_b64 exec, 0xffffffff
    global_store_dword v64, v{V_STAMP}, {sr(S_WS,2)}
    global_store_dword v64, v{V_TRACE}, {sr(S_WS,2)} offset:128""")
    if optval("spin", "") != "":
        stamp(a, 18)
        a(f"""
    s_lshl_b32 s{S_A}, s2, 4
    s_add_u32 s{S_A}, s{S_A}, s{S_WAVE}
    s_cmp_lg_u32 s{S_A}, {int(optval('wg', '100'))*16 + int(optval('sw', '0'))}
    s_cbranch_scc1 K_end
    s_lshl_b32 s{S_A}, s{S_TAG+1}, 7
    s_lshr_b32 s{S_B}, s{S_TAG}, 25
    s_or_b32 s{S_A}, s{S_A}, s{S_B}
    {"s_mov_b32 s100, s%d" % S_A if optval("spin", "") == "0" else ""}
    s_sub_u32 s{S_B}, s100, {"s99" if optval("from", "") else "s%d" % S_A}
    {f"s_lshr_b32 s{S_B}, s{S_B}, 4" if "cyc" in OPT else ""}
    {f"s_getreg_b32 s{S_B}, hwreg(HW_REG_XCC_ID, 0, 4)" if "xcc" in OPT else ""}
    {f"s_lshr_b32 s{S_C}, s{S_TAG}, 1" if "xcc" in OPT else ""}
    {f"s_sub_u32 s{S_B}, s{S_B}, s{S_C}" if "xcc" in OPT else ""}
    {f"s_and_b32 s{S_B}, s{S_B}, 7" if "xcc" in OPT else ""}
    s_min_u32 s{S_B}, s{S_B}, 20000
    s_mul_i32 s{S_B}, s{S_B}, {optval("mul", "10")}
    s_add_u32 s{S_B}, s{S_B}, {optval("base", "10000")}
K_spin:
    s_memrealtime s[100:101]
    s_waitcnt lgkmcnt(0)
    s_sub_u32 s100, s100, s{S_A}
    s_cmp_lt_u32 s100, s{S_B}
    s_cbranch_scc1 K_spin""")
    a(f"""
K_end:
    s_endpgm
K_slow:
    s_setprio 0
    s_mov_b32 s16, s{S_N0}
    s_mov_b32 s17, s{S_NN}
    s_mov_b32 s18, s{S_WAVE}""")
    gen_slow(a, 16, 17, 18, L, NLOG2E, NW=NW)
    a("    s_endpgm")

def main():
    global DIAG
    out = sys.argv[1]
    DIAG = "diag" in sys.argv[2:] or "lite" in sys.argv[2:]
    OPT.update(sys.argv[2:])
    a = Asm()
    a(f"""; Edge-featured MPNN layer: out[n] = sum_(e: dst=n) (silu([x[src],x[dst],e] w1 + b1) w2 + b2)
; @launch grid=(256,1,1) block=({NT_},1,1) lds={L_END}
.amdgcn_target "amdgcn-amd-amdhsa--gfx950"
.text""")
    gen_kernel(a)
    a(f"""
.section .rodata,"a"
.p2align 6
.amdhsa_kernel {KNAME}
  .amdhsa_next_free_vgpr {NVGPR}
  .amdhsa_next_free_sgpr 102
  .amdhsa_accum_offset {NVGPR}
  .amdhsa_group_segment_fixed_size 0
  .amdhsa_kernarg_size 88
  .amdhsa_user_sgpr_count 2
  .amdhsa_user_sgpr_kernarg_segment_ptr 1
  .amdhsa_system_sgpr_workgroup_id_x 1
  .amdhsa_float_denorm_mode_32 3
.end_amdhsa_kernel""")
    open(out, "w").write(a.text())

if __name__ == "__main__":
    main()
```

```python
import sys, struct
from slow import gen_slow

NAME = "standalone__edge_featured_mpnn_mpnn__graph"
KNAME = NAME + "_kernel"
N_NODES = 12500
NB = 49
NW = 12
NT_ = 64 * NW
MAINE = 4 * NT_
XTRA = 53
RSTRIDE = 16640

WS_TAB = 0x420000
WS_P = 0x4C0000
WS_STAMP = 0xA00000

L_Z = 128
L_H2 = 272
L_FLAG = 536
L_NONCE = 544
L_SX = 1296
ENT_CAP = 3472
LSZ = 14080
L_ZA = 4096 - 144
L_G = 4096
L_RL = L_G + LSZ
L_ST = L_RL + LSZ
ST_STRIDE = 528
ZROW = NB + NW
L_IX = L_ST + (ZROW + 1) * ST_STRIDE
L_QT = (L_IX + LSZ // 2 + 255) // 256 * 256 + 512
L_XS = L_QT + 49 * 512
assert LSZ % 256 == 0 and (ENT_CAP + 48) * 4 == LSZ
L_W2 = L_XS + NW * 4096
L_B2 = L_W2 + 16384
L_END = L_B2 + 256
L_RS = L_ST
L_H1 = L_ST + 16640
L_OFF = L_H1 + 1024
L_W1 = L_XS
L_WC = L_XS + 32768
L_PS = L_WC + 512
L_XR = L_W2
PS_STRIDE = 272
assert L_XS % 256 == 0 and L_END <= 163840
assert L_H1 + 3072 <= L_ST + ZROW * ST_STRIDE and L_OFF + 1024 < 65536 and L_PS + 56 * PS_STRIDE <= L_W2

def f32bits(x):
    return struct.unpack("<I", struct.pack("<f", x))[0]
LOG2E = 1.4426950408889634
NLOG2E = f32bits(-LOG2E)
NLN2 = f32bits(-0.6931471805599453)
PADREC = 0x3FFF
POLL_MAX = 4000

class Asm:
    def __init__(self):
        self.l = []
    def __call__(self, s=""):
        for x in s.strip("\n").split("\n"):
            if x.strip():
                self.l.append(x.rstrip())
    def text(self):
        return "\n".join(self.l) + "\n"

def vr(a, n=1):
    return f"v{a}" if n == 1 else f"v[{a}:{a+n-1}]"
def sr(a, n=1):
    return f"s{a}" if n == 1 else f"s[{a}:{a+n-1}]"

DIAG = False
OPT = set()
def optval(prefix, default):
    for o in OPT:
        if o.startswith(prefix):
            return o[len(prefix):]
    return default

V_D = 0; V_E = 64; V_A5 = 96; V_B5 = 98; V_ND = 102; V_T = 110; V_R = 114; V_O = 118; V_IX = 132
V_AA = 140; V_AIDX = 141; V_AENT = 142; V_AQ = 143; V_INCA = 144; V_AS = 145; V_MN = 146; V_PSEL = 147
V_PF = 126; V_TAB = 148; V_CNT = 149; V_S = 150; V_P = 151; V_LANE = 154; V_TID = 155
V_J = 156; V_HH = 157
V_STAMP = 167; V_TRACE = 166
NVGPR = 168
S_X = 4; S_E = 6; S_SRC = 8; S_DST = 10; S_W1 = 12; S_B1 = 14; S_W2 = 16; S_B2 = 18; S_OUT = 20; S_DBG = 22; S_WS = 24
S_BIN = 26; S_N0 = 27; S_NN = 28; S_WAVE = 29; S_MODE = 30; S_K = 31; S_PC = 32; S_J = 34
S_RX = 36; S_RT = 40; S_RR = 44; S_P = 48; S_JJ = 52
S_T0 = 56; S_NT = 57; S_TT = 58; S_SLOT = 59; S_A = 60; S_B = 61; S_C = 62; S_D = 63; S_TAG = 64
S_M = 66
def mask(k): return sr(S_M + 2*k, 2)

def stamp(a, k, real=False):
    if not DIAG:
        return
    a(f"    {'s_memrealtime' if real else 's_memtime'} s[100:101]")
    a(f"    s_waitcnt lgkmcnt(0)")
    a(f"    v_writelane_b32 v{V_STAMP}, s100, {k}")

def wave_scan(a, v):
    for sh in (1, 2, 4, 8):
        a(f"    s_nop 1")
        a(f"    v_add_u32_dpp v{v}, v{v}, v{v} row_shr:{sh} row_mask:0xf bank_mask:0xf")
    a(f"    s_nop 1")
    a(f"    v_add_u32_dpp v{v}, v{v}, v{v} row_bcast:15 row_mask:0xa bank_mask:0xf")
    a(f"    s_nop 1")
    a(f"    v_add_u32_dpp v{v}, v{v}, v{v} row_bcast:31 row_mask:0xc bank_mask:0xf")

SD = "dst_sel:DWORD dst_unused:UNUSED_PAD"

def dreg(s, c): return V_D + 32*s + 16*c
def small(s, c):
    d = vr(dreg(s, c), 16)
    return f"    v_mfma_f32_32x32x8_bf16 {d}, {vr(V_A5,2)}, {vr(V_B5+2*c,2)}, {d}"
def tr_reads(s):
    return [f"    ds_read_b64_tr_b16 {vr(dreg(s,c)+2*u,2)}, v{V_AA} offset:{512*u+128*c}" for u in range(8) for c in range(2)]
def ent_reads(off):
    return [f"    ds_read_b32 v{V_A5}, v{V_AENT} offset:{off}",
            f"    ds_read_b32 v{V_A5+1}, v{V_AENT} offset:{off + L_RL - L_G}"]
def q_reads():
    return [f"    ds_read_b32 v{V_B5+2*c}, v{V_AQ} offset:{256*c}" for c in range(2)]
def idx_reads(off):
    return [f"    ds_read_u16 v{V_IX+2*m}, v{V_AIDX} offset:{off + 8*m}" for m in range(4)]
def dma_ops():
    if "nodma" in OPT: return []
    return [f"    buffer_load_dwordx4 {vr(V_IX+2*m,2)}, {sr(S_RX,4)}, s{S_P+m} idxen offen offset:{1024*m} sc1 lds" for m in range(4)]

def flush1(a):
    for c in range(2):
        D = V_ND + 4*c + 2
        a(f"    v_rcp_f32 v{V_R+2*c}, v{D}")
        a(f"    v_rcp_f32 v{V_R+2*c+1}, v{D+1}")
def flush2(a):
    for c in range(2):
        a(f"    v_pk_mul_f32 {vr(V_O+2*c,2)}, {vr(V_ND+4*c,2)}, {vr(V_R+2*c,2)}")
    for c in range(2):
        a(f"    v_min3_f32 v{V_MN}, v{V_MN}, v{V_R+2*c}, v{V_R+2*c+1}")
    for c in range(2):
        a(f"    v_add_f32 v{V_O+2*c}, v{V_O+2*c}, v{V_O+2*c+1}")
    a(f"    ds_write2st64_b32 v{V_AS}, v{V_O}, v{V_O+2} offset0:0 offset1:1")

def y_phase(a, s, b):
    nsrc = [V_ND + 4*c for c in range(2)]
    for u in range(8):
        if u == b:
            flush1(a)
            for c in range(2):
                a(f"    v_pk_add_f32 {vr(V_ND+4*c+2,2)}, {vr(V_E+16*c+2*u,2)}, 1.0 op_sel_hi:[1,0]")
            flush2(a)
            for c in range(2):
                p = dreg(s, c) + 2*u
                if u == 7:
                    a(f"    v_pk_mov_b32 {vr(V_ND+4*c,2)}, {vr(p,2)}, {vr(p,2)} op_sel:[0,1]")
                else:
                    nsrc[c] = p
            continue
        for c in range(2):
            a(f"    v_pk_fma_f32 {vr(V_T+2*c,2)}, {vr(dreg(s,c)+2*u,2)}, {vr(V_ND+4*c+2,2)}, {vr(nsrc[c],2)}")
        for c in range(2):
            D = V_ND + 4*c + 2
            a(f"    v_pk_fma_f32 {vr(D,2)}, {vr(D,2)}, {vr(V_E+16*c+2*u,2)}, {vr(D,2)}")
        for c in range(2):
            a(f"    v_pk_fma_f32 {vr(V_ND+4*c,2)}, {vr(nsrc[c],2)}, {vr(V_E+16*c+2*u,2)}, {vr(V_T+2*c,2)}")
            nsrc[c] = V_ND + 4*c

VAR_SIZE = 960
ENTRY = 40
def tile_variant(a, s, b):
    name = f"{s}{'N' if b is None else b}"
    vi = 9*s + (0 if b is None else b + 1)
    a(f".org K_vbase + {VAR_SIZE*vi + ENTRY - 36}, 0")
    a(f"    s_waitcnt vmcnt(0)\n    global_load_dword v{V_PF+1}, v{V_PF}, {sr(S_WS,2)} sc1\n    s_branch K_vw{name}")
    a(f"    s_setprio 2\n    s_branch K_var{name}\n    s_setprio 1\n    s_branch K_var{name}\n    s_setprio 0")
    a(f"K_var{name}:")
    bnd = b is not None
    if "trace" in OPT and s == 0:
        a(f"    s_memtime s[100:101]\n    s_mov_b32 s{S_A}, m0\n    s_mov_b32 m0, s{S_K}\n    s_waitcnt lgkmcnt(0)")
        a(f"    v_writelane_b32 v{V_TRACE}, s100, m0\n    s_mov_b32 m0, s{S_A}")
    es = [f"    v_exp_f32 v{V_E+16*c+2*u+h}, v{dreg(s,c)+2*u+h}" for u in range(8) for c in range(2) for h in range(2)]
    n1 = int(optval("n1_", "16")); dpos = optval("dma_", "pre")
    a("    s_waitcnt vmcnt(0)")
    a(f"K_vw{name}:")
    for h in ent_reads(64 + 64*s) + (q_reads() if bnd else []) + tr_reads(s ^ 1) + idx_reads(64 + 32*s): a(h)
    for e in es[:n1-2]: a(e)
    if s == 0:
        a(f"    v_readlane_b32 s{S_JJ}, v{V_TAB}, s{S_K}")
    else:
        a(f"    v_add_u32 v{V_AENT}, v{V_INCA}, v{V_AENT}")
        a(f"    v_add_u32 v{V_AIDX}, 64, v{V_AIDX}")
    if bnd:
        a(f"    v_add_u32 v{V_AQ}, 0x200, v{V_AQ}")
    for e in es[n1-2:n1]: a(e)
    a(f"    s_waitcnt lgkmcnt(0)")
    if dpos == "pre":
        for h in dma_ops(): a(h)
    a(small(s ^ 1, 0))
    for e in es[n1:n1+4]: a(e)
    a(small(s ^ 1, 1))
    if dpos == "mid":
        for e in es[n1+4:n1+8]: a(e)
        for h in dma_ops(): a(h)
        for e in es[n1+8:]: a(e)
    else:
        for e in es[n1+4:]: a(e)
    if dpos == "end":
        for h in dma_ops(): a(h)
    if s == 0:
        a(f"    s_and_b32 s{S_J}, s{S_JJ}, 0xffff")
        a(f"    s_add_u32 s{S_K}, s{S_K}, 2")
    else:
        a(f"    s_lshr_b32 s{S_J}, s{S_JJ}, 16")
    a(f"    s_add_u32 s{S_J}, s{S_J}, s{S_PC}")
    a(f"    s_addc_u32 s{S_J+1}, s{S_PC+1}, 0")
    a(".p2align 3")
    y_phase(a, s, b)
    if bnd:
        a(f"    v_add_u32 v{V_AS}, {ST_STRIDE}, v{V_AS}")
    a(f"    s_setpc_b64 {sr(S_J,2)}")

def gen_kernel(a):
    L = V_LANE; T = V_TID; J = V_J; HH = V_HH
    t0, t1, t2, t3, t4, t5 = 158, 159, 160, 161, 162, 163
    step = NT_ * 16
    vDst = 0
    vSrc = 8
    vEa = 14
    tc = 17
    vTg = 18
    vBa = 20
    vRk = 26
    vWp = 31
    vOf = 32
    vC8 = 37; vWa = 38; vTa = 39
    vX = 40
    vWf = 56
    vPad = 56
    vAc = 72
    vTb = 88
    vXa = 88
    vB1 = 96
    vCl = 120
    v4k = 125
    vPf = 126
    vZ = 128
    vG4 = 164; vSb = 165
    vS = V_S; vP = V_P
    a(f"""
.p2align 8
.globl {KNAME}
.type {KNAME},@function
{KNAME}:
    s_cmp_ge_u32 s2, 256
    s_cbranch_scc1 K_end
    s_load_dwordx8 s[4:11], s[0:1], 0
    s_load_dwordx8 s[12:19], s[0:1], 32      ; w1, b1, w2, b2
    s_load_dwordx4 s[20:23], s[0:1], 64
    s_load_dwordx2 s[24:25], s[0:1], 80      ; ws
    s_memrealtime {sr(S_TAG,2)}
    v_lshrrev_b32 v1, 6, v0
    v_mov_b32 v{T}, v0
    v_readfirstlane_b32 s{S_WAVE}, v1
    v_and_b32 v{L}, 63, v0
    s_mul_i32 s3, s2, {MAINE*4}
    v_lshl_add_u32 v{t0}, v0, 4, s3          ; byte offset into src/dst
    v_lshrrev_b32 v{t1}, 1, v{t0}
    s_and_b32 s{S_BIN}, s2, 7
    s_lshl_b32 s{S_BIN}, s{S_BIN}, 5
    s_lshr_b32 s3, s2, 3
    s_add_u32 s{S_BIN}, s{S_BIN}, s3
    s_mul_i32 s{S_N0}, s{S_BIN}, {NB}
    s_sub_u32 s{S_NN}, {N_NODES}, s{S_N0}
    s_min_u32 s{S_NN}, s{S_NN}, {NB}
    v_and_b32 v{J}, 31, v0
    v_bfe_u32 v{HH}, v0, 5, 1
    s_mov_b32 s{S_MODE}, 0
    v_mov_b32 v{vZ}, 0
    v_mov_b32 v{vZ+1}, 0
    v_mov_b32 v{vZ+2}, 0
    v_mov_b32 v{vZ+3}, 0
    v_lshlrev_b32 v{t2}, 2, v0""")
    if DIAG:
        a(f"    v_mov_b32 v{V_STAMP}, 0\n    v_mov_b32 v{V_TRACE}, 0")
        stamp(a, 0, True); stamp(a, 1)
    a(f"""
    s_waitcnt lgkmcnt(0)
    global_load_dwordx4 {vr(vDst,4)}, v{t0}, {sr(S_DST,2)}
    ds_write_b32 v{t2}, v{vZ} offset:{L_H1}
    s_cmp_lg_u32 s{S_WAVE}, 11
    s_cbranch_scc1 K_ld1
    s_mul_i32 s{S_A}, s2, {XTRA}
    s_add_u32 s{S_A}, s{S_A}, {256*MAINE}
    v_min_u32 v{t5}, {XTRA-1}, v{L}
    v_add_lshl_u32 v{t5}, v{t5}, s{S_A}, 2
    v_lshrrev_b32 v{t4}, 1, v{t5}
    global_load_dword v{vDst+4}, v{t5}, {sr(S_DST,2)}
    global_load_dword v{vSrc+4}, v{t5}, {sr(S_SRC,2)}
    global_load_ushort v{vEa+2}, v{t4}, {sr(S_E,2)}
K_ld1:
    s_cmp_ge_u32 s2, 32
    s_cbranch_scc1 K_ldJ
    s_sub_u32 s{S_A}, s{S_WAVE}, 5
    s_cmp_ge_u32 s{S_A}, 3
    s_cbranch_scc1 K_ld2
    s_lshl_b32 s{S_A}, s{S_A}, 13
    v_lshl_add_u32 v{t5}, v{L}, 7, s{S_A}
    s_getpc_b64 {sr(S_J,2)}
    global_load_dword v{t4}, v{t5}, {sr(S_J,2)} offset:1024
K_ld2:
    s_lshl_b32 s{S_A}, s2, 4
    s_add_u32 s{S_A}, s{S_A}, s{S_WAVE}
    s_cmp_lg_u32 s{S_A}, 9
    s_cbranch_scc1 K_ldJ
    s_lshl_b32 s{S_A}, s{S_TAG}, 25
    s_or_b32 s{S_A}, s{S_A}, 1
    s_lshr_b64 {sr(S_TAG,2)}, {sr(S_TAG,2)}, 7
    v_mov_b32 v{t4}, s{S_A}
    v_mov_b32 v{t4+1}, s{S_TAG}
    s_mov_b64 exec, 1
    global_store_dwordx2 v{vZ}, {vr(t4,2)}, {sr(S_DBG,2)} sc1
    s_mov_b64 exec, -1
K_ldJ:
    s_lshl_b32 s{S_A}, s{S_WAVE}, 11
    s_cmp_ge_u32 s{S_WAVE}, 8
    s_cbranch_scc1 K_stX
    s_add_u32 m0, s{S_A}, {L_W1}
    v_lshrrev_b32 v{t3}, 2, v{L}
    v_and_b32 v{t3}, 12, v{t3}
    v_xor_b32 v{t3}, v{t3}, v{L}
    v_lshl_add_u32 v{t5}, v{t3}, 4, s{S_A}
    global_load_lds_dwordx4 v{t5}, {sr(S_W1,2)}
    global_load_lds_dwordx4 v{t5}, {sr(S_W1,2)} offset:1024
    s_branch K_stJ
K_stX:
    s_mov_b32 s{S_RX}, s4
    s_mov_b32 s{S_RX+1}, s5
    s_mov_b32 s{S_RX+2}, {N_NODES*128}
    s_mov_b32 s{S_RX+3}, 0x00020000
    s_add_u32 m0, s{S_A}, {L_XR - 16384}
    s_lshl_b32 s{S_B}, s{S_N0}, 7
    s_add_u32 s{S_A}, s{S_A}, s{S_B}
    s_sub_u32 s{S_A}, s{S_A}, 16384
    v_lshrrev_b32 v{t3}, 4, v{L}
    v_xor_b32 v{t3}, v{t3}, v{L}
    v_lshl_add_u32 v{t3}, v{t3}, 4, s{S_A}
    v_xor_b32 v{t5}, 64, v{t3}
    buffer_load_dwordx4 v{t3}, {sr(S_RX,4)}, 0 offen lds
    buffer_load_dwordx4 v{t5}, {sr(S_RX,4)}, 0 offen offset:1024 lds
K_stJ:
    s_waitcnt lgkmcnt(0)
    s_barrier
    v_mov_b32 v{vPad}, {PADREC}
    v_mov_b32 v{vPad+1}, {PADREC}
    v_mov_b32 v{vPad+2}, {PADREC}
    v_mov_b32 v{vPad+3}, {PADREC}
    v_lshlrev_b32 v{t2}, 4, v{T}
    ds_write_b128 v{t2}, {vr(vPad,4)} offset:{L_RL}
    s_cmp_ge_u32 s{S_WAVE}, 4
    s_cbranch_scc1 K_in1
    ds_write_b128 v{t2}, {vr(vZ,4)}
    ds_write_b128 v{t2}, {vr(vPad,4)} offset:{L_ST - 4096}
K_in1:
    s_cmp_lg_u32 s{S_WAVE}, 4
    s_cbranch_scc1 K_in2
    v_lshlrev_b32 v{t3}, 3, v{L}
    v_add_u32 v{t3}, {L_ST + ZROW*ST_STRIDE}, v{t3}
    ds_write_b64 v{t3}, {vr(vZ,2)}
    v_lshlrev_b32 v{t3}, 2, v{L}
    ds_write_b32 v{t3}, v{vZ} offset:{L_RL - 256}
K_in2:
    global_load_dwordx4 {vr(vSrc,4)}, v{t0}, {sr(S_SRC,2)}
    global_load_dwordx2 {vr(vEa,2)}, v{t1}, {sr(S_E,2)}
    s_cmp_ge_u32 s{S_WAVE}, 8
    s_cbranch_scc1 K_st2
    s_add_u32 m0, m0, 16384
    v_add_u32 v{t5}, 0x4000, v{t5}
    global_load_lds_dwordx4 v{t5}, {sr(S_W1,2)}
    global_load_lds_dwordx4 v{t5}, {sr(S_W1,2)} offset:1024
    s_branch K_st3
K_st2:
    s_mov_b32 m0, {L_WC}
    v_lshlrev_b32 v{t3}, 2, v{L}
    v_add_u32 v{t4}, 0x8000, v{t3}
    global_load_lds_dword v{t4}, {sr(S_W1,2)}
    s_mov_b32 m0, {L_WC + 256}
    s_nop 0
    global_load_lds_dword v{t3}, {sr(S_B1,2)}
K_st3:
    v_and_b32 v{vC8}, 3, v{L}
    v_lshlrev_b32 v{vC8}, 3, v{vC8}
    v_and_b32 v{t1}, 16, v{L}
    v_lshl_add_u32 v{vC8}, v{t1}, 1, v{vC8}  ; 8c + 32(g&1)
    s_lshr_b32 s{S_D}, s{S_WAVE}, 1          ; ct
    v_bfe_u32 v{t0}, v{L}, 2, 2
    v_xor_b32 v{t3}, s{S_D}, v{t0}
    v_lshlrev_b32 v{t3}, 6, v{t3}
    v_lshl_add_u32 v{t0}, v{HH}, 3, v{t0}
    v_lshl_add_u32 v{t0}, v{t0}, 8, v{t3}
    v_add_u32 v{vWa}, {L_W1}, v{t0}
    v_and_b32 v{vWp}, 1, v{L}
    v_lshl_add_u32 v{vWp}, v{vWp}, 5, v{vWa}
    v_and_b32 v{t3}, 16, v{L}
    v_add_u32 v{vWp}, v{vWp}, v{t3}
    v_and_b32 v{t3}, 2, v{L}
    v_lshl_add_u32 v{vWp}, v{t3}, 2, v{vWp}  ; + 16(c&1) + 4(2(g&1) + (c>>1)) columns
    s_and_b32 s{S_A}, s{S_WAVE}, 1
    s_lshl_b32 s{S_A}, s{S_A}, 12
    s_add_u32 s{S_A}, s{S_A}, {L_XR}
    v_bfe_u32 v{t3}, v{L}, 1, 3
    v_xor_b32 v{t3}, v{t3}, v{HH}
    v_lshl_add_u32 v{t3}, v{t3}, 4, s{S_A}
    v_lshl_add_u32 v{vXa}, v{J}, 7, v{t3}
    v_xor_b32 v{vXa+1}, 32, v{vXa}
    v_xor_b32 v{vXa+2}, 64, v{vXa}
    v_xor_b32 v{vXa+3}, 0x60, v{vXa}
    s_mov_b32 s{S_A}, 21400
    s_mov_b32 s{S_B}, -{NB}
    s_mov_b32 s{S_C}, 0xffff0000
    v_mov_b32 v{t5}, 0x10004
    v_mov_b32 v{vBa+4}, 0
    v_mov_b32 v{v4k}, 0x4000
    s_waitcnt vmcnt(6)
    s_cmp_lg_u32 s{S_WAVE}, 11
    s_cbranch_scc1 K_wJ
    s_bfm_b64 exec, {XTRA}, 0""")
    assert L_ST - L_RL <= step + 4096
    def binops(cols):
        for i in cols: a(f"    v_mul_u32_u24 v{vBa+i}, s{S_A}, v{vDst+i}")
        for i in cols: a(f"    v_lshrrev_b32 v{vBa+i}, 18, v{vBa+i}")
        for i in cols:
            a(f"    v_and_b32 v{vBa+i}, 0x3fc, v{vBa+i}")
            a(f"    ds_add_rtn_u32 v{vRk+i}, v{vBa+i}, v{t5} offset:{L_H1}")
        for i in cols: a(f"    v_lshlrev_b32 v{vDst+i}, 2, v{vDst+i}")
        for i in cols: a(f"    v_mad_i32_i24 v{vDst+i}, v{vBa+i}, s{S_B}, v{vDst+i}")
        for i in cols: a(f"    v_bfe_u32 v{vCl+i}, v{vDst+i}, 2, 1")
    binops([4])
    a(f"""
    s_mov_b64 exec, -1
K_wJ:""")
    stamp(a, 2)
    binops(range(4))
    a(f"""
    s_waitcnt vmcnt(4) lgkmcnt(0)
    s_barrier""")
    stamp(a, 3)
    a(f"""
    s_cmp_eq_u32 s{S_WAVE}, 8
    s_cbranch_scc1 K_scan1
    s_cmp_gt_u32 s{S_WAVE}, 8
    s_cbranch_scc1 K_notP
    ; ---- waves 0..7: P^T tile = -log2(e) * (x w1[0:64])^T""")
    for s_ in range(4):
        a(f"    ds_read_b128 {vr(vX+4*s_,4)}, v{vXa+s_}")
        for h in range(2):
            a(f"    ds_read_b64_tr_b16 {vr(vWf+4*s_+2*h,2)}, v{vWp} offset:{4096*s_+1024*h}")
    for s_ in range(4):
        a(f"    s_waitcnt lgkmcnt({9-3*s_})")
        cin = "0" if s_ == 0 else vr(vAc, 16)
        a(f"    v_mfma_f32_32x32x16_bf16 {vr(vAc,16)}, {vr(vWf+4*s_,4)}, {vr(vX+4*s_,4)}, {cin}")
    a(f"""
    s_and_b32 s{S_B}, s{S_WAVE}, 1
    s_mul_i32 s{S_A}, s{S_B}, {32*PS_STRIDE}
    s_lshl_b32 s{S_B}, s{S_D}, 6
    s_add_u32 s{S_A}, s{S_A}, s{S_B}
    s_add_u32 s{S_A}, s{S_A}, {L_PS}
    v_mul_u32_u24 v{t3}, {PS_STRIDE}, v{J}
    v_lshl_add_u32 v{t3}, v{HH}, 5, v{t3}
    v_add_u32 v{t3}, s{S_A}, v{t3}
    v_mov_b32 v{t4}, {NLOG2E:#x}
    v_cmp_gt_u32 vcc, {L_PS + 56*PS_STRIDE}, v{t3}
    s_nop 1""")
    for q in range(8):
        a(f"    v_pk_mul_f32 {vr(vAc+2*q,2)}, {vr(vAc+2*q,2)}, {vr(t4,2)} op_sel_hi:[1,0]")
    for q in range(8):
        a(f"    v_cvt_pk_bf16_f32 v{vAc+q}, v{vAc+2*q}, v{vAc+2*q+1}")
    a(f"""
    s_mov_b64 exec, vcc
    ds_write_b128 v{t3}, {vr(vAc,4)}
    ds_write_b128 v{t3}, {vr(vAc+4,4)} offset:16
    s_mov_b64 exec, -1
    s_branch K_b3
K_notP:
    v_lshlrev_b32 v{t1}, 4, v{L}
    v_add_u32 v{t4}, {L_PS + 48*PS_STRIDE}, v{t1}
    v_add_u32 v{t1}, {48*256}, v{t1}
    s_branch K_b3
K_scan1:
    ; ---- wave 8: segment offsets; a segment is n records (4 bytes) followed by n node bytes, padded to 4
    s_setprio 2
    global_load_dwordx2 {vr(vTg,2)}, v{vZ}, {sr(S_DBG,2)}
    v_lshlrev_b32 v{t0}, 4, v{L}
    ds_read_b128 v[56:59], v{t0} offset:{L_H1}
    s_waitcnt lgkmcnt(0)""")
    for i in range(4):
        a(f"    v_lshrrev_b32 v{60+i}, 16, v{56+i}")
    for i in range(4):
        a(f"    v_mad_u32_u24 v{64+i}, v{60+i}, 5, 3")
    for i in range(4):
        a(f"    v_and_b32 v{64+i}, -4, v{64+i}")
    a(f"""
    v_add_u32 v65, v64, v65
    v_add_u32 v66, v65, v66
    v_add_u32 v67, v66, v67
    v_mov_b32 v68, v67""")
    wave_scan(a, 68)
    a(f"""
    v_sub_u32 v68, v68, v67
    v_add_u32 v69, v68, v64
    v_add_u32 v70, v68, v65
    v_add_u32 v71, v68, v66
    s_mov_b32 s{S_A}, 0x10001""")
    for i in range(4):
        a(f"    v_mul_u32_u24 v{64+i}, s{S_A}, v{68+i}")
    for i in range(4):
        a(f"    v_lshl_add_u32 v{64+i}, v{56+i}, 16, v{64+i}")
    a(f"""
    ds_write_b128 v{t0}, v[64:67] offset:{L_OFF}
    s_setprio 0
K_b3:
    v_lshrrev_b32 v{t0}, 4, v{T}
    v_lshl_add_u32 v{t0}, v{t0}, 4, v{t2}
    v_add_u32 v{t0}, {L_PS}, v{t0}
    s_lshl_b32 s{S_A}, s{S_N0}, 8
    s_add_u32 s{S_A}, s{S_A}, {WS_P}
    s_add_u32 s{S_RT}, s{S_WS}, s{S_A}
    s_addc_u32 s{S_RT+1}, s{S_WS+1}, 0
    s_lshl_b32 s{S_RT+2}, s{S_NN}, 8
    s_mov_b32 s{S_RT+3}, 0x00020000
    s_waitcnt lgkmcnt(0)
    s_barrier                                ; B3: segment offsets, P staged""")
    stamp(a, 4)
    a(f"""
    s_cmp_lt_u32 s{S_WAVE}, 10
    s_cbranch_scc1 K_nx0
    ds_read_b32 v{vOf+4}, v{vBa+4} offset:{L_OFF}
    ds_read_b128 v[76:79], v{t4}
K_nx0:
    ds_read_b128 v[72:75], v{t0}""")
    for i in range(4):
        a(f"    ds_read_b32 v{vOf+i}, v{vBa+i} offset:{L_OFF}")
    a(f"""
    s_waitcnt vmcnt(2)
    v_lshl_or_b32 v{vSrc}, v{v4k}, v{vCl}, v{vSrc}
    v_lshl_or_b32 v{vSrc+1}, v{v4k}, v{vCl+1}, v{vSrc+1}
    v_lshl_or_b32 v{vSrc+2}, v{v4k}, v{vCl+2}, v{vSrc+2}
    v_lshl_or_b32 v{vSrc+3}, v{v4k}, v{vCl+3}, v{vSrc+3}
    v_lshl_or_b32 v{vSrc}, v{vEa}, 16, v{vSrc}
    v_and_or_b32 v{vSrc+1}, v{vEa}, s{S_C}, v{vSrc+1}
    v_lshl_or_b32 v{vSrc+2}, v{vEa+1}, 16, v{vSrc+2}
    v_and_or_b32 v{vSrc+3}, v{vEa+1}, s{S_C}, v{vSrc+3}
    s_waitcnt lgkmcnt(4)
    buffer_store_dwordx4 v[72:75], v{t2}, {sr(S_RT,4)}, 0 offen sc1
    s_waitcnt lgkmcnt(0)""")
    def scatter(i):
        a(f"    v_add_u32_sdwa v{vBa+i}, v{vOf+i}, v{vRk+i} {SD} src0_sel:WORD_0 src1_sel:WORD_0")
        a(f"    v_add_u32_sdwa v{vOf+i}, v{vOf+i}, v{vRk+i} {SD} src0_sel:WORD_1 src1_sel:WORD_1")
        a(f"    ds_write_b32 v{vBa+i}, v{vSrc+i} offset:{L_RS}")
        a(f"    ds_write_b8 v{vOf+i}, v{vDst+i} offset:{L_RS}")
    for i in range(4): scatter(i)
    a(f"""
    s_cmp_lt_u32 s{S_WAVE}, 10
    s_cbranch_scc1 K_nx2
    s_cmp_eq_u32 s{S_WAVE}, 11
    s_cbranch_scc1 K_x2
    buffer_store_dwordx4 v[76:79], v{t1}, {sr(S_RT,4)}, 0 offen sc1
    s_branch K_nx2
K_x2:
    s_bfm_b64 exec, {XTRA}, 0
    v_lshl_or_b32 v{vSrc+4}, v{v4k}, v{vCl+4}, v{vSrc+4}
    v_lshl_or_b32 v{vSrc+4}, v{vEa+2}, 16, v{vSrc+4}""")
    scatter(4)
    a(f"""
    s_mov_b64 exec, -1
K_nx2:
    s_mul_i32 s{S_A}, s2, {RSTRIDE}
    s_add_u32 s{S_RR}, s{S_WS}, s{S_A}
    s_addc_u32 s{S_RR+1}, s{S_WS+1}, 0
    s_mov_b32 s{S_RR+2}, 16512
    s_mov_b32 s{S_RR+3}, 0x00020000
    v_add_u32 v{t3}, {step}, v{t2}
    s_waitcnt lgkmcnt(0)
    s_barrier""")
    stamp(a, 5)
    a(f"""
    ds_read_b128 v[0:3], v{t2} offset:{L_RS}
    s_cmp_ge_u32 s{S_WAVE}, 5
    s_cbranch_scc1 K_co1
    ds_read_b128 v[8:11], v{t2} offset:{L_RS + step}
    s_waitcnt lgkmcnt(0)
    buffer_store_dwordx4 v[8:11], v{t3}, {sr(S_RR,4)}, 0 offen sc1
K_co1:
    s_waitcnt lgkmcnt(0)
    buffer_store_dwordx4 v[0:3], v{t2}, {sr(S_RR,4)}, 0 offen sc1
    v_and_b32 v{tc}, 15, v{L}
    v_bfe_u32 v{t3}, v{L}, 4, 1
    v_lshlrev_b32 v{t3}, 2, v{t3}
    v_xor_b32 v{tc}, v{tc}, v{t3}
    v_lshlrev_b32 v{V_IX+1}, 4, v{tc}
    v_mov_b32 v{V_IX+3}, v{V_IX+1}
    v_mov_b32 v{V_IX+5}, v{V_IX+1}
    v_mov_b32 v{V_IX+7}, v{V_IX+1}
    v_lshrrev_b32 v{V_AIDX}, 4, v{L}
    v_lshlrev_b32 v{V_AIDX}, 1, v{V_AIDX}
    v_bfe_u32 v{tc}, v{L}, 3, 1
    v_xor_b32 v{t3}, v{tc}, v{HH}
    v_lshl_add_u32 v{t3}, v{t3}, 6, v{vC8}
    v_lshl_add_u32 v{tc}, v{tc}, 8, v{t3}
    s_lshl_b32 s{S_B}, s{S_WAVE}, 12
    s_add_u32 s{S_B}, s{S_B}, {L_XS}
    v_add_u32 v{tc}, s{S_B}, v{tc}
    v_bfe_u32 v{t4}, v{L}, 2, 1
    v_cmp_ne_u32 vcc, 0, v{t4}
    v_mov_b32 v{t3}, {L_Z}
    v_mov_b32 v{V_MN}, 1.0
    v_cndmask_b32 v{V_AA}, v{t3}, v{tc}, vcc
    v_cmp_eq_u32 {mask(0)}, v{t4}, v{HH}
    v_bfe_u32 v{tc}, v{L}, 3, 2
    v_and_b32 v{t3}, 3, v{L}
    v_lshl_add_u32 v{tc}, v{tc}, 2, v{t3}
    v_lshlrev_b32 v{tc}, 2, v{tc}
    v_add_u32 v{tc}, {L_G}, v{tc}
    v_mov_b32 v{t3}, {L_ZA}
    v_cndmask_b32 v{V_AENT}, v{t3}, v{tc}, {mask(0)}
    v_mov_b32 v{t3}, 0x80
    v_cndmask_b32 v{V_INCA}, 0, v{t3}, {mask(0)}""")
    for m in range(4):
        a(f"    s_movk_i32 s{S_P+m}, {3072 - 1024*m}")
    for c in range(2):
        a(f"    v_mov_b32 v{V_ND+4*c}, 0")
        a(f"    v_mov_b32 v{V_ND+4*c+1}, 0")
        a(f"    v_mov_b32 v{V_ND+4*c+2}, 1.0")
        a(f"    v_mov_b32 v{V_ND+4*c+3}, 1.0")
    a(f"""
    s_and_b32 s{S_A}, s{S_WAVE}, 3
    s_mul_i32 s{S_A}, s{S_A}, 3
    s_lshr_b32 s{S_B}, s{S_WAVE}, 2
    s_add_u32 s{S_SLOT}, s{S_A}, s{S_B}
    s_getpc_b64 {sr(S_PC,2)}
K_pc:
    s_add_u32 s{S_PC}, s{S_PC}, K_vbase - K_pc
    s_addc_u32 s{S_PC+1}, s{S_PC+1}, 0
    ; segment mapping of phase 2: segment 128 i + t/6, lane group g = t%6
    v_mul_u32_u24 v{tc}, 10923, v{T}
    v_lshrrev_b32 v{tc}, 16, v{tc}
    v_mad_i32_i24 v{vG4}, v{tc}, -6, v{T}
    v_lshlrev_b32 v{vG4}, 2, v{vG4}          ; 4g
    v_mul_u32_u24 v{vSb}, {RSTRIDE}, v{tc}
    s_lshr_b32 s{S_A}, s2, 3
    s_mul_i32 s{S_A}, s{S_A}, {256*128 if "hot" in OPT else 781*128}
    s_add_u32 s{S_A}, s{S_A}, {WS_P - (512*128 if "hot" in OPT else 0)}
    v_lshl_add_u32 v{vPf}, v{T}, 7, s{S_A}
    s_lshr_b32 s{S_B}, s{S_BIN}, 2
    s_lshl_b32 s{S_B}, s{S_B}, 4
    s_and_b32 s{S_A}, s{S_BIN}, 1
    s_lshl_b32 s{S_A}, s{S_A}, 3
    s_add_u32 s{S_B}, s{S_B}, s{S_A}
    s_and_b32 s{S_A}, s{S_BIN}, 2
    s_lshl_b32 s{S_A}, s{S_A}, 9
    s_add_u32 s{S_B}, s{S_B}, s{S_A}
    s_add_u32 s{S_B}, s{S_B}, {WS_TAB}
    v_lshl_add_u32 v{t5}, v{tc}, 11, s{S_B}  ; table entry offset
    s_mov_b32 s3, {NLOG2E:#x}
    s_cmp_lg_u32 s{S_WAVE}, 8
    s_cbranch_scc1 K_ntb
    s_mov_b32 s{S_K}, 0
    s_waitcnt vmcnt(2)
K_tagp:
    v_cmp_ne_u32 vcc, 0, v{vTg}
    s_cbranch_vccnz K_tagok
    s_add_u32 s{S_K}, s{S_K}, 1
    s_cmp_gt_u32 s{S_K}, {POLL_MAX}
    s_cbranch_scc1 K_tagok                   ; give up: tag 0 sends this workgroup to the slow path
    global_load_dwordx2 {vr(vTg,2)}, v{vZ}, {sr(S_DBG,2)} sc1
    s_waitcnt vmcnt(0)
    s_branch K_tagp
K_tagok:
    ds_write_b64 v{vZ}, {vr(vTg,2)} offset:{L_NONCE}
    v_and_b32 v{t3}, 0xfe000000, v{vTg}
    s_lshl_b32 s{S_B}, s2, 11
    s_add_u32 s{S_B}, s{S_B}, {WS_TAB}
    v_lshl_add_u32 v{t1}, v{L}, 4, s{S_B}""")
    for i in range(4):
        a(f"    v_lshrrev_b32 v{68+i}, 2, v{68+i}")
        a(f"    v_lshl_or_b32 v{68+i}, v{60+i}, 13, v{68+i}")
        a(f"    v_or_b32 v{vTb+2*i}, v{t3}, v{68+i}")
        a(f"    v_mov_b32 v{vTb+2*i+1}, v{vTg+1}")
    a(f"""
    s_waitcnt vmcnt(0) lgkmcnt(0)
    s_barrier                                ; B5
    s_cbranch_vccz K_slow
    global_store_dwordx4 v{t1}, {vr(vTb,4)}, {sr(S_WS,2)} sc1
    global_store_dwordx4 v{t1}, {vr(vTb+4,4)}, {sr(S_WS,2)} offset:1024 sc1
    s_branch K_b5j
K_ntb:
    s_waitcnt vmcnt(0)
    s_barrier
K_b5j:""")
    stamp(a, 6)
    a(f"""
    ds_read_b64 {vr(vTg,2)}, v{vZ} offset:{L_NONCE}
    v_lshlrev_b32 v{t0}, 1, v{L}
    v_add_u32 v{t0}, {L_WC}, v{t0}
    ds_read_u16 v{V_B5}, v{t0}
    ds_read_u16 v{V_B5+2}, v{t0} offset:128
    s_waitcnt lgkmcnt(0)
    v_readfirstlane_b32 s{S_TAG}, v{vTg}
    v_readfirstlane_b32 s{S_TAG+1}, v{vTg+1}
    s_cmp_eq_u32 s{S_TAG}, 0
    s_cbranch_scc1 K_slow""")
    for c in range(2):
        w = V_B5 + 2*c
        a(f"    v_lshlrev_b32 v{w}, 16, v{w}")
        a(f"    v_mul_f32 v{w}, s3, v{w}")
        a(f"    v_cvt_pk_bf16_f32 v{t3}, v{vZ}, v{w}")
        a(f"    v_sub_f32 v{t3}, v{w}, v{t3}")
        a(f"    v_cvt_pk_bf16_f32 v{w+1}, v{w}, v{t3}")
    a(f"""
    s_cmp_lt_u32 s{S_WAVE}, 8
    s_cbranch_scc1 K_Q
    s_sub_u32 s{S_A}, s{S_WAVE}, 8
    s_lshl_b32 s{S_A}, s{S_A}, 12
    s_add_u32 m0, s{S_A}, {L_W2}
    v_lshl_add_u32 v{t3}, v{L}, 4, s{S_A}
    global_load_lds_dwordx4 v{t3}, {sr(S_W2,2)}
    global_load_lds_dwordx4 v{t3}, {sr(S_W2,2)} offset:1024
    global_load_lds_dwordx4 v{t3}, {sr(S_W2,2)} offset:2048
    global_load_lds_dwordx4 v{t3}, {sr(S_W2,2)} offset:3072
    s_cmp_lg_u32 s{S_WAVE}, 9
    s_cbranch_scc1 K_notQ
    s_mov_b32 m0, {L_B2}
    v_lshlrev_b32 v{t3}, 2, v{J}
    global_load_lds_dword v{t3}, {sr(S_B2,2)}
    s_branch K_notQ
K_Q:
    s_mov_b32 s3, {f32bits(-LOG2E/2):#x}
    s_lshl_b32 s{S_A}, s{S_D}, 6
    s_add_u32 s{S_A}, s{S_A}, {L_WC + 256}
    v_lshl_add_u32 v{t3}, v{J}, 1, s{S_A}
    ds_read_u16 v{vB1}, v{t3}
    v_add_u32 v{tc}, v{vWa}, v{vC8}""")
    for s_ in range(4):
        for h in range(2):
            a(f"    ds_read_b64_tr_b16 {vr(vWf+4*s_+2*h,2)}, v{tc} offset:{16384+4096*s_+1024*h}")
    a(f"""
    s_and_b32 s{S_A}, s{S_WAVE}, 1
    s_lshl_b32 s{S_B}, s{S_A}, 14
    s_lshl_b32 s{S_C}, s{S_D}, 7
    s_add_u32 s{S_B}, s{S_B}, s{S_C}
    s_add_u32 s{S_B}, s{S_B}, {L_QT - 512}
    v_lshl_add_u32 v{tc}, v{HH}, 11, s{S_B}
    v_lshl_add_u32 v{tc}, v{J}, 2, v{tc}""")
    for s_ in range(4):
        a(f"    s_waitcnt lgkmcnt({6-2*s_})")
        cin = "0" if s_ == 0 else vr(vAc, 16)
        a(f"    v_mfma_f32_32x32x16_bf16 {vr(vAc,16)}, {vr(vX+4*s_,4)}, {vr(vWf+4*s_,4)}, {cin}")
    a(f"""
    v_lshlrev_b32 v{vB1}, 16, v{vB1}
    v_mul_f32 v{vB1}, s3, v{vB1}
    s_nop 9""")
    def qpair(r):
        row = 8*(r >> 2) + (r & 3)
        a(f"    v_fma_f32 v{vAc+r}, v{vAc+r}, s3, v{vB1}")
        a(f"    v_fma_f32 v{vAc+r+1}, v{vAc+r+1}, s3, v{vB1}")
        a(f"    v_cvt_pk_bf16_f32 v{vWf+r}, v{vAc+r}, v{vAc+r+1}")
        a(f"    ds_write_b32 v{tc}, v{vWf+r} offset:{512*(row+1)}")
        a(f"    ds_write_b16 v{tc}, v{vWf+r} offset:{512*row}")
        a(f"    ds_write_b16_d16_hi v{tc}, v{vWf+r} offset:{512*(row+2)+2}")
    for r in range(0, 12, 2): qpair(r)
    a(f"""
    s_cmp_eq_u32 s{S_A}, 1
    s_cbranch_scc1 K_notQ""")
    for r in range(12, 16, 2): qpair(r)
    a(f"K_notQ:")
    stamp(a, 7)
    vT = 0
    vN = 4
    vAr = 6
    vR = 12
    vM = 28
    vA = 32
    vK = 48
    vB = 64
    a(f"""
    s_lshl_b32 s{S_B}, s{S_WAVE}, 12
    s_add_u32 m0, s{S_B}, {L_XS}
    s_mov_b32 s{S_RR}, s{S_WS}
    s_mov_b32 s{S_RR+1}, s{S_WS+1}
    s_mov_b32 s{S_RR+2}, {WS_TAB + 256*2048}
    s_mov_b32 s{S_A}, {128*2048}
    s_mov_b32 s{S_B}, {128*RSTRIDE}
    s_mov_b32 s{S_C}, 0xfe000000
    s_movk_i32 s{S_D}, 0xfc
    s_mov_b32 s{S_K}, 0
    {"s_sleep " + optval("fs", "0") if optval("fs", "0") != "0" else ""}
    s_mov_b64 {mask(0)}, -1
    s_mov_b64 {mask(1)}, -1
    v_mov_b32 v{vM}, 0
    v_mov_b32 v{vM+1}, 0
K_poll:
    s_mov_b64 exec, {mask(0)}
    s_cbranch_execz K_pl0
    buffer_load_dwordx2 {vr(vT,2)}, v{t5}, {sr(S_RR,4)}, 0 offen sc1
K_pl0:
    s_mov_b64 exec, {mask(1)}
    s_cbranch_execz K_pl1
    buffer_load_dwordx2 {vr(vT+2,2)}, v{t5}, {sr(S_RR,4)}, s{S_A} offen sc1
K_pl1:
    s_mov_b64 exec, -1
    s_waitcnt vmcnt(0)""")
    for i in range(2):
        a(f"    v_xor_b32 v{vN+i}, s{S_TAG}, v{vT+2*i}")
        a(f"    v_xor_b32 v{vAr+i}, s{S_TAG+1}, v{vT+2*i+1}")
        a(f"    v_and_or_b32 v{vAr+i}, v{vN+i}, s{S_C}, v{vAr+i}")
        a(f"    v_cmp_ne_u32 {mask(i)}, 0, v{vAr+i}")
    a(f"""
    s_add_u32 s{S_K}, s{S_K}, 1
    s_or_b64 vcc, {mask(0)}, {mask(1)}
    s_cbranch_scc0 K_got
    s_cmp_lt_u32 s{S_K}, {POLL_MAX}
    s_cbranch_scc1 K_poll
    s_mov_b32 s{S_MODE}, 1
    s_branch K_nor2a
K_got:""")
    if DIAG:
        a(f"    v_writelane_b32 v{V_STAMP}, s{S_K}, 20")
    stamp(a, 8)
    so = ["0", sr(S_B)]
    for i in range(2):
        a(f"    v_and_b32 v{vAr+i}, 0x1fff, v{vT+2*i}")
        a(f"    v_bfe_u32 v{vT+2*i+1}, v{vT+2*i}, 13, 12")
        a(f"    v_lshl_add_u32 v{vAr+i}, v{vAr+i}, 2, v{vSb}")
        a(f"    v_sub_u32 v{vN+i}, v{vT+2*i+1}, v{vG4}")
        a(f"    v_lshl_add_u32 v{vAr+2+i}, v{vT+2*i+1}, 2, v{vAr+i}")
        a(f"    v_cmp_lt_i32 {mask(4*i)}, 0, v{vN+i}")
        a(f"    v_lshl_add_u32 v{vAr+i}, v{vG4}, 2, v{vAr+i}")
        a(f"    v_add_u32 v{vAr+2+i}, v{vAr+2+i}, v{vG4}")
        a(f"    s_or_b64 exec, {mask(4*i)}, 1")
        a(f"    buffer_load_dword v{vM+i}, v{vAr+2+i}, {sr(S_RR,4)}, {so[i]} offen")
        a(f"    buffer_load_dwordx4 {vr(vR+4*i,4)}, v{vAr+i}, {sr(S_RR,4)}, {so[i]} offen")
        a(f"    s_mov_b64 exec, -1")
    for i in range(2):
        for k in range(1, 4):
            a(f"    v_cmp_lt_i32 {mask(4*i+k)}, {k}, v{vN+i}")
    a(f"""
    v_max_i32 v{t1}, v{vN}, v{vN+1}
    v_cmp_lt_i32 vcc, 24, v{t1}
    s_mov_b32 s{S_K}, 0
    s_cbranch_vccz K_nor2a
    s_mov_b32 s{S_K}, 1""")
    for i in range(2):
        a(f"    buffer_load_dword v{vM+2+i}, v{vAr+2+i}, {sr(S_RR,4)}, {so[i]} offen offset:24")
        a(f"    buffer_load_dwordx4 {vr(vR+8+4*i,4)}, v{vAr+i}, {sr(S_RR,4)}, {so[i]} offen offset:96")
        for k in range(4):
            a(f"    v_cmp_lt_i32 {mask(8+4*i+k)}, {24+k}, v{vN+i}")
    pf0 = int(optval("pf", "8"))
    a(f"""
    v_cmp_lt_i32 vcc, 48, v{t1}
    s_cbranch_vccz K_nor2a
    s_mov_b32 s{S_MODE}, 1
K_nor2a:
    v_mov_b32 v{t4}, {L_FLAG}
    v_mov_b32 v{t0}, 4
    s_cmp_eq_u32 s{S_MODE}, 0
    s_cbranch_scc1 K_nofl
    ds_write_b32 v{t4}, v{t0}
K_nofl:
    s_waitcnt lgkmcnt(0)
    s_barrier
    ds_read_b32 v{t3}, v{t4}
    s_add_u32 s{S_RX}, s{S_WS}, {WS_P - 3072}
    s_addc_u32 s{S_RX+1}, s{S_WS+1}, 0
    s_and_b32 s{S_RX+1}, s{S_RX+1}, 0xffff
    s_or_b32 s{S_RX+1}, s{S_RX+1}, 0x01000000
    s_mov_b32 s{S_RX+2}, {N_NODES}
    s_mov_b32 s{S_RX+3}, 0x00020000
    s_waitcnt lgkmcnt(0)
    v_cmp_ne_u32 vcc, 0, v{t3}
    s_cbranch_vccnz K_slow
    s_cmp_lt_u32 s{S_WAVE}, {pf0}
    s_cbranch_scc1 K_npf
    global_load_dword v{t5}, v{vPf}, {sr(S_WS,2)} sc1
    s_waitcnt vmcnt(1)
    s_branch K_pfJ
K_npf:
    s_waitcnt vmcnt(0)
K_pfJ:""")
    stamp(a, 9)
    def count_cols(ks):
        for k in ks:
            a(f"    v_and_b32_sdwa v{vA+k}, v{vM+k//4}, s{S_D} {SD} src0_sel:BYTE_{k%4} src1_sel:DWORD")
        for k in ks:
            a(f"    s_mov_b64 exec, {mask(k)}")
            a(f"    ds_add_rtn_u32 v{vK+k}, v{vA+k}, v{t0} offset:{L_H2}")
        a(f"    s_mov_b64 exec, -1")
    count_cols(range(8))
    a(f"""
    s_cmp_eq_u32 s{S_K}, 0
    s_cbranch_scc1 K_nor2b""")
    count_cols(range(8, 16))
    a(f"""
K_nor2b:
    v_lshlrev_b32 v{t1}, 2, v{L}
    v_cmp_gt_u32 vcc, s{S_NN}, v{L}
    s_waitcnt lgkmcnt(0)
    s_barrier""")
    stamp(a, 10)
    a(f"""
    ds_read_b32 v{V_CNT}, v{t1} offset:{L_H2}
    s_waitcnt lgkmcnt(0)
    v_add_u32 v{vP}, 4, v{V_CNT}
    v_and_b32 v{vP}, -8, v{vP}
    v_max_u32 v{vP}, 64, v{vP}
    v_cndmask_b32 v{vP}, 0, v{vP}, vcc
    v_mov_b32 v{vS}, v{vP}""")
    wave_scan(a, vS)
    a(f"""
    s_nop 0
    v_readlane_b32 s{S_A}, v{vS}, 63
    v_sub_u32 v{vS}, v{vS}, v{vP}
    ds_write_b32 v{t1}, v{vS} offset:{L_SX}
    s_cmp_gt_u32 s{S_A}, {ENT_CAP*4}
    s_cbranch_scc1 K_slow""")
    def place_cols(ks, mid=None):
        ks = list(ks)
        for k in ks:
            a(f"    ds_read_b32 v{vB+k}, v{vA+k} offset:{L_SX}")
        if mid: a(mid)
        for n, k in enumerate(ks):
            if n % 2 == 0:
                a(f"    s_waitcnt lgkmcnt({len(ks)-2-n})")
            a(f"    v_add_u32 v{vK+k}, v{vB+k}, v{vK+k}")
        for k in ks:
            a(f"    s_mov_b64 exec, {mask(k)}")
            a(f"    ds_write_b32 v{vK+k}, v{vR+k} offset:{L_RL}")
        a(f"    s_mov_b64 exec, -1")
    place_cols(range(8), f"""
    s_add_u32 s{S_A}, s{S_A}, 63
    s_lshr_b32 s{S_TT}, s{S_A}, 6            ; tiles
    s_mul_i32 s{S_T0}, s{S_SLOT}, s{S_TT}
    s_add_u32 s{S_NT}, s{S_T0}, s{S_TT}
    s_mul_i32 s{S_T0}, s{S_T0}, 43691
    s_mul_i32 s{S_NT}, s{S_NT}, 43691
    s_lshr_b32 s{S_T0}, s{S_T0}, 19
    s_lshr_b32 s{S_NT}, s{S_NT}, 19
    s_sub_u32 s{S_NT}, s{S_NT}, s{S_T0}""")
    a(f"""
    s_cmp_eq_u32 s{S_K}, 0
    s_cbranch_scc1 K_nor2c
    s_waitcnt lgkmcnt(0)""")
    place_cols(range(8, 16))
    thr = [int(x) for x in optval("thr", "10_5_2").split("_")]
    vBk = 80
    vGr = 82
    a(f"""
K_nor2c:
    s_lshl_b32 s{S_A}, s{S_T0}, 6
    v_lshl_add_u32 v{t3}, v{V_AIDX}, 1, s{S_A}
    v_add_u32 v{t2}, s{S_A}, v{t1}
    v_cmp_ge_u32 {mask(0)}, s{S_A}, v{vS}
    v_subrev_u32 v{t0}, s{S_A}, v{vS}
    s_and_b64 {mask(0)}, {mask(0)}, vcc
    s_bcnt1_i32_b64 s{S_B}, {mask(0)}
    s_sub_u32 s{S_B}, s{S_B}, 1              ; n
    s_andn2_b64 {mask(0)}, vcc, {mask(0)}
    v_bfe_u32 v{t4}, v{t0}, 3, 3
    v_add_u32 v{t4}, 1, v{t4}
    v_lshrrev_b32 v{t0}, 6, v{t0}
    v_min_u32 v{t0}, 63, v{t0}
    v_cndmask_b32 v{t0}, 63, v{t0}, {mask(0)}
    v_lshlrev_b32 v{t0}, 2, v{t0}
    v_mov_b32 v{vBk}, 0
    {"" if "novar" in OPT else f"ds_permute_b32 v{vBk}, v{t0}, v{t4}"}
    s_lshl_b32 s{S_D}, s{S_NT}, 4""")
    for c in range(5):
        a(f"    v_cmp_gt_i32 {mask(5+c)}, s{S_D}, v{L}")
        a(f"    s_sub_u32 s{S_D}, s{S_D}, 64")
    a(f"""
    s_waitcnt lgkmcnt(0)
    s_barrier""")
    stamp(a, 11)
    for m in range(4):
        a(f"    ds_read_u16 v{V_IX+2*m}, v{t3} offset:{L_RL + 16*m}")
    for c in range(5):
        a(f"    ds_read_b32 v{vGr+c}, v{t2} offset:{L_RL + 256*c}")
    a(f"""
    s_lshr_b32 s{S_C}, s{S_A}, 1
    s_add_u32 s{S_C}, s{S_C}, {L_IX}
    v_add_u32 v{V_AIDX}, s{S_C}, v{V_AIDX}
    v_lshl_add_u32 v{t0}, v{L}, 1, s{S_C}
    s_mov_b32 s{S_C}, 0x03020302
    s_mov_b32 s{S_D}, 0x8001
    s_waitcnt lgkmcnt(5)""")
    for m in range(4):
        a(f"    v_and_b32 v{V_IX+2*m}, {0xfff if 'cheat1' in OPT or 'cheat2' in OPT else PADREC}, v{V_IX+2*m}")
    for h in dma_ops(): a(h)
    if "st2" in OPT:
        a(f"""
    s_cmp_lt_u32 s{S_WAVE}, 8
    s_cbranch_scc1 K_ns2
    v_add_u32 v{vPf}, 0x100000, v{vPf}
    global_load_dword v{t5}, v{vPf}, {sr(S_WS,2)} sc1
K_ns2:""")
    a(f"    ; this wave's entries -> one-hot word, (e, e), source node")
    a(f"    s_waitcnt lgkmcnt(0)")
    for c in range(5):
        a(f"    v_and_b32 v{vGr+5+c}, 0xc000, v{vGr+c}")
        a(f"    v_perm_b32 v{64+c}, v{vGr+c}, v{vGr+c}, s{S_C}")
        a(f"    v_xor_b32 v{vGr+c}, v{vGr+c}, v{vGr+5+c}")
        a(f"    v_mul_u32_u24 v{vGr+5+c}, s{S_D}, v{vGr+5+c}")
        a(f"    v_and_b32 v{vGr+5+c}, 0x40004000, v{vGr+5+c}")
    for c in range(5):
        a(f"    s_mov_b64 exec, {mask(5+c)}")
        a(f"    ds_write2st64_b32 v{t2}, v{vGr+5+c}, v{64+c} offset0:{L_G//256 + c} offset1:{L_RL//256 + c}")
        a(f"    ds_write_b16 v{t0}, v{vGr+c} offset:{128*c}")
    a(f"""
    s_mov_b64 exec, -1
    s_lshl_b32 s{S_C}, s{S_B}, 9
    s_add_u32 s{S_C}, s{S_C}, {L_QT}
    v_add_u32 v{V_AQ}, s{S_C}, v{t1}
    v_lshrrev_b32 v{t4}, 7, v{V_INCA}
    v_mad_u32_u24 v{V_AENT}, v{t4}, s{S_A}, v{V_AENT}""")
    for h in ent_reads(0) + q_reads() + idx_reads(32): a(h)
    a(f"""
    s_add_u32 s{S_C}, s{S_B}, s{S_SLOT}
    s_mul_i32 s{S_C}, s{S_C}, {ST_STRIDE}
    s_add_u32 s{S_C}, s{S_C}, {L_ST}
    v_add_u32 v{V_AS}, s{S_C}, v{t1}
    v_add_u32 v{V_AQ}, 0x200, v{V_AQ}
    ; jump table: slot of the variant, entry inside it (priority steps near the end), exit at lane nt
    v_and_b32 v{t4}, 1, v{L}
    v_mad_u32_u24 v{t4}, v{t4}, 9, v{vBk}
    v_sub_u32 v{t0}, s{S_NT}, v{L}
    v_mov_b32 v{t3}, {ENTRY}""")
    for i, th in enumerate(thr):
        a(f"    v_cmp_eq_u32 {mask(i)}, {th}, v{t0}")
    a(f"    v_cmp_eq_u32 {mask(3)}, 0, v{t0}")
    a(f"    s_movk_i32 s{S_C}, {VAR_SIZE}")
    for i, th in enumerate(thr):
        a(f"    v_cndmask_b32 v{t3}, v{t3}, {ENTRY - 20 + 8*i}, {mask(i)}")
    p2 = optval("p2_", "")
    if p2:
        p2a, p2b = [int(x) for x in p2.split("_")]
        a(f"""
    s_lshr_b32 s{S_D}, s{S_WAVE}, 2
    s_mul_i32 s{S_D}, s{S_D}, {p2b}
    s_add_u32 s{S_D}, s{S_D}, {p2a}
    s_cmp_lt_u32 s{S_WAVE}, {pf0}
    s_cselect_b32 s{S_D}, s{S_D}, 64
    v_cmp_eq_u32 {mask(4)}, s{S_D}, v{L}
    s_nop 1
    v_cndmask_b32 v{t3}, v{t3}, {ENTRY - 36}, {mask(4)}""")
    a(f"""
    v_mad_u32_u24 v{t4}, v{t4}, s{S_C}, v{t3}
    v_mov_b32 v{t3}, K_exit - K_vbase
    v_cndmask_b32 v{t4}, v{t4}, v{t3}, {mask(3)}
    ds_bpermute_b32 v{V_TAB}, v{t1}, v{t4} offset:4
    s_mov_b32 s{S_K}, 1
    v_readlane_b32 s{S_J}, v{t4}, 0
    s_setprio 3
    s_waitcnt vmcnt(0)""")
    stamp(a, 12)
    for h in tr_reads(0): a(h)
    a(f"""
    s_add_u32 s{S_J}, s{S_J}, s{S_PC}
    s_addc_u32 s{S_J+1}, s{S_PC+1}, 0
    s_waitcnt lgkmcnt(0)""")
    a(small(0, 0))
    if "cheat2" in OPT:
        for m in range(2): a(f"    v_and_b32 v{V_IX+2*m}, 0xfff, v{V_IX+2*m}")
    for h in dma_ops(): a(h)
    a(small(0, 1))
    a(f"    v_lshl_or_b32 v{V_TAB}, v{V_TAB}, 16, v{t4}")
    stamp(a, 13); stamp(a, 14, True)
    a(f"    s_setpc_b64 {sr(S_J,2)}")
    a(f".p2align 6")
    a(f"K_vbase:")
    for s_ in range(2):
        for b in [None] + list(range(8)):
            tile_variant(a, s_, b)
    a(f".p2align 3")
    a(f"K_exit:")
    stamp(a, 15); stamp(a, 16, True)
    flush1(a)
    a("    s_nop 0")
    flush2(a)
    a(f"""
    v_cmp_eq_f32 vcc, 0, v{V_MN}
    s_cbranch_vccz K_join
    v_mov_b32 v65, {L_FLAG}
    ds_write_b32 v65, v65
K_join:
    s_cmp_ge_u32 s{S_WAVE}, 4
    s_cbranch_scc1 K_idle
    v_cvt_f32_u32 v136, s{S_TT}
    v_rcp_f32 v136, v136
    v_add3_u32 v{vP}, v{vS}, v{vP}, -4
    v_lshrrev_b32 v{vS}, 6, v{vS}
    v_lshrrev_b32 v{vP}, 6, v{vP}
    v_cvt_f32_u32 v{vS}, v{vS}
    v_cvt_f32_u32 v{vP}, v{vP}
    v_add_f32 v{vS}, {f32bits((NW-0.5)/NW):#x}, v{vS}
    v_add_f32 v{vP}, {f32bits((NW-0.5)/NW):#x}, v{vP}
    v_mul_f32 v136, {f32bits(NW):#x}, v136
    v_mul_f32 v{vS}, v{vS}, v136
    v_mul_f32 v{vP}, v{vP}, v136
    v_cvt_u32_f32 v{vS}, v{vS}
    v_cvt_u32_f32 v{vP}, v{vP}
    v_cmp_gt_u32 vcc, s{S_NN}, v{L}
    v_sub_u32 v{vP}, v{vP}, v{vS}
    v_add_u32 v{vS}, v{vS}, v{L}
    v_lshl_or_b32 v{vS}, v{vP}, 8, v{vS}
    v_cndmask_b32 v{vS}, {ZROW}, v{vS}, vcc
    v_lshl_or_b32 v{V_CNT}, v{vS}, 16, v{V_CNT}
    v_and_b32 v136, 15, v{L}
    v_lshrrev_b32 v137, 4, v{L}              ; g
    s_lshl_b32 s{S_A}, s{S_WAVE}, 6
    v_lshl_add_u32 v138, v136, 2, s{S_A}
    ds_bpermute_b32 v139, v138, v{V_CNT}
    v_and_b32 v138, 16, v{L}
    v_lshlrev_b32 v138, 2, v138
    v_lshl_add_u32 v138, v{HH}, 5, v138
    v_bfe_u32 v140, v{L}, 2, 2
    v_add_u32 v140, v140, v138
    v_lshlrev_b32 v140, 7, v140
    v_and_b32 v141, 3, v{L}
    v_lshl_add_u32 v140, v141, 4, v140
    v_add_u32 v140, {L_W2}, v140""")
    for ot in range(4):
        for ks in range(4):
            for h in range(2):
                a(f"    ds_read_b64_tr_b16 {vr(16*ot+4*ks+2*h,2)}, v140 offset:{1024*ks+512*h+64*(ot>>1)+8*(ot&1)}")
    a(f"""
    v_lshlrev_b32 v141, 4, v137
    v_add_u32 v140, {L_B2}, v141
    ds_read_b128 v[128:131], v140
    ds_read_b128 v[132:135], v140 offset:64
    s_lshl_b32 s{S_A}, s{S_N0}, 7
    s_add_u32 s{S_RT}, s{S_OUT}, s{S_A}
    s_addc_u32 s{S_RT+1}, s{S_OUT+1}, 0
    s_lshl_b32 s{S_RT+2}, s{S_NN}, 7
    s_mov_b32 s{S_RT+3}, 0x00020000
    s_movk_i32 s{S_K}, {ST_STRIDE}
    s_lshl_b32 s{S_A}, s{S_WAVE}, 12
    s_add_u32 s{S_A}, s{S_A}, {L_QT}
    v_mul_u32_u24 v140, 144, v136
    v_add3_u32 v140, v140, v141, s{S_A}
    v_lshrrev_b32 v147, 3, v{L}
    v_add_lshl_u32 v147, v147, v{L}, 4
    v_add_u32 v147, s{S_A}, v147
    s_lshl_b32 s{S_A}, s{S_WAVE}, 11
    v_lshl_add_u32 v141, v{L}, 4, s{S_A}     ; output byte offset
    v_mov_b32 v136, {NLN2:#x}
    s_waitcnt lgkmcnt(0)
    v_bfe_u32 v142, v139, 16, 8
    v_lshrrev_b32 v143, 24, v139
    v_and_b32 v139, 0xffff, v139
    v_cvt_f32_u32 v139, v139
    v_mul_f32 v139, {f32bits(-0.25 * LOG2E):#x}, v139
    v_lshlrev_b32 v138, 2, v138
    v_add_u32 v138, {L_ST}, v138
    v_mad_u32_u24 v142, v142, s{S_K}, v138
    v_add_u32 v138, {ZROW*ST_STRIDE}, v138
    v_cmp_lt_u32 vcc, 0, v143
    v_add_u32 v144, {ST_STRIDE}, v142
    v_mov_b32 v146, 0x207
    v_cndmask_b32 v145, v138, v144, vcc
    ; accumulators start at -log2(e) * degree * b2""")
    ACC = [112, 116, 120, 124]
    for q in range(8):
        a(f"    v_lshlrev_b32 v{112+2*q}, 16, v{128+q}")
        a(f"    v_and_b32 v{113+2*q}, 0xffff0000, v{128+q}")
    for q in range(16):
        a(f"    v_mul_f32 v{112+q}, v139, v{112+q}")
    a(f"    s_mov_b32 s{S_A}, 1")
    a(f"    s_barrier")
    stamp(a, 17)
    S0 = 64
    for ks in range(4):
        a(f"    ds_read_b128 {vr(S0+8*ks,4)}, v142 offset:{32*ks}")
        a(f"    ds_read_b128 {vr(S0+4+8*ks,4)}, v142 offset:{32*ks+16}")
    a(f"K_rows:")
    tmp = [96, 104, 128, 156]
    for ks in range(4):
        a(f"    ds_read_b128 {vr(tmp[ks],4)}, v145 offset:{32*ks}")
        a(f"    ds_read_b128 {vr(tmp[ks]+4,4)}, v145 offset:{32*ks+16}")
    a(f"""
    v_cmp_lt_u32 vcc, s{S_A}, v143
    v_add_u32 v144, {ST_STRIDE}, v144
    s_add_u32 s{S_A}, s{S_A}, 1""")
    for ks in range(4):
        a(f"    s_waitcnt lgkmcnt({6-2*ks})")
        for q in range(4):
            a(f"    v_pk_add_f32 {vr(S0+8*ks+2*q,2)}, {vr(S0+8*ks+2*q,2)}, {vr(tmp[ks]+2*q,2)}")
    a(f"""
    v_cndmask_b32 v145, v138, v144, vcc
    s_cbranch_vccnz K_rows""")
    def cv(ks):
        for q in range(4):
            a(f"    v_cvt_pk_bf16_f32 v{96+4*ks+q}, v{S0+8*ks+2*q}, v{S0+1+8*ks+2*q}")
    cv(0); cv(1)
    for ks in range(4):
        for ot in range(4):
            d = vr(ACC[ot], 4)
            a(f"    v_mfma_f32_16x16x32_bf16 {d}, {vr(16*ot+4*ks,4)}, {vr(96+4*ks,4)}, {d}")
        if ks < 2: cv(ks + 2)
    a("    s_nop 4")
    for q in range(8):
        a(f"    v_pk_mul_f32 {vr(64+2*q,2)}, {vr(112+2*q,2)}, {vr(136,2)} op_sel_hi:[1,0]")
    for q in range(8):
        a(f"    v_cvt_pk_bf16_f32 v{80+q}, v{64+2*q}, v{65+2*q}")
    a(f"""
    ds_write_b128 v140, v[80:83]
    ds_write_b128 v140, v[84:87] offset:64
    ds_read_b128 v[88:91], v147
    ds_read_b128 v[92:95], v147 offset:{8*144}
    v_cmp_class_f32 vcc, v64, v146
    s_waitcnt lgkmcnt(1)
    buffer_store_dwordx4 v[88:91], v141, {sr(S_RT,4)}, 0 offen sc1
    s_waitcnt lgkmcnt(0)
    buffer_store_dwordx4 v[92:95], v141, {sr(S_RT,4)}, 0 offen offset:1024 sc1
    s_cbranch_vccz K_fin
    v_mov_b32 v65, {L_FLAG}
    ds_write_b32 v65, v65
    s_branch K_fin
K_idle:
    s_waitcnt lgkmcnt(0)
    s_barrier                                ; B9
K_fin:
    v_mov_b32 v65, {L_FLAG}
    s_waitcnt lgkmcnt(0)
    s_barrier                                ; B10
    ds_read_b32 v64, v65
    s_waitcnt lgkmcnt(0)
    v_cmp_ne_u32 vcc, 0, v64
    {"" if "novar" in OPT or "nodma" in OPT else "s_cbranch_vccnz K_slow"}""")
    if DIAG:
        a("    s_waitcnt vmcnt(0)")
        stamp(a, 18); stamp(a, 19, True)
        a(f"""
    v_writelane_b32 v{V_STAMP}, s{S_NT}, 21
    s_lshl_b32 s{S_A}, s2, 4
    s_add_u32 s{S_A}, s{S_A}, s{S_WAVE}
    s_lshl_b32 s{S_A}, s{S_A}, 8
    s_add_u32 s{S_A}, s{S_A}, {WS_STAMP}
    v_lshl_add_u32 v64, v{L}, 2, s{S_A}
    s_mov_b64 exec, 0xffffffff
    global_store_dword v64, v{V_STAMP}, {sr(S_WS,2)}
    global_store_dword v64, v{V_TRACE}, {sr(S_WS,2)} offset:128""")
    a(f"""
K_end:
    s_endpgm
K_slow:
    ; ================= exact path without hand-offs: scan all edges for this bin
    s_setprio 0
    s_mov_b32 s16, s{S_N0}
    s_mov_b32 s17, s{S_NN}
    s_mov_b32 s18, s{S_WAVE}""")
    gen_slow(a, 16, 17, 18, L, NLOG2E, NW=NW)
    a("    s_endpgm")

def main():
    global DIAG
    out = sys.argv[1]
    DIAG = "diag" in sys.argv[2:]
    OPT.update(sys.argv[2:])
    a = Asm()
    a(f"""; Edge-featured MPNN layer: out[n] = sum_(e: dst=n) (silu([x[src],x[dst],e] w1 + b1) w2 + b2)
; @launch grid=(256,1,1) block=({NT_},1,1) lds={L_END}
.amdgcn_target "amdgcn-amd-amdhsa--gfx950"
.text""")
    gen_kernel(a)
    a(f"""
.section .rodata,"a"
.p2align 6
.amdhsa_kernel {KNAME}
  .amdhsa_next_free_vgpr {NVGPR}
  .amdhsa_next_free_sgpr 102
  .amdhsa_accum_offset {NVGPR}
  .amdhsa_group_segment_fixed_size 0
  .amdhsa_kernarg_size 88
  .amdhsa_user_sgpr_count 2
  .amdhsa_user_sgpr_kernarg_segment_ptr 1
  .amdhsa_system_sgpr_workgroup_id_x 1
  .amdhsa_float_denorm_mode_32 3
.end_amdhsa_kernel""")
    open(out, "w").write(a.text())

if __name__ == "__main__":
    main()
```

```python
import sys, struct
from slow import gen_slow

NAME = "standalone__edge_featured_mpnn_mpnn__graph"
KNAME = NAME + "_kernel"
N_NODES = 12500
NB = 49
NW = 12
NT_ = 64 * NW
MAINE = 4 * NT_
XTRA = 53
RSTRIDE = 16640

WS_REC = 0
WS_TAB = 0x420000
WS_P = 0x500000
WS_STAMP = 0xA00000

L_FLAG = 288
L_NONCE = 296
L_SX = 4096
L_Z = 320
L_RL = 4352
ENT_CAP = 3584
L_ST = L_RL + (ENT_CAP + 64) * 4
ST_STRIDE = 528
ZROW = NB + NW
L_QT = (L_ST + (ZROW + 1) * ST_STRIDE + 255) // 256 * 256
L_XS = L_QT + 56 * 512
L_W2 = L_XS + NW * 4096
L_B2 = L_W2 + 16384
L_T2 = L_B2 + 256
L_END = L_T2 + 16384
L_RS = L_ST
L_H1 = L_ST + 16640
L_OFF = L_H1 + 1024
L_W1 = L_XS
L_WC = L_XS + 32768
L_PS = L_WC + 512
L_XR = L_W2
PS_STRIDE = 272
assert L_XS % 256 == 0
assert L_END <= 163840 and L_H1 + 3072 <= L_ST + ZROW * ST_STRIDE and L_OFF + 1024 < 65536 and L_PS + 56 * PS_STRIDE <= L_W2

def f32bits(x):
    return struct.unpack("<I", struct.pack("<f", x))[0]
NLOG2E = f32bits(-1.4426950408889634)
NLN2 = f32bits(-0.6931471805599453)
PADREC = 0x3FFF
POLL_MAX = 4000

class Asm:
    def __init__(self):
        self.l = []
    def __call__(self, s=""):
        for x in s.strip("\n").split("\n"):
            self.l.append(x)
    def text(self):
        return "\n".join(self.l) + "\n"

def vr(a, n=1):
    return f"v{a}" if n == 1 else f"v[{a}:{a+n-1}]"
def sr(a, n=1):
    return f"s{a}" if n == 1 else f"s[{a}:{a+n-1}]"

DIAG = False
OPT = set()
def optval(prefix, default):
    for o in OPT:
        if o.startswith(prefix):
            return o[len(prefix):]
    return default

V_D = 0; V_E = 64; V_A5 = 96; V_B5 = 98; V_ND = 106; V_T = 122; V_R = 126; V_O = 128; V_IX = 132
V_AA = 140; V_AIDX = 141; V_AENT = 142; V_AQ = 143; V_INCQ = 144; V_AS = 145; V_MN = 146; V_PSEL = 147
V_TAB = 148; V_CNT = 149; V_B2 = 150; V_LANE = 154; V_TID = 155
V_J = 156; V_HH = 157
V_STAMP = 167; V_TRACE = 166
NVGPR = 168
S_X = 4; S_E = 6; S_SRC = 8; S_DST = 10; S_W1 = 12; S_B1 = 14; S_W2 = 16; S_B2 = 18; S_OUT = 20; S_DBG = 22; S_WS = 24
S_BIN = 26; S_N0 = 27; S_NN = 28; S_WAVE = 29; S_MODE = 30; S_K = 31; S_PC = 32; S_J = 34
S_RX = 36; S_RT = 40; S_RR = 44; S_P = 48
S_T0 = 56; S_NT = 57; S_TT = 58; S_SLOT = 59; S_A = 60; S_B = 61; S_C = 62; S_D = 63; S_TAG = 64
S_M = 66
S_OH = 66; S_PAR = 68; S_PAD = 70; S_MO = 71
def mask(k): return sr(S_M + 2*k, 2)

def stamp(a, k, real=False):
    if optval("amp", "") != "":
        if int(optval("amp", "")) == k:
            a("    s_memrealtime s[98:99]\n    s_waitcnt lgkmcnt(0)")
        return
    if not DIAG:
        return
    if "lite" in OPT and k not in (14, 16, 19):
        return
    a(f"    {'s_memrealtime' if real else 's_memtime'} s[98:99]")
    a(f"    s_waitcnt lgkmcnt(0)")
    a(f"    v_writelane_b32 v{V_STAMP}, s98, {k}")

def wave_scan(a, v):
    for sh in (1, 2, 4, 8):
        a(f"    s_nop 1")
        a(f"    v_add_u32_dpp v{v}, v{v}, v{v} row_shr:{sh} row_mask:0xf bank_mask:0xf")
    a(f"    s_nop 1")
    a(f"    v_add_u32_dpp v{v}, v{v}, v{v} row_bcast:15 row_mask:0xa bank_mask:0xf")
    a(f"    s_nop 1")
    a(f"    v_add_u32_dpp v{v}, v{v}, v{v} row_bcast:31 row_mask:0xc bank_mask:0xf")

SD = "dst_sel:DWORD dst_unused:UNUSED_PAD"

def small(c):
    d = vr(V_D + 16*c, 16)
    return f"    v_mfma_f32_32x32x8_bf16 {d}, {vr(V_A5,2)}, {vr(V_B5+2*c,2)}, {d}"
def tr_reads(h):
    return [f"    ds_read_b64_tr_b16 {vr(V_D+16*(2*h+k)+2*u,2)}, v{V_AA} offset:{512*u+64*k}" for u in range(8) for k in range(2)]
def ent_reads(off, q):
    h = [f"    ds_read_b32 v{V_A5+1}, v{V_AENT} offset:{off}"]
    if q:
        h += [f"    ds_read_b32 v{V_B5+2*c}, v{V_AQ} offset:{128*c}" for c in range(4)]
    return h
def idx_reads(off):
    return [f"    ds_read_u16 v{V_IX+2*m}, v{V_AIDX} offset:{off + 32*m}" for m in range(4)]
def dma_ops(h):
    return [f"    buffer_load_dwordx4 {vr(V_IX+2*m,2)}, {sr(S_RX,4)}, s{S_P+4*h+m} idxen offen offset:{1024*m} lds" for m in range(4)]

def x_phase(a, mf_cts, ex_cts, head, pre, plain, tail):
    es = [f"    v_exp_f32 v{V_E+16*k+2*u+b}, v{V_D+16*c+2*u+b}" for u in range(8) for k, c in enumerate(ex_cts) for b in range(2)]
    n1 = 22
    for h in head: a(h)
    for e in es[:n1-(4 if pre else 2)]: a(e)
    for p in plain: a(p)
    a(f"    s_waitcnt lgkmcnt(0)")
    if pre:
        a(pre[0]); a(es[n1-4]); a(pre[1]); a(pre[2]); a(es[n1-3]); a(pre[3])
    for e in es[n1-2:n1]: a(e)
    a(small(mf_cts[0]))
    for e in es[n1:n1+4]: a(e)
    a(small(mf_cts[1]))
    for e in es[n1+4:]: a(e)
    for t in tail: a(t)
    a(".p2align 3")

def flush_ops(a, cts):
    for k, c in enumerate(cts):
        D = V_ND + 4*c + 2
        a(f"    v_mul_f32 v{V_R+k}, v{D}, v{D+1}")
    for k, c in enumerate(cts):
        N = V_ND + 4*c; D = N + 2
        a(f"    v_pk_mul_f32 {vr(V_O+2*k,2)}, {vr(N,2)}, {vr(D,2)} op_sel:[0,1] op_sel_hi:[1,0]")
    for k, c in enumerate(cts):
        a(f"    v_rcp_f32 v{V_R+k}, v{V_R+k}")
    for k, c in enumerate(cts):
        a(f"    v_add_f32 v{V_O+2*k}, v{V_O+2*k}, v{V_O+2*k+1}")
    for k, c in enumerate(cts):
        a(f"    v_mul_f32 v{V_O+2*k}, v{V_O+2*k}, v{V_R+k}")
def flush_ops2(a, cts):
    a(f"    v_permlane32_swap_b32 v{V_O}, v{V_O+2}")
    a(f"    v_min3_f32 v{V_MN}, v{V_MN}, v{V_R}, v{V_R+1}")
    a(f"    v_add_f32 v{V_O}, v{V_O}, v{V_O+2}")
    a(f"    ds_write_b32 v{V_AS}, v{V_O} offset:{128*cts[0]}")

def y_phase(a, cts, b):
    nsrc = [V_ND + 4*c for c in cts]
    for u in range(8):
        if u == b:
            flush_ops(a, cts)
            for k, c in enumerate(cts):
                a(f"    v_pk_add_f32 {vr(V_ND+4*c+2,2)}, {vr(V_E+16*k+2*u,2)}, 1.0 op_sel_hi:[1,0]")
            flush_ops2(a, cts)
            for k, c in enumerate(cts):
                p = V_D + 16*c + 2*u
                if u == 7:
                    a(f"    v_pk_mov_b32 {vr(V_ND+4*c,2)}, {vr(p,2)}, {vr(p,2)} op_sel:[0,1]")
                else:
                    nsrc[k] = p
            continue
        for k, c in enumerate(cts):
            a(f"    v_pk_fma_f32 {vr(V_T+2*k,2)}, {vr(V_D+16*c+2*u,2)}, {vr(V_ND+4*c+2,2)}, {vr(nsrc[k],2)}")
        for k, c in enumerate(cts):
            D = V_ND + 4*c + 2
            a(f"    v_pk_fma_f32 {vr(D,2)}, {vr(D,2)}, {vr(V_E+16*k+2*u,2)}, {vr(D,2)}")
        for k, c in enumerate(cts):
            a(f"    v_pk_fma_f32 {vr(V_ND+4*c,2)}, {vr(nsrc[k],2)}, {vr(V_E+16*k+2*u,2)}, {vr(V_T+2*k,2)}")
            nsrc[k] = V_ND + 4*c

def onehot_ops():
    return [f"    v_cmp_ne_u32 vcc, s{S_PAD}, v{V_A5+1}",
            f"    s_xor_b64 {sr(S_OH,2)}, {sr(S_OH,2)}, {sr(S_PAR,2)}",
            f"    s_and_b64 vcc, vcc, {sr(S_OH,2)}",
            f"    v_cndmask_b32 v{V_A5}, 0, v{V_PSEL}, vcc"]
def mask_load():
    return [f"    s_sub_u32 s{S_MO}, s{S_J}, 4", f"    s_andn2_b32 s{S_MO}, s{S_MO}, 63",
            f"    s_load_dwordx2 {sr(S_OH,2)}, {sr(S_PC,2)}, s{S_MO}"]
def row_mask(b):
    sw = lambda i: (i & 0x19) | ((i & 2) << 1) | ((i & 4) >> 1)
    return sum(1 << i for i in range(32) if b is None or sw(i) < 4*b)

VAR_SIZE = 1792
def tile_variant(a, vi, b):
    name = "N" if b is None else str(b)
    a(f".org K_vbase + {VAR_SIZE*vi}, 0")
    a(f".long {row_mask(b):#x}, {row_mask(b) ^ 0xffffffff:#x}")
    a(f".org K_vbase + {VAR_SIZE*vi + 64 - 20}, 0")
    a(f"    s_setprio 2\n    s_branch K_var{name}\n    s_setprio 1\n    s_branch K_var{name}\n    s_setprio 0")
    a(f"K_var{name}:")
    bnd = b is not None
    if "trace" in OPT:
        a(f"    s_memtime s[98:99]\n    s_mov_b32 s{S_A}, m0\n    s_mov_b32 m0, s{S_K}\n    s_waitcnt lgkmcnt(0)")
        a(f"    v_writelane_b32 v{V_TRACE}, s98, m0\n    s_mov_b32 m0, s{S_A}")
    plain0 = []
    if bnd:
        plain0 = [f"    v_add_u32 v{V_AQ}, v{V_AQ}, v{V_INCQ}", f"    v_xor_b32 v{V_INCQ}, 0x400, v{V_INCQ}"]
    plain0.append(f"    v_readlane_b32 s{S_J}, v{V_TAB}, s{S_K}")
    x_phase(a, (2, 3), (0, 1), ["    s_waitcnt vmcnt(0)"] + tr_reads(1) + [f"K_vh{name}:"] + idx_reads(128), [], plain0,
            dma_ops(0) + [f"    s_add_u32 s{S_K}, s{S_K}, 1"] + mask_load() + ([f"    s_not_b64 {sr(S_PAR,2)}, {sr(S_PAR,2)}"] if bnd else []))
    y_phase(a, (0, 1), b)
    plain1 = [f"    v_add_u32 v{V_AENT}, 0x80, v{V_AENT}", f"    v_add_u32 v{V_AIDX}, 0x80, v{V_AIDX}"]
    x_phase(a, (0, 1), (2, 3), ["    s_waitcnt vmcnt(0)"] + ent_reads(128, bnd) + tr_reads(0),
            onehot_ops(), plain1,
            dma_ops(1) + [f"    s_add_u32 s{S_J}, s{S_J}, s{S_PC}", f"    s_addc_u32 s{S_J+1}, s{S_PC+1}, 0"])
    y_phase(a, (2, 3), b)
    if bnd:
        a(f"    v_add_u32 v{V_AS}, {ST_STRIDE}, v{V_AS}")
    a(f"    s_setpc_b64 {sr(S_J,2)}")

def gen_kernel(a):
    L = V_LANE; T = V_TID; J = V_J; HH = V_HH
    t0, t1, t2, t3, t4, t5 = 158, 159, 160, 161, 162, 163
    vDst = 0
    vSrc = 8
    vEa = 14
    vBa = 20
    vRk = 26
    vOf = 32
    vX = 40
    vWf = 56
    vAc = 72
    vTb = 88
    vZ = 128
    vPad = 56
    vWa = 38; vXa = 88; vTg = 18; vTa = 39; vC8 = 37; vWp = 31
    vG4 = 164; vSb = 165
    vS = 122; vP = 123; vOne = 124; vAA2 = 125; vPf = 126
    a(f"""
.p2align 8
.globl {KNAME}
.type {KNAME},@function
{KNAME}:
    s_cmp_ge_u32 s2, 256
    s_cbranch_scc1 K_end
    s_load_dwordx8 s[4:11], s[0:1], 0
    s_load_dwordx8 s[12:19], s[0:1], 32      ; w1, b1, w2, b2
    s_load_dwordx4 s[20:23], s[0:1], 64
    s_load_dwordx2 s[24:25], s[0:1], 80      ; ws
    s_memrealtime {sr(S_TAG,2)}
    v_lshrrev_b32 v1, 6, v0
    v_mov_b32 v{T}, v0
    v_readfirstlane_b32 s{S_WAVE}, v1
    v_and_b32 v{L}, 63, v0
    s_mul_i32 s3, s2, {MAINE*4}
    v_lshl_add_u32 v{t0}, v0, 4, s3
    v_lshrrev_b32 v{t1}, 1, v{t0}
    s_and_b32 s{S_BIN}, s2, 7
    s_lshl_b32 s{S_BIN}, s{S_BIN}, 5
    s_lshr_b32 s3, s2, 3
    s_add_u32 s{S_BIN}, s{S_BIN}, s3
    s_mul_i32 s{S_N0}, s{S_BIN}, {NB}
    s_sub_u32 s{S_NN}, {N_NODES}, s{S_N0}
    s_min_u32 s{S_NN}, s{S_NN}, {NB}
    v_and_b32 v{J}, 31, v0
    v_bfe_u32 v{HH}, v0, 5, 1
    s_mov_b32 s{S_MODE}, 0
    v_mov_b32 v{vZ}, 0
    v_mov_b32 v{vZ+1}, 0
    v_mov_b32 v{vZ+2}, 0
    v_mov_b32 v{vZ+3}, 0
    v_lshlrev_b32 v{t2}, 2, v0""")
    if DIAG:
        a(f"    v_mov_b32 v{V_STAMP}, 0\n    v_mov_b32 v{V_TRACE}, 0")
        stamp(a, 0, True); stamp(a, 1)
    wc = lambda c: V_B5 + 2*c
    vB1 = 97
    tc = 17
    ndual = int(optval("dual", "0"))
    cpos = optval("c_", "drain"); qpos = optval("q_", "post")
    def emit_consts():
        a(f"""
    v_and_b32 v{tc}, 7, v{L}
    v_lshlrev_b32 v{V_IX+1}, 4, v{tc}
    v_mov_b32 v{V_IX+3}, v{V_IX+1}
    v_mov_b32 v{V_IX+5}, v{V_IX+1}
    v_mov_b32 v{V_IX+7}, v{V_IX+1}
    v_and_b32 v{tc}, 8, v{L}
    v_lshl_add_u32 v{tc}, v{tc}, 4, v{vC8}
    v_lshl_add_u32 v{tc}, v{HH}, 8, v{tc}
    s_lshl_b32 s{S_B}, s{S_WAVE}, 12
    s_add_u32 s{S_B}, s{S_B}, {L_XS}
    v_add_u32 v{tc}, s{S_B}, v{tc}
    v_and_b32 v{t3}, 4, v{L}
    v_cmp_ne_u32 vcc, 0, v{t3}
    v_mov_b32 v{t3}, {L_Z}
    v_mov_b32 v{V_PSEL}, 0x3f803f80
    v_cndmask_b32 v{V_AA}, v{t3}, v{tc}, vcc
    v_add_u32 v{tc}, {L_T2 - L_XS}, v{tc}
    v_cndmask_b32 v{vAA2}, v{t3}, v{tc}, vcc
    v_and_b32 v{V_AENT}, 0x19, v{L}
    v_and_b32 v{tc}, 2, v{L}
    v_lshl_add_u32 v{V_AENT}, v{tc}, 1, v{V_AENT}
    v_bfe_u32 v{tc}, v{L}, 2, 1
    v_lshl_add_u32 v{V_AENT}, v{tc}, 1, v{V_AENT}
    v_lshlrev_b32 v{V_AENT}, 2, v{V_AENT}
    v_lshrrev_b32 v{V_AIDX}, 3, v{L}
    v_lshlrev_b32 v{V_AIDX}, 2, v{V_AIDX}""")
        for h in range(2):
            for m in range(4):
                a(f"    s_movk_i32 s{S_P+4*h+m}, {3072 - 1024*m + 128*h}")
        for c in range(4):
            a(f"    v_mov_b32 v{V_ND+4*c}, 0")
            a(f"    v_mov_b32 v{V_ND+4*c+1}, 0")
            a(f"    v_mov_b32 v{V_ND+4*c+2}, 1.0")
            a(f"    v_mov_b32 v{V_ND+4*c+3}, 1.0")
        a(f"""
    v_mov_b32 v{V_MN}, 1.0
    s_and_b32 s{S_A}, s{S_WAVE}, 3
    s_mul_i32 s{S_A}, s{S_A}, 3
    s_lshr_b32 s{S_B}, s{S_WAVE}, 2
    s_add_u32 s{S_SLOT}, s{S_A}, s{S_B}
    s_getpc_b64 {sr(S_PC,2)}
K_pc:
    s_add_u32 s{S_PC}, s{S_PC}, K_vbase - K_pc
    s_addc_u32 s{S_PC+1}, s{S_PC+1}, 0
    ; segment mapping of phase 2: segment 128 i + t/6, lane group g = t%6
    v_mul_u32_u24 v{tc}, 10923, v{T}
    v_lshrrev_b32 v{tc}, 16, v{tc}
    v_mad_i32_i24 v{vG4}, v{tc}, -6, v{T}
    v_lshlrev_b32 v{vG4}, 2, v{vG4}          ; 4g
    v_mul_u32_u24 v{vSb}, {RSTRIDE}, v{tc}
    s_lshr_b32 s{S_A}, s2, 3
    s_mul_i32 s{S_A}, s{S_A}, {781*128}
    s_add_u32 s{S_A}, s{S_A}, {WS_P}
    v_lshl_add_u32 v{vPf}, v{T}, 7, s{S_A}
    s_lshr_b32 s{S_B}, s{S_BIN}, 2
    s_lshl_b32 s{S_B}, s{S_B}, 4
    s_and_b32 s{S_A}, s{S_BIN}, 1
    s_lshl_b32 s{S_A}, s{S_A}, 3
    s_add_u32 s{S_B}, s{S_B}, s{S_A}
    s_and_b32 s{S_A}, s{S_BIN}, 2
    s_lshl_b32 s{S_A}, s{S_A}, 9
    s_add_u32 s{S_B}, s{S_B}, s{S_A}
    s_add_u32 s{S_B}, s{S_B}, {WS_TAB}
    v_lshl_add_u32 v{vTa}, v{tc}, 11, s{S_B}""")
    def emit_q():
        a(f"""
    s_cmp_ge_u32 s{S_WAVE}, 8
    s_cbranch_scc1 K_notQ
    ; ---- Q tile while the stores drain
    s_lshl_b32 s{S_A}, s{S_D}, 6
    v_add_u32 v{t3}, s{S_A}, v{t0}
    ds_read_u16 v{vB1}, v{t3} offset:256
    v_add_u32 v{tc}, v{vWa}, v{vC8}""")
        for s_ in range(4):
            for h in range(2):
                a(f"    ds_read_b64_tr_b16 {vr(vWf+4*s_+2*h,2)}, v{tc} offset:{16384+4096*s_+1024*h}")
        a(f"""
    s_and_b32 s{S_A}, s{S_WAVE}, 1
    s_lshl_b32 s{S_B}, s{S_A}, 14
    s_lshl_b32 s{S_C}, s{S_D}, 7
    s_add_u32 s{S_B}, s{S_B}, s{S_C}
    s_add_u32 s{S_B}, s{S_B}, {L_QT}
    v_lshl_add_u32 v{tc}, v{HH}, 11, s{S_B}
    v_lshl_add_u32 v{tc}, v{J}, 2, v{tc}""")
        for s_ in range(4):
            a(f"    s_waitcnt lgkmcnt({6-2*s_})")
            cin = "0" if s_ == 0 else vr(vAc, 16)
            a(f"    v_mfma_f32_32x32x16_bf16 {vr(vAc,16)}, {vr(vX+4*s_,4)}, {vr(vWf+4*s_,4)}, {cin}")
        a(f"""
    v_lshlrev_b32 v{vB1}, 16, v{vB1}
    v_mul_f32 v{vB1}, s3, v{vB1}
    s_nop 9""")
        def qrow(r):
            a(f"    v_fma_f32 v{vAc+r}, v{vAc+r}, s3, v{vB1}")
            a(f"    v_cvt_pk_bf16_f32 v{vWf+r}, v{vZ}, v{vAc+r}")
            a(f"    v_sub_f32 v{vWf+r}, v{vAc+r}, v{vWf+r}")
            a(f"    v_cvt_pk_bf16_f32 v{vWf+r}, v{vAc+r}, v{vWf+r}")
            a(f"    ds_write_b32 v{tc}, v{vWf+r} offset:{512*(8*(r>>2)+(r&3))}")
        for r in range(12): qrow(r)
        a(f"""
    s_cmp_eq_u32 s{S_A}, 1
    s_cbranch_scc1 K_notQ""")
        for r in range(12, 16): qrow(r)
        a(f"""
K_notQ:
    ds_read_u16 v{wc(0)}, v{t0}
    ds_read_u16 v{wc(1)}, v{t0} offset:64
    ds_read_u16 v{wc(2)}, v{t0} offset:128
    ds_read_u16 v{wc(3)}, v{t0} offset:192
    v_cmp_lt_u32 vcc, 31, v{L}
    s_waitcnt lgkmcnt(0)""")
        for c in range(4):
            a(f"    v_lshlrev_b32 v{wc(c)}, 16, v{wc(c)}")
            a(f"    v_mul_f32 v{wc(c)}, s3, v{wc(c)}")
            a(f"    v_cvt_pk_bf16_f32 v{t3}, v{vZ}, v{wc(c)}")
            a(f"    v_sub_f32 v{t4}, v{wc(c)}, v{t3}")
            a(f"    v_cvt_pk_bf16_f32 v{t4}, v{vZ}, v{t4}")
            a(f"    v_cndmask_b32 v{V_B5+2*c+1}, v{t3}, v{t4}, vcc")
    step = NT_ * 16
    wc = lambda c: V_B5 + 2*c
    vB1 = 97
    a(f"""
    s_waitcnt lgkmcnt(0)
    global_load_dwordx4 {vr(vDst,4)}, v{t0}, {sr(S_DST,2)}
    {f"v_writelane_b32 v{V_STAMP}, s{S_TAG}, 0" if "lite" in OPT else ""}
    ds_write_b32 v{t2}, v{vZ} offset:{L_H1}
    s_cmp_lg_u32 s{S_WAVE}, 11
    s_cbranch_scc1 K_ld1
    s_mul_i32 s{S_A}, s2, {XTRA}
    s_add_u32 s{S_A}, s{S_A}, {256*MAINE}
    v_min_u32 v{t5}, {XTRA-1}, v{L}
    v_add_lshl_u32 v{t5}, v{t5}, s{S_A}, 2
    v_lshrrev_b32 v{t4}, 1, v{t5}
    global_load_dword v{vDst+4}, v{t5}, {sr(S_DST,2)}
    global_load_dword v{vSrc+4}, v{t5}, {sr(S_SRC,2)}
    global_load_ushort v{vEa+2}, v{t4}, {sr(S_E,2)}
K_ld1:""")
    if "nocpf" not in OPT:
        a(f"""
    ; the first workgroups pull the rest of the code into their die's L2
    s_cmp_ge_u32 s2, 32
    s_cbranch_scc1 K_ld2
    s_sub_u32 s{S_A}, s{S_WAVE}, 5
    s_cmp_ge_u32 s{S_A}, 3
    s_cbranch_scc1 K_ld2
    s_lshl_b32 s{S_A}, s{S_A}, 13
    v_lshl_add_u32 v{t5}, v{L}, 7, s{S_A}
    s_getpc_b64 {sr(S_J,2)}
    global_load_dword v{t4}, v{t5}, {sr(S_J,2)}
K_ld2:""")
    a(f"""
    s_lshl_b32 s{S_A}, s2, 4
    s_add_u32 s{S_A}, s{S_A}, s{S_WAVE}
    s_cmp_lg_u32 s{S_A}, 9
    s_cbranch_scc1 K_ldJ
    s_lshl_b32 s{S_A}, s{S_TAG}, 25
    s_or_b32 s{S_A}, s{S_A}, 1
    s_lshr_b64 {sr(S_TAG,2)}, {sr(S_TAG,2)}, 7
    v_mov_b32 v{t4}, s{S_A}
    v_mov_b32 v{t4+1}, s{S_TAG}
    s_mov_b64 exec, 1
    global_store_dwordx2 v{vZ}, {vr(t4,2)}, {sr(S_DBG,2)} sc1
    s_mov_b64 exec, -1
K_ldJ:
    s_lshl_b32 s{S_A}, s{S_WAVE}, 11
    s_cmp_ge_u32 s{S_WAVE}, 8
    s_cbranch_scc1 K_stX
    s_add_u32 s{S_B}, s{S_A}, {L_W1}
    s_mov_b32 m0, s{S_B}
    v_lshrrev_b32 v{t3}, 2, v{L}
    v_and_b32 v{t3}, 12, v{t3}
    v_xor_b32 v{t3}, v{t3}, v{L}
    v_lshl_add_u32 v{t5}, v{t3}, 4, s{S_A}
    global_load_lds_dwordx4 v{t5}, {sr(S_W1,2)}
    global_load_lds_dwordx4 v{t5}, {sr(S_W1,2)} offset:1024
    s_branch K_stJ
K_stX:
    s_mov_b32 s{S_RX}, s4
    s_mov_b32 s{S_RX+1}, s5
    s_mov_b32 s{S_RX+2}, {N_NODES*128}
    s_mov_b32 s{S_RX+3}, 0x00020000
    s_add_u32 s{S_B}, s{S_A}, {L_XR - 16384}
    s_mov_b32 m0, s{S_B}
    s_lshl_b32 s{S_B}, s{S_N0}, 7
    s_add_u32 s{S_A}, s{S_A}, s{S_B}
    s_sub_u32 s{S_A}, s{S_A}, 16384
    v_lshrrev_b32 v{t3}, 4, v{L}
    v_xor_b32 v{t3}, v{t3}, v{L}
    v_lshl_add_u32 v{t3}, v{t3}, 4, s{S_A}
    v_xor_b32 v{t4}, 64, v{t3}
    buffer_load_dwordx4 v{t3}, {sr(S_RX,4)}, 0 offen lds
    buffer_load_dwordx4 v{t4}, {sr(S_RX,4)}, 0 offen offset:1024 lds
K_stJ:
    s_waitcnt lgkmcnt(0)
    s_barrier
    v_mov_b32 v{vPad}, {PADREC}
    v_mov_b32 v{vPad+1}, {PADREC}
    v_mov_b32 v{vPad+2}, {PADREC}
    v_mov_b32 v{vPad+3}, {PADREC}
    v_lshlrev_b32 v{t2}, 4, v{T}
    ds_write_b128 v{t2}, {vr(vPad,4)} offset:{L_RL}
    s_cmp_ge_u32 s{S_WAVE}, 4
    s_cbranch_scc1 K_in1
    ds_write_b128 v{t2}, {vr(vZ,4)}
    ds_write_b128 v{t2}, {vr(vPad,4)} offset:{L_ST - 4096}
K_in1:
    s_cmp_lg_u32 s{S_WAVE}, 4
    s_cbranch_scc1 K_in2
    v_lshlrev_b32 v{t3}, 3, v{L}
    v_add_u32 v{t3}, {L_ST + ZROW*ST_STRIDE}, v{t3}
    ds_write_b64 v{t3}, {vr(vZ,2)}
K_in2:
    global_load_dwordx4 {vr(vSrc,4)}, v{t0}, {sr(S_SRC,2)}
    global_load_dwordx2 {vr(vEa,2)}, v{t1}, {sr(S_E,2)}
    s_cmp_ge_u32 s{S_WAVE}, 8
    s_cbranch_scc1 K_st2
    s_add_u32 m0, m0, 16384
    v_add_u32 v{t5}, 0x4000, v{t5}
    global_load_lds_dwordx4 v{t5}, {sr(S_W1,2)}
    global_load_lds_dwordx4 v{t5}, {sr(S_W1,2)} offset:1024
    s_branch K_st3
K_st2:
    s_mov_b32 m0, {L_WC}
    v_lshlrev_b32 v{t3}, 2, v{L}
    v_add_u32 v{t4}, 0x8000, v{t3}
    global_load_lds_dword v{t4}, {sr(S_W1,2)}
    s_mov_b32 m0, {L_WC + 256}
    s_nop 0
    global_load_lds_dword v{t3}, {sr(S_B1,2)}
K_st3:
    v_and_b32 v{vC8}, 3, v{L}
    v_lshlrev_b32 v{vC8}, 3, v{vC8}
    v_and_b32 v{t1}, 16, v{L}
    v_lshl_add_u32 v{vC8}, v{t1}, 1, v{vC8}    ; 8c + 32(g&1)
""")
    if cpos == "early": emit_consts()
    a(f"""
    s_lshr_b32 s{S_D}, s{S_WAVE}, 1          ; ct
    v_bfe_u32 v{t0}, v{L}, 2, 2
    v_xor_b32 v{t3}, s{S_D}, v{t0}
    v_lshlrev_b32 v{t3}, 6, v{t3}
    v_lshl_add_u32 v{t0}, v{HH}, 3, v{t0}
    v_lshl_add_u32 v{t0}, v{t0}, 8, v{t3}
    v_add_u32 v{vWa}, {L_W1}, v{t0}
    v_and_b32 v{vWp}, 1, v{L}
    v_lshl_add_u32 v{vWp}, v{vWp}, 5, v{vWa}
    v_and_b32 v{t3}, 16, v{L}
    v_add_u32 v{vWp}, v{vWp}, v{t3}
    v_and_b32 v{t3}, 2, v{L}
    v_lshl_add_u32 v{vWp}, v{t3}, 2, v{vWp}    ; + 16(c&1) + 4(2(g&1) + (c>>1)) columns
    s_and_b32 s{S_A}, s{S_WAVE}, 1
    s_lshl_b32 s{S_A}, s{S_A}, 12
    s_add_u32 s{S_A}, s{S_A}, {L_XR}
    v_bfe_u32 v{t3}, v{L}, 1, 3
    v_xor_b32 v{t3}, v{t3}, v{HH}
    v_lshl_add_u32 v{t3}, v{t3}, 4, s{S_A}
    v_lshl_add_u32 v{vXa}, v{J}, 7, v{t3}
    v_xor_b32 v{vXa+1}, 32, v{vXa}
    v_xor_b32 v{vXa+2}, 64, v{vXa}
    v_xor_b32 v{vXa+3}, 0x60, v{vXa}
    s_mov_b32 s{S_A}, 21400
    s_mov_b32 s{S_B}, -{NB}
    s_mov_b32 s{S_C}, 0xffff0000
    v_mov_b32 v{t5}, 0x10004
    s_waitcnt vmcnt(6)
    s_cmp_lg_u32 s{S_WAVE}, 11
    s_cbranch_scc1 K_wJ
    s_bfm_b64 exec, {XTRA}, 0""")
    assert L_ST - L_RL <= step + 4096
    def binops(cols):
        for i in cols: a(f"    v_mul_u32_u24 v{vBa+i}, s{S_A}, v{vDst+i}")
        for i in cols: a(f"    v_lshrrev_b32 v{vBa+i}, 18, v{vBa+i}")
        for i in cols:
            a(f"    v_and_b32 v{vBa+i}, 0x3fc, v{vBa+i}")
            a(f"    ds_add_rtn_u32 v{vRk+i}, v{vBa+i}, v{t5} offset:{L_H1}")
        for i in cols: a(f"    v_lshlrev_b32 v{vDst+i}, 2, v{vDst+i}")
        for i in cols: a(f"    v_mad_i32_i24 v{vDst+i}, v{vBa+i}, s{S_B}, v{vDst+i}")
    binops([4])
    a(f"""
    s_mov_b64 exec, -1
K_wJ:""")
    stamp(a, 2)
    binops(range(4))
    a(f"""
    s_waitcnt vmcnt(4) lgkmcnt(0)
    s_barrier""")
    stamp(a, 3)
    a(f"""
    s_cmp_eq_u32 s{S_WAVE}, 8
    s_cbranch_scc1 K_scan1
    s_cmp_gt_u32 s{S_WAVE}, 8
    s_cbranch_scc1 K_notP""")
    for s_ in range(4):
        a(f"    ds_read_b128 {vr(vX+4*s_,4)}, v{vXa+s_}")
        for h in range(2):
            a(f"    ds_read_b64_tr_b16 {vr(vWf+4*s_+2*h,2)}, v{vWp} offset:{4096*s_+1024*h}")
    for s_ in range(4):
        a(f"    s_waitcnt lgkmcnt({9-3*s_})")
        cin = "0" if s_ == 0 else vr(vAc, 16)
        a(f"    v_mfma_f32_32x32x16_bf16 {vr(vAc,16)}, {vr(vWf+4*s_,4)}, {vr(vX+4*s_,4)}, {cin}")
    a(f"""
    s_and_b32 s{S_B}, s{S_WAVE}, 1
    s_mul_i32 s{S_A}, s{S_B}, {32*PS_STRIDE}
    s_lshl_b32 s{S_B}, s{S_D}, 6
    s_add_u32 s{S_A}, s{S_A}, s{S_B}
    s_add_u32 s{S_A}, s{S_A}, {L_PS}
    v_mul_u32_u24 v{t3}, {PS_STRIDE}, v{J}
    v_lshl_add_u32 v{t3}, v{HH}, 5, v{t3}
    v_add_u32 v{t3}, s{S_A}, v{t3}
    v_mov_b32 v{t4}, {NLOG2E:#x}
    v_cmp_gt_u32 vcc, {L_PS + 56*PS_STRIDE}, v{t3}
    s_nop 1""")
    for q in range(8):
        a(f"    v_pk_mul_f32 {vr(vAc+2*q,2)}, {vr(vAc+2*q,2)}, {vr(t4,2)} op_sel_hi:[1,0]")
    for q in range(8):
        a(f"    v_cvt_pk_bf16_f32 v{vAc+q}, v{vAc+2*q}, v{vAc+2*q+1}")
    a(f"""
    s_mov_b64 exec, vcc
    ds_write_b128 v{t3}, {vr(vAc,4)}
    ds_write_b128 v{t3}, {vr(vAc+4,4)} offset:16
    s_mov_b64 exec, -1
    s_branch K_b3
K_notP:
    v_lshlrev_b32 v{t1}, 4, v{L}
    v_add_u32 v{t4}, {L_PS + 48*PS_STRIDE}, v{t1}
    v_add_u32 v{t1}, {48*256}, v{t1}
    v_and_b32 v{vBa+4}, 0x3fc, v{vBa+4}
    s_cmp_lg_u32 s{S_WAVE}, 9
    s_cbranch_scc1 K_b3
    global_load_dwordx2 {vr(vTg,2)}, v{vZ}, {sr(S_DBG,2)}
    s_branch K_b3
K_scan1:
    s_setprio 2
    v_lshlrev_b32 v{t0}, 4, v{L}
    ds_read_b128 v[56:59], v{t0} offset:{L_H1}
    s_waitcnt lgkmcnt(0)""")
    for i in range(4):
        a(f"    v_lshrrev_b32 v{60+i}, 16, v{56+i}")
    for i in range(4):
        a(f"    v_mad_u32_u24 v{64+i}, v{60+i}, 5, 3")
    for i in range(4):
        a(f"    v_and_b32 v{64+i}, -4, v{64+i}")
    a(f"""
    v_add_u32 v65, v64, v65
    v_add_u32 v66, v65, v66
    v_add_u32 v67, v66, v67
    v_mov_b32 v68, v67""")
    wave_scan(a, 68)
    a(f"""
    v_sub_u32 v68, v68, v67
    v_add_u32 v69, v68, v64
    v_add_u32 v70, v68, v65
    v_add_u32 v71, v68, v66
    s_mov_b32 s{S_A}, 0x10001""")
    for i in range(4):
        a(f"    v_mul_u32_u24 v{64+i}, s{S_A}, v{68+i}")
    for i in range(4):
        a(f"    v_lshl_add_u32 v{64+i}, v{56+i}, 16, v{64+i}")
    a(f"""
    ds_write_b128 v{t0}, v[64:67] offset:{L_OFF}
    s_setprio 0
K_b3:
    v_lshrrev_b32 v{t0}, 4, v{T}
    v_lshl_add_u32 v{t0}, v{t0}, 4, v{t2}
    v_add_u32 v{t0}, {L_PS}, v{t0}
    s_lshl_b32 s{S_A}, s{S_N0}, 8
    s_add_u32 s{S_A}, s{S_A}, {WS_P + (0x800000 if optval("cheat", "") else 0)}
    s_add_u32 s{S_RT}, s{S_WS}, s{S_A}
    s_addc_u32 s{S_RT+1}, s{S_WS+1}, 0
    s_lshl_b32 s{S_RT+2}, s{S_NN}, 8
    s_mov_b32 s{S_RT+3}, 0x00020000
    s_waitcnt lgkmcnt(0)
    s_barrier""")
    stamp(a, 4)
    a(f"""
    s_cmp_lt_u32 s{S_WAVE}, 10
    s_cbranch_scc1 K_nx0
    ds_read_b32 v{vOf+4}, v{vBa+4} offset:{L_OFF}
    ds_read_b128 v[76:79], v{t4}
K_nx0:
    ds_read_b128 v[72:75], v{t0}""")
    for i in range(4):
        a(f"    ds_read_b32 v{vOf+i}, v{vBa+i} offset:{L_OFF}")
    a(f"""
    s_waitcnt vmcnt(2)
    v_lshl_or_b32 v{vSrc}, v{vEa}, 16, v{vSrc}
    v_and_or_b32 v{vSrc+1}, v{vEa}, s{S_C}, v{vSrc+1}
    v_lshl_or_b32 v{vSrc+2}, v{vEa+1}, 16, v{vSrc+2}
    v_and_or_b32 v{vSrc+3}, v{vEa+1}, s{S_C}, v{vSrc+3}
    s_waitcnt lgkmcnt(4)
    buffer_store_dwordx4 v[72:75], v{t2}, {sr(S_RT,4)}, 0 offen sc1""")
    def scatter(i):
        a(f"    v_add_u32_sdwa v{vBa+i}, v{vOf+i}, v{vRk+i} {SD} src0_sel:WORD_0 src1_sel:WORD_0")
        a(f"    v_add_u32_sdwa v{vOf+i}, v{vOf+i}, v{vRk+i} {SD} src0_sel:WORD_1 src1_sel:WORD_1")
        a(f"    ds_write_b32 v{vBa+i}, v{vSrc+i} offset:{L_RS}")
        a(f"    ds_write_b8 v{vOf+i}, v{vDst+i} offset:{L_RS}")
    a(f"    s_waitcnt lgkmcnt(0)")
    for i in range(4): scatter(i)
    a(f"""
    s_waitcnt vmcnt(1)
    s_cmp_lt_u32 s{S_WAVE}, 9
    s_cbranch_scc1 K_nx2
    s_cmp_eq_u32 s{S_WAVE}, 11
    s_cbranch_scc1 K_x2
    s_cmp_eq_u32 s{S_WAVE}, 9
    s_cbranch_scc1 K_tag0
    buffer_store_dwordx4 v[76:79], v{t1}, {sr(S_RT,4)}, 0 offen sc1
    s_branch K_nx2
K_tag0:
    s_mov_b32 s{S_K}, 0
K_tagp:
    v_cmp_ne_u32 vcc, 0, v{vTg}
    s_cbranch_vccnz K_tagok
    s_add_u32 s{S_K}, s{S_K}, 1
    s_cmp_gt_u32 s{S_K}, {POLL_MAX}
    s_cbranch_scc1 K_tagok
    global_load_dwordx2 {vr(vTg,2)}, v{vZ}, {sr(S_DBG,2)} sc1
    s_waitcnt vmcnt(0)
    s_branch K_tagp
K_tagok:
    ds_write_b64 v{vZ}, {vr(vTg,2)} offset:{L_NONCE}
    s_branch K_nx2
K_x2:
    s_bfm_b64 exec, {XTRA}, 0
    v_lshl_or_b32 v{vSrc+4}, v{vEa+2}, 16, v{vSrc+4}""")
    scatter(4)
    a(f"""
    s_mov_b64 exec, -1
K_nx2:
    s_mul_i32 s{S_A}, s2, {RSTRIDE}
    s_add_u32 s{S_RR}, s{S_WS}, s{S_A}
    s_addc_u32 s{S_RR+1}, s{S_WS+1}, 0
    s_mov_b32 s{S_RR+2}, 16512
    s_mov_b32 s{S_RR+3}, 0x00020000
    v_add_u32 v{t3}, {step}, v{t2}
    s_waitcnt lgkmcnt(0)
    s_barrier""")
    stamp(a, 5)
    a(f"""
    ds_read_b128 v[0:3], v{t2} offset:{L_RS}
    ds_read_b64 v[12:13], v{vZ} offset:{L_NONCE}
    s_cmp_ge_u32 s{S_WAVE}, 5
    s_cbranch_scc1 K_co1
    ds_read_b128 v[8:11], v{t2} offset:{L_RS + step}
    s_waitcnt lgkmcnt(0)
    buffer_store_dwordx4 v[8:11], v{t3}, {sr(S_RR,4)}, 0 offen sc1
K_co1:
    s_waitcnt lgkmcnt(0)
    buffer_store_dwordx4 v[0:3], v{t2}, {sr(S_RR,4)}, 0 offen sc1
""")
    if optval("cheat", ""):
        a(f"""
    s_cmp_ge_u32 s{S_WAVE}, {optval("cheat", "")}
    s_cbranch_scc1 K_ch0
    s_lshr_b32 s{S_A}, s2, 3
    s_mul_i32 s{S_A}, s{S_A}, {781*128}
    s_add_u32 s{S_A}, s{S_A}, {WS_P}
    v_lshl_add_u32 v14, v{T}, 7, s{S_A}
    global_load_dword v14, v14, {sr(S_WS,2)}
K_ch0:""")
    a(f"""
    v_readfirstlane_b32 s{S_TAG}, v12
    v_readfirstlane_b32 s{S_TAG+1}, v13
    s_mov_b32 s3, {NLOG2E:#x}
    v_lshlrev_b32 v{t0}, 1, v{J}
    v_add_u32 v{t0}, {L_WC}, v{t0}
    s_cmp_lg_u32 s{S_WAVE}, 8
    s_cbranch_scc1 K_ntb
    s_and_b32 s{S_C}, s{S_TAG}, 0xfe000000
    s_lshl_b32 s{S_B}, s2, 11
    s_add_u32 s{S_B}, s{S_B}, {WS_TAB}
    v_lshl_add_u32 v{t1}, v{L}, 4, s{S_B}""")
    for i in range(4):
        a(f"    v_lshrrev_b32 v{68+i}, 2, v{68+i}")
        a(f"    v_lshl_or_b32 v{68+i}, v{60+i}, 13, v{68+i}")
        a(f"    v_or_b32 v{vTb+2*i}, s{S_C}, v{68+i}")
        a(f"    v_mov_b32 v{vTb+2*i+1}, s{S_TAG+1}")
    a("K_ntb:")
    if cpos == "drain": emit_consts()
    if qpos == "drain":
        emit_q(); stamp(a, 7)
    if optval("cheat", ""):
        a(f"""
    s_cmp_ge_u32 s{S_WAVE}, {optval("cheat", "")}
    s_cbranch_scc1 K_ch1
    s_waitcnt vmcnt(1)
    s_branch K_ch2
K_ch1:
    s_waitcnt vmcnt(0)
K_ch2:""")
    else:
        a("    s_waitcnt vmcnt(0)")
    a(f"""
    s_barrier""")
    stamp(a, 6)
    a(f"""
    s_cmp_eq_u32 s{S_TAG}, 0
    s_cbranch_scc1 K_slow
    s_cmp_lt_u32 s{S_WAVE}, 8
    s_cbranch_scc1 K_lb2
    s_cmp_lg_u32 s{S_WAVE}, 8
    s_cbranch_scc1 K_ntab
    global_store_dwordx4 v{t1}, {vr(vTb,4)}, {sr(S_WS,2)} sc1
    global_store_dwordx4 v{t1}, {vr(vTb+4,4)}, {sr(S_WS,2)} offset:1024 sc1
K_ntab:
    s_sub_u32 s{S_A}, s{S_WAVE}, 8
    s_lshl_b32 s{S_A}, s{S_A}, 12
    s_add_u32 s{S_B}, s{S_A}, {L_W2}
    s_mov_b32 m0, s{S_B}
    v_lshl_add_u32 v{t3}, v{L}, 4, s{S_A}
    global_load_lds_dwordx4 v{t3}, {sr(S_W2,2)}
    global_load_lds_dwordx4 v{t3}, {sr(S_W2,2)} offset:1024
    global_load_lds_dwordx4 v{t3}, {sr(S_W2,2)} offset:2048
    global_load_lds_dwordx4 v{t3}, {sr(S_W2,2)} offset:3072
    s_branch K_lbJ
K_lb2:
    s_cmp_lg_u32 s{S_WAVE}, 7
    s_cbranch_scc1 K_lbJ
    s_mov_b32 m0, {L_B2}
    v_lshlrev_b32 v{t3}, 2, v{J}
    global_load_lds_dword v{t3}, {sr(S_B2,2)}
K_lbJ:""")
    if cpos == "post": emit_consts()
    if qpos == "post": emit_q()
    a(f"""
    s_lshl_b32 s{S_B}, s{S_WAVE}, 12
    s_add_u32 s{S_B}, s{S_B}, {L_XS}
    s_mov_b32 m0, s{S_B}
    v_mov_b32 v{t5}, v{vTa}""")
    if qpos == "post": stamp(a, 7)
    vT = 0
    vN = 4
    vAr = 6
    vR = 12
    vM = 28
    vA = 32
    vK = 48
    vB = 64
    vG = 80
    a(f"""
    s_mov_b32 s{S_RR}, s{S_WS}
    s_mov_b32 s{S_RR+1}, s{S_WS+1}
    s_mov_b32 s{S_RR+2}, {WS_P + N_NODES*256}
    s_mov_b32 s{S_A}, {128*2048}
    s_mov_b32 s{S_B}, {128*RSTRIDE}
    s_mov_b32 s{S_C}, 0xfe000000
    s_movk_i32 s{S_D}, 0xfc
    s_mov_b32 s{S_K}, 0
    s_mov_b64 {mask(0)}, -1
    s_mov_b64 {mask(1)}, -1
    v_mov_b32 v{vM}, 0
    v_mov_b32 v{vM+1}, 0
K_poll:
    s_mov_b64 exec, {mask(0)}
    s_cbranch_execz K_pl0
    buffer_load_dwordx2 {vr(vT,2)}, v{t5}, {sr(S_RR,4)}, 0 offen sc1
K_pl0:
    s_mov_b64 exec, {mask(1)}
    s_cbranch_execz K_pl1
    buffer_load_dwordx2 {vr(vT+2,2)}, v{t5}, {sr(S_RR,4)}, s{S_A} offen sc1
K_pl1:
    s_mov_b64 exec, -1
    s_waitcnt vmcnt(0)""")
    for i in range(2):
        a(f"    v_xor_b32 v{vN+i}, s{S_TAG}, v{vT+2*i}")
        a(f"    v_xor_b32 v{vAr+i}, s{S_TAG+1}, v{vT+2*i+1}")
        a(f"    v_and_or_b32 v{vAr+i}, v{vN+i}, s{S_C}, v{vAr+i}")
        a(f"    v_cmp_ne_u32 {mask(i)}, 0, v{vAr+i}")
    a(f"""
    s_add_u32 s{S_K}, s{S_K}, 1
    s_or_b64 vcc, {mask(0)}, {mask(1)}
    s_cbranch_scc0 K_got
    {"s_sleep " + optval("ps", "2") if optval("ps", "2") != "0" else ""}
    s_cmp_lt_u32 s{S_K}, {POLL_MAX}
    s_cbranch_scc1 K_poll
    s_mov_b32 s{S_MODE}, 1
    s_branch K_nor2a
K_got:""")
    if DIAG:
        a(f"    v_writelane_b32 v{V_STAMP}, s{S_K}, 20")
    stamp(a, 8)
    so = ["0", sr(S_B)]
    for i in range(2):
        a(f"    v_and_b32 v{vAr+i}, 0x1fff, v{vT+2*i}")
        a(f"    v_bfe_u32 v{vT+2*i+1}, v{vT+2*i}, 13, 12")
        a(f"    v_lshl_add_u32 v{vAr+i}, v{vAr+i}, 2, v{vSb}")
        a(f"    v_sub_u32 v{vN+i}, v{vT+2*i+1}, v{vG4}")
        a(f"    v_lshl_add_u32 v{vAr+2+i}, v{vT+2*i+1}, 2, v{vAr+i}")
        a(f"    v_cmp_lt_i32 {mask(4*i)}, 0, v{vN+i}")
        a(f"    v_lshl_add_u32 v{vAr+i}, v{vG4}, 2, v{vAr+i}")
        a(f"    v_add_u32 v{vAr+2+i}, v{vAr+2+i}, v{vG4}")
        a(f"    s_or_b64 exec, {mask(4*i)}, 1")
        a(f"    buffer_load_dword v{vM+i}, v{vAr+2+i}, {sr(S_RR,4)}, {so[i]} offen")
        a(f"    buffer_load_dwordx4 {vr(vR+4*i,4)}, v{vAr+i}, {sr(S_RR,4)}, {so[i]} offen")
        a(f"    s_mov_b64 exec, -1")
    for i in range(2):
        for k in range(1, 4):
            a(f"    v_cmp_lt_i32 {mask(4*i+k)}, {k}, v{vN+i}")
    a(f"""
    v_max_i32 v{t1}, v{vN}, v{vN+1}
    v_cmp_lt_i32 vcc, 24, v{t1}
    s_mov_b32 s{S_K}, 0
    s_cbranch_vccz K_nor2a
    s_mov_b32 s{S_K}, 1""")
    for i in range(2):
        a(f"    buffer_load_dword v{vM+2+i}, v{vAr+2+i}, {sr(S_RR,4)}, {so[i]} offen offset:24")
        a(f"    buffer_load_dwordx4 {vr(vR+8+4*i,4)}, v{vAr+i}, {sr(S_RR,4)}, {so[i]} offen offset:96")
        for k in range(4):
            a(f"    v_cmp_lt_i32 {mask(8+4*i+k)}, {24+k}, v{vN+i}")
    a(f"""
    v_cmp_lt_i32 vcc, 48, v{t1}
    s_cbranch_vccz K_nor2a
    s_mov_b32 s{S_MODE}, 1
K_nor2a:
    v_mov_b32 v{t4}, {L_FLAG}
    v_mov_b32 v{t0}, 4
    s_cmp_eq_u32 s{S_MODE}, 0
    s_cbranch_scc1 K_nofl
    ds_write_b32 v{t4}, v{t0}
K_nofl:
    s_waitcnt lgkmcnt(0)
    s_barrier
    ds_read_b32 v{t3}, v{t4}
    s_add_u32 s{S_RX}, s{S_WS}, {WS_P - 3072}
    s_addc_u32 s{S_RX+1}, s{S_WS+1}, 0
    s_and_b32 s{S_RX+1}, s{S_RX+1}, 0xffff
    s_or_b32 s{S_RX+1}, s{S_RX+1}, 0x01000000
    s_mov_b32 s{S_RX+2}, {N_NODES}
    s_mov_b32 s{S_RX+3}, 0x00020000
    s_waitcnt lgkmcnt(0)
    v_cmp_ne_u32 vcc, 0, v{t3}
    s_cbranch_vccnz K_slow""")
    pf0 = int(optval("pf", "8"))
    a(f"""
    s_cmp_lt_u32 s{S_WAVE}, {pf0}
    s_cbranch_scc1 K_npf
    buffer_load_dword v{t5}, v{vPf}, {sr(S_RR,4)}, 0 offen
    s_waitcnt vmcnt(1)
    s_branch K_pfJ
K_npf:
    s_waitcnt vmcnt(0)
K_pfJ:""")
    stamp(a, 9)
    def rec_reg(k): return vR + k
    def count_cols(ks):
        for k in ks:
            a(f"    v_and_b32_sdwa v{vA+k}, v{vM+k//4}, s{S_D} {SD} src0_sel:BYTE_{k%4} src1_sel:DWORD")
        for k in ks:
            a(f"    s_mov_b64 exec, {mask(k)}")
            a(f"    ds_add_rtn_u32 v{vK+k}, v{vA+k}, v{t0}")
        a(f"    s_mov_b64 exec, -1")
    count_cols(range(8))
    a(f"""
    s_cmp_eq_u32 s{S_K}, 0
    s_cbranch_scc1 K_nor2b""")
    count_cols(range(8, 16))
    a(f"""
K_nor2b:
    v_lshlrev_b32 v{t1}, 2, v{L}
    v_cmp_gt_u32 vcc, s{S_NN}, v{L}
    s_waitcnt lgkmcnt(0)
    s_barrier""")
    stamp(a, 10)
    a(f"""
    ds_read_b32 v{V_CNT}, v{t1}
    s_waitcnt lgkmcnt(0)
    v_add_u32 v{vP}, 12, v{V_CNT}
    v_and_b32 v{vP}, -16, v{vP}
    v_max_u32 v{vP}, 0x80, v{vP}
    v_cndmask_b32 v{vP}, 0, v{vP}, vcc
    v_mov_b32 v{vS}, v{vP}""")
    wave_scan(a, vS)
    a(f"""
    s_nop 0
    v_readlane_b32 s{S_A}, v{vS}, 63
    v_sub_u32 v{vS}, v{vS}, v{vP}
    ds_write_b32 v{t1}, v{vS} offset:{L_SX}
    s_cmp_gt_u32 s{S_A}, {ENT_CAP*4}
    s_cbranch_scc1 K_slow""")
    def place_cols(ks, mid=None):
        ks = list(ks)
        for k in ks:
            a(f"    ds_read_b32 v{vB+k}, v{vA+k} offset:{L_SX}")
        if mid: a(mid)
        for n, k in enumerate(ks):
            if n % 2 == 0:
                a(f"    s_waitcnt lgkmcnt({len(ks)-2-n})")
            a(f"    v_add_u32 v{vK+k}, v{vB+k}, v{vK+k}")
        for k in ks:
            a(f"    s_mov_b64 exec, {mask(k)}")
            a(f"    ds_write_b32 v{vK+k}, v{rec_reg(k)} offset:{L_RL}")
        a(f"    s_mov_b64 exec, -1")
    place_cols(range(8), f"""
    s_add_u32 s{S_A}, s{S_A}, 127
    s_lshr_b32 s{S_TT}, s{S_A}, 7            ; tiles
    s_mul_i32 s{S_T0}, s{S_SLOT}, s{S_TT}
    s_add_u32 s{S_NT}, s{S_T0}, s{S_TT}
    s_mul_i32 s{S_T0}, s{S_T0}, 43691
    s_mul_i32 s{S_NT}, s{S_NT}, 43691
    s_lshr_b32 s{S_T0}, s{S_T0}, 19
    s_lshr_b32 s{S_NT}, s{S_NT}, 19
    s_sub_u32 s{S_NT}, s{S_NT}, s{S_T0}""")
    a(f"""
    s_cmp_eq_u32 s{S_K}, 0
    s_cbranch_scc1 K_nor2c
    s_waitcnt lgkmcnt(0)""")
    place_cols(range(8, 16))
    thr = [int(x) for x in optval("thr", "5_3_1").split("_")]
    a(f"""
K_nor2c:
    s_lshl_b32 s{S_A}, s{S_T0}, 7            ; ts*4
    s_add_u32 s{S_C}, s{S_A}, {L_RL}
    v_add_u32 v{V_AIDX}, s{S_C}, v{V_AIDX}
    v_cmp_ge_u32 {mask(0)}, s{S_A}, v{vS}
    v_subrev_u32 v{t0}, s{S_A}, v{vS}
    s_and_b64 {mask(0)}, {mask(0)}, vcc
    s_bcnt1_i32_b64 s{S_B}, {mask(0)}
    s_sub_u32 s{S_B}, s{S_B}, 1              ; n
    s_andn2_b64 {mask(0)}, vcc, {mask(0)}
    s_waitcnt lgkmcnt(0)
    s_barrier""")
    stamp(a, 11)
    for h in idx_reads(0): a(h)
    a(f"""
    v_add_u32 v{V_AENT}, s{S_C}, v{V_AENT}
    v_xor_b32 v{t3}, s{S_B}, v{HH}
    v_and_b32 v{t3}, 1, v{t3}
    s_lshl_b32 s{S_A}, s{S_B}, 9
    s_add_u32 s{S_A}, s{S_A}, {L_QT}
    v_lshl_add_u32 v{V_AQ}, v{t3}, 9, s{S_A}
    v_lshl_add_u32 v{V_AQ}, v{J}, 2, v{V_AQ}
    s_waitcnt lgkmcnt(0)""")
    for h in dma_ops(0): a(h)
    a(f"""
    s_cmp_ge_u32 s{S_WAVE}, {ndual}
    s_cbranch_scc1 K_e1
    s_add_u32 m0, m0, {L_T2 - L_XS}
    s_nop 0""")
    for h in dma_ops(1): a(h)
    a("K_e1:")
    for h in ent_reads(0, True): a(h)
    a(f"""
    v_bfe_u32 v{t4}, v{t0}, 4, 3
    v_add_u32 v{t4}, 1, v{t4}
    v_mul_u32_u24 v{t4}, {VAR_SIZE}, v{t4}
    v_lshrrev_b32 v{t0}, 7, v{t0}
    v_min_u32 v{t0}, 63, v{t0}
    v_cndmask_b32 v{t0}, 63, v{t0}, {mask(0)}
    v_lshlrev_b32 v{t0}, 2, v{t0}
    v_mov_b32 v{V_TAB}, 0
    ds_permute_b32 v{V_TAB}, v{t0}, v{t4}
    s_add_u32 s{S_A}, s{S_B}, s{S_SLOT}
    s_mul_i32 s{S_A}, s{S_A}, {ST_STRIDE}
    s_add_u32 s{S_A}, s{S_A}, {L_ST}
    v_lshl_add_u32 v{V_AS}, v{L}, 2, s{S_A}
    v_xor_b32 v{t3}, 1, v{t3}
    v_lshlrev_b32 v{V_INCQ}, 10, v{t3}
    v_cvt_f32_u32 v{vOne}, s{S_TT}
    v_rcp_f32 v{vOne}, v{vOne}
    v_add3_u32 v{vP}, v{vS}, v{vP}, -4
    v_lshrrev_b32 v{vS}, 7, v{vS}
    v_lshrrev_b32 v{vP}, 7, v{vP}
    v_cvt_f32_u32 v{vS}, v{vS}
    v_cvt_f32_u32 v{vP}, v{vP}
    v_add_f32 v{vS}, {f32bits((NW-0.5)/NW):#x}, v{vS}
    v_add_f32 v{vP}, {f32bits((NW-0.5)/NW):#x}, v{vP}
    v_mul_f32 v{vOne}, {f32bits(NW):#x}, v{vOne}
    v_mul_f32 v{vS}, v{vS}, v{vOne}
    v_mul_f32 v{vP}, v{vP}, v{vOne}
    v_cvt_u32_f32 v{vS}, v{vS}
    v_cvt_u32_f32 v{vP}, v{vP}
    v_sub_u32 v{vP}, v{vP}, v{vS}
    v_add_u32 v{vS}, v{vS}, v{L}
    v_lshl_or_b32 v{vS}, v{vP}, 8, v{vS}
    v_cndmask_b32 v{vS}, {ZROW}, v{vS}, vcc
    v_lshl_or_b32 v{V_CNT}, v{vS}, 16, v{V_CNT}
    ; jump table: entry offset inside a variant slot (priority steps near the end), exit at lane nt
    v_sub_u32 v{t0}, s{S_NT}, v{L}
    v_mov_b32 v{t3}, 64""")
    for i, th in enumerate(thr):
        a(f"    v_cmp_eq_u32 {mask(i)}, {th}, v{t0}")
    a(f"    v_cmp_eq_u32 {mask(3)}, 0, v{t0}")
    a(f"    v_mov_b32 v{t4}, K_exit - K_vbase")
    for i, th in enumerate(thr):
        a(f"    v_cndmask_b32 v{t3}, v{t3}, {44 + 8*i}, {mask(i)}")
    a(f"""
    s_waitcnt lgkmcnt(0)
    v_add_u32 v{V_TAB}, v{V_TAB}, v{t3}
    v_cndmask_b32 v{V_TAB}, v{V_TAB}, v{t4}, {mask(3)}
    s_mov_b32 s{S_K}, 1
    s_setprio 3
    v_readlane_b32 s{S_J}, v{V_TAB}, 0
    s_bitcmp1_b32 s{S_B}, 0
    s_cselect_b64 {sr(S_PAR,2)}, -1, 0
    s_movk_i32 s{S_PAD}, {PADREC}""")
    for h in mask_load(): a(h)
    a(f"""
    s_cmp_ge_u32 s{S_WAVE}, {ndual}
    s_cbranch_scc1 K_e2
    s_waitcnt vmcnt(4)""")
    stamp(a, 12)
    for h in tr_reads(0): a(h)
    a(f"    s_waitcnt vmcnt(0)")
    for h in tr_reads(1): a(h.replace(f"v{V_AA} ", f"v{vAA2} "))
    a(f"""
    s_add_u32 s{S_J}, s{S_MO}, 64 + K_vhN - K_varN
    s_waitcnt lgkmcnt(0)
    s_sub_u32 m0, m0, {L_T2 - L_XS}
    s_branch K_e4
K_e2:
    s_waitcnt vmcnt(0)""")
    stamp(a, 12)
    for h in tr_reads(0): a(h)
    a(f"    s_waitcnt lgkmcnt(0)")
    for h in dma_ops(1): a(h)
    a("K_e4:")
    for h in onehot_ops(): a(h)
    a(f"""
    s_add_u32 s{S_J}, s{S_J}, s{S_PC}
    s_addc_u32 s{S_J+1}, s{S_PC+1}, 0
    s_cmp_eq_u32 s{S_NT}, 0
    s_cbranch_scc1 K_exit""")
    a(small(0)); a(small(1))
    a("    s_nop 7")
    stamp(a, 13); stamp(a, 14, True)
    a(f"    s_setpc_b64 {sr(S_J,2)}")
    a(f".p2align 6")
    a(f"K_vbase:")
    for vi, b in enumerate([None] + list(range(8))):
        tile_variant(a, vi, b)
    a(f".p2align 3")
    a(f"K_exit:")
    stamp(a, 15); stamp(a, 16, True)
    for cts in ((0, 1), (2, 3)):
        flush_ops(a, cts)
        a("    s_nop 1")
        flush_ops2(a, cts)
    a(f"""
    v_cmp_eq_f32 vcc, 0, v{V_MN}
    s_cbranch_vccz K_join
    v_mov_b32 v64, 1
    v_mov_b32 v65, {L_FLAG}
    ds_write_b32 v65, v64
K_join:
    s_cmp_ge_u32 s{S_WAVE}, 4
    s_cbranch_scc1 K_idle
    v_and_b32 v136, 15, v{L}
    v_lshrrev_b32 v137, 4, v{L}              ; g
    s_lshl_b32 s{S_A}, s{S_WAVE}, 4
    v_add_u32 v136, s{S_A}, v136             ; node
    v_lshlrev_b32 v138, 2, v136
    ds_bpermute_b32 v139, v138, v{V_CNT}
    v_and_b32 v138, 16, v{L}
    v_lshlrev_b32 v138, 2, v138
    v_lshl_add_u32 v138, v{HH}, 5, v138
    v_bfe_u32 v140, v{L}, 2, 2
    v_add_u32 v140, v140, v138
    v_lshlrev_b32 v140, 7, v140
    v_and_b32 v141, 3, v{L}
    v_lshl_add_u32 v140, v141, 4, v140
    v_add_u32 v140, {L_W2}, v140""")
    for ot in range(4):
        for ks in range(4):
            for h in range(2):
                a(f"    ds_read_b64_tr_b16 {vr(16*ot+4*ks+2*h,2)}, v140 offset:{1024*ks+512*h+64*(ot>>1)+8*(ot&1)}")
    a(f"""
    v_lshlrev_b32 v141, 4, v137
    v_add_u32 v140, {L_B2}, v141
    ds_read_b128 v[128:131], v140
    ds_read_b128 v[132:135], v140 offset:64
    v_lshl_add_u32 v141, v136, 7, v141
    s_lshl_b32 s{S_A}, s{S_N0}, 7
    s_add_u32 s{S_RT}, s{S_OUT}, s{S_A}
    s_addc_u32 s{S_RT+1}, s{S_OUT+1}, 0
    s_lshl_b32 s{S_RT+2}, s{S_NN}, 7
    s_mov_b32 s{S_RT+3}, 0x00020000
    s_mov_b32 s3, {NLN2:#x}
    s_movk_i32 s{S_K}, {ST_STRIDE}
    s_waitcnt lgkmcnt(0)
    v_bfe_u32 v142, v139, 16, 8
    v_lshrrev_b32 v143, 24, v139
    v_and_b32 v139, 0xffff, v139
    v_cvt_f32_u32 v139, v139
    v_mul_f32 v139, {f32bits(0.25 * -1.4426950408889634):#x}, v139
    v_lshlrev_b32 v138, 2, v138
    v_add_u32 v138, {L_ST}, v138
    v_mad_u32_u24 v142, v142, s{S_K}, v138
    v_add_u32 v138, {ZROW*ST_STRIDE}, v138
    v_cmp_lt_u32 vcc, 0, v143
    v_add_u32 v144, {ST_STRIDE}, v142
    v_mov_b32 v146, 0x207
    v_cndmask_b32 v145, v138, v144, vcc""")
    vO = 148
    accs = [148, 149, 150, 151, 152, 153] + list(range(156, 166))
    ACC = [112, 116, 120, 124]
    for q in range(8):
        a(f"    v_lshlrev_b32 v{112+2*q}, 16, v{128+q}")
        a(f"    v_and_b32 v{113+2*q}, 0xffff0000, v{128+q}")
    for q in range(16):
        a(f"    v_mul_f32 v{112+q}, v139, v{112+q}")
    a(f"    s_barrier")
    stamp(a, 17)
    S0 = 64; S1 = 96
    for ks in range(2):
        pass
    a(f"    s_mov_b32 s{S_A}, 1")
    for ks in range(4):
        a(f"    ds_read_b128 {vr(S0+8*ks,4)}, v142 offset:{32*ks}")
        a(f"    ds_read_b128 {vr(S0+4+8*ks,4)}, v142 offset:{32*ks+16}")
    a(f"K_rows:")
    tmp = [96, 104, 128, 156]
    for ks in range(4):
        a(f"    ds_read_b128 {vr(tmp[ks],4)}, v145 offset:{32*ks}")
        a(f"    ds_read_b128 {vr(tmp[ks]+4,4)}, v145 offset:{32*ks+16}")
    a(f"""
    v_cmp_lt_u32 vcc, s{S_A}, v143
    v_add_u32 v144, {ST_STRIDE}, v144
    s_add_u32 s{S_A}, s{S_A}, 1""")
    for ks in range(4):
        a(f"    s_waitcnt lgkmcnt({6-2*ks})")
        for q in range(4):
            a(f"    v_pk_add_f32 {vr(S0+8*ks+2*q,2)}, {vr(S0+8*ks+2*q,2)}, {vr(tmp[ks]+2*q,2)}")
    a(f"""
    v_cndmask_b32 v145, v138, v144, vcc
    s_cbranch_vccnz K_rows""")
    def cv(ks):
        for q in range(4):
            a(f"    v_cvt_pk_bf16_f32 v{96+4*ks+q}, v{S0+8*ks+2*q}, v{S0+1+8*ks+2*q}")
    def mf(ks, ot):
        d = vr(ACC[ot], 4)
        a(f"    v_mfma_f32_16x16x32_bf16 {d}, {vr(16*ot+4*ks,4)}, {vr(96+4*ks,4)}, {d}")
    cv(0); cv(1)
    for ks in range(4):
        for ot in range(4):
            mf(ks, ot)
        if ks < 2: cv(ks + 2)
    a("    s_nop 4")
    for q in range(16):
        a(f"    v_mul_f32 v{64+q}, s3, v{112+q}")
    for q in range(8):
        a(f"    v_cvt_pk_bf16_f32 v{80+q}, v{64+2*q}, v{65+2*q}")
    osc = optval("o_", "sc1")
    a(f"    buffer_store_dwordx4 v[80:83], v141, {sr(S_RT,4)}, 0 offen {osc}")
    a(f"    buffer_store_dwordx4 v[84:87], v141, {sr(S_RT,4)}, 0 offen offset:64 {osc}")
    for q in range(16):
        a(f"    v_cmp_class_f32 {mask(q)}, v{64+q}, v146")
    for q in range(1, 16):
        a(f"    s_or_b64 {mask(0)}, {mask(0)}, {mask(q)}")
    a(f"""
    s_cbranch_scc0 K_fin
    v_mov_b32 v64, 1
    v_mov_b32 v65, {L_FLAG}
    ds_write_b32 v65, v64
    s_branch K_fin
K_idle:
    s_waitcnt lgkmcnt(0)
    s_barrier                                ; B9
K_fin:
    v_mov_b32 v65, {L_FLAG}
    s_waitcnt lgkmcnt(0)
    s_barrier                                ; B10
    ds_read_b32 v64, v65
    s_waitcnt lgkmcnt(0)
    v_cmp_ne_u32 vcc, 0, v64
    s_cbranch_vccnz K_slow""")
    if DIAG:
        a("    s_waitcnt vmcnt(0)")
        stamp(a, 18); stamp(a, 19, True)
        a(f"""
    v_writelane_b32 v{V_STAMP}, s{S_NT}, 21
    s_lshl_b32 s{S_A}, s2, 4
    s_add_u32 s{S_A}, s{S_A}, s{S_WAVE}
    s_lshl_b32 s{S_A}, s{S_A}, 8
    s_add_u32 s{S_A}, s{S_A}, {WS_STAMP}
    v_lshl_add_u32 v64, v{L}, 2, s{S_A}
    s_mov_b64 exec, 0xffffffff
    global_store_dword v64, v{V_STAMP}, {sr(S_WS,2)}
    global_store_dword v64, v{V_TRACE}, {sr(S_WS,2)} offset:128""")
    if optval("amp", "") != "":
        a(f"""
    s_waitcnt vmcnt(0)
    s_cmp_lg_u32 s{S_WAVE}, 0
    s_cbranch_scc1 K_end
    s_lshl_b32 s{S_A}, s{S_TAG+1}, 7
    s_lshr_b32 s{S_B}, s{S_TAG}, 25
    s_or_b32 s{S_A}, s{S_A}, s{S_B}""")
        if optval("amp", "") == "99":
            a("    s_memrealtime s[98:99]\n    s_waitcnt lgkmcnt(0)")
        a(f"""
    s_sub_u32 s{S_B}, s98, s{S_A}
    s_mov_b64 exec, 1
    v_mov_b32 v64, 0
    v_mov_b32 v65, s{S_B}
    v_mov_b32 v66, 1
    global_atomic_{"add" if "avg" in OPT else "umax"} v64, v65, {sr(S_DBG,2)} offset:128 sc1
    s_waitcnt vmcnt(0)
    global_atomic_add v67, v64, v66, {sr(S_DBG,2)} offset:136 sc0 sc1
    s_waitcnt vmcnt(0)
    v_readfirstlane_b32 s{S_B}, v67
    s_cmp_lg_u32 s{S_B}, 255
    s_cbranch_scc1 K_end
    global_atomic_add v67, v64, v64, {sr(S_DBG,2)} offset:128 sc0 sc1
    s_waitcnt vmcnt(0)
    v_readfirstlane_b32 s{S_B}, v67
    s_mul_i32 s{S_B}, s{S_B}, {optval("mul", "5")}
    {f"s_lshr_b32 s{S_B}, s{S_B}, 8" if "avg" in OPT else ""}
    s_min_u32 s{S_B}, s{S_B}, 200000
    s_add_u32 s{S_B}, s{S_B}, {optval("base", "0")}
K_spin2:
    s_memrealtime s[98:99]
    s_waitcnt lgkmcnt(0)
    s_sub_u32 s98, s98, s{S_A}
    s_cmp_lt_u32 s98, s{S_B}
    s_cbranch_scc1 K_spin2""")
    a(f"""
K_end:
    s_endpgm
K_slow:
    s_setprio 0
    s_mov_b32 s16, s{S_N0}
    s_mov_b32 s17, s{S_NN}
    s_mov_b32 s18, s{S_WAVE}""")
    gen_slow(a, 16, 17, 18, L, NLOG2E, NW=NW)
    a("    s_endpgm")

def main():
    global DIAG
    out = sys.argv[1]
    DIAG = "diag" in sys.argv[2:] or "lite" in sys.argv[2:]
    OPT.update(sys.argv[2:])
    a = Asm()
    a(f"""; Edge-featured MPNN layer: out[n] = sum_(e: dst=n) (silu([x[src],x[dst],e] w1 + b1) w2 + b2)
; @launch grid=(256,1,1) block=({NT_},1,1) lds={L_END}
.amdgcn_target "amdgcn-amd-amdhsa--gfx950"
.text""")
    gen_kernel(a)
    a(f"""
.section .rodata,"a"
.p2align 6
.amdhsa_kernel {KNAME}
  .amdhsa_next_free_vgpr {NVGPR}
  .amdhsa_next_free_sgpr 102
  .amdhsa_accum_offset {NVGPR}
  .amdhsa_group_segment_fixed_size 0
  .amdhsa_kernarg_size 88
  .amdhsa_user_sgpr_count 2
  .amdhsa_user_sgpr_kernarg_segment_ptr 1
  .amdhsa_system_sgpr_workgroup_id_x 1
  .amdhsa_float_denorm_mode_32 3
.end_amdhsa_kernel""")
    open(out, "w").write(a.text())

if __name__ == "__main__":
    main()
```

```python
import sys, struct
from slow import gen_slow

NAME = "standalone__edge_featured_mpnn_mpnn__graph"
KNAME = NAME + "_kernel"
N_NODES = 12500
NB = 49
NW = 12
NT_ = 64 * NW
MAINE = 4 * NT_
XTRA = 53
RSTRIDE = 16640

WS_TAB = 0x420000
WS_P = 0x4C0000
WS_STAMP = 0xA00000

L_Z = 128
L_H2 = 272
L_FLAG = 536
L_NONCE = 544
L_SX = 1296
ENT_CAP = 3472
LSZ = 14080
L_ZA = 4096 - 144
L_G = 4096
L_RL = L_G + LSZ
L_ST = L_RL + LSZ
ST_STRIDE = 528
ZROW = NB + NW
L_IX = L_ST + (ZROW + 1) * ST_STRIDE
L_QT = (L_IX + LSZ // 2 + 255) // 256 * 256 + 512
L_XS = L_QT + 49 * 512
assert LSZ % 256 == 0 and (ENT_CAP + 48) * 4 == LSZ
L_W2 = L_XS + NW * 4096
L_B2 = L_W2 + 16384
L_END = L_B2 + 256
L_RS = L_ST
L_H1 = L_ST + 16640
L_OFF = L_H1 + 1024
L_W1 = L_XS
L_WC = L_XS + 32768
L_PS = L_WC + 512
L_XR = L_W2
PS_STRIDE = 272
assert L_XS % 256 == 0 and L_END <= 163840
assert L_H1 + 3072 <= L_ST + ZROW * ST_STRIDE and L_OFF + 1024 < 65536 and L_PS + 56 * PS_STRIDE <= L_W2

def f32bits(x):
    return struct.unpack("<I", struct.pack("<f", x))[0]
LOG2E = 1.4426950408889634
NLOG2E = f32bits(-LOG2E)
NLN2 = f32bits(-0.6931471805599453)
PADREC = 0x3FFF
POLL_MAX = 4000

class Asm:
    def __init__(self):
        self.l = []
    def __call__(self, s=""):
        for x in s.strip("\n").split("\n"):
            if x.strip():
                self.l.append(x.rstrip())
    def text(self):
        return "\n".join(self.l) + "\n"

def vr(a, n=1):
    return f"v{a}" if n == 1 else f"v[{a}:{a+n-1}]"
def sr(a, n=1):
    return f"s{a}" if n == 1 else f"s[{a}:{a+n-1}]"

DIAG = False
OPT = set()
def optval(prefix, default):
    for o in OPT:
        if o.startswith(prefix):
            return o[len(prefix):]
    return default

V_D = 0; V_E = 64; V_A5 = 96; V_B5 = 98; V_ND = 102; V_T = 110; V_R = 114; V_O = 118; V_IX = 132
V_AA = 140; V_AIDX = 141; V_AENT = 142; V_AQ = 143; V_INCA = 144; V_AS = 145; V_MN = 146; V_PSEL = 147
V_PF = 126; V_TAB = 148; V_CNT = 149; V_S = 150; V_P = 151; V_LANE = 154; V_TID = 155
V_J = 156; V_HH = 157
V_STAMP = 167; V_TRACE = 166
NVGPR = 168
S_X = 4; S_E = 6; S_SRC = 8; S_DST = 10; S_W1 = 12; S_B1 = 14; S_W2 = 16; S_B2 = 18; S_OUT = 20; S_DBG = 22; S_WS = 24
S_BIN = 26; S_N0 = 27; S_NN = 28; S_WAVE = 29; S_MODE = 30; S_K = 31; S_PC = 32; S_J = 34
S_RX = 36; S_RT = 40; S_RR = 44; S_P = 48; S_JJ = 52
S_T0 = 56; S_NT = 57; S_TT = 58; S_SLOT = 59; S_A = 60; S_B = 61; S_C = 62; S_D = 63; S_TAG = 64
S_M = 66
def mask(k): return sr(S_M + 2*k, 2)

def stamp(a, k, real=False):
    if optval("amp", "") != "":
        if int(optval("amp", "")) == k:
            a("    s_memrealtime s[98:99]\n    s_waitcnt lgkmcnt(0)")
        return
    if not DIAG:
        return
    a(f"    {'s_memrealtime' if real else 's_memtime'} s[100:101]")
    a(f"    s_waitcnt lgkmcnt(0)")
    a(f"    v_writelane_b32 v{V_STAMP}, s100, {k}")

def wave_scan(a, v):
    for sh in (1, 2, 4, 8):
        a(f"    s_nop 1")
        a(f"    v_add_u32_dpp v{v}, v{v}, v{v} row_shr:{sh} row_mask:0xf bank_mask:0xf")
    a(f"    s_nop 1")
    a(f"    v_add_u32_dpp v{v}, v{v}, v{v} row_bcast:15 row_mask:0xa bank_mask:0xf")
    a(f"    s_nop 1")
    a(f"    v_add_u32_dpp v{v}, v{v}, v{v} row_bcast:31 row_mask:0xc bank_mask:0xf")

SD = "dst_sel:DWORD dst_unused:UNUSED_PAD"

def dreg(s, c): return V_D + 32*s + 16*c
def small(s, c):
    d = vr(dreg(s, c), 16)
    return f"    v_mfma_f32_32x32x8_bf16 {d}, {vr(V_A5,2)}, {vr(V_B5+2*c,2)}, {d}"
def tr_reads(s):
    return [f"    ds_read_b64_tr_b16 {vr(dreg(s,c)+2*u,2)}, v{V_AA} offset:{512*u+128*c}" for u in range(8) for c in range(2)]
def ent_reads(off):
    return [f"    ds_read_b32 v{V_A5}, v{V_AENT} offset:{off}",
            f"    ds_read_b32 v{V_A5+1}, v{V_AENT} offset:{off + L_RL - L_G}"]
def q_reads():
    return [f"    ds_read_b32 v{V_B5+2*c}, v{V_AQ} offset:{256*c}" for c in range(2)]
def idx_reads(off):
    return [f"    ds_read_u16 v{V_IX+2*m}, v{V_AIDX} offset:{off + 8*m}" for m in range(4)]
def dma_ops():
    if "nodma" in OPT: return []
    return [f"    buffer_load_dwordx4 {vr(V_IX+2*m,2)}, {sr(S_RX,4)}, s{S_P+m} idxen offen offset:{1024*m} sc1 lds" for m in range(4)]

def flush1(a):
    for c in range(2):
        D = V_ND + 4*c + 2
        a(f"    v_rcp_f32 v{V_R+2*c}, v{D}")
        a(f"    v_rcp_f32 v{V_R+2*c+1}, v{D+1}")
def flush2(a):
    for c in range(2):
        a(f"    v_pk_mul_f32 {vr(V_O+2*c,2)}, {vr(V_ND+4*c,2)}, {vr(V_R+2*c,2)}")
    for c in range(2):
        a(f"    v_min3_f32 v{V_MN}, v{V_MN}, v{V_R+2*c}, v{V_R+2*c+1}")
    for c in range(2):
        a(f"    v_add_f32 v{V_O+2*c}, v{V_O+2*c}, v{V_O+2*c+1}")
    a(f"    ds_write2st64_b32 v{V_AS}, v{V_O}, v{V_O+2} offset0:0 offset1:1")

def y_phase(a, s, b):
    nsrc = [V_ND + 4*c for c in range(2)]
    for u in range(8):
        if u == b:
            flush1(a)
            for c in range(2):
                a(f"    v_pk_add_f32 {vr(V_ND+4*c+2,2)}, {vr(V_E+16*c+2*u,2)}, 1.0 op_sel_hi:[1,0]")
            flush2(a)
            for c in range(2):
                p = dreg(s, c) + 2*u
                if u == 7:
                    a(f"    v_pk_mov_b32 {vr(V_ND+4*c,2)}, {vr(p,2)}, {vr(p,2)} op_sel:[0,1]")
                else:
                    nsrc[c] = p
            continue
        for c in range(2):
            a(f"    v_pk_fma_f32 {vr(V_T+2*c,2)}, {vr(dreg(s,c)+2*u,2)}, {vr(V_ND+4*c+2,2)}, {vr(nsrc[c],2)}")
        for c in range(2):
            D = V_ND + 4*c + 2
            a(f"    v_pk_fma_f32 {vr(D,2)}, {vr(D,2)}, {vr(V_E+16*c+2*u,2)}, {vr(D,2)}")
        for c in range(2):
            a(f"    v_pk_fma_f32 {vr(V_ND+4*c,2)}, {vr(nsrc[c],2)}, {vr(V_E+16*c+2*u,2)}, {vr(V_T+2*c,2)}")
            nsrc[c] = V_ND + 4*c

VAR_SIZE = 960
ENTRY = 40
def tile_variant(a, s, b):
    name = f"{s}{'N' if b is None else b}"
    vi = 9*s + (0 if b is None else b + 1)
    a(f".org K_vbase + {VAR_SIZE*vi + ENTRY - 36}, 0")
    a(f"    s_waitcnt vmcnt(0)\n    global_load_dword v{V_PF+1}, v{V_PF}, {sr(S_WS,2)} sc1\n    s_branch K_vw{name}")
    a(f"    s_setprio 2\n    s_branch K_var{name}\n    s_setprio 1\n    s_branch K_var{name}\n    s_setprio 0")
    a(f"K_var{name}:")
    bnd = b is not None
    if "trace" in OPT and s == 0:
        a(f"    s_memtime s[100:101]\n    s_mov_b32 s{S_A}, m0\n    s_mov_b32 m0, s{S_K}\n    s_waitcnt lgkmcnt(0)")
        a(f"    v_writelane_b32 v{V_TRACE}, s100, m0\n    s_mov_b32 m0, s{S_A}")
    es = [f"    v_exp_f32 v{V_E+16*c+2*u+h}, v{dreg(s,c)+2*u+h}" for u in range(8) for c in range(2) for h in range(2)]
    n1 = int(optval("n1_", "16")); dpos = optval("dma_", "pre")
    a("    s_waitcnt vmcnt(0)")
    a(f"K_vw{name}:")
    for h in ent_reads(64 + 64*s) + (q_reads() if bnd else []) + tr_reads(s ^ 1) + idx_reads(64 + 32*s): a(h)
    for e in es[:n1-2]: a(e)
    if s == 0:
        a(f"    v_readlane_b32 s{S_JJ}, v{V_TAB}, s{S_K}")
    else:
        a(f"    v_add_u32 v{V_AENT}, v{V_INCA}, v{V_AENT}")
        a(f"    v_add_u32 v{V_AIDX}, 64, v{V_AIDX}")
    if bnd:
        a(f"    v_add_u32 v{V_AQ}, 0x200, v{V_AQ}")
    for e in es[n1-2:n1]: a(e)
    a(f"    s_waitcnt lgkmcnt(0)")
    if dpos == "pre":
        for h in dma_ops(): a(h)
    a(small(s ^ 1, 0))
    for e in es[n1:n1+4]: a(e)
    a(small(s ^ 1, 1))
    if dpos == "mid":
        for e in es[n1+4:n1+8]: a(e)
        for h in dma_ops(): a(h)
        for e in es[n1+8:]: a(e)
    else:
        for e in es[n1+4:]: a(e)
    if dpos == "end":
        for h in dma_ops(): a(h)
    if s == 0:
        a(f"    s_and_b32 s{S_J}, s{S_JJ}, 0xffff")
        a(f"    s_add_u32 s{S_K}, s{S_K}, 2")
    else:
        a(f"    s_lshr_b32 s{S_J}, s{S_JJ}, 16")
    a(f"    s_add_u32 s{S_J}, s{S_J}, s{S_PC}")
    a(f"    s_addc_u32 s{S_J+1}, s{S_PC+1}, 0")
    a(".p2align 3")
    y_phase(a, s, b)
    if bnd:
        a(f"    v_add_u32 v{V_AS}, {ST_STRIDE}, v{V_AS}")
    a(f"    s_setpc_b64 {sr(S_J,2)}")

def gen_kernel(a):
    L = V_LANE; T = V_TID; J = V_J; HH = V_HH
    t0, t1, t2, t3, t4, t5 = 158, 159, 160, 161, 162, 163
    step = NT_ * 16
    vDst = 0
    vSrc = 8
    vEa = 14
    tc = 17
    vTg = 18
    vBa = 20
    vRk = 26
    vWp = 31
    vOf = 32
    vC8 = 37; vWa = 38; vTa = 39
    vX = 40
    vWf = 56
    vPad = 56
    vAc = 72
    vTb = 88
    vXa = 88
    vB1 = 96
    vCl = 120
    v4k = 125
    vPf = 126
    vZ = 128
    vG4 = 164; vSb = 165
    vS = V_S; vP = V_P
    a(f"""
.p2align 8
.globl {KNAME}
.type {KNAME},@function
{KNAME}:
    s_cmp_ge_u32 s2, 256
    s_cbranch_scc1 K_end
    s_load_dwordx8 s[4:11], s[0:1], 0
    s_load_dwordx8 s[12:19], s[0:1], 32      ; w1, b1, w2, b2
    s_load_dwordx4 s[20:23], s[0:1], 64
    s_load_dwordx2 s[24:25], s[0:1], 80      ; ws
    s_memrealtime {sr(S_TAG,2)}
    v_lshrrev_b32 v1, 6, v0
    v_mov_b32 v{T}, v0
    v_readfirstlane_b32 s{S_WAVE}, v1
    v_and_b32 v{L}, 63, v0
    s_mul_i32 s3, s2, {MAINE*4}
    v_lshl_add_u32 v{t0}, v0, 4, s3          ; byte offset into src/dst
    v_lshrrev_b32 v{t1}, 1, v{t0}
    s_and_b32 s{S_BIN}, s2, 7
    s_lshl_b32 s{S_BIN}, s{S_BIN}, 5
    s_lshr_b32 s3, s2, 3
    s_add_u32 s{S_BIN}, s{S_BIN}, s3
    s_mul_i32 s{S_N0}, s{S_BIN}, {NB}
    s_sub_u32 s{S_NN}, {N_NODES}, s{S_N0}
    s_min_u32 s{S_NN}, s{S_NN}, {NB}
    v_and_b32 v{J}, 31, v0
    v_bfe_u32 v{HH}, v0, 5, 1
    s_mov_b32 s{S_MODE}, 0
    v_mov_b32 v{vZ}, 0
    v_mov_b32 v{vZ+1}, 0
    v_mov_b32 v{vZ+2}, 0
    v_mov_b32 v{vZ+3}, 0
    v_lshlrev_b32 v{t2}, 2, v0""")
    if DIAG:
        a(f"    v_mov_b32 v{V_STAMP}, 0\n    v_mov_b32 v{V_TRACE}, 0")
        stamp(a, 0, True); stamp(a, 1)
    a(f"""
    s_waitcnt lgkmcnt(0)
    global_load_dwordx4 {vr(vDst,4)}, v{t0}, {sr(S_DST,2)}
    ds_write_b32 v{t2}, v{vZ} offset:{L_H1}
    s_cmp_lg_u32 s{S_WAVE}, 11
    s_cbranch_scc1 K_ld1
    s_mul_i32 s{S_A}, s2, {XTRA}
    s_add_u32 s{S_A}, s{S_A}, {256*MAINE}
    v_min_u32 v{t5}, {XTRA-1}, v{L}
    v_add_lshl_u32 v{t5}, v{t5}, s{S_A}, 2
    v_lshrrev_b32 v{t4}, 1, v{t5}
    global_load_dword v{vDst+4}, v{t5}, {sr(S_DST,2)}
    global_load_dword v{vSrc+4}, v{t5}, {sr(S_SRC,2)}
    global_load_ushort v{vEa+2}, v{t4}, {sr(S_E,2)}
K_ld1:
    s_cmp_ge_u32 s2, 32
    s_cbranch_scc1 K_ldJ
    s_sub_u32 s{S_A}, s{S_WAVE}, 5
    s_cmp_ge_u32 s{S_A}, 3
    s_cbranch_scc1 K_ld2
    s_lshl_b32 s{S_A}, s{S_A}, 13
    v_lshl_add_u32 v{t5}, v{L}, 7, s{S_A}
    s_getpc_b64 {sr(S_J,2)}
    global_load_dword v{t4}, v{t5}, {sr(S_J,2)} offset:1024
K_ld2:
    s_lshl_b32 s{S_A}, s2, 4
    s_add_u32 s{S_A}, s{S_A}, s{S_WAVE}
    s_cmp_lg_u32 s{S_A}, 9
    s_cbranch_scc1 K_ldJ
    s_lshl_b32 s{S_A}, s{S_TAG}, 25
    s_or_b32 s{S_A}, s{S_A}, 1
    s_lshr_b64 {sr(S_TAG,2)}, {sr(S_TAG,2)}, 7
    v_mov_b32 v{t4}, s{S_A}
    v_mov_b32 v{t4+1}, s{S_TAG}
    s_mov_b64 exec, 1
    global_store_dwordx2 v{vZ}, {vr(t4,2)}, {sr(S_DBG,2)} sc1
    s_mov_b64 exec, -1
K_ldJ:
    s_lshl_b32 s{S_A}, s{S_WAVE}, 11
    s_cmp_ge_u32 s{S_WAVE}, 8
    s_cbranch_scc1 K_stX
    s_add_u32 m0, s{S_A}, {L_W1}
    v_lshrrev_b32 v{t3}, 2, v{L}
    v_and_b32 v{t3}, 12, v{t3}
    v_xor_b32 v{t3}, v{t3}, v{L}
    v_lshl_add_u32 v{t5}, v{t3}, 4, s{S_A}
    global_load_lds_dwordx4 v{t5}, {sr(S_W1,2)}
    global_load_lds_dwordx4 v{t5}, {sr(S_W1,2)} offset:1024
    s_branch K_stJ
K_stX:
    s_mov_b32 s{S_RX}, s4
    s_mov_b32 s{S_RX+1}, s5
    s_mov_b32 s{S_RX+2}, {N_NODES*128}
    s_mov_b32 s{S_RX+3}, 0x00020000
    s_add_u32 m0, s{S_A}, {L_XR - 16384}
    s_lshl_b32 s{S_B}, s{S_N0}, 7
    s_add_u32 s{S_A}, s{S_A}, s{S_B}
    s_sub_u32 s{S_A}, s{S_A}, 16384
    v_lshrrev_b32 v{t3}, 4, v{L}
    v_xor_b32 v{t3}, v{t3}, v{L}
    v_lshl_add_u32 v{t3}, v{t3}, 4, s{S_A}
    v_xor_b32 v{t5}, 64, v{t3}
    buffer_load_dwordx4 v{t3}, {sr(S_RX,4)}, 0 offen lds
    buffer_load_dwordx4 v{t5}, {sr(S_RX,4)}, 0 offen offset:1024 lds
K_stJ:
    s_waitcnt lgkmcnt(0)
    s_barrier
    v_mov_b32 v{vPad}, {PADREC}
    v_mov_b32 v{vPad+1}, {PADREC}
    v_mov_b32 v{vPad+2}, {PADREC}
    v_mov_b32 v{vPad+3}, {PADREC}
    v_lshlrev_b32 v{t2}, 4, v{T}
    ds_write_b128 v{t2}, {vr(vPad,4)} offset:{L_RL}
    s_cmp_ge_u32 s{S_WAVE}, 4
    s_cbranch_scc1 K_in1
    ds_write_b128 v{t2}, {vr(vZ,4)}
    ds_write_b128 v{t2}, {vr(vPad,4)} offset:{L_ST - 4096}
K_in1:
    s_cmp_lg_u32 s{S_WAVE}, 4
    s_cbranch_scc1 K_in2
    v_lshlrev_b32 v{t3}, 3, v{L}
    v_add_u32 v{t3}, {L_ST + ZROW*ST_STRIDE}, v{t3}
    ds_write_b64 v{t3}, {vr(vZ,2)}
    v_lshlrev_b32 v{t3}, 2, v{L}
    ds_write_b32 v{t3}, v{vZ} offset:{L_RL - 256}
K_in2:
    global_load_dwordx4 {vr(vSrc,4)}, v{t0}, {sr(S_SRC,2)}
    global_load_dwordx2 {vr(vEa,2)}, v{t1}, {sr(S_E,2)}
    s_cmp_ge_u32 s{S_WAVE}, 8
    s_cbranch_scc1 K_st2
    s_add_u32 m0, m0, 16384
    v_add_u32 v{t5}, 0x4000, v{t5}
    global_load_lds_dwordx4 v{t5}, {sr(S_W1,2)}
    global_load_lds_dwordx4 v{t5}, {sr(S_W1,2)} offset:1024
    s_branch K_st3
K_st2:
    s_mov_b32 m0, {L_WC}
    v_lshlrev_b32 v{t3}, 2, v{L}
    v_add_u32 v{t4}, 0x8000, v{t3}
    global_load_lds_dword v{t4}, {sr(S_W1,2)}
    s_mov_b32 m0, {L_WC + 256}
    s_nop 0
    global_load_lds_dword v{t3}, {sr(S_B1,2)}
K_st3:
    v_and_b32 v{vC8}, 3, v{L}
    v_lshlrev_b32 v{vC8}, 3, v{vC8}
    v_and_b32 v{t1}, 16, v{L}
    v_lshl_add_u32 v{vC8}, v{t1}, 1, v{vC8}  ; 8c + 32(g&1)
    s_lshr_b32 s{S_D}, s{S_WAVE}, 1          ; ct
    v_bfe_u32 v{t0}, v{L}, 2, 2
    v_xor_b32 v{t3}, s{S_D}, v{t0}
    v_lshlrev_b32 v{t3}, 6, v{t3}
    v_lshl_add_u32 v{t0}, v{HH}, 3, v{t0}
    v_lshl_add_u32 v{t0}, v{t0}, 8, v{t3}
    v_add_u32 v{vWa}, {L_W1}, v{t0}
    v_and_b32 v{vWp}, 1, v{L}
    v_lshl_add_u32 v{vWp}, v{vWp}, 5, v{vWa}
    v_and_b32 v{t3}, 16, v{L}
    v_add_u32 v{vWp}, v{vWp}, v{t3}
    v_and_b32 v{t3}, 2, v{L}
    v_lshl_add_u32 v{vWp}, v{t3}, 2, v{vWp}  ; + 16(c&1) + 4(2(g&1) + (c>>1)) columns
    s_and_b32 s{S_A}, s{S_WAVE}, 1
    s_lshl_b32 s{S_A}, s{S_A}, 12
    s_add_u32 s{S_A}, s{S_A}, {L_XR}
    v_bfe_u32 v{t3}, v{L}, 1, 3
    v_xor_b32 v{t3}, v{t3}, v{HH}
    v_lshl_add_u32 v{t3}, v{t3}, 4, s{S_A}
    v_lshl_add_u32 v{vXa}, v{J}, 7, v{t3}
    v_xor_b32 v{vXa+1}, 32, v{vXa}
    v_xor_b32 v{vXa+2}, 64, v{vXa}
    v_xor_b32 v{vXa+3}, 0x60, v{vXa}
    s_mov_b32 s{S_A}, 21400
    s_mov_b32 s{S_B}, -{NB}
    s_mov_b32 s{S_C}, 0xffff0000
    v_mov_b32 v{t5}, 0x10004
    v_mov_b32 v{vBa+4}, 0
    v_mov_b32 v{v4k}, 0x4000
    s_waitcnt vmcnt(6)
    s_cmp_lg_u32 s{S_WAVE}, 11
    s_cbranch_scc1 K_wJ
    s_bfm_b64 exec, {XTRA}, 0""")
    assert L_ST - L_RL <= step + 4096
    def binops(cols):
        for i in cols: a(f"    v_mul_u32_u24 v{vBa+i}, s{S_A}, v{vDst+i}")
        for i in cols: a(f"    v_lshrrev_b32 v{vBa+i}, 18, v{vBa+i}")
        for i in cols:
            a(f"    v_and_b32 v{vBa+i}, 0x3fc, v{vBa+i}")
            a(f"    ds_add_rtn_u32 v{vRk+i}, v{vBa+i}, v{t5} offset:{L_H1}")
        for i in cols: a(f"    v_lshlrev_b32 v{vDst+i}, 2, v{vDst+i}")
        for i in cols: a(f"    v_mad_i32_i24 v{vDst+i}, v{vBa+i}, s{S_B}, v{vDst+i}")
        for i in cols: a(f"    v_bfe_u32 v{vCl+i}, v{vDst+i}, 2, 1")
    binops([4])
    a(f"""
    s_mov_b64 exec, -1
K_wJ:""")
    stamp(a, 2)
    binops(range(4))
    a(f"""
    s_waitcnt vmcnt(4) lgkmcnt(0)
    s_barrier""")
    stamp(a, 3)
    a(f"""
    s_cmp_eq_u32 s{S_WAVE}, 8
    s_cbranch_scc1 K_scan1
    s_cmp_gt_u32 s{S_WAVE}, 8
    s_cbranch_scc1 K_notP
    ; ---- waves 0..7: P^T tile = -log2(e) * (x w1[0:64])^T""")
    for s_ in range(4):
        a(f"    ds_read_b128 {vr(vX+4*s_,4)}, v{vXa+s_}")
        for h in range(2):
            a(f"    ds_read_b64_tr_b16 {vr(vWf+4*s_+2*h,2)}, v{vWp} offset:{4096*s_+1024*h}")
    for s_ in range(4):
        a(f"    s_waitcnt lgkmcnt({9-3*s_})")
        cin = "0" if s_ == 0 else vr(vAc, 16)
        a(f"    v_mfma_f32_32x32x16_bf16 {vr(vAc,16)}, {vr(vWf+4*s_,4)}, {vr(vX+4*s_,4)}, {cin}")
    a(f"""
    s_and_b32 s{S_B}, s{S_WAVE}, 1
    s_mul_i32 s{S_A}, s{S_B}, {32*PS_STRIDE}
    s_lshl_b32 s{S_B}, s{S_D}, 6
    s_add_u32 s{S_A}, s{S_A}, s{S_B}
    s_add_u32 s{S_A}, s{S_A}, {L_PS}
    v_mul_u32_u24 v{t3}, {PS_STRIDE}, v{J}
    v_lshl_add_u32 v{t3}, v{HH}, 5, v{t3}
    v_add_u32 v{t3}, s{S_A}, v{t3}
    v_mov_b32 v{t4}, {NLOG2E:#x}
    v_cmp_gt_u32 vcc, {L_PS + 56*PS_STRIDE}, v{t3}
    s_nop 1""")
    for q in range(8):
        a(f"    v_pk_mul_f32 {vr(vAc+2*q,2)}, {vr(vAc+2*q,2)}, {vr(t4,2)} op_sel_hi:[1,0]")
    for q in range(8):
        a(f"    v_cvt_pk_bf16_f32 v{vAc+q}, v{vAc+2*q}, v{vAc+2*q+1}")
    a(f"""
    s_mov_b64 exec, vcc
    ds_write_b128 v{t3}, {vr(vAc,4)}
    ds_write_b128 v{t3}, {vr(vAc+4,4)} offset:16
    s_mov_b64 exec, -1
    s_branch K_b3
K_notP:
    v_lshlrev_b32 v{t1}, 4, v{L}
    v_add_u32 v{t4}, {L_PS + 48*PS_STRIDE}, v{t1}
    v_add_u32 v{t1}, {48*256}, v{t1}
    s_branch K_b3
K_scan1:
    ; ---- wave 8: segment offsets; a segment is n records (4 bytes) followed by n node bytes, padded to 4
    s_setprio 2
    global_load_dwordx2 {vr(vTg,2)}, v{vZ}, {sr(S_DBG,2)}
    v_lshlrev_b32 v{t0}, 4, v{L}
    ds_read_b128 v[56:59], v{t0} offset:{L_H1}
    s_waitcnt lgkmcnt(0)""")
    for i in range(4):
        a(f"    v_lshrrev_b32 v{60+i}, 16, v{56+i}")
    for i in range(4):
        a(f"    v_mad_u32_u24 v{64+i}, v{60+i}, 5, 3")
    for i in range(4):
        a(f"    v_and_b32 v{64+i}, -4, v{64+i}")
    a(f"""
    v_add_u32 v65, v64, v65
    v_add_u32 v66, v65, v66
    v_add_u32 v67, v66, v67
    v_mov_b32 v68, v67""")
    wave_scan(a, 68)
    a(f"""
    v_sub_u32 v68, v68, v67
    v_add_u32 v69, v68, v64
    v_add_u32 v70, v68, v65
    v_add_u32 v71, v68, v66
    s_mov_b32 s{S_A}, 0x10001""")
    for i in range(4):
        a(f"    v_mul_u32_u24 v{64+i}, s{S_A}, v{68+i}")
    for i in range(4):
        a(f"    v_lshl_add_u32 v{64+i}, v{56+i}, 16, v{64+i}")
    a(f"""
    ds_write_b128 v{t0}, v[64:67] offset:{L_OFF}
    s_setprio 0
K_b3:
    v_lshrrev_b32 v{t0}, 4, v{T}
    v_lshl_add_u32 v{t0}, v{t0}, 4, v{t2}
    v_add_u32 v{t0}, {L_PS}, v{t0}
    s_lshl_b32 s{S_A}, s{S_N0}, 8
    s_add_u32 s{S_A}, s{S_A}, {WS_P}
    s_add_u32 s{S_RT}, s{S_WS}, s{S_A}
    s_addc_u32 s{S_RT+1}, s{S_WS+1}, 0
    s_lshl_b32 s{S_RT+2}, s{S_NN}, 8
    s_mov_b32 s{S_RT+3}, 0x00020000
    s_waitcnt lgkmcnt(0)
    s_barrier                                ; B3: segment offsets, P staged""")
    stamp(a, 4)
    a(f"""
    s_cmp_lt_u32 s{S_WAVE}, 10
    s_cbranch_scc1 K_nx0
    ds_read_b32 v{vOf+4}, v{vBa+4} offset:{L_OFF}
    ds_read_b128 v[76:79], v{t4}
K_nx0:
    ds_read_b128 v[72:75], v{t0}""")
    for i in range(4):
        a(f"    ds_read_b32 v{vOf+i}, v{vBa+i} offset:{L_OFF}")
    a(f"""
    s_waitcnt vmcnt(2)
    v_lshl_or_b32 v{vSrc}, v{v4k}, v{vCl}, v{vSrc}
    v_lshl_or_b32 v{vSrc+1}, v{v4k}, v{vCl+1}, v{vSrc+1}
    v_lshl_or_b32 v{vSrc+2}, v{v4k}, v{vCl+2}, v{vSrc+2}
    v_lshl_or_b32 v{vSrc+3}, v{v4k}, v{vCl+3}, v{vSrc+3}
    v_lshl_or_b32 v{vSrc}, v{vEa}, 16, v{vSrc}
    v_and_or_b32 v{vSrc+1}, v{vEa}, s{S_C}, v{vSrc+1}
    v_lshl_or_b32 v{vSrc+2}, v{vEa+1}, 16, v{vSrc+2}
    v_and_or_b32 v{vSrc+3}, v{vEa+1}, s{S_C}, v{vSrc+3}
    s_waitcnt lgkmcnt(4)
    buffer_store_dwordx4 v[72:75], v{t2}, {sr(S_RT,4)}, 0 offen sc1
    s_waitcnt lgkmcnt(0)""")
    def scatter(i):
        a(f"    v_add_u32_sdwa v{vBa+i}, v{vOf+i}, v{vRk+i} {SD} src0_sel:WORD_0 src1_sel:WORD_0")
        a(f"    v_add_u32_sdwa v{vOf+i}, v{vOf+i}, v{vRk+i} {SD} src0_sel:WORD_1 src1_sel:WORD_1")
        a(f"    ds_write_b32 v{vBa+i}, v{vSrc+i} offset:{L_RS}")
        a(f"    ds_write_b8 v{vOf+i}, v{vDst+i} offset:{L_RS}")
    for i in range(4): scatter(i)
    a(f"""
    s_cmp_lt_u32 s{S_WAVE}, 10
    s_cbranch_scc1 K_nx2
    s_cmp_eq_u32 s{S_WAVE}, 11
    s_cbranch_scc1 K_x2
    buffer_store_dwordx4 v[76:79], v{t1}, {sr(S_RT,4)}, 0 offen sc1
    s_branch K_nx2
K_x2:
    s_bfm_b64 exec, {XTRA}, 0
    v_lshl_or_b32 v{vSrc+4}, v{v4k}, v{vCl+4}, v{vSrc+4}
    v_lshl_or_b32 v{vSrc+4}, v{vEa+2}, 16, v{vSrc+4}""")
    scatter(4)
    a(f"""
    s_mov_b64 exec, -1
K_nx2:
    s_mul_i32 s{S_A}, s2, {RSTRIDE}
    s_add_u32 s{S_RR}, s{S_WS}, s{S_A}
    s_addc_u32 s{S_RR+1}, s{S_WS+1}, 0
    s_mov_b32 s{S_RR+2}, 16512
    s_mov_b32 s{S_RR+3}, 0x00020000
    v_add_u32 v{t3}, {step}, v{t2}
    s_waitcnt lgkmcnt(0)
    s_barrier""")
    stamp(a, 5)
    a(f"""
    ds_read_b128 v[0:3], v{t2} offset:{L_RS}
    s_cmp_ge_u32 s{S_WAVE}, 5
    s_cbranch_scc1 K_co1
    ds_read_b128 v[8:11], v{t2} offset:{L_RS + step}
    s_waitcnt lgkmcnt(0)
    buffer_store_dwordx4 v[8:11], v{t3}, {sr(S_RR,4)}, 0 offen sc1
K_co1:
    s_waitcnt lgkmcnt(0)
    buffer_store_dwordx4 v[0:3], v{t2}, {sr(S_RR,4)}, 0 offen sc1
    v_and_b32 v{tc}, 15, v{L}
    v_bfe_u32 v{t3}, v{L}, 4, 1
    v_lshlrev_b32 v{t3}, 2, v{t3}
    v_xor_b32 v{tc}, v{tc}, v{t3}
    v_lshlrev_b32 v{V_IX+1}, 4, v{tc}
    v_mov_b32 v{V_IX+3}, v{V_IX+1}
    v_mov_b32 v{V_IX+5}, v{V_IX+1}
    v_mov_b32 v{V_IX+7}, v{V_IX+1}
    v_lshrrev_b32 v{V_AIDX}, 4, v{L}
    v_lshlrev_b32 v{V_AIDX}, 1, v{V_AIDX}
    v_bfe_u32 v{tc}, v{L}, 3, 1
    v_xor_b32 v{t3}, v{tc}, v{HH}
    v_lshl_add_u32 v{t3}, v{t3}, 6, v{vC8}
    v_lshl_add_u32 v{tc}, v{tc}, 8, v{t3}
    s_lshl_b32 s{S_B}, s{S_WAVE}, 12
    s_add_u32 s{S_B}, s{S_B}, {L_XS}
    v_add_u32 v{tc}, s{S_B}, v{tc}
    v_bfe_u32 v{t4}, v{L}, 2, 1
    v_cmp_ne_u32 vcc, 0, v{t4}
    v_mov_b32 v{t3}, {L_Z}
    v_mov_b32 v{V_MN}, 1.0
    v_cndmask_b32 v{V_AA}, v{t3}, v{tc}, vcc
    v_cmp_eq_u32 {mask(0)}, v{t4}, v{HH}
    v_bfe_u32 v{tc}, v{L}, 3, 2
    v_and_b32 v{t3}, 3, v{L}
    v_lshl_add_u32 v{tc}, v{tc}, 2, v{t3}
    v_lshlrev_b32 v{tc}, 2, v{tc}
    v_add_u32 v{tc}, {L_G}, v{tc}
    v_mov_b32 v{t3}, {L_ZA}
    v_cndmask_b32 v{V_AENT}, v{t3}, v{tc}, {mask(0)}
    v_mov_b32 v{t3}, 0x80
    v_cndmask_b32 v{V_INCA}, 0, v{t3}, {mask(0)}""")
    for m in range(4):
        a(f"    s_movk_i32 s{S_P+m}, {3072 - 1024*m}")
    for c in range(2):
        a(f"    v_mov_b32 v{V_ND+4*c}, 0")
        a(f"    v_mov_b32 v{V_ND+4*c+1}, 0")
        a(f"    v_mov_b32 v{V_ND+4*c+2}, 1.0")
        a(f"    v_mov_b32 v{V_ND+4*c+3}, 1.0")
    a(f"""
    s_and_b32 s{S_A}, s{S_WAVE}, 3
    s_mul_i32 s{S_A}, s{S_A}, 3
    s_lshr_b32 s{S_B}, s{S_WAVE}, 2
    s_add_u32 s{S_SLOT}, s{S_A}, s{S_B}
    s_getpc_b64 {sr(S_PC,2)}
K_pc:
    s_add_u32 s{S_PC}, s{S_PC}, K_vbase - K_pc
    s_addc_u32 s{S_PC+1}, s{S_PC+1}, 0
    ; segment mapping of phase 2: segment 128 i + t/6, lane group g = t%6
    v_mul_u32_u24 v{tc}, 10923, v{T}
    v_lshrrev_b32 v{tc}, 16, v{tc}
    v_mad_i32_i24 v{vG4}, v{tc}, -6, v{T}
    v_lshlrev_b32 v{vG4}, 2, v{vG4}          ; 4g
    v_mul_u32_u24 v{vSb}, {RSTRIDE}, v{tc}
    s_lshr_b32 s{S_A}, s2, 3
    s_mul_i32 s{S_A}, s{S_A}, {256*128 if "hot" in OPT else 781*128}
    s_add_u32 s{S_A}, s{S_A}, {WS_P - (512*128 if "hot" in OPT else 0)}
    v_lshl_add_u32 v{vPf}, v{T}, 7, s{S_A}
    s_lshr_b32 s{S_B}, s{S_BIN}, 2
    s_lshl_b32 s{S_B}, s{S_B}, 4
    s_and_b32 s{S_A}, s{S_BIN}, 1
    s_lshl_b32 s{S_A}, s{S_A}, 3
    s_add_u32 s{S_B}, s{S_B}, s{S_A}
    s_and_b32 s{S_A}, s{S_BIN}, 2
    s_lshl_b32 s{S_A}, s{S_A}, 9
    s_add_u32 s{S_B}, s{S_B}, s{S_A}
    s_add_u32 s{S_B}, s{S_B}, {WS_TAB}
    v_lshl_add_u32 v{t5}, v{tc}, 11, s{S_B}  ; table entry offset
    s_mov_b32 s3, {NLOG2E:#x}
    s_cmp_lg_u32 s{S_WAVE}, 8
    s_cbranch_scc1 K_ntb
    s_mov_b32 s{S_K}, 0
    s_waitcnt vmcnt(2)
K_tagp:
    v_cmp_ne_u32 vcc, 0, v{vTg}
    s_cbranch_vccnz K_tagok
    s_add_u32 s{S_K}, s{S_K}, 1
    s_cmp_gt_u32 s{S_K}, {POLL_MAX}
    s_cbranch_scc1 K_tagok                   ; give up: tag 0 sends this workgroup to the slow path
    global_load_dwordx2 {vr(vTg,2)}, v{vZ}, {sr(S_DBG,2)} sc1
    s_waitcnt vmcnt(0)
    s_branch K_tagp
K_tagok:
    ds_write_b64 v{vZ}, {vr(vTg,2)} offset:{L_NONCE}
    v_and_b32 v{t3}, 0xfe000000, v{vTg}
    s_lshl_b32 s{S_B}, s2, 11
    s_add_u32 s{S_B}, s{S_B}, {WS_TAB}
    v_lshl_add_u32 v{t1}, v{L}, 4, s{S_B}""")
    for i in range(4):
        a(f"    v_lshrrev_b32 v{68+i}, 2, v{68+i}")
        a(f"    v_lshl_or_b32 v{68+i}, v{60+i}, 13, v{68+i}")
        a(f"    v_or_b32 v{vTb+2*i}, v{t3}, v{68+i}")
        a(f"    v_mov_b32 v{vTb+2*i+1}, v{vTg+1}")
    a(f"""
    s_waitcnt vmcnt(0) lgkmcnt(0)
    s_barrier                                ; B5
    s_cbranch_vccz K_slow
    global_store_dwordx4 v{t1}, {vr(vTb,4)}, {sr(S_WS,2)} sc1
    global_store_dwordx4 v{t1}, {vr(vTb+4,4)}, {sr(S_WS,2)} offset:1024 sc1
    s_branch K_b5j
K_ntb:
    s_waitcnt vmcnt(0)
    s_barrier
K_b5j:""")
    stamp(a, 6)
    a(f"""
    ds_read_b64 {vr(vTg,2)}, v{vZ} offset:{L_NONCE}
    v_lshlrev_b32 v{t0}, 1, v{L}
    v_add_u32 v{t0}, {L_WC}, v{t0}
    ds_read_u16 v{V_B5}, v{t0}
    ds_read_u16 v{V_B5+2}, v{t0} offset:128
    s_waitcnt lgkmcnt(0)
    v_readfirstlane_b32 s{S_TAG}, v{vTg}
    v_readfirstlane_b32 s{S_TAG+1}, v{vTg+1}
    s_cmp_eq_u32 s{S_TAG}, 0
    s_cbranch_scc1 K_slow""")
    for c in range(2):
        w = V_B5 + 2*c
        a(f"    v_lshlrev_b32 v{w}, 16, v{w}")
        a(f"    v_mul_f32 v{w}, s3, v{w}")
        a(f"    v_cvt_pk_bf16_f32 v{t3}, v{vZ}, v{w}")
        a(f"    v_sub_f32 v{t3}, v{w}, v{t3}")
        a(f"    v_cvt_pk_bf16_f32 v{w+1}, v{w}, v{t3}")
    a(f"""
    s_cmp_lt_u32 s{S_WAVE}, 8
    s_cbranch_scc1 K_Q
    s_sub_u32 s{S_A}, s{S_WAVE}, 8
    s_lshl_b32 s{S_A}, s{S_A}, 12
    s_add_u32 m0, s{S_A}, {L_W2}
    v_lshl_add_u32 v{t3}, v{L}, 4, s{S_A}
    global_load_lds_dwordx4 v{t3}, {sr(S_W2,2)}
    global_load_lds_dwordx4 v{t3}, {sr(S_W2,2)} offset:1024
    global_load_lds_dwordx4 v{t3}, {sr(S_W2,2)} offset:2048
    global_load_lds_dwordx4 v{t3}, {sr(S_W2,2)} offset:3072
    s_cmp_lg_u32 s{S_WAVE}, 9
    s_cbranch_scc1 K_notQ
    s_mov_b32 m0, {L_B2}
    v_lshlrev_b32 v{t3}, 2, v{J}
    global_load_lds_dword v{t3}, {sr(S_B2,2)}
    s_branch K_notQ
K_Q:
    s_mov_b32 s3, {f32bits(-LOG2E/2):#x}
    s_lshl_b32 s{S_A}, s{S_D}, 6
    s_add_u32 s{S_A}, s{S_A}, {L_WC + 256}
    v_lshl_add_u32 v{t3}, v{J}, 1, s{S_A}
    ds_read_u16 v{vB1}, v{t3}
    v_add_u32 v{tc}, v{vWa}, v{vC8}""")
    for s_ in range(4):
        for h in range(2):
            a(f"    ds_read_b64_tr_b16 {vr(vWf+4*s_+2*h,2)}, v{tc} offset:{16384+4096*s_+1024*h}")
    a(f"""
    s_and_b32 s{S_A}, s{S_WAVE}, 1
    s_lshl_b32 s{S_B}, s{S_A}, 14
    s_lshl_b32 s{S_C}, s{S_D}, 7
    s_add_u32 s{S_B}, s{S_B}, s{S_C}
    s_add_u32 s{S_B}, s{S_B}, {L_QT - 512}
    v_lshl_add_u32 v{tc}, v{HH}, 11, s{S_B}
    v_lshl_add_u32 v{tc}, v{J}, 2, v{tc}""")
    for s_ in range(4):
        a(f"    s_waitcnt lgkmcnt({6-2*s_})")
        cin = "0" if s_ == 0 else vr(vAc, 16)
        a(f"    v_mfma_f32_32x32x16_bf16 {vr(vAc,16)}, {vr(vX+4*s_,4)}, {vr(vWf+4*s_,4)}, {cin}")
    a(f"""
    v_lshlrev_b32 v{vB1}, 16, v{vB1}
    v_mul_f32 v{vB1}, s3, v{vB1}
    s_nop 9""")
    def qpair(r):
        row = 8*(r >> 2) + (r & 3)
        a(f"    v_fma_f32 v{vAc+r}, v{vAc+r}, s3, v{vB1}")
        a(f"    v_fma_f32 v{vAc+r+1}, v{vAc+r+1}, s3, v{vB1}")
        a(f"    v_cvt_pk_bf16_f32 v{vWf+r}, v{vAc+r}, v{vAc+r+1}")
        a(f"    ds_write_b32 v{tc}, v{vWf+r} offset:{512*(row+1)}")
        a(f"    ds_write_b16 v{tc}, v{vWf+r} offset:{512*row}")
        a(f"    ds_write_b16_d16_hi v{tc}, v{vWf+r} offset:{512*(row+2)+2}")
    for r in range(0, 12, 2): qpair(r)
    a(f"""
    s_cmp_eq_u32 s{S_A}, 1
    s_cbranch_scc1 K_notQ""")
    for r in range(12, 16, 2): qpair(r)
    a(f"K_notQ:")
    stamp(a, 7)
    vT = 0
    vN = 4
    vAr = 6
    vR = 12
    vM = 28
    vA = 32
    vK = 48
    vB = 64
    a(f"""
    s_lshl_b32 s{S_B}, s{S_WAVE}, 12
    s_add_u32 m0, s{S_B}, {L_XS}
    s_mov_b32 s{S_RR}, s{S_WS}
    s_mov_b32 s{S_RR+1}, s{S_WS+1}
    s_mov_b32 s{S_RR+2}, {WS_TAB + 256*2048}
    s_mov_b32 s{S_A}, {128*2048}
    s_mov_b32 s{S_B}, {128*RSTRIDE}
    s_mov_b32 s{S_C}, 0xfe000000
    s_movk_i32 s{S_D}, 0xfc
    s_mov_b32 s{S_K}, 0
    {"s_sleep " + optval("fs", "0") if optval("fs", "0") != "0" else ""}
    s_mov_b64 {mask(0)}, -1
    s_mov_b64 {mask(1)}, -1
    v_mov_b32 v{vM}, 0
    v_mov_b32 v{vM+1}, 0
K_poll:
    s_mov_b64 exec, {mask(0)}
    s_cbranch_execz K_pl0
    buffer_load_dwordx2 {vr(vT,2)}, v{t5}, {sr(S_RR,4)}, 0 offen sc1
K_pl0:
    s_mov_b64 exec, {mask(1)}
    s_cbranch_execz K_pl1
    buffer_load_dwordx2 {vr(vT+2,2)}, v{t5}, {sr(S_RR,4)}, s{S_A} offen sc1
K_pl1:
    s_mov_b64 exec, -1
    s_waitcnt vmcnt(0)""")
    for i in range(2):
        a(f"    v_xor_b32 v{vN+i}, s{S_TAG}, v{vT+2*i}")
        a(f"    v_xor_b32 v{vAr+i}, s{S_TAG+1}, v{vT+2*i+1}")
        a(f"    v_and_or_b32 v{vAr+i}, v{vN+i}, s{S_C}, v{vAr+i}")
        a(f"    v_cmp_ne_u32 {mask(i)}, 0, v{vAr+i}")
    a(f"""
    s_add_u32 s{S_K}, s{S_K}, 1
    s_or_b64 vcc, {mask(0)}, {mask(1)}
    s_cbranch_scc0 K_got
    s_cmp_lt_u32 s{S_K}, {POLL_MAX}
    s_cbranch_scc1 K_poll
    s_mov_b32 s{S_MODE}, 1
    s_branch K_nor2a
K_got:""")
    if DIAG:
        a(f"    v_writelane_b32 v{V_STAMP}, s{S_K}, 20")
    stamp(a, 8)
    so = ["0", sr(S_B)]
    for i in range(2):
        a(f"    v_and_b32 v{vAr+i}, 0x1fff, v{vT+2*i}")
        a(f"    v_bfe_u32 v{vT+2*i+1}, v{vT+2*i}, 13, 12")
        a(f"    v_lshl_add_u32 v{vAr+i}, v{vAr+i}, 2, v{vSb}")
        a(f"    v_sub_u32 v{vN+i}, v{vT+2*i+1}, v{vG4}")
        a(f"    v_lshl_add_u32 v{vAr+2+i}, v{vT+2*i+1}, 2, v{vAr+i}")
        a(f"    v_cmp_lt_i32 {mask(4*i)}, 0, v{vN+i}")
        a(f"    v_lshl_add_u32 v{vAr+i}, v{vG4}, 2, v{vAr+i}")
        a(f"    v_add_u32 v{vAr+2+i}, v{vAr+2+i}, v{vG4}")
        a(f"    s_or_b64 exec, {mask(4*i)}, 1")
        a(f"    buffer_load_dword v{vM+i}, v{vAr+2+i}, {sr(S_RR,4)}, {so[i]} offen")
        a(f"    buffer_load_dwordx4 {vr(vR+4*i,4)}, v{vAr+i}, {sr(S_RR,4)}, {so[i]} offen")
        a(f"    s_mov_b64 exec, -1")
    for i in range(2):
        for k in range(1, 4):
            a(f"    v_cmp_lt_i32 {mask(4*i+k)}, {k}, v{vN+i}")
    a(f"""
    v_max_i32 v{t1}, v{vN}, v{vN+1}
    v_cmp_lt_i32 vcc, 24, v{t1}
    s_mov_b32 s{S_K}, 0
    s_cbranch_vccz K_nor2a
    s_mov_b32 s{S_K}, 1""")
    for i in range(2):
        a(f"    buffer_load_dword v{vM+2+i}, v{vAr+2+i}, {sr(S_RR,4)}, {so[i]} offen offset:24")
        a(f"    buffer_load_dwordx4 {vr(vR+8+4*i,4)}, v{vAr+i}, {sr(S_RR,4)}, {so[i]} offen offset:96")
        for k in range(4):
            a(f"    v_cmp_lt_i32 {mask(8+4*i+k)}, {24+k}, v{vN+i}")
    pf0 = int(optval("pf", "8"))
    a(f"""
    v_cmp_lt_i32 vcc, 48, v{t1}
    s_cbranch_vccz K_nor2a
    s_mov_b32 s{S_MODE}, 1
K_nor2a:
    v_mov_b32 v{t4}, {L_FLAG}
    v_mov_b32 v{t0}, 4
    s_cmp_eq_u32 s{S_MODE}, 0
    s_cbranch_scc1 K_nofl
    ds_write_b32 v{t4}, v{t0}
K_nofl:
    s_waitcnt lgkmcnt(0)
    s_barrier
    ds_read_b32 v{t3}, v{t4}
    s_add_u32 s{S_RX}, s{S_WS}, {WS_P - 3072}
    s_addc_u32 s{S_RX+1}, s{S_WS+1}, 0
    s_and_b32 s{S_RX+1}, s{S_RX+1}, 0xffff
    s_or_b32 s{S_RX+1}, s{S_RX+1}, 0x01000000
    s_mov_b32 s{S_RX+2}, {N_NODES}
    s_mov_b32 s{S_RX+3}, 0x00020000
    s_waitcnt lgkmcnt(0)
    v_cmp_ne_u32 vcc, 0, v{t3}
    s_cbranch_vccnz K_slow
    s_cmp_lt_u32 s{S_WAVE}, {pf0}
    s_cbranch_scc1 K_npf
    global_load_dword v{t5}, v{vPf}, {sr(S_WS,2)} sc1
    s_waitcnt vmcnt(1)
    s_branch K_pfJ
K_npf:
    s_waitcnt vmcnt(0)
K_pfJ:""")
    stamp(a, 9)
    def count_cols(ks):
        for k in ks:
            a(f"    v_and_b32_sdwa v{vA+k}, v{vM+k//4}, s{S_D} {SD} src0_sel:BYTE_{k%4} src1_sel:DWORD")
        for k in ks:
            a(f"    s_mov_b64 exec, {mask(k)}")
            a(f"    ds_add_rtn_u32 v{vK+k}, v{vA+k}, v{t0} offset:{L_H2}")
        a(f"    s_mov_b64 exec, -1")
    count_cols(range(8))
    a(f"""
    s_cmp_eq_u32 s{S_K}, 0
    s_cbranch_scc1 K_nor2b""")
    count_cols(range(8, 16))
    a(f"""
K_nor2b:
    v_lshlrev_b32 v{t1}, 2, v{L}
    v_cmp_gt_u32 vcc, s{S_NN}, v{L}
    s_waitcnt lgkmcnt(0)
    s_barrier""")
    stamp(a, 10)
    a(f"""
    ds_read_b32 v{V_CNT}, v{t1} offset:{L_H2}
    s_waitcnt lgkmcnt(0)
    v_add_u32 v{vP}, 4, v{V_CNT}
    v_and_b32 v{vP}, -8, v{vP}
    v_max_u32 v{vP}, 64, v{vP}
    v_cndmask_b32 v{vP}, 0, v{vP}, vcc
    v_mov_b32 v{vS}, v{vP}""")
    wave_scan(a, vS)
    a(f"""
    s_nop 0
    v_readlane_b32 s{S_A}, v{vS}, 63
    v_sub_u32 v{vS}, v{vS}, v{vP}
    ds_write_b32 v{t1}, v{vS} offset:{L_SX}
    s_cmp_gt_u32 s{S_A}, {ENT_CAP*4}
    s_cbranch_scc1 K_slow""")
    def place_cols(ks, mid=None):
        ks = list(ks)
        for k in ks:
            a(f"    ds_read_b32 v{vB+k}, v{vA+k} offset:{L_SX}")
        if mid: a(mid)
        for n, k in enumerate(ks):
            if n % 2 == 0:
                a(f"    s_waitcnt lgkmcnt({len(ks)-2-n})")
            a(f"    v_add_u32 v{vK+k}, v{vB+k}, v{vK+k}")
        for k in ks:
            a(f"    s_mov_b64 exec, {mask(k)}")
            a(f"    ds_write_b32 v{vK+k}, v{vR+k} offset:{L_RL}")
        a(f"    s_mov_b64 exec, -1")
    place_cols(range(8), f"""
    s_add_u32 s{S_A}, s{S_A}, 63
    s_lshr_b32 s{S_TT}, s{S_A}, 6            ; tiles
    s_mul_i32 s{S_T0}, s{S_SLOT}, s{S_TT}
    s_add_u32 s{S_NT}, s{S_T0}, s{S_TT}
    s_mul_i32 s{S_T0}, s{S_T0}, 43691
    s_mul_i32 s{S_NT}, s{S_NT}, 43691
    s_lshr_b32 s{S_T0}, s{S_T0}, 19
    s_lshr_b32 s{S_NT}, s{S_NT}, 19
    s_sub_u32 s{S_NT}, s{S_NT}, s{S_T0}""")
    a(f"""
    s_cmp_eq_u32 s{S_K}, 0
    s_cbranch_scc1 K_nor2c
    s_waitcnt lgkmcnt(0)""")
    place_cols(range(8, 16))
    thr = [int(x) for x in optval("thr", "10_5_2").split("_")]
    vBk = 80
    vGr = 82
    a(f"""
K_nor2c:
    s_lshl_b32 s{S_A}, s{S_T0}, 6
    v_lshl_add_u32 v{t3}, v{V_AIDX}, 1, s{S_A}
    v_add_u32 v{t2}, s{S_A}, v{t1}
    v_cmp_ge_u32 {mask(0)}, s{S_A}, v{vS}
    v_subrev_u32 v{t0}, s{S_A}, v{vS}
    s_and_b64 {mask(0)}, {mask(0)}, vcc
    s_bcnt1_i32_b64 s{S_B}, {mask(0)}
    s_sub_u32 s{S_B}, s{S_B}, 1              ; n
    s_andn2_b64 {mask(0)}, vcc, {mask(0)}
    v_bfe_u32 v{t4}, v{t0}, 3, 3
    v_add_u32 v{t4}, 1, v{t4}
    v_lshrrev_b32 v{t0}, 6, v{t0}
    v_min_u32 v{t0}, 63, v{t0}
    v_cndmask_b32 v{t0}, 63, v{t0}, {mask(0)}
    v_lshlrev_b32 v{t0}, 2, v{t0}
    v_mov_b32 v{vBk}, 0
    {"" if "novar" in OPT else f"ds_permute_b32 v{vBk}, v{t0}, v{t4}"}
    s_lshl_b32 s{S_D}, s{S_NT}, 4""")
    for c in range(5):
        a(f"    v_cmp_gt_i32 {mask(5+c)}, s{S_D}, v{L}")
        a(f"    s_sub_u32 s{S_D}, s{S_D}, 64")
    a(f"""
    s_waitcnt lgkmcnt(0)
    s_barrier""")
    stamp(a, 11)
    for m in range(4):
        a(f"    ds_read_u16 v{V_IX+2*m}, v{t3} offset:{L_RL + 16*m}")
    for c in range(5):
        a(f"    ds_read_b32 v{vGr+c}, v{t2} offset:{L_RL + 256*c}")
    a(f"""
    s_lshr_b32 s{S_C}, s{S_A}, 1
    s_add_u32 s{S_C}, s{S_C}, {L_IX}
    v_add_u32 v{V_AIDX}, s{S_C}, v{V_AIDX}
    v_lshl_add_u32 v{t0}, v{L}, 1, s{S_C}
    s_mov_b32 s{S_C}, 0x03020302
    s_mov_b32 s{S_D}, 0x8001
    s_waitcnt lgkmcnt(5)""")
    for m in range(4):
        a(f"    v_and_b32 v{V_IX+2*m}, {0xfff if 'cheat1' in OPT or 'cheat2' in OPT else PADREC}, v{V_IX+2*m}")
    for h in dma_ops(): a(h)
    if "st2" in OPT:
        a(f"""
    s_cmp_lt_u32 s{S_WAVE}, 8
    s_cbranch_scc1 K_ns2
    v_add_u32 v{vPf}, 0x100000, v{vPf}
    global_load_dword v{t5}, v{vPf}, {sr(S_WS,2)} sc1
K_ns2:""")
    a(f"    ; this wave's entries -> one-hot word, (e, e), source node")
    a(f"    s_waitcnt lgkmcnt(0)")
    for c in range(5):
        a(f"    v_and_b32 v{vGr+5+c}, 0xc000, v{vGr+c}")
        a(f"    v_perm_b32 v{64+c}, v{vGr+c}, v{vGr+c}, s{S_C}")
        a(f"    v_xor_b32 v{vGr+c}, v{vGr+c}, v{vGr+5+c}")
        a(f"    v_mul_u32_u24 v{vGr+5+c}, s{S_D}, v{vGr+5+c}")
        a(f"    v_and_b32 v{vGr+5+c}, 0x40004000, v{vGr+5+c}")
    for c in range(5):
        a(f"    s_mov_b64 exec, {mask(5+c)}")
        a(f"    ds_write2st64_b32 v{t2}, v{vGr+5+c}, v{64+c} offset0:{L_G//256 + c} offset1:{L_RL//256 + c}")
        a(f"    ds_write_b16 v{t0}, v{vGr+c} offset:{128*c}")
    a(f"""
    s_mov_b64 exec, -1
    s_lshl_b32 s{S_C}, s{S_B}, 9
    s_add_u32 s{S_C}, s{S_C}, {L_QT}
    v_add_u32 v{V_AQ}, s{S_C}, v{t1}
    v_lshrrev_b32 v{t4}, 7, v{V_INCA}
    v_mad_u32_u24 v{V_AENT}, v{t4}, s{S_A}, v{V_AENT}""")
    for h in ent_reads(0) + q_reads() + idx_reads(32): a(h)
    a(f"""
    s_add_u32 s{S_C}, s{S_B}, s{S_SLOT}
    s_mul_i32 s{S_C}, s{S_C}, {ST_STRIDE}
    s_add_u32 s{S_C}, s{S_C}, {L_ST}
    v_add_u32 v{V_AS}, s{S_C}, v{t1}
    v_add_u32 v{V_AQ}, 0x200, v{V_AQ}
    ; jump table: slot of the variant, entry inside it (priority steps near the end), exit at lane nt
    v_and_b32 v{t4}, 1, v{L}
    v_mad_u32_u24 v{t4}, v{t4}, 9, v{vBk}
    v_sub_u32 v{t0}, s{S_NT}, v{L}
    v_mov_b32 v{t3}, {ENTRY}""")
    for i, th in enumerate(thr):
        a(f"    v_cmp_eq_u32 {mask(i)}, {th}, v{t0}")
    a(f"    v_cmp_eq_u32 {mask(3)}, 0, v{t0}")
    a(f"    s_movk_i32 s{S_C}, {VAR_SIZE}")
    for i, th in enumerate(thr):
        a(f"    v_cndmask_b32 v{t3}, v{t3}, {ENTRY - 20 + 8*i}, {mask(i)}")
    p2 = optval("p2_", "")
    if p2:
        p2a, p2b = [int(x) for x in p2.split("_")]
        a(f"""
    s_lshr_b32 s{S_D}, s{S_WAVE}, 2
    s_mul_i32 s{S_D}, s{S_D}, {p2b}
    s_add_u32 s{S_D}, s{S_D}, {p2a}
    s_cmp_lt_u32 s{S_WAVE}, {pf0}
    s_cselect_b32 s{S_D}, s{S_D}, 64
    v_cmp_eq_u32 {mask(4)}, s{S_D}, v{L}
    s_nop 1
    v_cndmask_b32 v{t3}, v{t3}, {ENTRY - 36}, {mask(4)}""")
    a(f"""
    v_mad_u32_u24 v{t4}, v{t4}, s{S_C}, v{t3}
    v_mov_b32 v{t3}, K_exit - K_vbase
    v_cndmask_b32 v{t4}, v{t4}, v{t3}, {mask(3)}
    ds_bpermute_b32 v{V_TAB}, v{t1}, v{t4} offset:4
    s_mov_b32 s{S_K}, 1
    v_readlane_b32 s{S_J}, v{t4}, 0
    s_setprio 3
    s_waitcnt vmcnt(0)""")
    stamp(a, 12)
    for h in tr_reads(0): a(h)
    a(f"""
    s_add_u32 s{S_J}, s{S_J}, s{S_PC}
    s_addc_u32 s{S_J+1}, s{S_PC+1}, 0
    s_waitcnt lgkmcnt(0)""")
    a(small(0, 0))
    if "cheat2" in OPT:
        for m in range(2): a(f"    v_and_b32 v{V_IX+2*m}, 0xfff, v{V_IX+2*m}")
    for h in dma_ops(): a(h)
    a(small(0, 1))
    a(f"    v_lshl_or_b32 v{V_TAB}, v{V_TAB}, 16, v{t4}")
    stamp(a, 13); stamp(a, 14, True)
    a(f"    s_setpc_b64 {sr(S_J,2)}")
    a(f".p2align 6")
    a(f"K_vbase:")
    for s_ in range(2):
        for b in [None] + list(range(8)):
            tile_variant(a, s_, b)
    a(f".p2align 3")
    a(f"K_exit:")
    stamp(a, 15); stamp(a, 16, True)
    flush1(a)
    a("    s_nop 0")
    flush2(a)
    a(f"""
    v_cmp_eq_f32 vcc, 0, v{V_MN}
    s_cbranch_vccz K_join
    v_mov_b32 v65, {L_FLAG}
    ds_write_b32 v65, v65
K_join:
    s_cmp_ge_u32 s{S_WAVE}, 4
    s_cbranch_scc1 K_idle
    v_cvt_f32_u32 v136, s{S_TT}
    v_rcp_f32 v136, v136
    v_add3_u32 v{vP}, v{vS}, v{vP}, -4
    v_lshrrev_b32 v{vS}, 6, v{vS}
    v_lshrrev_b32 v{vP}, 6, v{vP}
    v_cvt_f32_u32 v{vS}, v{vS}
    v_cvt_f32_u32 v{vP}, v{vP}
    v_add_f32 v{vS}, {f32bits((NW-0.5)/NW):#x}, v{vS}
    v_add_f32 v{vP}, {f32bits((NW-0.5)/NW):#x}, v{vP}
    v_mul_f32 v136, {f32bits(NW):#x}, v136
    v_mul_f32 v{vS}, v{vS}, v136
    v_mul_f32 v{vP}, v{vP}, v136
    v_cvt_u32_f32 v{vS}, v{vS}
    v_cvt_u32_f32 v{vP}, v{vP}
    v_cmp_gt_u32 vcc, s{S_NN}, v{L}
    v_sub_u32 v{vP}, v{vP}, v{vS}
    v_add_u32 v{vS}, v{vS}, v{L}
    v_lshl_or_b32 v{vS}, v{vP}, 8, v{vS}
    v_cndmask_b32 v{vS}, {ZROW}, v{vS}, vcc
    v_lshl_or_b32 v{V_CNT}, v{vS}, 16, v{V_CNT}
    v_and_b32 v136, 15, v{L}
    v_lshrrev_b32 v137, 4, v{L}              ; g
    s_lshl_b32 s{S_A}, s{S_WAVE}, 6
    v_lshl_add_u32 v138, v136, 2, s{S_A}
    ds_bpermute_b32 v139, v138, v{V_CNT}
    v_and_b32 v138, 16, v{L}
    v_lshlrev_b32 v138, 2, v138
    v_lshl_add_u32 v138, v{HH}, 5, v138
    v_bfe_u32 v140, v{L}, 2, 2
    v_add_u32 v140, v140, v138
    v_lshlrev_b32 v140, 7, v140
    v_and_b32 v141, 3, v{L}
    v_lshl_add_u32 v140, v141, 4, v140
    v_add_u32 v140, {L_W2}, v140""")
    for ot in range(4):
        for ks in range(4):
            for h in range(2):
                a(f"    ds_read_b64_tr_b16 {vr(16*ot+4*ks+2*h,2)}, v140 offset:{1024*ks+512*h+64*(ot>>1)+8*(ot&1)}")
    a(f"""
    v_lshlrev_b32 v141, 4, v137
    v_add_u32 v140, {L_B2}, v141
    ds_read_b128 v[128:131], v140
    ds_read_b128 v[132:135], v140 offset:64
    s_lshl_b32 s{S_A}, s{S_N0}, 7
    s_add_u32 s{S_RT}, s{S_OUT}, s{S_A}
    s_addc_u32 s{S_RT+1}, s{S_OUT+1}, 0
    s_lshl_b32 s{S_RT+2}, s{S_NN}, 7
    s_mov_b32 s{S_RT+3}, 0x00020000
    s_movk_i32 s{S_K}, {ST_STRIDE}
    s_lshl_b32 s{S_A}, s{S_WAVE}, 12
    s_add_u32 s{S_A}, s{S_A}, {L_QT}
    v_mul_u32_u24 v140, 144, v136
    v_add3_u32 v140, v140, v141, s{S_A}
    v_lshrrev_b32 v147, 3, v{L}
    v_add_lshl_u32 v147, v147, v{L}, 4
    v_add_u32 v147, s{S_A}, v147
    s_lshl_b32 s{S_A}, s{S_WAVE}, 11
    v_lshl_add_u32 v141, v{L}, 4, s{S_A}     ; output byte offset
    v_mov_b32 v136, {NLN2:#x}
    s_waitcnt lgkmcnt(0)
    v_bfe_u32 v142, v139, 16, 8
    v_lshrrev_b32 v143, 24, v139
    v_and_b32 v139, 0xffff, v139
    v_cvt_f32_u32 v139, v139
    v_mul_f32 v139, {f32bits(-0.25 * LOG2E):#x}, v139
    v_lshlrev_b32 v138, 2, v138
    v_add_u32 v138, {L_ST}, v138
    v_mad_u32_u24 v142, v142, s{S_K}, v138
    v_add_u32 v138, {ZROW*ST_STRIDE}, v138
    v_cmp_lt_u32 vcc, 0, v143
    v_add_u32 v144, {ST_STRIDE}, v142
    v_mov_b32 v146, 0x207
    v_cndmask_b32 v145, v138, v144, vcc
    ; accumulators start at -log2(e) * degree * b2""")
    ACC = [112, 116, 120, 124]
    for q in range(8):
        a(f"    v_lshlrev_b32 v{112+2*q}, 16, v{128+q}")
        a(f"    v_and_b32 v{113+2*q}, 0xffff0000, v{128+q}")
    for q in range(16):
        a(f"    v_mul_f32 v{112+q}, v139, v{112+q}")
    a(f"    s_mov_b32 s{S_A}, 1")
    a(f"    s_barrier")
    stamp(a, 17)
    S0 = 64
    for ks in range(4):
        a(f"    ds_read_b128 {vr(S0+8*ks,4)}, v142 offset:{32*ks}")
        a(f"    ds_read_b128 {vr(S0+4+8*ks,4)}, v142 offset:{32*ks+16}")
    a(f"K_rows:")
    tmp = [96, 104, 128, 156]
    for ks in range(4):
        a(f"    ds_read_b128 {vr(tmp[ks],4)}, v145 offset:{32*ks}")
        a(f"    ds_read_b128 {vr(tmp[ks]+4,4)}, v145 offset:{32*ks+16}")
    a(f"""
    v_cmp_lt_u32 vcc, s{S_A}, v143
    v_add_u32 v144, {ST_STRIDE}, v144
    s_add_u32 s{S_A}, s{S_A}, 1""")
    for ks in range(4):
        a(f"    s_waitcnt lgkmcnt({6-2*ks})")
        for q in range(4):
            a(f"    v_pk_add_f32 {vr(S0+8*ks+2*q,2)}, {vr(S0+8*ks+2*q,2)}, {vr(tmp[ks]+2*q,2)}")
    a(f"""
    v_cndmask_b32 v145, v138, v144, vcc
    s_cbranch_vccnz K_rows""")
    def cv(ks):
        for q in range(4):
            a(f"    v_cvt_pk_bf16_f32 v{96+4*ks+q}, v{S0+8*ks+2*q}, v{S0+1+8*ks+2*q}")
    cv(0); cv(1)
    for ks in range(4):
        for ot in range(4):
            d = vr(ACC[ot], 4)
            a(f"    v_mfma_f32_16x16x32_bf16 {d}, {vr(16*ot+4*ks,4)}, {vr(96+4*ks,4)}, {d}")
        if ks < 2: cv(ks + 2)
    a("    s_nop 4")
    for q in range(8):
        a(f"    v_pk_mul_f32 {vr(64+2*q,2)}, {vr(112+2*q,2)}, {vr(136,2)} op_sel_hi:[1,0]")
    for q in range(8):
        a(f"    v_cvt_pk_bf16_f32 v{80+q}, v{64+2*q}, v{65+2*q}")
    a(f"""
    ds_write_b128 v140, v[80:83]
    ds_write_b128 v140, v[84:87] offset:64
    ds_read_b128 v[88:91], v147
    ds_read_b128 v[92:95], v147 offset:{8*144}
    v_cmp_class_f32 vcc, v64, v146
    s_waitcnt lgkmcnt(1)
    buffer_store_dwordx4 v[88:91], v141, {sr(S_RT,4)}, 0 offen sc1
    s_waitcnt lgkmcnt(0)
    buffer_store_dwordx4 v[92:95], v141, {sr(S_RT,4)}, 0 offen offset:1024 sc1
    s_cbranch_vccz K_fin
    v_mov_b32 v65, {L_FLAG}
    ds_write_b32 v65, v65
    s_branch K_fin
K_idle:
    s_waitcnt lgkmcnt(0)
    s_barrier                                ; B9
K_fin:
    v_mov_b32 v65, {L_FLAG}
    s_waitcnt lgkmcnt(0)
    s_barrier                                ; B10
    ds_read_b32 v64, v65
    s_waitcnt lgkmcnt(0)
    v_cmp_ne_u32 vcc, 0, v64
    {"" if "novar" in OPT or "nodma" in OPT else "s_cbranch_vccnz K_slow"}""")
    if DIAG:
        a("    s_waitcnt vmcnt(0)")
        stamp(a, 18); stamp(a, 19, True)
        a(f"""
    v_writelane_b32 v{V_STAMP}, s{S_NT}, 21
    s_lshl_b32 s{S_A}, s2, 4
    s_add_u32 s{S_A}, s{S_A}, s{S_WAVE}
    s_lshl_b32 s{S_A}, s{S_A}, 8
    s_add_u32 s{S_A}, s{S_A}, {WS_STAMP}
    v_lshl_add_u32 v64, v{L}, 2, s{S_A}
    s_mov_b64 exec, 0xffffffff
    global_store_dword v64, v{V_STAMP}, {sr(S_WS,2)}
    global_store_dword v64, v{V_TRACE}, {sr(S_WS,2)} offset:128""")
    if optval("amp", "") != "":
        a(f"""
    s_waitcnt vmcnt(0)
    s_cmp_lg_u32 s{S_WAVE}, 0
    s_cbranch_scc1 K_end
    s_lshl_b32 s{S_A}, s{S_TAG+1}, 7
    s_lshr_b32 s{S_B}, s{S_TAG}, 25
    s_or_b32 s{S_A}, s{S_A}, s{S_B}""")
        if optval("amp", "") == "99":
            a("    s_memrealtime s[98:99]\n    s_waitcnt lgkmcnt(0)")
        a(f"""
    s_sub_u32 s{S_B}, s98, s{S_A}
    s_mov_b64 exec, 1
    v_mov_b32 v64, 0
    v_mov_b32 v65, s{S_B}
    v_mov_b32 v66, 1
    global_atomic_{"add" if "avg" in OPT else "umax"} v64, v65, {sr(S_DBG,2)} offset:128 sc1
    s_waitcnt vmcnt(0)
    global_atomic_add v67, v64, v66, {sr(S_DBG,2)} offset:136 sc0 sc1
    s_waitcnt vmcnt(0)
    v_readfirstlane_b32 s{S_B}, v67
    s_cmp_lg_u32 s{S_B}, 255
    s_cbranch_scc1 K_end
    global_atomic_add v67, v64, v64, {sr(S_DBG,2)} offset:128 sc0 sc1
    s_waitcnt vmcnt(0)
    v_readfirstlane_b32 s{S_B}, v67
    s_mul_i32 s{S_B}, s{S_B}, {optval("mul", "5")}
    {f"s_lshr_b32 s{S_B}, s{S_B}, 8" if "avg" in OPT else ""}
    s_min_u32 s{S_B}, s{S_B}, 200000
    s_add_u32 s{S_B}, s{S_B}, {optval("base", "0")}
K_spin2:
    s_memrealtime s[98:99]
    s_waitcnt lgkmcnt(0)
    s_sub_u32 s98, s98, s{S_A}
    s_cmp_lt_u32 s98, s{S_B}
    s_cbranch_scc1 K_spin2""")
    a(f"""
K_end:
    s_endpgm
K_slow:
    ; ================= exact path without hand-offs: scan all edges for this bin
    s_setprio 0
    s_mov_b32 s16, s{S_N0}
    s_mov_b32 s17, s{S_NN}
    s_mov_b32 s18, s{S_WAVE}""")
    gen_slow(a, 16, 17, 18, L, NLOG2E, NW=NW)
    a("    s_endpgm")

def main():
    global DIAG
    out = sys.argv[1]
    DIAG = "diag" in sys.argv[2:]
    OPT.update(sys.argv[2:])
    a = Asm()
    a(f"""; Edge-featured MPNN layer: out[n] = sum_(e: dst=n) (silu([x[src],x[dst],e] w1 + b1) w2 + b2)
; @launch grid=(256,1,1) block=({NT_},1,1) lds={L_END}
.amdgcn_target "amdgcn-amd-amdhsa--gfx950"
.text""")
    gen_kernel(a)
    a(f"""
.section .rodata,"a"
.p2align 6
.amdhsa_kernel {KNAME}
  .amdhsa_next_free_vgpr {NVGPR}
  .amdhsa_next_free_sgpr 102
  .amdhsa_accum_offset {NVGPR}
  .amdhsa_group_segment_fixed_size 0
  .amdhsa_kernarg_size 88
  .amdhsa_user_sgpr_count 2
  .amdhsa_user_sgpr_kernarg_segment_ptr 1
  .amdhsa_system_sgpr_workgroup_id_x 1
  .amdhsa_float_denorm_mode_32 3
.end_amdhsa_kernel""")
    open(out, "w").write(a.text())

if __name__ == "__main__":
    main()
```

```python
import sys, struct
from slow import gen_slow

NAME = "standalone__edge_featured_mpnn_mpnn__graph"
KNAME = NAME + "_kernel"
N_NODES = 12500
NB = 49
NW = 12
NT_ = 64 * NW
MAINE = 4 * NT_
XTRA = 53
RSTRIDE = 16640

WS_TAB = 0x420000
WS_P = 0x4C0000
WS_STAMP = 0xA00000

L_Z = 128
L_H2 = 272
L_FLAG = 536
L_NONCE = 544
L_SX = 1296
ENT_CAP = 3472
LSZ = 14080
L_ZA = 4096 - 144
L_G = 4096
L_RL = L_G + LSZ
L_ST = L_RL + LSZ
ST_STRIDE = 528
ZROW = NB + NW
L_IX = L_ST + (ZROW + 1) * ST_STRIDE
L_QT = (L_IX + LSZ // 2 + 255) // 256 * 256 + 512
L_XS = L_QT + 49 * 512
assert LSZ % 256 == 0 and (ENT_CAP + 48) * 4 == LSZ
L_W2 = L_XS + NW * 4096
L_B2 = L_W2 + 16384
L_END = L_B2 + 256
L_RS = L_ST
L_H1 = L_ST + 16640
L_OFF = L_H1 + 1024
L_W1 = L_XS
L_WC = L_XS + 32768
L_PS = L_WC + 512
L_XR = L_W2
PS_STRIDE = 272
assert L_XS % 256 == 0 and L_END <= 163840
assert L_H1 + 3072 <= L_ST + ZROW * ST_STRIDE and L_OFF + 1024 < 65536 and L_PS + 56 * PS_STRIDE <= L_W2

def f32bits(x):
    return struct.unpack("<I", struct.pack("<f", x))[0]
LOG2E = 1.4426950408889634
NLOG2E = f32bits(-LOG2E)
NLN2 = f32bits(-0.6931471805599453)
PADREC = 0x3FFF
POLL_MAX = 4000

class Asm:
    def __init__(self):
        self.l = []
    def __call__(self, s=""):
        for x in s.strip("\n").split("\n"):
            if x.strip():
                self.l.append(x.rstrip())
    def text(self):
        return "\n".join(self.l) + "\n"

def vr(a, n=1):
    return f"v{a}" if n == 1 else f"v[{a}:{a+n-1}]"
def sr(a, n=1):
    return f"s{a}" if n == 1 else f"s[{a}:{a+n-1}]"

DIAG = False
OPT = set()
def optval(prefix, default):
    for o in OPT:
        if o.startswith(prefix):
            return o[len(prefix):]
    return default

V_D = 0; V_E = 64; V_A5 = 96; V_B5 = 98; V_ND = 102; V_T = 110; V_R = 114; V_O = 118; V_IX = 132
V_AA = 140; V_AIDX = 141; V_AENT = 142; V_AQ = 143; V_INCA = 144; V_AS = 145; V_MN = 146; V_PSEL = 147
V_PF = 126; V_TAB = 148; V_CNT = 149; V_S = 150; V_P = 151; V_LANE = 154; V_TID = 155
V_J = 156; V_HH = 157
V_STAMP = 167; V_TRACE = 166
NVGPR = 168
S_X = 4; S_E = 6; S_SRC = 8; S_DST = 10; S_W1 = 12; S_B1 = 14; S_W2 = 16; S_B2 = 18; S_OUT = 20; S_DBG = 22; S_WS = 24
S_BIN = 26; S_N0 = 27; S_NN = 28; S_WAVE = 29; S_MODE = 30; S_K = 31; S_PC = 32; S_J = 34
S_RX = 36; S_RT = 40; S_RR = 44; S_P = 48; S_JJ = 52
S_T0 = 56; S_NT = 57; S_TT = 58; S_SLOT = 59; S_A = 60; S_B = 61; S_C = 62; S_D = 63; S_TAG = 64
S_M = 66
def mask(k): return sr(S_M + 2*k, 2)

def stamp(a, k, real=False):
    if optval("amp", "") != "":
        if int(optval("amp", "")) == k:
            a("    s_memrealtime s[98:99]\n    s_waitcnt lgkmcnt(0)")
        return
    if not DIAG:
        return
    a(f"    {'s_memrealtime' if real else 's_memtime'} s[100:101]")
    a(f"    s_waitcnt lgkmcnt(0)")
    a(f"    v_writelane_b32 v{V_STAMP}, s100, {k}")

def wave_scan(a, v):
    for sh in (1, 2, 4, 8):
        a(f"    s_nop 1")
        a(f"    v_add_u32_dpp v{v}, v{v}, v{v} row_shr:{sh} row_mask:0xf bank_mask:0xf")
    a(f"    s_nop 1")
    a(f"    v_add_u32_dpp v{v}, v{v}, v{v} row_bcast:15 row_mask:0xa bank_mask:0xf")
    a(f"    s_nop 1")
    a(f"    v_add_u32_dpp v{v}, v{v}, v{v} row_bcast:31 row_mask:0xc bank_mask:0xf")

SD = "dst_sel:DWORD dst_unused:UNUSED_PAD"

def dreg(s, c): return V_D + 32*s + 16*c
def small(s, c):
    d = vr(dreg(s, c), 16)
    return f"    v_mfma_f32_32x32x8_bf16 {d}, {vr(V_A5,2)}, {vr(V_B5+2*c,2)}, {d}"
def tr_reads(s):
    return [f"    ds_read_b64_tr_b16 {vr(dreg(s,c)+2*u,2)}, v{V_AA} offset:{512*u+128*c}" for u in range(8) for c in range(2)]
def ent_reads(off):
    return [f"    ds_read_b32 v{V_A5}, v{V_AENT} offset:{off}",
            f"    ds_read_b32 v{V_A5+1}, v{V_AENT} offset:{off + L_RL - L_G}"]
def q_reads():
    return [f"    ds_read_b32 v{V_B5+2*c}, v{V_AQ} offset:{256*c}" for c in range(2)]
def idx_reads(off):
    return [f"    ds_read_u16 v{V_IX+2*m}, v{V_AIDX} offset:{off + 8*m}" for m in range(4)]
def dma_ops():
    if "nodma" in OPT: return []
    return [f"    buffer_load_dwordx4 {vr(V_IX+2*m,2)}, {sr(S_RX,4)}, s{S_P+m} idxen offen offset:{1024*m} sc1 lds" for m in range(4)]

def flush1(a):
    for c in range(2):
        D = V_ND + 4*c + 2
        a(f"    v_rcp_f32 v{V_R+2*c}, v{D}")
        a(f"    v_rcp_f32 v{V_R+2*c+1}, v{D+1}")
def flush2(a):
    for c in range(2):
        a(f"    v_pk_mul_f32 {vr(V_O+2*c,2)}, {vr(V_ND+4*c,2)}, {vr(V_R+2*c,2)}")
    for c in range(2):
        a(f"    v_min3_f32 v{V_MN}, v{V_MN}, v{V_R+2*c}, v{V_R+2*c+1}")
    for c in range(2):
        a(f"    v_add_f32 v{V_O+2*c}, v{V_O+2*c}, v{V_O+2*c+1}")
    a(f"    ds_write2st64_b32 v{V_AS}, v{V_O}, v{V_O+2} offset0:0 offset1:1")

def y_phase(a, s, b):
    nsrc = [V_ND + 4*c for c in range(2)]
    for u in range(8):
        if u == b:
            flush1(a)
            for c in range(2):
                a(f"    v_pk_add_f32 {vr(V_ND+4*c+2,2)}, {vr(V_E+16*c+2*u,2)}, 1.0 op_sel_hi:[1,0]")
            flush2(a)
            for c in range(2):
                p = dreg(s, c) + 2*u
                if u == 7:
                    a(f"    v_pk_mov_b32 {vr(V_ND+4*c,2)}, {vr(p,2)}, {vr(p,2)} op_sel:[0,1]")
                else:
                    nsrc[c] = p
            continue
        for c in range(2):
            a(f"    v_pk_fma_f32 {vr(V_T+2*c,2)}, {vr(dreg(s,c)+2*u,2)}, {vr(V_ND+4*c+2,2)}, {vr(nsrc[c],2)}")
        for c in range(2):
            D = V_ND + 4*c + 2
            a(f"    v_pk_fma_f32 {vr(D,2)}, {vr(D,2)}, {vr(V_E+16*c+2*u,2)}, {vr(D,2)}")
        for c in range(2):
            a(f"    v_pk_fma_f32 {vr(V_ND+4*c,2)}, {vr(nsrc[c],2)}, {vr(V_E+16*c+2*u,2)}, {vr(V_T+2*c,2)}")
            nsrc[c] = V_ND + 4*c

VAR_SIZE = 960
ENTRY = 40
def tile_variant(a, s, b):
    name = f"{s}{'N' if b is None else b}"
    vi = 9*s + (0 if b is None else b + 1)
    a(f".org K_vbase + {VAR_SIZE*vi + ENTRY - 36}, 0")
    a(f"    s_waitcnt vmcnt(0)\n    global_load_dword v{V_PF+1}, v{V_PF}, {sr(S_WS,2)} sc1\n    s_branch K_vw{name}")
    a(f"    s_setprio 2\n    s_branch K_var{name}\n    s_setprio 1\n    s_branch K_var{name}\n    s_setprio 0")
    a(f"K_var{name}:")
    bnd = b is not None
    if "trace" in OPT and s == 0:
        a(f"    s_memtime s[100:101]\n    s_mov_b32 s{S_A}, m0\n    s_mov_b32 m0, s{S_K}\n    s_waitcnt lgkmcnt(0)")
        a(f"    v_writelane_b32 v{V_TRACE}, s100, m0\n    s_mov_b32 m0, s{S_A}")
    es = [f"    v_exp_f32 v{V_E+16*c+2*u+h}, v{dreg(s,c)+2*u+h}" for u in range(8) for c in range(2) for h in range(2)]
    n1 = int(optval("n1_", "16")); dpos = optval("dma_", "pre")
    a("    s_waitcnt vmcnt(0)")
    a(f"K_vw{name}:")
    for h in ent_reads(64 + 64*s) + (q_reads() if bnd else []) + tr_reads(s ^ 1) + idx_reads(64 + 32*s): a(h)
    for e in es[:n1-2]: a(e)
    if s == 0:
        a(f"    v_readlane_b32 s{S_JJ}, v{V_TAB}, s{S_K}")
    else:
        a(f"    v_add_u32 v{V_AENT}, v{V_INCA}, v{V_AENT}")
        a(f"    v_add_u32 v{V_AIDX}, 64, v{V_AIDX}")
    if bnd:
        a(f"    v_add_u32 v{V_AQ}, 0x200, v{V_AQ}")
    for e in es[n1-2:n1]: a(e)
    a(f"    s_waitcnt lgkmcnt(0)")
    if dpos == "pre":
        for h in dma_ops(): a(h)
    a(small(s ^ 1, 0))
    for e in es[n1:n1+4]: a(e)
    a(small(s ^ 1, 1))
    if dpos == "mid":
        for e in es[n1+4:n1+8]: a(e)
        for h in dma_ops(): a(h)
        for e in es[n1+8:]: a(e)
    else:
        for e in es[n1+4:]: a(e)
    if dpos == "end":
        for h in dma_ops(): a(h)
    if s == 0:
        a(f"    s_and_b32 s{S_J}, s{S_JJ}, 0xffff")
        a(f"    s_add_u32 s{S_K}, s{S_K}, 2")
    else:
        a(f"    s_lshr_b32 s{S_J}, s{S_JJ}, 16")
    a(f"    s_add_u32 s{S_J}, s{S_J}, s{S_PC}")
    a(f"    s_addc_u32 s{S_J+1}, s{S_PC+1}, 0")
    a(".p2align 3")
    y_phase(a, s, b)
    if bnd:
        a(f"    v_add_u32 v{V_AS}, {ST_STRIDE}, v{V_AS}")
    a(f"    s_setpc_b64 {sr(S_J,2)}")

def gen_kernel(a):
    L = V_LANE; T = V_TID; J = V_J; HH = V_HH
    t0, t1, t2, t3, t4, t5 = 158, 159, 160, 161, 162, 163
    step = NT_ * 16
    vDst = 0
    vSrc = 8
    vEa = 14
    tc = 17
    vTg = 18
    vBa = 20
    vRk = 26
    vWp = 31
    vOf = 32
    vC8 = 37; vWa = 38; vTa = 39
    vX = 40
    vWf = 56
    vPad = 56
    vAc = 72
    vTb = 88
    vXa = 88
    vB1 = 96
    vCl = 120
    v4k = 125
    vPf = 126
    vZ = 128
    vG4 = 164; vSb = 165
    vS = V_S; vP = V_P
    a(f"""
.p2align 8
.globl {KNAME}
.type {KNAME},@function
{KNAME}:
    s_cmp_ge_u32 s2, 256
    s_cbranch_scc1 K_end
    s_load_dwordx8 s[4:11], s[0:1], 0
    s_load_dwordx8 s[12:19], s[0:1], 32      ; w1, b1, w2, b2
    s_load_dwordx4 s[20:23], s[0:1], 64
    s_load_dwordx2 s[24:25], s[0:1], 80      ; ws
    s_memrealtime {sr(S_TAG,2)}
    v_lshrrev_b32 v1, 6, v0
    v_mov_b32 v{T}, v0
    v_readfirstlane_b32 s{S_WAVE}, v1
    v_and_b32 v{L}, 63, v0
    s_mul_i32 s3, s2, {MAINE*4}
    v_lshl_add_u32 v{t0}, v0, 4, s3          ; byte offset into src/dst
    v_lshrrev_b32 v{t1}, 1, v{t0}
    s_and_b32 s{S_BIN}, s2, 7
    s_lshl_b32 s{S_BIN}, s{S_BIN}, 5
    s_lshr_b32 s3, s2, 3
    s_add_u32 s{S_BIN}, s{S_BIN}, s3
    s_mul_i32 s{S_N0}, s{S_BIN}, {NB}
    s_sub_u32 s{S_NN}, {N_NODES}, s{S_N0}
    s_min_u32 s{S_NN}, s{S_NN}, {NB}
    v_and_b32 v{J}, 31, v0
    v_bfe_u32 v{HH}, v0, 5, 1
    s_mov_b32 s{S_MODE}, 0
    v_mov_b32 v{vZ}, 0
    v_mov_b32 v{vZ+1}, 0
    v_mov_b32 v{vZ+2}, 0
    v_mov_b32 v{vZ+3}, 0
    v_lshlrev_b32 v{t2}, 2, v0""")
    if DIAG:
        a(f"    v_mov_b32 v{V_STAMP}, 0\n    v_mov_b32 v{V_TRACE}, 0")
        stamp(a, 0, True); stamp(a, 1)
    a(f"""
    s_waitcnt lgkmcnt(0)
    global_load_dwordx4 {vr(vDst,4)}, v{t0}, {sr(S_DST,2)}
    ds_write_b32 v{t2}, v{vZ} offset:{L_H1}
    s_cmp_lg_u32 s{S_WAVE}, 11
    s_cbranch_scc1 K_ld1
    s_mul_i32 s{S_A}, s2, {XTRA}
    s_add_u32 s{S_A}, s{S_A}, {256*MAINE}
    v_min_u32 v{t5}, {XTRA-1}, v{L}
    v_add_lshl_u32 v{t5}, v{t5}, s{S_A}, 2
    v_lshrrev_b32 v{t4}, 1, v{t5}
    global_load_dword v{vDst+4}, v{t5}, {sr(S_DST,2)}
    global_load_dword v{vSrc+4}, v{t5}, {sr(S_SRC,2)}
    global_load_ushort v{vEa+2}, v{t4}, {sr(S_E,2)}
K_ld1:
    s_cmp_ge_u32 s2, 32
    s_cbranch_scc1 K_ldJ
    s_sub_u32 s{S_A}, s{S_WAVE}, 5
    s_cmp_ge_u32 s{S_A}, 3
    s_cbranch_scc1 K_ld2
    s_lshl_b32 s{S_A}, s{S_A}, 13
    v_lshl_add_u32 v{t5}, v{L}, 7, s{S_A}
    s_getpc_b64 {sr(S_J,2)}
    global_load_dword v{t4}, v{t5}, {sr(S_J,2)} offset:1024
K_ld2:
    s_lshl_b32 s{S_A}, s2, 4
    s_add_u32 s{S_A}, s{S_A}, s{S_WAVE}
    s_cmp_lg_u32 s{S_A}, 9
    s_cbranch_scc1 K_ldJ
    s_lshl_b32 s{S_A}, s{S_TAG}, 25
    s_or_b32 s{S_A}, s{S_A}, 1
    s_lshr_b64 {sr(S_TAG,2)}, {sr(S_TAG,2)}, 7
    v_mov_b32 v{t4}, s{S_A}
    v_mov_b32 v{t4+1}, s{S_TAG}
    s_mov_b64 exec, 1
    global_store_dwordx2 v{vZ}, {vr(t4,2)}, {sr(S_DBG,2)} sc1
    s_mov_b64 exec, -1
K_ldJ:
    s_lshl_b32 s{S_A}, s{S_WAVE}, 11
    s_cmp_ge_u32 s{S_WAVE}, 8
    s_cbranch_scc1 K_stX
    s_add_u32 m0, s{S_A}, {L_W1}
    v_lshrrev_b32 v{t3}, 2, v{L}
    v_and_b32 v{t3}, 12, v{t3}
    v_xor_b32 v{t3}, v{t3}, v{L}
    v_lshl_add_u32 v{t5}, v{t3}, 4, s{S_A}
    global_load_lds_dwordx4 v{t5}, {sr(S_W1,2)}
    global_load_lds_dwordx4 v{t5}, {sr(S_W1,2)} offset:1024
    s_branch K_stJ
K_stX:
    s_mov_b32 s{S_RX}, s4
    s_mov_b32 s{S_RX+1}, s5
    s_mov_b32 s{S_RX+2}, {N_NODES*128}
    s_mov_b32 s{S_RX+3}, 0x00020000
    s_add_u32 m0, s{S_A}, {L_XR - 16384}
    s_lshl_b32 s{S_B}, s{S_N0}, 7
    s_add_u32 s{S_A}, s{S_A}, s{S_B}
    s_sub_u32 s{S_A}, s{S_A}, 16384
    v_lshrrev_b32 v{t3}, 4, v{L}
    v_xor_b32 v{t3}, v{t3}, v{L}
    v_lshl_add_u32 v{t3}, v{t3}, 4, s{S_A}
    v_xor_b32 v{t5}, 64, v{t3}
    buffer_load_dwordx4 v{t3}, {sr(S_RX,4)}, 0 offen lds
    buffer_load_dwordx4 v{t5}, {sr(S_RX,4)}, 0 offen offset:1024 lds
K_stJ:
    s_waitcnt lgkmcnt(0)
    s_barrier
    v_mov_b32 v{vPad}, {PADREC}
    v_mov_b32 v{vPad+1}, {PADREC}
    v_mov_b32 v{vPad+2}, {PADREC}
    v_mov_b32 v{vPad+3}, {PADREC}
    v_lshlrev_b32 v{t2}, 4, v{T}
    ds_write_b128 v{t2}, {vr(vPad,4)} offset:{L_RL}
    s_cmp_ge_u32 s{S_WAVE}, 4
    s_cbranch_scc1 K_in1
    ds_write_b128 v{t2}, {vr(vZ,4)}
    ds_write_b128 v{t2}, {vr(vPad,4)} offset:{L_ST - 4096}
K_in1:
    s_cmp_lg_u32 s{S_WAVE}, 4
    s_cbranch_scc1 K_in2
    v_lshlrev_b32 v{t3}, 3, v{L}
    v_add_u32 v{t3}, {L_ST + ZROW*ST_STRIDE}, v{t3}
    ds_write_b64 v{t3}, {vr(vZ,2)}
    v_lshlrev_b32 v{t3}, 2, v{L}
    ds_write_b32 v{t3}, v{vZ} offset:{L_RL - 256}
K_in2:
    global_load_dwordx4 {vr(vSrc,4)}, v{t0}, {sr(S_SRC,2)}
    global_load_dwordx2 {vr(vEa,2)}, v{t1}, {sr(S_E,2)}
    s_cmp_ge_u32 s{S_WAVE}, 8
    s_cbranch_scc1 K_st2
    s_add_u32 m0, m0, 16384
    v_add_u32 v{t5}, 0x4000, v{t5}
    global_load_lds_dwordx4 v{t5}, {sr(S_W1,2)}
    global_load_lds_dwordx4 v{t5}, {sr(S_W1,2)} offset:1024
    s_branch K_st3
K_st2:
    s_mov_b32 m0, {L_WC}
    v_lshlrev_b32 v{t3}, 2, v{L}
    v_add_u32 v{t4}, 0x8000, v{t3}
    global_load_lds_dword v{t4}, {sr(S_W1,2)}
    s_mov_b32 m0, {L_WC + 256}
    s_nop 0
    global_load_lds_dword v{t3}, {sr(S_B1,2)}
K_st3:
    v_and_b32 v{vC8}, 3, v{L}
    v_lshlrev_b32 v{vC8}, 3, v{vC8}
    v_and_b32 v{t1}, 16, v{L}
    v_lshl_add_u32 v{vC8}, v{t1}, 1, v{vC8}  ; 8c + 32(g&1)
    s_lshr_b32 s{S_D}, s{S_WAVE}, 1          ; ct
    v_bfe_u32 v{t0}, v{L}, 2, 2
    v_xor_b32 v{t3}, s{S_D}, v{t0}
    v_lshlrev_b32 v{t3}, 6, v{t3}
    v_lshl_add_u32 v{t0}, v{HH}, 3, v{t0}
    v_lshl_add_u32 v{t0}, v{t0}, 8, v{t3}
    v_add_u32 v{vWa}, {L_W1}, v{t0}
    v_and_b32 v{vWp}, 1, v{L}
    v_lshl_add_u32 v{vWp}, v{vWp}, 5, v{vWa}
    v_and_b32 v{t3}, 16, v{L}
    v_add_u32 v{vWp}, v{vWp}, v{t3}
    v_and_b32 v{t3}, 2, v{L}
    v_lshl_add_u32 v{vWp}, v{t3}, 2, v{vWp}  ; + 16(c&1) + 4(2(g&1) + (c>>1)) columns
    s_and_b32 s{S_A}, s{S_WAVE}, 1
    s_lshl_b32 s{S_A}, s{S_A}, 12
    s_add_u32 s{S_A}, s{S_A}, {L_XR}
    v_bfe_u32 v{t3}, v{L}, 1, 3
    v_xor_b32 v{t3}, v{t3}, v{HH}
    v_lshl_add_u32 v{t3}, v{t3}, 4, s{S_A}
    v_lshl_add_u32 v{vXa}, v{J}, 7, v{t3}
    v_xor_b32 v{vXa+1}, 32, v{vXa}
    v_xor_b32 v{vXa+2}, 64, v{vXa}
    v_xor_b32 v{vXa+3}, 0x60, v{vXa}
    s_mov_b32 s{S_A}, 21400
    s_mov_b32 s{S_B}, -{NB}
    s_mov_b32 s{S_C}, 0xffff0000
    v_mov_b32 v{t5}, 0x10004
    v_mov_b32 v{vBa+4}, 0
    v_mov_b32 v{v4k}, 0x4000
    s_waitcnt vmcnt(6)
    s_cmp_lg_u32 s{S_WAVE}, 11
    s_cbranch_scc1 K_wJ
    s_bfm_b64 exec, {XTRA}, 0""")
    assert L_ST - L_RL <= step + 4096
    def binops(cols):
        for i in cols: a(f"    v_mul_u32_u24 v{vBa+i}, s{S_A}, v{vDst+i}")
        for i in cols: a(f"    v_lshrrev_b32 v{vBa+i}, 18, v{vBa+i}")
        for i in cols:
            a(f"    v_and_b32 v{vBa+i}, 0x3fc, v{vBa+i}")
            a(f"    ds_add_rtn_u32 v{vRk+i}, v{vBa+i}, v{t5} offset:{L_H1}")
        for i in cols: a(f"    v_lshlrev_b32 v{vDst+i}, 2, v{vDst+i}")
        for i in cols: a(f"    v_mad_i32_i24 v{vDst+i}, v{vBa+i}, s{S_B}, v{vDst+i}")
        for i in cols: a(f"    v_bfe_u32 v{vCl+i}, v{vDst+i}, 2, 1")
    binops([4])
    a(f"""
    s_mov_b64 exec, -1
K_wJ:""")
    stamp(a, 2)
    binops(range(4))
    a(f"""
    s_waitcnt vmcnt(4) lgkmcnt(0)
    s_barrier""")
    stamp(a, 3)
    a(f"""
    s_cmp_eq_u32 s{S_WAVE}, 8
    s_cbranch_scc1 K_scan1
    s_cmp_gt_u32 s{S_WAVE}, 8
    s_cbranch_scc1 K_notP
    ; ---- waves 0..7: P^T tile = -log2(e) * (x w1[0:64])^T""")
    for s_ in range(4):
        a(f"    ds_read_b128 {vr(vX+4*s_,4)}, v{vXa+s_}")
        for h in range(2):
            a(f"    ds_read_b64_tr_b16 {vr(vWf+4*s_+2*h,2)}, v{vWp} offset:{4096*s_+1024*h}")
    for s_ in range(4):
        a(f"    s_waitcnt lgkmcnt({9-3*s_})")
        cin = "0" if s_ == 0 else vr(vAc, 16)
        a(f"    v_mfma_f32_32x32x16_bf16 {vr(vAc,16)}, {vr(vWf+4*s_,4)}, {vr(vX+4*s_,4)}, {cin}")
    a(f"""
    s_and_b32 s{S_B}, s{S_WAVE}, 1
    s_mul_i32 s{S_A}, s{S_B}, {32*PS_STRIDE}
    s_lshl_b32 s{S_B}, s{S_D}, 6
    s_add_u32 s{S_A}, s{S_A}, s{S_B}
    s_add_u32 s{S_A}, s{S_A}, {L_PS}
    v_mul_u32_u24 v{t3}, {PS_STRIDE}, v{J}
    v_lshl_add_u32 v{t3}, v{HH}, 5, v{t3}
    v_add_u32 v{t3}, s{S_A}, v{t3}
    v_mov_b32 v{t4}, {NLOG2E:#x}
    v_cmp_gt_u32 vcc, {L_PS + 56*PS_STRIDE}, v{t3}
    s_nop 1""")
    for q in range(8):
        a(f"    v_pk_mul_f32 {vr(vAc+2*q,2)}, {vr(vAc+2*q,2)}, {vr(t4,2)} op_sel_hi:[1,0]")
    for q in range(8):
        a(f"    v_cvt_pk_bf16_f32 v{vAc+q}, v{vAc+2*q}, v{vAc+2*q+1}")
    a(f"""
    s_mov_b64 exec, vcc
    ds_write_b128 v{t3}, {vr(vAc,4)}
    ds_write_b128 v{t3}, {vr(vAc+4,4)} offset:16
    s_mov_b64 exec, -1
    s_branch K_b3
K_notP:
    v_lshlrev_b32 v{t1}, 4, v{L}
    v_add_u32 v{t4}, {L_PS + 48*PS_STRIDE}, v{t1}
    v_add_u32 v{t1}, {48*256}, v{t1}
    s_branch K_b3
K_scan1:
    ; ---- wave 8: segment offsets; a segment is n records (4 bytes) followed by n node bytes, padded to 4
    s_setprio 2
    global_load_dwordx2 {vr(vTg,2)}, v{vZ}, {sr(S_DBG,2)}
    v_lshlrev_b32 v{t0}, 4, v{L}
    ds_read_b128 v[56:59], v{t0} offset:{L_H1}
    s_waitcnt lgkmcnt(0)""")
    for i in range(4):
        a(f"    v_lshrrev_b32 v{60+i}, 16, v{56+i}")
    for i in range(4):
        a(f"    v_mad_u32_u24 v{64+i}, v{60+i}, 5, 3")
    for i in range(4):
        a(f"    v_and_b32 v{64+i}, -4, v{64+i}")
    a(f"""
    v_add_u32 v65, v64, v65
    v_add_u32 v66, v65, v66
    v_add_u32 v67, v66, v67
    v_mov_b32 v68, v67""")
    wave_scan(a, 68)
    a(f"""
    v_sub_u32 v68, v68, v67
    v_add_u32 v69, v68, v64
    v_add_u32 v70, v68, v65
    v_add_u32 v71, v68, v66
    s_mov_b32 s{S_A}, 0x10001""")
    for i in range(4):
        a(f"    v_mul_u32_u24 v{64+i}, s{S_A}, v{68+i}")
    for i in range(4):
        a(f"    v_lshl_add_u32 v{64+i}, v{56+i}, 16, v{64+i}")
    a(f"""
    ds_write_b128 v{t0}, v[64:67] offset:{L_OFF}
    s_setprio 0
K_b3:
    v_lshrrev_b32 v{t0}, 4, v{T}
    v_lshl_add_u32 v{t0}, v{t0}, 4, v{t2}
    v_add_u32 v{t0}, {L_PS}, v{t0}
    s_lshl_b32 s{S_A}, s{S_N0}, 8
    s_add_u32 s{S_A}, s{S_A}, {WS_P}
    s_add_u32 s{S_RT}, s{S_WS}, s{S_A}
    s_addc_u32 s{S_RT+1}, s{S_WS+1}, 0
    s_lshl_b32 s{S_RT+2}, s{S_NN}, 8
    s_mov_b32 s{S_RT+3}, 0x00020000
    s_waitcnt lgkmcnt(0)
    s_barrier                                ; B3: segment offsets, P staged""")
    stamp(a, 4)
    a(f"""
    s_cmp_lt_u32 s{S_WAVE}, 10
    s_cbranch_scc1 K_nx0
    ds_read_b32 v{vOf+4}, v{vBa+4} offset:{L_OFF}
    ds_read_b128 v[76:79], v{t4}
K_nx0:
    ds_read_b128 v[72:75], v{t0}""")
    for i in range(4):
        a(f"    ds_read_b32 v{vOf+i}, v{vBa+i} offset:{L_OFF}")
    a(f"""
    s_waitcnt vmcnt(2)
    v_lshl_or_b32 v{vSrc}, v{v4k}, v{vCl}, v{vSrc}
    v_lshl_or_b32 v{vSrc+1}, v{v4k}, v{vCl+1}, v{vSrc+1}
    v_lshl_or_b32 v{vSrc+2}, v{v4k}, v{vCl+2}, v{vSrc+2}
    v_lshl_or_b32 v{vSrc+3}, v{v4k}, v{vCl+3}, v{vSrc+3}
    v_lshl_or_b32 v{vSrc}, v{vEa}, 16, v{vSrc}
    v_and_or_b32 v{vSrc+1}, v{vEa}, s{S_C}, v{vSrc+1}
    v_lshl_or_b32 v{vSrc+2}, v{vEa+1}, 16, v{vSrc+2}
    v_and_or_b32 v{vSrc+3}, v{vEa+1}, s{S_C}, v{vSrc+3}
    s_waitcnt lgkmcnt(4)
    buffer_store_dwordx4 v[72:75], v{t2}, {sr(S_RT,4)}, 0 offen sc1
    s_waitcnt lgkmcnt(0)""")
    def scatter(i):
        a(f"    v_add_u32_sdwa v{vBa+i}, v{vOf+i}, v{vRk+i} {SD} src0_sel:WORD_0 src1_sel:WORD_0")
        a(f"    v_add_u32_sdwa v{vOf+i}, v{vOf+i}, v{vRk+i} {SD} src0_sel:WORD_1 src1_sel:WORD_1")
        a(f"    ds_write_b32 v{vBa+i}, v{vSrc+i} offset:{L_RS}")
        a(f"    ds_write_b8 v{vOf+i}, v{vDst+i} offset:{L_RS}")
    for i in range(4): scatter(i)
    a(f"""
    s_cmp_lt_u32 s{S_WAVE}, 10
    s_cbranch_scc1 K_nx2
    s_cmp_eq_u32 s{S_WAVE}, 11
    s_cbranch_scc1 K_x2
    buffer_store_dwordx4 v[76:79], v{t1}, {sr(S_RT,4)}, 0 offen sc1
    s_branch K_nx2
K_x2:
    s_bfm_b64 exec, {XTRA}, 0
    v_lshl_or_b32 v{vSrc+4}, v{v4k}, v{vCl+4}, v{vSrc+4}
    v_lshl_or_b32 v{vSrc+4}, v{vEa+2}, 16, v{vSrc+4}""")
    scatter(4)
    a(f"""
    s_mov_b64 exec, -1
K_nx2:
    s_mul_i32 s{S_A}, s2, {RSTRIDE}
    s_add_u32 s{S_RR}, s{S_WS}, s{S_A}
    s_addc_u32 s{S_RR+1}, s{S_WS+1}, 0
    s_mov_b32 s{S_RR+2}, 16512
    s_mov_b32 s{S_RR+3}, 0x00020000
    v_add_u32 v{t3}, {step}, v{t2}
    s_waitcnt lgkmcnt(0)
    s_barrier""")
    stamp(a, 5)
    a(f"""
    ds_read_b128 v[0:3], v{t2} offset:{L_RS}
    s_cmp_ge_u32 s{S_WAVE}, 5
    s_cbranch_scc1 K_co1
    ds_read_b128 v[8:11], v{t2} offset:{L_RS + step}
    s_waitcnt lgkmcnt(0)
    buffer_store_dwordx4 v[8:11], v{t3}, {sr(S_RR,4)}, 0 offen sc1
K_co1:
    s_waitcnt lgkmcnt(0)
    buffer_store_dwordx4 v[0:3], v{t2}, {sr(S_RR,4)}, 0 offen sc1
    v_and_b32 v{tc}, 15, v{L}
    v_bfe_u32 v{t3}, v{L}, 4, 1
    v_lshlrev_b32 v{t3}, 2, v{t3}
    v_xor_b32 v{tc}, v{tc}, v{t3}
    v_lshlrev_b32 v{V_IX+1}, 4, v{tc}
    v_mov_b32 v{V_IX+3}, v{V_IX+1}
    v_mov_b32 v{V_IX+5}, v{V_IX+1}
    v_mov_b32 v{V_IX+7}, v{V_IX+1}
    v_lshrrev_b32 v{V_AIDX}, 4, v{L}
    v_lshlrev_b32 v{V_AIDX}, 1, v{V_AIDX}
    v_bfe_u32 v{tc}, v{L}, 3, 1
    v_xor_b32 v{t3}, v{tc}, v{HH}
    v_lshl_add_u32 v{t3}, v{t3}, 6, v{vC8}
    v_lshl_add_u32 v{tc}, v{tc}, 8, v{t3}
    s_lshl_b32 s{S_B}, s{S_WAVE}, 12
    s_add_u32 s{S_B}, s{S_B}, {L_XS}
    v_add_u32 v{tc}, s{S_B}, v{tc}
    v_bfe_u32 v{t4}, v{L}, 2, 1
    v_cmp_ne_u32 vcc, 0, v{t4}
    v_mov_b32 v{t3}, {L_Z}
    v_mov_b32 v{V_MN}, 1.0
    v_cndmask_b32 v{V_AA}, v{t3}, v{tc}, vcc
    v_cmp_eq_u32 {mask(0)}, v{t4}, v{HH}
    v_bfe_u32 v{tc}, v{L}, 3, 2
    v_and_b32 v{t3}, 3, v{L}
    v_lshl_add_u32 v{tc}, v{tc}, 2, v{t3}
    v_lshlrev_b32 v{tc}, 2, v{tc}
    v_add_u32 v{tc}, {L_G}, v{tc}
    v_mov_b32 v{t3}, {L_ZA}
    v_cndmask_b32 v{V_AENT}, v{t3}, v{tc}, {mask(0)}
    v_mov_b32 v{t3}, 0x80
    v_cndmask_b32 v{V_INCA}, 0, v{t3}, {mask(0)}""")
    for m in range(4):
        a(f"    s_movk_i32 s{S_P+m}, {3072 - 1024*m}")
    for c in range(2):
        a(f"    v_mov_b32 v{V_ND+4*c}, 0")
        a(f"    v_mov_b32 v{V_ND+4*c+1}, 0")
        a(f"    v_mov_b32 v{V_ND+4*c+2}, 1.0")
        a(f"    v_mov_b32 v{V_ND+4*c+3}, 1.0")
    a(f"""
    s_and_b32 s{S_A}, s{S_WAVE}, 3
    s_mul_i32 s{S_A}, s{S_A}, 3
    s_lshr_b32 s{S_B}, s{S_WAVE}, 2
    s_add_u32 s{S_SLOT}, s{S_A}, s{S_B}
    s_getpc_b64 {sr(S_PC,2)}
K_pc:
    s_add_u32 s{S_PC}, s{S_PC}, K_vbase - K_pc
    s_addc_u32 s{S_PC+1}, s{S_PC+1}, 0
    ; segment mapping of phase 2: segment 128 i + t/6, lane group g = t%6
    v_mul_u32_u24 v{tc}, 10923, v{T}
    v_lshrrev_b32 v{tc}, 16, v{tc}
    v_mad_i32_i24 v{vG4}, v{tc}, -6, v{T}
    v_lshlrev_b32 v{vG4}, 2, v{vG4}          ; 4g
    v_mul_u32_u24 v{vSb}, {RSTRIDE}, v{tc}
    s_lshr_b32 s{S_A}, s2, 3
    s_mul_i32 s{S_A}, s{S_A}, {256*128 if "hot" in OPT else 781*128}
    s_add_u32 s{S_A}, s{S_A}, {WS_P - (512*128 if "hot" in OPT else 0)}
    v_lshl_add_u32 v{vPf}, v{T}, 7, s{S_A}
    s_lshr_b32 s{S_B}, s{S_BIN}, 2
    s_lshl_b32 s{S_B}, s{S_B}, 4
    s_and_b32 s{S_A}, s{S_BIN}, 1
    s_lshl_b32 s{S_A}, s{S_A}, 3
    s_add_u32 s{S_B}, s{S_B}, s{S_A}
    s_and_b32 s{S_A}, s{S_BIN}, 2
    s_lshl_b32 s{S_A}, s{S_A}, 9
    s_add_u32 s{S_B}, s{S_B}, s{S_A}
    s_add_u32 s{S_B}, s{S_B}, {WS_TAB}
    v_lshl_add_u32 v{t5}, v{tc}, 11, s{S_B}  ; table entry offset
    s_mov_b32 s3, {NLOG2E:#x}
    s_cmp_lg_u32 s{S_WAVE}, 8
    s_cbranch_scc1 K_ntb
    s_mov_b32 s{S_K}, 0
    s_waitcnt vmcnt(2)
K_tagp:
    v_cmp_ne_u32 vcc, 0, v{vTg}
    s_cbranch_vccnz K_tagok
    s_add_u32 s{S_K}, s{S_K}, 1
    s_cmp_gt_u32 s{S_K}, {POLL_MAX}
    s_cbranch_scc1 K_tagok                   ; give up: tag 0 sends this workgroup to the slow path
    global_load_dwordx2 {vr(vTg,2)}, v{vZ}, {sr(S_DBG,2)} sc1
    s_waitcnt vmcnt(0)
    s_branch K_tagp
K_tagok:
    ds_write_b64 v{vZ}, {vr(vTg,2)} offset:{L_NONCE}
    v_and_b32 v{t3}, 0xfe000000, v{vTg}
    s_lshl_b32 s{S_B}, s2, 11
    s_add_u32 s{S_B}, s{S_B}, {WS_TAB}
    v_lshl_add_u32 v{t1}, v{L}, 4, s{S_B}""")
    for i in range(4):
        a(f"    v_lshrrev_b32 v{68+i}, 2, v{68+i}")
        a(f"    v_lshl_or_b32 v{68+i}, v{60+i}, 13, v{68+i}")
        a(f"    v_or_b32 v{vTb+2*i}, v{t3}, v{68+i}")
        a(f"    v_mov_b32 v{vTb+2*i+1}, v{vTg+1}")
    a(f"""
    s_waitcnt vmcnt(0) lgkmcnt(0)
    s_barrier                                ; B5
    s_cbranch_vccz K_slow
    global_store_dwordx4 v{t1}, {vr(vTb,4)}, {sr(S_WS,2)} sc1
    global_store_dwordx4 v{t1}, {vr(vTb+4,4)}, {sr(S_WS,2)} offset:1024 sc1
    s_branch K_b5j
K_ntb:
    s_waitcnt vmcnt(0)
    s_barrier
K_b5j:""")
    stamp(a, 6)
    a(f"""
    ds_read_b64 {vr(vTg,2)}, v{vZ} offset:{L_NONCE}
    v_lshlrev_b32 v{t0}, 1, v{L}
    v_add_u32 v{t0}, {L_WC}, v{t0}
    ds_read_u16 v{V_B5}, v{t0}
    ds_read_u16 v{V_B5+2}, v{t0} offset:128
    s_waitcnt lgkmcnt(0)
    v_readfirstlane_b32 s{S_TAG}, v{vTg}
    v_readfirstlane_b32 s{S_TAG+1}, v{vTg+1}
    s_cmp_eq_u32 s{S_TAG}, 0
    s_cbranch_scc1 K_slow""")
    for c in range(2):
        w = V_B5 + 2*c
        a(f"    v_lshlrev_b32 v{w}, 16, v{w}")
        a(f"    v_mul_f32 v{w}, s3, v{w}")
        a(f"    v_cvt_pk_bf16_f32 v{t3}, v{vZ}, v{w}")
        a(f"    v_sub_f32 v{t3}, v{w}, v{t3}")
        a(f"    v_cvt_pk_bf16_f32 v{w+1}, v{w}, v{t3}")
    a(f"""
    s_cmp_lt_u32 s{S_WAVE}, 8
    s_cbranch_scc1 K_Q
    s_sub_u32 s{S_A}, s{S_WAVE}, 8
    s_lshl_b32 s{S_A}, s{S_A}, 12
    s_add_u32 m0, s{S_A}, {L_W2}
    v_lshl_add_u32 v{t3}, v{L}, 4, s{S_A}
    global_load_lds_dwordx4 v{t3}, {sr(S_W2,2)}
    global_load_lds_dwordx4 v{t3}, {sr(S_W2,2)} offset:1024
    global_load_lds_dwordx4 v{t3}, {sr(S_W2,2)} offset:2048
    global_load_lds_dwordx4 v{t3}, {sr(S_W2,2)} offset:3072
    s_cmp_lg_u32 s{S_WAVE}, 9
    s_cbranch_scc1 K_notQ
    s_mov_b32 m0, {L_B2}
    v_lshlrev_b32 v{t3}, 2, v{J}
    global_load_lds_dword v{t3}, {sr(S_B2,2)}
    s_branch K_notQ
K_Q:
    s_mov_b32 s3, {f32bits(-LOG2E/2):#x}
    s_lshl_b32 s{S_A}, s{S_D}, 6
    s_add_u32 s{S_A}, s{S_A}, {L_WC + 256}
    v_lshl_add_u32 v{t3}, v{J}, 1, s{S_A}
    ds_read_u16 v{vB1}, v{t3}
    v_add_u32 v{tc}, v{vWa}, v{vC8}""")
    for s_ in range(4):
        for h in range(2):
            a(f"    ds_read_b64_tr_b16 {vr(vWf+4*s_+2*h,2)}, v{tc} offset:{16384+4096*s_+1024*h}")
    a(f"""
    s_and_b32 s{S_A}, s{S_WAVE}, 1
    s_lshl_b32 s{S_B}, s{S_A}, 14
    s_lshl_b32 s{S_C}, s{S_D}, 7
    s_add_u32 s{S_B}, s{S_B}, s{S_C}
    s_add_u32 s{S_B}, s{S_B}, {L_QT - 512}
    v_lshl_add_u32 v{tc}, v{HH}, 11, s{S_B}
    v_lshl_add_u32 v{tc}, v{J}, 2, v{tc}""")
    for s_ in range(4):
        a(f"    s_waitcnt lgkmcnt({6-2*s_})")
        cin = "0" if s_ == 0 else vr(vAc, 16)
        a(f"    v_mfma_f32_32x32x16_bf16 {vr(vAc,16)}, {vr(vX+4*s_,4)}, {vr(vWf+4*s_,4)}, {cin}")
    a(f"""
    v_lshlrev_b32 v{vB1}, 16, v{vB1}
    v_mul_f32 v{vB1}, s3, v{vB1}
    s_nop 9""")
    def qpair(r):
        row = 8*(r >> 2) + (r & 3)
        a(f"    v_fma_f32 v{vAc+r}, v{vAc+r}, s3, v{vB1}")
        a(f"    v_fma_f32 v{vAc+r+1}, v{vAc+r+1}, s3, v{vB1}")
        a(f"    v_cvt_pk_bf16_f32 v{vWf+r}, v{vAc+r}, v{vAc+r+1}")
        a(f"    ds_write_b32 v{tc}, v{vWf+r} offset:{512*(row+1)}")
        a(f"    ds_write_b16 v{tc}, v{vWf+r} offset:{512*row}")
        a(f"    ds_write_b16_d16_hi v{tc}, v{vWf+r} offset:{512*(row+2)+2}")
    for r in range(0, 12, 2): qpair(r)
    a(f"""
    s_cmp_eq_u32 s{S_A}, 1
    s_cbranch_scc1 K_notQ""")
    for r in range(12, 16, 2): qpair(r)
    a(f"K_notQ:")
    stamp(a, 7)
    vT = 0
    vN = 4
    vAr = 6
    vR = 12
    vM = 28
    vA = 32
    vK = 48
    vB = 64
    a(f"""
    s_lshl_b32 s{S_B}, s{S_WAVE}, 12
    s_add_u32 m0, s{S_B}, {L_XS}
    s_mov_b32 s{S_RR}, s{S_WS}
    s_mov_b32 s{S_RR+1}, s{S_WS+1}
    s_mov_b32 s{S_RR+2}, {WS_TAB + 256*2048}
    s_mov_b32 s{S_A}, {128*2048}
    s_mov_b32 s{S_B}, {128*RSTRIDE}
    s_mov_b32 s{S_C}, 0xfe000000
    s_movk_i32 s{S_D}, 0xfc
    s_mov_b32 s{S_K}, 0
    {"s_sleep " + optval("fs", "0") if optval("fs", "0") != "0" else ""}
    s_mov_b64 {mask(0)}, -1
    s_mov_b64 {mask(1)}, -1
    v_mov_b32 v{vM}, 0
    v_mov_b32 v{vM+1}, 0
K_poll:
    s_mov_b64 exec, {mask(0)}
    s_cbranch_execz K_pl0
    buffer_load_dwordx2 {vr(vT,2)}, v{t5}, {sr(S_RR,4)}, 0 offen sc1
K_pl0:
    s_mov_b64 exec, {mask(1)}
    s_cbranch_execz K_pl1
    buffer_load_dwordx2 {vr(vT+2,2)}, v{t5}, {sr(S_RR,4)}, s{S_A} offen sc1
K_pl1:
    s_mov_b64 exec, -1
    s_waitcnt vmcnt(0)""")
    for i in range(2):
        a(f"    v_xor_b32 v{vN+i}, s{S_TAG}, v{vT+2*i}")
        a(f"    v_xor_b32 v{vAr+i}, s{S_TAG+1}, v{vT+2*i+1}")
        a(f"    v_and_or_b32 v{vAr+i}, v{vN+i}, s{S_C}, v{vAr+i}")
        a(f"    v_cmp_ne_u32 {mask(i)}, 0, v{vAr+i}")
    a(f"""
    s_add_u32 s{S_K}, s{S_K}, 1
    s_or_b64 vcc, {mask(0)}, {mask(1)}
    s_cbranch_scc0 K_got
    s_cmp_lt_u32 s{S_K}, {POLL_MAX}
    s_cbranch_scc1 K_poll
    s_mov_b32 s{S_MODE}, 1
    s_branch K_nor2a
K_got:""")
    if DIAG:
        a(f"    v_writelane_b32 v{V_STAMP}, s{S_K}, 20")
    stamp(a, 8)
    so = ["0", sr(S_B)]
    for i in range(2):
        a(f"    v_and_b32 v{vAr+i}, 0x1fff, v{vT+2*i}")
        a(f"    v_bfe_u32 v{vT+2*i+1}, v{vT+2*i}, 13, 12")
        a(f"    v_lshl_add_u32 v{vAr+i}, v{vAr+i}, 2, v{vSb}")
        a(f"    v_sub_u32 v{vN+i}, v{vT+2*i+1}, v{vG4}")
        a(f"    v_lshl_add_u32 v{vAr+2+i}, v{vT+2*i+1}, 2, v{vAr+i}")
        a(f"    v_cmp_lt_i32 {mask(4*i)}, 0, v{vN+i}")
        a(f"    v_lshl_add_u32 v{vAr+i}, v{vG4}, 2, v{vAr+i}")
        a(f"    v_add_u32 v{vAr+2+i}, v{vAr+2+i}, v{vG4}")
        a(f"    s_or_b64 exec, {mask(4*i)}, 1")
        a(f"    buffer_load_dword v{vM+i}, v{vAr+2+i}, {sr(S_RR,4)}, {so[i]} offen")
        a(f"    buffer_load_dwordx4 {vr(vR+4*i,4)}, v{vAr+i}, {sr(S_RR,4)}, {so[i]} offen")
        a(f"    s_mov_b64 exec, -1")
    for i in range(2):
        for k in range(1, 4):
            a(f"    v_cmp_lt_i32 {mask(4*i+k)}, {k}, v{vN+i}")
    a(f"""
    v_max_i32 v{t1}, v{vN}, v{vN+1}
    v_cmp_lt_i32 vcc, 24, v{t1}
    s_mov_b32 s{S_K}, 0
    s_cbranch_vccz K_nor2a
    s_mov_b32 s{S_K}, 1""")
    for i in range(2):
        a(f"    buffer_load_dword v{vM+2+i}, v{vAr+2+i}, {sr(S_RR,4)}, {so[i]} offen offset:24")
        a(f"    buffer_load_dwordx4 {vr(vR+8+4*i,4)}, v{vAr+i}, {sr(S_RR,4)}, {so[i]} offen offset:96")
        for k in range(4):
            a(f"    v_cmp_lt_i32 {mask(8+4*i+k)}, {24+k}, v{vN+i}")
    pf0 = int(optval("pf", "8"))
    a(f"""
    v_cmp_lt_i32 vcc, 48, v{t1}
    s_cbranch_vccz K_nor2a
    s_mov_b32 s{S_MODE}, 1
K_nor2a:
    v_mov_b32 v{t4}, {L_FLAG}
    v_mov_b32 v{t0}, 4
    s_cmp_eq_u32 s{S_MODE}, 0
    s_cbranch_scc1 K_nofl
    ds_write_b32 v{t4}, v{t0}
K_nofl:
    s_waitcnt lgkmcnt(0)
    s_barrier
    ds_read_b32 v{t3}, v{t4}
    s_add_u32 s{S_RX}, s{S_WS}, {WS_P - 3072}
    s_addc_u32 s{S_RX+1}, s{S_WS+1}, 0
    s_and_b32 s{S_RX+1}, s{S_RX+1}, 0xffff
    s_or_b32 s{S_RX+1}, s{S_RX+1}, 0x01000000
    s_mov_b32 s{S_RX+2}, {N_NODES}
    s_mov_b32 s{S_RX+3}, 0x00020000
    s_waitcnt lgkmcnt(0)
    v_cmp_ne_u32 vcc, 0, v{t3}
    s_cbranch_vccnz K_slow
    s_cmp_lt_u32 s{S_WAVE}, {pf0}
    s_cbranch_scc1 K_npf
    global_load_dword v{t5}, v{vPf}, {sr(S_WS,2)} sc1
    s_waitcnt vmcnt(1)
    s_branch K_pfJ
K_npf:
    s_waitcnt vmcnt(0)
K_pfJ:""")
    stamp(a, 9)
    def count_cols(ks):
        for k in ks:
            a(f"    v_and_b32_sdwa v{vA+k}, v{vM+k//4}, s{S_D} {SD} src0_sel:BYTE_{k%4} src1_sel:DWORD")
        for k in ks:
            a(f"    s_mov_b64 exec, {mask(k)}")
            a(f"    ds_add_rtn_u32 v{vK+k}, v{vA+k}, v{t0} offset:{L_H2}")
        a(f"    s_mov_b64 exec, -1")
    count_cols(range(8))
    a(f"""
    s_cmp_eq_u32 s{S_K}, 0
    s_cbranch_scc1 K_nor2b""")
    count_cols(range(8, 16))
    a(f"""
K_nor2b:
    v_lshlrev_b32 v{t1}, 2, v{L}
    v_cmp_gt_u32 vcc, s{S_NN}, v{L}
    s_waitcnt lgkmcnt(0)
    s_barrier""")
    stamp(a, 10)
    a(f"""
    ds_read_b32 v{V_CNT}, v{t1} offset:{L_H2}
    s_waitcnt lgkmcnt(0)
    v_add_u32 v{vP}, 4, v{V_CNT}
    v_and_b32 v{vP}, -8, v{vP}
    v_max_u32 v{vP}, 64, v{vP}
    v_cndmask_b32 v{vP}, 0, v{vP}, vcc
    v_mov_b32 v{vS}, v{vP}""")
    wave_scan(a, vS)
    a(f"""
    s_nop 0
    v_readlane_b32 s{S_A}, v{vS}, 63
    v_sub_u32 v{vS}, v{vS}, v{vP}
    ds_write_b32 v{t1}, v{vS} offset:{L_SX}
    s_cmp_gt_u32 s{S_A}, {ENT_CAP*4}
    s_cbranch_scc1 K_slow""")
    def place_cols(ks, mid=None):
        ks = list(ks)
        for k in ks:
            a(f"    ds_read_b32 v{vB+k}, v{vA+k} offset:{L_SX}")
        if mid: a(mid)
        for n, k in enumerate(ks):
            if n % 2 == 0:
                a(f"    s_waitcnt lgkmcnt({len(ks)-2-n})")
            a(f"    v_add_u32 v{vK+k}, v{vB+k}, v{vK+k}")
        for k in ks:
            a(f"    s_mov_b64 exec, {mask(k)}")
            a(f"    ds_write_b32 v{vK+k}, v{vR+k} offset:{L_RL}")
        a(f"    s_mov_b64 exec, -1")
    place_cols(range(8), f"""
    s_add_u32 s{S_A}, s{S_A}, 63
    s_lshr_b32 s{S_TT}, s{S_A}, 6            ; tiles
    s_mul_i32 s{S_T0}, s{S_SLOT}, s{S_TT}
    s_add_u32 s{S_NT}, s{S_T0}, s{S_TT}
    s_mul_i32 s{S_T0}, s{S_T0}, 43691
    s_mul_i32 s{S_NT}, s{S_NT}, 43691
    s_lshr_b32 s{S_T0}, s{S_T0}, 19
    s_lshr_b32 s{S_NT}, s{S_NT}, 19
    s_sub_u32 s{S_NT}, s{S_NT}, s{S_T0}""")
    a(f"""
    s_cmp_eq_u32 s{S_K}, 0
    s_cbranch_scc1 K_nor2c
    s_waitcnt lgkmcnt(0)""")
    place_cols(range(8, 16))
    thr = [int(x) for x in optval("thr", "10_5_2").split("_")]
    vBk = 80
    vGr = 82
    a(f"""
K_nor2c:
    s_lshl_b32 s{S_A}, s{S_T0}, 6
    v_lshl_add_u32 v{t3}, v{V_AIDX}, 1, s{S_A}
    v_add_u32 v{t2}, s{S_A}, v{t1}
    v_cmp_ge_u32 {mask(0)}, s{S_A}, v{vS}
    v_subrev_u32 v{t0}, s{S_A}, v{vS}
    s_and_b64 {mask(0)}, {mask(0)}, vcc
    s_bcnt1_i32_b64 s{S_B}, {mask(0)}
    s_sub_u32 s{S_B}, s{S_B}, 1              ; n
    s_andn2_b64 {mask(0)}, vcc, {mask(0)}
    v_bfe_u32 v{t4}, v{t0}, 3, 3
    v_add_u32 v{t4}, 1, v{t4}
    v_lshrrev_b32 v{t0}, 6, v{t0}
    v_min_u32 v{t0}, 63, v{t0}
    v_cndmask_b32 v{t0}, 63, v{t0}, {mask(0)}
    v_lshlrev_b32 v{t0}, 2, v{t0}
    v_mov_b32 v{vBk}, 0
    {"" if "novar" in OPT else f"ds_permute_b32 v{vBk}, v{t0}, v{t4}"}
    s_lshl_b32 s{S_D}, s{S_NT}, 4""")
    for c in range(5):
        a(f"    v_cmp_gt_i32 {mask(5+c)}, s{S_D}, v{L}")
        a(f"    s_sub_u32 s{S_D}, s{S_D}, 64")
    a(f"""
    s_waitcnt lgkmcnt(0)
    s_barrier""")
    stamp(a, 11)
    for m in range(4):
        a(f"    ds_read_u16 v{V_IX+2*m}, v{t3} offset:{L_RL + 16*m}")
    for c in range(5):
        a(f"    ds_read_b32 v{vGr+c}, v{t2} offset:{L_RL + 256*c}")
    a(f"""
    s_lshr_b32 s{S_C}, s{S_A}, 1
    s_add_u32 s{S_C}, s{S_C}, {L_IX}
    v_add_u32 v{V_AIDX}, s{S_C}, v{V_AIDX}
    v_lshl_add_u32 v{t0}, v{L}, 1, s{S_C}
    s_mov_b32 s{S_C}, 0x03020302
    s_mov_b32 s{S_D}, 0x8001
    s_waitcnt lgkmcnt(5)""")
    for m in range(4):
        a(f"    v_and_b32 v{V_IX+2*m}, {0xfff if 'cheat1' in OPT or 'cheat2' in OPT else PADREC}, v{V_IX+2*m}")
    for h in dma_ops(): a(h)
    if "st2" in OPT:
        a(f"""
    s_cmp_lt_u32 s{S_WAVE}, 8
    s_cbranch_scc1 K_ns2
    v_add_u32 v{vPf}, 0x100000, v{vPf}
    global_load_dword v{t5}, v{vPf}, {sr(S_WS,2)} sc1
K_ns2:""")
    a(f"    ; this wave's entries -> one-hot word, (e, e), source node")
    a(f"    s_waitcnt lgkmcnt(0)")
    for c in range(5):
        a(f"    v_and_b32 v{vGr+5+c}, 0xc000, v{vGr+c}")
        a(f"    v_perm_b32 v{64+c}, v{vGr+c}, v{vGr+c}, s{S_C}")
        a(f"    v_xor_b32 v{vGr+c}, v{vGr+c}, v{vGr+5+c}")
        a(f"    v_mul_u32_u24 v{vGr+5+c}, s{S_D}, v{vGr+5+c}")
        a(f"    v_and_b32 v{vGr+5+c}, 0x40004000, v{vGr+5+c}")
    for c in range(5):
        a(f"    s_mov_b64 exec, {mask(5+c)}")
        a(f"    ds_write2st64_b32 v{t2}, v{vGr+5+c}, v{64+c} offset0:{L_G//256 + c} offset1:{L_RL//256 + c}")
        a(f"    ds_write_b16 v{t0}, v{vGr+c} offset:{128*c}")
    a(f"""
    s_mov_b64 exec, -1
    s_lshl_b32 s{S_C}, s{S_B}, 9
    s_add_u32 s{S_C}, s{S_C}, {L_QT}
    v_add_u32 v{V_AQ}, s{S_C}, v{t1}
    v_lshrrev_b32 v{t4}, 7, v{V_INCA}
    v_mad_u32_u24 v{V_AENT}, v{t4}, s{S_A}, v{V_AENT}""")
    for h in ent_reads(0) + q_reads() + idx_reads(32): a(h)
    a(f"""
    s_add_u32 s{S_C}, s{S_B}, s{S_SLOT}
    s_mul_i32 s{S_C}, s{S_C}, {ST_STRIDE}
    s_add_u32 s{S_C}, s{S_C}, {L_ST}
    v_add_u32 v{V_AS}, s{S_C}, v{t1}
    v_add_u32 v{V_AQ}, 0x200, v{V_AQ}
    ; jump table: slot of the variant, entry inside it (priority steps near the end), exit at lane nt
    v_and_b32 v{t4}, 1, v{L}
    v_mad_u32_u24 v{t4}, v{t4}, 9, v{vBk}
    v_sub_u32 v{t0}, s{S_NT}, v{L}
    v_mov_b32 v{t3}, {ENTRY}""")
    for i, th in enumerate(thr):
        a(f"    v_cmp_eq_u32 {mask(i)}, {th}, v{t0}")
    a(f"    v_cmp_eq_u32 {mask(3)}, 0, v{t0}")
    a(f"    s_movk_i32 s{S_C}, {VAR_SIZE}")
    for i, th in enumerate(thr):
        a(f"    v_cndmask_b32 v{t3}, v{t3}, {ENTRY - 20 + 8*i}, {mask(i)}")
    p2 = optval("p2_", "")
    if p2:
        p2a, p2b = [int(x) for x in p2.split("_")]
        a(f"""
    s_lshr_b32 s{S_D}, s{S_WAVE}, 2
    s_mul_i32 s{S_D}, s{S_D}, {p2b}
    s_add_u32 s{S_D}, s{S_D}, {p2a}
    s_cmp_lt_u32 s{S_WAVE}, {pf0}
    s_cselect_b32 s{S_D}, s{S_D}, 64
    v_cmp_eq_u32 {mask(4)}, s{S_D}, v{L}
    s_nop 1
    v_cndmask_b32 v{t3}, v{t3}, {ENTRY - 36}, {mask(4)}""")
    a(f"""
    v_mad_u32_u24 v{t4}, v{t4}, s{S_C}, v{t3}
    v_mov_b32 v{t3}, K_exit - K_vbase
    v_cndmask_b32 v{t4}, v{t4}, v{t3}, {mask(3)}
    ds_bpermute_b32 v{V_TAB}, v{t1}, v{t4} offset:4
    s_mov_b32 s{S_K}, 1
    v_readlane_b32 s{S_J}, v{t4}, 0
    s_setprio 3
    s_waitcnt vmcnt(0)""")
    stamp(a, 12)
    for h in tr_reads(0): a(h)
    a(f"""
    s_add_u32 s{S_J}, s{S_J}, s{S_PC}
    s_addc_u32 s{S_J+1}, s{S_PC+1}, 0
    s_waitcnt lgkmcnt(0)""")
    a(small(0, 0))
    if "cheat2" in OPT:
        for m in range(2): a(f"    v_and_b32 v{V_IX+2*m}, 0xfff, v{V_IX+2*m}")
    for h in dma_ops(): a(h)
    a(small(0, 1))
    a(f"    v_lshl_or_b32 v{V_TAB}, v{V_TAB}, 16, v{t4}")
    stamp(a, 13); stamp(a, 14, True)
    a(f"    s_setpc_b64 {sr(S_J,2)}")
    a(f".p2align 6")
    a(f"K_vbase:")
    for s_ in range(2):
        for b in [None] + list(range(8)):
            tile_variant(a, s_, b)
    a(f".p2align 3")
    a(f"K_exit:")
    stamp(a, 15); stamp(a, 16, True)
    flush1(a)
    a("    s_nop 0")
    flush2(a)
    a(f"""
    v_cmp_eq_f32 vcc, 0, v{V_MN}
    s_cbranch_vccz K_join
    v_mov_b32 v65, {L_FLAG}
    ds_write_b32 v65, v65
K_join:
    s_cmp_ge_u32 s{S_WAVE}, 4
    s_cbranch_scc1 K_idle
    v_cvt_f32_u32 v136, s{S_TT}
    v_rcp_f32 v136, v136
    v_add3_u32 v{vP}, v{vS}, v{vP}, -4
    v_lshrrev_b32 v{vS}, 6, v{vS}
    v_lshrrev_b32 v{vP}, 6, v{vP}
    v_cvt_f32_u32 v{vS}, v{vS}
    v_cvt_f32_u32 v{vP}, v{vP}
    v_add_f32 v{vS}, {f32bits((NW-0.5)/NW):#x}, v{vS}
    v_add_f32 v{vP}, {f32bits((NW-0.5)/NW):#x}, v{vP}
    v_mul_f32 v136, {f32bits(NW):#x}, v136
    v_mul_f32 v{vS}, v{vS}, v136
    v_mul_f32 v{vP}, v{vP}, v136
    v_cvt_u32_f32 v{vS}, v{vS}
    v_cvt_u32_f32 v{vP}, v{vP}
    v_cmp_gt_u32 vcc, s{S_NN}, v{L}
    v_sub_u32 v{vP}, v{vP}, v{vS}
    v_add_u32 v{vS}, v{vS}, v{L}
    v_lshl_or_b32 v{vS}, v{vP}, 8, v{vS}
    v_cndmask_b32 v{vS}, {ZROW}, v{vS}, vcc
    v_lshl_or_b32 v{V_CNT}, v{vS}, 16, v{V_CNT}
    v_and_b32 v136, 15, v{L}
    v_lshrrev_b32 v137, 4, v{L}              ; g
    s_lshl_b32 s{S_A}, s{S_WAVE}, 6
    v_lshl_add_u32 v138, v136, 2, s{S_A}
    ds_bpermute_b32 v139, v138, v{V_CNT}
    v_and_b32 v138, 16, v{L}
    v_lshlrev_b32 v138, 2, v138
    v_lshl_add_u32 v138, v{HH}, 5, v138
    v_bfe_u32 v140, v{L}, 2, 2
    v_add_u32 v140, v140, v138
    v_lshlrev_b32 v140, 7, v140
    v_and_b32 v141, 3, v{L}
    v_lshl_add_u32 v140, v141, 4, v140
    v_add_u32 v140, {L_W2}, v140""")
    for ot in range(4):
        for ks in range(4):
            for h in range(2):
                a(f"    ds_read_b64_tr_b16 {vr(16*ot+4*ks+2*h,2)}, v140 offset:{1024*ks+512*h+64*(ot>>1)+8*(ot&1)}")
    a(f"""
    v_lshlrev_b32 v141, 4, v137
    v_add_u32 v140, {L_B2}, v141
    ds_read_b128 v[128:131], v140
    ds_read_b128 v[132:135], v140 offset:64
    s_lshl_b32 s{S_A}, s{S_N0}, 7
    s_add_u32 s{S_RT}, s{S_OUT}, s{S_A}
    s_addc_u32 s{S_RT+1}, s{S_OUT+1}, 0
    s_lshl_b32 s{S_RT+2}, s{S_NN}, 7
    s_mov_b32 s{S_RT+3}, 0x00020000
    s_movk_i32 s{S_K}, {ST_STRIDE}
    s_lshl_b32 s{S_A}, s{S_WAVE}, 12
    s_add_u32 s{S_A}, s{S_A}, {L_QT}
    v_mul_u32_u24 v140, 144, v136
    v_add3_u32 v140, v140, v141, s{S_A}
    v_lshrrev_b32 v147, 3, v{L}
    v_add_lshl_u32 v147, v147, v{L}, 4
    v_add_u32 v147, s{S_A}, v147
    s_lshl_b32 s{S_A}, s{S_WAVE}, 11
    v_lshl_add_u32 v141, v{L}, 4, s{S_A}     ; output byte offset
    v_mov_b32 v136, {NLN2:#x}
    s_waitcnt lgkmcnt(0)
    v_bfe_u32 v142, v139, 16, 8
    v_lshrrev_b32 v143, 24, v139
    v_and_b32 v139, 0xffff, v139
    v_cvt_f32_u32 v139, v139
    v_mul_f32 v139, {f32bits(-0.25 * LOG2E):#x}, v139
    v_lshlrev_b32 v138, 2, v138
    v_add_u32 v138, {L_ST}, v138
    v_mad_u32_u24 v142, v142, s{S_K}, v138
    v_add_u32 v138, {ZROW*ST_STRIDE}, v138
    v_cmp_lt_u32 vcc, 0, v143
    v_add_u32 v144, {ST_STRIDE}, v142
    v_mov_b32 v146, 0x207
    v_cndmask_b32 v145, v138, v144, vcc
    ; accumulators start at -log2(e) * degree * b2""")
    ACC = [112, 116, 120, 124]
    for q in range(8):
        a(f"    v_lshlrev_b32 v{112+2*q}, 16, v{128+q}")
        a(f"    v_and_b32 v{113+2*q}, 0xffff0000, v{128+q}")
    for q in range(16):
        a(f"    v_mul_f32 v{112+q}, v139, v{112+q}")
    a(f"    s_mov_b32 s{S_A}, 1")
    a(f"    s_barrier")
    stamp(a, 17)
    S0 = 64
    for ks in range(4):
        a(f"    ds_read_b128 {vr(S0+8*ks,4)}, v142 offset:{32*ks}")
        a(f"    ds_read_b128 {vr(S0+4+8*ks,4)}, v142 offset:{32*ks+16}")
    a(f"K_rows:")
    tmp = [96, 104, 128, 156]
    for ks in range(4):
        a(f"    ds_read_b128 {vr(tmp[ks],4)}, v145 offset:{32*ks}")
        a(f"    ds_read_b128 {vr(tmp[ks]+4,4)}, v145 offset:{32*ks+16}")
    a(f"""
    v_cmp_lt_u32 vcc, s{S_A}, v143
    v_add_u32 v144, {ST_STRIDE}, v144
    s_add_u32 s{S_A}, s{S_A}, 1""")
    for ks in range(4):
        a(f"    s_waitcnt lgkmcnt({6-2*ks})")
        for q in range(4):
            a(f"    v_pk_add_f32 {vr(S0+8*ks+2*q,2)}, {vr(S0+8*ks+2*q,2)}, {vr(tmp[ks]+2*q,2)}")
    a(f"""
    v_cndmask_b32 v145, v138, v144, vcc
    s_cbranch_vccnz K_rows""")
    def cv(ks):
        for q in range(4):
            a(f"    v_cvt_pk_bf16_f32 v{96+4*ks+q}, v{S0+8*ks+2*q}, v{S0+1+8*ks+2*q}")
    cv(0); cv(1)
    for ks in range(4):
        for ot in range(4):
            d = vr(ACC[ot], 4)
            a(f"    v_mfma_f32_16x16x32_bf16 {d}, {vr(16*ot+4*ks,4)}, {vr(96+4*ks,4)}, {d}")
        if ks < 2: cv(ks + 2)
    a("    s_nop 4")
    for q in range(8):
        a(f"    v_pk_mul_f32 {vr(64+2*q,2)}, {vr(112+2*q,2)}, {vr(136,2)} op_sel_hi:[1,0]")
    for q in range(8):
        a(f"    v_cvt_pk_bf16_f32 v{80+q}, v{64+2*q}, v{65+2*q}")
    a(f"""
    ds_write_b128 v140, v[80:83]
    ds_write_b128 v140, v[84:87] offset:64
    ds_read_b128 v[88:91], v147
    ds_read_b128 v[92:95], v147 offset:{8*144}
    v_cmp_class_f32 vcc, v64, v146
    s_waitcnt lgkmcnt(1)
    buffer_store_dwordx4 v[88:91], v141, {sr(S_RT,4)}, 0 offen sc1
    s_waitcnt lgkmcnt(0)
    buffer_store_dwordx4 v[92:95], v141, {sr(S_RT,4)}, 0 offen offset:1024 sc1
    s_cbranch_vccz K_fin
    v_mov_b32 v65, {L_FLAG}
    ds_write_b32 v65, v65
    s_branch K_fin
K_idle:
    s_waitcnt lgkmcnt(0)
    s_barrier                                ; B9
K_fin:
    v_mov_b32 v65, {L_FLAG}
    s_waitcnt lgkmcnt(0)
    s_barrier                                ; B10
    ds_read_b32 v64, v65
    s_waitcnt lgkmcnt(0)
    v_cmp_ne_u32 vcc, 0, v64
    {"" if "novar" in OPT or "nodma" in OPT else "s_cbranch_vccnz K_slow"}""")
    if DIAG:
        a("    s_waitcnt vmcnt(0)")
        stamp(a, 18); stamp(a, 19, True)
        a(f"""
    v_writelane_b32 v{V_STAMP}, s{S_NT}, 21
    s_lshl_b32 s{S_A}, s2, 4
    s_add_u32 s{S_A}, s{S_A}, s{S_WAVE}
    s_lshl_b32 s{S_A}, s{S_A}, 8
    s_add_u32 s{S_A}, s{S_A}, {WS_STAMP}
    v_lshl_add_u32 v64, v{L}, 2, s{S_A}
    s_mov_b64 exec, 0xffffffff
    global_store_dword v64, v{V_STAMP}, {sr(S_WS,2)}
    global_store_dword v64, v{V_TRACE}, {sr(S_WS,2)} offset:128""")
    if optval("fix", "") != "":
        a(f"""
    s_lshl_b32 s{S_A}, s2, 4
    s_add_u32 s{S_A}, s{S_A}, s{S_WAVE}
    s_cmp_lg_u32 s{S_A}, 1600
    s_cbranch_scc1 K_end
    s_lshl_b32 s{S_A}, s{S_TAG+1}, 7
    s_lshr_b32 s{S_B}, s{S_TAG}, 25
    s_or_b32 s{S_A}, s{S_A}, s{S_B}
K_spin3:
    s_memrealtime s[98:99]
    s_waitcnt lgkmcnt(0)
    s_sub_u32 s98, s98, s{S_A}
    s_cmp_lt_u32 s98, {optval("fix", "")}
    s_cbranch_scc1 K_spin3""")
    if optval("amp", "") != "":
        a(f"""
    s_waitcnt vmcnt(0)
    s_cmp_lg_u32 s{S_WAVE}, 0
    s_cbranch_scc1 K_end
    s_lshl_b32 s{S_A}, s{S_TAG+1}, 7
    s_lshr_b32 s{S_B}, s{S_TAG}, 25
    s_or_b32 s{S_A}, s{S_A}, s{S_B}""")
        if optval("amp", "") == "99":
            a("    s_memrealtime s[98:99]\n    s_waitcnt lgkmcnt(0)")
        a(f"""
    s_sub_u32 s{S_B}, s98, s{S_A}
    s_mov_b64 exec, 1
    v_mov_b32 v64, 0
    v_mov_b32 v65, s{S_B}
    v_mov_b32 v66, 1
    global_atomic_{"add" if "avg" in OPT else "umax"} v64, v65, {sr(S_DBG,2)} offset:128 sc1
    s_waitcnt vmcnt(0)
    global_atomic_add v67, v64, v66, {sr(S_DBG,2)} offset:136 sc0 sc1
    s_waitcnt vmcnt(0)
    v_readfirstlane_b32 s{S_B}, v67
    s_cmp_lg_u32 s{S_B}, 255
    s_cbranch_scc1 K_end
    global_atomic_add v67, v64, v64, {sr(S_DBG,2)} offset:128 sc0 sc1
    s_waitcnt vmcnt(0)
    v_readfirstlane_b32 s{S_B}, v67
    s_mul_i32 s{S_B}, s{S_B}, {optval("mul", "5")}
    {f"s_lshr_b32 s{S_B}, s{S_B}, 8" if "avg" in OPT else ""}
    s_min_u32 s{S_B}, s{S_B}, 200000
    s_add_u32 s{S_B}, s{S_B}, {optval("base", "0")}
K_spin2:
    s_memrealtime s[98:99]
    s_waitcnt lgkmcnt(0)
    s_sub_u32 s98, s98, s{S_A}
    s_cmp_lt_u32 s98, s{S_B}
    s_cbranch_scc1 K_spin2""")
    a(f"""
K_end:
    s_endpgm
K_slow:
    ; ================= exact path without hand-offs: scan all edges for this bin
    s_setprio 0
    s_mov_b32 s16, s{S_N0}
    s_mov_b32 s17, s{S_NN}
    s_mov_b32 s18, s{S_WAVE}""")
    gen_slow(a, 16, 17, 18, L, NLOG2E, NW=NW)
    a("    s_endpgm")

def main():
    global DIAG
    out = sys.argv[1]
    DIAG = "diag" in sys.argv[2:]
    OPT.update(sys.argv[2:])
    a = Asm()
    a(f"""; Edge-featured MPNN layer: out[n] = sum_(e: dst=n) (silu([x[src],x[dst],e] w1 + b1) w2 + b2)
; @launch grid=(256,1,1) block=({NT_},1,1) lds={L_END}
.amdgcn_target "amdgcn-amd-amdhsa--gfx950"
.text""")
    gen_kernel(a)
    a(f"""
.section .rodata,"a"
.p2align 6
.amdhsa_kernel {KNAME}
  .amdhsa_next_free_vgpr {NVGPR}
  .amdhsa_next_free_sgpr 102
  .amdhsa_accum_offset {NVGPR}
  .amdhsa_group_segment_fixed_size 0
  .amdhsa_kernarg_size 88
  .amdhsa_user_sgpr_count 2
  .amdhsa_user_sgpr_kernarg_segment_ptr 1
  .amdhsa_system_sgpr_workgroup_id_x 1
  .amdhsa_float_denorm_mode_32 3
.end_amdhsa_kernel""")
    open(out, "w").write(a.text())

if __name__ == "__main__":
    main()
```

```python
import sys, struct
from slow import gen_slow

NAME = "standalone__edge_featured_mpnn_mpnn__graph"
KNAME = NAME + "_kernel"
N_NODES = 12500
NB = 49
NW = 12
NT_ = 64 * NW
MAINE = 4 * NT_
XTRA = 53
RSTRIDE = 16640

WS_TAB = 0x420000
WS_P = 0x4C0000
WS_STAMP = 0xA00000

L_Z = 128
L_H2 = 272
L_FLAG = 536
L_NONCE = 544
L_SX = 1296
ENT_CAP = 3472
LSZ = 14080
L_ZA = 4096 - 144
L_G = 4096
L_RL = L_G + LSZ
L_ST = L_RL + LSZ
ST_STRIDE = 528
ZROW = NB + NW
L_IX = L_ST + (ZROW + 1) * ST_STRIDE
L_QT = (L_IX + LSZ // 2 + 255) // 256 * 256 + 512
L_XS = L_QT + 49 * 512
assert LSZ % 256 == 0 and (ENT_CAP + 48) * 4 == LSZ
L_W2 = L_XS + NW * 4096
L_B2 = L_W2 + 16384
L_END = L_B2 + 256
L_RS = L_ST
L_H1 = L_ST + 16640
L_OFF = L_H1 + 1024
L_W1 = L_XS
L_WC = L_XS + 32768
L_PS = L_WC + 512
L_XR = L_W2
PS_STRIDE = 272
assert L_XS % 256 == 0 and L_END <= 163840
assert L_H1 + 3072 <= L_ST + ZROW * ST_STRIDE and L_OFF + 1024 < 65536 and L_PS + 56 * PS_STRIDE <= L_W2

def f32bits(x):
    return struct.unpack("<I", struct.pack("<f", x))[0]
LOG2E = 1.4426950408889634
NLOG2E = f32bits(-LOG2E)
NLN2 = f32bits(-0.6931471805599453)
PADREC = 0x3FFF
POLL_MAX = 4000

class Asm:
    def __init__(self):
        self.l = []
    def __call__(self, s=""):
        for x in s.strip("\n").split("\n"):
            if x.strip():
                self.l.append(x.rstrip())
    def text(self):
        return "\n".join(self.l) + "\n"

def vr(a, n=1):
    return f"v{a}" if n == 1 else f"v[{a}:{a+n-1}]"
def sr(a, n=1):
    return f"s{a}" if n == 1 else f"s[{a}:{a+n-1}]"

DIAG = False
OPT = set()
def optval(prefix, default):
    for o in OPT:
        if o.startswith(prefix):
            return o[len(prefix):]
    return default

V_D = 0; V_E = 64; V_A5 = 96; V_B5 = 98; V_ND = 102; V_T = 110; V_R = 114; V_O = 118; V_IX = 132
V_AA = 140; V_AIDX = 141; V_AENT = 142; V_AQ = 143; V_INCA = 144; V_AS = 145; V_MN = 146; V_PSEL = 147
V_PF = 126; V_TAB = 148; V_CNT = 149; V_S = 150; V_P = 151; V_LANE = 154; V_TID = 155
V_J = 156; V_HH = 157
E_W2 = 122; E_B2 = 123; E_ROW = 124; E_XR = 125; E_Z = 128; E_NX = 129; E_R2 = 130; E_SW = 131; E_SR = 148 + 2; E_OUT = 151; E_DEG = 152
ACC0 = 132
V_STAMP = 167; V_TRACE = 166
NVGPR = 168
S_X = 4; S_E = 6; S_SRC = 8; S_DST = 10; S_W1 = 12; S_B1 = 14; S_W2 = 16; S_B2 = 18; S_OUT = 20; S_DBG = 22; S_WS = 24
S_BIN = 26; S_N0 = 27; S_NN = 28; S_WAVE = 29; S_MODE = 30; S_K = 31; S_PC = 32; S_J = 34
S_RX = 36; S_RT = 40; S_RR = 44; S_P = 48; S_JJ = 52
S_T0 = 56; S_NT = 57; S_TT = 58; S_SLOT = 59; S_A = 60; S_B = 61; S_C = 62; S_D = 63; S_TAG = 64
S_M = 66
def mask(k): return sr(S_M + 2*k, 2)

def stamp(a, k, real=False):
    if optval("amp", "") != "":
        if int(optval("amp", "")) == k:
            a("    s_memrealtime s[98:99]\n    s_waitcnt lgkmcnt(0)")
        return
    if not DIAG:
        return
    a(f"    {'s_memrealtime' if real else 's_memtime'} s[100:101]")
    a(f"    s_waitcnt lgkmcnt(0)")
    a(f"    v_writelane_b32 v{V_STAMP}, s100, {k}")

def wave_scan(a, v):
    for sh in (1, 2, 4, 8):
        a(f"    s_nop 1")
        a(f"    v_add_u32_dpp v{v}, v{v}, v{v} row_shr:{sh} row_mask:0xf bank_mask:0xf")
    a(f"    s_nop 1")
    a(f"    v_add_u32_dpp v{v}, v{v}, v{v} row_bcast:15 row_mask:0xa bank_mask:0xf")
    a(f"    s_nop 1")
    a(f"    v_add_u32_dpp v{v}, v{v}, v{v} row_bcast:31 row_mask:0xc bank_mask:0xf")

SD = "dst_sel:DWORD dst_unused:UNUSED_PAD"

def dreg(s, c): return V_D + 32*s + 16*c
def small(s, c):
    d = vr(dreg(s, c), 16)
    return f"    v_mfma_f32_32x32x8_bf16 {d}, {vr(V_A5,2)}, {vr(V_B5+2*c,2)}, {d}"
def tr_reads(s):
    return [f"    ds_read_b64_tr_b16 {vr(dreg(s,c)+2*u,2)}, v{V_AA} offset:{512*u+128*c}" for u in range(8) for c in range(2)]
def ent_reads(off):
    return [f"    ds_read_b32 v{V_A5}, v{V_AENT} offset:{off}",
            f"    ds_read_b32 v{V_A5+1}, v{V_AENT} offset:{off + L_RL - L_G}"]
def q_reads():
    return [f"    ds_read_b32 v{V_B5+2*c}, v{V_AQ} offset:{256*c}" for c in range(2)]
def idx_reads(off):
    return [f"    ds_read_u16 v{V_IX+2*m}, v{V_AIDX} offset:{off + 8*m}" for m in range(4)]
def dma_ops():
    if "nodma" in OPT: return []
    return [f"    buffer_load_dwordx4 {vr(V_IX+2*m,2)}, {sr(S_RX,4)}, s{S_P+m} idxen offen offset:{1024*m} sc1 lds" for m in range(4)]

def flush1(a):
    for c in range(2):
        D = V_ND + 4*c + 2
        a(f"    v_rcp_f32 v{V_R+2*c}, v{D}")
        a(f"    v_rcp_f32 v{V_R+2*c+1}, v{D+1}")
def flush2(a):
    for c in range(2):
        a(f"    v_pk_mul_f32 {vr(V_O+2*c,2)}, {vr(V_ND+4*c,2)}, {vr(V_R+2*c,2)}")
    for c in range(2):
        a(f"    v_min3_f32 v{V_MN}, v{V_MN}, v{V_R+2*c}, v{V_R+2*c+1}")
    for c in range(2):
        a(f"    v_add_f32 v{V_O+2*c}, v{V_O+2*c}, v{V_O+2*c+1}")
    a(f"    ds_write2st64_b32 v{V_AS}, v{V_O}, v{V_O+2} offset0:0 offset1:1")

def y_phase(a, s, b, us=range(8), nsrc=None):
    if nsrc is None: nsrc = [V_ND + 4*c for c in range(2)]
    a(".p2align 3")
    for u in us:
        if u == b:
            flush1(a)
            for c in range(2):
                a(f"    v_pk_add_f32 {vr(V_ND+4*c+2,2)}, {vr(V_E+16*c+2*u,2)}, 1.0 op_sel_hi:[1,0]")
            flush2(a)
            for c in range(2):
                p = dreg(s, c) + 2*u
                if u == 7:
                    a(f"    v_pk_mov_b32 {vr(V_ND+4*c,2)}, {vr(p,2)}, {vr(p,2)} op_sel:[0,1]")
                else:
                    nsrc[c] = p
            continue
        for c in range(2):
            a(f"    v_pk_fma_f32 {vr(V_T+2*c,2)}, {vr(dreg(s,c)+2*u,2)}, {vr(V_ND+4*c+2,2)}, {vr(nsrc[c],2)}")
        for c in range(2):
            D = V_ND + 4*c + 2
            a(f"    v_pk_fma_f32 {vr(D,2)}, {vr(D,2)}, {vr(V_E+16*c+2*u,2)}, {vr(D,2)}")
        for c in range(2):
            a(f"    v_pk_fma_f32 {vr(V_ND+4*c,2)}, {vr(nsrc[c],2)}, {vr(V_E+16*c+2*u,2)}, {vr(V_T+2*c,2)}")
            nsrc[c] = V_ND + 4*c

VAR_SIZE = 960
ENTRY = 24
def tile_variant(a, s, b):
    name = f"{s}{'N' if b is None else b}"
    vi = 9*s + (0 if b is None else b + 1)
    a(f".org K_vbase + {VAR_SIZE*vi}, 0")
    a(f"    s_setprio 2\n    s_branch K_var{name}\n    s_setprio 1\n    s_branch K_var{name}\n    s_setprio 0")
    a(f"    s_nop 0")
    a(f"K_var{name}:")
    bnd = b is not None
    if "trace" in OPT and s == 0:
        a(f"    s_memtime s[100:101]\n    s_mov_b32 s{S_A}, m0\n    s_mov_b32 m0, s{S_K}\n    s_waitcnt lgkmcnt(0)")
        a(f"    v_writelane_b32 v{V_TRACE}, s100, m0\n    s_mov_b32 m0, s{S_A}")
    es = [f"    v_exp_f32 v{V_E+16*c+2*u+h}, v{dreg(s,c)+2*u+h}" for u in range(8) for c in range(2) for h in range(2)]
    head = ent_reads(64 + 64*s) + (q_reads() if bnd else []) + tr_reads(s ^ 1) + idx_reads(64 + 32*s)
    plain = [f"    v_readlane_b32 s{S_JJ}, v{V_TAB}, s{S_K}"] if s == 0 else \
            [f"    v_add_u32 v{V_AENT}, v{V_INCA}, v{V_AENT}", f"    v_add_u32 v{V_AIDX}, 64, v{V_AIDX}"]
    if bnd: plain.append(f"    v_add_u32 v{V_AQ}, 0x200, v{V_AQ}")
    jump = [f"    s_and_b32 s{S_J}, s{S_JJ}, 0xffff", f"    s_add_u32 s{S_K}, s{S_K}, 2"] if s == 0 else [f"    s_lshr_b32 s{S_J}, s{S_JJ}, 16"]
    jump += [f"    s_add_u32 s{S_J}, s{S_J}, s{S_PC}", f"    s_addc_u32 s{S_J+1}, s{S_PC+1}, 0"]
    late = optval("late", "4_6")
    if late:
        ua, ub = [int(x) for x in late.split("_")]
        for e in es[:4*ub]: a(e)
        nsrc = [V_ND + 4*c for c in range(2)]
        y_phase(a, s, b, range(0, ua), nsrc)
        a("    s_waitcnt vmcnt(0)")
        for h in head: a(h)
        y_phase(a, s, b, range(ua, ub), nsrc)
        a(f"    s_waitcnt lgkmcnt(0)")
        for h in dma_ops(): a(h)
        a(small(s ^ 1, 0))
        for e in es[4*ub:4*ub+4]: a(e)
        a(small(s ^ 1, 1))
        for e in es[4*ub+4:]: a(e)
        for p_ in plain + jump: a(p_)
        y_phase(a, s, b, range(ub, 8), nsrc)
    else:
        n1 = int(optval("n1_", "16"))
        a("    s_waitcnt vmcnt(0)")
        for h in head: a(h)
        for e in es[:n1-2]: a(e)
        for p_ in plain: a(p_)
        for e in es[n1-2:n1]: a(e)
        a(f"    s_waitcnt lgkmcnt(0)")
        for h in dma_ops(): a(h)
        a(small(s ^ 1, 0))
        for e in es[n1:n1+4]: a(e)
        a(small(s ^ 1, 1))
        for e in es[n1+4:]: a(e)
        for p_ in jump: a(p_)
        y_phase(a, s, b)
    if bnd:
        a(f"    v_add_u32 v{V_AS}, {ST_STRIDE}, v{V_AS}")
    a(f"    s_setpc_b64 {sr(S_J,2)}")

def gen_kernel(a):
    L = V_LANE; T = V_TID; J = V_J; HH = V_HH
    t0, t1, t2, t3, t4, t5 = 158, 159, 160, 161, 162, 163
    step = NT_ * 16
    vDst = 0
    vSrc = 8
    vEa = 14
    tc = 17
    vTg = 18
    vBa = 20
    vRk = 26
    vWp = 31
    vOf = 32
    vC8 = 37; vWa = 38; vTa = 39
    vX = 40
    vWf = 56
    vPad = 56
    vAc = 72
    vTb = 88
    vXa = 88
    vB1 = 96
    vCl = 120
    v4k = 125
    vPf = 126
    vZ = 128
    vG4 = 164; vSb = 165
    vS = V_S; vP = V_P
    a(f"""
.p2align 8
.globl {KNAME}
.type {KNAME},@function
{KNAME}:
    s_cmp_ge_u32 s2, 256
    s_cbranch_scc1 K_end
    s_load_dwordx8 s[4:11], s[0:1], 0
    s_load_dwordx8 s[12:19], s[0:1], 32      ; w1, b1, w2, b2
    s_load_dwordx4 s[20:23], s[0:1], 64
    s_load_dwordx2 s[24:25], s[0:1], 80      ; ws
    s_memrealtime {sr(S_TAG,2)}
    v_lshrrev_b32 v1, 6, v0
    v_mov_b32 v{T}, v0
    v_readfirstlane_b32 s{S_WAVE}, v1
    v_and_b32 v{L}, 63, v0
    s_mul_i32 s3, s2, {MAINE*4}
    v_lshl_add_u32 v{t0}, v0, 4, s3          ; byte offset into src/dst
    v_lshrrev_b32 v{t1}, 1, v{t0}
    s_and_b32 s{S_BIN}, s2, 7
    s_lshl_b32 s{S_BIN}, s{S_BIN}, 5
    s_lshr_b32 s3, s2, 3
    s_add_u32 s{S_BIN}, s{S_BIN}, s3
    s_mul_i32 s{S_N0}, s{S_BIN}, {NB}
    s_sub_u32 s{S_NN}, {N_NODES}, s{S_N0}
    s_min_u32 s{S_NN}, s{S_NN}, {NB}
    v_and_b32 v{J}, 31, v0
    v_bfe_u32 v{HH}, v0, 5, 1
    s_mov_b32 s{S_MODE}, 0
    v_mov_b32 v{vZ}, 0
    v_mov_b32 v{vZ+1}, 0
    v_mov_b32 v{vZ+2}, 0
    v_mov_b32 v{vZ+3}, 0
    v_lshlrev_b32 v{t2}, 2, v0""")
    if DIAG:
        a(f"    v_mov_b32 v{V_STAMP}, 0\n    v_mov_b32 v{V_TRACE}, 0")
        stamp(a, 0, True); stamp(a, 1)
    a(f"""
    s_waitcnt lgkmcnt(0)
    global_load_dwordx4 {vr(vDst,4)}, v{t0}, {sr(S_DST,2)}
    ds_write_b32 v{t2}, v{vZ} offset:{L_H1}
    s_cmp_lg_u32 s{S_WAVE}, 11
    s_cbranch_scc1 K_ld1
    s_mul_i32 s{S_A}, s2, {XTRA}
    s_add_u32 s{S_A}, s{S_A}, {256*MAINE}
    v_min_u32 v{t5}, {XTRA-1}, v{L}
    v_add_lshl_u32 v{t5}, v{t5}, s{S_A}, 2
    v_lshrrev_b32 v{t4}, 1, v{t5}
    global_load_dword v{vDst+4}, v{t5}, {sr(S_DST,2)}
    global_load_dword v{vSrc+4}, v{t5}, {sr(S_SRC,2)}
    global_load_ushort v{vEa+2}, v{t4}, {sr(S_E,2)}
K_ld1:
    s_cmp_ge_u32 s2, 32
    s_cbranch_scc1 K_ldJ
    s_sub_u32 s{S_A}, s{S_WAVE}, 5
    s_cmp_ge_u32 s{S_A}, 3
    s_cbranch_scc1 K_ld2
    s_lshl_b32 s{S_A}, s{S_A}, 13
    v_lshl_add_u32 v{t5}, v{L}, 7, s{S_A}
    s_getpc_b64 {sr(S_J,2)}
    global_load_dword v{t4}, v{t5}, {sr(S_J,2)} offset:1024
K_ld2:
    s_lshl_b32 s{S_A}, s2, 4
    s_add_u32 s{S_A}, s{S_A}, s{S_WAVE}
    s_cmp_lg_u32 s{S_A}, 9
    s_cbranch_scc1 K_ldJ
    s_lshl_b32 s{S_A}, s{S_TAG}, 25
    s_or_b32 s{S_A}, s{S_A}, 1
    s_lshr_b64 {sr(S_TAG,2)}, {sr(S_TAG,2)}, 7
    v_mov_b32 v{t4}, s{S_A}
    v_mov_b32 v{t4+1}, s{S_TAG}
    s_mov_b64 exec, 1
    global_store_dwordx2 v{vZ}, {vr(t4,2)}, {sr(S_DBG,2)} sc1
    s_mov_b64 exec, -1
K_ldJ:
    s_lshl_b32 s{S_A}, s{S_WAVE}, 11
    s_cmp_ge_u32 s{S_WAVE}, 8
    s_cbranch_scc1 K_stX
    s_add_u32 m0, s{S_A}, {L_W1}
    v_lshrrev_b32 v{t3}, 2, v{L}
    v_and_b32 v{t3}, 12, v{t3}
    v_xor_b32 v{t3}, v{t3}, v{L}
    v_lshl_add_u32 v{t5}, v{t3}, 4, s{S_A}
    global_load_lds_dwordx4 v{t5}, {sr(S_W1,2)}
    global_load_lds_dwordx4 v{t5}, {sr(S_W1,2)} offset:1024
    s_branch K_stJ
K_stX:
    s_mov_b32 s{S_RX}, s4
    s_mov_b32 s{S_RX+1}, s5
    s_mov_b32 s{S_RX+2}, {N_NODES*128}
    s_mov_b32 s{S_RX+3}, 0x00020000
    s_add_u32 m0, s{S_A}, {L_XR - 16384}
    s_lshl_b32 s{S_B}, s{S_N0}, 7
    s_add_u32 s{S_A}, s{S_A}, s{S_B}
    s_sub_u32 s{S_A}, s{S_A}, 16384
    v_lshrrev_b32 v{t3}, 4, v{L}
    v_xor_b32 v{t3}, v{t3}, v{L}
    v_lshl_add_u32 v{t3}, v{t3}, 4, s{S_A}
    v_xor_b32 v{t5}, 64, v{t3}
    buffer_load_dwordx4 v{t3}, {sr(S_RX,4)}, 0 offen lds
    buffer_load_dwordx4 v{t5}, {sr(S_RX,4)}, 0 offen offset:1024 lds
K_stJ:
    s_waitcnt lgkmcnt(0)
    s_barrier
    v_mov_b32 v{vPad}, {PADREC}
    v_mov_b32 v{vPad+1}, {PADREC}
    v_mov_b32 v{vPad+2}, {PADREC}
    v_mov_b32 v{vPad+3}, {PADREC}
    v_lshlrev_b32 v{t2}, 4, v{T}
    ds_write_b128 v{t2}, {vr(vPad,4)} offset:{L_RL}
    s_cmp_ge_u32 s{S_WAVE}, 4
    s_cbranch_scc1 K_in1
    ds_write_b128 v{t2}, {vr(vZ,4)}
    ds_write_b128 v{t2}, {vr(vPad,4)} offset:{L_ST - 4096}
K_in1:
    s_cmp_lg_u32 s{S_WAVE}, 4
    s_cbranch_scc1 K_in2
    v_lshlrev_b32 v{t3}, 3, v{L}
    v_add_u32 v{t3}, {L_ST + ZROW*ST_STRIDE}, v{t3}
    ds_write_b64 v{t3}, {vr(vZ,2)}
    v_lshlrev_b32 v{t3}, 2, v{L}
    ds_write_b32 v{t3}, v{vZ} offset:{L_RL - 256}
K_in2:
    global_load_dwordx4 {vr(vSrc,4)}, v{t0}, {sr(S_SRC,2)}
    global_load_dwordx2 {vr(vEa,2)}, v{t1}, {sr(S_E,2)}
    s_cmp_ge_u32 s{S_WAVE}, 8
    s_cbranch_scc1 K_st2
    s_add_u32 m0, m0, 16384
    v_add_u32 v{t5}, 0x4000, v{t5}
    global_load_lds_dwordx4 v{t5}, {sr(S_W1,2)}
    global_load_lds_dwordx4 v{t5}, {sr(S_W1,2)} offset:1024
    s_branch K_st3
K_st2:
    s_mov_b32 m0, {L_WC}
    v_lshlrev_b32 v{t3}, 2, v{L}
    v_add_u32 v{t4}, 0x8000, v{t3}
    global_load_lds_dword v{t4}, {sr(S_W1,2)}
    s_mov_b32 m0, {L_WC + 256}
    s_nop 0
    global_load_lds_dword v{t3}, {sr(S_B1,2)}
K_st3:
    v_and_b32 v{vC8}, 3, v{L}
    v_lshlrev_b32 v{vC8}, 3, v{vC8}
    v_and_b32 v{t1}, 16, v{L}
    v_lshl_add_u32 v{vC8}, v{t1}, 1, v{vC8}  ; 8c + 32(g&1)
    s_lshr_b32 s{S_D}, s{S_WAVE}, 1          ; ct
    v_bfe_u32 v{t0}, v{L}, 2, 2
    v_xor_b32 v{t3}, s{S_D}, v{t0}
    v_lshlrev_b32 v{t3}, 6, v{t3}
    v_lshl_add_u32 v{t0}, v{HH}, 3, v{t0}
    v_lshl_add_u32 v{t0}, v{t0}, 8, v{t3}
    v_add_u32 v{vWa}, {L_W1}, v{t0}
    v_and_b32 v{vWp}, 1, v{L}
    v_lshl_add_u32 v{vWp}, v{vWp}, 5, v{vWa}
    v_and_b32 v{t3}, 16, v{L}
    v_add_u32 v{vWp}, v{vWp}, v{t3}
    v_and_b32 v{t3}, 2, v{L}
    v_lshl_add_u32 v{vWp}, v{t3}, 2, v{vWp}  ; + 16(c&1) + 4(2(g&1) + (c>>1)) columns
    s_and_b32 s{S_A}, s{S_WAVE}, 1
    s_lshl_b32 s{S_A}, s{S_A}, 12
    s_add_u32 s{S_A}, s{S_A}, {L_XR}
    v_bfe_u32 v{t3}, v{L}, 1, 3
    v_xor_b32 v{t3}, v{t3}, v{HH}
    v_lshl_add_u32 v{t3}, v{t3}, 4, s{S_A}
    v_lshl_add_u32 v{vXa}, v{J}, 7, v{t3}
    v_xor_b32 v{vXa+1}, 32, v{vXa}
    v_xor_b32 v{vXa+2}, 64, v{vXa}
    v_xor_b32 v{vXa+3}, 0x60, v{vXa}
    s_mov_b32 s{S_A}, 21400
    s_mov_b32 s{S_B}, -{NB}
    s_mov_b32 s{S_C}, 0xffff0000
    v_mov_b32 v{t5}, 0x10004
    v_mov_b32 v{vBa+4}, 0
    v_mov_b32 v{v4k}, 0x4000
    s_waitcnt vmcnt(6)
    s_cmp_lg_u32 s{S_WAVE}, 11
    s_cbranch_scc1 K_wJ
    s_bfm_b64 exec, {XTRA}, 0""")
    assert L_ST - L_RL <= step + 4096
    def binops(cols):
        for i in cols: a(f"    v_mul_u32_u24 v{vBa+i}, s{S_A}, v{vDst+i}")
        for i in cols: a(f"    v_lshrrev_b32 v{vBa+i}, 18, v{vBa+i}")
        for i in cols:
            a(f"    v_and_b32 v{vBa+i}, 0x3fc, v{vBa+i}")
            a(f"    ds_add_rtn_u32 v{vRk+i}, v{vBa+i}, v{t5} offset:{L_H1}")
        for i in cols: a(f"    v_lshlrev_b32 v{vDst+i}, 2, v{vDst+i}")
        for i in cols: a(f"    v_mad_i32_i24 v{vDst+i}, v{vBa+i}, s{S_B}, v{vDst+i}")
        for i in cols: a(f"    v_bfe_u32 v{vCl+i}, v{vDst+i}, 2, 1")
    binops([4])
    a(f"""
    s_mov_b64 exec, -1
K_wJ:""")
    stamp(a, 2)
    binops(range(4))
    a(f"""
    s_waitcnt vmcnt(4) lgkmcnt(0)
    s_barrier""")
    stamp(a, 3)
    a(f"""
    s_cmp_eq_u32 s{S_WAVE}, 8
    s_cbranch_scc1 K_scan1
    s_cmp_gt_u32 s{S_WAVE}, 8
    s_cbranch_scc1 K_notP
    ; ---- waves 0..7: P^T tile = -log2(e) * (x w1[0:64])^T""")
    for s_ in range(4):
        a(f"    ds_read_b128 {vr(vX+4*s_,4)}, v{vXa+s_}")
        for h in range(2):
            a(f"    ds_read_b64_tr_b16 {vr(vWf+4*s_+2*h,2)}, v{vWp} offset:{4096*s_+1024*h}")
    for s_ in range(4):
        a(f"    s_waitcnt lgkmcnt({9-3*s_})")
        cin = "0" if s_ == 0 else vr(vAc, 16)
        a(f"    v_mfma_f32_32x32x16_bf16 {vr(vAc,16)}, {vr(vWf+4*s_,4)}, {vr(vX+4*s_,4)}, {cin}")
    a(f"""
    s_and_b32 s{S_B}, s{S_WAVE}, 1
    s_mul_i32 s{S_A}, s{S_B}, {32*PS_STRIDE}
    s_lshl_b32 s{S_B}, s{S_D}, 6
    s_add_u32 s{S_A}, s{S_A}, s{S_B}
    s_add_u32 s{S_A}, s{S_A}, {L_PS}
    v_mul_u32_u24 v{t3}, {PS_STRIDE}, v{J}
    v_lshl_add_u32 v{t3}, v{HH}, 5, v{t3}
    v_add_u32 v{t3}, s{S_A}, v{t3}
    v_mov_b32 v{t4}, {NLOG2E:#x}
    v_cmp_gt_u32 vcc, {L_PS + 56*PS_STRIDE}, v{t3}
    s_nop 1""")
    for q in range(8):
        a(f"    v_pk_mul_f32 {vr(vAc+2*q,2)}, {vr(vAc+2*q,2)}, {vr(t4,2)} op_sel_hi:[1,0]")
    for q in range(8):
        a(f"    v_cvt_pk_bf16_f32 v{vAc+q}, v{vAc+2*q}, v{vAc+2*q+1}")
    a(f"""
    s_mov_b64 exec, vcc
    ds_write_b128 v{t3}, {vr(vAc,4)}
    ds_write_b128 v{t3}, {vr(vAc+4,4)} offset:16
    s_mov_b64 exec, -1
    s_branch K_b3
K_notP:
    v_lshlrev_b32 v{t1}, 4, v{L}
    v_add_u32 v{t4}, {L_PS + 48*PS_STRIDE}, v{t1}
    v_add_u32 v{t1}, {48*256}, v{t1}
    s_branch K_b3
K_scan1:
    ; ---- wave 8: segment offsets; a segment is n records (4 bytes) followed by n node bytes, padded to 4
    s_setprio 2
    global_load_dwordx2 {vr(vTg,2)}, v{vZ}, {sr(S_DBG,2)}
    v_lshlrev_b32 v{t0}, 4, v{L}
    ds_read_b128 v[56:59], v{t0} offset:{L_H1}
    s_waitcnt lgkmcnt(0)""")
    for i in range(4):
        a(f"    v_lshrrev_b32 v{60+i}, 16, v{56+i}")
    for i in range(4):
        a(f"    v_mad_u32_u24 v{64+i}, v{60+i}, 5, 3")
    for i in range(4):
        a(f"    v_and_b32 v{64+i}, -4, v{64+i}")
    a(f"""
    v_add_u32 v65, v64, v65
    v_add_u32 v66, v65, v66
    v_add_u32 v67, v66, v67
    v_mov_b32 v68, v67""")
    wave_scan(a, 68)
    a(f"""
    v_sub_u32 v68, v68, v67
    v_add_u32 v69, v68, v64
    v_add_u32 v70, v68, v65
    v_add_u32 v71, v68, v66
    s_mov_b32 s{S_A}, 0x10001""")
    for i in range(4):
        a(f"    v_mul_u32_u24 v{64+i}, s{S_A}, v{68+i}")
    for i in range(4):
        a(f"    v_lshl_add_u32 v{64+i}, v{56+i}, 16, v{64+i}")
    a(f"""
    ds_write_b128 v{t0}, v[64:67] offset:{L_OFF}
    s_setprio 0
K_b3:
    v_lshrrev_b32 v{t0}, 4, v{T}
    v_lshl_add_u32 v{t0}, v{t0}, 4, v{t2}
    v_add_u32 v{t0}, {L_PS}, v{t0}
    s_lshl_b32 s{S_A}, s{S_N0}, 8
    s_add_u32 s{S_A}, s{S_A}, {WS_P}
    s_add_u32 s{S_RT}, s{S_WS}, s{S_A}
    s_addc_u32 s{S_RT+1}, s{S_WS+1}, 0
    s_lshl_b32 s{S_RT+2}, s{S_NN}, 8
    s_mov_b32 s{S_RT+3}, 0x00020000
    s_waitcnt lgkmcnt(0)
    s_barrier                                ; B3: segment offsets, P staged""")
    stamp(a, 4)
    a(f"""
    s_cmp_lt_u32 s{S_WAVE}, 10
    s_cbranch_scc1 K_nx0
    ds_read_b32 v{vOf+4}, v{vBa+4} offset:{L_OFF}
    ds_read_b128 v[76:79], v{t4}
K_nx0:
    ds_read_b128 v[72:75], v{t0}""")
    for i in range(4):
        a(f"    ds_read_b32 v{vOf+i}, v{vBa+i} offset:{L_OFF}")
    a(f"""
    s_waitcnt lgkmcnt(4)
    buffer_store_dwordx4 v[72:75], v{t2}, {sr(S_RT,4)}, 0 offen sc1
    s_waitcnt vmcnt(3)
    v_lshl_or_b32 v{vSrc}, v{v4k}, v{vCl}, v{vSrc}
    v_lshl_or_b32 v{vSrc+1}, v{v4k}, v{vCl+1}, v{vSrc+1}
    v_lshl_or_b32 v{vSrc+2}, v{v4k}, v{vCl+2}, v{vSrc+2}
    v_lshl_or_b32 v{vSrc+3}, v{v4k}, v{vCl+3}, v{vSrc+3}
    v_lshl_or_b32 v{vSrc}, v{vEa}, 16, v{vSrc}
    v_and_or_b32 v{vSrc+1}, v{vEa}, s{S_C}, v{vSrc+1}
    v_lshl_or_b32 v{vSrc+2}, v{vEa+1}, 16, v{vSrc+2}
    v_and_or_b32 v{vSrc+3}, v{vEa+1}, s{S_C}, v{vSrc+3}
    s_waitcnt lgkmcnt(0)""")
    def scatter(i):
        a(f"    v_add_u32_sdwa v{vBa+i}, v{vOf+i}, v{vRk+i} {SD} src0_sel:WORD_0 src1_sel:WORD_0")
        a(f"    v_add_u32_sdwa v{vOf+i}, v{vOf+i}, v{vRk+i} {SD} src0_sel:WORD_1 src1_sel:WORD_1")
        a(f"    ds_write_b32 v{vBa+i}, v{vSrc+i} offset:{L_RS}")
        a(f"    ds_write_b8 v{vOf+i}, v{vDst+i} offset:{L_RS}")
    for i in range(4): scatter(i)
    a(f"""
    s_cmp_lt_u32 s{S_WAVE}, 10
    s_cbranch_scc1 K_nx2
    s_cmp_eq_u32 s{S_WAVE}, 11
    s_cbranch_scc1 K_x2
    buffer_store_dwordx4 v[76:79], v{t1}, {sr(S_RT,4)}, 0 offen sc1
    s_branch K_nx2
K_x2:
    s_bfm_b64 exec, {XTRA}, 0
    v_lshl_or_b32 v{vSrc+4}, v{v4k}, v{vCl+4}, v{vSrc+4}
    v_lshl_or_b32 v{vSrc+4}, v{vEa+2}, 16, v{vSrc+4}""")
    scatter(4)
    a(f"""
    s_mov_b64 exec, -1
K_nx2:
    s_mul_i32 s{S_A}, s2, {RSTRIDE}
    s_add_u32 s{S_RR}, s{S_WS}, s{S_A}
    s_addc_u32 s{S_RR+1}, s{S_WS+1}, 0
    s_mov_b32 s{S_RR+2}, 16512
    s_mov_b32 s{S_RR+3}, 0x00020000
    v_add_u32 v{t3}, {step}, v{t2}
    s_waitcnt lgkmcnt(0)
    s_barrier""")
    stamp(a, 5)
    a(f"""
    ds_read_b128 v[0:3], v{t2} offset:{L_RS}
    s_cmp_ge_u32 s{S_WAVE}, 5
    s_cbranch_scc1 K_co1
    ds_read_b128 v[8:11], v{t2} offset:{L_RS + step}
    s_waitcnt lgkmcnt(0)
    buffer_store_dwordx4 v[8:11], v{t3}, {sr(S_RR,4)}, 0 offen sc1
K_co1:
    s_waitcnt lgkmcnt(0)
    buffer_store_dwordx4 v[0:3], v{t2}, {sr(S_RR,4)}, 0 offen sc1
    v_and_b32 v{tc}, 15, v{L}
    v_bfe_u32 v{t3}, v{L}, 4, 1
    v_lshlrev_b32 v{t3}, 2, v{t3}
    v_xor_b32 v{tc}, v{tc}, v{t3}
    v_lshlrev_b32 v{V_IX+1}, 4, v{tc}
    v_mov_b32 v{V_IX+3}, v{V_IX+1}
    v_mov_b32 v{V_IX+5}, v{V_IX+1}
    v_mov_b32 v{V_IX+7}, v{V_IX+1}
    v_lshrrev_b32 v{V_AIDX}, 4, v{L}
    v_lshlrev_b32 v{V_AIDX}, 1, v{V_AIDX}
    v_bfe_u32 v{tc}, v{L}, 3, 1
    v_xor_b32 v{t3}, v{tc}, v{HH}
    v_lshl_add_u32 v{t3}, v{t3}, 6, v{vC8}
    v_lshl_add_u32 v{tc}, v{tc}, 8, v{t3}
    s_lshl_b32 s{S_B}, s{S_WAVE}, 12
    s_add_u32 s{S_B}, s{S_B}, {L_XS}
    v_add_u32 v{tc}, s{S_B}, v{tc}
    v_bfe_u32 v{t4}, v{L}, 2, 1
    v_cmp_ne_u32 vcc, 0, v{t4}
    v_mov_b32 v{t3}, {L_Z}
    v_mov_b32 v{V_MN}, 1.0
    v_cndmask_b32 v{V_AA}, v{t3}, v{tc}, vcc
    v_cmp_eq_u32 {mask(0)}, v{t4}, v{HH}
    v_bfe_u32 v{tc}, v{L}, 3, 2
    v_and_b32 v{t3}, 3, v{L}
    v_lshl_add_u32 v{tc}, v{tc}, 2, v{t3}
    v_lshlrev_b32 v{tc}, 2, v{tc}
    v_add_u32 v{tc}, {L_G}, v{tc}
    v_mov_b32 v{t3}, {L_ZA}
    v_cndmask_b32 v{V_AENT}, v{t3}, v{tc}, {mask(0)}
    v_mov_b32 v{t3}, 0x80
    v_cndmask_b32 v{V_INCA}, 0, v{t3}, {mask(0)}""")
    for m in range(4):
        a(f"    s_movk_i32 s{S_P+m}, {3072 - 1024*m}")
    for c in range(2):
        a(f"    v_mov_b32 v{V_ND+4*c}, 0")
        a(f"    v_mov_b32 v{V_ND+4*c+1}, 0")
        a(f"    v_mov_b32 v{V_ND+4*c+2}, 1.0")
        a(f"    v_mov_b32 v{V_ND+4*c+3}, 1.0")
    a(f"""
    s_and_b32 s{S_A}, s{S_WAVE}, 3
    s_mul_i32 s{S_A}, s{S_A}, 3
    s_lshr_b32 s{S_B}, s{S_WAVE}, 2
    s_add_u32 s{S_SLOT}, s{S_A}, s{S_B}
    s_getpc_b64 {sr(S_PC,2)}
K_pc:
    s_add_u32 s{S_PC}, s{S_PC}, K_vbase - K_pc
    s_addc_u32 s{S_PC+1}, s{S_PC+1}, 0
    ; segment mapping of phase 2: segment 128 i + t/6, lane group g = t%6
    v_mul_u32_u24 v{tc}, 10923, v{T}
    v_lshrrev_b32 v{tc}, 16, v{tc}
    v_mad_i32_i24 v{vG4}, v{tc}, -6, v{T}
    v_lshlrev_b32 v{vG4}, 2, v{vG4}          ; 4g
    v_mul_u32_u24 v{vSb}, {RSTRIDE}, v{tc}
    s_lshr_b32 s{S_A}, s2, 3
    s_mul_i32 s{S_A}, s{S_A}, {256*128 if "hot" in OPT else 781*128}
    s_add_u32 s{S_A}, s{S_A}, {WS_P - (512*128 if "hot" in OPT else 0)}
    v_lshl_add_u32 v{vPf}, v{T}, 7, s{S_A}
    s_lshr_b32 s{S_B}, s{S_BIN}, 2
    s_lshl_b32 s{S_B}, s{S_B}, 4
    s_and_b32 s{S_A}, s{S_BIN}, 1
    s_lshl_b32 s{S_A}, s{S_A}, 3
    s_add_u32 s{S_B}, s{S_B}, s{S_A}
    s_and_b32 s{S_A}, s{S_BIN}, 2
    s_lshl_b32 s{S_A}, s{S_A}, 9
    s_add_u32 s{S_B}, s{S_B}, s{S_A}
    s_add_u32 s{S_B}, s{S_B}, {WS_TAB}
    v_lshl_add_u32 v{t5}, v{tc}, 11, s{S_B}  ; table entry offset
    s_mov_b32 s3, {NLOG2E:#x}
    s_cmp_lg_u32 s{S_WAVE}, 8
    s_cbranch_scc1 K_ntb
    s_mov_b32 s{S_K}, 0
    s_waitcnt vmcnt(2)
K_tagp:
    v_cmp_ne_u32 vcc, 0, v{vTg}
    s_cbranch_vccnz K_tagok
    s_add_u32 s{S_K}, s{S_K}, 1
    s_cmp_gt_u32 s{S_K}, {POLL_MAX}
    s_cbranch_scc1 K_tagok
    global_load_dwordx2 {vr(vTg,2)}, v{vZ}, {sr(S_DBG,2)} sc1
    s_waitcnt vmcnt(0)
    s_branch K_tagp
K_tagok:
    ds_write_b64 v{vZ}, {vr(vTg,2)} offset:{L_NONCE}
    v_and_b32 v{t3}, 0xfe000000, v{vTg}
    s_lshl_b32 s{S_B}, s2, 11
    s_add_u32 s{S_B}, s{S_B}, {WS_TAB}
    v_lshl_add_u32 v{t1}, v{L}, 4, s{S_B}""")
    for i in range(4):
        a(f"    v_lshrrev_b32 v{68+i}, 2, v{68+i}")
        a(f"    v_lshl_or_b32 v{68+i}, v{60+i}, 13, v{68+i}")
        a(f"    v_or_b32 v{vTb+2*i}, v{t3}, v{68+i}")
        a(f"    v_mov_b32 v{vTb+2*i+1}, v{vTg+1}")
    a(f"""
    s_waitcnt vmcnt(0) lgkmcnt(0)
    s_barrier                                ; B5
    s_cbranch_vccz K_slow
    global_store_dwordx4 v{t1}, {vr(vTb,4)}, {sr(S_WS,2)} sc1
    global_store_dwordx4 v{t1}, {vr(vTb+4,4)}, {sr(S_WS,2)} offset:1024 sc1
    s_branch K_b5j
K_ntb:
    s_waitcnt vmcnt(0)
    s_barrier
K_b5j:""")
    stamp(a, 6)
    a(f"""
    ds_read_b64 {vr(vTg,2)}, v{vZ} offset:{L_NONCE}
    v_lshlrev_b32 v{t0}, 1, v{L}
    v_add_u32 v{t0}, {L_WC}, v{t0}
    ds_read_u16 v{V_B5}, v{t0}
    ds_read_u16 v{V_B5+2}, v{t0} offset:128
    s_waitcnt lgkmcnt(0)
    v_readfirstlane_b32 s{S_TAG}, v{vTg}
    v_readfirstlane_b32 s{S_TAG+1}, v{vTg+1}
    s_cmp_eq_u32 s{S_TAG}, 0
    s_cbranch_scc1 K_slow""")
    for c in range(2):
        w = V_B5 + 2*c
        a(f"    v_lshlrev_b32 v{w}, 16, v{w}")
        a(f"    v_mul_f32 v{w}, s3, v{w}")
        a(f"    v_cvt_pk_bf16_f32 v{t3}, v{vZ}, v{w}")
        a(f"    v_sub_f32 v{t3}, v{w}, v{t3}")
        a(f"    v_cvt_pk_bf16_f32 v{w+1}, v{w}, v{t3}")
    a(f"""
    s_cmp_lt_u32 s{S_WAVE}, 8
    s_cbranch_scc1 K_Q
    s_sub_u32 s{S_A}, s{S_WAVE}, 8
    s_lshl_b32 s{S_A}, s{S_A}, 12
    s_add_u32 m0, s{S_A}, {L_W2}
    v_lshl_add_u32 v{t3}, v{L}, 4, s{S_A}
    global_load_lds_dwordx4 v{t3}, {sr(S_W2,2)}
    global_load_lds_dwordx4 v{t3}, {sr(S_W2,2)} offset:1024
    global_load_lds_dwordx4 v{t3}, {sr(S_W2,2)} offset:2048
    global_load_lds_dwordx4 v{t3}, {sr(S_W2,2)} offset:3072
    s_cmp_lg_u32 s{S_WAVE}, 9
    s_cbranch_scc1 K_notQ
    s_mov_b32 m0, {L_B2}
    v_lshlrev_b32 v{t3}, 2, v{J}
    global_load_lds_dword v{t3}, {sr(S_B2,2)}
    s_branch K_notQ
K_Q:
    s_mov_b32 s3, {f32bits(-LOG2E/2):#x}
    s_lshl_b32 s{S_A}, s{S_D}, 6
    s_add_u32 s{S_A}, s{S_A}, {L_WC + 256}
    v_lshl_add_u32 v{t3}, v{J}, 1, s{S_A}
    ds_read_u16 v{vB1}, v{t3}
    v_add_u32 v{tc}, v{vWa}, v{vC8}""")
    for s_ in range(4):
        for h in range(2):
            a(f"    ds_read_b64_tr_b16 {vr(vWf+4*s_+2*h,2)}, v{tc} offset:{16384+4096*s_+1024*h}")
    a(f"""
    s_and_b32 s{S_A}, s{S_WAVE}, 1
    s_lshl_b32 s{S_B}, s{S_A}, 14
    s_lshl_b32 s{S_C}, s{S_D}, 7
    s_add_u32 s{S_B}, s{S_B}, s{S_C}
    s_add_u32 s{S_B}, s{S_B}, {L_QT - 512}
    v_lshl_add_u32 v{tc}, v{HH}, 11, s{S_B}
    v_lshl_add_u32 v{tc}, v{J}, 2, v{tc}""")
    for s_ in range(4):
        a(f"    s_waitcnt lgkmcnt({6-2*s_})")
        cin = "0" if s_ == 0 else vr(vAc, 16)
        a(f"    v_mfma_f32_32x32x16_bf16 {vr(vAc,16)}, {vr(vX+4*s_,4)}, {vr(vWf+4*s_,4)}, {cin}")
    a(f"""
    v_lshlrev_b32 v{vB1}, 16, v{vB1}
    v_mul_f32 v{vB1}, s3, v{vB1}
    s_nop 9""")
    def qpair(r):
        row = 8*(r >> 2) + (r & 3)
        a(f"    v_fma_f32 v{vAc+r}, v{vAc+r}, s3, v{vB1}")
        a(f"    v_fma_f32 v{vAc+r+1}, v{vAc+r+1}, s3, v{vB1}")
        a(f"    v_cvt_pk_bf16_f32 v{vWf+r}, v{vAc+r}, v{vAc+r+1}")
        a(f"    ds_write_b32 v{tc}, v{vWf+r} offset:{512*(row+1)}")
        a(f"    ds_write_b16 v{tc}, v{vWf+r} offset:{512*row}")
        a(f"    ds_write_b16_d16_hi v{tc}, v{vWf+r} offset:{512*(row+2)+2}")
    for r in range(0, 12, 2): qpair(r)
    a(f"""
    s_cmp_eq_u32 s{S_A}, 1
    s_cbranch_scc1 K_notQ""")
    for r in range(12, 16, 2): qpair(r)
    a(f"K_notQ:")
    stamp(a, 7)
    vT = 0
    vN = 4
    vAr = 6
    vR = 12
    vM = 28
    vA = 32
    vK = 48
    vB = 64
    a(f"""
    s_lshl_b32 s{S_B}, s{S_WAVE}, 12
    s_add_u32 m0, s{S_B}, {L_XS}
    s_mov_b32 s{S_RR}, s{S_WS}
    s_mov_b32 s{S_RR+1}, s{S_WS+1}
    s_mov_b32 s{S_RR+2}, {WS_TAB + 256*2048}
    s_mov_b32 s{S_A}, {128*2048}
    s_mov_b32 s{S_B}, {128*RSTRIDE}
    s_mov_b32 s{S_C}, 0xfe000000
    s_movk_i32 s{S_D}, 0xfc
    s_mov_b32 s{S_K}, 0
    {"s_sleep " + optval("fs", "0") if optval("fs", "0") != "0" else ""}
    s_mov_b64 {mask(0)}, -1
    s_mov_b64 {mask(1)}, -1
    v_mov_b32 v{vM}, 0
    v_mov_b32 v{vM+1}, 0
K_poll:
    s_mov_b64 exec, {mask(0)}
    s_cbranch_execz K_pl0
    buffer_load_dwordx2 {vr(vT,2)}, v{t5}, {sr(S_RR,4)}, 0 offen sc1
K_pl0:
    s_mov_b64 exec, {mask(1)}
    s_cbranch_execz K_pl1
    buffer_load_dwordx2 {vr(vT+2,2)}, v{t5}, {sr(S_RR,4)}, s{S_A} offen sc1
K_pl1:
    s_mov_b64 exec, -1
    s_waitcnt vmcnt(0)""")
    for i in range(2):
        a(f"    v_xor_b32 v{vN+i}, s{S_TAG}, v{vT+2*i}")
        a(f"    v_xor_b32 v{vAr+i}, s{S_TAG+1}, v{vT+2*i+1}")
        a(f"    v_and_or_b32 v{vAr+i}, v{vN+i}, s{S_C}, v{vAr+i}")
        a(f"    v_cmp_ne_u32 {mask(i)}, 0, v{vAr+i}")
    a(f"""
    s_add_u32 s{S_K}, s{S_K}, 1
    s_or_b64 vcc, {mask(0)}, {mask(1)}
    s_cbranch_scc0 K_got
    s_cmp_lt_u32 s{S_K}, {POLL_MAX}
    s_cbranch_scc1 K_poll
    s_mov_b32 s{S_MODE}, 1
    s_branch K_nor2a
K_got:""")
    if DIAG:
        a(f"    v_writelane_b32 v{V_STAMP}, s{S_K}, 20")
    stamp(a, 8)
    so = ["0", sr(S_B)]
    for i in range(2):
        a(f"    v_and_b32 v{vAr+i}, 0x1fff, v{vT+2*i}")
        a(f"    v_bfe_u32 v{vT+2*i+1}, v{vT+2*i}, 13, 12")
        a(f"    v_lshl_add_u32 v{vAr+i}, v{vAr+i}, 2, v{vSb}")
        a(f"    v_sub_u32 v{vN+i}, v{vT+2*i+1}, v{vG4}")
        a(f"    v_lshl_add_u32 v{vAr+2+i}, v{vT+2*i+1}, 2, v{vAr+i}")
        a(f"    v_cmp_lt_i32 {mask(4*i)}, 0, v{vN+i}")
        a(f"    v_lshl_add_u32 v{vAr+i}, v{vG4}, 2, v{vAr+i}")
        a(f"    v_add_u32 v{vAr+2+i}, v{vAr+2+i}, v{vG4}")
        a(f"    s_or_b64 exec, {mask(4*i)}, 1")
        a(f"    buffer_load_dword v{vM+i}, v{vAr+2+i}, {sr(S_RR,4)}, {so[i]} offen")
        a(f"    buffer_load_dwordx4 {vr(vR+4*i,4)}, v{vAr+i}, {sr(S_RR,4)}, {so[i]} offen")
        a(f"    s_mov_b64 exec, -1")
    for i in range(2):
        for k in range(1, 4):
            a(f"    v_cmp_lt_i32 {mask(4*i+k)}, {k}, v{vN+i}")
    a(f"""
    v_max_i32 v{t1}, v{vN}, v{vN+1}
    v_cmp_lt_i32 vcc, 24, v{t1}
    s_mov_b32 s{S_K}, 0
    s_cbranch_vccz K_nor2a
    s_mov_b32 s{S_K}, 1""")
    for i in range(2):
        a(f"    buffer_load_dword v{vM+2+i}, v{vAr+2+i}, {sr(S_RR,4)}, {so[i]} offen offset:24")
        a(f"    buffer_load_dwordx4 {vr(vR+8+4*i,4)}, v{vAr+i}, {sr(S_RR,4)}, {so[i]} offen offset:96")
        for k in range(4):
            a(f"    v_cmp_lt_i32 {mask(8+4*i+k)}, {24+k}, v{vN+i}")
    pf0 = int(optval("pf", "8"))
    a(f"""
    v_cmp_lt_i32 vcc, 48, v{t1}
    s_cbranch_vccz K_nor2a
    s_mov_b32 s{S_MODE}, 1
K_nor2a:
    v_mov_b32 v{t4}, {L_FLAG}
    v_mov_b32 v{t0}, 4
    s_cmp_eq_u32 s{S_MODE}, 0
    s_cbranch_scc1 K_nofl
    ds_write_b32 v{t4}, v{t0}
K_nofl:
    s_waitcnt lgkmcnt(0)
    s_barrier
    ds_read_b32 v{t3}, v{t4}
    s_add_u32 s{S_RX}, s{S_WS}, {WS_P - 3072}
    s_addc_u32 s{S_RX+1}, s{S_WS+1}, 0
    s_and_b32 s{S_RX+1}, s{S_RX+1}, 0xffff
    s_or_b32 s{S_RX+1}, s{S_RX+1}, 0x01000000
    s_mov_b32 s{S_RX+2}, {N_NODES}
    s_mov_b32 s{S_RX+3}, 0x00020000
    s_waitcnt lgkmcnt(0)
    v_cmp_ne_u32 vcc, 0, v{t3}
    s_cbranch_vccnz K_slow
    s_cmp_lt_u32 s{S_WAVE}, {pf0}
    s_cbranch_scc1 K_npf
    global_load_dword v{t5}, v{vPf}, {sr(S_WS,2)} sc1
    s_waitcnt vmcnt(1)
    s_branch K_pfJ
K_npf:
    s_waitcnt vmcnt(0)
K_pfJ:""")
    stamp(a, 9)
    def count_cols(ks):
        for k in ks:
            a(f"    v_and_b32_sdwa v{vA+k}, v{vM+k//4}, s{S_D} {SD} src0_sel:BYTE_{k%4} src1_sel:DWORD")
        for k in ks:
            a(f"    s_mov_b64 exec, {mask(k)}")
            a(f"    ds_add_rtn_u32 v{vK+k}, v{vA+k}, v{t0} offset:{L_H2}")
        a(f"    s_mov_b64 exec, -1")
    count_cols(range(8))
    a(f"""
    s_cmp_eq_u32 s{S_K}, 0
    s_cbranch_scc1 K_nor2b""")
    count_cols(range(8, 16))
    a(f"""
K_nor2b:
    v_lshlrev_b32 v{t1}, 2, v{L}
    v_cmp_gt_u32 vcc, s{S_NN}, v{L}
    s_waitcnt lgkmcnt(0)
    s_barrier""")
    stamp(a, 10)
    a(f"""
    ds_read_b32 v{V_CNT}, v{t1} offset:{L_H2}
    s_waitcnt lgkmcnt(0)
    v_add_u32 v{vP}, 4, v{V_CNT}
    v_and_b32 v{vP}, -8, v{vP}
    v_max_u32 v{vP}, 64, v{vP}
    v_cndmask_b32 v{vP}, 0, v{vP}, vcc
    v_mov_b32 v{vS}, v{vP}""")
    wave_scan(a, vS)
    a(f"""
    s_nop 0
    v_readlane_b32 s{S_A}, v{vS}, 63
    v_sub_u32 v{vS}, v{vS}, v{vP}
    ds_write_b32 v{t1}, v{vS} offset:{L_SX}
    s_cmp_gt_u32 s{S_A}, {ENT_CAP*4}
    s_cbranch_scc1 K_slow""")
    def place_cols(ks, mid=None):
        ks = list(ks)
        for k in ks:
            a(f"    ds_read_b32 v{vB+k}, v{vA+k} offset:{L_SX}")
        if mid: a(mid)
        for n, k in enumerate(ks):
            if n % 2 == 0:
                a(f"    s_waitcnt lgkmcnt({len(ks)-2-n})")
            a(f"    v_add_u32 v{vK+k}, v{vB+k}, v{vK+k}")
        for k in ks:
            a(f"    s_mov_b64 exec, {mask(k)}")
            a(f"    ds_write_b32 v{vK+k}, v{vR+k} offset:{L_RL}")
        a(f"    s_mov_b64 exec, -1")
    place_cols(range(8), f"""
    s_add_u32 s{S_A}, s{S_A}, 63
    s_lshr_b32 s{S_TT}, s{S_A}, 6            ; tiles
    s_mul_i32 s{S_T0}, s{S_SLOT}, s{S_TT}
    s_add_u32 s{S_NT}, s{S_T0}, s{S_TT}
    s_mul_i32 s{S_T0}, s{S_T0}, 43691
    s_mul_i32 s{S_NT}, s{S_NT}, 43691
    s_lshr_b32 s{S_T0}, s{S_T0}, 19
    s_lshr_b32 s{S_NT}, s{S_NT}, 19
    s_sub_u32 s{S_NT}, s{S_NT}, s{S_T0}""")
    a(f"""
    s_cmp_eq_u32 s{S_K}, 0
    s_cbranch_scc1 K_nor2c
    s_waitcnt lgkmcnt(0)""")
    place_cols(range(8, 16))
    thr = [int(x) for x in optval("thr", "10_5").split("_")] + [2]
    vBk = 80
    vGr = 82
    a(f"""
K_nor2c:
    s_lshl_b32 s{S_A}, s{S_T0}, 6
    v_lshl_add_u32 v{t3}, v{V_AIDX}, 1, s{S_A}
    v_add_u32 v{t2}, s{S_A}, v{t1}
    v_cmp_ge_u32 {mask(0)}, s{S_A}, v{vS}
    v_subrev_u32 v{t0}, s{S_A}, v{vS}
    s_and_b64 {mask(0)}, {mask(0)}, vcc
    s_bcnt1_i32_b64 s{S_B}, {mask(0)}
    s_sub_u32 s{S_B}, s{S_B}, 1              ; n
    s_andn2_b64 {mask(0)}, vcc, {mask(0)}
    v_bfe_u32 v{t4}, v{t0}, 3, 3
    v_add_u32 v{t4}, 1, v{t4}
    v_lshrrev_b32 v{t0}, 6, v{t0}
    v_min_u32 v{t0}, 63, v{t0}
    v_cndmask_b32 v{t0}, 63, v{t0}, {mask(0)}
    v_lshlrev_b32 v{t0}, 2, v{t0}
    v_mov_b32 v{vBk}, 0
    {"" if "novar" in OPT else f"ds_permute_b32 v{vBk}, v{t0}, v{t4}"}
    s_lshl_b32 s{S_D}, s{S_NT}, 4""")
    for c in range(5):
        a(f"    v_cmp_gt_i32 {mask(5+c)}, s{S_D}, v{L}")
        a(f"    s_sub_u32 s{S_D}, s{S_D}, 64")
    a(f"""
    s_cmp_ge_u32 s{S_WAVE}, 4
    s_cbranch_scc1 K_nprep
    v_cvt_f32_u32 v70, s{S_TT}
    v_rcp_f32 v70, v70
    v_add3_u32 v{vP}, v{vS}, v{vP}, -4
    v_lshrrev_b32 v{vS}, 6, v{vS}
    v_lshrrev_b32 v{vP}, 6, v{vP}
    v_cvt_f32_u32 v{vS}, v{vS}
    v_cvt_f32_u32 v{vP}, v{vP}
    v_add_f32 v{vS}, {f32bits((NW-0.5)/NW):#x}, v{vS}
    v_add_f32 v{vP}, {f32bits((NW-0.5)/NW):#x}, v{vP}
    v_mul_f32 v70, {f32bits(NW):#x}, v70
    v_mul_f32 v{vS}, v{vS}, v70
    v_mul_f32 v{vP}, v{vP}, v70
    v_cvt_u32_f32 v{vS}, v{vS}
    v_cvt_u32_f32 v{vP}, v{vP}
    v_sub_u32 v{vP}, v{vP}, v{vS}
    v_add_u32 v{vS}, v{vS}, v{L}
    v_lshl_or_b32 v{vS}, v{vP}, 8, v{vS}
    v_cndmask_b32 v{vS}, {ZROW}, v{vS}, vcc
    v_lshl_or_b32 v{V_CNT}, v{vS}, 16, v{V_CNT}
    v_and_b32 v70, 15, v{L}
    s_lshl_b32 s{S_C}, s{S_WAVE}, 6
    v_lshl_add_u32 v71, v70, 2, s{S_C}
    ds_bpermute_b32 v{E_DEG}, v71, v{V_CNT}
    v_and_b32 v72, 16, v{L}
    v_lshlrev_b32 v72, 2, v72
    v_lshl_add_u32 v72, v{HH}, 5, v72
    v_bfe_u32 v73, v{L}, 2, 2
    v_add_u32 v73, v73, v72
    v_lshlrev_b32 v73, 7, v73
    v_and_b32 v74, 3, v{L}
    v_lshl_add_u32 v73, v74, 4, v73
    v_add_u32 v{E_W2}, {L_W2}, v73
    v_and_b32 v74, 48, v{L}                  ; 16g
    v_add_u32 v{E_B2}, {L_B2}, v74
    s_lshl_b32 s{S_C}, s{S_WAVE}, 12
    s_add_u32 s{S_C}, s{S_C}, {L_QT}
    v_mul_u32_u24 v70, 144, v70
    v_add3_u32 v{E_SW}, v70, v74, s{S_C}
    v_lshrrev_b32 v70, 3, v{L}
    v_add_lshl_u32 v70, v70, v{L}, 4
    v_add_u32 v{E_SR}, s{S_C}, v70
    s_lshl_b32 s{S_C}, s{S_WAVE}, 11
    v_lshl_add_u32 v{E_OUT}, v{L}, 4, s{S_C} ; output byte offset
    v_lshlrev_b32 v72, 2, v72
    v_add_u32 v72, {L_ST}, v72
    v_add_u32 v{E_Z}, {ZROW*ST_STRIDE}, v72
    s_movk_i32 s{S_C}, {ST_STRIDE}
    v_mov_b32 v{E_DEG+1}, {NLN2:#x}
    s_waitcnt lgkmcnt(0)
    v_bfe_u32 v{E_ROW}, v{E_DEG}, 16, 8
    v_lshrrev_b32 v{E_XR}, 24, v{E_DEG}
    v_and_b32 v{E_DEG}, 0xffff, v{E_DEG}
    v_cmp_lt_u32 vcc, 0, v{E_XR}
    v_cvt_f32_u32 v{E_DEG}, v{E_DEG}
    v_mad_u32_u24 v{E_ROW}, v{E_ROW}, s{S_C}, v72
    v_mul_f32 v{E_DEG}, {f32bits(-0.25 * LOG2E):#x}, v{E_DEG}
    v_add_u32 v{E_NX}, {ST_STRIDE}, v{E_ROW}
    v_cndmask_b32 v{E_R2}, v{E_Z}, v{E_NX}, vcc
K_nprep:
    s_waitcnt lgkmcnt(0)
    s_barrier""")
    stamp(a, 11)
    for m in range(4):
        a(f"    ds_read_u16 v{V_IX+2*m}, v{t3} offset:{L_RL + 16*m}")
    for c in range(5):
        a(f"    ds_read_b32 v{vGr+c}, v{t2} offset:{L_RL + 256*c}")
    a(f"""
    s_lshr_b32 s{S_C}, s{S_A}, 1
    s_add_u32 s{S_C}, s{S_C}, {L_IX}
    v_add_u32 v{V_AIDX}, s{S_C}, v{V_AIDX}
    v_lshl_add_u32 v{t0}, v{L}, 1, s{S_C}
    s_mov_b32 s{S_C}, 0x03020302
    s_mov_b32 s{S_D}, 0x8001
    s_waitcnt lgkmcnt(5)""")
    for m in range(4):
        a(f"    v_and_b32 v{V_IX+2*m}, {0xfff if 'cheat1' in OPT or 'cheat2' in OPT else PADREC}, v{V_IX+2*m}")
    for h in dma_ops(): a(h)
    if "st2" in OPT:
        a(f"""
    s_cmp_lt_u32 s{S_WAVE}, 8
    s_cbranch_scc1 K_ns2
    v_add_u32 v{vPf}, 0x100000, v{vPf}
    global_load_dword v{t5}, v{vPf}, {sr(S_WS,2)} sc1
K_ns2:""")
    a(f"    ; this wave's entries -> one-hot word, (e, e), source node")
    a(f"    s_waitcnt lgkmcnt(0)")
    for c in range(5):
        a(f"    v_and_b32 v{vGr+5+c}, 0xc000, v{vGr+c}")
        a(f"    v_perm_b32 v{64+c}, v{vGr+c}, v{vGr+c}, s{S_C}")
        a(f"    v_xor_b32 v{vGr+c}, v{vGr+c}, v{vGr+5+c}")
        a(f"    v_mul_u32_u24 v{vGr+5+c}, s{S_D}, v{vGr+5+c}")
        a(f"    v_and_b32 v{vGr+5+c}, 0x40004000, v{vGr+5+c}")
    for c in range(5):
        a(f"    s_mov_b64 exec, {mask(5+c)}")
        a(f"    ds_write2st64_b32 v{t2}, v{vGr+5+c}, v{64+c} offset0:{L_G//256 + c} offset1:{L_RL//256 + c}")
        a(f"    ds_write_b16 v{t0}, v{vGr+c} offset:{128*c}")
    a(f"""
    s_mov_b64 exec, -1
    s_lshl_b32 s{S_C}, s{S_B}, 9
    s_add_u32 s{S_C}, s{S_C}, {L_QT}
    v_add_u32 v{V_AQ}, s{S_C}, v{t1}
    v_lshrrev_b32 v{t4}, 7, v{V_INCA}
    v_mad_u32_u24 v{V_AENT}, v{t4}, s{S_A}, v{V_AENT}""")
    for h in ent_reads(0) + q_reads() + idx_reads(32): a(h)
    a(f"""
    s_add_u32 s{S_C}, s{S_B}, s{S_SLOT}
    s_mul_i32 s{S_C}, s{S_C}, {ST_STRIDE}
    s_add_u32 s{S_C}, s{S_C}, {L_ST}
    v_add_u32 v{V_AS}, s{S_C}, v{t1}
    v_add_u32 v{V_AQ}, 0x200, v{V_AQ}
    v_and_b32 v{t4}, 1, v{L}
    v_mad_u32_u24 v{t4}, v{t4}, 9, v{vBk}
    v_sub_u32 v{t0}, s{S_NT}, v{L}
    v_mov_b32 v{t3}, {ENTRY}""")
    for i, th in enumerate(thr):
        a(f"    v_cmp_eq_u32 {mask(i)}, {th}, v{t0}")
    a(f"    v_cmp_eq_u32 {mask(3)}, 0, v{t0}")
    a(f"    s_movk_i32 s{S_C}, {VAR_SIZE}")
    for i, th in enumerate(thr):
        a(f"    v_cndmask_b32 v{t3}, v{t3}, {8*i}, {mask(i)}")
    a(f"""
    v_mad_u32_u24 v{t4}, v{t4}, s{S_C}, v{t3}
    v_mov_b32 v{t3}, K_exit - K_vbase
    v_cndmask_b32 v{t4}, v{t4}, v{t3}, {mask(3)}
    ds_bpermute_b32 v{V_TAB}, v{t1}, v{t4} offset:4
    s_mov_b32 s{S_K}, 1
    v_readlane_b32 s{S_J}, v{t4}, 0
    s_setprio 3
    s_waitcnt vmcnt(0)""")
    stamp(a, 12)
    for h in tr_reads(0): a(h)
    a(f"""
    s_add_u32 s{S_J}, s{S_J}, s{S_PC}
    s_addc_u32 s{S_J+1}, s{S_PC+1}, 0
    s_waitcnt lgkmcnt(0)""")
    a(small(0, 0))
    if "cheat2" in OPT:
        for m in range(2): a(f"    v_and_b32 v{V_IX+2*m}, 0xfff, v{V_IX+2*m}")
    for h in dma_ops(): a(h)
    a(small(0, 1))
    a(f"    v_lshl_or_b32 v{V_TAB}, v{V_TAB}, 16, v{t4}")
    if optval("late", "4_6"): a("    s_nop 9")
    stamp(a, 13); stamp(a, 14, True)
    a(f"    s_setpc_b64 {sr(S_J,2)}")
    a(f".p2align 6")
    a(f"K_vbase:")
    for s_ in range(2):
        for b in [None] + list(range(8)):
            tile_variant(a, s_, b)
    a(f".p2align 3")
    a(f"K_exit:")
    stamp(a, 15); stamp(a, 16, True)
    flush1(a)
    a("    s_nop 0")
    flush2(a)
    a(f"""
    v_cmp_eq_f32 vcc, 0, v{V_MN}
    s_cbranch_vccz K_join
    v_mov_b32 v65, {L_FLAG}
    ds_write_b32 v65, v65
K_join:
    s_cmp_ge_u32 s{S_WAVE}, 4
    s_cbranch_scc1 K_idle
    ; (addresses and row numbers were prepared before the loop)""")
    for ot in range(4):
        for ks in range(4):
            for h in range(2):
                a(f"    ds_read_b64_tr_b16 {vr(16*ot+4*ks+2*h,2)}, v{E_W2} offset:{1024*ks+512*h+64*(ot>>1)+8*(ot&1)}")
    a(f"""
    ds_read_b128 v[96:99], v{E_B2}
    ds_read_b128 v[100:103], v{E_B2} offset:64
    s_lshl_b32 s{S_A}, s{S_N0}, 7
    s_add_u32 s{S_RT}, s{S_OUT}, s{S_A}
    s_addc_u32 s{S_RT+1}, s{S_OUT+1}, 0
    s_lshl_b32 s{S_RT+2}, s{S_NN}, 7
    s_mov_b32 s{S_RT+3}, 0x00020000
    s_movk_i32 s{S_C}, 0x207
    s_waitcnt lgkmcnt(0)
    ; accumulators start at -log2(e) * degree * b2""")
    for q in range(8):
        a(f"    v_lshlrev_b32 v{ACC0+2*q}, 16, v{96+q}")
        a(f"    v_and_b32 v{ACC0+1+2*q}, 0xffff0000, v{96+q}")
    for q in range(8):
        a(f"    v_pk_mul_f32 {vr(ACC0+2*q,2)}, {vr(ACC0+2*q,2)}, {vr(E_DEG,2)} op_sel_hi:[1,0]")
    a(f"    s_mov_b32 s{S_A}, 1")
    a(f"    s_barrier")
    stamp(a, 17)
    S0 = 64
    for ks in range(4):
        a(f"    ds_read_b128 {vr(S0+8*ks,4)}, v{E_ROW} offset:{32*ks}")
        a(f"    ds_read_b128 {vr(S0+4+8*ks,4)}, v{E_ROW} offset:{32*ks+16}")
    a(f"K_rows:")
    tmp = [96, 104, 112, 156]
    for ks in range(4):
        a(f"    ds_read_b128 {vr(tmp[ks],4)}, v{E_R2} offset:{32*ks}")
        a(f"    ds_read_b128 {vr(tmp[ks]+4,4)}, v{E_R2} offset:{32*ks+16}")
    a(f"""
    v_cmp_lt_u32 vcc, s{S_A}, v{E_XR}
    v_add_u32 v{E_NX}, {ST_STRIDE}, v{E_NX}
    s_add_u32 s{S_A}, s{S_A}, 1""")
    for ks in range(4):
        a(f"    s_waitcnt lgkmcnt({6-2*ks})")
        for q in range(4):
            a(f"    v_pk_add_f32 {vr(S0+8*ks+2*q,2)}, {vr(S0+8*ks+2*q,2)}, {vr(tmp[ks]+2*q,2)}")
    a(f"""
    v_cndmask_b32 v{E_R2}, v{E_Z}, v{E_NX}, vcc
    s_cbranch_vccnz K_rows""")
    def cv(ks):
        for q in range(4):
            a(f"    v_cvt_pk_bf16_f32 v{96+4*ks+q}, v{S0+8*ks+2*q}, v{S0+1+8*ks+2*q}")
    cv(0); cv(1)
    for ks in range(4):
        for ot in range(4):
            d = vr(ACC0 + 4*ot, 4)
            a(f"    v_mfma_f32_16x16x32_bf16 {d}, {vr(16*ot+4*ks,4)}, {vr(96+4*ks,4)}, {d}")
        if ks < 2: cv(ks + 2)
    a("    s_nop 4")
    for q in range(8):
        a(f"    v_pk_mul_f32 {vr(64+2*q,2)}, {vr(ACC0+2*q,2)}, {vr(E_DEG,2)} op_sel:[0,1]")
    for q in range(8):
        a(f"    v_cvt_pk_bf16_f32 v{80+q}, v{64+2*q}, v{65+2*q}")
    a(f"""
    ds_write_b128 v{E_SW}, v[80:83]
    ds_write_b128 v{E_SW}, v[84:87] offset:64
    ds_read_b128 v[88:91], v{E_SR}
    ds_read_b128 v[92:95], v{E_SR} offset:{8*144}
    v_cmp_class_f32 vcc, v64, s{S_C}
    s_waitcnt lgkmcnt(1)
    buffer_store_dwordx4 v[88:91], v{E_OUT}, {sr(S_RT,4)}, 0 offen sc1
    s_waitcnt lgkmcnt(0)
    buffer_store_dwordx4 v[92:95], v{E_OUT}, {sr(S_RT,4)}, 0 offen offset:1024 sc1
    s_cbranch_vccz K_fin
    v_mov_b32 v65, {L_FLAG}
    ds_write_b32 v65, v65
    s_branch K_fin
K_idle:
    s_waitcnt lgkmcnt(0)
    s_barrier                                ; B9
K_fin:
    v_mov_b32 v65, {L_FLAG}
    s_waitcnt lgkmcnt(0)
    s_barrier                                ; B10
    ds_read_b32 v64, v65
    s_waitcnt lgkmcnt(0)
    v_cmp_ne_u32 vcc, 0, v64
    {"" if "novar" in OPT or "nodma" in OPT else "s_cbranch_vccnz K_slow"}""")
    if DIAG:
        a("    s_waitcnt vmcnt(0)")
        stamp(a, 18); stamp(a, 19, True)
        a(f"""
    v_writelane_b32 v{V_STAMP}, s{S_NT}, 21
    s_lshl_b32 s{S_A}, s2, 4
    s_add_u32 s{S_A}, s{S_A}, s{S_WAVE}
    s_lshl_b32 s{S_A}, s{S_A}, 8
    s_add_u32 s{S_A}, s{S_A}, {WS_STAMP}
    v_lshl_add_u32 v64, v{L}, 2, s{S_A}
    s_mov_b64 exec, 0xffffffff
    global_store_dword v64, v{V_STAMP}, {sr(S_WS,2)}
    global_store_dword v64, v{V_TRACE}, {sr(S_WS,2)} offset:128""")
    if optval("fix", "") != "":
        a(f"""
    s_lshl_b32 s{S_A}, s2, 4
    s_add_u32 s{S_A}, s{S_A}, s{S_WAVE}
    s_cmp_lg_u32 s{S_A}, 1600
    s_cbranch_scc1 K_end
    s_lshl_b32 s{S_A}, s{S_TAG+1}, 7
    s_lshr_b32 s{S_B}, s{S_TAG}, 25
    s_or_b32 s{S_A}, s{S_A}, s{S_B}
K_spin3:
    s_memrealtime s[98:99]
    s_waitcnt lgkmcnt(0)
    s_sub_u32 s98, s98, s{S_A}
    s_cmp_lt_u32 s98, {optval("fix", "")}
    s_cbranch_scc1 K_spin3""")
    if optval("amp", "") != "":
        a(f"""
    s_waitcnt vmcnt(0)
    s_cmp_lg_u32 s{S_WAVE}, 0
    s_cbranch_scc1 K_end
    s_lshl_b32 s{S_A}, s{S_TAG+1}, 7
    s_lshr_b32 s{S_B}, s{S_TAG}, 25
    s_or_b32 s{S_A}, s{S_A}, s{S_B}""")
        if optval("amp", "") == "99":
            a("    s_memrealtime s[98:99]\n    s_waitcnt lgkmcnt(0)")
        a(f"""
    s_sub_u32 s{S_B}, s98, s{S_A}
    s_mov_b64 exec, 1
    v_mov_b32 v64, 0
    v_mov_b32 v65, s{S_B}
    v_mov_b32 v66, 1
    global_atomic_{"add" if "avg" in OPT else "umax"} v64, v65, {sr(S_DBG,2)} offset:128 sc1
    s_waitcnt vmcnt(0)
    global_atomic_add v67, v64, v66, {sr(S_DBG,2)} offset:136 sc0 sc1
    s_waitcnt vmcnt(0)
    v_readfirstlane_b32 s{S_B}, v67
    s_cmp_lg_u32 s{S_B}, 255
    s_cbranch_scc1 K_end
    global_atomic_add v67, v64, v64, {sr(S_DBG,2)} offset:128 sc0 sc1
    s_waitcnt vmcnt(0)
    v_readfirstlane_b32 s{S_B}, v67
    s_mul_i32 s{S_B}, s{S_B}, {optval("mul", "5")}
    {f"s_lshr_b32 s{S_B}, s{S_B}, 8" if "avg" in OPT else ""}
    s_min_u32 s{S_B}, s{S_B}, 200000
    s_add_u32 s{S_B}, s{S_B}, {optval("base", "0")}
K_spin2:
    s_memrealtime s[98:99]
    s_waitcnt lgkmcnt(0)
    s_sub_u32 s98, s98, s{S_A}
    s_cmp_lt_u32 s98, s{S_B}
    s_cbranch_scc1 K_spin2""")
    a(f"""
K_end:
    s_endpgm
K_slow:
    ; ================= exact path without hand-offs: scan all edges for this bin
    s_setprio 0
    s_mov_b32 s16, s{S_N0}
    s_mov_b32 s17, s{S_NN}
    s_mov_b32 s18, s{S_WAVE}""")
    gen_slow(a, 16, 17, 18, L, NLOG2E, NW=NW)
    a("    s_endpgm")

def main():
    global DIAG
    out = sys.argv[1]
    DIAG = "diag" in sys.argv[2:]
    OPT.update(sys.argv[2:])
    a = Asm()
    a(f"""; Edge-featured MPNN layer: out[n] = sum_(e: dst=n) (silu([x[src],x[dst],e] w1 + b1) w2 + b2)
; @launch grid=(256,1,1) block=({NT_},1,1) lds={L_END}
.amdgcn_target "amdgcn-amd-amdhsa--gfx950"
.text""")
    gen_kernel(a)
    a(f"""
.section .rodata,"a"
.p2align 6
.amdhsa_kernel {KNAME}
  .amdhsa_next_free_vgpr {NVGPR}
  .amdhsa_next_free_sgpr 102
  .amdhsa_accum_offset {NVGPR}
  .amdhsa_group_segment_fixed_size 0
  .amdhsa_kernarg_size 88
  .amdhsa_user_sgpr_count 2
  .amdhsa_user_sgpr_kernarg_segment_ptr 1
  .amdhsa_system_sgpr_workgroup_id_x 1
  .amdhsa_float_denorm_mode_32 3
.end_amdhsa_kernel""")
    open(out, "w").write(a.text())

if __name__ == "__main__":
    main()
```

```python
import sys, struct
from slow import gen_slow

NAME = "standalone__edge_featured_mpnn_mpnn__graph"
KNAME = NAME + "_kernel"
N_NODES = 12500
NB = 49
NW = 12
NT_ = 64 * NW
MAINE = 4 * NT_
XTRA = 53
RSTRIDE = 16640

WS_TAB = 0x420000
WS_P = 0x4C0000
WS_STAMP = 0xA00000

L_Z = 128
L_H2 = 272
L_FLAG = 536
L_NONCE = 544
L_SX = 1296
ENT_CAP = 3472
LSZ = 14080
L_ZA = 4096 - 144
L_G = 4096
L_RL = L_G + LSZ
L_ST = L_RL + LSZ
ST_STRIDE = 528
ZROW = NB + NW
L_IX = L_ST + (ZROW + 1) * ST_STRIDE
L_QT = (L_IX + LSZ // 2 + 255) // 256 * 256 + 512
L_XS = L_QT + 49 * 512
assert LSZ % 256 == 0 and (ENT_CAP + 48) * 4 == LSZ
L_W2 = L_XS + NW * 4096
L_B2 = L_W2 + 16384
L_END = L_B2 + 256
L_RS = L_ST
L_H1 = L_ST + 16640
L_OFF = L_H1 + 1024
L_W1 = L_XS
L_WC = L_XS + 32768
L_PS = L_WC + 512
L_XR = L_W2
PS_STRIDE = 272
assert L_XS % 256 == 0 and L_END <= 163840
assert L_H1 + 3072 <= L_ST + ZROW * ST_STRIDE and L_OFF + 1024 < 65536 and L_PS + 56 * PS_STRIDE <= L_W2

def f32bits(x):
    return struct.unpack("<I", struct.pack("<f", x))[0]
LOG2E = 1.4426950408889634
NLOG2E = f32bits(-LOG2E)
NLN2 = f32bits(-0.6931471805599453)
PADREC = 0x3FFF
POLL_MAX = 4000

class Asm:
    def __init__(self):
        self.l = []
    def __call__(self, s=""):
        for x in s.strip("\n").split("\n"):
            if x.strip():
                self.l.append(x.rstrip())
    def text(self):
        return "\n".join(self.l) + "\n"

def vr(a, n=1):
    return f"v{a}" if n == 1 else f"v[{a}:{a+n-1}]"
def sr(a, n=1):
    return f"s{a}" if n == 1 else f"s[{a}:{a+n-1}]"

DIAG = False
OPT = set()
def optval(prefix, default):
    for o in OPT:
        if o.startswith(prefix):
            return o[len(prefix):]
    return default

V_D = 0; V_E = 64; V_A5 = 96; V_B5 = 98; V_ND = 102; V_T = 110; V_R = 114; V_O = 118; V_IX = 132
V_AA = 140; V_AIDX = 141; V_AENT = 142; V_AQ = 143; V_INCA = 144; V_AS = 145; V_MN = 146; V_PSEL = 147
V_PF = 126; V_TAB = 148; V_CNT = 149; V_S = 150; V_P = 151; V_LANE = 154; V_TID = 155
V_J = 156; V_HH = 157
E_W2 = 122; E_B2 = 123; E_ROW = 124; E_XR = 125; E_Z = 128; E_NX = 129; E_R2 = 130; E_SW = 131; E_SR = 148 + 2; E_OUT = 151; E_DEG = 152
ACC0 = 132
V_STAMP = 167; V_TRACE = 166
NVGPR = 168
S_X = 4; S_E = 6; S_SRC = 8; S_DST = 10; S_W1 = 12; S_B1 = 14; S_W2 = 16; S_B2 = 18; S_OUT = 20; S_DBG = 22; S_WS = 24
S_BIN = 26; S_N0 = 27; S_NN = 28; S_WAVE = 29; S_MODE = 30; S_K = 31; S_PC = 32; S_J = 34
S_RX = 36; S_RT = 40; S_RR = 44; S_P = 48; S_JJ = 52
S_T0 = 56; S_NT = 57; S_TT = 58; S_SLOT = 59; S_A = 60; S_B = 61; S_C = 62; S_D = 63; S_TAG = 64
S_M = 66
def mask(k): return sr(S_M + 2*k, 2)

def stamp(a, k, real=False):
    if "endamp" in OPT:
        if k == 17: a("    s_memrealtime s[98:99]\n    s_waitcnt lgkmcnt(0)")
        return
    if optval("amp", "") != "":
        if int(optval("amp", "")) == k:
            a("    s_memrealtime s[98:99]\n    s_waitcnt lgkmcnt(0)")
        return
    if not DIAG:
        return
    a(f"    {'s_memrealtime' if real else 's_memtime'} s[100:101]")
    a(f"    s_waitcnt lgkmcnt(0)")
    a(f"    v_writelane_b32 v{V_STAMP}, s100, {k}")

def wave_scan(a, v):
    for sh in (1, 2, 4, 8):
        a(f"    s_nop 1")
        a(f"    v_add_u32_dpp v{v}, v{v}, v{v} row_shr:{sh} row_mask:0xf bank_mask:0xf")
    a(f"    s_nop 1")
    a(f"    v_add_u32_dpp v{v}, v{v}, v{v} row_bcast:15 row_mask:0xa bank_mask:0xf")
    a(f"    s_nop 1")
    a(f"    v_add_u32_dpp v{v}, v{v}, v{v} row_bcast:31 row_mask:0xc bank_mask:0xf")

SD = "dst_sel:DWORD dst_unused:UNUSED_PAD"

def dreg(s, c): return V_D + 32*s + 16*c
def small(s, c):
    d = vr(dreg(s, c), 16)
    return f"    v_mfma_f32_32x32x8_bf16 {d}, {vr(V_A5,2)}, {vr(V_B5+2*c,2)}, {d}"
def tr_reads(s):
    return [f"    ds_read_b64_tr_b16 {vr(dreg(s,c)+2*u,2)}, v{V_AA} offset:{512*u+128*c}" for u in range(8) for c in range(2)]
def ent_reads(off):
    return [f"    ds_read_b32 v{V_A5}, v{V_AENT} offset:{off}",
            f"    ds_read_b32 v{V_A5+1}, v{V_AENT} offset:{off + L_RL - L_G}"]
def q_reads():
    return [f"    ds_read_b32 v{V_B5+2*c}, v{V_AQ} offset:{256*c}" for c in range(2)]
def idx_reads(off):
    return [f"    ds_read_u16 v{V_IX+2*m}, v{V_AIDX} offset:{off + 8*m}" for m in range(4)]
def dma_ops():
    if "nodma" in OPT: return []
    return [f"    buffer_load_dwordx4 {vr(V_IX+2*m,2)}, {sr(S_RX,4)}, s{S_P+m} idxen offen offset:{1024*m} sc1 lds" for m in range(4)]

def flush1(a):
    for c in range(2):
        D = V_ND + 4*c + 2
        a(f"    v_rcp_f32 v{V_R+2*c}, v{D}")
        a(f"    v_rcp_f32 v{V_R+2*c+1}, v{D+1}")
def flush2(a):
    for c in range(2):
        a(f"    v_pk_mul_f32 {vr(V_O+2*c,2)}, {vr(V_ND+4*c,2)}, {vr(V_R+2*c,2)}")
    for c in range(2):
        a(f"    v_min3_f32 v{V_MN}, v{V_MN}, v{V_R+2*c}, v{V_R+2*c+1}")
    for c in range(2):
        a(f"    v_add_f32 v{V_O+2*c}, v{V_O+2*c}, v{V_O+2*c+1}")
    a(f"    ds_write2st64_b32 v{V_AS}, v{V_O}, v{V_O+2} offset0:0 offset1:1")

def y_phase(a, s, b, us=range(8), nsrc=None):
    if nsrc is None: nsrc = [V_ND + 4*c for c in range(2)]
    a(".p2align 3")
    for u in us:
        if u == b:
            flush1(a)
            for c in range(2):
                a(f"    v_pk_add_f32 {vr(V_ND+4*c+2,2)}, {vr(V_E+16*c+2*u,2)}, 1.0 op_sel_hi:[1,0]")
            flush2(a)
            for c in range(2):
                p = dreg(s, c) + 2*u
                if u == 7:
                    a(f"    v_pk_mov_b32 {vr(V_ND+4*c,2)}, {vr(p,2)}, {vr(p,2)} op_sel:[0,1]")
                else:
                    nsrc[c] = p
            continue
        for c in range(2):
            a(f"    v_pk_fma_f32 {vr(V_T+2*c,2)}, {vr(dreg(s,c)+2*u,2)}, {vr(V_ND+4*c+2,2)}, {vr(nsrc[c],2)}")
        for c in range(2):
            D = V_ND + 4*c + 2
            a(f"    v_pk_fma_f32 {vr(D,2)}, {vr(D,2)}, {vr(V_E+16*c+2*u,2)}, {vr(D,2)}")
        for c in range(2):
            a(f"    v_pk_fma_f32 {vr(V_ND+4*c,2)}, {vr(nsrc[c],2)}, {vr(V_E+16*c+2*u,2)}, {vr(V_T+2*c,2)}")
            nsrc[c] = V_ND + 4*c

VAR_SIZE = 960
ENTRY = 24
def tile_variant(a, s, b):
    name = f"{s}{'N' if b is None else b}"
    vi = 9*s + (0 if b is None else b + 1)
    a(f".org K_vbase + {VAR_SIZE*vi}, 0")
    a(f"    s_setprio 2\n    s_branch K_var{name}\n    s_setprio 1\n    s_branch K_var{name}\n    s_setprio 0")
    a(f"    s_nop 0")
    a(f"K_var{name}:")
    bnd = b is not None
    if "trace" in OPT and s == 0:
        a(f"    s_memtime s[100:101]\n    s_mov_b32 s{S_A}, m0\n    s_mov_b32 m0, s{S_K}\n    s_waitcnt lgkmcnt(0)")
        a(f"    v_writelane_b32 v{V_TRACE}, s100, m0\n    s_mov_b32 m0, s{S_A}")
    es = [f"    v_exp_f32 v{V_E+16*c+2*u+h}, v{dreg(s,c)+2*u+h}" for u in range(8) for c in range(2) for h in range(2)]
    head = ent_reads(64 + 64*s) + (q_reads() if bnd else []) + tr_reads(s ^ 1) + idx_reads(64 + 32*s)
    plain = [f"    v_readlane_b32 s{S_JJ}, v{V_TAB}, s{S_K}"] if s == 0 else \
            [f"    v_add_u32 v{V_AENT}, v{V_INCA}, v{V_AENT}", f"    v_add_u32 v{V_AIDX}, 64, v{V_AIDX}"]
    if bnd: plain.append(f"    v_add_u32 v{V_AQ}, 0x200, v{V_AQ}")
    jump = [f"    s_and_b32 s{S_J}, s{S_JJ}, 0xffff", f"    s_add_u32 s{S_K}, s{S_K}, 2"] if s == 0 else [f"    s_lshr_b32 s{S_J}, s{S_JJ}, 16"]
    jump += [f"    s_add_u32 s{S_J}, s{S_J}, s{S_PC}", f"    s_addc_u32 s{S_J+1}, s{S_PC+1}, 0"]
    late = optval("late", "4_6")
    if late:
        ua, ub = [int(x) for x in late.split("_")]
        for e in es[:4*ub]: a(e)
        nsrc = [V_ND + 4*c for c in range(2)]
        y_phase(a, s, b, range(0, ua), nsrc)
        a("    s_waitcnt vmcnt(0)")
        for h in head: a(h)
        y_phase(a, s, b, range(ua, ub), nsrc)
        a(f"    s_waitcnt lgkmcnt(0)")
        for h in dma_ops(): a(h)
        a(small(s ^ 1, 0))
        for e in es[4*ub:4*ub+4]: a(e)
        a(small(s ^ 1, 1))
        for e in es[4*ub+4:]: a(e)
        for p_ in plain + jump: a(p_)
        y_phase(a, s, b, range(ub, 8), nsrc)
    else:
        n1 = int(optval("n1_", "16"))
        a("    s_waitcnt vmcnt(0)")
        for h in head: a(h)
        for e in es[:n1-2]: a(e)
        for p_ in plain: a(p_)
        for e in es[n1-2:n1]: a(e)
        a(f"    s_waitcnt lgkmcnt(0)")
        for h in dma_ops(): a(h)
        a(small(s ^ 1, 0))
        for e in es[n1:n1+4]: a(e)
        a(small(s ^ 1, 1))
        for e in es[n1+4:]: a(e)
        for p_ in jump: a(p_)
        y_phase(a, s, b)
    if bnd:
        a(f"    v_add_u32 v{V_AS}, {ST_STRIDE}, v{V_AS}")
    a(f"    s_setpc_b64 {sr(S_J,2)}")

def gen_kernel(a):
    L = V_LANE; T = V_TID; J = V_J; HH = V_HH
    t0, t1, t2, t3, t4, t5 = 158, 159, 160, 161, 162, 163
    step = NT_ * 16
    vDst = 0
    vSrc = 8
    vEa = 14
    tc = 17
    vTg = 18
    vBa = 20
    vRk = 26
    vWp = 31
    vOf = 32
    vC8 = 37; vWa = 38; vTa = 39
    vX = 40
    vWf = 56
    vPad = 56
    vAc = 72
    vTb = 88
    vXa = 88
    vB1 = 96
    vCl = 120
    v4k = 125
    vPf = 126
    vZ = 128
    vG4 = 164; vSb = 165
    vS = V_S; vP = V_P
    a(f"""
.p2align 8
.globl {KNAME}
.type {KNAME},@function
{KNAME}:
    s_cmp_ge_u32 s2, 256
    s_cbranch_scc1 K_end
    s_load_dwordx8 s[4:11], s[0:1], 0
    s_load_dwordx8 s[12:19], s[0:1], 32      ; w1, b1, w2, b2
    s_load_dwordx4 s[20:23], s[0:1], 64
    s_load_dwordx2 s[24:25], s[0:1], 80      ; ws
    s_memrealtime {sr(S_TAG,2)}
    v_lshrrev_b32 v1, 6, v0
    v_mov_b32 v{T}, v0
    v_readfirstlane_b32 s{S_WAVE}, v1
    v_and_b32 v{L}, 63, v0
    s_mul_i32 s3, s2, {MAINE*4}
    v_lshl_add_u32 v{t0}, v0, 4, s3          ; byte offset into src/dst
    v_lshrrev_b32 v{t1}, 1, v{t0}
    s_and_b32 s{S_BIN}, s2, 7
    s_lshl_b32 s{S_BIN}, s{S_BIN}, 5
    s_lshr_b32 s3, s2, 3
    s_add_u32 s{S_BIN}, s{S_BIN}, s3
    s_mul_i32 s{S_N0}, s{S_BIN}, {NB}
    s_sub_u32 s{S_NN}, {N_NODES}, s{S_N0}
    s_min_u32 s{S_NN}, s{S_NN}, {NB}
    v_and_b32 v{J}, 31, v0
    v_bfe_u32 v{HH}, v0, 5, 1
    s_mov_b32 s{S_MODE}, 0
    v_mov_b32 v{vZ}, 0
    v_mov_b32 v{vZ+1}, 0
    v_mov_b32 v{vZ+2}, 0
    v_mov_b32 v{vZ+3}, 0
    v_lshlrev_b32 v{t2}, 2, v0""")
    if DIAG:
        a(f"    v_mov_b32 v{V_STAMP}, 0\n    v_mov_b32 v{V_TRACE}, 0")
        stamp(a, 0, True); stamp(a, 1)
    a(f"""
    s_waitcnt lgkmcnt(0)
    global_load_dwordx4 {vr(vDst,4)}, v{t0}, {sr(S_DST,2)}
    ds_write_b32 v{t2}, v{vZ} offset:{L_H1}
    s_cmp_lg_u32 s{S_WAVE}, 11
    s_cbranch_scc1 K_ld1
    s_mul_i32 s{S_A}, s2, {XTRA}
    s_add_u32 s{S_A}, s{S_A}, {256*MAINE}
    v_min_u32 v{t5}, {XTRA-1}, v{L}
    v_add_lshl_u32 v{t5}, v{t5}, s{S_A}, 2
    v_lshrrev_b32 v{t4}, 1, v{t5}
    global_load_dword v{vDst+4}, v{t5}, {sr(S_DST,2)}
    global_load_dword v{vSrc+4}, v{t5}, {sr(S_SRC,2)}
    global_load_ushort v{vEa+2}, v{t4}, {sr(S_E,2)}
K_ld1:
    s_cmp_ge_u32 s2, 32
    s_cbranch_scc1 K_ldJ
    s_sub_u32 s{S_A}, s{S_WAVE}, 5
    s_cmp_ge_u32 s{S_A}, 3
    s_cbranch_scc1 K_ld2
    s_lshl_b32 s{S_A}, s{S_A}, 13
    v_lshl_add_u32 v{t5}, v{L}, 7, s{S_A}
    s_getpc_b64 {sr(S_J,2)}
    global_load_dword v{t4}, v{t5}, {sr(S_J,2)} offset:1024
K_ld2:
    s_lshl_b32 s{S_A}, s2, 4
    s_add_u32 s{S_A}, s{S_A}, s{S_WAVE}
    s_cmp_lg_u32 s{S_A}, 9
    s_cbranch_scc1 K_ldJ
    s_lshl_b32 s{S_A}, s{S_TAG}, 25
    s_or_b32 s{S_A}, s{S_A}, 1
    s_lshr_b64 {sr(S_TAG,2)}, {sr(S_TAG,2)}, 7
    v_mov_b32 v{t4}, s{S_A}
    v_mov_b32 v{t4+1}, s{S_TAG}
    s_mov_b64 exec, 1
    global_store_dwordx2 v{vZ}, {vr(t4,2)}, {sr(S_DBG,2)} sc1
    s_mov_b64 exec, -1
K_ldJ:
    s_lshl_b32 s{S_A}, s{S_WAVE}, 11
    s_cmp_ge_u32 s{S_WAVE}, 8
    s_cbranch_scc1 K_stX
    s_add_u32 m0, s{S_A}, {L_W1}
    v_lshrrev_b32 v{t3}, 2, v{L}
    v_and_b32 v{t3}, 12, v{t3}
    v_xor_b32 v{t3}, v{t3}, v{L}
    v_lshl_add_u32 v{t5}, v{t3}, 4, s{S_A}
    global_load_lds_dwordx4 v{t5}, {sr(S_W1,2)}
    global_load_lds_dwordx4 v{t5}, {sr(S_W1,2)} offset:1024
    s_branch K_stJ
K_stX:
    s_mov_b32 s{S_RX}, s4
    s_mov_b32 s{S_RX+1}, s5
    s_mov_b32 s{S_RX+2}, {N_NODES*128}
    s_mov_b32 s{S_RX+3}, 0x00020000
    s_add_u32 m0, s{S_A}, {L_XR - 16384}
    s_lshl_b32 s{S_B}, s{S_N0}, 7
    s_add_u32 s{S_A}, s{S_A}, s{S_B}
    s_sub_u32 s{S_A}, s{S_A}, 16384
    v_lshrrev_b32 v{t3}, 4, v{L}
    v_xor_b32 v{t3}, v{t3}, v{L}
    v_lshl_add_u32 v{t3}, v{t3}, 4, s{S_A}
    v_xor_b32 v{t5}, 64, v{t3}
    buffer_load_dwordx4 v{t3}, {sr(S_RX,4)}, 0 offen lds
    buffer_load_dwordx4 v{t5}, {sr(S_RX,4)}, 0 offen offset:1024 lds
K_stJ:
    s_waitcnt lgkmcnt(0)
    s_barrier
    v_mov_b32 v{vPad}, {PADREC}
    v_mov_b32 v{vPad+1}, {PADREC}
    v_mov_b32 v{vPad+2}, {PADREC}
    v_mov_b32 v{vPad+3}, {PADREC}
    v_lshlrev_b32 v{t2}, 4, v{T}
    ds_write_b128 v{t2}, {vr(vPad,4)} offset:{L_RL}
    s_cmp_ge_u32 s{S_WAVE}, 4
    s_cbranch_scc1 K_in1
    ds_write_b128 v{t2}, {vr(vZ,4)}
    ds_write_b128 v{t2}, {vr(vPad,4)} offset:{L_ST - 4096}
K_in1:
    s_cmp_lg_u32 s{S_WAVE}, 4
    s_cbranch_scc1 K_in2
    v_lshlrev_b32 v{t3}, 3, v{L}
    v_add_u32 v{t3}, {L_ST + ZROW*ST_STRIDE}, v{t3}
    ds_write_b64 v{t3}, {vr(vZ,2)}
    v_lshlrev_b32 v{t3}, 2, v{L}
    ds_write_b32 v{t3}, v{vZ} offset:{L_RL - 256}
K_in2:
    global_load_dwordx4 {vr(vSrc,4)}, v{t0}, {sr(S_SRC,2)}
    global_load_dwordx2 {vr(vEa,2)}, v{t1}, {sr(S_E,2)}
    s_cmp_ge_u32 s{S_WAVE}, 8
    s_cbranch_scc1 K_st2
    s_add_u32 m0, m0, 16384
    v_add_u32 v{t5}, 0x4000, v{t5}
    global_load_lds_dwordx4 v{t5}, {sr(S_W1,2)}
    global_load_lds_dwordx4 v{t5}, {sr(S_W1,2)} offset:1024
    s_branch K_st3
K_st2:
    s_mov_b32 m0, {L_WC}
    v_lshlrev_b32 v{t3}, 2, v{L}
    v_add_u32 v{t4}, 0x8000, v{t3}
    global_load_lds_dword v{t4}, {sr(S_W1,2)}
    s_mov_b32 m0, {L_WC + 256}
    s_nop 0
    global_load_lds_dword v{t3}, {sr(S_B1,2)}
K_st3:
    v_and_b32 v{vC8}, 3, v{L}
    v_lshlrev_b32 v{vC8}, 3, v{vC8}
    v_and_b32 v{t1}, 16, v{L}
    v_lshl_add_u32 v{vC8}, v{t1}, 1, v{vC8}  ; 8c + 32(g&1)
    s_lshr_b32 s{S_D}, s{S_WAVE}, 1          ; ct
    v_bfe_u32 v{t0}, v{L}, 2, 2
    v_xor_b32 v{t3}, s{S_D}, v{t0}
    v_lshlrev_b32 v{t3}, 6, v{t3}
    v_lshl_add_u32 v{t0}, v{HH}, 3, v{t0}
    v_lshl_add_u32 v{t0}, v{t0}, 8, v{t3}
    v_add_u32 v{vWa}, {L_W1}, v{t0}
    v_and_b32 v{vWp}, 1, v{L}
    v_lshl_add_u32 v{vWp}, v{vWp}, 5, v{vWa}
    v_and_b32 v{t3}, 16, v{L}
    v_add_u32 v{vWp}, v{vWp}, v{t3}
    v_and_b32 v{t3}, 2, v{L}
    v_lshl_add_u32 v{vWp}, v{t3}, 2, v{vWp}  ; + 16(c&1) + 4(2(g&1) + (c>>1)) columns
    s_and_b32 s{S_A}, s{S_WAVE}, 1
    s_lshl_b32 s{S_A}, s{S_A}, 12
    s_add_u32 s{S_A}, s{S_A}, {L_XR}
    v_bfe_u32 v{t3}, v{L}, 1, 3
    v_xor_b32 v{t3}, v{t3}, v{HH}
    v_lshl_add_u32 v{t3}, v{t3}, 4, s{S_A}
    v_lshl_add_u32 v{vXa}, v{J}, 7, v{t3}
    v_xor_b32 v{vXa+1}, 32, v{vXa}
    v_xor_b32 v{vXa+2}, 64, v{vXa}
    v_xor_b32 v{vXa+3}, 0x60, v{vXa}
    s_mov_b32 s{S_A}, 21400
    s_mov_b32 s{S_B}, -{NB}
    s_mov_b32 s{S_C}, 0xffff0000
    v_mov_b32 v{t5}, 0x10004
    v_mov_b32 v{vBa+4}, 0
    v_mov_b32 v{v4k}, 0x4000
    s_waitcnt vmcnt(6)
    s_cmp_lg_u32 s{S_WAVE}, 11
    s_cbranch_scc1 K_wJ
    s_bfm_b64 exec, {XTRA}, 0""")
    assert L_ST - L_RL <= step + 4096
    def binops(cols):
        for i in cols: a(f"    v_mul_u32_u24 v{vBa+i}, s{S_A}, v{vDst+i}")
        for i in cols: a(f"    v_lshrrev_b32 v{vBa+i}, 18, v{vBa+i}")
        for i in cols:
            a(f"    v_and_b32 v{vBa+i}, 0x3fc, v{vBa+i}")
            a(f"    ds_add_rtn_u32 v{vRk+i}, v{vBa+i}, v{t5} offset:{L_H1}")
        for i in cols: a(f"    v_lshlrev_b32 v{vDst+i}, 2, v{vDst+i}")
        for i in cols: a(f"    v_mad_i32_i24 v{vDst+i}, v{vBa+i}, s{S_B}, v{vDst+i}")
        for i in cols: a(f"    v_bfe_u32 v{vCl+i}, v{vDst+i}, 2, 1")
    binops([4])
    a(f"""
    s_mov_b64 exec, -1
K_wJ:""")
    stamp(a, 2)
    binops(range(4))
    a(f"""
    s_waitcnt vmcnt(4) lgkmcnt(0)
    s_barrier""")
    stamp(a, 3)
    a(f"""
    s_cmp_eq_u32 s{S_WAVE}, 8
    s_cbranch_scc1 K_scan1
    s_cmp_gt_u32 s{S_WAVE}, 8
    s_cbranch_scc1 K_notP
    ; ---- waves 0..7: P^T tile = -log2(e) * (x w1[0:64])^T""")
    for s_ in range(4):
        a(f"    ds_read_b128 {vr(vX+4*s_,4)}, v{vXa+s_}")
        for h in range(2):
            a(f"    ds_read_b64_tr_b16 {vr(vWf+4*s_+2*h,2)}, v{vWp} offset:{4096*s_+1024*h}")
    for s_ in range(4):
        a(f"    s_waitcnt lgkmcnt({9-3*s_})")
        cin = "0" if s_ == 0 else vr(vAc, 16)
        a(f"    v_mfma_f32_32x32x16_bf16 {vr(vAc,16)}, {vr(vWf+4*s_,4)}, {vr(vX+4*s_,4)}, {cin}")
    a(f"""
    s_and_b32 s{S_B}, s{S_WAVE}, 1
    s_mul_i32 s{S_A}, s{S_B}, {32*PS_STRIDE}
    s_lshl_b32 s{S_B}, s{S_D}, 6
    s_add_u32 s{S_A}, s{S_A}, s{S_B}
    s_add_u32 s{S_A}, s{S_A}, {L_PS}
    v_mul_u32_u24 v{t3}, {PS_STRIDE}, v{J}
    v_lshl_add_u32 v{t3}, v{HH}, 5, v{t3}
    v_add_u32 v{t3}, s{S_A}, v{t3}
    v_mov_b32 v{t4}, {NLOG2E:#x}
    v_cmp_gt_u32 vcc, {L_PS + 56*PS_STRIDE}, v{t3}
    s_nop 1""")
    for q in range(8):
        a(f"    v_pk_mul_f32 {vr(vAc+2*q,2)}, {vr(vAc+2*q,2)}, {vr(t4,2)} op_sel_hi:[1,0]")
    for q in range(8):
        a(f"    v_cvt_pk_bf16_f32 v{vAc+q}, v{vAc+2*q}, v{vAc+2*q+1}")
    a(f"""
    s_mov_b64 exec, vcc
    ds_write_b128 v{t3}, {vr(vAc,4)}
    ds_write_b128 v{t3}, {vr(vAc+4,4)} offset:16
    s_mov_b64 exec, -1
    s_branch K_b3
K_notP:
    v_lshlrev_b32 v{t1}, 4, v{L}
    v_add_u32 v{t4}, {L_PS + 48*PS_STRIDE}, v{t1}
    v_add_u32 v{t1}, {48*256}, v{t1}
    s_branch K_b3
K_scan1:
    ; ---- wave 8: segment offsets; a segment is n records (4 bytes) followed by n node bytes, padded to 4
    s_setprio 2
    global_load_dwordx2 {vr(vTg,2)}, v{vZ}, {sr(S_DBG,2)}
    v_lshlrev_b32 v{t0}, 4, v{L}
    ds_read_b128 v[56:59], v{t0} offset:{L_H1}
    s_waitcnt lgkmcnt(0)""")
    for i in range(4):
        a(f"    v_lshrrev_b32 v{60+i}, 16, v{56+i}")
    for i in range(4):
        a(f"    v_mad_u32_u24 v{64+i}, v{60+i}, 5, 3")
    for i in range(4):
        a(f"    v_and_b32 v{64+i}, -4, v{64+i}")
    a(f"""
    v_add_u32 v65, v64, v65
    v_add_u32 v66, v65, v66
    v_add_u32 v67, v66, v67
    v_mov_b32 v68, v67""")
    wave_scan(a, 68)
    a(f"""
    v_sub_u32 v68, v68, v67
    v_add_u32 v69, v68, v64
    v_add_u32 v70, v68, v65
    v_add_u32 v71, v68, v66
    s_mov_b32 s{S_A}, 0x10001""")
    for i in range(4):
        a(f"    v_mul_u32_u24 v{64+i}, s{S_A}, v{68+i}")
    for i in range(4):
        a(f"    v_lshl_add_u32 v{64+i}, v{56+i}, 16, v{64+i}")
    a(f"""
    ds_write_b128 v{t0}, v[64:67] offset:{L_OFF}
    s_setprio 0
K_b3:
    v_lshrrev_b32 v{t0}, 4, v{T}
    v_lshl_add_u32 v{t0}, v{t0}, 4, v{t2}
    v_add_u32 v{t0}, {L_PS}, v{t0}
    s_lshl_b32 s{S_A}, s{S_N0}, 8
    s_add_u32 s{S_A}, s{S_A}, {WS_P}
    s_add_u32 s{S_RT}, s{S_WS}, s{S_A}
    s_addc_u32 s{S_RT+1}, s{S_WS+1}, 0
    s_lshl_b32 s{S_RT+2}, s{S_NN}, 8
    s_mov_b32 s{S_RT+3}, 0x00020000
    s_waitcnt lgkmcnt(0)
    s_barrier                                ; B3: segment offsets, P staged""")
    stamp(a, 4)
    a(f"""
    s_cmp_lt_u32 s{S_WAVE}, 10
    s_cbranch_scc1 K_nx0
    ds_read_b32 v{vOf+4}, v{vBa+4} offset:{L_OFF}
    ds_read_b128 v[76:79], v{t4}
K_nx0:
    ds_read_b128 v[72:75], v{t0}""")
    for i in range(4):
        a(f"    ds_read_b32 v{vOf+i}, v{vBa+i} offset:{L_OFF}")
    a(f"""
    s_waitcnt lgkmcnt(4)
    buffer_store_dwordx4 v[72:75], v{t2}, {sr(S_RT,4)}, 0 offen sc1
    s_waitcnt vmcnt(3)
    v_lshl_or_b32 v{vSrc}, v{v4k}, v{vCl}, v{vSrc}
    v_lshl_or_b32 v{vSrc+1}, v{v4k}, v{vCl+1}, v{vSrc+1}
    v_lshl_or_b32 v{vSrc+2}, v{v4k}, v{vCl+2}, v{vSrc+2}
    v_lshl_or_b32 v{vSrc+3}, v{v4k}, v{vCl+3}, v{vSrc+3}
    v_lshl_or_b32 v{vSrc}, v{vEa}, 16, v{vSrc}
    v_and_or_b32 v{vSrc+1}, v{vEa}, s{S_C}, v{vSrc+1}
    v_lshl_or_b32 v{vSrc+2}, v{vEa+1}, 16, v{vSrc+2}
    v_and_or_b32 v{vSrc+3}, v{vEa+1}, s{S_C}, v{vSrc+3}
    s_waitcnt lgkmcnt(0)""")
    def scatter(i):
        a(f"    v_add_u32_sdwa v{vBa+i}, v{vOf+i}, v{vRk+i} {SD} src0_sel:WORD_0 src1_sel:WORD_0")
        a(f"    v_add_u32_sdwa v{vOf+i}, v{vOf+i}, v{vRk+i} {SD} src0_sel:WORD_1 src1_sel:WORD_1")
        a(f"    ds_write_b32 v{vBa+i}, v{vSrc+i} offset:{L_RS}")
        a(f"    ds_write_b8 v{vOf+i}, v{vDst+i} offset:{L_RS}")
    for i in range(4): scatter(i)
    a(f"""
    s_cmp_lt_u32 s{S_WAVE}, 10
    s_cbranch_scc1 K_nx2
    s_cmp_eq_u32 s{S_WAVE}, 11
    s_cbranch_scc1 K_x2
    buffer_store_dwordx4 v[76:79], v{t1}, {sr(S_RT,4)}, 0 offen sc1
    s_branch K_nx2
K_x2:
    s_bfm_b64 exec, {XTRA}, 0
    v_lshl_or_b32 v{vSrc+4}, v{v4k}, v{vCl+4}, v{vSrc+4}
    v_lshl_or_b32 v{vSrc+4}, v{vEa+2}, 16, v{vSrc+4}""")
    scatter(4)
    a(f"""
    s_mov_b64 exec, -1
K_nx2:
    s_mul_i32 s{S_A}, s2, {RSTRIDE}
    s_add_u32 s{S_RR}, s{S_WS}, s{S_A}
    s_addc_u32 s{S_RR+1}, s{S_WS+1}, 0
    s_mov_b32 s{S_RR+2}, 16512
    s_mov_b32 s{S_RR+3}, 0x00020000
    v_add_u32 v{t3}, {step}, v{t2}
    s_waitcnt lgkmcnt(0)
    s_barrier""")
    stamp(a, 5)
    a(f"""
    ds_read_b128 v[0:3], v{t2} offset:{L_RS}
    s_cmp_ge_u32 s{S_WAVE}, 5
    s_cbranch_scc1 K_co1
    ds_read_b128 v[8:11], v{t2} offset:{L_RS + step}
    s_waitcnt lgkmcnt(0)
    buffer_store_dwordx4 v[8:11], v{t3}, {sr(S_RR,4)}, 0 offen sc1
K_co1:
    s_waitcnt lgkmcnt(0)
    buffer_store_dwordx4 v[0:3], v{t2}, {sr(S_RR,4)}, 0 offen sc1
    v_and_b32 v{tc}, 15, v{L}
    v_bfe_u32 v{t3}, v{L}, 4, 1
    v_lshlrev_b32 v{t3}, 2, v{t3}
    v_xor_b32 v{tc}, v{tc}, v{t3}
    v_lshlrev_b32 v{V_IX+1}, 4, v{tc}
    v_mov_b32 v{V_IX+3}, v{V_IX+1}
    v_mov_b32 v{V_IX+5}, v{V_IX+1}
    v_mov_b32 v{V_IX+7}, v{V_IX+1}
    v_lshrrev_b32 v{V_AIDX}, 4, v{L}
    v_lshlrev_b32 v{V_AIDX}, 1, v{V_AIDX}
    v_bfe_u32 v{tc}, v{L}, 3, 1
    v_xor_b32 v{t3}, v{tc}, v{HH}
    v_lshl_add_u32 v{t3}, v{t3}, 6, v{vC8}
    v_lshl_add_u32 v{tc}, v{tc}, 8, v{t3}
    s_lshl_b32 s{S_B}, s{S_WAVE}, 12
    s_add_u32 s{S_B}, s{S_B}, {L_XS}
    v_add_u32 v{tc}, s{S_B}, v{tc}
    v_bfe_u32 v{t4}, v{L}, 2, 1
    v_cmp_ne_u32 vcc, 0, v{t4}
    v_mov_b32 v{t3}, {L_Z}
    v_mov_b32 v{V_MN}, 1.0
    v_cndmask_b32 v{V_AA}, v{t3}, v{tc}, vcc
    v_cmp_eq_u32 {mask(0)}, v{t4}, v{HH}
    v_bfe_u32 v{tc}, v{L}, 3, 2
    v_and_b32 v{t3}, 3, v{L}
    v_lshl_add_u32 v{tc}, v{tc}, 2, v{t3}
    v_lshlrev_b32 v{tc}, 2, v{tc}
    v_add_u32 v{tc}, {L_G}, v{tc}
    v_mov_b32 v{t3}, {L_ZA}
    v_cndmask_b32 v{V_AENT}, v{t3}, v{tc}, {mask(0)}
    v_mov_b32 v{t3}, 0x80
    v_cndmask_b32 v{V_INCA}, 0, v{t3}, {mask(0)}""")
    for m in range(4):
        a(f"    s_movk_i32 s{S_P+m}, {3072 - 1024*m}")
    for c in range(2):
        a(f"    v_mov_b32 v{V_ND+4*c}, 0")
        a(f"    v_mov_b32 v{V_ND+4*c+1}, 0")
        a(f"    v_mov_b32 v{V_ND+4*c+2}, 1.0")
        a(f"    v_mov_b32 v{V_ND+4*c+3}, 1.0")
    a(f"""
    s_and_b32 s{S_A}, s{S_WAVE}, 3
    s_mul_i32 s{S_A}, s{S_A}, 3
    s_lshr_b32 s{S_B}, s{S_WAVE}, 2
    s_add_u32 s{S_SLOT}, s{S_A}, s{S_B}
    s_getpc_b64 {sr(S_PC,2)}
K_pc:
    s_add_u32 s{S_PC}, s{S_PC}, K_vbase - K_pc
    s_addc_u32 s{S_PC+1}, s{S_PC+1}, 0
    ; segment mapping of phase 2: segment 128 i + t/6, lane group g = t%6
    v_mul_u32_u24 v{tc}, 10923, v{T}
    v_lshrrev_b32 v{tc}, 16, v{tc}
    v_mad_i32_i24 v{vG4}, v{tc}, -6, v{T}
    v_lshlrev_b32 v{vG4}, 2, v{vG4}          ; 4g
    v_mul_u32_u24 v{vSb}, {RSTRIDE}, v{tc}
    s_lshr_b32 s{S_A}, s2, 3
    s_mul_i32 s{S_A}, s{S_A}, {256*128 if "hot" in OPT else 781*128}
    s_add_u32 s{S_A}, s{S_A}, {WS_P - (512*128 if "hot" in OPT else 0)}
    v_lshl_add_u32 v{vPf}, v{T}, 7, s{S_A}
    s_lshr_b32 s{S_B}, s{S_BIN}, 2
    s_lshl_b32 s{S_B}, s{S_B}, 4
    s_and_b32 s{S_A}, s{S_BIN}, 1
    s_lshl_b32 s{S_A}, s{S_A}, 3
    s_add_u32 s{S_B}, s{S_B}, s{S_A}
    s_and_b32 s{S_A}, s{S_BIN}, 2
    s_lshl_b32 s{S_A}, s{S_A}, 9
    s_add_u32 s{S_B}, s{S_B}, s{S_A}
    s_add_u32 s{S_B}, s{S_B}, {WS_TAB}
    v_lshl_add_u32 v{t5}, v{tc}, 11, s{S_B}  ; table entry offset
    s_mov_b32 s3, {NLOG2E:#x}
    s_cmp_lg_u32 s{S_WAVE}, 8
    s_cbranch_scc1 K_ntb
    s_mov_b32 s{S_K}, 0
    s_waitcnt vmcnt(2)
K_tagp:
    v_cmp_ne_u32 vcc, 0, v{vTg}
    s_cbranch_vccnz K_tagok
    s_add_u32 s{S_K}, s{S_K}, 1
    s_cmp_gt_u32 s{S_K}, {POLL_MAX}
    s_cbranch_scc1 K_tagok
    global_load_dwordx2 {vr(vTg,2)}, v{vZ}, {sr(S_DBG,2)} sc1
    s_waitcnt vmcnt(0)
    s_branch K_tagp
K_tagok:
    ds_write_b64 v{vZ}, {vr(vTg,2)} offset:{L_NONCE}
    v_and_b32 v{t3}, 0xfe000000, v{vTg}
    s_lshl_b32 s{S_B}, s2, 11
    s_add_u32 s{S_B}, s{S_B}, {WS_TAB}
    v_lshl_add_u32 v{t1}, v{L}, 4, s{S_B}""")
    for i in range(4):
        a(f"    v_lshrrev_b32 v{68+i}, 2, v{68+i}")
        a(f"    v_lshl_or_b32 v{68+i}, v{60+i}, 13, v{68+i}")
        a(f"    v_or_b32 v{vTb+2*i}, v{t3}, v{68+i}")
        a(f"    v_mov_b32 v{vTb+2*i+1}, v{vTg+1}")
    a(f"""
    s_waitcnt vmcnt(0) lgkmcnt(0)
    s_barrier                                ; B5
    s_cbranch_vccz K_slow
    global_store_dwordx4 v{t1}, {vr(vTb,4)}, {sr(S_WS,2)} sc1
    global_store_dwordx4 v{t1}, {vr(vTb+4,4)}, {sr(S_WS,2)} offset:1024 sc1
    s_branch K_b5j
K_ntb:
    s_waitcnt vmcnt(0)
    s_barrier
K_b5j:""")
    stamp(a, 6)
    a(f"""
    ds_read_b64 {vr(vTg,2)}, v{vZ} offset:{L_NONCE}
    v_lshlrev_b32 v{t0}, 1, v{L}
    v_add_u32 v{t0}, {L_WC}, v{t0}
    ds_read_u16 v{V_B5}, v{t0}
    ds_read_u16 v{V_B5+2}, v{t0} offset:128
    s_waitcnt lgkmcnt(0)
    v_readfirstlane_b32 s{S_TAG}, v{vTg}
    v_readfirstlane_b32 s{S_TAG+1}, v{vTg+1}
    s_cmp_eq_u32 s{S_TAG}, 0
    s_cbranch_scc1 K_slow""")
    for c in range(2):
        w = V_B5 + 2*c
        a(f"    v_lshlrev_b32 v{w}, 16, v{w}")
        a(f"    v_mul_f32 v{w}, s3, v{w}")
        a(f"    v_cvt_pk_bf16_f32 v{t3}, v{vZ}, v{w}")
        a(f"    v_sub_f32 v{t3}, v{w}, v{t3}")
        a(f"    v_cvt_pk_bf16_f32 v{w+1}, v{w}, v{t3}")
    a(f"""
    s_cmp_lt_u32 s{S_WAVE}, 8
    s_cbranch_scc1 K_Q
    s_sub_u32 s{S_A}, s{S_WAVE}, 8
    s_lshl_b32 s{S_A}, s{S_A}, 12
    s_add_u32 m0, s{S_A}, {L_W2}
    v_lshl_add_u32 v{t3}, v{L}, 4, s{S_A}
    global_load_lds_dwordx4 v{t3}, {sr(S_W2,2)}
    global_load_lds_dwordx4 v{t3}, {sr(S_W2,2)} offset:1024
    global_load_lds_dwordx4 v{t3}, {sr(S_W2,2)} offset:2048
    global_load_lds_dwordx4 v{t3}, {sr(S_W2,2)} offset:3072
    s_cmp_lg_u32 s{S_WAVE}, 9
    s_cbranch_scc1 K_notQ
    s_mov_b32 m0, {L_B2}
    v_lshlrev_b32 v{t3}, 2, v{J}
    global_load_lds_dword v{t3}, {sr(S_B2,2)}
    s_branch K_notQ
K_Q:
    s_mov_b32 s3, {f32bits(-LOG2E/2):#x}
    s_lshl_b32 s{S_A}, s{S_D}, 6
    s_add_u32 s{S_A}, s{S_A}, {L_WC + 256}
    v_lshl_add_u32 v{t3}, v{J}, 1, s{S_A}
    ds_read_u16 v{vB1}, v{t3}
    v_add_u32 v{tc}, v{vWa}, v{vC8}""")
    for s_ in range(4):
        for h in range(2):
            a(f"    ds_read_b64_tr_b16 {vr(vWf+4*s_+2*h,2)}, v{tc} offset:{16384+4096*s_+1024*h}")
    a(f"""
    s_and_b32 s{S_A}, s{S_WAVE}, 1
    s_lshl_b32 s{S_B}, s{S_A}, 14
    s_lshl_b32 s{S_C}, s{S_D}, 7
    s_add_u32 s{S_B}, s{S_B}, s{S_C}
    s_add_u32 s{S_B}, s{S_B}, {L_QT - 512}
    v_lshl_add_u32 v{tc}, v{HH}, 11, s{S_B}
    v_lshl_add_u32 v{tc}, v{J}, 2, v{tc}""")
    for s_ in range(4):
        a(f"    s_waitcnt lgkmcnt({6-2*s_})")
        cin = "0" if s_ == 0 else vr(vAc, 16)
        a(f"    v_mfma_f32_32x32x16_bf16 {vr(vAc,16)}, {vr(vX+4*s_,4)}, {vr(vWf+4*s_,4)}, {cin}")
    a(f"""
    v_lshlrev_b32 v{vB1}, 16, v{vB1}
    v_mul_f32 v{vB1}, s3, v{vB1}
    s_nop 9""")
    def qpair(r):
        row = 8*(r >> 2) + (r & 3)
        a(f"    v_fma_f32 v{vAc+r}, v{vAc+r}, s3, v{vB1}")
        a(f"    v_fma_f32 v{vAc+r+1}, v{vAc+r+1}, s3, v{vB1}")
        a(f"    v_cvt_pk_bf16_f32 v{vWf+r}, v{vAc+r}, v{vAc+r+1}")
        a(f"    ds_write_b32 v{tc}, v{vWf+r} offset:{512*(row+1)}")
        a(f"    ds_write_b16 v{tc}, v{vWf+r} offset:{512*row}")
        a(f"    ds_write_b16_d16_hi v{tc}, v{vWf+r} offset:{512*(row+2)+2}")
    for r in range(0, 12, 2): qpair(r)
    a(f"""
    s_cmp_eq_u32 s{S_A}, 1
    s_cbranch_scc1 K_notQ""")
    for r in range(12, 16, 2): qpair(r)
    a(f"K_notQ:")
    stamp(a, 7)
    vT = 0
    vN = 4
    vAr = 6
    vR = 12
    vM = 28
    vA = 32
    vK = 48
    vB = 64
    a(f"""
    s_lshl_b32 s{S_B}, s{S_WAVE}, 12
    s_add_u32 m0, s{S_B}, {L_XS}
    s_mov_b32 s{S_RR}, s{S_WS}
    s_mov_b32 s{S_RR+1}, s{S_WS+1}
    s_mov_b32 s{S_RR+2}, {WS_TAB + 256*2048}
    s_mov_b32 s{S_A}, {128*2048}
    s_mov_b32 s{S_B}, {128*RSTRIDE}
    s_mov_b32 s{S_C}, 0xfe000000
    s_movk_i32 s{S_D}, 0xfc
    s_mov_b32 s{S_K}, 0
    {"s_sleep " + optval("fs", "0") if optval("fs", "0") != "0" else ""}
    s_mov_b64 {mask(0)}, -1
    s_mov_b64 {mask(1)}, -1
    v_mov_b32 v{vM}, 0
    v_mov_b32 v{vM+1}, 0
K_poll:
    s_mov_b64 exec, {mask(0)}
    s_cbranch_execz K_pl0
    buffer_load_dwordx2 {vr(vT,2)}, v{t5}, {sr(S_RR,4)}, 0 offen sc1
K_pl0:
    s_mov_b64 exec, {mask(1)}
    s_cbranch_execz K_pl1
    buffer_load_dwordx2 {vr(vT+2,2)}, v{t5}, {sr(S_RR,4)}, s{S_A} offen sc1
K_pl1:
    s_mov_b64 exec, -1
    s_waitcnt vmcnt(0)""")
    for i in range(2):
        a(f"    v_xor_b32 v{vN+i}, s{S_TAG}, v{vT+2*i}")
        a(f"    v_xor_b32 v{vAr+i}, s{S_TAG+1}, v{vT+2*i+1}")
        a(f"    v_and_or_b32 v{vAr+i}, v{vN+i}, s{S_C}, v{vAr+i}")
        a(f"    v_cmp_ne_u32 {mask(i)}, 0, v{vAr+i}")
    a(f"""
    s_add_u32 s{S_K}, s{S_K}, 1
    s_or_b64 vcc, {mask(0)}, {mask(1)}
    s_cbranch_scc0 K_got
    s_cmp_lt_u32 s{S_K}, {POLL_MAX}
    s_cbranch_scc1 K_poll
    s_mov_b32 s{S_MODE}, 1
    s_branch K_nor2a
K_got:""")
    if DIAG:
        a(f"    v_writelane_b32 v{V_STAMP}, s{S_K}, 20")
    stamp(a, 8)
    so = ["0", sr(S_B)]
    for i in range(2):
        a(f"    v_and_b32 v{vAr+i}, 0x1fff, v{vT+2*i}")
        a(f"    v_bfe_u32 v{vT+2*i+1}, v{vT+2*i}, 13, 12")
        a(f"    v_lshl_add_u32 v{vAr+i}, v{vAr+i}, 2, v{vSb}")
        a(f"    v_sub_u32 v{vN+i}, v{vT+2*i+1}, v{vG4}")
        a(f"    v_lshl_add_u32 v{vAr+2+i}, v{vT+2*i+1}, 2, v{vAr+i}")
        a(f"    v_cmp_lt_i32 {mask(4*i)}, 0, v{vN+i}")
        a(f"    v_lshl_add_u32 v{vAr+i}, v{vG4}, 2, v{vAr+i}")
        a(f"    v_add_u32 v{vAr+2+i}, v{vAr+2+i}, v{vG4}")
        a(f"    s_or_b64 exec, {mask(4*i)}, 1")
        a(f"    buffer_load_dword v{vM+i}, v{vAr+2+i}, {sr(S_RR,4)}, {so[i]} offen")
        a(f"    buffer_load_dwordx4 {vr(vR+4*i,4)}, v{vAr+i}, {sr(S_RR,4)}, {so[i]} offen")
        a(f"    s_mov_b64 exec, -1")
    for i in range(2):
        for k in range(1, 4):
            a(f"    v_cmp_lt_i32 {mask(4*i+k)}, {k}, v{vN+i}")
    a(f"""
    v_max_i32 v{t1}, v{vN}, v{vN+1}
    v_cmp_lt_i32 vcc, 24, v{t1}
    s_mov_b32 s{S_K}, 0
    s_cbranch_vccz K_nor2a
    s_mov_b32 s{S_K}, 1""")
    for i in range(2):
        a(f"    buffer_load_dword v{vM+2+i}, v{vAr+2+i}, {sr(S_RR,4)}, {so[i]} offen offset:24")
        a(f"    buffer_load_dwordx4 {vr(vR+8+4*i,4)}, v{vAr+i}, {sr(S_RR,4)}, {so[i]} offen offset:96")
        for k in range(4):
            a(f"    v_cmp_lt_i32 {mask(8+4*i+k)}, {24+k}, v{vN+i}")
    pf0 = int(optval("pf", "8"))
    a(f"""
    v_cmp_lt_i32 vcc, 48, v{t1}
    s_cbranch_vccz K_nor2a
    s_mov_b32 s{S_MODE}, 1
K_nor2a:
    v_mov_b32 v{t4}, {L_FLAG}
    v_mov_b32 v{t0}, 4
    s_cmp_eq_u32 s{S_MODE}, 0
    s_cbranch_scc1 K_nofl
    ds_write_b32 v{t4}, v{t0}
K_nofl:
    s_waitcnt lgkmcnt(0)
    s_barrier
    ds_read_b32 v{t3}, v{t4}
    s_add_u32 s{S_RX}, s{S_WS}, {WS_P - 3072}
    s_addc_u32 s{S_RX+1}, s{S_WS+1}, 0
    s_and_b32 s{S_RX+1}, s{S_RX+1}, 0xffff
    s_or_b32 s{S_RX+1}, s{S_RX+1}, 0x01000000
    s_mov_b32 s{S_RX+2}, {N_NODES}
    s_mov_b32 s{S_RX+3}, 0x00020000
    s_waitcnt lgkmcnt(0)
    v_cmp_ne_u32 vcc, 0, v{t3}
    s_cbranch_vccnz K_slow
    s_cmp_lt_u32 s{S_WAVE}, {pf0}
    s_cbranch_scc1 K_npf
    global_load_dword v{t5}, v{vPf}, {sr(S_WS,2)} sc1
    s_waitcnt vmcnt(1)
    s_branch K_pfJ
K_npf:
    s_waitcnt vmcnt(0)
K_pfJ:""")
    stamp(a, 9)
    def count_cols(ks):
        for k in ks:
            a(f"    v_and_b32_sdwa v{vA+k}, v{vM+k//4}, s{S_D} {SD} src0_sel:BYTE_{k%4} src1_sel:DWORD")
        for k in ks:
            a(f"    s_mov_b64 exec, {mask(k)}")
            a(f"    ds_add_rtn_u32 v{vK+k}, v{vA+k}, v{t0} offset:{L_H2}")
        a(f"    s_mov_b64 exec, -1")
    count_cols(range(8))
    a(f"""
    s_cmp_eq_u32 s{S_K}, 0
    s_cbranch_scc1 K_nor2b""")
    count_cols(range(8, 16))
    a(f"""
K_nor2b:
    v_lshlrev_b32 v{t1}, 2, v{L}
    v_cmp_gt_u32 vcc, s{S_NN}, v{L}
    s_waitcnt lgkmcnt(0)
    s_barrier""")
    stamp(a, 10)
    a(f"""
    ds_read_b32 v{V_CNT}, v{t1} offset:{L_H2}
    s_waitcnt lgkmcnt(0)
    v_add_u32 v{vP}, 4, v{V_CNT}
    v_and_b32 v{vP}, -8, v{vP}
    v_max_u32 v{vP}, 64, v{vP}
    v_cndmask_b32 v{vP}, 0, v{vP}, vcc
    v_mov_b32 v{vS}, v{vP}""")
    wave_scan(a, vS)
    a(f"""
    s_nop 0
    v_readlane_b32 s{S_A}, v{vS}, 63
    v_sub_u32 v{vS}, v{vS}, v{vP}
    ds_write_b32 v{t1}, v{vS} offset:{L_SX}
    s_cmp_gt_u32 s{S_A}, {ENT_CAP*4}
    s_cbranch_scc1 K_slow""")
    def place_cols(ks, mid=None):
        ks = list(ks)
        for k in ks:
            a(f"    ds_read_b32 v{vB+k}, v{vA+k} offset:{L_SX}")
        if mid: a(mid)
        for n, k in enumerate(ks):
            if n % 2 == 0:
                a(f"    s_waitcnt lgkmcnt({len(ks)-2-n})")
            a(f"    v_add_u32 v{vK+k}, v{vB+k}, v{vK+k}")
        for k in ks:
            a(f"    s_mov_b64 exec, {mask(k)}")
            a(f"    ds_write_b32 v{vK+k}, v{vR+k} offset:{L_RL}")
        a(f"    s_mov_b64 exec, -1")
    place_cols(range(8), f"""
    s_add_u32 s{S_A}, s{S_A}, 63
    s_lshr_b32 s{S_TT}, s{S_A}, 6            ; tiles
    s_mul_i32 s{S_T0}, s{S_SLOT}, s{S_TT}
    s_add_u32 s{S_NT}, s{S_T0}, s{S_TT}
    s_mul_i32 s{S_T0}, s{S_T0}, 43691
    s_mul_i32 s{S_NT}, s{S_NT}, 43691
    s_lshr_b32 s{S_T0}, s{S_T0}, 19
    s_lshr_b32 s{S_NT}, s{S_NT}, 19
    s_sub_u32 s{S_NT}, s{S_NT}, s{S_T0}""")
    a(f"""
    s_cmp_eq_u32 s{S_K}, 0
    s_cbranch_scc1 K_nor2c
    s_waitcnt lgkmcnt(0)""")
    place_cols(range(8, 16))
    thr = [int(x) for x in optval("thr", "10_5").split("_")] + [2]
    vBk = 80
    vGr = 82
    a(f"""
K_nor2c:
    s_lshl_b32 s{S_A}, s{S_T0}, 6
    v_lshl_add_u32 v{t3}, v{V_AIDX}, 1, s{S_A}
    v_add_u32 v{t2}, s{S_A}, v{t1}
    v_cmp_ge_u32 {mask(0)}, s{S_A}, v{vS}
    v_subrev_u32 v{t0}, s{S_A}, v{vS}
    s_and_b64 {mask(0)}, {mask(0)}, vcc
    s_bcnt1_i32_b64 s{S_B}, {mask(0)}
    s_sub_u32 s{S_B}, s{S_B}, 1              ; n
    s_andn2_b64 {mask(0)}, vcc, {mask(0)}
    v_bfe_u32 v{t4}, v{t0}, 3, 3
    v_add_u32 v{t4}, 1, v{t4}
    v_lshrrev_b32 v{t0}, 6, v{t0}
    v_min_u32 v{t0}, 63, v{t0}
    v_cndmask_b32 v{t0}, 63, v{t0}, {mask(0)}
    v_lshlrev_b32 v{t0}, 2, v{t0}
    v_mov_b32 v{vBk}, 0
    {"" if "novar" in OPT else f"ds_permute_b32 v{vBk}, v{t0}, v{t4}"}
    s_lshl_b32 s{S_D}, s{S_NT}, 4""")
    for c in range(5):
        a(f"    v_cmp_gt_i32 {mask(5+c)}, s{S_D}, v{L}")
        a(f"    s_sub_u32 s{S_D}, s{S_D}, 64")
    a(f"""
    s_cmp_ge_u32 s{S_WAVE}, 4
    s_cbranch_scc1 K_nprep
    ; ---- waves 0..3 prepare the output stage (wave w takes nodes 16w..16w+15)""")
    if "touch" in OPT:
        a(f"""
    s_lshl_b32 s{S_C}, s{S_N0}, 7
    v_mov_b32 v70, s{S_C}
    global_load_dword v127, v70, {sr(S_OUT,2)}""")
    a(f"""
    v_cvt_f32_u32 v70, s{S_TT}
    v_rcp_f32 v70, v70
    v_add3_u32 v{vP}, v{vS}, v{vP}, -4
    v_lshrrev_b32 v{vS}, 6, v{vS}
    v_lshrrev_b32 v{vP}, 6, v{vP}
    v_cvt_f32_u32 v{vS}, v{vS}
    v_cvt_f32_u32 v{vP}, v{vP}
    v_add_f32 v{vS}, {f32bits((NW-0.5)/NW):#x}, v{vS}
    v_add_f32 v{vP}, {f32bits((NW-0.5)/NW):#x}, v{vP}
    v_mul_f32 v70, {f32bits(NW):#x}, v70
    v_mul_f32 v{vS}, v{vS}, v70
    v_mul_f32 v{vP}, v{vP}, v70
    v_cvt_u32_f32 v{vS}, v{vS}
    v_cvt_u32_f32 v{vP}, v{vP}
    v_sub_u32 v{vP}, v{vP}, v{vS}
    v_add_u32 v{vS}, v{vS}, v{L}
    v_lshl_or_b32 v{vS}, v{vP}, 8, v{vS}
    v_cndmask_b32 v{vS}, {ZROW}, v{vS}, vcc
    v_lshl_or_b32 v{V_CNT}, v{vS}, 16, v{V_CNT}
    v_and_b32 v70, 15, v{L}
    s_lshl_b32 s{S_C}, s{S_WAVE}, 6
    v_lshl_add_u32 v71, v70, 2, s{S_C}
    ds_bpermute_b32 v{E_DEG}, v71, v{V_CNT}
    v_and_b32 v72, 16, v{L}
    v_lshlrev_b32 v72, 2, v72
    v_lshl_add_u32 v72, v{HH}, 5, v72
    v_bfe_u32 v73, v{L}, 2, 2
    v_add_u32 v73, v73, v72
    v_lshlrev_b32 v73, 7, v73
    v_and_b32 v74, 3, v{L}
    v_lshl_add_u32 v73, v74, 4, v73
    v_add_u32 v{E_W2}, {L_W2}, v73
    v_and_b32 v74, 48, v{L}                  ; 16g
    v_add_u32 v{E_B2}, {L_B2}, v74
    s_lshl_b32 s{S_C}, s{S_WAVE}, 12
    s_add_u32 s{S_C}, s{S_C}, {L_QT}
    v_mul_u32_u24 v70, 144, v70
    v_add3_u32 v{E_SW}, v70, v74, s{S_C}
    v_lshrrev_b32 v70, 3, v{L}
    v_add_lshl_u32 v70, v70, v{L}, 4
    v_add_u32 v{E_SR}, s{S_C}, v70
    s_lshl_b32 s{S_C}, s{S_WAVE}, 11
    v_lshl_add_u32 v{E_OUT}, v{L}, 4, s{S_C} ; output byte offset
    v_lshlrev_b32 v72, 2, v72
    v_add_u32 v72, {L_ST}, v72
    v_add_u32 v{E_Z}, {ZROW*ST_STRIDE}, v72
    s_movk_i32 s{S_C}, {ST_STRIDE}
    v_mov_b32 v{E_DEG+1}, {NLN2:#x}
    s_waitcnt lgkmcnt(0)
    v_bfe_u32 v{E_ROW}, v{E_DEG}, 16, 8
    v_lshrrev_b32 v{E_XR}, 24, v{E_DEG}
    v_and_b32 v{E_DEG}, 0xffff, v{E_DEG}
    v_cmp_lt_u32 vcc, 0, v{E_XR}
    v_cvt_f32_u32 v{E_DEG}, v{E_DEG}
    v_mad_u32_u24 v{E_ROW}, v{E_ROW}, s{S_C}, v72
    v_mul_f32 v{E_DEG}, {f32bits(-0.25 * LOG2E):#x}, v{E_DEG}
    v_add_u32 v{E_NX}, {ST_STRIDE}, v{E_ROW}
    v_cndmask_b32 v{E_R2}, v{E_Z}, v{E_NX}, vcc
K_nprep:
    s_waitcnt lgkmcnt(0)
    s_barrier""")
    stamp(a, 11)
    for m in range(4):
        a(f"    ds_read_u16 v{V_IX+2*m}, v{t3} offset:{L_RL + 16*m}")
    for c in range(5):
        a(f"    ds_read_b32 v{vGr+c}, v{t2} offset:{L_RL + 256*c}")
    a(f"""
    s_lshr_b32 s{S_C}, s{S_A}, 1
    s_add_u32 s{S_C}, s{S_C}, {L_IX}
    v_add_u32 v{V_AIDX}, s{S_C}, v{V_AIDX}
    v_lshl_add_u32 v{t0}, v{L}, 1, s{S_C}
    s_mov_b32 s{S_C}, 0x03020302
    s_mov_b32 s{S_D}, 0x8001
    s_waitcnt lgkmcnt(5)""")
    for m in range(4):
        a(f"    v_and_b32 v{V_IX+2*m}, {0xfff if 'cheat1' in OPT or 'cheat2' in OPT else PADREC}, v{V_IX+2*m}")
    for h in dma_ops(): a(h)
    if "st2" in OPT:
        a(f"""
    s_cmp_lt_u32 s{S_WAVE}, 8
    s_cbranch_scc1 K_ns2
    v_add_u32 v{vPf}, 0x100000, v{vPf}
    global_load_dword v{t5}, v{vPf}, {sr(S_WS,2)} sc1
K_ns2:""")
    a(f"    ; this wave's entries -> one-hot word, (e, e), source node")
    a(f"    s_waitcnt lgkmcnt(0)")
    for c in range(5):
        a(f"    v_and_b32 v{vGr+5+c}, 0xc000, v{vGr+c}")
        a(f"    v_perm_b32 v{64+c}, v{vGr+c}, v{vGr+c}, s{S_C}")
        a(f"    v_xor_b32 v{vGr+c}, v{vGr+c}, v{vGr+5+c}")
        a(f"    v_mul_u32_u24 v{vGr+5+c}, s{S_D}, v{vGr+5+c}")
        a(f"    v_and_b32 v{vGr+5+c}, 0x40004000, v{vGr+5+c}")
    for c in range(5):
        a(f"    s_mov_b64 exec, {mask(5+c)}")
        a(f"    ds_write2st64_b32 v{t2}, v{vGr+5+c}, v{64+c} offset0:{L_G//256 + c} offset1:{L_RL//256 + c}")
        a(f"    ds_write_b16 v{t0}, v{vGr+c} offset:{128*c}")
    a(f"""
    s_mov_b64 exec, -1
    s_lshl_b32 s{S_C}, s{S_B}, 9
    s_add_u32 s{S_C}, s{S_C}, {L_QT}
    v_add_u32 v{V_AQ}, s{S_C}, v{t1}
    v_lshrrev_b32 v{t4}, 7, v{V_INCA}
    v_mad_u32_u24 v{V_AENT}, v{t4}, s{S_A}, v{V_AENT}""")
    for h in ent_reads(0) + q_reads() + idx_reads(32): a(h)
    a(f"""
    s_add_u32 s{S_C}, s{S_B}, s{S_SLOT}
    s_mul_i32 s{S_C}, s{S_C}, {ST_STRIDE}
    s_add_u32 s{S_C}, s{S_C}, {L_ST}
    v_add_u32 v{V_AS}, s{S_C}, v{t1}
    v_add_u32 v{V_AQ}, 0x200, v{V_AQ}
    v_and_b32 v{t4}, 1, v{L}
    v_mad_u32_u24 v{t4}, v{t4}, 9, v{vBk}
    v_sub_u32 v{t0}, s{S_NT}, v{L}
    v_mov_b32 v{t3}, {ENTRY}""")
    for i, th in enumerate(thr):
        a(f"    v_cmp_eq_u32 {mask(i)}, {th}, v{t0}")
    a(f"    v_cmp_eq_u32 {mask(3)}, 0, v{t0}")
    a(f"    s_movk_i32 s{S_C}, {VAR_SIZE}")
    for i, th in enumerate(thr):
        a(f"    v_cndmask_b32 v{t3}, v{t3}, {8*i}, {mask(i)}")
    a(f"""
    v_mad_u32_u24 v{t4}, v{t4}, s{S_C}, v{t3}
    v_mov_b32 v{t3}, K_exit - K_vbase
    v_cndmask_b32 v{t4}, v{t4}, v{t3}, {mask(3)}
    ds_bpermute_b32 v{V_TAB}, v{t1}, v{t4} offset:4
    s_mov_b32 s{S_K}, 1
    v_readlane_b32 s{S_J}, v{t4}, 0
    s_setprio 3
    s_waitcnt vmcnt(0)""")
    stamp(a, 12)
    for h in tr_reads(0): a(h)
    a(f"""
    s_add_u32 s{S_J}, s{S_J}, s{S_PC}
    s_addc_u32 s{S_J+1}, s{S_PC+1}, 0
    s_waitcnt lgkmcnt(0)""")
    a(small(0, 0))
    if "cheat2" in OPT:
        for m in range(2): a(f"    v_and_b32 v{V_IX+2*m}, 0xfff, v{V_IX+2*m}")
    for h in dma_ops(): a(h)
    a(small(0, 1))
    a(f"    v_lshl_or_b32 v{V_TAB}, v{V_TAB}, 16, v{t4}")
    if optval("late", "4_6"): a("    s_nop 9")
    stamp(a, 13); stamp(a, 14, True)
    a(f"    s_setpc_b64 {sr(S_J,2)}")
    a(f".p2align 6")
    a(f"K_vbase:")
    for s_ in range(2):
        for b in [None] + list(range(8)):
            tile_variant(a, s_, b)
    a(f".p2align 3")
    a(f"K_exit:")
    stamp(a, 15); stamp(a, 16, True)
    flush1(a)
    a("    s_nop 0")
    flush2(a)
    a(f"""
    v_cmp_eq_f32 vcc, 0, v{V_MN}
    s_cbranch_vccz K_join
    v_mov_b32 v65, {L_FLAG}
    ds_write_b32 v65, v65
K_join:
    s_cmp_ge_u32 s{S_WAVE}, 4
    s_cbranch_scc1 K_idle
    ; (addresses and row numbers were prepared before the loop)""")
    for ot in range(4):
        for ks in range(4):
            for h in range(2):
                a(f"    ds_read_b64_tr_b16 {vr(16*ot+4*ks+2*h,2)}, v{E_W2} offset:{1024*ks+512*h+64*(ot>>1)+8*(ot&1)}")
    a(f"""
    ds_read_b128 v[96:99], v{E_B2}
    ds_read_b128 v[100:103], v{E_B2} offset:64
    s_lshl_b32 s{S_A}, s{S_N0}, 7
    s_add_u32 s{S_RT}, s{S_OUT}, s{S_A}
    s_addc_u32 s{S_RT+1}, s{S_OUT+1}, 0
    s_lshl_b32 s{S_RT+2}, s{S_NN}, 7
    s_mov_b32 s{S_RT+3}, 0x00020000
    s_movk_i32 s{S_C}, 0x207
    s_waitcnt lgkmcnt(0)
    ; accumulators start at -log2(e) * degree * b2""")
    for q in range(8):
        a(f"    v_lshlrev_b32 v{ACC0+2*q}, 16, v{96+q}")
        a(f"    v_and_b32 v{ACC0+1+2*q}, 0xffff0000, v{96+q}")
    for q in range(8):
        a(f"    v_pk_mul_f32 {vr(ACC0+2*q,2)}, {vr(ACC0+2*q,2)}, {vr(E_DEG,2)} op_sel_hi:[1,0]")
    a(f"    s_mov_b32 s{S_A}, 1")
    a(f"    s_barrier")
    stamp(a, 17)
    S0 = 64
    for ks in range(4):
        a(f"    ds_read_b128 {vr(S0+8*ks,4)}, v{E_ROW} offset:{32*ks}")
        a(f"    ds_read_b128 {vr(S0+4+8*ks,4)}, v{E_ROW} offset:{32*ks+16}")
    a(f"K_rows:")
    tmp = [96, 104, 112, 156]
    for ks in range(4):
        a(f"    ds_read_b128 {vr(tmp[ks],4)}, v{E_R2} offset:{32*ks}")
        a(f"    ds_read_b128 {vr(tmp[ks]+4,4)}, v{E_R2} offset:{32*ks+16}")
    a(f"""
    v_cmp_lt_u32 vcc, s{S_A}, v{E_XR}
    v_add_u32 v{E_NX}, {ST_STRIDE}, v{E_NX}
    s_add_u32 s{S_A}, s{S_A}, 1""")
    for ks in range(4):
        a(f"    s_waitcnt lgkmcnt({6-2*ks})")
        for q in range(4):
            a(f"    v_pk_add_f32 {vr(S0+8*ks+2*q,2)}, {vr(S0+8*ks+2*q,2)}, {vr(tmp[ks]+2*q,2)}")
    a(f"""
    v_cndmask_b32 v{E_R2}, v{E_Z}, v{E_NX}, vcc
    s_cbranch_vccnz K_rows""")
    def cv(ks):
        for q in range(4):
            a(f"    v_cvt_pk_bf16_f32 v{96+4*ks+q}, v{S0+8*ks+2*q}, v{S0+1+8*ks+2*q}")
    cv(0); cv(1)
    for ks in range(4):
        for ot in range(4):
            d = vr(ACC0 + 4*ot, 4)
            a(f"    v_mfma_f32_16x16x32_bf16 {d}, {vr(16*ot+4*ks,4)}, {vr(96+4*ks,4)}, {d}")
        if ks < 2: cv(ks + 2)
    a("    s_nop 4")
    for q in range(8):
        a(f"    v_pk_mul_f32 {vr(64+2*q,2)}, {vr(ACC0+2*q,2)}, {vr(E_DEG,2)} op_sel:[0,1]")
    for q in range(8):
        a(f"    v_cvt_pk_bf16_f32 v{80+q}, v{64+2*q}, v{65+2*q}")
    a(f"""
    ds_write_b128 v{E_SW}, v[80:83]
    ds_write_b128 v{E_SW}, v[84:87] offset:64
    ds_read_b128 v[88:91], v{E_SR}
    ds_read_b128 v[92:95], v{E_SR} offset:{8*144}
    v_cmp_class_f32 vcc, v64, s{S_C}
    s_waitcnt lgkmcnt(1)
    buffer_store_dwordx4 v[88:91], v{E_OUT}, {sr(S_RT,4)}, 0 offen {optval('o_','sc1').replace('_',' ')}
    s_waitcnt lgkmcnt(0)
    buffer_store_dwordx4 v[92:95], v{E_OUT}, {sr(S_RT,4)}, 0 offen offset:1024 {optval('o_','sc1').replace('_',' ')}
    s_cbranch_vccz K_fin
    v_mov_b32 v65, {L_FLAG}
    ds_write_b32 v65, v65
    s_branch K_fin
K_idle:
    s_waitcnt lgkmcnt(0)
    s_barrier                                ; B9
K_fin:
    v_mov_b32 v65, {L_FLAG}
    s_waitcnt lgkmcnt(0)
    s_barrier                                ; B10
    ds_read_b32 v64, v65
    s_waitcnt lgkmcnt(0)
    v_cmp_ne_u32 vcc, 0, v64
    {"" if "novar" in OPT or "nodma" in OPT else "s_cbranch_vccnz K_slow"}""")
    if DIAG:
        a("    s_waitcnt vmcnt(0)")
        stamp(a, 18); stamp(a, 19, True)
        a(f"""
    v_writelane_b32 v{V_STAMP}, s{S_NT}, 21
    s_lshl_b32 s{S_A}, s2, 4
    s_add_u32 s{S_A}, s{S_A}, s{S_WAVE}
    s_lshl_b32 s{S_A}, s{S_A}, 8
    s_add_u32 s{S_A}, s{S_A}, {WS_STAMP}
    v_lshl_add_u32 v64, v{L}, 2, s{S_A}
    s_mov_b64 exec, 0xffffffff
    global_store_dword v64, v{V_STAMP}, {sr(S_WS,2)}
    global_store_dword v64, v{V_TRACE}, {sr(S_WS,2)} offset:128""")
    if "endamp" in OPT:
        a(f"""
    s_waitcnt vmcnt(0)
    s_memrealtime s[100:101]
    s_lshl_b32 s{S_A}, s2, 4
    s_add_u32 s{S_A}, s{S_A}, s{S_WAVE}
    s_cmp_lg_u32 s{S_A}, {16*int(optval("wg", "100"))}
    s_cbranch_scc1 K_end
    s_lshl_b32 s{S_A}, s{S_TAG+1}, 7
    s_lshr_b32 s{S_B}, s{S_TAG}, 25
    s_or_b32 s{S_A}, s{S_A}, s{S_B}
    s_waitcnt lgkmcnt(0)
    s_sub_u32 s{S_B}, s100, s98
    s_min_u32 s{S_B}, s{S_B}, 2000
    s_mul_i32 s{S_B}, s{S_B}, 20
    s_add_u32 s{S_B}, s{S_B}, 3000
K_spin4:
    s_memrealtime s[98:99]
    s_waitcnt lgkmcnt(0)
    s_sub_u32 s98, s98, s{S_A}
    s_cmp_lt_u32 s98, s{S_B}
    s_cbranch_scc1 K_spin4""")
    if optval("fix", "") != "":
        a(f"""
    s_lshl_b32 s{S_A}, s2, 4
    s_add_u32 s{S_A}, s{S_A}, s{S_WAVE}
    s_cmp_lg_u32 s{S_A}, 1600
    s_cbranch_scc1 K_end
    s_lshl_b32 s{S_A}, s{S_TAG+1}, 7
    s_lshr_b32 s{S_B}, s{S_TAG}, 25
    s_or_b32 s{S_A}, s{S_A}, s{S_B}
K_spin3:
    s_memrealtime s[98:99]
    s_waitcnt lgkmcnt(0)
    s_sub_u32 s98, s98, s{S_A}
    s_cmp_lt_u32 s98, {optval("fix", "")}
    s_cbranch_scc1 K_spin3""")
    if optval("amp", "") != "":
        a(f"""
    s_waitcnt vmcnt(0)
    s_cmp_lg_u32 s{S_WAVE}, 0
    s_cbranch_scc1 K_end
    s_lshl_b32 s{S_A}, s{S_TAG+1}, 7
    s_lshr_b32 s{S_B}, s{S_TAG}, 25
    s_or_b32 s{S_A}, s{S_A}, s{S_B}""")
        if optval("amp", "") == "99":
            a("    s_memrealtime s[98:99]\n    s_waitcnt lgkmcnt(0)")
        a(f"""
    s_sub_u32 s{S_B}, s98, s{S_A}
    s_mov_b64 exec, 1
    v_mov_b32 v64, 0
    v_mov_b32 v65, s{S_B}
    v_mov_b32 v66, 1
    global_atomic_{"add" if "avg" in OPT else "umax"} v64, v65, {sr(S_DBG,2)} offset:128 sc1
    s_waitcnt vmcnt(0)
    global_atomic_add v67, v64, v66, {sr(S_DBG,2)} offset:136 sc0 sc1
    s_waitcnt vmcnt(0)
    v_readfirstlane_b32 s{S_B}, v67
    s_cmp_lg_u32 s{S_B}, 255
    s_cbranch_scc1 K_end
    global_atomic_add v67, v64, v64, {sr(S_DBG,2)} offset:128 sc0 sc1
    s_waitcnt vmcnt(0)
    v_readfirstlane_b32 s{S_B}, v67
    s_mul_i32 s{S_B}, s{S_B}, {optval("mul", "5")}
    {f"s_lshr_b32 s{S_B}, s{S_B}, 8" if "avg" in OPT else ""}
    s_min_u32 s{S_B}, s{S_B}, 200000
    s_add_u32 s{S_B}, s{S_B}, {optval("base", "0")}
K_spin2:
    s_memrealtime s[98:99]
    s_waitcnt lgkmcnt(0)
    s_sub_u32 s98, s98, s{S_A}
    s_cmp_lt_u32 s98, s{S_B}
    s_cbranch_scc1 K_spin2""")
    a(f"""
K_end:
    s_endpgm
K_slow:
    ; ================= exact path without hand-offs: scan all edges for this bin
    s_setprio 0
    s_mov_b32 s16, s{S_N0}
    s_mov_b32 s17, s{S_NN}
    s_mov_b32 s18, s{S_WAVE}""")
    gen_slow(a, 16, 17, 18, L, NLOG2E, NW=NW)
    a("    s_endpgm")

def main():
    global DIAG
    out = sys.argv[1]
    DIAG = "diag" in sys.argv[2:]
    OPT.update(sys.argv[2:])
    a = Asm()
    a(f"""; Edge-featured MPNN layer: out[n] = sum_(e: dst=n) (silu([x[src],x[dst],e] w1 + b1) w2 + b2)
; @launch grid=(256,1,1) block=({NT_},1,1) lds={L_END}
.amdgcn_target "amdgcn-amd-amdhsa--gfx950"
.text""")
    gen_kernel(a)
    a(f"""
.section .rodata,"a"
.p2align 6
.amdhsa_kernel {KNAME}
  .amdhsa_next_free_vgpr {NVGPR}
  .amdhsa_next_free_sgpr 102
  .amdhsa_accum_offset {NVGPR}
  .amdhsa_group_segment_fixed_size 0
  .amdhsa_kernarg_size 88
  .amdhsa_user_sgpr_count 2
  .amdhsa_user_sgpr_kernarg_segment_ptr 1
  .amdhsa_system_sgpr_workgroup_id_x 1
  .amdhsa_float_denorm_mode_32 3
.end_amdhsa_kernel""")
    open(out, "w").write(a.text())

if __name__ == "__main__":
    main()
```

```python
import sys, struct
from slow import gen_slow

NAME = "standalone__edge_featured_mpnn_mpnn__graph"
KNAME = NAME + "_kernel"
N_NODES = 12500
NB = 49
NW = 12
NT_ = 64 * NW
MAINE = 4 * NT_
XTRA = 53
RSTRIDE = 16640

WS_TAB = 0x420000
WS_P = 0x4C0000
WS_STAMP = 0xA00000

L_Z = 128
L_H2 = 272
L_FLAG = 536
L_NONCE = 544
L_Z2 = 2048
OF_STRIDE = 272
L_SX = 1296
ENT_CAP = 3472
LSZ = 14080
L_ZA = 4096 - 144
L_G = 4096
L_RL = L_G + LSZ
L_ST = L_RL + LSZ
ST_STRIDE = 288
L_IX = L_ST + 20480
L_QT = (L_IX + LSZ // 2 + 255) // 256 * 256 + 512
L_XS = L_QT + 49 * 512
assert LSZ % 256 == 0 and (ENT_CAP + 48) * 4 == LSZ
L_W2 = L_XS + NW * 4096
L_B2 = L_W2 + 16384
L_END = L_B2 + 256
L_RS = L_ST
L_H1 = L_ST + 16640
L_OFF = L_H1 + 1024
L_W1 = L_XS
L_WC = L_XS + 32768
L_PS = L_WC + 512
L_XR = L_W2
PS_STRIDE = 272
assert L_XS % 256 == 0 and L_END <= 163840
assert L_H1 + 3072 <= L_IX and 64 * ST_STRIDE <= 20480 and L_OFF + 1024 < 65536 and L_PS + 56 * PS_STRIDE <= L_W2

def f32bits(x):
    return struct.unpack("<I", struct.pack("<f", x))[0]
LOG2E = 1.4426950408889634
NLOG2E = f32bits(-LOG2E)
NLN2 = f32bits(-0.6931471805599453)
PADREC = 0x3FFF
POLL_MAX = 4000

class Asm:
    def __init__(self):
        self.l = []
    def __call__(self, s=""):
        for x in s.strip("\n").split("\n"):
            if x.strip():
                self.l.append(x.rstrip())
    def text(self):
        return "\n".join(self.l) + "\n"

def vr(a, n=1):
    return f"v{a}" if n == 1 else f"v[{a}:{a+n-1}]"
def sr(a, n=1):
    return f"s{a}" if n == 1 else f"s[{a}:{a+n-1}]"

DIAG = False
OPT = set()
def optval(prefix, default):
    for o in OPT:
        if o.startswith(prefix):
            return o[len(prefix):]
    return default

V_D = 0; V_E = 64; V_A5 = 96; V_B5 = 98; V_ND = 102; V_T = 110; V_R = 114; V_O = 118; V_IX = 132
V_AA = 140; V_AIDX = 141; V_AENT = 142; V_AQ = 143; V_INCA = 144; V_AS = 145; V_MN = 146; V_PSEL = 147
V_PF = 126; V_TAB = 148; V_CNT = 149; V_S = 150; V_P = 151; V_LANE = 154; V_TID = 155
V_J = 156; V_HH = 157
E_W2 = 147; E_SR = 164; E_OW = 165
E_ROW = 122; E_XR = 123; E_NX = 124; E_R2 = 125; E_OUT = 127; E_DB = [128, 130, 150, 152]
V_STAMP = 167; V_TRACE = 166
NVGPR = 168
S_X = 4; S_E = 6; S_SRC = 8; S_DST = 10; S_W1 = 12; S_B1 = 14; S_W2 = 16; S_B2 = 18; S_OUT = 20; S_DBG = 22; S_WS = 24
S_BIN = 26; S_N0 = 27; S_NN = 28; S_WAVE = 29; S_MODE = 30; S_K = 31; S_PC = 32; S_J = 34
S_RX = 36; S_RT = 40; S_RR = 44; S_P = 48; S_JJ = 52
S_T0 = 56; S_NT = 57; S_TT = 58; S_SLOT = 59; S_A = 60; S_B = 61; S_C = 62; S_D = 63; S_TAG = 64
S_M = 66
def mask(k): return sr(S_M + 2*k, 2)

def stamp(a, k, real=False):
    if optval("clk", ""):
        if k == 13: a("    s_memrealtime s[98:99]\n    s_memtime s[100:101]\n    s_waitcnt lgkmcnt(0)\n    s_mov_b32 s99, s100")
        if k == 15: a("    s_memrealtime s[96:97]\n    s_memtime s[100:101]\n    s_waitcnt lgkmcnt(0)\n    s_sub_u32 s98, s96, s98\n    s_sub_u32 s99, s100, s99")
        return
    if "endamp" in OPT:
        if k == 17: a("    s_memrealtime s[98:99]\n    s_waitcnt lgkmcnt(0)")
        return
    if optval("amp", "") != "":
        if int(optval("amp", "")) == k:
            a("    s_memrealtime s[98:99]\n    s_waitcnt lgkmcnt(0)")
        return
    if not DIAG:
        return
    a(f"    {'s_memrealtime' if real else 's_memtime'} s[100:101]")
    a(f"    s_waitcnt lgkmcnt(0)")
    a(f"    v_writelane_b32 v{V_STAMP}, s100, {k}")

def wave_scan(a, v):
    for sh in (1, 2, 4, 8):
        a(f"    s_nop 1")
        a(f"    v_add_u32_dpp v{v}, v{v}, v{v} row_shr:{sh} row_mask:0xf bank_mask:0xf")
    a(f"    s_nop 1")
    a(f"    v_add_u32_dpp v{v}, v{v}, v{v} row_bcast:15 row_mask:0xa bank_mask:0xf")
    a(f"    s_nop 1")
    a(f"    v_add_u32_dpp v{v}, v{v}, v{v} row_bcast:31 row_mask:0xc bank_mask:0xf")

SD = "dst_sel:DWORD dst_unused:UNUSED_PAD"

def dreg(s, c): return V_D + 32*s + 16*c
def small(s, c):
    d = vr(dreg(s, c), 16)
    return f"    v_mfma_f32_32x32x8_bf16 {d}, {vr(V_A5,2)}, {vr(V_B5+2*c,2)}, {d}"
def tr_reads(s):
    return [f"    ds_read_b64_tr_b16 {vr(dreg(s,c)+2*u,2)}, v{V_AA} offset:{512*u+128*c}" for u in range(8) for c in range(2)]
def ent_reads(off):
    return [f"    ds_read_b32 v{V_A5}, v{V_AENT} offset:{off}",
            f"    ds_read_b32 v{V_A5+1}, v{V_AENT} offset:{off + L_RL - L_G}"]
def q_reads():
    return [f"    ds_read_b32 v{V_B5+2*c}, v{V_AQ} offset:{256*c}" for c in range(2)]
def idx_reads(off):
    return [f"    ds_read_u16 v{V_IX+2*m}, v{V_AIDX} offset:{off + 8*m}" for m in range(4)]
def dma_ops():
    if "nodma" in OPT: return []
    return [f"    buffer_load_dwordx4 {vr(V_IX+2*m,2)}, {sr(S_RX,4)}, s{S_P+m} idxen offen offset:{1024*m} sc1 lds" for m in range(4)]

def flush1(a):
    for c in range(2):
        D = V_ND + 4*c + 2
        a(f"    v_rcp_f32 v{V_R+2*c}, v{D}")
        a(f"    v_rcp_f32 v{V_R+2*c+1}, v{D+1}")
def flush2(a):
    for c in range(2):
        a(f"    v_pk_mul_f32 {vr(V_O+2*c,2)}, {vr(V_ND+4*c,2)}, {vr(V_R+2*c,2)}")
    for c in range(2):
        a(f"    v_min3_f32 v{V_MN}, v{V_MN}, v{V_R+2*c}, v{V_R+2*c+1}")
    for c in range(2):
        a(f"    v_add_f32 v{V_O+2*c}, v{V_O+2*c}, v{V_O+2*c+1}")
    a(f"    v_cvt_pk_bf16_f32 v{V_O}, v{V_O}, v{V_O+2}")
    a(f"    ds_write_b32 v{V_AS}, v{V_O}")

def y_phase(a, s, b, us=range(8), nsrc=None):
    if nsrc is None: nsrc = [V_ND + 4*c for c in range(2)]
    a(".p2align 3")
    for u in us:
        if u == b:
            flush1(a)
            for c in range(2):
                a(f"    v_pk_add_f32 {vr(V_ND+4*c+2,2)}, {vr(V_E+16*c+2*u,2)}, 1.0 op_sel_hi:[1,0]")
            flush2(a)
            for c in range(2):
                p = dreg(s, c) + 2*u
                if u == 7:
                    a(f"    v_pk_mov_b32 {vr(V_ND+4*c,2)}, {vr(p,2)}, {vr(p,2)} op_sel:[0,1]")
                else:
                    nsrc[c] = p
            continue
        for c in range(2):
            a(f"    v_pk_fma_f32 {vr(V_T+2*c,2)}, {vr(dreg(s,c)+2*u,2)}, {vr(V_ND+4*c+2,2)}, {vr(nsrc[c],2)}")
        for c in range(2):
            D = V_ND + 4*c + 2
            a(f"    v_pk_fma_f32 {vr(D,2)}, {vr(D,2)}, {vr(V_E+16*c+2*u,2)}, {vr(D,2)}")
        for c in range(2):
            a(f"    v_pk_fma_f32 {vr(V_ND+4*c,2)}, {vr(nsrc[c],2)}, {vr(V_E+16*c+2*u,2)}, {vr(V_T+2*c,2)}")
            nsrc[c] = V_ND + 4*c

VAR_SIZE = 960
ENTRY = 24
def tile_variant(a, s, b):
    name = f"{s}{'N' if b is None else b}"
    vi = 9*s + (0 if b is None else b + 1)
    a(f".org K_vbase + {VAR_SIZE*vi}, 0")
    a(f"    s_setprio 2\n    s_branch K_var{name}\n    s_setprio 1\n    s_branch K_var{name}\n    s_setprio 0")
    a(f"    s_nop 0")
    a(f"K_var{name}:")
    bnd = b is not None
    if "trace" in OPT and s == 0:
        a(f"    s_memtime s[100:101]\n    s_mov_b32 s{S_A}, m0\n    s_mov_b32 m0, s{S_K}\n    s_waitcnt lgkmcnt(0)")
        a(f"    v_writelane_b32 v{V_TRACE}, s100, m0\n    s_mov_b32 m0, s{S_A}")
    es = [f"    v_exp_f32 v{V_E+16*c+2*u+h}, v{dreg(s,c)+2*u+h}" for u in range(8) for c in range(2) for h in range(2)]
    head = ent_reads(64 + 64*s) + (q_reads() if bnd else []) + tr_reads(s ^ 1) + idx_reads(64 + 32*s)
    plain = [f"    v_readlane_b32 s{S_JJ}, v{V_TAB}, s{S_K}"] if s == 0 else \
            [f"    v_add_u32 v{V_AENT}, v{V_INCA}, v{V_AENT}", f"    v_add_u32 v{V_AIDX}, 64, v{V_AIDX}"]
    if bnd: plain.append(f"    v_add_u32 v{V_AQ}, 0x200, v{V_AQ}")
    jump = [f"    s_and_b32 s{S_J}, s{S_JJ}, 0xffff", f"    s_add_u32 s{S_K}, s{S_K}, 2"] if s == 0 else [f"    s_lshr_b32 s{S_J}, s{S_JJ}, 16"]
    jump += [f"    s_add_u32 s{S_J}, s{S_J}, s{S_PC}", f"    s_addc_u32 s{S_J+1}, s{S_PC+1}, 0"]
    late = optval("late", "4_6")
    if late:
        ua, ub = [int(x) for x in late.split("_")]
        for e in es[:4*ub]: a(e)
        nsrc = [V_ND + 4*c for c in range(2)]
        y_phase(a, s, b, range(0, ua), nsrc)
        a("    s_waitcnt vmcnt(0)")
        for h in head: a(h)
        y_phase(a, s, b, range(ua, ub), nsrc)
        a(f"    s_waitcnt lgkmcnt(0)")
        for h in dma_ops(): a(h)
        a(small(s ^ 1, 0))
        for e in es[4*ub:4*ub+4]: a(e)
        a(small(s ^ 1, 1))
        for e in es[4*ub+4:]: a(e)
        for p_ in plain + jump: a(p_)
        y_phase(a, s, b, range(ub, 8), nsrc)
    else:
        n1 = int(optval("n1_", "16"))
        a("    s_waitcnt vmcnt(0)")
        for h in head: a(h)
        for e in es[:n1-2]: a(e)
        for p_ in plain: a(p_)
        for e in es[n1-2:n1]: a(e)
        a(f"    s_waitcnt lgkmcnt(0)")
        for h in dma_ops(): a(h)
        a(small(s ^ 1, 0))
        for e in es[n1:n1+4]: a(e)
        a(small(s ^ 1, 1))
        for e in es[n1+4:]: a(e)
        for p_ in jump: a(p_)
        y_phase(a, s, b)
    if bnd:
        a(f"    v_add_u32 v{V_AS}, {ST_STRIDE}, v{V_AS}")
    a(f"    s_setpc_b64 {sr(S_J,2)}")

def gen_kernel(a):
    L = V_LANE; T = V_TID; J = V_J; HH = V_HH
    t0, t1, t2, t3, t4, t5 = 158, 159, 160, 161, 162, 163
    step = NT_ * 16
    vDst = 0
    vSrc = 8
    vEa = 14
    tc = 17
    vTg = 18
    vBa = 20
    vRk = 26
    vWp = 31
    vOf = 32
    vC8 = 37; vWa = 38; vTa = 39
    vX = 40
    vWf = 56
    vPad = 56
    vAc = 72
    vTb = 88
    vXa = 88
    vB1 = 96
    vCl = 120
    v4k = 125
    vPf = 126
    vZ = 128
    vG4 = 164; vSb = 165
    vS = V_S; vP = V_P
    a(f"""
.p2align 8
.globl {KNAME}
.type {KNAME},@function
{KNAME}:
    s_cmp_ge_u32 s2, 256
    s_cbranch_scc1 K_end
    s_load_dwordx8 s[4:11], s[0:1], 0
    s_load_dwordx8 s[12:19], s[0:1], 32      ; w1, b1, w2, b2
    s_load_dwordx4 s[20:23], s[0:1], 64
    s_load_dwordx2 s[24:25], s[0:1], 80      ; ws
    s_memrealtime {sr(S_TAG,2)}
    v_lshrrev_b32 v1, 6, v0
    v_mov_b32 v{T}, v0
    v_readfirstlane_b32 s{S_WAVE}, v1
    v_and_b32 v{L}, 63, v0
    s_mul_i32 s3, s2, {MAINE*4}
    v_lshl_add_u32 v{t0}, v0, 4, s3          ; byte offset into src/dst
    v_lshrrev_b32 v{t1}, 1, v{t0}
    s_and_b32 s{S_BIN}, s2, 7
    s_lshl_b32 s{S_BIN}, s{S_BIN}, 5
    s_lshr_b32 s3, s2, 3
    s_add_u32 s{S_BIN}, s{S_BIN}, s3
    s_mul_i32 s{S_N0}, s{S_BIN}, {NB}
    s_sub_u32 s{S_NN}, {N_NODES}, s{S_N0}
    s_min_u32 s{S_NN}, s{S_NN}, {NB}
    v_and_b32 v{J}, 31, v0
    v_bfe_u32 v{HH}, v0, 5, 1
    s_mov_b32 s{S_MODE}, 0
    v_mov_b32 v{vZ}, 0
    v_mov_b32 v{vZ+1}, 0
    v_mov_b32 v{vZ+2}, 0
    v_mov_b32 v{vZ+3}, 0
    v_lshlrev_b32 v{t2}, 2, v0""")
    if DIAG:
        a(f"    v_mov_b32 v{V_STAMP}, 0\n    v_mov_b32 v{V_TRACE}, 0")
        stamp(a, 0, True); stamp(a, 1)
    a(f"""
    s_waitcnt lgkmcnt(0)
    global_load_dwordx4 {vr(vDst,4)}, v{t0}, {sr(S_DST,2)}
    ds_write_b32 v{t2}, v{vZ} offset:{L_H1}
    s_cmp_lg_u32 s{S_WAVE}, 11
    s_cbranch_scc1 K_ld1
    s_mul_i32 s{S_A}, s2, {XTRA}
    s_add_u32 s{S_A}, s{S_A}, {256*MAINE}
    v_min_u32 v{t5}, {XTRA-1}, v{L}
    v_add_lshl_u32 v{t5}, v{t5}, s{S_A}, 2
    v_lshrrev_b32 v{t4}, 1, v{t5}
    global_load_dword v{vDst+4}, v{t5}, {sr(S_DST,2)}
    global_load_dword v{vSrc+4}, v{t5}, {sr(S_SRC,2)}
    global_load_ushort v{vEa+2}, v{t4}, {sr(S_E,2)}
K_ld1:
    s_cmp_ge_u32 s2, 32
    s_cbranch_scc1 K_ldJ
    s_sub_u32 s{S_A}, s{S_WAVE}, 5
    s_cmp_ge_u32 s{S_A}, 3
    s_cbranch_scc1 K_ld2
    s_lshl_b32 s{S_A}, s{S_A}, 13
    v_lshl_add_u32 v{t5}, v{L}, 7, s{S_A}
    s_getpc_b64 {sr(S_J,2)}
    global_load_dword v{t4}, v{t5}, {sr(S_J,2)} offset:1024
K_ld2:
    s_lshl_b32 s{S_A}, s2, 4
    s_add_u32 s{S_A}, s{S_A}, s{S_WAVE}
    s_cmp_lg_u32 s{S_A}, 9
    s_cbranch_scc1 K_ldJ
    s_lshl_b32 s{S_A}, s{S_TAG}, 25
    s_or_b32 s{S_A}, s{S_A}, 1
    s_lshr_b64 {sr(S_TAG,2)}, {sr(S_TAG,2)}, 7
    v_mov_b32 v{t4}, s{S_A}
    v_mov_b32 v{t4+1}, s{S_TAG}
    s_mov_b64 exec, 1
    global_store_dwordx2 v{vZ}, {vr(t4,2)}, {sr(S_DBG,2)} sc1
    s_mov_b64 exec, -1
K_ldJ:
    s_lshl_b32 s{S_A}, s{S_WAVE}, 11
    s_cmp_ge_u32 s{S_WAVE}, 8
    s_cbranch_scc1 K_stX
    s_add_u32 m0, s{S_A}, {L_W1}
    v_lshrrev_b32 v{t3}, 2, v{L}
    v_and_b32 v{t3}, 12, v{t3}
    v_xor_b32 v{t3}, v{t3}, v{L}
    v_lshl_add_u32 v{t5}, v{t3}, 4, s{S_A}
    global_load_lds_dwordx4 v{t5}, {sr(S_W1,2)}
    global_load_lds_dwordx4 v{t5}, {sr(S_W1,2)} offset:1024
    s_branch K_stJ
K_stX:
    s_mov_b32 s{S_RX}, s4
    s_mov_b32 s{S_RX+1}, s5
    s_mov_b32 s{S_RX+2}, {N_NODES*128}
    s_mov_b32 s{S_RX+3}, 0x00020000
    s_add_u32 m0, s{S_A}, {L_XR - 16384}
    s_lshl_b32 s{S_B}, s{S_N0}, 7
    s_add_u32 s{S_A}, s{S_A}, s{S_B}
    s_sub_u32 s{S_A}, s{S_A}, 16384
    v_lshrrev_b32 v{t3}, 4, v{L}
    v_xor_b32 v{t3}, v{t3}, v{L}
    v_lshl_add_u32 v{t3}, v{t3}, 4, s{S_A}
    v_xor_b32 v{t5}, 64, v{t3}
    buffer_load_dwordx4 v{t3}, {sr(S_RX,4)}, 0 offen lds
    buffer_load_dwordx4 v{t5}, {sr(S_RX,4)}, 0 offen offset:1024 lds
K_stJ:
    s_waitcnt lgkmcnt(0)
    s_barrier
    v_mov_b32 v{vPad}, {PADREC}
    v_mov_b32 v{vPad+1}, {PADREC}
    v_mov_b32 v{vPad+2}, {PADREC}
    v_mov_b32 v{vPad+3}, {PADREC}
    v_lshlrev_b32 v{t2}, 4, v{T}
    ds_write_b128 v{t2}, {vr(vPad,4)} offset:{L_RL}
    s_cmp_ge_u32 s{S_WAVE}, 4
    s_cbranch_scc1 K_in1
    ds_write_b128 v{t2}, {vr(vZ,4)}
    ds_write_b128 v{t2}, {vr(vPad,4)} offset:{L_ST - 4096}
K_in1:
    s_cmp_lg_u32 s{S_WAVE}, 4
    s_cbranch_scc1 K_in2
    v_lshlrev_b32 v{t3}, 2, v{L}
    ds_write_b32 v{t3}, v{vZ} offset:{L_RL - 256}
K_in2:
    global_load_dwordx4 {vr(vSrc,4)}, v{t0}, {sr(S_SRC,2)}
    global_load_dwordx2 {vr(vEa,2)}, v{t1}, {sr(S_E,2)}
    s_cmp_ge_u32 s{S_WAVE}, 8
    s_cbranch_scc1 K_st2
    s_add_u32 m0, m0, 16384
    v_add_u32 v{t5}, 0x4000, v{t5}
    global_load_lds_dwordx4 v{t5}, {sr(S_W1,2)}
    global_load_lds_dwordx4 v{t5}, {sr(S_W1,2)} offset:1024
    s_branch K_st3
K_st2:
    s_mov_b32 m0, {L_WC}
    v_lshlrev_b32 v{t3}, 2, v{L}
    v_add_u32 v{t4}, 0x8000, v{t3}
    global_load_lds_dword v{t4}, {sr(S_W1,2)}
    s_mov_b32 m0, {L_WC + 256}
    s_nop 0
    global_load_lds_dword v{t3}, {sr(S_B1,2)}
K_st3:
    v_and_b32 v{vC8}, 3, v{L}
    v_lshlrev_b32 v{vC8}, 3, v{vC8}
    v_and_b32 v{t1}, 16, v{L}
    v_lshl_add_u32 v{vC8}, v{t1}, 1, v{vC8}  ; 8c + 32(g&1)
    s_lshr_b32 s{S_D}, s{S_WAVE}, 1          ; ct
    v_bfe_u32 v{t0}, v{L}, 2, 2
    v_xor_b32 v{t3}, s{S_D}, v{t0}
    v_lshlrev_b32 v{t3}, 6, v{t3}
    v_lshl_add_u32 v{t0}, v{HH}, 3, v{t0}
    v_lshl_add_u32 v{t0}, v{t0}, 8, v{t3}
    v_add_u32 v{vWa}, {L_W1}, v{t0}
    v_and_b32 v{vWp}, 1, v{L}
    v_lshl_add_u32 v{vWp}, v{vWp}, 5, v{vWa}
    v_and_b32 v{t3}, 16, v{L}
    v_add_u32 v{vWp}, v{vWp}, v{t3}
    v_and_b32 v{t3}, 2, v{L}
    v_lshl_add_u32 v{vWp}, v{t3}, 2, v{vWp}  ; + 16(c&1) + 4(2(g&1) + (c>>1)) columns
    s_and_b32 s{S_A}, s{S_WAVE}, 1
    s_lshl_b32 s{S_A}, s{S_A}, 12
    s_add_u32 s{S_A}, s{S_A}, {L_XR}
    v_bfe_u32 v{t3}, v{L}, 1, 3
    v_xor_b32 v{t3}, v{t3}, v{HH}
    v_lshl_add_u32 v{t3}, v{t3}, 4, s{S_A}
    v_lshl_add_u32 v{vXa}, v{J}, 7, v{t3}
    v_xor_b32 v{vXa+1}, 32, v{vXa}
    v_xor_b32 v{vXa+2}, 64, v{vXa}
    v_xor_b32 v{vXa+3}, 0x60, v{vXa}
    s_mov_b32 s{S_A}, 21400
    s_mov_b32 s{S_B}, -{NB}
    s_mov_b32 s{S_C}, 0xffff0000
    v_mov_b32 v{t5}, 0x10004
    v_mov_b32 v{vBa+4}, 0
    v_mov_b32 v{v4k}, 0x4000
    s_waitcnt vmcnt(6)
    s_cmp_lg_u32 s{S_WAVE}, 11
    s_cbranch_scc1 K_wJ
    s_bfm_b64 exec, {XTRA}, 0""")
    assert L_ST - L_RL <= step + 4096
    def binops(cols):
        for i in cols: a(f"    v_mul_u32_u24 v{vBa+i}, s{S_A}, v{vDst+i}")
        for i in cols: a(f"    v_lshrrev_b32 v{vBa+i}, 18, v{vBa+i}")
        for i in cols:
            a(f"    v_and_b32 v{vBa+i}, 0x3fc, v{vBa+i}")
            a(f"    ds_add_rtn_u32 v{vRk+i}, v{vBa+i}, v{t5} offset:{L_H1}")
        for i in cols: a(f"    v_lshlrev_b32 v{vDst+i}, 2, v{vDst+i}")
        for i in cols: a(f"    v_mad_i32_i24 v{vDst+i}, v{vBa+i}, s{S_B}, v{vDst+i}")
        for i in cols: a(f"    v_bfe_u32 v{vCl+i}, v{vDst+i}, 2, 1")
    binops([4])
    a(f"""
    s_mov_b64 exec, -1
K_wJ:""")
    stamp(a, 2)
    binops(range(4))
    a(f"""
    s_waitcnt vmcnt(4) lgkmcnt(0)
    s_barrier""")
    stamp(a, 3)
    a(f"""
    s_cmp_eq_u32 s{S_WAVE}, 8
    s_cbranch_scc1 K_scan1
    s_cmp_gt_u32 s{S_WAVE}, 8
    s_cbranch_scc1 K_notP
    ; ---- waves 0..7: P^T tile = -log2(e) * (x w1[0:64])^T""")
    for s_ in range(4):
        a(f"    ds_read_b128 {vr(vX+4*s_,4)}, v{vXa+s_}")
        for h in range(2):
            a(f"    ds_read_b64_tr_b16 {vr(vWf+4*s_+2*h,2)}, v{vWp} offset:{4096*s_+1024*h}")
    for s_ in range(4):
        a(f"    s_waitcnt lgkmcnt({9-3*s_})")
        cin = "0" if s_ == 0 else vr(vAc, 16)
        a(f"    v_mfma_f32_32x32x16_bf16 {vr(vAc,16)}, {vr(vWf+4*s_,4)}, {vr(vX+4*s_,4)}, {cin}")
    a(f"""
    s_and_b32 s{S_B}, s{S_WAVE}, 1
    s_mul_i32 s{S_A}, s{S_B}, {32*PS_STRIDE}
    s_lshl_b32 s{S_B}, s{S_D}, 6
    s_add_u32 s{S_A}, s{S_A}, s{S_B}
    s_add_u32 s{S_A}, s{S_A}, {L_PS}
    v_mul_u32_u24 v{t3}, {PS_STRIDE}, v{J}
    v_lshl_add_u32 v{t3}, v{HH}, 5, v{t3}
    v_add_u32 v{t3}, s{S_A}, v{t3}
    v_mov_b32 v{t4}, {NLOG2E:#x}
    v_cmp_gt_u32 vcc, {L_PS + 56*PS_STRIDE}, v{t3}
    s_nop 1""")
    for q in range(8):
        a(f"    v_pk_mul_f32 {vr(vAc+2*q,2)}, {vr(vAc+2*q,2)}, {vr(t4,2)} op_sel_hi:[1,0]")
    for q in range(8):
        a(f"    v_cvt_pk_bf16_f32 v{vAc+q}, v{vAc+2*q}, v{vAc+2*q+1}")
    a(f"""
    s_mov_b64 exec, vcc
    ds_write_b128 v{t3}, {vr(vAc,4)}
    ds_write_b128 v{t3}, {vr(vAc+4,4)} offset:16
    s_mov_b64 exec, -1
    s_branch K_b3
K_notP:
    v_lshlrev_b32 v{t1}, 4, v{L}
    v_add_u32 v{t4}, {L_PS + 48*PS_STRIDE}, v{t1}
    v_add_u32 v{t1}, {48*256}, v{t1}
    s_branch K_b3
K_scan1:
    ; ---- wave 8: segment offsets; a segment is n records (4 bytes) followed by n node bytes, padded to 4
    s_setprio 2
    global_load_dwordx2 {vr(vTg,2)}, v{vZ}, {sr(S_DBG,2)}
    v_lshlrev_b32 v{t0}, 4, v{L}
    ds_read_b128 v[56:59], v{t0} offset:{L_H1}
    s_waitcnt lgkmcnt(0)""")
    for i in range(4):
        a(f"    v_lshrrev_b32 v{60+i}, 16, v{56+i}")
    for i in range(4):
        a(f"    v_mad_u32_u24 v{64+i}, v{60+i}, 5, 3")
    for i in range(4):
        a(f"    v_and_b32 v{64+i}, -4, v{64+i}")
    a(f"""
    v_add_u32 v65, v64, v65
    v_add_u32 v66, v65, v66
    v_add_u32 v67, v66, v67
    v_mov_b32 v68, v67""")
    wave_scan(a, 68)
    a(f"""
    v_sub_u32 v68, v68, v67
    v_add_u32 v69, v68, v64
    v_add_u32 v70, v68, v65
    v_add_u32 v71, v68, v66
    s_mov_b32 s{S_A}, 0x10001""")
    for i in range(4):
        a(f"    v_mul_u32_u24 v{64+i}, s{S_A}, v{68+i}")
    for i in range(4):
        a(f"    v_lshl_add_u32 v{64+i}, v{56+i}, 16, v{64+i}")
    a(f"""
    ds_write_b128 v{t0}, v[64:67] offset:{L_OFF}
    s_setprio 0
K_b3:
    v_lshrrev_b32 v{t0}, 4, v{T}
    v_lshl_add_u32 v{t0}, v{t0}, 4, v{t2}
    v_add_u32 v{t0}, {L_PS}, v{t0}
    s_lshl_b32 s{S_A}, s{S_N0}, 8
    s_add_u32 s{S_A}, s{S_A}, {WS_P}
    s_add_u32 s{S_RT}, s{S_WS}, s{S_A}
    s_addc_u32 s{S_RT+1}, s{S_WS+1}, 0
    s_lshl_b32 s{S_RT+2}, s{S_NN}, 8
    s_mov_b32 s{S_RT+3}, 0x00020000
    s_waitcnt lgkmcnt(0)
    s_barrier                                ; B3: segment offsets, P staged""")
    stamp(a, 4)
    a(f"""
    s_cmp_lt_u32 s{S_WAVE}, 10
    s_cbranch_scc1 K_nx0
    ds_read_b32 v{vOf+4}, v{vBa+4} offset:{L_OFF}
    ds_read_b128 v[76:79], v{t4}
K_nx0:
    ds_read_b128 v[72:75], v{t0}""")
    for i in range(4):
        a(f"    ds_read_b32 v{vOf+i}, v{vBa+i} offset:{L_OFF}")
    a(f"""
    s_waitcnt lgkmcnt(4)
    buffer_store_dwordx4 v[72:75], v{t2}, {sr(S_RT,4)}, 0 offen sc1
    s_waitcnt vmcnt(3)
    v_lshl_or_b32 v{vSrc}, v{v4k}, v{vCl}, v{vSrc}
    v_lshl_or_b32 v{vSrc+1}, v{v4k}, v{vCl+1}, v{vSrc+1}
    v_lshl_or_b32 v{vSrc+2}, v{v4k}, v{vCl+2}, v{vSrc+2}
    v_lshl_or_b32 v{vSrc+3}, v{v4k}, v{vCl+3}, v{vSrc+3}
    v_lshl_or_b32 v{vSrc}, v{vEa}, 16, v{vSrc}
    v_and_or_b32 v{vSrc+1}, v{vEa}, s{S_C}, v{vSrc+1}
    v_lshl_or_b32 v{vSrc+2}, v{vEa+1}, 16, v{vSrc+2}
    v_and_or_b32 v{vSrc+3}, v{vEa+1}, s{S_C}, v{vSrc+3}
    s_waitcnt lgkmcnt(0)""")
    def scatter(i):
        a(f"    v_add_u32_sdwa v{vBa+i}, v{vOf+i}, v{vRk+i} {SD} src0_sel:WORD_0 src1_sel:WORD_0")
        a(f"    v_add_u32_sdwa v{vOf+i}, v{vOf+i}, v{vRk+i} {SD} src0_sel:WORD_1 src1_sel:WORD_1")
        a(f"    ds_write_b32 v{vBa+i}, v{vSrc+i} offset:{L_RS}")
        a(f"    ds_write_b8 v{vOf+i}, v{vDst+i} offset:{L_RS}")
    for i in range(4): scatter(i)
    a(f"""
    s_cmp_lt_u32 s{S_WAVE}, 10
    s_cbranch_scc1 K_nx2
    s_cmp_eq_u32 s{S_WAVE}, 11
    s_cbranch_scc1 K_x2
    buffer_store_dwordx4 v[76:79], v{t1}, {sr(S_RT,4)}, 0 offen sc1
    s_branch K_nx2
K_x2:
    s_bfm_b64 exec, {XTRA}, 0
    v_lshl_or_b32 v{vSrc+4}, v{v4k}, v{vCl+4}, v{vSrc+4}
    v_lshl_or_b32 v{vSrc+4}, v{vEa+2}, 16, v{vSrc+4}""")
    scatter(4)
    a(f"""
    s_mov_b64 exec, -1
K_nx2:
    s_mul_i32 s{S_A}, s2, {RSTRIDE}
    s_add_u32 s{S_RR}, s{S_WS}, s{S_A}
    s_addc_u32 s{S_RR+1}, s{S_WS+1}, 0
    s_mov_b32 s{S_RR+2}, 16512
    s_mov_b32 s{S_RR+3}, 0x00020000
    v_add_u32 v{t3}, {step}, v{t2}
    s_waitcnt lgkmcnt(0)
    s_barrier""")
    stamp(a, 5)
    a(f"""
    ds_read_b128 v[0:3], v{t2} offset:{L_RS}
    s_cmp_ge_u32 s{S_WAVE}, 5
    s_cbranch_scc1 K_co1
    ds_read_b128 v[8:11], v{t2} offset:{L_RS + step}
    s_waitcnt lgkmcnt(0)
    buffer_store_dwordx4 v[8:11], v{t3}, {sr(S_RR,4)}, 0 offen sc1
K_co1:
    s_waitcnt lgkmcnt(0)
    buffer_store_dwordx4 v[0:3], v{t2}, {sr(S_RR,4)}, 0 offen sc1
    v_and_b32 v{tc}, 15, v{L}
    v_bfe_u32 v{t3}, v{L}, 4, 1
    v_lshlrev_b32 v{t3}, 2, v{t3}
    v_xor_b32 v{tc}, v{tc}, v{t3}
    v_lshlrev_b32 v{V_IX+1}, 4, v{tc}
    v_mov_b32 v{V_IX+3}, v{V_IX+1}
    v_mov_b32 v{V_IX+5}, v{V_IX+1}
    v_mov_b32 v{V_IX+7}, v{V_IX+1}
    v_lshrrev_b32 v{V_AIDX}, 4, v{L}
    v_lshlrev_b32 v{V_AIDX}, 1, v{V_AIDX}
    v_bfe_u32 v{tc}, v{L}, 3, 1
    v_xor_b32 v{t3}, v{tc}, v{HH}
    v_lshl_add_u32 v{t3}, v{t3}, 6, v{vC8}
    v_lshl_add_u32 v{tc}, v{tc}, 8, v{t3}
    s_lshl_b32 s{S_B}, s{S_WAVE}, 12
    s_add_u32 s{S_B}, s{S_B}, {L_XS}
    v_add_u32 v{tc}, s{S_B}, v{tc}
    v_bfe_u32 v{t4}, v{L}, 2, 1
    v_cmp_ne_u32 vcc, 0, v{t4}
    v_mov_b32 v{t3}, {L_Z}
    v_mov_b32 v{V_MN}, 1.0
    v_cndmask_b32 v{V_AA}, v{t3}, v{tc}, vcc
    v_cmp_eq_u32 {mask(0)}, v{t4}, v{HH}
    v_bfe_u32 v{tc}, v{L}, 3, 2
    v_and_b32 v{t3}, 3, v{L}
    v_lshl_add_u32 v{tc}, v{tc}, 2, v{t3}
    v_lshlrev_b32 v{tc}, 2, v{tc}
    v_add_u32 v{tc}, {L_G}, v{tc}
    v_mov_b32 v{t3}, {L_ZA}
    v_cndmask_b32 v{V_AENT}, v{t3}, v{tc}, {mask(0)}
    v_mov_b32 v{t3}, 0x80
    v_cndmask_b32 v{V_INCA}, 0, v{t3}, {mask(0)}""")
    for m in range(4):
        a(f"    s_movk_i32 s{S_P+m}, {3072 - 1024*m}")
    for c in range(2):
        a(f"    v_mov_b32 v{V_ND+4*c}, 0")
        a(f"    v_mov_b32 v{V_ND+4*c+1}, 0")
        a(f"    v_mov_b32 v{V_ND+4*c+2}, 1.0")
        a(f"    v_mov_b32 v{V_ND+4*c+3}, 1.0")
    a(f"""
    s_and_b32 s{S_A}, s{S_WAVE}, 3
    s_mul_i32 s{S_A}, s{S_A}, 3
    s_lshr_b32 s{S_B}, s{S_WAVE}, 2
    s_add_u32 s{S_SLOT}, s{S_A}, s{S_B}
    s_getpc_b64 {sr(S_PC,2)}
K_pc:
    s_add_u32 s{S_PC}, s{S_PC}, K_vbase - K_pc
    s_addc_u32 s{S_PC+1}, s{S_PC+1}, 0
    ; segment mapping of phase 2: segment 128 i + t/6, lane group g = t%6
    v_mul_u32_u24 v{tc}, 10923, v{T}
    v_lshrrev_b32 v{tc}, 16, v{tc}
    v_mad_i32_i24 v{vG4}, v{tc}, -6, v{T}
    v_lshlrev_b32 v{vG4}, 2, v{vG4}          ; 4g
    v_mul_u32_u24 v{vSb}, {RSTRIDE}, v{tc}
    s_lshr_b32 s{S_A}, s2, 3
    s_mul_i32 s{S_A}, s{S_A}, {256*128 if "hot" in OPT else 781*128}
    s_add_u32 s{S_A}, s{S_A}, {WS_P - (512*128 if "hot" in OPT else 0)}
    v_lshl_add_u32 v{vPf}, v{T}, 7, s{S_A}
    s_lshr_b32 s{S_B}, s{S_BIN}, 2
    s_lshl_b32 s{S_B}, s{S_B}, 4
    s_and_b32 s{S_A}, s{S_BIN}, 1
    s_lshl_b32 s{S_A}, s{S_A}, 3
    s_add_u32 s{S_B}, s{S_B}, s{S_A}
    s_and_b32 s{S_A}, s{S_BIN}, 2
    s_lshl_b32 s{S_A}, s{S_A}, 9
    s_add_u32 s{S_B}, s{S_B}, s{S_A}
    s_add_u32 s{S_B}, s{S_B}, {WS_TAB}
    v_lshl_add_u32 v{t5}, v{tc}, 11, s{S_B}  ; table entry offset
    s_mov_b32 s3, {NLOG2E:#x}
    s_cmp_lg_u32 s{S_WAVE}, 8
    s_cbranch_scc1 K_ntb
    s_mov_b32 s{S_K}, 0
    s_waitcnt vmcnt(2)
K_tagp:
    v_cmp_ne_u32 vcc, 0, v{vTg}
    s_cbranch_vccnz K_tagok
    s_add_u32 s{S_K}, s{S_K}, 1
    s_cmp_gt_u32 s{S_K}, {POLL_MAX}
    s_cbranch_scc1 K_tagok
    global_load_dwordx2 {vr(vTg,2)}, v{vZ}, {sr(S_DBG,2)} sc1
    s_waitcnt vmcnt(0)
    s_branch K_tagp
K_tagok:
    ds_write_b64 v{vZ}, {vr(vTg,2)} offset:{L_NONCE}
    v_and_b32 v{t3}, 0xfe000000, v{vTg}
    s_lshl_b32 s{S_B}, s2, 11
    s_add_u32 s{S_B}, s{S_B}, {WS_TAB}
    v_lshl_add_u32 v{t1}, v{L}, 4, s{S_B}""")
    for i in range(4):
        a(f"    v_lshrrev_b32 v{68+i}, 2, v{68+i}")
        a(f"    v_lshl_or_b32 v{68+i}, v{60+i}, 13, v{68+i}")
        a(f"    v_or_b32 v{vTb+2*i}, v{t3}, v{68+i}")
        a(f"    v_mov_b32 v{vTb+2*i+1}, v{vTg+1}")
    a(f"""
    s_waitcnt vmcnt(0) lgkmcnt(0)
    s_barrier                                ; B5
    s_cbranch_vccz K_slow
    global_store_dwordx4 v{t1}, {vr(vTb,4)}, {sr(S_WS,2)} sc1
    global_store_dwordx4 v{t1}, {vr(vTb+4,4)}, {sr(S_WS,2)} offset:1024 sc1
    s_branch K_b5j
K_ntb:
    s_waitcnt vmcnt(0)
    s_barrier
K_b5j:""")
    stamp(a, 6)
    a(f"""
    ds_read_b64 {vr(vTg,2)}, v{vZ} offset:{L_NONCE}
    v_lshlrev_b32 v{t0}, 1, v{L}
    v_add_u32 v{t0}, {L_WC}, v{t0}
    ds_read_u16 v{V_B5}, v{t0}
    ds_read_u16 v{V_B5+2}, v{t0} offset:128
    s_waitcnt lgkmcnt(0)
    v_readfirstlane_b32 s{S_TAG}, v{vTg}
    v_readfirstlane_b32 s{S_TAG+1}, v{vTg+1}
    s_cmp_eq_u32 s{S_TAG}, 0
    s_cbranch_scc1 K_slow""")
    for c in range(2):
        w = V_B5 + 2*c
        a(f"    v_lshlrev_b32 v{w}, 16, v{w}")
        a(f"    v_mul_f32 v{w}, s3, v{w}")
        a(f"    v_cvt_pk_bf16_f32 v{t3}, v{vZ}, v{w}")
        a(f"    v_sub_f32 v{t3}, v{w}, v{t3}")
        a(f"    v_cvt_pk_bf16_f32 v{w+1}, v{w}, v{t3}")
    a(f"""
    s_cmp_lt_u32 s{S_WAVE}, 8
    s_cbranch_scc1 K_Q
    s_sub_u32 s{S_A}, s{S_WAVE}, 8
    s_lshl_b32 s{S_A}, s{S_A}, 12
    s_add_u32 m0, s{S_A}, {L_W2}
    v_lshl_add_u32 v{t3}, v{L}, 4, s{S_A}
    global_load_lds_dwordx4 v{t3}, {sr(S_W2,2)}
    global_load_lds_dwordx4 v{t3}, {sr(S_W2,2)} offset:1024
    global_load_lds_dwordx4 v{t3}, {sr(S_W2,2)} offset:2048
    global_load_lds_dwordx4 v{t3}, {sr(S_W2,2)} offset:3072
    s_cmp_lg_u32 s{S_WAVE}, 9
    s_cbranch_scc1 K_notQ
    s_mov_b32 m0, {L_B2}
    v_lshlrev_b32 v{t3}, 2, v{J}
    global_load_lds_dword v{t3}, {sr(S_B2,2)}
    s_branch K_notQ
K_Q:
    s_mov_b32 s3, {f32bits(-LOG2E/2):#x}
    s_lshl_b32 s{S_A}, s{S_D}, 6
    s_add_u32 s{S_A}, s{S_A}, {L_WC + 256}
    v_lshl_add_u32 v{t3}, v{J}, 1, s{S_A}
    ds_read_u16 v{vB1}, v{t3}
    v_add_u32 v{tc}, v{vWa}, v{vC8}""")
    for s_ in range(4):
        for h in range(2):
            a(f"    ds_read_b64_tr_b16 {vr(vWf+4*s_+2*h,2)}, v{tc} offset:{16384+4096*s_+1024*h}")
    a(f"""
    s_and_b32 s{S_A}, s{S_WAVE}, 1
    s_lshl_b32 s{S_B}, s{S_A}, 14
    s_lshl_b32 s{S_C}, s{S_D}, 7
    s_add_u32 s{S_B}, s{S_B}, s{S_C}
    s_add_u32 s{S_B}, s{S_B}, {L_QT - 512}
    v_lshl_add_u32 v{tc}, v{HH}, 11, s{S_B}
    v_lshl_add_u32 v{tc}, v{J}, 2, v{tc}""")
    for s_ in range(4):
        a(f"    s_waitcnt lgkmcnt({6-2*s_})")
        cin = "0" if s_ == 0 else vr(vAc, 16)
        a(f"    v_mfma_f32_32x32x16_bf16 {vr(vAc,16)}, {vr(vX+4*s_,4)}, {vr(vWf+4*s_,4)}, {cin}")
    a(f"""
    v_lshlrev_b32 v{vB1}, 16, v{vB1}
    v_mul_f32 v{vB1}, s3, v{vB1}
    s_nop 9""")
    def qpair(r):
        row = 8*(r >> 2) + (r & 3)
        a(f"    v_fma_f32 v{vAc+r}, v{vAc+r}, s3, v{vB1}")
        a(f"    v_fma_f32 v{vAc+r+1}, v{vAc+r+1}, s3, v{vB1}")
        a(f"    v_cvt_pk_bf16_f32 v{vWf+r}, v{vAc+r}, v{vAc+r+1}")
        a(f"    ds_write_b32 v{tc}, v{vWf+r} offset:{512*(row+1)}")
        a(f"    ds_write_b16 v{tc}, v{vWf+r} offset:{512*row}")
        a(f"    ds_write_b16_d16_hi v{tc}, v{vWf+r} offset:{512*(row+2)+2}")
    for r in range(0, 12, 2): qpair(r)
    a(f"""
    s_cmp_eq_u32 s{S_A}, 1
    s_cbranch_scc1 K_notQ""")
    for r in range(12, 16, 2): qpair(r)
    a(f"K_notQ:")
    stamp(a, 7)
    vT = 0
    vN = 4
    vAr = 6
    vR = 12
    vM = 28
    vA = 32
    vK = 48
    vB = 64
    a(f"""
    s_lshl_b32 s{S_B}, s{S_WAVE}, 12
    s_add_u32 m0, s{S_B}, {L_XS}
    s_mov_b32 s{S_RR}, s{S_WS}
    s_mov_b32 s{S_RR+1}, s{S_WS+1}
    s_mov_b32 s{S_RR+2}, {WS_TAB + 256*2048}
    s_mov_b32 s{S_A}, {128*2048}
    s_mov_b32 s{S_B}, {128*RSTRIDE}
    s_mov_b32 s{S_C}, 0xfe000000
    s_movk_i32 s{S_D}, 0xfc
    s_mov_b32 s{S_K}, 0
    {"s_sleep " + optval("fs", "0") if optval("fs", "0") != "0" else ""}
    s_mov_b64 {mask(0)}, -1
    s_mov_b64 {mask(1)}, -1
    v_mov_b32 v{vM}, 0
    v_mov_b32 v{vM+1}, 0
K_poll:
    s_mov_b64 exec, {mask(0)}
    s_cbranch_execz K_pl0
    buffer_load_dwordx2 {vr(vT,2)}, v{t5}, {sr(S_RR,4)}, 0 offen sc1
K_pl0:
    s_mov_b64 exec, {mask(1)}
    s_cbranch_execz K_pl1
    buffer_load_dwordx2 {vr(vT+2,2)}, v{t5}, {sr(S_RR,4)}, s{S_A} offen sc1
K_pl1:
    s_mov_b64 exec, -1
    s_waitcnt vmcnt(0)""")
    for i in range(2):
        a(f"    v_xor_b32 v{vN+i}, s{S_TAG}, v{vT+2*i}")
        a(f"    v_xor_b32 v{vAr+i}, s{S_TAG+1}, v{vT+2*i+1}")
        a(f"    v_and_or_b32 v{vAr+i}, v{vN+i}, s{S_C}, v{vAr+i}")
        a(f"    v_cmp_ne_u32 {mask(i)}, 0, v{vAr+i}")
    a(f"""
    s_add_u32 s{S_K}, s{S_K}, 1
    s_or_b64 vcc, {mask(0)}, {mask(1)}
    s_cbranch_scc0 K_got
    s_cmp_lt_u32 s{S_K}, {POLL_MAX}
    s_cbranch_scc1 K_poll
    s_mov_b32 s{S_MODE}, 1
    s_branch K_nor2a
K_got:""")
    if DIAG:
        a(f"    v_writelane_b32 v{V_STAMP}, s{S_K}, 20")
    stamp(a, 8)
    so = ["0", sr(S_B)]
    for i in range(2):
        a(f"    v_and_b32 v{vAr+i}, 0x1fff, v{vT+2*i}")
        a(f"    v_bfe_u32 v{vT+2*i+1}, v{vT+2*i}, 13, 12")
        a(f"    v_lshl_add_u32 v{vAr+i}, v{vAr+i}, 2, v{vSb}")
        a(f"    v_sub_u32 v{vN+i}, v{vT+2*i+1}, v{vG4}")
        a(f"    v_lshl_add_u32 v{vAr+2+i}, v{vT+2*i+1}, 2, v{vAr+i}")
        a(f"    v_cmp_lt_i32 {mask(4*i)}, 0, v{vN+i}")
        a(f"    v_lshl_add_u32 v{vAr+i}, v{vG4}, 2, v{vAr+i}")
        a(f"    v_add_u32 v{vAr+2+i}, v{vAr+2+i}, v{vG4}")
        a(f"    s_or_b64 exec, {mask(4*i)}, 1")
        a(f"    buffer_load_dword v{vM+i}, v{vAr+2+i}, {sr(S_RR,4)}, {so[i]} offen")
        a(f"    buffer_load_dwordx4 {vr(vR+4*i,4)}, v{vAr+i}, {sr(S_RR,4)}, {so[i]} offen")
        a(f"    s_mov_b64 exec, -1")
    for i in range(2):
        for k in range(1, 4):
            a(f"    v_cmp_lt_i32 {mask(4*i+k)}, {k}, v{vN+i}")
    a(f"""
    v_max_i32 v{t1}, v{vN}, v{vN+1}
    v_cmp_lt_i32 vcc, 24, v{t1}
    s_mov_b32 s{S_K}, 0
    s_cbranch_vccz K_nor2a
    s_mov_b32 s{S_K}, 1""")
    for i in range(2):
        a(f"    buffer_load_dword v{vM+2+i}, v{vAr+2+i}, {sr(S_RR,4)}, {so[i]} offen offset:24")
        a(f"    buffer_load_dwordx4 {vr(vR+8+4*i,4)}, v{vAr+i}, {sr(S_RR,4)}, {so[i]} offen offset:96")
        for k in range(4):
            a(f"    v_cmp_lt_i32 {mask(8+4*i+k)}, {24+k}, v{vN+i}")
    pf0 = int(optval("pf", "8"))
    a(f"""
    v_cmp_lt_i32 vcc, 48, v{t1}
    s_cbranch_vccz K_nor2a
    s_mov_b32 s{S_MODE}, 1
K_nor2a:
    v_mov_b32 v{t4}, {L_FLAG}
    v_mov_b32 v{t0}, 4
    s_cmp_eq_u32 s{S_MODE}, 0
    s_cbranch_scc1 K_nofl
    ds_write_b32 v{t4}, v{t0}
K_nofl:
    s_waitcnt lgkmcnt(0)
    s_barrier
    ds_read_b32 v{t3}, v{t4}
    s_add_u32 s{S_RX}, s{S_WS}, {WS_P - 3072}
    s_addc_u32 s{S_RX+1}, s{S_WS+1}, 0
    s_and_b32 s{S_RX+1}, s{S_RX+1}, 0xffff
    s_or_b32 s{S_RX+1}, s{S_RX+1}, 0x01000000
    s_mov_b32 s{S_RX+2}, {N_NODES}
    s_mov_b32 s{S_RX+3}, 0x00020000
    s_waitcnt lgkmcnt(0)
    v_cmp_ne_u32 vcc, 0, v{t3}
    s_cbranch_vccnz K_slow
    s_cmp_lt_u32 s{S_WAVE}, {pf0}
    s_cbranch_scc1 K_npf
    global_load_dword v{t5}, v{vPf}, {sr(S_WS,2)} sc1
    s_waitcnt vmcnt(1)
    s_branch K_pfJ
K_npf:
    v_and_b32 v72, 7, v{L}
    v_lshlrev_b32 v74, 4, v72
    v_add_u32 v74, {L_B2}, v74
    ds_read_b128 v[76:79], v74
    v_lshrrev_b32 v{E_XR}, 3, v{T}
    v_lshlrev_b32 v{E_XR}, 2, v{E_XR}        ; 4 * node
    v_lshlrev_b32 v{E_OUT}, 4, v{T}          ; output byte offset
    v_lshlrev_b32 v72, 5, v72
    v_add_u32 v{E_NX}, {L_QT}, v72
    s_waitcnt lgkmcnt(0)""")
    vBu = [128, 130, 92, 152]
    for q in range(4):
        a(f"    v_lshlrev_b32 v{vBu[q]}, 16, v{76+q}")
        a(f"    v_and_b32 v{vBu[q]+1}, 0xffff0000, v{76+q}")
    assert pf0 >= 7
    a(f"""
    s_cmp_ge_u32 s{S_WAVE}, 4
    s_cbranch_scc1 K_np1
    v_bfe_u32 v70, v{L}, 2, 1
    v_bfe_u32 v71, v{L}, 3, 1
    v_lshl_add_u32 v70, v70, 6, v71
    v_lshrrev_b32 v71, 4, v{L}               ; g
    v_lshl_add_u32 v70, v71, 2, v70
    v_lshlrev_b32 v70, 7, v70
    v_and_b32 v72, 3, v{L}
    v_lshl_add_u32 v70, v72, 4, v70
    v_add_u32 v{E_W2}, {L_W2}, v70
    v_and_b32 v70, 15, v{L}
    s_lshl_b32 s{S_C}, s{S_WAVE}, 4
    v_add_u32 v70, s{S_C}, v70               ; row
    v_mul_u32_u24 v72, {ST_STRIDE}, v70
    v_lshl_add_u32 v72, v71, 4, v72
    v_add_u32 v{E_SR}, {L_ST}, v72
    v_mul_u32_u24 v72, {OF_STRIDE}, v70
    v_lshl_add_u32 v72, v71, 5, v72
    v_add_u32 v{E_OW}, {L_QT}, v72
K_np1:
    s_waitcnt vmcnt(0)
K_pfJ:""")
    stamp(a, 9)
    def count_cols(ks):
        for k in ks:
            a(f"    v_and_b32_sdwa v{vA+k}, v{vM+k//4}, s{S_D} {SD} src0_sel:BYTE_{k%4} src1_sel:DWORD")
        for k in ks:
            a(f"    s_mov_b64 exec, {mask(k)}")
            a(f"    ds_add_rtn_u32 v{vK+k}, v{vA+k}, v{t0} offset:{L_H2}")
        a(f"    s_mov_b64 exec, -1")
    count_cols(range(8))
    a(f"""
    s_cmp_eq_u32 s{S_K}, 0
    s_cbranch_scc1 K_nor2b""")
    count_cols(range(8, 16))
    a(f"""
K_nor2b:
    v_lshlrev_b32 v{t1}, 2, v{L}
    v_cmp_gt_u32 vcc, s{S_NN}, v{L}
    s_waitcnt lgkmcnt(0)
    s_barrier""")
    stamp(a, 10)
    a(f"""
    ds_read_b32 v{V_CNT}, v{t1} offset:{L_H2}
    s_waitcnt lgkmcnt(0)
    v_add_u32 v{vP}, 4, v{V_CNT}
    v_and_b32 v{vP}, -8, v{vP}
    v_max_u32 v{vP}, 64, v{vP}
    v_cndmask_b32 v{vP}, 0, v{vP}, vcc
    v_mov_b32 v{vS}, v{vP}""")
    wave_scan(a, vS)
    a(f"""
    s_nop 0
    v_readlane_b32 s{S_A}, v{vS}, 63
    v_sub_u32 v{vS}, v{vS}, v{vP}
    ds_write_b32 v{t1}, v{vS} offset:{L_SX}
    s_cmp_gt_u32 s{S_A}, {ENT_CAP*4}
    s_cbranch_scc1 K_slow""")
    def place_cols(ks, mid=None):
        ks = list(ks)
        for k in ks:
            a(f"    ds_read_b32 v{vB+k}, v{vA+k} offset:{L_SX}")
        if mid: a(mid)
        for n, k in enumerate(ks):
            if n % 2 == 0:
                a(f"    s_waitcnt lgkmcnt({len(ks)-2-n})")
            a(f"    v_add_u32 v{vK+k}, v{vB+k}, v{vK+k}")
        for k in ks:
            a(f"    s_mov_b64 exec, {mask(k)}")
            a(f"    ds_write_b32 v{vK+k}, v{vR+k} offset:{L_RL}")
        a(f"    s_mov_b64 exec, -1")
    place_cols(range(8), f"""
    s_add_u32 s{S_A}, s{S_A}, 63
    s_lshr_b32 s{S_TT}, s{S_A}, 6            ; tiles
    s_mul_i32 s{S_T0}, s{S_SLOT}, s{S_TT}
    s_add_u32 s{S_NT}, s{S_T0}, s{S_TT}
    s_mul_i32 s{S_T0}, s{S_T0}, 43691
    s_mul_i32 s{S_NT}, s{S_NT}, 43691
    s_lshr_b32 s{S_T0}, s{S_T0}, 19
    s_lshr_b32 s{S_NT}, s{S_NT}, 19
    s_sub_u32 s{S_NT}, s{S_NT}, s{S_T0}""")
    a(f"""
    s_cmp_eq_u32 s{S_K}, 0
    s_cbranch_scc1 K_nor2c
    s_waitcnt lgkmcnt(0)""")
    place_cols(range(8, 16))
    thr = [int(x) for x in optval("thr", "10_5").split("_")] + [2]
    vBk = 80
    vGr = 82
    a(f"""
K_nor2c:
    s_lshl_b32 s{S_A}, s{S_T0}, 6
    v_lshl_add_u32 v{t3}, v{V_AIDX}, 1, s{S_A}
    v_add_u32 v{t2}, s{S_A}, v{t1}
    v_cmp_ge_u32 {mask(0)}, s{S_A}, v{vS}
    v_subrev_u32 v{t0}, s{S_A}, v{vS}
    s_and_b64 {mask(0)}, {mask(0)}, vcc
    s_bcnt1_i32_b64 s{S_B}, {mask(0)}
    s_sub_u32 s{S_B}, s{S_B}, 1              ; n
    s_andn2_b64 {mask(0)}, vcc, {mask(0)}
    v_bfe_u32 v{t4}, v{t0}, 3, 3
    v_add_u32 v{t4}, 1, v{t4}
    v_lshrrev_b32 v{t0}, 6, v{t0}
    v_min_u32 v{t0}, 63, v{t0}
    v_cndmask_b32 v{t0}, 63, v{t0}, {mask(0)}
    v_lshlrev_b32 v{t0}, 2, v{t0}
    v_mov_b32 v{vBk}, 0
    {"" if "novar" in OPT else f"ds_permute_b32 v{vBk}, v{t0}, v{t4}"}
    s_lshl_b32 s{S_D}, s{S_NT}, 4""")
    for c in range(5):
        a(f"    v_cmp_gt_i32 {mask(5+c)}, s{S_D}, v{L}")
        a(f"    s_sub_u32 s{S_D}, s{S_D}, 64")
    a(f"""
    s_cmp_ge_u32 s{S_WAVE}, 7
    s_cbranch_scc1 K_nprep
    v_cvt_f32_u32 v70, s{S_TT}
    v_rcp_f32 v70, v70
    v_add3_u32 v{vP}, v{vS}, v{vP}, -4
    v_lshrrev_b32 v{vS}, 6, v{vS}
    v_lshrrev_b32 v{vP}, 6, v{vP}
    v_cvt_f32_u32 v{vS}, v{vS}
    v_cvt_f32_u32 v{vP}, v{vP}
    v_add_f32 v{vS}, {f32bits((NW-0.5)/NW):#x}, v{vS}
    v_add_f32 v{vP}, {f32bits((NW-0.5)/NW):#x}, v{vP}
    v_mul_f32 v70, {f32bits(NW):#x}, v70
    v_mul_f32 v{vS}, v{vS}, v70
    v_mul_f32 v{vP}, v{vP}, v70
    v_cvt_u32_f32 v{vS}, v{vS}
    v_cvt_u32_f32 v{vP}, v{vP}
    v_sub_u32 v{vP}, v{vP}, v{vS}
    v_add_u32 v{vS}, v{vS}, v{L}
    v_lshl_or_b32 v{vS}, v{vP}, 8, v{vS}
    v_lshl_or_b32 v{V_CNT}, v{vS}, 16, v{V_CNT}
    ds_bpermute_b32 v73, v{E_XR}, v{V_CNT}
    s_lshl_b32 s{S_C}, s{S_NN}, 2
    v_cmp_gt_u32 vcc, s{S_C}, v{E_XR}
    s_movk_i32 s{S_C}, {OF_STRIDE}
    v_mov_b32 v75, {L_Z2}
    s_waitcnt lgkmcnt(0)
    v_cndmask_b32 v73, 0, v73, vcc
    v_bfe_u32 v{E_ROW}, v73, 16, 8
    v_lshrrev_b32 v{E_XR}, 24, v73
    v_and_b32 v74, 0xffff, v73
    v_mad_u32_u24 v{E_ROW}, v{E_ROW}, s{S_C}, v{E_NX}
    v_cvt_f32_u32 v74, v74
    v_add_u32 v{E_NX}, {OF_STRIDE}, v{E_ROW}
    v_cndmask_b32 v{E_ROW}, v75, v{E_ROW}, vcc
    v_cmp_lt_u32 vcc, 0, v{E_XR}
    v_mul_f32 v74, 0x3e800000, v74           ; degree""")
    for q in range(4):
        a(f"    v_pk_mul_f32 {vr(E_DB[q],2)}, {vr(vBu[q],2)}, v[74:75] op_sel_hi:[1,0]")
    a(f"    v_cndmask_b32 v{E_R2}, v75, v{E_NX}, vcc")
    a(f"""
K_nprep:
    s_waitcnt lgkmcnt(0)
    s_barrier""")
    stamp(a, 11)
    for m in range(4):
        a(f"    ds_read_u16 v{V_IX+2*m}, v{t3} offset:{L_RL + 16*m}")
    for c in range(5):
        a(f"    ds_read_b32 v{vGr+c}, v{t2} offset:{L_RL + 256*c}")
    a(f"""
    s_lshr_b32 s{S_C}, s{S_A}, 1
    s_add_u32 s{S_C}, s{S_C}, {L_IX}
    v_add_u32 v{V_AIDX}, s{S_C}, v{V_AIDX}
    v_lshl_add_u32 v{t0}, v{L}, 1, s{S_C}
    s_mov_b32 s{S_C}, 0x03020302
    s_mov_b32 s{S_D}, 0x8001
    s_waitcnt lgkmcnt(5)""")
    for m in range(4):
        a(f"    v_and_b32 v{V_IX+2*m}, {0xfff if 'cheat1' in OPT or 'cheat2' in OPT else PADREC}, v{V_IX+2*m}")
    for h in dma_ops(): a(h)
    if "st2" in OPT:
        a(f"""
    s_cmp_lt_u32 s{S_WAVE}, 8
    s_cbranch_scc1 K_ns2
    v_add_u32 v{vPf}, 0x100000, v{vPf}
    global_load_dword v{t5}, v{vPf}, {sr(S_WS,2)} sc1
K_ns2:""")
    a(f"    ; this wave's entries -> one-hot word, (e, e), source node")
    a(f"    s_waitcnt lgkmcnt(0)")
    for c in range(5):
        a(f"    v_and_b32 v{vGr+5+c}, 0xc000, v{vGr+c}")
        a(f"    v_perm_b32 v{64+c}, v{vGr+c}, v{vGr+c}, s{S_C}")
        a(f"    v_xor_b32 v{vGr+c}, v{vGr+c}, v{vGr+5+c}")
        a(f"    v_mul_u32_u24 v{vGr+5+c}, s{S_D}, v{vGr+5+c}")
        a(f"    v_and_b32 v{vGr+5+c}, 0x40004000, v{vGr+5+c}")
    for c in range(5):
        a(f"    s_mov_b64 exec, {mask(5+c)}")
        a(f"    ds_write2st64_b32 v{t2}, v{vGr+5+c}, v{64+c} offset0:{L_G//256 + c} offset1:{L_RL//256 + c}")
        a(f"    ds_write_b16 v{t0}, v{vGr+c} offset:{128*c}")
    a(f"""
    s_mov_b64 exec, -1
    s_lshl_b32 s{S_C}, s{S_B}, 9
    s_add_u32 s{S_C}, s{S_C}, {L_QT}
    v_add_u32 v{V_AQ}, s{S_C}, v{t1}
    v_lshrrev_b32 v{t4}, 7, v{V_INCA}
    v_mad_u32_u24 v{V_AENT}, v{t4}, s{S_A}, v{V_AENT}""")
    for h in ent_reads(0) + q_reads() + idx_reads(32): a(h)
    a(f"""
    s_add_u32 s{S_C}, s{S_B}, s{S_SLOT}
    s_mul_i32 s{S_C}, s{S_C}, {ST_STRIDE}
    s_add_u32 s{S_C}, s{S_C}, {L_ST}
    v_add_u32 v{V_AS}, s{S_C}, v{t1}
    v_add_u32 v{V_AQ}, 0x200, v{V_AQ}
    v_and_b32 v{t4}, 1, v{L}
    v_mad_u32_u24 v{t4}, v{t4}, 9, v{vBk}
    v_sub_u32 v{t0}, s{S_NT}, v{L}
    v_mov_b32 v{t3}, {ENTRY}""")
    for i, th in enumerate(thr):
        a(f"    v_cmp_eq_u32 {mask(i)}, {th}, v{t0}")
    a(f"    v_cmp_eq_u32 {mask(3)}, 0, v{t0}")
    a(f"    s_movk_i32 s{S_C}, {VAR_SIZE}")
    for i, th in enumerate(thr):
        a(f"    v_cndmask_b32 v{t3}, v{t3}, {8*i}, {mask(i)}")
    a(f"""
    v_mad_u32_u24 v{t4}, v{t4}, s{S_C}, v{t3}
    v_mov_b32 v{t3}, K_exit - K_vbase
    v_cndmask_b32 v{t4}, v{t4}, v{t3}, {mask(3)}
    ds_bpermute_b32 v{V_TAB}, v{t1}, v{t4} offset:4
    s_mov_b32 s{S_K}, 1
    v_readlane_b32 s{S_J}, v{t4}, 0
    s_setprio 3
    s_waitcnt vmcnt(0)""")
    stamp(a, 12)
    for h in tr_reads(0): a(h)
    a(f"""
    s_add_u32 s{S_J}, s{S_J}, s{S_PC}
    s_addc_u32 s{S_J+1}, s{S_PC+1}, 0
    s_waitcnt lgkmcnt(0)""")
    a(small(0, 0))
    if "cheat2" in OPT:
        for m in range(2): a(f"    v_and_b32 v{V_IX+2*m}, 0xfff, v{V_IX+2*m}")
    for h in dma_ops(): a(h)
    a(small(0, 1))
    a(f"    v_lshl_or_b32 v{V_TAB}, v{V_TAB}, 16, v{t4}")
    if optval("late", "4_6"): a("    s_nop 9")
    stamp(a, 13); stamp(a, 14, True)
    a(f"    s_setpc_b64 {sr(S_J,2)}")
    a(f".p2align 6")
    a(f"K_vbase:")
    for s_ in range(2):
        for b in [None] + list(range(8)):
            tile_variant(a, s_, b)
    a(f".p2align 3")
    a(f"K_exit:")
    stamp(a, 15); stamp(a, 16, True)
    flush1(a)
    a("    s_nop 0")
    flush2(a)
    a(f"""
    v_cmp_eq_f32 vcc, 0, v{V_MN}
    s_cbranch_vccz K_join
    v_mov_b32 v65, {L_FLAG}
    ds_write_b32 v65, v65
K_join:
    s_cmp_ge_u32 s{S_WAVE}, 7
    s_cbranch_scc1 K_st2a
    s_lshl_b32 s{S_A}, s{S_N0}, 7
    s_add_u32 s{S_RT}, s{S_OUT}, s{S_A}
    s_addc_u32 s{S_RT+1}, s{S_OUT+1}, 0
    s_lshl_b32 s{S_RT+2}, s{S_NN}, 7
    s_mov_b32 s{S_RT+3}, 0x00020000
    s_movk_i32 s{S_C}, 0x207
    s_mov_b32 s{S_A}, 1
    v_mov_b32 v96, {NLN2:#x}
    v_mov_b32 v98, {L_Z2}
    s_cmp_ge_u32 s{S_WAVE}, 4
    s_cbranch_scc1 K_st2a
    ; ================= output, stage 1: products of the sum rows with w2""")
    for ot in range(4):
        for ks in range(4):
            for h in range(2):
                a(f"    ds_read_b64_tr_b16 {vr(16*ot+4*ks+2*h,2)}, v{E_W2} offset:{2048*ks+256*h+64*(ot>>1)+8*(ot&1)}")
    a(f"""
    s_waitcnt lgkmcnt(0)
    s_barrier""")
    stamp(a, 17)
    for ks in range(4):
        a(f"    ds_read_b128 {vr(64+4*ks,4)}, v{E_SR} offset:{64*ks}")
    def mf(ot, ks):
        d = vr(80 + 4*ot, 4)
        a(f"    v_mfma_f32_16x16x32_bf16 {d}, {vr(16*ot+4*ks,4)}, {vr(64+4*ks,4)}, {'0' if ks == 0 else d}")
    for ks in range(4):
        a(f"    s_waitcnt lgkmcnt({3-ks})")
        mf(0, ks); mf(1, ks)
    for ks in range(4):
        mf(2, ks); mf(3, ks)
    a(f"""
    ds_write_b128 v{E_OW}, v[80:83]
    ds_write_b128 v{E_OW}, v[84:87] offset:16
    s_nop 4
    ds_write_b128 v{E_OW}, v[88:91] offset:128
    ds_write_b128 v{E_OW}, v[92:95] offset:144
    s_waitcnt lgkmcnt(0)
    s_branch K_st2b
K_st2a:
    s_waitcnt lgkmcnt(0)
    s_barrier                                ; B9
K_st2b:
    s_cmp_ge_u32 s{S_WAVE}, 7
    s_barrier
    s_cbranch_scc1 K_fin
    ds_read_b128 v[64:67], v{E_ROW}
    ds_read_b128 v[68:71], v{E_ROW} offset:16
K_rows:
    ds_read_b128 v[72:75], v{E_R2}
    ds_read_b128 v[76:79], v{E_R2} offset:16
    v_cmp_lt_u32 vcc, s{S_A}, v{E_XR}
    v_add_u32 v{E_NX}, {OF_STRIDE}, v{E_NX}
    s_add_u32 s{S_A}, s{S_A}, 1
    s_waitcnt lgkmcnt(0)""")
    for q in range(4):
        a(f"    v_pk_add_f32 {vr(64+2*q,2)}, {vr(64+2*q,2)}, {vr(72+2*q,2)}")
    a(f"""
    v_cndmask_b32 v{E_R2}, v98, v{E_NX}, vcc
    s_cbranch_vccnz K_rows""")
    for q in range(4):
        a(f"    v_pk_fma_f32 {vr(64+2*q,2)}, {vr(64+2*q,2)}, v[96:97], {vr(E_DB[q],2)} op_sel_hi:[1,0,1]")
    for q in range(4):
        a(f"    v_cvt_pk_bf16_f32 v{72+q}, v{64+2*q}, v{65+2*q}")
    a(f"""
    buffer_store_dwordx4 v[72:75], v{E_OUT}, {sr(S_RT,4)}, 0 offen sc1
    v_cmp_class_f32 vcc, v64, s{S_C}
    s_cbranch_vccz K_fin
    v_mov_b32 v65, {L_FLAG}
    ds_write_b32 v65, v65
K_fin:
    v_mov_b32 v65, {L_FLAG}
    s_waitcnt lgkmcnt(0)
    s_barrier                                ; B10
    ds_read_b32 v64, v65
    s_waitcnt lgkmcnt(0)
    v_cmp_ne_u32 vcc, 0, v64
    {"" if "novar" in OPT or "nodma" in OPT else "s_cbranch_vccnz K_slow"}""")
    if DIAG:
        a("    s_waitcnt vmcnt(0)")
        stamp(a, 18); stamp(a, 19, True)
        a(f"""
    v_writelane_b32 v{V_STAMP}, s{S_NT}, 21
    s_lshl_b32 s{S_A}, s2, 4
    s_add_u32 s{S_A}, s{S_A}, s{S_WAVE}
    s_lshl_b32 s{S_A}, s{S_A}, 8
    s_add_u32 s{S_A}, s{S_A}, {WS_STAMP}
    v_lshl_add_u32 v64, v{L}, 2, s{S_A}
    s_mov_b64 exec, 0xffffffff
    global_store_dword v64, v{V_STAMP}, {sr(S_WS,2)}
    global_store_dword v64, v{V_TRACE}, {sr(S_WS,2)} offset:128""")
    if optval("clk", ""):
        a(f"""
    s_lshl_b32 s{S_A}, s2, 4
    s_add_u32 s{S_A}, s{S_A}, s{S_WAVE}
    s_cmp_lg_u32 s{S_A}, {16*int(optval("wg", "100"))}
    s_cbranch_scc1 K_end
    s_lshl_b32 s{S_A}, s{S_TAG+1}, 7
    s_lshr_b32 s{S_B}, s{S_TAG}, 25
    s_or_b32 s{S_A}, s{S_A}, s{S_B}
    v_cvt_f32_u32 v64, s98
    v_cvt_f32_u32 v65, s99
    v_rcp_f32 v64, v64
    s_nop 1
    v_mul_f32 v64, v64, v65
    v_subrev_f32 v64, {f32bits(15.0):#x}, v64
    v_mul_f32 v64, {f32bits(float(optval("mul", "100"))):#x}, v64
    v_cvt_u32_f32 v64, v64
    s_nop 1
    v_readfirstlane_b32 s{S_B}, v64
    s_min_u32 s{S_B}, s{S_B}, 20000
    {f's_sub_u32 s{S_B}, {optval("clk", "")}, s{S_B}' if "neg" in OPT else f's_add_u32 s{S_B}, s{S_B}, {optval("clk", "")}'}
K_spin5:
    s_memrealtime s[98:99]
    s_waitcnt lgkmcnt(0)
    s_sub_u32 s98, s98, s{S_A}
    s_cmp_lt_u32 s98, s{S_B}
    s_cbranch_scc1 K_spin5""")
    if "endamp" in OPT:
        a(f"""
    s_waitcnt vmcnt(0)
    s_memrealtime s[100:101]
    s_lshl_b32 s{S_A}, s2, 4
    s_add_u32 s{S_A}, s{S_A}, s{S_WAVE}
    s_cmp_lg_u32 s{S_A}, {16*int(optval("wg", "100"))}
    s_cbranch_scc1 K_end
    s_lshl_b32 s{S_A}, s{S_TAG+1}, 7
    s_lshr_b32 s{S_B}, s{S_TAG}, 25
    s_or_b32 s{S_A}, s{S_A}, s{S_B}
    s_waitcnt lgkmcnt(0)
    s_sub_u32 s{S_B}, s100, s98
    s_min_u32 s{S_B}, s{S_B}, 2000
    s_mul_i32 s{S_B}, s{S_B}, 20
    s_add_u32 s{S_B}, s{S_B}, 3000
K_spin4:
    s_memrealtime s[98:99]
    s_waitcnt lgkmcnt(0)
    s_sub_u32 s98, s98, s{S_A}
    s_cmp_lt_u32 s98, s{S_B}
    s_cbranch_scc1 K_spin4""")
    if optval("fix", "") != "":
        a(f"""
    s_lshl_b32 s{S_A}, s2, 4
    s_add_u32 s{S_A}, s{S_A}, s{S_WAVE}
    s_cmp_lg_u32 s{S_A}, 1600
    s_cbranch_scc1 K_end
    s_lshl_b32 s{S_A}, s{S_TAG+1}, 7
    s_lshr_b32 s{S_B}, s{S_TAG}, 25
    s_or_b32 s{S_A}, s{S_A}, s{S_B}
K_spin3:
    s_memrealtime s[98:99]
    s_waitcnt lgkmcnt(0)
    s_sub_u32 s98, s98, s{S_A}
    s_cmp_lt_u32 s98, {optval("fix", "")}
    s_cbranch_scc1 K_spin3""")
    if optval("amp", "") != "":
        a(f"""
    s_waitcnt vmcnt(0)
    s_cmp_lg_u32 s{S_WAVE}, 0
    s_cbranch_scc1 K_end
    s_lshl_b32 s{S_A}, s{S_TAG+1}, 7
    s_lshr_b32 s{S_B}, s{S_TAG}, 25
    s_or_b32 s{S_A}, s{S_A}, s{S_B}""")
        if optval("amp", "") == "99":
            a("    s_memrealtime s[98:99]\n    s_waitcnt lgkmcnt(0)")
        a(f"""
    s_sub_u32 s{S_B}, s98, s{S_A}
    s_mov_b64 exec, 1
    v_mov_b32 v64, 0
    v_mov_b32 v65, s{S_B}
    v_mov_b32 v66, 1
    global_atomic_{"add" if "avg" in OPT else "umax"} v64, v65, {sr(S_DBG,2)} offset:128 sc1
    s_waitcnt vmcnt(0)
    global_atomic_add v67, v64, v66, {sr(S_DBG,2)} offset:136 sc0 sc1
    s_waitcnt vmcnt(0)
    v_readfirstlane_b32 s{S_B}, v67
    s_cmp_lg_u32 s{S_B}, 255
    s_cbranch_scc1 K_end
    global_atomic_add v67, v64, v64, {sr(S_DBG,2)} offset:128 sc0 sc1
    s_waitcnt vmcnt(0)
    v_readfirstlane_b32 s{S_B}, v67
    s_mul_i32 s{S_B}, s{S_B}, {optval("mul", "5")}
    {f"s_lshr_b32 s{S_B}, s{S_B}, 8" if "avg" in OPT else ""}
    s_min_u32 s{S_B}, s{S_B}, {optval("base", "0") if "neg" in OPT else 200000}
    {f's_sub_u32 s{S_B}, {optval("base", "0")}, s{S_B}' if "neg" in OPT else f's_add_u32 s{S_B}, s{S_B}, {optval("base", "0")}'}
K_spin2:
    s_memrealtime s[98:99]
    s_waitcnt lgkmcnt(0)
    s_sub_u32 s98, s98, s{S_A}
    s_cmp_lt_u32 s98, s{S_B}
    s_cbranch_scc1 K_spin2""")
    a(f"""
K_end:
    s_endpgm
K_slow:
    ; ================= exact path without hand-offs: scan all edges for this bin
    s_setprio 0
    s_mov_b32 s16, s{S_N0}
    s_mov_b32 s17, s{S_NN}
    s_mov_b32 s18, s{S_WAVE}""")
    gen_slow(a, 16, 17, 18, L, NLOG2E, NW=NW)
    a("    s_endpgm")

def main():
    global DIAG
    out = sys.argv[1]
    DIAG = "diag" in sys.argv[2:]
    OPT.update(sys.argv[2:])
    a = Asm()
    a(f"""; Edge-featured MPNN layer: out[n] = sum_(e: dst=n) (silu([x[src],x[dst],e] w1 + b1) w2 + b2)
; @launch grid=(256,1,1) block=({NT_},1,1) lds={L_END}
.amdgcn_target "amdgcn-amd-amdhsa--gfx950"
.text""")
    gen_kernel(a)
    a(f"""
.section .rodata,"a"
.p2align 6
.amdhsa_kernel {KNAME}
  .amdhsa_next_free_vgpr {NVGPR}
  .amdhsa_next_free_sgpr 102
  .amdhsa_accum_offset {NVGPR}
  .amdhsa_group_segment_fixed_size 0
  .amdhsa_kernarg_size 88
  .amdhsa_user_sgpr_count 2
  .amdhsa_user_sgpr_kernarg_segment_ptr 1
  .amdhsa_system_sgpr_workgroup_id_x 1
  .amdhsa_float_denorm_mode_32 3
.end_amdhsa_kernel""")
    open(out, "w").write(a.text())

if __name__ == "__main__":
    main()
```

```python
import sys, struct
from slow import gen_slow

NAME = "standalone__edge_featured_mpnn_mpnn__graph"
KNAME = NAME + "_kernel"
N_NODES = 12500
NB = 49
NW = 12
NT_ = 64 * NW
MAINE = 4 * NT_
XTRA = 53
RSTRIDE = 16640

WS_TAB = 0x420000
WS_P = 0x4C0000
WS_STAMP = 0xA00000

L_Z = 128
L_H2 = 272
L_FLAG = 536
L_NONCE = 544
L_Z2 = 2048
OF_STRIDE = 272
L_SX = 1296
ENT_CAP = 3472
LSZ = 14080
L_ZA = 4096 - 144
L_G = 4096
L_RL = L_G + LSZ
L_ST = L_RL + LSZ
ST_STRIDE = 288
L_IX = L_ST + 20480
L_QT = (L_IX + LSZ // 2 + 255) // 256 * 256 + 512
L_XS = L_QT + 49 * 512
assert LSZ % 256 == 0 and (ENT_CAP + 48) * 4 == LSZ
L_W2 = L_XS + NW * 4096
L_B2 = L_W2 + 16384
L_END = L_B2 + 256
L_RS = L_ST
L_H1 = L_ST + 16640
L_OFF = L_H1 + 1024
L_W1 = L_XS
L_WC = L_XS + 32768
L_PS = L_WC + 512
L_XR = L_W2
PS_STRIDE = 272
assert L_XS % 256 == 0 and L_END <= 163840
assert L_H1 + 3072 <= L_IX and 64 * ST_STRIDE <= 20480 and L_OFF + 1024 < 65536 and L_PS + 56 * PS_STRIDE <= L_W2

def f32bits(x):
    return struct.unpack("<I", struct.pack("<f", x))[0]
LOG2E = 1.4426950408889634
NLOG2E = f32bits(-LOG2E)
NLN2 = f32bits(-0.6931471805599453)
PADREC = 0x3FFF
POLL_MAX = 4000

class Asm:
    def __init__(self):
        self.l = []
    def __call__(self, s=""):
        for x in s.strip("\n").split("\n"):
            if x.strip():
                self.l.append(x.rstrip())
    def text(self):
        return "\n".join(self.l) + "\n"

def vr(a, n=1):
    return f"v{a}" if n == 1 else f"v[{a}:{a+n-1}]"
def sr(a, n=1):
    return f"s{a}" if n == 1 else f"s[{a}:{a+n-1}]"

DIAG = False
OPT = set()
def optval(prefix, default):
    for o in OPT:
        if o.startswith(prefix):
            return o[len(prefix):]
    return default

V_D = 0; V_E = 64; V_A5 = 96; V_B5 = 98; V_ND = 102; V_T = 110; V_R = 114; V_O = 118; V_IX = 132
V_AA = 140; V_AIDX = 141; V_AENT = 142; V_AQ = 143; V_INCA = 144; V_AS = 145; V_MN = 146; V_PSEL = 147
V_PF = 126; V_TAB = 148; V_CNT = 149; V_S = 150; V_P = 151; V_LANE = 154; V_TID = 155
V_J = 156; V_HH = 157
E_W2 = 147; E_SR = 164; E_OW = 165
E_ROW = 122; E_XR = 123; E_NX = 124; E_R2 = 125; E_OUT = 127; E_DB = [128, 130, 150, 152]
V_STAMP = 167; V_TRACE = 166
NVGPR = 168
S_X = 4; S_E = 6; S_SRC = 8; S_DST = 10; S_W1 = 12; S_B1 = 14; S_W2 = 16; S_B2 = 18; S_OUT = 20; S_DBG = 22; S_WS = 24
S_BIN = 26; S_N0 = 27; S_NN = 28; S_WAVE = 29; S_MODE = 30; S_K = 31; S_PC = 32; S_J = 34
S_RX = 36; S_RT = 40; S_RR = 44; S_P = 48; S_JJ = 52
S_T0 = 56; S_NT = 57; S_TT = 58; S_SLOT = 59; S_A = 60; S_B = 61; S_C = 62; S_D = 63; S_TAG = 64
S_M = 66
def mask(k): return sr(S_M + 2*k, 2)

def stamp(a, k, real=False):
    if optval("clk", ""):
        if k == 13: a("    s_memrealtime s[98:99]\n    s_memtime s[100:101]\n    s_waitcnt lgkmcnt(0)\n    s_mov_b32 s99, s100")
        if k == 15: a("    s_memrealtime s[96:97]\n    s_memtime s[100:101]\n    s_waitcnt lgkmcnt(0)\n    s_sub_u32 s98, s96, s98\n    s_sub_u32 s99, s100, s99")
        return
    if "endamp" in OPT:
        if k == 17: a("    s_memrealtime s[98:99]\n    s_waitcnt lgkmcnt(0)")
        return
    if optval("amp", "") != "":
        if int(optval("amp", "")) == k:
            a("    s_memrealtime s[98:99]\n    s_waitcnt lgkmcnt(0)")
        if k == 6 and optval("sel", ""):
            a("    s_memrealtime s[100:101]\n    s_waitcnt lgkmcnt(0)")
        return
    if not DIAG:
        return
    a(f"    {'s_memrealtime' if real else 's_memtime'} s[100:101]")
    a(f"    s_waitcnt lgkmcnt(0)")
    a(f"    v_writelane_b32 v{V_STAMP}, s100, {k}")

def wave_scan(a, v):
    for sh in (1, 2, 4, 8):
        a(f"    s_nop 1")
        a(f"    v_add_u32_dpp v{v}, v{v}, v{v} row_shr:{sh} row_mask:0xf bank_mask:0xf")
    a(f"    s_nop 1")
    a(f"    v_add_u32_dpp v{v}, v{v}, v{v} row_bcast:15 row_mask:0xa bank_mask:0xf")
    a(f"    s_nop 1")
    a(f"    v_add_u32_dpp v{v}, v{v}, v{v} row_bcast:31 row_mask:0xc bank_mask:0xf")

SD = "dst_sel:DWORD dst_unused:UNUSED_PAD"

def dreg(s, c): return V_D + 32*s + 16*c
def small(s, c):
    d = vr(dreg(s, c), 16)
    return f"    v_mfma_f32_32x32x8_bf16 {d}, {vr(V_A5,2)}, {vr(V_B5+2*c,2)}, {d}"
def tr_reads(s):
    return [f"    ds_read_b64_tr_b16 {vr(dreg(s,c)+2*u,2)}, v{V_AA} offset:{512*u+128*c}" for u in range(8) for c in range(2)]
def ent_reads(off):
    return [f"    ds_read_b32 v{V_A5}, v{V_AENT} offset:{off}",
            f"    ds_read_b32 v{V_A5+1}, v{V_AENT} offset:{off + L_RL - L_G}"]
def q_reads():
    return [f"    ds_read_b32 v{V_B5+2*c}, v{V_AQ} offset:{256*c}" for c in range(2)]
def idx_reads(off):
    return [f"    ds_read_u16 v{V_IX+2*m}, v{V_AIDX} offset:{off + 8*m}" for m in range(4)]
def dma_ops():
    if "nodma" in OPT: return []
    return [f"    buffer_load_dwordx4 {vr(V_IX+2*m,2)}, {sr(S_RX,4)}, s{S_P+m} idxen offen offset:{1024*m} sc1 lds" for m in range(4)]

def flush1(a):
    for c in range(2):
        D = V_ND + 4*c + 2
        a(f"    v_rcp_f32 v{V_R+2*c}, v{D}")
        a(f"    v_rcp_f32 v{V_R+2*c+1}, v{D+1}")
def flush2(a):
    for c in range(2):
        a(f"    v_pk_mul_f32 {vr(V_O+2*c,2)}, {vr(V_ND+4*c,2)}, {vr(V_R+2*c,2)}")
    for c in range(2):
        a(f"    v_min3_f32 v{V_MN}, v{V_MN}, v{V_R+2*c}, v{V_R+2*c+1}")
    for c in range(2):
        a(f"    v_add_f32 v{V_O+2*c}, v{V_O+2*c}, v{V_O+2*c+1}")
    a(f"    v_cvt_pk_bf16_f32 v{V_O}, v{V_O}, v{V_O+2}")
    a(f"    ds_write_b32 v{V_AS}, v{V_O}")

def y_phase(a, s, b, us=range(8), nsrc=None):
    if nsrc is None: nsrc = [V_ND + 4*c for c in range(2)]
    a(".p2align 3")
    for u in us:
        if u == b:
            flush1(a)
            for c in range(2):
                a(f"    v_pk_add_f32 {vr(V_ND+4*c+2,2)}, {vr(V_E+16*c+2*u,2)}, 1.0 op_sel_hi:[1,0]")
            flush2(a)
            for c in range(2):
                p = dreg(s, c) + 2*u
                if u == 7:
                    a(f"    v_pk_mov_b32 {vr(V_ND+4*c,2)}, {vr(p,2)}, {vr(p,2)} op_sel:[0,1]")
                else:
                    nsrc[c] = p
            continue
        for c in range(2):
            a(f"    v_pk_fma_f32 {vr(V_T+2*c,2)}, {vr(dreg(s,c)+2*u,2)}, {vr(V_ND+4*c+2,2)}, {vr(nsrc[c],2)}")
        for c in range(2):
            D = V_ND + 4*c + 2
            a(f"    v_pk_fma_f32 {vr(D,2)}, {vr(D,2)}, {vr(V_E+16*c+2*u,2)}, {vr(D,2)}")
        for c in range(2):
            a(f"    v_pk_fma_f32 {vr(V_ND+4*c,2)}, {vr(nsrc[c],2)}, {vr(V_E+16*c+2*u,2)}, {vr(V_T+2*c,2)}")
            nsrc[c] = V_ND + 4*c

VAR_SIZE = 960
ENTRY = 24
def tile_variant(a, s, b):
    name = f"{s}{'N' if b is None else b}"
    vi = 9*s + (0 if b is None else b + 1)
    a(f".org K_vbase + {VAR_SIZE*vi}, 0")
    a(f"    s_setprio 2\n    s_branch K_var{name}\n    s_setprio 1\n    s_branch K_var{name}\n    s_setprio 0")
    a(f"    s_nop 0")
    a(f"K_var{name}:")
    bnd = b is not None
    if "trace" in OPT and s == 0:
        a(f"    s_memtime s[100:101]\n    s_mov_b32 s{S_A}, m0\n    s_mov_b32 m0, s{S_K}\n    s_waitcnt lgkmcnt(0)")
        a(f"    v_writelane_b32 v{V_TRACE}, s100, m0\n    s_mov_b32 m0, s{S_A}")
    es = [f"    v_exp_f32 v{V_E+16*c+2*u+h}, v{dreg(s,c)+2*u+h}" for u in range(8) for c in range(2) for h in range(2)]
    head = ent_reads(64 + 64*s) + (q_reads() if bnd else []) + tr_reads(s ^ 1) + idx_reads(64 + 32*s)
    plain = [f"    v_readlane_b32 s{S_JJ}, v{V_TAB}, s{S_K}"] if s == 0 else \
            [f"    v_add_u32 v{V_AENT}, v{V_INCA}, v{V_AENT}", f"    v_add_u32 v{V_AIDX}, 64, v{V_AIDX}"]
    if bnd: plain.append(f"    v_add_u32 v{V_AQ}, 0x200, v{V_AQ}")
    jump = [f"    s_and_b32 s{S_J}, s{S_JJ}, 0xffff", f"    s_add_u32 s{S_K}, s{S_K}, 2"] if s == 0 else [f"    s_lshr_b32 s{S_J}, s{S_JJ}, 16"]
    jump += [f"    s_add_u32 s{S_J}, s{S_J}, s{S_PC}", f"    s_addc_u32 s{S_J+1}, s{S_PC+1}, 0"]
    late = optval("late", "4_6")
    if late:
        ua, ub = [int(x) for x in late.split("_")]
        for e in es[:4*ub]: a(e)
        nsrc = [V_ND + 4*c for c in range(2)]
        y_phase(a, s, b, range(0, ua), nsrc)
        a("    s_waitcnt vmcnt(0)")
        for h in head: a(h)
        y_phase(a, s, b, range(ua, ub), nsrc)
        a(f"    s_waitcnt lgkmcnt(0)")
        for h in dma_ops(): a(h)
        a(small(s ^ 1, 0))
        for e in es[4*ub:4*ub+4]: a(e)
        a(small(s ^ 1, 1))
        for e in es[4*ub+4:]: a(e)
        for p_ in plain + jump: a(p_)
        y_phase(a, s, b, range(ub, 8), nsrc)
    else:
        n1 = int(optval("n1_", "16"))
        a("    s_waitcnt vmcnt(0)")
        for h in head: a(h)
        for e in es[:n1-2]: a(e)
        for p_ in plain: a(p_)
        for e in es[n1-2:n1]: a(e)
        a(f"    s_waitcnt lgkmcnt(0)")
        for h in dma_ops(): a(h)
        a(small(s ^ 1, 0))
        for e in es[n1:n1+4]: a(e)
        a(small(s ^ 1, 1))
        for e in es[n1+4:]: a(e)
        for p_ in jump: a(p_)
        y_phase(a, s, b)
    if bnd:
        a(f"    v_add_u32 v{V_AS}, {ST_STRIDE}, v{V_AS}")
    a(f"    s_setpc_b64 {sr(S_J,2)}")

def gen_kernel(a):
    L = V_LANE; T = V_TID; J = V_J; HH = V_HH
    t0, t1, t2, t3, t4, t5 = 158, 159, 160, 161, 162, 163
    step = NT_ * 16
    vDst = 0
    vSrc = 8
    vEa = 14
    tc = 17
    vTg = 18
    vBa = 20
    vRk = 26
    vWp = 31
    vOf = 32
    vC8 = 37; vWa = 38; vTa = 39
    vX = 40
    vWf = 56
    vPad = 56
    vAc = 72
    vTb = 88
    vXa = 88
    vB1 = 96
    vCl = 120
    v4k = 125
    vPf = 126
    vZ = 128
    vG4 = 164; vSb = 165
    vS = V_S; vP = V_P
    a(f"""
.p2align 8
.globl {KNAME}
.type {KNAME},@function
{KNAME}:
    s_cmp_ge_u32 s2, 256
    s_cbranch_scc1 K_end
    s_load_dwordx8 s[4:11], s[0:1], 0
    s_load_dwordx8 s[12:19], s[0:1], 32      ; w1, b1, w2, b2
    s_load_dwordx4 s[20:23], s[0:1], 64
    s_load_dwordx2 s[24:25], s[0:1], 80      ; ws
    s_memrealtime {sr(S_TAG,2)}
    v_lshrrev_b32 v1, 6, v0
    v_mov_b32 v{T}, v0
    v_readfirstlane_b32 s{S_WAVE}, v1
    v_and_b32 v{L}, 63, v0
    s_mul_i32 s3, s2, {MAINE*4}
    v_lshl_add_u32 v{t0}, v0, 4, s3          ; byte offset into src/dst
    v_lshrrev_b32 v{t1}, 1, v{t0}
    s_and_b32 s{S_BIN}, s2, 7
    s_lshl_b32 s{S_BIN}, s{S_BIN}, 5
    s_lshr_b32 s3, s2, 3
    s_add_u32 s{S_BIN}, s{S_BIN}, s3
    s_mul_i32 s{S_N0}, s{S_BIN}, {NB}
    s_sub_u32 s{S_NN}, {N_NODES}, s{S_N0}
    s_min_u32 s{S_NN}, s{S_NN}, {NB}
    v_and_b32 v{J}, 31, v0
    v_bfe_u32 v{HH}, v0, 5, 1
    s_mov_b32 s{S_MODE}, 0
    v_mov_b32 v{vZ}, 0
    v_mov_b32 v{vZ+1}, 0
    v_mov_b32 v{vZ+2}, 0
    v_mov_b32 v{vZ+3}, 0
    v_lshlrev_b32 v{t2}, 2, v0""")
    if DIAG:
        a(f"    v_mov_b32 v{V_STAMP}, 0\n    v_mov_b32 v{V_TRACE}, 0")
        stamp(a, 0, True); stamp(a, 1)
    a(f"""
    s_waitcnt lgkmcnt(0)
    global_load_dwordx4 {vr(vDst,4)}, v{t0}, {sr(S_DST,2)}
    {f"s_add_u32 s98, s{S_TAG}, 200" if optval("amp", "") == "1" else ""}
    ds_write_b32 v{t2}, v{vZ} offset:{L_H1}
    s_cmp_lg_u32 s{S_WAVE}, 11
    s_cbranch_scc1 K_ld1
    ; wave 11 also takes the 53 extra edges of this chunk
    s_mul_i32 s{S_A}, s2, {XTRA}
    s_add_u32 s{S_A}, s{S_A}, {256*MAINE}
    v_min_u32 v{t5}, {XTRA-1}, v{L}
    v_add_lshl_u32 v{t5}, v{t5}, s{S_A}, 2
    v_lshrrev_b32 v{t4}, 1, v{t5}
    global_load_dword v{vDst+4}, v{t5}, {sr(S_DST,2)}
    global_load_dword v{vSrc+4}, v{t5}, {sr(S_SRC,2)}
    global_load_ushort v{vEa+2}, v{t4}, {sr(S_E,2)}
K_ld1:
    s_cmp_ge_u32 s2, 32
    s_cbranch_scc1 K_ldJ
    s_sub_u32 s{S_A}, s{S_WAVE}, 5
    s_cmp_ge_u32 s{S_A}, 3
    s_cbranch_scc1 K_ld2
    s_lshl_b32 s{S_A}, s{S_A}, 13
    v_lshl_add_u32 v{t5}, v{L}, 7, s{S_A}
    s_getpc_b64 {sr(S_J,2)}
    global_load_dword v{t4}, v{t5}, {sr(S_J,2)} offset:1024
K_ld2:
    ; workgroup 0, wave 9 publishes the hand-off tag of this launch (39 clock bits, never zero)
    s_lshl_b32 s{S_A}, s2, 4
    s_add_u32 s{S_A}, s{S_A}, s{S_WAVE}
    s_cmp_lg_u32 s{S_A}, 9
    s_cbranch_scc1 K_ldJ
    s_lshl_b32 s{S_A}, s{S_TAG}, 25
    s_or_b32 s{S_A}, s{S_A}, 1
    s_lshr_b64 {sr(S_TAG,2)}, {sr(S_TAG,2)}, 7
    v_mov_b32 v{t4}, s{S_A}
    v_mov_b32 v{t4+1}, s{S_TAG}
    s_mov_b64 exec, 1
    global_store_dwordx2 v{vZ}, {vr(t4,2)}, {sr(S_DBG,2)} sc1
    s_mov_b64 exec, -1
K_ldJ:
    s_lshl_b32 s{S_A}, s{S_WAVE}, 11
    s_cmp_ge_u32 s{S_WAVE}, 8
    s_cbranch_scc1 K_stX
    ; waves 0..7 stage w1 rows 0..63 (64-byte blocks of a row swapped by row&3)
    s_add_u32 m0, s{S_A}, {L_W1}
    v_lshrrev_b32 v{t3}, 2, v{L}
    v_and_b32 v{t3}, 12, v{t3}
    v_xor_b32 v{t3}, v{t3}, v{L}
    v_lshl_add_u32 v{t5}, v{t3}, 4, s{S_A}
    global_load_lds_dwordx4 v{t5}, {sr(S_W1,2)}
    global_load_lds_dwordx4 v{t5}, {sr(S_W1,2)} offset:1024
    s_branch K_stJ
K_stX:
    ; waves 8..11 stage the x rows of this bin (16-byte pieces swizzled inside each row)
    s_mov_b32 s{S_RX}, s4
    s_mov_b32 s{S_RX+1}, s5
    s_mov_b32 s{S_RX+2}, {N_NODES*128}
    s_mov_b32 s{S_RX+3}, 0x00020000
    s_add_u32 m0, s{S_A}, {L_XR - 16384}
    s_lshl_b32 s{S_B}, s{S_N0}, 7
    s_add_u32 s{S_A}, s{S_A}, s{S_B}
    s_sub_u32 s{S_A}, s{S_A}, 16384
    v_lshrrev_b32 v{t3}, 4, v{L}
    v_xor_b32 v{t3}, v{t3}, v{L}
    v_lshl_add_u32 v{t3}, v{t3}, 4, s{S_A}
    v_xor_b32 v{t5}, 64, v{t3}
    buffer_load_dwordx4 v{t3}, {sr(S_RX,4)}, 0 offen lds
    buffer_load_dwordx4 v{t5}, {sr(S_RX,4)}, 0 offen offset:1024 lds
K_stJ:
    s_waitcnt lgkmcnt(0)
    s_barrier
    v_mov_b32 v{vPad}, {PADREC}
    v_mov_b32 v{vPad+1}, {PADREC}
    v_mov_b32 v{vPad+2}, {PADREC}
    v_mov_b32 v{vPad+3}, {PADREC}
    v_lshlrev_b32 v{t2}, 4, v{T}
    ds_write_b128 v{t2}, {vr(vPad,4)} offset:{L_RL}
    s_cmp_ge_u32 s{S_WAVE}, 4
    s_cbranch_scc1 K_in1
    ds_write_b128 v{t2}, {vr(vZ,4)}
    ds_write_b128 v{t2}, {vr(vPad,4)} offset:{L_ST - 4096}
K_in1:
    s_cmp_lg_u32 s{S_WAVE}, 4
    s_cbranch_scc1 K_in2
    v_lshlrev_b32 v{t3}, 2, v{L}
    ds_write_b32 v{t3}, v{vZ} offset:{L_RL - 256}
K_in2:
    global_load_dwordx4 {vr(vSrc,4)}, v{t0}, {sr(S_SRC,2)}
    global_load_dwordx2 {vr(vEa,2)}, v{t1}, {sr(S_E,2)}
    s_cmp_ge_u32 s{S_WAVE}, 8
    s_cbranch_scc1 K_st2
    s_add_u32 m0, m0, 16384
    v_add_u32 v{t5}, 0x4000, v{t5}
    global_load_lds_dwordx4 v{t5}, {sr(S_W1,2)}
    global_load_lds_dwordx4 v{t5}, {sr(S_W1,2)} offset:1024
    s_branch K_st3
K_st2:
    s_mov_b32 m0, {L_WC}
    v_lshlrev_b32 v{t3}, 2, v{L}
    v_add_u32 v{t4}, 0x8000, v{t3}
    global_load_lds_dword v{t4}, {sr(S_W1,2)}
    s_mov_b32 m0, {L_WC + 256}
    s_nop 0
    global_load_lds_dword v{t3}, {sr(S_B1,2)}
K_st3:
    v_and_b32 v{vC8}, 3, v{L}
    v_lshlrev_b32 v{vC8}, 3, v{vC8}
    v_and_b32 v{t1}, 16, v{L}
    v_lshl_add_u32 v{vC8}, v{t1}, 1, v{vC8}  ; 8c + 32(g&1)
    s_lshr_b32 s{S_D}, s{S_WAVE}, 1          ; ct
    v_bfe_u32 v{t0}, v{L}, 2, 2
    v_xor_b32 v{t3}, s{S_D}, v{t0}
    v_lshlrev_b32 v{t3}, 6, v{t3}
    v_lshl_add_u32 v{t0}, v{HH}, 3, v{t0}
    v_lshl_add_u32 v{t0}, v{t0}, 8, v{t3}
    v_add_u32 v{vWa}, {L_W1}, v{t0}          ; k row 8*hh + r, column block ct^r
    v_and_b32 v{vWp}, 1, v{L}
    v_lshl_add_u32 v{vWp}, v{vWp}, 5, v{vWa}
    v_and_b32 v{t3}, 16, v{L}
    v_add_u32 v{vWp}, v{vWp}, v{t3}
    v_and_b32 v{t3}, 2, v{L}
    v_lshl_add_u32 v{vWp}, v{t3}, 2, v{vWp}  ; + 16(c&1) + 4(2(g&1) + (c>>1)) columns
    s_and_b32 s{S_A}, s{S_WAVE}, 1
    s_lshl_b32 s{S_A}, s{S_A}, 12
    s_add_u32 s{S_A}, s{S_A}, {L_XR}
    v_bfe_u32 v{t3}, v{L}, 1, 3
    v_xor_b32 v{t3}, v{t3}, v{HH}
    v_lshl_add_u32 v{t3}, v{t3}, 4, s{S_A}
    v_lshl_add_u32 v{vXa}, v{J}, 7, v{t3}
    v_xor_b32 v{vXa+1}, 32, v{vXa}
    v_xor_b32 v{vXa+2}, 64, v{vXa}
    v_xor_b32 v{vXa+3}, 0x60, v{vXa}
    s_mov_b32 s{S_A}, 21400
    s_mov_b32 s{S_B}, -{NB}
    s_mov_b32 s{S_C}, 0xffff0000
    v_mov_b32 v{t5}, 0x10004
    v_mov_b32 v{vBa+4}, 0
    v_mov_b32 v{v4k}, 0x4000
    s_waitcnt vmcnt(6)
    s_cmp_lg_u32 s{S_WAVE}, 11
    s_cbranch_scc1 K_wJ
    s_bfm_b64 exec, {XTRA}, 0""")
    assert L_ST - L_RL <= step + 4096
    def binops(cols):
        for i in cols: a(f"    v_mul_u32_u24 v{vBa+i}, s{S_A}, v{vDst+i}")
        for i in cols: a(f"    v_lshrrev_b32 v{vBa+i}, 18, v{vBa+i}")
        for i in cols:
            a(f"    v_and_b32 v{vBa+i}, 0x3fc, v{vBa+i}")
            a(f"    ds_add_rtn_u32 v{vRk+i}, v{vBa+i}, v{t5} offset:{L_H1}")
        for i in cols: a(f"    v_lshlrev_b32 v{vDst+i}, 2, v{vDst+i}")
        for i in cols: a(f"    v_mad_i32_i24 v{vDst+i}, v{vBa+i}, s{S_B}, v{vDst+i}")
        for i in cols: a(f"    v_bfe_u32 v{vCl+i}, v{vDst+i}, 2, 1")
    binops([4])
    a(f"""
    s_mov_b64 exec, -1
K_wJ:""")
    stamp(a, 2)
    binops(range(4))
    a(f"""
    s_waitcnt vmcnt(4) lgkmcnt(0)
    s_barrier""")
    stamp(a, 3)
    a(f"""
    s_cmp_eq_u32 s{S_WAVE}, 8
    s_cbranch_scc1 K_scan1
    s_cmp_gt_u32 s{S_WAVE}, 8
    s_cbranch_scc1 K_notP
    ; ---- waves 0..7: P^T tile = -log2(e) * (x w1[0:64])^T""")
    for s_ in range(4):
        a(f"    ds_read_b128 {vr(vX+4*s_,4)}, v{vXa+s_}")
        for h in range(2):
            a(f"    ds_read_b64_tr_b16 {vr(vWf+4*s_+2*h,2)}, v{vWp} offset:{4096*s_+1024*h}")
    for s_ in range(4):
        a(f"    s_waitcnt lgkmcnt({9-3*s_})")
        cin = "0" if s_ == 0 else vr(vAc, 16)
        a(f"    v_mfma_f32_32x32x16_bf16 {vr(vAc,16)}, {vr(vWf+4*s_,4)}, {vr(vX+4*s_,4)}, {cin}")
    a(f"""
    s_and_b32 s{S_B}, s{S_WAVE}, 1
    s_mul_i32 s{S_A}, s{S_B}, {32*PS_STRIDE}
    s_lshl_b32 s{S_B}, s{S_D}, 6
    s_add_u32 s{S_A}, s{S_A}, s{S_B}
    s_add_u32 s{S_A}, s{S_A}, {L_PS}
    v_mul_u32_u24 v{t3}, {PS_STRIDE}, v{J}
    v_lshl_add_u32 v{t3}, v{HH}, 5, v{t3}
    v_add_u32 v{t3}, s{S_A}, v{t3}
    v_mov_b32 v{t4}, {NLOG2E:#x}
    v_cmp_gt_u32 vcc, {L_PS + 56*PS_STRIDE}, v{t3}
    s_nop 1""")
    for q in range(8):
        a(f"    v_pk_mul_f32 {vr(vAc+2*q,2)}, {vr(vAc+2*q,2)}, {vr(t4,2)} op_sel_hi:[1,0]")
    for q in range(8):
        a(f"    v_cvt_pk_bf16_f32 v{vAc+q}, v{vAc+2*q}, v{vAc+2*q+1}")
    a(f"""
    s_mov_b64 exec, vcc
    ds_write_b128 v{t3}, {vr(vAc,4)}
    ds_write_b128 v{t3}, {vr(vAc+4,4)} offset:16
    s_mov_b64 exec, -1
    s_branch K_b3
K_notP:
    v_lshlrev_b32 v{t1}, 4, v{L}
    v_add_u32 v{t4}, {L_PS + 48*PS_STRIDE}, v{t1}
    v_add_u32 v{t1}, {48*256}, v{t1}
    s_branch K_b3
K_scan1:
    ; ---- wave 8: segment offsets; a segment is n records (4 bytes) followed by n node bytes, padded to 4
    s_setprio 2
    global_load_dwordx2 {vr(vTg,2)}, v{vZ}, {sr(S_DBG,2)}
    v_lshlrev_b32 v{t0}, 4, v{L}
    ds_read_b128 v[56:59], v{t0} offset:{L_H1}
    s_waitcnt lgkmcnt(0)""")
    for i in range(4):
        a(f"    v_lshrrev_b32 v{60+i}, 16, v{56+i}")
    for i in range(4):
        a(f"    v_mad_u32_u24 v{64+i}, v{60+i}, 5, 3")
    for i in range(4):
        a(f"    v_and_b32 v{64+i}, -4, v{64+i}")
    a(f"""
    v_add_u32 v65, v64, v65
    v_add_u32 v66, v65, v66
    v_add_u32 v67, v66, v67
    v_mov_b32 v68, v67""")
    wave_scan(a, 68)
    a(f"""
    v_sub_u32 v68, v68, v67
    v_add_u32 v69, v68, v64
    v_add_u32 v70, v68, v65
    v_add_u32 v71, v68, v66
    s_mov_b32 s{S_A}, 0x10001""")
    for i in range(4):
        a(f"    v_mul_u32_u24 v{64+i}, s{S_A}, v{68+i}")
    for i in range(4):
        a(f"    v_lshl_add_u32 v{64+i}, v{56+i}, 16, v{64+i}")
    a(f"""
    ds_write_b128 v{t0}, v[64:67] offset:{L_OFF}
    s_setprio 0
K_b3:
    v_lshrrev_b32 v{t0}, 4, v{T}
    v_lshl_add_u32 v{t0}, v{t0}, 4, v{t2}
    v_add_u32 v{t0}, {L_PS}, v{t0}
    s_lshl_b32 s{S_A}, s{S_N0}, 8
    s_add_u32 s{S_A}, s{S_A}, {WS_P}
    s_add_u32 s{S_RT}, s{S_WS}, s{S_A}
    s_addc_u32 s{S_RT+1}, s{S_WS+1}, 0
    s_lshl_b32 s{S_RT+2}, s{S_NN}, 8
    s_mov_b32 s{S_RT+3}, 0x00020000
    s_waitcnt lgkmcnt(0)
    s_barrier                                ; B3: segment offsets, P staged""")
    stamp(a, 4)
    a(f"""
    s_cmp_lt_u32 s{S_WAVE}, 10
    s_cbranch_scc1 K_nx0
    ds_read_b32 v{vOf+4}, v{vBa+4} offset:{L_OFF}
    ds_read_b128 v[76:79], v{t4}
K_nx0:
    ds_read_b128 v[72:75], v{t0}""")
    for i in range(4):
        a(f"    ds_read_b32 v{vOf+i}, v{vBa+i} offset:{L_OFF}")
    a(f"""
    s_waitcnt lgkmcnt(4)
    buffer_store_dwordx4 v[72:75], v{t2}, {sr(S_RT,4)}, 0 offen sc1
    s_waitcnt vmcnt(3)
    v_lshl_or_b32 v{vSrc}, v{v4k}, v{vCl}, v{vSrc}
    v_lshl_or_b32 v{vSrc+1}, v{v4k}, v{vCl+1}, v{vSrc+1}
    v_lshl_or_b32 v{vSrc+2}, v{v4k}, v{vCl+2}, v{vSrc+2}
    v_lshl_or_b32 v{vSrc+3}, v{v4k}, v{vCl+3}, v{vSrc+3}
    v_lshl_or_b32 v{vSrc}, v{vEa}, 16, v{vSrc}
    v_and_or_b32 v{vSrc+1}, v{vEa}, s{S_C}, v{vSrc+1}
    v_lshl_or_b32 v{vSrc+2}, v{vEa+1}, 16, v{vSrc+2}
    v_and_or_b32 v{vSrc+3}, v{vEa+1}, s{S_C}, v{vSrc+3}
    s_waitcnt lgkmcnt(0)""")
    def scatter(i):
        a(f"    v_add_u32_sdwa v{vBa+i}, v{vOf+i}, v{vRk+i} {SD} src0_sel:WORD_0 src1_sel:WORD_0")
        a(f"    v_add_u32_sdwa v{vOf+i}, v{vOf+i}, v{vRk+i} {SD} src0_sel:WORD_1 src1_sel:WORD_1")
        a(f"    ds_write_b32 v{vBa+i}, v{vSrc+i} offset:{L_RS}")
        a(f"    ds_write_b8 v{vOf+i}, v{vDst+i} offset:{L_RS}")
    for i in range(4): scatter(i)
    a(f"""
    s_cmp_lt_u32 s{S_WAVE}, 10
    s_cbranch_scc1 K_nx2
    s_cmp_eq_u32 s{S_WAVE}, 11
    s_cbranch_scc1 K_x2
    buffer_store_dwordx4 v[76:79], v{t1}, {sr(S_RT,4)}, 0 offen sc1
    s_branch K_nx2
K_x2:
    s_bfm_b64 exec, {XTRA}, 0
    v_lshl_or_b32 v{vSrc+4}, v{v4k}, v{vCl+4}, v{vSrc+4}
    v_lshl_or_b32 v{vSrc+4}, v{vEa+2}, 16, v{vSrc+4}""")
    scatter(4)
    a(f"""
    s_mov_b64 exec, -1
K_nx2:
    s_mul_i32 s{S_A}, s2, {RSTRIDE}
    s_add_u32 s{S_RR}, s{S_WS}, s{S_A}
    s_addc_u32 s{S_RR+1}, s{S_WS+1}, 0
    s_mov_b32 s{S_RR+2}, 16512
    s_mov_b32 s{S_RR+3}, 0x00020000
    v_add_u32 v{t3}, {step}, v{t2}
    s_waitcnt lgkmcnt(0)
    s_barrier""")
    stamp(a, 5)
    a(f"""
    ds_read_b128 v[0:3], v{t2} offset:{L_RS}
    s_cmp_ge_u32 s{S_WAVE}, 5
    s_cbranch_scc1 K_co1
    ds_read_b128 v[8:11], v{t2} offset:{L_RS + step}
    s_waitcnt lgkmcnt(0)
    buffer_store_dwordx4 v[8:11], v{t3}, {sr(S_RR,4)}, 0 offen sc1
K_co1:
    s_waitcnt lgkmcnt(0)
    buffer_store_dwordx4 v[0:3], v{t2}, {sr(S_RR,4)}, 0 offen sc1
    ; ---- lane constants, while the stores drain
    ; gather: lane -> row l>>4 of 4, piece l&15; odd rows have their 64-byte blocks swapped pairwise
    v_and_b32 v{tc}, 15, v{L}
    v_bfe_u32 v{t3}, v{L}, 4, 1
    v_lshlrev_b32 v{t3}, 2, v{t3}
    v_xor_b32 v{tc}, v{tc}, v{t3}
    v_lshlrev_b32 v{V_IX+1}, 4, v{tc}
    v_mov_b32 v{V_IX+3}, v{V_IX+1}
    v_mov_b32 v{V_IX+5}, v{V_IX+1}
    v_mov_b32 v{V_IX+7}, v{V_IX+1}
    v_lshrrev_b32 v{V_AIDX}, 4, v{L}
    v_lshlrev_b32 v{V_AIDX}, 1, v{V_AIDX}
    v_bfe_u32 v{tc}, v{L}, 3, 1
    v_xor_b32 v{t3}, v{tc}, v{HH}
    v_lshl_add_u32 v{t3}, v{t3}, 6, v{vC8}
    v_lshl_add_u32 v{tc}, v{tc}, 8, v{t3}
    s_lshl_b32 s{S_B}, s{S_WAVE}, 12
    s_add_u32 s{S_B}, s{S_B}, {L_XS}
    v_add_u32 v{tc}, s{S_B}, v{tc}
    v_bfe_u32 v{t4}, v{L}, 2, 1
    v_cmp_ne_u32 vcc, 0, v{t4}
    v_mov_b32 v{t3}, {L_Z}
    v_mov_b32 v{V_MN}, 1.0
    v_cndmask_b32 v{V_AA}, v{t3}, v{tc}, vcc
    v_cmp_eq_u32 {mask(0)}, v{t4}, v{HH}
    v_bfe_u32 v{tc}, v{L}, 3, 2
    v_and_b32 v{t3}, 3, v{L}
    v_lshl_add_u32 v{tc}, v{tc}, 2, v{t3}
    v_lshlrev_b32 v{tc}, 2, v{tc}
    v_add_u32 v{tc}, {L_G}, v{tc}
    v_mov_b32 v{t3}, {L_ZA}
    v_cndmask_b32 v{V_AENT}, v{t3}, v{tc}, {mask(0)}
    v_mov_b32 v{t3}, 0x80
    v_cndmask_b32 v{V_INCA}, 0, v{t3}, {mask(0)}""")
    for m in range(4):
        a(f"    s_movk_i32 s{S_P+m}, {3072 - 1024*m}")
    for c in range(2):
        a(f"    v_mov_b32 v{V_ND+4*c}, 0")
        a(f"    v_mov_b32 v{V_ND+4*c+1}, 0")
        a(f"    v_mov_b32 v{V_ND+4*c+2}, 1.0")
        a(f"    v_mov_b32 v{V_ND+4*c+3}, 1.0")
    a(f"""
    s_and_b32 s{S_A}, s{S_WAVE}, 3
    s_mul_i32 s{S_A}, s{S_A}, 3
    s_lshr_b32 s{S_B}, s{S_WAVE}, 2
    s_add_u32 s{S_SLOT}, s{S_A}, s{S_B}
    s_getpc_b64 {sr(S_PC,2)}
K_pc:
    s_add_u32 s{S_PC}, s{S_PC}, K_vbase - K_pc
    s_addc_u32 s{S_PC+1}, s{S_PC+1}, 0
    ; segment mapping of phase 2: segment 128 i + t/6, lane group g = t%6
    v_mul_u32_u24 v{tc}, 10923, v{T}
    v_lshrrev_b32 v{tc}, 16, v{tc}
    v_mad_i32_i24 v{vG4}, v{tc}, -6, v{T}
    v_lshlrev_b32 v{vG4}, 2, v{vG4}          ; 4g
    v_mul_u32_u24 v{vSb}, {RSTRIDE}, v{tc}
    ; share of P this lane pulls into L2
    s_lshr_b32 s{S_A}, s2, 3
    s_mul_i32 s{S_A}, s{S_A}, {256*128 if "hot" in OPT else 781*128}
    s_add_u32 s{S_A}, s{S_A}, {WS_P - (512*128 if "hot" in OPT else 0)}
    v_lshl_add_u32 v{vPf}, v{T}, 7, s{S_A}
    s_lshr_b32 s{S_B}, s{S_BIN}, 2
    s_lshl_b32 s{S_B}, s{S_B}, 4
    s_and_b32 s{S_A}, s{S_BIN}, 1
    s_lshl_b32 s{S_A}, s{S_A}, 3
    s_add_u32 s{S_B}, s{S_B}, s{S_A}
    s_and_b32 s{S_A}, s{S_BIN}, 2
    s_lshl_b32 s{S_A}, s{S_A}, 9
    s_add_u32 s{S_B}, s{S_B}, s{S_A}
    s_add_u32 s{S_B}, s{S_B}, {WS_TAB}
    v_lshl_add_u32 v{t5}, v{tc}, 11, s{S_B}  ; table entry offset
    s_mov_b32 s3, {NLOG2E:#x}
    s_cmp_lg_u32 s{S_WAVE}, 8
    s_cbranch_scc1 K_ntb
    s_mov_b32 s{S_K}, 0
    s_waitcnt vmcnt(2)
K_tagp:
    v_cmp_ne_u32 vcc, 0, v{vTg}
    s_cbranch_vccnz K_tagok
    s_add_u32 s{S_K}, s{S_K}, 1
    s_cmp_gt_u32 s{S_K}, {POLL_MAX}
    s_cbranch_scc1 K_tagok                   ; give up: tag 0 sends this workgroup to the slow path
    global_load_dwordx2 {vr(vTg,2)}, v{vZ}, {sr(S_DBG,2)} sc1
    s_waitcnt vmcnt(0)
    s_branch K_tagp
K_tagok:
    ds_write_b64 v{vZ}, {vr(vTg,2)} offset:{L_NONCE}
    v_and_b32 v{t3}, 0xfe000000, v{vTg}
    s_lshl_b32 s{S_B}, s2, 11
    s_add_u32 s{S_B}, s{S_B}, {WS_TAB}
    v_lshl_add_u32 v{t1}, v{L}, 4, s{S_B}""")
    for i in range(4):
        a(f"    v_lshrrev_b32 v{68+i}, 2, v{68+i}")
        a(f"    v_lshl_or_b32 v{68+i}, v{60+i}, 13, v{68+i}")
        a(f"    v_or_b32 v{vTb+2*i}, v{t3}, v{68+i}")
        a(f"    v_mov_b32 v{vTb+2*i+1}, v{vTg+1}")
    a(f"""
    s_waitcnt vmcnt(0) lgkmcnt(0)
    s_barrier                                ; B5
    s_cbranch_vccz K_slow
    global_store_dwordx4 v{t1}, {vr(vTb,4)}, {sr(S_WS,2)} sc1
    global_store_dwordx4 v{t1}, {vr(vTb+4,4)}, {sr(S_WS,2)} offset:1024 sc1
    s_branch K_b5j
K_ntb:
    s_waitcnt vmcnt(0)
    s_barrier                                ; B5: this workgroup's records and P rows are in memory
K_b5j:""")
    stamp(a, 6)
    a(f"""
    ds_read_b64 {vr(vTg,2)}, v{vZ} offset:{L_NONCE}
    v_lshlrev_b32 v{t0}, 1, v{L}
    v_add_u32 v{t0}, {L_WC}, v{t0}
    ds_read_u16 v{V_B5}, v{t0}
    ds_read_u16 v{V_B5+2}, v{t0} offset:128
    s_waitcnt lgkmcnt(0)
    v_readfirstlane_b32 s{S_TAG}, v{vTg}
    v_readfirstlane_b32 s{S_TAG+1}, v{vTg+1}
    s_cmp_eq_u32 s{S_TAG}, 0
    s_cbranch_scc1 K_slow""")
    for c in range(2):
        w = V_B5 + 2*c
        a(f"    v_lshlrev_b32 v{w}, 16, v{w}")
        a(f"    v_mul_f32 v{w}, s3, v{w}")
        a(f"    v_cvt_pk_bf16_f32 v{t3}, v{vZ}, v{w}")
        a(f"    v_sub_f32 v{t3}, v{w}, v{t3}")
        a(f"    v_cvt_pk_bf16_f32 v{w+1}, v{w}, v{t3}")
    a(f"""
    s_cmp_lt_u32 s{S_WAVE}, 8
    s_cbranch_scc1 K_Q
    ; waves 8..11 stage w2 and b2 (first used after the main loop)
    s_sub_u32 s{S_A}, s{S_WAVE}, 8
    s_lshl_b32 s{S_A}, s{S_A}, 12
    s_add_u32 m0, s{S_A}, {L_W2}
    v_lshl_add_u32 v{t3}, v{L}, 4, s{S_A}
    global_load_lds_dwordx4 v{t3}, {sr(S_W2,2)}
    global_load_lds_dwordx4 v{t3}, {sr(S_W2,2)} offset:1024
    global_load_lds_dwordx4 v{t3}, {sr(S_W2,2)} offset:2048
    global_load_lds_dwordx4 v{t3}, {sr(S_W2,2)} offset:3072
    s_cmp_lg_u32 s{S_WAVE}, 9
    s_cbranch_scc1 K_notQ
    s_mov_b32 m0, {L_B2}
    v_lshlrev_b32 v{t3}, 2, v{J}
    global_load_lds_dword v{t3}, {sr(S_B2,2)}
    s_branch K_notQ
K_Q:
    ; ---- waves 0..7: Q tile = -log2(e)/2 * (x w1[64:128] + b1) (selected by 2.0), while the table entries travel
    s_mov_b32 s3, {f32bits(-LOG2E/2):#x}
    s_lshl_b32 s{S_A}, s{S_D}, 6
    s_add_u32 s{S_A}, s{S_A}, {L_WC + 256}
    v_lshl_add_u32 v{t3}, v{J}, 1, s{S_A}
    ds_read_u16 v{vB1}, v{t3}
    v_add_u32 v{tc}, v{vWa}, v{vC8}""")
    for s_ in range(4):
        for h in range(2):
            a(f"    ds_read_b64_tr_b16 {vr(vWf+4*s_+2*h,2)}, v{tc} offset:{16384+4096*s_+1024*h}")
    a(f"""
    s_and_b32 s{S_A}, s{S_WAVE}, 1
    s_lshl_b32 s{S_B}, s{S_A}, 14
    s_lshl_b32 s{S_C}, s{S_D}, 7
    s_add_u32 s{S_B}, s{S_B}, s{S_C}
    s_add_u32 s{S_B}, s{S_B}, {L_QT - 512}
    v_lshl_add_u32 v{tc}, v{HH}, 11, s{S_B}
    v_lshl_add_u32 v{tc}, v{J}, 2, v{tc}""")
    for s_ in range(4):
        a(f"    s_waitcnt lgkmcnt({6-2*s_})")
        cin = "0" if s_ == 0 else vr(vAc, 16)
        a(f"    v_mfma_f32_32x32x16_bf16 {vr(vAc,16)}, {vr(vX+4*s_,4)}, {vr(vWf+4*s_,4)}, {cin}")
    a(f"""
    v_lshlrev_b32 v{vB1}, 16, v{vB1}
    v_mul_f32 v{vB1}, s3, v{vB1}
    s_nop 9""")
    def qpair(r):
        row = 8*(r >> 2) + (r & 3)
        a(f"    v_fma_f32 v{vAc+r}, v{vAc+r}, s3, v{vB1}")
        a(f"    v_fma_f32 v{vAc+r+1}, v{vAc+r+1}, s3, v{vB1}")
        a(f"    v_cvt_pk_bf16_f32 v{vWf+r}, v{vAc+r}, v{vAc+r+1}")
        a(f"    ds_write_b32 v{tc}, v{vWf+r} offset:{512*(row+1)}")
        a(f"    ds_write_b16 v{tc}, v{vWf+r} offset:{512*row}")
        a(f"    ds_write_b16_d16_hi v{tc}, v{vWf+r} offset:{512*(row+2)+2}")
    for r in range(0, 12, 2): qpair(r)
    a(f"""
    s_cmp_eq_u32 s{S_A}, 1
    s_cbranch_scc1 K_notQ""")
    for r in range(12, 16, 2): qpair(r)
    a(f"K_notQ:")
    stamp(a, 7)
    vT = 0
    vN = 4
    vAr = 6
    vR = 12
    vM = 28
    vA = 32
    vK = 48
    vB = 64
    a(f"""
    s_lshl_b32 s{S_B}, s{S_WAVE}, 12
    s_add_u32 m0, s{S_B}, {L_XS}
    s_mov_b32 s{S_RR}, s{S_WS}
    s_mov_b32 s{S_RR+1}, s{S_WS+1}
    s_mov_b32 s{S_RR+2}, {WS_TAB + 256*2048}
    s_mov_b32 s{S_A}, {128*2048}
    s_mov_b32 s{S_B}, {128*RSTRIDE}
    s_mov_b32 s{S_C}, 0xfe000000
    s_movk_i32 s{S_D}, 0xfc
    s_mov_b32 s{S_K}, 0
    {"s_sleep " + optval("fs", "0") if optval("fs", "0") != "0" else ""}
    s_mov_b64 {mask(0)}, -1
    s_mov_b64 {mask(1)}, -1
    v_mov_b32 v{vM}, 0
    v_mov_b32 v{vM+1}, 0
K_poll:
    s_mov_b64 exec, {mask(0)}
    s_cbranch_execz K_pl0
    buffer_load_dwordx2 {vr(vT,2)}, v{t5}, {sr(S_RR,4)}, 0 offen sc1
K_pl0:
    s_mov_b64 exec, {mask(1)}
    s_cbranch_execz K_pl1
    buffer_load_dwordx2 {vr(vT+2,2)}, v{t5}, {sr(S_RR,4)}, s{S_A} offen sc1
K_pl1:
    s_mov_b64 exec, -1
    s_waitcnt vmcnt(0)""")
    for i in range(2):
        a(f"    v_xor_b32 v{vN+i}, s{S_TAG}, v{vT+2*i}")
        a(f"    v_xor_b32 v{vAr+i}, s{S_TAG+1}, v{vT+2*i+1}")
        a(f"    v_and_or_b32 v{vAr+i}, v{vN+i}, s{S_C}, v{vAr+i}")
        a(f"    v_cmp_ne_u32 {mask(i)}, 0, v{vAr+i}")
    a(f"""
    s_add_u32 s{S_K}, s{S_K}, 1
    s_or_b64 vcc, {mask(0)}, {mask(1)}
    s_cbranch_scc0 K_got
    s_cmp_lt_u32 s{S_K}, {POLL_MAX}
    s_cbranch_scc1 K_poll
    ; gave up: no records from this wave, ask for the slow path
    s_mov_b32 s{S_MODE}, 1
    s_branch K_nor2a
K_got:""")
    if DIAG:
        a(f"    v_writelane_b32 v{V_STAMP}, s{S_K}, 20")
    stamp(a, 8)
    so = ["0", sr(S_B)]
    for i in range(2):
        a(f"    v_and_b32 v{vAr+i}, 0x1fff, v{vT+2*i}")
        a(f"    v_bfe_u32 v{vT+2*i+1}, v{vT+2*i}, 13, 12")
        a(f"    v_lshl_add_u32 v{vAr+i}, v{vAr+i}, 2, v{vSb}")
        a(f"    v_sub_u32 v{vN+i}, v{vT+2*i+1}, v{vG4}")
        a(f"    v_lshl_add_u32 v{vAr+2+i}, v{vT+2*i+1}, 2, v{vAr+i}")
        a(f"    v_cmp_lt_i32 {mask(4*i)}, 0, v{vN+i}")
        a(f"    v_lshl_add_u32 v{vAr+i}, v{vG4}, 2, v{vAr+i}")
        a(f"    v_add_u32 v{vAr+2+i}, v{vAr+2+i}, v{vG4}")
        a(f"    s_or_b64 exec, {mask(4*i)}, 1")
        a(f"    buffer_load_dword v{vM+i}, v{vAr+2+i}, {sr(S_RR,4)}, {so[i]} offen")
        a(f"    buffer_load_dwordx4 {vr(vR+4*i,4)}, v{vAr+i}, {sr(S_RR,4)}, {so[i]} offen")
        a(f"    s_mov_b64 exec, -1")
    for i in range(2):
        for k in range(1, 4):
            a(f"    v_cmp_lt_i32 {mask(4*i+k)}, {k}, v{vN+i}")
    a(f"""
    v_max_i32 v{t1}, v{vN}, v{vN+1}
    v_cmp_lt_i32 vcc, 24, v{t1}
    s_mov_b32 s{S_K}, 0
    s_cbranch_vccz K_nor2a
    s_mov_b32 s{S_K}, 1""")
    for i in range(2):
        a(f"    buffer_load_dword v{vM+2+i}, v{vAr+2+i}, {sr(S_RR,4)}, {so[i]} offen offset:24")
        a(f"    buffer_load_dwordx4 {vr(vR+8+4*i,4)}, v{vAr+i}, {sr(S_RR,4)}, {so[i]} offen offset:96")
        for k in range(4):
            a(f"    v_cmp_lt_i32 {mask(8+4*i+k)}, {24+k}, v{vN+i}")
    pf0 = int(optval("pf", "8"))
    a(f"""
    v_cmp_lt_i32 vcc, 48, v{t1}
    s_cbranch_vccz K_nor2a
    s_mov_b32 s{S_MODE}, 1                   ; a segment is too long for the fast path
K_nor2a:
    v_mov_b32 v{t4}, {L_FLAG}
    v_mov_b32 v{t0}, 4
    s_cmp_eq_u32 s{S_MODE}, 0
    s_cbranch_scc1 K_nofl
    ds_write_b32 v{t4}, v{t0}
K_nofl:
    s_waitcnt lgkmcnt(0)
    s_barrier
    ds_read_b32 v{t3}, v{t4}
    ; P descriptor: 256-byte records, base shifted by -3072
    s_add_u32 s{S_RX}, s{S_WS}, {WS_P - 3072}
    s_addc_u32 s{S_RX+1}, s{S_WS+1}, 0
    s_and_b32 s{S_RX+1}, s{S_RX+1}, 0xffff
    s_or_b32 s{S_RX+1}, s{S_RX+1}, 0x01000000
    s_mov_b32 s{S_RX+2}, {N_NODES}
    s_mov_b32 s{S_RX+3}, 0x00020000
    s_waitcnt lgkmcnt(0)
    v_cmp_ne_u32 vcc, 0, v{t3}
    s_cbranch_vccnz K_slow
    s_cmp_lt_u32 s{S_WAVE}, {pf0}
    s_cbranch_scc1 K_npf
    global_load_dword v{t5}, v{vPf}, {sr(S_WS,2)} sc1
    s_waitcnt vmcnt(1)
    s_branch K_pfJ
K_npf:
    v_and_b32 v72, 7, v{L}
    v_lshlrev_b32 v74, 4, v72
    v_add_u32 v74, {L_B2}, v74
    ds_read_b128 v[76:79], v74
    v_lshrrev_b32 v{E_XR}, 3, v{T}
    v_lshlrev_b32 v{E_XR}, 2, v{E_XR}        ; 4 * node
    v_lshlrev_b32 v{E_OUT}, 4, v{T}          ; output byte offset
    v_lshlrev_b32 v72, 5, v72
    v_add_u32 v{E_NX}, {L_QT}, v72
    s_waitcnt lgkmcnt(0)""")
    vBu = [128, 130, 92, 152]
    for q in range(4):
        a(f"    v_lshlrev_b32 v{vBu[q]}, 16, v{76+q}")
        a(f"    v_and_b32 v{vBu[q]+1}, 0xffff0000, v{76+q}")
    assert pf0 >= 7
    a(f"""
    s_cmp_ge_u32 s{S_WAVE}, 4
    s_cbranch_scc1 K_np1
    v_bfe_u32 v70, v{L}, 2, 1
    v_bfe_u32 v71, v{L}, 3, 1
    v_lshl_add_u32 v70, v70, 6, v71
    v_lshrrev_b32 v71, 4, v{L}               ; g
    v_lshl_add_u32 v70, v71, 2, v70
    v_lshlrev_b32 v70, 7, v70
    v_and_b32 v72, 3, v{L}
    v_lshl_add_u32 v70, v72, 4, v70
    v_add_u32 v{E_W2}, {L_W2}, v70
    v_and_b32 v70, 15, v{L}
    s_lshl_b32 s{S_C}, s{S_WAVE}, 4
    v_add_u32 v70, s{S_C}, v70               ; row
    v_mul_u32_u24 v72, {ST_STRIDE}, v70
    v_lshl_add_u32 v72, v71, 4, v72
    v_add_u32 v{E_SR}, {L_ST}, v72
    v_mul_u32_u24 v72, {OF_STRIDE}, v70
    v_lshl_add_u32 v72, v71, 5, v72
    v_add_u32 v{E_OW}, {L_QT}, v72
K_np1:
    s_waitcnt vmcnt(0)
K_pfJ:""")
    stamp(a, 9)
    def count_cols(ks):
        for k in ks:
            a(f"    v_and_b32_sdwa v{vA+k}, v{vM+k//4}, s{S_D} {SD} src0_sel:BYTE_{k%4} src1_sel:DWORD")
        for k in ks:
            a(f"    s_mov_b64 exec, {mask(k)}")
            a(f"    ds_add_rtn_u32 v{vK+k}, v{vA+k}, v{t0} offset:{L_H2}")
        a(f"    s_mov_b64 exec, -1")
    count_cols(range(8))
    a(f"""
    s_cmp_eq_u32 s{S_K}, 0
    s_cbranch_scc1 K_nor2b""")
    count_cols(range(8, 16))
    a(f"""
K_nor2b:
    v_lshlrev_b32 v{t1}, 2, v{L}
    v_cmp_gt_u32 vcc, s{S_NN}, v{L}
    s_waitcnt lgkmcnt(0)
    s_barrier""")
    stamp(a, 10)
    a(f"""
    ds_read_b32 v{V_CNT}, v{t1} offset:{L_H2}
    s_waitcnt lgkmcnt(0)
    v_add_u32 v{vP}, 4, v{V_CNT}
    v_and_b32 v{vP}, -8, v{vP}
    v_max_u32 v{vP}, 64, v{vP}
    v_cndmask_b32 v{vP}, 0, v{vP}, vcc
    v_mov_b32 v{vS}, v{vP}""")
    wave_scan(a, vS)
    a(f"""
    s_nop 0
    v_readlane_b32 s{S_A}, v{vS}, 63
    v_sub_u32 v{vS}, v{vS}, v{vP}
    ds_write_b32 v{t1}, v{vS} offset:{L_SX}
    s_cmp_gt_u32 s{S_A}, {ENT_CAP*4}
    s_cbranch_scc1 K_slow""")
    def place_cols(ks, mid=None):
        ks = list(ks)
        for k in ks:
            a(f"    ds_read_b32 v{vB+k}, v{vA+k} offset:{L_SX}")
        if mid: a(mid)
        for n, k in enumerate(ks):
            if n % 2 == 0:
                a(f"    s_waitcnt lgkmcnt({len(ks)-2-n})")
            a(f"    v_add_u32 v{vK+k}, v{vB+k}, v{vK+k}")
        for k in ks:
            a(f"    s_mov_b64 exec, {mask(k)}")
            a(f"    ds_write_b32 v{vK+k}, v{vR+k} offset:{L_RL}")
        a(f"    s_mov_b64 exec, -1")
    place_cols(range(8), f"""
    s_add_u32 s{S_A}, s{S_A}, 63
    s_lshr_b32 s{S_TT}, s{S_A}, 6            ; tiles
    s_mul_i32 s{S_T0}, s{S_SLOT}, s{S_TT}
    s_add_u32 s{S_NT}, s{S_T0}, s{S_TT}
    s_mul_i32 s{S_T0}, s{S_T0}, 43691
    s_mul_i32 s{S_NT}, s{S_NT}, 43691
    s_lshr_b32 s{S_T0}, s{S_T0}, 19
    s_lshr_b32 s{S_NT}, s{S_NT}, 19
    s_sub_u32 s{S_NT}, s{S_NT}, s{S_T0}""")
    a(f"""
    s_cmp_eq_u32 s{S_K}, 0
    s_cbranch_scc1 K_nor2c
    s_waitcnt lgkmcnt(0)""")
    place_cols(range(8, 16))
    thr = [int(x) for x in optval("thr", "10_5").split("_")] + [2]
    vBk = 80
    vGr = 82
    a(f"""
K_nor2c:
    s_lshl_b32 s{S_A}, s{S_T0}, 6            ; list position of this wave
    v_lshl_add_u32 v{t3}, v{V_AIDX}, 1, s{S_A}
    v_add_u32 v{t2}, s{S_A}, v{t1}
    ; first node of this wave: n = #(m < nn : start[m] <= ts) - 1
    v_cmp_ge_u32 {mask(0)}, s{S_A}, v{vS}
    v_subrev_u32 v{t0}, s{S_A}, v{vS}
    s_and_b64 {mask(0)}, {mask(0)}, vcc
    s_bcnt1_i32_b64 s{S_B}, {mask(0)}
    s_sub_u32 s{S_B}, s{S_B}, 1              ; n
    s_andn2_b64 {mask(0)}, vcc, {mask(0)}
    v_bfe_u32 v{t4}, v{t0}, 3, 3
    v_add_u32 v{t4}, 1, v{t4}
    v_lshrrev_b32 v{t0}, 6, v{t0}
    v_min_u32 v{t0}, 63, v{t0}
    v_cndmask_b32 v{t0}, 63, v{t0}, {mask(0)}
    v_lshlrev_b32 v{t0}, 2, v{t0}
    v_mov_b32 v{vBk}, 0
    {"" if "novar" in OPT else f"ds_permute_b32 v{vBk}, v{t0}, v{t4}"}
    s_lshl_b32 s{S_D}, s{S_NT}, 4""")
    for c in range(5):
        a(f"    v_cmp_gt_i32 {mask(5+c)}, s{S_D}, v{L}")
        a(f"    s_sub_u32 s{S_D}, s{S_D}, 64")
    a(f"""
    s_cmp_ge_u32 s{S_WAVE}, 7
    s_cbranch_scc1 K_nprep
    ; rows of node = lane: first = node + slot(first tile), extra = slot(last tile) - slot(first tile)
    v_cvt_f32_u32 v70, s{S_TT}
    v_rcp_f32 v70, v70
    v_add3_u32 v{vP}, v{vS}, v{vP}, -4
    v_lshrrev_b32 v{vS}, 6, v{vS}
    v_lshrrev_b32 v{vP}, 6, v{vP}
    v_cvt_f32_u32 v{vS}, v{vS}
    v_cvt_f32_u32 v{vP}, v{vP}
    v_add_f32 v{vS}, {f32bits((NW-0.5)/NW):#x}, v{vS}
    v_add_f32 v{vP}, {f32bits((NW-0.5)/NW):#x}, v{vP}
    v_mul_f32 v70, {f32bits(NW):#x}, v70
    v_mul_f32 v{vS}, v{vS}, v70
    v_mul_f32 v{vP}, v{vP}, v70
    v_cvt_u32_f32 v{vS}, v{vS}
    v_cvt_u32_f32 v{vP}, v{vP}
    v_sub_u32 v{vP}, v{vP}, v{vS}
    v_add_u32 v{vS}, v{vS}, v{L}
    v_lshl_or_b32 v{vS}, v{vP}, 8, v{vS}
    v_lshl_or_b32 v{V_CNT}, v{vS}, 16, v{V_CNT}
    ds_bpermute_b32 v73, v{E_XR}, v{V_CNT}
    s_lshl_b32 s{S_C}, s{S_NN}, 2
    v_cmp_gt_u32 vcc, s{S_C}, v{E_XR}
    s_movk_i32 s{S_C}, {OF_STRIDE}
    v_mov_b32 v75, {L_Z2}
    s_waitcnt lgkmcnt(0)
    v_cndmask_b32 v73, 0, v73, vcc
    v_bfe_u32 v{E_ROW}, v73, 16, 8
    v_lshrrev_b32 v{E_XR}, 24, v73
    v_and_b32 v74, 0xffff, v73
    v_mad_u32_u24 v{E_ROW}, v{E_ROW}, s{S_C}, v{E_NX}
    v_cvt_f32_u32 v74, v74
    v_add_u32 v{E_NX}, {OF_STRIDE}, v{E_ROW}
    v_cndmask_b32 v{E_ROW}, v75, v{E_ROW}, vcc
    v_cmp_lt_u32 vcc, 0, v{E_XR}
    v_mul_f32 v74, 0x3e800000, v74           ; degree""")
    for q in range(4):
        a(f"    v_pk_mul_f32 {vr(E_DB[q],2)}, {vr(vBu[q],2)}, v[74:75] op_sel_hi:[1,0]")
    a(f"    v_cndmask_b32 v{E_R2}, v75, v{E_NX}, vcc")
    a(f"""
K_nprep:
    s_waitcnt lgkmcnt(0)
    s_barrier""")
    stamp(a, 11)
    for m in range(4):
        a(f"    ds_read_u16 v{V_IX+2*m}, v{t3} offset:{L_RL + 16*m}")
    for c in range(5):
        a(f"    ds_read_b32 v{vGr+c}, v{t2} offset:{L_RL + 256*c}")
    a(f"""
    s_lshr_b32 s{S_C}, s{S_A}, 1
    s_add_u32 s{S_C}, s{S_C}, {L_IX}
    v_add_u32 v{V_AIDX}, s{S_C}, v{V_AIDX}
    v_lshl_add_u32 v{t0}, v{L}, 1, s{S_C}
    s_mov_b32 s{S_C}, 0x03020302
    s_mov_b32 s{S_D}, 0x8001
    s_waitcnt lgkmcnt(5)""")
    for m in range(4):
        a(f"    v_and_b32 v{V_IX+2*m}, {0xfff if 'cheat1' in OPT or 'cheat2' in OPT else PADREC}, v{V_IX+2*m}")
    for h in dma_ops(): a(h)
    if "st2" in OPT:
        a(f"""
    s_cmp_lt_u32 s{S_WAVE}, 8
    s_cbranch_scc1 K_ns2
    v_add_u32 v{vPf}, 0x100000, v{vPf}
    global_load_dword v{t5}, v{vPf}, {sr(S_WS,2)} sc1
K_ns2:""")
    a(f"    ; this wave's entries -> one-hot word, (e, e), source node")
    a(f"    s_waitcnt lgkmcnt(0)")
    for c in range(5):
        a(f"    v_and_b32 v{vGr+5+c}, 0xc000, v{vGr+c}")
        a(f"    v_perm_b32 v{64+c}, v{vGr+c}, v{vGr+c}, s{S_C}")
        a(f"    v_xor_b32 v{vGr+c}, v{vGr+c}, v{vGr+5+c}")
        a(f"    v_mul_u32_u24 v{vGr+5+c}, s{S_D}, v{vGr+5+c}")
        a(f"    v_and_b32 v{vGr+5+c}, 0x40004000, v{vGr+5+c}")
    for c in range(5):
        a(f"    s_mov_b64 exec, {mask(5+c)}")
        a(f"    ds_write2st64_b32 v{t2}, v{vGr+5+c}, v{64+c} offset0:{L_G//256 + c} offset1:{L_RL//256 + c}")
        a(f"    ds_write_b16 v{t0}, v{vGr+c} offset:{128*c}")
    a(f"""
    s_mov_b64 exec, -1
    s_lshl_b32 s{S_C}, s{S_B}, 9
    s_add_u32 s{S_C}, s{S_C}, {L_QT}
    v_add_u32 v{V_AQ}, s{S_C}, v{t1}
    v_lshrrev_b32 v{t4}, 7, v{V_INCA}
    v_mad_u32_u24 v{V_AENT}, v{t4}, s{S_A}, v{V_AENT}""")
    for h in ent_reads(0) + q_reads() + idx_reads(32): a(h)
    a(f"""
    s_add_u32 s{S_C}, s{S_B}, s{S_SLOT}
    s_mul_i32 s{S_C}, s{S_C}, {ST_STRIDE}
    s_add_u32 s{S_C}, s{S_C}, {L_ST}
    v_add_u32 v{V_AS}, s{S_C}, v{t1}
    v_add_u32 v{V_AQ}, 0x200, v{V_AQ}
    ; jump table: slot of the variant, entry inside it (priority steps near the end), exit at lane nt
    v_and_b32 v{t4}, 1, v{L}
    v_mad_u32_u24 v{t4}, v{t4}, 9, v{vBk}
    v_sub_u32 v{t0}, s{S_NT}, v{L}
    v_mov_b32 v{t3}, {ENTRY}""")
    for i, th in enumerate(thr):
        a(f"    v_cmp_eq_u32 {mask(i)}, {th}, v{t0}")
    a(f"    v_cmp_eq_u32 {mask(3)}, 0, v{t0}")
    a(f"    s_movk_i32 s{S_C}, {VAR_SIZE}")
    for i, th in enumerate(thr):
        a(f"    v_cndmask_b32 v{t3}, v{t3}, {8*i}, {mask(i)}")
    a(f"""
    v_mad_u32_u24 v{t4}, v{t4}, s{S_C}, v{t3}
    v_mov_b32 v{t3}, K_exit - K_vbase
    v_cndmask_b32 v{t4}, v{t4}, v{t3}, {mask(3)}
    ds_bpermute_b32 v{V_TAB}, v{t1}, v{t4} offset:4
    s_mov_b32 s{S_K}, 1
    v_readlane_b32 s{S_J}, v{t4}, 0
    s_setprio 3
    s_waitcnt vmcnt(0)""")
    stamp(a, 12)
    for h in tr_reads(0): a(h)
    a(f"""
    s_add_u32 s{S_J}, s{S_J}, s{S_PC}
    s_addc_u32 s{S_J+1}, s{S_PC+1}, 0
    s_waitcnt lgkmcnt(0)""")
    a(small(0, 0))
    if "cheat2" in OPT:
        for m in range(2): a(f"    v_and_b32 v{V_IX+2*m}, 0xfff, v{V_IX+2*m}")
    for h in dma_ops(): a(h)
    a(small(0, 1))
    a(f"    v_lshl_or_b32 v{V_TAB}, v{V_TAB}, 16, v{t4}")
    if optval("late", "4_6"): a("    s_nop 9")
    stamp(a, 13); stamp(a, 14, True)
    a(f"    s_setpc_b64 {sr(S_J,2)}")
    a(f".p2align 6")
    a(f"K_vbase:")
    for s_ in range(2):
        for b in [None] + list(range(8)):
            tile_variant(a, s_, b)
    a(f".p2align 3")
    a(f"K_exit:")
    stamp(a, 15); stamp(a, 16, True)
    flush1(a)
    a("    s_nop 0")
    flush2(a)
    a(f"""
    v_cmp_eq_f32 vcc, 0, v{V_MN}
    s_cbranch_vccz K_join
    ; a denominator left the f32 range: redo this bin on the exact slow path
    v_mov_b32 v65, {L_FLAG}
    ds_write_b32 v65, v65
K_join:
    s_cmp_ge_u32 s{S_WAVE}, 7
    s_cbranch_scc1 K_st2a
    s_lshl_b32 s{S_A}, s{S_N0}, 7
    s_add_u32 s{S_RT}, s{S_OUT}, s{S_A}
    s_addc_u32 s{S_RT+1}, s{S_OUT+1}, 0
    s_lshl_b32 s{S_RT+2}, s{S_NN}, 7
    s_mov_b32 s{S_RT+3}, 0x00020000
    s_movk_i32 s{S_C}, 0x207
    s_mov_b32 s{S_A}, 1
    v_mov_b32 v96, {NLN2:#x}
    v_mov_b32 v98, {L_Z2}
    s_cmp_ge_u32 s{S_WAVE}, 4
    s_cbranch_scc1 K_st2a
    ; ================= output, stage 1: products of the sum rows with w2""")
    for ot in range(4):
        for ks in range(4):
            for h in range(2):
                a(f"    ds_read_b64_tr_b16 {vr(16*ot+4*ks+2*h,2)}, v{E_W2} offset:{2048*ks+256*h+64*(ot>>1)+8*(ot&1)}")
    a(f"""
    s_waitcnt lgkmcnt(0)
    s_barrier""")
    stamp(a, 17)
    for ks in range(4):
        a(f"    ds_read_b128 {vr(64+4*ks,4)}, v{E_SR} offset:{64*ks}")
    def mf(ot, ks):
        d = vr(80 + 4*ot, 4)
        a(f"    v_mfma_f32_16x16x32_bf16 {d}, {vr(16*ot+4*ks,4)}, {vr(64+4*ks,4)}, {'0' if ks == 0 else d}")
    for ks in range(4):
        a(f"    s_waitcnt lgkmcnt({3-ks})")
        mf(0, ks); mf(1, ks)
    for ks in range(4):
        mf(2, ks); mf(3, ks)
    a(f"""
    ds_write_b128 v{E_OW}, v[80:83]
    ds_write_b128 v{E_OW}, v[84:87] offset:16
    s_nop 4
    ds_write_b128 v{E_OW}, v[88:91] offset:128
    ds_write_b128 v{E_OW}, v[92:95] offset:144
    s_waitcnt lgkmcnt(0)
    s_branch K_st2b
K_st2a:
    s_waitcnt lgkmcnt(0)
    s_barrier                                ; B9
K_st2b:
    s_cmp_ge_u32 s{S_WAVE}, 7
    s_barrier
    s_cbranch_scc1 K_fin
    ds_read_b128 v[64:67], v{E_ROW}
    ds_read_b128 v[68:71], v{E_ROW} offset:16
K_rows:
    ds_read_b128 v[72:75], v{E_R2}
    ds_read_b128 v[76:79], v{E_R2} offset:16
    v_cmp_lt_u32 vcc, s{S_A}, v{E_XR}
    v_add_u32 v{E_NX}, {OF_STRIDE}, v{E_NX}
    s_add_u32 s{S_A}, s{S_A}, 1
    s_waitcnt lgkmcnt(0)""")
    for q in range(4):
        a(f"    v_pk_add_f32 {vr(64+2*q,2)}, {vr(64+2*q,2)}, {vr(72+2*q,2)}")
    a(f"""
    v_cndmask_b32 v{E_R2}, v98, v{E_NX}, vcc
    s_cbranch_vccnz K_rows""")
    for q in range(4):
        a(f"    v_pk_fma_f32 {vr(64+2*q,2)}, {vr(64+2*q,2)}, v[96:97], {vr(E_DB[q],2)} op_sel_hi:[1,0,1]")
    for q in range(4):
        a(f"    v_cvt_pk_bf16_f32 v{72+q}, v{64+2*q}, v{65+2*q}")
    a(f"""
    buffer_store_dwordx4 v[72:75], v{E_OUT}, {sr(S_RT,4)}, 0 offen sc1
    ; a non-finite sum makes every output of its node non-finite: redo this bin on the exact slow path
    v_cmp_class_f32 vcc, v64, s{S_C}
    s_cbranch_vccz K_fin
    v_mov_b32 v65, {L_FLAG}
    ds_write_b32 v65, v65
K_fin:
    v_mov_b32 v65, {L_FLAG}
    s_waitcnt lgkmcnt(0)
    s_barrier                                ; B10
    ds_read_b32 v64, v65
    s_waitcnt lgkmcnt(0)
    v_cmp_ne_u32 vcc, 0, v64
    {"" if "novar" in OPT or "nodma" in OPT else "s_cbranch_vccnz K_slow"}""")
    if DIAG:
        a("    s_waitcnt vmcnt(0)")
        stamp(a, 18); stamp(a, 19, True)
        a(f"""
    v_writelane_b32 v{V_STAMP}, s{S_NT}, 21
    s_lshl_b32 s{S_A}, s2, 4
    s_add_u32 s{S_A}, s{S_A}, s{S_WAVE}
    s_lshl_b32 s{S_A}, s{S_A}, 8
    s_add_u32 s{S_A}, s{S_A}, {WS_STAMP}
    v_lshl_add_u32 v64, v{L}, 2, s{S_A}
    s_mov_b64 exec, 0xffffffff
    global_store_dword v64, v{V_STAMP}, {sr(S_WS,2)}
    global_store_dword v64, v{V_TRACE}, {sr(S_WS,2)} offset:128""")
    if optval("clk", ""):
        a(f"""
    s_lshl_b32 s{S_A}, s2, 4
    s_add_u32 s{S_A}, s{S_A}, s{S_WAVE}
    s_cmp_lg_u32 s{S_A}, {16*int(optval("wg", "100"))}
    s_cbranch_scc1 K_end
    s_lshl_b32 s{S_A}, s{S_TAG+1}, 7
    s_lshr_b32 s{S_B}, s{S_TAG}, 25
    s_or_b32 s{S_A}, s{S_A}, s{S_B}
    v_cvt_f32_u32 v64, s98
    v_cvt_f32_u32 v65, s99
    v_rcp_f32 v64, v64
    s_nop 1
    v_mul_f32 v64, v64, v65
    v_subrev_f32 v64, {f32bits(15.0):#x}, v64
    v_mul_f32 v64, {f32bits(float(optval("mul", "100"))):#x}, v64
    v_cvt_u32_f32 v64, v64
    s_nop 1
    v_readfirstlane_b32 s{S_B}, v64
    s_min_u32 s{S_B}, s{S_B}, 20000
    {f's_sub_u32 s{S_B}, {optval("clk", "")}, s{S_B}' if "neg" in OPT else f's_add_u32 s{S_B}, s{S_B}, {optval("clk", "")}'}
K_spin5:
    s_memrealtime s[98:99]
    s_waitcnt lgkmcnt(0)
    s_sub_u32 s98, s98, s{S_A}
    s_cmp_lt_u32 s98, s{S_B}
    s_cbranch_scc1 K_spin5""")
    if "endamp" in OPT:
        a(f"""
    s_waitcnt vmcnt(0)
    s_memrealtime s[100:101]
    s_lshl_b32 s{S_A}, s2, 4
    s_add_u32 s{S_A}, s{S_A}, s{S_WAVE}
    s_cmp_lg_u32 s{S_A}, {16*int(optval("wg", "100"))}
    s_cbranch_scc1 K_end
    s_lshl_b32 s{S_A}, s{S_TAG+1}, 7
    s_lshr_b32 s{S_B}, s{S_TAG}, 25
    s_or_b32 s{S_A}, s{S_A}, s{S_B}
    s_waitcnt lgkmcnt(0)
    s_sub_u32 s{S_B}, s100, s98
    s_min_u32 s{S_B}, s{S_B}, 2000
    s_mul_i32 s{S_B}, s{S_B}, 20
    s_add_u32 s{S_B}, s{S_B}, 3000
K_spin4:
    s_memrealtime s[98:99]
    s_waitcnt lgkmcnt(0)
    s_sub_u32 s98, s98, s{S_A}
    s_cmp_lt_u32 s98, s{S_B}
    s_cbranch_scc1 K_spin4""")
    if optval("fix", "") != "":
        a(f"""
    s_lshl_b32 s{S_A}, s2, 4
    s_add_u32 s{S_A}, s{S_A}, s{S_WAVE}
    s_cmp_lg_u32 s{S_A}, 1600
    s_cbranch_scc1 K_end
    s_lshl_b32 s{S_A}, s{S_TAG+1}, 7
    s_lshr_b32 s{S_B}, s{S_TAG}, 25
    s_or_b32 s{S_A}, s{S_A}, s{S_B}
K_spin3:
    s_memrealtime s[98:99]
    s_waitcnt lgkmcnt(0)
    s_sub_u32 s98, s98, s{S_A}
    s_cmp_lt_u32 s98, {optval("fix", "")}
    s_cbranch_scc1 K_spin3""")
    if optval("amp", "") != "":
        a(f"""
    s_waitcnt vmcnt(0)
    s_cmp_lg_u32 s{S_WAVE}, 0
    s_cbranch_scc1 K_end
    s_lshl_b32 s{S_A}, s{S_TAG+1}, 7
    s_lshr_b32 s{S_B}, s{S_TAG}, 25
    s_or_b32 s{S_A}, s{S_A}, s{S_B}""")
        if optval("amp", "") == "99":
            a("    s_memrealtime s[98:99]\n    s_waitcnt lgkmcnt(0)")
        a(f"""
    s_sub_u32 s{S_B}, s98, s{S_A}
    s_mov_b64 exec, 1
    v_mov_b32 v64, 0
    v_mov_b32 v65, s{S_B}
    v_mov_b32 v66, 1
    {"v_sub_u32 v65, 0x1000, v65" if "min" in OPT else ""}
    global_atomic_{"add" if "avg" in OPT else "umax"} v64, v65, {sr(S_DBG,2)} offset:128 sc1
    s_sub_u32 s{S_C}, s100, s{S_A}
    v_mov_b32 v68, s{S_C}
    {f"global_atomic_add v64, v68, {sr(S_DBG,2)} offset:144 sc1" if optval("sel", "") else ""}
    s_waitcnt vmcnt(0)
    global_atomic_add v67, v64, v66, {sr(S_DBG,2)} offset:136 sc0 sc1
    s_waitcnt vmcnt(0)
    v_readfirstlane_b32 s{S_B}, v67
    s_cmp_lg_u32 s{S_B}, 255
    s_cbranch_scc1 K_end
    global_atomic_add v67, v64, v64, {sr(S_DBG,2)} offset:128 sc0 sc1
    global_atomic_add v68, v64, v64, {sr(S_DBG,2)} offset:144 sc0 sc1
    s_waitcnt vmcnt(0)
    v_readfirstlane_b32 s{S_C}, v68
    s_cmp_lt_u32 s{S_C}, {390*256}
    {"s_cbranch_scc0 K_end" if optval("sel", "") == "lo" else ""}
    {"s_cbranch_scc1 K_end" if optval("sel", "") == "hi" else ""}
    v_readfirstlane_b32 s{S_B}, v67
    s_mul_i32 s{S_B}, s{S_B}, {optval("mul", "5")}
    {f"s_lshr_b32 s{S_B}, s{S_B}, 8" if "avg" in OPT else ""}
    s_min_u32 s{S_B}, s{S_B}, {optval("base", "0") if "neg" in OPT else 200000}
    {f's_sub_u32 s{S_B}, {optval("base", "0")}, s{S_B}' if "neg" in OPT else f's_add_u32 s{S_B}, s{S_B}, {optval("base", "0")}'}
K_spin2:
    s_memrealtime s[98:99]
    s_waitcnt lgkmcnt(0)
    s_sub_u32 s98, s98, s{S_A}
    s_cmp_lt_u32 s98, s{S_B}
    s_cbranch_scc1 K_spin2""")
    a(f"""
K_end:
    s_endpgm
K_slow:
    ; ================= exact path without hand-offs: scan all edges for this bin
    s_setprio 0
    s_mov_b32 s16, s{S_N0}
    s_mov_b32 s17, s{S_NN}
    s_mov_b32 s18, s{S_WAVE}""")
    gen_slow(a, 16, 17, 18, L, NLOG2E, NW=NW)
    a("    s_endpgm")

def main():
    global DIAG
    out = sys.argv[1]
    DIAG = "diag" in sys.argv[2:]
    OPT.update(sys.argv[2:])
    a = Asm()
    a(f"""; Edge-featured MPNN layer: out[n] = sum_(e: dst=n) (silu([x[src],x[dst],e] w1 + b1) w2 + b2)
; @launch grid=(256,1,1) block=({NT_},1,1) lds={L_END}
.amdgcn_target "amdgcn-amd-amdhsa--gfx950"
.text""")
    gen_kernel(a)
    a(f"""
.section .rodata,"a"
.p2align 6
.amdhsa_kernel {KNAME}
  .amdhsa_next_free_vgpr {NVGPR}
  .amdhsa_next_free_sgpr 102
  .amdhsa_accum_offset {NVGPR}
  .amdhsa_group_segment_fixed_size 0
  .amdhsa_kernarg_size 88
  .amdhsa_user_sgpr_count 2
  .amdhsa_user_sgpr_kernarg_segment_ptr 1
  .amdhsa_system_sgpr_workgroup_id_x 1
  .amdhsa_float_denorm_mode_32 3
.end_amdhsa_kernel""")
    open(out, "w").write(a.text())

if __name__ == "__main__":
    main()
```

```python
import sys, struct
from slow import gen_slow

NAME = "standalone__edge_featured_mpnn_mpnn__graph"
KNAME = NAME + "_kernel"
N_NODES = 12500
NB = 49
NW = 12
NT_ = 64 * NW
MAINE = 4 * NT_
XTRA = 53
RSTRIDE = 16640

WS_TAB = 0x420000
WS_P = 0x4C0000
WS_STAMP = 0xA00000

L_Z = 128
L_H2 = 272
L_FLAG = 536
L_NONCE = 544
L_Z2 = 2048
OF_STRIDE = 272
L_SX = 1296
ENT_CAP = 3472
LSZ = 14080
L_ZA = 4096 - 144
L_G = 4096
L_RL = L_G + LSZ
L_ST = L_RL + LSZ
ST_STRIDE = 288
L_IX = L_ST + 20480
L_QT = (L_IX + LSZ // 2 + 255) // 256 * 256 + 512
L_XS = L_QT + 49 * 512
assert LSZ % 256 == 0 and (ENT_CAP + 48) * 4 == LSZ
L_W2 = L_XS + NW * 4096
L_B2 = L_W2 + 16384
L_END = L_B2 + 256
L_RS = L_ST
L_H1 = L_ST + 16640
L_OFF = L_H1 + 1024
L_W1 = L_XS
L_WC = L_XS + 32768
L_PS = L_WC + 512
L_XR = L_W2
PS_STRIDE = 272
assert L_XS % 256 == 0 and L_END <= 163840
assert L_H1 + 3072 <= L_IX and 64 * ST_STRIDE <= 20480 and L_OFF + 1024 < 65536 and L_PS + 56 * PS_STRIDE <= L_W2

def f32bits(x):
    return struct.unpack("<I", struct.pack("<f", x))[0]
LOG2E = 1.4426950408889634
NLOG2E = f32bits(-LOG2E)
NLN2 = f32bits(-0.6931471805599453)
PADREC = 0x3FFF
POLL_MAX = 4000

class Asm:
    def __init__(self):
        self.l = []
    def __call__(self, s=""):
        for x in s.strip("\n").split("\n"):
            if x.strip():
                self.l.append(x.rstrip())
    def text(self):
        return "\n".join(self.l) + "\n"

def vr(a, n=1):
    return f"v{a}" if n == 1 else f"v[{a}:{a+n-1}]"
def sr(a, n=1):
    return f"s{a}" if n == 1 else f"s[{a}:{a+n-1}]"

DIAG = False
OPT = set()
def optval(prefix, default):
    for o in OPT:
        if o.startswith(prefix):
            return o[len(prefix):]
    return default

V_D = 0; V_E = 64; V_A5 = 96; V_B5 = 98; V_ND = 102; V_T = 110; V_R = 114; V_O = 118; V_IX = 132
V_AA = 140; V_AIDX = 141; V_AENT = 142; V_AQ = 143; V_INCA = 144; V_AS = 145; V_MN = 146; V_PSEL = 147
V_PF = 126; V_TAB = 148; V_CNT = 149; V_S = 150; V_P = 151; V_LANE = 154; V_TID = 155
V_J = 156; V_HH = 157
E_W2 = 147; E_SR = 164; E_OW = 165
E_ROW = 122; E_XR = 123; E_NX = 124; E_R2 = 125; E_OUT = 127; E_DB = [128, 130, 150, 152]
V_STAMP = 167; V_TRACE = 166
NVGPR = 168
S_X = 4; S_E = 6; S_SRC = 8; S_DST = 10; S_W1 = 12; S_B1 = 14; S_W2 = 16; S_B2 = 18; S_OUT = 20; S_DBG = 22; S_WS = 24
S_BIN = 26; S_N0 = 27; S_NN = 28; S_WAVE = 29; S_MODE = 30; S_K = 31; S_PC = 32; S_J = 34
S_RX = 36; S_RT = 40; S_RR = 44; S_P = 48; S_JJ = 52
S_T0 = 56; S_NT = 57; S_TT = 58; S_SLOT = 59; S_A = 60; S_B = 61; S_C = 62; S_D = 63; S_TAG = 64
S_M = 66
def mask(k): return sr(S_M + 2*k, 2)

def stamp(a, k, real=False):
    if optval("clk", ""):
        if k == 13: a("    s_memrealtime s[98:99]\n    s_memtime s[100:101]\n    s_waitcnt lgkmcnt(0)\n    s_mov_b32 s99, s100")
        if k == 15: a("    s_memrealtime s[96:97]\n    s_memtime s[100:101]\n    s_waitcnt lgkmcnt(0)\n    s_sub_u32 s98, s96, s98\n    s_sub_u32 s99, s100, s99")
        return
    if "endamp" in OPT:
        if k == 17: a("    s_memrealtime s[98:99]\n    s_waitcnt lgkmcnt(0)")
        return
    if optval("amp", "") != "":
        if int(optval("amp", "")) == k:
            a("    s_memrealtime s[98:99]\n    s_waitcnt lgkmcnt(0)")
        if k == 6 and optval("sel", ""):
            a("    s_memrealtime s[100:101]\n    s_waitcnt lgkmcnt(0)")
        return
    if not DIAG:
        return
    a(f"    {'s_memrealtime' if real else 's_memtime'} s[100:101]")
    a(f"    s_waitcnt lgkmcnt(0)")
    a(f"    v_writelane_b32 v{V_STAMP}, s100, {k}")

def wave_scan(a, v):
    for sh in (1, 2, 4, 8):
        a(f"    s_nop 1")
        a(f"    v_add_u32_dpp v{v}, v{v}, v{v} row_shr:{sh} row_mask:0xf bank_mask:0xf")
    a(f"    s_nop 1")
    a(f"    v_add_u32_dpp v{v}, v{v}, v{v} row_bcast:15 row_mask:0xa bank_mask:0xf")
    a(f"    s_nop 1")
    a(f"    v_add_u32_dpp v{v}, v{v}, v{v} row_bcast:31 row_mask:0xc bank_mask:0xf")

SD = "dst_sel:DWORD dst_unused:UNUSED_PAD"

def dreg(s, c): return V_D + 32*s + 16*c
def small(s, c):
    d = vr(dreg(s, c), 16)
    return f"    v_mfma_f32_32x32x8_bf16 {d}, {vr(V_A5,2)}, {vr(V_B5+2*c,2)}, {d}"
def tr_reads(s):
    return [f"    ds_read_b64_tr_b16 {vr(dreg(s,c)+2*u,2)}, v{V_AA} offset:{512*u+128*c}" for u in range(8) for c in range(2)]
def ent_reads(off):
    return [f"    ds_read_b32 v{V_A5}, v{V_AENT} offset:{off}",
            f"    ds_read_b32 v{V_A5+1}, v{V_AENT} offset:{off + L_RL - L_G}"]
def q_reads():
    return [f"    ds_read_b32 v{V_B5+2*c}, v{V_AQ} offset:{256*c}" for c in range(2)]
def idx_reads(off):
    return [f"    ds_read_u16 v{V_IX+2*m}, v{V_AIDX} offset:{off + 8*m}" for m in range(4)]
def dma_ops():
    if "nodma" in OPT: return []
    return [f"    buffer_load_dwordx4 {vr(V_IX+2*m,2)}, {sr(S_RX,4)}, s{S_P+m} idxen offen offset:{1024*m} sc1 lds" for m in range(4)]

def flush1(a):
    for c in range(2):
        D = V_ND + 4*c + 2
        a(f"    v_rcp_f32 v{V_R+2*c}, v{D}")
        a(f"    v_rcp_f32 v{V_R+2*c+1}, v{D+1}")
def flush2(a):
    for c in range(2):
        a(f"    v_pk_mul_f32 {vr(V_O+2*c,2)}, {vr(V_ND+4*c,2)}, {vr(V_R+2*c,2)}")
    for c in range(2):
        a(f"    v_min3_f32 v{V_MN}, v{V_MN}, v{V_R+2*c}, v{V_R+2*c+1}")
    for c in range(2):
        a(f"    v_add_f32 v{V_O+2*c}, v{V_O+2*c}, v{V_O+2*c+1}")
    a(f"    v_cvt_pk_bf16_f32 v{V_O}, v{V_O}, v{V_O+2}")
    a(f"    ds_write_b32 v{V_AS}, v{V_O}")

def y_phase(a, s, b, us=range(8), nsrc=None):
    if nsrc is None: nsrc = [V_ND + 4*c for c in range(2)]
    a(".p2align 3")
    for u in us:
        if u == b:
            flush1(a)
            for c in range(2):
                a(f"    v_pk_add_f32 {vr(V_ND+4*c+2,2)}, {vr(V_E+16*c+2*u,2)}, 1.0 op_sel_hi:[1,0]")
            flush2(a)
            for c in range(2):
                p = dreg(s, c) + 2*u
                if u == 7:
                    a(f"    v_pk_mov_b32 {vr(V_ND+4*c,2)}, {vr(p,2)}, {vr(p,2)} op_sel:[0,1]")
                else:
                    nsrc[c] = p
            continue
        for c in range(2):
            a(f"    v_pk_fma_f32 {vr(V_T+2*c,2)}, {vr(dreg(s,c)+2*u,2)}, {vr(V_ND+4*c+2,2)}, {vr(nsrc[c],2)}")
        for c in range(2):
            D = V_ND + 4*c + 2
            a(f"    v_pk_fma_f32 {vr(D,2)}, {vr(D,2)}, {vr(V_E+16*c+2*u,2)}, {vr(D,2)}")
        for c in range(2):
            a(f"    v_pk_fma_f32 {vr(V_ND+4*c,2)}, {vr(nsrc[c],2)}, {vr(V_E+16*c+2*u,2)}, {vr(V_T+2*c,2)}")
            nsrc[c] = V_ND + 4*c

VAR_SIZE = 960
ENTRY = 24
def tile_variant(a, s, b):
    name = f"{s}{'N' if b is None else b}"
    vi = 9*s + (0 if b is None else b + 1)
    a(f".org K_vbase + {VAR_SIZE*vi}, 0")
    a(f"    s_setprio 2\n    s_branch K_var{name}\n    s_setprio 1\n    s_branch K_var{name}\n    s_setprio 0")
    a(f"    s_nop 0")
    a(f"K_var{name}:")
    bnd = b is not None
    if "trace" in OPT and s == 0:
        a(f"    s_memtime s[100:101]\n    s_mov_b32 s{S_A}, m0\n    s_mov_b32 m0, s{S_K}\n    s_waitcnt lgkmcnt(0)")
        a(f"    v_writelane_b32 v{V_TRACE}, s100, m0\n    s_mov_b32 m0, s{S_A}")
    es = [f"    v_exp_f32 v{V_E+16*c+2*u+h}, v{dreg(s,c)+2*u+h}" for u in range(8) for c in range(2) for h in range(2)]
    head = ent_reads(64 + 64*s) + (q_reads() if bnd else []) + tr_reads(s ^ 1) + idx_reads(64 + 32*s)
    plain = [f"    v_readlane_b32 s{S_JJ}, v{V_TAB}, s{S_K}"] if s == 0 else \
            [f"    v_add_u32 v{V_AENT}, v{V_INCA}, v{V_AENT}", f"    v_add_u32 v{V_AIDX}, 64, v{V_AIDX}"]
    if bnd: plain.append(f"    v_add_u32 v{V_AQ}, 0x200, v{V_AQ}")
    jump = [f"    s_and_b32 s{S_J}, s{S_JJ}, 0xffff", f"    s_add_u32 s{S_K}, s{S_K}, 2"] if s == 0 else [f"    s_lshr_b32 s{S_J}, s{S_JJ}, 16"]
    jump += [f"    s_add_u32 s{S_J}, s{S_J}, s{S_PC}", f"    s_addc_u32 s{S_J+1}, s{S_PC+1}, 0"]
    late = optval("late", "4_6")
    if late:
        ua, ub = [int(x) for x in late.split("_")]
        for e in es[:4*ub]: a(e)
        nsrc = [V_ND + 4*c for c in range(2)]
        y_phase(a, s, b, range(0, ua), nsrc)
        a("    s_waitcnt vmcnt(0)")
        for h in head: a(h)
        y_phase(a, s, b, range(ua, ub), nsrc)
        a(f"    s_waitcnt lgkmcnt(0)")
        for h in dma_ops(): a(h)
        a(small(s ^ 1, 0))
        for e in es[4*ub:4*ub+4]: a(e)
        a(small(s ^ 1, 1))
        for e in es[4*ub+4:]: a(e)
        for p_ in plain + jump: a(p_)
        y_phase(a, s, b, range(ub, 8), nsrc)
    else:
        n1 = int(optval("n1_", "16"))
        a("    s_waitcnt vmcnt(0)")
        for h in head: a(h)
        for e in es[:n1-2]: a(e)
        for p_ in plain: a(p_)
        for e in es[n1-2:n1]: a(e)
        a(f"    s_waitcnt lgkmcnt(0)")
        for h in dma_ops(): a(h)
        a(small(s ^ 1, 0))
        for e in es[n1:n1+4]: a(e)
        a(small(s ^ 1, 1))
        for e in es[n1+4:]: a(e)
        for p_ in jump: a(p_)
        y_phase(a, s, b)
    if bnd:
        a(f"    v_add_u32 v{V_AS}, {ST_STRIDE}, v{V_AS}")
    a(f"    s_setpc_b64 {sr(S_J,2)}")

def gen_kernel(a):
    L = V_LANE; T = V_TID; J = V_J; HH = V_HH
    t0, t1, t2, t3, t4, t5 = 158, 159, 160, 161, 162, 163
    step = NT_ * 16
    vDst = 0
    vSrc = 8
    vEa = 14
    tc = 17
    vTg = 18
    vBa = 20
    vRk = 26
    vWp = 31
    vOf = 32
    vC8 = 37; vWa = 38; vTa = 39
    vX = 40
    vWf = 56
    vPad = 56
    vAc = 72
    vTb = 88
    vXa = 88
    vB1 = 96
    vCl = 120
    v4k = 125
    vPf = 126
    vZ = 128
    vG4 = 164; vSb = 165
    vS = V_S; vP = V_P
    a(f"""
.p2align 8
.globl {KNAME}
.type {KNAME},@function
{KNAME}:
    s_cmp_ge_u32 s2, 256
    s_cbranch_scc1 K_end
    s_load_dwordx8 s[4:11], s[0:1], 0
    s_load_dwordx8 s[12:19], s[0:1], 32      ; w1, b1, w2, b2
    s_load_dwordx4 s[20:23], s[0:1], 64
    s_load_dwordx2 s[24:25], s[0:1], 80      ; ws
    s_memrealtime {sr(S_TAG,2)}
    v_lshrrev_b32 v1, 6, v0
    v_mov_b32 v{T}, v0
    v_readfirstlane_b32 s{S_WAVE}, v1
    v_and_b32 v{L}, 63, v0
    s_mul_i32 s3, s2, {MAINE*4}
    v_lshl_add_u32 v{t0}, v0, 4, s3          ; byte offset into src/dst
    v_lshrrev_b32 v{t1}, 1, v{t0}
    s_and_b32 s{S_BIN}, s2, 7
    s_lshl_b32 s{S_BIN}, s{S_BIN}, 5
    s_lshr_b32 s3, s2, 3
    s_add_u32 s{S_BIN}, s{S_BIN}, s3
    s_mul_i32 s{S_N0}, s{S_BIN}, {NB}
    s_sub_u32 s{S_NN}, {N_NODES}, s{S_N0}
    s_min_u32 s{S_NN}, s{S_NN}, {NB}
    v_and_b32 v{J}, 31, v0
    v_bfe_u32 v{HH}, v0, 5, 1
    s_mov_b32 s{S_MODE}, 0
    v_mov_b32 v{vZ}, 0
    v_mov_b32 v{vZ+1}, 0
    v_mov_b32 v{vZ+2}, 0
    v_mov_b32 v{vZ+3}, 0
    v_lshlrev_b32 v{t2}, 2, v0""")
    if DIAG:
        a(f"    v_mov_b32 v{V_STAMP}, 0\n    v_mov_b32 v{V_TRACE}, 0")
        stamp(a, 0, True); stamp(a, 1)
    a(f"""
    s_waitcnt lgkmcnt(0)
    global_load_dwordx4 {vr(vDst,4)}, v{t0}, {sr(S_DST,2)}
    {f"s_add_u32 s98, s{S_TAG}, 200" if optval("amp", "") == "1" else ""}
    ds_write_b32 v{t2}, v{vZ} offset:{L_H1}
    s_cmp_lg_u32 s{S_WAVE}, 11
    s_cbranch_scc1 K_ld1
    ; wave 11 also takes the 53 extra edges of this chunk
    s_mul_i32 s{S_A}, s2, {XTRA}
    s_add_u32 s{S_A}, s{S_A}, {256*MAINE}
    v_min_u32 v{t5}, {XTRA-1}, v{L}
    v_add_lshl_u32 v{t5}, v{t5}, s{S_A}, 2
    v_lshrrev_b32 v{t4}, 1, v{t5}
    global_load_dword v{vDst+4}, v{t5}, {sr(S_DST,2)}
    global_load_dword v{vSrc+4}, v{t5}, {sr(S_SRC,2)}
    global_load_ushort v{vEa+2}, v{t4}, {sr(S_E,2)}
K_ld1:
    s_cmp_ge_u32 s2, 32
    s_cbranch_scc1 K_ldJ
    s_sub_u32 s{S_A}, s{S_WAVE}, 5
    s_cmp_ge_u32 s{S_A}, 3
    s_cbranch_scc1 K_ld2
    s_lshl_b32 s{S_A}, s{S_A}, 13
    v_lshl_add_u32 v{t5}, v{L}, 7, s{S_A}
    s_getpc_b64 {sr(S_J,2)}
    global_load_dword v{t4}, v{t5}, {sr(S_J,2)} offset:1024
K_ld2:
    ; workgroup 0, wave 9 publishes the hand-off tag of this launch (39 clock bits, never zero)
    s_lshl_b32 s{S_A}, s2, 4
    s_add_u32 s{S_A}, s{S_A}, s{S_WAVE}
    s_cmp_lg_u32 s{S_A}, 9
    s_cbranch_scc1 K_ldJ
    s_lshl_b32 s{S_A}, s{S_TAG}, 25
    s_or_b32 s{S_A}, s{S_A}, 1
    s_lshr_b64 {sr(S_TAG,2)}, {sr(S_TAG,2)}, 7
    v_mov_b32 v{t4}, s{S_A}
    v_mov_b32 v{t4+1}, s{S_TAG}
    s_mov_b64 exec, 1
    global_store_dwordx2 v{vZ}, {vr(t4,2)}, {sr(S_DBG,2)} sc1
    s_mov_b64 exec, -1
K_ldJ:
    s_lshl_b32 s{S_A}, s{S_WAVE}, 11
    s_cmp_ge_u32 s{S_WAVE}, 8
    s_cbranch_scc1 K_stX
    ; waves 0..7 stage w1 rows 0..63 (64-byte blocks of a row swapped by row&3)
    s_add_u32 m0, s{S_A}, {L_W1}
    v_lshrrev_b32 v{t3}, 2, v{L}
    v_and_b32 v{t3}, 12, v{t3}
    v_xor_b32 v{t3}, v{t3}, v{L}
    v_lshl_add_u32 v{t5}, v{t3}, 4, s{S_A}
    global_load_lds_dwordx4 v{t5}, {sr(S_W1,2)}
    global_load_lds_dwordx4 v{t5}, {sr(S_W1,2)} offset:1024
    s_branch K_stJ
K_stX:
    ; waves 8..11 stage the x rows of this bin (16-byte pieces swizzled inside each row)
    s_mov_b32 s{S_RX}, s4
    s_mov_b32 s{S_RX+1}, s5
    s_mov_b32 s{S_RX+2}, {N_NODES*128}
    s_mov_b32 s{S_RX+3}, 0x00020000
    s_add_u32 m0, s{S_A}, {L_XR - 16384}
    s_lshl_b32 s{S_B}, s{S_N0}, 7
    s_add_u32 s{S_A}, s{S_A}, s{S_B}
    s_sub_u32 s{S_A}, s{S_A}, 16384
    v_lshrrev_b32 v{t3}, 4, v{L}
    v_xor_b32 v{t3}, v{t3}, v{L}
    v_lshl_add_u32 v{t3}, v{t3}, 4, s{S_A}
    v_xor_b32 v{t5}, 64, v{t3}
    buffer_load_dwordx4 v{t3}, {sr(S_RX,4)}, 0 offen lds
    buffer_load_dwordx4 v{t5}, {sr(S_RX,4)}, 0 offen offset:1024 lds
K_stJ:
    s_waitcnt lgkmcnt(0)
    s_barrier
    v_mov_b32 v{vPad}, {PADREC}
    v_mov_b32 v{vPad+1}, {PADREC}
    v_mov_b32 v{vPad+2}, {PADREC}
    v_mov_b32 v{vPad+3}, {PADREC}
    v_lshlrev_b32 v{t2}, 4, v{T}
    ds_write_b128 v{t2}, {vr(vPad,4)} offset:{L_RL}
    s_cmp_ge_u32 s{S_WAVE}, 4
    s_cbranch_scc1 K_in1
    ds_write_b128 v{t2}, {vr(vZ,4)}
    ds_write_b128 v{t2}, {vr(vPad,4)} offset:{L_ST - 4096}
K_in1:
    s_cmp_lg_u32 s{S_WAVE}, 4
    s_cbranch_scc1 K_in2
    v_lshlrev_b32 v{t3}, 2, v{L}
    ds_write_b32 v{t3}, v{vZ} offset:{L_RL - 256}
K_in2:
    global_load_dwordx4 {vr(vSrc,4)}, v{t0}, {sr(S_SRC,2)}
    global_load_dwordx2 {vr(vEa,2)}, v{t1}, {sr(S_E,2)}
    s_cmp_ge_u32 s{S_WAVE}, 8
    s_cbranch_scc1 K_st2
    s_add_u32 m0, m0, 16384
    v_add_u32 v{t5}, 0x4000, v{t5}
    global_load_lds_dwordx4 v{t5}, {sr(S_W1,2)}
    global_load_lds_dwordx4 v{t5}, {sr(S_W1,2)} offset:1024
    s_branch K_st3
K_st2:
    s_mov_b32 m0, {L_WC}
    v_lshlrev_b32 v{t3}, 2, v{L}
    v_add_u32 v{t4}, 0x8000, v{t3}
    global_load_lds_dword v{t4}, {sr(S_W1,2)}
    s_mov_b32 m0, {L_WC + 256}
    s_nop 0
    global_load_lds_dword v{t3}, {sr(S_B1,2)}
K_st3:
    v_and_b32 v{vC8}, 3, v{L}
    v_lshlrev_b32 v{vC8}, 3, v{vC8}
    v_and_b32 v{t1}, 16, v{L}
    v_lshl_add_u32 v{vC8}, v{t1}, 1, v{vC8}  ; 8c + 32(g&1)
    s_lshr_b32 s{S_D}, s{S_WAVE}, 1          ; ct
    v_bfe_u32 v{t0}, v{L}, 2, 2
    v_xor_b32 v{t3}, s{S_D}, v{t0}
    v_lshlrev_b32 v{t3}, 6, v{t3}
    v_lshl_add_u32 v{t0}, v{HH}, 3, v{t0}
    v_lshl_add_u32 v{t0}, v{t0}, 8, v{t3}
    v_add_u32 v{vWa}, {L_W1}, v{t0}          ; k row 8*hh + r, column block ct^r
    v_and_b32 v{vWp}, 1, v{L}
    v_lshl_add_u32 v{vWp}, v{vWp}, 5, v{vWa}
    v_and_b32 v{t3}, 16, v{L}
    v_add_u32 v{vWp}, v{vWp}, v{t3}
    v_and_b32 v{t3}, 2, v{L}
    v_lshl_add_u32 v{vWp}, v{t3}, 2, v{vWp}  ; + 16(c&1) + 4(2(g&1) + (c>>1)) columns
    s_and_b32 s{S_A}, s{S_WAVE}, 1
    s_lshl_b32 s{S_A}, s{S_A}, 12
    s_add_u32 s{S_A}, s{S_A}, {L_XR}
    v_bfe_u32 v{t3}, v{L}, 1, 3
    v_xor_b32 v{t3}, v{t3}, v{HH}
    v_lshl_add_u32 v{t3}, v{t3}, 4, s{S_A}
    v_lshl_add_u32 v{vXa}, v{J}, 7, v{t3}
    v_xor_b32 v{vXa+1}, 32, v{vXa}
    v_xor_b32 v{vXa+2}, 64, v{vXa}
    v_xor_b32 v{vXa+3}, 0x60, v{vXa}
    s_mov_b32 s{S_A}, 21400
    s_mov_b32 s{S_B}, -{NB}
    s_mov_b32 s{S_C}, 0xffff0000
    v_mov_b32 v{t5}, 0x10004
    v_mov_b32 v{vBa+4}, 0
    v_mov_b32 v{v4k}, 0x4000
    s_waitcnt vmcnt(6)
    s_cmp_lg_u32 s{S_WAVE}, 11
    s_cbranch_scc1 K_wJ
    s_bfm_b64 exec, {XTRA}, 0""")
    assert L_ST - L_RL <= step + 4096
    def binops(cols):
        for i in cols: a(f"    v_mul_u32_u24 v{vBa+i}, s{S_A}, v{vDst+i}")
        for i in cols: a(f"    v_lshrrev_b32 v{vBa+i}, 18, v{vBa+i}")
        for i in cols:
            a(f"    v_and_b32 v{vBa+i}, 0x3fc, v{vBa+i}")
            a(f"    ds_add_rtn_u32 v{vRk+i}, v{vBa+i}, v{t5} offset:{L_H1}")
        for i in cols: a(f"    v_lshlrev_b32 v{vDst+i}, 2, v{vDst+i}")
        for i in cols: a(f"    v_mad_i32_i24 v{vDst+i}, v{vBa+i}, s{S_B}, v{vDst+i}")
        for i in cols: a(f"    v_bfe_u32 v{vCl+i}, v{vDst+i}, 2, 1")
    binops([4])
    a(f"""
    s_mov_b64 exec, -1
K_wJ:""")
    stamp(a, 2)
    binops(range(4))
    a(f"""
    s_waitcnt vmcnt(4) lgkmcnt(0)
    s_barrier""")
    stamp(a, 3)
    a(f"""
    s_cmp_eq_u32 s{S_WAVE}, 8
    s_cbranch_scc1 K_scan1
    s_cmp_gt_u32 s{S_WAVE}, 8
    s_cbranch_scc1 K_notP
    ; ---- waves 0..7: P^T tile = -log2(e) * (x w1[0:64])^T""")
    for s_ in range(4):
        a(f"    ds_read_b128 {vr(vX+4*s_,4)}, v{vXa+s_}")
        for h in range(2):
            a(f"    ds_read_b64_tr_b16 {vr(vWf+4*s_+2*h,2)}, v{vWp} offset:{4096*s_+1024*h}")
    for s_ in range(4):
        a(f"    s_waitcnt lgkmcnt({9-3*s_})")
        cin = "0" if s_ == 0 else vr(vAc, 16)
        a(f"    v_mfma_f32_32x32x16_bf16 {vr(vAc,16)}, {vr(vWf+4*s_,4)}, {vr(vX+4*s_,4)}, {cin}")
    a(f"""
    s_and_b32 s{S_B}, s{S_WAVE}, 1
    s_mul_i32 s{S_A}, s{S_B}, {32*PS_STRIDE}
    s_lshl_b32 s{S_B}, s{S_D}, 6
    s_add_u32 s{S_A}, s{S_A}, s{S_B}
    s_add_u32 s{S_A}, s{S_A}, {L_PS}
    v_mul_u32_u24 v{t3}, {PS_STRIDE}, v{J}
    v_lshl_add_u32 v{t3}, v{HH}, 5, v{t3}
    v_add_u32 v{t3}, s{S_A}, v{t3}
    v_mov_b32 v{t4}, {NLOG2E:#x}
    v_cmp_gt_u32 vcc, {L_PS + 56*PS_STRIDE}, v{t3}
    s_nop 1""")
    for q in range(8):
        a(f"    v_pk_mul_f32 {vr(vAc+2*q,2)}, {vr(vAc+2*q,2)}, {vr(t4,2)} op_sel_hi:[1,0]")
    for q in range(8):
        a(f"    v_cvt_pk_bf16_f32 v{vAc+q}, v{vAc+2*q}, v{vAc+2*q+1}")
    a(f"""
    s_mov_b64 exec, vcc
    ds_write_b128 v{t3}, {vr(vAc,4)}
    ds_write_b128 v{t3}, {vr(vAc+4,4)} offset:16
    s_mov_b64 exec, -1
    s_branch K_b3
K_notP:
    v_lshlrev_b32 v{t1}, 4, v{L}
    v_add_u32 v{t4}, {L_PS + 48*PS_STRIDE}, v{t1}
    v_add_u32 v{t1}, {48*256}, v{t1}
    s_branch K_b3
K_scan1:
    ; ---- wave 8: segment offsets; a segment is n records (4 bytes) followed by n node bytes, padded to 4
    s_setprio 2
    global_load_dwordx2 {vr(vTg,2)}, v{vZ}, {sr(S_DBG,2)}
    v_lshlrev_b32 v{t0}, 4, v{L}
    ds_read_b128 v[56:59], v{t0} offset:{L_H1}
    s_waitcnt lgkmcnt(0)""")
    for i in range(4):
        a(f"    v_lshrrev_b32 v{60+i}, 16, v{56+i}")
    for i in range(4):
        a(f"    v_mad_u32_u24 v{64+i}, v{60+i}, 5, 3")
    for i in range(4):
        a(f"    v_and_b32 v{64+i}, -4, v{64+i}")
    a(f"""
    v_add_u32 v65, v64, v65
    v_add_u32 v66, v65, v66
    v_add_u32 v67, v66, v67
    v_mov_b32 v68, v67""")
    wave_scan(a, 68)
    a(f"""
    v_sub_u32 v68, v68, v67
    v_add_u32 v69, v68, v64
    v_add_u32 v70, v68, v65
    v_add_u32 v71, v68, v66
    s_mov_b32 s{S_A}, 0x10001""")
    for i in range(4):
        a(f"    v_mul_u32_u24 v{64+i}, s{S_A}, v{68+i}")
    for i in range(4):
        a(f"    v_lshl_add_u32 v{64+i}, v{56+i}, 16, v{64+i}")
    a(f"""
    ds_write_b128 v{t0}, v[64:67] offset:{L_OFF}
    s_setprio 0
K_b3:
    v_lshrrev_b32 v{t0}, 4, v{T}
    v_lshl_add_u32 v{t0}, v{t0}, 4, v{t2}
    v_add_u32 v{t0}, {L_PS}, v{t0}
    s_lshl_b32 s{S_A}, s{S_N0}, 8
    s_add_u32 s{S_A}, s{S_A}, {WS_P}
    s_add_u32 s{S_RT}, s{S_WS}, s{S_A}
    s_addc_u32 s{S_RT+1}, s{S_WS+1}, 0
    s_lshl_b32 s{S_RT+2}, s{S_NN}, 8
    s_mov_b32 s{S_RT+3}, 0x00020000
    s_waitcnt lgkmcnt(0)
    s_barrier                                ; B3: segment offsets, P staged""")
    stamp(a, 4)
    a(f"""
    s_cmp_lt_u32 s{S_WAVE}, 10
    s_cbranch_scc1 K_nx0
    ds_read_b32 v{vOf+4}, v{vBa+4} offset:{L_OFF}
    ds_read_b128 v[76:79], v{t4}
K_nx0:
    ds_read_b128 v[72:75], v{t0}""")
    for i in range(4):
        a(f"    ds_read_b32 v{vOf+i}, v{vBa+i} offset:{L_OFF}")
    a(f"""
    s_waitcnt lgkmcnt(4)
    buffer_store_dwordx4 v[72:75], v{t2}, {sr(S_RT,4)}, 0 offen sc1
    s_waitcnt vmcnt(3)""")
    stamp(a, 22)
    a(f"""
    v_lshl_or_b32 v{vSrc}, v{v4k}, v{vCl}, v{vSrc}
    v_lshl_or_b32 v{vSrc+1}, v{v4k}, v{vCl+1}, v{vSrc+1}
    v_lshl_or_b32 v{vSrc+2}, v{v4k}, v{vCl+2}, v{vSrc+2}
    v_lshl_or_b32 v{vSrc+3}, v{v4k}, v{vCl+3}, v{vSrc+3}
    v_lshl_or_b32 v{vSrc}, v{vEa}, 16, v{vSrc}
    v_and_or_b32 v{vSrc+1}, v{vEa}, s{S_C}, v{vSrc+1}
    v_lshl_or_b32 v{vSrc+2}, v{vEa+1}, 16, v{vSrc+2}
    v_and_or_b32 v{vSrc+3}, v{vEa+1}, s{S_C}, v{vSrc+3}
    s_waitcnt lgkmcnt(0)""")
    def scatter(i):
        a(f"    v_add_u32_sdwa v{vBa+i}, v{vOf+i}, v{vRk+i} {SD} src0_sel:WORD_0 src1_sel:WORD_0")
        a(f"    v_add_u32_sdwa v{vOf+i}, v{vOf+i}, v{vRk+i} {SD} src0_sel:WORD_1 src1_sel:WORD_1")
        a(f"    ds_write_b32 v{vBa+i}, v{vSrc+i} offset:{L_RS}")
        a(f"    ds_write_b8 v{vOf+i}, v{vDst+i} offset:{L_RS}")
    for i in range(4): scatter(i)
    a(f"""
    s_cmp_lt_u32 s{S_WAVE}, 10
    s_cbranch_scc1 K_nx2
    s_cmp_eq_u32 s{S_WAVE}, 11
    s_cbranch_scc1 K_x2
    buffer_store_dwordx4 v[76:79], v{t1}, {sr(S_RT,4)}, 0 offen sc1
    s_branch K_nx2
K_x2:
    s_bfm_b64 exec, {XTRA}, 0
    v_lshl_or_b32 v{vSrc+4}, v{v4k}, v{vCl+4}, v{vSrc+4}
    v_lshl_or_b32 v{vSrc+4}, v{vEa+2}, 16, v{vSrc+4}""")
    scatter(4)
    a(f"""
    s_mov_b64 exec, -1
K_nx2:
    s_mul_i32 s{S_A}, s2, {RSTRIDE}
    s_add_u32 s{S_RR}, s{S_WS}, s{S_A}
    s_addc_u32 s{S_RR+1}, s{S_WS+1}, 0
    s_mov_b32 s{S_RR+2}, 16512
    s_mov_b32 s{S_RR+3}, 0x00020000
    v_add_u32 v{t3}, {step}, v{t2}
    s_waitcnt lgkmcnt(0)""")
    stamp(a, 23)
    a(f"""
    s_barrier""")
    stamp(a, 5)
    a(f"""
    ds_read_b128 v[0:3], v{t2} offset:{L_RS}
    s_cmp_ge_u32 s{S_WAVE}, 5
    s_cbranch_scc1 K_co1
    ds_read_b128 v[8:11], v{t2} offset:{L_RS + step}
    s_waitcnt lgkmcnt(0)
    buffer_store_dwordx4 v[8:11], v{t3}, {sr(S_RR,4)}, 0 offen sc1
K_co1:
    s_waitcnt lgkmcnt(0)
    buffer_store_dwordx4 v[0:3], v{t2}, {sr(S_RR,4)}, 0 offen sc1
    ; ---- lane constants, while the stores drain
    ; gather: lane -> row l>>4 of 4, piece l&15; odd rows have their 64-byte blocks swapped pairwise
    v_and_b32 v{tc}, 15, v{L}
    v_bfe_u32 v{t3}, v{L}, 4, 1
    v_lshlrev_b32 v{t3}, 2, v{t3}
    v_xor_b32 v{tc}, v{tc}, v{t3}
    v_lshlrev_b32 v{V_IX+1}, 4, v{tc}
    v_mov_b32 v{V_IX+3}, v{V_IX+1}
    v_mov_b32 v{V_IX+5}, v{V_IX+1}
    v_mov_b32 v{V_IX+7}, v{V_IX+1}
    v_lshrrev_b32 v{V_AIDX}, 4, v{L}
    v_lshlrev_b32 v{V_AIDX}, 1, v{V_AIDX}
    v_bfe_u32 v{tc}, v{L}, 3, 1
    v_xor_b32 v{t3}, v{tc}, v{HH}
    v_lshl_add_u32 v{t3}, v{t3}, 6, v{vC8}
    v_lshl_add_u32 v{tc}, v{tc}, 8, v{t3}
    s_lshl_b32 s{S_B}, s{S_WAVE}, 12
    s_add_u32 s{S_B}, s{S_B}, {L_XS}
    v_add_u32 v{tc}, s{S_B}, v{tc}
    v_bfe_u32 v{t4}, v{L}, 2, 1
    v_cmp_ne_u32 vcc, 0, v{t4}
    v_mov_b32 v{t3}, {L_Z}
    v_mov_b32 v{V_MN}, 1.0
    v_cndmask_b32 v{V_AA}, v{t3}, v{tc}, vcc
    v_cmp_eq_u32 {mask(0)}, v{t4}, v{HH}
    v_bfe_u32 v{tc}, v{L}, 3, 2
    v_and_b32 v{t3}, 3, v{L}
    v_lshl_add_u32 v{tc}, v{tc}, 2, v{t3}
    v_lshlrev_b32 v{tc}, 2, v{tc}
    v_add_u32 v{tc}, {L_G}, v{tc}
    v_mov_b32 v{t3}, {L_ZA}
    v_cndmask_b32 v{V_AENT}, v{t3}, v{tc}, {mask(0)}
    v_mov_b32 v{t3}, 0x80
    v_cndmask_b32 v{V_INCA}, 0, v{t3}, {mask(0)}""")
    for m in range(4):
        a(f"    s_movk_i32 s{S_P+m}, {3072 - 1024*m}")
    for c in range(2):
        a(f"    v_mov_b32 v{V_ND+4*c}, 0")
        a(f"    v_mov_b32 v{V_ND+4*c+1}, 0")
        a(f"    v_mov_b32 v{V_ND+4*c+2}, 1.0")
        a(f"    v_mov_b32 v{V_ND+4*c+3}, 1.0")
    a(f"""
    s_and_b32 s{S_A}, s{S_WAVE}, 3
    s_mul_i32 s{S_A}, s{S_A}, 3
    s_lshr_b32 s{S_B}, s{S_WAVE}, 2
    s_add_u32 s{S_SLOT}, s{S_A}, s{S_B}
    s_getpc_b64 {sr(S_PC,2)}
K_pc:
    s_add_u32 s{S_PC}, s{S_PC}, K_vbase - K_pc
    s_addc_u32 s{S_PC+1}, s{S_PC+1}, 0
    ; segment mapping of phase 2: segment 128 i + t/6, lane group g = t%6
    v_mul_u32_u24 v{tc}, 10923, v{T}
    v_lshrrev_b32 v{tc}, 16, v{tc}
    v_mad_i32_i24 v{vG4}, v{tc}, -6, v{T}
    v_lshlrev_b32 v{vG4}, 2, v{vG4}          ; 4g
    v_mul_u32_u24 v{vSb}, {RSTRIDE}, v{tc}
    ; share of P this lane pulls into L2
    s_lshr_b32 s{S_A}, s2, 3
    s_mul_i32 s{S_A}, s{S_A}, {256*128 if "hot" in OPT else 781*128}
    s_add_u32 s{S_A}, s{S_A}, {WS_P - (512*128 if "hot" in OPT else 0)}
    v_lshl_add_u32 v{vPf}, v{T}, 7, s{S_A}
    s_lshr_b32 s{S_B}, s{S_BIN}, 2
    s_lshl_b32 s{S_B}, s{S_B}, 4
    s_and_b32 s{S_A}, s{S_BIN}, 1
    s_lshl_b32 s{S_A}, s{S_A}, 3
    s_add_u32 s{S_B}, s{S_B}, s{S_A}
    s_and_b32 s{S_A}, s{S_BIN}, 2
    s_lshl_b32 s{S_A}, s{S_A}, 9
    s_add_u32 s{S_B}, s{S_B}, s{S_A}
    s_add_u32 s{S_B}, s{S_B}, {WS_TAB}
    v_lshl_add_u32 v{t5}, v{tc}, 11, s{S_B}  ; table entry offset
    s_mov_b32 s3, {NLOG2E:#x}
    s_cmp_lg_u32 s{S_WAVE}, 8
    s_cbranch_scc1 K_ntb
    s_mov_b32 s{S_K}, 0
    s_waitcnt vmcnt(2)
K_tagp:
    v_cmp_ne_u32 vcc, 0, v{vTg}
    s_cbranch_vccnz K_tagok
    s_add_u32 s{S_K}, s{S_K}, 1
    s_cmp_gt_u32 s{S_K}, {POLL_MAX}
    s_cbranch_scc1 K_tagok                   ; give up: tag 0 sends this workgroup to the slow path
    global_load_dwordx2 {vr(vTg,2)}, v{vZ}, {sr(S_DBG,2)} sc1
    s_waitcnt vmcnt(0)
    s_branch K_tagp
K_tagok:
    ds_write_b64 v{vZ}, {vr(vTg,2)} offset:{L_NONCE}
    v_and_b32 v{t3}, 0xfe000000, v{vTg}
    s_lshl_b32 s{S_B}, s2, 11
    s_add_u32 s{S_B}, s{S_B}, {WS_TAB}
    v_lshl_add_u32 v{t1}, v{L}, 4, s{S_B}""")
    for i in range(4):
        a(f"    v_lshrrev_b32 v{68+i}, 2, v{68+i}")
        a(f"    v_lshl_or_b32 v{68+i}, v{60+i}, 13, v{68+i}")
        a(f"    v_or_b32 v{vTb+2*i}, v{t3}, v{68+i}")
        a(f"    v_mov_b32 v{vTb+2*i+1}, v{vTg+1}")
    a(f"""
    s_waitcnt vmcnt(0) lgkmcnt(0)
    s_barrier                                ; B5
    s_cbranch_vccz K_slow
    global_store_dwordx4 v{t1}, {vr(vTb,4)}, {sr(S_WS,2)} sc1
    global_store_dwordx4 v{t1}, {vr(vTb+4,4)}, {sr(S_WS,2)} offset:1024 sc1
    s_branch K_b5j
K_ntb:
    s_waitcnt vmcnt(0)
    s_barrier                                ; B5: this workgroup's records and P rows are in memory
K_b5j:""")
    stamp(a, 6)
    a(f"""
    ds_read_b64 {vr(vTg,2)}, v{vZ} offset:{L_NONCE}
    v_lshlrev_b32 v{t0}, 1, v{L}
    v_add_u32 v{t0}, {L_WC}, v{t0}
    ds_read_u16 v{V_B5}, v{t0}
    ds_read_u16 v{V_B5+2}, v{t0} offset:128
    s_waitcnt lgkmcnt(0)
    v_readfirstlane_b32 s{S_TAG}, v{vTg}
    v_readfirstlane_b32 s{S_TAG+1}, v{vTg+1}
    s_cmp_eq_u32 s{S_TAG}, 0
    s_cbranch_scc1 K_slow""")
    for c in range(2):
        w = V_B5 + 2*c
        a(f"    v_lshlrev_b32 v{w}, 16, v{w}")
        a(f"    v_mul_f32 v{w}, s3, v{w}")
        a(f"    v_cvt_pk_bf16_f32 v{t3}, v{vZ}, v{w}")
        a(f"    v_sub_f32 v{t3}, v{w}, v{t3}")
        a(f"    v_cvt_pk_bf16_f32 v{w+1}, v{w}, v{t3}")
    a(f"""
    s_cmp_lt_u32 s{S_WAVE}, 8
    s_cbranch_scc1 K_Q
    ; waves 8..11 stage w2 and b2 (first used after the main loop)
    s_sub_u32 s{S_A}, s{S_WAVE}, 8
    s_lshl_b32 s{S_A}, s{S_A}, 12
    s_add_u32 m0, s{S_A}, {L_W2}
    v_lshl_add_u32 v{t3}, v{L}, 4, s{S_A}
    global_load_lds_dwordx4 v{t3}, {sr(S_W2,2)}
    global_load_lds_dwordx4 v{t3}, {sr(S_W2,2)} offset:1024
    global_load_lds_dwordx4 v{t3}, {sr(S_W2,2)} offset:2048
    global_load_lds_dwordx4 v{t3}, {sr(S_W2,2)} offset:3072
    s_cmp_lg_u32 s{S_WAVE}, 9
    s_cbranch_scc1 K_notQ
    s_mov_b32 m0, {L_B2}
    v_lshlrev_b32 v{t3}, 2, v{J}
    global_load_lds_dword v{t3}, {sr(S_B2,2)}
    s_branch K_notQ
K_Q:
    ; ---- waves 0..7: Q tile = -log2(e)/2 * (x w1[64:128] + b1) (selected by 2.0), while the table entries travel
    s_mov_b32 s3, {f32bits(-LOG2E/2):#x}
    s_lshl_b32 s{S_A}, s{S_D}, 6
    s_add_u32 s{S_A}, s{S_A}, {L_WC + 256}
    v_lshl_add_u32 v{t3}, v{J}, 1, s{S_A}
    ds_read_u16 v{vB1}, v{t3}
    v_add_u32 v{tc}, v{vWa}, v{vC8}""")
    for s_ in range(4):
        for h in range(2):
            a(f"    ds_read_b64_tr_b16 {vr(vWf+4*s_+2*h,2)}, v{tc} offset:{16384+4096*s_+1024*h}")
    a(f"""
    s_and_b32 s{S_A}, s{S_WAVE}, 1
    s_lshl_b32 s{S_B}, s{S_A}, 14
    s_lshl_b32 s{S_C}, s{S_D}, 7
    s_add_u32 s{S_B}, s{S_B}, s{S_C}
    s_add_u32 s{S_B}, s{S_B}, {L_QT - 512}
    v_lshl_add_u32 v{tc}, v{HH}, 11, s{S_B}
    v_lshl_add_u32 v{tc}, v{J}, 2, v{tc}""")
    for s_ in range(4):
        a(f"    s_waitcnt lgkmcnt({6-2*s_})")
        cin = "0" if s_ == 0 else vr(vAc, 16)
        a(f"    v_mfma_f32_32x32x16_bf16 {vr(vAc,16)}, {vr(vX+4*s_,4)}, {vr(vWf+4*s_,4)}, {cin}")
    a(f"""
    v_lshlrev_b32 v{vB1}, 16, v{vB1}
    v_mul_f32 v{vB1}, s3, v{vB1}
    s_nop 9""")
    def qpair(r):
        row = 8*(r >> 2) + (r & 3)
        a(f"    v_fma_f32 v{vAc+r}, v{vAc+r}, s3, v{vB1}")
        a(f"    v_fma_f32 v{vAc+r+1}, v{vAc+r+1}, s3, v{vB1}")
        a(f"    v_cvt_pk_bf16_f32 v{vWf+r}, v{vAc+r}, v{vAc+r+1}")
        a(f"    ds_write_b32 v{tc}, v{vWf+r} offset:{512*(row+1)}")
        a(f"    ds_write_b16 v{tc}, v{vWf+r} offset:{512*row}")
        a(f"    ds_write_b16_d16_hi v{tc}, v{vWf+r} offset:{512*(row+2)+2}")
    for r in range(0, 12, 2): qpair(r)
    a(f"""
    s_cmp_eq_u32 s{S_A}, 1
    s_cbranch_scc1 K_notQ""")
    for r in range(12, 16, 2): qpair(r)
    a(f"K_notQ:")
    stamp(a, 7)
    vT = 0
    vN = 4
    vAr = 6
    vR = 12
    vM = 28
    vA = 32
    vK = 48
    vB = 64
    a(f"""
    s_lshl_b32 s{S_B}, s{S_WAVE}, 12
    s_add_u32 m0, s{S_B}, {L_XS}
    s_mov_b32 s{S_RR}, s{S_WS}
    s_mov_b32 s{S_RR+1}, s{S_WS+1}
    s_mov_b32 s{S_RR+2}, {WS_TAB + 256*2048}
    s_mov_b32 s{S_A}, {128*2048}
    s_mov_b32 s{S_B}, {128*RSTRIDE}
    s_mov_b32 s{S_C}, 0xfe000000
    s_movk_i32 s{S_D}, 0xfc
    s_mov_b32 s{S_K}, 0
    {"s_sleep " + optval("fs", "0") if optval("fs", "0") != "0" else ""}
    s_mov_b64 {mask(0)}, -1
    s_mov_b64 {mask(1)}, -1
    v_mov_b32 v{vM}, 0
    v_mov_b32 v{vM+1}, 0
K_poll:
    s_mov_b64 exec, {mask(0)}
    s_cbranch_execz K_pl0
    buffer_load_dwordx2 {vr(vT,2)}, v{t5}, {sr(S_RR,4)}, 0 offen sc1
K_pl0:
    s_mov_b64 exec, {mask(1)}
    s_cbranch_execz K_pl1
    buffer_load_dwordx2 {vr(vT+2,2)}, v{t5}, {sr(S_RR,4)}, s{S_A} offen sc1
K_pl1:
    s_mov_b64 exec, -1
    s_waitcnt vmcnt(0)""")
    for i in range(2):
        a(f"    v_xor_b32 v{vN+i}, s{S_TAG}, v{vT+2*i}")
        a(f"    v_xor_b32 v{vAr+i}, s{S_TAG+1}, v{vT+2*i+1}")
        a(f"    v_and_or_b32 v{vAr+i}, v{vN+i}, s{S_C}, v{vAr+i}")
        a(f"    v_cmp_ne_u32 {mask(i)}, 0, v{vAr+i}")
    a(f"""
    s_add_u32 s{S_K}, s{S_K}, 1
    s_or_b64 vcc, {mask(0)}, {mask(1)}
    s_cbranch_scc0 K_got
    s_cmp_lt_u32 s{S_K}, {POLL_MAX}
    s_cbranch_scc1 K_poll
    ; gave up: no records from this wave, ask for the slow path
    s_mov_b32 s{S_MODE}, 1
    s_branch K_nor2a
K_got:""")
    if DIAG:
        a(f"    v_writelane_b32 v{V_STAMP}, s{S_K}, 20")
    stamp(a, 8)
    so = ["0", sr(S_B)]
    for i in range(2):
        a(f"    v_and_b32 v{vAr+i}, 0x1fff, v{vT+2*i}")
        a(f"    v_bfe_u32 v{vT+2*i+1}, v{vT+2*i}, 13, 12")
        a(f"    v_lshl_add_u32 v{vAr+i}, v{vAr+i}, 2, v{vSb}")
        a(f"    v_sub_u32 v{vN+i}, v{vT+2*i+1}, v{vG4}")
        a(f"    v_lshl_add_u32 v{vAr+2+i}, v{vT+2*i+1}, 2, v{vAr+i}")
        a(f"    v_cmp_lt_i32 {mask(4*i)}, 0, v{vN+i}")
        a(f"    v_lshl_add_u32 v{vAr+i}, v{vG4}, 2, v{vAr+i}")
        a(f"    v_add_u32 v{vAr+2+i}, v{vAr+2+i}, v{vG4}")
        a(f"    s_or_b64 exec, {mask(4*i)}, 1")
        a(f"    buffer_load_dword v{vM+i}, v{vAr+2+i}, {sr(S_RR,4)}, {so[i]} offen")
        a(f"    buffer_load_dwordx4 {vr(vR+4*i,4)}, v{vAr+i}, {sr(S_RR,4)}, {so[i]} offen")
        a(f"    s_mov_b64 exec, -1")
    for i in range(2):
        for k in range(1, 4):
            a(f"    v_cmp_lt_i32 {mask(4*i+k)}, {k}, v{vN+i}")
    a(f"""
    v_max_i32 v{t1}, v{vN}, v{vN+1}
    v_cmp_lt_i32 vcc, 24, v{t1}
    s_mov_b32 s{S_K}, 0
    s_cbranch_vccz K_nor2a
    s_mov_b32 s{S_K}, 1""")
    for i in range(2):
        a(f"    buffer_load_dword v{vM+2+i}, v{vAr+2+i}, {sr(S_RR,4)}, {so[i]} offen offset:24")
        a(f"    buffer_load_dwordx4 {vr(vR+8+4*i,4)}, v{vAr+i}, {sr(S_RR,4)}, {so[i]} offen offset:96")
        for k in range(4):
            a(f"    v_cmp_lt_i32 {mask(8+4*i+k)}, {24+k}, v{vN+i}")
    pf0 = int(optval("pf", "8"))
    a(f"""
    v_cmp_lt_i32 vcc, 48, v{t1}
    s_cbranch_vccz K_nor2a
    s_mov_b32 s{S_MODE}, 1                   ; a segment is too long for the fast path
K_nor2a:
    v_mov_b32 v{t4}, {L_FLAG}
    v_mov_b32 v{t0}, 4
    s_cmp_eq_u32 s{S_MODE}, 0
    s_cbranch_scc1 K_nofl
    ds_write_b32 v{t4}, v{t0}
K_nofl:
    s_waitcnt lgkmcnt(0)
    s_barrier
    ds_read_b32 v{t3}, v{t4}
    ; P descriptor: 256-byte records, base shifted by -3072
    s_add_u32 s{S_RX}, s{S_WS}, {WS_P - 3072}
    s_addc_u32 s{S_RX+1}, s{S_WS+1}, 0
    s_and_b32 s{S_RX+1}, s{S_RX+1}, 0xffff
    s_or_b32 s{S_RX+1}, s{S_RX+1}, 0x01000000
    s_mov_b32 s{S_RX+2}, {N_NODES}
    s_mov_b32 s{S_RX+3}, 0x00020000
    s_waitcnt lgkmcnt(0)
    v_cmp_ne_u32 vcc, 0, v{t3}
    s_cbranch_vccnz K_slow
    s_cmp_lt_u32 s{S_WAVE}, {pf0}
    s_cbranch_scc1 K_npf
    global_load_dword v{t5}, v{vPf}, {sr(S_WS,2)} sc1
    s_waitcnt vmcnt(1)
    s_branch K_pfJ
K_npf:
    v_and_b32 v72, 7, v{L}
    v_lshlrev_b32 v74, 4, v72
    v_add_u32 v74, {L_B2}, v74
    ds_read_b128 v[76:79], v74
    v_lshrrev_b32 v{E_XR}, 3, v{T}
    v_lshlrev_b32 v{E_XR}, 2, v{E_XR}        ; 4 * node
    v_lshlrev_b32 v{E_OUT}, 4, v{T}          ; output byte offset
    v_lshlrev_b32 v72, 5, v72
    v_add_u32 v{E_NX}, {L_QT}, v72
    s_waitcnt lgkmcnt(0)""")
    vBu = [128, 130, 92, 152]
    for q in range(4):
        a(f"    v_lshlrev_b32 v{vBu[q]}, 16, v{76+q}")
        a(f"    v_and_b32 v{vBu[q]+1}, 0xffff0000, v{76+q}")
    assert pf0 >= 7
    a(f"""
    s_cmp_ge_u32 s{S_WAVE}, 4
    s_cbranch_scc1 K_np1
    v_bfe_u32 v70, v{L}, 2, 1
    v_bfe_u32 v71, v{L}, 3, 1
    v_lshl_add_u32 v70, v70, 6, v71
    v_lshrrev_b32 v71, 4, v{L}               ; g
    v_lshl_add_u32 v70, v71, 2, v70
    v_lshlrev_b32 v70, 7, v70
    v_and_b32 v72, 3, v{L}
    v_lshl_add_u32 v70, v72, 4, v70
    v_add_u32 v{E_W2}, {L_W2}, v70
    v_and_b32 v70, 15, v{L}
    s_lshl_b32 s{S_C}, s{S_WAVE}, 4
    v_add_u32 v70, s{S_C}, v70               ; row
    v_mul_u32_u24 v72, {ST_STRIDE}, v70
    v_lshl_add_u32 v72, v71, 4, v72
    v_add_u32 v{E_SR}, {L_ST}, v72
    v_mul_u32_u24 v72, {OF_STRIDE}, v70
    v_lshl_add_u32 v72, v71, 5, v72
    v_add_u32 v{E_OW}, {L_QT}, v72
K_np1:
    s_waitcnt vmcnt(0)
K_pfJ:""")
    stamp(a, 9)
    def count_cols(ks):
        for k in ks:
            a(f"    v_and_b32_sdwa v{vA+k}, v{vM+k//4}, s{S_D} {SD} src0_sel:BYTE_{k%4} src1_sel:DWORD")
        for k in ks:
            a(f"    s_mov_b64 exec, {mask(k)}")
            a(f"    ds_add_rtn_u32 v{vK+k}, v{vA+k}, v{t0} offset:{L_H2}")
        a(f"    s_mov_b64 exec, -1")
    count_cols(range(8))
    a(f"""
    s_cmp_eq_u32 s{S_K}, 0
    s_cbranch_scc1 K_nor2b""")
    count_cols(range(8, 16))
    a(f"""
K_nor2b:
    v_lshlrev_b32 v{t1}, 2, v{L}
    v_cmp_gt_u32 vcc, s{S_NN}, v{L}
    s_waitcnt lgkmcnt(0)
    s_barrier""")
    stamp(a, 10)
    a(f"""
    ds_read_b32 v{V_CNT}, v{t1} offset:{L_H2}
    s_waitcnt lgkmcnt(0)
    v_add_u32 v{vP}, 4, v{V_CNT}
    v_and_b32 v{vP}, -8, v{vP}
    v_max_u32 v{vP}, 64, v{vP}
    v_cndmask_b32 v{vP}, 0, v{vP}, vcc
    v_mov_b32 v{vS}, v{vP}""")
    wave_scan(a, vS)
    a(f"""
    s_nop 0
    v_readlane_b32 s{S_A}, v{vS}, 63
    v_sub_u32 v{vS}, v{vS}, v{vP}
    ds_write_b32 v{t1}, v{vS} offset:{L_SX}
    s_cmp_gt_u32 s{S_A}, {ENT_CAP*4}
    s_cbranch_scc1 K_slow""")
    def place_cols(ks, mid=None):
        ks = list(ks)
        for k in ks:
            a(f"    ds_read_b32 v{vB+k}, v{vA+k} offset:{L_SX}")
        if mid: a(mid)
        for n, k in enumerate(ks):
            if n % 2 == 0:
                a(f"    s_waitcnt lgkmcnt({len(ks)-2-n})")
            a(f"    v_add_u32 v{vK+k}, v{vB+k}, v{vK+k}")
        for k in ks:
            a(f"    s_mov_b64 exec, {mask(k)}")
            a(f"    ds_write_b32 v{vK+k}, v{vR+k} offset:{L_RL}")
        a(f"    s_mov_b64 exec, -1")
    place_cols(range(8), f"""
    s_add_u32 s{S_A}, s{S_A}, 63
    s_lshr_b32 s{S_TT}, s{S_A}, 6            ; tiles
    s_mul_i32 s{S_T0}, s{S_SLOT}, s{S_TT}
    s_add_u32 s{S_NT}, s{S_T0}, s{S_TT}
    s_mul_i32 s{S_T0}, s{S_T0}, 43691
    s_mul_i32 s{S_NT}, s{S_NT}, 43691
    s_lshr_b32 s{S_T0}, s{S_T0}, 19
    s_lshr_b32 s{S_NT}, s{S_NT}, 19
    s_sub_u32 s{S_NT}, s{S_NT}, s{S_T0}""")
    a(f"""
    s_cmp_eq_u32 s{S_K}, 0
    s_cbranch_scc1 K_nor2c
    s_waitcnt lgkmcnt(0)""")
    place_cols(range(8, 16))
    thr = [int(x) for x in optval("thr", "10_5").split("_")] + [2]
    vBk = 80
    vGr = 82
    a(f"""
K_nor2c:
    s_lshl_b32 s{S_A}, s{S_T0}, 6            ; list position of this wave
    v_lshl_add_u32 v{t3}, v{V_AIDX}, 1, s{S_A}
    v_add_u32 v{t2}, s{S_A}, v{t1}
    ; first node of this wave: n = #(m < nn : start[m] <= ts) - 1
    v_cmp_ge_u32 {mask(0)}, s{S_A}, v{vS}
    v_subrev_u32 v{t0}, s{S_A}, v{vS}
    s_and_b64 {mask(0)}, {mask(0)}, vcc
    s_bcnt1_i32_b64 s{S_B}, {mask(0)}
    s_sub_u32 s{S_B}, s{S_B}, 1              ; n
    s_andn2_b64 {mask(0)}, vcc, {mask(0)}
    v_bfe_u32 v{t4}, v{t0}, 3, 3
    v_add_u32 v{t4}, 1, v{t4}
    v_lshrrev_b32 v{t0}, 6, v{t0}
    v_min_u32 v{t0}, 63, v{t0}
    v_cndmask_b32 v{t0}, 63, v{t0}, {mask(0)}
    v_lshlrev_b32 v{t0}, 2, v{t0}
    v_mov_b32 v{vBk}, 0
    {"" if "novar" in OPT else f"ds_permute_b32 v{vBk}, v{t0}, v{t4}"}
    s_lshl_b32 s{S_D}, s{S_NT}, 4""")
    for c in range(5):
        a(f"    v_cmp_gt_i32 {mask(5+c)}, s{S_D}, v{L}")
        a(f"    s_sub_u32 s{S_D}, s{S_D}, 64")
    a(f"""
    s_cmp_ge_u32 s{S_WAVE}, 7
    s_cbranch_scc1 K_nprep
    ; rows of node = lane: first = node + slot(first tile), extra = slot(last tile) - slot(first tile)
    v_cvt_f32_u32 v70, s{S_TT}
    v_rcp_f32 v70, v70
    v_add3_u32 v{vP}, v{vS}, v{vP}, -4
    v_lshrrev_b32 v{vS}, 6, v{vS}
    v_lshrrev_b32 v{vP}, 6, v{vP}
    v_cvt_f32_u32 v{vS}, v{vS}
    v_cvt_f32_u32 v{vP}, v{vP}
    v_add_f32 v{vS}, {f32bits((NW-0.5)/NW):#x}, v{vS}
    v_add_f32 v{vP}, {f32bits((NW-0.5)/NW):#x}, v{vP}
    v_mul_f32 v70, {f32bits(NW):#x}, v70
    v_mul_f32 v{vS}, v{vS}, v70
    v_mul_f32 v{vP}, v{vP}, v70
    v_cvt_u32_f32 v{vS}, v{vS}
    v_cvt_u32_f32 v{vP}, v{vP}
    v_sub_u32 v{vP}, v{vP}, v{vS}
    v_add_u32 v{vS}, v{vS}, v{L}
    v_lshl_or_b32 v{vS}, v{vP}, 8, v{vS}
    v_lshl_or_b32 v{V_CNT}, v{vS}, 16, v{V_CNT}
    ds_bpermute_b32 v73, v{E_XR}, v{V_CNT}
    s_lshl_b32 s{S_C}, s{S_NN}, 2
    v_cmp_gt_u32 vcc, s{S_C}, v{E_XR}
    s_movk_i32 s{S_C}, {OF_STRIDE}
    v_mov_b32 v75, {L_Z2}
    s_waitcnt lgkmcnt(0)
    v_cndmask_b32 v73, 0, v73, vcc
    v_bfe_u32 v{E_ROW}, v73, 16, 8
    v_lshrrev_b32 v{E_XR}, 24, v73
    v_and_b32 v74, 0xffff, v73
    v_mad_u32_u24 v{E_ROW}, v{E_ROW}, s{S_C}, v{E_NX}
    v_cvt_f32_u32 v74, v74
    v_add_u32 v{E_NX}, {OF_STRIDE}, v{E_ROW}
    v_cndmask_b32 v{E_ROW}, v75, v{E_ROW}, vcc
    v_cmp_lt_u32 vcc, 0, v{E_XR}
    v_mul_f32 v74, 0x3e800000, v74           ; degree""")
    for q in range(4):
        a(f"    v_pk_mul_f32 {vr(E_DB[q],2)}, {vr(vBu[q],2)}, v[74:75] op_sel_hi:[1,0]")
    a(f"    v_cndmask_b32 v{E_R2}, v75, v{E_NX}, vcc")
    a(f"""
K_nprep:
    s_waitcnt lgkmcnt(0)
    s_barrier""")
    stamp(a, 11)
    for m in range(4):
        a(f"    ds_read_u16 v{V_IX+2*m}, v{t3} offset:{L_RL + 16*m}")
    for c in range(5):
        a(f"    ds_read_b32 v{vGr+c}, v{t2} offset:{L_RL + 256*c}")
    a(f"""
    s_lshr_b32 s{S_C}, s{S_A}, 1
    s_add_u32 s{S_C}, s{S_C}, {L_IX}
    v_add_u32 v{V_AIDX}, s{S_C}, v{V_AIDX}
    v_lshl_add_u32 v{t0}, v{L}, 1, s{S_C}
    s_mov_b32 s{S_C}, 0x03020302
    s_mov_b32 s{S_D}, 0x8001
    s_waitcnt lgkmcnt(5)""")
    for m in range(4):
        a(f"    v_and_b32 v{V_IX+2*m}, {0xfff if 'cheat1' in OPT or 'cheat2' in OPT else PADREC}, v{V_IX+2*m}")
    for h in dma_ops(): a(h)
    if "st2" in OPT:
        a(f"""
    s_cmp_lt_u32 s{S_WAVE}, 8
    s_cbranch_scc1 K_ns2
    v_add_u32 v{vPf}, 0x100000, v{vPf}
    global_load_dword v{t5}, v{vPf}, {sr(S_WS,2)} sc1
K_ns2:""")
    a(f"    ; this wave's entries -> one-hot word, (e, e), source node")
    a(f"    s_waitcnt lgkmcnt(0)")
    for c in range(5):
        a(f"    v_and_b32 v{vGr+5+c}, 0xc000, v{vGr+c}")
        a(f"    v_perm_b32 v{64+c}, v{vGr+c}, v{vGr+c}, s{S_C}")
        a(f"    v_xor_b32 v{vGr+c}, v{vGr+c}, v{vGr+5+c}")
        a(f"    v_mul_u32_u24 v{vGr+5+c}, s{S_D}, v{vGr+5+c}")
        a(f"    v_and_b32 v{vGr+5+c}, 0x40004000, v{vGr+5+c}")
    for c in range(5):
        a(f"    s_mov_b64 exec, {mask(5+c)}")
        a(f"    ds_write2st64_b32 v{t2}, v{vGr+5+c}, v{64+c} offset0:{L_G//256 + c} offset1:{L_RL//256 + c}")
        a(f"    ds_write_b16 v{t0}, v{vGr+c} offset:{128*c}")
    a(f"""
    s_mov_b64 exec, -1
    s_lshl_b32 s{S_C}, s{S_B}, 9
    s_add_u32 s{S_C}, s{S_C}, {L_QT}
    v_add_u32 v{V_AQ}, s{S_C}, v{t1}
    v_lshrrev_b32 v{t4}, 7, v{V_INCA}
    v_mad_u32_u24 v{V_AENT}, v{t4}, s{S_A}, v{V_AENT}""")
    for h in ent_reads(0) + q_reads() + idx_reads(32): a(h)
    a(f"""
    s_add_u32 s{S_C}, s{S_B}, s{S_SLOT}
    s_mul_i32 s{S_C}, s{S_C}, {ST_STRIDE}
    s_add_u32 s{S_C}, s{S_C}, {L_ST}
    v_add_u32 v{V_AS}, s{S_C}, v{t1}
    v_add_u32 v{V_AQ}, 0x200, v{V_AQ}
    ; jump table: slot of the variant, entry inside it (priority steps near the end), exit at lane nt
    v_and_b32 v{t4}, 1, v{L}
    v_mad_u32_u24 v{t4}, v{t4}, 9, v{vBk}
    v_sub_u32 v{t0}, s{S_NT}, v{L}
    v_mov_b32 v{t3}, {ENTRY}""")
    for i, th in enumerate(thr):
        a(f"    v_cmp_eq_u32 {mask(i)}, {th}, v{t0}")
    a(f"    v_cmp_eq_u32 {mask(3)}, 0, v{t0}")
    a(f"    s_movk_i32 s{S_C}, {VAR_SIZE}")
    for i, th in enumerate(thr):
        a(f"    v_cndmask_b32 v{t3}, v{t3}, {8*i}, {mask(i)}")
    a(f"""
    v_mad_u32_u24 v{t4}, v{t4}, s{S_C}, v{t3}
    v_mov_b32 v{t3}, K_exit - K_vbase
    v_cndmask_b32 v{t4}, v{t4}, v{t3}, {mask(3)}
    ds_bpermute_b32 v{V_TAB}, v{t1}, v{t4} offset:4
    s_mov_b32 s{S_K}, 1
    v_readlane_b32 s{S_J}, v{t4}, 0
    s_setprio 3
    s_waitcnt vmcnt(0)""")
    stamp(a, 12)
    for h in tr_reads(0): a(h)
    a(f"""
    s_add_u32 s{S_J}, s{S_J}, s{S_PC}
    s_addc_u32 s{S_J+1}, s{S_PC+1}, 0
    s_waitcnt lgkmcnt(0)""")
    a(small(0, 0))
    if "cheat2" in OPT:
        for m in range(2): a(f"    v_and_b32 v{V_IX+2*m}, 0xfff, v{V_IX+2*m}")
    for h in dma_ops(): a(h)
    a(small(0, 1))
    a(f"    v_lshl_or_b32 v{V_TAB}, v{V_TAB}, 16, v{t4}")
    if optval("late", "4_6"): a("    s_nop 9")
    stamp(a, 13); stamp(a, 14, True)
    a(f"    s_setpc_b64 {sr(S_J,2)}")
    a(f".p2align 6")
    a(f"K_vbase:")
    for s_ in range(2):
        for b in [None] + list(range(8)):
            tile_variant(a, s_, b)
    a(f".p2align 3")
    a(f"K_exit:")
    stamp(a, 15); stamp(a, 16, True)
    flush1(a)
    a("    s_nop 0")
    flush2(a)
    a(f"""
    v_cmp_eq_f32 vcc, 0, v{V_MN}
    s_cbranch_vccz K_join
    ; a denominator left the f32 range: redo this bin on the exact slow path
    v_mov_b32 v65, {L_FLAG}
    ds_write_b32 v65, v65
K_join:
    s_cmp_ge_u32 s{S_WAVE}, 7
    s_cbranch_scc1 K_st2a
    s_lshl_b32 s{S_A}, s{S_N0}, 7
    s_add_u32 s{S_RT}, s{S_OUT}, s{S_A}
    s_addc_u32 s{S_RT+1}, s{S_OUT+1}, 0
    s_lshl_b32 s{S_RT+2}, s{S_NN}, 7
    s_mov_b32 s{S_RT+3}, 0x00020000
    s_movk_i32 s{S_C}, 0x207
    s_mov_b32 s{S_A}, 1
    v_mov_b32 v96, {NLN2:#x}
    v_mov_b32 v98, {L_Z2}
    s_cmp_ge_u32 s{S_WAVE}, 4
    s_cbranch_scc1 K_st2a
    ; ================= output, stage 1: products of the sum rows with w2""")
    for ot in range(4):
        for ks in range(4):
            for h in range(2):
                a(f"    ds_read_b64_tr_b16 {vr(16*ot+4*ks+2*h,2)}, v{E_W2} offset:{2048*ks+256*h+64*(ot>>1)+8*(ot&1)}")
    a(f"""
    s_waitcnt lgkmcnt(0)
    s_barrier""")
    stamp(a, 17)
    for ks in range(4):
        a(f"    ds_read_b128 {vr(64+4*ks,4)}, v{E_SR} offset:{64*ks}")
    def mf(ot, ks):
        d = vr(80 + 4*ot, 4)
        a(f"    v_mfma_f32_16x16x32_bf16 {d}, {vr(16*ot+4*ks,4)}, {vr(64+4*ks,4)}, {'0' if ks == 0 else d}")
    for ks in range(4):
        a(f"    s_waitcnt lgkmcnt({3-ks})")
        mf(0, ks); mf(1, ks)
    for ks in range(4):
        mf(2, ks); mf(3, ks)
    a(f"""
    ds_write_b128 v{E_OW}, v[80:83]
    ds_write_b128 v{E_OW}, v[84:87] offset:16
    s_nop 4
    ds_write_b128 v{E_OW}, v[88:91] offset:128
    ds_write_b128 v{E_OW}, v[92:95] offset:144
    s_waitcnt lgkmcnt(0)
    s_branch K_st2b
K_st2a:
    s_waitcnt lgkmcnt(0)
    s_barrier                                ; B9
K_st2b:
    s_cmp_ge_u32 s{S_WAVE}, 7
    s_barrier
    s_cbranch_scc1 K_fin
    ds_read_b128 v[64:67], v{E_ROW}
    ds_read_b128 v[68:71], v{E_ROW} offset:16
K_rows:
    ds_read_b128 v[72:75], v{E_R2}
    ds_read_b128 v[76:79], v{E_R2} offset:16
    v_cmp_lt_u32 vcc, s{S_A}, v{E_XR}
    v_add_u32 v{E_NX}, {OF_STRIDE}, v{E_NX}
    s_add_u32 s{S_A}, s{S_A}, 1
    s_waitcnt lgkmcnt(0)""")
    for q in range(4):
        a(f"    v_pk_add_f32 {vr(64+2*q,2)}, {vr(64+2*q,2)}, {vr(72+2*q,2)}")
    a(f"""
    v_cndmask_b32 v{E_R2}, v98, v{E_NX}, vcc
    s_cbranch_vccnz K_rows""")
    for q in range(4):
        a(f"    v_pk_fma_f32 {vr(64+2*q,2)}, {vr(64+2*q,2)}, v[96:97], {vr(E_DB[q],2)} op_sel_hi:[1,0,1]")
    for q in range(4):
        a(f"    v_cvt_pk_bf16_f32 v{72+q}, v{64+2*q}, v{65+2*q}")
    a(f"""
    buffer_store_dwordx4 v[72:75], v{E_OUT}, {sr(S_RT,4)}, 0 offen sc1
    ; a non-finite sum makes every output of its node non-finite: redo this bin on the exact slow path
    v_cmp_class_f32 vcc, v64, s{S_C}
    s_cbranch_vccz K_fin
    v_mov_b32 v65, {L_FLAG}
    ds_write_b32 v65, v65
K_fin:
    v_mov_b32 v65, {L_FLAG}
    s_waitcnt lgkmcnt(0)
    s_barrier                                ; B10
    ds_read_b32 v64, v65
    s_waitcnt lgkmcnt(0)
    v_cmp_ne_u32 vcc, 0, v64
    {"" if "novar" in OPT or "nodma" in OPT else "s_cbranch_vccnz K_slow"}""")
    if DIAG:
        a("    s_waitcnt vmcnt(0)")
        stamp(a, 18); stamp(a, 19, True)
        a(f"""
    v_writelane_b32 v{V_STAMP}, s{S_NT}, 21
    s_lshl_b32 s{S_A}, s2, 4
    s_add_u32 s{S_A}, s{S_A}, s{S_WAVE}
    s_lshl_b32 s{S_A}, s{S_A}, 8
    s_add_u32 s{S_A}, s{S_A}, {WS_STAMP}
    v_lshl_add_u32 v64, v{L}, 2, s{S_A}
    s_mov_b64 exec, 0xffffffff
    global_store_dword v64, v{V_STAMP}, {sr(S_WS,2)}
    global_store_dword v64, v{V_TRACE}, {sr(S_WS,2)} offset:128""")
    if optval("clk", ""):
        a(f"""
    s_lshl_b32 s{S_A}, s2, 4
    s_add_u32 s{S_A}, s{S_A}, s{S_WAVE}
    s_cmp_lg_u32 s{S_A}, {16*int(optval("wg", "100"))}
    s_cbranch_scc1 K_end
    s_lshl_b32 s{S_A}, s{S_TAG+1}, 7
    s_lshr_b32 s{S_B}, s{S_TAG}, 25
    s_or_b32 s{S_A}, s{S_A}, s{S_B}
    v_cvt_f32_u32 v64, s98
    v_cvt_f32_u32 v65, s99
    v_rcp_f32 v64, v64
    s_nop 1
    v_mul_f32 v64, v64, v65
    v_subrev_f32 v64, {f32bits(15.0):#x}, v64
    v_mul_f32 v64, {f32bits(float(optval("mul", "100"))):#x}, v64
    v_cvt_u32_f32 v64, v64
    s_nop 1
    v_readfirstlane_b32 s{S_B}, v64
    s_min_u32 s{S_B}, s{S_B}, 20000
    {f's_sub_u32 s{S_B}, {optval("clk", "")}, s{S_B}' if "neg" in OPT else f's_add_u32 s{S_B}, s{S_B}, {optval("clk", "")}'}
K_spin5:
    s_memrealtime s[98:99]
    s_waitcnt lgkmcnt(0)
    s_sub_u32 s98, s98, s{S_A}
    s_cmp_lt_u32 s98, s{S_B}
    s_cbranch_scc1 K_spin5""")
    if "endamp" in OPT:
        a(f"""
    s_waitcnt vmcnt(0)
    s_memrealtime s[100:101]
    s_lshl_b32 s{S_A}, s2, 4
    s_add_u32 s{S_A}, s{S_A}, s{S_WAVE}
    s_cmp_lg_u32 s{S_A}, {16*int(optval("wg", "100"))}
    s_cbranch_scc1 K_end
    s_lshl_b32 s{S_A}, s{S_TAG+1}, 7
    s_lshr_b32 s{S_B}, s{S_TAG}, 25
    s_or_b32 s{S_A}, s{S_A}, s{S_B}
    s_waitcnt lgkmcnt(0)
    s_sub_u32 s{S_B}, s100, s98
    s_min_u32 s{S_B}, s{S_B}, 2000
    s_mul_i32 s{S_B}, s{S_B}, 20
    s_add_u32 s{S_B}, s{S_B}, 3000
K_spin4:
    s_memrealtime s[98:99]
    s_waitcnt lgkmcnt(0)
    s_sub_u32 s98, s98, s{S_A}
    s_cmp_lt_u32 s98, s{S_B}
    s_cbranch_scc1 K_spin4""")
    if optval("fix", "") != "":
        a(f"""
    s_lshl_b32 s{S_A}, s2, 4
    s_add_u32 s{S_A}, s{S_A}, s{S_WAVE}
    s_cmp_lg_u32 s{S_A}, 1600
    s_cbranch_scc1 K_end
    s_lshl_b32 s{S_A}, s{S_TAG+1}, 7
    s_lshr_b32 s{S_B}, s{S_TAG}, 25
    s_or_b32 s{S_A}, s{S_A}, s{S_B}
K_spin3:
    s_memrealtime s[98:99]
    s_waitcnt lgkmcnt(0)
    s_sub_u32 s98, s98, s{S_A}
    s_cmp_lt_u32 s98, {optval("fix", "")}
    s_cbranch_scc1 K_spin3""")
    if optval("amp", "") != "":
        a(f"""
    s_waitcnt vmcnt(0)
    s_cmp_lg_u32 s{S_WAVE}, {optval("aw", "0")}
    s_cbranch_scc1 K_end
    s_lshl_b32 s{S_A}, s{S_TAG+1}, 7
    s_lshr_b32 s{S_B}, s{S_TAG}, 25
    s_or_b32 s{S_A}, s{S_A}, s{S_B}""")
        if optval("amp", "") == "99":
            a("    s_memrealtime s[98:99]\n    s_waitcnt lgkmcnt(0)")
        a(f"""
    s_sub_u32 s{S_B}, s98, s{S_A}
    s_mov_b64 exec, 1
    v_mov_b32 v64, 0
    v_mov_b32 v65, s{S_B}
    v_mov_b32 v66, 1
    {"v_sub_u32 v65, 0x1000, v65" if "min" in OPT else ""}
    global_atomic_{"add" if "avg" in OPT else "umax"} v64, v65, {sr(S_DBG,2)} offset:128 sc1
    s_sub_u32 s{S_C}, s100, s{S_A}
    v_mov_b32 v68, s{S_C}
    {f"global_atomic_add v64, v68, {sr(S_DBG,2)} offset:144 sc1" if optval("sel", "") else ""}
    s_waitcnt vmcnt(0)
    global_atomic_add v67, v64, v66, {sr(S_DBG,2)} offset:136 sc0 sc1
    s_waitcnt vmcnt(0)
    v_readfirstlane_b32 s{S_B}, v67
    s_cmp_lg_u32 s{S_B}, 255
    s_cbranch_scc1 K_end
    global_atomic_add v67, v64, v64, {sr(S_DBG,2)} offset:128 sc0 sc1
    global_atomic_add v68, v64, v64, {sr(S_DBG,2)} offset:144 sc0 sc1
    s_waitcnt vmcnt(0)
    v_readfirstlane_b32 s{S_C}, v68
    s_cmp_lt_u32 s{S_C}, {390*256}
    {"s_cbranch_scc0 K_end" if optval("sel", "") == "lo" else ""}
    {"s_cbranch_scc1 K_end" if optval("sel", "") == "hi" else ""}
    v_readfirstlane_b32 s{S_B}, v67
    s_mul_i32 s{S_B}, s{S_B}, {optval("mul", "5")}
    {f"s_lshr_b32 s{S_B}, s{S_B}, 8" if "avg" in OPT else ""}
    s_min_u32 s{S_B}, s{S_B}, {optval("base", "0") if "neg" in OPT else 200000}
    {f's_sub_u32 s{S_B}, {optval("base", "0")}, s{S_B}' if "neg" in OPT else f's_add_u32 s{S_B}, s{S_B}, {optval("base", "0")}'}
K_spin2:
    s_memrealtime s[98:99]
    s_waitcnt lgkmcnt(0)
    s_sub_u32 s98, s98, s{S_A}
    s_cmp_lt_u32 s98, s{S_B}
    s_cbranch_scc1 K_spin2""")
    a(f"""
K_end:
    s_endpgm
K_slow:
    ; ================= exact path without hand-offs: scan all edges for this bin
    s_setprio 0
    s_mov_b32 s16, s{S_N0}
    s_mov_b32 s17, s{S_NN}
    s_mov_b32 s18, s{S_WAVE}""")
    gen_slow(a, 16, 17, 18, L, NLOG2E, NW=NW)
    a("    s_endpgm")

def main():
    global DIAG
    out = sys.argv[1]
    DIAG = "diag" in sys.argv[2:]
    OPT.update(sys.argv[2:])
    a = Asm()
    a(f"""; Edge-featured MPNN layer: out[n] = sum_(e: dst=n) (silu([x[src],x[dst],e] w1 + b1) w2 + b2)
; @launch grid=(256,1,1) block=({NT_},1,1) lds={L_END}
.amdgcn_target "amdgcn-amd-amdhsa--gfx950"
.text""")
    gen_kernel(a)
    a(f"""
.section .rodata,"a"
.p2align 6
.amdhsa_kernel {KNAME}
  .amdhsa_next_free_vgpr {NVGPR}
  .amdhsa_next_free_sgpr 102
  .amdhsa_accum_offset {NVGPR}
  .amdhsa_group_segment_fixed_size 0
  .amdhsa_kernarg_size 88
  .amdhsa_user_sgpr_count 2
  .amdhsa_user_sgpr_kernarg_segment_ptr 1
  .amdhsa_system_sgpr_workgroup_id_x 1
  .amdhsa_float_denorm_mode_32 3
.end_amdhsa_kernel""")
    open(out, "w").write(a.text())

if __name__ == "__main__":
    main()
```

```python
import sys, struct
from slow import gen_slow

NAME = "standalone__edge_featured_mpnn_mpnn__graph"
KNAME = NAME + "_kernel"
N_NODES = 12500
NB = 49
NW = 12
NT_ = 64 * NW
MAINE = 4 * NT_
XTRA = 53
RSTRIDE = 16640

WS_TAB = 0x420000
WS_P = 0x4C0000
WS_STAMP = 0xA00000

L_Z = 128
L_H2 = 272
L_FLAG = 536
L_NONCE = 544
L_Z2 = 2048
OF_STRIDE = 272
L_SX = 1296
ENT_CAP = 3472
LSZ = 14080
L_ZA = 4096 - 144
L_G = 4096
L_RL = L_G + LSZ
L_ST = L_RL + LSZ
ST_STRIDE = 288
L_IX = L_ST + 20480
L_QT = (L_IX + LSZ // 2 + 255) // 256 * 256 + 512
L_XS = L_QT + 49 * 512
assert LSZ % 256 == 0 and (ENT_CAP + 48) * 4 == LSZ
L_W2 = L_XS + NW * 4096
L_B2 = L_W2 + 16384
L_END = L_B2 + 256
L_RS = L_ST
L_H1 = L_ST + 16640
L_OFF = L_H1 + 1024
L_W1 = L_XS
L_WC = L_XS + 32768
L_PS = L_WC + 512
L_XR = L_W2
PS_STRIDE = 272
assert L_XS % 256 == 0 and L_END <= 163840
assert L_H1 + 3072 <= L_IX and 64 * ST_STRIDE <= 20480 and L_OFF + 1024 < 65536 and L_PS + 56 * PS_STRIDE <= L_W2

def f32bits(x):
    return struct.unpack("<I", struct.pack("<f", x))[0]
LOG2E = 1.4426950408889634
NLOG2E = f32bits(-LOG2E)
NLN2 = f32bits(-0.6931471805599453)
PADREC = 0x3FFF
POLL_MAX = 4000

class Asm:
    def __init__(self):
        self.l = []
    def __call__(self, s=""):
        for x in s.strip("\n").split("\n"):
            if x.strip():
                self.l.append(x.rstrip())
    def text(self):
        return "\n".join(self.l) + "\n"

def vr(a, n=1):
    return f"v{a}" if n == 1 else f"v[{a}:{a+n-1}]"
def sr(a, n=1):
    return f"s{a}" if n == 1 else f"s[{a}:{a+n-1}]"

DIAG = False
OPT = set()
def optval(prefix, default):
    for o in OPT:
        if o.startswith(prefix):
            return o[len(prefix):]
    return default

V_D = 0; V_E = 64; V_A5 = 96; V_B5 = 98; V_ND = 102; V_T = 110; V_R = 114; V_O = 118; V_IX = 132
V_AA = 140; V_AIDX = 141; V_AENT = 142; V_AQ = 143; V_INCA = 144; V_AS = 145; V_MN = 146; V_PSEL = 147
V_PF = 126; V_TAB = 148; V_CNT = 149; V_S = 150; V_P = 151; V_LANE = 154; V_TID = 155
V_J = 156; V_HH = 157
E_W2 = 147; E_SR = 164; E_OW = 165
E_ROW = 122; E_XR = 123; E_NX = 124; E_R2 = 125; E_OUT = 127; E_DB = [128, 130, 150, 152]
V_STAMP = 167; V_TRACE = 166
NVGPR = 168
S_X = 4; S_E = 6; S_SRC = 8; S_DST = 10; S_W1 = 12; S_B1 = 14; S_W2 = 16; S_B2 = 18; S_OUT = 20; S_DBG = 22; S_WS = 24
S_BIN = 26; S_N0 = 27; S_NN = 28; S_WAVE = 29; S_MODE = 30; S_K = 31; S_PC = 32; S_J = 34
S_RX = 36; S_RT = 40; S_RR = 44; S_P = 48; S_JJ = 52
S_T0 = 56; S_NT = 57; S_TT = 58; S_SLOT = 59; S_A = 60; S_B = 61; S_C = 62; S_D = 63; S_TAG = 64
S_M = 66
def mask(k): return sr(S_M + 2*k, 2)

def stamp(a, k, real=False):
    if optval("clk", ""):
        if k == 13: a("    s_memrealtime s[98:99]\n    s_memtime s[100:101]\n    s_waitcnt lgkmcnt(0)\n    s_mov_b32 s99, s100")
        if k == 15: a("    s_memrealtime s[96:97]\n    s_memtime s[100:101]\n    s_waitcnt lgkmcnt(0)\n    s_sub_u32 s98, s96, s98\n    s_sub_u32 s99, s100, s99")
        return
    if "endamp" in OPT:
        if k == 17: a("    s_memrealtime s[98:99]\n    s_waitcnt lgkmcnt(0)")
        return
    if optval("amp", "") != "":
        if int(optval("amp", "")) == k:
            a("    s_memrealtime s[98:99]\n    s_waitcnt lgkmcnt(0)")
        if k == 6 and optval("sel", ""):
            a("    s_memrealtime s[100:101]\n    s_waitcnt lgkmcnt(0)")
        return
    if not DIAG:
        return
    a(f"    {'s_memrealtime' if real else 's_memtime'} s[100:101]")
    a(f"    s_waitcnt lgkmcnt(0)")
    a(f"    v_writelane_b32 v{V_STAMP}, s100, {k}")

def wave_scan(a, v):
    for sh in (1, 2, 4, 8):
        a(f"    s_nop 1")
        a(f"    v_add_u32_dpp v{v}, v{v}, v{v} row_shr:{sh} row_mask:0xf bank_mask:0xf")
    a(f"    s_nop 1")
    a(f"    v_add_u32_dpp v{v}, v{v}, v{v} row_bcast:15 row_mask:0xa bank_mask:0xf")
    a(f"    s_nop 1")
    a(f"    v_add_u32_dpp v{v}, v{v}, v{v} row_bcast:31 row_mask:0xc bank_mask:0xf")

SD = "dst_sel:DWORD dst_unused:UNUSED_PAD"

def dreg(s, c): return V_D + 32*s + 16*c
def small(s, c):
    d = vr(dreg(s, c), 16)
    return f"    v_mfma_f32_32x32x8_bf16 {d}, {vr(V_A5,2)}, {vr(V_B5+2*c,2)}, {d}"
def tr_reads(s):
    return [f"    ds_read_b64_tr_b16 {vr(dreg(s,c)+2*u,2)}, v{V_AA} offset:{512*u+128*c}" for u in range(8) for c in range(2)]
def ent_reads(off):
    return [f"    ds_read_b32 v{V_A5}, v{V_AENT} offset:{off}",
            f"    ds_read_b32 v{V_A5+1}, v{V_AENT} offset:{off + L_RL - L_G}"]
def q_reads():
    return [f"    ds_read_b32 v{V_B5+2*c}, v{V_AQ} offset:{256*c}" for c in range(2)]
def idx_reads(off):
    return [f"    ds_read_u16 v{V_IX+2*m}, v{V_AIDX} offset:{off + 8*m}" for m in range(4)]
def dma_ops():
    if "nodma" in OPT: return []
    return [f"    buffer_load_dwordx4 {vr(V_IX+2*m,2)}, {sr(S_RX,4)}, s{S_P+m} idxen offen offset:{1024*m} sc1 lds" for m in range(4)]

def flush1(a):
    for c in range(2):
        D = V_ND + 4*c + 2
        a(f"    v_rcp_f32 v{V_R+2*c}, v{D}")
        a(f"    v_rcp_f32 v{V_R+2*c+1}, v{D+1}")
def flush2(a):
    for c in range(2):
        a(f"    v_pk_mul_f32 {vr(V_O+2*c,2)}, {vr(V_ND+4*c,2)}, {vr(V_R+2*c,2)}")
    for c in range(2):
        a(f"    v_min3_f32 v{V_MN}, v{V_MN}, v{V_R+2*c}, v{V_R+2*c+1}")
    for c in range(2):
        a(f"    v_add_f32 v{V_O+2*c}, v{V_O+2*c}, v{V_O+2*c+1}")
    a(f"    v_cvt_pk_bf16_f32 v{V_O}, v{V_O}, v{V_O+2}")
    a(f"    ds_write_b32 v{V_AS}, v{V_O}")

def y_phase(a, s, b, us=range(8), nsrc=None):
    if nsrc is None: nsrc = [V_ND + 4*c for c in range(2)]
    a(".p2align 3")
    for u in us:
        if u == b:
            flush1(a)
            for c in range(2):
                a(f"    v_pk_add_f32 {vr(V_ND+4*c+2,2)}, {vr(V_E+16*c+2*u,2)}, 1.0 op_sel_hi:[1,0]")
            flush2(a)
            for c in range(2):
                p = dreg(s, c) + 2*u
                if u == 7:
                    a(f"    v_pk_mov_b32 {vr(V_ND+4*c,2)}, {vr(p,2)}, {vr(p,2)} op_sel:[0,1]")
                else:
                    nsrc[c] = p
            continue
        for c in range(2):
            a(f"    v_pk_fma_f32 {vr(V_T+2*c,2)}, {vr(dreg(s,c)+2*u,2)}, {vr(V_ND+4*c+2,2)}, {vr(nsrc[c],2)}")
        for c in range(2):
            D = V_ND + 4*c + 2
            a(f"    v_pk_fma_f32 {vr(D,2)}, {vr(D,2)}, {vr(V_E+16*c+2*u,2)}, {vr(D,2)}")
        for c in range(2):
            a(f"    v_pk_fma_f32 {vr(V_ND+4*c,2)}, {vr(nsrc[c],2)}, {vr(V_E+16*c+2*u,2)}, {vr(V_T+2*c,2)}")
            nsrc[c] = V_ND + 4*c

VAR_SIZE = 960
ENTRY = 24
def tile_variant(a, s, b):
    name = f"{s}{'N' if b is None else b}"
    vi = 9*s + (0 if b is None else b + 1)
    a(f".org K_vbase + {VAR_SIZE*vi}, 0")
    a(f"    s_setprio 2\n    s_branch K_var{name}\n    s_setprio 1\n    s_branch K_var{name}\n    s_setprio 0")
    a(f"    s_nop 0")
    a(f"K_var{name}:")
    bnd = b is not None
    if "trace" in OPT and s == 0:
        a(f"    s_memtime s[100:101]\n    s_mov_b32 s{S_A}, m0\n    s_mov_b32 m0, s{S_K}\n    s_waitcnt lgkmcnt(0)")
        a(f"    v_writelane_b32 v{V_TRACE}, s100, m0\n    s_mov_b32 m0, s{S_A}")
    es = [f"    v_exp_f32 v{V_E+16*c+2*u+h}, v{dreg(s,c)+2*u+h}" for u in range(8) for c in range(2) for h in range(2)]
    head = ent_reads(64 + 64*s) + (q_reads() if bnd else []) + tr_reads(s ^ 1) + idx_reads(64 + 32*s)
    plain = [f"    v_readlane_b32 s{S_JJ}, v{V_TAB}, s{S_K}"] if s == 0 else \
            [f"    v_add_u32 v{V_AENT}, v{V_INCA}, v{V_AENT}", f"    v_add_u32 v{V_AIDX}, 64, v{V_AIDX}"]
    if bnd: plain.append(f"    v_add_u32 v{V_AQ}, 0x200, v{V_AQ}")
    jump = [f"    s_and_b32 s{S_J}, s{S_JJ}, 0xffff", f"    s_add_u32 s{S_K}, s{S_K}, 2"] if s == 0 else [f"    s_lshr_b32 s{S_J}, s{S_JJ}, 16"]
    jump += [f"    s_add_u32 s{S_J}, s{S_J}, s{S_PC}", f"    s_addc_u32 s{S_J+1}, s{S_PC+1}, 0"]
    late = optval("late", "4_6")
    if late:
        ua, ub = [int(x) for x in late.split("_")]
        for e in es[:4*ub]: a(e)
        nsrc = [V_ND + 4*c for c in range(2)]
        y_phase(a, s, b, range(0, ua), nsrc)
        a("    s_waitcnt vmcnt(0)")
        for h in head: a(h)
        y_phase(a, s, b, range(ua, ub), nsrc)
        a(f"    s_waitcnt lgkmcnt(0)")
        for h in dma_ops(): a(h)
        a(small(s ^ 1, 0))
        for e in es[4*ub:4*ub+4]: a(e)
        a(small(s ^ 1, 1))
        for e in es[4*ub+4:]: a(e)
        for p_ in plain + jump: a(p_)
        y_phase(a, s, b, range(ub, 8), nsrc)
    else:
        n1 = int(optval("n1_", "16"))
        a("    s_waitcnt vmcnt(0)")
        for h in head: a(h)
        for e in es[:n1-2]: a(e)
        for p_ in plain: a(p_)
        for e in es[n1-2:n1]: a(e)
        a(f"    s_waitcnt lgkmcnt(0)")
        for h in dma_ops(): a(h)
        a(small(s ^ 1, 0))
        for e in es[n1:n1+4]: a(e)
        a(small(s ^ 1, 1))
        for e in es[n1+4:]: a(e)
        for p_ in jump: a(p_)
        y_phase(a, s, b)
    if bnd:
        a(f"    v_add_u32 v{V_AS}, {ST_STRIDE}, v{V_AS}")
    a(f"    s_setpc_b64 {sr(S_J,2)}")

def gen_kernel(a):
    L = V_LANE; T = V_TID; J = V_J; HH = V_HH
    t0, t1, t2, t3, t4, t5 = 158, 159, 160, 161, 162, 163
    step = NT_ * 16
    vDst = 0
    vSrc = 8
    vEa = 14
    tc = 17
    vTg = 18
    vBa = 20
    vRk = 26
    vWp = 31
    vOf = 32
    vC8 = 37; vWa = 38; vTa = 39
    vX = 40
    vWf = 56
    vPad = 56
    vAc = 72
    vTb = 88
    vXa = 88
    vB1 = 96
    vCl = 120
    v4k = 125
    vPf = 126
    vZ = 128
    vG4 = 164; vSb = 165
    vS = V_S; vP = V_P
    a(f"""
.p2align 8
.globl {KNAME}
.type {KNAME},@function
{KNAME}:
    s_cmp_ge_u32 s2, 256
    s_cbranch_scc1 K_end
    s_load_dwordx8 s[4:11], s[0:1], 0
    s_load_dwordx8 s[12:19], s[0:1], 32      ; w1, b1, w2, b2
    s_load_dwordx4 s[20:23], s[0:1], 64
    s_load_dwordx2 s[24:25], s[0:1], 80      ; ws
    s_memrealtime {sr(S_TAG,2)}
    v_lshrrev_b32 v1, 6, v0
    v_mov_b32 v{T}, v0
    v_readfirstlane_b32 s{S_WAVE}, v1
    v_and_b32 v{L}, 63, v0
    s_mul_i32 s3, s2, {MAINE*4}
    v_lshl_add_u32 v{t0}, v0, 4, s3          ; byte offset into src/dst
    v_lshrrev_b32 v{t1}, 1, v{t0}
    s_and_b32 s{S_BIN}, s2, 7
    s_lshl_b32 s{S_BIN}, s{S_BIN}, 5
    s_lshr_b32 s3, s2, 3
    s_add_u32 s{S_BIN}, s{S_BIN}, s3
    s_mul_i32 s{S_N0}, s{S_BIN}, {NB}
    s_sub_u32 s{S_NN}, {N_NODES}, s{S_N0}
    s_min_u32 s{S_NN}, s{S_NN}, {NB}
    v_and_b32 v{J}, 31, v0
    v_bfe_u32 v{HH}, v0, 5, 1
    s_mov_b32 s{S_MODE}, 0
    v_mov_b32 v{vZ}, 0
    v_mov_b32 v{vZ+1}, 0
    v_mov_b32 v{vZ+2}, 0
    v_mov_b32 v{vZ+3}, 0
    v_lshlrev_b32 v{t2}, 2, v0""")
    if DIAG:
        a(f"    v_mov_b32 v{V_STAMP}, 0\n    v_mov_b32 v{V_TRACE}, 0")
        stamp(a, 0, True); stamp(a, 1)
    a(f"""
    s_waitcnt lgkmcnt(0)
    global_load_dwordx4 {vr(vDst,4)}, v{t0}, {sr(S_DST,2)}
    {f"s_add_u32 s98, s{S_TAG}, 200" if optval("amp", "") == "1" else ""}
    ds_write_b32 v{t2}, v{vZ} offset:{L_H1}
    s_cmp_lg_u32 s{S_WAVE}, 11
    s_cbranch_scc1 K_ld1
    ; wave 11 also takes the 53 extra edges of this chunk
    s_mul_i32 s{S_A}, s2, {XTRA}
    s_add_u32 s{S_A}, s{S_A}, {256*MAINE}
    v_min_u32 v{t5}, {XTRA-1}, v{L}
    v_add_lshl_u32 v{t5}, v{t5}, s{S_A}, 2
    v_lshrrev_b32 v{t4}, 1, v{t5}
    global_load_dword v{vDst+4}, v{t5}, {sr(S_DST,2)}
    global_load_dword v{vSrc+4}, v{t5}, {sr(S_SRC,2)}
    global_load_ushort v{vEa+2}, v{t4}, {sr(S_E,2)}
K_ld1:
    s_cmp_ge_u32 s2, 32
    s_cbranch_scc1 K_ldJ
    s_sub_u32 s{S_A}, s{S_WAVE}, 5
    s_cmp_ge_u32 s{S_A}, 3
    s_cbranch_scc1 K_ld2
    s_lshl_b32 s{S_A}, s{S_A}, 13
    v_lshl_add_u32 v{t5}, v{L}, 7, s{S_A}
    s_getpc_b64 {sr(S_J,2)}
    global_load_dword v{t4}, v{t5}, {sr(S_J,2)} offset:1024
K_ld2:
    ; workgroup 0, wave 9 publishes the hand-off tag of this launch (39 clock bits, never zero)
    s_lshl_b32 s{S_A}, s2, 4
    s_add_u32 s{S_A}, s{S_A}, s{S_WAVE}
    s_cmp_lg_u32 s{S_A}, 9
    s_cbranch_scc1 K_ldJ
    s_lshl_b32 s{S_A}, s{S_TAG}, 25
    s_or_b32 s{S_A}, s{S_A}, 1
    s_lshr_b64 {sr(S_TAG,2)}, {sr(S_TAG,2)}, 7
    v_mov_b32 v{t4}, s{S_A}
    v_mov_b32 v{t4+1}, s{S_TAG}
    s_mov_b64 exec, 1
    global_store_dwordx2 v{vZ}, {vr(t4,2)}, {sr(S_DBG,2)} sc1
    s_mov_b64 exec, -1
K_ldJ:
    s_lshl_b32 s{S_A}, s{S_WAVE}, 11
    s_cmp_ge_u32 s{S_WAVE}, 8
    s_cbranch_scc1 K_stX
    ; waves 0..7 stage w1 rows 0..63 (64-byte blocks of a row swapped by row&3)
    s_add_u32 m0, s{S_A}, {L_W1}
    v_lshrrev_b32 v{t3}, 2, v{L}
    v_and_b32 v{t3}, 12, v{t3}
    v_xor_b32 v{t3}, v{t3}, v{L}
    v_lshl_add_u32 v{t5}, v{t3}, 4, s{S_A}
    global_load_lds_dwordx4 v{t5}, {sr(S_W1,2)}
    global_load_lds_dwordx4 v{t5}, {sr(S_W1,2)} offset:1024
    s_branch K_stJ
K_stX:
    ; waves 8..11 stage the x rows of this bin (16-byte pieces swizzled inside each row)
    s_mov_b32 s{S_RX}, s4
    s_mov_b32 s{S_RX+1}, s5
    s_mov_b32 s{S_RX+2}, {N_NODES*128}
    s_mov_b32 s{S_RX+3}, 0x00020000
    s_add_u32 m0, s{S_A}, {L_XR - 16384}
    s_lshl_b32 s{S_B}, s{S_N0}, 7
    s_add_u32 s{S_A}, s{S_A}, s{S_B}
    s_sub_u32 s{S_A}, s{S_A}, 16384
    v_lshrrev_b32 v{t3}, 4, v{L}
    v_xor_b32 v{t3}, v{t3}, v{L}
    v_lshl_add_u32 v{t3}, v{t3}, 4, s{S_A}
    v_xor_b32 v{t5}, 64, v{t3}
    buffer_load_dwordx4 v{t3}, {sr(S_RX,4)}, 0 offen lds
    buffer_load_dwordx4 v{t5}, {sr(S_RX,4)}, 0 offen offset:1024 lds
K_stJ:
    s_waitcnt lgkmcnt(0)
    s_barrier
    v_mov_b32 v{vPad}, {PADREC}
    v_mov_b32 v{vPad+1}, {PADREC}
    v_mov_b32 v{vPad+2}, {PADREC}
    v_mov_b32 v{vPad+3}, {PADREC}
    v_lshlrev_b32 v{t2}, 4, v{T}
    ds_write_b128 v{t2}, {vr(vPad,4)} offset:{L_RL}
    s_cmp_ge_u32 s{S_WAVE}, 4
    s_cbranch_scc1 K_in1
    ds_write_b128 v{t2}, {vr(vZ,4)}
    ds_write_b128 v{t2}, {vr(vPad,4)} offset:{L_ST - 4096}
K_in1:
    s_cmp_lg_u32 s{S_WAVE}, 4
    s_cbranch_scc1 K_in2
    v_lshlrev_b32 v{t3}, 2, v{L}
    ds_write_b32 v{t3}, v{vZ} offset:{L_RL - 256}
K_in2:
    global_load_dwordx4 {vr(vSrc,4)}, v{t0}, {sr(S_SRC,2)}
    global_load_dwordx2 {vr(vEa,2)}, v{t1}, {sr(S_E,2)}
    s_cmp_ge_u32 s{S_WAVE}, 8
    s_cbranch_scc1 K_st2
    s_add_u32 m0, m0, 16384
    v_add_u32 v{t5}, 0x4000, v{t5}
    global_load_lds_dwordx4 v{t5}, {sr(S_W1,2)}
    global_load_lds_dwordx4 v{t5}, {sr(S_W1,2)} offset:1024
    s_branch K_st3
K_st2:
    s_mov_b32 m0, {L_WC}
    v_lshlrev_b32 v{t3}, 2, v{L}
    v_add_u32 v{t4}, 0x8000, v{t3}
    global_load_lds_dword v{t4}, {sr(S_W1,2)}
    s_mov_b32 m0, {L_WC + 256}
    s_nop 0
    global_load_lds_dword v{t3}, {sr(S_B1,2)}
K_st3:""")
    tl = optval("tlb", "")
    tk = 1 if tl else 0
    if tl == "1":
        a(f"""
    s_and_b32 s{S_K}, s{S_WAVE}, 3
    s_mul_i32 s{S_J}, s{S_K}, {127*RSTRIDE}
    s_add_u32 s{S_J}, s{S_J}, {RSTRIDE - 4}
    s_cmp_eq_u32 s{S_K}, 3
    s_cselect_b32 s{S_J}, {WS_P + N_NODES*256 + 4096}, s{S_J}
    v_mov_b32 v5, s{S_J}
    global_load_dword v5, v5, {sr(S_WS,2)}
""")
    a(f"""
    v_and_b32 v{vC8}, 3, v{L}
    v_lshlrev_b32 v{vC8}, 3, v{vC8}
    v_and_b32 v{t1}, 16, v{L}
    v_lshl_add_u32 v{vC8}, v{t1}, 1, v{vC8}  ; 8c + 32(g&1)
    s_lshr_b32 s{S_D}, s{S_WAVE}, 1          ; ct
    v_bfe_u32 v{t0}, v{L}, 2, 2
    v_xor_b32 v{t3}, s{S_D}, v{t0}
    v_lshlrev_b32 v{t3}, 6, v{t3}
    v_lshl_add_u32 v{t0}, v{HH}, 3, v{t0}
    v_lshl_add_u32 v{t0}, v{t0}, 8, v{t3}
    v_add_u32 v{vWa}, {L_W1}, v{t0}          ; k row 8*hh + r, column block ct^r
    v_and_b32 v{vWp}, 1, v{L}
    v_lshl_add_u32 v{vWp}, v{vWp}, 5, v{vWa}
    v_and_b32 v{t3}, 16, v{L}
    v_add_u32 v{vWp}, v{vWp}, v{t3}
    v_and_b32 v{t3}, 2, v{L}
    v_lshl_add_u32 v{vWp}, v{t3}, 2, v{vWp}  ; + 16(c&1) + 4(2(g&1) + (c>>1)) columns
    s_and_b32 s{S_A}, s{S_WAVE}, 1
    s_lshl_b32 s{S_A}, s{S_A}, 12
    s_add_u32 s{S_A}, s{S_A}, {L_XR}
    v_bfe_u32 v{t3}, v{L}, 1, 3
    v_xor_b32 v{t3}, v{t3}, v{HH}
    v_lshl_add_u32 v{t3}, v{t3}, 4, s{S_A}
    v_lshl_add_u32 v{vXa}, v{J}, 7, v{t3}
    v_xor_b32 v{vXa+1}, 32, v{vXa}
    v_xor_b32 v{vXa+2}, 64, v{vXa}
    v_xor_b32 v{vXa+3}, 0x60, v{vXa}
    s_mov_b32 s{S_A}, 21400
    s_mov_b32 s{S_B}, -{NB}
    s_mov_b32 s{S_C}, 0xffff0000
    v_mov_b32 v{t5}, 0x10004
    v_mov_b32 v{vBa+4}, 0
    v_mov_b32 v{v4k}, 0x4000
    s_waitcnt vmcnt({7 if tl == "1" else 6})""")
    if tl == "2":
        a(f"""
    s_and_b32 s{S_K}, s{S_WAVE}, 3
    s_mul_i32 s{S_J}, s{S_K}, {127*RSTRIDE}
    s_add_u32 s{S_J}, s{S_J}, {RSTRIDE - 4}
    s_cmp_eq_u32 s{S_K}, 3
    s_cselect_b32 s{S_J}, {WS_P + N_NODES*256 + 4096}, s{S_J}
    v_mov_b32 v5, s{S_J}
    global_load_dword v5, v5, {sr(S_WS,2)}
""")
    a(f"""
    s_cmp_lg_u32 s{S_WAVE}, 11
    s_cbranch_scc1 K_wJ
    s_bfm_b64 exec, {XTRA}, 0""")
    assert L_ST - L_RL <= step + 4096
    def binops(cols):
        for i in cols: a(f"    v_mul_u32_u24 v{vBa+i}, s{S_A}, v{vDst+i}")
        for i in cols: a(f"    v_lshrrev_b32 v{vBa+i}, 18, v{vBa+i}")
        for i in cols:
            a(f"    v_and_b32 v{vBa+i}, 0x3fc, v{vBa+i}")
            a(f"    ds_add_rtn_u32 v{vRk+i}, v{vBa+i}, v{t5} offset:{L_H1}")
        for i in cols: a(f"    v_lshlrev_b32 v{vDst+i}, 2, v{vDst+i}")
        for i in cols: a(f"    v_mad_i32_i24 v{vDst+i}, v{vBa+i}, s{S_B}, v{vDst+i}")
        for i in cols: a(f"    v_bfe_u32 v{vCl+i}, v{vDst+i}, 2, 1")
    binops([4])
    a(f"""
    s_mov_b64 exec, -1
K_wJ:""")
    stamp(a, 2)
    binops(range(4))
    a(f"""
    s_waitcnt vmcnt({4+tk}) lgkmcnt(0)
    s_barrier""")
    stamp(a, 3)
    a(f"""
    s_cmp_eq_u32 s{S_WAVE}, 8
    s_cbranch_scc1 K_scan1
    s_cmp_gt_u32 s{S_WAVE}, 8
    s_cbranch_scc1 K_notP
    ; ---- waves 0..7: P^T tile = -log2(e) * (x w1[0:64])^T""")
    for s_ in range(4):
        a(f"    ds_read_b128 {vr(vX+4*s_,4)}, v{vXa+s_}")
        for h in range(2):
            a(f"    ds_read_b64_tr_b16 {vr(vWf+4*s_+2*h,2)}, v{vWp} offset:{4096*s_+1024*h}")
    for s_ in range(4):
        a(f"    s_waitcnt lgkmcnt({9-3*s_})")
        cin = "0" if s_ == 0 else vr(vAc, 16)
        a(f"    v_mfma_f32_32x32x16_bf16 {vr(vAc,16)}, {vr(vWf+4*s_,4)}, {vr(vX+4*s_,4)}, {cin}")
    a(f"""
    s_and_b32 s{S_B}, s{S_WAVE}, 1
    s_mul_i32 s{S_A}, s{S_B}, {32*PS_STRIDE}
    s_lshl_b32 s{S_B}, s{S_D}, 6
    s_add_u32 s{S_A}, s{S_A}, s{S_B}
    s_add_u32 s{S_A}, s{S_A}, {L_PS}
    v_mul_u32_u24 v{t3}, {PS_STRIDE}, v{J}
    v_lshl_add_u32 v{t3}, v{HH}, 5, v{t3}
    v_add_u32 v{t3}, s{S_A}, v{t3}
    v_mov_b32 v{t4}, {NLOG2E:#x}
    v_cmp_gt_u32 vcc, {L_PS + 56*PS_STRIDE}, v{t3}
    s_nop 1""")
    for q in range(8):
        a(f"    v_pk_mul_f32 {vr(vAc+2*q,2)}, {vr(vAc+2*q,2)}, {vr(t4,2)} op_sel_hi:[1,0]")
    for q in range(8):
        a(f"    v_cvt_pk_bf16_f32 v{vAc+q}, v{vAc+2*q}, v{vAc+2*q+1}")
    a(f"""
    s_mov_b64 exec, vcc
    ds_write_b128 v{t3}, {vr(vAc,4)}
    ds_write_b128 v{t3}, {vr(vAc+4,4)} offset:16
    s_mov_b64 exec, -1
    s_branch K_b3
K_notP:
    v_lshlrev_b32 v{t1}, 4, v{L}
    v_add_u32 v{t4}, {L_PS + 48*PS_STRIDE}, v{t1}
    v_add_u32 v{t1}, {48*256}, v{t1}
    s_branch K_b3
K_scan1:
    ; ---- wave 8: segment offsets; a segment is n records (4 bytes) followed by n node bytes, padded to 4
    s_setprio 2
    global_load_dwordx2 {vr(vTg,2)}, v{vZ}, {sr(S_DBG,2)}
    v_lshlrev_b32 v{t0}, 4, v{L}
    ds_read_b128 v[56:59], v{t0} offset:{L_H1}
    s_waitcnt lgkmcnt(0)""")
    for i in range(4):
        a(f"    v_lshrrev_b32 v{60+i}, 16, v{56+i}")
    for i in range(4):
        a(f"    v_mad_u32_u24 v{64+i}, v{60+i}, 5, 3")
    for i in range(4):
        a(f"    v_and_b32 v{64+i}, -4, v{64+i}")
    a(f"""
    v_add_u32 v65, v64, v65
    v_add_u32 v66, v65, v66
    v_add_u32 v67, v66, v67
    v_mov_b32 v68, v67""")
    wave_scan(a, 68)
    a(f"""
    v_sub_u32 v68, v68, v67
    v_add_u32 v69, v68, v64
    v_add_u32 v70, v68, v65
    v_add_u32 v71, v68, v66
    s_mov_b32 s{S_A}, 0x10001""")
    for i in range(4):
        a(f"    v_mul_u32_u24 v{64+i}, s{S_A}, v{68+i}")
    for i in range(4):
        a(f"    v_lshl_add_u32 v{64+i}, v{56+i}, 16, v{64+i}")
    a(f"""
    ds_write_b128 v{t0}, v[64:67] offset:{L_OFF}
    s_setprio 0
K_b3:
    v_lshrrev_b32 v{t0}, 4, v{T}
    v_lshl_add_u32 v{t0}, v{t0}, 4, v{t2}
    v_add_u32 v{t0}, {L_PS}, v{t0}
    s_lshl_b32 s{S_A}, s{S_N0}, 8
    s_add_u32 s{S_A}, s{S_A}, {WS_P}
    s_add_u32 s{S_RT}, s{S_WS}, s{S_A}
    s_addc_u32 s{S_RT+1}, s{S_WS+1}, 0
    s_lshl_b32 s{S_RT+2}, s{S_NN}, 8
    s_mov_b32 s{S_RT+3}, 0x00020000
    s_waitcnt lgkmcnt(0)
    s_barrier                                ; B3: segment offsets, P staged""")
    stamp(a, 4)
    a(f"""
    s_cmp_lt_u32 s{S_WAVE}, 10
    s_cbranch_scc1 K_nx0
    ds_read_b32 v{vOf+4}, v{vBa+4} offset:{L_OFF}
    ds_read_b128 v[76:79], v{t4}
K_nx0:
    ds_read_b128 v[72:75], v{t0}""")
    for i in range(4):
        a(f"    ds_read_b32 v{vOf+i}, v{vBa+i} offset:{L_OFF}")
    a(f"""
    s_waitcnt lgkmcnt(4)
    buffer_store_dwordx4 v[72:75], v{t2}, {sr(S_RT,4)}, 0 offen sc1
    s_waitcnt vmcnt({3+tk})""")
    stamp(a, 22)
    a(f"""
    v_lshl_or_b32 v{vSrc}, v{v4k}, v{vCl}, v{vSrc}
    v_lshl_or_b32 v{vSrc+1}, v{v4k}, v{vCl+1}, v{vSrc+1}
    v_lshl_or_b32 v{vSrc+2}, v{v4k}, v{vCl+2}, v{vSrc+2}
    v_lshl_or_b32 v{vSrc+3}, v{v4k}, v{vCl+3}, v{vSrc+3}
    v_lshl_or_b32 v{vSrc}, v{vEa}, 16, v{vSrc}
    v_and_or_b32 v{vSrc+1}, v{vEa}, s{S_C}, v{vSrc+1}
    v_lshl_or_b32 v{vSrc+2}, v{vEa+1}, 16, v{vSrc+2}
    v_and_or_b32 v{vSrc+3}, v{vEa+1}, s{S_C}, v{vSrc+3}
    s_waitcnt lgkmcnt(0)""")
    def scatter(i):
        a(f"    v_add_u32_sdwa v{vBa+i}, v{vOf+i}, v{vRk+i} {SD} src0_sel:WORD_0 src1_sel:WORD_0")
        a(f"    v_add_u32_sdwa v{vOf+i}, v{vOf+i}, v{vRk+i} {SD} src0_sel:WORD_1 src1_sel:WORD_1")
        a(f"    ds_write_b32 v{vBa+i}, v{vSrc+i} offset:{L_RS}")
        a(f"    ds_write_b8 v{vOf+i}, v{vDst+i} offset:{L_RS}")
    for i in range(4): scatter(i)
    a(f"""
    s_cmp_lt_u32 s{S_WAVE}, 10
    s_cbranch_scc1 K_nx2
    s_cmp_eq_u32 s{S_WAVE}, 11
    s_cbranch_scc1 K_x2
    buffer_store_dwordx4 v[76:79], v{t1}, {sr(S_RT,4)}, 0 offen sc1
    s_branch K_nx2
K_x2:
    s_bfm_b64 exec, {XTRA}, 0
    v_lshl_or_b32 v{vSrc+4}, v{v4k}, v{vCl+4}, v{vSrc+4}
    v_lshl_or_b32 v{vSrc+4}, v{vEa+2}, 16, v{vSrc+4}""")
    scatter(4)
    a(f"""
    s_mov_b64 exec, -1
K_nx2:
    s_mul_i32 s{S_A}, s2, {RSTRIDE}
    s_add_u32 s{S_RR}, s{S_WS}, s{S_A}
    s_addc_u32 s{S_RR+1}, s{S_WS+1}, 0
    s_mov_b32 s{S_RR+2}, 16512
    s_mov_b32 s{S_RR+3}, 0x00020000
    v_add_u32 v{t3}, {step}, v{t2}
    s_waitcnt lgkmcnt(0)""")
    stamp(a, 23)
    a(f"""
    s_barrier""")
    stamp(a, 5)
    a(f"""
    ds_read_b128 v[0:3], v{t2} offset:{L_RS}
    s_cmp_ge_u32 s{S_WAVE}, 5
    s_cbranch_scc1 K_co1
    ds_read_b128 v[8:11], v{t2} offset:{L_RS + step}
    s_waitcnt lgkmcnt(0)
    buffer_store_dwordx4 v[8:11], v{t3}, {sr(S_RR,4)}, 0 offen sc1
K_co1:
    s_waitcnt lgkmcnt(0)
    buffer_store_dwordx4 v[0:3], v{t2}, {sr(S_RR,4)}, 0 offen sc1
    ; ---- lane constants, while the stores drain
    ; gather: lane -> row l>>4 of 4, piece l&15; odd rows have their 64-byte blocks swapped pairwise
    v_and_b32 v{tc}, 15, v{L}
    v_bfe_u32 v{t3}, v{L}, 4, 1
    v_lshlrev_b32 v{t3}, 2, v{t3}
    v_xor_b32 v{tc}, v{tc}, v{t3}
    v_lshlrev_b32 v{V_IX+1}, 4, v{tc}
    v_mov_b32 v{V_IX+3}, v{V_IX+1}
    v_mov_b32 v{V_IX+5}, v{V_IX+1}
    v_mov_b32 v{V_IX+7}, v{V_IX+1}
    v_lshrrev_b32 v{V_AIDX}, 4, v{L}
    v_lshlrev_b32 v{V_AIDX}, 1, v{V_AIDX}
    v_bfe_u32 v{tc}, v{L}, 3, 1
    v_xor_b32 v{t3}, v{tc}, v{HH}
    v_lshl_add_u32 v{t3}, v{t3}, 6, v{vC8}
    v_lshl_add_u32 v{tc}, v{tc}, 8, v{t3}
    s_lshl_b32 s{S_B}, s{S_WAVE}, 12
    s_add_u32 s{S_B}, s{S_B}, {L_XS}
    v_add_u32 v{tc}, s{S_B}, v{tc}
    v_bfe_u32 v{t4}, v{L}, 2, 1
    v_cmp_ne_u32 vcc, 0, v{t4}
    v_mov_b32 v{t3}, {L_Z}
    v_mov_b32 v{V_MN}, 1.0
    v_cndmask_b32 v{V_AA}, v{t3}, v{tc}, vcc
    v_cmp_eq_u32 {mask(0)}, v{t4}, v{HH}
    v_bfe_u32 v{tc}, v{L}, 3, 2
    v_and_b32 v{t3}, 3, v{L}
    v_lshl_add_u32 v{tc}, v{tc}, 2, v{t3}
    v_lshlrev_b32 v{tc}, 2, v{tc}
    v_add_u32 v{tc}, {L_G}, v{tc}
    v_mov_b32 v{t3}, {L_ZA}
    v_cndmask_b32 v{V_AENT}, v{t3}, v{tc}, {mask(0)}
    v_mov_b32 v{t3}, 0x80
    v_cndmask_b32 v{V_INCA}, 0, v{t3}, {mask(0)}""")
    for m in range(4):
        a(f"    s_movk_i32 s{S_P+m}, {3072 - 1024*m}")
    for c in range(2):
        a(f"    v_mov_b32 v{V_ND+4*c}, 0")
        a(f"    v_mov_b32 v{V_ND+4*c+1}, 0")
        a(f"    v_mov_b32 v{V_ND+4*c+2}, 1.0")
        a(f"    v_mov_b32 v{V_ND+4*c+3}, 1.0")
    a(f"""
    s_and_b32 s{S_A}, s{S_WAVE}, 3
    s_mul_i32 s{S_A}, s{S_A}, 3
    s_lshr_b32 s{S_B}, s{S_WAVE}, 2
    s_add_u32 s{S_SLOT}, s{S_A}, s{S_B}
    s_getpc_b64 {sr(S_PC,2)}
K_pc:
    s_add_u32 s{S_PC}, s{S_PC}, K_vbase - K_pc
    s_addc_u32 s{S_PC+1}, s{S_PC+1}, 0
    ; segment mapping of phase 2: segment 128 i + t/6, lane group g = t%6
    v_mul_u32_u24 v{tc}, 10923, v{T}
    v_lshrrev_b32 v{tc}, 16, v{tc}
    v_mad_i32_i24 v{vG4}, v{tc}, -6, v{T}
    v_lshlrev_b32 v{vG4}, 2, v{vG4}          ; 4g
    v_mul_u32_u24 v{vSb}, {RSTRIDE}, v{tc}
    ; share of P this lane pulls into L2
    s_lshr_b32 s{S_A}, s2, 3
    s_mul_i32 s{S_A}, s{S_A}, {256*128 if "hot" in OPT else 781*128}
    s_add_u32 s{S_A}, s{S_A}, {WS_P - (512*128 if "hot" in OPT else 0)}
    v_lshl_add_u32 v{vPf}, v{T}, 7, s{S_A}
    s_lshr_b32 s{S_B}, s{S_BIN}, 2
    s_lshl_b32 s{S_B}, s{S_B}, 4
    s_and_b32 s{S_A}, s{S_BIN}, 1
    s_lshl_b32 s{S_A}, s{S_A}, 3
    s_add_u32 s{S_B}, s{S_B}, s{S_A}
    s_and_b32 s{S_A}, s{S_BIN}, 2
    s_lshl_b32 s{S_A}, s{S_A}, 9
    s_add_u32 s{S_B}, s{S_B}, s{S_A}
    s_add_u32 s{S_B}, s{S_B}, {WS_TAB}
    v_lshl_add_u32 v{t5}, v{tc}, 11, s{S_B}  ; table entry offset
    s_mov_b32 s3, {NLOG2E:#x}
    s_cmp_lg_u32 s{S_WAVE}, 8
    s_cbranch_scc1 K_ntb
    s_mov_b32 s{S_K}, 0
    s_waitcnt vmcnt(2)
K_tagp:
    v_cmp_ne_u32 vcc, 0, v{vTg}
    s_cbranch_vccnz K_tagok
    s_add_u32 s{S_K}, s{S_K}, 1
    s_cmp_gt_u32 s{S_K}, {POLL_MAX}
    s_cbranch_scc1 K_tagok                   ; give up: tag 0 sends this workgroup to the slow path
    global_load_dwordx2 {vr(vTg,2)}, v{vZ}, {sr(S_DBG,2)} sc1
    s_waitcnt vmcnt(0)
    s_branch K_tagp
K_tagok:
    ds_write_b64 v{vZ}, {vr(vTg,2)} offset:{L_NONCE}
    v_and_b32 v{t3}, 0xfe000000, v{vTg}
    s_lshl_b32 s{S_B}, s2, 11
    s_add_u32 s{S_B}, s{S_B}, {WS_TAB}
    v_lshl_add_u32 v{t1}, v{L}, 4, s{S_B}""")
    for i in range(4):
        a(f"    v_lshrrev_b32 v{68+i}, 2, v{68+i}")
        a(f"    v_lshl_or_b32 v{68+i}, v{60+i}, 13, v{68+i}")
        a(f"    v_or_b32 v{vTb+2*i}, v{t3}, v{68+i}")
        a(f"    v_mov_b32 v{vTb+2*i+1}, v{vTg+1}")
    a(f"""
    s_waitcnt vmcnt(0) lgkmcnt(0)
    s_barrier                                ; B5
    s_cbranch_vccz K_slow
    global_store_dwordx4 v{t1}, {vr(vTb,4)}, {sr(S_WS,2)} sc1
    global_store_dwordx4 v{t1}, {vr(vTb+4,4)}, {sr(S_WS,2)} offset:1024 sc1
    s_branch K_b5j
K_ntb:
    s_waitcnt vmcnt(0)
    s_barrier                                ; B5: this workgroup's records and P rows are in memory
K_b5j:""")
    stamp(a, 6)
    a(f"""
    ds_read_b64 {vr(vTg,2)}, v{vZ} offset:{L_NONCE}
    v_lshlrev_b32 v{t0}, 1, v{L}
    v_add_u32 v{t0}, {L_WC}, v{t0}
    ds_read_u16 v{V_B5}, v{t0}
    ds_read_u16 v{V_B5+2}, v{t0} offset:128
    s_waitcnt lgkmcnt(0)
    v_readfirstlane_b32 s{S_TAG}, v{vTg}
    v_readfirstlane_b32 s{S_TAG+1}, v{vTg+1}
    s_cmp_eq_u32 s{S_TAG}, 0
    s_cbranch_scc1 K_slow""")
    for c in range(2):
        w = V_B5 + 2*c
        a(f"    v_lshlrev_b32 v{w}, 16, v{w}")
        a(f"    v_mul_f32 v{w}, s3, v{w}")
        a(f"    v_cvt_pk_bf16_f32 v{t3}, v{vZ}, v{w}")
        a(f"    v_sub_f32 v{t3}, v{w}, v{t3}")
        a(f"    v_cvt_pk_bf16_f32 v{w+1}, v{w}, v{t3}")
    a(f"""
    s_cmp_lt_u32 s{S_WAVE}, 8
    s_cbranch_scc1 K_Q
    ; waves 8..11 stage w2 and b2 (first used after the main loop)
    s_sub_u32 s{S_A}, s{S_WAVE}, 8
    s_lshl_b32 s{S_A}, s{S_A}, 12
    s_add_u32 m0, s{S_A}, {L_W2}
    v_lshl_add_u32 v{t3}, v{L}, 4, s{S_A}
    global_load_lds_dwordx4 v{t3}, {sr(S_W2,2)}
    global_load_lds_dwordx4 v{t3}, {sr(S_W2,2)} offset:1024
    global_load_lds_dwordx4 v{t3}, {sr(S_W2,2)} offset:2048
    global_load_lds_dwordx4 v{t3}, {sr(S_W2,2)} offset:3072
    s_cmp_lg_u32 s{S_WAVE}, 9
    s_cbranch_scc1 K_notQ
    s_mov_b32 m0, {L_B2}
    v_lshlrev_b32 v{t3}, 2, v{J}
    global_load_lds_dword v{t3}, {sr(S_B2,2)}
    s_branch K_notQ
K_Q:
    ; ---- waves 0..7: Q tile = -log2(e)/2 * (x w1[64:128] + b1) (selected by 2.0), while the table entries travel
    s_mov_b32 s3, {f32bits(-LOG2E/2):#x}
    s_lshl_b32 s{S_A}, s{S_D}, 6
    s_add_u32 s{S_A}, s{S_A}, {L_WC + 256}
    v_lshl_add_u32 v{t3}, v{J}, 1, s{S_A}
    ds_read_u16 v{vB1}, v{t3}
    v_add_u32 v{tc}, v{vWa}, v{vC8}""")
    for s_ in range(4):
        for h in range(2):
            a(f"    ds_read_b64_tr_b16 {vr(vWf+4*s_+2*h,2)}, v{tc} offset:{16384+4096*s_+1024*h}")
    a(f"""
    s_and_b32 s{S_A}, s{S_WAVE}, 1
    s_lshl_b32 s{S_B}, s{S_A}, 14
    s_lshl_b32 s{S_C}, s{S_D}, 7
    s_add_u32 s{S_B}, s{S_B}, s{S_C}
    s_add_u32 s{S_B}, s{S_B}, {L_QT - 512}
    v_lshl_add_u32 v{tc}, v{HH}, 11, s{S_B}
    v_lshl_add_u32 v{tc}, v{J}, 2, v{tc}""")
    for s_ in range(4):
        a(f"    s_waitcnt lgkmcnt({6-2*s_})")
        cin = "0" if s_ == 0 else vr(vAc, 16)
        a(f"    v_mfma_f32_32x32x16_bf16 {vr(vAc,16)}, {vr(vX+4*s_,4)}, {vr(vWf+4*s_,4)}, {cin}")
    a(f"""
    v_lshlrev_b32 v{vB1}, 16, v{vB1}
    v_mul_f32 v{vB1}, s3, v{vB1}
    s_nop 9""")
    def qpair(r):
        row = 8*(r >> 2) + (r & 3)
        a(f"    v_fma_f32 v{vAc+r}, v{vAc+r}, s3, v{vB1}")
        a(f"    v_fma_f32 v{vAc+r+1}, v{vAc+r+1}, s3, v{vB1}")
        a(f"    v_cvt_pk_bf16_f32 v{vWf+r}, v{vAc+r}, v{vAc+r+1}")
        a(f"    ds_write_b32 v{tc}, v{vWf+r} offset:{512*(row+1)}")
        a(f"    ds_write_b16 v{tc}, v{vWf+r} offset:{512*row}")
        a(f"    ds_write_b16_d16_hi v{tc}, v{vWf+r} offset:{512*(row+2)+2}")
    for r in range(0, 12, 2): qpair(r)
    a(f"""
    s_cmp_eq_u32 s{S_A}, 1
    s_cbranch_scc1 K_notQ""")
    for r in range(12, 16, 2): qpair(r)
    a(f"K_notQ:")
    stamp(a, 7)
    vT = 0
    vN = 4
    vAr = 6
    vR = 12
    vM = 28
    vA = 32
    vK = 48
    vB = 64
    a(f"""
    s_lshl_b32 s{S_B}, s{S_WAVE}, 12
    s_add_u32 m0, s{S_B}, {L_XS}
    s_mov_b32 s{S_RR}, s{S_WS}
    s_mov_b32 s{S_RR+1}, s{S_WS+1}
    s_mov_b32 s{S_RR+2}, {WS_TAB + 256*2048}
    s_mov_b32 s{S_A}, {128*2048}
    s_mov_b32 s{S_B}, {128*RSTRIDE}
    s_mov_b32 s{S_C}, 0xfe000000
    s_movk_i32 s{S_D}, 0xfc
    s_mov_b32 s{S_K}, 0
    {"s_sleep " + optval("fs", "0") if optval("fs", "0") != "0" else ""}
    s_mov_b64 {mask(0)}, -1
    s_mov_b64 {mask(1)}, -1
    v_mov_b32 v{vM}, 0
    v_mov_b32 v{vM+1}, 0
K_poll:
    s_mov_b64 exec, {mask(0)}
    s_cbranch_execz K_pl0
    buffer_load_dwordx2 {vr(vT,2)}, v{t5}, {sr(S_RR,4)}, 0 offen sc1
K_pl0:
    s_mov_b64 exec, {mask(1)}
    s_cbranch_execz K_pl1
    buffer_load_dwordx2 {vr(vT+2,2)}, v{t5}, {sr(S_RR,4)}, s{S_A} offen sc1
K_pl1:
    s_mov_b64 exec, -1
    s_waitcnt vmcnt(0)""")
    for i in range(2):
        a(f"    v_xor_b32 v{vN+i}, s{S_TAG}, v{vT+2*i}")
        a(f"    v_xor_b32 v{vAr+i}, s{S_TAG+1}, v{vT+2*i+1}")
        a(f"    v_and_or_b32 v{vAr+i}, v{vN+i}, s{S_C}, v{vAr+i}")
        a(f"    v_cmp_ne_u32 {mask(i)}, 0, v{vAr+i}")
    a(f"""
    s_add_u32 s{S_K}, s{S_K}, 1
    s_or_b64 vcc, {mask(0)}, {mask(1)}
    s_cbranch_scc0 K_got
    s_cmp_lt_u32 s{S_K}, {POLL_MAX}
    s_cbranch_scc1 K_poll
    ; gave up: no records from this wave, ask for the slow path
    s_mov_b32 s{S_MODE}, 1
    s_branch K_nor2a
K_got:""")
    if DIAG:
        a(f"    v_writelane_b32 v{V_STAMP}, s{S_K}, 20")
    stamp(a, 8)
    so = ["0", sr(S_B)]
    for i in range(2):
        a(f"    v_and_b32 v{vAr+i}, 0x1fff, v{vT+2*i}")
        a(f"    v_bfe_u32 v{vT+2*i+1}, v{vT+2*i}, 13, 12")
        a(f"    v_lshl_add_u32 v{vAr+i}, v{vAr+i}, 2, v{vSb}")
        a(f"    v_sub_u32 v{vN+i}, v{vT+2*i+1}, v{vG4}")
        a(f"    v_lshl_add_u32 v{vAr+2+i}, v{vT+2*i+1}, 2, v{vAr+i}")
        a(f"    v_cmp_lt_i32 {mask(4*i)}, 0, v{vN+i}")
        a(f"    v_lshl_add_u32 v{vAr+i}, v{vG4}, 2, v{vAr+i}")
        a(f"    v_add_u32 v{vAr+2+i}, v{vAr+2+i}, v{vG4}")
        a(f"    s_or_b64 exec, {mask(4*i)}, 1")
        a(f"    buffer_load_dword v{vM+i}, v{vAr+2+i}, {sr(S_RR,4)}, {so[i]} offen")
        a(f"    buffer_load_dwordx4 {vr(vR+4*i,4)}, v{vAr+i}, {sr(S_RR,4)}, {so[i]} offen")
        a(f"    s_mov_b64 exec, -1")
    for i in range(2):
        for k in range(1, 4):
            a(f"    v_cmp_lt_i32 {mask(4*i+k)}, {k}, v{vN+i}")
    a(f"""
    v_max_i32 v{t1}, v{vN}, v{vN+1}
    v_cmp_lt_i32 vcc, 24, v{t1}
    s_mov_b32 s{S_K}, 0
    s_cbranch_vccz K_nor2a
    s_mov_b32 s{S_K}, 1""")
    for i in range(2):
        a(f"    buffer_load_dword v{vM+2+i}, v{vAr+2+i}, {sr(S_RR,4)}, {so[i]} offen offset:24")
        a(f"    buffer_load_dwordx4 {vr(vR+8+4*i,4)}, v{vAr+i}, {sr(S_RR,4)}, {so[i]} offen offset:96")
        for k in range(4):
            a(f"    v_cmp_lt_i32 {mask(8+4*i+k)}, {24+k}, v{vN+i}")
    pf0 = int(optval("pf", "8"))
    a(f"""
    v_cmp_lt_i32 vcc, 48, v{t1}
    s_cbranch_vccz K_nor2a
    s_mov_b32 s{S_MODE}, 1                   ; a segment is too long for the fast path
K_nor2a:
    v_mov_b32 v{t4}, {L_FLAG}
    v_mov_b32 v{t0}, 4
    s_cmp_eq_u32 s{S_MODE}, 0
    s_cbranch_scc1 K_nofl
    ds_write_b32 v{t4}, v{t0}
K_nofl:
    s_waitcnt lgkmcnt(0)
    s_barrier
    ds_read_b32 v{t3}, v{t4}
    ; P descriptor: 256-byte records, base shifted by -3072
    s_add_u32 s{S_RX}, s{S_WS}, {WS_P - 3072}
    s_addc_u32 s{S_RX+1}, s{S_WS+1}, 0
    s_and_b32 s{S_RX+1}, s{S_RX+1}, 0xffff
    s_or_b32 s{S_RX+1}, s{S_RX+1}, 0x01000000
    s_mov_b32 s{S_RX+2}, {N_NODES}
    s_mov_b32 s{S_RX+3}, 0x00020000
    s_waitcnt lgkmcnt(0)
    v_cmp_ne_u32 vcc, 0, v{t3}
    s_cbranch_vccnz K_slow
    s_cmp_lt_u32 s{S_WAVE}, {pf0}
    s_cbranch_scc1 K_npf
    global_load_dword v{t5}, v{vPf}, {sr(S_WS,2)} sc1
    s_waitcnt vmcnt(1)
    s_branch K_pfJ
K_npf:
    v_and_b32 v72, 7, v{L}
    v_lshlrev_b32 v74, 4, v72
    v_add_u32 v74, {L_B2}, v74
    ds_read_b128 v[76:79], v74
    v_lshrrev_b32 v{E_XR}, 3, v{T}
    v_lshlrev_b32 v{E_XR}, 2, v{E_XR}        ; 4 * node
    v_lshlrev_b32 v{E_OUT}, 4, v{T}          ; output byte offset
    v_lshlrev_b32 v72, 5, v72
    v_add_u32 v{E_NX}, {L_QT}, v72
    s_waitcnt lgkmcnt(0)""")
    vBu = [128, 130, 92, 152]
    for q in range(4):
        a(f"    v_lshlrev_b32 v{vBu[q]}, 16, v{76+q}")
        a(f"    v_and_b32 v{vBu[q]+1}, 0xffff0000, v{76+q}")
    assert pf0 >= 7
    a(f"""
    s_cmp_ge_u32 s{S_WAVE}, 4
    s_cbranch_scc1 K_np1
    v_bfe_u32 v70, v{L}, 2, 1
    v_bfe_u32 v71, v{L}, 3, 1
    v_lshl_add_u32 v70, v70, 6, v71
    v_lshrrev_b32 v71, 4, v{L}               ; g
    v_lshl_add_u32 v70, v71, 2, v70
    v_lshlrev_b32 v70, 7, v70
    v_and_b32 v72, 3, v{L}
    v_lshl_add_u32 v70, v72, 4, v70
    v_add_u32 v{E_W2}, {L_W2}, v70
    v_and_b32 v70, 15, v{L}
    s_lshl_b32 s{S_C}, s{S_WAVE}, 4
    v_add_u32 v70, s{S_C}, v70               ; row
    v_mul_u32_u24 v72, {ST_STRIDE}, v70
    v_lshl_add_u32 v72, v71, 4, v72
    v_add_u32 v{E_SR}, {L_ST}, v72
    v_mul_u32_u24 v72, {OF_STRIDE}, v70
    v_lshl_add_u32 v72, v71, 5, v72
    v_add_u32 v{E_OW}, {L_QT}, v72
K_np1:
    s_waitcnt vmcnt(0)
K_pfJ:""")
    stamp(a, 9)
    def count_cols(ks):
        for k in ks:
            a(f"    v_and_b32_sdwa v{vA+k}, v{vM+k//4}, s{S_D} {SD} src0_sel:BYTE_{k%4} src1_sel:DWORD")
        for k in ks:
            a(f"    s_mov_b64 exec, {mask(k)}")
            a(f"    ds_add_rtn_u32 v{vK+k}, v{vA+k}, v{t0} offset:{L_H2}")
        a(f"    s_mov_b64 exec, -1")
    count_cols(range(8))
    a(f"""
    s_cmp_eq_u32 s{S_K}, 0
    s_cbranch_scc1 K_nor2b""")
    count_cols(range(8, 16))
    a(f"""
K_nor2b:
    v_lshlrev_b32 v{t1}, 2, v{L}
    v_cmp_gt_u32 vcc, s{S_NN}, v{L}
    s_waitcnt lgkmcnt(0)
    s_barrier""")
    stamp(a, 10)
    a(f"""
    ds_read_b32 v{V_CNT}, v{t1} offset:{L_H2}
    s_waitcnt lgkmcnt(0)
    v_add_u32 v{vP}, 4, v{V_CNT}
    v_and_b32 v{vP}, -8, v{vP}
    v_max_u32 v{vP}, 64, v{vP}
    v_cndmask_b32 v{vP}, 0, v{vP}, vcc
    v_mov_b32 v{vS}, v{vP}""")
    wave_scan(a, vS)
    a(f"""
    s_nop 0
    v_readlane_b32 s{S_A}, v{vS}, 63
    v_sub_u32 v{vS}, v{vS}, v{vP}
    ds_write_b32 v{t1}, v{vS} offset:{L_SX}
    s_cmp_gt_u32 s{S_A}, {ENT_CAP*4}
    s_cbranch_scc1 K_slow""")
    def place_cols(ks, mid=None):
        ks = list(ks)
        for k in ks:
            a(f"    ds_read_b32 v{vB+k}, v{vA+k} offset:{L_SX}")
        if mid: a(mid)
        for n, k in enumerate(ks):
            if n % 2 == 0:
                a(f"    s_waitcnt lgkmcnt({len(ks)-2-n})")
            a(f"    v_add_u32 v{vK+k}, v{vB+k}, v{vK+k}")
        for k in ks:
            a(f"    s_mov_b64 exec, {mask(k)}")
            a(f"    ds_write_b32 v{vK+k}, v{vR+k} offset:{L_RL}")
        a(f"    s_mov_b64 exec, -1")
    place_cols(range(8), f"""
    s_add_u32 s{S_A}, s{S_A}, 63
    s_lshr_b32 s{S_TT}, s{S_A}, 6            ; tiles
    s_mul_i32 s{S_T0}, s{S_SLOT}, s{S_TT}
    s_add_u32 s{S_NT}, s{S_T0}, s{S_TT}
    s_mul_i32 s{S_T0}, s{S_T0}, 43691
    s_mul_i32 s{S_NT}, s{S_NT}, 43691
    s_lshr_b32 s{S_T0}, s{S_T0}, 19
    s_lshr_b32 s{S_NT}, s{S_NT}, 19
    s_sub_u32 s{S_NT}, s{S_NT}, s{S_T0}""")
    a(f"""
    s_cmp_eq_u32 s{S_K}, 0
    s_cbranch_scc1 K_nor2c
    s_waitcnt lgkmcnt(0)""")
    place_cols(range(8, 16))
    thr = [int(x) for x in optval("thr", "10_5").split("_")] + [2]
    vBk = 80
    vGr = 82
    a(f"""
K_nor2c:
    s_lshl_b32 s{S_A}, s{S_T0}, 6            ; list position of this wave
    v_lshl_add_u32 v{t3}, v{V_AIDX}, 1, s{S_A}
    v_add_u32 v{t2}, s{S_A}, v{t1}
    ; first node of this wave: n = #(m < nn : start[m] <= ts) - 1
    v_cmp_ge_u32 {mask(0)}, s{S_A}, v{vS}
    v_subrev_u32 v{t0}, s{S_A}, v{vS}
    s_and_b64 {mask(0)}, {mask(0)}, vcc
    s_bcnt1_i32_b64 s{S_B}, {mask(0)}
    s_sub_u32 s{S_B}, s{S_B}, 1              ; n
    s_andn2_b64 {mask(0)}, vcc, {mask(0)}
    v_bfe_u32 v{t4}, v{t0}, 3, 3
    v_add_u32 v{t4}, 1, v{t4}
    v_lshrrev_b32 v{t0}, 6, v{t0}
    v_min_u32 v{t0}, 63, v{t0}
    v_cndmask_b32 v{t0}, 63, v{t0}, {mask(0)}
    v_lshlrev_b32 v{t0}, 2, v{t0}
    v_mov_b32 v{vBk}, 0
    {"" if "novar" in OPT else f"ds_permute_b32 v{vBk}, v{t0}, v{t4}"}
    s_lshl_b32 s{S_D}, s{S_NT}, 4""")
    for c in range(5):
        a(f"    v_cmp_gt_i32 {mask(5+c)}, s{S_D}, v{L}")
        a(f"    s_sub_u32 s{S_D}, s{S_D}, 64")
    a(f"""
    s_cmp_ge_u32 s{S_WAVE}, 7
    s_cbranch_scc1 K_nprep
    ; rows of node = lane: first = node + slot(first tile), extra = slot(last tile) - slot(first tile)
    v_cvt_f32_u32 v70, s{S_TT}
    v_rcp_f32 v70, v70
    v_add3_u32 v{vP}, v{vS}, v{vP}, -4
    v_lshrrev_b32 v{vS}, 6, v{vS}
    v_lshrrev_b32 v{vP}, 6, v{vP}
    v_cvt_f32_u32 v{vS}, v{vS}
    v_cvt_f32_u32 v{vP}, v{vP}
    v_add_f32 v{vS}, {f32bits((NW-0.5)/NW):#x}, v{vS}
    v_add_f32 v{vP}, {f32bits((NW-0.5)/NW):#x}, v{vP}
    v_mul_f32 v70, {f32bits(NW):#x}, v70
    v_mul_f32 v{vS}, v{vS}, v70
    v_mul_f32 v{vP}, v{vP}, v70
    v_cvt_u32_f32 v{vS}, v{vS}
    v_cvt_u32_f32 v{vP}, v{vP}
    v_sub_u32 v{vP}, v{vP}, v{vS}
    v_add_u32 v{vS}, v{vS}, v{L}
    v_lshl_or_b32 v{vS}, v{vP}, 8, v{vS}
    v_lshl_or_b32 v{V_CNT}, v{vS}, 16, v{V_CNT}
    ds_bpermute_b32 v73, v{E_XR}, v{V_CNT}
    s_lshl_b32 s{S_C}, s{S_NN}, 2
    v_cmp_gt_u32 vcc, s{S_C}, v{E_XR}
    s_movk_i32 s{S_C}, {OF_STRIDE}
    v_mov_b32 v75, {L_Z2}
    s_waitcnt lgkmcnt(0)
    v_cndmask_b32 v73, 0, v73, vcc
    v_bfe_u32 v{E_ROW}, v73, 16, 8
    v_lshrrev_b32 v{E_XR}, 24, v73
    v_and_b32 v74, 0xffff, v73
    v_mad_u32_u24 v{E_ROW}, v{E_ROW}, s{S_C}, v{E_NX}
    v_cvt_f32_u32 v74, v74
    v_add_u32 v{E_NX}, {OF_STRIDE}, v{E_ROW}
    v_cndmask_b32 v{E_ROW}, v75, v{E_ROW}, vcc
    v_cmp_lt_u32 vcc, 0, v{E_XR}
    v_mul_f32 v74, 0x3e800000, v74           ; degree""")
    for q in range(4):
        a(f"    v_pk_mul_f32 {vr(E_DB[q],2)}, {vr(vBu[q],2)}, v[74:75] op_sel_hi:[1,0]")
    a(f"    v_cndmask_b32 v{E_R2}, v75, v{E_NX}, vcc")
    a(f"""
K_nprep:
    s_waitcnt lgkmcnt(0)
    s_barrier""")
    stamp(a, 11)
    for m in range(4):
        a(f"    ds_read_u16 v{V_IX+2*m}, v{t3} offset:{L_RL + 16*m}")
    for c in range(5):
        a(f"    ds_read_b32 v{vGr+c}, v{t2} offset:{L_RL + 256*c}")
    a(f"""
    s_lshr_b32 s{S_C}, s{S_A}, 1
    s_add_u32 s{S_C}, s{S_C}, {L_IX}
    v_add_u32 v{V_AIDX}, s{S_C}, v{V_AIDX}
    v_lshl_add_u32 v{t0}, v{L}, 1, s{S_C}
    s_mov_b32 s{S_C}, 0x03020302
    s_mov_b32 s{S_D}, 0x8001
    s_waitcnt lgkmcnt(5)""")
    for m in range(4):
        a(f"    v_and_b32 v{V_IX+2*m}, {0xfff if 'cheat1' in OPT or 'cheat2' in OPT else PADREC}, v{V_IX+2*m}")
    for h in dma_ops(): a(h)
    if "st2" in OPT:
        a(f"""
    s_cmp_lt_u32 s{S_WAVE}, 8
    s_cbranch_scc1 K_ns2
    v_add_u32 v{vPf}, 0x100000, v{vPf}
    global_load_dword v{t5}, v{vPf}, {sr(S_WS,2)} sc1
K_ns2:""")
    a(f"    ; this wave's entries -> one-hot word, (e, e), source node")
    a(f"    s_waitcnt lgkmcnt(0)")
    for c in range(5):
        a(f"    v_and_b32 v{vGr+5+c}, 0xc000, v{vGr+c}")
        a(f"    v_perm_b32 v{64+c}, v{vGr+c}, v{vGr+c}, s{S_C}")
        a(f"    v_xor_b32 v{vGr+c}, v{vGr+c}, v{vGr+5+c}")
        a(f"    v_mul_u32_u24 v{vGr+5+c}, s{S_D}, v{vGr+5+c}")
        a(f"    v_and_b32 v{vGr+5+c}, 0x40004000, v{vGr+5+c}")
    for c in range(5):
        a(f"    s_mov_b64 exec, {mask(5+c)}")
        a(f"    ds_write2st64_b32 v{t2}, v{vGr+5+c}, v{64+c} offset0:{L_G//256 + c} offset1:{L_RL//256 + c}")
        a(f"    ds_write_b16 v{t0}, v{vGr+c} offset:{128*c}")
    a(f"""
    s_mov_b64 exec, -1
    s_lshl_b32 s{S_C}, s{S_B}, 9
    s_add_u32 s{S_C}, s{S_C}, {L_QT}
    v_add_u32 v{V_AQ}, s{S_C}, v{t1}
    v_lshrrev_b32 v{t4}, 7, v{V_INCA}
    v_mad_u32_u24 v{V_AENT}, v{t4}, s{S_A}, v{V_AENT}""")
    for h in ent_reads(0) + q_reads() + idx_reads(32): a(h)
    a(f"""
    s_add_u32 s{S_C}, s{S_B}, s{S_SLOT}
    s_mul_i32 s{S_C}, s{S_C}, {ST_STRIDE}
    s_add_u32 s{S_C}, s{S_C}, {L_ST}
    v_add_u32 v{V_AS}, s{S_C}, v{t1}
    v_add_u32 v{V_AQ}, 0x200, v{V_AQ}
    ; jump table: slot of the variant, entry inside it (priority steps near the end), exit at lane nt
    v_and_b32 v{t4}, 1, v{L}
    v_mad_u32_u24 v{t4}, v{t4}, 9, v{vBk}
    v_sub_u32 v{t0}, s{S_NT}, v{L}
    v_mov_b32 v{t3}, {ENTRY}""")
    for i, th in enumerate(thr):
        a(f"    v_cmp_eq_u32 {mask(i)}, {th}, v{t0}")
    a(f"    v_cmp_eq_u32 {mask(3)}, 0, v{t0}")
    a(f"    s_movk_i32 s{S_C}, {VAR_SIZE}")
    for i, th in enumerate(thr):
        a(f"    v_cndmask_b32 v{t3}, v{t3}, {8*i}, {mask(i)}")
    a(f"""
    v_mad_u32_u24 v{t4}, v{t4}, s{S_C}, v{t3}
    v_mov_b32 v{t3}, K_exit - K_vbase
    v_cndmask_b32 v{t4}, v{t4}, v{t3}, {mask(3)}
    ds_bpermute_b32 v{V_TAB}, v{t1}, v{t4} offset:4
    s_mov_b32 s{S_K}, 1
    v_readlane_b32 s{S_J}, v{t4}, 0
    s_setprio 3
    s_waitcnt vmcnt(0)""")
    stamp(a, 12)
    for h in tr_reads(0): a(h)
    a(f"""
    s_add_u32 s{S_J}, s{S_J}, s{S_PC}
    s_addc_u32 s{S_J+1}, s{S_PC+1}, 0
    s_waitcnt lgkmcnt(0)""")
    a(small(0, 0))
    if "cheat2" in OPT:
        for m in range(2): a(f"    v_and_b32 v{V_IX+2*m}, 0xfff, v{V_IX+2*m}")
    for h in dma_ops(): a(h)
    a(small(0, 1))
    a(f"    v_lshl_or_b32 v{V_TAB}, v{V_TAB}, 16, v{t4}")
    if optval("late", "4_6"): a("    s_nop 9")
    stamp(a, 13); stamp(a, 14, True)
    a(f"    s_setpc_b64 {sr(S_J,2)}")
    a(f".p2align 6")
    a(f"K_vbase:")
    for s_ in range(2):
        for b in [None] + list(range(8)):
            tile_variant(a, s_, b)
    a(f".p2align 3")
    a(f"K_exit:")
    stamp(a, 15); stamp(a, 16, True)
    flush1(a)
    a("    s_nop 0")
    flush2(a)
    a(f"""
    v_cmp_eq_f32 vcc, 0, v{V_MN}
    s_cbranch_vccz K_join
    ; a denominator left the f32 range: redo this bin on the exact slow path
    v_mov_b32 v65, {L_FLAG}
    ds_write_b32 v65, v65
K_join:
    s_cmp_ge_u32 s{S_WAVE}, 7
    s_cbranch_scc1 K_st2a
    s_lshl_b32 s{S_A}, s{S_N0}, 7
    s_add_u32 s{S_RT}, s{S_OUT}, s{S_A}
    s_addc_u32 s{S_RT+1}, s{S_OUT+1}, 0
    s_lshl_b32 s{S_RT+2}, s{S_NN}, 7
    s_mov_b32 s{S_RT+3}, 0x00020000
    s_movk_i32 s{S_C}, 0x207
    s_mov_b32 s{S_A}, 1
    v_mov_b32 v96, {NLN2:#x}
    v_mov_b32 v98, {L_Z2}
    s_cmp_ge_u32 s{S_WAVE}, 4
    s_cbranch_scc1 K_st2a
    ; ================= output, stage 1: products of the sum rows with w2""")
    for ot in range(4):
        for ks in range(4):
            for h in range(2):
                a(f"    ds_read_b64_tr_b16 {vr(16*ot+4*ks+2*h,2)}, v{E_W2} offset:{2048*ks+256*h+64*(ot>>1)+8*(ot&1)}")
    a(f"""
    s_waitcnt lgkmcnt(0)
    s_barrier""")
    stamp(a, 17)
    for ks in range(4):
        a(f"    ds_read_b128 {vr(64+4*ks,4)}, v{E_SR} offset:{64*ks}")
    def mf(ot, ks):
        d = vr(80 + 4*ot, 4)
        a(f"    v_mfma_f32_16x16x32_bf16 {d}, {vr(16*ot+4*ks,4)}, {vr(64+4*ks,4)}, {'0' if ks == 0 else d}")
    for ks in range(4):
        a(f"    s_waitcnt lgkmcnt({3-ks})")
        mf(0, ks); mf(1, ks)
    for ks in range(4):
        mf(2, ks); mf(3, ks)
    a(f"""
    ds_write_b128 v{E_OW}, v[80:83]
    ds_write_b128 v{E_OW}, v[84:87] offset:16
    s_nop 4
    ds_write_b128 v{E_OW}, v[88:91] offset:128
    ds_write_b128 v{E_OW}, v[92:95] offset:144
    s_waitcnt lgkmcnt(0)
    s_branch K_st2b
K_st2a:
    s_waitcnt lgkmcnt(0)
    s_barrier                                ; B9
K_st2b:
    s_cmp_ge_u32 s{S_WAVE}, 7
    s_barrier
    s_cbranch_scc1 K_fin
    ds_read_b128 v[64:67], v{E_ROW}
    ds_read_b128 v[68:71], v{E_ROW} offset:16
K_rows:
    ds_read_b128 v[72:75], v{E_R2}
    ds_read_b128 v[76:79], v{E_R2} offset:16
    v_cmp_lt_u32 vcc, s{S_A}, v{E_XR}
    v_add_u32 v{E_NX}, {OF_STRIDE}, v{E_NX}
    s_add_u32 s{S_A}, s{S_A}, 1
    s_waitcnt lgkmcnt(0)""")
    for q in range(4):
        a(f"    v_pk_add_f32 {vr(64+2*q,2)}, {vr(64+2*q,2)}, {vr(72+2*q,2)}")
    a(f"""
    v_cndmask_b32 v{E_R2}, v98, v{E_NX}, vcc
    s_cbranch_vccnz K_rows""")
    for q in range(4):
        a(f"    v_pk_fma_f32 {vr(64+2*q,2)}, {vr(64+2*q,2)}, v[96:97], {vr(E_DB[q],2)} op_sel_hi:[1,0,1]")
    for q in range(4):
        a(f"    v_cvt_pk_bf16_f32 v{72+q}, v{64+2*q}, v{65+2*q}")
    a(f"""
    buffer_store_dwordx4 v[72:75], v{E_OUT}, {sr(S_RT,4)}, 0 offen sc1
    ; a non-finite sum makes every output of its node non-finite: redo this bin on the exact slow path
    v_cmp_class_f32 vcc, v64, s{S_C}
    s_cbranch_vccz K_fin
    v_mov_b32 v65, {L_FLAG}
    ds_write_b32 v65, v65
K_fin:
    v_mov_b32 v65, {L_FLAG}
    s_waitcnt lgkmcnt(0)
    s_barrier                                ; B10
    ds_read_b32 v64, v65
    s_waitcnt lgkmcnt(0)
    v_cmp_ne_u32 vcc, 0, v64
    {"" if "novar" in OPT or "nodma" in OPT else "s_cbranch_vccnz K_slow"}""")
    if DIAG:
        a("    s_waitcnt vmcnt(0)")
        stamp(a, 18); stamp(a, 19, True)
        a(f"""
    v_writelane_b32 v{V_STAMP}, s{S_NT}, 21
    s_lshl_b32 s{S_A}, s2, 4
    s_add_u32 s{S_A}, s{S_A}, s{S_WAVE}
    s_lshl_b32 s{S_A}, s{S_A}, 8
    s_add_u32 s{S_A}, s{S_A}, {WS_STAMP}
    v_lshl_add_u32 v64, v{L}, 2, s{S_A}
    s_mov_b64 exec, 0xffffffff
    global_store_dword v64, v{V_STAMP}, {sr(S_WS,2)}
    global_store_dword v64, v{V_TRACE}, {sr(S_WS,2)} offset:128""")
    if optval("clk", ""):
        a(f"""
    s_lshl_b32 s{S_A}, s2, 4
    s_add_u32 s{S_A}, s{S_A}, s{S_WAVE}
    s_cmp_lg_u32 s{S_A}, {16*int(optval("wg", "100"))}
    s_cbranch_scc1 K_end
    s_lshl_b32 s{S_A}, s{S_TAG+1}, 7
    s_lshr_b32 s{S_B}, s{S_TAG}, 25
    s_or_b32 s{S_A}, s{S_A}, s{S_B}
    v_cvt_f32_u32 v64, s98
    v_cvt_f32_u32 v65, s99
    v_rcp_f32 v64, v64
    s_nop 1
    v_mul_f32 v64, v64, v65
    v_subrev_f32 v64, {f32bits(15.0):#x}, v64
    v_mul_f32 v64, {f32bits(float(optval("mul", "100"))):#x}, v64
    v_cvt_u32_f32 v64, v64
    s_nop 1
    v_readfirstlane_b32 s{S_B}, v64
    s_min_u32 s{S_B}, s{S_B}, 20000
    {f's_sub_u32 s{S_B}, {optval("clk", "")}, s{S_B}' if "neg" in OPT else f's_add_u32 s{S_B}, s{S_B}, {optval("clk", "")}'}
K_spin5:
    s_memrealtime s[98:99]
    s_waitcnt lgkmcnt(0)
    s_sub_u32 s98, s98, s{S_A}
    s_cmp_lt_u32 s98, s{S_B}
    s_cbranch_scc1 K_spin5""")
    if "endamp" in OPT:
        a(f"""
    s_waitcnt vmcnt(0)
    s_memrealtime s[100:101]
    s_lshl_b32 s{S_A}, s2, 4
    s_add_u32 s{S_A}, s{S_A}, s{S_WAVE}
    s_cmp_lg_u32 s{S_A}, {16*int(optval("wg", "100"))}
    s_cbranch_scc1 K_end
    s_lshl_b32 s{S_A}, s{S_TAG+1}, 7
    s_lshr_b32 s{S_B}, s{S_TAG}, 25
    s_or_b32 s{S_A}, s{S_A}, s{S_B}
    s_waitcnt lgkmcnt(0)
    s_sub_u32 s{S_B}, s100, s98
    s_min_u32 s{S_B}, s{S_B}, 2000
    s_mul_i32 s{S_B}, s{S_B}, 20
    s_add_u32 s{S_B}, s{S_B}, 3000
K_spin4:
    s_memrealtime s[98:99]
    s_waitcnt lgkmcnt(0)
    s_sub_u32 s98, s98, s{S_A}
    s_cmp_lt_u32 s98, s{S_B}
    s_cbranch_scc1 K_spin4""")
    if optval("fix", "") != "":
        a(f"""
    s_lshl_b32 s{S_A}, s2, 4
    s_add_u32 s{S_A}, s{S_A}, s{S_WAVE}
    s_cmp_lg_u32 s{S_A}, 1600
    s_cbranch_scc1 K_end
    s_lshl_b32 s{S_A}, s{S_TAG+1}, 7
    s_lshr_b32 s{S_B}, s{S_TAG}, 25
    s_or_b32 s{S_A}, s{S_A}, s{S_B}
K_spin3:
    s_memrealtime s[98:99]
    s_waitcnt lgkmcnt(0)
    s_sub_u32 s98, s98, s{S_A}
    s_cmp_lt_u32 s98, {optval("fix", "")}
    s_cbranch_scc1 K_spin3""")
    if optval("amp", "") != "":
        a(f"""
    s_waitcnt vmcnt(0)
    s_cmp_lg_u32 s{S_WAVE}, {optval("aw", "0")}
    s_cbranch_scc1 K_end
    s_lshl_b32 s{S_A}, s{S_TAG+1}, 7
    s_lshr_b32 s{S_B}, s{S_TAG}, 25
    s_or_b32 s{S_A}, s{S_A}, s{S_B}""")
        if optval("amp", "") == "99":
            a("    s_memrealtime s[98:99]\n    s_waitcnt lgkmcnt(0)")
        a(f"""
    s_sub_u32 s{S_B}, s98, s{S_A}
    s_mov_b64 exec, 1
    v_mov_b32 v64, 0
    v_mov_b32 v65, s{S_B}
    v_mov_b32 v66, 1
    {"v_sub_u32 v65, 0x1000, v65" if "min" in OPT else ""}
    global_atomic_{"add" if "avg" in OPT else "umax"} v64, v65, {sr(S_DBG,2)} offset:128 sc1
    s_sub_u32 s{S_C}, s100, s{S_A}
    v_mov_b32 v68, s{S_C}
    {f"global_atomic_add v64, v68, {sr(S_DBG,2)} offset:144 sc1" if optval("sel", "") else ""}
    s_waitcnt vmcnt(0)
    global_atomic_add v67, v64, v66, {sr(S_DBG,2)} offset:136 sc0 sc1
    s_waitcnt vmcnt(0)
    v_readfirstlane_b32 s{S_B}, v67
    s_cmp_lg_u32 s{S_B}, 255
    s_cbranch_scc1 K_end
    global_atomic_add v67, v64, v64, {sr(S_DBG,2)} offset:128 sc0 sc1
    global_atomic_add v68, v64, v64, {sr(S_DBG,2)} offset:144 sc0 sc1
    s_waitcnt vmcnt(0)
    v_readfirstlane_b32 s{S_C}, v68
    s_cmp_lt_u32 s{S_C}, {390*256}
    {"s_cbranch_scc0 K_end" if optval("sel", "") == "lo" else ""}
    {"s_cbranch_scc1 K_end" if optval("sel", "") == "hi" else ""}
    v_readfirstlane_b32 s{S_B}, v67
    s_mul_i32 s{S_B}, s{S_B}, {optval("mul", "5")}
    {f"s_lshr_b32 s{S_B}, s{S_B}, 8" if "avg" in OPT else ""}
    s_min_u32 s{S_B}, s{S_B}, {optval("base", "0") if "neg" in OPT else 200000}
    {f's_sub_u32 s{S_B}, {optval("base", "0")}, s{S_B}' if "neg" in OPT else f's_add_u32 s{S_B}, s{S_B}, {optval("base", "0")}'}
K_spin2:
    s_memrealtime s[98:99]
    s_waitcnt lgkmcnt(0)
    s_sub_u32 s98, s98, s{S_A}
    s_cmp_lt_u32 s98, s{S_B}
    s_cbranch_scc1 K_spin2""")
    a(f"""
K_end:
    s_endpgm
K_slow:
    ; ================= exact path without hand-offs: scan all edges for this bin
    s_setprio 0
    s_mov_b32 s16, s{S_N0}
    s_mov_b32 s17, s{S_NN}
    s_mov_b32 s18, s{S_WAVE}""")
    gen_slow(a, 16, 17, 18, L, NLOG2E, NW=NW)
    a("    s_endpgm")

def main():
    global DIAG
    out = sys.argv[1]
    DIAG = "diag" in sys.argv[2:]
    OPT.update(sys.argv[2:])
    a = Asm()
    a(f"""; Edge-featured MPNN layer: out[n] = sum_(e: dst=n) (silu([x[src],x[dst],e] w1 + b1) w2 + b2)
; @launch grid=(256,1,1) block=({NT_},1,1) lds={L_END}
.amdgcn_target "amdgcn-amd-amdhsa--gfx950"
.text""")
    gen_kernel(a)
    a(f"""
.section .rodata,"a"
.p2align 6
.amdhsa_kernel {KNAME}
  .amdhsa_next_free_vgpr {NVGPR}
  .amdhsa_next_free_sgpr 102
  .amdhsa_accum_offset {NVGPR}
  .amdhsa_group_segment_fixed_size 0
  .amdhsa_kernarg_size 88
  .amdhsa_user_sgpr_count 2
  .amdhsa_user_sgpr_kernarg_segment_ptr 1
  .amdhsa_system_sgpr_workgroup_id_x 1
  .amdhsa_float_denorm_mode_32 3
.end_amdhsa_kernel""")
    open(out, "w").write(a.text())

if __name__ == "__main__":
    main()
```

```python
import sys, struct
from slow import gen_slow

NAME = "standalone__edge_featured_mpnn_mpnn__graph"
KNAME = NAME + "_kernel"
N_NODES = 12500
NB = 49
NW = 12
NT_ = 64 * NW
MAINE = 4 * NT_
XTRA = 53
RSTRIDE = 16640

WS_TAB = 0x420000
WS_P = 0x4C0000
WS_STAMP = 0xA00000

L_Z = 128
L_H2 = 272
L_FLAG = 536
L_NONCE = 544
L_Z2 = 2048
OF_STRIDE = 272
L_SX = 1296
ENT_CAP = 3472
LSZ = 14080
L_ZA = 4096 - 144
L_G = 4096
L_RL = L_G + LSZ
L_ST = L_RL + LSZ
ST_STRIDE = 288
L_IX = L_ST + 20480
L_QT = (L_IX + LSZ // 2 + 255) // 256 * 256 + 512
L_XS = L_QT + 49 * 512
assert LSZ % 256 == 0 and (ENT_CAP + 48) * 4 == LSZ
L_W2 = L_XS + NW * 4096
L_B2 = L_W2 + 16384
L_END = L_B2 + 256
L_RS = L_ST
L_H1 = L_ST + 16640
L_OFF = L_H1 + 1024
L_W1 = L_XS
L_WC = L_XS + 32768
L_PS = L_WC + 512
L_XR = L_W2
PS_STRIDE = 272
assert L_XS % 256 == 0 and L_END <= 163840
assert L_H1 + 3072 <= L_IX and 64 * ST_STRIDE <= 20480 and L_OFF + 1024 < 65536 and L_PS + 56 * PS_STRIDE <= L_W2

def f32bits(x):
    return struct.unpack("<I", struct.pack("<f", x))[0]
LOG2E = 1.4426950408889634
NLOG2E = f32bits(-LOG2E)
NLN2 = f32bits(-0.6931471805599453)
PADREC = 0x3FFF
POLL_MAX = 4000

class Asm:
    def __init__(self):
        self.l = []
    def __call__(self, s=""):
        for x in s.strip("\n").split("\n"):
            if x.strip():
                self.l.append(x.rstrip())
    def text(self):
        return "\n".join(self.l) + "\n"

def vr(a, n=1):
    return f"v{a}" if n == 1 else f"v[{a}:{a+n-1}]"
def sr(a, n=1):
    return f"s{a}" if n == 1 else f"s[{a}:{a+n-1}]"

DIAG = False
OPT = set()
def optval(prefix, default):
    for o in OPT:
        if o.startswith(prefix):
            return o[len(prefix):]
    return default

V_D = 0; V_E = 64; V_A5 = 96; V_B5 = 98; V_ND = 102; V_T = 110; V_R = 114; V_O = 118; V_IX = 132
V_AA = 140; V_AIDX = 141; V_AENT = 142; V_AQ = 143; V_INCA = 144; V_AS = 145; V_MN = 146; V_PSEL = 147
V_PF = 126; V_TAB = 148; V_CNT = 149; V_S = 150; V_P = 151; V_LANE = 154; V_TID = 155
V_J = 156; V_HH = 157
E_W2 = 147; E_SR = 164; E_OW = 165
E_ROW = 122; E_XR = 123; E_NX = 124; E_R2 = 125; E_OUT = 127; E_DB = [128, 130, 150, 152]
V_STAMP = 167; V_TRACE = 166
NVGPR = 168
S_X = 4; S_E = 6; S_SRC = 8; S_DST = 10; S_W1 = 12; S_B1 = 14; S_W2 = 16; S_B2 = 18; S_OUT = 20; S_DBG = 22; S_WS = 24
S_BIN = 26; S_N0 = 27; S_NN = 28; S_WAVE = 29; S_MODE = 30; S_K = 31; S_PC = 32; S_J = 34
S_RX = 36; S_RT = 40; S_RR = 44; S_P = 48; S_JJ = 52
S_T0 = 56; S_NT = 57; S_TT = 58; S_SLOT = 59; S_A = 60; S_B = 61; S_C = 62; S_D = 63; S_TAG = 64
S_M = 66
def mask(k): return sr(S_M + 2*k, 2)

def stamp(a, k, real=False):
    if optval("clk", ""):
        if k == 13: a("    s_memrealtime s[98:99]\n    s_memtime s[100:101]\n    s_waitcnt lgkmcnt(0)\n    s_mov_b32 s99, s100")
        if k == 15: a("    s_memrealtime s[96:97]\n    s_memtime s[100:101]\n    s_waitcnt lgkmcnt(0)\n    s_sub_u32 s98, s96, s98\n    s_sub_u32 s99, s100, s99")
        return
    if "endamp" in OPT:
        if k == 17: a("    s_memrealtime s[98:99]\n    s_waitcnt lgkmcnt(0)")
        return
    if optval("amp", "") != "":
        if int(optval("amp", "")) == k:
            a("    s_memrealtime s[98:99]\n    s_waitcnt lgkmcnt(0)")
        if k == 6 and optval("sel", ""):
            a("    s_memrealtime s[100:101]\n    s_waitcnt lgkmcnt(0)")
        return
    if not DIAG:
        return
    a(f"    {'s_memrealtime' if real else 's_memtime'} s[100:101]")
    a(f"    s_waitcnt lgkmcnt(0)")
    a(f"    v_writelane_b32 v{V_STAMP}, s100, {k}")

def wave_scan(a, v):
    for sh in (1, 2, 4, 8):
        a(f"    s_nop 1")
        a(f"    v_add_u32_dpp v{v}, v{v}, v{v} row_shr:{sh} row_mask:0xf bank_mask:0xf")
    a(f"    s_nop 1")
    a(f"    v_add_u32_dpp v{v}, v{v}, v{v} row_bcast:15 row_mask:0xa bank_mask:0xf")
    a(f"    s_nop 1")
    a(f"    v_add_u32_dpp v{v}, v{v}, v{v} row_bcast:31 row_mask:0xc bank_mask:0xf")

SD = "dst_sel:DWORD dst_unused:UNUSED_PAD"

def dreg(s, c): return V_D + 32*s + 16*c
def small(s, c):
    d = vr(dreg(s, c), 16)
    return f"    v_mfma_f32_32x32x8_bf16 {d}, {vr(V_A5,2)}, {vr(V_B5+2*c,2)}, {d}"
def tr_reads(s):
    return [f"    ds_read_b64_tr_b16 {vr(dreg(s,c)+2*u,2)}, v{V_AA} offset:{512*u+128*c}" for u in range(8) for c in range(2)]
def ent_reads(off):
    return [f"    ds_read_b32 v{V_A5}, v{V_AENT} offset:{off}",
            f"    ds_read_b32 v{V_A5+1}, v{V_AENT} offset:{off + L_RL - L_G}"]
def q_reads():
    return [f"    ds_read_b32 v{V_B5+2*c}, v{V_AQ} offset:{256*c}" for c in range(2)]
def idx_reads(off):
    return [f"    ds_read_u16 v{V_IX+2*m}, v{V_AIDX} offset:{off + 8*m}" for m in range(4)]
def dma_ops():
    if "nodma" in OPT: return []
    return [f"    buffer_load_dwordx4 {vr(V_IX+2*m,2)}, {sr(S_RX,4)}, s{S_P+m} idxen offen offset:{1024*m} sc1 lds" for m in range(4)]

def flush1(a):
    for c in range(2):
        D = V_ND + 4*c + 2
        a(f"    v_rcp_f32 v{V_R+2*c}, v{D}")
        a(f"    v_rcp_f32 v{V_R+2*c+1}, v{D+1}")
def flush2(a):
    for c in range(2):
        a(f"    v_pk_mul_f32 {vr(V_O+2*c,2)}, {vr(V_ND+4*c,2)}, {vr(V_R+2*c,2)}")
    for c in range(2):
        a(f"    v_min3_f32 v{V_MN}, v{V_MN}, v{V_R+2*c}, v{V_R+2*c+1}")
    for c in range(2):
        a(f"    v_add_f32 v{V_O+2*c}, v{V_O+2*c}, v{V_O+2*c+1}")
    a(f"    v_cvt_pk_bf16_f32 v{V_O}, v{V_O}, v{V_O+2}")
    a(f"    ds_write_b32 v{V_AS}, v{V_O}")

def y_phase(a, s, b, us=range(8), nsrc=None):
    if nsrc is None: nsrc = [V_ND + 4*c for c in range(2)]
    a(".p2align 3")
    for u in us:
        if u == b:
            flush1(a)
            for c in range(2):
                a(f"    v_pk_add_f32 {vr(V_ND+4*c+2,2)}, {vr(V_E+16*c+2*u,2)}, 1.0 op_sel_hi:[1,0]")
            flush2(a)
            for c in range(2):
                p = dreg(s, c) + 2*u
                if u == 7:
                    a(f"    v_pk_mov_b32 {vr(V_ND+4*c,2)}, {vr(p,2)}, {vr(p,2)} op_sel:[0,1]")
                else:
                    nsrc[c] = p
            continue
        for c in range(2):
            a(f"    v_pk_fma_f32 {vr(V_T+2*c,2)}, {vr(dreg(s,c)+2*u,2)}, {vr(V_ND+4*c+2,2)}, {vr(nsrc[c],2)}")
        for c in range(2):
            D = V_ND + 4*c + 2
            a(f"    v_pk_fma_f32 {vr(D,2)}, {vr(D,2)}, {vr(V_E+16*c+2*u,2)}, {vr(D,2)}")
        for c in range(2):
            a(f"    v_pk_fma_f32 {vr(V_ND+4*c,2)}, {vr(nsrc[c],2)}, {vr(V_E+16*c+2*u,2)}, {vr(V_T+2*c,2)}")
            nsrc[c] = V_ND + 4*c

VAR_SIZE = 960
ENTRY = 24
def tile_variant(a, s, b):
    name = f"{s}{'N' if b is None else b}"
    vi = 9*s + (0 if b is None else b + 1)
    a(f".org K_vbase + {VAR_SIZE*vi}, 0")
    a(f"    s_setprio 2\n    s_branch K_var{name}\n    s_setprio 1\n    s_branch K_var{name}\n    s_setprio 0")
    a(f"    s_nop 0")
    a(f"K_var{name}:")
    bnd = b is not None
    if "trace" in OPT and s == 0:
        a(f"    s_memtime s[100:101]\n    s_mov_b32 s{S_A}, m0\n    s_mov_b32 m0, s{S_K}\n    s_waitcnt lgkmcnt(0)")
        a(f"    v_writelane_b32 v{V_TRACE}, s100, m0\n    s_mov_b32 m0, s{S_A}")
    es = [f"    v_exp_f32 v{V_E+16*c+2*u+h}, v{dreg(s,c)+2*u+h}" for u in range(8) for c in range(2) for h in range(2)]
    head = ent_reads(64 + 64*s) + (q_reads() if bnd else []) + tr_reads(s ^ 1) + idx_reads(64 + 32*s)
    plain = [f"    v_readlane_b32 s{S_JJ}, v{V_TAB}, s{S_K}"] if s == 0 else \
            [f"    v_add_u32 v{V_AENT}, v{V_INCA}, v{V_AENT}", f"    v_add_u32 v{V_AIDX}, 64, v{V_AIDX}"]
    if bnd: plain.append(f"    v_add_u32 v{V_AQ}, 0x200, v{V_AQ}")
    jump = [f"    s_and_b32 s{S_J}, s{S_JJ}, 0xffff", f"    s_add_u32 s{S_K}, s{S_K}, 2"] if s == 0 else [f"    s_lshr_b32 s{S_J}, s{S_JJ}, 16"]
    jump += [f"    s_add_u32 s{S_J}, s{S_J}, s{S_PC}", f"    s_addc_u32 s{S_J+1}, s{S_PC+1}, 0"]
    late = optval("late", "4_6")
    if late:
        ua, ub = [int(x) for x in late.split("_")]
        for e in es[:4*ub]: a(e)
        nsrc = [V_ND + 4*c for c in range(2)]
        y_phase(a, s, b, range(0, ua), nsrc)
        a("    s_waitcnt vmcnt(0)")
        for h in head: a(h)
        y_phase(a, s, b, range(ua, ub), nsrc)
        a(f"    s_waitcnt lgkmcnt(0)")
        for h in dma_ops(): a(h)
        a(small(s ^ 1, 0))
        for e in es[4*ub:4*ub+4]: a(e)
        a(small(s ^ 1, 1))
        for e in es[4*ub+4:]: a(e)
        for p_ in plain + jump: a(p_)
        y_phase(a, s, b, range(ub, 8), nsrc)
    else:
        n1 = int(optval("n1_", "16"))
        a("    s_waitcnt vmcnt(0)")
        for h in head: a(h)
        for e in es[:n1-2]: a(e)
        for p_ in plain: a(p_)
        for e in es[n1-2:n1]: a(e)
        a(f"    s_waitcnt lgkmcnt(0)")
        for h in dma_ops(): a(h)
        a(small(s ^ 1, 0))
        for e in es[n1:n1+4]: a(e)
        a(small(s ^ 1, 1))
        for e in es[n1+4:]: a(e)
        for p_ in jump: a(p_)
        y_phase(a, s, b)
    if bnd:
        a(f"    v_add_u32 v{V_AS}, {ST_STRIDE}, v{V_AS}")
    a(f"    s_setpc_b64 {sr(S_J,2)}")

def gen_kernel(a):
    L = V_LANE; T = V_TID; J = V_J; HH = V_HH
    t0, t1, t2, t3, t4, t5 = 158, 159, 160, 161, 162, 163
    step = NT_ * 16
    vDst = 0
    vSrc = 8
    vEa = 14
    tc = 17
    vTg = 18
    vBa = 20
    vRk = 26
    vWp = 31
    vOf = 32
    vC8 = 37; vWa = 38; vTa = 39
    vX = 40
    vWf = 56
    vPad = 56
    vAc = 72
    vTb = 88
    vXa = 88
    vB1 = 96
    vCl = 120
    v4k = 125
    vPf = 126
    vZ = 128
    vG4 = 164; vSb = 165
    vS = V_S; vP = V_P
    a(f"""
.p2align 8
.globl {KNAME}
.type {KNAME},@function
{KNAME}:
    s_cmp_ge_u32 s2, 256
    s_cbranch_scc1 K_end
    s_load_dwordx8 s[4:11], s[0:1], 0
    s_load_dwordx8 s[12:19], s[0:1], 32      ; w1, b1, w2, b2
    s_load_dwordx4 s[20:23], s[0:1], 64
    s_load_dwordx2 s[24:25], s[0:1], 80      ; ws
    s_memrealtime {sr(S_TAG,2)}
    v_lshrrev_b32 v1, 6, v0
    v_mov_b32 v{T}, v0
    v_readfirstlane_b32 s{S_WAVE}, v1
    v_and_b32 v{L}, 63, v0
    s_mul_i32 s3, s2, {MAINE*4}
    v_lshl_add_u32 v{t0}, v0, 4, s3          ; byte offset into src/dst
    v_lshrrev_b32 v{t1}, 1, v{t0}
    s_and_b32 s{S_BIN}, s2, 7
    s_lshl_b32 s{S_BIN}, s{S_BIN}, 5
    s_lshr_b32 s3, s2, 3
    s_add_u32 s{S_BIN}, s{S_BIN}, s3
    s_mul_i32 s{S_N0}, s{S_BIN}, {NB}
    s_sub_u32 s{S_NN}, {N_NODES}, s{S_N0}
    s_min_u32 s{S_NN}, s{S_NN}, {NB}
    v_and_b32 v{J}, 31, v0
    v_bfe_u32 v{HH}, v0, 5, 1
    s_mov_b32 s{S_MODE}, 0
    v_mov_b32 v{vZ}, 0
    v_mov_b32 v{vZ+1}, 0
    v_mov_b32 v{vZ+2}, 0
    v_mov_b32 v{vZ+3}, 0
    v_lshlrev_b32 v{t2}, 2, v0""")
    if DIAG:
        a(f"    v_mov_b32 v{V_STAMP}, 0\n    v_mov_b32 v{V_TRACE}, 0")
        stamp(a, 0, True); stamp(a, 1)
    a(f"""
    s_waitcnt lgkmcnt(0)
    global_load_dwordx4 {vr(vDst,4)}, v{t0}, {sr(S_DST,2)}
    {f"s_add_u32 s98, s{S_TAG}, 200" if optval("amp", "") == "1" else ""}
    ds_write_b32 v{t2}, v{vZ} offset:{L_H1}
    s_cmp_lg_u32 s{S_WAVE}, 11
    s_cbranch_scc1 K_ld1
    ; wave 11 also takes the 53 extra edges of this chunk
    s_mul_i32 s{S_A}, s2, {XTRA}
    s_add_u32 s{S_A}, s{S_A}, {256*MAINE}
    v_min_u32 v{t5}, {XTRA-1}, v{L}
    v_add_lshl_u32 v{t5}, v{t5}, s{S_A}, 2
    v_lshrrev_b32 v{t4}, 1, v{t5}
    global_load_dword v{vDst+4}, v{t5}, {sr(S_DST,2)}
    global_load_dword v{vSrc+4}, v{t5}, {sr(S_SRC,2)}
    global_load_ushort v{vEa+2}, v{t4}, {sr(S_E,2)}
K_ld1:""")
    if optval("b1_", "") == "first":
        a(f"""
    s_cmp_lg_u32 s{S_WAVE}, 10
    s_cbranch_scc1 K_ld0
    s_mov_b32 m0, {L_WC + 256}
    v_lshlrev_b32 v{t3}, 2, v{L}
    global_load_lds_dword v{t3}, {sr(S_B1,2)}
K_ld0:""")
    a(f"""
    ; the first workgroups pull the rest of the code into their die's L2
    s_cmp_ge_u32 s2, 32
    s_cbranch_scc1 K_ldJ
    s_sub_u32 s{S_A}, s{S_WAVE}, 5
    s_cmp_ge_u32 s{S_A}, 3
    s_cbranch_scc1 K_ld2
    s_lshl_b32 s{S_A}, s{S_A}, 13
    v_lshl_add_u32 v{t5}, v{L}, 7, s{S_A}
    s_getpc_b64 {sr(S_J,2)}
    global_load_dword v{t4}, v{t5}, {sr(S_J,2)} offset:1024
K_ld2:
    ; workgroup 0, wave 9 publishes the hand-off tag of this launch (39 clock bits, never zero)
    s_lshl_b32 s{S_A}, s2, 4
    s_add_u32 s{S_A}, s{S_A}, s{S_WAVE}
    s_cmp_lg_u32 s{S_A}, 9
    s_cbranch_scc1 K_ldJ
    s_lshl_b32 s{S_A}, s{S_TAG}, 25
    s_or_b32 s{S_A}, s{S_A}, 1
    s_lshr_b64 {sr(S_TAG,2)}, {sr(S_TAG,2)}, 7
    v_mov_b32 v{t4}, s{S_A}
    v_mov_b32 v{t4+1}, s{S_TAG}
    s_mov_b64 exec, 1
    global_store_dwordx2 v{vZ}, {vr(t4,2)}, {sr(S_DBG,2)} sc1
    s_mov_b64 exec, -1
K_ldJ:
    s_lshl_b32 s{S_A}, s{S_WAVE}, 11
    s_cmp_ge_u32 s{S_WAVE}, 8
    s_cbranch_scc1 K_stX
    ; waves 0..7 stage w1 rows 0..63 (64-byte blocks of a row swapped by row&3)
    s_add_u32 m0, s{S_A}, {L_W1}
    v_lshrrev_b32 v{t3}, 2, v{L}
    v_and_b32 v{t3}, 12, v{t3}
    v_xor_b32 v{t3}, v{t3}, v{L}
    v_lshl_add_u32 v{t5}, v{t3}, 4, s{S_A}
    global_load_lds_dwordx4 v{t5}, {sr(S_W1,2)}
    global_load_lds_dwordx4 v{t5}, {sr(S_W1,2)} offset:1024
    s_branch K_stJ
K_stX:
    ; waves 8..11 stage the x rows of this bin (16-byte pieces swizzled inside each row)
    s_mov_b32 s{S_RX}, s4
    s_mov_b32 s{S_RX+1}, s5
    s_mov_b32 s{S_RX+2}, {N_NODES*128}
    s_mov_b32 s{S_RX+3}, 0x00020000
    s_add_u32 m0, s{S_A}, {L_XR - 16384}
    s_lshl_b32 s{S_B}, s{S_N0}, 7
    s_add_u32 s{S_A}, s{S_A}, s{S_B}
    s_sub_u32 s{S_A}, s{S_A}, 16384
    v_lshrrev_b32 v{t3}, 4, v{L}
    v_xor_b32 v{t3}, v{t3}, v{L}
    v_lshl_add_u32 v{t3}, v{t3}, 4, s{S_A}
    v_xor_b32 v{t5}, 64, v{t3}
    buffer_load_dwordx4 v{t3}, {sr(S_RX,4)}, 0 offen lds
    buffer_load_dwordx4 v{t5}, {sr(S_RX,4)}, 0 offen offset:1024 lds
K_stJ:
    s_waitcnt lgkmcnt(0)
    s_barrier
    v_mov_b32 v{vPad}, {PADREC}
    v_mov_b32 v{vPad+1}, {PADREC}
    v_mov_b32 v{vPad+2}, {PADREC}
    v_mov_b32 v{vPad+3}, {PADREC}
    v_lshlrev_b32 v{t2}, 4, v{T}
    ds_write_b128 v{t2}, {vr(vPad,4)} offset:{L_RL}
    s_cmp_ge_u32 s{S_WAVE}, 4
    s_cbranch_scc1 K_in1
    ds_write_b128 v{t2}, {vr(vZ,4)}
    ds_write_b128 v{t2}, {vr(vPad,4)} offset:{L_ST - 4096}
K_in1:
    s_cmp_lg_u32 s{S_WAVE}, 4
    s_cbranch_scc1 K_in2
    v_lshlrev_b32 v{t3}, 2, v{L}
    ds_write_b32 v{t3}, v{vZ} offset:{L_RL - 256}
K_in2:
    global_load_dwordx4 {vr(vSrc,4)}, v{t0}, {sr(S_SRC,2)}
    global_load_dwordx2 {vr(vEa,2)}, v{t1}, {sr(S_E,2)}
    s_cmp_ge_u32 s{S_WAVE}, 8
    s_cbranch_scc1 K_st2
    s_add_u32 m0, m0, 16384
    v_add_u32 v{t5}, 0x4000, v{t5}
    global_load_lds_dwordx4 v{t5}, {sr(S_W1,2)}
    global_load_lds_dwordx4 v{t5}, {sr(S_W1,2)} offset:1024
    s_branch K_st3
K_st2:
    s_mov_b32 m0, {L_WC}
    v_lshlrev_b32 v{t3}, 2, v{L}
    v_add_u32 v{t4}, 0x8000, v{t3}
    global_load_lds_dword v{t4}, {sr(S_W1,2)}
    {f"s_mov_b32 m0, {L_WC + 256}" if not optval("b1_", "") else ""}
    s_nop 0
    {f"global_load_lds_dword v{t3}, {sr(S_B1,2)}" if not optval("b1_", "") else f"global_load_lds_dword v{t4}, {sr(S_W1,2)}"}
K_st3:""")
    tl = optval("tlb", "")
    tk = 1 if tl else 0
    if tl == "1":
        a(f"""
    s_and_b32 s{S_K}, s{S_WAVE}, 3
    s_mul_i32 s{S_J}, s{S_K}, {127*RSTRIDE}
    s_add_u32 s{S_J}, s{S_J}, {RSTRIDE - 4}
    s_cmp_eq_u32 s{S_K}, 3
    s_cselect_b32 s{S_J}, {WS_P + N_NODES*256 + 4096}, s{S_J}
    v_mov_b32 v5, s{S_J}
    global_load_dword v5, v5, {sr(S_WS,2)}
""")
    a(f"""
    v_and_b32 v{vC8}, 3, v{L}
    v_lshlrev_b32 v{vC8}, 3, v{vC8}
    v_and_b32 v{t1}, 16, v{L}
    v_lshl_add_u32 v{vC8}, v{t1}, 1, v{vC8}  ; 8c + 32(g&1)
    s_lshr_b32 s{S_D}, s{S_WAVE}, 1          ; ct
    v_bfe_u32 v{t0}, v{L}, 2, 2
    v_xor_b32 v{t3}, s{S_D}, v{t0}
    v_lshlrev_b32 v{t3}, 6, v{t3}
    v_lshl_add_u32 v{t0}, v{HH}, 3, v{t0}
    v_lshl_add_u32 v{t0}, v{t0}, 8, v{t3}
    v_add_u32 v{vWa}, {L_W1}, v{t0}          ; k row 8*hh + r, column block ct^r
    v_and_b32 v{vWp}, 1, v{L}
    v_lshl_add_u32 v{vWp}, v{vWp}, 5, v{vWa}
    v_and_b32 v{t3}, 16, v{L}
    v_add_u32 v{vWp}, v{vWp}, v{t3}
    v_and_b32 v{t3}, 2, v{L}
    v_lshl_add_u32 v{vWp}, v{t3}, 2, v{vWp}  ; + 16(c&1) + 4(2(g&1) + (c>>1)) columns
    s_and_b32 s{S_A}, s{S_WAVE}, 1
    s_lshl_b32 s{S_A}, s{S_A}, 12
    s_add_u32 s{S_A}, s{S_A}, {L_XR}
    v_bfe_u32 v{t3}, v{L}, 1, 3
    v_xor_b32 v{t3}, v{t3}, v{HH}
    v_lshl_add_u32 v{t3}, v{t3}, 4, s{S_A}
    v_lshl_add_u32 v{vXa}, v{J}, 7, v{t3}
    v_xor_b32 v{vXa+1}, 32, v{vXa}
    v_xor_b32 v{vXa+2}, 64, v{vXa}
    v_xor_b32 v{vXa+3}, 0x60, v{vXa}
    s_mov_b32 s{S_A}, 21400
    s_mov_b32 s{S_B}, -{NB}
    s_mov_b32 s{S_C}, 0xffff0000
    v_mov_b32 v{t5}, 0x10004
    v_mov_b32 v{vBa+4}, 0
    v_mov_b32 v{v4k}, 0x4000
    s_waitcnt vmcnt({7 if tl == "1" else 6})""")
    if tl == "2":
        a(f"""
    s_and_b32 s{S_K}, s{S_WAVE}, 3
    s_mul_i32 s{S_J}, s{S_K}, {127*RSTRIDE}
    s_add_u32 s{S_J}, s{S_J}, {RSTRIDE - 4}
    s_cmp_eq_u32 s{S_K}, 3
    s_cselect_b32 s{S_J}, {WS_P + N_NODES*256 + 4096}, s{S_J}
    v_mov_b32 v5, s{S_J}
    global_load_dword v5, v5, {sr(S_WS,2)}
""")
    a(f"""
    s_cmp_lg_u32 s{S_WAVE}, 11
    s_cbranch_scc1 K_wJ
    s_bfm_b64 exec, {XTRA}, 0""")
    assert L_ST - L_RL <= step + 4096
    def binops(cols):
        for i in cols: a(f"    v_mul_u32_u24 v{vBa+i}, s{S_A}, v{vDst+i}")
        for i in cols: a(f"    v_lshrrev_b32 v{vBa+i}, 18, v{vBa+i}")
        for i in cols:
            a(f"    v_and_b32 v{vBa+i}, 0x3fc, v{vBa+i}")
            a(f"    ds_add_rtn_u32 v{vRk+i}, v{vBa+i}, v{t5} offset:{L_H1}")
        for i in cols: a(f"    v_lshlrev_b32 v{vDst+i}, 2, v{vDst+i}")
        for i in cols: a(f"    v_mad_i32_i24 v{vDst+i}, v{vBa+i}, s{S_B}, v{vDst+i}")
        for i in cols: a(f"    v_bfe_u32 v{vCl+i}, v{vDst+i}, 2, 1")
    binops([4])
    a(f"""
    s_mov_b64 exec, -1
K_wJ:""")
    stamp(a, 2)
    binops(range(4))
    a(f"""
    s_waitcnt vmcnt({4+tk}) lgkmcnt(0)
    s_barrier""")
    stamp(a, 3)
    a(f"""
    s_cmp_eq_u32 s{S_WAVE}, 8
    s_cbranch_scc1 K_scan1
    s_cmp_gt_u32 s{S_WAVE}, 8
    s_cbranch_scc1 K_notP
    ; ---- waves 0..7: P^T tile = -log2(e) * (x w1[0:64])^T""")
    for s_ in range(4):
        a(f"    ds_read_b128 {vr(vX+4*s_,4)}, v{vXa+s_}")
        for h in range(2):
            a(f"    ds_read_b64_tr_b16 {vr(vWf+4*s_+2*h,2)}, v{vWp} offset:{4096*s_+1024*h}")
    for s_ in range(4):
        a(f"    s_waitcnt lgkmcnt({9-3*s_})")
        cin = "0" if s_ == 0 else vr(vAc, 16)
        a(f"    v_mfma_f32_32x32x16_bf16 {vr(vAc,16)}, {vr(vWf+4*s_,4)}, {vr(vX+4*s_,4)}, {cin}")
    a(f"""
    s_and_b32 s{S_B}, s{S_WAVE}, 1
    s_mul_i32 s{S_A}, s{S_B}, {32*PS_STRIDE}
    s_lshl_b32 s{S_B}, s{S_D}, 6
    s_add_u32 s{S_A}, s{S_A}, s{S_B}
    s_add_u32 s{S_A}, s{S_A}, {L_PS}
    v_mul_u32_u24 v{t3}, {PS_STRIDE}, v{J}
    v_lshl_add_u32 v{t3}, v{HH}, 5, v{t3}
    v_add_u32 v{t3}, s{S_A}, v{t3}
    v_mov_b32 v{t4}, {NLOG2E:#x}
    v_cmp_gt_u32 vcc, {L_PS + 56*PS_STRIDE}, v{t3}
    s_nop 1""")
    for q in range(8):
        a(f"    v_pk_mul_f32 {vr(vAc+2*q,2)}, {vr(vAc+2*q,2)}, {vr(t4,2)} op_sel_hi:[1,0]")
    for q in range(8):
        a(f"    v_cvt_pk_bf16_f32 v{vAc+q}, v{vAc+2*q}, v{vAc+2*q+1}")
    a(f"""
    s_mov_b64 exec, vcc
    ds_write_b128 v{t3}, {vr(vAc,4)}
    ds_write_b128 v{t3}, {vr(vAc+4,4)} offset:16
    s_mov_b64 exec, -1
    s_branch K_b3
K_notP:
    v_lshlrev_b32 v{t1}, 4, v{L}
    v_add_u32 v{t4}, {L_PS + 48*PS_STRIDE}, v{t1}
    v_add_u32 v{t1}, {48*256}, v{t1}
    s_branch K_b3
K_scan1:
    ; ---- wave 8: segment offsets; a segment is n records (4 bytes) followed by n node bytes, padded to 4
    s_setprio 2
    global_load_dwordx2 {vr(vTg,2)}, v{vZ}, {sr(S_DBG,2)}
    v_lshlrev_b32 v{t0}, 4, v{L}
    ds_read_b128 v[56:59], v{t0} offset:{L_H1}
    s_waitcnt lgkmcnt(0)""")
    for i in range(4):
        a(f"    v_lshrrev_b32 v{60+i}, 16, v{56+i}")
    for i in range(4):
        a(f"    v_mad_u32_u24 v{64+i}, v{60+i}, 5, 3")
    for i in range(4):
        a(f"    v_and_b32 v{64+i}, -4, v{64+i}")
    a(f"""
    v_add_u32 v65, v64, v65
    v_add_u32 v66, v65, v66
    v_add_u32 v67, v66, v67
    v_mov_b32 v68, v67""")
    wave_scan(a, 68)
    a(f"""
    v_sub_u32 v68, v68, v67
    v_add_u32 v69, v68, v64
    v_add_u32 v70, v68, v65
    v_add_u32 v71, v68, v66
    s_mov_b32 s{S_A}, 0x10001""")
    for i in range(4):
        a(f"    v_mul_u32_u24 v{64+i}, s{S_A}, v{68+i}")
    for i in range(4):
        a(f"    v_lshl_add_u32 v{64+i}, v{56+i}, 16, v{64+i}")
    a(f"""
    ds_write_b128 v{t0}, v[64:67] offset:{L_OFF}
    s_setprio 0
K_b3:
    v_lshrrev_b32 v{t0}, 4, v{T}
    v_lshl_add_u32 v{t0}, v{t0}, 4, v{t2}
    v_add_u32 v{t0}, {L_PS}, v{t0}
    s_lshl_b32 s{S_A}, s{S_N0}, 8
    s_add_u32 s{S_A}, s{S_A}, {WS_P}
    s_add_u32 s{S_RT}, s{S_WS}, s{S_A}
    s_addc_u32 s{S_RT+1}, s{S_WS+1}, 0
    s_lshl_b32 s{S_RT+2}, s{S_NN}, 8
    s_mov_b32 s{S_RT+3}, 0x00020000
    s_waitcnt lgkmcnt(0)
    s_barrier                                ; B3: segment offsets, P staged""")
    stamp(a, 4)
    a(f"""
    s_cmp_lt_u32 s{S_WAVE}, 10
    s_cbranch_scc1 K_nx0
    ds_read_b32 v{vOf+4}, v{vBa+4} offset:{L_OFF}
    ds_read_b128 v[76:79], v{t4}
K_nx0:
    ds_read_b128 v[72:75], v{t0}""")
    for i in range(4):
        a(f"    ds_read_b32 v{vOf+i}, v{vBa+i} offset:{L_OFF}")
    a(f"""
    s_waitcnt lgkmcnt(4)
    buffer_store_dwordx4 v[72:75], v{t2}, {sr(S_RT,4)}, 0 offen sc1
    s_waitcnt vmcnt({3+tk})""")
    stamp(a, 22)
    a(f"""
    v_lshl_or_b32 v{vSrc}, v{v4k}, v{vCl}, v{vSrc}
    v_lshl_or_b32 v{vSrc+1}, v{v4k}, v{vCl+1}, v{vSrc+1}
    v_lshl_or_b32 v{vSrc+2}, v{v4k}, v{vCl+2}, v{vSrc+2}
    v_lshl_or_b32 v{vSrc+3}, v{v4k}, v{vCl+3}, v{vSrc+3}
    v_lshl_or_b32 v{vSrc}, v{vEa}, 16, v{vSrc}
    v_and_or_b32 v{vSrc+1}, v{vEa}, s{S_C}, v{vSrc+1}
    v_lshl_or_b32 v{vSrc+2}, v{vEa+1}, 16, v{vSrc+2}
    v_and_or_b32 v{vSrc+3}, v{vEa+1}, s{S_C}, v{vSrc+3}
    s_waitcnt lgkmcnt(0)""")
    def scatter(i):
        a(f"    v_add_u32_sdwa v{vBa+i}, v{vOf+i}, v{vRk+i} {SD} src0_sel:WORD_0 src1_sel:WORD_0")
        a(f"    v_add_u32_sdwa v{vOf+i}, v{vOf+i}, v{vRk+i} {SD} src0_sel:WORD_1 src1_sel:WORD_1")
        a(f"    ds_write_b32 v{vBa+i}, v{vSrc+i} offset:{L_RS}")
        a(f"    ds_write_b8 v{vOf+i}, v{vDst+i} offset:{L_RS}")
    for i in range(4): scatter(i)
    a(f"""
    s_cmp_lt_u32 s{S_WAVE}, 10
    s_cbranch_scc1 K_nx2
    s_cmp_eq_u32 s{S_WAVE}, 11
    s_cbranch_scc1 K_x2
    buffer_store_dwordx4 v[76:79], v{t1}, {sr(S_RT,4)}, 0 offen sc1""")
    if optval("b1_", "") == "late":
        a(f"""
    s_mov_b32 m0, {L_WC + 256}
    v_lshlrev_b32 v{t3}, 2, v{L}
    global_load_lds_dword v{t3}, {sr(S_B1,2)}
""")
    a(f"""
    s_branch K_nx2
K_x2:
    s_bfm_b64 exec, {XTRA}, 0
    v_lshl_or_b32 v{vSrc+4}, v{v4k}, v{vCl+4}, v{vSrc+4}
    v_lshl_or_b32 v{vSrc+4}, v{vEa+2}, 16, v{vSrc+4}""")
    scatter(4)
    a(f"""
    s_mov_b64 exec, -1
K_nx2:
    s_mul_i32 s{S_A}, s2, {RSTRIDE}
    s_add_u32 s{S_RR}, s{S_WS}, s{S_A}
    s_addc_u32 s{S_RR+1}, s{S_WS+1}, 0
    s_mov_b32 s{S_RR+2}, 16512
    s_mov_b32 s{S_RR+3}, 0x00020000
    v_add_u32 v{t3}, {step}, v{t2}
    s_waitcnt lgkmcnt(0)""")
    stamp(a, 23)
    a(f"""
    s_barrier""")
    stamp(a, 5)
    a(f"""
    ds_read_b128 v[0:3], v{t2} offset:{L_RS}
    s_cmp_ge_u32 s{S_WAVE}, 5
    s_cbranch_scc1 K_co1
    ds_read_b128 v[8:11], v{t2} offset:{L_RS + step}
    s_waitcnt lgkmcnt(0)
    buffer_store_dwordx4 v[8:11], v{t3}, {sr(S_RR,4)}, 0 offen sc1
K_co1:
    s_waitcnt lgkmcnt(0)
    buffer_store_dwordx4 v[0:3], v{t2}, {sr(S_RR,4)}, 0 offen sc1
    ; ---- lane constants, while the stores drain
    ; gather: lane -> row l>>4 of 4, piece l&15; odd rows have their 64-byte blocks swapped pairwise
    v_and_b32 v{tc}, 15, v{L}
    v_bfe_u32 v{t3}, v{L}, 4, 1
    v_lshlrev_b32 v{t3}, 2, v{t3}
    v_xor_b32 v{tc}, v{tc}, v{t3}
    v_lshlrev_b32 v{V_IX+1}, 4, v{tc}
    v_mov_b32 v{V_IX+3}, v{V_IX+1}
    v_mov_b32 v{V_IX+5}, v{V_IX+1}
    v_mov_b32 v{V_IX+7}, v{V_IX+1}
    v_lshrrev_b32 v{V_AIDX}, 4, v{L}
    v_lshlrev_b32 v{V_AIDX}, 1, v{V_AIDX}
    v_bfe_u32 v{tc}, v{L}, 3, 1
    v_xor_b32 v{t3}, v{tc}, v{HH}
    v_lshl_add_u32 v{t3}, v{t3}, 6, v{vC8}
    v_lshl_add_u32 v{tc}, v{tc}, 8, v{t3}
    s_lshl_b32 s{S_B}, s{S_WAVE}, 12
    s_add_u32 s{S_B}, s{S_B}, {L_XS}
    v_add_u32 v{tc}, s{S_B}, v{tc}
    v_bfe_u32 v{t4}, v{L}, 2, 1
    v_cmp_ne_u32 vcc, 0, v{t4}
    v_mov_b32 v{t3}, {L_Z}
    v_mov_b32 v{V_MN}, 1.0
    v_cndmask_b32 v{V_AA}, v{t3}, v{tc}, vcc
    v_cmp_eq_u32 {mask(0)}, v{t4}, v{HH}
    v_bfe_u32 v{tc}, v{L}, 3, 2
    v_and_b32 v{t3}, 3, v{L}
    v_lshl_add_u32 v{tc}, v{tc}, 2, v{t3}
    v_lshlrev_b32 v{tc}, 2, v{tc}
    v_add_u32 v{tc}, {L_G}, v{tc}
    v_mov_b32 v{t3}, {L_ZA}
    v_cndmask_b32 v{V_AENT}, v{t3}, v{tc}, {mask(0)}
    v_mov_b32 v{t3}, 0x80
    v_cndmask_b32 v{V_INCA}, 0, v{t3}, {mask(0)}""")
    for m in range(4):
        a(f"    s_movk_i32 s{S_P+m}, {3072 - 1024*m}")
    for c in range(2):
        a(f"    v_mov_b32 v{V_ND+4*c}, 0")
        a(f"    v_mov_b32 v{V_ND+4*c+1}, 0")
        a(f"    v_mov_b32 v{V_ND+4*c+2}, 1.0")
        a(f"    v_mov_b32 v{V_ND+4*c+3}, 1.0")
    a(f"""
    s_and_b32 s{S_A}, s{S_WAVE}, 3
    s_mul_i32 s{S_A}, s{S_A}, 3
    s_lshr_b32 s{S_B}, s{S_WAVE}, 2
    s_add_u32 s{S_SLOT}, s{S_A}, s{S_B}
    s_getpc_b64 {sr(S_PC,2)}
K_pc:
    s_add_u32 s{S_PC}, s{S_PC}, K_vbase - K_pc
    s_addc_u32 s{S_PC+1}, s{S_PC+1}, 0
    ; segment mapping of phase 2: segment 128 i + t/6, lane group g = t%6
    v_mul_u32_u24 v{tc}, 10923, v{T}
    v_lshrrev_b32 v{tc}, 16, v{tc}
    v_mad_i32_i24 v{vG4}, v{tc}, -6, v{T}
    v_lshlrev_b32 v{vG4}, 2, v{vG4}          ; 4g
    v_mul_u32_u24 v{vSb}, {RSTRIDE}, v{tc}
    ; share of P this lane pulls into L2
    s_lshr_b32 s{S_A}, s2, 3
    s_mul_i32 s{S_A}, s{S_A}, {256*128 if "hot" in OPT else 781*128}
    s_add_u32 s{S_A}, s{S_A}, {WS_P - (512*128 if "hot" in OPT else 0)}
    v_lshl_add_u32 v{vPf}, v{T}, 7, s{S_A}
    s_lshr_b32 s{S_B}, s{S_BIN}, 2
    s_lshl_b32 s{S_B}, s{S_B}, 4
    s_and_b32 s{S_A}, s{S_BIN}, 1
    s_lshl_b32 s{S_A}, s{S_A}, 3
    s_add_u32 s{S_B}, s{S_B}, s{S_A}
    s_and_b32 s{S_A}, s{S_BIN}, 2
    s_lshl_b32 s{S_A}, s{S_A}, 9
    s_add_u32 s{S_B}, s{S_B}, s{S_A}
    s_add_u32 s{S_B}, s{S_B}, {WS_TAB}
    v_lshl_add_u32 v{t5}, v{tc}, 11, s{S_B}  ; table entry offset
    s_mov_b32 s3, {NLOG2E:#x}
    s_cmp_lg_u32 s{S_WAVE}, 8
    s_cbranch_scc1 K_ntb
    s_mov_b32 s{S_K}, 0
    s_waitcnt vmcnt(2)
K_tagp:
    v_cmp_ne_u32 vcc, 0, v{vTg}
    s_cbranch_vccnz K_tagok
    s_add_u32 s{S_K}, s{S_K}, 1
    s_cmp_gt_u32 s{S_K}, {POLL_MAX}
    s_cbranch_scc1 K_tagok                   ; give up: tag 0 sends this workgroup to the slow path
    global_load_dwordx2 {vr(vTg,2)}, v{vZ}, {sr(S_DBG,2)} sc1
    s_waitcnt vmcnt(0)
    s_branch K_tagp
K_tagok:
    ds_write_b64 v{vZ}, {vr(vTg,2)} offset:{L_NONCE}
    v_and_b32 v{t3}, 0xfe000000, v{vTg}
    s_lshl_b32 s{S_B}, s2, 11
    s_add_u32 s{S_B}, s{S_B}, {WS_TAB}
    v_lshl_add_u32 v{t1}, v{L}, 4, s{S_B}""")
    for i in range(4):
        a(f"    v_lshrrev_b32 v{68+i}, 2, v{68+i}")
        a(f"    v_lshl_or_b32 v{68+i}, v{60+i}, 13, v{68+i}")
        a(f"    v_or_b32 v{vTb+2*i}, v{t3}, v{68+i}")
        a(f"    v_mov_b32 v{vTb+2*i+1}, v{vTg+1}")
    a(f"""
    s_waitcnt vmcnt(0) lgkmcnt(0)
    s_barrier                                ; B5
    s_cbranch_vccz K_slow
    global_store_dwordx4 v{t1}, {vr(vTb,4)}, {sr(S_WS,2)} sc1
    global_store_dwordx4 v{t1}, {vr(vTb+4,4)}, {sr(S_WS,2)} offset:1024 sc1
    s_branch K_b5j
K_ntb:
    s_waitcnt vmcnt(0)
    s_barrier                                ; B5: this workgroup's records and P rows are in memory
K_b5j:""")
    stamp(a, 6)
    a(f"""
    ds_read_b64 {vr(vTg,2)}, v{vZ} offset:{L_NONCE}
    v_lshlrev_b32 v{t0}, 1, v{L}
    v_add_u32 v{t0}, {L_WC}, v{t0}
    ds_read_u16 v{V_B5}, v{t0}
    ds_read_u16 v{V_B5+2}, v{t0} offset:128
    s_waitcnt lgkmcnt(0)
    v_readfirstlane_b32 s{S_TAG}, v{vTg}
    v_readfirstlane_b32 s{S_TAG+1}, v{vTg+1}
    s_cmp_eq_u32 s{S_TAG}, 0
    s_cbranch_scc1 K_slow""")
    for c in range(2):
        w = V_B5 + 2*c
        a(f"    v_lshlrev_b32 v{w}, 16, v{w}")
        a(f"    v_mul_f32 v{w}, s3, v{w}")
        a(f"    v_cvt_pk_bf16_f32 v{t3}, v{vZ}, v{w}")
        a(f"    v_sub_f32 v{t3}, v{w}, v{t3}")
        a(f"    v_cvt_pk_bf16_f32 v{w+1}, v{w}, v{t3}")
    a(f"""
    s_cmp_lt_u32 s{S_WAVE}, 8
    s_cbranch_scc1 K_Q
    ; waves 8..11 stage w2 and b2 (first used after the main loop)
    s_sub_u32 s{S_A}, s{S_WAVE}, 8
    s_lshl_b32 s{S_A}, s{S_A}, 12
    s_add_u32 m0, s{S_A}, {L_W2}
    v_lshl_add_u32 v{t3}, v{L}, 4, s{S_A}
    global_load_lds_dwordx4 v{t3}, {sr(S_W2,2)}
    global_load_lds_dwordx4 v{t3}, {sr(S_W2,2)} offset:1024
    global_load_lds_dwordx4 v{t3}, {sr(S_W2,2)} offset:2048
    global_load_lds_dwordx4 v{t3}, {sr(S_W2,2)} offset:3072
    s_cmp_lg_u32 s{S_WAVE}, 9
    s_cbranch_scc1 K_notQ
    s_mov_b32 m0, {L_B2}
    v_lshlrev_b32 v{t3}, 2, v{J}
    global_load_lds_dword v{t3}, {sr(S_B2,2)}
    s_branch K_notQ
K_Q:
    ; ---- waves 0..7: Q tile = -log2(e)/2 * (x w1[64:128] + b1) (selected by 2.0), while the table entries travel
    s_mov_b32 s3, {f32bits(-LOG2E/2):#x}
    s_lshl_b32 s{S_A}, s{S_D}, 6
    s_add_u32 s{S_A}, s{S_A}, {L_WC + 256}
    v_lshl_add_u32 v{t3}, v{J}, 1, s{S_A}
    ds_read_u16 v{vB1}, v{t3}
    v_add_u32 v{tc}, v{vWa}, v{vC8}""")
    for s_ in range(4):
        for h in range(2):
            a(f"    ds_read_b64_tr_b16 {vr(vWf+4*s_+2*h,2)}, v{tc} offset:{16384+4096*s_+1024*h}")
    a(f"""
    s_and_b32 s{S_A}, s{S_WAVE}, 1
    s_lshl_b32 s{S_B}, s{S_A}, 14
    s_lshl_b32 s{S_C}, s{S_D}, 7
    s_add_u32 s{S_B}, s{S_B}, s{S_C}
    s_add_u32 s{S_B}, s{S_B}, {L_QT - 512}
    v_lshl_add_u32 v{tc}, v{HH}, 11, s{S_B}
    v_lshl_add_u32 v{tc}, v{J}, 2, v{tc}""")
    for s_ in range(4):
        a(f"    s_waitcnt lgkmcnt({6-2*s_})")
        cin = "0" if s_ == 0 else vr(vAc, 16)
        a(f"    v_mfma_f32_32x32x16_bf16 {vr(vAc,16)}, {vr(vX+4*s_,4)}, {vr(vWf+4*s_,4)}, {cin}")
    a(f"""
    v_lshlrev_b32 v{vB1}, 16, v{vB1}
    v_mul_f32 v{vB1}, s3, v{vB1}
    s_nop 9""")
    def qpair(r):
        row = 8*(r >> 2) + (r & 3)
        a(f"    v_fma_f32 v{vAc+r}, v{vAc+r}, s3, v{vB1}")
        a(f"    v_fma_f32 v{vAc+r+1}, v{vAc+r+1}, s3, v{vB1}")
        a(f"    v_cvt_pk_bf16_f32 v{vWf+r}, v{vAc+r}, v{vAc+r+1}")
        a(f"    ds_write_b32 v{tc}, v{vWf+r} offset:{512*(row+1)}")
        a(f"    ds_write_b16 v{tc}, v{vWf+r} offset:{512*row}")
        a(f"    ds_write_b16_d16_hi v{tc}, v{vWf+r} offset:{512*(row+2)+2}")
    for r in range(0, 12, 2): qpair(r)
    a(f"""
    s_cmp_eq_u32 s{S_A}, 1
    s_cbranch_scc1 K_notQ""")
    for r in range(12, 16, 2): qpair(r)
    a(f"K_notQ:")
    stamp(a, 7)
    vT = 0
    vN = 4
    vAr = 6
    vR = 12
    vM = 28
    vA = 32
    vK = 48
    vB = 64
    a(f"""
    s_lshl_b32 s{S_B}, s{S_WAVE}, 12
    s_add_u32 m0, s{S_B}, {L_XS}
    s_mov_b32 s{S_RR}, s{S_WS}
    s_mov_b32 s{S_RR+1}, s{S_WS+1}
    s_mov_b32 s{S_RR+2}, {WS_TAB + 256*2048}
    s_mov_b32 s{S_A}, {128*2048}
    s_mov_b32 s{S_B}, {128*RSTRIDE}
    s_mov_b32 s{S_C}, 0xfe000000
    s_movk_i32 s{S_D}, 0xfc
    s_mov_b32 s{S_K}, 0
    {"s_sleep " + optval("fs", "0") if optval("fs", "0") != "0" else ""}
    s_mov_b64 {mask(0)}, -1
    s_mov_b64 {mask(1)}, -1
    v_mov_b32 v{vM}, 0
    v_mov_b32 v{vM+1}, 0
K_poll:
    s_mov_b64 exec, {mask(0)}
    s_cbranch_execz K_pl0
    buffer_load_dwordx2 {vr(vT,2)}, v{t5}, {sr(S_RR,4)}, 0 offen sc1
K_pl0:
    s_mov_b64 exec, {mask(1)}
    s_cbranch_execz K_pl1
    buffer_load_dwordx2 {vr(vT+2,2)}, v{t5}, {sr(S_RR,4)}, s{S_A} offen sc1
K_pl1:
    s_mov_b64 exec, -1
    s_waitcnt vmcnt(0)""")
    for i in range(2):
        a(f"    v_xor_b32 v{vN+i}, s{S_TAG}, v{vT+2*i}")
        a(f"    v_xor_b32 v{vAr+i}, s{S_TAG+1}, v{vT+2*i+1}")
        a(f"    v_and_or_b32 v{vAr+i}, v{vN+i}, s{S_C}, v{vAr+i}")
        a(f"    v_cmp_ne_u32 {mask(i)}, 0, v{vAr+i}")
    a(f"""
    s_add_u32 s{S_K}, s{S_K}, 1
    s_or_b64 vcc, {mask(0)}, {mask(1)}
    s_cbranch_scc0 K_got
    s_cmp_lt_u32 s{S_K}, {POLL_MAX}
    s_cbranch_scc1 K_poll
    ; gave up: no records from this wave, ask for the slow path
    s_mov_b32 s{S_MODE}, 1
    s_branch K_nor2a
K_got:""")
    if DIAG:
        a(f"    v_writelane_b32 v{V_STAMP}, s{S_K}, 20")
    stamp(a, 8)
    so = ["0", sr(S_B)]
    for i in range(2):
        a(f"    v_and_b32 v{vAr+i}, 0x1fff, v{vT+2*i}")
        a(f"    v_bfe_u32 v{vT+2*i+1}, v{vT+2*i}, 13, 12")
        a(f"    v_lshl_add_u32 v{vAr+i}, v{vAr+i}, 2, v{vSb}")
        a(f"    v_sub_u32 v{vN+i}, v{vT+2*i+1}, v{vG4}")
        a(f"    v_lshl_add_u32 v{vAr+2+i}, v{vT+2*i+1}, 2, v{vAr+i}")
        a(f"    v_cmp_lt_i32 {mask(4*i)}, 0, v{vN+i}")
        a(f"    v_lshl_add_u32 v{vAr+i}, v{vG4}, 2, v{vAr+i}")
        a(f"    v_add_u32 v{vAr+2+i}, v{vAr+2+i}, v{vG4}")
        a(f"    s_or_b64 exec, {mask(4*i)}, 1")
        a(f"    buffer_load_dword v{vM+i}, v{vAr+2+i}, {sr(S_RR,4)}, {so[i]} offen")
        a(f"    buffer_load_dwordx4 {vr(vR+4*i,4)}, v{vAr+i}, {sr(S_RR,4)}, {so[i]} offen")
        a(f"    s_mov_b64 exec, -1")
    for i in range(2):
        for k in range(1, 4):
            a(f"    v_cmp_lt_i32 {mask(4*i+k)}, {k}, v{vN+i}")
    a(f"""
    v_max_i32 v{t1}, v{vN}, v{vN+1}
    v_cmp_lt_i32 vcc, 24, v{t1}
    s_mov_b32 s{S_K}, 0
    s_cbranch_vccz K_nor2a
    s_mov_b32 s{S_K}, 1""")
    for i in range(2):
        a(f"    buffer_load_dword v{vM+2+i}, v{vAr+2+i}, {sr(S_RR,4)}, {so[i]} offen offset:24")
        a(f"    buffer_load_dwordx4 {vr(vR+8+4*i,4)}, v{vAr+i}, {sr(S_RR,4)}, {so[i]} offen offset:96")
        for k in range(4):
            a(f"    v_cmp_lt_i32 {mask(8+4*i+k)}, {24+k}, v{vN+i}")
    pf0 = int(optval("pf", "8"))
    a(f"""
    v_cmp_lt_i32 vcc, 48, v{t1}
    s_cbranch_vccz K_nor2a
    s_mov_b32 s{S_MODE}, 1                   ; a segment is too long for the fast path
K_nor2a:
    v_mov_b32 v{t4}, {L_FLAG}
    v_mov_b32 v{t0}, 4
    s_cmp_eq_u32 s{S_MODE}, 0
    s_cbranch_scc1 K_nofl
    ds_write_b32 v{t4}, v{t0}
K_nofl:
    s_waitcnt lgkmcnt(0)
    s_barrier
    ds_read_b32 v{t3}, v{t4}
    ; P descriptor: 256-byte records, base shifted by -3072
    s_add_u32 s{S_RX}, s{S_WS}, {WS_P - 3072}
    s_addc_u32 s{S_RX+1}, s{S_WS+1}, 0
    s_and_b32 s{S_RX+1}, s{S_RX+1}, 0xffff
    s_or_b32 s{S_RX+1}, s{S_RX+1}, 0x01000000
    s_mov_b32 s{S_RX+2}, {N_NODES}
    s_mov_b32 s{S_RX+3}, 0x00020000
    s_waitcnt lgkmcnt(0)
    v_cmp_ne_u32 vcc, 0, v{t3}
    s_cbranch_vccnz K_slow
    s_cmp_lt_u32 s{S_WAVE}, {pf0}
    s_cbranch_scc1 K_npf
    global_load_dword v{t5}, v{vPf}, {sr(S_WS,2)} sc1
    s_waitcnt vmcnt(1)
    s_branch K_pfJ
K_npf:
    v_and_b32 v72, 7, v{L}
    v_lshlrev_b32 v74, 4, v72
    v_add_u32 v74, {L_B2}, v74
    ds_read_b128 v[76:79], v74
    v_lshrrev_b32 v{E_XR}, 3, v{T}
    v_lshlrev_b32 v{E_XR}, 2, v{E_XR}        ; 4 * node
    v_lshlrev_b32 v{E_OUT}, 4, v{T}          ; output byte offset
    v_lshlrev_b32 v72, 5, v72
    v_add_u32 v{E_NX}, {L_QT}, v72
    s_waitcnt lgkmcnt(0)""")
    vBu = [128, 130, 92, 152]
    for q in range(4):
        a(f"    v_lshlrev_b32 v{vBu[q]}, 16, v{76+q}")
        a(f"    v_and_b32 v{vBu[q]+1}, 0xffff0000, v{76+q}")
    assert pf0 >= 7
    a(f"""
    s_cmp_ge_u32 s{S_WAVE}, 4
    s_cbranch_scc1 K_np1
    v_bfe_u32 v70, v{L}, 2, 1
    v_bfe_u32 v71, v{L}, 3, 1
    v_lshl_add_u32 v70, v70, 6, v71
    v_lshrrev_b32 v71, 4, v{L}               ; g
    v_lshl_add_u32 v70, v71, 2, v70
    v_lshlrev_b32 v70, 7, v70
    v_and_b32 v72, 3, v{L}
    v_lshl_add_u32 v70, v72, 4, v70
    v_add_u32 v{E_W2}, {L_W2}, v70
    v_and_b32 v70, 15, v{L}
    s_lshl_b32 s{S_C}, s{S_WAVE}, 4
    v_add_u32 v70, s{S_C}, v70               ; row
    v_mul_u32_u24 v72, {ST_STRIDE}, v70
    v_lshl_add_u32 v72, v71, 4, v72
    v_add_u32 v{E_SR}, {L_ST}, v72
    v_mul_u32_u24 v72, {OF_STRIDE}, v70
    v_lshl_add_u32 v72, v71, 5, v72
    v_add_u32 v{E_OW}, {L_QT}, v72
K_np1:
    s_waitcnt vmcnt(0)
K_pfJ:""")
    stamp(a, 9)
    def count_cols(ks):
        for k in ks:
            a(f"    v_and_b32_sdwa v{vA+k}, v{vM+k//4}, s{S_D} {SD} src0_sel:BYTE_{k%4} src1_sel:DWORD")
        for k in ks:
            a(f"    s_mov_b64 exec, {mask(k)}")
            a(f"    ds_add_rtn_u32 v{vK+k}, v{vA+k}, v{t0} offset:{L_H2}")
        a(f"    s_mov_b64 exec, -1")
    count_cols(range(8))
    a(f"""
    s_cmp_eq_u32 s{S_K}, 0
    s_cbranch_scc1 K_nor2b""")
    count_cols(range(8, 16))
    a(f"""
K_nor2b:
    v_lshlrev_b32 v{t1}, 2, v{L}
    v_cmp_gt_u32 vcc, s{S_NN}, v{L}
    s_waitcnt lgkmcnt(0)
    s_barrier""")
    stamp(a, 10)
    a(f"""
    ds_read_b32 v{V_CNT}, v{t1} offset:{L_H2}
    s_waitcnt lgkmcnt(0)
    v_add_u32 v{vP}, 4, v{V_CNT}
    v_and_b32 v{vP}, -8, v{vP}
    v_max_u32 v{vP}, 64, v{vP}
    v_cndmask_b32 v{vP}, 0, v{vP}, vcc
    v_mov_b32 v{vS}, v{vP}""")
    wave_scan(a, vS)
    a(f"""
    s_nop 0
    v_readlane_b32 s{S_A}, v{vS}, 63
    v_sub_u32 v{vS}, v{vS}, v{vP}
    ds_write_b32 v{t1}, v{vS} offset:{L_SX}
    s_cmp_gt_u32 s{S_A}, {ENT_CAP*4}
    s_cbranch_scc1 K_slow""")
    def place_cols(ks, mid=None):
        ks = list(ks)
        for k in ks:
            a(f"    ds_read_b32 v{vB+k}, v{vA+k} offset:{L_SX}")
        if mid: a(mid)
        for n, k in enumerate(ks):
            if n % 2 == 0:
                a(f"    s_waitcnt lgkmcnt({len(ks)-2-n})")
            a(f"    v_add_u32 v{vK+k}, v{vB+k}, v{vK+k}")
        for k in ks:
            a(f"    s_mov_b64 exec, {mask(k)}")
            a(f"    ds_write_b32 v{vK+k}, v{vR+k} offset:{L_RL}")
        a(f"    s_mov_b64 exec, -1")
    place_cols(range(8), f"""
    s_add_u32 s{S_A}, s{S_A}, 63
    s_lshr_b32 s{S_TT}, s{S_A}, 6            ; tiles
    s_mul_i32 s{S_T0}, s{S_SLOT}, s{S_TT}
    s_add_u32 s{S_NT}, s{S_T0}, s{S_TT}
    s_mul_i32 s{S_T0}, s{S_T0}, 43691
    s_mul_i32 s{S_NT}, s{S_NT}, 43691
    s_lshr_b32 s{S_T0}, s{S_T0}, 19
    s_lshr_b32 s{S_NT}, s{S_NT}, 19
    s_sub_u32 s{S_NT}, s{S_NT}, s{S_T0}""")
    a(f"""
    s_cmp_eq_u32 s{S_K}, 0
    s_cbranch_scc1 K_nor2c
    s_waitcnt lgkmcnt(0)""")
    place_cols(range(8, 16))
    thr = [int(x) for x in optval("thr", "10_5").split("_")] + [2]
    vBk = 80
    vGr = 82
    a(f"""
K_nor2c:
    s_lshl_b32 s{S_A}, s{S_T0}, 6            ; list position of this wave
    v_lshl_add_u32 v{t3}, v{V_AIDX}, 1, s{S_A}
    v_add_u32 v{t2}, s{S_A}, v{t1}
    ; first node of this wave: n = #(m < nn : start[m] <= ts) - 1
    v_cmp_ge_u32 {mask(0)}, s{S_A}, v{vS}
    v_subrev_u32 v{t0}, s{S_A}, v{vS}
    s_and_b64 {mask(0)}, {mask(0)}, vcc
    s_bcnt1_i32_b64 s{S_B}, {mask(0)}
    s_sub_u32 s{S_B}, s{S_B}, 1              ; n
    s_andn2_b64 {mask(0)}, vcc, {mask(0)}
    v_bfe_u32 v{t4}, v{t0}, 3, 3
    v_add_u32 v{t4}, 1, v{t4}
    v_lshrrev_b32 v{t0}, 6, v{t0}
    v_min_u32 v{t0}, 63, v{t0}
    v_cndmask_b32 v{t0}, 63, v{t0}, {mask(0)}
    v_lshlrev_b32 v{t0}, 2, v{t0}
    v_mov_b32 v{vBk}, 0
    {"" if "novar" in OPT else f"ds_permute_b32 v{vBk}, v{t0}, v{t4}"}
    s_lshl_b32 s{S_D}, s{S_NT}, 4""")
    for c in range(5):
        a(f"    v_cmp_gt_i32 {mask(5+c)}, s{S_D}, v{L}")
        a(f"    s_sub_u32 s{S_D}, s{S_D}, 64")
    a(f"""
    s_cmp_ge_u32 s{S_WAVE}, 7
    s_cbranch_scc1 K_nprep
    ; rows of node = lane: first = node + slot(first tile), extra = slot(last tile) - slot(first tile)
    v_cvt_f32_u32 v70, s{S_TT}
    v_rcp_f32 v70, v70
    v_add3_u32 v{vP}, v{vS}, v{vP}, -4
    v_lshrrev_b32 v{vS}, 6, v{vS}
    v_lshrrev_b32 v{vP}, 6, v{vP}
    v_cvt_f32_u32 v{vS}, v{vS}
    v_cvt_f32_u32 v{vP}, v{vP}
    v_add_f32 v{vS}, {f32bits((NW-0.5)/NW):#x}, v{vS}
    v_add_f32 v{vP}, {f32bits((NW-0.5)/NW):#x}, v{vP}
    v_mul_f32 v70, {f32bits(NW):#x}, v70
    v_mul_f32 v{vS}, v{vS}, v70
    v_mul_f32 v{vP}, v{vP}, v70
    v_cvt_u32_f32 v{vS}, v{vS}
    v_cvt_u32_f32 v{vP}, v{vP}
    v_sub_u32 v{vP}, v{vP}, v{vS}
    v_add_u32 v{vS}, v{vS}, v{L}
    v_lshl_or_b32 v{vS}, v{vP}, 8, v{vS}
    v_lshl_or_b32 v{V_CNT}, v{vS}, 16, v{V_CNT}
    ds_bpermute_b32 v73, v{E_XR}, v{V_CNT}
    s_lshl_b32 s{S_C}, s{S_NN}, 2
    v_cmp_gt_u32 vcc, s{S_C}, v{E_XR}
    s_movk_i32 s{S_C}, {OF_STRIDE}
    v_mov_b32 v75, {L_Z2}
    s_waitcnt lgkmcnt(0)
    v_cndmask_b32 v73, 0, v73, vcc
    v_bfe_u32 v{E_ROW}, v73, 16, 8
    v_lshrrev_b32 v{E_XR}, 24, v73
    v_and_b32 v74, 0xffff, v73
    v_mad_u32_u24 v{E_ROW}, v{E_ROW}, s{S_C}, v{E_NX}
    v_cvt_f32_u32 v74, v74
    v_add_u32 v{E_NX}, {OF_STRIDE}, v{E_ROW}
    v_cndmask_b32 v{E_ROW}, v75, v{E_ROW}, vcc
    v_cmp_lt_u32 vcc, 0, v{E_XR}
    v_mul_f32 v74, 0x3e800000, v74           ; degree""")
    for q in range(4):
        a(f"    v_pk_mul_f32 {vr(E_DB[q],2)}, {vr(vBu[q],2)}, v[74:75] op_sel_hi:[1,0]")
    a(f"    v_cndmask_b32 v{E_R2}, v75, v{E_NX}, vcc")
    a(f"""
K_nprep:
    s_waitcnt lgkmcnt(0)
    s_barrier""")
    stamp(a, 11)
    for m in range(4):
        a(f"    ds_read_u16 v{V_IX+2*m}, v{t3} offset:{L_RL + 16*m}")
    for c in range(5):
        a(f"    ds_read_b32 v{vGr+c}, v{t2} offset:{L_RL + 256*c}")
    a(f"""
    s_lshr_b32 s{S_C}, s{S_A}, 1
    s_add_u32 s{S_C}, s{S_C}, {L_IX}
    v_add_u32 v{V_AIDX}, s{S_C}, v{V_AIDX}
    v_lshl_add_u32 v{t0}, v{L}, 1, s{S_C}
    s_mov_b32 s{S_C}, 0x03020302
    s_mov_b32 s{S_D}, 0x8001
    s_waitcnt lgkmcnt(5)""")
    for m in range(4):
        a(f"    v_and_b32 v{V_IX+2*m}, {0xfff if 'cheat1' in OPT or 'cheat2' in OPT else PADREC}, v{V_IX+2*m}")
    for h in dma_ops(): a(h)
    if "st2" in OPT:
        a(f"""
    s_cmp_lt_u32 s{S_WAVE}, 8
    s_cbranch_scc1 K_ns2
    v_add_u32 v{vPf}, 0x100000, v{vPf}
    global_load_dword v{t5}, v{vPf}, {sr(S_WS,2)} sc1
K_ns2:""")
    a(f"    ; this wave's entries -> one-hot word, (e, e), source node")
    a(f"    s_waitcnt lgkmcnt(0)")
    for c in range(5):
        a(f"    v_and_b32 v{vGr+5+c}, 0xc000, v{vGr+c}")
        a(f"    v_perm_b32 v{64+c}, v{vGr+c}, v{vGr+c}, s{S_C}")
        a(f"    v_xor_b32 v{vGr+c}, v{vGr+c}, v{vGr+5+c}")
        a(f"    v_mul_u32_u24 v{vGr+5+c}, s{S_D}, v{vGr+5+c}")
        a(f"    v_and_b32 v{vGr+5+c}, 0x40004000, v{vGr+5+c}")
    for c in range(5):
        a(f"    s_mov_b64 exec, {mask(5+c)}")
        a(f"    ds_write2st64_b32 v{t2}, v{vGr+5+c}, v{64+c} offset0:{L_G//256 + c} offset1:{L_RL//256 + c}")
        a(f"    ds_write_b16 v{t0}, v{vGr+c} offset:{128*c}")
    a(f"""
    s_mov_b64 exec, -1
    s_lshl_b32 s{S_C}, s{S_B}, 9
    s_add_u32 s{S_C}, s{S_C}, {L_QT}
    v_add_u32 v{V_AQ}, s{S_C}, v{t1}
    v_lshrrev_b32 v{t4}, 7, v{V_INCA}
    v_mad_u32_u24 v{V_AENT}, v{t4}, s{S_A}, v{V_AENT}""")
    for h in ent_reads(0) + q_reads() + idx_reads(32): a(h)
    a(f"""
    s_add_u32 s{S_C}, s{S_B}, s{S_SLOT}
    s_mul_i32 s{S_C}, s{S_C}, {ST_STRIDE}
    s_add_u32 s{S_C}, s{S_C}, {L_ST}
    v_add_u32 v{V_AS}, s{S_C}, v{t1}
    v_add_u32 v{V_AQ}, 0x200, v{V_AQ}
    ; jump table: slot of the variant, entry inside it (priority steps near the end), exit at lane nt
    v_and_b32 v{t4}, 1, v{L}
    v_mad_u32_u24 v{t4}, v{t4}, 9, v{vBk}
    v_sub_u32 v{t0}, s{S_NT}, v{L}
    v_mov_b32 v{t3}, {ENTRY}""")
    for i, th in enumerate(thr):
        a(f"    v_cmp_eq_u32 {mask(i)}, {th}, v{t0}")
    a(f"    v_cmp_eq_u32 {mask(3)}, 0, v{t0}")
    a(f"    s_movk_i32 s{S_C}, {VAR_SIZE}")
    for i, th in enumerate(thr):
        a(f"    v_cndmask_b32 v{t3}, v{t3}, {8*i}, {mask(i)}")
    a(f"""
    v_mad_u32_u24 v{t4}, v{t4}, s{S_C}, v{t3}
    v_mov_b32 v{t3}, K_exit - K_vbase
    v_cndmask_b32 v{t4}, v{t4}, v{t3}, {mask(3)}
    ds_bpermute_b32 v{V_TAB}, v{t1}, v{t4} offset:4
    s_mov_b32 s{S_K}, 1
    v_readlane_b32 s{S_J}, v{t4}, 0
    s_setprio 3
    s_waitcnt vmcnt(0)""")
    stamp(a, 12)
    for h in tr_reads(0): a(h)
    a(f"""
    s_add_u32 s{S_J}, s{S_J}, s{S_PC}
    s_addc_u32 s{S_J+1}, s{S_PC+1}, 0
    s_waitcnt lgkmcnt(0)""")
    a(small(0, 0))
    if "cheat2" in OPT:
        for m in range(2): a(f"    v_and_b32 v{V_IX+2*m}, 0xfff, v{V_IX+2*m}")
    for h in dma_ops(): a(h)
    a(small(0, 1))
    a(f"    v_lshl_or_b32 v{V_TAB}, v{V_TAB}, 16, v{t4}")
    if optval("late", "4_6"): a("    s_nop 9")
    stamp(a, 13); stamp(a, 14, True)
    a(f"    s_setpc_b64 {sr(S_J,2)}")
    a(f".p2align 6")
    a(f"K_vbase:")
    for s_ in range(2):
        for b in [None] + list(range(8)):
            tile_variant(a, s_, b)
    a(f".p2align 3")
    a(f"K_exit:")
    stamp(a, 15); stamp(a, 16, True)
    flush1(a)
    a("    s_nop 0")
    flush2(a)
    a(f"""
    v_cmp_eq_f32 vcc, 0, v{V_MN}
    s_cbranch_vccz K_join
    ; a denominator left the f32 range: redo this bin on the exact slow path
    v_mov_b32 v65, {L_FLAG}
    ds_write_b32 v65, v65
K_join:
    s_cmp_ge_u32 s{S_WAVE}, 7
    s_cbranch_scc1 K_st2a
    s_lshl_b32 s{S_A}, s{S_N0}, 7
    s_add_u32 s{S_RT}, s{S_OUT}, s{S_A}
    s_addc_u32 s{S_RT+1}, s{S_OUT+1}, 0
    s_lshl_b32 s{S_RT+2}, s{S_NN}, 7
    s_mov_b32 s{S_RT+3}, 0x00020000
    s_movk_i32 s{S_C}, 0x207
    s_mov_b32 s{S_A}, 1
    v_mov_b32 v96, {NLN2:#x}
    v_mov_b32 v98, {L_Z2}
    s_cmp_ge_u32 s{S_WAVE}, 4
    s_cbranch_scc1 K_st2a
    ; ================= output, stage 1: products of the sum rows with w2""")
    for ot in range(4):
        for ks in range(4):
            for h in range(2):
                a(f"    ds_read_b64_tr_b16 {vr(16*ot+4*ks+2*h,2)}, v{E_W2} offset:{2048*ks+256*h+64*(ot>>1)+8*(ot&1)}")
    a(f"""
    s_waitcnt lgkmcnt(0)
    s_barrier""")
    stamp(a, 17)
    for ks in range(4):
        a(f"    ds_read_b128 {vr(64+4*ks,4)}, v{E_SR} offset:{64*ks}")
    def mf(ot, ks):
        d = vr(80 + 4*ot, 4)
        a(f"    v_mfma_f32_16x16x32_bf16 {d}, {vr(16*ot+4*ks,4)}, {vr(64+4*ks,4)}, {'0' if ks == 0 else d}")
    for ks in range(4):
        a(f"    s_waitcnt lgkmcnt({3-ks})")
        mf(0, ks); mf(1, ks)
    for ks in range(4):
        mf(2, ks); mf(3, ks)
    a(f"""
    ds_write_b128 v{E_OW}, v[80:83]
    ds_write_b128 v{E_OW}, v[84:87] offset:16
    s_nop 4
    ds_write_b128 v{E_OW}, v[88:91] offset:128
    ds_write_b128 v{E_OW}, v[92:95] offset:144
    s_waitcnt lgkmcnt(0)
    s_branch K_st2b
K_st2a:
    s_waitcnt lgkmcnt(0)
    s_barrier                                ; B9
K_st2b:
    s_cmp_ge_u32 s{S_WAVE}, 7
    s_barrier
    s_cbranch_scc1 K_fin
    ds_read_b128 v[64:67], v{E_ROW}
    ds_read_b128 v[68:71], v{E_ROW} offset:16
K_rows:
    ds_read_b128 v[72:75], v{E_R2}
    ds_read_b128 v[76:79], v{E_R2} offset:16
    v_cmp_lt_u32 vcc, s{S_A}, v{E_XR}
    v_add_u32 v{E_NX}, {OF_STRIDE}, v{E_NX}
    s_add_u32 s{S_A}, s{S_A}, 1
    s_waitcnt lgkmcnt(0)""")
    for q in range(4):
        a(f"    v_pk_add_f32 {vr(64+2*q,2)}, {vr(64+2*q,2)}, {vr(72+2*q,2)}")
    a(f"""
    v_cndmask_b32 v{E_R2}, v98, v{E_NX}, vcc
    s_cbranch_vccnz K_rows""")
    for q in range(4):
        a(f"    v_pk_fma_f32 {vr(64+2*q,2)}, {vr(64+2*q,2)}, v[96:97], {vr(E_DB[q],2)} op_sel_hi:[1,0,1]")
    for q in range(4):
        a(f"    v_cvt_pk_bf16_f32 v{72+q}, v{64+2*q}, v{65+2*q}")
    a(f"""
    buffer_store_dwordx4 v[72:75], v{E_OUT}, {sr(S_RT,4)}, 0 offen sc1
    ; a non-finite sum makes every output of its node non-finite: redo this bin on the exact slow path
    v_cmp_class_f32 vcc, v64, s{S_C}
    s_cbranch_vccz K_fin
    v_mov_b32 v65, {L_FLAG}
    ds_write_b32 v65, v65
K_fin:
    v_mov_b32 v65, {L_FLAG}
    s_waitcnt lgkmcnt(0)
    s_barrier                                ; B10
    ds_read_b32 v64, v65
    s_waitcnt lgkmcnt(0)
    v_cmp_ne_u32 vcc, 0, v64
    {"" if "novar" in OPT or "nodma" in OPT else "s_cbranch_vccnz K_slow"}""")
    if DIAG:
        a("    s_waitcnt vmcnt(0)")
        stamp(a, 18); stamp(a, 19, True)
        a(f"""
    v_writelane_b32 v{V_STAMP}, s{S_NT}, 21
    s_lshl_b32 s{S_A}, s2, 4
    s_add_u32 s{S_A}, s{S_A}, s{S_WAVE}
    s_lshl_b32 s{S_A}, s{S_A}, 8
    s_add_u32 s{S_A}, s{S_A}, {WS_STAMP}
    v_lshl_add_u32 v64, v{L}, 2, s{S_A}
    s_mov_b64 exec, 0xffffffff
    global_store_dword v64, v{V_STAMP}, {sr(S_WS,2)}
    global_store_dword v64, v{V_TRACE}, {sr(S_WS,2)} offset:128""")
    if optval("clk", ""):
        a(f"""
    s_lshl_b32 s{S_A}, s2, 4
    s_add_u32 s{S_A}, s{S_A}, s{S_WAVE}
    s_cmp_lg_u32 s{S_A}, {16*int(optval("wg", "100"))}
    s_cbranch_scc1 K_end
    s_lshl_b32 s{S_A}, s{S_TAG+1}, 7
    s_lshr_b32 s{S_B}, s{S_TAG}, 25
    s_or_b32 s{S_A}, s{S_A}, s{S_B}
    v_cvt_f32_u32 v64, s98
    v_cvt_f32_u32 v65, s99
    v_rcp_f32 v64, v64
    s_nop 1
    v_mul_f32 v64, v64, v65
    v_subrev_f32 v64, {f32bits(15.0):#x}, v64
    v_mul_f32 v64, {f32bits(float(optval("mul", "100"))):#x}, v64
    v_cvt_u32_f32 v64, v64
    s_nop 1
    v_readfirstlane_b32 s{S_B}, v64
    s_min_u32 s{S_B}, s{S_B}, 20000
    {f's_sub_u32 s{S_B}, {optval("clk", "")}, s{S_B}' if "neg" in OPT else f's_add_u32 s{S_B}, s{S_B}, {optval("clk", "")}'}
K_spin5:
    s_memrealtime s[98:99]
    s_waitcnt lgkmcnt(0)
    s_sub_u32 s98, s98, s{S_A}
    s_cmp_lt_u32 s98, s{S_B}
    s_cbranch_scc1 K_spin5""")
    if "endamp" in OPT:
        a(f"""
    s_waitcnt vmcnt(0)
    s_memrealtime s[100:101]
    s_lshl_b32 s{S_A}, s2, 4
    s_add_u32 s{S_A}, s{S_A}, s{S_WAVE}
    s_cmp_lg_u32 s{S_A}, {16*int(optval("wg", "100"))}
    s_cbranch_scc1 K_end
    s_lshl_b32 s{S_A}, s{S_TAG+1}, 7
    s_lshr_b32 s{S_B}, s{S_TAG}, 25
    s_or_b32 s{S_A}, s{S_A}, s{S_B}
    s_waitcnt lgkmcnt(0)
    s_sub_u32 s{S_B}, s100, s98
    s_min_u32 s{S_B}, s{S_B}, 2000
    s_mul_i32 s{S_B}, s{S_B}, 20
    s_add_u32 s{S_B}, s{S_B}, 3000
K_spin4:
    s_memrealtime s[98:99]
    s_waitcnt lgkmcnt(0)
    s_sub_u32 s98, s98, s{S_A}
    s_cmp_lt_u32 s98, s{S_B}
    s_cbranch_scc1 K_spin4""")
    if optval("fix", "") != "":
        a(f"""
    s_lshl_b32 s{S_A}, s2, 4
    s_add_u32 s{S_A}, s{S_A}, s{S_WAVE}
    s_cmp_lg_u32 s{S_A}, 1600
    s_cbranch_scc1 K_end
    s_lshl_b32 s{S_A}, s{S_TAG+1}, 7
    s_lshr_b32 s{S_B}, s{S_TAG}, 25
    s_or_b32 s{S_A}, s{S_A}, s{S_B}
K_spin3:
    s_memrealtime s[98:99]
    s_waitcnt lgkmcnt(0)
    s_sub_u32 s98, s98, s{S_A}
    s_cmp_lt_u32 s98, {optval("fix", "")}
    s_cbranch_scc1 K_spin3""")
    if optval("amp", "") != "":
        a(f"""
    s_waitcnt vmcnt(0)
    s_cmp_lg_u32 s{S_WAVE}, {optval("aw", "0")}
    s_cbranch_scc1 K_end
    s_lshl_b32 s{S_A}, s{S_TAG+1}, 7
    s_lshr_b32 s{S_B}, s{S_TAG}, 25
    s_or_b32 s{S_A}, s{S_A}, s{S_B}""")
        if optval("amp", "") == "99":
            a("    s_memrealtime s[98:99]\n    s_waitcnt lgkmcnt(0)")
        a(f"""
    s_sub_u32 s{S_B}, s98, s{S_A}
    s_mov_b64 exec, 1
    v_mov_b32 v64, 0
    v_mov_b32 v65, s{S_B}
    v_mov_b32 v66, 1
    {"v_sub_u32 v65, 0x1000, v65" if "min" in OPT else ""}
    global_atomic_{"add" if "avg" in OPT else "umax"} v64, v65, {sr(S_DBG,2)} offset:128 sc1
    s_sub_u32 s{S_C}, s100, s{S_A}
    v_mov_b32 v68, s{S_C}
    {f"global_atomic_add v64, v68, {sr(S_DBG,2)} offset:144 sc1" if optval("sel", "") else ""}
    s_waitcnt vmcnt(0)
    global_atomic_add v67, v64, v66, {sr(S_DBG,2)} offset:136 sc0 sc1
    s_waitcnt vmcnt(0)
    v_readfirstlane_b32 s{S_B}, v67
    s_cmp_lg_u32 s{S_B}, 255
    s_cbranch_scc1 K_end
    global_atomic_add v67, v64, v64, {sr(S_DBG,2)} offset:128 sc0 sc1
    global_atomic_add v68, v64, v64, {sr(S_DBG,2)} offset:144 sc0 sc1
    s_waitcnt vmcnt(0)
    v_readfirstlane_b32 s{S_C}, v68
    s_cmp_lt_u32 s{S_C}, {390*256}
    {"s_cbranch_scc0 K_end" if optval("sel", "") == "lo" else ""}
    {"s_cbranch_scc1 K_end" if optval("sel", "") == "hi" else ""}
    v_readfirstlane_b32 s{S_B}, v67
    s_mul_i32 s{S_B}, s{S_B}, {optval("mul", "5")}
    {f"s_lshr_b32 s{S_B}, s{S_B}, 8" if "avg" in OPT else ""}
    s_min_u32 s{S_B}, s{S_B}, {optval("base", "0") if "neg" in OPT else 200000}
    {f's_sub_u32 s{S_B}, {optval("base", "0")}, s{S_B}' if "neg" in OPT else f's_add_u32 s{S_B}, s{S_B}, {optval("base", "0")}'}
K_spin2:
    s_memrealtime s[98:99]
    s_waitcnt lgkmcnt(0)
    s_sub_u32 s98, s98, s{S_A}
    s_cmp_lt_u32 s98, s{S_B}
    s_cbranch_scc1 K_spin2""")
    a(f"""
K_end:
    s_endpgm
K_slow:
    ; ================= exact path without hand-offs: scan all edges for this bin
    s_setprio 0
    s_mov_b32 s16, s{S_N0}
    s_mov_b32 s17, s{S_NN}
    s_mov_b32 s18, s{S_WAVE}""")
    gen_slow(a, 16, 17, 18, L, NLOG2E, NW=NW)
    a("    s_endpgm")

def main():
    global DIAG
    out = sys.argv[1]
    DIAG = "diag" in sys.argv[2:]
    OPT.update(sys.argv[2:])
    a = Asm()
    a(f"""; Edge-featured MPNN layer: out[n] = sum_(e: dst=n) (silu([x[src],x[dst],e] w1 + b1) w2 + b2)
; @launch grid=(256,1,1) block=({NT_},1,1) lds={L_END}
.amdgcn_target "amdgcn-amd-amdhsa--gfx950"
.text""")
    gen_kernel(a)
    a(f"""
.section .rodata,"a"
.p2align 6
.amdhsa_kernel {KNAME}
  .amdhsa_next_free_vgpr {NVGPR}
  .amdhsa_next_free_sgpr 102
  .amdhsa_accum_offset {NVGPR}
  .amdhsa_group_segment_fixed_size 0
  .amdhsa_kernarg_size 88
  .amdhsa_user_sgpr_count 2
  .amdhsa_user_sgpr_kernarg_segment_ptr 1
  .amdhsa_system_sgpr_workgroup_id_x 1
  .amdhsa_float_denorm_mode_32 3
.end_amdhsa_kernel""")
    open(out, "w").write(a.text())

if __name__ == "__main__":
    main()
```

```python
import sys, struct
from slow import gen_slow

NAME = "standalone__edge_featured_mpnn_mpnn__graph"
KNAME = NAME + "_kernel"
N_NODES = 12500
NB = 49
NW = 12
NT_ = 64 * NW
MAINE = 4 * NT_
XTRA = 53
RSTRIDE = 16640

WS_TAB = 0x420000
WS_P = 0x4C0000
WS_STAMP = 0xA00000

L_Z = 128
L_H2 = 272
L_FLAG = 536
L_NONCE = 544
L_Z2 = 2048
OF_STRIDE = 272
L_SX = 1296
ENT_CAP = 3472
LSZ = 14080
L_ZA = 4096 - 144
L_G = 4096
L_RL = L_G + LSZ
L_ST = L_RL + LSZ
ST_STRIDE = 288
L_IX = L_ST + 20480
L_QT = (L_IX + LSZ // 2 + 255) // 256 * 256 + 512
L_XS = L_QT + 49 * 512
assert LSZ % 256 == 0 and (ENT_CAP + 48) * 4 == LSZ
L_W2 = L_XS + NW * 4096
L_B2 = L_W2 + 16384
L_END = L_B2 + 256
L_RS = L_ST
L_H1 = L_ST + 16640
L_OFF = L_H1 + 1024
L_W1 = L_XS
L_WC = L_XS + 32768
L_PS = L_WC + 512
L_XR = L_W2
PS_STRIDE = 272
assert L_XS % 256 == 0 and L_END <= 163840
assert L_H1 + 3072 <= L_IX and 64 * ST_STRIDE <= 20480 and L_OFF + 1024 < 65536 and L_PS + 56 * PS_STRIDE <= L_W2

def f32bits(x):
    return struct.unpack("<I", struct.pack("<f", x))[0]
LOG2E = 1.4426950408889634
NLOG2E = f32bits(-LOG2E)
NLN2 = f32bits(-0.6931471805599453)
PADREC = 0x3FFF
POLL_MAX = 4000

class Asm:
    def __init__(self):
        self.l = []
    def __call__(self, s=""):
        for x in s.strip("\n").split("\n"):
            if x.strip():
                self.l.append(x.rstrip())
    def text(self):
        return "\n".join(self.l) + "\n"

def vr(a, n=1):
    return f"v{a}" if n == 1 else f"v[{a}:{a+n-1}]"
def sr(a, n=1):
    return f"s{a}" if n == 1 else f"s[{a}:{a+n-1}]"

DIAG = False
OPT = set()
def optval(prefix, default):
    for o in OPT:
        if o.startswith(prefix):
            return o[len(prefix):]
    return default

V_D = 0; V_E = 64; V_A5 = 96; V_B5 = 98; V_ND = 102; V_T = 110; V_R = 114; V_O = 118; V_IX = 132
V_AA = 140; V_AIDX = 141; V_AENT = 142; V_AQ = 143; V_INCA = 144; V_AS = 145; V_MN = 146; V_PSEL = 147
V_PF = 126; V_TAB = 148; V_CNT = 149; V_S = 150; V_P = 151; V_LANE = 154; V_TID = 155
V_J = 156; V_HH = 157
E_W2 = 147; E_SR = 164; E_OW = 165
E_ROW = 122; E_XR = 123; E_NX = 124; E_R2 = 125; E_OUT = 127; E_DB = [128, 130, 150, 152]
V_STAMP = 167; V_TRACE = 166
NVGPR = 168
S_X = 4; S_E = 6; S_SRC = 8; S_DST = 10; S_W1 = 12; S_B1 = 14; S_W2 = 16; S_B2 = 18; S_OUT = 20; S_DBG = 22; S_WS = 24
S_BIN = 26; S_N0 = 27; S_NN = 28; S_WAVE = 29; S_MODE = 30; S_K = 31; S_PC = 32; S_J = 34
S_RX = 36; S_RT = 40; S_RR = 44; S_P = 48; S_JJ = 52
S_T0 = 56; S_NT = 57; S_TT = 58; S_SLOT = 59; S_A = 60; S_B = 61; S_C = 62; S_D = 63; S_TAG = 64
S_M = 66
def mask(k): return sr(S_M + 2*k, 2)

def stamp(a, k, real=False):
    if optval("clk", ""):
        if k == 13: a("    s_memrealtime s[98:99]\n    s_memtime s[100:101]\n    s_waitcnt lgkmcnt(0)\n    s_mov_b32 s99, s100")
        if k == 15: a("    s_memrealtime s[96:97]\n    s_memtime s[100:101]\n    s_waitcnt lgkmcnt(0)\n    s_sub_u32 s98, s96, s98\n    s_sub_u32 s99, s100, s99")
        return
    if "endamp" in OPT:
        if k == 17: a("    s_memrealtime s[98:99]\n    s_waitcnt lgkmcnt(0)")
        return
    if optval("amp", "") != "":
        if int(optval("amp", "")) == k:
            a("    s_memrealtime s[98:99]\n    s_waitcnt lgkmcnt(0)")
        if k == 6 and optval("sel", ""):
            a("    s_memrealtime s[100:101]\n    s_waitcnt lgkmcnt(0)")
        return
    if not DIAG:
        return
    a(f"    {'s_memrealtime' if real else 's_memtime'} s[100:101]")
    a(f"    s_waitcnt lgkmcnt(0)")
    a(f"    v_writelane_b32 v{V_STAMP}, s100, {k}")

def wave_scan(a, v):
    for sh in (1, 2, 4, 8):
        a(f"    s_nop 1")
        a(f"    v_add_u32_dpp v{v}, v{v}, v{v} row_shr:{sh} row_mask:0xf bank_mask:0xf")
    a(f"    s_nop 1")
    a(f"    v_add_u32_dpp v{v}, v{v}, v{v} row_bcast:15 row_mask:0xa bank_mask:0xf")
    a(f"    s_nop 1")
    a(f"    v_add_u32_dpp v{v}, v{v}, v{v} row_bcast:31 row_mask:0xc bank_mask:0xf")

SD = "dst_sel:DWORD dst_unused:UNUSED_PAD"

def dreg(s, c): return V_D + 32*s + 16*c
def small(s, c):
    d = vr(dreg(s, c), 16)
    return f"    v_mfma_f32_32x32x8_bf16 {d}, {vr(V_A5,2)}, {vr(V_B5+2*c,2)}, {d}"
def tr_reads(s):
    return [f"    ds_read_b64_tr_b16 {vr(dreg(s,c)+2*u,2)}, v{V_AA} offset:{512*u+128*c}" for u in range(8) for c in range(2)]
def ent_reads(off):
    return [f"    ds_read_b32 v{V_A5}, v{V_AENT} offset:{off}",
            f"    ds_read_b32 v{V_A5+1}, v{V_AENT} offset:{off + L_RL - L_G}"]
def q_reads():
    return [f"    ds_read_b32 v{V_B5+2*c}, v{V_AQ} offset:{256*c}" for c in range(2)]
def idx_reads(off):
    return [f"    ds_read_u16 v{V_IX+2*m}, v{V_AIDX} offset:{off + 8*m}" for m in range(4)]
def dma_ops():
    if "nodma" in OPT: return []
    return [f"    buffer_load_dwordx4 {vr(V_IX+2*m,2)}, {sr(S_RX,4)}, s{S_P+m} idxen offen offset:{1024*m} sc1 lds" for m in range(4)]

def flush1(a):
    for c in range(2):
        D = V_ND + 4*c + 2
        a(f"    v_rcp_f32 v{V_R+2*c}, v{D}")
        a(f"    v_rcp_f32 v{V_R+2*c+1}, v{D+1}")
def flush2(a):
    for c in range(2):
        a(f"    v_pk_mul_f32 {vr(V_O+2*c,2)}, {vr(V_ND+4*c,2)}, {vr(V_R+2*c,2)}")
    for c in range(2):
        a(f"    v_min3_f32 v{V_MN}, v{V_MN}, v{V_R+2*c}, v{V_R+2*c+1}")
    for c in range(2):
        a(f"    v_add_f32 v{V_O+2*c}, v{V_O+2*c}, v{V_O+2*c+1}")
    a(f"    v_cvt_pk_bf16_f32 v{V_O}, v{V_O}, v{V_O+2}")
    a(f"    ds_write_b32 v{V_AS}, v{V_O}")

def y_phase(a, s, b, us=range(8), nsrc=None):
    if nsrc is None: nsrc = [V_ND + 4*c for c in range(2)]
    a(".p2align 3")
    for u in us:
        if u == b:
            flush1(a)
            for c in range(2):
                a(f"    v_pk_add_f32 {vr(V_ND+4*c+2,2)}, {vr(V_E+16*c+2*u,2)}, 1.0 op_sel_hi:[1,0]")
            flush2(a)
            for c in range(2):
                p = dreg(s, c) + 2*u
                if u == 7:
                    a(f"    v_pk_mov_b32 {vr(V_ND+4*c,2)}, {vr(p,2)}, {vr(p,2)} op_sel:[0,1]")
                else:
                    nsrc[c] = p
            continue
        for c in range(2):
            a(f"    v_pk_fma_f32 {vr(V_T+2*c,2)}, {vr(dreg(s,c)+2*u,2)}, {vr(V_ND+4*c+2,2)}, {vr(nsrc[c],2)}")
        for c in range(2):
            D = V_ND + 4*c + 2
            a(f"    v_pk_fma_f32 {vr(D,2)}, {vr(D,2)}, {vr(V_E+16*c+2*u,2)}, {vr(D,2)}")
        for c in range(2):
            a(f"    v_pk_fma_f32 {vr(V_ND+4*c,2)}, {vr(nsrc[c],2)}, {vr(V_E+16*c+2*u,2)}, {vr(V_T+2*c,2)}")
            nsrc[c] = V_ND + 4*c

VAR_SIZE = 960
ENTRY = 24
def tile_variant(a, s, b):
    name = f"{s}{'N' if b is None else b}"
    vi = 9*s + (0 if b is None else b + 1)
    a(f".org K_vbase + {VAR_SIZE*vi}, 0")
    a(f"    s_setprio 2\n    s_branch K_var{name}\n    s_setprio 1\n    s_branch K_var{name}\n    s_setprio 0")
    a(f"    s_nop 0")
    a(f"K_var{name}:")
    bnd = b is not None
    if "trace" in OPT and s == 0:
        a(f"    s_memtime s[100:101]\n    s_mov_b32 s{S_A}, m0\n    s_mov_b32 m0, s{S_K}\n    s_waitcnt lgkmcnt(0)")
        a(f"    v_writelane_b32 v{V_TRACE}, s100, m0\n    s_mov_b32 m0, s{S_A}")
    es = [f"    v_exp_f32 v{V_E+16*c+2*u+h}, v{dreg(s,c)+2*u+h}" for u in range(8) for c in range(2) for h in range(2)]
    head = ent_reads(64 + 64*s) + (q_reads() if bnd else []) + tr_reads(s ^ 1) + idx_reads(64 + 32*s)
    plain = [f"    v_readlane_b32 s{S_JJ}, v{V_TAB}, s{S_K}"] if s == 0 else \
            [f"    v_add_u32 v{V_AENT}, v{V_INCA}, v{V_AENT}", f"    v_add_u32 v{V_AIDX}, 64, v{V_AIDX}"]
    if bnd: plain.append(f"    v_add_u32 v{V_AQ}, 0x200, v{V_AQ}")
    jump = [f"    s_and_b32 s{S_J}, s{S_JJ}, 0xffff", f"    s_add_u32 s{S_K}, s{S_K}, 2"] if s == 0 else [f"    s_lshr_b32 s{S_J}, s{S_JJ}, 16"]
    jump += [f"    s_add_u32 s{S_J}, s{S_J}, s{S_PC}", f"    s_addc_u32 s{S_J+1}, s{S_PC+1}, 0"]
    late = optval("late", "4_6")
    if late:
        ua, ub = [int(x) for x in late.split("_")]
        for e in es[:4*ub]: a(e)
        nsrc = [V_ND + 4*c for c in range(2)]
        y_phase(a, s, b, range(0, ua), nsrc)
        a("    s_waitcnt vmcnt(0)")
        for h in head: a(h)
        y_phase(a, s, b, range(ua, ub), nsrc)
        a(f"    s_waitcnt lgkmcnt(0)")
        for h in dma_ops(): a(h)
        a(small(s ^ 1, 0))
        for e in es[4*ub:4*ub+4]: a(e)
        a(small(s ^ 1, 1))
        for e in es[4*ub+4:]: a(e)
        for p_ in plain + jump: a(p_)
        y_phase(a, s, b, range(ub, 8), nsrc)
    else:
        n1 = int(optval("n1_", "16"))
        a("    s_waitcnt vmcnt(0)")
        for h in head: a(h)
        for e in es[:n1-2]: a(e)
        for p_ in plain: a(p_)
        for e in es[n1-2:n1]: a(e)
        a(f"    s_waitcnt lgkmcnt(0)")
        for h in dma_ops(): a(h)
        a(small(s ^ 1, 0))
        for e in es[n1:n1+4]: a(e)
        a(small(s ^ 1, 1))
        for e in es[n1+4:]: a(e)
        for p_ in jump: a(p_)
        y_phase(a, s, b)
    if bnd:
        a(f"    v_add_u32 v{V_AS}, {ST_STRIDE}, v{V_AS}")
    a(f"    s_setpc_b64 {sr(S_J,2)}")

def gen_kernel(a):
    L = V_LANE; T = V_TID; J = V_J; HH = V_HH
    t0, t1, t2, t3, t4, t5 = 158, 159, 160, 161, 162, 163
    step = NT_ * 16
    vDst = 0
    vSrc = 8
    vEa = 14
    tc = 17
    vTg = 18
    vBa = 20
    vRk = 26
    vWp = 31
    vOf = 32
    vC8 = 37; vWa = 38; vTa = 39
    vX = 40
    vWf = 56
    vPad = 56
    vAc = 72
    vTb = 88
    vXa = 88
    vB1 = 96
    vCl = 120
    v4k = 125
    vPf = 126
    vZ = 128
    vG4 = 164; vSb = 165
    vS = V_S; vP = V_P
    a(f"""
.p2align 8
.globl {KNAME}
.type {KNAME},@function
{KNAME}:
    s_cmp_ge_u32 s2, 256
    s_cbranch_scc1 K_end
    s_load_dwordx8 s[4:11], s[0:1], 0
    s_load_dwordx8 s[12:19], s[0:1], 32      ; w1, b1, w2, b2
    s_load_dwordx4 s[20:23], s[0:1], 64
    s_load_dwordx2 s[24:25], s[0:1], 80      ; ws
    s_memrealtime {sr(S_TAG,2)}
    v_lshrrev_b32 v1, 6, v0
    v_mov_b32 v{T}, v0
    v_readfirstlane_b32 s{S_WAVE}, v1
    v_and_b32 v{L}, 63, v0
    s_mul_i32 s3, s2, {MAINE*4}
    v_lshl_add_u32 v{t0}, v0, 4, s3          ; byte offset into src/dst
    v_lshrrev_b32 v{t1}, 1, v{t0}
    s_and_b32 s{S_BIN}, s2, 7
    s_lshl_b32 s{S_BIN}, s{S_BIN}, 5
    s_lshr_b32 s3, s2, 3
    s_add_u32 s{S_BIN}, s{S_BIN}, s3
    s_mul_i32 s{S_N0}, s{S_BIN}, {NB}
    s_sub_u32 s{S_NN}, {N_NODES}, s{S_N0}
    s_min_u32 s{S_NN}, s{S_NN}, {NB}
    v_and_b32 v{J}, 31, v0
    v_bfe_u32 v{HH}, v0, 5, 1
    s_mov_b32 s{S_MODE}, 0
    v_mov_b32 v{vZ}, 0
    v_mov_b32 v{vZ+1}, 0
    v_mov_b32 v{vZ+2}, 0
    v_mov_b32 v{vZ+3}, 0
    v_lshlrev_b32 v{t2}, 2, v0""")
    if DIAG:
        a(f"    v_mov_b32 v{V_STAMP}, 0\n    v_mov_b32 v{V_TRACE}, 0")
        stamp(a, 0, True); stamp(a, 1)
    a(f"""
    s_waitcnt lgkmcnt(0)
    global_load_dwordx4 {vr(vDst,4)}, v{t0}, {sr(S_DST,2)}
    {f"s_add_u32 s98, s{S_TAG}, 200" if optval("amp", "") == "1" else ""}
    ds_write_b32 v{t2}, v{vZ} offset:{L_H1}
    s_cmp_lg_u32 s{S_WAVE}, 11
    s_cbranch_scc1 K_ld1
    ; wave 11 also takes the 53 extra edges of this chunk
    s_mul_i32 s{S_A}, s2, {XTRA}
    s_add_u32 s{S_A}, s{S_A}, {256*MAINE}
    v_min_u32 v{t5}, {XTRA-1}, v{L}
    v_add_lshl_u32 v{t5}, v{t5}, s{S_A}, 2
    v_lshrrev_b32 v{t4}, 1, v{t5}
    global_load_dword v{vDst+4}, v{t5}, {sr(S_DST,2)}
    global_load_dword v{vSrc+4}, v{t5}, {sr(S_SRC,2)}
    global_load_ushort v{vEa+2}, v{t4}, {sr(S_E,2)}
K_ld1:""")
    if optval("b1_", "") == "first":
        a(f"""
    s_cmp_lg_u32 s{S_WAVE}, 10
    s_cbranch_scc1 K_ld0
    s_mov_b32 m0, {L_WC + 256}
    v_lshlrev_b32 v{t3}, 2, v{L}
    global_load_lds_dword v{t3}, {sr(S_B1,2)}
K_ld0:""")
    a(f"""
    ; the first workgroups pull the rest of the code into their die's L2
    s_cmp_ge_u32 s2, 32
    s_cbranch_scc1 K_ldJ
    s_sub_u32 s{S_A}, s{S_WAVE}, 5
    s_cmp_ge_u32 s{S_A}, 3
    s_cbranch_scc1 K_ld2
    s_lshl_b32 s{S_A}, s{S_A}, 13
    v_lshl_add_u32 v{t5}, v{L}, 7, s{S_A}
    s_getpc_b64 {sr(S_J,2)}
    global_load_dword v{t4}, v{t5}, {sr(S_J,2)} offset:1024
K_ld2:
    ; workgroup 0, wave 9 publishes the hand-off tag of this launch (39 clock bits, never zero)
    s_lshl_b32 s{S_A}, s2, 4
    s_add_u32 s{S_A}, s{S_A}, s{S_WAVE}
    s_cmp_lg_u32 s{S_A}, 9
    s_cbranch_scc1 K_ldJ
    s_lshl_b32 s{S_A}, s{S_TAG}, 25
    s_or_b32 s{S_A}, s{S_A}, 1
    s_lshr_b64 {sr(S_TAG,2)}, {sr(S_TAG,2)}, 7
    v_mov_b32 v{t4}, s{S_A}
    v_mov_b32 v{t4+1}, s{S_TAG}
    s_mov_b64 exec, 1
    global_store_dwordx2 v{vZ}, {vr(t4,2)}, {sr(S_DBG,2)} sc1
    s_mov_b64 exec, -1
K_ldJ:
    s_lshl_b32 s{S_A}, s{S_WAVE}, 11
    s_cmp_ge_u32 s{S_WAVE}, 8
    s_cbranch_scc1 K_stX
    ; waves 0..7 stage w1 rows 0..63 (64-byte blocks of a row swapped by row&3)
    s_add_u32 m0, s{S_A}, {L_W1}
    v_lshrrev_b32 v{t3}, 2, v{L}
    v_and_b32 v{t3}, 12, v{t3}
    v_xor_b32 v{t3}, v{t3}, v{L}
    v_lshl_add_u32 v{t5}, v{t3}, 4, s{S_A}
    global_load_lds_dwordx4 v{t5}, {sr(S_W1,2)}
    global_load_lds_dwordx4 v{t5}, {sr(S_W1,2)} offset:1024
    s_branch K_stJ
K_stX:
    ; waves 8..11 stage the x rows of this bin (16-byte pieces swizzled inside each row)
    s_mov_b32 s{S_RX}, s4
    s_mov_b32 s{S_RX+1}, s5
    s_mov_b32 s{S_RX+2}, {N_NODES*128}
    s_mov_b32 s{S_RX+3}, 0x00020000
    s_add_u32 m0, s{S_A}, {L_XR - 16384}
    s_lshl_b32 s{S_B}, s{S_N0}, 7
    s_add_u32 s{S_A}, s{S_A}, s{S_B}
    s_sub_u32 s{S_A}, s{S_A}, 16384
    v_lshrrev_b32 v{t3}, 4, v{L}
    v_xor_b32 v{t3}, v{t3}, v{L}
    v_lshl_add_u32 v{t3}, v{t3}, 4, s{S_A}
    v_xor_b32 v{t5}, 64, v{t3}
    buffer_load_dwordx4 v{t3}, {sr(S_RX,4)}, 0 offen lds
    buffer_load_dwordx4 v{t5}, {sr(S_RX,4)}, 0 offen offset:1024 lds
K_stJ:
    s_waitcnt lgkmcnt(0)
    s_barrier
    v_mov_b32 v{vPad}, {PADREC}
    v_mov_b32 v{vPad+1}, {PADREC}
    v_mov_b32 v{vPad+2}, {PADREC}
    v_mov_b32 v{vPad+3}, {PADREC}
    v_lshlrev_b32 v{t2}, 4, v{T}
    ds_write_b128 v{t2}, {vr(vPad,4)} offset:{L_RL}
    s_cmp_ge_u32 s{S_WAVE}, 4
    s_cbranch_scc1 K_in1
    ds_write_b128 v{t2}, {vr(vZ,4)}
    ds_write_b128 v{t2}, {vr(vPad,4)} offset:{L_ST - 4096}
K_in1:
    s_cmp_lg_u32 s{S_WAVE}, 4
    s_cbranch_scc1 K_in2
    v_lshlrev_b32 v{t3}, 2, v{L}
    ds_write_b32 v{t3}, v{vZ} offset:{L_RL - 256}
K_in2:
    global_load_dwordx4 {vr(vSrc,4)}, v{t0}, {sr(S_SRC,2)}
    global_load_dwordx2 {vr(vEa,2)}, v{t1}, {sr(S_E,2)}
""")
    w1late = "w1late" in OPT
    ST2 = f"""
    s_cmp_ge_u32 s{S_WAVE}, 8
    s_cbranch_scc1 K_st2
    s_add_u32 m0, m0, 16384
    v_add_u32 v6, 0x4000, v6
    global_load_lds_dwordx4 v6, {sr(S_W1,2)}
    global_load_lds_dwordx4 v6, {sr(S_W1,2)} offset:1024
    s_branch K_st3
K_st2:
    s_mov_b32 m0, {L_WC}
    v_lshlrev_b32 v{t3}, 2, v{L}
    v_add_u32 v7, 0x8000, v{t3}
    global_load_lds_dword v7, {sr(S_W1,2)}
    {f"s_mov_b32 m0, {L_WC + 256}" if not optval("b1_", "") else ""}
    s_nop 0
    {f"global_load_lds_dword v{t3}, {sr(S_B1,2)}" if not optval("b1_", "") else f"global_load_lds_dword v7, {sr(S_W1,2)}"}
K_st3:"""
    a(f"    v_mov_b32 v6, v{t5}")
    if not w1late: a(ST2)
    tl = optval("tlb", "")
    tk = 1 if tl else 0
    if tl == "1":
        a(f"""
    s_and_b32 s{S_K}, s{S_WAVE}, 3
    s_mul_i32 s{S_J}, s{S_K}, {127*RSTRIDE}
    s_add_u32 s{S_J}, s{S_J}, {RSTRIDE - 4}
    s_cmp_eq_u32 s{S_K}, 3
    s_cselect_b32 s{S_J}, {WS_P + N_NODES*256 + 4096}, s{S_J}
    v_mov_b32 v5, s{S_J}
    global_load_dword v5, v5, {sr(S_WS,2)}
""")
    a(f"""
    v_and_b32 v{vC8}, 3, v{L}
    v_lshlrev_b32 v{vC8}, 3, v{vC8}
    v_and_b32 v{t1}, 16, v{L}
    v_lshl_add_u32 v{vC8}, v{t1}, 1, v{vC8}  ; 8c + 32(g&1)
    s_lshr_b32 s{S_D}, s{S_WAVE}, 1          ; ct
    v_bfe_u32 v{t0}, v{L}, 2, 2
    v_xor_b32 v{t3}, s{S_D}, v{t0}
    v_lshlrev_b32 v{t3}, 6, v{t3}
    v_lshl_add_u32 v{t0}, v{HH}, 3, v{t0}
    v_lshl_add_u32 v{t0}, v{t0}, 8, v{t3}
    v_add_u32 v{vWa}, {L_W1}, v{t0}          ; k row 8*hh + r, column block ct^r
    v_and_b32 v{vWp}, 1, v{L}
    v_lshl_add_u32 v{vWp}, v{vWp}, 5, v{vWa}
    v_and_b32 v{t3}, 16, v{L}
    v_add_u32 v{vWp}, v{vWp}, v{t3}
    v_and_b32 v{t3}, 2, v{L}
    v_lshl_add_u32 v{vWp}, v{t3}, 2, v{vWp}  ; + 16(c&1) + 4(2(g&1) + (c>>1)) columns
    s_and_b32 s{S_A}, s{S_WAVE}, 1
    s_lshl_b32 s{S_A}, s{S_A}, 12
    s_add_u32 s{S_A}, s{S_A}, {L_XR}
    v_bfe_u32 v{t3}, v{L}, 1, 3
    v_xor_b32 v{t3}, v{t3}, v{HH}
    v_lshl_add_u32 v{t3}, v{t3}, 4, s{S_A}
    v_lshl_add_u32 v{vXa}, v{J}, 7, v{t3}
    v_xor_b32 v{vXa+1}, 32, v{vXa}
    v_xor_b32 v{vXa+2}, 64, v{vXa}
    v_xor_b32 v{vXa+3}, 0x60, v{vXa}
    s_mov_b32 s{S_A}, 21400
    s_mov_b32 s{S_B}, -{NB}
    s_mov_b32 s{S_C}, 0xffff0000
    v_mov_b32 v{t5}, 0x10004
    v_mov_b32 v{vBa+4}, 0
    v_mov_b32 v{v4k}, 0x4000
    s_waitcnt vmcnt({(7 if tl == "1" else 6) - (2 if w1late else 0)})""")
    if tl == "2":
        a(f"""
    s_and_b32 s{S_K}, s{S_WAVE}, 3
    s_mul_i32 s{S_J}, s{S_K}, {127*RSTRIDE}
    s_add_u32 s{S_J}, s{S_J}, {RSTRIDE - 4}
    s_cmp_eq_u32 s{S_K}, 3
    s_cselect_b32 s{S_J}, {WS_P + N_NODES*256 + 4096}, s{S_J}
    v_mov_b32 v5, s{S_J}
    global_load_dword v5, v5, {sr(S_WS,2)}
""")
    a(f"""
    s_cmp_lg_u32 s{S_WAVE}, 11
    s_cbranch_scc1 K_wJ
    s_bfm_b64 exec, {XTRA}, 0""")
    assert L_ST - L_RL <= step + 4096
    def binops(cols):
        for i in cols: a(f"    v_mul_u32_u24 v{vBa+i}, s{S_A}, v{vDst+i}")
        for i in cols: a(f"    v_lshrrev_b32 v{vBa+i}, 18, v{vBa+i}")
        for i in cols:
            a(f"    v_and_b32 v{vBa+i}, 0x3fc, v{vBa+i}")
            a(f"    ds_add_rtn_u32 v{vRk+i}, v{vBa+i}, v{t5} offset:{L_H1}")
        for i in cols: a(f"    v_lshlrev_b32 v{vDst+i}, 2, v{vDst+i}")
        for i in cols: a(f"    v_mad_i32_i24 v{vDst+i}, v{vBa+i}, s{S_B}, v{vDst+i}")
        for i in cols: a(f"    v_bfe_u32 v{vCl+i}, v{vDst+i}, 2, 1")
    binops([4])
    a(f"""
    s_mov_b64 exec, -1
K_wJ:""")
    stamp(a, 2)
    binops(range(4))
    a(f"""
    s_waitcnt vmcnt({(2 if w1late else 4)+tk}) lgkmcnt(0)
    s_barrier""")
    stamp(a, 3)
    a(f"""
    s_cmp_eq_u32 s{S_WAVE}, 8
    s_cbranch_scc1 K_scan1
    s_cmp_gt_u32 s{S_WAVE}, 8
    s_cbranch_scc1 K_notP
    ; ---- waves 0..7: P^T tile = -log2(e) * (x w1[0:64])^T""")
    for s_ in range(4):
        a(f"    ds_read_b128 {vr(vX+4*s_,4)}, v{vXa+s_}")
        for h in range(2):
            a(f"    ds_read_b64_tr_b16 {vr(vWf+4*s_+2*h,2)}, v{vWp} offset:{4096*s_+1024*h}")
    for s_ in range(4):
        a(f"    s_waitcnt lgkmcnt({9-3*s_})")
        cin = "0" if s_ == 0 else vr(vAc, 16)
        a(f"    v_mfma_f32_32x32x16_bf16 {vr(vAc,16)}, {vr(vWf+4*s_,4)}, {vr(vX+4*s_,4)}, {cin}")
    a(f"""
    s_and_b32 s{S_B}, s{S_WAVE}, 1
    s_mul_i32 s{S_A}, s{S_B}, {32*PS_STRIDE}
    s_lshl_b32 s{S_B}, s{S_D}, 6
    s_add_u32 s{S_A}, s{S_A}, s{S_B}
    s_add_u32 s{S_A}, s{S_A}, {L_PS}
    v_mul_u32_u24 v{t3}, {PS_STRIDE}, v{J}
    v_lshl_add_u32 v{t3}, v{HH}, 5, v{t3}
    v_add_u32 v{t3}, s{S_A}, v{t3}
    v_mov_b32 v{t4}, {NLOG2E:#x}
    v_cmp_gt_u32 vcc, {L_PS + 56*PS_STRIDE}, v{t3}
    s_nop 1""")
    for q in range(8):
        a(f"    v_pk_mul_f32 {vr(vAc+2*q,2)}, {vr(vAc+2*q,2)}, {vr(t4,2)} op_sel_hi:[1,0]")
    for q in range(8):
        a(f"    v_cvt_pk_bf16_f32 v{vAc+q}, v{vAc+2*q}, v{vAc+2*q+1}")
    a(f"""
    s_mov_b64 exec, vcc
    ds_write_b128 v{t3}, {vr(vAc,4)}
    ds_write_b128 v{t3}, {vr(vAc+4,4)} offset:16
    s_mov_b64 exec, -1
    s_branch K_b3
K_notP:
    v_lshlrev_b32 v{t1}, 4, v{L}
    v_add_u32 v{t4}, {L_PS + 48*PS_STRIDE}, v{t1}
    v_add_u32 v{t1}, {48*256}, v{t1}
    s_branch K_b3
K_scan1:
    ; ---- wave 8: segment offsets; a segment is n records (4 bytes) followed by n node bytes, padded to 4
    s_setprio 2
    global_load_dwordx2 {vr(vTg,2)}, v{vZ}, {sr(S_DBG,2)}
    v_lshlrev_b32 v{t0}, 4, v{L}
    ds_read_b128 v[56:59], v{t0} offset:{L_H1}
    s_waitcnt lgkmcnt(0)""")
    for i in range(4):
        a(f"    v_lshrrev_b32 v{60+i}, 16, v{56+i}")
    for i in range(4):
        a(f"    v_mad_u32_u24 v{64+i}, v{60+i}, 5, 3")
    for i in range(4):
        a(f"    v_and_b32 v{64+i}, -4, v{64+i}")
    a(f"""
    v_add_u32 v65, v64, v65
    v_add_u32 v66, v65, v66
    v_add_u32 v67, v66, v67
    v_mov_b32 v68, v67""")
    wave_scan(a, 68)
    a(f"""
    v_sub_u32 v68, v68, v67
    v_add_u32 v69, v68, v64
    v_add_u32 v70, v68, v65
    v_add_u32 v71, v68, v66
    s_mov_b32 s{S_A}, 0x10001""")
    for i in range(4):
        a(f"    v_mul_u32_u24 v{64+i}, s{S_A}, v{68+i}")
    for i in range(4):
        a(f"    v_lshl_add_u32 v{64+i}, v{56+i}, 16, v{64+i}")
    a(f"""
    ds_write_b128 v{t0}, v[64:67] offset:{L_OFF}
    s_setprio 0
K_b3:
    v_lshrrev_b32 v{t0}, 4, v{T}
    v_lshl_add_u32 v{t0}, v{t0}, 4, v{t2}
    v_add_u32 v{t0}, {L_PS}, v{t0}
    s_lshl_b32 s{S_A}, s{S_N0}, 8
    s_add_u32 s{S_A}, s{S_A}, {WS_P}
    s_add_u32 s{S_RT}, s{S_WS}, s{S_A}
    s_addc_u32 s{S_RT+1}, s{S_WS+1}, 0
    s_lshl_b32 s{S_RT+2}, s{S_NN}, 8
    s_mov_b32 s{S_RT+3}, 0x00020000
    s_waitcnt lgkmcnt(0)
    s_barrier                                ; B3: segment offsets, P staged""")
    stamp(a, 4)
    a(f"""
    s_cmp_lt_u32 s{S_WAVE}, 10
    s_cbranch_scc1 K_nx0
    ds_read_b32 v{vOf+4}, v{vBa+4} offset:{L_OFF}
    ds_read_b128 v[76:79], v{t4}
K_nx0:
    ds_read_b128 v[72:75], v{t0}""")
    for i in range(4):
        a(f"    ds_read_b32 v{vOf+i}, v{vBa+i} offset:{L_OFF}")
    a(f"""
    s_waitcnt lgkmcnt(4)
    buffer_store_dwordx4 v[72:75], v{t2}, {sr(S_RT,4)}, 0 offen sc1""")
    stamp(a, 24)
    a(f"""
    s_waitcnt vmcnt({(1 if w1late else 3)+tk})""")
    stamp(a, 22)
    a(f"""
    v_lshl_or_b32 v{vSrc}, v{v4k}, v{vCl}, v{vSrc}
    v_lshl_or_b32 v{vSrc+1}, v{v4k}, v{vCl+1}, v{vSrc+1}
    v_lshl_or_b32 v{vSrc+2}, v{v4k}, v{vCl+2}, v{vSrc+2}
    v_lshl_or_b32 v{vSrc+3}, v{v4k}, v{vCl+3}, v{vSrc+3}
    v_lshl_or_b32 v{vSrc}, v{vEa}, 16, v{vSrc}
    v_and_or_b32 v{vSrc+1}, v{vEa}, s{S_C}, v{vSrc+1}
    v_lshl_or_b32 v{vSrc+2}, v{vEa+1}, 16, v{vSrc+2}
    v_and_or_b32 v{vSrc+3}, v{vEa+1}, s{S_C}, v{vSrc+3}
    s_waitcnt lgkmcnt(0)""")
    def scatter(i):
        a(f"    v_add_u32_sdwa v{vBa+i}, v{vOf+i}, v{vRk+i} {SD} src0_sel:WORD_0 src1_sel:WORD_0")
        a(f"    v_add_u32_sdwa v{vOf+i}, v{vOf+i}, v{vRk+i} {SD} src0_sel:WORD_1 src1_sel:WORD_1")
        a(f"    ds_write_b32 v{vBa+i}, v{vSrc+i} offset:{L_RS}")
        a(f"    ds_write_b8 v{vOf+i}, v{vDst+i} offset:{L_RS}")
    for i in range(4): scatter(i)
    a(f"""
    s_cmp_lt_u32 s{S_WAVE}, 10
    s_cbranch_scc1 K_nx2
    s_cmp_eq_u32 s{S_WAVE}, 11
    s_cbranch_scc1 K_x2
    buffer_store_dwordx4 v[76:79], v{t1}, {sr(S_RT,4)}, 0 offen sc1""")
    if optval("b1_", "") == "late":
        a(f"""
    s_mov_b32 m0, {L_WC + 256}
    v_lshlrev_b32 v{t3}, 2, v{L}
    global_load_lds_dword v{t3}, {sr(S_B1,2)}
""")
    a(f"""
    s_branch K_nx2
K_x2:
    s_bfm_b64 exec, {XTRA}, 0
    v_lshl_or_b32 v{vSrc+4}, v{v4k}, v{vCl+4}, v{vSrc+4}
    v_lshl_or_b32 v{vSrc+4}, v{vEa+2}, 16, v{vSrc+4}""")
    scatter(4)
    a(f"""
    s_mov_b64 exec, -1
K_nx2:""")
    if w1late: a(ST2)
    a(f"""
    s_mul_i32 s{S_A}, s2, {RSTRIDE}
    s_add_u32 s{S_RR}, s{S_WS}, s{S_A}
    s_addc_u32 s{S_RR+1}, s{S_WS+1}, 0
    s_mov_b32 s{S_RR+2}, 16512
    s_mov_b32 s{S_RR+3}, 0x00020000
    v_add_u32 v{t3}, {step}, v{t2}
    s_waitcnt lgkmcnt(0)""")
    stamp(a, 23)
    a(f"""
    s_barrier""")
    stamp(a, 5)
    a(f"""
    ds_read_b128 v[0:3], v{t2} offset:{L_RS}
    s_cmp_ge_u32 s{S_WAVE}, 5
    s_cbranch_scc1 K_co1
    ds_read_b128 v[8:11], v{t2} offset:{L_RS + step}
    s_waitcnt lgkmcnt(0)
    buffer_store_dwordx4 v[8:11], v{t3}, {sr(S_RR,4)}, 0 offen sc1
K_co1:
    s_waitcnt lgkmcnt(0)
    buffer_store_dwordx4 v[0:3], v{t2}, {sr(S_RR,4)}, 0 offen sc1
    ; ---- lane constants, while the stores drain
    ; gather: lane -> row l>>4 of 4, piece l&15; odd rows have their 64-byte blocks swapped pairwise
    v_and_b32 v{tc}, 15, v{L}
    v_bfe_u32 v{t3}, v{L}, 4, 1
    v_lshlrev_b32 v{t3}, 2, v{t3}
    v_xor_b32 v{tc}, v{tc}, v{t3}
    v_lshlrev_b32 v{V_IX+1}, 4, v{tc}
    v_mov_b32 v{V_IX+3}, v{V_IX+1}
    v_mov_b32 v{V_IX+5}, v{V_IX+1}
    v_mov_b32 v{V_IX+7}, v{V_IX+1}
    v_lshrrev_b32 v{V_AIDX}, 4, v{L}
    v_lshlrev_b32 v{V_AIDX}, 1, v{V_AIDX}
    v_bfe_u32 v{tc}, v{L}, 3, 1
    v_xor_b32 v{t3}, v{tc}, v{HH}
    v_lshl_add_u32 v{t3}, v{t3}, 6, v{vC8}
    v_lshl_add_u32 v{tc}, v{tc}, 8, v{t3}
    s_lshl_b32 s{S_B}, s{S_WAVE}, 12
    s_add_u32 s{S_B}, s{S_B}, {L_XS}
    v_add_u32 v{tc}, s{S_B}, v{tc}
    v_bfe_u32 v{t4}, v{L}, 2, 1
    v_cmp_ne_u32 vcc, 0, v{t4}
    v_mov_b32 v{t3}, {L_Z}
    v_mov_b32 v{V_MN}, 1.0
    v_cndmask_b32 v{V_AA}, v{t3}, v{tc}, vcc
    v_cmp_eq_u32 {mask(0)}, v{t4}, v{HH}
    v_bfe_u32 v{tc}, v{L}, 3, 2
    v_and_b32 v{t3}, 3, v{L}
    v_lshl_add_u32 v{tc}, v{tc}, 2, v{t3}
    v_lshlrev_b32 v{tc}, 2, v{tc}
    v_add_u32 v{tc}, {L_G}, v{tc}
    v_mov_b32 v{t3}, {L_ZA}
    v_cndmask_b32 v{V_AENT}, v{t3}, v{tc}, {mask(0)}
    v_mov_b32 v{t3}, 0x80
    v_cndmask_b32 v{V_INCA}, 0, v{t3}, {mask(0)}""")
    for m in range(4):
        a(f"    s_movk_i32 s{S_P+m}, {3072 - 1024*m}")
    for c in range(2):
        a(f"    v_mov_b32 v{V_ND+4*c}, 0")
        a(f"    v_mov_b32 v{V_ND+4*c+1}, 0")
        a(f"    v_mov_b32 v{V_ND+4*c+2}, 1.0")
        a(f"    v_mov_b32 v{V_ND+4*c+3}, 1.0")
    a(f"""
    s_and_b32 s{S_A}, s{S_WAVE}, 3
    s_mul_i32 s{S_A}, s{S_A}, 3
    s_lshr_b32 s{S_B}, s{S_WAVE}, 2
    s_add_u32 s{S_SLOT}, s{S_A}, s{S_B}
    s_getpc_b64 {sr(S_PC,2)}
K_pc:
    s_add_u32 s{S_PC}, s{S_PC}, K_vbase - K_pc
    s_addc_u32 s{S_PC+1}, s{S_PC+1}, 0
    ; segment mapping of phase 2: segment 128 i + t/6, lane group g = t%6
    v_mul_u32_u24 v{tc}, 10923, v{T}
    v_lshrrev_b32 v{tc}, 16, v{tc}
    v_mad_i32_i24 v{vG4}, v{tc}, -6, v{T}
    v_lshlrev_b32 v{vG4}, 2, v{vG4}          ; 4g
    v_mul_u32_u24 v{vSb}, {RSTRIDE}, v{tc}
    ; share of P this lane pulls into L2
    s_lshr_b32 s{S_A}, s2, 3
    s_mul_i32 s{S_A}, s{S_A}, {256*128 if "hot" in OPT else 781*128}
    s_add_u32 s{S_A}, s{S_A}, {WS_P - (512*128 if "hot" in OPT else 0)}
    v_lshl_add_u32 v{vPf}, v{T}, 7, s{S_A}
    s_lshr_b32 s{S_B}, s{S_BIN}, 2
    s_lshl_b32 s{S_B}, s{S_B}, 4
    s_and_b32 s{S_A}, s{S_BIN}, 1
    s_lshl_b32 s{S_A}, s{S_A}, 3
    s_add_u32 s{S_B}, s{S_B}, s{S_A}
    s_and_b32 s{S_A}, s{S_BIN}, 2
    s_lshl_b32 s{S_A}, s{S_A}, 9
    s_add_u32 s{S_B}, s{S_B}, s{S_A}
    s_add_u32 s{S_B}, s{S_B}, {WS_TAB}
    v_lshl_add_u32 v{t5}, v{tc}, 11, s{S_B}  ; table entry offset
    s_mov_b32 s3, {NLOG2E:#x}
    s_cmp_lg_u32 s{S_WAVE}, 8
    s_cbranch_scc1 K_ntb
    s_mov_b32 s{S_K}, 0
    s_waitcnt vmcnt({4 if w1late else 2})
K_tagp:
    v_cmp_ne_u32 vcc, 0, v{vTg}
    s_cbranch_vccnz K_tagok
    s_add_u32 s{S_K}, s{S_K}, 1
    s_cmp_gt_u32 s{S_K}, {POLL_MAX}
    s_cbranch_scc1 K_tagok                   ; give up: tag 0 sends this workgroup to the slow path
    global_load_dwordx2 {vr(vTg,2)}, v{vZ}, {sr(S_DBG,2)} sc1
    s_waitcnt vmcnt(0)
    s_branch K_tagp
K_tagok:
    ds_write_b64 v{vZ}, {vr(vTg,2)} offset:{L_NONCE}
    v_and_b32 v{t3}, 0xfe000000, v{vTg}
    s_lshl_b32 s{S_B}, s2, 11
    s_add_u32 s{S_B}, s{S_B}, {WS_TAB}
    v_lshl_add_u32 v{t1}, v{L}, 4, s{S_B}""")
    for i in range(4):
        a(f"    v_lshrrev_b32 v{68+i}, 2, v{68+i}")
        a(f"    v_lshl_or_b32 v{68+i}, v{60+i}, 13, v{68+i}")
        a(f"    v_or_b32 v{vTb+2*i}, v{t3}, v{68+i}")
        a(f"    v_mov_b32 v{vTb+2*i+1}, v{vTg+1}")
    a(f"""
    s_waitcnt vmcnt(0) lgkmcnt(0)
    s_barrier                                ; B5
    s_cbranch_vccz K_slow
    global_store_dwordx4 v{t1}, {vr(vTb,4)}, {sr(S_WS,2)} sc1
    global_store_dwordx4 v{t1}, {vr(vTb+4,4)}, {sr(S_WS,2)} offset:1024 sc1
    s_branch K_b5j
K_ntb:
    s_waitcnt vmcnt(0)
    s_barrier                                ; B5: this workgroup's records and P rows are in memory
K_b5j:""")
    stamp(a, 6)
    a(f"""
    ds_read_b64 {vr(vTg,2)}, v{vZ} offset:{L_NONCE}
    v_lshlrev_b32 v{t0}, 1, v{L}
    v_add_u32 v{t0}, {L_WC}, v{t0}
    ds_read_u16 v{V_B5}, v{t0}
    ds_read_u16 v{V_B5+2}, v{t0} offset:128
    s_waitcnt lgkmcnt(0)
    v_readfirstlane_b32 s{S_TAG}, v{vTg}
    v_readfirstlane_b32 s{S_TAG+1}, v{vTg+1}
    s_cmp_eq_u32 s{S_TAG}, 0
    s_cbranch_scc1 K_slow""")
    for c in range(2):
        w = V_B5 + 2*c
        a(f"    v_lshlrev_b32 v{w}, 16, v{w}")
        a(f"    v_mul_f32 v{w}, s3, v{w}")
        a(f"    v_cvt_pk_bf16_f32 v{t3}, v{vZ}, v{w}")
        a(f"    v_sub_f32 v{t3}, v{w}, v{t3}")
        a(f"    v_cvt_pk_bf16_f32 v{w+1}, v{w}, v{t3}")
    a(f"""
    s_cmp_lt_u32 s{S_WAVE}, 8
    s_cbranch_scc1 K_Q
    ; waves 8..11 stage w2 and b2 (first used after the main loop)
    s_sub_u32 s{S_A}, s{S_WAVE}, 8
    s_lshl_b32 s{S_A}, s{S_A}, 12
    s_add_u32 m0, s{S_A}, {L_W2}
    v_lshl_add_u32 v{t3}, v{L}, 4, s{S_A}
    global_load_lds_dwordx4 v{t3}, {sr(S_W2,2)}
    global_load_lds_dwordx4 v{t3}, {sr(S_W2,2)} offset:1024
    global_load_lds_dwordx4 v{t3}, {sr(S_W2,2)} offset:2048
    global_load_lds_dwordx4 v{t3}, {sr(S_W2,2)} offset:3072
    s_cmp_lg_u32 s{S_WAVE}, 9
    s_cbranch_scc1 K_notQ
    s_mov_b32 m0, {L_B2}
    v_lshlrev_b32 v{t3}, 2, v{J}
    global_load_lds_dword v{t3}, {sr(S_B2,2)}
    s_branch K_notQ
K_Q:
    ; ---- waves 0..7: Q tile = -log2(e)/2 * (x w1[64:128] + b1) (selected by 2.0), while the table entries travel
    s_mov_b32 s3, {f32bits(-LOG2E/2):#x}
    s_lshl_b32 s{S_A}, s{S_D}, 6
    s_add_u32 s{S_A}, s{S_A}, {L_WC + 256}
    v_lshl_add_u32 v{t3}, v{J}, 1, s{S_A}
    ds_read_u16 v{vB1}, v{t3}
    v_add_u32 v{tc}, v{vWa}, v{vC8}""")
    for s_ in range(4):
        for h in range(2):
            a(f"    ds_read_b64_tr_b16 {vr(vWf+4*s_+2*h,2)}, v{tc} offset:{16384+4096*s_+1024*h}")
    a(f"""
    s_and_b32 s{S_A}, s{S_WAVE}, 1
    s_lshl_b32 s{S_B}, s{S_A}, 14
    s_lshl_b32 s{S_C}, s{S_D}, 7
    s_add_u32 s{S_B}, s{S_B}, s{S_C}
    s_add_u32 s{S_B}, s{S_B}, {L_QT - 512}
    v_lshl_add_u32 v{tc}, v{HH}, 11, s{S_B}
    v_lshl_add_u32 v{tc}, v{J}, 2, v{tc}""")
    for s_ in range(4):
        a(f"    s_waitcnt lgkmcnt({6-2*s_})")
        cin = "0" if s_ == 0 else vr(vAc, 16)
        a(f"    v_mfma_f32_32x32x16_bf16 {vr(vAc,16)}, {vr(vX+4*s_,4)}, {vr(vWf+4*s_,4)}, {cin}")
    a(f"""
    v_lshlrev_b32 v{vB1}, 16, v{vB1}
    v_mul_f32 v{vB1}, s3, v{vB1}
    s_nop 9""")
    def qpair(r):
        row = 8*(r >> 2) + (r & 3)
        a(f"    v_fma_f32 v{vAc+r}, v{vAc+r}, s3, v{vB1}")
        a(f"    v_fma_f32 v{vAc+r+1}, v{vAc+r+1}, s3, v{vB1}")
        a(f"    v_cvt_pk_bf16_f32 v{vWf+r}, v{vAc+r}, v{vAc+r+1}")
        a(f"    ds_write_b32 v{tc}, v{vWf+r} offset:{512*(row+1)}")
        a(f"    ds_write_b16 v{tc}, v{vWf+r} offset:{512*row}")
        a(f"    ds_write_b16_d16_hi v{tc}, v{vWf+r} offset:{512*(row+2)+2}")
    for r in range(0, 12, 2): qpair(r)
    a(f"""
    s_cmp_eq_u32 s{S_A}, 1
    s_cbranch_scc1 K_notQ""")
    for r in range(12, 16, 2): qpair(r)
    a(f"K_notQ:")
    stamp(a, 7)
    vT = 0
    vN = 4
    vAr = 6
    vR = 12
    vM = 28
    vA = 32
    vK = 48
    vB = 64
    a(f"""
    s_lshl_b32 s{S_B}, s{S_WAVE}, 12
    s_add_u32 m0, s{S_B}, {L_XS}
    s_mov_b32 s{S_RR}, s{S_WS}
    s_mov_b32 s{S_RR+1}, s{S_WS+1}
    s_mov_b32 s{S_RR+2}, {WS_TAB + 256*2048}
    s_mov_b32 s{S_A}, {128*2048}
    s_mov_b32 s{S_B}, {128*RSTRIDE}
    s_mov_b32 s{S_C}, 0xfe000000
    s_movk_i32 s{S_D}, 0xfc
    s_mov_b32 s{S_K}, 0
    {"s_sleep " + optval("fs", "0") if optval("fs", "0") != "0" else ""}
    s_mov_b64 {mask(0)}, -1
    s_mov_b64 {mask(1)}, -1
    v_mov_b32 v{vM}, 0
    v_mov_b32 v{vM+1}, 0
K_poll:
    s_mov_b64 exec, {mask(0)}
    s_cbranch_execz K_pl0
    buffer_load_dwordx2 {vr(vT,2)}, v{t5}, {sr(S_RR,4)}, 0 offen sc1
K_pl0:
    s_mov_b64 exec, {mask(1)}
    s_cbranch_execz K_pl1
    buffer_load_dwordx2 {vr(vT+2,2)}, v{t5}, {sr(S_RR,4)}, s{S_A} offen sc1
K_pl1:
    s_mov_b64 exec, -1
    s_waitcnt vmcnt(0)""")
    for i in range(2):
        a(f"    v_xor_b32 v{vN+i}, s{S_TAG}, v{vT+2*i}")
        a(f"    v_xor_b32 v{vAr+i}, s{S_TAG+1}, v{vT+2*i+1}")
        a(f"    v_and_or_b32 v{vAr+i}, v{vN+i}, s{S_C}, v{vAr+i}")
        a(f"    v_cmp_ne_u32 {mask(i)}, 0, v{vAr+i}")
    a(f"""
    s_add_u32 s{S_K}, s{S_K}, 1
    s_or_b64 vcc, {mask(0)}, {mask(1)}
    s_cbranch_scc0 K_got
    s_cmp_lt_u32 s{S_K}, {POLL_MAX}
    s_cbranch_scc1 K_poll
    ; gave up: no records from this wave, ask for the slow path
    s_mov_b32 s{S_MODE}, 1
    s_branch K_nor2a
K_got:""")
    if DIAG:
        a(f"    v_writelane_b32 v{V_STAMP}, s{S_K}, 20")
    stamp(a, 8)
    so = ["0", sr(S_B)]
    for i in range(2):
        a(f"    v_and_b32 v{vAr+i}, 0x1fff, v{vT+2*i}")
        a(f"    v_bfe_u32 v{vT+2*i+1}, v{vT+2*i}, 13, 12")
        a(f"    v_lshl_add_u32 v{vAr+i}, v{vAr+i}, 2, v{vSb}")
        a(f"    v_sub_u32 v{vN+i}, v{vT+2*i+1}, v{vG4}")
        a(f"    v_lshl_add_u32 v{vAr+2+i}, v{vT+2*i+1}, 2, v{vAr+i}")
        a(f"    v_cmp_lt_i32 {mask(4*i)}, 0, v{vN+i}")
        a(f"    v_lshl_add_u32 v{vAr+i}, v{vG4}, 2, v{vAr+i}")
        a(f"    v_add_u32 v{vAr+2+i}, v{vAr+2+i}, v{vG4}")
        a(f"    s_or_b64 exec, {mask(4*i)}, 1")
        a(f"    buffer_load_dword v{vM+i}, v{vAr+2+i}, {sr(S_RR,4)}, {so[i]} offen")
        a(f"    buffer_load_dwordx4 {vr(vR+4*i,4)}, v{vAr+i}, {sr(S_RR,4)}, {so[i]} offen")
        a(f"    s_mov_b64 exec, -1")
    for i in range(2):
        for k in range(1, 4):
            a(f"    v_cmp_lt_i32 {mask(4*i+k)}, {k}, v{vN+i}")
    a(f"""
    v_max_i32 v{t1}, v{vN}, v{vN+1}
    v_cmp_lt_i32 vcc, 24, v{t1}
    s_mov_b32 s{S_K}, 0
    s_cbranch_vccz K_nor2a
    s_mov_b32 s{S_K}, 1""")
    for i in range(2):
        a(f"    buffer_load_dword v{vM+2+i}, v{vAr+2+i}, {sr(S_RR,4)}, {so[i]} offen offset:24")
        a(f"    buffer_load_dwordx4 {vr(vR+8+4*i,4)}, v{vAr+i}, {sr(S_RR,4)}, {so[i]} offen offset:96")
        for k in range(4):
            a(f"    v_cmp_lt_i32 {mask(8+4*i+k)}, {24+k}, v{vN+i}")
    pf0 = int(optval("pf", "8"))
    a(f"""
    v_cmp_lt_i32 vcc, 48, v{t1}
    s_cbranch_vccz K_nor2a
    s_mov_b32 s{S_MODE}, 1                   ; a segment is too long for the fast path
K_nor2a:
    v_mov_b32 v{t4}, {L_FLAG}
    v_mov_b32 v{t0}, 4
    s_cmp_eq_u32 s{S_MODE}, 0
    s_cbranch_scc1 K_nofl
    ds_write_b32 v{t4}, v{t0}
K_nofl:
    s_waitcnt lgkmcnt(0)
    s_barrier
    ds_read_b32 v{t3}, v{t4}
    ; P descriptor: 256-byte records, base shifted by -3072
    s_add_u32 s{S_RX}, s{S_WS}, {WS_P - 3072}
    s_addc_u32 s{S_RX+1}, s{S_WS+1}, 0
    s_and_b32 s{S_RX+1}, s{S_RX+1}, 0xffff
    s_or_b32 s{S_RX+1}, s{S_RX+1}, 0x01000000
    s_mov_b32 s{S_RX+2}, {N_NODES}
    s_mov_b32 s{S_RX+3}, 0x00020000
    s_waitcnt lgkmcnt(0)
    v_cmp_ne_u32 vcc, 0, v{t3}
    s_cbranch_vccnz K_slow
    s_cmp_lt_u32 s{S_WAVE}, {pf0}
    s_cbranch_scc1 K_npf
    global_load_dword v{t5}, v{vPf}, {sr(S_WS,2)} sc1
    s_waitcnt vmcnt(1)
    s_branch K_pfJ
K_npf:
    v_and_b32 v72, 7, v{L}
    v_lshlrev_b32 v74, 4, v72
    v_add_u32 v74, {L_B2}, v74
    ds_read_b128 v[76:79], v74
    v_lshrrev_b32 v{E_XR}, 3, v{T}
    v_lshlrev_b32 v{E_XR}, 2, v{E_XR}        ; 4 * node
    v_lshlrev_b32 v{E_OUT}, 4, v{T}          ; output byte offset
    v_lshlrev_b32 v72, 5, v72
    v_add_u32 v{E_NX}, {L_QT}, v72
    s_waitcnt lgkmcnt(0)""")
    vBu = [128, 130, 92, 152]
    for q in range(4):
        a(f"    v_lshlrev_b32 v{vBu[q]}, 16, v{76+q}")
        a(f"    v_and_b32 v{vBu[q]+1}, 0xffff0000, v{76+q}")
    assert pf0 >= 7
    a(f"""
    s_cmp_ge_u32 s{S_WAVE}, 4
    s_cbranch_scc1 K_np1
    v_bfe_u32 v70, v{L}, 2, 1
    v_bfe_u32 v71, v{L}, 3, 1
    v_lshl_add_u32 v70, v70, 6, v71
    v_lshrrev_b32 v71, 4, v{L}               ; g
    v_lshl_add_u32 v70, v71, 2, v70
    v_lshlrev_b32 v70, 7, v70
    v_and_b32 v72, 3, v{L}
    v_lshl_add_u32 v70, v72, 4, v70
    v_add_u32 v{E_W2}, {L_W2}, v70
    v_and_b32 v70, 15, v{L}
    s_lshl_b32 s{S_C}, s{S_WAVE}, 4
    v_add_u32 v70, s{S_C}, v70               ; row
    v_mul_u32_u24 v72, {ST_STRIDE}, v70
    v_lshl_add_u32 v72, v71, 4, v72
    v_add_u32 v{E_SR}, {L_ST}, v72
    v_mul_u32_u24 v72, {OF_STRIDE}, v70
    v_lshl_add_u32 v72, v71, 5, v72
    v_add_u32 v{E_OW}, {L_QT}, v72
K_np1:
    s_waitcnt vmcnt(0)
K_pfJ:""")
    stamp(a, 9)
    def count_cols(ks):
        for k in ks:
            a(f"    v_and_b32_sdwa v{vA+k}, v{vM+k//4}, s{S_D} {SD} src0_sel:BYTE_{k%4} src1_sel:DWORD")
        for k in ks:
            a(f"    s_mov_b64 exec, {mask(k)}")
            a(f"    ds_add_rtn_u32 v{vK+k}, v{vA+k}, v{t0} offset:{L_H2}")
        a(f"    s_mov_b64 exec, -1")
    count_cols(range(8))
    a(f"""
    s_cmp_eq_u32 s{S_K}, 0
    s_cbranch_scc1 K_nor2b""")
    count_cols(range(8, 16))
    a(f"""
K_nor2b:
    v_lshlrev_b32 v{t1}, 2, v{L}
    v_cmp_gt_u32 vcc, s{S_NN}, v{L}
    s_waitcnt lgkmcnt(0)
    s_barrier""")
    stamp(a, 10)
    a(f"""
    ds_read_b32 v{V_CNT}, v{t1} offset:{L_H2}
    s_waitcnt lgkmcnt(0)
    v_add_u32 v{vP}, 4, v{V_CNT}
    v_and_b32 v{vP}, -8, v{vP}
    v_max_u32 v{vP}, 64, v{vP}
    v_cndmask_b32 v{vP}, 0, v{vP}, vcc
    v_mov_b32 v{vS}, v{vP}""")
    wave_scan(a, vS)
    a(f"""
    s_nop 0
    v_readlane_b32 s{S_A}, v{vS}, 63
    v_sub_u32 v{vS}, v{vS}, v{vP}
    ds_write_b32 v{t1}, v{vS} offset:{L_SX}
    s_cmp_gt_u32 s{S_A}, {ENT_CAP*4}
    s_cbranch_scc1 K_slow""")
    def place_cols(ks, mid=None):
        ks = list(ks)
        for k in ks:
            a(f"    ds_read_b32 v{vB+k}, v{vA+k} offset:{L_SX}")
        if mid: a(mid)
        for n, k in enumerate(ks):
            if n % 2 == 0:
                a(f"    s_waitcnt lgkmcnt({len(ks)-2-n})")
            a(f"    v_add_u32 v{vK+k}, v{vB+k}, v{vK+k}")
        for k in ks:
            a(f"    s_mov_b64 exec, {mask(k)}")
            a(f"    ds_write_b32 v{vK+k}, v{vR+k} offset:{L_RL}")
        a(f"    s_mov_b64 exec, -1")
    place_cols(range(8), f"""
    s_add_u32 s{S_A}, s{S_A}, 63
    s_lshr_b32 s{S_TT}, s{S_A}, 6            ; tiles
    s_mul_i32 s{S_T0}, s{S_SLOT}, s{S_TT}
    s_add_u32 s{S_NT}, s{S_T0}, s{S_TT}
    s_mul_i32 s{S_T0}, s{S_T0}, 43691
    s_mul_i32 s{S_NT}, s{S_NT}, 43691
    s_lshr_b32 s{S_T0}, s{S_T0}, 19
    s_lshr_b32 s{S_NT}, s{S_NT}, 19
    s_sub_u32 s{S_NT}, s{S_NT}, s{S_T0}""")
    a(f"""
    s_cmp_eq_u32 s{S_K}, 0
    s_cbranch_scc1 K_nor2c
    s_waitcnt lgkmcnt(0)""")
    place_cols(range(8, 16))
    thr = [int(x) for x in optval("thr", "10_5").split("_")] + [2]
    vBk = 80
    vGr = 82
    a(f"""
K_nor2c:
    s_lshl_b32 s{S_A}, s{S_T0}, 6            ; list position of this wave
    v_lshl_add_u32 v{t3}, v{V_AIDX}, 1, s{S_A}
    v_add_u32 v{t2}, s{S_A}, v{t1}
    ; first node of this wave: n = #(m < nn : start[m] <= ts) - 1
    v_cmp_ge_u32 {mask(0)}, s{S_A}, v{vS}
    v_subrev_u32 v{t0}, s{S_A}, v{vS}
    s_and_b64 {mask(0)}, {mask(0)}, vcc
    s_bcnt1_i32_b64 s{S_B}, {mask(0)}
    s_sub_u32 s{S_B}, s{S_B}, 1              ; n
    s_andn2_b64 {mask(0)}, vcc, {mask(0)}
    v_bfe_u32 v{t4}, v{t0}, 3, 3
    v_add_u32 v{t4}, 1, v{t4}
    v_lshrrev_b32 v{t0}, 6, v{t0}
    v_min_u32 v{t0}, 63, v{t0}
    v_cndmask_b32 v{t0}, 63, v{t0}, {mask(0)}
    v_lshlrev_b32 v{t0}, 2, v{t0}
    v_mov_b32 v{vBk}, 0
    {"" if "novar" in OPT else f"ds_permute_b32 v{vBk}, v{t0}, v{t4}"}
    s_lshl_b32 s{S_D}, s{S_NT}, 4""")
    for c in range(5):
        a(f"    v_cmp_gt_i32 {mask(5+c)}, s{S_D}, v{L}")
        a(f"    s_sub_u32 s{S_D}, s{S_D}, 64")
    a(f"""
    s_cmp_ge_u32 s{S_WAVE}, 7
    s_cbranch_scc1 K_nprep
    ; rows of node = lane: first = node + slot(first tile), extra = slot(last tile) - slot(first tile)
    v_cvt_f32_u32 v70, s{S_TT}
    v_rcp_f32 v70, v70
    v_add3_u32 v{vP}, v{vS}, v{vP}, -4
    v_lshrrev_b32 v{vS}, 6, v{vS}
    v_lshrrev_b32 v{vP}, 6, v{vP}
    v_cvt_f32_u32 v{vS}, v{vS}
    v_cvt_f32_u32 v{vP}, v{vP}
    v_add_f32 v{vS}, {f32bits((NW-0.5)/NW):#x}, v{vS}
    v_add_f32 v{vP}, {f32bits((NW-0.5)/NW):#x}, v{vP}
    v_mul_f32 v70, {f32bits(NW):#x}, v70
    v_mul_f32 v{vS}, v{vS}, v70
    v_mul_f32 v{vP}, v{vP}, v70
    v_cvt_u32_f32 v{vS}, v{vS}
    v_cvt_u32_f32 v{vP}, v{vP}
    v_sub_u32 v{vP}, v{vP}, v{vS}
    v_add_u32 v{vS}, v{vS}, v{L}
    v_lshl_or_b32 v{vS}, v{vP}, 8, v{vS}
    v_lshl_or_b32 v{V_CNT}, v{vS}, 16, v{V_CNT}
    ds_bpermute_b32 v73, v{E_XR}, v{V_CNT}
    s_lshl_b32 s{S_C}, s{S_NN}, 2
    v_cmp_gt_u32 vcc, s{S_C}, v{E_XR}
    s_movk_i32 s{S_C}, {OF_STRIDE}
    v_mov_b32 v75, {L_Z2}
    s_waitcnt lgkmcnt(0)
    v_cndmask_b32 v73, 0, v73, vcc
    v_bfe_u32 v{E_ROW}, v73, 16, 8
    v_lshrrev_b32 v{E_XR}, 24, v73
    v_and_b32 v74, 0xffff, v73
    v_mad_u32_u24 v{E_ROW}, v{E_ROW}, s{S_C}, v{E_NX}
    v_cvt_f32_u32 v74, v74
    v_add_u32 v{E_NX}, {OF_STRIDE}, v{E_ROW}
    v_cndmask_b32 v{E_ROW}, v75, v{E_ROW}, vcc
    v_cmp_lt_u32 vcc, 0, v{E_XR}
    v_mul_f32 v74, 0x3e800000, v74           ; degree""")
    for q in range(4):
        a(f"    v_pk_mul_f32 {vr(E_DB[q],2)}, {vr(vBu[q],2)}, v[74:75] op_sel_hi:[1,0]")
    a(f"    v_cndmask_b32 v{E_R2}, v75, v{E_NX}, vcc")
    a(f"""
K_nprep:
    s_waitcnt lgkmcnt(0)
    s_barrier""")
    stamp(a, 11)
    for m in range(4):
        a(f"    ds_read_u16 v{V_IX+2*m}, v{t3} offset:{L_RL + 16*m}")
    for c in range(5):
        a(f"    ds_read_b32 v{vGr+c}, v{t2} offset:{L_RL + 256*c}")
    a(f"""
    s_lshr_b32 s{S_C}, s{S_A}, 1
    s_add_u32 s{S_C}, s{S_C}, {L_IX}
    v_add_u32 v{V_AIDX}, s{S_C}, v{V_AIDX}
    v_lshl_add_u32 v{t0}, v{L}, 1, s{S_C}
    s_mov_b32 s{S_C}, 0x03020302
    s_mov_b32 s{S_D}, 0x8001
    s_waitcnt lgkmcnt(5)""")
    for m in range(4):
        a(f"    v_and_b32 v{V_IX+2*m}, {0xfff if 'cheat1' in OPT or 'cheat2' in OPT else PADREC}, v{V_IX+2*m}")
    for h in dma_ops(): a(h)
    if "st2" in OPT:
        a(f"""
    s_cmp_lt_u32 s{S_WAVE}, 8
    s_cbranch_scc1 K_ns2
    v_add_u32 v{vPf}, 0x100000, v{vPf}
    global_load_dword v{t5}, v{vPf}, {sr(S_WS,2)} sc1
K_ns2:""")
    a(f"    ; this wave's entries -> one-hot word, (e, e), source node")
    a(f"    s_waitcnt lgkmcnt(0)")
    for c in range(5):
        a(f"    v_and_b32 v{vGr+5+c}, 0xc000, v{vGr+c}")
        a(f"    v_perm_b32 v{64+c}, v{vGr+c}, v{vGr+c}, s{S_C}")
        a(f"    v_xor_b32 v{vGr+c}, v{vGr+c}, v{vGr+5+c}")
        a(f"    v_mul_u32_u24 v{vGr+5+c}, s{S_D}, v{vGr+5+c}")
        a(f"    v_and_b32 v{vGr+5+c}, 0x40004000, v{vGr+5+c}")
    for c in range(5):
        a(f"    s_mov_b64 exec, {mask(5+c)}")
        a(f"    ds_write2st64_b32 v{t2}, v{vGr+5+c}, v{64+c} offset0:{L_G//256 + c} offset1:{L_RL//256 + c}")
        a(f"    ds_write_b16 v{t0}, v{vGr+c} offset:{128*c}")
    a(f"""
    s_mov_b64 exec, -1
    s_lshl_b32 s{S_C}, s{S_B}, 9
    s_add_u32 s{S_C}, s{S_C}, {L_QT}
    v_add_u32 v{V_AQ}, s{S_C}, v{t1}
    v_lshrrev_b32 v{t4}, 7, v{V_INCA}
    v_mad_u32_u24 v{V_AENT}, v{t4}, s{S_A}, v{V_AENT}""")
    for h in ent_reads(0) + q_reads() + idx_reads(32): a(h)
    a(f"""
    s_add_u32 s{S_C}, s{S_B}, s{S_SLOT}
    s_mul_i32 s{S_C}, s{S_C}, {ST_STRIDE}
    s_add_u32 s{S_C}, s{S_C}, {L_ST}
    v_add_u32 v{V_AS}, s{S_C}, v{t1}
    v_add_u32 v{V_AQ}, 0x200, v{V_AQ}
    ; jump table: slot of the variant, entry inside it (priority steps near the end), exit at lane nt
    v_and_b32 v{t4}, 1, v{L}
    v_mad_u32_u24 v{t4}, v{t4}, 9, v{vBk}
    v_sub_u32 v{t0}, s{S_NT}, v{L}
    v_mov_b32 v{t3}, {ENTRY}""")
    for i, th in enumerate(thr):
        a(f"    v_cmp_eq_u32 {mask(i)}, {th}, v{t0}")
    a(f"    v_cmp_eq_u32 {mask(3)}, 0, v{t0}")
    a(f"    s_movk_i32 s{S_C}, {VAR_SIZE}")
    for i, th in enumerate(thr):
        a(f"    v_cndmask_b32 v{t3}, v{t3}, {8*i}, {mask(i)}")
    a(f"""
    v_mad_u32_u24 v{t4}, v{t4}, s{S_C}, v{t3}
    v_mov_b32 v{t3}, K_exit - K_vbase
    v_cndmask_b32 v{t4}, v{t4}, v{t3}, {mask(3)}
    ds_bpermute_b32 v{V_TAB}, v{t1}, v{t4} offset:4
    s_mov_b32 s{S_K}, 1
    v_readlane_b32 s{S_J}, v{t4}, 0
    s_setprio 3
    s_waitcnt vmcnt(0)""")
    stamp(a, 12)
    for h in tr_reads(0): a(h)
    a(f"""
    s_add_u32 s{S_J}, s{S_J}, s{S_PC}
    s_addc_u32 s{S_J+1}, s{S_PC+1}, 0
    s_waitcnt lgkmcnt(0)""")
    a(small(0, 0))
    if "cheat2" in OPT:
        for m in range(2): a(f"    v_and_b32 v{V_IX+2*m}, 0xfff, v{V_IX+2*m}")
    for h in dma_ops(): a(h)
    a(small(0, 1))
    a(f"    v_lshl_or_b32 v{V_TAB}, v{V_TAB}, 16, v{t4}")
    if optval("late", "4_6"): a("    s_nop 9")
    stamp(a, 13); stamp(a, 14, True)
    a(f"    s_setpc_b64 {sr(S_J,2)}")
    a(f".p2align 6")
    a(f"K_vbase:")
    for s_ in range(2):
        for b in [None] + list(range(8)):
            tile_variant(a, s_, b)
    a(f".p2align 3")
    a(f"K_exit:")
    stamp(a, 15); stamp(a, 16, True)
    flush1(a)
    a("    s_nop 0")
    flush2(a)
    a(f"""
    v_cmp_eq_f32 vcc, 0, v{V_MN}
    s_cbranch_vccz K_join
    ; a denominator left the f32 range: redo this bin on the exact slow path
    v_mov_b32 v65, {L_FLAG}
    ds_write_b32 v65, v65
K_join:
    s_cmp_ge_u32 s{S_WAVE}, 7
    s_cbranch_scc1 K_st2a
    s_lshl_b32 s{S_A}, s{S_N0}, 7
    s_add_u32 s{S_RT}, s{S_OUT}, s{S_A}
    s_addc_u32 s{S_RT+1}, s{S_OUT+1}, 0
    s_lshl_b32 s{S_RT+2}, s{S_NN}, 7
    s_mov_b32 s{S_RT+3}, 0x00020000
    s_movk_i32 s{S_C}, 0x207
    s_mov_b32 s{S_A}, 1
    v_mov_b32 v96, {NLN2:#x}
    v_mov_b32 v98, {L_Z2}
    s_cmp_ge_u32 s{S_WAVE}, 4
    s_cbranch_scc1 K_st2a
    ; ================= output, stage 1: products of the sum rows with w2""")
    for ot in range(4):
        for ks in range(4):
            for h in range(2):
                a(f"    ds_read_b64_tr_b16 {vr(16*ot+4*ks+2*h,2)}, v{E_W2} offset:{2048*ks+256*h+64*(ot>>1)+8*(ot&1)}")
    a(f"""
    s_waitcnt lgkmcnt(0)
    s_barrier""")
    stamp(a, 17)
    for ks in range(4):
        a(f"    ds_read_b128 {vr(64+4*ks,4)}, v{E_SR} offset:{64*ks}")
    def mf(ot, ks):
        d = vr(80 + 4*ot, 4)
        a(f"    v_mfma_f32_16x16x32_bf16 {d}, {vr(16*ot+4*ks,4)}, {vr(64+4*ks,4)}, {'0' if ks == 0 else d}")
    for ks in range(4):
        a(f"    s_waitcnt lgkmcnt({3-ks})")
        mf(0, ks); mf(1, ks)
    for ks in range(4):
        mf(2, ks); mf(3, ks)
    a(f"""
    ds_write_b128 v{E_OW}, v[80:83]
    ds_write_b128 v{E_OW}, v[84:87] offset:16
    s_nop 4
    ds_write_b128 v{E_OW}, v[88:91] offset:128
    ds_write_b128 v{E_OW}, v[92:95] offset:144
    s_waitcnt lgkmcnt(0)
    s_branch K_st2b
K_st2a:
    s_waitcnt lgkmcnt(0)
    s_barrier                                ; B9
K_st2b:
    s_cmp_ge_u32 s{S_WAVE}, 7
    s_barrier
    s_cbranch_scc1 K_fin
    ds_read_b128 v[64:67], v{E_ROW}
    ds_read_b128 v[68:71], v{E_ROW} offset:16
K_rows:
    ds_read_b128 v[72:75], v{E_R2}
    ds_read_b128 v[76:79], v{E_R2} offset:16
    v_cmp_lt_u32 vcc, s{S_A}, v{E_XR}
    v_add_u32 v{E_NX}, {OF_STRIDE}, v{E_NX}
    s_add_u32 s{S_A}, s{S_A}, 1
    s_waitcnt lgkmcnt(0)""")
    for q in range(4):
        a(f"    v_pk_add_f32 {vr(64+2*q,2)}, {vr(64+2*q,2)}, {vr(72+2*q,2)}")
    a(f"""
    v_cndmask_b32 v{E_R2}, v98, v{E_NX}, vcc
    s_cbranch_vccnz K_rows""")
    for q in range(4):
        a(f"    v_pk_fma_f32 {vr(64+2*q,2)}, {vr(64+2*q,2)}, v[96:97], {vr(E_DB[q],2)} op_sel_hi:[1,0,1]")
    for q in range(4):
        a(f"    v_cvt_pk_bf16_f32 v{72+q}, v{64+2*q}, v{65+2*q}")
    a(f"""
    buffer_store_dwordx4 v[72:75], v{E_OUT}, {sr(S_RT,4)}, 0 offen sc1
    ; a non-finite sum makes every output of its node non-finite: redo this bin on the exact slow path
    v_cmp_class_f32 vcc, v64, s{S_C}
    s_cbranch_vccz K_fin
    v_mov_b32 v65, {L_FLAG}
    ds_write_b32 v65, v65
K_fin:
    v_mov_b32 v65, {L_FLAG}
    s_waitcnt lgkmcnt(0)
    s_barrier                                ; B10
    ds_read_b32 v64, v65
    s_waitcnt lgkmcnt(0)
    v_cmp_ne_u32 vcc, 0, v64
    {"" if "novar" in OPT or "nodma" in OPT else "s_cbranch_vccnz K_slow"}""")
    if DIAG:
        a("    s_waitcnt vmcnt(0)")
        stamp(a, 18); stamp(a, 19, True)
        a(f"""
    v_writelane_b32 v{V_STAMP}, s{S_NT}, 21
    s_lshl_b32 s{S_A}, s2, 4
    s_add_u32 s{S_A}, s{S_A}, s{S_WAVE}
    s_lshl_b32 s{S_A}, s{S_A}, 8
    s_add_u32 s{S_A}, s{S_A}, {WS_STAMP}
    v_lshl_add_u32 v64, v{L}, 2, s{S_A}
    s_mov_b64 exec, 0xffffffff
    global_store_dword v64, v{V_STAMP}, {sr(S_WS,2)}
    global_store_dword v64, v{V_TRACE}, {sr(S_WS,2)} offset:128""")
    if optval("clk", ""):
        a(f"""
    s_lshl_b32 s{S_A}, s2, 4
    s_add_u32 s{S_A}, s{S_A}, s{S_WAVE}
    s_cmp_lg_u32 s{S_A}, {16*int(optval("wg", "100"))}
    s_cbranch_scc1 K_end
    s_lshl_b32 s{S_A}, s{S_TAG+1}, 7
    s_lshr_b32 s{S_B}, s{S_TAG}, 25
    s_or_b32 s{S_A}, s{S_A}, s{S_B}
    v_cvt_f32_u32 v64, s98
    v_cvt_f32_u32 v65, s99
    v_rcp_f32 v64, v64
    s_nop 1
    v_mul_f32 v64, v64, v65
    v_subrev_f32 v64, {f32bits(15.0):#x}, v64
    v_mul_f32 v64, {f32bits(float(optval("mul", "100"))):#x}, v64
    v_cvt_u32_f32 v64, v64
    s_nop 1
    v_readfirstlane_b32 s{S_B}, v64
    s_min_u32 s{S_B}, s{S_B}, 20000
    {f's_sub_u32 s{S_B}, {optval("clk", "")}, s{S_B}' if "neg" in OPT else f's_add_u32 s{S_B}, s{S_B}, {optval("clk", "")}'}
K_spin5:
    s_memrealtime s[98:99]
    s_waitcnt lgkmcnt(0)
    s_sub_u32 s98, s98, s{S_A}
    s_cmp_lt_u32 s98, s{S_B}
    s_cbranch_scc1 K_spin5""")
    if "endamp" in OPT:
        a(f"""
    s_waitcnt vmcnt(0)
    s_memrealtime s[100:101]
    s_lshl_b32 s{S_A}, s2, 4
    s_add_u32 s{S_A}, s{S_A}, s{S_WAVE}
    s_cmp_lg_u32 s{S_A}, {16*int(optval("wg", "100"))}
    s_cbranch_scc1 K_end
    s_lshl_b32 s{S_A}, s{S_TAG+1}, 7
    s_lshr_b32 s{S_B}, s{S_TAG}, 25
    s_or_b32 s{S_A}, s{S_A}, s{S_B}
    s_waitcnt lgkmcnt(0)
    s_sub_u32 s{S_B}, s100, s98
    s_min_u32 s{S_B}, s{S_B}, 2000
    s_mul_i32 s{S_B}, s{S_B}, 20
    s_add_u32 s{S_B}, s{S_B}, 3000
K_spin4:
    s_memrealtime s[98:99]
    s_waitcnt lgkmcnt(0)
    s_sub_u32 s98, s98, s{S_A}
    s_cmp_lt_u32 s98, s{S_B}
    s_cbranch_scc1 K_spin4""")
    if optval("fix", "") != "":
        a(f"""
    s_lshl_b32 s{S_A}, s2, 4
    s_add_u32 s{S_A}, s{S_A}, s{S_WAVE}
    s_cmp_lg_u32 s{S_A}, 1600
    s_cbranch_scc1 K_end
    s_lshl_b32 s{S_A}, s{S_TAG+1}, 7
    s_lshr_b32 s{S_B}, s{S_TAG}, 25
    s_or_b32 s{S_A}, s{S_A}, s{S_B}
K_spin3:
    s_memrealtime s[98:99]
    s_waitcnt lgkmcnt(0)
    s_sub_u32 s98, s98, s{S_A}
    s_cmp_lt_u32 s98, {optval("fix", "")}
    s_cbranch_scc1 K_spin3""")
    if optval("amp", "") != "":
        a(f"""
    s_waitcnt vmcnt(0)
    s_cmp_lg_u32 s{S_WAVE}, {optval("aw", "0")}
    s_cbranch_scc1 K_end
    s_lshl_b32 s{S_A}, s{S_TAG+1}, 7
    s_lshr_b32 s{S_B}, s{S_TAG}, 25
    s_or_b32 s{S_A}, s{S_A}, s{S_B}""")
        if optval("amp", "") == "99":
            a("    s_memrealtime s[98:99]\n    s_waitcnt lgkmcnt(0)")
        a(f"""
    s_sub_u32 s{S_B}, s98, s{S_A}
    s_mov_b64 exec, 1
    v_mov_b32 v64, 0
    v_mov_b32 v65, s{S_B}
    v_mov_b32 v66, 1
    {"v_sub_u32 v65, 0x1000, v65" if "min" in OPT else ""}
    global_atomic_{"add" if "avg" in OPT else "umax"} v64, v65, {sr(S_DBG,2)} offset:128 sc1
    s_sub_u32 s{S_C}, s100, s{S_A}
    v_mov_b32 v68, s{S_C}
    {f"global_atomic_add v64, v68, {sr(S_DBG,2)} offset:144 sc1" if optval("sel", "") else ""}
    s_waitcnt vmcnt(0)
    global_atomic_add v67, v64, v66, {sr(S_DBG,2)} offset:136 sc0 sc1
    s_waitcnt vmcnt(0)
    v_readfirstlane_b32 s{S_B}, v67
    s_cmp_lg_u32 s{S_B}, 255
    s_cbranch_scc1 K_end
    global_atomic_add v67, v64, v64, {sr(S_DBG,2)} offset:128 sc0 sc1
    global_atomic_add v68, v64, v64, {sr(S_DBG,2)} offset:144 sc0 sc1
    s_waitcnt vmcnt(0)
    v_readfirstlane_b32 s{S_C}, v68
    s_cmp_lt_u32 s{S_C}, {390*256}
    {"s_cbranch_scc0 K_end" if optval("sel", "") == "lo" else ""}
    {"s_cbranch_scc1 K_end" if optval("sel", "") == "hi" else ""}
    v_readfirstlane_b32 s{S_B}, v67
    s_mul_i32 s{S_B}, s{S_B}, {optval("mul", "5")}
    {f"s_lshr_b32 s{S_B}, s{S_B}, 8" if "avg" in OPT else ""}
    s_min_u32 s{S_B}, s{S_B}, {optval("base", "0") if "neg" in OPT else 200000}
    {f's_sub_u32 s{S_B}, {optval("base", "0")}, s{S_B}' if "neg" in OPT else f's_add_u32 s{S_B}, s{S_B}, {optval("base", "0")}'}
K_spin2:
    s_memrealtime s[98:99]
    s_waitcnt lgkmcnt(0)
    s_sub_u32 s98, s98, s{S_A}
    s_cmp_lt_u32 s98, s{S_B}
    s_cbranch_scc1 K_spin2""")
    a(f"""
K_end:
    s_endpgm
K_slow:
    ; ================= exact path without hand-offs: scan all edges for this bin
    s_setprio 0
    s_mov_b32 s16, s{S_N0}
    s_mov_b32 s17, s{S_NN}
    s_mov_b32 s18, s{S_WAVE}""")
    gen_slow(a, 16, 17, 18, L, NLOG2E, NW=NW)
    a("    s_endpgm")

def main():
    global DIAG
    out = sys.argv[1]
    DIAG = "diag" in sys.argv[2:]
    OPT.update(sys.argv[2:])
    a = Asm()
    a(f"""; Edge-featured MPNN layer: out[n] = sum_(e: dst=n) (silu([x[src],x[dst],e] w1 + b1) w2 + b2)
; @launch grid=(256,1,1) block=({NT_},1,1) lds={L_END}
.amdgcn_target "amdgcn-amd-amdhsa--gfx950"
.text""")
    gen_kernel(a)
    a(f"""
.section .rodata,"a"
.p2align 6
.amdhsa_kernel {KNAME}
  .amdhsa_next_free_vgpr {NVGPR}
  .amdhsa_next_free_sgpr 102
  .amdhsa_accum_offset {NVGPR}
  .amdhsa_group_segment_fixed_size 0
  .amdhsa_kernarg_size 88
  .amdhsa_user_sgpr_count 2
  .amdhsa_user_sgpr_kernarg_segment_ptr 1
  .amdhsa_system_sgpr_workgroup_id_x 1
  .amdhsa_float_denorm_mode_32 3
.end_amdhsa_kernel""")
    open(out, "w").write(a.text())

if __name__ == "__main__":
    main()
```

```python
import sys, struct
from slow import gen_slow

NAME = "standalone__edge_featured_mpnn_mpnn__graph"
KNAME = NAME + "_kernel"
N_NODES = 12500
NB = 49
NW = 12
NT_ = 64 * NW
MAINE = 4 * NT_
XTRA = 53
RSTRIDE = 16640

WS_TAB = 0x420000
WS_P = 0x4C0000
WS_STAMP = 0xA00000

L_Z = 128
L_H2 = 272
L_FLAG = 536
L_NONCE = 544
L_Z2 = 2048
OF_STRIDE = 272
L_SX = 1296
ENT_CAP = 3472
LSZ = 14080
L_ZA = 4096 - 144
L_G = 4096
L_RL = L_G + LSZ
L_ST = L_RL + LSZ
ST_STRIDE = 288
L_IX = L_ST + 20480
L_QT = (L_IX + LSZ // 2 + 255) // 256 * 256 + 512
L_XS = L_QT + 49 * 512
assert LSZ % 256 == 0 and (ENT_CAP + 48) * 4 == LSZ
L_W2 = L_XS + NW * 4096
L_B2 = L_W2 + 16384
L_END = L_B2 + 256
L_RS = L_ST
L_H1 = L_ST + 16640
L_OFF = L_H1 + 1024
L_W1 = L_XS
L_WC = L_XS + 32768
L_PS = L_WC + 512
L_XR = L_W2
PS_STRIDE = 272
assert L_XS % 256 == 0 and L_END <= 163840
assert L_H1 + 3072 <= L_IX and 64 * ST_STRIDE <= 20480 and L_OFF + 1024 < 65536 and L_PS + 56 * PS_STRIDE <= L_W2

def f32bits(x):
    return struct.unpack("<I", struct.pack("<f", x))[0]
LOG2E = 1.4426950408889634
NLOG2E = f32bits(-LOG2E)
NLN2 = f32bits(-0.6931471805599453)
PADREC = 0x3FFF
POLL_MAX = 4000

class Asm:
    def __init__(self):
        self.l = []
    def __call__(self, s=""):
        for x in s.strip("\n").split("\n"):
            if x.strip():
                self.l.append(x.rstrip())
    def text(self):
        return "\n".join(self.l) + "\n"

def vr(a, n=1):
    return f"v{a}" if n == 1 else f"v[{a}:{a+n-1}]"
def sr(a, n=1):
    return f"s{a}" if n == 1 else f"s[{a}:{a+n-1}]"

DIAG = False
OPT = set()
def optval(prefix, default):
    for o in OPT:
        if o.startswith(prefix):
            return o[len(prefix):]
    return default

V_D = 0; V_E = 64; V_A5 = 96; V_B5 = 98; V_ND = 102; V_T = 110; V_R = 114; V_O = 118; V_IX = 132
V_AA = 140; V_AIDX = 141; V_AENT = 142; V_AQ = 143; V_INCA = 144; V_AS = 145; V_MN = 146; V_PSEL = 147
V_PF = 126; V_TAB = 148; V_CNT = 149; V_S = 150; V_P = 151; V_LANE = 154; V_TID = 155
V_J = 156; V_HH = 157
E_W2 = 147; E_SR = 164; E_OW = 165
E_ROW = 122; E_XR = 123; E_NX = 124; E_R2 = 125; E_OUT = 127; E_DB = [128, 130, 150, 152]
V_STAMP = 167; V_TRACE = 166
NVGPR = 168
S_X = 4; S_E = 6; S_SRC = 8; S_DST = 10; S_W1 = 12; S_B1 = 14; S_W2 = 16; S_B2 = 18; S_OUT = 20; S_DBG = 22; S_WS = 24
S_BIN = 26; S_N0 = 27; S_NN = 28; S_WAVE = 29; S_MODE = 30; S_K = 31; S_PC = 32; S_J = 34
S_RX = 36; S_RT = 40; S_RR = 44; S_P = 48; S_JJ = 52
S_T0 = 56; S_NT = 57; S_TT = 58; S_SLOT = 59; S_A = 60; S_B = 61; S_C = 62; S_D = 63; S_TAG = 64
S_M = 66
def mask(k): return sr(S_M + 2*k, 2)

def stamp(a, k, real=False):
    if optval("clk", ""):
        if k == 13: a("    s_memrealtime s[98:99]\n    s_memtime s[100:101]\n    s_waitcnt lgkmcnt(0)\n    s_mov_b32 s99, s100")
        if k == 15: a("    s_memrealtime s[96:97]\n    s_memtime s[100:101]\n    s_waitcnt lgkmcnt(0)\n    s_sub_u32 s98, s96, s98\n    s_sub_u32 s99, s100, s99")
        return
    if "endamp" in OPT:
        if k == 17: a("    s_memrealtime s[98:99]\n    s_waitcnt lgkmcnt(0)")
        return
    if optval("amp", "") != "":
        if int(optval("amp", "")) == k:
            a("    s_memrealtime s[98:99]\n    s_waitcnt lgkmcnt(0)")
        if k == 6 and optval("sel", ""):
            a("    s_memrealtime s[100:101]\n    s_waitcnt lgkmcnt(0)")
        return
    if not DIAG:
        return
    if "lite" in OPT and k not in (19,):
        return
    a(f"    {'s_memrealtime' if real else 's_memtime'} s[100:101]")
    a(f"    s_waitcnt lgkmcnt(0)")
    a(f"    v_writelane_b32 v{V_STAMP}, s100, {k}")

def wave_scan(a, v):
    for sh in (1, 2, 4, 8):
        a(f"    s_nop 1")
        a(f"    v_add_u32_dpp v{v}, v{v}, v{v} row_shr:{sh} row_mask:0xf bank_mask:0xf")
    a(f"    s_nop 1")
    a(f"    v_add_u32_dpp v{v}, v{v}, v{v} row_bcast:15 row_mask:0xa bank_mask:0xf")
    a(f"    s_nop 1")
    a(f"    v_add_u32_dpp v{v}, v{v}, v{v} row_bcast:31 row_mask:0xc bank_mask:0xf")

SD = "dst_sel:DWORD dst_unused:UNUSED_PAD"

def dreg(s, c): return V_D + 32*s + 16*c
def small(s, c):
    d = vr(dreg(s, c), 16)
    return f"    v_mfma_f32_32x32x8_bf16 {d}, {vr(V_A5,2)}, {vr(V_B5+2*c,2)}, {d}"
def tr_reads(s):
    return [f"    ds_read_b64_tr_b16 {vr(dreg(s,c)+2*u,2)}, v{V_AA} offset:{512*u+128*c}" for u in range(8) for c in range(2)]
def ent_reads(off):
    return [f"    ds_read_b32 v{V_A5}, v{V_AENT} offset:{off}",
            f"    ds_read_b32 v{V_A5+1}, v{V_AENT} offset:{off + L_RL - L_G}"]
def q_reads():
    return [f"    ds_read_b32 v{V_B5+2*c}, v{V_AQ} offset:{256*c}" for c in range(2)]
def idx_reads(off):
    return [f"    ds_read_u16 v{V_IX+2*m}, v{V_AIDX} offset:{off + 8*m}" for m in range(4)]
def dma_ops():
    if "nodma" in OPT: return []
    return [f"    buffer_load_dwordx4 {vr(V_IX+2*m,2)}, {sr(S_RX,4)}, s{S_P+m} idxen offen offset:{1024*m} sc1 lds" for m in range(4)]

def flush1(a):
    for c in range(2):
        D = V_ND + 4*c + 2
        a(f"    v_rcp_f32 v{V_R+2*c}, v{D}")
        a(f"    v_rcp_f32 v{V_R+2*c+1}, v{D+1}")
def flush2(a):
    for c in range(2):
        a(f"    v_pk_mul_f32 {vr(V_O+2*c,2)}, {vr(V_ND+4*c,2)}, {vr(V_R+2*c,2)}")
    for c in range(2):
        a(f"    v_min3_f32 v{V_MN}, v{V_MN}, v{V_R+2*c}, v{V_R+2*c+1}")
    for c in range(2):
        a(f"    v_add_f32 v{V_O+2*c}, v{V_O+2*c}, v{V_O+2*c+1}")
    a(f"    v_cvt_pk_bf16_f32 v{V_O}, v{V_O}, v{V_O+2}")
    a(f"    ds_write_b32 v{V_AS}, v{V_O}")

def y_phase(a, s, b, us=range(8), nsrc=None):
    if nsrc is None: nsrc = [V_ND + 4*c for c in range(2)]
    a(".p2align 3")
    for u in us:
        if u == b:
            flush1(a)
            for c in range(2):
                a(f"    v_pk_add_f32 {vr(V_ND+4*c+2,2)}, {vr(V_E+16*c+2*u,2)}, 1.0 op_sel_hi:[1,0]")
            flush2(a)
            for c in range(2):
                p = dreg(s, c) + 2*u
                if u == 7:
                    a(f"    v_pk_mov_b32 {vr(V_ND+4*c,2)}, {vr(p,2)}, {vr(p,2)} op_sel:[0,1]")
                else:
                    nsrc[c] = p
            continue
        for c in range(2):
            a(f"    v_pk_fma_f32 {vr(V_T+2*c,2)}, {vr(dreg(s,c)+2*u,2)}, {vr(V_ND+4*c+2,2)}, {vr(nsrc[c],2)}")
        for c in range(2):
            D = V_ND + 4*c + 2
            a(f"    v_pk_fma_f32 {vr(D,2)}, {vr(D,2)}, {vr(V_E+16*c+2*u,2)}, {vr(D,2)}")
        for c in range(2):
            a(f"    v_pk_fma_f32 {vr(V_ND+4*c,2)}, {vr(nsrc[c],2)}, {vr(V_E+16*c+2*u,2)}, {vr(V_T+2*c,2)}")
            nsrc[c] = V_ND + 4*c

VAR_SIZE = 960
ENTRY = 24
def tile_variant(a, s, b):
    name = f"{s}{'N' if b is None else b}"
    vi = 9*s + (0 if b is None else b + 1)
    a(f".org K_vbase + {VAR_SIZE*vi}, 0")
    a(f"    s_setprio 2\n    s_branch K_var{name}\n    s_setprio 1\n    s_branch K_var{name}\n    s_setprio 0")
    a(f"    s_nop 0")
    a(f"K_var{name}:")
    bnd = b is not None
    if "trace" in OPT and s == 0:
        a(f"    s_memtime s[100:101]\n    s_mov_b32 s{S_A}, m0\n    s_mov_b32 m0, s{S_K}\n    s_waitcnt lgkmcnt(0)")
        a(f"    v_writelane_b32 v{V_TRACE}, s100, m0\n    s_mov_b32 m0, s{S_A}")
    es = [f"    v_exp_f32 v{V_E+16*c+2*u+h}, v{dreg(s,c)+2*u+h}" for u in range(8) for c in range(2) for h in range(2)]
    head = ent_reads(64 + 64*s) + (q_reads() if bnd else []) + tr_reads(s ^ 1) + idx_reads(64 + 32*s)
    plain = [f"    v_readlane_b32 s{S_JJ}, v{V_TAB}, s{S_K}"] if s == 0 else \
            [f"    v_add_u32 v{V_AENT}, v{V_INCA}, v{V_AENT}", f"    v_add_u32 v{V_AIDX}, 64, v{V_AIDX}"]
    if bnd: plain.append(f"    v_add_u32 v{V_AQ}, 0x200, v{V_AQ}")
    jump = [f"    s_and_b32 s{S_J}, s{S_JJ}, 0xffff", f"    s_add_u32 s{S_K}, s{S_K}, 2"] if s == 0 else [f"    s_lshr_b32 s{S_J}, s{S_JJ}, 16"]
    jump += [f"    s_add_u32 s{S_J}, s{S_J}, s{S_PC}", f"    s_addc_u32 s{S_J+1}, s{S_PC+1}, 0"]
    late = optval("late", "4_6")
    if late:
        ua, ub = [int(x) for x in late.split("_")]
        for e in es[:4*ub]: a(e)
        nsrc = [V_ND + 4*c for c in range(2)]
        y_phase(a, s, b, range(0, ua), nsrc)
        a("    s_waitcnt vmcnt(0)")
        for h in head: a(h)
        y_phase(a, s, b, range(ua, ub), nsrc)
        a(f"    s_waitcnt lgkmcnt(0)")
        for h in dma_ops(): a(h)
        a(small(s ^ 1, 0))
        for e in es[4*ub:4*ub+4]: a(e)
        a(small(s ^ 1, 1))
        for e in es[4*ub+4:]: a(e)
        for p_ in plain + jump: a(p_)
        y_phase(a, s, b, range(ub, 8), nsrc)
    else:
        n1 = int(optval("n1_", "16"))
        a("    s_waitcnt vmcnt(0)")
        for h in head: a(h)
        for e in es[:n1-2]: a(e)
        for p_ in plain: a(p_)
        for e in es[n1-2:n1]: a(e)
        a(f"    s_waitcnt lgkmcnt(0)")
        for h in dma_ops(): a(h)
        a(small(s ^ 1, 0))
        for e in es[n1:n1+4]: a(e)
        a(small(s ^ 1, 1))
        for e in es[n1+4:]: a(e)
        for p_ in jump: a(p_)
        y_phase(a, s, b)
    if bnd:
        a(f"    v_add_u32 v{V_AS}, {ST_STRIDE}, v{V_AS}")
    a(f"    s_setpc_b64 {sr(S_J,2)}")

def gen_kernel(a):
    L = V_LANE; T = V_TID; J = V_J; HH = V_HH
    t0, t1, t2, t3, t4, t5 = 158, 159, 160, 161, 162, 163
    step = NT_ * 16
    vDst = 0
    vSrc = 8
    vEa = 14
    tc = 17
    vTg = 18
    vBa = 20
    vRk = 26
    vWp = 31
    vOf = 32
    vC8 = 37; vWa = 38; vTa = 39
    vX = 40
    vWf = 56
    vPad = 56
    vAc = 72
    vTb = 88
    vXa = 88
    vB1 = 96
    vCl = 120
    v4k = 125
    vPf = 126
    vZ = 128
    vG4 = 164; vSb = 165
    vS = V_S; vP = V_P
    a(f"""
.p2align 8
.globl {KNAME}
.type {KNAME},@function
{KNAME}:
    s_cmp_ge_u32 s2, 256
    s_cbranch_scc1 K_end
    s_load_dwordx8 s[4:11], s[0:1], 0
    s_load_dwordx8 s[12:19], s[0:1], 32      ; w1, b1, w2, b2
    s_load_dwordx4 s[20:23], s[0:1], 64
    s_load_dwordx2 s[24:25], s[0:1], 80      ; ws
    s_memrealtime {sr(S_TAG,2)}
    s_getpc_b64 {sr(S_J,2)}
    s_lshr_b32 s3, s2, 3
    s_lshl_b32 s3, s3, 7
    v_lshl_add_u32 v2, v0, 12, s3
    v_cmp_gt_u32 vcc, 7, v0
    s_and_saveexec_b64 {sr(S_PC,2)}, vcc
    s_cbranch_execz K_ncp
    global_load_dword v5, v2, {sr(S_J,2)}
K_ncp:
    s_mov_b64 exec, {sr(S_PC,2)}
    v_lshrrev_b32 v1, 6, v0
    v_mov_b32 v{T}, v0
    v_readfirstlane_b32 s{S_WAVE}, v1
    v_and_b32 v{L}, 63, v0
    s_mul_i32 s3, s2, {MAINE*4}
    v_lshl_add_u32 v{t0}, v0, 4, s3          ; byte offset into src/dst
    v_lshrrev_b32 v{t1}, 1, v{t0}
    s_and_b32 s{S_BIN}, s2, 7
    s_lshl_b32 s{S_BIN}, s{S_BIN}, 5
    s_lshr_b32 s3, s2, 3
    s_add_u32 s{S_BIN}, s{S_BIN}, s3
    s_mul_i32 s{S_N0}, s{S_BIN}, {NB}
    s_sub_u32 s{S_NN}, {N_NODES}, s{S_N0}
    s_min_u32 s{S_NN}, s{S_NN}, {NB}
    v_and_b32 v{J}, 31, v0
    v_bfe_u32 v{HH}, v0, 5, 1
    s_mov_b32 s{S_MODE}, 0
    v_mov_b32 v{vZ}, 0
    v_mov_b32 v{vZ+1}, 0
    v_mov_b32 v{vZ+2}, 0
    v_mov_b32 v{vZ+3}, 0
    v_lshlrev_b32 v{t2}, 2, v0""")
    if DIAG:
        a(f"    v_mov_b32 v{V_STAMP}, 0\n    v_mov_b32 v{V_TRACE}, 0")
        stamp(a, 0, True); stamp(a, 1)
    NTE = optval("e_", "nt").replace("_", " ")
    pdel = optval("pdel", "")
    sp = optval("src_", "post")
    SRCE = f"""
    global_load_dwordx4 {vr(vSrc,4)}, v{t0}, {sr(S_SRC,2)} {NTE}
    global_load_dwordx2 {vr(vEa,2)}, v{t1}, {sr(S_E,2)} {NTE}
"""
    a(f"""
    s_waitcnt lgkmcnt(0)
    global_load_dwordx4 {vr(vDst,4)}, v{t0}, {sr(S_DST,2)} {NTE}
    {f"s_add_u32 s98, s{S_TAG}, 200" if optval("amp", "") == "1" else ""}
    {f"v_writelane_b32 v{V_STAMP}, s{S_TAG}, 0" if "lite" in OPT else ""}
    ds_write_b32 v{t2}, v{vZ} offset:{L_H1}
    s_cmp_lg_u32 s{S_WAVE}, 11
    s_cbranch_scc1 K_ld1
    ; wave 11 also takes the 53 extra edges of this chunk
    s_mul_i32 s{S_A}, s2, {XTRA}
    s_add_u32 s{S_A}, s{S_A}, {256*MAINE}
    v_min_u32 v{t5}, {XTRA-1}, v{L}
    v_add_lshl_u32 v{t5}, v{t5}, s{S_A}, 2
    v_lshrrev_b32 v{t4}, 1, v{t5}
    global_load_dword v{vDst+4}, v{t5}, {sr(S_DST,2)}
    global_load_dword v{vSrc+4}, v{t5}, {sr(S_SRC,2)}
    global_load_ushort v{vEa+2}, v{t4}, {sr(S_E,2)}
K_ld1:""")
    if optval("b1_", "") == "first":
        a(f"""
    s_cmp_lg_u32 s{S_WAVE}, 10
    s_cbranch_scc1 K_ld0
    s_mov_b32 m0, {L_WC + 256}
    v_lshlrev_b32 v{t3}, 2, v{L}
    global_load_lds_dword v{t3}, {sr(S_B1,2)}
K_ld0:""")
    a(f"""
""")
    a(f"""
    ; workgroup 0, wave 9 publishes the hand-off tag of this launch (39 clock bits, never zero)
    s_lshl_b32 s{S_A}, s2, 4
    s_add_u32 s{S_A}, s{S_A}, s{S_WAVE}
    s_cmp_lg_u32 s{S_A}, 9
    s_cbranch_scc1 K_ldJ
    s_lshl_b32 s{S_A}, s{S_TAG}, 25
    s_or_b32 s{S_A}, s{S_A}, 1
    s_lshr_b64 {sr(S_TAG,2)}, {sr(S_TAG,2)}, 7
    v_mov_b32 v{t4}, s{S_A}
    v_mov_b32 v{t4+1}, s{S_TAG}
    s_mov_b64 exec, 1
    global_store_dwordx2 v{vZ}, {vr(t4,2)}, {sr(S_DBG,2)} sc1
    s_mov_b64 exec, -1
K_ldJ:""")
    if sp == "first": a(SRCE)
    a(f"""
    s_lshl_b32 s{S_A}, s{S_WAVE}, 11
    s_cmp_ge_u32 s{S_WAVE}, 8
    s_cbranch_scc1 K_stX
    ; waves 0..7 stage w1 rows 0..63 (64-byte blocks of a row swapped by row&3)
    s_add_u32 m0, s{S_A}, {L_W1}
    v_lshrrev_b32 v{t3}, 2, v{L}
    v_and_b32 v{t3}, 12, v{t3}
    v_xor_b32 v{t3}, v{t3}, v{L}
    v_lshl_add_u32 v{t5}, v{t3}, 4, s{S_A}
    global_load_lds_dwordx4 v{t5}, {sr(S_W1,2)}
    global_load_lds_dwordx4 v{t5}, {sr(S_W1,2)} offset:1024
    s_branch K_stJ
K_stX:
    ; waves 8..11 stage the x rows of this bin (16-byte pieces swizzled inside each row)
    s_mov_b32 s{S_RX}, s4
    s_mov_b32 s{S_RX+1}, s5
    s_mov_b32 s{S_RX+2}, {N_NODES*128}
    s_mov_b32 s{S_RX+3}, 0x00020000
    s_add_u32 m0, s{S_A}, {L_XR - 16384}
    s_lshl_b32 s{S_B}, s{S_N0}, 7
    s_add_u32 s{S_A}, s{S_A}, s{S_B}
    s_sub_u32 s{S_A}, s{S_A}, 16384
    v_lshrrev_b32 v{t3}, 4, v{L}
    v_xor_b32 v{t3}, v{t3}, v{L}
    v_lshl_add_u32 v{t3}, v{t3}, 4, s{S_A}
    v_xor_b32 v{t5}, 64, v{t3}
    buffer_load_dwordx4 v{t3}, {sr(S_RX,4)}, 0 offen {NTE} lds
    buffer_load_dwordx4 v{t5}, {sr(S_RX,4)}, 0 offen offset:1024 {NTE} lds
K_stJ:""")
    if sp == "pre": a(SRCE)
    a(f"""
    s_waitcnt lgkmcnt(0)
    s_barrier
    v_mov_b32 v{vPad}, {PADREC}
    v_mov_b32 v{vPad+1}, {PADREC}
    v_mov_b32 v{vPad+2}, {PADREC}
    v_mov_b32 v{vPad+3}, {PADREC}
    v_lshlrev_b32 v{t2}, 4, v{T}
    ds_write_b128 v{t2}, {vr(vPad,4)} offset:{L_RL}
    s_cmp_ge_u32 s{S_WAVE}, 4
    s_cbranch_scc1 K_in1
    ds_write_b128 v{t2}, {vr(vZ,4)}
    ds_write_b128 v{t2}, {vr(vPad,4)} offset:{L_ST - 4096}
K_in1:
    s_cmp_lg_u32 s{S_WAVE}, 4
    s_cbranch_scc1 K_in2
    v_lshlrev_b32 v{t3}, 2, v{L}
    ds_write_b32 v{t3}, v{vZ} offset:{L_RL - 256}
K_in2:""")
    if sp == "post": a(SRCE)
    a(f"""
""")
    w1late = "w1early" not in OPT
    ST2 = f"""
    s_cmp_ge_u32 s{S_WAVE}, 8
    s_cbranch_scc1 K_st2
    s_add_u32 m0, m0, 16384
    v_add_u32 v6, 0x4000, v6
    global_load_lds_dwordx4 v6, {sr(S_W1,2)}
    global_load_lds_dwordx4 v6, {sr(S_W1,2)} offset:1024
    s_branch K_st3
K_st2:
    s_mov_b32 m0, {L_WC}
    v_lshlrev_b32 v{t3}, 2, v{L}
    v_add_u32 v7, 0x8000, v{t3}
    global_load_lds_dword v7, {sr(S_W1,2)}
    {f"s_mov_b32 m0, {L_WC + 256}" if not optval("b1_", "") else ""}
    s_nop 0
    {f"global_load_lds_dword v{t3}, {sr(S_B1,2)}" if not optval("b1_", "") else f"global_load_lds_dword v7, {sr(S_W1,2)}"}
K_st3:"""
    a(f"    v_mov_b32 v6, v{t5}")
    if not w1late: a(ST2)
    tl = "1" if "nowpf" not in OPT else ""
    tk = 1 if tl else 0
    if tl:
        a(f"""
    ; the waves of a die pull the weights that are staged later into its L2, one line each
    s_lshr_b32 s{S_A}, s2, 3
    s_mul_i32 s{S_A}, s{S_A}, {NW}
    s_add_u32 s{S_A}, s{S_A}, s{S_WAVE}
    s_add_u32 s{S_B}, s{S_A}, 128            ; w1 lines 128..257
    s_mov_b64 {sr(S_J,2)}, {sr(S_W1,2)}
    s_sub_u32 s{S_A}, s{S_A}, 130
    s_cbranch_scc1 K_wp
    s_mov_b32 s{S_B}, s{S_A}                 ; w2 lines 0..127
    s_mov_b64 {sr(S_J,2)}, {sr(S_W2,2)}
    s_sub_u32 s{S_A}, s{S_A}, 128
    s_cbranch_scc1 K_wp
    s_and_b32 s{S_B}, s{S_A}, 1              ; b1 lines 0, 1
    s_mov_b64 {sr(S_J,2)}, {sr(S_B1,2)}
    s_cmp_lt_u32 s{S_A}, 2
    s_cbranch_scc1 K_wp
    s_mov_b32 s{S_B}, 0
    s_mov_b64 {sr(S_J,2)}, {sr(S_B2,2)}
K_wp:
    s_lshl_b32 s{S_B}, s{S_B}, 7
    v_mov_b32 v7, s{S_B}
    global_load_dword v5, v7, {sr(S_J,2)}""")
    a(f"""
    v_and_b32 v{vC8}, 3, v{L}
    v_lshlrev_b32 v{vC8}, 3, v{vC8}
    v_and_b32 v{t1}, 16, v{L}
    v_lshl_add_u32 v{vC8}, v{t1}, 1, v{vC8}  ; 8c + 32(g&1)
    s_lshr_b32 s{S_D}, s{S_WAVE}, 1          ; ct
    v_bfe_u32 v{t0}, v{L}, 2, 2
    v_xor_b32 v{t3}, s{S_D}, v{t0}
    v_lshlrev_b32 v{t3}, 6, v{t3}
    v_lshl_add_u32 v{t0}, v{HH}, 3, v{t0}
    v_lshl_add_u32 v{t0}, v{t0}, 8, v{t3}
    v_add_u32 v{vWa}, {L_W1}, v{t0}          ; k row 8*hh + r, column block ct^r
    v_and_b32 v{vWp}, 1, v{L}
    v_lshl_add_u32 v{vWp}, v{vWp}, 5, v{vWa}
    v_and_b32 v{t3}, 16, v{L}
    v_add_u32 v{vWp}, v{vWp}, v{t3}
    v_and_b32 v{t3}, 2, v{L}
    v_lshl_add_u32 v{vWp}, v{t3}, 2, v{vWp}  ; + 16(c&1) + 4(2(g&1) + (c>>1)) columns
    s_and_b32 s{S_A}, s{S_WAVE}, 1
    s_lshl_b32 s{S_A}, s{S_A}, 12
    s_add_u32 s{S_A}, s{S_A}, {L_XR}
    v_bfe_u32 v{t3}, v{L}, 1, 3
    v_xor_b32 v{t3}, v{t3}, v{HH}
    v_lshl_add_u32 v{t3}, v{t3}, 4, s{S_A}
    v_lshl_add_u32 v{vXa}, v{J}, 7, v{t3}
    v_xor_b32 v{vXa+1}, 32, v{vXa}
    v_xor_b32 v{vXa+2}, 64, v{vXa}
    v_xor_b32 v{vXa+3}, 0x60, v{vXa}
    s_mov_b32 s{S_A}, 21400
    s_mov_b32 s{S_B}, -{NB}
    s_mov_b32 s{S_C}, 0xffff0000
    v_mov_b32 v{t5}, 0x10004
    v_mov_b32 v{vBa+4}, 0
    v_mov_b32 v{v4k}, 0x4000
    s_waitcnt vmcnt({(7 if tl == "1" else 6) - (2 if w1late else 0)})""")
    a(f"""
    s_cmp_lg_u32 s{S_WAVE}, 11
    s_cbranch_scc1 K_wJ
    s_bfm_b64 exec, {XTRA}, 0""")
    assert L_ST - L_RL <= step + 4096
    def binops(cols):
        for i in cols: a(f"    v_mul_u32_u24 v{vBa+i}, s{S_A}, v{vDst+i}")
        for i in cols: a(f"    v_lshrrev_b32 v{vBa+i}, 18, v{vBa+i}")
        for i in cols:
            a(f"    v_and_b32 v{vBa+i}, 0x3fc, v{vBa+i}")
            a(f"    ds_add_rtn_u32 v{vRk+i}, v{vBa+i}, v{t5} offset:{L_H1}")
        for i in cols: a(f"    v_lshlrev_b32 v{vDst+i}, 2, v{vDst+i}")
        for i in cols: a(f"    v_mad_i32_i24 v{vDst+i}, v{vBa+i}, s{S_B}, v{vDst+i}")
        for i in cols: a(f"    v_bfe_u32 v{vCl+i}, v{vDst+i}, 2, 1")
    binops([4])
    a(f"""
    s_mov_b64 exec, -1
K_wJ:""")
    stamp(a, 2)
    binops(range(4))
    a(f"""
    s_waitcnt vmcnt({(2 if w1late else 4)+tk-(2 if sp == 'first' else 0)}) lgkmcnt(0)
    s_barrier""")
    stamp(a, 3)
    a(f"""
    s_cmp_eq_u32 s{S_WAVE}, 8
    s_cbranch_scc1 K_scan1
    s_cmp_gt_u32 s{S_WAVE}, 8
    s_cbranch_scc1 K_notP
    ; ---- waves 0..7: P^T tile = -log2(e) * (x w1[0:64])^T""")
    for s_ in range(4):
        a(f"    ds_read_b128 {vr(vX+4*s_,4)}, v{vXa+s_}")
        for h in range(2):
            a(f"    ds_read_b64_tr_b16 {vr(vWf+4*s_+2*h,2)}, v{vWp} offset:{4096*s_+1024*h}")
    for s_ in range(4):
        a(f"    s_waitcnt lgkmcnt({9-3*s_})")
        cin = "0" if s_ == 0 else vr(vAc, 16)
        a(f"    v_mfma_f32_32x32x16_bf16 {vr(vAc,16)}, {vr(vWf+4*s_,4)}, {vr(vX+4*s_,4)}, {cin}")
    a(f"""
    s_and_b32 s{S_B}, s{S_WAVE}, 1
    s_mul_i32 s{S_A}, s{S_B}, {32*PS_STRIDE}
    s_lshl_b32 s{S_B}, s{S_D}, 6
    s_add_u32 s{S_A}, s{S_A}, s{S_B}
    s_add_u32 s{S_A}, s{S_A}, {L_PS}
    v_mul_u32_u24 v{t3}, {PS_STRIDE}, v{J}
    v_lshl_add_u32 v{t3}, v{HH}, 5, v{t3}
    v_add_u32 v{t3}, s{S_A}, v{t3}
    v_mov_b32 v{t4}, {NLOG2E:#x}
    v_cmp_gt_u32 vcc, {L_PS + 56*PS_STRIDE}, v{t3}
    s_nop 1""")
    for q in range(8):
        a(f"    v_pk_mul_f32 {vr(vAc+2*q,2)}, {vr(vAc+2*q,2)}, {vr(t4,2)} op_sel_hi:[1,0]")
    for q in range(8):
        a(f"    v_cvt_pk_bf16_f32 v{vAc+q}, v{vAc+2*q}, v{vAc+2*q+1}")
    a(f"""
    s_mov_b64 exec, vcc
    ds_write_b128 v{t3}, {vr(vAc,4)}
    ds_write_b128 v{t3}, {vr(vAc+4,4)} offset:16
    s_mov_b64 exec, -1
    s_branch K_b3
K_notP:
    v_lshlrev_b32 v{t1}, 4, v{L}
    v_add_u32 v{t4}, {L_PS + 48*PS_STRIDE}, v{t1}
    v_add_u32 v{t1}, {48*256}, v{t1}
    s_branch K_b3
K_scan1:
    ; ---- wave 8: segment offsets; a segment is n records (4 bytes) followed by n node bytes, padded to 4
    s_setprio 2
    global_load_dwordx2 {vr(vTg,2)}, v{vZ}, {sr(S_DBG,2)}
    v_lshlrev_b32 v{t0}, 4, v{L}
    ds_read_b128 v[56:59], v{t0} offset:{L_H1}
    s_waitcnt lgkmcnt(0)""")
    for i in range(4):
        a(f"    v_lshrrev_b32 v{60+i}, 16, v{56+i}")
    for i in range(4):
        a(f"    v_mad_u32_u24 v{64+i}, v{60+i}, 5, 3")
    for i in range(4):
        a(f"    v_and_b32 v{64+i}, -4, v{64+i}")
    a(f"""
    v_add_u32 v65, v64, v65
    v_add_u32 v66, v65, v66
    v_add_u32 v67, v66, v67
    v_mov_b32 v68, v67""")
    wave_scan(a, 68)
    a(f"""
    v_sub_u32 v68, v68, v67
    v_add_u32 v69, v68, v64
    v_add_u32 v70, v68, v65
    v_add_u32 v71, v68, v66
    s_mov_b32 s{S_A}, 0x10001""")
    for i in range(4):
        a(f"    v_mul_u32_u24 v{64+i}, s{S_A}, v{68+i}")
    for i in range(4):
        a(f"    v_lshl_add_u32 v{64+i}, v{56+i}, 16, v{64+i}")
    a(f"""
    ds_write_b128 v{t0}, v[64:67] offset:{L_OFF}
    s_setprio 0
K_b3:
    v_lshrrev_b32 v{t0}, 4, v{T}
    v_lshl_add_u32 v{t0}, v{t0}, 4, v{t2}
    v_add_u32 v{t0}, {L_PS}, v{t0}
    s_lshl_b32 s{S_A}, s{S_N0}, 8
    s_add_u32 s{S_A}, s{S_A}, {WS_P}
    s_add_u32 s{S_RT}, s{S_WS}, s{S_A}
    s_addc_u32 s{S_RT+1}, s{S_WS+1}, 0
    s_lshl_b32 s{S_RT+2}, s{S_NN}, 8
    s_mov_b32 s{S_RT+3}, 0x00020000
    s_waitcnt lgkmcnt(0)
    s_barrier                                ; B3: segment offsets, P staged""")
    stamp(a, 4)
    a(f"""
    s_cmp_lt_u32 s{S_WAVE}, 10
    s_cbranch_scc1 K_nx0
    ds_read_b32 v{vOf+4}, v{vBa+4} offset:{L_OFF}
    ds_read_b128 v[76:79], v{t4}
K_nx0:
    ds_read_b128 v[72:75], v{t0}""")
    for i in range(4):
        a(f"    ds_read_b32 v{vOf+i}, v{vBa+i} offset:{L_OFF}")
    a(f"""
    s_waitcnt lgkmcnt(4)
    {"" if pdel else f"buffer_store_dwordx4 v[72:75], v{t2}, {sr(S_RT,4)}, 0 offen sc1"}""")
    if pdel: tk -= 1
    stamp(a, 24)
    a(f"""
    s_waitcnt vmcnt({(2 if w1late else 4)+tk})
    s_cmp_eq_u32 s{S_WAVE}, 8                ; (wave 8 has the tag load in flight as well)
    s_cbranch_scc1 K_w8
    s_waitcnt vmcnt({(1 if w1late else 3)+tk})
K_w8:""")
    stamp(a, 22)
    a(f"""
    v_lshl_or_b32 v{vSrc}, v{v4k}, v{vCl}, v{vSrc}
    v_lshl_or_b32 v{vSrc+1}, v{v4k}, v{vCl+1}, v{vSrc+1}
    v_lshl_or_b32 v{vSrc+2}, v{v4k}, v{vCl+2}, v{vSrc+2}
    v_lshl_or_b32 v{vSrc+3}, v{v4k}, v{vCl+3}, v{vSrc+3}
    v_lshl_or_b32 v{vSrc}, v{vEa}, 16, v{vSrc}
    v_and_or_b32 v{vSrc+1}, v{vEa}, s{S_C}, v{vSrc+1}
    v_lshl_or_b32 v{vSrc+2}, v{vEa+1}, 16, v{vSrc+2}
    v_and_or_b32 v{vSrc+3}, v{vEa+1}, s{S_C}, v{vSrc+3}
    s_waitcnt lgkmcnt(0)""")
    def scatter(i):
        a(f"    v_add_u32_sdwa v{vBa+i}, v{vOf+i}, v{vRk+i} {SD} src0_sel:WORD_0 src1_sel:WORD_0")
        a(f"    v_add_u32_sdwa v{vOf+i}, v{vOf+i}, v{vRk+i} {SD} src0_sel:WORD_1 src1_sel:WORD_1")
        a(f"    ds_write_b32 v{vBa+i}, v{vSrc+i} offset:{L_RS}")
        a(f"    ds_write_b8 v{vOf+i}, v{vDst+i} offset:{L_RS}")
    for i in range(4): scatter(i)
    a(f"""
    s_cmp_lt_u32 s{S_WAVE}, 10
    s_cbranch_scc1 K_nx2
    s_cmp_eq_u32 s{S_WAVE}, 11
    s_cbranch_scc1 K_x2
    buffer_store_dwordx4 v[76:79], v{t1}, {sr(S_RT,4)}, 0 offen sc1""")
    if optval("b1_", "") == "late":
        a(f"""
    s_mov_b32 m0, {L_WC + 256}
    v_lshlrev_b32 v{t3}, 2, v{L}
    global_load_lds_dword v{t3}, {sr(S_B1,2)}
""")
    a(f"""
    s_branch K_nx2
K_x2:
    s_bfm_b64 exec, {XTRA}, 0
    v_lshl_or_b32 v{vSrc+4}, v{v4k}, v{vCl+4}, v{vSrc+4}
    v_lshl_or_b32 v{vSrc+4}, v{vEa+2}, 16, v{vSrc+4}""")
    scatter(4)
    a(f"""
    s_mov_b64 exec, -1
K_nx2:""")
    if w1late: a(ST2)
    a(f"""
    s_mul_i32 s{S_A}, s2, {RSTRIDE}
    s_add_u32 s{S_RR}, s{S_WS}, s{S_A}
    s_addc_u32 s{S_RR+1}, s{S_WS+1}, 0
    s_mov_b32 s{S_RR+2}, 16512
    s_mov_b32 s{S_RR+3}, 0x00020000
    v_add_u32 v{t3}, {step}, v{t2}
    s_waitcnt lgkmcnt(0)""")
    if pdel == "1": a(f"    buffer_store_dwordx4 v[72:75], v{t2}, {sr(S_RT,4)}, 0 offen sc1")
    stamp(a, 23)
    a(f"""
    s_barrier""")
    stamp(a, 5)
    a(f"""
    ds_read_b128 v[0:3], v{t2} offset:{L_RS}
    s_cmp_ge_u32 s{S_WAVE}, 5
    s_cbranch_scc1 K_co1
    ds_read_b128 v[8:11], v{t2} offset:{L_RS + step}
    s_waitcnt lgkmcnt(0)
    buffer_store_dwordx4 v[8:11], v{t3}, {sr(S_RR,4)}, 0 offen sc1
K_co1:
    s_waitcnt lgkmcnt(0)
    buffer_store_dwordx4 v[0:3], v{t2}, {sr(S_RR,4)}, 0 offen sc1
    {f"buffer_store_dwordx4 v[72:75], v{t2}, {sr(S_RT,4)}, 0 offen sc1" if pdel == "2" else ""}
""")
    def emit_consts():
        a(f"""
    ; ---- lane constants, while the stores drain
    ; gather: lane -> row l>>4 of 4, piece l&15; odd rows have their 64-byte blocks swapped pairwise
    v_and_b32 v{tc}, 15, v{L}
    v_bfe_u32 v{t3}, v{L}, 4, 1
    v_lshlrev_b32 v{t3}, 2, v{t3}
    v_xor_b32 v{tc}, v{tc}, v{t3}
    v_lshlrev_b32 v{V_IX+1}, 4, v{tc}
    v_mov_b32 v{V_IX+3}, v{V_IX+1}
    v_mov_b32 v{V_IX+5}, v{V_IX+1}
    v_mov_b32 v{V_IX+7}, v{V_IX+1}
    v_lshrrev_b32 v{V_AIDX}, 4, v{L}
    v_lshlrev_b32 v{V_AIDX}, 1, v{V_AIDX}
    v_bfe_u32 v{tc}, v{L}, 3, 1
    v_xor_b32 v{t3}, v{tc}, v{HH}
    v_lshl_add_u32 v{t3}, v{t3}, 6, v{vC8}
    v_lshl_add_u32 v{tc}, v{tc}, 8, v{t3}
    s_lshl_b32 s{S_B}, s{S_WAVE}, 12
    s_add_u32 s{S_B}, s{S_B}, {L_XS}
    v_add_u32 v{tc}, s{S_B}, v{tc}
    v_bfe_u32 v{t4}, v{L}, 2, 1
    v_cmp_ne_u32 vcc, 0, v{t4}
    v_mov_b32 v{t3}, {L_Z}
    v_mov_b32 v{V_MN}, 1.0
    v_cndmask_b32 v{V_AA}, v{t3}, v{tc}, vcc
    v_cmp_eq_u32 {mask(0)}, v{t4}, v{HH}
    v_bfe_u32 v{tc}, v{L}, 3, 2
    v_and_b32 v{t3}, 3, v{L}
    v_lshl_add_u32 v{tc}, v{tc}, 2, v{t3}
    v_lshlrev_b32 v{tc}, 2, v{tc}
    v_add_u32 v{tc}, {L_G}, v{tc}
    v_mov_b32 v{t3}, {L_ZA}
    v_cndmask_b32 v{V_AENT}, v{t3}, v{tc}, {mask(0)}
    v_mov_b32 v{t3}, 0x80
    v_cndmask_b32 v{V_INCA}, 0, v{t3}, {mask(0)}""")
        for m in range(4):
            a(f"    s_movk_i32 s{S_P+m}, {3072 - 1024*m}")
        for c in range(2):
            a(f"    v_mov_b32 v{V_ND+4*c}, 0")
            a(f"    v_mov_b32 v{V_ND+4*c+1}, 0")
            a(f"    v_mov_b32 v{V_ND+4*c+2}, 1.0")
            a(f"    v_mov_b32 v{V_ND+4*c+3}, 1.0")
        a(f"""
    s_and_b32 s{S_A}, s{S_WAVE}, 3
    s_mul_i32 s{S_A}, s{S_A}, 3
    s_lshr_b32 s{S_B}, s{S_WAVE}, 2
    s_add_u32 s{S_SLOT}, s{S_A}, s{S_B}
    s_getpc_b64 {sr(S_PC,2)}
K_pc:
    s_add_u32 s{S_PC}, s{S_PC}, K_vbase - K_pc
    s_addc_u32 s{S_PC+1}, s{S_PC+1}, 0
    ; segment mapping of phase 2: segment 128 i + t/6, lane group g = t%6
    v_mul_u32_u24 v{tc}, 10923, v{T}
    v_lshrrev_b32 v{tc}, 16, v{tc}
    v_mad_i32_i24 v{vG4}, v{tc}, -6, v{T}
    v_lshlrev_b32 v{vG4}, 2, v{vG4}          ; 4g
    v_mul_u32_u24 v{vSb}, {RSTRIDE}, v{tc}
    ; share of P this lane pulls into L2
    s_lshr_b32 s{S_A}, s2, 3
    s_mul_i32 s{S_A}, s{S_A}, {256*128 if "hot" in OPT else 781*128}
    s_add_u32 s{S_A}, s{S_A}, {WS_P - (512*128 if "hot" in OPT else 0)}
    v_lshl_add_u32 v{vPf}, v{T}, 7, s{S_A}
    s_lshr_b32 s{S_B}, s{S_BIN}, 2
    s_lshl_b32 s{S_B}, s{S_B}, 4
    s_and_b32 s{S_A}, s{S_BIN}, 1
    s_lshl_b32 s{S_A}, s{S_A}, 3
    s_add_u32 s{S_B}, s{S_B}, s{S_A}
    s_and_b32 s{S_A}, s{S_BIN}, 2
    s_lshl_b32 s{S_A}, s{S_A}, 9
    s_add_u32 s{S_B}, s{S_B}, s{S_A}
    s_add_u32 s{S_B}, s{S_B}, {WS_TAB}
    v_lshl_add_u32 v{t5}, v{tc}, 11, s{S_B}  ; table entry offset""")
    cpos = optval("c_", "drain")
    if cpos == "drain": emit_consts()
    a(f"""
    s_mov_b32 s3, {NLOG2E:#x}
    s_cmp_lg_u32 s{S_WAVE}, 8
    s_cbranch_scc1 K_ntb
    s_mov_b32 s{S_K}, 0
    s_waitcnt vmcnt({4 if w1late else 2})
K_tagp:
    v_cmp_ne_u32 vcc, 0, v{vTg}
    s_cbranch_vccnz K_tagok
    s_add_u32 s{S_K}, s{S_K}, 1
    s_cmp_gt_u32 s{S_K}, {POLL_MAX}
    s_cbranch_scc1 K_tagok                   ; give up: tag 0 sends this workgroup to the slow path
    global_load_dwordx2 {vr(vTg,2)}, v{vZ}, {sr(S_DBG,2)} sc1
    s_waitcnt vmcnt(0)
    s_branch K_tagp
K_tagok:
    ds_write_b64 v{vZ}, {vr(vTg,2)} offset:{L_NONCE}
    v_and_b32 v{t3}, 0xfe000000, v{vTg}
    s_lshl_b32 s{S_B}, s2, 11
    s_add_u32 s{S_B}, s{S_B}, {WS_TAB}
    v_lshl_add_u32 v{t1}, v{L}, 4, s{S_B}""")
    for i in range(4):
        a(f"    v_lshrrev_b32 v{68+i}, 2, v{68+i}")
        a(f"    v_lshl_or_b32 v{68+i}, v{60+i}, 13, v{68+i}")
        a(f"    v_or_b32 v{vTb+2*i}, v{t3}, v{68+i}")
        a(f"    v_mov_b32 v{vTb+2*i+1}, v{vTg+1}")
    a(f"""
    s_waitcnt vmcnt(0) lgkmcnt(0)
    s_barrier                                ; B5
    s_cbranch_vccz K_slow
    global_store_dwordx4 v{t1}, {vr(vTb,4)}, {sr(S_WS,2)} sc1
    global_store_dwordx4 v{t1}, {vr(vTb+4,4)}, {sr(S_WS,2)} offset:1024 sc1
    s_branch K_b5j
K_ntb:
    s_waitcnt vmcnt(0)
    s_barrier                                ; B5: this workgroup's records and P rows are in memory
K_b5j:""")
    stamp(a, 6)
    a(f"""
    ds_read_b64 {vr(vTg,2)}, v{vZ} offset:{L_NONCE}
    v_lshlrev_b32 v{t0}, 1, v{L}
    v_add_u32 v{t0}, {L_WC}, v{t0}
    ds_read_u16 v{V_B5}, v{t0}
    ds_read_u16 v{V_B5+2}, v{t0} offset:128
    s_waitcnt lgkmcnt(0)
    v_readfirstlane_b32 s{S_TAG}, v{vTg}
    v_readfirstlane_b32 s{S_TAG+1}, v{vTg+1}
    s_cmp_eq_u32 s{S_TAG}, 0
    s_cbranch_scc1 K_slow""")
    for c in range(2):
        w = V_B5 + 2*c
        a(f"    v_lshlrev_b32 v{w}, 16, v{w}")
        a(f"    v_mul_f32 v{w}, s3, v{w}")
        a(f"    v_cvt_pk_bf16_f32 v{t3}, v{vZ}, v{w}")
        a(f"    v_sub_f32 v{t3}, v{w}, v{t3}")
        a(f"    v_cvt_pk_bf16_f32 v{w+1}, v{w}, v{t3}")
    a(f"""
    s_cmp_lt_u32 s{S_WAVE}, 8
    s_cbranch_scc1 K_Q
    ; waves 8..11 stage w2 and b2 (first used after the main loop)
    s_sub_u32 s{S_A}, s{S_WAVE}, 8
    s_lshl_b32 s{S_A}, s{S_A}, 12
    s_add_u32 m0, s{S_A}, {L_W2}
    v_lshl_add_u32 v{t3}, v{L}, 4, s{S_A}
    global_load_lds_dwordx4 v{t3}, {sr(S_W2,2)}
    global_load_lds_dwordx4 v{t3}, {sr(S_W2,2)} offset:1024
    global_load_lds_dwordx4 v{t3}, {sr(S_W2,2)} offset:2048
    global_load_lds_dwordx4 v{t3}, {sr(S_W2,2)} offset:3072
    s_cmp_lg_u32 s{S_WAVE}, 9
    s_cbranch_scc1 K_notQ
    s_mov_b32 m0, {L_B2}
    v_lshlrev_b32 v{t3}, 2, v{J}
    global_load_lds_dword v{t3}, {sr(S_B2,2)}
    s_branch K_notQ
K_Q:
    ; ---- waves 0..7: Q tile = -log2(e)/2 * (x w1[64:128] + b1) (selected by 2.0), while the table entries travel
    s_mov_b32 s3, {f32bits(-LOG2E/2):#x}
    s_lshl_b32 s{S_A}, s{S_D}, 6
    s_add_u32 s{S_A}, s{S_A}, {L_WC + 256}
    v_lshl_add_u32 v{t3}, v{J}, 1, s{S_A}
    ds_read_u16 v{vB1}, v{t3}
    v_add_u32 v{tc}, v{vWa}, v{vC8}""")
    for s_ in range(4):
        for h in range(2):
            a(f"    ds_read_b64_tr_b16 {vr(vWf+4*s_+2*h,2)}, v{tc} offset:{16384+4096*s_+1024*h}")
    a(f"""
    s_and_b32 s{S_A}, s{S_WAVE}, 1
    s_lshl_b32 s{S_B}, s{S_A}, 14
    s_lshl_b32 s{S_C}, s{S_D}, 7
    s_add_u32 s{S_B}, s{S_B}, s{S_C}
    s_add_u32 s{S_B}, s{S_B}, {L_QT - 512}
    v_lshl_add_u32 v{tc}, v{HH}, 11, s{S_B}
    v_lshl_add_u32 v{tc}, v{J}, 2, v{tc}""")
    for s_ in range(4):
        a(f"    s_waitcnt lgkmcnt({6-2*s_})")
        cin = "0" if s_ == 0 else vr(vAc, 16)
        a(f"    v_mfma_f32_32x32x16_bf16 {vr(vAc,16)}, {vr(vX+4*s_,4)}, {vr(vWf+4*s_,4)}, {cin}")
    a(f"""
    v_lshlrev_b32 v{vB1}, 16, v{vB1}
    v_mul_f32 v{vB1}, s3, v{vB1}
    s_nop 9""")
    def qpair(r):
        row = 8*(r >> 2) + (r & 3)
        a(f"    v_fma_f32 v{vAc+r}, v{vAc+r}, s3, v{vB1}")
        a(f"    v_fma_f32 v{vAc+r+1}, v{vAc+r+1}, s3, v{vB1}")
        a(f"    v_cvt_pk_bf16_f32 v{vWf+r}, v{vAc+r}, v{vAc+r+1}")
        a(f"    ds_write_b32 v{tc}, v{vWf+r} offset:{512*(row+1)}")
        a(f"    ds_write_b16 v{tc}, v{vWf+r} offset:{512*row}")
        a(f"    ds_write_b16_d16_hi v{tc}, v{vWf+r} offset:{512*(row+2)+2}")
    for r in range(0, 12, 2): qpair(r)
    a(f"""
    s_cmp_eq_u32 s{S_A}, 1
    s_cbranch_scc1 K_notQ""")
    for r in range(12, 16, 2): qpair(r)
    a(f"K_notQ:")
    if cpos == "post": emit_consts()
    stamp(a, 7)
    vT = 0
    vN = 4
    vAr = 6
    vR = 12
    vM = 28
    vA = 32
    vK = 48
    vB = 64
    a(f"""
    s_lshl_b32 s{S_B}, s{S_WAVE}, 12
    s_add_u32 m0, s{S_B}, {L_XS}
    s_mov_b32 s{S_RR}, s{S_WS}
    s_mov_b32 s{S_RR+1}, s{S_WS+1}
    s_mov_b32 s{S_RR+2}, {WS_TAB + 256*2048}
    s_mov_b32 s{S_A}, {128*2048}
    s_mov_b32 s{S_B}, {128*RSTRIDE}
    s_mov_b32 s{S_C}, 0xfe000000
    s_movk_i32 s{S_D}, 0xfc
    s_mov_b32 s{S_K}, 0
    {"s_sleep " + optval("fs", "0") if optval("fs", "0") != "0" else ""}
    s_mov_b64 {mask(0)}, -1
    s_mov_b64 {mask(1)}, -1
    v_mov_b32 v{vM}, 0
    v_mov_b32 v{vM+1}, 0
K_poll:
    s_mov_b64 exec, {mask(0)}
    s_cbranch_execz K_pl0
    buffer_load_dwordx2 {vr(vT,2)}, v{t5}, {sr(S_RR,4)}, 0 offen sc1
K_pl0:
    s_mov_b64 exec, {mask(1)}
    s_cbranch_execz K_pl1
    buffer_load_dwordx2 {vr(vT+2,2)}, v{t5}, {sr(S_RR,4)}, s{S_A} offen sc1
K_pl1:
    s_mov_b64 exec, -1
    s_waitcnt vmcnt(0)""")
    for i in range(2):
        a(f"    v_xor_b32 v{vN+i}, s{S_TAG}, v{vT+2*i}")
        a(f"    v_xor_b32 v{vAr+i}, s{S_TAG+1}, v{vT+2*i+1}")
        a(f"    v_and_or_b32 v{vAr+i}, v{vN+i}, s{S_C}, v{vAr+i}")
        a(f"    v_cmp_ne_u32 {mask(i)}, 0, v{vAr+i}")
    a(f"""
    s_add_u32 s{S_K}, s{S_K}, 1
    s_or_b64 vcc, {mask(0)}, {mask(1)}
    s_cbranch_scc0 K_got
    s_cmp_lt_u32 s{S_K}, {POLL_MAX}
    s_cbranch_scc1 K_poll
    ; gave up: no records from this wave, ask for the slow path
    s_mov_b32 s{S_MODE}, 1
    s_branch K_nor2a
K_got:""")
    if DIAG:
        a(f"    v_writelane_b32 v{V_STAMP}, s{S_K}, 20")
    stamp(a, 8)
    so = ["0", sr(S_B)]
    for i in range(2):
        a(f"    v_and_b32 v{vAr+i}, 0x1fff, v{vT+2*i}")
        a(f"    v_bfe_u32 v{vT+2*i+1}, v{vT+2*i}, 13, 12")
        a(f"    v_lshl_add_u32 v{vAr+i}, v{vAr+i}, 2, v{vSb}")
        a(f"    v_sub_u32 v{vN+i}, v{vT+2*i+1}, v{vG4}")
        a(f"    v_lshl_add_u32 v{vAr+2+i}, v{vT+2*i+1}, 2, v{vAr+i}")
        a(f"    v_cmp_lt_i32 {mask(4*i)}, 0, v{vN+i}")
        a(f"    v_lshl_add_u32 v{vAr+i}, v{vG4}, 2, v{vAr+i}")
        a(f"    v_add_u32 v{vAr+2+i}, v{vAr+2+i}, v{vG4}")
        a(f"    s_or_b64 exec, {mask(4*i)}, 1")
        a(f"    buffer_load_dword v{vM+i}, v{vAr+2+i}, {sr(S_RR,4)}, {so[i]} offen")
        a(f"    buffer_load_dwordx4 {vr(vR+4*i,4)}, v{vAr+i}, {sr(S_RR,4)}, {so[i]} offen")
        a(f"    s_mov_b64 exec, -1")
    for i in range(2):
        for k in range(1, 4):
            a(f"    v_cmp_lt_i32 {mask(4*i+k)}, {k}, v{vN+i}")
    a(f"""
    v_max_i32 v{t1}, v{vN}, v{vN+1}
    v_cmp_lt_i32 vcc, 24, v{t1}
    s_mov_b32 s{S_K}, 0
    s_cbranch_vccz K_nor2a
    s_mov_b32 s{S_K}, 1""")
    for i in range(2):
        a(f"    buffer_load_dword v{vM+2+i}, v{vAr+2+i}, {sr(S_RR,4)}, {so[i]} offen offset:24")
        a(f"    buffer_load_dwordx4 {vr(vR+8+4*i,4)}, v{vAr+i}, {sr(S_RR,4)}, {so[i]} offen offset:96")
        for k in range(4):
            a(f"    v_cmp_lt_i32 {mask(8+4*i+k)}, {24+k}, v{vN+i}")
    pf0 = int(optval("pf", "8"))
    a(f"""
    v_cmp_lt_i32 vcc, 48, v{t1}
    s_cbranch_vccz K_nor2a
    s_mov_b32 s{S_MODE}, 1                   ; a segment is too long for the fast path
K_nor2a:
    v_mov_b32 v{t4}, {L_FLAG}
    v_mov_b32 v{t0}, 4
    s_cmp_eq_u32 s{S_MODE}, 0
    s_cbranch_scc1 K_nofl
    ds_write_b32 v{t4}, v{t0}
K_nofl:
    s_waitcnt lgkmcnt(0)
    s_barrier
    ds_read_b32 v{t3}, v{t4}
    ; P descriptor: 256-byte records, base shifted by -3072
    s_add_u32 s{S_RX}, s{S_WS}, {WS_P - 3072}
    s_addc_u32 s{S_RX+1}, s{S_WS+1}, 0
    s_and_b32 s{S_RX+1}, s{S_RX+1}, 0xffff
    s_or_b32 s{S_RX+1}, s{S_RX+1}, 0x01000000
    s_mov_b32 s{S_RX+2}, {N_NODES}
    s_mov_b32 s{S_RX+3}, 0x00020000
    s_waitcnt lgkmcnt(0)
    v_cmp_ne_u32 vcc, 0, v{t3}
    s_cbranch_vccnz K_slow
    s_cmp_lt_u32 s{S_WAVE}, {pf0}
    s_cbranch_scc1 K_npf
    global_load_dword v{t5}, v{vPf}, {sr(S_WS,2)} sc1
    s_waitcnt vmcnt(1)
    s_branch K_pfJ
K_npf:
    v_and_b32 v72, 7, v{L}
    v_lshlrev_b32 v74, 4, v72
    v_add_u32 v74, {L_B2}, v74
    ds_read_b128 v[76:79], v74
    v_lshrrev_b32 v{E_XR}, 3, v{T}
    v_lshlrev_b32 v{E_XR}, 2, v{E_XR}        ; 4 * node
    v_lshlrev_b32 v{E_OUT}, 4, v{T}          ; output byte offset
    v_lshlrev_b32 v72, 5, v72
    v_add_u32 v{E_NX}, {L_QT}, v72
    s_waitcnt lgkmcnt(0)""")
    vBu = [128, 130, 92, 152]
    for q in range(4):
        a(f"    v_lshlrev_b32 v{vBu[q]}, 16, v{76+q}")
        a(f"    v_and_b32 v{vBu[q]+1}, 0xffff0000, v{76+q}")
    assert pf0 >= 7
    a(f"""
    s_cmp_ge_u32 s{S_WAVE}, 4
    s_cbranch_scc1 K_np1
    v_bfe_u32 v70, v{L}, 2, 1
    v_bfe_u32 v71, v{L}, 3, 1
    v_lshl_add_u32 v70, v70, 6, v71
    v_lshrrev_b32 v71, 4, v{L}               ; g
    v_lshl_add_u32 v70, v71, 2, v70
    v_lshlrev_b32 v70, 7, v70
    v_and_b32 v72, 3, v{L}
    v_lshl_add_u32 v70, v72, 4, v70
    v_add_u32 v{E_W2}, {L_W2}, v70
    v_and_b32 v70, 15, v{L}
    s_lshl_b32 s{S_C}, s{S_WAVE}, 4
    v_add_u32 v70, s{S_C}, v70               ; row
    v_mul_u32_u24 v72, {ST_STRIDE}, v70
    v_lshl_add_u32 v72, v71, 4, v72
    v_add_u32 v{E_SR}, {L_ST}, v72
    v_mul_u32_u24 v72, {OF_STRIDE}, v70
    v_lshl_add_u32 v72, v71, 5, v72
    v_add_u32 v{E_OW}, {L_QT}, v72
K_np1:
    s_waitcnt vmcnt(0)
K_pfJ:""")
    stamp(a, 9)
    def count_cols(ks):
        for k in ks:
            a(f"    v_and_b32_sdwa v{vA+k}, v{vM+k//4}, s{S_D} {SD} src0_sel:BYTE_{k%4} src1_sel:DWORD")
        for k in ks:
            a(f"    s_mov_b64 exec, {mask(k)}")
            a(f"    ds_add_rtn_u32 v{vK+k}, v{vA+k}, v{t0} offset:{L_H2}")
        a(f"    s_mov_b64 exec, -1")
    count_cols(range(8))
    a(f"""
    s_cmp_eq_u32 s{S_K}, 0
    s_cbranch_scc1 K_nor2b""")
    count_cols(range(8, 16))
    a(f"""
K_nor2b:
    v_lshlrev_b32 v{t1}, 2, v{L}
    v_cmp_gt_u32 vcc, s{S_NN}, v{L}
    s_waitcnt lgkmcnt(0)
    s_barrier""")
    stamp(a, 10)
    a(f"""
    ds_read_b32 v{V_CNT}, v{t1} offset:{L_H2}
    s_waitcnt lgkmcnt(0)
    v_add_u32 v{vP}, 4, v{V_CNT}
    v_and_b32 v{vP}, -8, v{vP}
    v_max_u32 v{vP}, 64, v{vP}
    v_cndmask_b32 v{vP}, 0, v{vP}, vcc
    v_mov_b32 v{vS}, v{vP}""")
    wave_scan(a, vS)
    a(f"""
    s_nop 0
    v_readlane_b32 s{S_A}, v{vS}, 63
    v_sub_u32 v{vS}, v{vS}, v{vP}
    ds_write_b32 v{t1}, v{vS} offset:{L_SX}
    s_cmp_gt_u32 s{S_A}, {ENT_CAP*4}
    s_cbranch_scc1 K_slow""")
    def place_cols(ks, mid=None):
        ks = list(ks)
        for k in ks:
            a(f"    ds_read_b32 v{vB+k}, v{vA+k} offset:{L_SX}")
        if mid: a(mid)
        for n, k in enumerate(ks):
            if n % 2 == 0:
                a(f"    s_waitcnt lgkmcnt({len(ks)-2-n})")
            a(f"    v_add_u32 v{vK+k}, v{vB+k}, v{vK+k}")
        for k in ks:
            a(f"    s_mov_b64 exec, {mask(k)}")
            a(f"    ds_write_b32 v{vK+k}, v{vR+k} offset:{L_RL}")
        a(f"    s_mov_b64 exec, -1")
    place_cols(range(8), f"""
    s_add_u32 s{S_A}, s{S_A}, 63
    s_lshr_b32 s{S_TT}, s{S_A}, 6            ; tiles
    s_mul_i32 s{S_T0}, s{S_SLOT}, s{S_TT}
    s_add_u32 s{S_NT}, s{S_T0}, s{S_TT}
    s_mul_i32 s{S_T0}, s{S_T0}, 43691
    s_mul_i32 s{S_NT}, s{S_NT}, 43691
    s_lshr_b32 s{S_T0}, s{S_T0}, 19
    s_lshr_b32 s{S_NT}, s{S_NT}, 19
    s_sub_u32 s{S_NT}, s{S_NT}, s{S_T0}""")
    a(f"""
    s_cmp_eq_u32 s{S_K}, 0
    s_cbranch_scc1 K_nor2c
    s_waitcnt lgkmcnt(0)""")
    place_cols(range(8, 16))
    thr = [int(x) for x in optval("thr", "10_5").split("_")] + [2]
    vBk = 80
    vGr = 82
    a(f"""
K_nor2c:
    s_lshl_b32 s{S_A}, s{S_T0}, 6            ; list position of this wave
    v_lshl_add_u32 v{t3}, v{V_AIDX}, 1, s{S_A}
    v_add_u32 v{t2}, s{S_A}, v{t1}
    ; first node of this wave: n = #(m < nn : start[m] <= ts) - 1
    v_cmp_ge_u32 {mask(0)}, s{S_A}, v{vS}
    v_subrev_u32 v{t0}, s{S_A}, v{vS}
    s_and_b64 {mask(0)}, {mask(0)}, vcc
    s_bcnt1_i32_b64 s{S_B}, {mask(0)}
    s_sub_u32 s{S_B}, s{S_B}, 1              ; n
    s_andn2_b64 {mask(0)}, vcc, {mask(0)}
    v_bfe_u32 v{t4}, v{t0}, 3, 3
    v_add_u32 v{t4}, 1, v{t4}
    v_lshrrev_b32 v{t0}, 6, v{t0}
    v_min_u32 v{t0}, 63, v{t0}
    v_cndmask_b32 v{t0}, 63, v{t0}, {mask(0)}
    v_lshlrev_b32 v{t0}, 2, v{t0}
    v_mov_b32 v{vBk}, 0
    {"" if "novar" in OPT else f"ds_permute_b32 v{vBk}, v{t0}, v{t4}"}
    s_lshl_b32 s{S_D}, s{S_NT}, 4""")
    for c in range(5):
        a(f"    v_cmp_gt_i32 {mask(5+c)}, s{S_D}, v{L}")
        a(f"    s_sub_u32 s{S_D}, s{S_D}, 64")
    a(f"""
    s_cmp_ge_u32 s{S_WAVE}, 7
    s_cbranch_scc1 K_nprep
    ; rows of node = lane: first = node + slot(first tile), extra = slot(last tile) - slot(first tile)
    v_cvt_f32_u32 v70, s{S_TT}
    v_rcp_f32 v70, v70
    v_add3_u32 v{vP}, v{vS}, v{vP}, -4
    v_lshrrev_b32 v{vS}, 6, v{vS}
    v_lshrrev_b32 v{vP}, 6, v{vP}
    v_cvt_f32_u32 v{vS}, v{vS}
    v_cvt_f32_u32 v{vP}, v{vP}
    v_add_f32 v{vS}, {f32bits((NW-0.5)/NW):#x}, v{vS}
    v_add_f32 v{vP}, {f32bits((NW-0.5)/NW):#x}, v{vP}
    v_mul_f32 v70, {f32bits(NW):#x}, v70
    v_mul_f32 v{vS}, v{vS}, v70
    v_mul_f32 v{vP}, v{vP}, v70
    v_cvt_u32_f32 v{vS}, v{vS}
    v_cvt_u32_f32 v{vP}, v{vP}
    v_sub_u32 v{vP}, v{vP}, v{vS}
    v_add_u32 v{vS}, v{vS}, v{L}
    v_lshl_or_b32 v{vS}, v{vP}, 8, v{vS}
    v_lshl_or_b32 v{V_CNT}, v{vS}, 16, v{V_CNT}
    ds_bpermute_b32 v73, v{E_XR}, v{V_CNT}
    s_lshl_b32 s{S_C}, s{S_NN}, 2
    v_cmp_gt_u32 vcc, s{S_C}, v{E_XR}
    s_movk_i32 s{S_C}, {OF_STRIDE}
    v_mov_b32 v75, {L_Z2}
    s_waitcnt lgkmcnt(0)
    v_cndmask_b32 v73, 0, v73, vcc
    v_bfe_u32 v{E_ROW}, v73, 16, 8
    v_lshrrev_b32 v{E_XR}, 24, v73
    v_and_b32 v74, 0xffff, v73
    v_mad_u32_u24 v{E_ROW}, v{E_ROW}, s{S_C}, v{E_NX}
    v_cvt_f32_u32 v74, v74
    v_add_u32 v{E_NX}, {OF_STRIDE}, v{E_ROW}
    v_cndmask_b32 v{E_ROW}, v75, v{E_ROW}, vcc
    v_cmp_lt_u32 vcc, 0, v{E_XR}
    v_mul_f32 v74, 0x3e800000, v74           ; degree""")
    for q in range(4):
        a(f"    v_pk_mul_f32 {vr(E_DB[q],2)}, {vr(vBu[q],2)}, v[74:75] op_sel_hi:[1,0]")
    a(f"    v_cndmask_b32 v{E_R2}, v75, v{E_NX}, vcc")
    a(f"""
K_nprep:
    s_waitcnt lgkmcnt(0)
    s_barrier""")
    stamp(a, 11)
    for m in range(4):
        a(f"    ds_read_u16 v{V_IX+2*m}, v{t3} offset:{L_RL + 16*m}")
    for c in range(5):
        a(f"    ds_read_b32 v{vGr+c}, v{t2} offset:{L_RL + 256*c}")
    a(f"""
    s_lshr_b32 s{S_C}, s{S_A}, 1
    s_add_u32 s{S_C}, s{S_C}, {L_IX}
    v_add_u32 v{V_AIDX}, s{S_C}, v{V_AIDX}
    v_lshl_add_u32 v{t0}, v{L}, 1, s{S_C}
    s_mov_b32 s{S_C}, 0x03020302
    s_mov_b32 s{S_D}, 0x8001
    s_waitcnt lgkmcnt(5)""")
    for m in range(4):
        a(f"    v_and_b32 v{V_IX+2*m}, {0xfff if 'cheat1' in OPT or 'cheat2' in OPT else PADREC}, v{V_IX+2*m}")
    for h in dma_ops(): a(h)
    if "st2" in OPT:
        a(f"""
    s_cmp_lt_u32 s{S_WAVE}, 8
    s_cbranch_scc1 K_ns2
    v_add_u32 v{vPf}, 0x100000, v{vPf}
    global_load_dword v{t5}, v{vPf}, {sr(S_WS,2)} sc1
K_ns2:""")
    a(f"    ; this wave's entries -> one-hot word, (e, e), source node")
    a(f"    s_waitcnt lgkmcnt(0)")
    for c in range(5):
        a(f"    v_and_b32 v{vGr+5+c}, 0xc000, v{vGr+c}")
        a(f"    v_perm_b32 v{64+c}, v{vGr+c}, v{vGr+c}, s{S_C}")
        a(f"    v_xor_b32 v{vGr+c}, v{vGr+c}, v{vGr+5+c}")
        a(f"    v_mul_u32_u24 v{vGr+5+c}, s{S_D}, v{vGr+5+c}")
        a(f"    v_and_b32 v{vGr+5+c}, 0x40004000, v{vGr+5+c}")
    for c in range(5):
        a(f"    s_mov_b64 exec, {mask(5+c)}")
        a(f"    ds_write2st64_b32 v{t2}, v{vGr+5+c}, v{64+c} offset0:{L_G//256 + c} offset1:{L_RL//256 + c}")
        a(f"    ds_write_b16 v{t0}, v{vGr+c} offset:{128*c}")
    a(f"""
    s_mov_b64 exec, -1
    s_lshl_b32 s{S_C}, s{S_B}, 9
    s_add_u32 s{S_C}, s{S_C}, {L_QT}
    v_add_u32 v{V_AQ}, s{S_C}, v{t1}
    v_lshrrev_b32 v{t4}, 7, v{V_INCA}
    v_mad_u32_u24 v{V_AENT}, v{t4}, s{S_A}, v{V_AENT}""")
    for h in ent_reads(0) + q_reads() + idx_reads(32): a(h)
    a(f"""
    s_add_u32 s{S_C}, s{S_B}, s{S_SLOT}
    s_mul_i32 s{S_C}, s{S_C}, {ST_STRIDE}
    s_add_u32 s{S_C}, s{S_C}, {L_ST}
    v_add_u32 v{V_AS}, s{S_C}, v{t1}
    v_add_u32 v{V_AQ}, 0x200, v{V_AQ}
    ; jump table: slot of the variant, entry inside it (priority steps near the end), exit at lane nt
    v_and_b32 v{t4}, 1, v{L}
    v_mad_u32_u24 v{t4}, v{t4}, 9, v{vBk}
    v_sub_u32 v{t0}, s{S_NT}, v{L}
    v_mov_b32 v{t3}, {ENTRY}""")
    for i, th in enumerate(thr):
        a(f"    v_cmp_eq_u32 {mask(i)}, {th}, v{t0}")
    a(f"    v_cmp_eq_u32 {mask(3)}, 0, v{t0}")
    a(f"    s_movk_i32 s{S_C}, {VAR_SIZE}")
    for i, th in enumerate(thr):
        a(f"    v_cndmask_b32 v{t3}, v{t3}, {8*i}, {mask(i)}")
    a(f"""
    v_mad_u32_u24 v{t4}, v{t4}, s{S_C}, v{t3}
    v_mov_b32 v{t3}, K_exit - K_vbase
    v_cndmask_b32 v{t4}, v{t4}, v{t3}, {mask(3)}
    ds_bpermute_b32 v{V_TAB}, v{t1}, v{t4} offset:4
    s_mov_b32 s{S_K}, 1
    v_readlane_b32 s{S_J}, v{t4}, 0
    s_setprio 3
    s_waitcnt vmcnt(0)""")
    stamp(a, 12)
    for h in tr_reads(0): a(h)
    a(f"""
    s_add_u32 s{S_J}, s{S_J}, s{S_PC}
    s_addc_u32 s{S_J+1}, s{S_PC+1}, 0
    s_waitcnt lgkmcnt(0)""")
    a(small(0, 0))
    if "cheat2" in OPT:
        for m in range(2): a(f"    v_and_b32 v{V_IX+2*m}, 0xfff, v{V_IX+2*m}")
    for h in dma_ops(): a(h)
    a(small(0, 1))
    a(f"    v_lshl_or_b32 v{V_TAB}, v{V_TAB}, 16, v{t4}")
    if optval("late", "4_6"): a("    s_nop 9")
    stamp(a, 13); stamp(a, 14, True)
    a(f"    s_setpc_b64 {sr(S_J,2)}")
    a(f".p2align 6")
    a(f"K_vbase:")
    for s_ in range(2):
        for b in [None] + list(range(8)):
            tile_variant(a, s_, b)
    a(f".p2align 3")
    a(f"K_exit:")
    stamp(a, 15); stamp(a, 16, True)
    flush1(a)
    a("    s_nop 0")
    flush2(a)
    a(f"""
    v_cmp_eq_f32 vcc, 0, v{V_MN}
    s_cbranch_vccz K_join
    ; a denominator left the f32 range: redo this bin on the exact slow path
    v_mov_b32 v65, {L_FLAG}
    ds_write_b32 v65, v65
K_join:
    s_cmp_ge_u32 s{S_WAVE}, 7
    s_cbranch_scc1 K_st2a
    s_lshl_b32 s{S_A}, s{S_N0}, 7
    s_add_u32 s{S_RT}, s{S_OUT}, s{S_A}
    s_addc_u32 s{S_RT+1}, s{S_OUT+1}, 0
    s_lshl_b32 s{S_RT+2}, s{S_NN}, 7
    s_mov_b32 s{S_RT+3}, 0x00020000
    s_movk_i32 s{S_C}, 0x207
    s_mov_b32 s{S_A}, 1
    v_mov_b32 v96, {NLN2:#x}
    v_mov_b32 v98, {L_Z2}
    s_cmp_ge_u32 s{S_WAVE}, 4
    s_cbranch_scc1 K_st2a
    ; ================= output, stage 1: products of the sum rows with w2""")
    for ot in range(4):
        for ks in range(4):
            for h in range(2):
                a(f"    ds_read_b64_tr_b16 {vr(16*ot+4*ks+2*h,2)}, v{E_W2} offset:{2048*ks+256*h+64*(ot>>1)+8*(ot&1)}")
    a(f"""
    s_waitcnt lgkmcnt(0)
    s_barrier""")
    stamp(a, 17)
    for ks in range(4):
        a(f"    ds_read_b128 {vr(64+4*ks,4)}, v{E_SR} offset:{64*ks}")
    def mf(ot, ks):
        d = vr(80 + 4*ot, 4)
        a(f"    v_mfma_f32_16x16x32_bf16 {d}, {vr(16*ot+4*ks,4)}, {vr(64+4*ks,4)}, {'0' if ks == 0 else d}")
    for ks in range(4):
        a(f"    s_waitcnt lgkmcnt({3-ks})")
        mf(0, ks); mf(1, ks)
    for ks in range(4):
        mf(2, ks); mf(3, ks)
    a(f"""
    ds_write_b128 v{E_OW}, v[80:83]
    ds_write_b128 v{E_OW}, v[84:87] offset:16
    s_nop 4
    ds_write_b128 v{E_OW}, v[88:91] offset:128
    ds_write_b128 v{E_OW}, v[92:95] offset:144
    s_waitcnt lgkmcnt(0)
    s_branch K_st2b
K_st2a:
    s_waitcnt lgkmcnt(0)
    s_barrier                                ; B9
K_st2b:
    s_cmp_ge_u32 s{S_WAVE}, 7
    s_barrier
    s_cbranch_scc1 K_fin
    ds_read_b128 v[64:67], v{E_ROW}
    ds_read_b128 v[68:71], v{E_ROW} offset:16
K_rows:
    ds_read_b128 v[72:75], v{E_R2}
    ds_read_b128 v[76:79], v{E_R2} offset:16
    v_cmp_lt_u32 vcc, s{S_A}, v{E_XR}
    v_add_u32 v{E_NX}, {OF_STRIDE}, v{E_NX}
    s_add_u32 s{S_A}, s{S_A}, 1
    s_waitcnt lgkmcnt(0)""")
    for q in range(4):
        a(f"    v_pk_add_f32 {vr(64+2*q,2)}, {vr(64+2*q,2)}, {vr(72+2*q,2)}")
    a(f"""
    v_cndmask_b32 v{E_R2}, v98, v{E_NX}, vcc
    s_cbranch_vccnz K_rows""")
    for q in range(4):
        a(f"    v_pk_fma_f32 {vr(64+2*q,2)}, {vr(64+2*q,2)}, v[96:97], {vr(E_DB[q],2)} op_sel_hi:[1,0,1]")
    for q in range(4):
        a(f"    v_cvt_pk_bf16_f32 v{72+q}, v{64+2*q}, v{65+2*q}")
    a(f"""
    buffer_store_dwordx4 v[72:75], v{E_OUT}, {sr(S_RT,4)}, 0 offen sc1
    ; a non-finite sum makes every output of its node non-finite: redo this bin on the exact slow path
    v_cmp_class_f32 vcc, v64, s{S_C}
    s_cbranch_vccz K_fin
    v_mov_b32 v65, {L_FLAG}
    ds_write_b32 v65, v65
K_fin:
    v_mov_b32 v65, {L_FLAG}
    s_waitcnt lgkmcnt(0)
    s_barrier                                ; B10
    ds_read_b32 v64, v65
    s_waitcnt lgkmcnt(0)
    v_cmp_ne_u32 vcc, 0, v64
    {"" if "novar" in OPT or "nodma" in OPT else "s_cbranch_vccnz K_slow"}""")
    if DIAG:
        a("    s_waitcnt vmcnt(0)")
        stamp(a, 18); stamp(a, 19, True)
        a(f"""
    v_writelane_b32 v{V_STAMP}, s{S_NT}, 21
    s_lshl_b32 s{S_A}, s2, 4
    s_add_u32 s{S_A}, s{S_A}, s{S_WAVE}
    s_lshl_b32 s{S_A}, s{S_A}, 8
    s_add_u32 s{S_A}, s{S_A}, {WS_STAMP}
    v_lshl_add_u32 v64, v{L}, 2, s{S_A}
    s_mov_b64 exec, 0xffffffff
    global_store_dword v64, v{V_STAMP}, {sr(S_WS,2)}
    global_store_dword v64, v{V_TRACE}, {sr(S_WS,2)} offset:128""")
    if optval("clk", ""):
        a(f"""
    s_lshl_b32 s{S_A}, s2, 4
    s_add_u32 s{S_A}, s{S_A}, s{S_WAVE}
    s_cmp_lg_u32 s{S_A}, {16*int(optval("wg", "100"))}
    s_cbranch_scc1 K_end
    s_lshl_b32 s{S_A}, s{S_TAG+1}, 7
    s_lshr_b32 s{S_B}, s{S_TAG}, 25
    s_or_b32 s{S_A}, s{S_A}, s{S_B}
    v_cvt_f32_u32 v64, s98
    v_cvt_f32_u32 v65, s99
    v_rcp_f32 v64, v64
    s_nop 1
    v_mul_f32 v64, v64, v65
    v_subrev_f32 v64, {f32bits(15.0):#x}, v64
    v_mul_f32 v64, {f32bits(float(optval("mul", "100"))):#x}, v64
    v_cvt_u32_f32 v64, v64
    s_nop 1
    v_readfirstlane_b32 s{S_B}, v64
    s_min_u32 s{S_B}, s{S_B}, 20000
    {f's_sub_u32 s{S_B}, {optval("clk", "")}, s{S_B}' if "neg" in OPT else f's_add_u32 s{S_B}, s{S_B}, {optval("clk", "")}'}
K_spin5:
    s_memrealtime s[98:99]
    s_waitcnt lgkmcnt(0)
    s_sub_u32 s98, s98, s{S_A}
    s_cmp_lt_u32 s98, s{S_B}
    s_cbranch_scc1 K_spin5""")
    if "endamp" in OPT:
        a(f"""
    s_waitcnt vmcnt(0)
    s_memrealtime s[100:101]
    s_lshl_b32 s{S_A}, s2, 4
    s_add_u32 s{S_A}, s{S_A}, s{S_WAVE}
    s_cmp_lg_u32 s{S_A}, {16*int(optval("wg", "100"))}
    s_cbranch_scc1 K_end
    s_lshl_b32 s{S_A}, s{S_TAG+1}, 7
    s_lshr_b32 s{S_B}, s{S_TAG}, 25
    s_or_b32 s{S_A}, s{S_A}, s{S_B}
    s_waitcnt lgkmcnt(0)
    s_sub_u32 s{S_B}, s100, s98
    s_min_u32 s{S_B}, s{S_B}, 2000
    s_mul_i32 s{S_B}, s{S_B}, 20
    s_add_u32 s{S_B}, s{S_B}, 3000
K_spin4:
    s_memrealtime s[98:99]
    s_waitcnt lgkmcnt(0)
    s_sub_u32 s98, s98, s{S_A}
    s_cmp_lt_u32 s98, s{S_B}
    s_cbranch_scc1 K_spin4""")
    if optval("fix", "") != "":
        a(f"""
    s_lshl_b32 s{S_A}, s2, 4
    s_add_u32 s{S_A}, s{S_A}, s{S_WAVE}
    s_cmp_lg_u32 s{S_A}, 1600
    s_cbranch_scc1 K_end
    s_lshl_b32 s{S_A}, s{S_TAG+1}, 7
    s_lshr_b32 s{S_B}, s{S_TAG}, 25
    s_or_b32 s{S_A}, s{S_A}, s{S_B}
K_spin3:
    s_memrealtime s[98:99]
    s_waitcnt lgkmcnt(0)
    s_sub_u32 s98, s98, s{S_A}
    s_cmp_lt_u32 s98, {optval("fix", "")}
    s_cbranch_scc1 K_spin3""")
    if optval("amp", "") != "":
        a(f"""
    s_waitcnt vmcnt(0)
    s_cmp_lg_u32 s{S_WAVE}, {optval("aw", "0")}
    s_cbranch_scc1 K_end
    s_lshl_b32 s{S_A}, s{S_TAG+1}, 7
    s_lshr_b32 s{S_B}, s{S_TAG}, 25
    s_or_b32 s{S_A}, s{S_A}, s{S_B}""")
        if optval("amp", "") == "99":
            a("    s_memrealtime s[98:99]\n    s_waitcnt lgkmcnt(0)")
        a(f"""
    s_sub_u32 s{S_B}, s98, s{S_A}
    s_mov_b64 exec, 1
    v_mov_b32 v64, 0
    v_mov_b32 v65, s{S_B}
    v_mov_b32 v66, 1
    {"v_sub_u32 v65, 0x1000, v65" if "min" in OPT else ""}
    global_atomic_{"add" if "avg" in OPT else "umax"} v64, v65, {sr(S_DBG,2)} offset:128 sc1
    s_sub_u32 s{S_C}, s100, s{S_A}
    v_mov_b32 v68, s{S_C}
    {f"global_atomic_add v64, v68, {sr(S_DBG,2)} offset:144 sc1" if optval("sel", "") else ""}
    s_waitcnt vmcnt(0)
    global_atomic_add v67, v64, v66, {sr(S_DBG,2)} offset:136 sc0 sc1
    s_waitcnt vmcnt(0)
    v_readfirstlane_b32 s{S_B}, v67
    s_cmp_lg_u32 s{S_B}, 255
    s_cbranch_scc1 K_end
    global_atomic_add v67, v64, v64, {sr(S_DBG,2)} offset:128 sc0 sc1
    global_atomic_add v68, v64, v64, {sr(S_DBG,2)} offset:144 sc0 sc1
    s_waitcnt vmcnt(0)
    v_readfirstlane_b32 s{S_C}, v68
    s_cmp_lt_u32 s{S_C}, {390*256}
    {"s_cbranch_scc0 K_end" if optval("sel", "") == "lo" else ""}
    {"s_cbranch_scc1 K_end" if optval("sel", "") == "hi" else ""}
    v_readfirstlane_b32 s{S_B}, v67
    s_mul_i32 s{S_B}, s{S_B}, {optval("mul", "5")}
    {f"s_lshr_b32 s{S_B}, s{S_B}, 8" if "avg" in OPT else ""}
    s_min_u32 s{S_B}, s{S_B}, {optval("base", "0") if "neg" in OPT else 200000}
    {f's_sub_u32 s{S_B}, {optval("base", "0")}, s{S_B}' if "neg" in OPT else f's_add_u32 s{S_B}, s{S_B}, {optval("base", "0")}'}
K_spin2:
    s_memrealtime s[98:99]
    s_waitcnt lgkmcnt(0)
    s_sub_u32 s98, s98, s{S_A}
    s_cmp_lt_u32 s98, s{S_B}
    s_cbranch_scc1 K_spin2""")
    a(f"""
K_end:
    s_endpgm
K_slow:
    ; ================= exact path without hand-offs: scan all edges for this bin
    s_setprio 0
    s_mov_b32 s16, s{S_N0}
    s_mov_b32 s17, s{S_NN}
    s_mov_b32 s18, s{S_WAVE}""")
    gen_slow(a, 16, 17, 18, L, NLOG2E, NW=NW)
    a("    s_endpgm")

def main():
    global DIAG
    out = sys.argv[1]
    DIAG = "diag" in sys.argv[2:] or "lite" in sys.argv[2:]
    OPT.update(sys.argv[2:])
    a = Asm()
    a(f"""; Edge-featured MPNN layer: out[n] = sum_(e: dst=n) (silu([x[src],x[dst],e] w1 + b1) w2 + b2)
; @launch grid=(256,1,1) block=({NT_},1,1) lds={L_END}
.amdgcn_target "amdgcn-amd-amdhsa--gfx950"
.text""")
    gen_kernel(a)
    a(f"""
.section .rodata,"a"
.p2align 6
.amdhsa_kernel {KNAME}
  .amdhsa_next_free_vgpr {NVGPR}
  .amdhsa_next_free_sgpr 102
  .amdhsa_accum_offset {NVGPR}
  .amdhsa_group_segment_fixed_size 0
  .amdhsa_kernarg_size 88
  .amdhsa_user_sgpr_count 2
  .amdhsa_user_sgpr_kernarg_segment_ptr 1
  .amdhsa_system_sgpr_workgroup_id_x 1
  .amdhsa_float_denorm_mode_32 3
.end_amdhsa_kernel""")
    open(out, "w").write(a.text())

if __name__ == "__main__":
    main()
```

```python
import sys, struct
from slow import gen_slow

NAME = "standalone__edge_featured_mpnn_mpnn__graph"
KNAME = NAME + "_kernel"
N_NODES = 12500
NB = 49
NW = 12
NT_ = 64 * NW
MAINE = 4 * NT_
XTRA = 53
RSTRIDE = 16640

WS_TAB = 0x420000
WS_P = 0x4C0000
WS_STAMP = 0xA00000

L_Z = 128
L_H2 = 272
L_FLAG = 536
L_NONCE = 544
L_Z2 = 2048
OF_STRIDE = 272
L_SX = 1296
ENT_CAP = 3472
LSZ = 14080
L_ZA = 4096 - 144
L_G = 4096
L_RL = L_G + LSZ
L_ST = L_RL + LSZ
ST_STRIDE = 288
L_RW = L_ST + 19968
L_IX = L_ST + 20480
L_QT = (L_IX + LSZ // 2 + 255) // 256 * 256 + 512
L_XS = L_QT + 49 * 512
assert LSZ % 256 == 0 and (ENT_CAP + 48) * 4 == LSZ
L_W2 = L_XS + NW * 4096
L_B2 = L_W2 + 16384
L_END = L_B2 + 256
L_RS = L_ST
L_H1 = L_ST + 16640
L_OFF = L_H1 + 1024
L_W1 = L_XS
L_WC = L_XS + 32768
L_PS = L_WC + 512
L_XR = L_W2
PS_STRIDE = 272
assert L_XS % 256 == 0 and L_END <= 163840
assert L_H1 + 3072 <= L_RW and 64 * ST_STRIDE <= 19968 and L_OFF + 1024 < 65536 and L_PS + 56 * PS_STRIDE <= L_W2

def f32bits(x):
    return struct.unpack("<I", struct.pack("<f", x))[0]
LOG2E = 1.4426950408889634
NLOG2E = f32bits(-LOG2E)
NLN2 = f32bits(-0.6931471805599453)
PADREC = 0x3FFF
POLL_MAX = 4000

class Asm:
    def __init__(self):
        self.l = []
    def __call__(self, s=""):
        for x in s.strip("\n").split("\n"):
            if x.strip():
                self.l.append(x.rstrip())
    def text(self):
        return "\n".join(self.l) + "\n"

def vr(a, n=1):
    return f"v{a}" if n == 1 else f"v[{a}:{a+n-1}]"
def sr(a, n=1):
    return f"s{a}" if n == 1 else f"s[{a}:{a+n-1}]"

DIAG = False
OPT = set()
def optval(prefix, default):
    for o in OPT:
        if o.startswith(prefix):
            return o[len(prefix):]
    return default

V_D = 0; V_E = 64; V_A5 = 96; V_B5 = 98; V_ND = 102; V_T = 110; V_R = 114; V_O = 118; V_IX = 132
V_AA = 140; V_AIDX = 141; V_AENT = 142; V_AQ = 143; V_INCA = 144; V_AS = 145; V_MN = 146; V_PSEL = 147
V_PF = 126; V_TAB = 148; V_CNT = 149; V_S = 150; V_P = 151; V_LANE = 154; V_TID = 155
V_J = 156; V_HH = 157
E_W2 = 147; E_SR = 164; E_OW = 165
E_ROW = 100; E_XR = 125; E_NX = 124; E_R2 = 101; E_OUT = 127; E_DB = [128, 130, 122, 152]
V_STAMP = 167; V_TRACE = 166
NVGPR = 168
S_X = 4; S_E = 6; S_SRC = 8; S_DST = 10; S_W1 = 12; S_B1 = 14; S_W2 = 16; S_B2 = 18; S_OUT = 20; S_DBG = 22; S_WS = 24
S_BIN = 26; S_N0 = 27; S_NN = 28; S_WAVE = 29; S_MODE = 30; S_K = 31; S_PC = 32; S_J = 34
S_RX = 36; S_RT = 40; S_RR = 44; S_P = 48; S_JJ = 52
S_T0 = 56; S_NT = 57; S_TT = 58; S_SLOT = 59; S_A = 60; S_B = 61; S_C = 62; S_D = 63; S_TAG = 64
S_M = 66
def mask(k): return sr(S_M + 2*k, 2)

def stamp(a, k, real=False):
    if optval("dly", "") and int(optval("dly", "")) == k: a("    s_sleep 10")
    if optval("clk", ""):
        if k == 13: a("    s_memrealtime s[98:99]\n    s_memtime s[100:101]\n    s_waitcnt lgkmcnt(0)\n    s_mov_b32 s99, s100")
        if k == 15: a("    s_memrealtime s[96:97]\n    s_memtime s[100:101]\n    s_waitcnt lgkmcnt(0)\n    s_sub_u32 s98, s96, s98\n    s_sub_u32 s99, s100, s99")
        return
    if "endamp" in OPT:
        if k == 17: a("    s_memrealtime s[98:99]\n    s_waitcnt lgkmcnt(0)")
        return
    if optval("amp", "") != "":
        if int(optval("amp", "")) == k:
            a("    s_memrealtime s[98:99]\n    s_waitcnt lgkmcnt(0)")
            if "rel" in OPT: a(f"    s_sub_u32 s98, s98, s{S_TAG}")
        if k == 6 and optval("sel", ""):
            a("    s_memrealtime s[100:101]\n    s_waitcnt lgkmcnt(0)")
        return
    if not DIAG:
        return
    if "lite" in OPT and k not in (19,):
        return
    a(f"    {'s_memrealtime' if real else 's_memtime'} s[100:101]")
    a(f"    s_waitcnt lgkmcnt(0)")
    a(f"    v_writelane_b32 v{V_STAMP}, s100, {k}")

def wave_scan(a, v):
    for sh in (1, 2, 4, 8):
        a(f"    s_nop 1")
        a(f"    v_add_u32_dpp v{v}, v{v}, v{v} row_shr:{sh} row_mask:0xf bank_mask:0xf")
    a(f"    s_nop 1")
    a(f"    v_add_u32_dpp v{v}, v{v}, v{v} row_bcast:15 row_mask:0xa bank_mask:0xf")
    a(f"    s_nop 1")
    a(f"    v_add_u32_dpp v{v}, v{v}, v{v} row_bcast:31 row_mask:0xc bank_mask:0xf")

SD = "dst_sel:DWORD dst_unused:UNUSED_PAD"

def dreg(s, c): return V_D + 32*s + 16*c
def small(s, c):
    d = vr(dreg(s, c), 16)
    return f"    v_mfma_f32_32x32x8_bf16 {d}, {vr(V_A5,2)}, {vr(V_B5+2*c,2)}, {d}"
def tr_reads(s):
    return [f"    ds_read_b64_tr_b16 {vr(dreg(s,c)+2*u,2)}, v{V_AA} offset:{512*u+128*c}" for u in range(8) for c in range(2)]
def ent_reads(off):
    return [f"    ds_read_b32 v{V_A5}, v{V_AENT} offset:{off}",
            f"    ds_read_b32 v{V_A5+1}, v{V_AENT} offset:{off + L_RL - L_G}"]
def q_reads():
    return [f"    ds_read_b32 v{V_B5+2*c}, v{V_AQ} offset:{256*c}" for c in range(2)]
def idx_reads(off):
    return [f"    ds_read_u16 v{V_IX+2*m}, v{V_AIDX} offset:{off + 8*m}" for m in range(4)]
def dma_ops():
    if "nodma" in OPT: return []
    return [f"    buffer_load_dwordx4 {vr(V_IX+2*m,2)}, {sr(S_RX,4)}, s{S_P+m} idxen offen offset:{1024*m} sc1 lds" for m in range(4)]

def flush1(a):
    for c in range(2):
        D = V_ND + 4*c + 2
        a(f"    v_rcp_f32 v{V_R+2*c}, v{D}")
        a(f"    v_rcp_f32 v{V_R+2*c+1}, v{D+1}")
def flush2(a):
    for c in range(2):
        a(f"    v_pk_mul_f32 {vr(V_O+2*c,2)}, {vr(V_ND+4*c,2)}, {vr(V_R+2*c,2)}")
    for c in range(2):
        a(f"    v_min3_f32 v{V_MN}, v{V_MN}, v{V_R+2*c}, v{V_R+2*c+1}")
    for c in range(2):
        a(f"    v_add_f32 v{V_O+2*c}, v{V_O+2*c}, v{V_O+2*c+1}")
    a(f"    v_cvt_pk_bf16_f32 v{V_O}, v{V_O}, v{V_O+2}")
    a(f"    ds_write_b32 v{V_AS}, v{V_O}")

def y_phase(a, s, b, us=range(8), nsrc=None):
    if nsrc is None: nsrc = [V_ND + 4*c for c in range(2)]
    a(".p2align 3")
    for u in us:
        if u == b:
            flush1(a)
            for c in range(2):
                a(f"    v_pk_add_f32 {vr(V_ND+4*c+2,2)}, {vr(V_E+16*c+2*u,2)}, 1.0 op_sel_hi:[1,0]")
            flush2(a)
            for c in range(2):
                p = dreg(s, c) + 2*u
                if u == 7:
                    a(f"    v_pk_mov_b32 {vr(V_ND+4*c,2)}, {vr(p,2)}, {vr(p,2)} op_sel:[0,1]")
                else:
                    nsrc[c] = p
            continue
        for c in range(2):
            a(f"    v_pk_fma_f32 {vr(V_T+2*c,2)}, {vr(dreg(s,c)+2*u,2)}, {vr(V_ND+4*c+2,2)}, {vr(nsrc[c],2)}")
        for c in range(2):
            D = V_ND + 4*c + 2
            a(f"    v_pk_fma_f32 {vr(D,2)}, {vr(D,2)}, {vr(V_E+16*c+2*u,2)}, {vr(D,2)}")
        for c in range(2):
            a(f"    v_pk_fma_f32 {vr(V_ND+4*c,2)}, {vr(nsrc[c],2)}, {vr(V_E+16*c+2*u,2)}, {vr(V_T+2*c,2)}")
            nsrc[c] = V_ND + 4*c

VAR_SIZE = 960 if "clock" not in sys.argv else 1024
ENTRY = 24
def tile_variant(a, s, b):
    name = f"{s}{'N' if b is None else b}"
    vi = 9*s + (0 if b is None else b + 1)
    a(f".org K_vbase + {VAR_SIZE*vi}, 0")
    a(f"    s_setprio 2\n    s_branch K_var{name}\n    s_setprio 1\n    s_branch K_var{name}\n    s_setprio 0")
    a(f"    s_nop 0")
    a(f"K_var{name}:")
    bnd = b is not None
    if "trace" in OPT and s == 0:
        a(f"    s_memtime s[100:101]\n    s_mov_b32 s{S_A}, m0\n    s_mov_b32 m0, s{S_K}\n    s_waitcnt lgkmcnt(0)")
        a(f"    v_writelane_b32 v{V_TRACE}, s100, m0")
        if "clock" in OPT:
            a(f"    s_memrealtime s[100:101]\n    s_add_u32 m0, m0, 1\n    s_waitcnt lgkmcnt(0)\n    v_writelane_b32 v{V_TRACE}, s100, m0")
        a(f"    s_mov_b32 m0, s{S_A}")
    es = [f"    v_exp_f32 v{V_E+16*c+2*u+h}, v{dreg(s,c)+2*u+h}" for u in range(8) for c in range(2) for h in range(2)]
    head = ent_reads(64 + 64*s) + (q_reads() if bnd else []) + tr_reads(s ^ 1) + idx_reads(64 + 32*s)
    plain = [f"    v_readlane_b32 s{S_JJ}, v{V_TAB}, s{S_K}"] if s == 0 else \
            [f"    v_add_u32 v{V_AENT}, v{V_INCA}, v{V_AENT}", f"    v_add_u32 v{V_AIDX}, 64, v{V_AIDX}"]
    if bnd: plain.append(f"    v_add_u32 v{V_AQ}, 0x200, v{V_AQ}")
    jump = [f"    s_and_b32 s{S_J}, s{S_JJ}, 0xffff", f"    s_add_u32 s{S_K}, s{S_K}, 2"] if s == 0 else [f"    s_lshr_b32 s{S_J}, s{S_JJ}, 16"]
    jump += [f"    s_add_u32 s{S_J}, s{S_J}, s{S_PC}", f"    s_addc_u32 s{S_J+1}, s{S_PC+1}, 0"]
    late = optval("late", "4_6")
    if late:
        ua, ub = [int(x) for x in late.split("_")]
        for e in es[:4*ub]: a(e)
        nsrc = [V_ND + 4*c for c in range(2)]
        y_phase(a, s, b, range(0, ua), nsrc)
        a("    s_waitcnt vmcnt(0)")
        for h in head: a(h)
        y_phase(a, s, b, range(ua, ub), nsrc)
        a(f"    s_waitcnt lgkmcnt(0)")
        for h in dma_ops(): a(h)
        a(small(s ^ 1, 0))
        for e in es[4*ub:4*ub+4]: a(e)
        a(small(s ^ 1, 1))
        for e in es[4*ub+4:]: a(e)
        for p_ in plain + jump: a(p_)
        y_phase(a, s, b, range(ub, 8), nsrc)
    else:
        n1 = int(optval("n1_", "16"))
        a("    s_waitcnt vmcnt(0)")
        for h in head: a(h)
        for e in es[:n1-2]: a(e)
        for p_ in plain: a(p_)
        for e in es[n1-2:n1]: a(e)
        a(f"    s_waitcnt lgkmcnt(0)")
        for h in dma_ops(): a(h)
        a(small(s ^ 1, 0))
        for e in es[n1:n1+4]: a(e)
        a(small(s ^ 1, 1))
        for e in es[n1+4:]: a(e)
        for p_ in jump: a(p_)
        y_phase(a, s, b)
    if bnd:
        a(f"    v_add_u32 v{V_AS}, {ST_STRIDE}, v{V_AS}")
    a(f"    s_setpc_b64 {sr(S_J,2)}")

def gen_kernel(a):
    L = V_LANE; T = V_TID; J = V_J; HH = V_HH
    t0, t1, t2, t3, t4, t5 = 158, 159, 160, 161, 162, 163
    step = NT_ * 16
    vDst = 0
    vSrc = 8
    vEa = 14
    tc = 17
    vTg = 18
    vBa = 20
    vRk = 26
    vWp = 31
    vOf = 32
    vC8 = 37; vWa = 38; vTa = 39
    vX = 40
    vWf = 56
    vPad = 56
    vAc = 72
    vTb = 88
    vXa = 88
    vB1 = 96
    vCl = 120
    v4k = 125
    vPf = 126
    vJ0 = V_R
    vZ = 128
    vG4 = 164; vSb = 165
    vS = V_S; vP = V_P
    a(f"""
.p2align 8
.globl {KNAME}
.type {KNAME},@function
{KNAME}:
    s_cmp_ge_u32 s2, 256
    s_cbranch_scc1 K_end
    s_load_dwordx8 s[4:11], s[0:1], 0
    s_load_dwordx8 s[12:19], s[0:1], 32      ; w1, b1, w2, b2
    s_load_dwordx4 s[20:23], s[0:1], 64
    s_load_dwordx2 s[24:25], s[0:1], 80      ; ws
    s_memrealtime {sr(S_TAG,2)}
    s_getpc_b64 {sr(S_J,2)}
    s_lshr_b32 s3, s2, 3
    s_lshl_b32 s3, s3, 7
    v_lshl_add_u32 v2, v0, 12, s3
    v_cmp_gt_u32 vcc, 7, v0
    s_and_saveexec_b64 {sr(S_PC,2)}, vcc
    s_cbranch_execz K_ncp
    global_load_dword v5, v2, {sr(S_J,2)}
K_ncp:
    s_mov_b64 exec, {sr(S_PC,2)}
    v_lshrrev_b32 v1, 6, v0
    v_mov_b32 v{T}, v0
    v_readfirstlane_b32 s{S_WAVE}, v1
    v_and_b32 v{L}, 63, v0
    s_mul_i32 s3, s2, {MAINE*4}
    v_lshl_add_u32 v{t0}, v0, 4, s3          ; byte offset into src/dst
    v_lshrrev_b32 v{t1}, 1, v{t0}
    s_and_b32 s{S_BIN}, s2, 7
    s_lshl_b32 s{S_BIN}, s{S_BIN}, 5
    s_lshr_b32 s3, s2, 3
    s_add_u32 s{S_BIN}, s{S_BIN}, s3
    s_mul_i32 s{S_N0}, s{S_BIN}, {NB}
    s_sub_u32 s{S_NN}, {N_NODES}, s{S_N0}
    s_min_u32 s{S_NN}, s{S_NN}, {NB}
    v_and_b32 v{J}, 31, v0
    v_bfe_u32 v{HH}, v0, 5, 1
    s_mov_b32 s{S_MODE}, 0
    v_mov_b32 v{vZ}, 0
    v_mov_b32 v{vZ+1}, 0
    v_mov_b32 v{vZ+2}, 0
    v_mov_b32 v{vZ+3}, 0
    v_lshlrev_b32 v{t2}, 2, v0""")
    if DIAG:
        a(f"    v_mov_b32 v{V_STAMP}, 0\n    v_mov_b32 v{V_TRACE}, 0")
        stamp(a, 0, True); stamp(a, 1)
    NTE = optval("e_", "nt").replace("_", " ")
    pdel = optval("pdel", "")
    sp = optval("src_", "post")
    SRCE = f"""
    global_load_dwordx4 {vr(vSrc,4)}, v{t0}, {sr(S_SRC,2)} {NTE}
    global_load_dwordx2 {vr(vEa,2)}, v{t1}, {sr(S_E,2)} {NTE}
"""
    a(f"""
    s_waitcnt lgkmcnt(0)
    global_load_dwordx4 {vr(vDst,4)}, v{t0}, {sr(S_DST,2)} {NTE}
    {f"s_add_u32 s98, s{S_TAG}, 200" if optval("amp", "") == "1" else ""}
    {f"v_writelane_b32 v{V_STAMP}, s{S_TAG}, 0" if "lite" in OPT else ""}
""")
    stamp(a, 29)
    a(f"""
    ds_write_b32 v{t2}, v{vZ} offset:{L_H1}
    s_cmp_lg_u32 s{S_WAVE}, 11
    s_cbranch_scc1 K_ld1
    ; wave 11 also takes the 53 extra edges of this chunk
    s_mul_i32 s{S_A}, s2, {XTRA}
    s_add_u32 s{S_A}, s{S_A}, {256*MAINE}
    v_min_u32 v{t5}, {XTRA-1}, v{L}
    v_add_lshl_u32 v{t5}, v{t5}, s{S_A}, 2
    v_lshrrev_b32 v{t4}, 1, v{t5}
    global_load_dword v{vDst+4}, v{t5}, {sr(S_DST,2)}
    global_load_dword v{vSrc+4}, v{t5}, {sr(S_SRC,2)}
    global_load_ushort v{vEa+2}, v{t4}, {sr(S_E,2)}
K_ld1:""")
    if optval("b1_", "") == "first":
        a(f"""
    s_cmp_lg_u32 s{S_WAVE}, 10
    s_cbranch_scc1 K_ld0
    s_mov_b32 m0, {L_WC + 256}
    v_lshlrev_b32 v{t3}, 2, v{L}
    global_load_lds_dword v{t3}, {sr(S_B1,2)}
K_ld0:""")
    a(f"""
""")
    a(f"""
    ; workgroup 0, wave 9 publishes the hand-off tag of this launch (39 clock bits, never zero)
    s_lshl_b32 s{S_A}, s2, 4
    s_add_u32 s{S_A}, s{S_A}, s{S_WAVE}
    s_cmp_lg_u32 s{S_A}, 9
    s_cbranch_scc1 K_ldJ
    s_lshl_b32 s{S_A}, s{S_TAG}, 25
    s_or_b32 s{S_A}, s{S_A}, 1
    s_lshr_b64 {sr(S_TAG,2)}, {sr(S_TAG,2)}, 7
    v_mov_b32 v{t4}, s{S_A}
    v_mov_b32 v{t4+1}, s{S_TAG}
    s_mov_b64 exec, 1
    global_store_dwordx2 v{vZ}, {vr(t4,2)}, {sr(S_DBG,2)} sc1
    s_mov_b64 exec, -1
K_ldJ:""")
    if sp == "first": a(SRCE)
    a(f"""
    s_lshl_b32 s{S_A}, s{S_WAVE}, 11
    s_cmp_ge_u32 s{S_WAVE}, 8
    s_cbranch_scc1 K_stX
    ; waves 0..7 stage w1 rows 0..63 (64-byte blocks of a row swapped by row&3)
    s_add_u32 m0, s{S_A}, {L_W1}
    v_lshrrev_b32 v{t3}, 2, v{L}
    v_and_b32 v{t3}, 12, v{t3}
    v_xor_b32 v{t3}, v{t3}, v{L}
    v_lshl_add_u32 v{t5}, v{t3}, 4, s{S_A}
    global_load_lds_dwordx4 v{t5}, {sr(S_W1,2)}
    global_load_lds_dwordx4 v{t5}, {sr(S_W1,2)} offset:1024
    s_branch K_stJ
K_stX:
    ; waves 8..11 stage the x rows of this bin (16-byte pieces swizzled inside each row)
    s_mov_b32 s{S_RX}, s4
    s_mov_b32 s{S_RX+1}, s5
    s_mov_b32 s{S_RX+2}, {N_NODES*128}
    s_mov_b32 s{S_RX+3}, 0x00020000
    s_add_u32 m0, s{S_A}, {L_XR - 16384}
    s_lshl_b32 s{S_B}, s{S_N0}, 7
    s_add_u32 s{S_A}, s{S_A}, s{S_B}
    s_sub_u32 s{S_A}, s{S_A}, 16384
    v_lshrrev_b32 v{t3}, 4, v{L}
    v_xor_b32 v{t3}, v{t3}, v{L}
    v_lshl_add_u32 v{t3}, v{t3}, 4, s{S_A}
    v_xor_b32 v{t5}, 64, v{t3}
    buffer_load_dwordx4 v{t3}, {sr(S_RX,4)}, 0 offen {NTE} lds
    buffer_load_dwordx4 v{t5}, {sr(S_RX,4)}, 0 offen offset:1024 {NTE} lds
K_stJ:""")
    stamp(a, 27)
    if sp == "pre": a(SRCE)
    a(f"""
    s_waitcnt lgkmcnt(0)
    s_barrier
    v_mov_b32 v{vPad}, {PADREC}
    v_mov_b32 v{vPad+1}, {PADREC}
    v_mov_b32 v{vPad+2}, {PADREC}
    v_mov_b32 v{vPad+3}, {PADREC}
    v_lshlrev_b32 v{t2}, 4, v{T}
    ds_write_b128 v{t2}, {vr(vPad,4)} offset:{L_RL}
    s_cmp_ge_u32 s{S_WAVE}, 4
    s_cbranch_scc1 K_in1
    ds_write_b128 v{t2}, {vr(vZ,4)}
    ds_write_b128 v{t2}, {vr(vPad,4)} offset:{L_ST - 4096}
K_in1:
    s_cmp_lg_u32 s{S_WAVE}, 4
    s_cbranch_scc1 K_in2
    v_lshlrev_b32 v{t3}, 2, v{L}
    ds_write_b32 v{t3}, v{vZ} offset:{L_RL - 256}
K_in2:""")
    if sp == "post": a(SRCE)
    stamp(a, 28)
    a(f"""
""")
    w1late = "w1early" not in OPT
    ST2 = f"""
    s_cmp_ge_u32 s{S_WAVE}, 8
    s_cbranch_scc1 K_st2
    s_add_u32 m0, m0, 16384
    v_add_u32 v6, 0x4000, v6
    global_load_lds_dwordx4 v6, {sr(S_W1,2)}
    global_load_lds_dwordx4 v6, {sr(S_W1,2)} offset:1024
    s_branch K_st3
K_st2:
    s_mov_b32 m0, {L_WC}
    v_lshlrev_b32 v{t3}, 2, v{L}
    v_add_u32 v7, 0x8000, v{t3}
    global_load_lds_dword v7, {sr(S_W1,2)}
    {f"s_mov_b32 m0, {L_WC + 256}" if not optval("b1_", "") else ""}
    s_nop 0
    {f"global_load_lds_dword v{t3}, {sr(S_B1,2)}" if not optval("b1_", "") else f"global_load_lds_dword v7, {sr(S_W1,2)}"}
K_st3:"""
    a(f"    v_mov_b32 v6, v{t5}")
    if not w1late: a(ST2)
    tl = "1" if "nowpf" not in OPT else ""
    tk = 1 if tl else 0
    if tl:
        a(f"""
    ; the waves of a die pull the weights that are staged later into its L2, one line each
    s_lshr_b32 s{S_A}, s2, 3
    s_mul_i32 s{S_A}, s{S_A}, {NW}
    s_add_u32 s{S_A}, s{S_A}, s{S_WAVE}
    s_add_u32 s{S_B}, s{S_A}, 128            ; w1 lines 128..257
    s_mov_b64 {sr(S_J,2)}, {sr(S_W1,2)}
    s_sub_u32 s{S_A}, s{S_A}, 130
    s_cbranch_scc1 K_wp
    s_mov_b32 s{S_B}, s{S_A}                 ; w2 lines 0..127
    s_mov_b64 {sr(S_J,2)}, {sr(S_W2,2)}
    s_sub_u32 s{S_A}, s{S_A}, 128
    s_cbranch_scc1 K_wp
    s_and_b32 s{S_B}, s{S_A}, 1              ; b1 lines 0, 1
    s_mov_b64 {sr(S_J,2)}, {sr(S_B1,2)}
    s_cmp_lt_u32 s{S_A}, 2
    s_cbranch_scc1 K_wp
    s_mov_b32 s{S_B}, 0
    s_mov_b64 {sr(S_J,2)}, {sr(S_B2,2)}
K_wp:
    s_lshl_b32 s{S_B}, s{S_B}, 7
    v_mov_b32 v7, s{S_B}
    global_load_dword v5, v7, {sr(S_J,2)}""")
    a(f"""
    v_and_b32 v{vC8}, 3, v{L}
    v_lshlrev_b32 v{vC8}, 3, v{vC8}
    v_and_b32 v{t1}, 16, v{L}
    v_lshl_add_u32 v{vC8}, v{t1}, 1, v{vC8}  ; 8c + 32(g&1)
    s_lshr_b32 s{S_D}, s{S_WAVE}, 1          ; ct
    v_bfe_u32 v{t0}, v{L}, 2, 2
    v_xor_b32 v{t3}, s{S_D}, v{t0}
    v_lshlrev_b32 v{t3}, 6, v{t3}
    v_lshl_add_u32 v{t0}, v{HH}, 3, v{t0}
    v_lshl_add_u32 v{t0}, v{t0}, 8, v{t3}
    v_add_u32 v{vWa}, {L_W1}, v{t0}          ; k row 8*hh + r, column block ct^r
    v_and_b32 v{vWp}, 1, v{L}
    v_lshl_add_u32 v{vWp}, v{vWp}, 5, v{vWa}
    v_and_b32 v{t3}, 16, v{L}
    v_add_u32 v{vWp}, v{vWp}, v{t3}
    v_and_b32 v{t3}, 2, v{L}
    v_lshl_add_u32 v{vWp}, v{t3}, 2, v{vWp}  ; + 16(c&1) + 4(2(g&1) + (c>>1)) columns
    s_and_b32 s{S_A}, s{S_WAVE}, 1
    s_lshl_b32 s{S_A}, s{S_A}, 12
    s_add_u32 s{S_A}, s{S_A}, {L_XR}
    v_bfe_u32 v{t3}, v{L}, 1, 3
    v_xor_b32 v{t3}, v{t3}, v{HH}
    v_lshl_add_u32 v{t3}, v{t3}, 4, s{S_A}
    v_lshl_add_u32 v{vXa}, v{J}, 7, v{t3}
    v_xor_b32 v{vXa+1}, 32, v{vXa}
    v_xor_b32 v{vXa+2}, 64, v{vXa}
    v_xor_b32 v{vXa+3}, 0x60, v{vXa}
    s_mov_b32 s{S_A}, 21400
    s_mov_b32 s{S_B}, -{NB}
    s_mov_b32 s{S_C}, 0xffff0000
    v_mov_b32 v{t5}, 0x10004
    v_mov_b32 v{vBa+4}, 0
    v_mov_b32 v{v4k}, 0x4000
    s_waitcnt vmcnt({(7 if tl == "1" else 6) - (2 if w1late else 0)})""")
    a(f"""
    s_cmp_lg_u32 s{S_WAVE}, 11
    s_cbranch_scc1 K_wJ
    s_bfm_b64 exec, {XTRA}, 0""")
    assert L_ST - L_RL <= step + 4096
    def binops(cols):
        for i in cols: a(f"    v_mul_u32_u24 v{vBa+i}, s{S_A}, v{vDst+i}")
        for i in cols: a(f"    v_lshrrev_b32 v{vBa+i}, 18, v{vBa+i}")
        for i in cols:
            a(f"    v_and_b32 v{vBa+i}, 0x3fc, v{vBa+i}")
            a(f"    ds_add_rtn_u32 v{vRk+i}, v{vBa+i}, v{t5} offset:{L_H1}")
        for i in cols: a(f"    v_lshlrev_b32 v{vDst+i}, 2, v{vDst+i}")
        for i in cols: a(f"    v_mad_i32_i24 v{vDst+i}, v{vBa+i}, s{S_B}, v{vDst+i}")
        for i in cols: a(f"    v_bfe_u32 v{vCl+i}, v{vDst+i}, 2, 1")
    binops([4])
    a(f"""
    s_mov_b64 exec, -1
K_wJ:""")
    stamp(a, 2)
    binops(range(4))
    a(f"""
    s_waitcnt vmcnt({(2 if w1late else 4)+tk-(2 if sp == 'first' else 0)}) lgkmcnt(0)
    s_barrier""")
    stamp(a, 3)
    a(f"""
    s_cmp_eq_u32 s{S_WAVE}, 8
    s_cbranch_scc1 K_scan1
    s_cmp_gt_u32 s{S_WAVE}, 8
    s_cbranch_scc1 K_notP
    ; ---- waves 0..7: P^T tile = -log2(e) * (x w1[0:64])^T""")
    for s_ in range(4):
        a(f"    ds_read_b128 {vr(vX+4*s_,4)}, v{vXa+s_}")
        for h in range(2):
            a(f"    ds_read_b64_tr_b16 {vr(vWf+4*s_+2*h,2)}, v{vWp} offset:{4096*s_+1024*h}")
    for s_ in range(4):
        a(f"    s_waitcnt lgkmcnt({9-3*s_})")
        cin = "0" if s_ == 0 else vr(vAc, 16)
        a(f"    v_mfma_f32_32x32x16_bf16 {vr(vAc,16)}, {vr(vWf+4*s_,4)}, {vr(vX+4*s_,4)}, {cin}")
    a(f"""
    s_and_b32 s{S_B}, s{S_WAVE}, 1
    s_mul_i32 s{S_A}, s{S_B}, {32*PS_STRIDE}
    s_lshl_b32 s{S_B}, s{S_D}, 6
    s_add_u32 s{S_A}, s{S_A}, s{S_B}
    s_add_u32 s{S_A}, s{S_A}, {L_PS}
    v_mul_u32_u24 v{t3}, {PS_STRIDE}, v{J}
    v_lshl_add_u32 v{t3}, v{HH}, 5, v{t3}
    v_add_u32 v{t3}, s{S_A}, v{t3}
    v_mov_b32 v{t4}, {NLOG2E:#x}
    v_cmp_gt_u32 vcc, {L_PS + 56*PS_STRIDE}, v{t3}
    s_nop 1""")
    for q in range(8):
        a(f"    v_pk_mul_f32 {vr(vAc+2*q,2)}, {vr(vAc+2*q,2)}, {vr(t4,2)} op_sel_hi:[1,0]")
    for q in range(8):
        a(f"    v_cvt_pk_bf16_f32 v{vAc+q}, v{vAc+2*q}, v{vAc+2*q+1}")
    a(f"""
    s_mov_b64 exec, vcc
    ds_write_b128 v{t3}, {vr(vAc,4)}
    ds_write_b128 v{t3}, {vr(vAc+4,4)} offset:16
    s_mov_b64 exec, -1
    s_branch K_b3
K_notP:
    v_lshlrev_b32 v{t1}, 4, v{L}
    v_add_u32 v{t4}, {L_PS + 48*PS_STRIDE}, v{t1}
    v_add_u32 v{t1}, {48*256}, v{t1}
    s_branch K_b3
K_scan1:
    ; ---- wave 8: segment offsets; a segment is n records (4 bytes) followed by n node bytes, padded to 4
    s_setprio 2
    global_load_dwordx2 {vr(vTg,2)}, v{vZ}, {sr(S_DBG,2)}
    v_lshlrev_b32 v{t0}, 4, v{L}
    ds_read_b128 v[56:59], v{t0} offset:{L_H1}
    s_waitcnt lgkmcnt(0)""")
    for i in range(4):
        a(f"    v_lshrrev_b32 v{60+i}, 16, v{56+i}")
    for i in range(4):
        a(f"    v_mad_u32_u24 v{64+i}, v{60+i}, 5, 3")
    for i in range(4):
        a(f"    v_and_b32 v{64+i}, -4, v{64+i}")
    a(f"""
    v_add_u32 v65, v64, v65
    v_add_u32 v66, v65, v66
    v_add_u32 v67, v66, v67
    v_mov_b32 v68, v67""")
    wave_scan(a, 68)
    a(f"""
    v_sub_u32 v68, v68, v67
    v_add_u32 v69, v68, v64
    v_add_u32 v70, v68, v65
    v_add_u32 v71, v68, v66
    s_mov_b32 s{S_A}, 0x10001""")
    for i in range(4):
        a(f"    v_mul_u32_u24 v{64+i}, s{S_A}, v{68+i}")
    for i in range(4):
        a(f"    v_lshl_add_u32 v{64+i}, v{56+i}, 16, v{64+i}")
    a(f"""
    ds_write_b128 v{t0}, v[64:67] offset:{L_OFF}
    s_setprio 0
K_b3:
    v_lshrrev_b32 v{t0}, 4, v{T}
    v_lshl_add_u32 v{t0}, v{t0}, 4, v{t2}
    v_add_u32 v{t0}, {L_PS}, v{t0}
    s_lshl_b32 s{S_A}, s{S_N0}, 8
    s_add_u32 s{S_A}, s{S_A}, {WS_P}
    s_add_u32 s{S_RT}, s{S_WS}, s{S_A}
    s_addc_u32 s{S_RT+1}, s{S_WS+1}, 0
    s_lshl_b32 s{S_RT+2}, s{S_NN}, 8
    s_mov_b32 s{S_RT+3}, 0x00020000
    s_waitcnt lgkmcnt(0)
    s_barrier                                ; B3: segment offsets, P staged""")
    stamp(a, 4)
    a(f"""
    s_cmp_lt_u32 s{S_WAVE}, 10
    s_cbranch_scc1 K_nx0
    ds_read_b32 v{vOf+4}, v{vBa+4} offset:{L_OFF}
    ds_read_b128 v[76:79], v{t4}
K_nx0:
    ds_read_b128 v[72:75], v{t0}""")
    for i in range(4):
        a(f"    ds_read_b32 v{vOf+i}, v{vBa+i} offset:{L_OFF}")
    a(f"""
    s_waitcnt lgkmcnt(4)
    {"" if pdel else f"buffer_store_dwordx4 v[72:75], v{t2}, {sr(S_RT,4)}, 0 offen sc1"}""")
    if pdel: tk -= 1
    stamp(a, 24)
    a(f"""
    s_waitcnt vmcnt({(2 if w1late else 4)+tk})
    s_cmp_eq_u32 s{S_WAVE}, 8                ; (wave 8 has the tag load in flight as well)
    s_cbranch_scc1 K_w8
    s_waitcnt vmcnt({(1 if w1late else 3)+tk})
K_w8:""")
    stamp(a, 22)
    a(f"""
    v_lshl_or_b32 v{vSrc}, v{v4k}, v{vCl}, v{vSrc}
    v_lshl_or_b32 v{vSrc+1}, v{v4k}, v{vCl+1}, v{vSrc+1}
    v_lshl_or_b32 v{vSrc+2}, v{v4k}, v{vCl+2}, v{vSrc+2}
    v_lshl_or_b32 v{vSrc+3}, v{v4k}, v{vCl+3}, v{vSrc+3}
    v_lshl_or_b32 v{vSrc}, v{vEa}, 16, v{vSrc}
    v_and_or_b32 v{vSrc+1}, v{vEa}, s{S_C}, v{vSrc+1}
    v_lshl_or_b32 v{vSrc+2}, v{vEa+1}, 16, v{vSrc+2}
    v_and_or_b32 v{vSrc+3}, v{vEa+1}, s{S_C}, v{vSrc+3}
    s_waitcnt lgkmcnt(0)""")
    def scatter(i):
        a(f"    v_add_u32_sdwa v{vBa+i}, v{vOf+i}, v{vRk+i} {SD} src0_sel:WORD_0 src1_sel:WORD_0")
        a(f"    v_add_u32_sdwa v{vOf+i}, v{vOf+i}, v{vRk+i} {SD} src0_sel:WORD_1 src1_sel:WORD_1")
        a(f"    ds_write_b32 v{vBa+i}, v{vSrc+i} offset:{L_RS}")
        a(f"    ds_write_b8 v{vOf+i}, v{vDst+i} offset:{L_RS}")
    for i in range(4): scatter(i)
    a(f"""
    s_cmp_lt_u32 s{S_WAVE}, 10
    s_cbranch_scc1 K_nx2
    s_cmp_eq_u32 s{S_WAVE}, 11
    s_cbranch_scc1 K_x2
    buffer_store_dwordx4 v[76:79], v{t1}, {sr(S_RT,4)}, 0 offen sc1""")
    if optval("b1_", "") == "late":
        a(f"""
    s_mov_b32 m0, {L_WC + 256}
    v_lshlrev_b32 v{t3}, 2, v{L}
    global_load_lds_dword v{t3}, {sr(S_B1,2)}
""")
    a(f"""
    s_branch K_nx2
K_x2:
    s_bfm_b64 exec, {XTRA}, 0
    v_lshl_or_b32 v{vSrc+4}, v{v4k}, v{vCl+4}, v{vSrc+4}
    v_lshl_or_b32 v{vSrc+4}, v{vEa+2}, 16, v{vSrc+4}""")
    scatter(4)
    a(f"""
    s_mov_b64 exec, -1
K_nx2:""")
    if w1late: a(ST2)
    a(f"""
    s_mul_i32 s{S_A}, s2, {RSTRIDE}
    s_add_u32 s{S_RR}, s{S_WS}, s{S_A}
    s_addc_u32 s{S_RR+1}, s{S_WS+1}, 0
    s_mov_b32 s{S_RR+2}, 16512
    s_mov_b32 s{S_RR+3}, 0x00020000
    v_add_u32 v{t3}, {step}, v{t2}
    s_waitcnt lgkmcnt(0)""")
    if pdel == "1": a(f"    buffer_store_dwordx4 v[72:75], v{t2}, {sr(S_RT,4)}, 0 offen sc1")
    stamp(a, 23)
    a(f"""
    s_barrier""")
    stamp(a, 5)
    a(f"""
    ds_read_b128 v[0:3], v{t2} offset:{L_RS}
    s_cmp_ge_u32 s{S_WAVE}, 5
    s_cbranch_scc1 K_co1
    ds_read_b128 v[8:11], v{t2} offset:{L_RS + step}
    s_waitcnt lgkmcnt(0)
    buffer_store_dwordx4 v[8:11], v{t3}, {sr(S_RR,4)}, 0 offen sc1
K_co1:
    s_waitcnt lgkmcnt(0)
    buffer_store_dwordx4 v[0:3], v{t2}, {sr(S_RR,4)}, 0 offen sc1
    {f"buffer_store_dwordx4 v[72:75], v{t2}, {sr(S_RT,4)}, 0 offen sc1" if pdel == "2" else ""}
""")
    def emit_consts():
        a(f"""
    ; ---- lane constants, while the stores drain
    ; gather: lane -> row l>>4 of 4, piece l&15; odd rows have their 64-byte blocks swapped pairwise
    v_and_b32 v{tc}, 15, v{L}
    v_bfe_u32 v{t3}, v{L}, 4, 1
    v_lshlrev_b32 v{t3}, 2, v{t3}
    v_xor_b32 v{tc}, v{tc}, v{t3}
    v_lshlrev_b32 v{V_IX+1}, 4, v{tc}
    v_mov_b32 v{V_IX+3}, v{V_IX+1}
    v_mov_b32 v{V_IX+5}, v{V_IX+1}
    v_mov_b32 v{V_IX+7}, v{V_IX+1}
    v_lshrrev_b32 v{V_AIDX}, 4, v{L}
    v_lshlrev_b32 v{V_AIDX}, 1, v{V_AIDX}
    v_bfe_u32 v{tc}, v{L}, 3, 1
    v_xor_b32 v{t3}, v{tc}, v{HH}
    v_lshl_add_u32 v{t3}, v{t3}, 6, v{vC8}
    v_lshl_add_u32 v{tc}, v{tc}, 8, v{t3}
    s_lshl_b32 s{S_B}, s{S_WAVE}, 12
    s_add_u32 s{S_B}, s{S_B}, {L_XS}
    v_add_u32 v{tc}, s{S_B}, v{tc}
    v_bfe_u32 v{t4}, v{L}, 2, 1
    v_cmp_ne_u32 vcc, 0, v{t4}
    v_mov_b32 v{t3}, {L_Z}
    v_mov_b32 v{V_MN}, 1.0
    v_cndmask_b32 v{V_AA}, v{t3}, v{tc}, vcc
    v_cmp_eq_u32 {mask(0)}, v{t4}, v{HH}
    v_bfe_u32 v{tc}, v{L}, 3, 2
    v_and_b32 v{t3}, 3, v{L}
    v_lshl_add_u32 v{tc}, v{tc}, 2, v{t3}
    v_lshlrev_b32 v{tc}, 2, v{tc}
    v_add_u32 v{tc}, {L_G}, v{tc}
    v_mov_b32 v{t3}, {L_ZA}
    v_cndmask_b32 v{V_AENT}, v{t3}, v{tc}, {mask(0)}
    v_mov_b32 v{t3}, 0x80
    v_cndmask_b32 v{V_INCA}, 0, v{t3}, {mask(0)}
    v_and_b32 v{vJ0}, 1, v{L}
    v_mul_u32_u24 v{vJ0}, {9*VAR_SIZE}, v{vJ0}
    v_add_u32 v{vJ0}, {ENTRY}, v{vJ0}""")
        for m in range(4):
            a(f"    s_movk_i32 s{S_P+m}, {3072 - 1024*m}")
        for c in range(2):
            a(f"    v_mov_b32 v{V_ND+4*c}, 0")
            a(f"    v_mov_b32 v{V_ND+4*c+1}, 0")
            a(f"    v_mov_b32 v{V_ND+4*c+2}, 1.0")
            a(f"    v_mov_b32 v{V_ND+4*c+3}, 1.0")
        a(f"""
    s_and_b32 s{S_A}, s{S_WAVE}, 3
    s_mul_i32 s{S_A}, s{S_A}, 3
    s_lshr_b32 s{S_B}, s{S_WAVE}, 2
    s_add_u32 s{S_SLOT}, s{S_A}, s{S_B}
    s_getpc_b64 {sr(S_PC,2)}
K_pc:
    s_add_u32 s{S_PC}, s{S_PC}, K_vbase - K_pc
    s_addc_u32 s{S_PC+1}, s{S_PC+1}, 0
    ; segment mapping of phase 2: segment 128 i + t/6, lane group g = t%6
    v_mul_u32_u24 v{tc}, 10923, v{T}
    v_lshrrev_b32 v{tc}, 16, v{tc}
    v_mad_i32_i24 v{vG4}, v{tc}, -6, v{T}
    v_lshlrev_b32 v{vG4}, 2, v{vG4}          ; 4g
    v_mul_u32_u24 v{vSb}, {RSTRIDE}, v{tc}
    ; share of P this lane pulls into L2
    s_lshr_b32 s{S_A}, s2, 3
    s_mul_i32 s{S_A}, s{S_A}, {256*128 if "hot" in OPT else 781*128}
    s_add_u32 s{S_A}, s{S_A}, {WS_P - (512*128 if "hot" in OPT else 0)}
    v_lshl_add_u32 v{vPf}, v{T}, 7, s{S_A}
    s_lshr_b32 s{S_B}, s{S_BIN}, 2
    s_lshl_b32 s{S_B}, s{S_B}, 4
    s_and_b32 s{S_A}, s{S_BIN}, 1
    s_lshl_b32 s{S_A}, s{S_A}, 3
    s_add_u32 s{S_B}, s{S_B}, s{S_A}
    s_and_b32 s{S_A}, s{S_BIN}, 2
    s_lshl_b32 s{S_A}, s{S_A}, 9
    s_add_u32 s{S_B}, s{S_B}, s{S_A}
    s_add_u32 s{S_B}, s{S_B}, {WS_TAB}
    v_lshl_add_u32 v{t5}, v{tc}, 11, s{S_B}  ; table entry offset""")
    cpos = optval("c_", "drain")
    if cpos == "drain": emit_consts()
    a(f"""
    s_mov_b32 s3, {NLOG2E:#x}
    s_cmp_lg_u32 s{S_WAVE}, 8
    s_cbranch_scc1 K_ntb
    s_mov_b32 s{S_K}, 0
    s_waitcnt vmcnt({4 if w1late else 2})
K_tagp:
    v_cmp_ne_u32 vcc, 0, v{vTg}
    s_cbranch_vccnz K_tagok
    s_add_u32 s{S_K}, s{S_K}, 1
    s_cmp_gt_u32 s{S_K}, {POLL_MAX}
    s_cbranch_scc1 K_tagok                   ; give up: tag 0 sends this workgroup to the slow path
    global_load_dwordx2 {vr(vTg,2)}, v{vZ}, {sr(S_DBG,2)} sc1
    s_waitcnt vmcnt(0)
    s_branch K_tagp
K_tagok:
    ds_write_b64 v{vZ}, {vr(vTg,2)} offset:{L_NONCE}
    v_and_b32 v{t3}, 0xfe000000, v{vTg}
    s_lshl_b32 s{S_B}, s2, 11
    s_add_u32 s{S_B}, s{S_B}, {WS_TAB}
    v_lshl_add_u32 v{t1}, v{L}, 4, s{S_B}""")
    for i in range(4):
        a(f"    v_lshrrev_b32 v{68+i}, 2, v{68+i}")
        a(f"    v_lshl_or_b32 v{68+i}, v{60+i}, 13, v{68+i}")
        a(f"    v_or_b32 v{vTb+2*i}, v{t3}, v{68+i}")
        a(f"    v_mov_b32 v{vTb+2*i+1}, v{vTg+1}")
    a(f"""
    s_waitcnt vmcnt(0) lgkmcnt(0)
    s_barrier                                ; B5
    s_cbranch_vccz K_slow
    global_store_dwordx4 v{t1}, {vr(vTb,4)}, {sr(S_WS,2)} sc1
    global_store_dwordx4 v{t1}, {vr(vTb+4,4)}, {sr(S_WS,2)} offset:1024 sc1
    s_branch K_b5j
K_ntb:
    s_waitcnt vmcnt(0)
    s_barrier                                ; B5: this workgroup's records and P rows are in memory
K_b5j:""")
    stamp(a, 6)
    a(f"""
    ds_read_b64 {vr(vTg,2)}, v{vZ} offset:{L_NONCE}
    v_lshlrev_b32 v{t0}, 1, v{L}
    v_add_u32 v{t0}, {L_WC}, v{t0}
    ds_read_u16 v{V_B5}, v{t0}
    ds_read_u16 v{V_B5+2}, v{t0} offset:128
    s_waitcnt lgkmcnt(0)
    v_readfirstlane_b32 s{S_TAG}, v{vTg}
    v_readfirstlane_b32 s{S_TAG+1}, v{vTg+1}
    s_cmp_eq_u32 s{S_TAG}, 0
    s_cbranch_scc1 K_slow""")
    for c in range(2):
        w = V_B5 + 2*c
        a(f"    v_lshlrev_b32 v{w}, 16, v{w}")
        a(f"    v_mul_f32 v{w}, s3, v{w}")
        a(f"    v_cvt_pk_bf16_f32 v{t3}, v{vZ}, v{w}")
        a(f"    v_sub_f32 v{t3}, v{w}, v{t3}")
        a(f"    v_cvt_pk_bf16_f32 v{w+1}, v{w}, v{t3}")
    a(f"""
    s_cmp_lt_u32 s{S_WAVE}, 8
    s_cbranch_scc1 K_Q
    ; waves 8..11 stage w2 and b2 (first used after the main loop)
    s_sub_u32 s{S_A}, s{S_WAVE}, 8
    s_lshl_b32 s{S_A}, s{S_A}, 12
    s_add_u32 m0, s{S_A}, {L_W2}
    v_lshl_add_u32 v{t3}, v{L}, 4, s{S_A}
    global_load_lds_dwordx4 v{t3}, {sr(S_W2,2)}
    global_load_lds_dwordx4 v{t3}, {sr(S_W2,2)} offset:1024
    global_load_lds_dwordx4 v{t3}, {sr(S_W2,2)} offset:2048
    global_load_lds_dwordx4 v{t3}, {sr(S_W2,2)} offset:3072
    s_cmp_lg_u32 s{S_WAVE}, 9
    s_cbranch_scc1 K_notQ
    s_mov_b32 m0, {L_B2}
    v_lshlrev_b32 v{t3}, 2, v{J}
    global_load_lds_dword v{t3}, {sr(S_B2,2)}
    s_branch K_notQ
K_Q:
    ; ---- waves 0..7: Q tile = -log2(e)/2 * (x w1[64:128] + b1) (selected by 2.0), while the table entries travel
    s_mov_b32 s3, {f32bits(-LOG2E/2):#x}
    s_lshl_b32 s{S_A}, s{S_D}, 6
    s_add_u32 s{S_A}, s{S_A}, {L_WC + 256}
    v_lshl_add_u32 v{t3}, v{J}, 1, s{S_A}
    ds_read_u16 v{vB1}, v{t3}
    v_add_u32 v{tc}, v{vWa}, v{vC8}""")
    for s_ in range(4):
        for h in range(2):
            a(f"    ds_read_b64_tr_b16 {vr(vWf+4*s_+2*h,2)}, v{tc} offset:{16384+4096*s_+1024*h}")
    a(f"""
    s_and_b32 s{S_A}, s{S_WAVE}, 1
    s_lshl_b32 s{S_B}, s{S_A}, 14
    s_lshl_b32 s{S_C}, s{S_D}, 7
    s_add_u32 s{S_B}, s{S_B}, s{S_C}
    s_add_u32 s{S_B}, s{S_B}, {L_QT - 512}
    v_lshl_add_u32 v{tc}, v{HH}, 11, s{S_B}
    v_lshl_add_u32 v{tc}, v{J}, 2, v{tc}""")
    for s_ in range(4):
        a(f"    s_waitcnt lgkmcnt({6-2*s_})")
        cin = "0" if s_ == 0 else vr(vAc, 16)
        a(f"    v_mfma_f32_32x32x16_bf16 {vr(vAc,16)}, {vr(vX+4*s_,4)}, {vr(vWf+4*s_,4)}, {cin}")
    a(f"""
    v_lshlrev_b32 v{vB1}, 16, v{vB1}
    v_mul_f32 v{vB1}, s3, v{vB1}
    s_nop 9""")
    def qpair(r):
        row = 8*(r >> 2) + (r & 3)
        a(f"    v_fma_f32 v{vAc+r}, v{vAc+r}, s3, v{vB1}")
        a(f"    v_fma_f32 v{vAc+r+1}, v{vAc+r+1}, s3, v{vB1}")
        a(f"    v_cvt_pk_bf16_f32 v{vWf+r}, v{vAc+r}, v{vAc+r+1}")
        a(f"    ds_write_b32 v{tc}, v{vWf+r} offset:{512*(row+1)}")
        a(f"    ds_write_b16 v{tc}, v{vWf+r} offset:{512*row}")
        a(f"    ds_write_b16_d16_hi v{tc}, v{vWf+r} offset:{512*(row+2)+2}")
    for r in range(0, 12, 2): qpair(r)
    a(f"""
    s_cmp_eq_u32 s{S_A}, 1
    s_cbranch_scc1 K_notQ""")
    for r in range(12, 16, 2): qpair(r)
    a(f"K_notQ:")
    if cpos == "post": emit_consts()
    stamp(a, 7)
    vT = 0
    vN = 4
    vAr = 6
    vR = 12
    vM = 28
    vA = 32
    vK = 48
    vB = 64
    a(f"""
    s_lshl_b32 s{S_B}, s{S_WAVE}, 12
    s_add_u32 m0, s{S_B}, {L_XS}
    s_mov_b32 s{S_RR}, s{S_WS}
    s_mov_b32 s{S_RR+1}, s{S_WS+1}
    s_mov_b32 s{S_RR+2}, {WS_TAB + 256*2048}
    s_mov_b32 s{S_A}, {128*2048}
    s_mov_b32 s{S_B}, {128*RSTRIDE}
    s_mov_b32 s{S_C}, 0xfe000000
    s_movk_i32 s{S_D}, 0xfc
    s_mov_b32 s{S_K}, 0
    {"s_sleep " + optval("fs", "0") if optval("fs", "0") != "0" else ""}
    s_mov_b64 {mask(0)}, -1
    s_mov_b64 {mask(1)}, -1
    v_mov_b32 v{vM}, 0
    v_mov_b32 v{vM+1}, 0
K_poll:
    s_mov_b64 exec, {mask(0)}
    s_cbranch_execz K_pl0
    buffer_load_dwordx2 {vr(vT,2)}, v{t5}, {sr(S_RR,4)}, 0 offen sc1
K_pl0:
    s_mov_b64 exec, {mask(1)}
    s_cbranch_execz K_pl1
    buffer_load_dwordx2 {vr(vT+2,2)}, v{t5}, {sr(S_RR,4)}, s{S_A} offen sc1
K_pl1:
    s_mov_b64 exec, -1
    s_waitcnt vmcnt(0)""")
    for i in range(2):
        a(f"    v_xor_b32 v{vN+i}, s{S_TAG}, v{vT+2*i}")
        a(f"    v_xor_b32 v{vAr+i}, s{S_TAG+1}, v{vT+2*i+1}")
        a(f"    v_and_or_b32 v{vAr+i}, v{vN+i}, s{S_C}, v{vAr+i}")
        a(f"    v_cmp_ne_u32 {mask(i)}, 0, v{vAr+i}")
    a(f"""
    s_add_u32 s{S_K}, s{S_K}, 1
    s_or_b64 vcc, {mask(0)}, {mask(1)}
    s_cbranch_scc0 K_got
    s_cmp_lt_u32 s{S_K}, {POLL_MAX}
    s_cbranch_scc1 K_poll
    ; gave up: no records from this wave, ask for the slow path
    s_mov_b32 s{S_MODE}, 1
    s_branch K_nor2a
K_got:""")
    if DIAG:
        a(f"    v_writelane_b32 v{V_STAMP}, s{S_K}, 20")
    stamp(a, 8)
    so = ["0", sr(S_B)]
    for i in range(2):
        a(f"    v_and_b32 v{vAr+i}, 0x1fff, v{vT+2*i}")
        a(f"    v_bfe_u32 v{vT+2*i+1}, v{vT+2*i}, 13, 12")
        a(f"    v_lshl_add_u32 v{vAr+i}, v{vAr+i}, 2, v{vSb}")
        a(f"    v_sub_u32 v{vN+i}, v{vT+2*i+1}, v{vG4}")
        a(f"    v_lshl_add_u32 v{vAr+2+i}, v{vT+2*i+1}, 2, v{vAr+i}")
        a(f"    v_cmp_lt_i32 {mask(4*i)}, 0, v{vN+i}")
        a(f"    v_lshl_add_u32 v{vAr+i}, v{vG4}, 2, v{vAr+i}")
        a(f"    v_add_u32 v{vAr+2+i}, v{vAr+2+i}, v{vG4}")
        a(f"    s_or_b64 exec, {mask(4*i)}, 1")
        a(f"    buffer_load_dword v{vM+i}, v{vAr+2+i}, {sr(S_RR,4)}, {so[i]} offen")
        a(f"    buffer_load_dwordx4 {vr(vR+4*i,4)}, v{vAr+i}, {sr(S_RR,4)}, {so[i]} offen")
        a(f"    s_mov_b64 exec, -1")
    for i in range(2):
        for k in range(1, 4):
            a(f"    v_cmp_lt_i32 {mask(4*i+k)}, {k}, v{vN+i}")
    a(f"""
    v_max_i32 v{t1}, v{vN}, v{vN+1}
    v_cmp_lt_i32 vcc, 24, v{t1}
    s_mov_b32 s{S_K}, 0
    s_cbranch_vccz K_nor2a
    s_mov_b32 s{S_K}, 1""")
    for i in range(2):
        a(f"    buffer_load_dword v{vM+2+i}, v{vAr+2+i}, {sr(S_RR,4)}, {so[i]} offen offset:24")
        a(f"    buffer_load_dwordx4 {vr(vR+8+4*i,4)}, v{vAr+i}, {sr(S_RR,4)}, {so[i]} offen offset:96")
        for k in range(4):
            a(f"    v_cmp_lt_i32 {mask(8+4*i+k)}, {24+k}, v{vN+i}")
    pf0 = int(optval("pf", "8"))
    a(f"""
    v_cmp_lt_i32 vcc, 48, v{t1}
    s_cbranch_vccz K_nor2a
    s_mov_b32 s{S_MODE}, 1                   ; a segment is too long for the fast path
K_nor2a:
    v_mov_b32 v{t4}, {L_FLAG}
    v_mov_b32 v{t0}, 4
    s_cmp_eq_u32 s{S_MODE}, 0
    s_cbranch_scc1 K_nofl
    ds_write_b32 v{t4}, v{t0}
K_nofl:
    s_waitcnt lgkmcnt(0)
    s_barrier
    ds_read_b32 v{t3}, v{t4}
    ; P descriptor: 256-byte records, base shifted by -3072
    s_add_u32 s{S_RX}, s{S_WS}, {WS_P - 3072}
    s_addc_u32 s{S_RX+1}, s{S_WS+1}, 0
    s_and_b32 s{S_RX+1}, s{S_RX+1}, 0xffff
    s_or_b32 s{S_RX+1}, s{S_RX+1}, 0x01000000
    s_mov_b32 s{S_RX+2}, {N_NODES}
    s_mov_b32 s{S_RX+3}, 0x00020000
    s_waitcnt lgkmcnt(0)
    v_cmp_ne_u32 vcc, 0, v{t3}
    s_cbranch_vccnz K_slow
    s_cmp_lt_u32 s{S_WAVE}, {pf0}
    s_cbranch_scc1 K_npf
    global_load_dword v{t5}, v{vPf}, {sr(S_WS,2)} sc1
    s_waitcnt vmcnt(1)
    s_branch K_pfJ
K_npf:
    v_and_b32 v72, 7, v{L}
    v_lshlrev_b32 v74, 4, v72
    v_add_u32 v74, {L_B2}, v74
    ds_read_b128 v[76:79], v74
    v_and_b32 v{E_XR}, -8, v{T}              ; 8 * node
    v_lshlrev_b32 v{E_OUT}, 4, v{T}          ; output byte offset
    v_lshlrev_b32 v72, 5, v72
    v_add_u32 v{E_NX}, {L_QT}, v72
    s_waitcnt lgkmcnt(0)""")
    vBu = E_DB
    for q in range(4):
        a(f"    v_lshlrev_b32 v{vBu[q]}, 16, v{76+q}")
        a(f"    v_and_b32 v{vBu[q]+1}, 0xffff0000, v{76+q}")
    assert pf0 >= 7
    a(f"""
    s_cmp_ge_u32 s{S_WAVE}, 4
    s_cbranch_scc1 K_np1
    v_bfe_u32 v70, v{L}, 2, 1
    v_bfe_u32 v71, v{L}, 3, 1
    v_lshl_add_u32 v70, v70, 6, v71
    v_lshrrev_b32 v71, 4, v{L}               ; g
    v_lshl_add_u32 v70, v71, 2, v70
    v_lshlrev_b32 v70, 7, v70
    v_and_b32 v72, 3, v{L}
    v_lshl_add_u32 v70, v72, 4, v70
    v_add_u32 v{E_W2}, {L_W2}, v70
    v_and_b32 v70, 15, v{L}
    s_lshl_b32 s{S_C}, s{S_WAVE}, 4
    v_add_u32 v70, s{S_C}, v70               ; row
    v_mul_u32_u24 v72, {ST_STRIDE}, v70
    v_lshl_add_u32 v72, v71, 4, v72
    v_add_u32 v{E_SR}, {L_ST}, v72
    v_mul_u32_u24 v72, {OF_STRIDE}, v70
    v_lshl_add_u32 v72, v71, 5, v72
    v_add_u32 v{E_OW}, {L_QT}, v72
K_np1:
    s_waitcnt vmcnt(0)
K_pfJ:""")
    stamp(a, 9)
    def count_cols(ks):
        for k in ks:
            a(f"    v_and_b32_sdwa v{vA+k}, v{vM+k//4}, s{S_D} {SD} src0_sel:BYTE_{k%4} src1_sel:DWORD")
        for k in ks:
            a(f"    s_mov_b64 exec, {mask(k)}")
            a(f"    ds_add_rtn_u32 v{vK+k}, v{vA+k}, v{t0} offset:{L_H2}")
        a(f"    s_mov_b64 exec, -1")
    count_cols(range(8))
    a(f"""
    s_cmp_eq_u32 s{S_K}, 0
    s_cbranch_scc1 K_nor2b""")
    count_cols(range(8, 16))
    a(f"""
K_nor2b:
    v_lshlrev_b32 v{t1}, 2, v{L}
    v_cmp_gt_u32 vcc, s{S_NN}, v{L}
    s_waitcnt lgkmcnt(0)
    s_barrier""")
    stamp(a, 10)
    a(f"""
    ds_read_b32 v{V_CNT}, v{t1} offset:{L_H2}
    s_waitcnt lgkmcnt(0)
    v_add_u32 v{vP}, 4, v{V_CNT}
    v_and_b32 v{vP}, -8, v{vP}
    v_max_u32 v{vP}, 64, v{vP}
    v_cndmask_b32 v{vP}, 0, v{vP}, vcc
    v_mov_b32 v{vS}, v{vP}""")
    wave_scan(a, vS)
    a(f"""
    s_nop 0
    v_readlane_b32 s{S_A}, v{vS}, 63
    v_sub_u32 v{vS}, v{vS}, v{vP}
    ds_write_b32 v{t1}, v{vS} offset:{L_SX}
    s_cmp_gt_u32 s{S_A}, {ENT_CAP*4}
    s_cbranch_scc1 K_slow""")
    def place_cols(ks, mid=None):
        ks = list(ks)
        for k in ks:
            a(f"    ds_read_b32 v{vB+k}, v{vA+k} offset:{L_SX}")
        if mid: a(mid)
        for n, k in enumerate(ks):
            if n % 2 == 0:
                a(f"    s_waitcnt lgkmcnt({len(ks)-2-n})")
            a(f"    v_add_u32 v{vK+k}, v{vB+k}, v{vK+k}")
        for k in ks:
            a(f"    s_mov_b64 exec, {mask(k)}")
            a(f"    ds_write_b32 v{vK+k}, v{vR+k} offset:{L_RL}")
        a(f"    s_mov_b64 exec, -1")
    place_cols(range(8), f"""
    s_add_u32 s{S_A}, s{S_A}, 63
    s_lshr_b32 s{S_TT}, s{S_A}, 6            ; tiles
    s_mul_i32 s{S_T0}, s{S_SLOT}, s{S_TT}
    s_add_u32 s{S_NT}, s{S_T0}, s{S_TT}
    s_mul_i32 s{S_T0}, s{S_T0}, 43691
    s_mul_i32 s{S_NT}, s{S_NT}, 43691
    s_lshr_b32 s{S_T0}, s{S_T0}, 19
    s_lshr_b32 s{S_NT}, s{S_NT}, 19
    s_sub_u32 s{S_NT}, s{S_NT}, s{S_T0}""")
    a(f"""
    s_cmp_eq_u32 s{S_K}, 0
    s_cbranch_scc1 K_nor2c
    s_waitcnt lgkmcnt(0)""")
    place_cols(range(8, 16))
    thr = [int(x) for x in optval("thr", "10_5").split("_")] + [2]
    vBk = 80
    vGr = 82
    a(f"""
K_nor2c:
    s_lshl_b32 s{S_A}, s{S_T0}, 6            ; list position of this wave
    v_lshl_add_u32 v{t3}, v{V_AIDX}, 1, s{S_A}
    v_add_u32 v{t2}, s{S_A}, v{t1}
    ; first node of this wave: n = #(m < nn : start[m] <= ts) - 1
    v_cmp_ge_u32 {mask(0)}, s{S_A}, v{vS}
    v_subrev_u32 v{t0}, s{S_A}, v{vS}
    s_and_b64 {mask(0)}, {mask(0)}, vcc
    s_bcnt1_i32_b64 s{S_B}, {mask(0)}
    s_sub_u32 s{S_B}, s{S_B}, 1              ; n
    s_andn2_b64 {mask(0)}, vcc, {mask(0)}
    v_bfe_u32 v{t4}, v{t0}, 3, 3
    v_add_u32 v{t4}, 1, v{t4}
    v_lshrrev_b32 v{t0}, 4, v{t0}
    v_min_u32 v{t0}, 0xfc, v{t0}
    v_cndmask_b32 v{t0}, -4, v{t0}, {mask(0)}
    v_mov_b32 v{vBk}, 0
    {"" if "novar" in OPT else f"ds_permute_b32 v{vBk}, v{t0}, v{t4}"}
    s_cmp_lg_u32 s{S_WAVE}, 0
    s_cbranch_scc1 K_nprep
    ; wave 0: sum rows of node = lane: first = node + slot(first tile), extra = slot(last tile) - slot(first tile)
    v_cvt_f32_u32 v70, s{S_TT}
    v_rcp_f32 v70, v70
    v_add3_u32 v{vP}, v{vS}, v{vP}, -4
    v_lshrrev_b32 v{vS}, 6, v{vS}
    v_lshrrev_b32 v{vP}, 6, v{vP}
    v_cvt_f32_u32 v{vS}, v{vS}
    v_cvt_f32_u32 v{vP}, v{vP}
    v_add_f32 v{vS}, {f32bits((NW-0.5)/NW):#x}, v{vS}
    v_add_f32 v{vP}, {f32bits((NW-0.5)/NW):#x}, v{vP}
    v_mul_f32 v70, {f32bits(NW):#x}, v70
    v_mul_f32 v{vS}, v{vS}, v70
    v_mul_f32 v{vP}, v{vP}, v70
    v_cvt_u32_f32 v{vS}, v{vS}
    v_cvt_u32_f32 v{vP}, v{vP}
    v_cvt_f32_u32 v71, v{V_CNT}
    v_sub_u32 v{vP}, v{vP}, v{vS}
    v_add_u32 v{vS}, v{vS}, v{L}
    v_mul_u32_u24 v{vS}, {OF_STRIDE}, v{vS}
    v_mul_f32 v71, 0x3e800000, v71           ; degree
    v_lshl_or_b32 v70, v{vP}, 16, v{vS}
    v_lshlrev_b32 v72, 3, v{L}
    v_cndmask_b32 v70, 0, v70, vcc
    ds_write_b64 v72, v[70:71] offset:{L_RW}
K_nprep:
    s_waitcnt lgkmcnt(0)
    s_barrier""")
    stamp(a, 11)
    for m in range(4):
        a(f"    ds_read_u16 v{V_IX+2*m}, v{t3} offset:{L_RL + 16*m}")
    for c in range(5):
        a(f"    ds_read_b32 v{vGr+c}, v{t2} offset:{L_RL + 256*c}")
    a(f"""
    s_lshr_b32 s{S_C}, s{S_A}, 1
    s_add_u32 s{S_C}, s{S_C}, {L_IX}
    v_add_u32 v{V_AIDX}, s{S_C}, v{V_AIDX}
    v_lshl_add_u32 v{t0}, v{L}, 1, s{S_C}
    s_mov_b32 s{S_C}, 0x03020302
    s_mov_b32 s{S_D}, 0x8001
    s_waitcnt lgkmcnt(5)""")
    for m in range(4):
        a(f"    v_and_b32 v{V_IX+2*m}, {PADREC}, v{V_IX+2*m}")
    for h in dma_ops(): a(h)
    def conv(c):
        a(f"    v_and_b32 v{vGr+5+c}, 0xc000, v{vGr+c}")
        a(f"    v_perm_b32 v{64+c}, v{vGr+c}, v{vGr+c}, s{S_C}")
        a(f"    v_xor_b32 v{vGr+c}, v{vGr+c}, v{vGr+5+c}")
        a(f"    v_mul_u32_u24 v{vGr+5+c}, s{S_D}, v{vGr+5+c}")
        a(f"    v_and_b32 v{vGr+5+c}, 0x40004000, v{vGr+5+c}")
    def put(c):
        a(f"    ds_write2st64_b32 v{t2}, v{vGr+5+c}, v{64+c} offset0:{L_G//256 + c} offset1:{L_RL//256 + c}")
        a(f"    ds_write_b16 v{t0}, v{vGr+c} offset:{128*c}")
    a(f"""
    ; this wave's entries -> one-hot word, (e, e), source node
    s_lshl_b32 s{S_K}, s{S_NT}, 4
    s_waitcnt lgkmcnt(0)""")
    for c in range(4): conv(c)
    a(f"""
    s_sub_u32 s{S_J}, s{S_K}, 256
    s_cbranch_scc1 K_few""")
    for c in range(4): put(c)
    a(f"""
    s_bfm_b64 exec, s{S_J}, 0
    s_cbranch_execz K_put""")
    conv(4); put(4)
    a(f"""
    s_branch K_put
K_few:""")
    for c in range(4):
        a(f"    s_mov_b64 exec, -1\n    v_cmp_gt_i32 vcc, s{S_K}, v{L}\n    s_sub_u32 s{S_K}, s{S_K}, 64\n    s_mov_b64 exec, vcc")
        put(c)
    pcode = sum((i + 1) << (2*th) for i, th in enumerate(reversed(thr)))
    assert max(thr) < 15
    a(f"""
K_put:
    s_mov_b64 exec, -1
    s_lshl_b32 s{S_C}, s{S_B}, 9
    s_add_u32 s{S_C}, s{S_C}, {L_QT}
    v_add_u32 v{V_AQ}, s{S_C}, v{t1}
    v_lshrrev_b32 v{t4}, 7, v{V_INCA}
    v_mad_u32_u24 v{V_AENT}, v{t4}, s{S_A}, v{V_AENT}""")
    for h in ent_reads(0) + q_reads() + idx_reads(32): a(h)
    a(f"""
    s_add_u32 s{S_C}, s{S_B}, s{S_SLOT}
    s_mul_i32 s{S_C}, s{S_C}, {ST_STRIDE}
    s_add_u32 s{S_C}, s{S_C}, {L_ST}
    v_add_u32 v{V_AS}, s{S_C}, v{t1}
    v_add_u32 v{V_AQ}, 0x200, v{V_AQ}
    ; jump table: slot of the variant, entry inside it (priority steps near the end), exit at lane nt
    v_sub_u32 v{t0}, s{S_NT}, v{L}
    s_movk_i32 s{S_C}, {VAR_SIZE}
    s_mov_b32 s{S_D}, {pcode:#x}
    v_cmp_eq_u32 vcc, 0, v{t0}
    v_min_u32 v{t0}, 15, v{t0}
    v_mad_u32_u24 v{t4}, v{vBk}, s{S_C}, v{vJ0}
    v_lshlrev_b32 v{t0}, 1, v{t0}
    v_bfe_u32 v{t0}, s{S_D}, v{t0}, 2
    v_mov_b32 v{t3}, K_exit - K_vbase
    v_mad_i32_i24 v{t4}, v{t0}, -8, v{t4}
    v_cndmask_b32 v{t4}, v{t4}, v{t3}, vcc
    ds_bpermute_b32 v{V_TAB}, v{t1}, v{t4} offset:4
    s_mov_b32 s{S_K}, 1
    v_readlane_b32 s{S_J}, v{t4}, 0
    s_setprio 3
    s_waitcnt vmcnt(0)""")
    stamp(a, 12)
    for h in tr_reads(0): a(h)
    a(f"""
    s_add_u32 s{S_J}, s{S_J}, s{S_PC}
    s_addc_u32 s{S_J+1}, s{S_PC+1}, 0
    s_waitcnt lgkmcnt(0)""")
    a(small(0, 0))
    for h in dma_ops(): a(h)
    a(small(0, 1))
    a(f"    v_lshl_or_b32 v{V_TAB}, v{V_TAB}, 16, v{t4}")
    a("    s_nop 9")
    stamp(a, 13); stamp(a, 14, True)
    a(f"    s_setpc_b64 {sr(S_J,2)}")
    a(f".p2align 6")
    a(f"K_vbase:")
    for s_ in range(2):
        for b in [None] + list(range(8)):
            tile_variant(a, s_, b)
    a(f".p2align 3")
    a(f"K_exit:")
    stamp(a, 15); stamp(a, 16, True)
    flush1(a)
    a("    s_nop 0")
    flush2(a)
    a(f"""
    v_cmp_eq_f32 vcc, 0, v{V_MN}
    s_cbranch_vccz K_join
    ; a denominator left the f32 range: redo this bin on the exact slow path
    v_mov_b32 v65, {L_FLAG}
    ds_write_b32 v65, v65
K_join:
    s_cmp_ge_u32 s{S_WAVE}, 7
    s_cbranch_scc1 K_st2a
    ds_read_b64 v[102:103], v{E_XR} offset:{L_RW}
    s_lshl_b32 s{S_A}, s{S_N0}, 7
    s_add_u32 s{S_RT}, s{S_OUT}, s{S_A}
    s_addc_u32 s{S_RT+1}, s{S_OUT+1}, 0
    s_lshl_b32 s{S_RT+2}, s{S_NN}, 7
    s_mov_b32 s{S_RT+3}, 0x00020000
    s_movk_i32 s{S_C}, 0x207
    s_mov_b32 s{S_A}, 1
    v_mov_b32 v96, {NLN2:#x}
    v_mov_b32 v98, {L_Z2}
    s_lshl_b32 s{S_B}, s{S_NN}, 3
    v_cmp_gt_u32 {mask(0)}, s{S_B}, v{E_XR}
    s_waitcnt lgkmcnt(0)
    v_lshrrev_b32 v{E_XR}, 16, v102
    v_add_u32_sdwa v{E_ROW}, v102, v{E_NX} {SD} src0_sel:WORD_0 src1_sel:DWORD
    v_cmp_lt_u32 vcc, 0, v{E_XR}
    v_add_u32 v{E_NX}, {OF_STRIDE}, v{E_ROW}
    v_cndmask_b32 v{E_ROW}, v98, v{E_ROW}, {mask(0)}""")
    for q in range(4):
        a(f"    v_pk_mul_f32 {vr(E_DB[q],2)}, {vr(E_DB[q],2)}, v[102:103] op_sel:[0,1]")
    a(f"""
    v_cndmask_b32 v{E_R2}, v98, v{E_NX}, vcc
    s_cmp_ge_u32 s{S_WAVE}, 4
    s_cbranch_scc1 K_st2a
    ; ================= output, stage 1: products of the sum rows with w2""")
    for ot in range(4):
        for ks in range(4):
            for h in range(2):
                a(f"    ds_read_b64_tr_b16 {vr(16*ot+4*ks+2*h,2)}, v{E_W2} offset:{2048*ks+256*h+64*(ot>>1)+8*(ot&1)}")
    a(f"""
    s_waitcnt lgkmcnt(0)
    s_barrier""")
    stamp(a, 17)
    for ks in range(4):
        a(f"    ds_read_b128 {vr(64+4*ks,4)}, v{E_SR} offset:{64*ks}")
    def mf(ot, ks):
        d = vr(80 + 4*ot, 4)
        a(f"    v_mfma_f32_16x16x32_bf16 {d}, {vr(16*ot+4*ks,4)}, {vr(64+4*ks,4)}, {'0' if ks == 0 else d}")
    for ks in range(4):
        a(f"    s_waitcnt lgkmcnt({3-ks})")
        mf(0, ks); mf(1, ks)
    for ks in range(4):
        mf(2, ks); mf(3, ks)
    a(f"""
    ds_write_b128 v{E_OW}, v[80:83]
    ds_write_b128 v{E_OW}, v[84:87] offset:16
    s_nop 4
    ds_write_b128 v{E_OW}, v[88:91] offset:128
    ds_write_b128 v{E_OW}, v[92:95] offset:144
    s_waitcnt lgkmcnt(0)
    s_branch K_st2b
K_st2a:
    s_waitcnt lgkmcnt(0)
    s_barrier                                ; B9
K_st2b:
    s_cmp_ge_u32 s{S_WAVE}, 7
    s_barrier
    s_cbranch_scc1 K_fin
    ds_read_b128 v[64:67], v{E_ROW}
    ds_read_b128 v[68:71], v{E_ROW} offset:16
K_rows:
    ds_read_b128 v[72:75], v{E_R2}
    ds_read_b128 v[76:79], v{E_R2} offset:16
    v_cmp_lt_u32 vcc, s{S_A}, v{E_XR}
    v_add_u32 v{E_NX}, {OF_STRIDE}, v{E_NX}
    s_add_u32 s{S_A}, s{S_A}, 1
    s_waitcnt lgkmcnt(0)""")
    for q in range(4):
        a(f"    v_pk_add_f32 {vr(64+2*q,2)}, {vr(64+2*q,2)}, {vr(72+2*q,2)}")
    a(f"""
    v_cndmask_b32 v{E_R2}, v98, v{E_NX}, vcc
    s_cbranch_vccnz K_rows""")
    for q in range(4):
        a(f"    v_pk_fma_f32 {vr(64+2*q,2)}, {vr(64+2*q,2)}, v[96:97], {vr(E_DB[q],2)} op_sel_hi:[1,0,1]")
    for q in range(4):
        a(f"    v_cvt_pk_bf16_f32 v{72+q}, v{64+2*q}, v{65+2*q}")
    a(f"""
    buffer_store_dwordx4 v[72:75], v{E_OUT}, {sr(S_RT,4)}, 0 offen sc1
    ; a non-finite sum makes every output of its node non-finite: redo this bin on the exact slow path
    v_cmp_class_f32 vcc, v64, s{S_C}
    s_cbranch_vccz K_fin
    v_mov_b32 v65, {L_FLAG}
    ds_write_b32 v65, v65
K_fin:
    v_mov_b32 v65, {L_FLAG}
    s_waitcnt lgkmcnt(0)
    s_barrier                                ; B10
    ds_read_b32 v64, v65
    s_waitcnt lgkmcnt(0)
    v_cmp_ne_u32 vcc, 0, v64
    {"" if "novar" in OPT or "nodma" in OPT else "s_cbranch_vccnz K_slow"}""")
    if DIAG:
        a("    s_waitcnt vmcnt(0)")
        stamp(a, 18); stamp(a, 19, True)
        a(f"""
    v_writelane_b32 v{V_STAMP}, s{S_NT}, 21
    s_lshl_b32 s{S_A}, s2, 4
    s_add_u32 s{S_A}, s{S_A}, s{S_WAVE}
    s_lshl_b32 s{S_A}, s{S_A}, 8
    s_add_u32 s{S_A}, s{S_A}, {WS_STAMP}
    v_lshl_add_u32 v64, v{L}, 2, s{S_A}
    s_mov_b64 exec, 0xffffffff
    global_store_dword v64, v{V_STAMP}, {sr(S_WS,2)}
    global_store_dword v64, v{V_TRACE}, {sr(S_WS,2)} offset:128""")
    if optval("clk", ""):
        a(f"""
    s_lshl_b32 s{S_A}, s2, 4
    s_add_u32 s{S_A}, s{S_A}, s{S_WAVE}
    s_cmp_lg_u32 s{S_A}, {16*int(optval("wg", "100"))}
    s_cbranch_scc1 K_end
    s_lshl_b32 s{S_A}, s{S_TAG+1}, 7
    s_lshr_b32 s{S_B}, s{S_TAG}, 25
    s_or_b32 s{S_A}, s{S_A}, s{S_B}
    v_cvt_f32_u32 v64, s98
    v_cvt_f32_u32 v65, s99
    v_rcp_f32 v64, v64
    s_nop 1
    v_mul_f32 v64, v64, v65
    v_subrev_f32 v64, {f32bits(15.0):#x}, v64
    v_mul_f32 v64, {f32bits(float(optval("mul", "100"))):#x}, v64
    v_cvt_u32_f32 v64, v64
    s_nop 1
    v_readfirstlane_b32 s{S_B}, v64
    s_min_u32 s{S_B}, s{S_B}, 20000
    {f's_sub_u32 s{S_B}, {optval("clk", "")}, s{S_B}' if "neg" in OPT else f's_add_u32 s{S_B}, s{S_B}, {optval("clk", "")}'}
K_spin5:
    s_memrealtime s[98:99]
    s_waitcnt lgkmcnt(0)
    s_sub_u32 s98, s98, s{S_A}
    s_cmp_lt_u32 s98, s{S_B}
    s_cbranch_scc1 K_spin5""")
    if "endamp" in OPT:
        a(f"""
    s_waitcnt vmcnt(0)
    s_memrealtime s[100:101]
    s_lshl_b32 s{S_A}, s2, 4
    s_add_u32 s{S_A}, s{S_A}, s{S_WAVE}
    s_cmp_lg_u32 s{S_A}, {16*int(optval("wg", "100"))}
    s_cbranch_scc1 K_end
    s_lshl_b32 s{S_A}, s{S_TAG+1}, 7
    s_lshr_b32 s{S_B}, s{S_TAG}, 25
    s_or_b32 s{S_A}, s{S_A}, s{S_B}
    s_waitcnt lgkmcnt(0)
    s_sub_u32 s{S_B}, s100, s98
    s_min_u32 s{S_B}, s{S_B}, 2000
    s_mul_i32 s{S_B}, s{S_B}, 20
    s_add_u32 s{S_B}, s{S_B}, 3000
K_spin4:
    s_memrealtime s[98:99]
    s_waitcnt lgkmcnt(0)
    s_sub_u32 s98, s98, s{S_A}
    s_cmp_lt_u32 s98, s{S_B}
    s_cbranch_scc1 K_spin4""")
    if optval("fix", "") != "":
        a(f"""
    s_lshl_b32 s{S_A}, s2, 4
    s_add_u32 s{S_A}, s{S_A}, s{S_WAVE}
    s_cmp_lg_u32 s{S_A}, 1600
    s_cbranch_scc1 K_end
    s_lshl_b32 s{S_A}, s{S_TAG+1}, 7
    s_lshr_b32 s{S_B}, s{S_TAG}, 25
    s_or_b32 s{S_A}, s{S_A}, s{S_B}
K_spin3:
    s_memrealtime s[98:99]
    s_waitcnt lgkmcnt(0)
    s_sub_u32 s98, s98, s{S_A}
    s_cmp_lt_u32 s98, {optval("fix", "")}
    s_cbranch_scc1 K_spin3""")
    if optval("amp", "") != "":
        a(f"""
    s_waitcnt vmcnt(0)
    s_cmp_lg_u32 s{S_WAVE}, {optval("aw", "0")}
    s_cbranch_scc1 K_end
    s_lshl_b32 s{S_A}, s{S_TAG+1}, 7
    s_lshr_b32 s{S_B}, s{S_TAG}, 25
    s_or_b32 s{S_A}, s{S_A}, s{S_B}""")
        if optval("amp", "") == "99":
            a("    s_memrealtime s[98:99]\n    s_waitcnt lgkmcnt(0)")
        a(f"""
    {f"s_mov_b32 s{S_B}, s98" if "rel" in OPT else f"s_sub_u32 s{S_B}, s98, s{S_A}"}
    s_mov_b64 exec, 1
    v_mov_b32 v64, 0
    v_mov_b32 v65, s{S_B}
    v_mov_b32 v66, 1
    {"v_sub_u32 v65, 0x1000, v65" if "min" in OPT else ""}
    global_atomic_{"add" if "avg" in OPT else "umax"} v64, v65, {sr(S_DBG,2)} offset:128 sc1
    s_sub_u32 s{S_C}, s100, s{S_A}
    v_mov_b32 v68, s{S_C}
    {f"global_atomic_add v64, v68, {sr(S_DBG,2)} offset:144 sc1" if optval("sel", "") else ""}
    s_waitcnt vmcnt(0)
    global_atomic_add v67, v64, v66, {sr(S_DBG,2)} offset:136 sc0 sc1
    s_waitcnt vmcnt(0)
    v_readfirstlane_b32 s{S_B}, v67
    s_cmp_lg_u32 s{S_B}, 255
    s_cbranch_scc1 K_end
    global_atomic_add v67, v64, v64, {sr(S_DBG,2)} offset:128 sc0 sc1
    global_atomic_add v68, v64, v64, {sr(S_DBG,2)} offset:144 sc0 sc1
    s_waitcnt vmcnt(0)
    v_readfirstlane_b32 s{S_C}, v68
    s_cmp_lt_u32 s{S_C}, {390*256}
    {"s_cbranch_scc0 K_end" if optval("sel", "") == "lo" else ""}
    {"s_cbranch_scc1 K_end" if optval("sel", "") == "hi" else ""}
    v_readfirstlane_b32 s{S_B}, v67
    s_mul_i32 s{S_B}, s{S_B}, {optval("mul", "5")}
    {f"s_lshr_b32 s{S_B}, s{S_B}, 8" if "avg" in OPT else ""}
    s_min_u32 s{S_B}, s{S_B}, {optval("base", "0") if "neg" in OPT else 200000}
    {f's_sub_u32 s{S_B}, {optval("base", "0")}, s{S_B}' if "neg" in OPT else f's_add_u32 s{S_B}, s{S_B}, {optval("base", "0")}'}
K_spin2:
    s_memrealtime s[98:99]
    s_waitcnt lgkmcnt(0)
    s_sub_u32 s98, s98, s{S_A}
    s_cmp_lt_u32 s98, s{S_B}
    s_cbranch_scc1 K_spin2""")
    a(f"""
K_end:
    s_endpgm
K_slow:
    ; ================= exact path without hand-offs: scan all edges for this bin
    s_setprio 0
    s_mov_b32 s16, s{S_N0}
    s_mov_b32 s17, s{S_NN}
    s_mov_b32 s18, s{S_WAVE}""")
    gen_slow(a, 16, 17, 18, L, NLOG2E, NW=NW)
    a("    s_endpgm")

def main():
    global DIAG
    out = sys.argv[1]
    DIAG = "diag" in sys.argv[2:] or "lite" in sys.argv[2:]
    OPT.update(sys.argv[2:])
    a = Asm()
    a(f"""; Edge-featured MPNN layer: out[n] = sum_(e: dst=n) (silu([x[src],x[dst],e] w1 + b1) w2 + b2)
; @launch grid=(256,1,1) block=({NT_},1,1) lds={L_END}
.amdgcn_target "amdgcn-amd-amdhsa--gfx950"
.text""")
    gen_kernel(a)
    a(f"""
.section .rodata,"a"
.p2align 6
.amdhsa_kernel {KNAME}
  .amdhsa_next_free_vgpr {NVGPR}
  .amdhsa_next_free_sgpr 102
  .amdhsa_accum_offset {NVGPR}
  .amdhsa_group_segment_fixed_size 0
  .amdhsa_kernarg_size 88
  .amdhsa_user_sgpr_count 2
  .amdhsa_user_sgpr_kernarg_segment_ptr 1
  .amdhsa_system_sgpr_workgroup_id_x 1
  .amdhsa_float_denorm_mode_32 3
.end_amdhsa_kernel""")
    open(out, "w").write(a.text())

if __name__ == "__main__":
    main()
```

```python
import sys, struct
from slow import gen_slow

NAME = "standalone__edge_featured_mpnn_mpnn__graph"
KNAME = NAME + "_kernel"
N_NODES = 12500
NB = 49
NW = 12
NT_ = 64 * NW
MAINE = 4 * NT_
XTRA = 53
RSTRIDE = 16640

WS_TAB = 0x420000
WS_P = 0x4C0000
WS_STAMP = 0xA00000

L_Z = 128
L_H2 = 272
L_FLAG = 536
L_NONCE = 544
L_Z2 = 2048
OF_STRIDE = 272
L_SX = 1296
ENT_CAP = 3472
LSZ = 14080
L_ZA = 4096 - 144
L_G = 4096
L_RL = L_G + LSZ
L_ST = L_RL + LSZ
ST_STRIDE = 288
L_RW = L_ST + 19968
L_IX = L_ST + 20480
L_QT = (L_IX + LSZ // 2 + 255) // 256 * 256 + 512
L_XS = L_QT + 49 * 512
assert LSZ % 256 == 0 and (ENT_CAP + 48) * 4 == LSZ
L_W2 = L_XS + NW * 4096
L_B2 = L_W2 + 16384
L_END = L_B2 + 256
L_RS = L_ST
L_H1 = L_ST + 16640
L_OFF = L_H1 + 1024
L_W1 = L_XS
L_WC = L_XS + 32768
L_PS = L_WC + 512
L_XR = L_W2
PS_STRIDE = 272
assert L_XS % 256 == 0 and L_END <= 163840
assert L_H1 + 3072 <= L_RW and 64 * ST_STRIDE <= 19968 and L_OFF + 1024 < 65536 and L_PS + 56 * PS_STRIDE <= L_W2

def f32bits(x):
    return struct.unpack("<I", struct.pack("<f", x))[0]
LOG2E = 1.4426950408889634
NLOG2E = f32bits(-LOG2E)
NLN2 = f32bits(-0.6931471805599453)
PADREC = 0x3FFF
POLL_MAX = 4000

class Asm:
    def __init__(self):
        self.l = []
    def __call__(self, s=""):
        for x in s.strip("\n").split("\n"):
            if x.strip():
                self.l.append(x.rstrip())
    def text(self):
        return "\n".join(self.l) + "\n"

def vr(a, n=1):
    return f"v{a}" if n == 1 else f"v[{a}:{a+n-1}]"
def sr(a, n=1):
    return f"s{a}" if n == 1 else f"s[{a}:{a+n-1}]"

DIAG = False
OPT = set()
def optval(prefix, default):
    for o in OPT:
        if o.startswith(prefix):
            return o[len(prefix):]
    return default

V_D = 0; V_E = 64; V_A5 = 96; V_B5 = 98; V_ND = 102; V_T = 110; V_R = 114; V_O = 118; V_IX = 132
V_AA = 140; V_AIDX = 141; V_AENT = 142; V_AQ = 143; V_INCA = 144; V_AS = 145; V_MN = 146; V_PSEL = 147
V_PF = 126; V_TAB = 148; V_CNT = 149; V_S = 150; V_P = 151; V_LANE = 154; V_TID = 155
V_J = 156; V_HH = 157
E_W2 = 147; E_SR = 164; E_OW = 165
E_ROW = 100; E_XR = 125; E_NX = 124; E_R2 = 101; E_OUT = 127; E_DB = [128, 130, 122, 152]
V_STAMP = 167; V_TRACE = 166
NVGPR = 168
S_X = 4; S_E = 6; S_SRC = 8; S_DST = 10; S_W1 = 12; S_B1 = 14; S_W2 = 16; S_B2 = 18; S_OUT = 20; S_DBG = 22; S_WS = 24
S_BIN = 26; S_N0 = 27; S_NN = 28; S_WAVE = 29; S_MODE = 30; S_K = 31; S_PC = 32; S_J = 34
S_RX = 36; S_RT = 40; S_RR = 44; S_P = 48; S_JJ = 52
S_T0 = 56; S_NT = 57; S_TT = 58; S_SLOT = 59; S_A = 60; S_B = 61; S_C = 62; S_D = 63; S_TAG = 64
S_M = 66
def mask(k): return sr(S_M + 2*k, 2)

def stamp(a, k, real=False):
    if optval("dly", "") and int(optval("dly", "")) == k: a("    s_sleep 10")
    if optval("clk", ""):
        if k == 13: a("    s_memrealtime s[98:99]\n    s_memtime s[100:101]\n    s_waitcnt lgkmcnt(0)\n    s_mov_b32 s99, s100")
        if k == 15: a("    s_memrealtime s[96:97]\n    s_memtime s[100:101]\n    s_waitcnt lgkmcnt(0)\n    s_sub_u32 s98, s96, s98\n    s_sub_u32 s99, s100, s99")
        return
    if "endamp" in OPT:
        if k == 17: a("    s_memrealtime s[98:99]\n    s_waitcnt lgkmcnt(0)")
        return
    if optval("amp", "") != "":
        if int(optval("amp", "")) == k:
            a("    s_memrealtime s[98:99]\n    s_waitcnt lgkmcnt(0)")
            if "rel" in OPT: a(f"    s_sub_u32 s98, s98, s{S_TAG}")
        if k == 6 and optval("sel", ""):
            a("    s_memrealtime s[100:101]\n    s_waitcnt lgkmcnt(0)")
        return
    if not DIAG:
        return
    if "lite" in OPT and k not in (19,):
        return
    a(f"    {'s_memrealtime' if real else 's_memtime'} s[100:101]")
    a(f"    s_waitcnt lgkmcnt(0)")
    a(f"    v_writelane_b32 v{V_STAMP}, s100, {k}")

def wave_scan(a, v):
    for sh in (1, 2, 4, 8):
        a(f"    s_nop 1")
        a(f"    v_add_u32_dpp v{v}, v{v}, v{v} row_shr:{sh} row_mask:0xf bank_mask:0xf")
    a(f"    s_nop 1")
    a(f"    v_add_u32_dpp v{v}, v{v}, v{v} row_bcast:15 row_mask:0xa bank_mask:0xf")
    a(f"    s_nop 1")
    a(f"    v_add_u32_dpp v{v}, v{v}, v{v} row_bcast:31 row_mask:0xc bank_mask:0xf")

SD = "dst_sel:DWORD dst_unused:UNUSED_PAD"

def dreg(s, c): return V_D + 32*s + 16*c
def small(s, c):
    d = vr(dreg(s, c), 16)
    return f"    v_mfma_f32_32x32x8_bf16 {d}, {vr(V_A5,2)}, {vr(V_B5+2*c,2)}, {d}"
def tr_reads(s):
    return [f"    ds_read_b64_tr_b16 {vr(dreg(s,c)+2*u,2)}, v{V_AA} offset:{512*u+128*c}" for u in range(8) for c in range(2)]
def ent_reads(off):
    return [f"    ds_read_b32 v{V_A5}, v{V_AENT} offset:{off}",
            f"    ds_read_b32 v{V_A5+1}, v{V_AENT} offset:{off + L_RL - L_G}"]
def q_reads():
    return [f"    ds_read_b32 v{V_B5+2*c}, v{V_AQ} offset:{256*c}" for c in range(2)]
def idx_reads(off):
    return [f"    ds_read_u16 v{V_IX+2*m}, v{V_AIDX} offset:{off + 8*m}" for m in range(4)]
def dma_ops():
    if "nodma" in OPT: return []
    return [f"    buffer_load_dwordx4 {vr(V_IX+2*m,2)}, {sr(S_RX,4)}, s{S_P+m} idxen offen offset:{1024*m} sc1 lds" for m in range(4)]

def flush1(a):
    for c in range(2):
        D = V_ND + 4*c + 2
        a(f"    v_rcp_f32 v{V_R+2*c}, v{D}")
        a(f"    v_rcp_f32 v{V_R+2*c+1}, v{D+1}")
def flush2(a):
    for c in range(2):
        a(f"    v_pk_mul_f32 {vr(V_O+2*c,2)}, {vr(V_ND+4*c,2)}, {vr(V_R+2*c,2)}")
    for c in range(2):
        a(f"    v_min3_f32 v{V_MN}, v{V_MN}, v{V_R+2*c}, v{V_R+2*c+1}")
    for c in range(2):
        a(f"    v_add_f32 v{V_O+2*c}, v{V_O+2*c}, v{V_O+2*c+1}")
    a(f"    v_cvt_pk_bf16_f32 v{V_O}, v{V_O}, v{V_O+2}")
    a(f"    ds_write_b32 v{V_AS}, v{V_O}")

def y_phase(a, s, b, us=range(8), nsrc=None):
    if nsrc is None: nsrc = [V_ND + 4*c for c in range(2)]
    a(".p2align 3")
    for u in us:
        if u == b:
            flush1(a)
            for c in range(2):
                a(f"    v_pk_add_f32 {vr(V_ND+4*c+2,2)}, {vr(V_E+16*c+2*u,2)}, 1.0 op_sel_hi:[1,0]")
            flush2(a)
            for c in range(2):
                p = dreg(s, c) + 2*u
                if u == 7:
                    a(f"    v_pk_mov_b32 {vr(V_ND+4*c,2)}, {vr(p,2)}, {vr(p,2)} op_sel:[0,1]")
                else:
                    nsrc[c] = p
            continue
        for c in range(2):
            a(f"    v_pk_fma_f32 {vr(V_T+2*c,2)}, {vr(dreg(s,c)+2*u,2)}, {vr(V_ND+4*c+2,2)}, {vr(nsrc[c],2)}")
        for c in range(2):
            D = V_ND + 4*c + 2
            a(f"    v_pk_fma_f32 {vr(D,2)}, {vr(D,2)}, {vr(V_E+16*c+2*u,2)}, {vr(D,2)}")
        for c in range(2):
            a(f"    v_pk_fma_f32 {vr(V_ND+4*c,2)}, {vr(nsrc[c],2)}, {vr(V_E+16*c+2*u,2)}, {vr(V_T+2*c,2)}")
            nsrc[c] = V_ND + 4*c

VAR_SIZE = 960 if "clock" not in sys.argv else 1024
ENTRY = 32
def tile_variant(a, s, b):
    name = f"{s}{'N' if b is None else b}"
    vi = 9*s + (0 if b is None else b + 1)
    skipl = "noskip" not in OPT
    a(f".org K_vbase + {VAR_SIZE*vi}, 0")
    a(f"""
    s_setprio 2
    s_branch K_var{name}
    s_setprio 1
    s_branch K_var{name}
    s_mov_b64 vcc, {-1 if skipl else 0}                        ; last tile: nothing to prepare
    s_branch K_var{name}
    s_setprio 0
    s_mov_b32 s{S_RX+2}, 0                   ; two tiles left: nothing more to gather""")
    a(f"K_var{name}:")
    bnd = b is not None
    if "trace" in OPT and s == 0:
        a(f"    s_memtime s[100:101]\n    s_mov_b32 s{S_A}, m0\n    s_mov_b32 m0, s{S_K}\n    s_waitcnt lgkmcnt(0)")
        a(f"    v_writelane_b32 v{V_TRACE}, s100, m0")
        if "clock" in OPT:
            a(f"    s_memrealtime s[100:101]\n    s_add_u32 m0, m0, 1\n    s_waitcnt lgkmcnt(0)\n    v_writelane_b32 v{V_TRACE}, s100, m0")
        a(f"    s_mov_b32 m0, s{S_A}")
    es = [f"    v_exp_f32 v{V_E+16*c+2*u+h}, v{dreg(s,c)+2*u+h}" for u in range(8) for c in range(2) for h in range(2)]
    head = ent_reads(64 + 64*s) + (q_reads() if bnd else []) + tr_reads(s ^ 1) + idx_reads(64 + 32*s)
    plain = [f"    v_readlane_b32 s{S_JJ}, v{V_TAB}, s{S_K}"] if s == 0 else \
            [f"    v_add_u32 v{V_AENT}, v{V_INCA}, v{V_AENT}", f"    v_add_u32 v{V_AIDX}, 64, v{V_AIDX}"]
    if bnd: plain.append(f"    v_add_u32 v{V_AQ}, 0x200, v{V_AQ}")
    jump = [f"    s_and_b32 s{S_J}, s{S_JJ}, 0xffff", f"    s_add_u32 s{S_K}, s{S_K}, 2"] if s == 0 else [f"    s_lshr_b32 s{S_J}, s{S_JJ}, 16"]
    jump += [f"    s_add_u32 s{S_J}, s{S_J}, s{S_PC}", f"    s_addc_u32 s{S_J+1}, s{S_PC+1}, 0"]
    late = optval("late", "4_6")
    if late:
        ua, ub = [int(x) for x in late.split("_")]
        for e in es[:4*ub]: a(e)
        nsrc = [V_ND + 4*c for c in range(2)]
        y_phase(a, s, b, range(0, ua), nsrc)
        if skipl: a(f"    s_cbranch_vccnz K_va{name}")
        a("    s_waitcnt vmcnt(0)")
        for h in head: a(h)
        a(f".p2align 3\nK_va{name}:")
        y_phase(a, s, b, range(ua, ub), nsrc)
        if skipl: a(f"    s_cbranch_vccnz K_vb{name}")
        a(f"    s_waitcnt lgkmcnt(0)")
        for h in dma_ops(): a(h)
        a(small(s ^ 1, 0))
        a(f"K_vb{name}:")
        for e in es[4*ub:4*ub+4]: a(e)
        a(small(s ^ 1, 1))
        for e in es[4*ub+4:]: a(e)
        for p_ in plain + jump: a(p_)
        y_phase(a, s, b, range(ub, 8), nsrc)
    else:
        n1 = int(optval("n1_", "16"))
        a("    s_waitcnt vmcnt(0)")
        for h in head: a(h)
        for e in es[:n1-2]: a(e)
        for p_ in plain: a(p_)
        for e in es[n1-2:n1]: a(e)
        a(f"    s_waitcnt lgkmcnt(0)")
        for h in dma_ops(): a(h)
        a(small(s ^ 1, 0))
        for e in es[n1:n1+4]: a(e)
        a(small(s ^ 1, 1))
        for e in es[n1+4:]: a(e)
        for p_ in jump: a(p_)
        y_phase(a, s, b)
    if bnd:
        a(f"    v_add_u32 v{V_AS}, {ST_STRIDE}, v{V_AS}")
    a(f"    s_setpc_b64 {sr(S_J,2)}")

def gen_kernel(a):
    L = V_LANE; T = V_TID; J = V_J; HH = V_HH
    t0, t1, t2, t3, t4, t5 = 158, 159, 160, 161, 162, 163
    step = NT_ * 16
    vDst = 0
    vSrc = 8
    vEa = 14
    tc = 17
    vTg = 18
    vBa = 20
    vRk = 26
    vWp = 31
    vOf = 32
    vC8 = 37; vWa = 38; vTa = 39
    vX = 40
    vWf = 56
    vPad = 56
    vAc = 72
    vTb = 88
    vXa = 88
    vB1 = 96
    vCl = 120
    v4k = 125
    vPf = 126
    vJ0 = V_R
    vZ = 128
    vG4 = 164; vSb = 165
    vS = V_S; vP = V_P
    a(f"""
.p2align 8
.globl {KNAME}
.type {KNAME},@function
{KNAME}:
    s_cmp_ge_u32 s2, 256
    s_cbranch_scc1 K_end
    s_load_dwordx8 s[4:11], s[0:1], 0
    s_load_dwordx8 s[12:19], s[0:1], 32      ; w1, b1, w2, b2
    s_load_dwordx4 s[20:23], s[0:1], 64
    s_load_dwordx2 s[24:25], s[0:1], 80      ; ws
    s_memrealtime {sr(S_TAG,2)}
    s_getpc_b64 {sr(S_J,2)}
    s_lshr_b32 s3, s2, 3
    s_lshl_b32 s3, s3, 7
    v_lshl_add_u32 v2, v0, 12, s3
    v_cmp_gt_u32 vcc, 7, v0
    s_and_saveexec_b64 {sr(S_PC,2)}, vcc
    s_cbranch_execz K_ncp
    global_load_dword v5, v2, {sr(S_J,2)}
K_ncp:
    s_mov_b64 exec, {sr(S_PC,2)}
    v_lshrrev_b32 v1, 6, v0
    v_mov_b32 v{T}, v0
    v_readfirstlane_b32 s{S_WAVE}, v1
    v_and_b32 v{L}, 63, v0
    s_mul_i32 s3, s2, {MAINE*4}
    v_lshl_add_u32 v{t0}, v0, 4, s3          ; byte offset into src/dst
    v_lshrrev_b32 v{t1}, 1, v{t0}
    s_and_b32 s{S_BIN}, s2, 7
    s_lshl_b32 s{S_BIN}, s{S_BIN}, 5
    s_lshr_b32 s3, s2, 3
    s_add_u32 s{S_BIN}, s{S_BIN}, s3
    s_mul_i32 s{S_N0}, s{S_BIN}, {NB}
    s_sub_u32 s{S_NN}, {N_NODES}, s{S_N0}
    s_min_u32 s{S_NN}, s{S_NN}, {NB}
    v_and_b32 v{J}, 31, v0
    v_bfe_u32 v{HH}, v0, 5, 1
    s_mov_b32 s{S_MODE}, 0
    v_mov_b32 v{vZ}, 0
    v_mov_b32 v{vZ+1}, 0
    v_mov_b32 v{vZ+2}, 0
    v_mov_b32 v{vZ+3}, 0
    v_lshlrev_b32 v{t2}, 2, v0""")
    if DIAG:
        a(f"    v_mov_b32 v{V_STAMP}, 0\n    v_mov_b32 v{V_TRACE}, 0")
        stamp(a, 0, True); stamp(a, 1)
    NTE = optval("e_", "nt").replace("_", " ")
    pdel = optval("pdel", "")
    sp = optval("src_", "post")
    SRCE = f"""
    global_load_dwordx4 {vr(vSrc,4)}, v{t0}, {sr(S_SRC,2)} {NTE}
    global_load_dwordx2 {vr(vEa,2)}, v{t1}, {sr(S_E,2)} {NTE}
"""
    a(f"""
    s_waitcnt lgkmcnt(0)
    global_load_dwordx4 {vr(vDst,4)}, v{t0}, {sr(S_DST,2)} {NTE}
    {f"s_add_u32 s98, s{S_TAG}, 200" if optval("amp", "") == "1" else ""}
    {f"v_writelane_b32 v{V_STAMP}, s{S_TAG}, 0" if "lite" in OPT else ""}
""")
    stamp(a, 29)
    a(f"""
    ds_write_b32 v{t2}, v{vZ} offset:{L_H1}
    s_cmp_lg_u32 s{S_WAVE}, 11
    s_cbranch_scc1 K_ld1
    ; wave 11 also takes the 53 extra edges of this chunk
    s_mul_i32 s{S_A}, s2, {XTRA}
    s_add_u32 s{S_A}, s{S_A}, {256*MAINE}
    v_min_u32 v{t5}, {XTRA-1}, v{L}
    v_add_lshl_u32 v{t5}, v{t5}, s{S_A}, 2
    v_lshrrev_b32 v{t4}, 1, v{t5}
    global_load_dword v{vDst+4}, v{t5}, {sr(S_DST,2)}
    global_load_dword v{vSrc+4}, v{t5}, {sr(S_SRC,2)}
    global_load_ushort v{vEa+2}, v{t4}, {sr(S_E,2)}
K_ld1:""")
    if optval("b1_", "") == "first":
        a(f"""
    s_cmp_lg_u32 s{S_WAVE}, 10
    s_cbranch_scc1 K_ld0
    s_mov_b32 m0, {L_WC + 256}
    v_lshlrev_b32 v{t3}, 2, v{L}
    global_load_lds_dword v{t3}, {sr(S_B1,2)}
K_ld0:""")
    a(f"""
""")
    a(f"""
    ; workgroup 0, wave 9 publishes the hand-off tag of this launch (39 clock bits, never zero)
    s_lshl_b32 s{S_A}, s2, 4
    s_add_u32 s{S_A}, s{S_A}, s{S_WAVE}
    s_cmp_lg_u32 s{S_A}, 9
    s_cbranch_scc1 K_ldJ
    s_lshl_b32 s{S_A}, s{S_TAG}, 25
    s_or_b32 s{S_A}, s{S_A}, 1
    s_lshr_b64 {sr(S_TAG,2)}, {sr(S_TAG,2)}, 7
    v_mov_b32 v{t4}, s{S_A}
    v_mov_b32 v{t4+1}, s{S_TAG}
    s_mov_b64 exec, 1
    global_store_dwordx2 v{vZ}, {vr(t4,2)}, {sr(S_DBG,2)} sc1
    s_mov_b64 exec, -1
K_ldJ:""")
    if sp == "first": a(SRCE)
    a(f"""
    s_lshl_b32 s{S_A}, s{S_WAVE}, 11
    s_cmp_ge_u32 s{S_WAVE}, 8
    s_cbranch_scc1 K_stX
    ; waves 0..7 stage w1 rows 0..63 (64-byte blocks of a row swapped by row&3)
    s_add_u32 m0, s{S_A}, {L_W1}
    v_lshrrev_b32 v{t3}, 2, v{L}
    v_and_b32 v{t3}, 12, v{t3}
    v_xor_b32 v{t3}, v{t3}, v{L}
    v_lshl_add_u32 v{t5}, v{t3}, 4, s{S_A}
    global_load_lds_dwordx4 v{t5}, {sr(S_W1,2)}
    global_load_lds_dwordx4 v{t5}, {sr(S_W1,2)} offset:1024
    s_branch K_stJ
K_stX:
    ; waves 8..11 stage the x rows of this bin (16-byte pieces swizzled inside each row)
    s_mov_b32 s{S_RX}, s4
    s_mov_b32 s{S_RX+1}, s5
    s_mov_b32 s{S_RX+2}, {N_NODES*128}
    s_mov_b32 s{S_RX+3}, 0x00020000
    s_add_u32 m0, s{S_A}, {L_XR - 16384}
    s_lshl_b32 s{S_B}, s{S_N0}, 7
    s_add_u32 s{S_A}, s{S_A}, s{S_B}
    s_sub_u32 s{S_A}, s{S_A}, 16384
    v_lshrrev_b32 v{t3}, 4, v{L}
    v_xor_b32 v{t3}, v{t3}, v{L}
    v_lshl_add_u32 v{t3}, v{t3}, 4, s{S_A}
    v_xor_b32 v{t5}, 64, v{t3}
    buffer_load_dwordx4 v{t3}, {sr(S_RX,4)}, 0 offen {NTE} lds
    buffer_load_dwordx4 v{t5}, {sr(S_RX,4)}, 0 offen offset:1024 {NTE} lds
K_stJ:""")
    stamp(a, 27)
    if sp == "pre": a(SRCE)
    a(f"""
    s_waitcnt lgkmcnt(0)
    s_barrier
    v_mov_b32 v{vPad}, {PADREC}
    v_mov_b32 v{vPad+1}, {PADREC}
    v_mov_b32 v{vPad+2}, {PADREC}
    v_mov_b32 v{vPad+3}, {PADREC}
    v_lshlrev_b32 v{t2}, 4, v{T}
    ds_write_b128 v{t2}, {vr(vPad,4)} offset:{L_RL}
    s_cmp_ge_u32 s{S_WAVE}, 4
    s_cbranch_scc1 K_in1
    ds_write_b128 v{t2}, {vr(vZ,4)}
    ds_write_b128 v{t2}, {vr(vPad,4)} offset:{L_ST - 4096}
K_in1:
    s_cmp_lg_u32 s{S_WAVE}, 4
    s_cbranch_scc1 K_in2
    v_lshlrev_b32 v{t3}, 2, v{L}
    ds_write_b32 v{t3}, v{vZ} offset:{L_RL - 256}
K_in2:""")
    if sp == "post": a(SRCE)
    stamp(a, 28)
    a(f"""
""")
    w1late = "w1early" not in OPT
    ST2 = f"""
    s_cmp_ge_u32 s{S_WAVE}, 8
    s_cbranch_scc1 K_st2
    s_add_u32 m0, m0, 16384
    v_add_u32 v6, 0x4000, v6
    global_load_lds_dwordx4 v6, {sr(S_W1,2)}
    global_load_lds_dwordx4 v6, {sr(S_W1,2)} offset:1024
    s_branch K_st3
K_st2:
    s_mov_b32 m0, {L_WC}
    v_lshlrev_b32 v{t3}, 2, v{L}
    v_add_u32 v7, 0x8000, v{t3}
    global_load_lds_dword v7, {sr(S_W1,2)}
    {f"s_mov_b32 m0, {L_WC + 256}" if not optval("b1_", "") else ""}
    s_nop 0
    {f"global_load_lds_dword v{t3}, {sr(S_B1,2)}" if not optval("b1_", "") else f"global_load_lds_dword v7, {sr(S_W1,2)}"}
K_st3:"""
    a(f"    v_mov_b32 v6, v{t5}")
    if not w1late: a(ST2)
    tl = "1" if "nowpf" not in OPT else ""
    tk = 1 if tl else 0
    if tl:
        a(f"""
    ; the waves of a die pull the weights that are staged later into its L2, one line each
    s_lshr_b32 s{S_A}, s2, 3
    s_mul_i32 s{S_A}, s{S_A}, {NW}
    s_add_u32 s{S_A}, s{S_A}, s{S_WAVE}
    s_add_u32 s{S_B}, s{S_A}, 128            ; w1 lines 128..257
    s_mov_b64 {sr(S_J,2)}, {sr(S_W1,2)}
    s_sub_u32 s{S_A}, s{S_A}, 130
    s_cbranch_scc1 K_wp
    s_mov_b32 s{S_B}, s{S_A}                 ; w2 lines 0..127
    s_mov_b64 {sr(S_J,2)}, {sr(S_W2,2)}
    s_sub_u32 s{S_A}, s{S_A}, 128
    s_cbranch_scc1 K_wp
    s_and_b32 s{S_B}, s{S_A}, 1              ; b1 lines 0, 1
    s_mov_b64 {sr(S_J,2)}, {sr(S_B1,2)}
    s_cmp_lt_u32 s{S_A}, 2
    s_cbranch_scc1 K_wp
    s_mov_b32 s{S_B}, 0
    s_mov_b64 {sr(S_J,2)}, {sr(S_B2,2)}
K_wp:
    s_lshl_b32 s{S_B}, s{S_B}, 7
    v_mov_b32 v7, s{S_B}
    global_load_dword v5, v7, {sr(S_J,2)}""")
    a(f"""
    v_and_b32 v{vC8}, 3, v{L}
    v_lshlrev_b32 v{vC8}, 3, v{vC8}
    v_and_b32 v{t1}, 16, v{L}
    v_lshl_add_u32 v{vC8}, v{t1}, 1, v{vC8}  ; 8c + 32(g&1)
    s_lshr_b32 s{S_D}, s{S_WAVE}, 1          ; ct
    v_bfe_u32 v{t0}, v{L}, 2, 2
    v_xor_b32 v{t3}, s{S_D}, v{t0}
    v_lshlrev_b32 v{t3}, 6, v{t3}
    v_lshl_add_u32 v{t0}, v{HH}, 3, v{t0}
    v_lshl_add_u32 v{t0}, v{t0}, 8, v{t3}
    v_add_u32 v{vWa}, {L_W1}, v{t0}          ; k row 8*hh + r, column block ct^r
    v_and_b32 v{vWp}, 1, v{L}
    v_lshl_add_u32 v{vWp}, v{vWp}, 5, v{vWa}
    v_and_b32 v{t3}, 16, v{L}
    v_add_u32 v{vWp}, v{vWp}, v{t3}
    v_and_b32 v{t3}, 2, v{L}
    v_lshl_add_u32 v{vWp}, v{t3}, 2, v{vWp}  ; + 16(c&1) + 4(2(g&1) + (c>>1)) columns
    s_and_b32 s{S_A}, s{S_WAVE}, 1
    s_lshl_b32 s{S_A}, s{S_A}, 12
    s_add_u32 s{S_A}, s{S_A}, {L_XR}
    v_bfe_u32 v{t3}, v{L}, 1, 3
    v_xor_b32 v{t3}, v{t3}, v{HH}
    v_lshl_add_u32 v{t3}, v{t3}, 4, s{S_A}
    v_lshl_add_u32 v{vXa}, v{J}, 7, v{t3}
    v_xor_b32 v{vXa+1}, 32, v{vXa}
    v_xor_b32 v{vXa+2}, 64, v{vXa}
    v_xor_b32 v{vXa+3}, 0x60, v{vXa}
    s_mov_b32 s{S_A}, 21400
    s_mov_b32 s{S_B}, -{NB}
    s_mov_b32 s{S_C}, 0xffff0000
    v_mov_b32 v{t5}, 0x10004
    v_mov_b32 v{vBa+4}, 0
    v_mov_b32 v{v4k}, 0x4000
    s_waitcnt vmcnt({(7 if tl == "1" else 6) - (2 if w1late else 0)})""")
    a(f"""
    s_cmp_lg_u32 s{S_WAVE}, 11
    s_cbranch_scc1 K_wJ
    s_bfm_b64 exec, {XTRA}, 0""")
    assert L_ST - L_RL <= step + 4096
    def binops(cols):
        for i in cols: a(f"    v_mul_u32_u24 v{vBa+i}, s{S_A}, v{vDst+i}")
        for i in cols: a(f"    v_lshrrev_b32 v{vBa+i}, 18, v{vBa+i}")
        for i in cols:
            a(f"    v_and_b32 v{vBa+i}, 0x3fc, v{vBa+i}")
            a(f"    ds_add_rtn_u32 v{vRk+i}, v{vBa+i}, v{t5} offset:{L_H1}")
        for i in cols: a(f"    v_lshlrev_b32 v{vDst+i}, 2, v{vDst+i}")
        for i in cols: a(f"    v_mad_i32_i24 v{vDst+i}, v{vBa+i}, s{S_B}, v{vDst+i}")
        for i in cols: a(f"    v_bfe_u32 v{vCl+i}, v{vDst+i}, 2, 1")
    binops([4])
    a(f"""
    s_mov_b64 exec, -1
K_wJ:""")
    stamp(a, 2)
    binops(range(4))
    a(f"""
    s_waitcnt vmcnt({(2 if w1late else 4)+tk-(2 if sp == 'first' else 0)}) lgkmcnt(0)
    s_barrier""")
    stamp(a, 3)
    a(f"""
    s_cmp_eq_u32 s{S_WAVE}, 8
    s_cbranch_scc1 K_scan1
    s_cmp_gt_u32 s{S_WAVE}, 8
    s_cbranch_scc1 K_notP
    ; ---- waves 0..7: P^T tile = -log2(e) * (x w1[0:64])^T""")
    for s_ in range(4):
        a(f"    ds_read_b128 {vr(vX+4*s_,4)}, v{vXa+s_}")
        for h in range(2):
            a(f"    ds_read_b64_tr_b16 {vr(vWf+4*s_+2*h,2)}, v{vWp} offset:{4096*s_+1024*h}")
    for s_ in range(4):
        a(f"    s_waitcnt lgkmcnt({9-3*s_})")
        cin = "0" if s_ == 0 else vr(vAc, 16)
        a(f"    v_mfma_f32_32x32x16_bf16 {vr(vAc,16)}, {vr(vWf+4*s_,4)}, {vr(vX+4*s_,4)}, {cin}")
    a(f"""
    s_and_b32 s{S_B}, s{S_WAVE}, 1
    s_mul_i32 s{S_A}, s{S_B}, {32*PS_STRIDE}
    s_lshl_b32 s{S_B}, s{S_D}, 6
    s_add_u32 s{S_A}, s{S_A}, s{S_B}
    s_add_u32 s{S_A}, s{S_A}, {L_PS}
    v_mul_u32_u24 v{t3}, {PS_STRIDE}, v{J}
    v_lshl_add_u32 v{t3}, v{HH}, 5, v{t3}
    v_add_u32 v{t3}, s{S_A}, v{t3}
    v_mov_b32 v{t4}, {NLOG2E:#x}
    v_cmp_gt_u32 vcc, {L_PS + 56*PS_STRIDE}, v{t3}
    s_nop 1""")
    for q in range(8):
        a(f"    v_pk_mul_f32 {vr(vAc+2*q,2)}, {vr(vAc+2*q,2)}, {vr(t4,2)} op_sel_hi:[1,0]")
    for q in range(8):
        a(f"    v_cvt_pk_bf16_f32 v{vAc+q}, v{vAc+2*q}, v{vAc+2*q+1}")
    a(f"""
    s_mov_b64 exec, vcc
    ds_write_b128 v{t3}, {vr(vAc,4)}
    ds_write_b128 v{t3}, {vr(vAc+4,4)} offset:16
    s_mov_b64 exec, -1
    s_branch K_b3
K_notP:
    v_lshlrev_b32 v{t1}, 4, v{L}
    v_add_u32 v{t4}, {L_PS + 48*PS_STRIDE}, v{t1}
    v_add_u32 v{t1}, {48*256}, v{t1}
    s_branch K_b3
K_scan1:
    ; ---- wave 8: segment offsets; a segment is n records (4 bytes) followed by n node bytes, padded to 4
    s_setprio 2
    global_load_dwordx2 {vr(vTg,2)}, v{vZ}, {sr(S_DBG,2)}
    v_lshlrev_b32 v{t0}, 4, v{L}
    ds_read_b128 v[56:59], v{t0} offset:{L_H1}
    s_waitcnt lgkmcnt(0)""")
    for i in range(4):
        a(f"    v_lshrrev_b32 v{60+i}, 16, v{56+i}")
    for i in range(4):
        a(f"    v_mad_u32_u24 v{64+i}, v{60+i}, 5, 3")
    for i in range(4):
        a(f"    v_and_b32 v{64+i}, -4, v{64+i}")
    a(f"""
    v_add_u32 v65, v64, v65
    v_add_u32 v66, v65, v66
    v_add_u32 v67, v66, v67
    v_mov_b32 v68, v67""")
    wave_scan(a, 68)
    a(f"""
    v_sub_u32 v68, v68, v67
    v_add_u32 v69, v68, v64
    v_add_u32 v70, v68, v65
    v_add_u32 v71, v68, v66
    s_mov_b32 s{S_A}, 0x10001""")
    for i in range(4):
        a(f"    v_mul_u32_u24 v{64+i}, s{S_A}, v{68+i}")
    for i in range(4):
        a(f"    v_lshl_add_u32 v{64+i}, v{56+i}, 16, v{64+i}")
    a(f"""
    ds_write_b128 v{t0}, v[64:67] offset:{L_OFF}
    s_setprio 0
K_b3:
    v_lshrrev_b32 v{t0}, 4, v{T}
    v_lshl_add_u32 v{t0}, v{t0}, 4, v{t2}
    v_add_u32 v{t0}, {L_PS}, v{t0}
    s_lshl_b32 s{S_A}, s{S_N0}, 8
    s_add_u32 s{S_A}, s{S_A}, {WS_P}
    s_add_u32 s{S_RT}, s{S_WS}, s{S_A}
    s_addc_u32 s{S_RT+1}, s{S_WS+1}, 0
    s_lshl_b32 s{S_RT+2}, s{S_NN}, 8
    s_mov_b32 s{S_RT+3}, 0x00020000
    s_waitcnt lgkmcnt(0)
    s_barrier                                ; B3: segment offsets, P staged""")
    stamp(a, 4)
    a(f"""
    s_cmp_lt_u32 s{S_WAVE}, 10
    s_cbranch_scc1 K_nx0
    ds_read_b32 v{vOf+4}, v{vBa+4} offset:{L_OFF}
    ds_read_b128 v[76:79], v{t4}
K_nx0:
    ds_read_b128 v[72:75], v{t0}""")
    for i in range(4):
        a(f"    ds_read_b32 v{vOf+i}, v{vBa+i} offset:{L_OFF}")
    a(f"""
    s_waitcnt lgkmcnt(4)
    {"" if pdel else f"buffer_store_dwordx4 v[72:75], v{t2}, {sr(S_RT,4)}, 0 offen sc1"}""")
    if pdel: tk -= 1
    stamp(a, 24)
    a(f"""
    s_waitcnt vmcnt({(2 if w1late else 4)+tk})
    s_cmp_eq_u32 s{S_WAVE}, 8                ; (wave 8 has the tag load in flight as well)
    s_cbranch_scc1 K_w8
    s_waitcnt vmcnt({(1 if w1late else 3)+tk})
K_w8:""")
    stamp(a, 22)
    a(f"""
    v_lshl_or_b32 v{vSrc}, v{v4k}, v{vCl}, v{vSrc}
    v_lshl_or_b32 v{vSrc+1}, v{v4k}, v{vCl+1}, v{vSrc+1}
    v_lshl_or_b32 v{vSrc+2}, v{v4k}, v{vCl+2}, v{vSrc+2}
    v_lshl_or_b32 v{vSrc+3}, v{v4k}, v{vCl+3}, v{vSrc+3}
    v_lshl_or_b32 v{vSrc}, v{vEa}, 16, v{vSrc}
    v_and_or_b32 v{vSrc+1}, v{vEa}, s{S_C}, v{vSrc+1}
    v_lshl_or_b32 v{vSrc+2}, v{vEa+1}, 16, v{vSrc+2}
    v_and_or_b32 v{vSrc+3}, v{vEa+1}, s{S_C}, v{vSrc+3}
    s_waitcnt lgkmcnt(0)""")
    def scatter(i):
        a(f"    v_add_u32_sdwa v{vBa+i}, v{vOf+i}, v{vRk+i} {SD} src0_sel:WORD_0 src1_sel:WORD_0")
        a(f"    v_add_u32_sdwa v{vOf+i}, v{vOf+i}, v{vRk+i} {SD} src0_sel:WORD_1 src1_sel:WORD_1")
        a(f"    ds_write_b32 v{vBa+i}, v{vSrc+i} offset:{L_RS}")
        a(f"    ds_write_b8 v{vOf+i}, v{vDst+i} offset:{L_RS}")
    for i in range(4): scatter(i)
    a(f"""
    s_cmp_lt_u32 s{S_WAVE}, 10
    s_cbranch_scc1 K_nx2
    s_cmp_eq_u32 s{S_WAVE}, 11
    s_cbranch_scc1 K_x2
    buffer_store_dwordx4 v[76:79], v{t1}, {sr(S_RT,4)}, 0 offen sc1""")
    if optval("b1_", "") == "late":
        a(f"""
    s_mov_b32 m0, {L_WC + 256}
    v_lshlrev_b32 v{t3}, 2, v{L}
    global_load_lds_dword v{t3}, {sr(S_B1,2)}
""")
    a(f"""
    s_branch K_nx2
K_x2:
    s_bfm_b64 exec, {XTRA}, 0
    v_lshl_or_b32 v{vSrc+4}, v{v4k}, v{vCl+4}, v{vSrc+4}
    v_lshl_or_b32 v{vSrc+4}, v{vEa+2}, 16, v{vSrc+4}""")
    scatter(4)
    a(f"""
    s_mov_b64 exec, -1
K_nx2:""")
    if w1late: a(ST2)
    a(f"""
    s_mul_i32 s{S_A}, s2, {RSTRIDE}
    s_add_u32 s{S_RR}, s{S_WS}, s{S_A}
    s_addc_u32 s{S_RR+1}, s{S_WS+1}, 0
    s_mov_b32 s{S_RR+2}, 16512
    s_mov_b32 s{S_RR+3}, 0x00020000
    v_add_u32 v{t3}, {step}, v{t2}
    s_waitcnt lgkmcnt(0)""")
    if pdel == "1": a(f"    buffer_store_dwordx4 v[72:75], v{t2}, {sr(S_RT,4)}, 0 offen sc1")
    stamp(a, 23)
    a(f"""
    s_barrier""")
    stamp(a, 5)
    a(f"""
    ds_read_b128 v[0:3], v{t2} offset:{L_RS}
    s_cmp_ge_u32 s{S_WAVE}, 5
    s_cbranch_scc1 K_co1
    ds_read_b128 v[8:11], v{t2} offset:{L_RS + step}
    s_waitcnt lgkmcnt(0)
    buffer_store_dwordx4 v[8:11], v{t3}, {sr(S_RR,4)}, 0 offen sc1
K_co1:
    s_waitcnt lgkmcnt(0)
    buffer_store_dwordx4 v[0:3], v{t2}, {sr(S_RR,4)}, 0 offen sc1
    {f"buffer_store_dwordx4 v[72:75], v{t2}, {sr(S_RT,4)}, 0 offen sc1" if pdel == "2" else ""}
""")
    def emit_consts():
        a(f"""
    ; ---- lane constants, while the stores drain
    ; gather: lane -> row l>>4 of 4, piece l&15; odd rows have their 64-byte blocks swapped pairwise
    v_and_b32 v{tc}, 15, v{L}
    v_bfe_u32 v{t3}, v{L}, 4, 1
    v_lshlrev_b32 v{t3}, 2, v{t3}
    v_xor_b32 v{tc}, v{tc}, v{t3}
    v_lshlrev_b32 v{V_IX+1}, 4, v{tc}
    v_mov_b32 v{V_IX+3}, v{V_IX+1}
    v_mov_b32 v{V_IX+5}, v{V_IX+1}
    v_mov_b32 v{V_IX+7}, v{V_IX+1}
    v_lshrrev_b32 v{V_AIDX}, 4, v{L}
    v_lshlrev_b32 v{V_AIDX}, 1, v{V_AIDX}
    v_bfe_u32 v{tc}, v{L}, 3, 1
    v_xor_b32 v{t3}, v{tc}, v{HH}
    v_lshl_add_u32 v{t3}, v{t3}, 6, v{vC8}
    v_lshl_add_u32 v{tc}, v{tc}, 8, v{t3}
    s_lshl_b32 s{S_B}, s{S_WAVE}, 12
    s_add_u32 s{S_B}, s{S_B}, {L_XS}
    v_add_u32 v{tc}, s{S_B}, v{tc}
    v_bfe_u32 v{t4}, v{L}, 2, 1
    v_cmp_ne_u32 vcc, 0, v{t4}
    v_mov_b32 v{t3}, {L_Z}
    v_mov_b32 v{V_MN}, 1.0
    v_cndmask_b32 v{V_AA}, v{t3}, v{tc}, vcc
    v_cmp_eq_u32 {mask(0)}, v{t4}, v{HH}
    v_bfe_u32 v{tc}, v{L}, 3, 2
    v_and_b32 v{t3}, 3, v{L}
    v_lshl_add_u32 v{tc}, v{tc}, 2, v{t3}
    v_lshlrev_b32 v{tc}, 2, v{tc}
    v_add_u32 v{tc}, {L_G}, v{tc}
    v_mov_b32 v{t3}, {L_ZA}
    v_cndmask_b32 v{V_AENT}, v{t3}, v{tc}, {mask(0)}
    v_mov_b32 v{t3}, 0x80
    v_cndmask_b32 v{V_INCA}, 0, v{t3}, {mask(0)}
    v_and_b32 v{vJ0}, 1, v{L}
    v_mul_u32_u24 v{vJ0}, {9*VAR_SIZE}, v{vJ0}
    v_add_u32 v{vJ0}, {ENTRY}, v{vJ0}""")
        for m in range(4):
            a(f"    s_movk_i32 s{S_P+m}, {3072 - 1024*m}")
        for c in range(2):
            a(f"    v_mov_b32 v{V_ND+4*c}, 0")
            a(f"    v_mov_b32 v{V_ND+4*c+1}, 0")
            a(f"    v_mov_b32 v{V_ND+4*c+2}, 1.0")
            a(f"    v_mov_b32 v{V_ND+4*c+3}, 1.0")
        a(f"""
    s_and_b32 s{S_A}, s{S_WAVE}, 3
    s_mul_i32 s{S_A}, s{S_A}, 3
    s_lshr_b32 s{S_B}, s{S_WAVE}, 2
    s_add_u32 s{S_SLOT}, s{S_A}, s{S_B}
    s_getpc_b64 {sr(S_PC,2)}
K_pc:
    s_add_u32 s{S_PC}, s{S_PC}, K_vbase - K_pc
    s_addc_u32 s{S_PC+1}, s{S_PC+1}, 0
    ; segment mapping of phase 2: segment 128 i + t/6, lane group g = t%6
    v_mul_u32_u24 v{tc}, 10923, v{T}
    v_lshrrev_b32 v{tc}, 16, v{tc}
    v_mad_i32_i24 v{vG4}, v{tc}, -6, v{T}
    v_lshlrev_b32 v{vG4}, 2, v{vG4}          ; 4g
    v_mul_u32_u24 v{vSb}, {RSTRIDE}, v{tc}
    ; share of P this lane pulls into L2
    s_lshr_b32 s{S_A}, s2, 3
    s_mul_i32 s{S_A}, s{S_A}, {256*128 if "hot" in OPT else 781*128}
    s_add_u32 s{S_A}, s{S_A}, {WS_P - (512*128 if "hot" in OPT else 0)}
    v_lshl_add_u32 v{vPf}, v{T}, 7, s{S_A}
    s_lshr_b32 s{S_B}, s{S_BIN}, 2
    s_lshl_b32 s{S_B}, s{S_B}, 4
    s_and_b32 s{S_A}, s{S_BIN}, 1
    s_lshl_b32 s{S_A}, s{S_A}, 3
    s_add_u32 s{S_B}, s{S_B}, s{S_A}
    s_and_b32 s{S_A}, s{S_BIN}, 2
    s_lshl_b32 s{S_A}, s{S_A}, 9
    s_add_u32 s{S_B}, s{S_B}, s{S_A}
    s_add_u32 s{S_B}, s{S_B}, {WS_TAB}
    v_lshl_add_u32 v{t5}, v{tc}, 11, s{S_B}  ; table entry offset""")
    cpos = optval("c_", "drain")
    if cpos == "drain": emit_consts()
    a(f"""
    s_mov_b32 s3, {NLOG2E:#x}
    s_cmp_lg_u32 s{S_WAVE}, 8
    s_cbranch_scc1 K_ntb
    s_mov_b32 s{S_K}, 0
    s_waitcnt vmcnt({4 if w1late else 2})
K_tagp:
    v_cmp_ne_u32 vcc, 0, v{vTg}
    s_cbranch_vccnz K_tagok
    s_add_u32 s{S_K}, s{S_K}, 1
    s_cmp_gt_u32 s{S_K}, {POLL_MAX}
    s_cbranch_scc1 K_tagok                   ; give up: tag 0 sends this workgroup to the slow path
    global_load_dwordx2 {vr(vTg,2)}, v{vZ}, {sr(S_DBG,2)} sc1
    s_waitcnt vmcnt(0)
    s_branch K_tagp
K_tagok:
    ds_write_b64 v{vZ}, {vr(vTg,2)} offset:{L_NONCE}
    v_and_b32 v{t3}, 0xfe000000, v{vTg}
    s_lshl_b32 s{S_B}, s2, 11
    s_add_u32 s{S_B}, s{S_B}, {WS_TAB}
    v_lshl_add_u32 v{t1}, v{L}, 4, s{S_B}""")
    for i in range(4):
        a(f"    v_lshrrev_b32 v{68+i}, 2, v{68+i}")
        a(f"    v_lshl_or_b32 v{68+i}, v{60+i}, 13, v{68+i}")
        a(f"    v_or_b32 v{vTb+2*i}, v{t3}, v{68+i}")
        a(f"    v_mov_b32 v{vTb+2*i+1}, v{vTg+1}")
    a(f"""
    s_waitcnt vmcnt(0) lgkmcnt(0)
    s_barrier                                ; B5
    s_cbranch_vccz K_slow
    global_store_dwordx4 v{t1}, {vr(vTb,4)}, {sr(S_WS,2)} {optval('ts_','sc1').replace('_',' ')}
    global_store_dwordx4 v{t1}, {vr(vTb+4,4)}, {sr(S_WS,2)} offset:1024 {optval('ts_','sc1').replace('_',' ')}
    s_branch K_b5j
K_ntb:
    s_waitcnt vmcnt(0)
    s_barrier                                ; B5: this workgroup's records and P rows are in memory
K_b5j:""")
    stamp(a, 6)
    a(f"""
    ds_read_b64 {vr(vTg,2)}, v{vZ} offset:{L_NONCE}
    v_lshlrev_b32 v{t0}, 1, v{L}
    v_add_u32 v{t0}, {L_WC}, v{t0}
    ds_read_u16 v{V_B5}, v{t0}
    ds_read_u16 v{V_B5+2}, v{t0} offset:128
    s_waitcnt lgkmcnt(0)
    v_readfirstlane_b32 s{S_TAG}, v{vTg}
    v_readfirstlane_b32 s{S_TAG+1}, v{vTg+1}
    s_cmp_eq_u32 s{S_TAG}, 0
    s_cbranch_scc1 K_slow""")
    for c in range(2):
        w = V_B5 + 2*c
        a(f"    v_lshlrev_b32 v{w}, 16, v{w}")
        a(f"    v_mul_f32 v{w}, s3, v{w}")
        a(f"    v_cvt_pk_bf16_f32 v{t3}, v{vZ}, v{w}")
        a(f"    v_sub_f32 v{t3}, v{w}, v{t3}")
        a(f"    v_cvt_pk_bf16_f32 v{w+1}, v{w}, v{t3}")
    a(f"""
    s_cmp_lt_u32 s{S_WAVE}, 8
    s_cbranch_scc1 K_Q
    ; waves 8..11 stage w2 and b2 (first used after the main loop)
    s_sub_u32 s{S_A}, s{S_WAVE}, 8
    s_lshl_b32 s{S_A}, s{S_A}, 12
    s_add_u32 m0, s{S_A}, {L_W2}
    v_lshl_add_u32 v{t3}, v{L}, 4, s{S_A}
    global_load_lds_dwordx4 v{t3}, {sr(S_W2,2)}
    global_load_lds_dwordx4 v{t3}, {sr(S_W2,2)} offset:1024
    global_load_lds_dwordx4 v{t3}, {sr(S_W2,2)} offset:2048
    global_load_lds_dwordx4 v{t3}, {sr(S_W2,2)} offset:3072
    s_cmp_lg_u32 s{S_WAVE}, 9
    s_cbranch_scc1 K_notQ
    s_mov_b32 m0, {L_B2}
    v_lshlrev_b32 v{t3}, 2, v{J}
    global_load_lds_dword v{t3}, {sr(S_B2,2)}
    s_branch K_notQ
K_Q:
    ; ---- waves 0..7: Q tile = -log2(e)/2 * (x w1[64:128] + b1) (selected by 2.0), while the table entries travel
    s_mov_b32 s3, {f32bits(-LOG2E/2):#x}
    s_lshl_b32 s{S_A}, s{S_D}, 6
    s_add_u32 s{S_A}, s{S_A}, {L_WC + 256}
    v_lshl_add_u32 v{t3}, v{J}, 1, s{S_A}
    ds_read_u16 v{vB1}, v{t3}
    v_add_u32 v{tc}, v{vWa}, v{vC8}""")
    for s_ in range(4):
        for h in range(2):
            a(f"    ds_read_b64_tr_b16 {vr(vWf+4*s_+2*h,2)}, v{tc} offset:{16384+4096*s_+1024*h}")
    a(f"""
    s_and_b32 s{S_A}, s{S_WAVE}, 1
    s_lshl_b32 s{S_B}, s{S_A}, 14
    s_lshl_b32 s{S_C}, s{S_D}, 7
    s_add_u32 s{S_B}, s{S_B}, s{S_C}
    s_add_u32 s{S_B}, s{S_B}, {L_QT - 512}
    v_lshl_add_u32 v{tc}, v{HH}, 11, s{S_B}
    v_lshl_add_u32 v{tc}, v{J}, 2, v{tc}""")
    for s_ in range(4):
        a(f"    s_waitcnt lgkmcnt({6-2*s_})")
        cin = "0" if s_ == 0 else vr(vAc, 16)
        a(f"    v_mfma_f32_32x32x16_bf16 {vr(vAc,16)}, {vr(vX+4*s_,4)}, {vr(vWf+4*s_,4)}, {cin}")
    a(f"""
    v_lshlrev_b32 v{vB1}, 16, v{vB1}
    v_mul_f32 v{vB1}, s3, v{vB1}
    s_nop 9""")
    def qpair(r):
        row = 8*(r >> 2) + (r & 3)
        a(f"    v_fma_f32 v{vAc+r}, v{vAc+r}, s3, v{vB1}")
        a(f"    v_fma_f32 v{vAc+r+1}, v{vAc+r+1}, s3, v{vB1}")
        a(f"    v_cvt_pk_bf16_f32 v{vWf+r}, v{vAc+r}, v{vAc+r+1}")
        a(f"    ds_write_b32 v{tc}, v{vWf+r} offset:{512*(row+1)}")
        a(f"    ds_write_b16 v{tc}, v{vWf+r} offset:{512*row}")
        a(f"    ds_write_b16_d16_hi v{tc}, v{vWf+r} offset:{512*(row+2)+2}")
    for r in range(0, 12, 2): qpair(r)
    a(f"""
    s_cmp_eq_u32 s{S_A}, 1
    s_cbranch_scc1 K_notQ""")
    for r in range(12, 16, 2): qpair(r)
    a(f"K_notQ:")
    if cpos == "post": emit_consts()
    if "qvm" in OPT: a("    s_waitcnt vmcnt(0)")
    if "noqbar" not in OPT: a("    s_waitcnt lgkmcnt(0)\n    s_barrier                                ; Q table complete; no wave looks at the table before this point")
    if cpos == "post2": emit_consts()
    stamp(a, 7)
    vT = 0
    vN = 4
    vAr = 6
    vR = 12
    vM = 28
    vA = 32
    vK = 48
    vB = 64
    a(f"""
    s_lshl_b32 s{S_B}, s{S_WAVE}, 12
    s_add_u32 m0, s{S_B}, {L_XS}
    s_mov_b32 s{S_RR}, s{S_WS}
    s_mov_b32 s{S_RR+1}, s{S_WS+1}
    s_mov_b32 s{S_RR+2}, {WS_TAB + 256*2048}
    s_mov_b32 s{S_A}, {128*2048}
    s_mov_b32 s{S_B}, {128*RSTRIDE}
    s_mov_b32 s{S_C}, 0xfe000000
    s_movk_i32 s{S_D}, 0xfc
    s_mov_b32 s{S_K}, 0
    {"s_sleep " + optval("fs", "0") if optval("fs", "0") != "0" else ""}
    {f"s_cmp_lt_u32 s{S_WAVE}, 8" if optval("ls", "") else ""}
    {"s_cbranch_scc1 K_nls" if optval("ls", "") else ""}
    {"s_sleep " + optval("ls", "") if optval("ls", "") else ""}
K_nls:
    s_mov_b64 {mask(0)}, -1
    s_mov_b64 {mask(1)}, -1
    v_mov_b32 v{vM}, 0
    v_mov_b32 v{vM+1}, 0
K_poll:
    s_mov_b64 exec, {mask(0)}
    s_cbranch_execz K_pl0
    buffer_load_dwordx2 {vr(vT,2)}, v{t5}, {sr(S_RR,4)}, 0 offen {optval('pl_','sc1').replace('_',' ')}
K_pl0:
    s_mov_b64 exec, {mask(1)}
    s_cbranch_execz K_pl1
    buffer_load_dwordx2 {vr(vT+2,2)}, v{t5}, {sr(S_RR,4)}, s{S_A} offen {optval('pl_','sc1').replace('_',' ')}
K_pl1:
    s_mov_b64 exec, -1
    s_waitcnt vmcnt(0)""")
    for i in range(2):
        a(f"    v_xor_b32 v{vN+i}, s{S_TAG}, v{vT+2*i}")
        a(f"    v_xor_b32 v{vAr+i}, s{S_TAG+1}, v{vT+2*i+1}")
        a(f"    v_and_or_b32 v{vAr+i}, v{vN+i}, s{S_C}, v{vAr+i}")
        a(f"    v_cmp_ne_u32 {mask(i)}, 0, v{vAr+i}")
    a(f"""
    s_add_u32 s{S_K}, s{S_K}, 1
    s_or_b64 vcc, {mask(0)}, {mask(1)}
    s_cbranch_scc0 K_got
    {"s_sleep " + optval("ps", "") if optval("ps", "") else ""}
    s_cmp_lt_u32 s{S_K}, {POLL_MAX}
    s_cbranch_scc1 K_poll
    ; gave up: no records from this wave, ask for the slow path
    s_mov_b32 s{S_MODE}, 1
    s_branch K_nor2a
K_got:""")
    if DIAG:
        a(f"    v_writelane_b32 v{V_STAMP}, s{S_K}, 20")
    stamp(a, 8)
    so = ["0", sr(S_B)]
    for i in range(2):
        a(f"    v_and_b32 v{vAr+i}, 0x1fff, v{vT+2*i}")
        a(f"    v_bfe_u32 v{vT+2*i+1}, v{vT+2*i}, 13, 12")
        a(f"    v_lshl_add_u32 v{vAr+i}, v{vAr+i}, 2, v{vSb}")
        a(f"    v_sub_u32 v{vN+i}, v{vT+2*i+1}, v{vG4}")
        a(f"    v_lshl_add_u32 v{vAr+2+i}, v{vT+2*i+1}, 2, v{vAr+i}")
        a(f"    v_cmp_lt_i32 {mask(4*i)}, 0, v{vN+i}")
        a(f"    v_lshl_add_u32 v{vAr+i}, v{vG4}, 2, v{vAr+i}")
        a(f"    v_add_u32 v{vAr+2+i}, v{vAr+2+i}, v{vG4}")
        a(f"    s_or_b64 exec, {mask(4*i)}, 1")
        a(f"    buffer_load_dword v{vM+i}, v{vAr+2+i}, {sr(S_RR,4)}, {so[i]} offen")
        a(f"    buffer_load_dwordx4 {vr(vR+4*i,4)}, v{vAr+i}, {sr(S_RR,4)}, {so[i]} offen")
        a(f"    s_mov_b64 exec, -1")
    for i in range(2):
        for k in range(1, 4):
            a(f"    v_cmp_lt_i32 {mask(4*i+k)}, {k}, v{vN+i}")
    a(f"""
    v_max_i32 v{t1}, v{vN}, v{vN+1}
    v_cmp_lt_i32 vcc, 24, v{t1}
    s_mov_b32 s{S_K}, 0
    s_cbranch_vccz K_nor2a
    s_mov_b32 s{S_K}, 1""")
    for i in range(2):
        a(f"    buffer_load_dword v{vM+2+i}, v{vAr+2+i}, {sr(S_RR,4)}, {so[i]} offen offset:24")
        a(f"    buffer_load_dwordx4 {vr(vR+8+4*i,4)}, v{vAr+i}, {sr(S_RR,4)}, {so[i]} offen offset:96")
        for k in range(4):
            a(f"    v_cmp_lt_i32 {mask(8+4*i+k)}, {24+k}, v{vN+i}")
    pf0 = int(optval("pf", "8"))
    a(f"""
    v_cmp_lt_i32 vcc, 48, v{t1}
    s_cbranch_vccz K_nor2a
    s_mov_b32 s{S_MODE}, 1                   ; a segment is too long for the fast path
K_nor2a:
    v_mov_b32 v{t4}, {L_FLAG}
    v_mov_b32 v{t0}, 4
    s_cmp_eq_u32 s{S_MODE}, 0
    s_cbranch_scc1 K_nofl
    ds_write_b32 v{t4}, v{t0}
K_nofl:
    s_waitcnt lgkmcnt(0)
    s_barrier
    ds_read_b32 v{t3}, v{t4}
    ; P descriptor: 256-byte records, base shifted by -3072
    s_add_u32 s{S_RX}, s{S_WS}, {WS_P - 3072}
    s_addc_u32 s{S_RX+1}, s{S_WS+1}, 0
    s_and_b32 s{S_RX+1}, s{S_RX+1}, 0xffff
    s_or_b32 s{S_RX+1}, s{S_RX+1}, 0x01000000
    s_mov_b32 s{S_RX+2}, {N_NODES}
    s_mov_b32 s{S_RX+3}, 0x00020000
    s_waitcnt lgkmcnt(0)
    v_cmp_ne_u32 vcc, 0, v{t3}
    s_cbranch_vccnz K_slow
    s_cmp_lt_u32 s{S_WAVE}, {pf0}
    s_cbranch_scc1 K_npf
    global_load_dword v{t5}, v{vPf}, {sr(S_WS,2)} sc1
    s_waitcnt vmcnt(1)
    s_branch K_pfJ
K_npf:
    v_and_b32 v72, 7, v{L}
    v_lshlrev_b32 v74, 4, v72
    v_add_u32 v74, {L_B2}, v74
    ds_read_b128 v[76:79], v74
    v_and_b32 v{E_XR}, -8, v{T}              ; 8 * node
    v_lshlrev_b32 v{E_OUT}, 4, v{T}          ; output byte offset
    v_lshlrev_b32 v72, 5, v72
    v_add_u32 v{E_NX}, {L_QT}, v72
    s_waitcnt lgkmcnt(0)""")
    vBu = E_DB
    for q in range(4):
        a(f"    v_lshlrev_b32 v{vBu[q]}, 16, v{76+q}")
        a(f"    v_and_b32 v{vBu[q]+1}, 0xffff0000, v{76+q}")
    assert pf0 >= 7
    a(f"""
    s_cmp_ge_u32 s{S_WAVE}, 4
    s_cbranch_scc1 K_np1
    v_bfe_u32 v70, v{L}, 2, 1
    v_bfe_u32 v71, v{L}, 3, 1
    v_lshl_add_u32 v70, v70, 6, v71
    v_lshrrev_b32 v71, 4, v{L}               ; g
    v_lshl_add_u32 v70, v71, 2, v70
    v_lshlrev_b32 v70, 7, v70
    v_and_b32 v72, 3, v{L}
    v_lshl_add_u32 v70, v72, 4, v70
    v_add_u32 v{E_W2}, {L_W2}, v70
    v_and_b32 v70, 15, v{L}
    s_lshl_b32 s{S_C}, s{S_WAVE}, 4
    v_add_u32 v70, s{S_C}, v70               ; row
    v_mul_u32_u24 v72, {ST_STRIDE}, v70
    v_lshl_add_u32 v72, v71, 4, v72
    v_add_u32 v{E_SR}, {L_ST}, v72
    v_mul_u32_u24 v72, {OF_STRIDE}, v70
    v_lshl_add_u32 v72, v71, 5, v72
    v_add_u32 v{E_OW}, {L_QT}, v72
K_np1:
    s_waitcnt vmcnt(0)
K_pfJ:""")
    stamp(a, 9)
    def count_cols(ks):
        for k in ks:
            a(f"    v_and_b32_sdwa v{vA+k}, v{vM+k//4}, s{S_D} {SD} src0_sel:BYTE_{k%4} src1_sel:DWORD")
        for k in ks:
            a(f"    s_mov_b64 exec, {mask(k)}")
            a(f"    ds_add_rtn_u32 v{vK+k}, v{vA+k}, v{t0} offset:{L_H2}")
        a(f"    s_mov_b64 exec, -1")
    count_cols(range(8))
    a(f"""
    s_cmp_eq_u32 s{S_K}, 0
    s_cbranch_scc1 K_nor2b""")
    count_cols(range(8, 16))
    a(f"""
K_nor2b:
    v_lshlrev_b32 v{t1}, 2, v{L}
    v_cmp_gt_u32 vcc, s{S_NN}, v{L}
    s_waitcnt lgkmcnt(0)
    s_barrier""")
    stamp(a, 10)
    a(f"""
    ds_read_b32 v{V_CNT}, v{t1} offset:{L_H2}
    s_waitcnt lgkmcnt(0)
    v_add_u32 v{vP}, 4, v{V_CNT}
    v_and_b32 v{vP}, -8, v{vP}
    v_max_u32 v{vP}, 64, v{vP}
    v_cndmask_b32 v{vP}, 0, v{vP}, vcc
    v_mov_b32 v{vS}, v{vP}""")
    wave_scan(a, vS)
    a(f"""
    s_nop 0
    v_readlane_b32 s{S_A}, v{vS}, 63
    v_sub_u32 v{vS}, v{vS}, v{vP}
    ds_write_b32 v{t1}, v{vS} offset:{L_SX}
    s_cmp_gt_u32 s{S_A}, {ENT_CAP*4}
    s_cbranch_scc1 K_slow""")
    def place_cols(ks, mid=None):
        ks = list(ks)
        for k in ks:
            a(f"    ds_read_b32 v{vB+k}, v{vA+k} offset:{L_SX}")
        if mid: a(mid)
        for n, k in enumerate(ks):
            if n % 2 == 0:
                a(f"    s_waitcnt lgkmcnt({len(ks)-2-n})")
            a(f"    v_add_u32 v{vK+k}, v{vB+k}, v{vK+k}")
        for k in ks:
            a(f"    s_mov_b64 exec, {mask(k)}")
            a(f"    ds_write_b32 v{vK+k}, v{vR+k} offset:{L_RL}")
        a(f"    s_mov_b64 exec, -1")
    place_cols(range(8), f"""
    s_add_u32 s{S_A}, s{S_A}, 63
    s_lshr_b32 s{S_TT}, s{S_A}, 6            ; tiles
    s_mul_i32 s{S_T0}, s{S_SLOT}, s{S_TT}
    s_add_u32 s{S_NT}, s{S_T0}, s{S_TT}
    s_mul_i32 s{S_T0}, s{S_T0}, 43691
    s_mul_i32 s{S_NT}, s{S_NT}, 43691
    s_lshr_b32 s{S_T0}, s{S_T0}, 19
    s_lshr_b32 s{S_NT}, s{S_NT}, 19
    s_sub_u32 s{S_NT}, s{S_NT}, s{S_T0}""")
    a(f"""
    s_cmp_eq_u32 s{S_K}, 0
    s_cbranch_scc1 K_nor2c
    s_waitcnt lgkmcnt(0)""")
    place_cols(range(8, 16))
    thr = [int(x) for x in optval("thr", "8_4").split("_")] + [2]
    vBk = 80
    vGr = 82
    a(f"""
K_nor2c:
    s_lshl_b32 s{S_A}, s{S_T0}, 6            ; list position of this wave
    v_lshl_add_u32 v{t3}, v{V_AIDX}, 1, s{S_A}
    v_add_u32 v{t2}, s{S_A}, v{t1}
    ; first node of this wave: n = #(m < nn : start[m] <= ts) - 1
    v_cmp_ge_u32 {mask(0)}, s{S_A}, v{vS}
    v_subrev_u32 v{t0}, s{S_A}, v{vS}
    s_and_b64 {mask(0)}, {mask(0)}, vcc
    s_bcnt1_i32_b64 s{S_B}, {mask(0)}
    s_sub_u32 s{S_B}, s{S_B}, 1              ; n
    s_andn2_b64 {mask(0)}, vcc, {mask(0)}
    v_bfe_u32 v{t4}, v{t0}, 3, 3
    v_add_u32 v{t4}, 1, v{t4}
    v_lshrrev_b32 v{t0}, 4, v{t0}
    v_min_u32 v{t0}, 0xfc, v{t0}
    v_cndmask_b32 v{t0}, -4, v{t0}, {mask(0)}
    v_mov_b32 v{vBk}, 0
    {"" if "novar" in OPT else f"ds_permute_b32 v{vBk}, v{t0}, v{t4}"}
    s_cmp_lg_u32 s{S_WAVE}, 0
    s_cbranch_scc1 K_nprep
    ; wave 0: sum rows of node = lane: first = node + slot(first tile), extra = slot(last tile) - slot(first tile)
    v_cvt_f32_u32 v70, s{S_TT}
    v_rcp_f32 v70, v70
    v_add3_u32 v{vP}, v{vS}, v{vP}, -4
    v_lshrrev_b32 v{vS}, 6, v{vS}
    v_lshrrev_b32 v{vP}, 6, v{vP}
    v_cvt_f32_u32 v{vS}, v{vS}
    v_cvt_f32_u32 v{vP}, v{vP}
    v_add_f32 v{vS}, {f32bits((NW-0.5)/NW):#x}, v{vS}
    v_add_f32 v{vP}, {f32bits((NW-0.5)/NW):#x}, v{vP}
    v_mul_f32 v70, {f32bits(NW):#x}, v70
    v_mul_f32 v{vS}, v{vS}, v70
    v_mul_f32 v{vP}, v{vP}, v70
    v_cvt_u32_f32 v{vS}, v{vS}
    v_cvt_u32_f32 v{vP}, v{vP}
    v_cvt_f32_u32 v71, v{V_CNT}
    v_sub_u32 v{vP}, v{vP}, v{vS}
    v_add_u32 v{vS}, v{vS}, v{L}
    v_mul_u32_u24 v{vS}, {OF_STRIDE}, v{vS}
    v_mul_f32 v71, 0x3e800000, v71           ; degree
    v_lshl_or_b32 v70, v{vP}, 16, v{vS}
    v_lshlrev_b32 v72, 3, v{L}
    v_cndmask_b32 v70, 0, v70, vcc
    ds_write_b64 v72, v[70:71] offset:{L_RW}
K_nprep:
    s_waitcnt lgkmcnt(0)
    s_barrier""")
    stamp(a, 11)
    for m in range(4):
        a(f"    ds_read_u16 v{V_IX+2*m}, v{t3} offset:{L_RL + 16*m}")
    for c in range(5):
        a(f"    ds_read_b32 v{vGr+c}, v{t2} offset:{L_RL + 256*c}")
    a(f"""
    s_lshr_b32 s{S_C}, s{S_A}, 1
    s_add_u32 s{S_C}, s{S_C}, {L_IX}
    v_add_u32 v{V_AIDX}, s{S_C}, v{V_AIDX}
    v_lshl_add_u32 v{t0}, v{L}, 1, s{S_C}
    s_mov_b32 s{S_C}, 0x03020302
    s_mov_b32 s{S_D}, 0x8001
    s_waitcnt lgkmcnt(5)""")
    for m in range(4):
        a(f"    v_and_b32 v{V_IX+2*m}, {PADREC}, v{V_IX+2*m}")
    for h in dma_ops(): a(h)
    def conv(c):
        a(f"    v_and_b32 v{vGr+5+c}, 0xc000, v{vGr+c}")
        a(f"    v_perm_b32 v{64+c}, v{vGr+c}, v{vGr+c}, s{S_C}")
        a(f"    v_xor_b32 v{vGr+c}, v{vGr+c}, v{vGr+5+c}")
        a(f"    v_mul_u32_u24 v{vGr+5+c}, s{S_D}, v{vGr+5+c}")
        a(f"    v_and_b32 v{vGr+5+c}, 0x40004000, v{vGr+5+c}")
    def put(c):
        a(f"    ds_write2st64_b32 v{t2}, v{vGr+5+c}, v{64+c} offset0:{L_G//256 + c} offset1:{L_RL//256 + c}")
        a(f"    ds_write_b16 v{t0}, v{vGr+c} offset:{128*c}")
    a(f"""
    ; this wave's entries -> one-hot word, (e, e), source node
    s_lshl_b32 s{S_K}, s{S_NT}, 4
    s_waitcnt lgkmcnt(0)""")
    for c in range(4): conv(c)
    a(f"""
    s_sub_u32 s{S_J}, s{S_K}, 256
    s_cbranch_scc1 K_few""")
    for c in range(4): put(c)
    a(f"""
    s_bfm_b64 exec, s{S_J}, 0
    s_cbranch_execz K_put""")
    conv(4); put(4)
    a(f"""
    s_branch K_put
K_few:""")
    for c in range(4):
        a(f"    s_mov_b64 exec, -1\n    v_cmp_gt_i32 vcc, s{S_K}, v{L}\n    s_sub_u32 s{S_K}, s{S_K}, 64\n    s_mov_b64 exec, vcc")
        put(c)
    pcode = (4 << 3*thr[0]) | (3 << 3*thr[1]) | (2 << 3) | (1 << 6)
    assert 9 >= thr[0] > thr[1] > 2
    a(f"""
K_put:
    s_mov_b64 exec, -1
    s_lshl_b32 s{S_C}, s{S_B}, 9
    s_add_u32 s{S_C}, s{S_C}, {L_QT}
    v_add_u32 v{V_AQ}, s{S_C}, v{t1}
    v_lshrrev_b32 v{t4}, 7, v{V_INCA}
    v_mad_u32_u24 v{V_AENT}, v{t4}, s{S_A}, v{V_AENT}""")
    for h in ent_reads(0) + q_reads() + idx_reads(32): a(h)
    a(f"""
    s_add_u32 s{S_C}, s{S_B}, s{S_SLOT}
    s_mul_i32 s{S_C}, s{S_C}, {ST_STRIDE}
    s_add_u32 s{S_C}, s{S_C}, {L_ST}
    v_add_u32 v{V_AS}, s{S_C}, v{t1}
    v_add_u32 v{V_AQ}, 0x200, v{V_AQ}
    ; jump table: slot of the variant, entry inside it (priority steps near the end), exit at lane nt
    v_sub_u32 v{t0}, s{S_NT}, v{L}
    s_movk_i32 s{S_C}, {VAR_SIZE}
    s_mov_b32 s{S_D}, {pcode:#x}
    v_cmp_eq_u32 vcc, 0, v{t0}
    v_min_u32 v{t0}, 10, v{t0}
    v_mad_u32_u24 v{t4}, v{vBk}, s{S_C}, v{vJ0}
    v_mul_u32_u24 v{t0}, 3, v{t0}
    v_bfe_u32 v{t0}, s{S_D}, v{t0}, 3
    v_mov_b32 v{t3}, K_exit - K_vbase
    v_mad_i32_i24 v{t4}, v{t0}, -8, v{t4}
    v_cndmask_b32 v{t4}, v{t4}, v{t3}, vcc
    ds_bpermute_b32 v{V_TAB}, v{t1}, v{t4} offset:4
    s_mov_b32 s{S_K}, 1
    v_readlane_b32 s{S_J}, v{t4}, 0
    s_mov_b64 vcc, 0
    s_setprio 3
    s_waitcnt vmcnt(0)""")
    stamp(a, 12)
    for h in tr_reads(0): a(h)
    a(f"""
    s_add_u32 s{S_J}, s{S_J}, s{S_PC}
    s_addc_u32 s{S_J+1}, s{S_PC+1}, 0
    s_waitcnt lgkmcnt(0)""")
    a(small(0, 0))
    for h in dma_ops(): a(h)
    a(small(0, 1))
    a(f"    v_lshl_or_b32 v{V_TAB}, v{V_TAB}, 16, v{t4}")
    a("    s_nop 9")
    stamp(a, 13); stamp(a, 14, True)
    a(f"    s_setpc_b64 {sr(S_J,2)}")
    a(f".p2align 6")
    a(f"K_vbase:")
    for s_ in range(2):
        for b in [None] + list(range(8)):
            tile_variant(a, s_, b)
    a(f".p2align 3")
    a(f"K_exit:")
    stamp(a, 15); stamp(a, 16, True)
    flush1(a)
    a("    s_nop 0")
    flush2(a)
    a(f"""
    v_cmp_eq_f32 vcc, 0, v{V_MN}
    s_cbranch_vccz K_join
    ; a denominator left the f32 range: redo this bin on the exact slow path
    v_mov_b32 v65, {L_FLAG}
    ds_write_b32 v65, v65
K_join:
    s_cmp_ge_u32 s{S_WAVE}, 7
    s_cbranch_scc1 K_st2a
    ds_read_b64 v[102:103], v{E_XR} offset:{L_RW}
    s_lshl_b32 s{S_A}, s{S_N0}, 7
    s_add_u32 s{S_RT}, s{S_OUT}, s{S_A}
    s_addc_u32 s{S_RT+1}, s{S_OUT+1}, 0
    s_lshl_b32 s{S_RT+2}, s{S_NN}, 7
    s_mov_b32 s{S_RT+3}, 0x00020000
    s_movk_i32 s{S_C}, 0x207
    s_mov_b32 s{S_A}, 1
    v_mov_b32 v96, {NLN2:#x}
    v_mov_b32 v98, {L_Z2}
    s_lshl_b32 s{S_B}, s{S_NN}, 3
    v_cmp_gt_u32 {mask(0)}, s{S_B}, v{E_XR}
    s_waitcnt lgkmcnt(0)
    v_lshrrev_b32 v{E_XR}, 16, v102
    v_add_u32_sdwa v{E_ROW}, v102, v{E_NX} {SD} src0_sel:WORD_0 src1_sel:DWORD
    v_cmp_lt_u32 vcc, 0, v{E_XR}
    v_add_u32 v{E_NX}, {OF_STRIDE}, v{E_ROW}
    v_cndmask_b32 v{E_ROW}, v98, v{E_ROW}, {mask(0)}""")
    for q in range(4):
        a(f"    v_pk_mul_f32 {vr(E_DB[q],2)}, {vr(E_DB[q],2)}, v[102:103] op_sel:[0,1]")
    a(f"""
    v_cndmask_b32 v{E_R2}, v98, v{E_NX}, vcc
    s_cmp_ge_u32 s{S_WAVE}, 4
    s_cbranch_scc1 K_st2a
    ; ================= output, stage 1: products of the sum rows with w2""")
    for ot in range(4):
        for ks in range(4):
            for h in range(2):
                a(f"    ds_read_b64_tr_b16 {vr(16*ot+4*ks+2*h,2)}, v{E_W2} offset:{2048*ks+256*h+64*(ot>>1)+8*(ot&1)}")
    a(f"""
    s_waitcnt lgkmcnt(0)
    s_barrier""")
    stamp(a, 17)
    for ks in range(4):
        a(f"    ds_read_b128 {vr(64+4*ks,4)}, v{E_SR} offset:{64*ks}")
    def mf(ot, ks):
        d = vr(80 + 4*ot, 4)
        a(f"    v_mfma_f32_16x16x32_bf16 {d}, {vr(16*ot+4*ks,4)}, {vr(64+4*ks,4)}, {'0' if ks == 0 else d}")
    for ks in range(4):
        a(f"    s_waitcnt lgkmcnt({3-ks})")
        mf(0, ks); mf(1, ks)
    for ks in range(4):
        mf(2, ks); mf(3, ks)
    a(f"""
    ds_write_b128 v{E_OW}, v[80:83]
    ds_write_b128 v{E_OW}, v[84:87] offset:16
    s_nop 4
    ds_write_b128 v{E_OW}, v[88:91] offset:128
    ds_write_b128 v{E_OW}, v[92:95] offset:144
    s_waitcnt lgkmcnt(0)
    s_branch K_st2b
K_st2a:
    s_waitcnt lgkmcnt(0)
    s_barrier                                ; B9
K_st2b:
    s_cmp_ge_u32 s{S_WAVE}, 7
    s_barrier
    s_cbranch_scc1 K_fin
    ds_read_b128 v[64:67], v{E_ROW}
    ds_read_b128 v[68:71], v{E_ROW} offset:16
K_rows:
    ds_read_b128 v[72:75], v{E_R2}
    ds_read_b128 v[76:79], v{E_R2} offset:16
    v_cmp_lt_u32 vcc, s{S_A}, v{E_XR}
    v_add_u32 v{E_NX}, {OF_STRIDE}, v{E_NX}
    s_add_u32 s{S_A}, s{S_A}, 1
    s_waitcnt lgkmcnt(0)""")
    for q in range(4):
        a(f"    v_pk_add_f32 {vr(64+2*q,2)}, {vr(64+2*q,2)}, {vr(72+2*q,2)}")
    a(f"""
    v_cndmask_b32 v{E_R2}, v98, v{E_NX}, vcc
    s_cbranch_vccnz K_rows""")
    for q in range(4):
        a(f"    v_pk_fma_f32 {vr(64+2*q,2)}, {vr(64+2*q,2)}, v[96:97], {vr(E_DB[q],2)} op_sel_hi:[1,0,1]")
    for q in range(4):
        a(f"    v_cvt_pk_bf16_f32 v{72+q}, v{64+2*q}, v{65+2*q}")
    a(f"""
    buffer_store_dwordx4 v[72:75], v{E_OUT}, {sr(S_RT,4)}, 0 offen sc1
    ; a non-finite sum makes every output of its node non-finite: redo this bin on the exact slow path
    v_cmp_class_f32 vcc, v64, s{S_C}
    s_cbranch_vccz K_fin
    v_mov_b32 v65, {L_FLAG}
    ds_write_b32 v65, v65
K_fin:
    v_mov_b32 v65, {L_FLAG}
    s_waitcnt lgkmcnt(0)
    s_barrier                                ; B10
    ds_read_b32 v64, v65
    s_waitcnt lgkmcnt(0)
    v_cmp_ne_u32 vcc, 0, v64
    {"" if "novar" in OPT or "nodma" in OPT else "s_cbranch_vccnz K_slow"}""")
    if DIAG:
        a("    s_waitcnt vmcnt(0)")
        stamp(a, 18); stamp(a, 19, True)
        a(f"""
    s_getreg_b32 s{S_A}, hwreg(HW_REG_XCC_ID, 0, 4)
    v_writelane_b32 v{V_STAMP}, s{S_A}, 30
    v_writelane_b32 v{V_STAMP}, s{S_NT}, 21
    s_lshl_b32 s{S_A}, s2, 4
    s_add_u32 s{S_A}, s{S_A}, s{S_WAVE}
    s_lshl_b32 s{S_A}, s{S_A}, 8
    s_add_u32 s{S_A}, s{S_A}, {WS_STAMP}
    v_lshl_add_u32 v64, v{L}, 2, s{S_A}
    s_mov_b64 exec, 0xffffffff
    global_store_dword v64, v{V_STAMP}, {sr(S_WS,2)}
    global_store_dword v64, v{V_TRACE}, {sr(S_WS,2)} offset:128""")
    if optval("clk", ""):
        a(f"""
    s_lshl_b32 s{S_A}, s2, 4
    s_add_u32 s{S_A}, s{S_A}, s{S_WAVE}
    s_cmp_lg_u32 s{S_A}, {16*int(optval("wg", "100"))}
    s_cbranch_scc1 K_end
    s_lshl_b32 s{S_A}, s{S_TAG+1}, 7
    s_lshr_b32 s{S_B}, s{S_TAG}, 25
    s_or_b32 s{S_A}, s{S_A}, s{S_B}
    v_cvt_f32_u32 v64, s98
    v_cvt_f32_u32 v65, s99
    v_rcp_f32 v64, v64
    s_nop 1
    v_mul_f32 v64, v64, v65
    v_subrev_f32 v64, {f32bits(15.0):#x}, v64
    v_mul_f32 v64, {f32bits(float(optval("mul", "100"))):#x}, v64
    v_cvt_u32_f32 v64, v64
    s_nop 1
    v_readfirstlane_b32 s{S_B}, v64
    s_min_u32 s{S_B}, s{S_B}, 20000
    {f's_sub_u32 s{S_B}, {optval("clk", "")}, s{S_B}' if "neg" in OPT else f's_add_u32 s{S_B}, s{S_B}, {optval("clk", "")}'}
K_spin5:
    s_memrealtime s[98:99]
    s_waitcnt lgkmcnt(0)
    s_sub_u32 s98, s98, s{S_A}
    s_cmp_lt_u32 s98, s{S_B}
    s_cbranch_scc1 K_spin5""")
    if "endamp" in OPT:
        a(f"""
    s_waitcnt vmcnt(0)
    s_memrealtime s[100:101]
    s_lshl_b32 s{S_A}, s2, 4
    s_add_u32 s{S_A}, s{S_A}, s{S_WAVE}
    s_cmp_lg_u32 s{S_A}, {16*int(optval("wg", "100"))}
    s_cbranch_scc1 K_end
    s_lshl_b32 s{S_A}, s{S_TAG+1}, 7
    s_lshr_b32 s{S_B}, s{S_TAG}, 25
    s_or_b32 s{S_A}, s{S_A}, s{S_B}
    s_waitcnt lgkmcnt(0)
    s_sub_u32 s{S_B}, s100, s98
    s_min_u32 s{S_B}, s{S_B}, 2000
    s_mul_i32 s{S_B}, s{S_B}, 20
    s_add_u32 s{S_B}, s{S_B}, 3000
K_spin4:
    s_memrealtime s[98:99]
    s_waitcnt lgkmcnt(0)
    s_sub_u32 s98, s98, s{S_A}
    s_cmp_lt_u32 s98, s{S_B}
    s_cbranch_scc1 K_spin4""")
    if optval("fix", "") != "":
        a(f"""
    s_lshl_b32 s{S_A}, s2, 4
    s_add_u32 s{S_A}, s{S_A}, s{S_WAVE}
    s_cmp_lg_u32 s{S_A}, 1600
    s_cbranch_scc1 K_end
    s_lshl_b32 s{S_A}, s{S_TAG+1}, 7
    s_lshr_b32 s{S_B}, s{S_TAG}, 25
    s_or_b32 s{S_A}, s{S_A}, s{S_B}
K_spin3:
    s_memrealtime s[98:99]
    s_waitcnt lgkmcnt(0)
    s_sub_u32 s98, s98, s{S_A}
    s_cmp_lt_u32 s98, {optval("fix", "")}
    s_cbranch_scc1 K_spin3""")
    if optval("amp", "") != "":
        a(f"""
    s_waitcnt vmcnt(0)
    s_cmp_lg_u32 s{S_WAVE}, {optval("aw", "0")}
    s_cbranch_scc1 K_end
    s_lshl_b32 s{S_A}, s{S_TAG+1}, 7
    s_lshr_b32 s{S_B}, s{S_TAG}, 25
    s_or_b32 s{S_A}, s{S_A}, s{S_B}""")
        if optval("amp", "") == "99":
            a("    s_memrealtime s[98:99]\n    s_waitcnt lgkmcnt(0)")
        a(f"""
    {f"s_mov_b32 s{S_B}, s98" if "rel" in OPT else f"s_sub_u32 s{S_B}, s98, s{S_A}"}
    s_mov_b64 exec, 1
    v_mov_b32 v64, 0
    v_mov_b32 v65, s{S_B}
    v_mov_b32 v66, 1
    {"v_sub_u32 v65, 0x1000, v65" if "min" in OPT else ""}
    global_atomic_{"add" if "avg" in OPT else "umax"} v64, v65, {sr(S_DBG,2)} offset:128 sc1
    s_sub_u32 s{S_C}, s100, s{S_A}
    v_mov_b32 v68, s{S_C}
    {f"global_atomic_add v64, v68, {sr(S_DBG,2)} offset:144 sc1" if optval("sel", "") else ""}
    s_waitcnt vmcnt(0)
    global_atomic_add v67, v64, v66, {sr(S_DBG,2)} offset:136 sc0 sc1
    s_waitcnt vmcnt(0)
    v_readfirstlane_b32 s{S_B}, v67
    s_cmp_lg_u32 s{S_B}, 255
    s_cbranch_scc1 K_end
    global_atomic_add v67, v64, v64, {sr(S_DBG,2)} offset:128 sc0 sc1
    global_atomic_add v68, v64, v64, {sr(S_DBG,2)} offset:144 sc0 sc1
    s_waitcnt vmcnt(0)
    v_readfirstlane_b32 s{S_C}, v68
    s_cmp_lt_u32 s{S_C}, {390*256}
    {"s_cbranch_scc0 K_end" if optval("sel", "") == "lo" else ""}
    {"s_cbranch_scc1 K_end" if optval("sel", "") == "hi" else ""}
    v_readfirstlane_b32 s{S_B}, v67
    s_mul_i32 s{S_B}, s{S_B}, {optval("mul", "5")}
    {f"s_lshr_b32 s{S_B}, s{S_B}, 8" if "avg" in OPT else ""}
    s_min_u32 s{S_B}, s{S_B}, {optval("base", "0") if "neg" in OPT else 200000}
    {f's_sub_u32 s{S_B}, {optval("base", "0")}, s{S_B}' if "neg" in OPT else f's_add_u32 s{S_B}, s{S_B}, {optval("base", "0")}'}
K_spin2:
    s_memrealtime s[98:99]
    s_waitcnt lgkmcnt(0)
    s_sub_u32 s98, s98, s{S_A}
    s_cmp_lt_u32 s98, s{S_B}
    s_cbranch_scc1 K_spin2""")
    a(f"""
K_end:
    s_endpgm
K_slow:
    ; ================= exact path without hand-offs: scan all edges for this bin
    s_setprio 0
    s_mov_b32 s16, s{S_N0}
    s_mov_b32 s17, s{S_NN}
    s_mov_b32 s18, s{S_WAVE}""")
    gen_slow(a, 16, 17, 18, L, NLOG2E, NW=NW)
    a("    s_endpgm")

def main():
    global DIAG
    out = sys.argv[1]
    DIAG = "diag" in sys.argv[2:] or "lite" in sys.argv[2:]
    OPT.update(sys.argv[2:])
    a = Asm()
    a(f"""; Edge-featured MPNN layer: out[n] = sum_(e: dst=n) (silu([x[src],x[dst],e] w1 + b1) w2 + b2)
; @launch grid=(256,1,1) block=({NT_},1,1) lds={L_END}
.amdgcn_target "amdgcn-amd-amdhsa--gfx950"
.text""")
    gen_kernel(a)
    a(f"""
.section .rodata,"a"
.p2align 6
.amdhsa_kernel {KNAME}
  .amdhsa_next_free_vgpr {NVGPR}
  .amdhsa_next_free_sgpr 102
  .amdhsa_accum_offset {NVGPR}
  .amdhsa_group_segment_fixed_size 0
  .amdhsa_kernarg_size 88
  .amdhsa_user_sgpr_count 2
  .amdhsa_user_sgpr_kernarg_segment_ptr 1
  .amdhsa_system_sgpr_workgroup_id_x 1
  .amdhsa_float_denorm_mode_32 3
.end_amdhsa_kernel""")
    open(out, "w").write(a.text())

if __name__ == "__main__":
    main()
```

```python
import sys, struct
from slow import gen_slow

NAME = "standalone__edge_featured_mpnn_mpnn__graph"
KNAME = NAME + "_kernel"
N_NODES = 12500
NB = 49
NW = 12
NT_ = 64 * NW
MAINE = 4 * NT_
XTRA = 53
RSTRIDE = 16640

WS_TAB = 0x420000
WS_P = 0x4C0000
WS_STAMP = 0xA00000

L_Z = 128
L_H2 = 272
L_FLAG = 536
L_NONCE = 544
L_Z2 = 2048
OF_STRIDE = 272
L_SX = 1296
ENT_CAP = 3472
LSZ = 14080
L_ZA = 4096 - 144
L_G = 4096
L_RL = L_G + LSZ
L_ST = L_RL + LSZ
ST_STRIDE = 288
L_RW = L_ST + 19968
L_IX = L_ST + 20480
L_QT = (L_IX + LSZ // 2 + 255) // 256 * 256 + 512
L_XS = L_QT + 49 * 512
assert LSZ % 256 == 0 and (ENT_CAP + 48) * 4 == LSZ
L_W2 = L_XS + NW * 4096
L_B2 = L_W2 + 16384
L_END = L_B2 + 256
L_RS = L_ST
L_H1 = L_ST + 16640
L_OFF = L_H1 + 1024
L_W1 = L_XS
L_WC = L_XS + 32768
L_PS = L_WC + 512
L_XR = L_W2
PS_STRIDE = 272
assert L_XS % 256 == 0 and L_END <= 163840
assert L_H1 + 3072 <= L_RW and 64 * ST_STRIDE <= 19968 and L_OFF + 1024 < 65536 and L_PS + 56 * PS_STRIDE <= L_W2

def f32bits(x):
    return struct.unpack("<I", struct.pack("<f", x))[0]
LOG2E = 1.4426950408889634
NLOG2E = f32bits(-LOG2E)
NLN2 = f32bits(-0.6931471805599453)
PADREC = 0x3FFF
POLL_MAX = 4000

class Asm:
    def __init__(self):
        self.l = []
    def __call__(self, s=""):
        for x in s.strip("\n").split("\n"):
            if x.strip():
                self.l.append(x.rstrip())
    def text(self):
        return "\n".join(self.l) + "\n"

def vr(a, n=1):
    return f"v{a}" if n == 1 else f"v[{a}:{a+n-1}]"
def sr(a, n=1):
    return f"s{a}" if n == 1 else f"s[{a}:{a+n-1}]"

DIAG = False
OPT = set()
def optval(prefix, default):
    for o in OPT:
        if o.startswith(prefix):
            return o[len(prefix):]
    return default

V_D = 0; V_E = 64; V_A5 = 96; V_B5 = 98; V_ND = 102; V_T = 110; V_R = 114; V_O = 118; V_IX = 132
V_AA = 140; V_AIDX = 141; V_AENT = 142; V_AQ = 143; V_INCA = 144; V_AS = 145; V_MN = 146; V_PSEL = 147
V_PF = 126; V_TAB = 148; V_CNT = 149; V_S = 150; V_P = 151; V_LANE = 154; V_TID = 155
V_J = 156; V_HH = 157
E_W2 = 147; E_SR = 164; E_OW = 165
E_ROW = 100; E_XR = 125; E_NX = 124; E_R2 = 101; E_OUT = 127; E_DB = [128, 130, 122, 152]
V_STAMP = 167; V_TRACE = 166
NVGPR = 168
S_X = 4; S_E = 6; S_SRC = 8; S_DST = 10; S_W1 = 12; S_B1 = 14; S_W2 = 16; S_B2 = 18; S_OUT = 20; S_DBG = 22; S_WS = 24
S_BIN = 26; S_N0 = 27; S_NN = 28; S_WAVE = 29; S_MODE = 30; S_K = 31; S_PC = 32; S_J = 34
S_RX = 36; S_RT = 40; S_RR = 44; S_P = 48; S_JJ = 52
S_T0 = 56; S_NT = 57; S_TT = 58; S_SLOT = 59; S_A = 60; S_B = 61; S_C = 62; S_D = 63; S_TAG = 64
S_M = 66
def mask(k): return sr(S_M + 2*k, 2)

def stamp(a, k, real=False):
    if optval("dly", "") and int(optval("dly", "")) == k: a("    s_sleep 10")
    if optval("clk", ""):
        if k == 13: a("    s_memrealtime s[98:99]\n    s_memtime s[100:101]\n    s_waitcnt lgkmcnt(0)\n    s_mov_b32 s99, s100")
        if k == 15: a("    s_memrealtime s[96:97]\n    s_memtime s[100:101]\n    s_waitcnt lgkmcnt(0)\n    s_sub_u32 s98, s96, s98\n    s_sub_u32 s99, s100, s99")
        return
    if "endamp" in OPT:
        if k == 17: a("    s_memrealtime s[98:99]\n    s_waitcnt lgkmcnt(0)")
        return
    if optval("amp", "") != "":
        if int(optval("amp", "")) == k:
            a("    s_memrealtime s[98:99]\n    s_waitcnt lgkmcnt(0)")
            if "rel" in OPT: a(f"    s_sub_u32 s98, s98, s{S_TAG}")
        if k == 6 and optval("sel", ""):
            a("    s_memrealtime s[100:101]\n    s_waitcnt lgkmcnt(0)")
        return
    if not DIAG:
        return
    if "lite" in OPT and k not in (19,):
        return
    a(f"    {'s_memrealtime' if real else 's_memtime'} s[100:101]")
    a(f"    s_waitcnt lgkmcnt(0)")
    a(f"    v_writelane_b32 v{V_STAMP}, s100, {k}")

def wave_scan(a, v):
    for sh in (1, 2, 4, 8):
        a(f"    s_nop 1")
        a(f"    v_add_u32_dpp v{v}, v{v}, v{v} row_shr:{sh} row_mask:0xf bank_mask:0xf")
    a(f"    s_nop 1")
    a(f"    v_add_u32_dpp v{v}, v{v}, v{v} row_bcast:15 row_mask:0xa bank_mask:0xf")
    a(f"    s_nop 1")
    a(f"    v_add_u32_dpp v{v}, v{v}, v{v} row_bcast:31 row_mask:0xc bank_mask:0xf")

SD = "dst_sel:DWORD dst_unused:UNUSED_PAD"

def dreg(s, c): return V_D + 32*s + 16*c
def small(s, c):
    d = vr(dreg(s, c), 16)
    return f"    v_mfma_f32_32x32x8_bf16 {d}, {vr(V_A5,2)}, {vr(V_B5+2*c,2)}, {d}"
def tr_reads(s):
    return [f"    ds_read_b64_tr_b16 {vr(dreg(s,c)+2*u,2)}, v{V_AA} offset:{512*u+128*c}" for u in range(8) for c in range(2)]
def ent_reads(off):
    return [f"    ds_read_b32 v{V_A5}, v{V_AENT} offset:{off}",
            f"    ds_read_b32 v{V_A5+1}, v{V_AENT} offset:{off + L_RL - L_G}"]
def q_reads():
    return [f"    ds_read_b32 v{V_B5+2*c}, v{V_AQ} offset:{256*c}" for c in range(2)]
def idx_reads(off):
    return [f"    ds_read_u16 v{V_IX+2*m}, v{V_AIDX} offset:{off + 8*m}" for m in range(4)]
def dma_ops():
    if "nodma" in OPT: return []
    return [f"    buffer_load_dwordx4 {vr(V_IX+2*m,2)}, {sr(S_RX,4)}, s{S_P+m} idxen offen offset:{1024*m} sc1 lds" for m in range(4)]

def flush1(a):
    for c in range(2):
        D = V_ND + 4*c + 2
        a(f"    v_rcp_f32 v{V_R+2*c}, v{D}")
        a(f"    v_rcp_f32 v{V_R+2*c+1}, v{D+1}")
def flush2(a):
    for c in range(2):
        a(f"    v_pk_mul_f32 {vr(V_O+2*c,2)}, {vr(V_ND+4*c,2)}, {vr(V_R+2*c,2)}")
    for c in range(2):
        a(f"    v_min3_f32 v{V_MN}, v{V_MN}, v{V_R+2*c}, v{V_R+2*c+1}")
    for c in range(2):
        a(f"    v_add_f32 v{V_O+2*c}, v{V_O+2*c}, v{V_O+2*c+1}")
    a(f"    v_cvt_pk_bf16_f32 v{V_O}, v{V_O}, v{V_O+2}")
    a(f"    ds_write_b32 v{V_AS}, v{V_O}")

def y_phase(a, s, b, us=range(8), nsrc=None):
    if nsrc is None: nsrc = [V_ND + 4*c for c in range(2)]
    a(".p2align 3")
    for u in us:
        if u == b:
            flush1(a)
            for c in range(2):
                a(f"    v_pk_add_f32 {vr(V_ND+4*c+2,2)}, {vr(V_E+16*c+2*u,2)}, 1.0 op_sel_hi:[1,0]")
            flush2(a)
            for c in range(2):
                p = dreg(s, c) + 2*u
                if u == 7:
                    a(f"    v_pk_mov_b32 {vr(V_ND+4*c,2)}, {vr(p,2)}, {vr(p,2)} op_sel:[0,1]")
                else:
                    nsrc[c] = p
            continue
        for c in range(2):
            a(f"    v_pk_fma_f32 {vr(V_T+2*c,2)}, {vr(dreg(s,c)+2*u,2)}, {vr(V_ND+4*c+2,2)}, {vr(nsrc[c],2)}")
        for c in range(2):
            D = V_ND + 4*c + 2
            a(f"    v_pk_fma_f32 {vr(D,2)}, {vr(D,2)}, {vr(V_E+16*c+2*u,2)}, {vr(D,2)}")
        for c in range(2):
            a(f"    v_pk_fma_f32 {vr(V_ND+4*c,2)}, {vr(nsrc[c],2)}, {vr(V_E+16*c+2*u,2)}, {vr(V_T+2*c,2)}")
            nsrc[c] = V_ND + 4*c

VAR_SIZE = 960 if "clock" not in sys.argv else 1024
ENTRY = 32
def tile_variant(a, s, b):
    name = f"{s}{'N' if b is None else b}"
    vi = 9*s + (0 if b is None else b + 1)
    skipl = "noskip" not in OPT
    a(f".org K_vbase + {VAR_SIZE*vi}, 0")
    a(f"""
    s_setprio 2
    s_branch K_var{name}
    s_setprio 1
    s_branch K_var{name}
    s_mov_b64 vcc, {-1 if skipl else 0}                        ; last tile: nothing to prepare
    s_branch K_var{name}
    s_setprio 0
    s_mov_b32 s{S_RX+2}, 0                   ; two tiles left: nothing more to gather""")
    a(f"K_var{name}:")
    bnd = b is not None
    if "trace" in OPT and s == 0:
        a(f"    s_memtime s[100:101]\n    s_mov_b32 s{S_A}, m0\n    s_mov_b32 m0, s{S_K}\n    s_waitcnt lgkmcnt(0)")
        a(f"    v_writelane_b32 v{V_TRACE}, s100, m0")
        if "clock" in OPT:
            a(f"    s_memrealtime s[100:101]\n    s_add_u32 m0, m0, 1\n    s_waitcnt lgkmcnt(0)\n    v_writelane_b32 v{V_TRACE}, s100, m0")
        a(f"    s_mov_b32 m0, s{S_A}")
    es = [f"    v_exp_f32 v{V_E+16*c+2*u+h}, v{dreg(s,c)+2*u+h}" for u in range(8) for c in range(2) for h in range(2)]
    head = ent_reads(64 + 64*s) + (q_reads() if bnd else []) + tr_reads(s ^ 1) + idx_reads(64 + 32*s)
    plain = [f"    v_readlane_b32 s{S_JJ}, v{V_TAB}, s{S_K}"] if s == 0 else \
            [f"    v_add_u32 v{V_AENT}, v{V_INCA}, v{V_AENT}", f"    v_add_u32 v{V_AIDX}, 64, v{V_AIDX}"]
    if bnd: plain.append(f"    v_add_u32 v{V_AQ}, 0x200, v{V_AQ}")
    jump = [f"    s_and_b32 s{S_J}, s{S_JJ}, 0xffff", f"    s_add_u32 s{S_K}, s{S_K}, 2"] if s == 0 else [f"    s_lshr_b32 s{S_J}, s{S_JJ}, 16"]
    jump += [f"    s_add_u32 s{S_J}, s{S_J}, s{S_PC}", f"    s_addc_u32 s{S_J+1}, s{S_PC+1}, 0"]
    late = optval("late", "4_6")
    if late:
        ua, ub = [int(x) for x in late.split("_")]
        pre = []
        if optval("hs", "") == "1":
            pre = [h for h in head if "tr_b16" not in h]; head = [h for h in head if "tr_b16" in h]
        if optval("hs", "") == "2":
            head = [h for h in head if "tr_b16" in h] + [h for h in head if "tr_b16" not in h]
        for h in pre: a(h)
        xs = int(optval("xs", str(ub)))
        for e in es[:4*xs]: a(e)
        nsrc = [V_ND + 4*c for c in range(2)]
        y_phase(a, s, b, range(0, ua), nsrc)
        if skipl: a(f"    s_cbranch_vccnz K_va{name}")
        a("    s_waitcnt vmcnt(0)")
        for h in head: a(h)
        a(f".p2align 3\nK_va{name}:")
        for e in es[4*xs:4*ub]: a(e)
        y_phase(a, s, b, range(ua, ub), nsrc)
        if skipl: a(f"    s_cbranch_vccnz K_vb{name}")
        a(f"    s_waitcnt lgkmcnt(0)")
        if "mfirst" in OPT: a(small(s ^ 1, 0))
        for h in dma_ops(): a(h)
        if "mfirst" not in OPT: a(small(s ^ 1, 0))
        a(f"K_vb{name}:")
        for e in es[4*ub:4*ub+4]: a(e)
        a(small(s ^ 1, 1))
        for e in es[4*ub+4:]: a(e)
        for p_ in plain + jump: a(p_)
        y_phase(a, s, b, range(ub, 8), nsrc)
    else:
        n1 = int(optval("n1_", "16"))
        a("    s_waitcnt vmcnt(0)")
        for h in head: a(h)
        for e in es[:n1-2]: a(e)
        for p_ in plain: a(p_)
        for e in es[n1-2:n1]: a(e)
        a(f"    s_waitcnt lgkmcnt(0)")
        for h in dma_ops(): a(h)
        a(small(s ^ 1, 0))
        for e in es[n1:n1+4]: a(e)
        a(small(s ^ 1, 1))
        for e in es[n1+4:]: a(e)
        for p_ in jump: a(p_)
        y_phase(a, s, b)
    if bnd:
        a(f"    v_add_u32 v{V_AS}, {ST_STRIDE}, v{V_AS}")
    a(f"    s_setpc_b64 {sr(S_J,2)}")

def gen_kernel(a):
    L = V_LANE; T = V_TID; J = V_J; HH = V_HH
    t0, t1, t2, t3, t4, t5 = 158, 159, 160, 161, 162, 163
    step = NT_ * 16
    vDst = 0
    vSrc = 8
    vEa = 14
    tc = 17
    vTg = 18
    vBa = 20
    vRk = 26
    vWp = 31
    vOf = 32
    vC8 = 37; vWa = 38; vTa = 39
    vX = 40
    vWf = 56
    vPad = 56
    vAc = 72
    vTb = 88
    vXa = 88
    vB1 = 96
    vCl = 120
    v4k = 125
    vPf = 126
    vJ0 = V_R
    vZ = 128
    vG4 = 164; vSb = 165
    vS = V_S; vP = V_P
    a(f"""
.p2align 8
.globl {KNAME}
.type {KNAME},@function
{KNAME}:
    s_cmp_ge_u32 s2, 256
    s_cbranch_scc1 K_end
    s_load_dwordx8 s[4:11], s[0:1], 0
    s_load_dwordx8 s[12:19], s[0:1], 32      ; w1, b1, w2, b2
    s_load_dwordx4 s[20:23], s[0:1], 64
    s_load_dwordx2 s[24:25], s[0:1], 80      ; ws
    s_memrealtime {sr(S_TAG,2)}
    s_getpc_b64 {sr(S_J,2)}
    s_lshr_b32 s3, s2, 3
    s_lshl_b32 s3, s3, 7
    v_lshl_add_u32 v2, v0, 12, s3
    v_cmp_gt_u32 vcc, 7, v0
    s_and_saveexec_b64 {sr(S_PC,2)}, vcc
    s_cbranch_execz K_ncp
    global_load_dword v5, v2, {sr(S_J,2)}
K_ncp:
    s_mov_b64 exec, {sr(S_PC,2)}
    v_lshrrev_b32 v1, 6, v0
    v_mov_b32 v{T}, v0
    v_readfirstlane_b32 s{S_WAVE}, v1
    v_and_b32 v{L}, 63, v0
    s_mul_i32 s3, s2, {MAINE*4}
    v_lshl_add_u32 v{t0}, v0, 4, s3          ; byte offset into src/dst
    v_lshrrev_b32 v{t1}, 1, v{t0}
    s_and_b32 s{S_BIN}, s2, 7
    s_lshl_b32 s{S_BIN}, s{S_BIN}, 5
    s_lshr_b32 s3, s2, 3
    s_add_u32 s{S_BIN}, s{S_BIN}, s3
    s_mul_i32 s{S_N0}, s{S_BIN}, {NB}
    s_sub_u32 s{S_NN}, {N_NODES}, s{S_N0}
    s_min_u32 s{S_NN}, s{S_NN}, {NB}
    v_and_b32 v{J}, 31, v0
    v_bfe_u32 v{HH}, v0, 5, 1
    s_mov_b32 s{S_MODE}, 0
    v_mov_b32 v{vZ}, 0
    v_mov_b32 v{vZ+1}, 0
    v_mov_b32 v{vZ+2}, 0
    v_mov_b32 v{vZ+3}, 0
    v_lshlrev_b32 v{t2}, 2, v0""")
    if DIAG:
        a(f"    v_mov_b32 v{V_STAMP}, 0\n    v_mov_b32 v{V_TRACE}, 0")
        stamp(a, 0, True); stamp(a, 1)
    NTE = optval("e_", "").replace("_", " ")
    pdel = optval("pdel", "")
    sp = optval("src_", "post")
    SRCE = f"""
    global_load_dwordx4 {vr(vSrc,4)}, v{t0}, {sr(S_SRC,2)} {NTE}
    global_load_dwordx2 {vr(vEa,2)}, v{t1}, {sr(S_E,2)} {NTE}
"""
    a(f"""
    s_waitcnt lgkmcnt(0)
    global_load_dwordx4 {vr(vDst,4)}, v{t0}, {sr(S_DST,2)} {NTE}
    {f"s_add_u32 s98, s{S_TAG}, 200" if optval("amp", "") == "1" else ""}
    {f"v_writelane_b32 v{V_STAMP}, s{S_TAG}, 0" if "lite" in OPT else ""}
""")
    stamp(a, 29)
    a(f"""
    ds_write_b32 v{t2}, v{vZ} offset:{L_H1}
    s_cmp_lg_u32 s{S_WAVE}, 11
    s_cbranch_scc1 K_ld1
    ; wave 11 also takes the 53 extra edges of this chunk
    s_mul_i32 s{S_A}, s2, {XTRA}
    s_add_u32 s{S_A}, s{S_A}, {256*MAINE}
    v_min_u32 v{t5}, {XTRA-1}, v{L}
    v_add_lshl_u32 v{t5}, v{t5}, s{S_A}, 2
    v_lshrrev_b32 v{t4}, 1, v{t5}
    global_load_dword v{vDst+4}, v{t5}, {sr(S_DST,2)}
    global_load_dword v{vSrc+4}, v{t5}, {sr(S_SRC,2)}
    global_load_ushort v{vEa+2}, v{t4}, {sr(S_E,2)}
K_ld1:""")
    if optval("b1_", "") == "first":
        a(f"""
    s_cmp_lg_u32 s{S_WAVE}, 10
    s_cbranch_scc1 K_ld0
    s_mov_b32 m0, {L_WC + 256}
    v_lshlrev_b32 v{t3}, 2, v{L}
    global_load_lds_dword v{t3}, {sr(S_B1,2)}
K_ld0:""")
    a(f"""
""")
    a(f"""
    ; workgroup 0, wave 9 publishes the hand-off tag of this launch (39 clock bits, never zero)
    s_lshl_b32 s{S_A}, s2, 4
    s_add_u32 s{S_A}, s{S_A}, s{S_WAVE}
    s_cmp_lg_u32 s{S_A}, 9
    s_cbranch_scc1 K_ldJ
    s_lshl_b32 s{S_A}, s{S_TAG}, 25
    s_or_b32 s{S_A}, s{S_A}, 1
    s_lshr_b64 {sr(S_TAG,2)}, {sr(S_TAG,2)}, 7
    v_mov_b32 v{t4}, s{S_A}
    v_mov_b32 v{t4+1}, s{S_TAG}
    s_mov_b64 exec, 1
    global_store_dwordx2 v{vZ}, {vr(t4,2)}, {sr(S_DBG,2)} sc1
    s_mov_b64 exec, -1
K_ldJ:""")
    if sp == "first": a(SRCE)
    a(f"""
    s_lshl_b32 s{S_A}, s{S_WAVE}, 11
    s_cmp_ge_u32 s{S_WAVE}, 8
    s_cbranch_scc1 K_stX
    ; waves 0..7 stage w1 rows 0..63 (64-byte blocks of a row swapped by row&3)
    s_add_u32 m0, s{S_A}, {L_W1}
    v_lshrrev_b32 v{t3}, 2, v{L}
    v_and_b32 v{t3}, 12, v{t3}
    v_xor_b32 v{t3}, v{t3}, v{L}
    v_lshl_add_u32 v{t5}, v{t3}, 4, s{S_A}
    global_load_lds_dwordx4 v{t5}, {sr(S_W1,2)}
    global_load_lds_dwordx4 v{t5}, {sr(S_W1,2)} offset:1024
    s_branch K_stJ
K_stX:
    ; waves 8..11 stage the x rows of this bin (16-byte pieces swizzled inside each row)
    s_mov_b32 s{S_RX}, s4
    s_mov_b32 s{S_RX+1}, s5
    s_mov_b32 s{S_RX+2}, {N_NODES*128}
    s_mov_b32 s{S_RX+3}, 0x00020000
    s_add_u32 m0, s{S_A}, {L_XR - 16384}
    s_lshl_b32 s{S_B}, s{S_N0}, 7
    s_add_u32 s{S_A}, s{S_A}, s{S_B}
    s_sub_u32 s{S_A}, s{S_A}, 16384
    v_lshrrev_b32 v{t3}, 4, v{L}
    v_xor_b32 v{t3}, v{t3}, v{L}
    v_lshl_add_u32 v{t3}, v{t3}, 4, s{S_A}
    v_xor_b32 v{t5}, 64, v{t3}
    buffer_load_dwordx4 v{t3}, {sr(S_RX,4)}, 0 offen {NTE} lds
    buffer_load_dwordx4 v{t5}, {sr(S_RX,4)}, 0 offen offset:1024 {NTE} lds
K_stJ:""")
    stamp(a, 27)
    if sp == "pre": a(SRCE)
    a(f"""
    s_waitcnt lgkmcnt(0)
    s_barrier
    v_mov_b32 v{vPad}, {PADREC}
    v_mov_b32 v{vPad+1}, {PADREC}
    v_mov_b32 v{vPad+2}, {PADREC}
    v_mov_b32 v{vPad+3}, {PADREC}
    v_lshlrev_b32 v{t2}, 4, v{T}
    ds_write_b128 v{t2}, {vr(vPad,4)} offset:{L_RL}
    s_cmp_ge_u32 s{S_WAVE}, 4
    s_cbranch_scc1 K_in1
    ds_write_b128 v{t2}, {vr(vZ,4)}
    ds_write_b128 v{t2}, {vr(vPad,4)} offset:{L_ST - 4096}
K_in1:
    s_cmp_lg_u32 s{S_WAVE}, 4
    s_cbranch_scc1 K_in2
    v_lshlrev_b32 v{t3}, 2, v{L}
    ds_write_b32 v{t3}, v{vZ} offset:{L_RL - 256}
K_in2:""")
    if sp == "post": a(SRCE)
    stamp(a, 28)
    a(f"""
""")
    w1late = "w1early" not in OPT
    ST2 = f"""
    s_cmp_ge_u32 s{S_WAVE}, 8
    s_cbranch_scc1 K_st2
    s_add_u32 m0, m0, 16384
    v_add_u32 v6, 0x4000, v6
    global_load_lds_dwordx4 v6, {sr(S_W1,2)}
    global_load_lds_dwordx4 v6, {sr(S_W1,2)} offset:1024
    s_branch K_st3
K_st2:
    s_mov_b32 m0, {L_WC}
    v_lshlrev_b32 v{t3}, 2, v{L}
    v_add_u32 v7, 0x8000, v{t3}
    global_load_lds_dword v7, {sr(S_W1,2)}
    {f"s_mov_b32 m0, {L_WC + 256}" if not optval("b1_", "") else ""}
    s_nop 0
    {f"global_load_lds_dword v{t3}, {sr(S_B1,2)}" if not optval("b1_", "") else f"global_load_lds_dword v7, {sr(S_W1,2)}"}
K_st3:"""
    a(f"    v_mov_b32 v6, v{t5}")
    if not w1late: a(ST2)
    tl = "1" if "nowpf" not in OPT else ""
    tk = 1 if tl else 0
    if tl:
        a(f"""
    ; the waves of a die pull the weights that are staged later into its L2, one line each
    s_lshr_b32 s{S_A}, s2, 3
    s_mul_i32 s{S_A}, s{S_A}, {NW}
    s_add_u32 s{S_A}, s{S_A}, s{S_WAVE}
    s_add_u32 s{S_B}, s{S_A}, 128            ; w1 lines 128..257
    s_mov_b64 {sr(S_J,2)}, {sr(S_W1,2)}
    s_sub_u32 s{S_A}, s{S_A}, 130
    s_cbranch_scc1 K_wp
    s_mov_b32 s{S_B}, s{S_A}                 ; w2 lines 0..127
    s_mov_b64 {sr(S_J,2)}, {sr(S_W2,2)}
    s_sub_u32 s{S_A}, s{S_A}, 128
    s_cbranch_scc1 K_wp
    s_and_b32 s{S_B}, s{S_A}, 1              ; b1 lines 0, 1
    s_mov_b64 {sr(S_J,2)}, {sr(S_B1,2)}
    s_cmp_lt_u32 s{S_A}, 2
    s_cbranch_scc1 K_wp
    s_mov_b32 s{S_B}, 0
    s_mov_b64 {sr(S_J,2)}, {sr(S_B2,2)}
K_wp:
    s_lshl_b32 s{S_B}, s{S_B}, 7
    v_mov_b32 v7, s{S_B}
    global_load_dword v5, v7, {sr(S_J,2)}""")
    a(f"""
    v_and_b32 v{vC8}, 3, v{L}
    v_lshlrev_b32 v{vC8}, 3, v{vC8}
    v_and_b32 v{t1}, 16, v{L}
    v_lshl_add_u32 v{vC8}, v{t1}, 1, v{vC8}  ; 8c + 32(g&1)
    s_lshr_b32 s{S_D}, s{S_WAVE}, 1          ; ct
    v_bfe_u32 v{t0}, v{L}, 2, 2
    v_xor_b32 v{t3}, s{S_D}, v{t0}
    v_lshlrev_b32 v{t3}, 6, v{t3}
    v_lshl_add_u32 v{t0}, v{HH}, 3, v{t0}
    v_lshl_add_u32 v{t0}, v{t0}, 8, v{t3}
    v_add_u32 v{vWa}, {L_W1}, v{t0}          ; k row 8*hh + r, column block ct^r
    v_and_b32 v{vWp}, 1, v{L}
    v_lshl_add_u32 v{vWp}, v{vWp}, 5, v{vWa}
    v_and_b32 v{t3}, 16, v{L}
    v_add_u32 v{vWp}, v{vWp}, v{t3}
    v_and_b32 v{t3}, 2, v{L}
    v_lshl_add_u32 v{vWp}, v{t3}, 2, v{vWp}  ; + 16(c&1) + 4(2(g&1) + (c>>1)) columns
    s_and_b32 s{S_A}, s{S_WAVE}, 1
    s_lshl_b32 s{S_A}, s{S_A}, 12
    s_add_u32 s{S_A}, s{S_A}, {L_XR}
    v_bfe_u32 v{t3}, v{L}, 1, 3
    v_xor_b32 v{t3}, v{t3}, v{HH}
    v_lshl_add_u32 v{t3}, v{t3}, 4, s{S_A}
    v_lshl_add_u32 v{vXa}, v{J}, 7, v{t3}
    v_xor_b32 v{vXa+1}, 32, v{vXa}
    v_xor_b32 v{vXa+2}, 64, v{vXa}
    v_xor_b32 v{vXa+3}, 0x60, v{vXa}
    s_mov_b32 s{S_A}, 21400
    s_mov_b32 s{S_B}, -{NB}
    s_mov_b32 s{S_C}, 0xffff0000
    v_mov_b32 v{t5}, 0x10004
    v_mov_b32 v{vBa+4}, 0
    v_mov_b32 v{v4k}, 0x4000
    s_waitcnt vmcnt({(7 if tl == "1" else 6) - (2 if w1late else 0)})""")
    a(f"""
    s_cmp_lg_u32 s{S_WAVE}, 11
    s_cbranch_scc1 K_wJ
    s_bfm_b64 exec, {XTRA}, 0""")
    assert L_ST - L_RL <= step + 4096
    def binops(cols):
        for i in cols: a(f"    v_mul_u32_u24 v{vBa+i}, s{S_A}, v{vDst+i}")
        for i in cols: a(f"    v_lshrrev_b32 v{vBa+i}, 18, v{vBa+i}")
        for i in cols:
            a(f"    v_and_b32 v{vBa+i}, 0x3fc, v{vBa+i}")
            a(f"    ds_add_rtn_u32 v{vRk+i}, v{vBa+i}, v{t5} offset:{L_H1}")
        for i in cols: a(f"    v_lshlrev_b32 v{vDst+i}, 2, v{vDst+i}")
        for i in cols: a(f"    v_mad_i32_i24 v{vDst+i}, v{vBa+i}, s{S_B}, v{vDst+i}")
        for i in cols: a(f"    v_bfe_u32 v{vCl+i}, v{vDst+i}, 2, 1")
    binops([4])
    a(f"""
    s_mov_b64 exec, -1
K_wJ:""")
    stamp(a, 2)
    binops(range(4))
    a(f"""
    s_waitcnt vmcnt({(2 if w1late else 4)+tk-(2 if sp == 'first' else 0)}) lgkmcnt(0)
    s_barrier""")
    stamp(a, 3)
    a(f"""
    s_cmp_eq_u32 s{S_WAVE}, 8
    s_cbranch_scc1 K_scan1
    s_cmp_gt_u32 s{S_WAVE}, 8
    s_cbranch_scc1 K_notP
    ; ---- waves 0..7: P^T tile = -log2(e) * (x w1[0:64])^T""")
    for s_ in range(4):
        a(f"    ds_read_b128 {vr(vX+4*s_,4)}, v{vXa+s_}")
        for h in range(2):
            a(f"    ds_read_b64_tr_b16 {vr(vWf+4*s_+2*h,2)}, v{vWp} offset:{4096*s_+1024*h}")
    for s_ in range(4):
        a(f"    s_waitcnt lgkmcnt({9-3*s_})")
        cin = "0" if s_ == 0 else vr(vAc, 16)
        a(f"    v_mfma_f32_32x32x16_bf16 {vr(vAc,16)}, {vr(vWf+4*s_,4)}, {vr(vX+4*s_,4)}, {cin}")
    a(f"""
    s_and_b32 s{S_B}, s{S_WAVE}, 1
    s_mul_i32 s{S_A}, s{S_B}, {32*PS_STRIDE}
    s_lshl_b32 s{S_B}, s{S_D}, 6
    s_add_u32 s{S_A}, s{S_A}, s{S_B}
    s_add_u32 s{S_A}, s{S_A}, {L_PS}
    v_mul_u32_u24 v{t3}, {PS_STRIDE}, v{J}
    v_lshl_add_u32 v{t3}, v{HH}, 5, v{t3}
    v_add_u32 v{t3}, s{S_A}, v{t3}
    v_mov_b32 v{t4}, {NLOG2E:#x}
    v_cmp_gt_u32 vcc, {L_PS + 56*PS_STRIDE}, v{t3}
    s_nop 1""")
    for q in range(8):
        a(f"    v_pk_mul_f32 {vr(vAc+2*q,2)}, {vr(vAc+2*q,2)}, {vr(t4,2)} op_sel_hi:[1,0]")
    for q in range(8):
        a(f"    v_cvt_pk_bf16_f32 v{vAc+q}, v{vAc+2*q}, v{vAc+2*q+1}")
    a(f"""
    s_mov_b64 exec, vcc
    ds_write_b128 v{t3}, {vr(vAc,4)}
    ds_write_b128 v{t3}, {vr(vAc+4,4)} offset:16
    s_mov_b64 exec, -1
    s_branch K_b3
K_notP:
    v_lshlrev_b32 v{t1}, 4, v{L}
    v_add_u32 v{t4}, {L_PS + 48*PS_STRIDE}, v{t1}
    v_add_u32 v{t1}, {48*256}, v{t1}
    s_branch K_b3
K_scan1:
    ; ---- wave 8: segment offsets; a segment is n records (4 bytes) followed by n node bytes, padded to 4
    s_setprio 2
    global_load_dwordx2 {vr(vTg,2)}, v{vZ}, {sr(S_DBG,2)}
    v_lshlrev_b32 v{t0}, 4, v{L}
    ds_read_b128 v[56:59], v{t0} offset:{L_H1}
    s_waitcnt lgkmcnt(0)""")
    for i in range(4):
        a(f"    v_lshrrev_b32 v{60+i}, 16, v{56+i}")
    for i in range(4):
        a(f"    v_mad_u32_u24 v{64+i}, v{60+i}, 5, 3")
    for i in range(4):
        a(f"    v_and_b32 v{64+i}, -4, v{64+i}")
    a(f"""
    v_add_u32 v65, v64, v65
    v_add_u32 v66, v65, v66
    v_add_u32 v67, v66, v67
    v_mov_b32 v68, v67""")
    wave_scan(a, 68)
    a(f"""
    v_sub_u32 v68, v68, v67
    v_add_u32 v69, v68, v64
    v_add_u32 v70, v68, v65
    v_add_u32 v71, v68, v66
    s_mov_b32 s{S_A}, 0x10001""")
    for i in range(4):
        a(f"    v_mul_u32_u24 v{64+i}, s{S_A}, v{68+i}")
    for i in range(4):
        a(f"    v_lshl_add_u32 v{64+i}, v{56+i}, 16, v{64+i}")
    a(f"""
    ds_write_b128 v{t0}, v[64:67] offset:{L_OFF}
    s_setprio 0
K_b3:
    v_lshrrev_b32 v{t0}, 4, v{T}
    v_lshl_add_u32 v{t0}, v{t0}, 4, v{t2}
    v_add_u32 v{t0}, {L_PS}, v{t0}
    s_lshl_b32 s{S_A}, s{S_N0}, 8
    s_add_u32 s{S_A}, s{S_A}, {WS_P}
    s_add_u32 s{S_RT}, s{S_WS}, s{S_A}
    s_addc_u32 s{S_RT+1}, s{S_WS+1}, 0
    s_lshl_b32 s{S_RT+2}, s{S_NN}, 8
    s_mov_b32 s{S_RT+3}, 0x00020000
    s_waitcnt lgkmcnt(0)
    s_barrier                                ; B3: segment offsets, P staged""")
    stamp(a, 4)
    a(f"""
    s_cmp_lt_u32 s{S_WAVE}, 10
    s_cbranch_scc1 K_nx0
    ds_read_b32 v{vOf+4}, v{vBa+4} offset:{L_OFF}
    ds_read_b128 v[76:79], v{t4}
K_nx0:
    ds_read_b128 v[72:75], v{t0}""")
    for i in range(4):
        a(f"    ds_read_b32 v{vOf+i}, v{vBa+i} offset:{L_OFF}")
    a(f"""
    s_waitcnt lgkmcnt(4)
    {"" if pdel else f"buffer_store_dwordx4 v[72:75], v{t2}, {sr(S_RT,4)}, 0 offen sc1"}""")
    if pdel: tk -= 1
    stamp(a, 24)
    a(f"""
    s_waitcnt vmcnt({(2 if w1late else 4)+tk})
    s_cmp_eq_u32 s{S_WAVE}, 8                ; (wave 8 has the tag load in flight as well)
    s_cbranch_scc1 K_w8
    s_waitcnt vmcnt({(1 if w1late else 3)+tk})
K_w8:""")
    stamp(a, 22)
    a(f"""
    v_lshl_or_b32 v{vSrc}, v{v4k}, v{vCl}, v{vSrc}
    v_lshl_or_b32 v{vSrc+1}, v{v4k}, v{vCl+1}, v{vSrc+1}
    v_lshl_or_b32 v{vSrc+2}, v{v4k}, v{vCl+2}, v{vSrc+2}
    v_lshl_or_b32 v{vSrc+3}, v{v4k}, v{vCl+3}, v{vSrc+3}
    v_lshl_or_b32 v{vSrc}, v{vEa}, 16, v{vSrc}
    v_and_or_b32 v{vSrc+1}, v{vEa}, s{S_C}, v{vSrc+1}
    v_lshl_or_b32 v{vSrc+2}, v{vEa+1}, 16, v{vSrc+2}
    v_and_or_b32 v{vSrc+3}, v{vEa+1}, s{S_C}, v{vSrc+3}
    s_waitcnt lgkmcnt(0)""")
    def scatter(i):
        a(f"    v_add_u32_sdwa v{vBa+i}, v{vOf+i}, v{vRk+i} {SD} src0_sel:WORD_0 src1_sel:WORD_0")
        a(f"    v_add_u32_sdwa v{vOf+i}, v{vOf+i}, v{vRk+i} {SD} src0_sel:WORD_1 src1_sel:WORD_1")
        a(f"    ds_write_b32 v{vBa+i}, v{vSrc+i} offset:{L_RS}")
        a(f"    ds_write_b8 v{vOf+i}, v{vDst+i} offset:{L_RS}")
    for i in range(4): scatter(i)
    a(f"""
    s_cmp_lt_u32 s{S_WAVE}, 10
    s_cbranch_scc1 K_nx2
    s_cmp_eq_u32 s{S_WAVE}, 11
    s_cbranch_scc1 K_x2
    buffer_store_dwordx4 v[76:79], v{t1}, {sr(S_RT,4)}, 0 offen sc1""")
    if optval("b1_", "") == "late":
        a(f"""
    s_mov_b32 m0, {L_WC + 256}
    v_lshlrev_b32 v{t3}, 2, v{L}
    global_load_lds_dword v{t3}, {sr(S_B1,2)}
""")
    a(f"""
    s_branch K_nx2
K_x2:
    s_bfm_b64 exec, {XTRA}, 0
    v_lshl_or_b32 v{vSrc+4}, v{v4k}, v{vCl+4}, v{vSrc+4}
    v_lshl_or_b32 v{vSrc+4}, v{vEa+2}, 16, v{vSrc+4}""")
    scatter(4)
    a(f"""
    s_mov_b64 exec, -1
K_nx2:""")
    if w1late: a(ST2)
    a(f"""
    s_mul_i32 s{S_A}, s2, {RSTRIDE}
    s_add_u32 s{S_RR}, s{S_WS}, s{S_A}
    s_addc_u32 s{S_RR+1}, s{S_WS+1}, 0
    s_mov_b32 s{S_RR+2}, 16512
    s_mov_b32 s{S_RR+3}, 0x00020000
    v_add_u32 v{t3}, {step}, v{t2}
    s_waitcnt lgkmcnt(0)""")
    if pdel == "1": a(f"    buffer_store_dwordx4 v[72:75], v{t2}, {sr(S_RT,4)}, 0 offen sc1")
    stamp(a, 23)
    a(f"""
    s_barrier""")
    stamp(a, 5)
    a(f"""
    ds_read_b128 v[0:3], v{t2} offset:{L_RS}
    s_cmp_ge_u32 s{S_WAVE}, 5
    s_cbranch_scc1 K_co1
    ds_read_b128 v[8:11], v{t2} offset:{L_RS + step}
    s_waitcnt lgkmcnt(0)
    buffer_store_dwordx4 v[8:11], v{t3}, {sr(S_RR,4)}, 0 offen sc1
K_co1:
    s_waitcnt lgkmcnt(0)
    buffer_store_dwordx4 v[0:3], v{t2}, {sr(S_RR,4)}, 0 offen sc1
    {f"buffer_store_dwordx4 v[72:75], v{t2}, {sr(S_RT,4)}, 0 offen sc1" if pdel == "2" else ""}
""")
    def emit_consts():
        a(f"""
    ; ---- lane constants, while the stores drain
    ; gather: lane -> row l>>4 of 4, piece l&15; odd rows have their 64-byte blocks swapped pairwise
    v_and_b32 v{tc}, 15, v{L}
    v_bfe_u32 v{t3}, v{L}, 4, 1
    v_lshlrev_b32 v{t3}, 2, v{t3}
    v_xor_b32 v{tc}, v{tc}, v{t3}
    v_lshlrev_b32 v{V_IX+1}, 4, v{tc}
    v_mov_b32 v{V_IX+3}, v{V_IX+1}
    v_mov_b32 v{V_IX+5}, v{V_IX+1}
    v_mov_b32 v{V_IX+7}, v{V_IX+1}
    v_lshrrev_b32 v{V_AIDX}, 4, v{L}
    v_lshlrev_b32 v{V_AIDX}, 1, v{V_AIDX}
    v_bfe_u32 v{tc}, v{L}, 3, 1
    v_xor_b32 v{t3}, v{tc}, v{HH}
    v_lshl_add_u32 v{t3}, v{t3}, 6, v{vC8}
    v_lshl_add_u32 v{tc}, v{tc}, 8, v{t3}
    s_lshl_b32 s{S_B}, s{S_WAVE}, 12
    s_add_u32 s{S_B}, s{S_B}, {L_XS}
    v_add_u32 v{tc}, s{S_B}, v{tc}
    v_bfe_u32 v{t4}, v{L}, 2, 1
    v_cmp_ne_u32 vcc, 0, v{t4}
    v_mov_b32 v{t3}, {L_Z}
    v_mov_b32 v{V_MN}, 1.0
    v_cndmask_b32 v{V_AA}, v{t3}, v{tc}, vcc
    v_cmp_eq_u32 {mask(0)}, v{t4}, v{HH}
    v_bfe_u32 v{tc}, v{L}, 3, 2
    v_and_b32 v{t3}, 3, v{L}
    v_lshl_add_u32 v{tc}, v{tc}, 2, v{t3}
    v_lshlrev_b32 v{tc}, 2, v{tc}
    v_add_u32 v{tc}, {L_G}, v{tc}
    v_mov_b32 v{t3}, {L_ZA}
    v_cndmask_b32 v{V_AENT}, v{t3}, v{tc}, {mask(0)}
    v_mov_b32 v{t3}, 0x80
    v_cndmask_b32 v{V_INCA}, 0, v{t3}, {mask(0)}
    v_and_b32 v{vJ0}, 1, v{L}
    v_mul_u32_u24 v{vJ0}, {9*VAR_SIZE}, v{vJ0}
    v_add_u32 v{vJ0}, {ENTRY}, v{vJ0}""")
        for m in range(4):
            a(f"    s_movk_i32 s{S_P+m}, {3072 - 1024*m}")
        for c in range(2):
            a(f"    v_mov_b32 v{V_ND+4*c}, 0")
            a(f"    v_mov_b32 v{V_ND+4*c+1}, 0")
            a(f"    v_mov_b32 v{V_ND+4*c+2}, 1.0")
            a(f"    v_mov_b32 v{V_ND+4*c+3}, 1.0")
        a(f"""
    s_and_b32 s{S_A}, s{S_WAVE}, 3
    s_mul_i32 s{S_A}, s{S_A}, 3
    s_lshr_b32 s{S_B}, s{S_WAVE}, 2
    s_add_u32 s{S_SLOT}, s{S_A}, s{S_B}
    s_getpc_b64 {sr(S_PC,2)}
K_pc:
    s_add_u32 s{S_PC}, s{S_PC}, K_vbase - K_pc
    s_addc_u32 s{S_PC+1}, s{S_PC+1}, 0
    ; segment mapping of phase 2: segment 128 i + t/6, lane group g = t%6
    v_mul_u32_u24 v{tc}, 10923, v{T}
    v_lshrrev_b32 v{tc}, 16, v{tc}
    v_mad_i32_i24 v{vG4}, v{tc}, -6, v{T}
    v_lshlrev_b32 v{vG4}, 2, v{vG4}          ; 4g
    v_mul_u32_u24 v{vSb}, {RSTRIDE}, v{tc}
    ; share of P this lane pulls into L2
    s_lshr_b32 s{S_A}, s2, 3
    s_mul_i32 s{S_A}, s{S_A}, {256*128 if "hot" in OPT else 781*128}
    s_add_u32 s{S_A}, s{S_A}, {WS_P - (512*128 if "hot" in OPT else 0)}
    v_lshl_add_u32 v{vPf}, v{T}, 7, s{S_A}
    s_lshr_b32 s{S_B}, s{S_BIN}, 2
    s_lshl_b32 s{S_B}, s{S_B}, 4
    s_and_b32 s{S_A}, s{S_BIN}, 1
    s_lshl_b32 s{S_A}, s{S_A}, 3
    s_add_u32 s{S_B}, s{S_B}, s{S_A}
    s_and_b32 s{S_A}, s{S_BIN}, 2
    s_lshl_b32 s{S_A}, s{S_A}, 9
    s_add_u32 s{S_B}, s{S_B}, s{S_A}
    s_add_u32 s{S_B}, s{S_B}, {WS_TAB}
    v_lshl_add_u32 v{t5}, v{tc}, 11, s{S_B}  ; table entry offset""")
    cpos = optval("c_", "drain")
    if cpos == "drain": emit_consts()
    a(f"""
    s_mov_b32 s3, {NLOG2E:#x}
    s_cmp_lg_u32 s{S_WAVE}, 8
    s_cbranch_scc1 K_ntb
    s_mov_b32 s{S_K}, 0
    s_waitcnt vmcnt({4 if w1late else 2})
K_tagp:
    v_cmp_ne_u32 vcc, 0, v{vTg}
    s_cbranch_vccnz K_tagok
    s_add_u32 s{S_K}, s{S_K}, 1
    s_cmp_gt_u32 s{S_K}, {POLL_MAX}
    s_cbranch_scc1 K_tagok                   ; give up: tag 0 sends this workgroup to the slow path
    global_load_dwordx2 {vr(vTg,2)}, v{vZ}, {sr(S_DBG,2)} sc1
    s_waitcnt vmcnt(0)
    s_branch K_tagp
K_tagok:
    ds_write_b64 v{vZ}, {vr(vTg,2)} offset:{L_NONCE}
    v_and_b32 v{t3}, 0xfe000000, v{vTg}
    s_lshl_b32 s{S_B}, s2, 11
    s_add_u32 s{S_B}, s{S_B}, {WS_TAB}
    v_lshl_add_u32 v{t1}, v{L}, 4, s{S_B}""")
    for i in range(4):
        a(f"    v_lshrrev_b32 v{68+i}, 2, v{68+i}")
        a(f"    v_lshl_or_b32 v{68+i}, v{60+i}, 13, v{68+i}")
        a(f"    v_or_b32 v{vTb+2*i}, v{t3}, v{68+i}")
        a(f"    v_mov_b32 v{vTb+2*i+1}, v{vTg+1}")
    a(f"""
    s_waitcnt vmcnt(0) lgkmcnt(0)
    s_barrier                                ; B5
    s_cbranch_vccz K_slow
    global_store_dwordx4 v{t1}, {vr(vTb,4)}, {sr(S_WS,2)} {optval('ts_','sc1').replace('_',' ')}
    global_store_dwordx4 v{t1}, {vr(vTb+4,4)}, {sr(S_WS,2)} offset:1024 {optval('ts_','sc1').replace('_',' ')}
    s_branch K_b5j
K_ntb:
    s_waitcnt vmcnt(0)
    s_barrier                                ; B5: this workgroup's records and P rows are in memory
K_b5j:""")
    stamp(a, 6)
    a(f"""
    ds_read_b64 {vr(vTg,2)}, v{vZ} offset:{L_NONCE}
    v_lshlrev_b32 v{t0}, 1, v{L}
    v_add_u32 v{t0}, {L_WC}, v{t0}
    ds_read_u16 v{V_B5}, v{t0}
    ds_read_u16 v{V_B5+2}, v{t0} offset:128
    s_waitcnt lgkmcnt(0)
    v_readfirstlane_b32 s{S_TAG}, v{vTg}
    v_readfirstlane_b32 s{S_TAG+1}, v{vTg+1}
    s_cmp_eq_u32 s{S_TAG}, 0
    s_cbranch_scc1 K_slow""")
    for c in range(2):
        w = V_B5 + 2*c
        a(f"    v_lshlrev_b32 v{w}, 16, v{w}")
        a(f"    v_mul_f32 v{w}, s3, v{w}")
        a(f"    v_cvt_pk_bf16_f32 v{t3}, v{vZ}, v{w}")
        a(f"    v_sub_f32 v{t3}, v{w}, v{t3}")
        a(f"    v_cvt_pk_bf16_f32 v{w+1}, v{w}, v{t3}")
    a(f"""
    s_cmp_lt_u32 s{S_WAVE}, 8
    s_cbranch_scc1 K_Q
    ; waves 8..11 stage w2 and b2 (first used after the main loop)
    s_sub_u32 s{S_A}, s{S_WAVE}, 8
    s_lshl_b32 s{S_A}, s{S_A}, 12
    s_add_u32 m0, s{S_A}, {L_W2}
    v_lshl_add_u32 v{t3}, v{L}, 4, s{S_A}
    global_load_lds_dwordx4 v{t3}, {sr(S_W2,2)}
    global_load_lds_dwordx4 v{t3}, {sr(S_W2,2)} offset:1024
    global_load_lds_dwordx4 v{t3}, {sr(S_W2,2)} offset:2048
    global_load_lds_dwordx4 v{t3}, {sr(S_W2,2)} offset:3072
    s_cmp_lg_u32 s{S_WAVE}, 9
    s_cbranch_scc1 K_notQ
    s_mov_b32 m0, {L_B2}
    v_lshlrev_b32 v{t3}, 2, v{J}
    global_load_lds_dword v{t3}, {sr(S_B2,2)}
    s_branch K_notQ
K_Q:
    ; ---- waves 0..7: Q tile = -log2(e)/2 * (x w1[64:128] + b1) (selected by 2.0), while the table entries travel
    s_mov_b32 s3, {f32bits(-LOG2E/2):#x}
    s_lshl_b32 s{S_A}, s{S_D}, 6
    s_add_u32 s{S_A}, s{S_A}, {L_WC + 256}
    v_lshl_add_u32 v{t3}, v{J}, 1, s{S_A}
    ds_read_u16 v{vB1}, v{t3}
    v_add_u32 v{tc}, v{vWa}, v{vC8}""")
    for s_ in range(4):
        for h in range(2):
            a(f"    ds_read_b64_tr_b16 {vr(vWf+4*s_+2*h,2)}, v{tc} offset:{16384+4096*s_+1024*h}")
    a(f"""
    s_and_b32 s{S_A}, s{S_WAVE}, 1
    s_lshl_b32 s{S_B}, s{S_A}, 14
    s_lshl_b32 s{S_C}, s{S_D}, 7
    s_add_u32 s{S_B}, s{S_B}, s{S_C}
    s_add_u32 s{S_B}, s{S_B}, {L_QT - 512}
    v_lshl_add_u32 v{tc}, v{HH}, 11, s{S_B}
    v_lshl_add_u32 v{tc}, v{J}, 2, v{tc}""")
    for s_ in range(4):
        a(f"    s_waitcnt lgkmcnt({6-2*s_})")
        cin = "0" if s_ == 0 else vr(vAc, 16)
        a(f"    v_mfma_f32_32x32x16_bf16 {vr(vAc,16)}, {vr(vX+4*s_,4)}, {vr(vWf+4*s_,4)}, {cin}")
    a(f"""
    v_lshlrev_b32 v{vB1}, 16, v{vB1}
    v_mul_f32 v{vB1}, s3, v{vB1}
    s_nop 9""")
    def qpair(r):
        row = 8*(r >> 2) + (r & 3)
        a(f"    v_fma_f32 v{vAc+r}, v{vAc+r}, s3, v{vB1}")
        a(f"    v_fma_f32 v{vAc+r+1}, v{vAc+r+1}, s3, v{vB1}")
        a(f"    v_cvt_pk_bf16_f32 v{vWf+r}, v{vAc+r}, v{vAc+r+1}")
        a(f"    ds_write_b32 v{tc}, v{vWf+r} offset:{512*(row+1)}")
        a(f"    ds_write_b16 v{tc}, v{vWf+r} offset:{512*row}")
        a(f"    ds_write_b16_d16_hi v{tc}, v{vWf+r} offset:{512*(row+2)+2}")
    for r in range(0, 12, 2): qpair(r)
    a(f"""
    s_cmp_eq_u32 s{S_A}, 1
    s_cbranch_scc1 K_notQ""")
    for r in range(12, 16, 2): qpair(r)
    a(f"K_notQ:")
    if cpos == "post": emit_consts()
    if "qvm" in OPT: a("    s_waitcnt vmcnt(0)")
    if "noqbar" not in OPT: a("    s_waitcnt lgkmcnt(0)\n    s_barrier                                ; Q table complete; no wave looks at the table before this point")
    if cpos == "post2": emit_consts()
    stamp(a, 7)
    vT = 0
    vN = 4
    vAr = 6
    vR = 12
    vM = 28
    vA = 32
    vK = 48
    vB = 64
    a(f"""
    s_lshl_b32 s{S_B}, s{S_WAVE}, 12
    s_add_u32 m0, s{S_B}, {L_XS}
    s_mov_b32 s{S_RR}, s{S_WS}
    s_mov_b32 s{S_RR+1}, s{S_WS+1}
    s_mov_b32 s{S_RR+2}, {WS_TAB + 256*2048}
    s_mov_b32 s{S_A}, {128*2048}
    s_mov_b32 s{S_B}, {128*RSTRIDE}
    s_mov_b32 s{S_C}, 0xfe000000
    s_movk_i32 s{S_D}, 0xfc
    s_mov_b32 s{S_K}, 0
    {"s_sleep " + optval("fs", "0") if optval("fs", "0") != "0" else ""}
    {f"s_cmp_lt_u32 s{S_WAVE}, 8" if optval("ls", "") else ""}
    {"s_cbranch_scc1 K_nls" if optval("ls", "") else ""}
    {"s_sleep " + optval("ls", "") if optval("ls", "") else ""}
K_nls:
    s_mov_b64 {mask(0)}, -1
    s_mov_b64 {mask(1)}, -1
    v_mov_b32 v{vM}, 0
    v_mov_b32 v{vM+1}, 0""")
    a(f"""
K_poll:
    s_mov_b64 exec, {mask(0)}
    s_cbranch_execz K_pl0
    buffer_load_dwordx2 {vr(vT,2)}, v{t5}, {sr(S_RR,4)}, 0 offen {optval('pl_','sc1').replace('_',' ')}
K_pl0:
    s_mov_b64 exec, {mask(1)}
    s_cbranch_execz K_pl1
    buffer_load_dwordx2 {vr(vT+2,2)}, v{t5}, {sr(S_RR,4)}, s{S_A} offen {optval('pl_','sc1').replace('_',' ')}
K_pl1:
    s_mov_b64 exec, -1
    s_waitcnt vmcnt(0)""")
    for i in range(2):
        a(f"    v_xor_b32 v{vN+i}, s{S_TAG}, v{vT+2*i}")
        a(f"    v_xor_b32 v{vAr+i}, s{S_TAG+1}, v{vT+2*i+1}")
        a(f"    v_and_or_b32 v{vAr+i}, v{vN+i}, s{S_C}, v{vAr+i}")
        a(f"    v_cmp_ne_u32 {mask(i)}, 0, v{vAr+i}")
    a(f"""
    s_add_u32 s{S_K}, s{S_K}, 1
    s_or_b64 vcc, {mask(0)}, {mask(1)}
    s_cbranch_scc0 K_got
    {"s_sleep " + optval("ps", "") if optval("ps", "") else ""}
    s_cmp_lt_u32 s{S_K}, {POLL_MAX}
    s_cbranch_scc1 K_poll
    ; gave up: no records from this wave, ask for the slow path
    s_mov_b32 s{S_MODE}, 1
    s_branch K_nor2a
K_got:""")
    if DIAG:
        a(f"    v_writelane_b32 v{V_STAMP}, s{S_K}, 20")
    stamp(a, 8)
    so = ["0", sr(S_B)]
    for i in range(2):
        a(f"    v_and_b32 v{vAr+i}, 0x1fff, v{vT+2*i}")
        a(f"    v_bfe_u32 v{vT+2*i+1}, v{vT+2*i}, 13, 12")
        a(f"    v_lshl_add_u32 v{vAr+i}, v{vAr+i}, 2, v{vSb}")
        a(f"    v_sub_u32 v{vN+i}, v{vT+2*i+1}, v{vG4}")
        a(f"    v_lshl_add_u32 v{vAr+2+i}, v{vT+2*i+1}, 2, v{vAr+i}")
        a(f"    v_cmp_lt_i32 {mask(4*i)}, 0, v{vN+i}")
        a(f"    v_lshl_add_u32 v{vAr+i}, v{vG4}, 2, v{vAr+i}")
        a(f"    v_add_u32 v{vAr+2+i}, v{vAr+2+i}, v{vG4}")
        a(f"    s_or_b64 exec, {mask(4*i)}, 1")
        a(f"    buffer_load_dword v{vM+i}, v{vAr+2+i}, {sr(S_RR,4)}, {so[i]} offen")
        a(f"    buffer_load_dwordx4 {vr(vR+4*i,4)}, v{vAr+i}, {sr(S_RR,4)}, {so[i]} offen")
        a(f"    s_mov_b64 exec, -1")
    for i in range(2):
        for k in range(1, 4):
            a(f"    v_cmp_lt_i32 {mask(4*i+k)}, {k}, v{vN+i}")
    a(f"""
    v_max_i32 v{t1}, v{vN}, v{vN+1}
    v_cmp_lt_i32 vcc, 24, v{t1}
    s_mov_b32 s{S_K}, 0
    s_cbranch_vccz K_nor2a
    s_mov_b32 s{S_K}, 1""")
    for i in range(2):
        a(f"    buffer_load_dword v{vM+2+i}, v{vAr+2+i}, {sr(S_RR,4)}, {so[i]} offen offset:24")
        a(f"    buffer_load_dwordx4 {vr(vR+8+4*i,4)}, v{vAr+i}, {sr(S_RR,4)}, {so[i]} offen offset:96")
        for k in range(4):
            a(f"    v_cmp_lt_i32 {mask(8+4*i+k)}, {24+k}, v{vN+i}")
    pf0 = int(optval("pf", "8"))
    a(f"""
    v_cmp_lt_i32 vcc, 48, v{t1}
    s_cbranch_vccz K_nor2a
    s_mov_b32 s{S_MODE}, 1                   ; a segment is too long for the fast path
K_nor2a:
    v_mov_b32 v{t4}, {L_FLAG}
    v_mov_b32 v{t0}, 4
    s_cmp_eq_u32 s{S_MODE}, 0
    s_cbranch_scc1 K_nofl
    ds_write_b32 v{t4}, v{t0}
K_nofl:
    s_waitcnt lgkmcnt(0)
    s_barrier
    ds_read_b32 v{t3}, v{t4}
    ; P descriptor: 256-byte records, base shifted by -3072
    s_add_u32 s{S_RX}, s{S_WS}, {WS_P - 3072}
    s_addc_u32 s{S_RX+1}, s{S_WS+1}, 0
    s_and_b32 s{S_RX+1}, s{S_RX+1}, 0xffff
    s_or_b32 s{S_RX+1}, s{S_RX+1}, 0x01000000
    s_mov_b32 s{S_RX+2}, {N_NODES}
    s_mov_b32 s{S_RX+3}, 0x00020000
    s_waitcnt lgkmcnt(0)
    v_cmp_ne_u32 vcc, 0, v{t3}
    s_cbranch_vccnz K_slow
    s_cmp_lt_u32 s{S_WAVE}, {pf0}
    s_cbranch_scc1 K_npf
    global_load_dword v{t5}, v{vPf}, {sr(S_WS,2)} sc1
    s_waitcnt vmcnt(1)
    s_branch K_pfJ
K_npf:
    v_and_b32 v72, 7, v{L}
    v_lshlrev_b32 v74, 4, v72
    v_add_u32 v74, {L_B2}, v74
    ds_read_b128 v[76:79], v74
    v_and_b32 v{E_XR}, -8, v{T}              ; 8 * node
    v_lshlrev_b32 v{E_OUT}, 4, v{T}          ; output byte offset
    v_lshlrev_b32 v72, 5, v72
    v_add_u32 v{E_NX}, {L_QT}, v72
    s_waitcnt lgkmcnt(0)""")
    vBu = E_DB
    for q in range(4):
        a(f"    v_lshlrev_b32 v{vBu[q]}, 16, v{76+q}")
        a(f"    v_and_b32 v{vBu[q]+1}, 0xffff0000, v{76+q}")
    assert pf0 >= 7
    a(f"""
    s_cmp_ge_u32 s{S_WAVE}, 4
    s_cbranch_scc1 K_np1
    v_bfe_u32 v70, v{L}, 2, 1
    v_bfe_u32 v71, v{L}, 3, 1
    v_lshl_add_u32 v70, v70, 6, v71
    v_lshrrev_b32 v71, 4, v{L}               ; g
    v_lshl_add_u32 v70, v71, 2, v70
    v_lshlrev_b32 v70, 7, v70
    v_and_b32 v72, 3, v{L}
    v_lshl_add_u32 v70, v72, 4, v70
    v_add_u32 v{E_W2}, {L_W2}, v70
    v_and_b32 v70, 15, v{L}
    s_lshl_b32 s{S_C}, s{S_WAVE}, 4
    v_add_u32 v70, s{S_C}, v70               ; row
    v_mul_u32_u24 v72, {ST_STRIDE}, v70
    v_lshl_add_u32 v72, v71, 4, v72
    v_add_u32 v{E_SR}, {L_ST}, v72
    v_mul_u32_u24 v72, {OF_STRIDE}, v70
    v_lshl_add_u32 v72, v71, 5, v72
    v_add_u32 v{E_OW}, {L_QT}, v72
K_np1:
    s_waitcnt vmcnt(0)
K_pfJ:""")
    stamp(a, 9)
    def count_cols(ks):
        for k in ks:
            a(f"    v_and_b32_sdwa v{vA+k}, v{vM+k//4}, s{S_D} {SD} src0_sel:BYTE_{k%4} src1_sel:DWORD")
        for k in ks:
            a(f"    s_mov_b64 exec, {mask(k)}")
            a(f"    ds_add_rtn_u32 v{vK+k}, v{vA+k}, v{t0} offset:{L_H2}")
        a(f"    s_mov_b64 exec, -1")
    count_cols(range(8))
    a(f"""
    s_cmp_eq_u32 s{S_K}, 0
    s_cbranch_scc1 K_nor2b""")
    count_cols(range(8, 16))
    a(f"""
K_nor2b:
    v_lshlrev_b32 v{t1}, 2, v{L}
    v_cmp_gt_u32 vcc, s{S_NN}, v{L}
    s_waitcnt lgkmcnt(0)
    s_barrier""")
    stamp(a, 10)
    a(f"""
    ds_read_b32 v{V_CNT}, v{t1} offset:{L_H2}
    s_waitcnt lgkmcnt(0)
    v_add_u32 v{vP}, 4, v{V_CNT}
    v_and_b32 v{vP}, -8, v{vP}
    v_max_u32 v{vP}, 64, v{vP}
    v_cndmask_b32 v{vP}, 0, v{vP}, vcc
    v_mov_b32 v{vS}, v{vP}""")
    wave_scan(a, vS)
    a(f"""
    s_nop 0
    v_readlane_b32 s{S_A}, v{vS}, 63
    v_sub_u32 v{vS}, v{vS}, v{vP}
    ds_write_b32 v{t1}, v{vS} offset:{L_SX}
    s_cmp_gt_u32 s{S_A}, {ENT_CAP*4}
    s_cbranch_scc1 K_slow""")
    def place_cols(ks, mid=None):
        ks = list(ks)
        for k in ks:
            a(f"    ds_read_b32 v{vB+k}, v{vA+k} offset:{L_SX}")
        if mid: a(mid)
        for n, k in enumerate(ks):
            if n % 2 == 0:
                a(f"    s_waitcnt lgkmcnt({len(ks)-2-n})")
            a(f"    v_add_u32 v{vK+k}, v{vB+k}, v{vK+k}")
        for k in ks:
            a(f"    s_mov_b64 exec, {mask(k)}")
            a(f"    ds_write_b32 v{vK+k}, v{vR+k} offset:{L_RL}")
        a(f"    s_mov_b64 exec, -1")
    place_cols(range(8), f"""
    s_add_u32 s{S_A}, s{S_A}, 63
    s_lshr_b32 s{S_TT}, s{S_A}, 6            ; tiles
    s_mul_i32 s{S_T0}, s{S_SLOT}, s{S_TT}
    s_add_u32 s{S_NT}, s{S_T0}, s{S_TT}
    s_mul_i32 s{S_T0}, s{S_T0}, 43691
    s_mul_i32 s{S_NT}, s{S_NT}, 43691
    s_lshr_b32 s{S_T0}, s{S_T0}, 19
    s_lshr_b32 s{S_NT}, s{S_NT}, 19
    s_sub_u32 s{S_NT}, s{S_NT}, s{S_T0}""")
    a(f"""
    s_cmp_eq_u32 s{S_K}, 0
    s_cbranch_scc1 K_nor2c
    s_waitcnt lgkmcnt(0)""")
    place_cols(range(8, 16))
    thr = [int(x) for x in optval("thr", "8_4").split("_")] + [2]
    vBk = 80
    vGr = 82
    a(f"""
K_nor2c:
    s_lshl_b32 s{S_A}, s{S_T0}, 6            ; list position of this wave
    v_lshl_add_u32 v{t3}, v{V_AIDX}, 1, s{S_A}
    v_add_u32 v{t2}, s{S_A}, v{t1}
    ; first node of this wave: n = #(m < nn : start[m] <= ts) - 1
    v_cmp_ge_u32 {mask(0)}, s{S_A}, v{vS}
    v_subrev_u32 v{t0}, s{S_A}, v{vS}
    s_and_b64 {mask(0)}, {mask(0)}, vcc
    s_bcnt1_i32_b64 s{S_B}, {mask(0)}
    s_sub_u32 s{S_B}, s{S_B}, 1              ; n
    s_andn2_b64 {mask(0)}, vcc, {mask(0)}
    v_bfe_u32 v{t4}, v{t0}, 3, 3
    v_add_u32 v{t4}, 1, v{t4}
    v_lshrrev_b32 v{t0}, 4, v{t0}
    v_min_u32 v{t0}, 0xfc, v{t0}
    v_cndmask_b32 v{t0}, -4, v{t0}, {mask(0)}
    v_mov_b32 v{vBk}, 0
    {"" if "novar" in OPT else f"ds_permute_b32 v{vBk}, v{t0}, v{t4}"}
    s_cmp_lg_u32 s{S_WAVE}, 0
    s_cbranch_scc1 K_nprep
    ; wave 0: sum rows of node = lane: first = node + slot(first tile), extra = slot(last tile) - slot(first tile)
    v_cvt_f32_u32 v70, s{S_TT}
    v_rcp_f32 v70, v70
    v_add3_u32 v{vP}, v{vS}, v{vP}, -4
    v_lshrrev_b32 v{vS}, 6, v{vS}
    v_lshrrev_b32 v{vP}, 6, v{vP}
    v_cvt_f32_u32 v{vS}, v{vS}
    v_cvt_f32_u32 v{vP}, v{vP}
    v_add_f32 v{vS}, {f32bits((NW-0.5)/NW):#x}, v{vS}
    v_add_f32 v{vP}, {f32bits((NW-0.5)/NW):#x}, v{vP}
    v_mul_f32 v70, {f32bits(NW):#x}, v70
    v_mul_f32 v{vS}, v{vS}, v70
    v_mul_f32 v{vP}, v{vP}, v70
    v_cvt_u32_f32 v{vS}, v{vS}
    v_cvt_u32_f32 v{vP}, v{vP}
    v_cvt_f32_u32 v71, v{V_CNT}
    v_sub_u32 v{vP}, v{vP}, v{vS}
    v_add_u32 v{vS}, v{vS}, v{L}
    v_mul_u32_u24 v{vS}, {OF_STRIDE}, v{vS}
    v_mul_f32 v71, 0x3e800000, v71           ; degree
    v_lshl_or_b32 v70, v{vP}, 16, v{vS}
    v_lshlrev_b32 v72, 3, v{L}
    v_cndmask_b32 v70, 0, v70, vcc
    ds_write_b64 v72, v[70:71] offset:{L_RW}
K_nprep:
    s_waitcnt lgkmcnt(0)
    s_barrier""")
    stamp(a, 11)
    for m in range(4):
        a(f"    ds_read_u16 v{V_IX+2*m}, v{t3} offset:{L_RL + 16*m}")
    for c in range(5):
        a(f"    ds_read_b32 v{vGr+c}, v{t2} offset:{L_RL + 256*c}")
    a(f"""
    s_lshr_b32 s{S_C}, s{S_A}, 1
    s_add_u32 s{S_C}, s{S_C}, {L_IX}
    v_add_u32 v{V_AIDX}, s{S_C}, v{V_AIDX}
    v_lshl_add_u32 v{t0}, v{L}, 1, s{S_C}
    s_mov_b32 s{S_C}, 0x03020302
    s_mov_b32 s{S_D}, 0x8001
    s_waitcnt lgkmcnt(5)""")
    for m in range(4):
        a(f"    v_and_b32 v{V_IX+2*m}, {PADREC}, v{V_IX+2*m}")
    for h in dma_ops(): a(h)
    def conv(c):
        a(f"    v_and_b32 v{vGr+5+c}, 0xc000, v{vGr+c}")
        a(f"    v_perm_b32 v{64+c}, v{vGr+c}, v{vGr+c}, s{S_C}")
        a(f"    v_xor_b32 v{vGr+c}, v{vGr+c}, v{vGr+5+c}")
        a(f"    v_mul_u32_u24 v{vGr+5+c}, s{S_D}, v{vGr+5+c}")
        a(f"    v_and_b32 v{vGr+5+c}, 0x40004000, v{vGr+5+c}")
    def put(c):
        a(f"    ds_write2st64_b32 v{t2}, v{vGr+5+c}, v{64+c} offset0:{L_G//256 + c} offset1:{L_RL//256 + c}")
        a(f"    ds_write_b16 v{t0}, v{vGr+c} offset:{128*c}")
    a(f"""
    ; this wave's entries -> one-hot word, (e, e), source node
    s_lshl_b32 s{S_K}, s{S_NT}, 4
    s_waitcnt lgkmcnt(0)""")
    for c in range(4): conv(c)
    a(f"""
    s_sub_u32 s{S_J}, s{S_K}, 256
    s_cbranch_scc1 K_few""")
    for c in range(4): put(c)
    a(f"""
    s_bfm_b64 exec, s{S_J}, 0
    s_cbranch_execz K_put""")
    conv(4); put(4)
    a(f"""
    s_branch K_put
K_few:""")
    for c in range(4):
        a(f"    s_mov_b64 exec, -1\n    v_cmp_gt_i32 vcc, s{S_K}, v{L}\n    s_sub_u32 s{S_K}, s{S_K}, 64\n    s_mov_b64 exec, vcc")
        put(c)
    pcode = (4 << 3*thr[0]) | (3 << 3*thr[1]) | (2 << 3) | (1 << 6)
    assert 9 >= thr[0] > thr[1] > 2
    a(f"""
K_put:
    s_mov_b64 exec, -1
    s_lshl_b32 s{S_C}, s{S_B}, 9
    s_add_u32 s{S_C}, s{S_C}, {L_QT}
    v_add_u32 v{V_AQ}, s{S_C}, v{t1}
    v_lshrrev_b32 v{t4}, 7, v{V_INCA}
    v_mad_u32_u24 v{V_AENT}, v{t4}, s{S_A}, v{V_AENT}""")
    for h in ent_reads(0) + q_reads() + idx_reads(32): a(h)
    a(f"""
    s_add_u32 s{S_C}, s{S_B}, s{S_SLOT}
    s_mul_i32 s{S_C}, s{S_C}, {ST_STRIDE}
    s_add_u32 s{S_C}, s{S_C}, {L_ST}
    v_add_u32 v{V_AS}, s{S_C}, v{t1}
    v_add_u32 v{V_AQ}, 0x200, v{V_AQ}
    ; jump table: slot of the variant, entry inside it (priority steps near the end), exit at lane nt
    v_sub_u32 v{t0}, s{S_NT}, v{L}
    s_movk_i32 s{S_C}, {VAR_SIZE}
    s_mov_b32 s{S_D}, {pcode:#x}
    v_cmp_eq_u32 vcc, 0, v{t0}
    v_min_u32 v{t0}, 10, v{t0}
    v_mad_u32_u24 v{t4}, v{vBk}, s{S_C}, v{vJ0}
    v_mul_u32_u24 v{t0}, 3, v{t0}
    v_bfe_u32 v{t0}, s{S_D}, v{t0}, 3
    v_mov_b32 v{t3}, K_exit - K_vbase
    v_mad_i32_i24 v{t4}, v{t0}, -8, v{t4}
    v_cndmask_b32 v{t4}, v{t4}, v{t3}, vcc
    ds_bpermute_b32 v{V_TAB}, v{t1}, v{t4} offset:4
    s_mov_b32 s{S_K}, 1
    v_readlane_b32 s{S_J}, v{t4}, 0
    s_mov_b64 vcc, 0
    s_setprio 3
    s_waitcnt vmcnt(0)""")
    stamp(a, 12)
    for h in tr_reads(0): a(h)
    a(f"""
    s_add_u32 s{S_J}, s{S_J}, s{S_PC}
    s_addc_u32 s{S_J+1}, s{S_PC+1}, 0
    s_waitcnt lgkmcnt(0)""")
    a(small(0, 0))
    for h in dma_ops(): a(h)
    a(small(0, 1))
    a(f"    v_lshl_or_b32 v{V_TAB}, v{V_TAB}, 16, v{t4}")
    a("    s_nop 9")
    stamp(a, 13); stamp(a, 14, True)
    a(f"    s_setpc_b64 {sr(S_J,2)}")
    a(f".p2align 6")
    a(f"K_vbase:")
    for s_ in range(2):
        for b in [None] + list(range(8)):
            tile_variant(a, s_, b)
    a(f".p2align 3")
    a(f"K_exit:")
    stamp(a, 15); stamp(a, 16, True)
    flush1(a)
    a("    s_nop 0")
    flush2(a)
    a(f"""
    v_cmp_eq_f32 vcc, 0, v{V_MN}
    s_cbranch_vccz K_join
    ; a denominator left the f32 range: redo this bin on the exact slow path
    v_mov_b32 v65, {L_FLAG}
    ds_write_b32 v65, v65
K_join:
    s_cmp_ge_u32 s{S_WAVE}, 7
    s_cbranch_scc1 K_st2a
    ds_read_b64 v[102:103], v{E_XR} offset:{L_RW}
    s_lshl_b32 s{S_A}, s{S_N0}, 7
    s_add_u32 s{S_RT}, s{S_OUT}, s{S_A}
    s_addc_u32 s{S_RT+1}, s{S_OUT+1}, 0
    s_lshl_b32 s{S_RT+2}, s{S_NN}, 7
    s_mov_b32 s{S_RT+3}, 0x00020000
    s_movk_i32 s{S_C}, 0x207
    s_mov_b32 s{S_A}, 1
    v_mov_b32 v96, {NLN2:#x}
    v_mov_b32 v98, {L_Z2}
    s_lshl_b32 s{S_B}, s{S_NN}, 3
    v_cmp_gt_u32 {mask(0)}, s{S_B}, v{E_XR}
    s_waitcnt lgkmcnt(0)
    v_lshrrev_b32 v{E_XR}, 16, v102
    v_add_u32_sdwa v{E_ROW}, v102, v{E_NX} {SD} src0_sel:WORD_0 src1_sel:DWORD
    v_cmp_lt_u32 vcc, 0, v{E_XR}
    v_add_u32 v{E_NX}, {OF_STRIDE}, v{E_ROW}
    v_cndmask_b32 v{E_ROW}, v98, v{E_ROW}, {mask(0)}""")
    for q in range(4):
        a(f"    v_pk_mul_f32 {vr(E_DB[q],2)}, {vr(E_DB[q],2)}, v[102:103] op_sel:[0,1]")
    a(f"""
    v_cndmask_b32 v{E_R2}, v98, v{E_NX}, vcc
    s_cmp_ge_u32 s{S_WAVE}, 4
    s_cbranch_scc1 K_st2a
    ; ================= output, stage 1: products of the sum rows with w2""")
    for ot in range(4):
        for ks in range(4):
            for h in range(2):
                a(f"    ds_read_b64_tr_b16 {vr(16*ot+4*ks+2*h,2)}, v{E_W2} offset:{2048*ks+256*h+64*(ot>>1)+8*(ot&1)}")
    a(f"""
    s_waitcnt lgkmcnt(0)
    s_barrier""")
    stamp(a, 17)
    for ks in range(4):
        a(f"    ds_read_b128 {vr(64+4*ks,4)}, v{E_SR} offset:{64*ks}")
    def mf(ot, ks):
        d = vr(80 + 4*ot, 4)
        a(f"    v_mfma_f32_16x16x32_bf16 {d}, {vr(16*ot+4*ks,4)}, {vr(64+4*ks,4)}, {'0' if ks == 0 else d}")
    for ks in range(4):
        a(f"    s_waitcnt lgkmcnt({3-ks})")
        mf(0, ks); mf(1, ks)
    for ks in range(4):
        mf(2, ks); mf(3, ks)
    a(f"""
    ds_write_b128 v{E_OW}, v[80:83]
    ds_write_b128 v{E_OW}, v[84:87] offset:16
    s_nop 4
    ds_write_b128 v{E_OW}, v[88:91] offset:128
    ds_write_b128 v{E_OW}, v[92:95] offset:144
    s_waitcnt lgkmcnt(0)
    s_branch K_st2b
K_st2a:
    s_waitcnt lgkmcnt(0)
    s_barrier                                ; B9
K_st2b:
    s_cmp_ge_u32 s{S_WAVE}, 7
    s_barrier
    s_cbranch_scc1 K_fin
    ds_read_b128 v[64:67], v{E_ROW}
    ds_read_b128 v[68:71], v{E_ROW} offset:16
K_rows:
    ds_read_b128 v[72:75], v{E_R2}
    ds_read_b128 v[76:79], v{E_R2} offset:16
    v_cmp_lt_u32 vcc, s{S_A}, v{E_XR}
    v_add_u32 v{E_NX}, {OF_STRIDE}, v{E_NX}
    s_add_u32 s{S_A}, s{S_A}, 1
    s_waitcnt lgkmcnt(0)""")
    for q in range(4):
        a(f"    v_pk_add_f32 {vr(64+2*q,2)}, {vr(64+2*q,2)}, {vr(72+2*q,2)}")
    a(f"""
    v_cndmask_b32 v{E_R2}, v98, v{E_NX}, vcc
    s_cbranch_vccnz K_rows""")
    for q in range(4):
        a(f"    v_pk_fma_f32 {vr(64+2*q,2)}, {vr(64+2*q,2)}, v[96:97], {vr(E_DB[q],2)} op_sel_hi:[1,0,1]")
    for q in range(4):
        a(f"    v_cvt_pk_bf16_f32 v{72+q}, v{64+2*q}, v{65+2*q}")
    a(f"""
    buffer_store_dwordx4 v[72:75], v{E_OUT}, {sr(S_RT,4)}, 0 offen sc1
    ; a non-finite sum makes every output of its node non-finite: redo this bin on the exact slow path
    v_cmp_class_f32 vcc, v64, s{S_C}
    s_cbranch_vccz K_fin
    v_mov_b32 v65, {L_FLAG}
    ds_write_b32 v65, v65
K_fin:
    v_mov_b32 v65, {L_FLAG}
    s_waitcnt lgkmcnt(0)
    s_barrier                                ; B10
    ds_read_b32 v64, v65
    s_waitcnt lgkmcnt(0)
    v_cmp_ne_u32 vcc, 0, v64
    {"" if "novar" in OPT or "nodma" in OPT else "s_cbranch_vccnz K_slow"}""")
    if DIAG:
        a("    s_waitcnt vmcnt(0)")
        stamp(a, 18); stamp(a, 19, True)
        a(f"""
    s_getreg_b32 s{S_A}, hwreg(HW_REG_XCC_ID, 0, 4)
    v_writelane_b32 v{V_STAMP}, s{S_A}, 30
    v_writelane_b32 v{V_STAMP}, s{S_NT}, 21
    s_lshl_b32 s{S_A}, s2, 4
    s_add_u32 s{S_A}, s{S_A}, s{S_WAVE}
    s_lshl_b32 s{S_A}, s{S_A}, 8
    s_add_u32 s{S_A}, s{S_A}, {WS_STAMP}
    v_lshl_add_u32 v64, v{L}, 2, s{S_A}
    s_mov_b64 exec, 0xffffffff
    global_store_dword v64, v{V_STAMP}, {sr(S_WS,2)}
    global_store_dword v64, v{V_TRACE}, {sr(S_WS,2)} offset:128""")
    if optval("clk", ""):
        a(f"""
    s_lshl_b32 s{S_A}, s2, 4
    s_add_u32 s{S_A}, s{S_A}, s{S_WAVE}
    s_cmp_lg_u32 s{S_A}, {16*int(optval("wg", "100"))}
    s_cbranch_scc1 K_end
    s_lshl_b32 s{S_A}, s{S_TAG+1}, 7
    s_lshr_b32 s{S_B}, s{S_TAG}, 25
    s_or_b32 s{S_A}, s{S_A}, s{S_B}
    v_cvt_f32_u32 v64, s98
    v_cvt_f32_u32 v65, s99
    v_rcp_f32 v64, v64
    s_nop 1
    v_mul_f32 v64, v64, v65
    v_subrev_f32 v64, {f32bits(15.0):#x}, v64
    v_mul_f32 v64, {f32bits(float(optval("mul", "100"))):#x}, v64
    v_cvt_u32_f32 v64, v64
    s_nop 1
    v_readfirstlane_b32 s{S_B}, v64
    s_min_u32 s{S_B}, s{S_B}, 20000
    {f's_sub_u32 s{S_B}, {optval("clk", "")}, s{S_B}' if "neg" in OPT else f's_add_u32 s{S_B}, s{S_B}, {optval("clk", "")}'}
K_spin5:
    s_memrealtime s[98:99]
    s_waitcnt lgkmcnt(0)
    s_sub_u32 s98, s98, s{S_A}
    s_cmp_lt_u32 s98, s{S_B}
    s_cbranch_scc1 K_spin5""")
    if "endamp" in OPT:
        a(f"""
    s_waitcnt vmcnt(0)
    s_memrealtime s[100:101]
    s_lshl_b32 s{S_A}, s2, 4
    s_add_u32 s{S_A}, s{S_A}, s{S_WAVE}
    s_cmp_lg_u32 s{S_A}, {16*int(optval("wg", "100"))}
    s_cbranch_scc1 K_end
    s_lshl_b32 s{S_A}, s{S_TAG+1}, 7
    s_lshr_b32 s{S_B}, s{S_TAG}, 25
    s_or_b32 s{S_A}, s{S_A}, s{S_B}
    s_waitcnt lgkmcnt(0)
    s_sub_u32 s{S_B}, s100, s98
    s_min_u32 s{S_B}, s{S_B}, 2000
    s_mul_i32 s{S_B}, s{S_B}, 20
    s_add_u32 s{S_B}, s{S_B}, 3000
K_spin4:
    s_memrealtime s[98:99]
    s_waitcnt lgkmcnt(0)
    s_sub_u32 s98, s98, s{S_A}
    s_cmp_lt_u32 s98, s{S_B}
    s_cbranch_scc1 K_spin4""")
    if optval("fix", "") != "":
        a(f"""
    s_lshl_b32 s{S_A}, s2, 4
    s_add_u32 s{S_A}, s{S_A}, s{S_WAVE}
    s_cmp_lg_u32 s{S_A}, 1600
    s_cbranch_scc1 K_end
    s_lshl_b32 s{S_A}, s{S_TAG+1}, 7
    s_lshr_b32 s{S_B}, s{S_TAG}, 25
    s_or_b32 s{S_A}, s{S_A}, s{S_B}
K_spin3:
    s_memrealtime s[98:99]
    s_waitcnt lgkmcnt(0)
    s_sub_u32 s98, s98, s{S_A}
    s_cmp_lt_u32 s98, {optval("fix", "")}
    s_cbranch_scc1 K_spin3""")
    if optval("amp", "") != "":
        a(f"""
    s_waitcnt vmcnt(0)
    s_cmp_lg_u32 s{S_WAVE}, {optval("aw", "0")}
    s_cbranch_scc1 K_end
    s_lshl_b32 s{S_A}, s{S_TAG+1}, 7
    s_lshr_b32 s{S_B}, s{S_TAG}, 25
    s_or_b32 s{S_A}, s{S_A}, s{S_B}""")
        if optval("amp", "") == "99":
            a("    s_memrealtime s[98:99]\n    s_waitcnt lgkmcnt(0)")
        a(f"""
    {f"s_mov_b32 s{S_B}, s98" if "rel" in OPT else f"s_sub_u32 s{S_B}, s98, s{S_A}"}
    s_mov_b64 exec, 1
    v_mov_b32 v64, 0
    v_mov_b32 v65, s{S_B}
    v_mov_b32 v66, 1
    {"v_sub_u32 v65, 0x1000, v65" if "min" in OPT else ""}
    global_atomic_{"add" if "avg" in OPT else "umax"} v64, v65, {sr(S_DBG,2)} offset:128 sc1
    s_sub_u32 s{S_C}, s100, s{S_A}
    v_mov_b32 v68, s{S_C}
    {f"global_atomic_add v64, v68, {sr(S_DBG,2)} offset:144 sc1" if optval("sel", "") else ""}
    s_waitcnt vmcnt(0)
    global_atomic_add v67, v64, v66, {sr(S_DBG,2)} offset:136 sc0 sc1
    s_waitcnt vmcnt(0)
    v_readfirstlane_b32 s{S_B}, v67
    s_cmp_lg_u32 s{S_B}, 255
    s_cbranch_scc1 K_end
    global_atomic_add v67, v64, v64, {sr(S_DBG,2)} offset:128 sc0 sc1
    global_atomic_add v68, v64, v64, {sr(S_DBG,2)} offset:144 sc0 sc1
    s_waitcnt vmcnt(0)
    v_readfirstlane_b32 s{S_C}, v68
    s_cmp_lt_u32 s{S_C}, {390*256}
    {"s_cbranch_scc0 K_end" if optval("sel", "") == "lo" else ""}
    {"s_cbranch_scc1 K_end" if optval("sel", "") == "hi" else ""}
    v_readfirstlane_b32 s{S_B}, v67
    s_mul_i32 s{S_B}, s{S_B}, {optval("mul", "5")}
    {f"s_lshr_b32 s{S_B}, s{S_B}, 8" if "avg" in OPT else ""}
    s_min_u32 s{S_B}, s{S_B}, {optval("base", "0") if "neg" in OPT else 200000}
    {f's_sub_u32 s{S_B}, {optval("base", "0")}, s{S_B}' if "neg" in OPT else f's_add_u32 s{S_B}, s{S_B}, {optval("base", "0")}'}
K_spin2:
    s_memrealtime s[98:99]
    s_waitcnt lgkmcnt(0)
    s_sub_u32 s98, s98, s{S_A}
    s_cmp_lt_u32 s98, s{S_B}
    s_cbranch_scc1 K_spin2""")
    a(f"""
K_end:
    s_endpgm
K_slow:
    ; ================= exact path without hand-offs: scan all edges for this bin
    s_setprio 0
    s_mov_b32 s16, s{S_N0}
    s_mov_b32 s17, s{S_NN}
    s_mov_b32 s18, s{S_WAVE}""")
    gen_slow(a, 16, 17, 18, L, NLOG2E, NW=NW)
    a("    s_endpgm")

def main():
    global DIAG
    out = sys.argv[1]
    DIAG = "diag" in sys.argv[2:] or "lite" in sys.argv[2:]
    OPT.update(sys.argv[2:])
    a = Asm()
    a(f"""; Edge-featured MPNN layer: out[n] = sum_(e: dst=n) (silu([x[src],x[dst],e] w1 + b1) w2 + b2)
; @launch grid=(256,1,1) block=({NT_},1,1) lds={L_END}
.amdgcn_target "amdgcn-amd-amdhsa--gfx950"
.text""")
    gen_kernel(a)
    a(f"""
.section .rodata,"a"
.p2align 6
.amdhsa_kernel {KNAME}
  .amdhsa_next_free_vgpr {NVGPR}
  .amdhsa_next_free_sgpr 102
  .amdhsa_accum_offset {NVGPR}
  .amdhsa_group_segment_fixed_size 0
  .amdhsa_kernarg_size 88
  .amdhsa_user_sgpr_count 2
  .amdhsa_user_sgpr_kernarg_segment_ptr 1
  .amdhsa_system_sgpr_workgroup_id_x 1
  .amdhsa_float_denorm_mode_32 3
.end_amdhsa_kernel""")
    open(out, "w").write(a.text())

if __name__ == "__main__":
    main()
```

```python
import sys, struct
from slow import gen_slow

NAME = "standalone__edge_featured_mpnn_mpnn__graph"
KNAME = NAME + "_kernel"
N_NODES = 12500
NB = 49
NW = 12
NT_ = 64 * NW
MAINE = 4 * NT_
XTRA = 53
RSTRIDE = 16640

WS_TAB = 0x420000
WS_P = 0x4C0000
WS_STAMP = 0xA00000

L_Z = 128
L_H2 = 272
L_FLAG = 536
L_NONCE = 544
L_Z2 = 2048
OF_STRIDE = 272
L_SX = 1296
ENT_CAP = 3472
LSZ = 14080
L_ZA = 4096 - 144
L_G = 4096
L_RL = L_G + LSZ
L_ST = L_RL + LSZ
ST_STRIDE = 288
L_RW = L_ST + 19968
L_IX = L_ST + 20480
L_QT = (L_IX + LSZ // 2 + 255) // 256 * 256 + 512
L_XS = L_QT + 49 * 512
assert LSZ % 256 == 0 and (ENT_CAP + 48) * 4 == LSZ
L_W2 = L_XS + NW * 4096
L_B2 = L_W2 + 16384
L_END = L_B2 + 256
L_RS = L_ST
L_H1 = L_ST + 16640
L_OFF = L_H1 + 1024
L_W1 = L_XS
L_WC = L_XS + 32768
L_PS = L_WC + 512
L_XR = L_W2
PS_STRIDE = 272
assert L_XS % 256 == 0 and L_END <= 163840
assert L_H1 + 3072 <= L_RW and 64 * ST_STRIDE <= 19968 and L_OFF + 1024 < 65536 and L_PS + 56 * PS_STRIDE <= L_W2

def f32bits(x):
    return struct.unpack("<I", struct.pack("<f", x))[0]
LOG2E = 1.4426950408889634
NLOG2E = f32bits(-LOG2E)
NLN2 = f32bits(-0.6931471805599453)
PADREC = 0x3FFF
POLL_MAX = 4000

class Asm:
    def __init__(self):
        self.l = []
    def __call__(self, s=""):
        for x in s.strip("\n").split("\n"):
            if x.strip():
                self.l.append(x.rstrip())
    def text(self):
        return "\n".join(self.l) + "\n"

def vr(a, n=1):
    return f"v{a}" if n == 1 else f"v[{a}:{a+n-1}]"
def sr(a, n=1):
    return f"s{a}" if n == 1 else f"s[{a}:{a+n-1}]"

DIAG = False
OPT = set()
def optval(prefix, default):
    for o in OPT:
        if o.startswith(prefix):
            return o[len(prefix):]
    return default

V_D = 0; V_E = 64; V_A5 = 96; V_B5 = 98; V_ND = 102; V_T = 110; V_R = 114; V_O = 118; V_IX = 132
V_AA = 140; V_AIDX = 141; V_AENT = 142; V_AQ = 143; V_INCA = 144; V_AS = 145; V_MN = 146; V_PSEL = 147
V_PF = 126; V_TAB = 148; V_CNT = 149; V_S = 150; V_P = 151; V_LANE = 154; V_TID = 155
V_J = 156; V_HH = 157
E_W2 = 147; E_SR = 164; E_OW = 165
E_ROW = 100; E_XR = 125; E_NX = 124; E_R2 = 101; E_OUT = 127; E_DB = [128, 130, 122, 152]
V_STAMP = 167; V_TRACE = 166
NVGPR = 168
S_X = 4; S_E = 6; S_SRC = 8; S_DST = 10; S_W1 = 12; S_B1 = 14; S_W2 = 16; S_B2 = 18; S_OUT = 20; S_DBG = 22; S_WS = 24
S_BIN = 26; S_N0 = 27; S_NN = 28; S_WAVE = 29; S_MODE = 30; S_K = 31; S_PC = 32; S_J = 34
S_RX = 36; S_RT = 40; S_RR = 44; S_P = 48; S_JJ = 52
S_T0 = 56; S_NT = 57; S_TT = 58; S_SLOT = 59; S_A = 60; S_B = 61; S_C = 62; S_D = 63; S_TAG = 64
S_M = 66
def mask(k): return sr(S_M + 2*k, 2)

def stamp(a, k, real=False):
    if optval("dly", "") and int(optval("dly", "")) == k: a("    s_sleep 10")
    if optval("clk", ""):
        if k == 13: a("    s_memrealtime s[98:99]\n    s_memtime s[100:101]\n    s_waitcnt lgkmcnt(0)\n    s_mov_b32 s99, s100")
        if k == 15: a("    s_memrealtime s[96:97]\n    s_memtime s[100:101]\n    s_waitcnt lgkmcnt(0)\n    s_sub_u32 s98, s96, s98\n    s_sub_u32 s99, s100, s99")
        return
    if "endamp" in OPT:
        if k == 17: a("    s_memrealtime s[98:99]\n    s_waitcnt lgkmcnt(0)")
        return
    if optval("amp", "") != "":
        if int(optval("amp", "")) == k:
            a("    s_memrealtime s[98:99]\n    s_waitcnt lgkmcnt(0)")
            if "rel" in OPT: a(f"    s_sub_u32 s98, s98, s{S_TAG}")
        if k == 6 and optval("sel", ""):
            a("    s_memrealtime s[100:101]\n    s_waitcnt lgkmcnt(0)")
        return
    if not DIAG:
        return
    if "lite" in OPT and k not in (19,):
        return
    a(f"    {'s_memrealtime' if real else 's_memtime'} s[100:101]")
    a(f"    s_waitcnt lgkmcnt(0)")
    a(f"    v_writelane_b32 v{V_STAMP}, s100, {k}")

def wave_scan(a, v):
    for sh in (1, 2, 4, 8):
        a(f"    s_nop 1")
        a(f"    v_add_u32_dpp v{v}, v{v}, v{v} row_shr:{sh} row_mask:0xf bank_mask:0xf")
    a(f"    s_nop 1")
    a(f"    v_add_u32_dpp v{v}, v{v}, v{v} row_bcast:15 row_mask:0xa bank_mask:0xf")
    a(f"    s_nop 1")
    a(f"    v_add_u32_dpp v{v}, v{v}, v{v} row_bcast:31 row_mask:0xc bank_mask:0xf")

SD = "dst_sel:DWORD dst_unused:UNUSED_PAD"

def dreg(s, c): return V_D + 32*s + 16*c
def small(s, c):
    d = vr(dreg(s, c), 16)
    return f"    v_mfma_f32_32x32x8_bf16 {d}, {vr(V_A5,2)}, {vr(V_B5+2*c,2)}, {d}"
def tr_reads(s):
    return [f"    ds_read_b64_tr_b16 {vr(dreg(s,c)+2*u,2)}, v{V_AA} offset:{512*u+128*c}" for u in range(8) for c in range(2)]
def ent_reads(off):
    return [f"    ds_read_b32 v{V_A5}, v{V_AENT} offset:{off}",
            f"    ds_read_b32 v{V_A5+1}, v{V_AENT} offset:{off + L_RL - L_G}"]
def q_reads():
    return [f"    ds_read_b32 v{V_B5+2*c}, v{V_AQ} offset:{256*c}" for c in range(2)]
def idx_reads(off):
    return [f"    ds_read_u16 v{V_IX+2*m}, v{V_AIDX} offset:{off + 8*m}" for m in range(4)]
def dma_ops():
    if "nodma" in OPT: return []
    return [f"    buffer_load_dwordx4 {vr(V_IX+2*m,2)}, {sr(S_RX,4)}, s{S_P+m} idxen offen offset:{1024*m} sc1 lds" for m in range(4)]

def flush1(a):
    for c in range(2):
        D = V_ND + 4*c + 2
        a(f"    v_rcp_f32 v{V_R+2*c}, v{D}")
        a(f"    v_rcp_f32 v{V_R+2*c+1}, v{D+1}")
def flush2(a):
    for c in range(2):
        a(f"    v_pk_mul_f32 {vr(V_O+2*c,2)}, {vr(V_ND+4*c,2)}, {vr(V_R+2*c,2)}")
    for c in range(2):
        a(f"    v_min3_f32 v{V_MN}, v{V_MN}, v{V_R+2*c}, v{V_R+2*c+1}")
    for c in range(2):
        a(f"    v_add_f32 v{V_O+2*c}, v{V_O+2*c}, v{V_O+2*c+1}")
    a(f"    v_cvt_pk_bf16_f32 v{V_O}, v{V_O}, v{V_O+2}")
    a(f"    ds_write_b32 v{V_AS}, v{V_O}")

def y_phase(a, s, b, us=range(8), nsrc=None):
    if nsrc is None: nsrc = [V_ND + 4*c for c in range(2)]
    a(".p2align 3")
    for u in us:
        if u == b:
            flush1(a)
            for c in range(2):
                a(f"    v_pk_add_f32 {vr(V_ND+4*c+2,2)}, {vr(V_E+16*c+2*u,2)}, 1.0 op_sel_hi:[1,0]")
            flush2(a)
            for c in range(2):
                p = dreg(s, c) + 2*u
                if u == 7:
                    a(f"    v_pk_mov_b32 {vr(V_ND+4*c,2)}, {vr(p,2)}, {vr(p,2)} op_sel:[0,1]")
                else:
                    nsrc[c] = p
            continue
        for c in range(2):
            a(f"    v_pk_fma_f32 {vr(V_T+2*c,2)}, {vr(dreg(s,c)+2*u,2)}, {vr(V_ND+4*c+2,2)}, {vr(nsrc[c],2)}")
        for c in range(2):
            D = V_ND + 4*c + 2
            a(f"    v_pk_fma_f32 {vr(D,2)}, {vr(D,2)}, {vr(V_E+16*c+2*u,2)}, {vr(D,2)}")
        for c in range(2):
            a(f"    v_pk_fma_f32 {vr(V_ND+4*c,2)}, {vr(nsrc[c],2)}, {vr(V_E+16*c+2*u,2)}, {vr(V_T+2*c,2)}")
            nsrc[c] = V_ND + 4*c

VAR_SIZE = 960 if "clock" not in sys.argv else 1024
ENTRY = 32
def tile_variant(a, s, b):
    name = f"{s}{'N' if b is None else b}"
    vi = 9*s + (0 if b is None else b + 1)
    skipl = "noskip" not in OPT
    a(f".org K_vbase + {VAR_SIZE*vi}, 0")
    a(f"""
    s_setprio 2
    s_branch K_var{name}
    s_setprio 1
    s_branch K_var{name}
    s_mov_b64 vcc, {-1 if skipl else 0}                        ; last tile: nothing to prepare
    s_branch K_var{name}
    s_setprio 0
    s_mov_b32 s{S_RX+2}, 0                   ; two tiles left: nothing more to gather""")
    a(f"K_var{name}:")
    bnd = b is not None
    if "trace" in OPT and s == 0:
        a(f"    s_memtime s[100:101]\n    s_mov_b32 s{S_A}, m0\n    s_mov_b32 m0, s{S_K}\n    s_waitcnt lgkmcnt(0)")
        a(f"    v_writelane_b32 v{V_TRACE}, s100, m0")
        if "clock" in OPT:
            a(f"    s_memrealtime s[100:101]\n    s_add_u32 m0, m0, 1\n    s_waitcnt lgkmcnt(0)\n    v_writelane_b32 v{V_TRACE}, s100, m0")
        a(f"    s_mov_b32 m0, s{S_A}")
    es = [f"    v_exp_f32 v{V_E+16*c+2*u+h}, v{dreg(s,c)+2*u+h}" for u in range(8) for c in range(2) for h in range(2)]
    head = ent_reads(64 + 64*s) + (q_reads() if bnd else []) + tr_reads(s ^ 1) + idx_reads(64 + 32*s)
    plain = [f"    v_readlane_b32 s{S_JJ}, v{V_TAB}, s{S_K}"] if s == 0 else \
            [f"    v_add_u32 v{V_AENT}, v{V_INCA}, v{V_AENT}", f"    v_add_u32 v{V_AIDX}, 64, v{V_AIDX}"]
    if bnd: plain.append(f"    v_add_u32 v{V_AQ}, 0x200, v{V_AQ}")
    jump = [f"    s_and_b32 s{S_J}, s{S_JJ}, 0xffff", f"    s_add_u32 s{S_K}, s{S_K}, 2"] if s == 0 else [f"    s_lshr_b32 s{S_J}, s{S_JJ}, 16"]
    jump += [f"    s_add_u32 s{S_J}, s{S_J}, s{S_PC}", f"    s_addc_u32 s{S_J+1}, s{S_PC+1}, 0"]
    late = optval("late", "4_6")
    if late:
        ua, ub = [int(x) for x in late.split("_")]
        pre = []
        if optval("hs", "") == "1":
            pre = [h for h in head if "tr_b16" not in h]; head = [h for h in head if "tr_b16" in h]
        if optval("hs", "") == "2":
            head = [h for h in head if "tr_b16" in h] + [h for h in head if "tr_b16" not in h]
        for h in pre: a(h)
        xs = int(optval("xs", str(ub)))
        for e in es[:4*xs]: a(e)
        nsrc = [V_ND + 4*c for c in range(2)]
        y_phase(a, s, b, range(0, ua), nsrc)
        if skipl: a(f"    s_cbranch_vccnz K_va{name}")
        a("    s_waitcnt vmcnt(0)")
        for h in head: a(h)
        a(f".p2align 3\nK_va{name}:")
        for e in es[4*xs:4*ub]: a(e)
        y_phase(a, s, b, range(ua, ub), nsrc)
        if skipl: a(f"    s_cbranch_vccnz K_vb{name}")
        a(f"    s_waitcnt lgkmcnt(0)")
        if "mfirst" in OPT: a(small(s ^ 1, 0))
        for h in dma_ops(): a(h)
        if "mfirst" not in OPT: a(small(s ^ 1, 0))
        a(f"K_vb{name}:")
        for e in es[4*ub:4*ub+4]: a(e)
        a(small(s ^ 1, 1))
        for e in es[4*ub+4:]: a(e)
        for p_ in plain + jump: a(p_)
        y_phase(a, s, b, range(ub, 8), nsrc)
    else:
        n1 = int(optval("n1_", "16"))
        a("    s_waitcnt vmcnt(0)")
        for h in head: a(h)
        for e in es[:n1-2]: a(e)
        for p_ in plain: a(p_)
        for e in es[n1-2:n1]: a(e)
        a(f"    s_waitcnt lgkmcnt(0)")
        for h in dma_ops(): a(h)
        a(small(s ^ 1, 0))
        for e in es[n1:n1+4]: a(e)
        a(small(s ^ 1, 1))
        for e in es[n1+4:]: a(e)
        for p_ in jump: a(p_)
        y_phase(a, s, b)
    if bnd:
        a(f"    v_add_u32 v{V_AS}, {ST_STRIDE}, v{V_AS}")
    a(f"    s_setpc_b64 {sr(S_J,2)}")

def gen_kernel(a):
    L = V_LANE; T = V_TID; J = V_J; HH = V_HH
    t0, t1, t2, t3, t4, t5 = 158, 159, 160, 161, 162, 163
    step = NT_ * 16
    vDst = 0
    vSrc = 8
    vEa = 14
    tc = 17
    vTg = 18
    vBa = 20
    vRk = 26
    vWp = 31
    vOf = 32
    vC8 = 37; vWa = 38; vTa = 39
    vX = 40
    vWf = 56
    vPad = 56
    vAc = 72
    vTb = 88
    vXa = 88
    vB1 = 96
    vCl = 120
    v4k = 125
    vPf = 126
    vJ0 = V_R
    vZ = 128
    vG4 = 164; vSb = 165
    vS = V_S; vP = V_P
    a(f"""
.p2align 8
.globl {KNAME}
.type {KNAME},@function
{KNAME}:
    s_cmp_ge_u32 s2, 256
    s_cbranch_scc1 K_end
    s_load_dwordx8 s[4:11], s[0:1], 0        ; x, e_attr, src, dst
    s_load_dwordx8 s[12:19], s[0:1], 32      ; w1, b1, w2, b2
    s_load_dwordx4 s[20:23], s[0:1], 64
    s_load_dwordx2 s[24:25], s[0:1], 80      ; ws
    s_memrealtime {sr(S_TAG,2)}
    s_getpc_b64 {sr(S_J,2)}
    s_lshr_b32 s3, s2, 3
    s_lshl_b32 s3, s3, 7
    v_lshl_add_u32 v2, v0, 12, s3
    v_cmp_gt_u32 vcc, 7, v0
    s_and_saveexec_b64 {sr(S_PC,2)}, vcc
    s_cbranch_execz K_ncp
    global_load_dword v5, v2, {sr(S_J,2)}
K_ncp:
    s_mov_b64 exec, {sr(S_PC,2)}
    v_lshrrev_b32 v1, 6, v0
    v_mov_b32 v{T}, v0
    v_readfirstlane_b32 s{S_WAVE}, v1
    v_and_b32 v{L}, 63, v0
    s_mul_i32 s3, s2, {MAINE*4}
    v_lshl_add_u32 v13, v0, 4, s3            ; byte offset into src/dst
    v_lshrrev_b32 v25, 1, v13
    s_and_b32 s{S_BIN}, s2, 7
    s_lshl_b32 s{S_BIN}, s{S_BIN}, 5
    s_lshr_b32 s3, s2, 3
    s_add_u32 s{S_BIN}, s{S_BIN}, s3
    s_mul_i32 s{S_N0}, s{S_BIN}, {NB}
    s_sub_u32 s{S_NN}, {N_NODES}, s{S_N0}
    s_min_u32 s{S_NN}, s{S_NN}, {NB}
    v_and_b32 v{J}, 31, v0
    v_bfe_u32 v{HH}, v0, 5, 1
    s_mov_b32 s{S_MODE}, 0
    v_mov_b32 v{vZ}, 0
    v_mov_b32 v{vZ+1}, 0
    v_mov_b32 v{vZ+2}, 0
    v_mov_b32 v{vZ+3}, 0
    v_lshlrev_b32 v{t2}, 2, v0""")
    if DIAG:
        a(f"    v_mov_b32 v{V_STAMP}, 0\n    v_mov_b32 v{V_TRACE}, 0")
        stamp(a, 0, True); stamp(a, 1)
    NTE = optval("e_", "").replace("_", " ")
    pdel = optval("pdel", "")
    sp = optval("src_", "post")
    SRCE = f"""
    global_load_dwordx4 {vr(vSrc,4)}, v13, {sr(S_SRC,2)} {NTE}
    global_load_dwordx2 {vr(vEa,2)}, v25, {sr(S_E,2)} {NTE}
"""
    a(f"""
    s_waitcnt lgkmcnt(0)
    global_load_dwordx4 {vr(vDst,4)}, v13, {sr(S_DST,2)} {NTE}
    {f"s_add_u32 s98, s{S_TAG}, 200" if optval("amp", "") == "1" else ""}
    {f"v_writelane_b32 v{V_STAMP}, s{S_TAG}, 0" if "lite" in OPT else ""}
""")
    stamp(a, 29)
    a(f"""
    ds_write_b32 v{t2}, v{vZ} offset:{L_H1}
    s_cmp_lg_u32 s{S_WAVE}, 11
    s_cbranch_scc1 K_ld1
    ; wave 11 also takes the 53 extra edges of this chunk
    s_mul_i32 s{S_A}, s2, {XTRA}
    s_add_u32 s{S_A}, s{S_A}, {256*MAINE}
    v_min_u32 v{t5}, {XTRA-1}, v{L}
    v_add_lshl_u32 v{t5}, v{t5}, s{S_A}, 2
    v_lshrrev_b32 v{t4}, 1, v{t5}
    global_load_dword v{vDst+4}, v{t5}, {sr(S_DST,2)}
    global_load_dword v{vSrc+4}, v{t5}, {sr(S_SRC,2)}
    global_load_ushort v{vEa+2}, v{t4}, {sr(S_E,2)}
K_ld1:""")
    if optval("b1_", "") == "first":
        a(f"""
    s_cmp_lg_u32 s{S_WAVE}, 10
    s_cbranch_scc1 K_ld0
    s_mov_b32 m0, {L_WC + 256}
    v_lshlrev_b32 v{t3}, 2, v{L}
    global_load_lds_dword v{t3}, {sr(S_B1,2)}
K_ld0:""")
    a(f"""
""")
    a(f"""
    ; workgroup 0, wave 9 publishes the hand-off tag of this launch (39 clock bits, never zero)
    s_lshl_b32 s{S_A}, s2, 4
    s_add_u32 s{S_A}, s{S_A}, s{S_WAVE}
    s_cmp_lg_u32 s{S_A}, 9
    s_cbranch_scc1 K_ldJ
    s_lshl_b32 s{S_A}, s{S_TAG}, 25
    s_or_b32 s{S_A}, s{S_A}, 1
    s_lshr_b64 {sr(S_TAG,2)}, {sr(S_TAG,2)}, 7
    v_mov_b32 v{t4}, s{S_A}
    v_mov_b32 v{t4+1}, s{S_TAG}
    s_mov_b64 exec, 1
    global_store_dwordx2 v{vZ}, {vr(t4,2)}, {sr(S_DBG,2)} sc1
    s_mov_b64 exec, -1
K_ldJ:""")
    if sp == "first": a(SRCE)
    if "stpost" in OPT: a("    s_waitcnt lgkmcnt(0)\n    s_barrier")
    a(f"""
    s_lshl_b32 s{S_A}, s{S_WAVE}, 11
    s_cmp_ge_u32 s{S_WAVE}, 8
    s_cbranch_scc1 K_stX
    ; waves 0..7 stage w1 rows 0..63 (64-byte blocks of a row swapped by row&3)
    s_add_u32 m0, s{S_A}, {L_W1}
    v_lshrrev_b32 v{t3}, 2, v{L}
    v_and_b32 v{t3}, 12, v{t3}
    v_xor_b32 v{t3}, v{t3}, v{L}
    v_lshl_add_u32 v{t5}, v{t3}, 4, s{S_A}
    global_load_lds_dwordx4 v{t5}, {sr(S_W1,2)}
    global_load_lds_dwordx4 v{t5}, {sr(S_W1,2)} offset:1024
    s_branch K_stJ
K_stX:
    ; waves 8..11 stage the x rows of this bin (16-byte pieces swizzled inside each row)
    s_mov_b32 s{S_RX}, s4
    s_mov_b32 s{S_RX+1}, s5
    s_mov_b32 s{S_RX+2}, {N_NODES*128}
    s_mov_b32 s{S_RX+3}, 0x00020000
    s_add_u32 m0, s{S_A}, {L_XR - 16384}
    s_lshl_b32 s{S_B}, s{S_N0}, 7
    s_add_u32 s{S_A}, s{S_A}, s{S_B}
    s_sub_u32 s{S_A}, s{S_A}, 16384
    v_lshrrev_b32 v{t3}, 4, v{L}
    v_xor_b32 v{t3}, v{t3}, v{L}
    v_lshl_add_u32 v{t3}, v{t3}, 4, s{S_A}
    v_xor_b32 v{t5}, 64, v{t3}
    buffer_load_dwordx4 v{t3}, {sr(S_RX,4)}, 0 offen {NTE} lds
    buffer_load_dwordx4 v{t5}, {sr(S_RX,4)}, 0 offen offset:1024 {NTE} lds
K_stJ:""")
    stamp(a, 27)
    if sp == "pre": a(SRCE)
    a(f"""
    {"" if "stpost" in OPT else "s_waitcnt lgkmcnt(0)"}
    {"" if "stpost" in OPT else "s_barrier                                ; B1: counters are zero"}
    v_mov_b32 v{vPad}, {PADREC}
    v_mov_b32 v{vPad+1}, {PADREC}
    v_mov_b32 v{vPad+2}, {PADREC}
    v_mov_b32 v{vPad+3}, {PADREC}
    v_lshlrev_b32 v{t2}, 4, v{T}
    ds_write_b128 v{t2}, {vr(vPad,4)} offset:{L_RL}
    s_cmp_ge_u32 s{S_WAVE}, 4
    s_cbranch_scc1 K_in1
    ds_write_b128 v{t2}, {vr(vZ,4)}
    ds_write_b128 v{t2}, {vr(vPad,4)} offset:{L_ST - 4096}
K_in1:
    s_cmp_lg_u32 s{S_WAVE}, 4
    s_cbranch_scc1 K_in2
    v_lshlrev_b32 v{t3}, 2, v{L}
    ds_write_b32 v{t3}, v{vZ} offset:{L_RL - 256}
K_in2:""")
    if sp == "post": a(SRCE)
    stamp(a, 28)
    a(f"""
""")
    w1late = "w1early" not in OPT
    ST2 = f"""
    s_cmp_ge_u32 s{S_WAVE}, 8
    s_cbranch_scc1 K_st2
    s_add_u32 m0, m0, 16384
    v_add_u32 v6, 0x4000, v6
    global_load_lds_dwordx4 v6, {sr(S_W1,2)}
    global_load_lds_dwordx4 v6, {sr(S_W1,2)} offset:1024
    s_branch K_st3
K_st2:
    s_mov_b32 m0, {L_WC}
    v_lshlrev_b32 v{t3}, 2, v{L}
    v_add_u32 v7, 0x8000, v{t3}
    global_load_lds_dword v7, {sr(S_W1,2)}
    {f"s_mov_b32 m0, {L_WC + 256}" if not optval("b1_", "") else ""}
    s_nop 0
    {f"global_load_lds_dword v{t3}, {sr(S_B1,2)}" if not optval("b1_", "") else f"global_load_lds_dword v7, {sr(S_W1,2)}"}
K_st3:"""
    a(f"    v_mov_b32 v6, v{t5}")
    if not w1late: a(ST2)
    tl = "1" if "nowpf" not in OPT else ""
    tk = 1 if tl else 0
    if tl:
        a(f"""
    ; the waves of a die pull the weights that are staged later into its L2, one line each
    s_lshr_b32 s{S_A}, s2, 3
    s_mul_i32 s{S_A}, s{S_A}, {NW}
    s_add_u32 s{S_A}, s{S_A}, s{S_WAVE}
    s_add_u32 s{S_B}, s{S_A}, 128            ; w1 lines 128..257
    s_mov_b64 {sr(S_J,2)}, {sr(S_W1,2)}
    s_sub_u32 s{S_A}, s{S_A}, 130
    s_cbranch_scc1 K_wp
    s_mov_b32 s{S_B}, s{S_A}                 ; w2 lines 0..127
    s_mov_b64 {sr(S_J,2)}, {sr(S_W2,2)}
    s_sub_u32 s{S_A}, s{S_A}, 128
    s_cbranch_scc1 K_wp
    s_and_b32 s{S_B}, s{S_A}, 1              ; b1 lines 0, 1
    s_mov_b64 {sr(S_J,2)}, {sr(S_B1,2)}
    s_cmp_lt_u32 s{S_A}, 2
    s_cbranch_scc1 K_wp
    s_mov_b32 s{S_B}, 0
    s_mov_b64 {sr(S_J,2)}, {sr(S_B2,2)}
K_wp:
    s_lshl_b32 s{S_B}, s{S_B}, 7
    v_mov_b32 v7, s{S_B}
    global_load_dword v5, v7, {sr(S_J,2)}""")
    a(f"""
    v_and_b32 v{vC8}, 3, v{L}
    v_lshlrev_b32 v{vC8}, 3, v{vC8}
    v_and_b32 v{t1}, 16, v{L}
    v_lshl_add_u32 v{vC8}, v{t1}, 1, v{vC8}  ; 8c + 32(g&1)
    s_lshr_b32 s{S_D}, s{S_WAVE}, 1          ; ct
    v_bfe_u32 v{t0}, v{L}, 2, 2
    v_xor_b32 v{t3}, s{S_D}, v{t0}
    v_lshlrev_b32 v{t3}, 6, v{t3}
    v_lshl_add_u32 v{t0}, v{HH}, 3, v{t0}
    v_lshl_add_u32 v{t0}, v{t0}, 8, v{t3}
    v_add_u32 v{vWa}, {L_W1}, v{t0}          ; k row 8*hh + r, column block ct^r
    v_and_b32 v{vWp}, 1, v{L}
    v_lshl_add_u32 v{vWp}, v{vWp}, 5, v{vWa}
    v_and_b32 v{t3}, 16, v{L}
    v_add_u32 v{vWp}, v{vWp}, v{t3}
    v_and_b32 v{t3}, 2, v{L}
    v_lshl_add_u32 v{vWp}, v{t3}, 2, v{vWp}  ; + 16(c&1) + 4(2(g&1) + (c>>1)) columns
    s_and_b32 s{S_A}, s{S_WAVE}, 1
    s_lshl_b32 s{S_A}, s{S_A}, 12
    s_add_u32 s{S_A}, s{S_A}, {L_XR}
    v_bfe_u32 v{t3}, v{L}, 1, 3
    v_xor_b32 v{t3}, v{t3}, v{HH}
    v_lshl_add_u32 v{t3}, v{t3}, 4, s{S_A}
    v_lshl_add_u32 v{vXa}, v{J}, 7, v{t3}
    v_xor_b32 v{vXa+1}, 32, v{vXa}
    v_xor_b32 v{vXa+2}, 64, v{vXa}
    v_xor_b32 v{vXa+3}, 0x60, v{vXa}
    s_mov_b32 s{S_A}, 21400
    s_mov_b32 s{S_B}, -{NB}
    s_mov_b32 s{S_C}, 0xffff0000
    v_mov_b32 v{t5}, 0x10004
    v_mov_b32 v{vBa+4}, 0
    v_mov_b32 v{v4k}, 0x4000
    s_waitcnt vmcnt({(7 if tl == "1" else 6) - (2 if w1late else 0) - (2 if sp in ("dst", "cnt") else 0)})""")
    if sp == "dst": a(SRCE)
    if sp in ("dst", "cnt"): assert w1late
    a(f"""
    s_cmp_lg_u32 s{S_WAVE}, 11
    s_cbranch_scc1 K_wJ
    s_bfm_b64 exec, {XTRA}, 0""")
    assert L_ST - L_RL <= step + 4096
    def binops(cols):
        for i in cols: a(f"    v_mul_u32_u24 v{vBa+i}, s{S_A}, v{vDst+i}")
        for i in cols: a(f"    v_lshrrev_b32 v{vBa+i}, 18, v{vBa+i}")
        for i in cols:
            a(f"    v_and_b32 v{vBa+i}, 0x3fc, v{vBa+i}")
            a(f"    ds_add_rtn_u32 v{vRk+i}, v{vBa+i}, v{t5} offset:{L_H1}")
        for i in cols: a(f"    v_lshlrev_b32 v{vDst+i}, 2, v{vDst+i}")
        for i in cols: a(f"    v_mad_i32_i24 v{vDst+i}, v{vBa+i}, s{S_B}, v{vDst+i}")
        for i in cols: a(f"    v_bfe_u32 v{vCl+i}, v{vDst+i}, 2, 1")
    binops([4])
    a(f"""
    s_mov_b64 exec, -1
K_wJ:""")
    stamp(a, 2)
    binops(range(4))
    if sp == "cnt": a(SRCE)
    a(f"""
    s_waitcnt vmcnt({(2 if w1late else 4)+tk-(2 if sp == 'first' else 0)}) lgkmcnt(0)
    s_barrier""")
    stamp(a, 3)
    a(f"""
    s_cmp_eq_u32 s{S_WAVE}, 8
    s_cbranch_scc1 K_scan1
    s_cmp_gt_u32 s{S_WAVE}, 8
    s_cbranch_scc1 K_notP
    ; ---- waves 0..7: P^T tile = -log2(e) * (x w1[0:64])^T""")
    for s_ in range(4):
        a(f"    ds_read_b128 {vr(vX+4*s_,4)}, v{vXa+s_}")
        for h in range(2):
            a(f"    ds_read_b64_tr_b16 {vr(vWf+4*s_+2*h,2)}, v{vWp} offset:{4096*s_+1024*h}")
    for s_ in range(4):
        a(f"    s_waitcnt lgkmcnt({9-3*s_})")
        cin = "0" if s_ == 0 else vr(vAc, 16)
        a(f"    v_mfma_f32_32x32x16_bf16 {vr(vAc,16)}, {vr(vWf+4*s_,4)}, {vr(vX+4*s_,4)}, {cin}")
    a(f"""
    s_and_b32 s{S_B}, s{S_WAVE}, 1
    s_mul_i32 s{S_A}, s{S_B}, {32*PS_STRIDE}
    s_lshl_b32 s{S_B}, s{S_D}, 6
    s_add_u32 s{S_A}, s{S_A}, s{S_B}
    s_add_u32 s{S_A}, s{S_A}, {L_PS}
    v_mul_u32_u24 v{t3}, {PS_STRIDE}, v{J}
    v_lshl_add_u32 v{t3}, v{HH}, 5, v{t3}
    v_add_u32 v{t3}, s{S_A}, v{t3}
    v_mov_b32 v{t4}, {NLOG2E:#x}
    v_cmp_gt_u32 vcc, {L_PS + 56*PS_STRIDE}, v{t3}
    s_nop 1""")
    for q in range(8):
        a(f"    v_pk_mul_f32 {vr(vAc+2*q,2)}, {vr(vAc+2*q,2)}, {vr(t4,2)} op_sel_hi:[1,0]")
    for q in range(8):
        a(f"    v_cvt_pk_bf16_f32 v{vAc+q}, v{vAc+2*q}, v{vAc+2*q+1}")
    a(f"""
    s_mov_b64 exec, vcc
    ds_write_b128 v{t3}, {vr(vAc,4)}
    ds_write_b128 v{t3}, {vr(vAc+4,4)} offset:16
    s_mov_b64 exec, -1
    s_branch K_b3
K_notP:
    v_lshlrev_b32 v{t1}, 4, v{L}
    v_add_u32 v{t4}, {L_PS + 48*PS_STRIDE}, v{t1}
    v_add_u32 v{t1}, {48*256}, v{t1}
    s_branch K_b3
K_scan1:
    ; ---- wave 8: segment offsets; a segment is n records (4 bytes) followed by n node bytes, padded to 4
    s_setprio 2
    global_load_dwordx2 {vr(vTg,2)}, v{vZ}, {sr(S_DBG,2)}
    v_lshlrev_b32 v{t0}, 4, v{L}
    ds_read_b128 v[56:59], v{t0} offset:{L_H1}
    s_waitcnt lgkmcnt(0)""")
    for i in range(4):
        a(f"    v_lshrrev_b32 v{60+i}, 16, v{56+i}")
    for i in range(4):
        a(f"    v_mad_u32_u24 v{64+i}, v{60+i}, 5, 3")
    for i in range(4):
        a(f"    v_and_b32 v{64+i}, -4, v{64+i}")
    a(f"""
    v_add_u32 v65, v64, v65
    v_add_u32 v66, v65, v66
    v_add_u32 v67, v66, v67
    v_mov_b32 v68, v67""")
    wave_scan(a, 68)
    a(f"""
    v_sub_u32 v68, v68, v67
    v_add_u32 v69, v68, v64
    v_add_u32 v70, v68, v65
    v_add_u32 v71, v68, v66
    s_mov_b32 s{S_A}, 0x10001""")
    for i in range(4):
        a(f"    v_mul_u32_u24 v{64+i}, s{S_A}, v{68+i}")
    for i in range(4):
        a(f"    v_lshl_add_u32 v{64+i}, v{56+i}, 16, v{64+i}")
    a(f"""
    ds_write_b128 v{t0}, v[64:67] offset:{L_OFF}
    s_setprio 0
K_b3:
    v_lshrrev_b32 v{t0}, 4, v{T}
    v_lshl_add_u32 v{t0}, v{t0}, 4, v{t2}
    v_add_u32 v{t0}, {L_PS}, v{t0}
    s_lshl_b32 s{S_A}, s{S_N0}, 8
    s_add_u32 s{S_A}, s{S_A}, {WS_P}
    s_add_u32 s{S_RT}, s{S_WS}, s{S_A}
    s_addc_u32 s{S_RT+1}, s{S_WS+1}, 0
    s_lshl_b32 s{S_RT+2}, s{S_NN}, 8
    s_mov_b32 s{S_RT+3}, 0x00020000
    s_waitcnt lgkmcnt(0)
    s_barrier                                ; B3: segment offsets, P staged""")
    stamp(a, 4)
    a(f"""
    s_cmp_lt_u32 s{S_WAVE}, 10
    s_cbranch_scc1 K_nx0
    ds_read_b32 v{vOf+4}, v{vBa+4} offset:{L_OFF}
    ds_read_b128 v[76:79], v{t4}
K_nx0:
    ds_read_b128 v[72:75], v{t0}""")
    for i in range(4):
        a(f"    ds_read_b32 v{vOf+i}, v{vBa+i} offset:{L_OFF}")
    a(f"""
    s_waitcnt lgkmcnt(4)
    {"" if pdel else f"buffer_store_dwordx4 v[72:75], v{t2}, {sr(S_RT,4)}, 0 offen sc1"}""")
    if sp in ("dst", "cnt"): tk = 0
    if pdel: tk -= 1
    stamp(a, 24)
    a(f"""
    s_waitcnt vmcnt({(2 if w1late else 4)+tk})
    s_cmp_eq_u32 s{S_WAVE}, 8                ; (wave 8 has the tag load in flight as well)
    s_cbranch_scc1 K_w8
    s_waitcnt vmcnt({(1 if w1late else 3)+tk})
K_w8:""")
    stamp(a, 22)
    a(f"""
    v_lshl_or_b32 v{vSrc}, v{v4k}, v{vCl}, v{vSrc}
    v_lshl_or_b32 v{vSrc+1}, v{v4k}, v{vCl+1}, v{vSrc+1}
    v_lshl_or_b32 v{vSrc+2}, v{v4k}, v{vCl+2}, v{vSrc+2}
    v_lshl_or_b32 v{vSrc+3}, v{v4k}, v{vCl+3}, v{vSrc+3}
    v_lshl_or_b32 v{vSrc}, v{vEa}, 16, v{vSrc}
    v_and_or_b32 v{vSrc+1}, v{vEa}, s{S_C}, v{vSrc+1}
    v_lshl_or_b32 v{vSrc+2}, v{vEa+1}, 16, v{vSrc+2}
    v_and_or_b32 v{vSrc+3}, v{vEa+1}, s{S_C}, v{vSrc+3}
    s_waitcnt lgkmcnt(0)""")
    def scatter(i):
        a(f"    v_add_u32_sdwa v{vBa+i}, v{vOf+i}, v{vRk+i} {SD} src0_sel:WORD_0 src1_sel:WORD_0")
        a(f"    v_add_u32_sdwa v{vOf+i}, v{vOf+i}, v{vRk+i} {SD} src0_sel:WORD_1 src1_sel:WORD_1")
        a(f"    ds_write_b32 v{vBa+i}, v{vSrc+i} offset:{L_RS}")
        a(f"    ds_write_b8 v{vOf+i}, v{vDst+i} offset:{L_RS}")
    for i in range(4): scatter(i)
    a(f"""
    s_cmp_lt_u32 s{S_WAVE}, 10
    s_cbranch_scc1 K_nx2
    s_cmp_eq_u32 s{S_WAVE}, 11
    s_cbranch_scc1 K_x2
    buffer_store_dwordx4 v[76:79], v{t1}, {sr(S_RT,4)}, 0 offen sc1""")
    if optval("b1_", "") == "late":
        a(f"""
    s_mov_b32 m0, {L_WC + 256}
    v_lshlrev_b32 v{t3}, 2, v{L}
    global_load_lds_dword v{t3}, {sr(S_B1,2)}
""")
    a(f"""
    s_branch K_nx2
K_x2:
    s_bfm_b64 exec, {XTRA}, 0
    v_lshl_or_b32 v{vSrc+4}, v{v4k}, v{vCl+4}, v{vSrc+4}
    v_lshl_or_b32 v{vSrc+4}, v{vEa+2}, 16, v{vSrc+4}""")
    scatter(4)
    a(f"""
    s_mov_b64 exec, -1
K_nx2:""")
    if w1late: a(ST2)
    a(f"""
    s_mul_i32 s{S_A}, s2, {RSTRIDE}
    s_add_u32 s{S_RR}, s{S_WS}, s{S_A}
    s_addc_u32 s{S_RR+1}, s{S_WS+1}, 0
    s_mov_b32 s{S_RR+2}, 16512
    s_mov_b32 s{S_RR+3}, 0x00020000
    v_add_u32 v{t3}, {step}, v{t2}
    s_waitcnt lgkmcnt(0)""")
    if pdel == "1": a(f"    buffer_store_dwordx4 v[72:75], v{t2}, {sr(S_RT,4)}, 0 offen sc1")
    stamp(a, 23)
    a(f"""
    s_barrier""")
    stamp(a, 5)
    a(f"""
    ds_read_b128 v[0:3], v{t2} offset:{L_RS}
    s_cmp_ge_u32 s{S_WAVE}, 5
    s_cbranch_scc1 K_co1
    ds_read_b128 v[8:11], v{t2} offset:{L_RS + step}
    s_waitcnt lgkmcnt(0)
    buffer_store_dwordx4 v[8:11], v{t3}, {sr(S_RR,4)}, 0 offen sc1
K_co1:
    s_waitcnt lgkmcnt(0)
    buffer_store_dwordx4 v[0:3], v{t2}, {sr(S_RR,4)}, 0 offen sc1
    {f"buffer_store_dwordx4 v[72:75], v{t2}, {sr(S_RT,4)}, 0 offen sc1" if pdel == "2" else ""}
""")
    def emit_consts():
        a(f"""
    ; ---- lane constants, while the stores drain
    ; gather: lane -> row l>>4 of 4, piece l&15; odd rows have their 64-byte blocks swapped pairwise
    v_and_b32 v{tc}, 15, v{L}
    v_bfe_u32 v{t3}, v{L}, 4, 1
    v_lshlrev_b32 v{t3}, 2, v{t3}
    v_xor_b32 v{tc}, v{tc}, v{t3}
    v_lshlrev_b32 v{V_IX+1}, 4, v{tc}
    v_mov_b32 v{V_IX+3}, v{V_IX+1}
    v_mov_b32 v{V_IX+5}, v{V_IX+1}
    v_mov_b32 v{V_IX+7}, v{V_IX+1}
    v_lshrrev_b32 v{V_AIDX}, 4, v{L}
    v_lshlrev_b32 v{V_AIDX}, 1, v{V_AIDX}
    v_bfe_u32 v{tc}, v{L}, 3, 1
    v_xor_b32 v{t3}, v{tc}, v{HH}
    v_lshl_add_u32 v{t3}, v{t3}, 6, v{vC8}
    v_lshl_add_u32 v{tc}, v{tc}, 8, v{t3}
    s_lshl_b32 s{S_B}, s{S_WAVE}, 12
    s_add_u32 s{S_B}, s{S_B}, {L_XS}
    v_add_u32 v{tc}, s{S_B}, v{tc}
    v_bfe_u32 v{t4}, v{L}, 2, 1
    v_cmp_ne_u32 vcc, 0, v{t4}
    v_mov_b32 v{t3}, {L_Z}
    v_mov_b32 v{V_MN}, 1.0
    v_cndmask_b32 v{V_AA}, v{t3}, v{tc}, vcc
    v_cmp_eq_u32 {mask(0)}, v{t4}, v{HH}
    v_bfe_u32 v{tc}, v{L}, 3, 2
    v_and_b32 v{t3}, 3, v{L}
    v_lshl_add_u32 v{tc}, v{tc}, 2, v{t3}
    v_lshlrev_b32 v{tc}, 2, v{tc}
    v_add_u32 v{tc}, {L_G}, v{tc}
    v_mov_b32 v{t3}, {L_ZA}
    v_cndmask_b32 v{V_AENT}, v{t3}, v{tc}, {mask(0)}
    v_mov_b32 v{t3}, 0x80
    v_cndmask_b32 v{V_INCA}, 0, v{t3}, {mask(0)}
    v_and_b32 v{vJ0}, 1, v{L}
    v_mul_u32_u24 v{vJ0}, {9*VAR_SIZE}, v{vJ0}
    v_add_u32 v{vJ0}, {ENTRY}, v{vJ0}""")
        for m in range(4):
            a(f"    s_movk_i32 s{S_P+m}, {3072 - 1024*m}")
        for c in range(2):
            a(f"    v_mov_b32 v{V_ND+4*c}, 0")
            a(f"    v_mov_b32 v{V_ND+4*c+1}, 0")
            a(f"    v_mov_b32 v{V_ND+4*c+2}, 1.0")
            a(f"    v_mov_b32 v{V_ND+4*c+3}, 1.0")
        a(f"""
    s_and_b32 s{S_A}, s{S_WAVE}, 3
    s_mul_i32 s{S_A}, s{S_A}, 3
    s_lshr_b32 s{S_B}, s{S_WAVE}, 2
    s_add_u32 s{S_SLOT}, s{S_A}, s{S_B}
    s_getpc_b64 {sr(S_PC,2)}
K_pc:
    s_add_u32 s{S_PC}, s{S_PC}, K_vbase - K_pc
    s_addc_u32 s{S_PC+1}, s{S_PC+1}, 0
    ; segment mapping of phase 2: segment 128 i + t/6, lane group g = t%6
    v_mul_u32_u24 v{tc}, 10923, v{T}
    v_lshrrev_b32 v{tc}, 16, v{tc}
    v_mad_i32_i24 v{vG4}, v{tc}, -6, v{T}
    v_lshlrev_b32 v{vG4}, 2, v{vG4}          ; 4g
    v_mul_u32_u24 v{vSb}, {RSTRIDE}, v{tc}
    ; share of P this lane pulls into L2
    s_lshr_b32 s{S_A}, s2, 3
    s_mul_i32 s{S_A}, s{S_A}, {256*128 if "hot" in OPT else 781*128}
    s_add_u32 s{S_A}, s{S_A}, {WS_P - (512*128 if "hot" in OPT else 0)}
    v_lshl_add_u32 v{vPf}, v{T}, 7, s{S_A}
    s_lshr_b32 s{S_B}, s{S_BIN}, 2
    s_lshl_b32 s{S_B}, s{S_B}, 4
    s_and_b32 s{S_A}, s{S_BIN}, 1
    s_lshl_b32 s{S_A}, s{S_A}, 3
    s_add_u32 s{S_B}, s{S_B}, s{S_A}
    s_and_b32 s{S_A}, s{S_BIN}, 2
    s_lshl_b32 s{S_A}, s{S_A}, 9
    s_add_u32 s{S_B}, s{S_B}, s{S_A}
    s_add_u32 s{S_B}, s{S_B}, {WS_TAB}
    v_lshl_add_u32 v{t5}, v{tc}, 11, s{S_B}  ; table entry offset""")
    cpos = optval("c_", "drain")
    if cpos == "drain": emit_consts()
    a(f"""
    s_mov_b32 s3, {NLOG2E:#x}
    s_cmp_lg_u32 s{S_WAVE}, 8
    s_cbranch_scc1 K_ntb
    s_mov_b32 s{S_K}, 0
    s_waitcnt vmcnt({4 if w1late else 2})
K_tagp:
    v_cmp_ne_u32 vcc, 0, v{vTg}
    s_cbranch_vccnz K_tagok
    s_add_u32 s{S_K}, s{S_K}, 1
    s_cmp_gt_u32 s{S_K}, {POLL_MAX}
    s_cbranch_scc1 K_tagok                   ; give up: tag 0 sends this workgroup to the slow path
    global_load_dwordx2 {vr(vTg,2)}, v{vZ}, {sr(S_DBG,2)} sc1
    s_waitcnt vmcnt(0)
    s_branch K_tagp
K_tagok:
    ds_write_b64 v{vZ}, {vr(vTg,2)} offset:{L_NONCE}
    v_and_b32 v{t3}, 0xfe000000, v{vTg}
    s_lshl_b32 s{S_B}, s2, 11
    s_add_u32 s{S_B}, s{S_B}, {WS_TAB}
    v_lshl_add_u32 v{t1}, v{L}, 4, s{S_B}""")
    for i in range(4):
        a(f"    v_lshrrev_b32 v{68+i}, 2, v{68+i}")
        a(f"    v_lshl_or_b32 v{68+i}, v{60+i}, 13, v{68+i}")
        a(f"    v_or_b32 v{vTb+2*i}, v{t3}, v{68+i}")
        a(f"    v_mov_b32 v{vTb+2*i+1}, v{vTg+1}")
    a(f"""
    s_waitcnt vmcnt(0) lgkmcnt(0)
    s_barrier                                ; B5
    s_cbranch_vccz K_slow
    global_store_dwordx4 v{t1}, {vr(vTb,4)}, {sr(S_WS,2)} {optval('ts_','sc1').replace('_',' ')}
    global_store_dwordx4 v{t1}, {vr(vTb+4,4)}, {sr(S_WS,2)} offset:1024 {optval('ts_','sc1').replace('_',' ')}
    s_branch K_b5j
K_ntb:
    s_waitcnt vmcnt(0)
    s_barrier                                ; B5: this workgroup's records and P rows are in memory
K_b5j:""")
    stamp(a, 6)
    a(f"""
    ds_read_b64 {vr(vTg,2)}, v{vZ} offset:{L_NONCE}
    v_lshlrev_b32 v{t0}, 1, v{L}
    v_add_u32 v{t0}, {L_WC}, v{t0}
    ds_read_u16 v{V_B5}, v{t0}
    ds_read_u16 v{V_B5+2}, v{t0} offset:128
    s_waitcnt lgkmcnt(0)
    v_readfirstlane_b32 s{S_TAG}, v{vTg}
    v_readfirstlane_b32 s{S_TAG+1}, v{vTg+1}
    s_cmp_eq_u32 s{S_TAG}, 0
    s_cbranch_scc1 K_slow""")
    for c in range(2):
        w = V_B5 + 2*c
        a(f"    v_lshlrev_b32 v{w}, 16, v{w}")
        a(f"    v_mul_f32 v{w}, s3, v{w}")
        a(f"    v_cvt_pk_bf16_f32 v{t3}, v{vZ}, v{w}")
        a(f"    v_sub_f32 v{t3}, v{w}, v{t3}")
        a(f"    v_cvt_pk_bf16_f32 v{w+1}, v{w}, v{t3}")
    a(f"""
    s_cmp_lt_u32 s{S_WAVE}, 8
    s_cbranch_scc1 K_Q
    ; waves 8..11 stage w2 and b2 (first used after the main loop)
    s_sub_u32 s{S_A}, s{S_WAVE}, 8
    s_lshl_b32 s{S_A}, s{S_A}, 12
    s_add_u32 m0, s{S_A}, {L_W2}
    v_lshl_add_u32 v{t3}, v{L}, 4, s{S_A}
    global_load_lds_dwordx4 v{t3}, {sr(S_W2,2)}
    global_load_lds_dwordx4 v{t3}, {sr(S_W2,2)} offset:1024
    global_load_lds_dwordx4 v{t3}, {sr(S_W2,2)} offset:2048
    global_load_lds_dwordx4 v{t3}, {sr(S_W2,2)} offset:3072
    s_cmp_lg_u32 s{S_WAVE}, 9
    s_cbranch_scc1 K_notQ
    s_mov_b32 m0, {L_B2}
    v_lshlrev_b32 v{t3}, 2, v{J}
    global_load_lds_dword v{t3}, {sr(S_B2,2)}
    s_branch K_notQ
K_Q:
    ; ---- waves 0..7: Q tile = -log2(e)/2 * (x w1[64:128] + b1) (selected by 2.0), while the table entries travel
    s_mov_b32 s3, {f32bits(-LOG2E/2):#x}
    s_lshl_b32 s{S_A}, s{S_D}, 6
    s_add_u32 s{S_A}, s{S_A}, {L_WC + 256}
    v_lshl_add_u32 v{t3}, v{J}, 1, s{S_A}
    ds_read_u16 v{vB1}, v{t3}
    v_add_u32 v{tc}, v{vWa}, v{vC8}""")
    for s_ in range(4):
        for h in range(2):
            a(f"    ds_read_b64_tr_b16 {vr(vWf+4*s_+2*h,2)}, v{tc} offset:{16384+4096*s_+1024*h}")
    a(f"""
    s_and_b32 s{S_A}, s{S_WAVE}, 1
    s_lshl_b32 s{S_B}, s{S_A}, 14
    s_lshl_b32 s{S_C}, s{S_D}, 7
    s_add_u32 s{S_B}, s{S_B}, s{S_C}
    s_add_u32 s{S_B}, s{S_B}, {L_QT - 512}
    v_lshl_add_u32 v{tc}, v{HH}, 11, s{S_B}
    v_lshl_add_u32 v{tc}, v{J}, 2, v{tc}""")
    for s_ in range(4):
        a(f"    s_waitcnt lgkmcnt({6-2*s_})")
        cin = "0" if s_ == 0 else vr(vAc, 16)
        a(f"    v_mfma_f32_32x32x16_bf16 {vr(vAc,16)}, {vr(vX+4*s_,4)}, {vr(vWf+4*s_,4)}, {cin}")
    a(f"""
    v_lshlrev_b32 v{vB1}, 16, v{vB1}
    v_mul_f32 v{vB1}, s3, v{vB1}
    s_nop 9""")
    def qpair(r):
        row = 8*(r >> 2) + (r & 3)
        a(f"    v_fma_f32 v{vAc+r}, v{vAc+r}, s3, v{vB1}")
        a(f"    v_fma_f32 v{vAc+r+1}, v{vAc+r+1}, s3, v{vB1}")
        a(f"    v_cvt_pk_bf16_f32 v{vWf+r}, v{vAc+r}, v{vAc+r+1}")
        a(f"    ds_write_b32 v{tc}, v{vWf+r} offset:{512*(row+1)}")
        a(f"    ds_write_b16 v{tc}, v{vWf+r} offset:{512*row}")
        a(f"    ds_write_b16_d16_hi v{tc}, v{vWf+r} offset:{512*(row+2)+2}")
    for r in range(0, 12, 2): qpair(r)
    a(f"""
    s_cmp_eq_u32 s{S_A}, 1
    s_cbranch_scc1 K_notQ""")
    for r in range(12, 16, 2): qpair(r)
    a(f"K_notQ:")
    if cpos == "post": emit_consts()
    if "qvm" in OPT: a("    s_waitcnt vmcnt(0)")
    if "noqbar" not in OPT: a("    s_waitcnt lgkmcnt(0)\n    s_barrier                                ; Q table complete; no wave looks at the table before this point")
    if cpos == "post2": emit_consts()
    stamp(a, 7)
    vT = 0
    vN = 4
    vAr = 6
    vR = 12
    vM = 28
    vA = 32
    vK = 48
    vB = 64
    a(f"""
    s_lshl_b32 s{S_B}, s{S_WAVE}, 12
    s_add_u32 m0, s{S_B}, {L_XS}
    s_mov_b32 s{S_RR}, s{S_WS}
    s_mov_b32 s{S_RR+1}, s{S_WS+1}
    s_mov_b32 s{S_RR+2}, {WS_TAB + 256*2048}
    s_mov_b32 s{S_A}, {128*2048}
    s_mov_b32 s{S_B}, {128*RSTRIDE}
    s_mov_b32 s{S_C}, 0xfe000000
    s_movk_i32 s{S_D}, 0xfc
    s_mov_b32 s{S_K}, 0
    {"s_sleep " + optval("fs", "0") if optval("fs", "0") != "0" else ""}
    {f"s_cmp_lt_u32 s{S_WAVE}, 8" if optval("ls", "") else ""}
    {"s_cbranch_scc1 K_nls" if optval("ls", "") else ""}
    {"s_sleep " + optval("ls", "") if optval("ls", "") else ""}
K_nls:
    s_mov_b64 {mask(0)}, -1
    s_mov_b64 {mask(1)}, -1
    v_mov_b32 v{vM}, 0
    v_mov_b32 v{vM+1}, 0""")
    a(f"""
K_poll:
    s_mov_b64 exec, {mask(0)}
    s_cbranch_execz K_pl0
    buffer_load_dwordx2 {vr(vT,2)}, v{t5}, {sr(S_RR,4)}, 0 offen {optval('pl_','sc1').replace('_',' ')}
K_pl0:
    s_mov_b64 exec, {mask(1)}
    s_cbranch_execz K_pl1
    buffer_load_dwordx2 {vr(vT+2,2)}, v{t5}, {sr(S_RR,4)}, s{S_A} offen {optval('pl_','sc1').replace('_',' ')}
K_pl1:
    s_mov_b64 exec, -1
    s_waitcnt vmcnt(0)""")
    for i in range(2):
        a(f"    v_xor_b32 v{vN+i}, s{S_TAG}, v{vT+2*i}")
        a(f"    v_xor_b32 v{vAr+i}, s{S_TAG+1}, v{vT+2*i+1}")
        a(f"    v_and_or_b32 v{vAr+i}, v{vN+i}, s{S_C}, v{vAr+i}")
        a(f"    v_cmp_ne_u32 {mask(i)}, 0, v{vAr+i}")
    a(f"""
    s_add_u32 s{S_K}, s{S_K}, 1
    s_or_b64 vcc, {mask(0)}, {mask(1)}
    s_cbranch_scc0 K_got
    {"s_sleep " + optval("ps", "") if optval("ps", "") else ""}
    s_cmp_lt_u32 s{S_K}, {POLL_MAX}
    s_cbranch_scc1 K_poll
    ; gave up: no records from this wave, ask for the slow path
    s_mov_b32 s{S_MODE}, 1
    s_branch K_nor2a
K_got:""")
    if DIAG:
        a(f"    v_writelane_b32 v{V_STAMP}, s{S_K}, 20")
    stamp(a, 8)
    so = ["0", sr(S_B)]
    for i in range(2):
        a(f"    v_and_b32 v{vAr+i}, 0x1fff, v{vT+2*i}")
        a(f"    v_bfe_u32 v{vT+2*i+1}, v{vT+2*i}, 13, 12")
        a(f"    v_lshl_add_u32 v{vAr+i}, v{vAr+i}, 2, v{vSb}")
        a(f"    v_sub_u32 v{vN+i}, v{vT+2*i+1}, v{vG4}")
        a(f"    v_lshl_add_u32 v{vAr+2+i}, v{vT+2*i+1}, 2, v{vAr+i}")
        a(f"    v_cmp_lt_i32 {mask(4*i)}, 0, v{vN+i}")
        a(f"    v_lshl_add_u32 v{vAr+i}, v{vG4}, 2, v{vAr+i}")
        a(f"    v_add_u32 v{vAr+2+i}, v{vAr+2+i}, v{vG4}")
        a(f"    s_or_b64 exec, {mask(4*i)}, 1")
        a(f"    buffer_load_dword v{vM+i}, v{vAr+2+i}, {sr(S_RR,4)}, {so[i]} offen")
        a(f"    buffer_load_dwordx4 {vr(vR+4*i,4)}, v{vAr+i}, {sr(S_RR,4)}, {so[i]} offen")
        a(f"    s_mov_b64 exec, -1")
    for i in range(2):
        for k in range(1, 4):
            a(f"    v_cmp_lt_i32 {mask(4*i+k)}, {k}, v{vN+i}")
    a(f"""
    v_max_i32 v{t1}, v{vN}, v{vN+1}
    v_cmp_lt_i32 vcc, 24, v{t1}
    s_mov_b32 s{S_K}, 0
    s_cbranch_vccz K_nor2a
    s_mov_b32 s{S_K}, 1""")
    for i in range(2):
        a(f"    buffer_load_dword v{vM+2+i}, v{vAr+2+i}, {sr(S_RR,4)}, {so[i]} offen offset:24")
        a(f"    buffer_load_dwordx4 {vr(vR+8+4*i,4)}, v{vAr+i}, {sr(S_RR,4)}, {so[i]} offen offset:96")
        for k in range(4):
            a(f"    v_cmp_lt_i32 {mask(8+4*i+k)}, {24+k}, v{vN+i}")
    pf0 = int(optval("pf", "8"))
    a(f"""
    v_cmp_lt_i32 vcc, 48, v{t1}
    s_cbranch_vccz K_nor2a
    s_mov_b32 s{S_MODE}, 1                   ; a segment is too long for the fast path
K_nor2a:
    v_mov_b32 v{t4}, {L_FLAG}
    v_mov_b32 v{t0}, 4
    s_cmp_eq_u32 s{S_MODE}, 0
    s_cbranch_scc1 K_nofl
    ds_write_b32 v{t4}, v{t0}
K_nofl:
    s_waitcnt lgkmcnt(0)
    s_barrier
    ds_read_b32 v{t3}, v{t4}
    ; P descriptor: 256-byte records, base shifted by -3072
    s_add_u32 s{S_RX}, s{S_WS}, {WS_P - 3072}
    s_addc_u32 s{S_RX+1}, s{S_WS+1}, 0
    s_and_b32 s{S_RX+1}, s{S_RX+1}, 0xffff
    s_or_b32 s{S_RX+1}, s{S_RX+1}, 0x01000000
    s_mov_b32 s{S_RX+2}, {N_NODES}
    s_mov_b32 s{S_RX+3}, 0x00020000
    s_waitcnt lgkmcnt(0)
    v_cmp_ne_u32 vcc, 0, v{t3}
    s_cbranch_vccnz K_slow
    s_cmp_lt_u32 s{S_WAVE}, {pf0}
    s_cbranch_scc1 K_npf
    global_load_dword v{t5}, v{vPf}, {sr(S_WS,2)} sc1
    s_waitcnt vmcnt(1)
    s_branch K_pfJ
K_npf:
    v_and_b32 v72, 7, v{L}
    v_lshlrev_b32 v74, 4, v72
    v_add_u32 v74, {L_B2}, v74
    ds_read_b128 v[76:79], v74
    v_and_b32 v{E_XR}, -8, v{T}              ; 8 * node
    v_lshlrev_b32 v{E_OUT}, 4, v{T}          ; output byte offset
    v_lshlrev_b32 v72, 5, v72
    v_add_u32 v{E_NX}, {L_QT}, v72
    s_waitcnt lgkmcnt(0)""")
    vBu = E_DB
    for q in range(4):
        a(f"    v_lshlrev_b32 v{vBu[q]}, 16, v{76+q}")
        a(f"    v_and_b32 v{vBu[q]+1}, 0xffff0000, v{76+q}")
    assert pf0 >= 7
    a(f"""
    s_cmp_ge_u32 s{S_WAVE}, 4
    s_cbranch_scc1 K_np1
    v_bfe_u32 v70, v{L}, 2, 1
    v_bfe_u32 v71, v{L}, 3, 1
    v_lshl_add_u32 v70, v70, 6, v71
    v_lshrrev_b32 v71, 4, v{L}               ; g
    v_lshl_add_u32 v70, v71, 2, v70
    v_lshlrev_b32 v70, 7, v70
    v_and_b32 v72, 3, v{L}
    v_lshl_add_u32 v70, v72, 4, v70
    v_add_u32 v{E_W2}, {L_W2}, v70
    v_and_b32 v70, 15, v{L}
    s_lshl_b32 s{S_C}, s{S_WAVE}, 4
    v_add_u32 v70, s{S_C}, v70               ; row
    v_mul_u32_u24 v72, {ST_STRIDE}, v70
    v_lshl_add_u32 v72, v71, 4, v72
    v_add_u32 v{E_SR}, {L_ST}, v72
    v_mul_u32_u24 v72, {OF_STRIDE}, v70
    v_lshl_add_u32 v72, v71, 5, v72
    v_add_u32 v{E_OW}, {L_QT}, v72
K_np1:
    s_waitcnt vmcnt(0)
K_pfJ:""")
    stamp(a, 9)
    def count_cols(ks):
        for k in ks:
            a(f"    v_and_b32_sdwa v{vA+k}, v{vM+k//4}, s{S_D} {SD} src0_sel:BYTE_{k%4} src1_sel:DWORD")
        for k in ks:
            a(f"    s_mov_b64 exec, {mask(k)}")
            a(f"    ds_add_rtn_u32 v{vK+k}, v{vA+k}, v{t0} offset:{L_H2}")
        a(f"    s_mov_b64 exec, -1")
    count_cols(range(8))
    a(f"""
    s_cmp_eq_u32 s{S_K}, 0
    s_cbranch_scc1 K_nor2b""")
    count_cols(range(8, 16))
    a(f"""
K_nor2b:
    v_lshlrev_b32 v{t1}, 2, v{L}
    v_cmp_gt_u32 vcc, s{S_NN}, v{L}
    s_waitcnt lgkmcnt(0)
    s_barrier""")
    stamp(a, 10)
    a(f"""
    ds_read_b32 v{V_CNT}, v{t1} offset:{L_H2}
    s_waitcnt lgkmcnt(0)
    v_add_u32 v{vP}, 4, v{V_CNT}
    v_and_b32 v{vP}, -8, v{vP}
    v_max_u32 v{vP}, 64, v{vP}
    v_cndmask_b32 v{vP}, 0, v{vP}, vcc
    v_mov_b32 v{vS}, v{vP}""")
    wave_scan(a, vS)
    a(f"""
    s_nop 0
    v_readlane_b32 s{S_A}, v{vS}, 63
    v_sub_u32 v{vS}, v{vS}, v{vP}
    ds_write_b32 v{t1}, v{vS} offset:{L_SX}
    s_cmp_gt_u32 s{S_A}, {ENT_CAP*4}
    s_cbranch_scc1 K_slow""")
    def place_cols(ks, mid=None):
        ks = list(ks)
        for k in ks:
            a(f"    ds_read_b32 v{vB+k}, v{vA+k} offset:{L_SX}")
        if mid: a(mid)
        for n, k in enumerate(ks):
            if n % 2 == 0:
                a(f"    s_waitcnt lgkmcnt({len(ks)-2-n})")
            a(f"    v_add_u32 v{vK+k}, v{vB+k}, v{vK+k}")
        for k in ks:
            a(f"    s_mov_b64 exec, {mask(k)}")
            a(f"    ds_write_b32 v{vK+k}, v{vR+k} offset:{L_RL}")
        a(f"    s_mov_b64 exec, -1")
    place_cols(range(8), f"""
    s_add_u32 s{S_A}, s{S_A}, 63
    s_lshr_b32 s{S_TT}, s{S_A}, 6            ; tiles
    s_mul_i32 s{S_T0}, s{S_SLOT}, s{S_TT}
    s_add_u32 s{S_NT}, s{S_T0}, s{S_TT}
    s_mul_i32 s{S_T0}, s{S_T0}, 43691
    s_mul_i32 s{S_NT}, s{S_NT}, 43691
    s_lshr_b32 s{S_T0}, s{S_T0}, 19
    s_lshr_b32 s{S_NT}, s{S_NT}, 19
    s_sub_u32 s{S_NT}, s{S_NT}, s{S_T0}""")
    a(f"""
    s_cmp_eq_u32 s{S_K}, 0
    s_cbranch_scc1 K_nor2c
    s_waitcnt lgkmcnt(0)""")
    place_cols(range(8, 16))
    thr = [int(x) for x in optval("thr", "8_4").split("_")] + [2]
    vBk = 80
    vGr = 82
    a(f"""
K_nor2c:
    s_lshl_b32 s{S_A}, s{S_T0}, 6            ; list position of this wave
    v_lshl_add_u32 v{t3}, v{V_AIDX}, 1, s{S_A}
    v_add_u32 v{t2}, s{S_A}, v{t1}
    ; first node of this wave: n = #(m < nn : start[m] <= ts) - 1
    v_cmp_ge_u32 {mask(0)}, s{S_A}, v{vS}
    v_subrev_u32 v{t0}, s{S_A}, v{vS}
    s_and_b64 {mask(0)}, {mask(0)}, vcc
    s_bcnt1_i32_b64 s{S_B}, {mask(0)}
    s_sub_u32 s{S_B}, s{S_B}, 1              ; n
    s_andn2_b64 {mask(0)}, vcc, {mask(0)}
    v_bfe_u32 v{t4}, v{t0}, 3, 3
    v_add_u32 v{t4}, 1, v{t4}
    v_lshrrev_b32 v{t0}, 4, v{t0}
    v_min_u32 v{t0}, 0xfc, v{t0}
    v_cndmask_b32 v{t0}, -4, v{t0}, {mask(0)}
    v_mov_b32 v{vBk}, 0
    {"" if "novar" in OPT else f"ds_permute_b32 v{vBk}, v{t0}, v{t4}"}
    s_cmp_lg_u32 s{S_WAVE}, 0
    s_cbranch_scc1 K_nprep
    ; wave 0: sum rows of node = lane: first = node + slot(first tile), extra = slot(last tile) - slot(first tile)
    v_cvt_f32_u32 v70, s{S_TT}
    v_rcp_f32 v70, v70
    v_add3_u32 v{vP}, v{vS}, v{vP}, -4
    v_lshrrev_b32 v{vS}, 6, v{vS}
    v_lshrrev_b32 v{vP}, 6, v{vP}
    v_cvt_f32_u32 v{vS}, v{vS}
    v_cvt_f32_u32 v{vP}, v{vP}
    v_add_f32 v{vS}, {f32bits((NW-0.5)/NW):#x}, v{vS}
    v_add_f32 v{vP}, {f32bits((NW-0.5)/NW):#x}, v{vP}
    v_mul_f32 v70, {f32bits(NW):#x}, v70
    v_mul_f32 v{vS}, v{vS}, v70
    v_mul_f32 v{vP}, v{vP}, v70
    v_cvt_u32_f32 v{vS}, v{vS}
    v_cvt_u32_f32 v{vP}, v{vP}
    v_cvt_f32_u32 v71, v{V_CNT}
    v_sub_u32 v{vP}, v{vP}, v{vS}
    v_add_u32 v{vS}, v{vS}, v{L}
    v_mul_u32_u24 v{vS}, {OF_STRIDE}, v{vS}
    v_mul_f32 v71, 0x3e800000, v71           ; degree
    v_lshl_or_b32 v70, v{vP}, 16, v{vS}
    v_lshlrev_b32 v72, 3, v{L}
    v_cndmask_b32 v70, 0, v70, vcc
    ds_write_b64 v72, v[70:71] offset:{L_RW}
K_nprep:
    s_waitcnt lgkmcnt(0)
    s_barrier""")
    stamp(a, 11)
    for m in range(4):
        a(f"    ds_read_u16 v{V_IX+2*m}, v{t3} offset:{L_RL + 16*m}")
    for c in range(5):
        a(f"    ds_read_b32 v{vGr+c}, v{t2} offset:{L_RL + 256*c}")
    a(f"""
    s_lshr_b32 s{S_C}, s{S_A}, 1
    s_add_u32 s{S_C}, s{S_C}, {L_IX}
    v_add_u32 v{V_AIDX}, s{S_C}, v{V_AIDX}
    v_lshl_add_u32 v{t0}, v{L}, 1, s{S_C}
    s_mov_b32 s{S_C}, 0x03020302
    s_mov_b32 s{S_D}, 0x8001
    s_waitcnt lgkmcnt(5)""")
    for m in range(4):
        a(f"    v_and_b32 v{V_IX+2*m}, {PADREC}, v{V_IX+2*m}")
    for h in dma_ops(): a(h)
    def conv(c):
        a(f"    v_and_b32 v{vGr+5+c}, 0xc000, v{vGr+c}")
        a(f"    v_perm_b32 v{64+c}, v{vGr+c}, v{vGr+c}, s{S_C}")
        a(f"    v_xor_b32 v{vGr+c}, v{vGr+c}, v{vGr+5+c}")
        a(f"    v_mul_u32_u24 v{vGr+5+c}, s{S_D}, v{vGr+5+c}")
        a(f"    v_and_b32 v{vGr+5+c}, 0x40004000, v{vGr+5+c}")
    def put(c):
        a(f"    ds_write2st64_b32 v{t2}, v{vGr+5+c}, v{64+c} offset0:{L_G//256 + c} offset1:{L_RL//256 + c}")
        a(f"    ds_write_b16 v{t0}, v{vGr+c} offset:{128*c}")
    a(f"""
    ; this wave's entries -> one-hot word, (e, e), source node
    s_lshl_b32 s{S_K}, s{S_NT}, 4
    s_waitcnt lgkmcnt(0)""")
    for c in range(4): conv(c)
    a(f"""
    s_sub_u32 s{S_J}, s{S_K}, 256
    s_cbranch_scc1 K_few""")
    for c in range(4): put(c)
    a(f"""
    s_bfm_b64 exec, s{S_J}, 0
    s_cbranch_execz K_put""")
    conv(4); put(4)
    a(f"""
    s_branch K_put
K_few:""")
    for c in range(4):
        a(f"    s_mov_b64 exec, -1\n    v_cmp_gt_i32 vcc, s{S_K}, v{L}\n    s_sub_u32 s{S_K}, s{S_K}, 64\n    s_mov_b64 exec, vcc")
        put(c)
    pcode = (4 << 3*thr[0]) | (3 << 3*thr[1]) | (2 << 3) | (1 << 6)
    assert 9 >= thr[0] > thr[1] > 2
    a(f"""
K_put:
    s_mov_b64 exec, -1
    s_lshl_b32 s{S_C}, s{S_B}, 9
    s_add_u32 s{S_C}, s{S_C}, {L_QT}
    v_add_u32 v{V_AQ}, s{S_C}, v{t1}
    v_lshrrev_b32 v{t4}, 7, v{V_INCA}
    v_mad_u32_u24 v{V_AENT}, v{t4}, s{S_A}, v{V_AENT}""")
    for h in ent_reads(0) + q_reads() + idx_reads(32): a(h)
    a(f"""
    s_add_u32 s{S_C}, s{S_B}, s{S_SLOT}
    s_mul_i32 s{S_C}, s{S_C}, {ST_STRIDE}
    s_add_u32 s{S_C}, s{S_C}, {L_ST}
    v_add_u32 v{V_AS}, s{S_C}, v{t1}
    v_add_u32 v{V_AQ}, 0x200, v{V_AQ}
    ; jump table: slot of the variant, entry inside it (priority steps near the end), exit at lane nt
    v_sub_u32 v{t0}, s{S_NT}, v{L}
    s_movk_i32 s{S_C}, {VAR_SIZE}
    s_mov_b32 s{S_D}, {pcode:#x}
    v_cmp_eq_u32 vcc, 0, v{t0}
    v_min_u32 v{t0}, 10, v{t0}
    v_mad_u32_u24 v{t4}, v{vBk}, s{S_C}, v{vJ0}
    v_mul_u32_u24 v{t0}, 3, v{t0}
    v_bfe_u32 v{t0}, s{S_D}, v{t0}, 3
    v_mov_b32 v{t3}, K_exit - K_vbase
    v_mad_i32_i24 v{t4}, v{t0}, -8, v{t4}
    v_cndmask_b32 v{t4}, v{t4}, v{t3}, vcc
    ds_bpermute_b32 v{V_TAB}, v{t1}, v{t4} offset:4
    s_mov_b32 s{S_K}, 1
    v_readlane_b32 s{S_J}, v{t4}, 0
    s_mov_b64 vcc, 0
    s_setprio 3
    s_waitcnt vmcnt(0)""")
    stamp(a, 12)
    for h in tr_reads(0): a(h)
    a(f"""
    s_add_u32 s{S_J}, s{S_J}, s{S_PC}
    s_addc_u32 s{S_J+1}, s{S_PC+1}, 0
    s_waitcnt lgkmcnt(0)""")
    a(small(0, 0))
    for h in dma_ops(): a(h)
    a(small(0, 1))
    a(f"    v_lshl_or_b32 v{V_TAB}, v{V_TAB}, 16, v{t4}")
    a("    s_nop 9")
    stamp(a, 13); stamp(a, 14, True)
    a(f"    s_setpc_b64 {sr(S_J,2)}")
    a(f".p2align 6")
    a(f"K_vbase:")
    for s_ in range(2):
        for b in [None] + list(range(8)):
            tile_variant(a, s_, b)
    a(f".p2align 3")
    a(f"K_exit:")
    stamp(a, 15); stamp(a, 16, True)
    flush1(a)
    a("    s_nop 0")
    flush2(a)
    a(f"""
    v_cmp_eq_f32 vcc, 0, v{V_MN}
    s_cbranch_vccz K_join
    ; a denominator left the f32 range: redo this bin on the exact slow path
    v_mov_b32 v65, {L_FLAG}
    ds_write_b32 v65, v65
K_join:
    s_cmp_ge_u32 s{S_WAVE}, 7
    s_cbranch_scc1 K_st2a
    ds_read_b64 v[102:103], v{E_XR} offset:{L_RW}
    s_lshl_b32 s{S_A}, s{S_N0}, 7
    s_add_u32 s{S_RT}, s{S_OUT}, s{S_A}
    s_addc_u32 s{S_RT+1}, s{S_OUT+1}, 0
    s_lshl_b32 s{S_RT+2}, s{S_NN}, 7
    s_mov_b32 s{S_RT+3}, 0x00020000
    s_movk_i32 s{S_C}, 0x207
    s_mov_b32 s{S_A}, 1
    v_mov_b32 v96, {NLN2:#x}
    v_mov_b32 v98, {L_Z2}
    s_lshl_b32 s{S_B}, s{S_NN}, 3
    v_cmp_gt_u32 {mask(0)}, s{S_B}, v{E_XR}
    s_waitcnt lgkmcnt(0)
    v_lshrrev_b32 v{E_XR}, 16, v102
    v_add_u32_sdwa v{E_ROW}, v102, v{E_NX} {SD} src0_sel:WORD_0 src1_sel:DWORD
    v_cmp_lt_u32 vcc, 0, v{E_XR}
    v_add_u32 v{E_NX}, {OF_STRIDE}, v{E_ROW}
    v_cndmask_b32 v{E_ROW}, v98, v{E_ROW}, {mask(0)}""")
    for q in range(4):
        a(f"    v_pk_mul_f32 {vr(E_DB[q],2)}, {vr(E_DB[q],2)}, v[102:103] op_sel:[0,1]")
    a(f"""
    v_cndmask_b32 v{E_R2}, v98, v{E_NX}, vcc
    s_cmp_ge_u32 s{S_WAVE}, 4
    s_cbranch_scc1 K_st2a
    ; ================= output, stage 1: products of the sum rows with w2""")
    for ot in range(4):
        for ks in range(4):
            for h in range(2):
                a(f"    ds_read_b64_tr_b16 {vr(16*ot+4*ks+2*h,2)}, v{E_W2} offset:{2048*ks+256*h+64*(ot>>1)+8*(ot&1)}")
    a(f"""
    s_waitcnt lgkmcnt(0)
    s_barrier""")
    stamp(a, 17)
    for ks in range(4):
        a(f"    ds_read_b128 {vr(64+4*ks,4)}, v{E_SR} offset:{64*ks}")
    def mf(ot, ks):
        d = vr(80 + 4*ot, 4)
        a(f"    v_mfma_f32_16x16x32_bf16 {d}, {vr(16*ot+4*ks,4)}, {vr(64+4*ks,4)}, {'0' if ks == 0 else d}")
    for ks in range(4):
        a(f"    s_waitcnt lgkmcnt({3-ks})")
        mf(0, ks); mf(1, ks)
    for ks in range(4):
        mf(2, ks); mf(3, ks)
    a(f"""
    ds_write_b128 v{E_OW}, v[80:83]
    ds_write_b128 v{E_OW}, v[84:87] offset:16
    s_nop 4
    ds_write_b128 v{E_OW}, v[88:91] offset:128
    ds_write_b128 v{E_OW}, v[92:95] offset:144
    s_waitcnt lgkmcnt(0)
    s_branch K_st2b
K_st2a:
    s_waitcnt lgkmcnt(0)
    s_barrier                                ; B9
K_st2b:
    s_cmp_ge_u32 s{S_WAVE}, 7
    s_barrier
    s_cbranch_scc1 K_fin
    ds_read_b128 v[64:67], v{E_ROW}
    ds_read_b128 v[68:71], v{E_ROW} offset:16
K_rows:
    ds_read_b128 v[72:75], v{E_R2}
    ds_read_b128 v[76:79], v{E_R2} offset:16
    v_cmp_lt_u32 vcc, s{S_A}, v{E_XR}
    v_add_u32 v{E_NX}, {OF_STRIDE}, v{E_NX}
    s_add_u32 s{S_A}, s{S_A}, 1
    s_waitcnt lgkmcnt(0)""")
    for q in range(4):
        a(f"    v_pk_add_f32 {vr(64+2*q,2)}, {vr(64+2*q,2)}, {vr(72+2*q,2)}")
    a(f"""
    v_cndmask_b32 v{E_R2}, v98, v{E_NX}, vcc
    s_cbranch_vccnz K_rows""")
    for q in range(4):
        a(f"    v_pk_fma_f32 {vr(64+2*q,2)}, {vr(64+2*q,2)}, v[96:97], {vr(E_DB[q],2)} op_sel_hi:[1,0,1]")
    for q in range(4):
        a(f"    v_cvt_pk_bf16_f32 v{72+q}, v{64+2*q}, v{65+2*q}")
    a(f"""
    buffer_store_dwordx4 v[72:75], v{E_OUT}, {sr(S_RT,4)}, 0 offen sc1
    ; a non-finite sum makes every output of its node non-finite: redo this bin on the exact slow path
    v_cmp_class_f32 vcc, v64, s{S_C}
    s_cbranch_vccz K_fin
    v_mov_b32 v65, {L_FLAG}
    ds_write_b32 v65, v65
K_fin:
    v_mov_b32 v65, {L_FLAG}
    s_waitcnt lgkmcnt(0)
    s_barrier                                ; B10
    ds_read_b32 v64, v65
    s_waitcnt lgkmcnt(0)
    v_cmp_ne_u32 vcc, 0, v64
    {"" if "novar" in OPT or "nodma" in OPT else "s_cbranch_vccnz K_slow"}""")
    if DIAG:
        a("    s_waitcnt vmcnt(0)")
        stamp(a, 18); stamp(a, 19, True)
        a(f"""
    s_getreg_b32 s{S_A}, hwreg(HW_REG_XCC_ID, 0, 4)
    v_writelane_b32 v{V_STAMP}, s{S_A}, 30
    v_writelane_b32 v{V_STAMP}, s{S_NT}, 21
    s_lshl_b32 s{S_A}, s2, 4
    s_add_u32 s{S_A}, s{S_A}, s{S_WAVE}
    s_lshl_b32 s{S_A}, s{S_A}, 8
    s_add_u32 s{S_A}, s{S_A}, {WS_STAMP}
    v_lshl_add_u32 v64, v{L}, 2, s{S_A}
    s_mov_b64 exec, 0xffffffff
    global_store_dword v64, v{V_STAMP}, {sr(S_WS,2)}
    global_store_dword v64, v{V_TRACE}, {sr(S_WS,2)} offset:128""")
    if optval("clk", ""):
        a(f"""
    s_lshl_b32 s{S_A}, s2, 4
    s_add_u32 s{S_A}, s{S_A}, s{S_WAVE}
    s_cmp_lg_u32 s{S_A}, {16*int(optval("wg", "100"))}
    s_cbranch_scc1 K_end
    s_lshl_b32 s{S_A}, s{S_TAG+1}, 7
    s_lshr_b32 s{S_B}, s{S_TAG}, 25
    s_or_b32 s{S_A}, s{S_A}, s{S_B}
    v_cvt_f32_u32 v64, s98
    v_cvt_f32_u32 v65, s99
    v_rcp_f32 v64, v64
    s_nop 1
    v_mul_f32 v64, v64, v65
    v_subrev_f32 v64, {f32bits(15.0):#x}, v64
    v_mul_f32 v64, {f32bits(float(optval("mul", "100"))):#x}, v64
    v_cvt_u32_f32 v64, v64
    s_nop 1
    v_readfirstlane_b32 s{S_B}, v64
    s_min_u32 s{S_B}, s{S_B}, 20000
    {f's_sub_u32 s{S_B}, {optval("clk", "")}, s{S_B}' if "neg" in OPT else f's_add_u32 s{S_B}, s{S_B}, {optval("clk", "")}'}
K_spin5:
    s_memrealtime s[98:99]
    s_waitcnt lgkmcnt(0)
    s_sub_u32 s98, s98, s{S_A}
    s_cmp_lt_u32 s98, s{S_B}
    s_cbranch_scc1 K_spin5""")
    if "endamp" in OPT:
        a(f"""
    s_waitcnt vmcnt(0)
    s_memrealtime s[100:101]
    s_lshl_b32 s{S_A}, s2, 4
    s_add_u32 s{S_A}, s{S_A}, s{S_WAVE}
    s_cmp_lg_u32 s{S_A}, {16*int(optval("wg", "100"))}
    s_cbranch_scc1 K_end
    s_lshl_b32 s{S_A}, s{S_TAG+1}, 7
    s_lshr_b32 s{S_B}, s{S_TAG}, 25
    s_or_b32 s{S_A}, s{S_A}, s{S_B}
    s_waitcnt lgkmcnt(0)
    s_sub_u32 s{S_B}, s100, s98
    s_min_u32 s{S_B}, s{S_B}, 2000
    s_mul_i32 s{S_B}, s{S_B}, 20
    s_add_u32 s{S_B}, s{S_B}, 3000
K_spin4:
    s_memrealtime s[98:99]
    s_waitcnt lgkmcnt(0)
    s_sub_u32 s98, s98, s{S_A}
    s_cmp_lt_u32 s98, s{S_B}
    s_cbranch_scc1 K_spin4""")
    if optval("fix", "") != "":
        a(f"""
    s_lshl_b32 s{S_A}, s2, 4
    s_add_u32 s{S_A}, s{S_A}, s{S_WAVE}
    s_cmp_lg_u32 s{S_A}, 1600
    s_cbranch_scc1 K_end
    s_lshl_b32 s{S_A}, s{S_TAG+1}, 7
    s_lshr_b32 s{S_B}, s{S_TAG}, 25
    s_or_b32 s{S_A}, s{S_A}, s{S_B}
K_spin3:
    s_memrealtime s[98:99]
    s_waitcnt lgkmcnt(0)
    s_sub_u32 s98, s98, s{S_A}
    s_cmp_lt_u32 s98, {optval("fix", "")}
    s_cbranch_scc1 K_spin3""")
    if optval("amp", "") != "":
        a(f"""
    s_waitcnt vmcnt(0)
    s_cmp_lg_u32 s{S_WAVE}, {optval("aw", "0")}
    s_cbranch_scc1 K_end
    s_lshl_b32 s{S_A}, s{S_TAG+1}, 7
    s_lshr_b32 s{S_B}, s{S_TAG}, 25
    s_or_b32 s{S_A}, s{S_A}, s{S_B}""")
        if optval("amp", "") == "99":
            a("    s_memrealtime s[98:99]\n    s_waitcnt lgkmcnt(0)")
        a(f"""
    {f"s_mov_b32 s{S_B}, s98" if "rel" in OPT else f"s_sub_u32 s{S_B}, s98, s{S_A}"}
    s_mov_b64 exec, 1
    v_mov_b32 v64, 0
    v_mov_b32 v65, s{S_B}
    v_mov_b32 v66, 1
    {"v_sub_u32 v65, 0x1000, v65" if "min" in OPT else ""}
    global_atomic_{"add" if "avg" in OPT else "umax"} v64, v65, {sr(S_DBG,2)} offset:128 sc1
    s_sub_u32 s{S_C}, s100, s{S_A}
    v_mov_b32 v68, s{S_C}
    {f"global_atomic_add v64, v68, {sr(S_DBG,2)} offset:144 sc1" if optval("sel", "") else ""}
    s_waitcnt vmcnt(0)
    global_atomic_add v67, v64, v66, {sr(S_DBG,2)} offset:136 sc0 sc1
    s_waitcnt vmcnt(0)
    v_readfirstlane_b32 s{S_B}, v67
    s_cmp_lg_u32 s{S_B}, 255
    s_cbranch_scc1 K_end
    global_atomic_add v67, v64, v64, {sr(S_DBG,2)} offset:128 sc0 sc1
    global_atomic_add v68, v64, v64, {sr(S_DBG,2)} offset:144 sc0 sc1
    s_waitcnt vmcnt(0)
    v_readfirstlane_b32 s{S_C}, v68
    s_cmp_lt_u32 s{S_C}, {390*256}
    {"s_cbranch_scc0 K_end" if optval("sel", "") == "lo" else ""}
    {"s_cbranch_scc1 K_end" if optval("sel", "") == "hi" else ""}
    v_readfirstlane_b32 s{S_B}, v67
    s_mul_i32 s{S_B}, s{S_B}, {optval("mul", "5")}
    {f"s_lshr_b32 s{S_B}, s{S_B}, 8" if "avg" in OPT else ""}
    s_min_u32 s{S_B}, s{S_B}, {optval("base", "0") if "neg" in OPT else 200000}
    {f's_sub_u32 s{S_B}, {optval("base", "0")}, s{S_B}' if "neg" in OPT else f's_add_u32 s{S_B}, s{S_B}, {optval("base", "0")}'}
K_spin2:
    s_memrealtime s[98:99]
    s_waitcnt lgkmcnt(0)
    s_sub_u32 s98, s98, s{S_A}
    s_cmp_lt_u32 s98, s{S_B}
    s_cbranch_scc1 K_spin2""")
    a(f"""
K_end:
    s_endpgm
K_slow:
    ; ================= exact path without hand-offs: scan all edges for this bin
    s_setprio 0
    s_mov_b32 s16, s{S_N0}
    s_mov_b32 s17, s{S_NN}
    s_mov_b32 s18, s{S_WAVE}""")
    gen_slow(a, 16, 17, 18, L, NLOG2E, NW=NW)
    a("    s_endpgm")

def main():
    global DIAG
    out = sys.argv[1]
    DIAG = "diag" in sys.argv[2:] or "lite" in sys.argv[2:]
    OPT.update(sys.argv[2:])
    a = Asm()
    a(f"""; Edge-featured MPNN layer: out[n] = sum_(e: dst=n) (silu([x[src],x[dst],e] w1 + b1) w2 + b2)
; kernarg: x, e_attr, src, dst, w1, b1, w2, b2, out, debug, ws (8 bytes each)
; @launch grid=(256,1,1) block=({NT_},1,1) lds={L_END}
.amdgcn_target "amdgcn-amd-amdhsa--gfx950"
.text""")
    gen_kernel(a)
    a(f"""
.section .rodata,"a"
.p2align 6
.amdhsa_kernel {KNAME}
  .amdhsa_next_free_vgpr {NVGPR}
  .amdhsa_next_free_sgpr 102
  .amdhsa_accum_offset {NVGPR}
  .amdhsa_group_segment_fixed_size 0
  .amdhsa_kernarg_size 88
  .amdhsa_user_sgpr_count 2
  .amdhsa_user_sgpr_kernarg_segment_ptr 1
  .amdhsa_system_sgpr_workgroup_id_x 1
  .amdhsa_float_denorm_mode_32 3
.end_amdhsa_kernel""")
    open(out, "w").write(a.text())

if __name__ == "__main__":
    main()
```

```python
import sys, struct
from slow import gen_slow

NAME = "standalone__edge_featured_mpnn_mpnn__graph"
KNAME = NAME + "_kernel"
N_NODES = 12500
NB = 49
NW = 12
NT_ = 64 * NW
MAINE = 4 * NT_
XTRA = 53
RSTRIDE = 16640

WS_TAB = 0x420000
WS_P = 0x4C0000
WS_STAMP = 0xA00000

L_Z = 128
L_H2 = 272
L_FLAG = 536
L_NONCE = 544
L_Z2 = 2048
OF_STRIDE = 272
L_SX = 1296
ENT_CAP = 3472
LSZ = 14080
L_ZA = 4096 - 144
L_G = 4096
L_RL = L_G + LSZ
L_ST = L_RL + LSZ
ST_STRIDE = 288
L_RW = L_ST + 19968
L_IX = L_ST + 20480
L_QT = (L_IX + LSZ // 2 + 255) // 256 * 256 + 512
L_XS = L_QT + 49 * 512
assert LSZ % 256 == 0 and (ENT_CAP + 48) * 4 == LSZ
L_W2 = L_XS + NW * 4096
L_B2 = L_W2 + 16384
L_END = L_B2 + 256
L_RS = L_ST
L_H1 = L_ST + 16640
L_OFF = L_H1 + 1024
L_W1 = L_XS
L_WC = L_XS + 32768
L_PS = L_WC + 512
L_XR = L_W2
PS_STRIDE = 272
assert L_XS % 256 == 0 and L_END <= 163840
assert L_H1 + 3072 <= L_RW and 64 * ST_STRIDE <= 19968 and L_OFF + 1024 < 65536 and L_PS + 56 * PS_STRIDE <= L_W2

def f32bits(x):
    return struct.unpack("<I", struct.pack("<f", x))[0]
LOG2E = 1.4426950408889634
NLOG2E = f32bits(-LOG2E)
NLN2 = f32bits(-0.6931471805599453)
PADREC = 0x3FFF
POLL_MAX = 4000

class Asm:
    def __init__(self):
        self.l = []
    def __call__(self, s=""):
        for x in s.strip("\n").split("\n"):
            if x.strip():
                self.l.append(x.rstrip())
    def text(self):
        return "\n".join(self.l) + "\n"

def vr(a, n=1):
    return f"v{a}" if n == 1 else f"v[{a}:{a+n-1}]"
def sr(a, n=1):
    return f"s{a}" if n == 1 else f"s[{a}:{a+n-1}]"

DIAG = False
OPT = set()
def optval(prefix, default):
    for o in OPT:
        if o.startswith(prefix):
            return o[len(prefix):]
    return default

V_D = 0; V_E = 64; V_A5 = 96; V_B5 = 98; V_ND = 102; V_T = 110; V_R = 114; V_O = 118; V_IX = 132
V_AA = 140; V_AIDX = 141; V_AENT = 142; V_AQ = 143; V_INCA = 144; V_AS = 145; V_MN = 146; V_PSEL = 147
V_PF = 126; V_TAB = 148; V_CNT = 149; V_S = 150; V_P = 151; V_LANE = 154; V_TID = 155
V_J = 156; V_HH = 157
E_W2 = 147; E_SR = 164; E_OW = 165
E_ROW = 100; E_XR = 125; E_NX = 124; E_R2 = 101; E_OUT = 127; E_DB = [128, 130, 122, 152]
V_STAMP = 167; V_TRACE = 166
NVGPR = 168
S_X = 4; S_E = 6; S_SRC = 8; S_DST = 10; S_W1 = 12; S_B1 = 14; S_W2 = 16; S_B2 = 18; S_OUT = 20; S_DBG = 22; S_WS = 24
S_BIN = 26; S_N0 = 27; S_NN = 28; S_WAVE = 29; S_MODE = 30; S_K = 31; S_PC = 32; S_J = 34
S_RX = 36; S_RT = 40; S_RR = 44; S_P = 48; S_JJ = 52
S_T0 = 56; S_NT = 57; S_TT = 58; S_SLOT = 59; S_A = 60; S_B = 61; S_C = 62; S_D = 63; S_TAG = 64
S_M = 66
def mask(k): return sr(S_M + 2*k, 2)

def stamp(a, k, real=False):
    if optval("dly", "") and int(optval("dly", "")) == k: a("    s_sleep 10")
    if optval("clk", ""):
        if k == 13: a("    s_memrealtime s[98:99]\n    s_memtime s[100:101]\n    s_waitcnt lgkmcnt(0)\n    s_mov_b32 s99, s100")
        if k == 15: a("    s_memrealtime s[96:97]\n    s_memtime s[100:101]\n    s_waitcnt lgkmcnt(0)\n    s_sub_u32 s98, s96, s98\n    s_sub_u32 s99, s100, s99")
        return
    if "endamp" in OPT:
        if k == 17: a("    s_memrealtime s[98:99]\n    s_waitcnt lgkmcnt(0)")
        return
    if optval("amp", "") != "":
        if int(optval("amp", "")) == k:
            a("    s_memrealtime s[98:99]\n    s_waitcnt lgkmcnt(0)")
            if "rel" in OPT: a(f"    s_sub_u32 s98, s98, s{S_TAG}")
        if k == 6 and optval("sel", ""):
            a("    s_memrealtime s[100:101]\n    s_waitcnt lgkmcnt(0)")
        return
    if not DIAG:
        return
    if "lite" in OPT and k not in (19,):
        return
    a(f"    {'s_memrealtime' if real else 's_memtime'} s[100:101]")
    a(f"    s_waitcnt lgkmcnt(0)")
    a(f"    v_writelane_b32 v{V_STAMP}, s100, {k}")

def wave_scan(a, v):
    for sh in (1, 2, 4, 8):
        a(f"    s_nop 1")
        a(f"    v_add_u32_dpp v{v}, v{v}, v{v} row_shr:{sh} row_mask:0xf bank_mask:0xf")
    a(f"    s_nop 1")
    a(f"    v_add_u32_dpp v{v}, v{v}, v{v} row_bcast:15 row_mask:0xa bank_mask:0xf")
    a(f"    s_nop 1")
    a(f"    v_add_u32_dpp v{v}, v{v}, v{v} row_bcast:31 row_mask:0xc bank_mask:0xf")

SD = "dst_sel:DWORD dst_unused:UNUSED_PAD"

def dreg(s, c): return V_D + 32*s + 16*c
def small(s, c):
    d = vr(dreg(s, c), 16)
    return f"    v_mfma_f32_32x32x8_bf16 {d}, {vr(V_A5,2)}, {vr(V_B5+2*c,2)}, {d}"
def tr_reads(s):
    return [f"    ds_read_b64_tr_b16 {vr(dreg(s,c)+2*u,2)}, v{V_AA} offset:{512*u+128*c}" for u in range(8) for c in range(2)]
def ent_reads(off):
    return [f"    ds_read_b32 v{V_A5}, v{V_AENT} offset:{off}",
            f"    ds_read_b32 v{V_A5+1}, v{V_AENT} offset:{off + L_RL - L_G}"]
def q_reads():
    return [f"    ds_read_b32 v{V_B5+2*c}, v{V_AQ} offset:{256*c}" for c in range(2)]
def idx_reads(off):
    return [f"    ds_read_u16 v{V_IX+2*m}, v{V_AIDX} offset:{off + 8*m}" for m in range(4)]
def dma_ops():
    if "nodma" in OPT: return []
    return [f"    buffer_load_dwordx4 {vr(V_IX+2*m,2)}, {sr(S_RX,4)}, s{S_P+m} idxen offen offset:{1024*m} sc1 lds" for m in range(4)]

def flush1(a):
    for c in range(2):
        D = V_ND + 4*c + 2
        a(f"    v_rcp_f32 v{V_R+2*c}, v{D}")
        a(f"    v_rcp_f32 v{V_R+2*c+1}, v{D+1}")
def flush2(a):
    for c in range(2):
        a(f"    v_pk_mul_f32 {vr(V_O+2*c,2)}, {vr(V_ND+4*c,2)}, {vr(V_R+2*c,2)}")
    for c in range(2):
        a(f"    v_min3_f32 v{V_MN}, v{V_MN}, v{V_R+2*c}, v{V_R+2*c+1}")
    for c in range(2):
        a(f"    v_add_f32 v{V_O+2*c}, v{V_O+2*c}, v{V_O+2*c+1}")
    a(f"    v_cvt_pk_bf16_f32 v{V_O}, v{V_O}, v{V_O+2}")
    a(f"    ds_write_b32 v{V_AS}, v{V_O}")

def y_phase(a, s, b, us=range(8), nsrc=None):
    if nsrc is None: nsrc = [V_ND + 4*c for c in range(2)]
    a(".p2align 3")
    for u in us:
        if u == b:
            flush1(a)
            for c in range(2):
                a(f"    v_pk_add_f32 {vr(V_ND+4*c+2,2)}, {vr(V_E+16*c+2*u,2)}, 1.0 op_sel_hi:[1,0]")
            flush2(a)
            for c in range(2):
                p = dreg(s, c) + 2*u
                if u == 7:
                    a(f"    v_pk_mov_b32 {vr(V_ND+4*c,2)}, {vr(p,2)}, {vr(p,2)} op_sel:[0,1]")
                else:
                    nsrc[c] = p
            continue
        for c in range(2):
            a(f"    v_pk_fma_f32 {vr(V_T+2*c,2)}, {vr(dreg(s,c)+2*u,2)}, {vr(V_ND+4*c+2,2)}, {vr(nsrc[c],2)}")
        for c in range(2):
            D = V_ND + 4*c + 2
            a(f"    v_pk_fma_f32 {vr(D,2)}, {vr(D,2)}, {vr(V_E+16*c+2*u,2)}, {vr(D,2)}")
        for c in range(2):
            a(f"    v_pk_fma_f32 {vr(V_ND+4*c,2)}, {vr(nsrc[c],2)}, {vr(V_E+16*c+2*u,2)}, {vr(V_T+2*c,2)}")
            nsrc[c] = V_ND + 4*c

VAR_SIZE = 960 if "clock" not in sys.argv else 1024
ENTRY = 32
def tile_variant(a, s, b):
    name = f"{s}{'N' if b is None else b}"
    vi = 9*s + (0 if b is None else b + 1)
    skipl = "noskip" not in OPT
    a(f".org K_vbase + {VAR_SIZE*vi}, 0")
    a(f"""
    s_setprio 2
    s_branch K_var{name}
    s_setprio 1
    s_branch K_var{name}
    s_mov_b64 vcc, {-1 if skipl else 0}                        ; last tile: nothing to prepare
    s_branch K_var{name}
    s_setprio 0
    s_mov_b32 s{S_RX+2}, 0                   ; two tiles left: nothing more to gather""")
    a(f"K_var{name}:")
    bnd = b is not None
    if "trace" in OPT and s == 0:
        a(f"    s_memtime s[100:101]\n    s_mov_b32 s{S_A}, m0\n    s_mov_b32 m0, s{S_K}\n    s_waitcnt lgkmcnt(0)")
        a(f"    v_writelane_b32 v{V_TRACE}, s100, m0")
        if "clock" in OPT:
            a(f"    s_memrealtime s[100:101]\n    s_add_u32 m0, m0, 1\n    s_waitcnt lgkmcnt(0)\n    v_writelane_b32 v{V_TRACE}, s100, m0")
        a(f"    s_mov_b32 m0, s{S_A}")
    es = [f"    v_exp_f32 v{V_E+16*c+2*u+h}, v{dreg(s,c)+2*u+h}" for u in range(8) for c in range(2) for h in range(2)]
    head = ent_reads(64 + 64*s) + (q_reads() if bnd else []) + tr_reads(s ^ 1) + idx_reads(64 + 32*s)
    plain = [f"    v_readlane_b32 s{S_JJ}, v{V_TAB}, s{S_K}"] if s == 0 else \
            [f"    v_add_u32 v{V_AENT}, v{V_INCA}, v{V_AENT}", f"    v_add_u32 v{V_AIDX}, 64, v{V_AIDX}"]
    if bnd: plain.append(f"    v_add_u32 v{V_AQ}, 0x200, v{V_AQ}")
    jump = [f"    s_and_b32 s{S_J}, s{S_JJ}, 0xffff", f"    s_add_u32 s{S_K}, s{S_K}, 2"] if s == 0 else [f"    s_lshr_b32 s{S_J}, s{S_JJ}, 16"]
    jump += [f"    s_add_u32 s{S_J}, s{S_J}, s{S_PC}", f"    s_addc_u32 s{S_J+1}, s{S_PC+1}, 0"]
    late = optval("late", "4_6")
    if late:
        ua, ub = [int(x) for x in late.split("_")]
        pre = []
        if optval("hs", "") == "1":
            pre = [h for h in head if "tr_b16" not in h]; head = [h for h in head if "tr_b16" in h]
        if optval("hs", "") == "2":
            head = [h for h in head if "tr_b16" in h] + [h for h in head if "tr_b16" not in h]
        for h in pre: a(h)
        xs = int(optval("xs", str(ub)))
        for e in es[:4*xs]: a(e)
        nsrc = [V_ND + 4*c for c in range(2)]
        y_phase(a, s, b, range(0, ua), nsrc)
        if skipl: a(f"    s_cbranch_vccnz K_va{name}")
        a("    s_waitcnt vmcnt(0)")
        for h in head: a(h)
        a(f".p2align 3\nK_va{name}:")
        for e in es[4*xs:4*ub]: a(e)
        y_phase(a, s, b, range(ua, ub), nsrc)
        if skipl: a(f"    s_cbranch_vccnz K_vb{name}")
        a(f"    s_waitcnt lgkmcnt(0)")
        if "mfirst" in OPT: a(small(s ^ 1, 0))
        for h in dma_ops(): a(h)
        if "mfirst" not in OPT: a(small(s ^ 1, 0))
        a(f"K_vb{name}:")
        for e in es[4*ub:4*ub+4]: a(e)
        a(small(s ^ 1, 1))
        for e in es[4*ub+4:]: a(e)
        for p_ in plain + jump: a(p_)
        y_phase(a, s, b, range(ub, 8), nsrc)
    else:
        n1 = int(optval("n1_", "16"))
        a("    s_waitcnt vmcnt(0)")
        for h in head: a(h)
        for e in es[:n1-2]: a(e)
        for p_ in plain: a(p_)
        for e in es[n1-2:n1]: a(e)
        a(f"    s_waitcnt lgkmcnt(0)")
        for h in dma_ops(): a(h)
        a(small(s ^ 1, 0))
        for e in es[n1:n1+4]: a(e)
        a(small(s ^ 1, 1))
        for e in es[n1+4:]: a(e)
        for p_ in jump: a(p_)
        y_phase(a, s, b)
    if bnd:
        a(f"    v_add_u32 v{V_AS}, {ST_STRIDE}, v{V_AS}")
    a(f"    s_setpc_b64 {sr(S_J,2)}")

def gen_kernel(a):
    L = V_LANE; T = V_TID; J = V_J; HH = V_HH
    t0, t1, t2, t3, t4, t5 = 158, 159, 160, 161, 162, 163
    step = NT_ * 16
    vDst = 0
    vSrc = 8
    vEa = 14
    tc = 17
    vTg = 18
    vBa = 20
    vRk = 26
    vWp = 31
    vOf = 32
    vC8 = 37; vWa = 38; vTa = 39
    vX = 40
    vWf = 56
    vPad = 56
    vAc = 72
    vTb = 88
    vXa = 88
    vB1 = 96
    vCl = 120
    v4k = 125
    vPf = 126
    vJ0 = V_R
    vZ = 128
    vG4 = 164; vSb = 165
    vS = V_S; vP = V_P
    a(f"""
.p2align 8
.globl {KNAME}
.type {KNAME},@function
{KNAME}:
    s_cmp_ge_u32 s2, 256
    s_cbranch_scc1 K_end
    s_load_dwordx8 s[4:11], s[0:1], 0        ; x, e_attr, src, dst
    s_load_dwordx8 s[12:19], s[0:1], 32      ; w1, b1, w2, b2
    s_load_dwordx4 s[20:23], s[0:1], 64
    s_load_dwordx2 s[24:25], s[0:1], 80      ; ws
    s_memrealtime {sr(S_TAG,2)}
    s_getpc_b64 {sr(S_J,2)}
    s_lshr_b32 s3, s2, 3
    s_lshl_b32 s3, s3, 7
    v_lshl_add_u32 v2, v0, 12, s3
    v_cmp_gt_u32 vcc, 7, v0
    s_and_saveexec_b64 {sr(S_PC,2)}, vcc
    s_cbranch_execz K_ncp
    global_load_dword v5, v2, {sr(S_J,2)}
K_ncp:
    s_mov_b64 exec, {sr(S_PC,2)}
    v_lshrrev_b32 v1, 6, v0
    v_mov_b32 v{T}, v0
    v_readfirstlane_b32 s{S_WAVE}, v1
    v_and_b32 v{L}, 63, v0
    s_mul_i32 s3, s2, {MAINE*4}
    v_lshl_add_u32 v13, v0, 4, s3            ; byte offset into src/dst
    v_lshrrev_b32 v25, 1, v13
    s_and_b32 s{S_BIN}, s2, 7
    s_lshl_b32 s{S_BIN}, s{S_BIN}, 5
    s_lshr_b32 s3, s2, 3
    s_add_u32 s{S_BIN}, s{S_BIN}, s3
    s_mul_i32 s{S_N0}, s{S_BIN}, {NB}
    s_sub_u32 s{S_NN}, {N_NODES}, s{S_N0}
    s_min_u32 s{S_NN}, s{S_NN}, {NB}
    v_and_b32 v{J}, 31, v0
    v_bfe_u32 v{HH}, v0, 5, 1
    s_mov_b32 s{S_MODE}, 0
    v_mov_b32 v{vZ}, 0
    v_mov_b32 v{vZ+1}, 0
    v_mov_b32 v{vZ+2}, 0
    v_mov_b32 v{vZ+3}, 0
    v_lshlrev_b32 v{t2}, 2, v0""")
    if DIAG:
        a(f"    v_mov_b32 v{V_STAMP}, 0\n    v_mov_b32 v{V_TRACE}, 0")
        stamp(a, 0, True); stamp(a, 1)
    NTE = optval("e_", "").replace("_", " ")
    pdel = optval("pdel", "")
    sp = optval("src_", "post")
    SRCE = f"""
    global_load_dwordx4 {vr(vSrc,4)}, v13, {sr(S_SRC,2)} {NTE}
    global_load_dwordx2 {vr(vEa,2)}, v25, {sr(S_E,2)} {NTE}
"""
    a(f"""
    s_waitcnt lgkmcnt(0)
    global_load_dwordx4 {vr(vDst,4)}, v13, {sr(S_DST,2)} {NTE}
    {f"s_add_u32 s98, s{S_TAG}, 200" if optval("amp", "") == "1" else ""}
    {f"v_writelane_b32 v{V_STAMP}, s{S_TAG}, 0" if "lite" in OPT else ""}
""")
    stamp(a, 29)
    a(f"""
    ds_write_b32 v{t2}, v{vZ} offset:{L_H1}
    s_cmp_lg_u32 s{S_WAVE}, 11
    s_cbranch_scc1 K_ld1
    ; wave 11 also takes the 53 extra edges of this chunk
    s_mul_i32 s{S_A}, s2, {XTRA}
    s_add_u32 s{S_A}, s{S_A}, {256*MAINE}
    v_min_u32 v{t5}, {XTRA-1}, v{L}
    v_add_lshl_u32 v{t5}, v{t5}, s{S_A}, 2
    v_lshrrev_b32 v{t4}, 1, v{t5}
    global_load_dword v{vDst+4}, v{t5}, {sr(S_DST,2)}
    global_load_dword v{vSrc+4}, v{t5}, {sr(S_SRC,2)}
    global_load_ushort v{vEa+2}, v{t4}, {sr(S_E,2)}
K_ld1:""")
    if optval("b1_", "") == "first":
        a(f"""
    s_cmp_lg_u32 s{S_WAVE}, 10
    s_cbranch_scc1 K_ld0
    s_mov_b32 m0, {L_WC + 256}
    v_lshlrev_b32 v{t3}, 2, v{L}
    global_load_lds_dword v{t3}, {sr(S_B1,2)}
K_ld0:""")
    a(f"""
""")
    a(f"""
    ; workgroup 0, wave 9 publishes the hand-off tag of this launch (39 clock bits, never zero)
    s_lshl_b32 s{S_A}, s2, 4
    s_add_u32 s{S_A}, s{S_A}, s{S_WAVE}
    s_cmp_lg_u32 s{S_A}, 9
    s_cbranch_scc1 K_ldJ
    s_lshl_b32 s{S_A}, s{S_TAG}, 25
    s_or_b32 s{S_A}, s{S_A}, 1
    s_lshr_b64 {sr(S_TAG,2)}, {sr(S_TAG,2)}, 7
    v_mov_b32 v{t4}, s{S_A}
    v_mov_b32 v{t4+1}, s{S_TAG}
    s_mov_b64 exec, 1
    global_store_dwordx2 v{vZ}, {vr(t4,2)}, {sr(S_DBG,2)} sc1
    s_mov_b64 exec, -1
K_ldJ:""")
    if sp == "first": a(SRCE)
    if "stpost" in OPT: a("    s_waitcnt lgkmcnt(0)\n    s_barrier")
    a(f"""
    s_lshl_b32 s{S_A}, s{S_WAVE}, 11
    s_cmp_ge_u32 s{S_WAVE}, 8
    s_cbranch_scc1 K_stX
    ; waves 0..7 stage w1 rows 0..63 (64-byte blocks of a row swapped by row&3)
    s_add_u32 m0, s{S_A}, {L_W1}
    v_lshrrev_b32 v{t3}, 2, v{L}
    v_and_b32 v{t3}, 12, v{t3}
    v_xor_b32 v{t3}, v{t3}, v{L}
    v_lshl_add_u32 v{t5}, v{t3}, 4, s{S_A}
    global_load_lds_dwordx4 v{t5}, {sr(S_W1,2)}
    global_load_lds_dwordx4 v{t5}, {sr(S_W1,2)} offset:1024
    s_branch K_stJ
K_stX:
    ; waves 8..11 stage the x rows of this bin (16-byte pieces swizzled inside each row)
    s_mov_b32 s{S_RX}, s4
    s_mov_b32 s{S_RX+1}, s5
    s_mov_b32 s{S_RX+2}, {N_NODES*128}
    s_mov_b32 s{S_RX+3}, 0x00020000
    s_add_u32 m0, s{S_A}, {L_XR - 16384}
    s_lshl_b32 s{S_B}, s{S_N0}, 7
    s_add_u32 s{S_A}, s{S_A}, s{S_B}
    s_sub_u32 s{S_A}, s{S_A}, 16384
    v_lshrrev_b32 v{t3}, 4, v{L}
    v_xor_b32 v{t3}, v{t3}, v{L}
    v_lshl_add_u32 v{t3}, v{t3}, 4, s{S_A}
    v_xor_b32 v{t5}, 64, v{t3}
    buffer_load_dwordx4 v{t3}, {sr(S_RX,4)}, 0 offen {NTE} lds
    buffer_load_dwordx4 v{t5}, {sr(S_RX,4)}, 0 offen offset:1024 {NTE} lds
K_stJ:""")
    stamp(a, 27)
    if sp == "pre": a(SRCE)
    a(f"""
    {"" if "stpost" in OPT else "s_waitcnt lgkmcnt(0)"}
    {"" if "stpost" in OPT else "s_barrier                                ; B1: counters are zero"}
    v_mov_b32 v{vPad}, {PADREC}
    v_mov_b32 v{vPad+1}, {PADREC}
    v_mov_b32 v{vPad+2}, {PADREC}
    v_mov_b32 v{vPad+3}, {PADREC}
    v_lshlrev_b32 v{t2}, 4, v{T}
    ds_write_b128 v{t2}, {vr(vPad,4)} offset:{L_RL}
    s_cmp_ge_u32 s{S_WAVE}, 4
    s_cbranch_scc1 K_in1
    ds_write_b128 v{t2}, {vr(vZ,4)}
    ds_write_b128 v{t2}, {vr(vPad,4)} offset:{L_ST - 4096}
K_in1:
    s_cmp_lg_u32 s{S_WAVE}, 4
    s_cbranch_scc1 K_in2
    v_lshlrev_b32 v{t3}, 2, v{L}
    ds_write_b32 v{t3}, v{vZ} offset:{L_RL - 256}
K_in2:""")
    if sp == "post": a(SRCE)
    stamp(a, 28)
    a(f"""
""")
    w1late = "w1early" not in OPT
    ST2 = f"""
    s_cmp_ge_u32 s{S_WAVE}, 8
    s_cbranch_scc1 K_st2
    s_add_u32 m0, m0, 16384
    v_add_u32 v6, 0x4000, v6
    global_load_lds_dwordx4 v6, {sr(S_W1,2)}
    global_load_lds_dwordx4 v6, {sr(S_W1,2)} offset:1024
    s_branch K_st3
K_st2:
    s_mov_b32 m0, {L_WC}
    v_lshlrev_b32 v{t3}, 2, v{L}
    v_add_u32 v7, 0x8000, v{t3}
    global_load_lds_dword v7, {sr(S_W1,2)}
    {f"s_mov_b32 m0, {L_WC + 256}" if not optval("b1_", "") else ""}
    s_nop 0
    {f"global_load_lds_dword v{t3}, {sr(S_B1,2)}" if not optval("b1_", "") else f"global_load_lds_dword v7, {sr(S_W1,2)}"}
K_st3:"""
    a(f"    v_mov_b32 v6, v{t5}")
    if not w1late: a(ST2)
    tl = "1" if "nowpf" not in OPT else ""
    tk = 1 if tl else 0
    if tl:
        a(f"""
    ; the waves of a die pull the weights that are staged later into its L2, one line each
    s_lshr_b32 s{S_A}, s2, 3
    s_mul_i32 s{S_A}, s{S_A}, {NW}
    s_add_u32 s{S_A}, s{S_A}, s{S_WAVE}
    s_add_u32 s{S_B}, s{S_A}, 128            ; w1 lines 128..257
    s_mov_b64 {sr(S_J,2)}, {sr(S_W1,2)}
    s_sub_u32 s{S_A}, s{S_A}, 130
    s_cbranch_scc1 K_wp
    s_mov_b32 s{S_B}, s{S_A}                 ; w2 lines 0..127
    s_mov_b64 {sr(S_J,2)}, {sr(S_W2,2)}
    s_sub_u32 s{S_A}, s{S_A}, 128
    s_cbranch_scc1 K_wp
    s_and_b32 s{S_B}, s{S_A}, 1              ; b1 lines 0, 1
    s_mov_b64 {sr(S_J,2)}, {sr(S_B1,2)}
    s_cmp_lt_u32 s{S_A}, 2
    s_cbranch_scc1 K_wp
    s_mov_b32 s{S_B}, 0
    s_mov_b64 {sr(S_J,2)}, {sr(S_B2,2)}
K_wp:
    s_lshl_b32 s{S_B}, s{S_B}, 7
    v_mov_b32 v7, s{S_B}
    global_load_dword v5, v7, {sr(S_J,2)}""")
    a(f"""
    v_and_b32 v{vC8}, 3, v{L}
    v_lshlrev_b32 v{vC8}, 3, v{vC8}
    v_and_b32 v{t1}, 16, v{L}
    v_lshl_add_u32 v{vC8}, v{t1}, 1, v{vC8}  ; 8c + 32(g&1)
    s_lshr_b32 s{S_D}, s{S_WAVE}, 1          ; ct
    v_bfe_u32 v{t0}, v{L}, 2, 2
    v_xor_b32 v{t3}, s{S_D}, v{t0}
    v_lshlrev_b32 v{t3}, 6, v{t3}
    v_lshl_add_u32 v{t0}, v{HH}, 3, v{t0}
    v_lshl_add_u32 v{t0}, v{t0}, 8, v{t3}
    v_add_u32 v{vWa}, {L_W1}, v{t0}          ; k row 8*hh + r, column block ct^r
    v_and_b32 v{vWp}, 1, v{L}
    v_lshl_add_u32 v{vWp}, v{vWp}, 5, v{vWa}
    v_and_b32 v{t3}, 16, v{L}
    v_add_u32 v{vWp}, v{vWp}, v{t3}
    v_and_b32 v{t3}, 2, v{L}
    v_lshl_add_u32 v{vWp}, v{t3}, 2, v{vWp}  ; + 16(c&1) + 4(2(g&1) + (c>>1)) columns
    s_and_b32 s{S_A}, s{S_WAVE}, 1
    s_lshl_b32 s{S_A}, s{S_A}, 12
    s_add_u32 s{S_A}, s{S_A}, {L_XR}
    v_bfe_u32 v{t3}, v{L}, 1, 3
    v_xor_b32 v{t3}, v{t3}, v{HH}
    v_lshl_add_u32 v{t3}, v{t3}, 4, s{S_A}
    v_lshl_add_u32 v{vXa}, v{J}, 7, v{t3}
    v_xor_b32 v{vXa+1}, 32, v{vXa}
    v_xor_b32 v{vXa+2}, 64, v{vXa}
    v_xor_b32 v{vXa+3}, 0x60, v{vXa}
    s_mov_b32 s{S_A}, 21400
    s_mov_b32 s{S_B}, -{NB}
    s_mov_b32 s{S_C}, 0xffff0000
    v_mov_b32 v{t5}, 0x10004
    v_mov_b32 v{vBa+4}, 0
    v_mov_b32 v{v4k}, 0x4000
    s_waitcnt vmcnt({(7 if tl == "1" else 6) - (2 if w1late else 0) - (2 if sp in ("dst", "cnt") else 0)})""")
    if sp == "dst": a(SRCE)
    if sp in ("dst", "cnt"): assert w1late
    a(f"""
    s_cmp_lg_u32 s{S_WAVE}, 11
    s_cbranch_scc1 K_wJ
    s_bfm_b64 exec, {XTRA}, 0""")
    assert L_ST - L_RL <= step + 4096
    def binops(cols):
        for i in cols: a(f"    v_mul_u32_u24 v{vBa+i}, s{S_A}, v{vDst+i}")
        for i in cols: a(f"    v_lshrrev_b32 v{vBa+i}, 18, v{vBa+i}")
        for i in cols:
            a(f"    v_and_b32 v{vBa+i}, 0x3fc, v{vBa+i}")
            a(f"    ds_add_rtn_u32 v{vRk+i}, v{vBa+i}, v{t5} offset:{L_H1}")
        for i in cols: a(f"    v_lshlrev_b32 v{vDst+i}, 2, v{vDst+i}")
        for i in cols: a(f"    v_mad_i32_i24 v{vDst+i}, v{vBa+i}, s{S_B}, v{vDst+i}")
        for i in cols: a(f"    v_bfe_u32 v{vCl+i}, v{vDst+i}, 2, 1")
    binops([4])
    a(f"""
    s_mov_b64 exec, -1
K_wJ:""")
    stamp(a, 2)
    binops(range(4))
    if sp == "cnt": a(SRCE)
    a(f"""
    s_waitcnt vmcnt({(2 if w1late else 4)+tk-(2 if sp == 'first' else 0)}) lgkmcnt(0)
    s_barrier""")
    stamp(a, 3)
    a(f"""
    s_cmp_eq_u32 s{S_WAVE}, 8
    s_cbranch_scc1 K_scan1
    s_cmp_gt_u32 s{S_WAVE}, 8
    s_cbranch_scc1 K_notP
    ; ---- waves 0..7: P^T tile = -log2(e) * (x w1[0:64])^T""")
    for s_ in range(4):
        a(f"    ds_read_b128 {vr(vX+4*s_,4)}, v{vXa+s_}")
        for h in range(2):
            a(f"    ds_read_b64_tr_b16 {vr(vWf+4*s_+2*h,2)}, v{vWp} offset:{4096*s_+1024*h}")
    for s_ in range(4):
        a(f"    s_waitcnt lgkmcnt({9-3*s_})")
        cin = "0" if s_ == 0 else vr(vAc, 16)
        a(f"    v_mfma_f32_32x32x16_bf16 {vr(vAc,16)}, {vr(vWf+4*s_,4)}, {vr(vX+4*s_,4)}, {cin}")
    a(f"""
    s_and_b32 s{S_B}, s{S_WAVE}, 1
    s_mul_i32 s{S_A}, s{S_B}, {32*PS_STRIDE}
    s_lshl_b32 s{S_B}, s{S_D}, 6
    s_add_u32 s{S_A}, s{S_A}, s{S_B}
    s_add_u32 s{S_A}, s{S_A}, {L_PS}
    v_mul_u32_u24 v{t3}, {PS_STRIDE}, v{J}
    v_lshl_add_u32 v{t3}, v{HH}, 5, v{t3}
    v_add_u32 v{t3}, s{S_A}, v{t3}
    v_mov_b32 v{t4}, {NLOG2E:#x}
    v_cmp_gt_u32 vcc, {L_PS + 56*PS_STRIDE}, v{t3}
    s_nop 1""")
    for q in range(8):
        a(f"    v_pk_mul_f32 {vr(vAc+2*q,2)}, {vr(vAc+2*q,2)}, {vr(t4,2)} op_sel_hi:[1,0]")
    for q in range(8):
        a(f"    v_cvt_pk_bf16_f32 v{vAc+q}, v{vAc+2*q}, v{vAc+2*q+1}")
    a(f"""
    s_mov_b64 exec, vcc
    ds_write_b128 v{t3}, {vr(vAc,4)}
    ds_write_b128 v{t3}, {vr(vAc+4,4)} offset:16
    s_mov_b64 exec, -1
    s_branch K_b3
K_notP:
    v_lshlrev_b32 v{t1}, 4, v{L}
    v_add_u32 v{t4}, {L_PS + 48*PS_STRIDE}, v{t1}
    v_add_u32 v{t1}, {48*256}, v{t1}
    s_branch K_b3
K_scan1:
    ; ---- wave 8: segment offsets; a segment is n records (4 bytes) followed by n node bytes, padded to 4
    s_setprio 2
    global_load_dwordx2 {vr(vTg,2)}, v{vZ}, {sr(S_DBG,2)}
    v_lshlrev_b32 v{t0}, 4, v{L}
    ds_read_b128 v[56:59], v{t0} offset:{L_H1}
    s_waitcnt lgkmcnt(0)""")
    for i in range(4):
        a(f"    v_lshrrev_b32 v{60+i}, 16, v{56+i}")
    for i in range(4):
        a(f"    v_mad_u32_u24 v{64+i}, v{60+i}, 5, 3")
    for i in range(4):
        a(f"    v_and_b32 v{64+i}, -4, v{64+i}")
    a(f"""
    v_add_u32 v65, v64, v65
    v_add_u32 v66, v65, v66
    v_add_u32 v67, v66, v67
    v_mov_b32 v68, v67""")
    wave_scan(a, 68)
    a(f"""
    v_sub_u32 v68, v68, v67
    v_add_u32 v69, v68, v64
    v_add_u32 v70, v68, v65
    v_add_u32 v71, v68, v66
    s_mov_b32 s{S_A}, 0x10001""")
    for i in range(4):
        a(f"    v_mul_u32_u24 v{64+i}, s{S_A}, v{68+i}")
    for i in range(4):
        a(f"    v_lshl_add_u32 v{64+i}, v{56+i}, 16, v{64+i}")
    a(f"""
    ds_write_b128 v{t0}, v[64:67] offset:{L_OFF}
    s_setprio 0
K_b3:
    v_lshrrev_b32 v{t0}, 4, v{T}
    v_lshl_add_u32 v{t0}, v{t0}, 4, v{t2}
    v_add_u32 v{t0}, {L_PS}, v{t0}
    s_lshl_b32 s{S_A}, s{S_N0}, 8
    s_add_u32 s{S_A}, s{S_A}, {WS_P}
    s_add_u32 s{S_RT}, s{S_WS}, s{S_A}
    s_addc_u32 s{S_RT+1}, s{S_WS+1}, 0
    s_lshl_b32 s{S_RT+2}, s{S_NN}, 8
    s_mov_b32 s{S_RT+3}, 0x00020000
    s_waitcnt lgkmcnt(0)
    s_barrier                                ; B3: segment offsets, P staged""")
    stamp(a, 4)
    a(f"""
    s_cmp_lt_u32 s{S_WAVE}, 10
    s_cbranch_scc1 K_nx0
    ds_read_b32 v{vOf+4}, v{vBa+4} offset:{L_OFF}
    ds_read_b128 v[76:79], v{t4}
K_nx0:
    ds_read_b128 v[72:75], v{t0}""")
    for i in range(4):
        a(f"    ds_read_b32 v{vOf+i}, v{vBa+i} offset:{L_OFF}")
    a(f"""
    s_waitcnt lgkmcnt(4)
    {"" if pdel else f"buffer_store_dwordx4 v[72:75], v{t2}, {sr(S_RT,4)}, 0 offen sc1"}""")
    if sp in ("dst", "cnt"): tk = 0
    if pdel: tk -= 1
    stamp(a, 24)
    a(f"""
    s_waitcnt vmcnt({(2 if w1late else 4)+tk})
    s_cmp_eq_u32 s{S_WAVE}, 8                ; (wave 8 has the tag load in flight as well)
    s_cbranch_scc1 K_w8
    s_waitcnt vmcnt({(1 if w1late else 3)+tk})
K_w8:""")
    stamp(a, 22)
    a(f"""
    v_lshl_or_b32 v{vSrc}, v{v4k}, v{vCl}, v{vSrc}
    v_lshl_or_b32 v{vSrc+1}, v{v4k}, v{vCl+1}, v{vSrc+1}
    v_lshl_or_b32 v{vSrc+2}, v{v4k}, v{vCl+2}, v{vSrc+2}
    v_lshl_or_b32 v{vSrc+3}, v{v4k}, v{vCl+3}, v{vSrc+3}
    v_lshl_or_b32 v{vSrc}, v{vEa}, 16, v{vSrc}
    v_and_or_b32 v{vSrc+1}, v{vEa}, s{S_C}, v{vSrc+1}
    v_lshl_or_b32 v{vSrc+2}, v{vEa+1}, 16, v{vSrc+2}
    v_and_or_b32 v{vSrc+3}, v{vEa+1}, s{S_C}, v{vSrc+3}
    s_waitcnt lgkmcnt(0)""")
    def scatter(i):
        a(f"    v_add_u32_sdwa v{vBa+i}, v{vOf+i}, v{vRk+i} {SD} src0_sel:WORD_0 src1_sel:WORD_0")
        a(f"    v_add_u32_sdwa v{vOf+i}, v{vOf+i}, v{vRk+i} {SD} src0_sel:WORD_1 src1_sel:WORD_1")
        a(f"    ds_write_b32 v{vBa+i}, v{vSrc+i} offset:{L_RS}")
        a(f"    ds_write_b8 v{vOf+i}, v{vDst+i} offset:{L_RS}")
    for i in range(4): scatter(i)
    a(f"""
    s_cmp_lt_u32 s{S_WAVE}, 10
    s_cbranch_scc1 K_nx2
    s_cmp_eq_u32 s{S_WAVE}, 11
    s_cbranch_scc1 K_x2
    buffer_store_dwordx4 v[76:79], v{t1}, {sr(S_RT,4)}, 0 offen sc1""")
    if optval("b1_", "") == "late":
        a(f"""
    s_mov_b32 m0, {L_WC + 256}
    v_lshlrev_b32 v{t3}, 2, v{L}
    global_load_lds_dword v{t3}, {sr(S_B1,2)}
""")
    a(f"""
    s_branch K_nx2
K_x2:
    s_bfm_b64 exec, {XTRA}, 0
    v_lshl_or_b32 v{vSrc+4}, v{v4k}, v{vCl+4}, v{vSrc+4}
    v_lshl_or_b32 v{vSrc+4}, v{vEa+2}, 16, v{vSrc+4}""")
    scatter(4)
    a(f"""
    s_mov_b64 exec, -1
K_nx2:""")
    if w1late: a(ST2)
    a(f"""
    s_mul_i32 s{S_A}, s2, {RSTRIDE}
    s_add_u32 s{S_RR}, s{S_WS}, s{S_A}
    s_addc_u32 s{S_RR+1}, s{S_WS+1}, 0
    s_mov_b32 s{S_RR+2}, 16512
    s_mov_b32 s{S_RR+3}, 0x00020000
    v_add_u32 v{t3}, {step}, v{t2}
    s_waitcnt lgkmcnt(0)""")
    if pdel == "1": a(f"    buffer_store_dwordx4 v[72:75], v{t2}, {sr(S_RT,4)}, 0 offen sc1")
    stamp(a, 23)
    a(f"""
    s_barrier""")
    stamp(a, 5)
    a(f"""
    ds_read_b128 v[0:3], v{t2} offset:{L_RS}
    s_cmp_ge_u32 s{S_WAVE}, 5
    s_cbranch_scc1 K_co1
    ds_read_b128 v[8:11], v{t2} offset:{L_RS + step}
    s_waitcnt lgkmcnt(0)
    buffer_store_dwordx4 v[8:11], v{t3}, {sr(S_RR,4)}, 0 offen sc1
K_co1:
    s_waitcnt lgkmcnt(0)
    buffer_store_dwordx4 v[0:3], v{t2}, {sr(S_RR,4)}, 0 offen sc1
    {f"buffer_store_dwordx4 v[72:75], v{t2}, {sr(S_RT,4)}, 0 offen sc1" if pdel == "2" else ""}
""")
    def emit_consts():
        a(f"""
    ; ---- lane constants, while the stores drain
    ; gather: lane -> row l>>4 of 4, piece l&15; odd rows have their 64-byte blocks swapped pairwise
    v_and_b32 v{tc}, 15, v{L}
    v_bfe_u32 v{t3}, v{L}, 4, 1
    v_lshlrev_b32 v{t3}, 2, v{t3}
    v_xor_b32 v{tc}, v{tc}, v{t3}
    v_lshlrev_b32 v{V_IX+1}, 4, v{tc}
    v_mov_b32 v{V_IX+3}, v{V_IX+1}
    v_mov_b32 v{V_IX+5}, v{V_IX+1}
    v_mov_b32 v{V_IX+7}, v{V_IX+1}
    v_lshrrev_b32 v{V_AIDX}, 4, v{L}
    v_lshlrev_b32 v{V_AIDX}, 1, v{V_AIDX}
    v_bfe_u32 v{tc}, v{L}, 3, 1
    v_xor_b32 v{t3}, v{tc}, v{HH}
    v_lshl_add_u32 v{t3}, v{t3}, 6, v{vC8}
    v_lshl_add_u32 v{tc}, v{tc}, 8, v{t3}
    s_lshl_b32 s{S_B}, s{S_WAVE}, 12
    s_add_u32 s{S_B}, s{S_B}, {L_XS}
    v_add_u32 v{tc}, s{S_B}, v{tc}
    v_bfe_u32 v{t4}, v{L}, 2, 1
    v_cmp_ne_u32 vcc, 0, v{t4}
    v_mov_b32 v{t3}, {L_Z}
    v_mov_b32 v{V_MN}, 1.0
    v_cndmask_b32 v{V_AA}, v{t3}, v{tc}, vcc
    v_cmp_eq_u32 {mask(0)}, v{t4}, v{HH}
    v_bfe_u32 v{tc}, v{L}, 3, 2
    v_and_b32 v{t3}, 3, v{L}
    v_lshl_add_u32 v{tc}, v{tc}, 2, v{t3}
    v_lshlrev_b32 v{tc}, 2, v{tc}
    v_add_u32 v{tc}, {L_G}, v{tc}
    v_mov_b32 v{t3}, {L_ZA}
    v_cndmask_b32 v{V_AENT}, v{t3}, v{tc}, {mask(0)}
    v_mov_b32 v{t3}, 0x80
    v_cndmask_b32 v{V_INCA}, 0, v{t3}, {mask(0)}
    v_and_b32 v{vJ0}, 1, v{L}
    v_mul_u32_u24 v{vJ0}, {9*VAR_SIZE}, v{vJ0}
    v_add_u32 v{vJ0}, {ENTRY}, v{vJ0}""")
        for m in range(4):
            a(f"    s_movk_i32 s{S_P+m}, {3072 - 1024*m}")
        for c in range(2):
            a(f"    v_mov_b32 v{V_ND+4*c}, 0")
            a(f"    v_mov_b32 v{V_ND+4*c+1}, 0")
            a(f"    v_mov_b32 v{V_ND+4*c+2}, 1.0")
            a(f"    v_mov_b32 v{V_ND+4*c+3}, 1.0")
        a(f"""
    s_and_b32 s{S_A}, s{S_WAVE}, 3
    s_mul_i32 s{S_A}, s{S_A}, 3
    s_lshr_b32 s{S_B}, s{S_WAVE}, 2
    s_add_u32 s{S_SLOT}, s{S_A}, s{S_B}
    s_getpc_b64 {sr(S_PC,2)}
K_pc:
    s_add_u32 s{S_PC}, s{S_PC}, K_vbase - K_pc
    s_addc_u32 s{S_PC+1}, s{S_PC+1}, 0
    ; segment mapping of phase 2: segment 128 i + t/6, lane group g = t%6
    v_mul_u32_u24 v{tc}, 10923, v{T}
    v_lshrrev_b32 v{tc}, 16, v{tc}
    v_mad_i32_i24 v{vG4}, v{tc}, -6, v{T}
    v_lshlrev_b32 v{vG4}, 2, v{vG4}          ; 4g
    v_mul_u32_u24 v{vSb}, {RSTRIDE}, v{tc}
    ; share of P this lane pulls into L2
    s_lshr_b32 s{S_A}, s2, 3
    s_mul_i32 s{S_A}, s{S_A}, {256*128 if "hot" in OPT else 781*128}
    s_add_u32 s{S_A}, s{S_A}, {WS_P - (512*128 if "hot" in OPT else 0)}
    v_lshl_add_u32 v{vPf}, v{T}, 7, s{S_A}
    s_lshr_b32 s{S_B}, s{S_BIN}, 2
    s_lshl_b32 s{S_B}, s{S_B}, 4
    s_and_b32 s{S_A}, s{S_BIN}, 1
    s_lshl_b32 s{S_A}, s{S_A}, 3
    s_add_u32 s{S_B}, s{S_B}, s{S_A}
    s_and_b32 s{S_A}, s{S_BIN}, 2
    s_lshl_b32 s{S_A}, s{S_A}, 9
    s_add_u32 s{S_B}, s{S_B}, s{S_A}
    s_add_u32 s{S_B}, s{S_B}, {WS_TAB}
    v_lshl_add_u32 v{t5}, v{tc}, 11, s{S_B}  ; table entry offset""")
    cpos = optval("c_", "drain")
    if cpos == "drain": emit_consts()
    a(f"""
    s_mov_b32 s3, {NLOG2E:#x}
    s_cmp_lg_u32 s{S_WAVE}, 8
    s_cbranch_scc1 K_ntb
    s_mov_b32 s{S_K}, 0
    s_waitcnt vmcnt({4 if w1late else 2})
K_tagp:
    v_cmp_ne_u32 vcc, 0, v{vTg}
    s_cbranch_vccnz K_tagok
    s_add_u32 s{S_K}, s{S_K}, 1
    s_cmp_gt_u32 s{S_K}, {POLL_MAX}
    s_cbranch_scc1 K_tagok                   ; give up: tag 0 sends this workgroup to the slow path
    global_load_dwordx2 {vr(vTg,2)}, v{vZ}, {sr(S_DBG,2)} sc1
    s_waitcnt vmcnt(0)
    s_branch K_tagp
K_tagok:
    ds_write_b64 v{vZ}, {vr(vTg,2)} offset:{L_NONCE}
    v_and_b32 v{t3}, 0xfe000000, v{vTg}
    s_lshl_b32 s{S_B}, s2, 11
    s_add_u32 s{S_B}, s{S_B}, {WS_TAB}
    v_lshl_add_u32 v{t1}, v{L}, 4, s{S_B}""")
    for i in range(4):
        a(f"    v_lshrrev_b32 v{68+i}, 2, v{68+i}")
        a(f"    v_lshl_or_b32 v{68+i}, v{60+i}, 13, v{68+i}")
        a(f"    v_or_b32 v{vTb+2*i}, v{t3}, v{68+i}")
        a(f"    v_mov_b32 v{vTb+2*i+1}, v{vTg+1}")
    a(f"""
    s_waitcnt vmcnt(0) lgkmcnt(0)
    s_barrier                                ; B5
    s_cbranch_vccz K_slow
    global_store_dwordx4 v{t1}, {vr(vTb,4)}, {sr(S_WS,2)} {optval('ts_','sc1').replace('_',' ')}
    global_store_dwordx4 v{t1}, {vr(vTb+4,4)}, {sr(S_WS,2)} offset:1024 {optval('ts_','sc1').replace('_',' ')}
    s_branch K_b5j
K_ntb:
    s_waitcnt vmcnt(0)
    s_barrier                                ; B5: this workgroup's records and P rows are in memory
K_b5j:""")
    stamp(a, 6)
    a(f"""
    ds_read_b64 {vr(vTg,2)}, v{vZ} offset:{L_NONCE}
    v_lshlrev_b32 v{t0}, 1, v{L}
    v_add_u32 v{t0}, {L_WC}, v{t0}
    ds_read_u16 v{V_B5}, v{t0}
    ds_read_u16 v{V_B5+2}, v{t0} offset:128
    s_waitcnt lgkmcnt(0)
    v_readfirstlane_b32 s{S_TAG}, v{vTg}
    v_readfirstlane_b32 s{S_TAG+1}, v{vTg+1}
    s_cmp_eq_u32 s{S_TAG}, 0
    s_cbranch_scc1 K_slow""")
    for c in range(2):
        w = V_B5 + 2*c
        a(f"    v_lshlrev_b32 v{w}, 16, v{w}")
        a(f"    v_mul_f32 v{w}, s3, v{w}")
        a(f"    v_cvt_pk_bf16_f32 v{t3}, v{vZ}, v{w}")
        a(f"    v_sub_f32 v{t3}, v{w}, v{t3}")
        a(f"    v_cvt_pk_bf16_f32 v{w+1}, v{w}, v{t3}")
    a(f"""
    s_cmp_lt_u32 s{S_WAVE}, 8
    s_cbranch_scc1 K_Q
    ; waves 8..11 stage w2 and b2 (first used after the main loop)
    s_sub_u32 s{S_A}, s{S_WAVE}, 8
    s_lshl_b32 s{S_A}, s{S_A}, 12
    s_add_u32 m0, s{S_A}, {L_W2}
    v_lshl_add_u32 v{t3}, v{L}, 4, s{S_A}
    global_load_lds_dwordx4 v{t3}, {sr(S_W2,2)}
    global_load_lds_dwordx4 v{t3}, {sr(S_W2,2)} offset:1024
    global_load_lds_dwordx4 v{t3}, {sr(S_W2,2)} offset:2048
    global_load_lds_dwordx4 v{t3}, {sr(S_W2,2)} offset:3072
    s_cmp_lg_u32 s{S_WAVE}, 9
    s_cbranch_scc1 K_notQ
    s_mov_b32 m0, {L_B2}
    v_lshlrev_b32 v{t3}, 2, v{J}
    global_load_lds_dword v{t3}, {sr(S_B2,2)}
    s_branch K_notQ
K_Q:
    ; ---- waves 0..7: Q tile = -log2(e)/2 * (x w1[64:128] + b1) (selected by 2.0), while the table entries travel
    s_mov_b32 s3, {f32bits(-LOG2E/2):#x}
    s_lshl_b32 s{S_A}, s{S_D}, 6
    s_add_u32 s{S_A}, s{S_A}, {L_WC + 256}
    v_lshl_add_u32 v{t3}, v{J}, 1, s{S_A}
    ds_read_u16 v{vB1}, v{t3}
    v_add_u32 v{tc}, v{vWa}, v{vC8}""")
    for s_ in range(4):
        for h in range(2):
            a(f"    ds_read_b64_tr_b16 {vr(vWf+4*s_+2*h,2)}, v{tc} offset:{16384+4096*s_+1024*h}")
    a(f"""
    s_and_b32 s{S_A}, s{S_WAVE}, 1
    s_lshl_b32 s{S_B}, s{S_A}, 14
    s_lshl_b32 s{S_C}, s{S_D}, 7
    s_add_u32 s{S_B}, s{S_B}, s{S_C}
    s_add_u32 s{S_B}, s{S_B}, {L_QT - 512}
    v_lshl_add_u32 v{tc}, v{HH}, 11, s{S_B}
    v_lshl_add_u32 v{tc}, v{J}, 2, v{tc}""")
    for s_ in range(4):
        a(f"    s_waitcnt lgkmcnt({6-2*s_})")
        cin = "0" if s_ == 0 else vr(vAc, 16)
        a(f"    v_mfma_f32_32x32x16_bf16 {vr(vAc,16)}, {vr(vX+4*s_,4)}, {vr(vWf+4*s_,4)}, {cin}")
    a(f"""
    v_lshlrev_b32 v{vB1}, 16, v{vB1}
    v_mul_f32 v{vB1}, s3, v{vB1}
    s_nop 9""")
    def qpair(r):
        row = 8*(r >> 2) + (r & 3)
        a(f"    v_fma_f32 v{vAc+r}, v{vAc+r}, s3, v{vB1}")
        a(f"    v_fma_f32 v{vAc+r+1}, v{vAc+r+1}, s3, v{vB1}")
        a(f"    v_cvt_pk_bf16_f32 v{vWf+r}, v{vAc+r}, v{vAc+r+1}")
        a(f"    ds_write_b32 v{tc}, v{vWf+r} offset:{512*(row+1)}")
        a(f"    ds_write_b16 v{tc}, v{vWf+r} offset:{512*row}")
        a(f"    ds_write_b16_d16_hi v{tc}, v{vWf+r} offset:{512*(row+2)+2}")
    for r in range(0, 12, 2): qpair(r)
    a(f"""
    s_cmp_eq_u32 s{S_A}, 1
    s_cbranch_scc1 K_notQ""")
    for r in range(12, 16, 2): qpair(r)
    a(f"K_notQ:")
    if cpos == "post": emit_consts()
    if "qvm" in OPT: a("    s_waitcnt vmcnt(0)")
    if "noqbar" not in OPT: a("    s_waitcnt lgkmcnt(0)\n    s_barrier                                ; Q table complete; no wave looks at the table before this point")
    if cpos == "post2": emit_consts()
    stamp(a, 7)
    vT = 0
    vN = 4
    vAr = 6
    vR = 12
    vM = 28
    vA = 32
    vK = 48
    vB = 64
    a(f"""
    s_lshl_b32 s{S_B}, s{S_WAVE}, 12
    s_add_u32 m0, s{S_B}, {L_XS}
    s_mov_b32 s{S_RR}, s{S_WS}
    s_mov_b32 s{S_RR+1}, s{S_WS+1}
    s_mov_b32 s{S_RR+2}, {WS_TAB + 256*2048}
    s_mov_b32 s{S_A}, {128*2048}
    s_mov_b32 s{S_B}, {128*RSTRIDE}
    s_mov_b32 s{S_C}, 0xfe000000
    s_movk_i32 s{S_D}, 0xfc
    s_mov_b32 s{S_K}, 0
    {"s_sleep " + optval("fs", "0") if optval("fs", "0") != "0" else ""}
    {f"s_cmp_lt_u32 s{S_WAVE}, 8" if optval("ls", "") else ""}
    {"s_cbranch_scc1 K_nls" if optval("ls", "") else ""}
    {"s_sleep " + optval("ls", "") if optval("ls", "") else ""}
K_nls:
    s_mov_b64 {mask(0)}, -1
    s_mov_b64 {mask(1)}, -1
    v_mov_b32 v{vM}, 0
    v_mov_b32 v{vM+1}, 0""")
    a(f"""
K_poll:
    s_mov_b64 exec, {mask(0)}
    s_cbranch_execz K_pl0
    buffer_load_dwordx2 {vr(vT,2)}, v{t5}, {sr(S_RR,4)}, 0 offen {optval('pl_','sc1').replace('_',' ')}
K_pl0:
    s_mov_b64 exec, {mask(1)}
    s_cbranch_execz K_pl1
    buffer_load_dwordx2 {vr(vT+2,2)}, v{t5}, {sr(S_RR,4)}, s{S_A} offen {optval('pl_','sc1').replace('_',' ')}
K_pl1:
    s_mov_b64 exec, -1
    s_waitcnt vmcnt(0)""")
    for i in range(2):
        a(f"    v_xor_b32 v{vN+i}, s{S_TAG}, v{vT+2*i}")
        a(f"    v_xor_b32 v{vAr+i}, s{S_TAG+1}, v{vT+2*i+1}")
        a(f"    v_and_or_b32 v{vAr+i}, v{vN+i}, s{S_C}, v{vAr+i}")
        a(f"    v_cmp_ne_u32 {mask(i)}, 0, v{vAr+i}")
    a(f"""
    s_add_u32 s{S_K}, s{S_K}, 1
    s_or_b64 vcc, {mask(0)}, {mask(1)}
    s_cbranch_scc0 K_got
    {"s_sleep " + optval("ps", "") if optval("ps", "") else ""}
    s_cmp_lt_u32 s{S_K}, {POLL_MAX}
    s_cbranch_scc1 K_poll
    ; gave up: no records from this wave, ask for the slow path
    s_mov_b32 s{S_MODE}, 1
    s_branch K_nor2a
K_got:""")
    if DIAG:
        a(f"    v_writelane_b32 v{V_STAMP}, s{S_K}, 20")
    stamp(a, 8)
    so = ["0", sr(S_B)]
    for i in range(2):
        a(f"    v_and_b32 v{vAr+i}, 0x1fff, v{vT+2*i}")
        a(f"    v_bfe_u32 v{vT+2*i+1}, v{vT+2*i}, 13, 12")
        a(f"    v_lshl_add_u32 v{vAr+i}, v{vAr+i}, 2, v{vSb}")
        a(f"    v_sub_u32 v{vN+i}, v{vT+2*i+1}, v{vG4}")
        a(f"    v_lshl_add_u32 v{vAr+2+i}, v{vT+2*i+1}, 2, v{vAr+i}")
        a(f"    v_cmp_lt_i32 {mask(4*i)}, 0, v{vN+i}")
        a(f"    v_lshl_add_u32 v{vAr+i}, v{vG4}, 2, v{vAr+i}")
        a(f"    v_add_u32 v{vAr+2+i}, v{vAr+2+i}, v{vG4}")
        a(f"    s_or_b64 exec, {mask(4*i)}, 1")
        a(f"    buffer_load_dword v{vM+i}, v{vAr+2+i}, {sr(S_RR,4)}, {so[i]} offen")
        a(f"    buffer_load_dwordx4 {vr(vR+4*i,4)}, v{vAr+i}, {sr(S_RR,4)}, {so[i]} offen")
        a(f"    s_mov_b64 exec, -1")
    for i in range(2):
        for k in range(1, 4):
            a(f"    v_cmp_lt_i32 {mask(4*i+k)}, {k}, v{vN+i}")
    a(f"""
    v_max_i32 v{t1}, v{vN}, v{vN+1}
    v_cmp_lt_i32 vcc, 24, v{t1}
    s_mov_b32 s{S_K}, 0
    s_cbranch_vccz K_nor2a
    s_mov_b32 s{S_K}, 1""")
    for i in range(2):
        a(f"    buffer_load_dword v{vM+2+i}, v{vAr+2+i}, {sr(S_RR,4)}, {so[i]} offen offset:24")
        a(f"    buffer_load_dwordx4 {vr(vR+8+4*i,4)}, v{vAr+i}, {sr(S_RR,4)}, {so[i]} offen offset:96")
        for k in range(4):
            a(f"    v_cmp_lt_i32 {mask(8+4*i+k)}, {24+k}, v{vN+i}")
    pf0 = int(optval("pf", "8"))
    a(f"""
    v_cmp_lt_i32 vcc, 48, v{t1}
    s_cbranch_vccz K_nor2a
    s_mov_b32 s{S_MODE}, 1                   ; a segment is too long for the fast path
K_nor2a:
    v_mov_b32 v{t4}, {L_FLAG}
    v_mov_b32 v{t0}, 4
    s_cmp_eq_u32 s{S_MODE}, 0
    s_cbranch_scc1 K_nofl
    ds_write_b32 v{t4}, v{t0}
K_nofl:
    s_waitcnt lgkmcnt(0)
    s_barrier
    ds_read_b32 v{t3}, v{t4}
    ; P descriptor: 256-byte records, base shifted by -3072
    s_add_u32 s{S_RX}, s{S_WS}, {WS_P - 3072}
    s_addc_u32 s{S_RX+1}, s{S_WS+1}, 0
    s_and_b32 s{S_RX+1}, s{S_RX+1}, 0xffff
    s_or_b32 s{S_RX+1}, s{S_RX+1}, 0x01000000
    s_mov_b32 s{S_RX+2}, {N_NODES}
    s_mov_b32 s{S_RX+3}, 0x00020000
    s_waitcnt lgkmcnt(0)
    v_cmp_ne_u32 vcc, 0, v{t3}
    s_cbranch_vccnz K_slow
    s_cmp_lt_u32 s{S_WAVE}, {pf0}
    s_cbranch_scc1 K_npf
    global_load_dword v{t5}, v{vPf}, {sr(S_WS,2)} sc1
    s_waitcnt vmcnt(1)
    s_branch K_pfJ
K_npf:
    v_and_b32 v72, 7, v{L}
    v_lshlrev_b32 v74, 4, v72
    v_add_u32 v74, {L_B2}, v74
    ds_read_b128 v[76:79], v74
    v_and_b32 v{E_XR}, -8, v{T}              ; 8 * node
    v_lshlrev_b32 v{E_OUT}, 4, v{T}          ; output byte offset
    v_lshlrev_b32 v72, 5, v72
    v_add_u32 v{E_NX}, {L_QT}, v72
    s_waitcnt lgkmcnt(0)""")
    vBu = E_DB
    for q in range(4):
        a(f"    v_lshlrev_b32 v{vBu[q]}, 16, v{76+q}")
        a(f"    v_and_b32 v{vBu[q]+1}, 0xffff0000, v{76+q}")
    assert pf0 >= 7
    a(f"""
    s_cmp_ge_u32 s{S_WAVE}, 4
    s_cbranch_scc1 K_np1
    v_bfe_u32 v70, v{L}, 2, 1
    v_bfe_u32 v71, v{L}, 3, 1
    v_lshl_add_u32 v70, v70, 6, v71
    v_lshrrev_b32 v71, 4, v{L}               ; g
    v_lshl_add_u32 v70, v71, 2, v70
    v_lshlrev_b32 v70, 7, v70
    v_and_b32 v72, 3, v{L}
    v_lshl_add_u32 v70, v72, 4, v70
    v_add_u32 v{E_W2}, {L_W2}, v70
    v_and_b32 v70, 15, v{L}
    s_lshl_b32 s{S_C}, s{S_WAVE}, 4
    v_add_u32 v70, s{S_C}, v70               ; row
    v_mul_u32_u24 v72, {ST_STRIDE}, v70
    v_lshl_add_u32 v72, v71, 4, v72
    v_add_u32 v{E_SR}, {L_ST}, v72
    v_mul_u32_u24 v72, {OF_STRIDE}, v70
    v_lshl_add_u32 v72, v71, 5, v72
    v_add_u32 v{E_OW}, {L_QT}, v72
K_np1:
    s_waitcnt vmcnt(0)
K_pfJ:""")
    stamp(a, 9)
    def count_cols(ks):
        for k in ks:
            a(f"    v_and_b32_sdwa v{vA+k}, v{vM+k//4}, s{S_D} {SD} src0_sel:BYTE_{k%4} src1_sel:DWORD")
        for k in ks:
            a(f"    s_mov_b64 exec, {mask(k)}")
            a(f"    ds_add_rtn_u32 v{vK+k}, v{vA+k}, v{t0} offset:{L_H2}")
        a(f"    s_mov_b64 exec, -1")
    count_cols(range(8))
    a(f"""
    s_cmp_eq_u32 s{S_K}, 0
    s_cbranch_scc1 K_nor2b""")
    count_cols(range(8, 16))
    a(f"""
K_nor2b:
    v_lshlrev_b32 v{t1}, 2, v{L}
    v_cmp_gt_u32 vcc, s{S_NN}, v{L}
    s_waitcnt lgkmcnt(0)
    s_barrier""")
    stamp(a, 10)
    a(f"""
    ds_read_b32 v{V_CNT}, v{t1} offset:{L_H2}
    s_waitcnt lgkmcnt(0)
    v_add_u32 v{vP}, 4, v{V_CNT}
    v_and_b32 v{vP}, -8, v{vP}
    v_max_u32 v{vP}, 64, v{vP}
    v_cndmask_b32 v{vP}, 0, v{vP}, vcc
    v_mov_b32 v{vS}, v{vP}""")
    wave_scan(a, vS)
    a(f"""
    s_nop 0
    v_readlane_b32 s{S_A}, v{vS}, 63
    v_sub_u32 v{vS}, v{vS}, v{vP}
    ds_write_b32 v{t1}, v{vS} offset:{L_SX}
    s_cmp_gt_u32 s{S_A}, {ENT_CAP*4}
    s_cbranch_scc1 K_slow""")
    def place_cols(ks, mid=None):
        ks = list(ks)
        for k in ks:
            a(f"    ds_read_b32 v{vB+k}, v{vA+k} offset:{L_SX}")
        if mid: a(mid)
        for n, k in enumerate(ks):
            if n % 2 == 0:
                a(f"    s_waitcnt lgkmcnt({len(ks)-2-n})")
            a(f"    v_add_u32 v{vK+k}, v{vB+k}, v{vK+k}")
        for k in ks:
            a(f"    s_mov_b64 exec, {mask(k)}")
            a(f"    ds_write_b32 v{vK+k}, v{vR+k} offset:{L_RL}")
        a(f"    s_mov_b64 exec, -1")
    place_cols(range(8), f"""
    s_add_u32 s{S_A}, s{S_A}, 63
    s_lshr_b32 s{S_TT}, s{S_A}, 6            ; tiles
    s_mul_i32 s{S_T0}, s{S_SLOT}, s{S_TT}
    s_add_u32 s{S_NT}, s{S_T0}, s{S_TT}
    s_mul_i32 s{S_T0}, s{S_T0}, 43691
    s_mul_i32 s{S_NT}, s{S_NT}, 43691
    s_lshr_b32 s{S_T0}, s{S_T0}, 19
    s_lshr_b32 s{S_NT}, s{S_NT}, 19
    s_sub_u32 s{S_NT}, s{S_NT}, s{S_T0}""")
    a(f"""
    s_cmp_eq_u32 s{S_K}, 0
    s_cbranch_scc1 K_nor2c
    s_waitcnt lgkmcnt(0)""")
    place_cols(range(8, 16))
    thr = [int(x) for x in optval("thr", "8_4").split("_")] + [2]
    vBk = 80
    vGr = 82
    a(f"""
K_nor2c:
    s_lshl_b32 s{S_A}, s{S_T0}, 6            ; list position of this wave
    v_lshl_add_u32 v{t3}, v{V_AIDX}, 1, s{S_A}
    v_add_u32 v{t2}, s{S_A}, v{t1}
    ; first node of this wave: n = #(m < nn : start[m] <= ts) - 1
    v_cmp_ge_u32 {mask(0)}, s{S_A}, v{vS}
    v_subrev_u32 v{t0}, s{S_A}, v{vS}
    s_and_b64 {mask(0)}, {mask(0)}, vcc
    s_bcnt1_i32_b64 s{S_B}, {mask(0)}
    s_sub_u32 s{S_B}, s{S_B}, 1              ; n
    s_andn2_b64 {mask(0)}, vcc, {mask(0)}
    v_bfe_u32 v{t4}, v{t0}, 3, 3
    v_add_u32 v{t4}, 1, v{t4}
    v_lshrrev_b32 v{t0}, 4, v{t0}
    v_min_u32 v{t0}, 0xfc, v{t0}
    v_cndmask_b32 v{t0}, -4, v{t0}, {mask(0)}
    v_mov_b32 v{vBk}, 0
    {"" if "novar" in OPT else f"ds_permute_b32 v{vBk}, v{t0}, v{t4}"}
    s_cmp_lg_u32 s{S_WAVE}, 0
    s_cbranch_scc1 K_nprep
    ; wave 0: sum rows of node = lane: first = node + slot(first tile), extra = slot(last tile) - slot(first tile)
    v_cvt_f32_u32 v70, s{S_TT}
    v_rcp_f32 v70, v70
    v_add3_u32 v{vP}, v{vS}, v{vP}, -4
    v_lshrrev_b32 v{vS}, 6, v{vS}
    v_lshrrev_b32 v{vP}, 6, v{vP}
    v_cvt_f32_u32 v{vS}, v{vS}
    v_cvt_f32_u32 v{vP}, v{vP}
    v_add_f32 v{vS}, {f32bits((NW-0.5)/NW):#x}, v{vS}
    v_add_f32 v{vP}, {f32bits((NW-0.5)/NW):#x}, v{vP}
    v_mul_f32 v70, {f32bits(NW):#x}, v70
    v_mul_f32 v{vS}, v{vS}, v70
    v_mul_f32 v{vP}, v{vP}, v70
    v_cvt_u32_f32 v{vS}, v{vS}
    v_cvt_u32_f32 v{vP}, v{vP}
    v_cvt_f32_u32 v71, v{V_CNT}
    v_sub_u32 v{vP}, v{vP}, v{vS}
    v_add_u32 v{vS}, v{vS}, v{L}
    v_mul_u32_u24 v{vS}, {OF_STRIDE}, v{vS}
    v_mul_f32 v71, 0x3e800000, v71           ; degree
    v_lshl_or_b32 v70, v{vP}, 16, v{vS}
    v_lshlrev_b32 v72, 3, v{L}
    v_cndmask_b32 v70, 0, v70, vcc
    ds_write_b64 v72, v[70:71] offset:{L_RW}
K_nprep:
    s_waitcnt lgkmcnt(0)
    {"s_setprio 3" if "sp0" in OPT else ""}
    s_barrier""")
    stamp(a, 11)
    for m in range(4):
        a(f"    ds_read_u16 v{V_IX+2*m}, v{t3} offset:{L_RL + 16*m}")
    for c in range(5):
        a(f"    ds_read_b32 v{vGr+c}, v{t2} offset:{L_RL + 256*c}")
    a(f"""
    s_lshr_b32 s{S_C}, s{S_A}, 1
    s_add_u32 s{S_C}, s{S_C}, {L_IX}
    v_add_u32 v{V_AIDX}, s{S_C}, v{V_AIDX}
    v_lshl_add_u32 v{t0}, v{L}, 1, s{S_C}
    s_mov_b32 s{S_C}, 0x03020302
    s_mov_b32 s{S_D}, 0x8001
    s_waitcnt lgkmcnt(5)""")
    for m in range(4):
        a(f"    v_and_b32 v{V_IX+2*m}, {PADREC}, v{V_IX+2*m}")
    for h in dma_ops(): a(h)
    def conv(c):
        if "noconv" in OPT:
            a(f"    v_and_b32 v{vGr+c}, 0xffff3fff, v{vGr+c}")
            return
        a(f"    v_and_b32 v{vGr+5+c}, 0xc000, v{vGr+c}")
        a(f"    v_perm_b32 v{64+c}, v{vGr+c}, v{vGr+c}, s{S_C}")
        a(f"    v_xor_b32 v{vGr+c}, v{vGr+c}, v{vGr+5+c}")
        a(f"    v_mul_u32_u24 v{vGr+5+c}, s{S_D}, v{vGr+5+c}")
        a(f"    v_and_b32 v{vGr+5+c}, 0x40004000, v{vGr+5+c}")
    def put(c):
        if "noconv" in OPT:
            a(f"    ds_write_b16 v{t0}, v{vGr+c} offset:{128*c}")
            return
        a(f"    ds_write2st64_b32 v{t2}, v{vGr+5+c}, v{64+c} offset0:{L_G//256 + c} offset1:{L_RL//256 + c}")
        a(f"    ds_write_b16 v{t0}, v{vGr+c} offset:{128*c}")
    a(f"""
    ; this wave's entries -> one-hot word, (e, e), source node
    s_lshl_b32 s{S_K}, s{S_NT}, 4
    s_waitcnt lgkmcnt(0)""")
    for c in range(4): conv(c)
    a(f"""
    s_sub_u32 s{S_J}, s{S_K}, 256
    s_cbranch_scc1 K_few""")
    for c in range(4): put(c)
    a(f"""
    s_bfm_b64 exec, s{S_J}, 0
    s_cbranch_execz K_put""")
    conv(4); put(4)
    a(f"""
    s_branch K_put
K_few:""")
    for c in range(4):
        a(f"    s_mov_b64 exec, -1\n    v_cmp_gt_i32 vcc, s{S_K}, v{L}\n    s_sub_u32 s{S_K}, s{S_K}, 64\n    s_mov_b64 exec, vcc")
        put(c)
    pcode = (4 << 3*thr[0]) | (3 << 3*thr[1]) | (2 << 3) | (1 << 6)
    assert 9 >= thr[0] > thr[1] > 2
    a(f"""
K_put:
    s_mov_b64 exec, -1
    s_lshl_b32 s{S_C}, s{S_B}, 9
    s_add_u32 s{S_C}, s{S_C}, {L_QT}
    v_add_u32 v{V_AQ}, s{S_C}, v{t1}
    v_lshrrev_b32 v{t4}, 7, v{V_INCA}
    v_mad_u32_u24 v{V_AENT}, v{t4}, s{S_A}, v{V_AENT}""")
    for h in ent_reads(0) + q_reads() + idx_reads(32): a(h)
    a(f"""
    s_add_u32 s{S_C}, s{S_B}, s{S_SLOT}
    s_mul_i32 s{S_C}, s{S_C}, {ST_STRIDE}
    s_add_u32 s{S_C}, s{S_C}, {L_ST}
    v_add_u32 v{V_AS}, s{S_C}, v{t1}
    v_add_u32 v{V_AQ}, 0x200, v{V_AQ}
    ; jump table: slot of the variant, entry inside it (priority steps near the end), exit at lane nt
    v_sub_u32 v{t0}, s{S_NT}, v{L}
    s_movk_i32 s{S_C}, {VAR_SIZE}
    s_mov_b32 s{S_D}, {pcode:#x}
    v_cmp_eq_u32 vcc, 0, v{t0}
    v_min_u32 v{t0}, 10, v{t0}
    v_mad_u32_u24 v{t4}, v{vBk}, s{S_C}, v{vJ0}
    v_mul_u32_u24 v{t0}, 3, v{t0}
    v_bfe_u32 v{t0}, s{S_D}, v{t0}, 3
    v_mov_b32 v{t3}, K_exit - K_vbase
    v_mad_i32_i24 v{t4}, v{t0}, -8, v{t4}
    v_cndmask_b32 v{t4}, v{t4}, v{t3}, vcc
    ds_bpermute_b32 v{V_TAB}, v{t1}, v{t4} offset:4
    s_mov_b32 s{S_K}, 1
    v_readlane_b32 s{S_J}, v{t4}, 0
    s_mov_b64 vcc, 0
    {"" if "sp0" in OPT else "s_setprio 3"}
    s_waitcnt vmcnt(0)""")
    stamp(a, 12)
    for h in tr_reads(0): a(h)
    a(f"""
    s_add_u32 s{S_J}, s{S_J}, s{S_PC}
    s_addc_u32 s{S_J+1}, s{S_PC+1}, 0
    s_waitcnt lgkmcnt(0)""")
    a(small(0, 0))
    for h in dma_ops(): a(h)
    a(small(0, 1))
    a(f"    v_lshl_or_b32 v{V_TAB}, v{V_TAB}, 16, v{t4}")
    a("    s_nop 9")
    stamp(a, 13); stamp(a, 14, True)
    a(f"    s_setpc_b64 {sr(S_J,2)}")
    a(f".p2align 6")
    a(f"K_vbase:")
    for s_ in range(2):
        for b in [None] + list(range(8)):
            tile_variant(a, s_, b)
    a(f".p2align 3")
    a(f"K_exit:")
    stamp(a, 15); stamp(a, 16, True)
    flush1(a)
    a("    s_nop 0")
    flush2(a)
    a(f"""
    v_cmp_eq_f32 vcc, 0, v{V_MN}
    s_cbranch_vccz K_join
    ; a denominator left the f32 range: redo this bin on the exact slow path
    v_mov_b32 v65, {L_FLAG}
    ds_write_b32 v65, v65
K_join:
    s_cmp_ge_u32 s{S_WAVE}, 7
    s_cbranch_scc1 K_st2a
    ds_read_b64 v[102:103], v{E_XR} offset:{L_RW}
    s_lshl_b32 s{S_A}, s{S_N0}, 7
    s_add_u32 s{S_RT}, s{S_OUT}, s{S_A}
    s_addc_u32 s{S_RT+1}, s{S_OUT+1}, 0
    s_lshl_b32 s{S_RT+2}, s{S_NN}, 7
    s_mov_b32 s{S_RT+3}, 0x00020000
    s_movk_i32 s{S_C}, 0x207
    s_mov_b32 s{S_A}, 1
    v_mov_b32 v96, {NLN2:#x}
    v_mov_b32 v98, {L_Z2}
    s_lshl_b32 s{S_B}, s{S_NN}, 3
    v_cmp_gt_u32 {mask(0)}, s{S_B}, v{E_XR}
    s_waitcnt lgkmcnt(0)
    v_lshrrev_b32 v{E_XR}, 16, v102
    v_add_u32_sdwa v{E_ROW}, v102, v{E_NX} {SD} src0_sel:WORD_0 src1_sel:DWORD
    v_cmp_lt_u32 vcc, 0, v{E_XR}
    v_add_u32 v{E_NX}, {OF_STRIDE}, v{E_ROW}
    v_cndmask_b32 v{E_ROW}, v98, v{E_ROW}, {mask(0)}""")
    for q in range(4):
        a(f"    v_pk_mul_f32 {vr(E_DB[q],2)}, {vr(E_DB[q],2)}, v[102:103] op_sel:[0,1]")
    a(f"""
    v_cndmask_b32 v{E_R2}, v98, v{E_NX}, vcc
    s_cmp_ge_u32 s{S_WAVE}, 4
    s_cbranch_scc1 K_st2a
    ; ================= output, stage 1: products of the sum rows with w2""")
    for ot in range(4):
        for ks in range(4):
            for h in range(2):
                a(f"    ds_read_b64_tr_b16 {vr(16*ot+4*ks+2*h,2)}, v{E_W2} offset:{2048*ks+256*h+64*(ot>>1)+8*(ot&1)}")
    a(f"""
    s_waitcnt lgkmcnt(0)
    s_barrier""")
    stamp(a, 17)
    for ks in range(4):
        a(f"    ds_read_b128 {vr(64+4*ks,4)}, v{E_SR} offset:{64*ks}")
    def mf(ot, ks):
        d = vr(80 + 4*ot, 4)
        a(f"    v_mfma_f32_16x16x32_bf16 {d}, {vr(16*ot+4*ks,4)}, {vr(64+4*ks,4)}, {'0' if ks == 0 else d}")
    for ks in range(4):
        a(f"    s_waitcnt lgkmcnt({3-ks})")
        mf(0, ks); mf(1, ks)
    for ks in range(4):
        mf(2, ks); mf(3, ks)
    a(f"""
    ds_write_b128 v{E_OW}, v[80:83]
    ds_write_b128 v{E_OW}, v[84:87] offset:16
    s_nop 4
    ds_write_b128 v{E_OW}, v[88:91] offset:128
    ds_write_b128 v{E_OW}, v[92:95] offset:144
    s_waitcnt lgkmcnt(0)
    s_branch K_st2b
K_st2a:
    s_waitcnt lgkmcnt(0)
    s_barrier                                ; B9
K_st2b:
    s_cmp_ge_u32 s{S_WAVE}, 7
    s_barrier
    s_cbranch_scc1 K_fin
    ds_read_b128 v[64:67], v{E_ROW}
    ds_read_b128 v[68:71], v{E_ROW} offset:16
K_rows:
    ds_read_b128 v[72:75], v{E_R2}
    ds_read_b128 v[76:79], v{E_R2} offset:16
    v_cmp_lt_u32 vcc, s{S_A}, v{E_XR}
    v_add_u32 v{E_NX}, {OF_STRIDE}, v{E_NX}
    s_add_u32 s{S_A}, s{S_A}, 1
    s_waitcnt lgkmcnt(0)""")
    for q in range(4):
        a(f"    v_pk_add_f32 {vr(64+2*q,2)}, {vr(64+2*q,2)}, {vr(72+2*q,2)}")
    a(f"""
    v_cndmask_b32 v{E_R2}, v98, v{E_NX}, vcc
    s_cbranch_vccnz K_rows""")
    for q in range(4):
        a(f"    v_pk_fma_f32 {vr(64+2*q,2)}, {vr(64+2*q,2)}, v[96:97], {vr(E_DB[q],2)} op_sel_hi:[1,0,1]")
    for q in range(4):
        a(f"    v_cvt_pk_bf16_f32 v{72+q}, v{64+2*q}, v{65+2*q}")
    a(f"""
""")
    a(f"    buffer_store_dwordx4 v[72:75], v{E_OUT}, {sr(S_RT,4)}, 0 offen sc1")
    a(f"""
    ; a non-finite sum makes every output of its node non-finite: redo this bin on the exact slow path
    v_cmp_class_f32 vcc, v64, s{S_C}
    s_cbranch_vccz K_fin
    v_mov_b32 v65, {L_FLAG}
    ds_write_b32 v65, v65
K_fin:
    v_mov_b32 v65, {L_FLAG}
    s_waitcnt lgkmcnt(0)
    s_barrier                                ; B10
    ds_read_b32 v64, v65
    s_waitcnt lgkmcnt(0)
    v_cmp_ne_u32 vcc, 0, v64
    {"" if "novar" in OPT or "nodma" in OPT or "noconv" in OPT else "s_cbranch_vccnz K_slow"}""")
    if DIAG:
        a("    s_waitcnt vmcnt(0)")
        stamp(a, 18); stamp(a, 19, True)
        a(f"""
    s_getreg_b32 s{S_A}, hwreg(HW_REG_XCC_ID, 0, 4)
    v_writelane_b32 v{V_STAMP}, s{S_A}, 30
    v_writelane_b32 v{V_STAMP}, s{S_NT}, 21
    s_lshl_b32 s{S_A}, s2, 4
    s_add_u32 s{S_A}, s{S_A}, s{S_WAVE}
    s_lshl_b32 s{S_A}, s{S_A}, 8
    s_add_u32 s{S_A}, s{S_A}, {WS_STAMP}
    v_lshl_add_u32 v64, v{L}, 2, s{S_A}
    s_mov_b64 exec, 0xffffffff
    global_store_dword v64, v{V_STAMP}, {sr(S_WS,2)}
    global_store_dword v64, v{V_TRACE}, {sr(S_WS,2)} offset:128""")
    if optval("clk", ""):
        a(f"""
    s_lshl_b32 s{S_A}, s2, 4
    s_add_u32 s{S_A}, s{S_A}, s{S_WAVE}
    s_cmp_lg_u32 s{S_A}, {16*int(optval("wg", "100"))}
    s_cbranch_scc1 K_end
    s_lshl_b32 s{S_A}, s{S_TAG+1}, 7
    s_lshr_b32 s{S_B}, s{S_TAG}, 25
    s_or_b32 s{S_A}, s{S_A}, s{S_B}
    v_cvt_f32_u32 v64, s98
    v_cvt_f32_u32 v65, s99
    v_rcp_f32 v64, v64
    s_nop 1
    v_mul_f32 v64, v64, v65
    v_subrev_f32 v64, {f32bits(15.0):#x}, v64
    v_mul_f32 v64, {f32bits(float(optval("mul", "100"))):#x}, v64
    v_cvt_u32_f32 v64, v64
    s_nop 1
    v_readfirstlane_b32 s{S_B}, v64
    s_min_u32 s{S_B}, s{S_B}, 20000
    {f's_sub_u32 s{S_B}, {optval("clk", "")}, s{S_B}' if "neg" in OPT else f's_add_u32 s{S_B}, s{S_B}, {optval("clk", "")}'}
K_spin5:
    s_memrealtime s[98:99]
    s_waitcnt lgkmcnt(0)
    s_sub_u32 s98, s98, s{S_A}
    s_cmp_lt_u32 s98, s{S_B}
    s_cbranch_scc1 K_spin5""")
    if "endamp" in OPT:
        a(f"""
    s_waitcnt vmcnt(0)
    s_memrealtime s[100:101]
    s_lshl_b32 s{S_A}, s2, 4
    s_add_u32 s{S_A}, s{S_A}, s{S_WAVE}
    s_cmp_lg_u32 s{S_A}, {16*int(optval("wg", "100"))}
    s_cbranch_scc1 K_end
    s_lshl_b32 s{S_A}, s{S_TAG+1}, 7
    s_lshr_b32 s{S_B}, s{S_TAG}, 25
    s_or_b32 s{S_A}, s{S_A}, s{S_B}
    s_waitcnt lgkmcnt(0)
    s_sub_u32 s{S_B}, s100, s98
    s_min_u32 s{S_B}, s{S_B}, 2000
    s_mul_i32 s{S_B}, s{S_B}, 20
    s_add_u32 s{S_B}, s{S_B}, 3000
K_spin4:
    s_memrealtime s[98:99]
    s_waitcnt lgkmcnt(0)
    s_sub_u32 s98, s98, s{S_A}
    s_cmp_lt_u32 s98, s{S_B}
    s_cbranch_scc1 K_spin4""")
    if optval("fix", "") != "":
        a(f"""
    s_lshl_b32 s{S_A}, s2, 4
    s_add_u32 s{S_A}, s{S_A}, s{S_WAVE}
    s_cmp_lg_u32 s{S_A}, 1600
    s_cbranch_scc1 K_end
    s_lshl_b32 s{S_A}, s{S_TAG+1}, 7
    s_lshr_b32 s{S_B}, s{S_TAG}, 25
    s_or_b32 s{S_A}, s{S_A}, s{S_B}
K_spin3:
    s_memrealtime s[98:99]
    s_waitcnt lgkmcnt(0)
    s_sub_u32 s98, s98, s{S_A}
    s_cmp_lt_u32 s98, {optval("fix", "")}
    s_cbranch_scc1 K_spin3""")
    if optval("amp", "") != "":
        a(f"""
    s_waitcnt vmcnt(0)
    s_cmp_lg_u32 s{S_WAVE}, {optval("aw", "0")}
    s_cbranch_scc1 K_end
    s_lshl_b32 s{S_A}, s{S_TAG+1}, 7
    s_lshr_b32 s{S_B}, s{S_TAG}, 25
    s_or_b32 s{S_A}, s{S_A}, s{S_B}""")
        if optval("amp", "") == "99":
            a("    s_memrealtime s[98:99]\n    s_waitcnt lgkmcnt(0)")
        a(f"""
    {f"s_mov_b32 s{S_B}, s98" if "rel" in OPT else f"s_sub_u32 s{S_B}, s98, s{S_A}"}
    s_mov_b64 exec, 1
    v_mov_b32 v64, 0
    v_mov_b32 v65, s{S_B}
    v_mov_b32 v66, 1
    {"v_sub_u32 v65, 0x1000, v65" if "min" in OPT else ""}
    global_atomic_{"add" if "avg" in OPT else "umax"} v64, v65, {sr(S_DBG,2)} offset:128 sc1
    s_sub_u32 s{S_C}, s100, s{S_A}
    v_mov_b32 v68, s{S_C}
    {f"global_atomic_add v64, v68, {sr(S_DBG,2)} offset:144 sc1" if optval("sel", "") else ""}
    s_waitcnt vmcnt(0)
    global_atomic_add v67, v64, v66, {sr(S_DBG,2)} offset:136 sc0 sc1
    s_waitcnt vmcnt(0)
    v_readfirstlane_b32 s{S_B}, v67
    s_cmp_lg_u32 s{S_B}, 255
    s_cbranch_scc1 K_end
    global_atomic_add v67, v64, v64, {sr(S_DBG,2)} offset:128 sc0 sc1
    global_atomic_add v68, v64, v64, {sr(S_DBG,2)} offset:144 sc0 sc1
    s_waitcnt vmcnt(0)
    v_readfirstlane_b32 s{S_C}, v68
    s_cmp_lt_u32 s{S_C}, {390*256}
    {"s_cbranch_scc0 K_end" if optval("sel", "") == "lo" else ""}
    {"s_cbranch_scc1 K_end" if optval("sel", "") == "hi" else ""}
    v_readfirstlane_b32 s{S_B}, v67
    s_mul_i32 s{S_B}, s{S_B}, {optval("mul", "5")}
    {f"s_lshr_b32 s{S_B}, s{S_B}, 8" if "avg" in OPT else ""}
    s_min_u32 s{S_B}, s{S_B}, {optval("base", "0") if "neg" in OPT else 200000}
    {f's_sub_u32 s{S_B}, {optval("base", "0")}, s{S_B}' if "neg" in OPT else f's_add_u32 s{S_B}, s{S_B}, {optval("base", "0")}'}
K_spin2:
    s_memrealtime s[98:99]
    s_waitcnt lgkmcnt(0)
    s_sub_u32 s98, s98, s{S_A}
    s_cmp_lt_u32 s98, s{S_B}
    s_cbranch_scc1 K_spin2""")
    a(f"""
K_end:
    s_endpgm
K_slow:
    ; ================= exact path without hand-offs: scan all edges for this bin
    s_setprio 0
    s_mov_b32 s16, s{S_N0}
    s_mov_b32 s17, s{S_NN}
    s_mov_b32 s18, s{S_WAVE}""")
    gen_slow(a, 16, 17, 18, L, NLOG2E, NW=NW)
    a("    s_endpgm")

def main():
    global DIAG
    out = sys.argv[1]
    DIAG = "diag" in sys.argv[2:] or "lite" in sys.argv[2:]
    OPT.update(sys.argv[2:])
    a = Asm()
    a(f"""; Edge-featured MPNN layer: out[n] = sum_(e: dst=n) (silu([x[src],x[dst],e] w1 + b1) w2 + b2)
; kernarg: x, e_attr, src, dst, w1, b1, w2, b2, out, debug, ws (8 bytes each)
; @launch grid=(256,1,1) block=({NT_},1,1) lds={L_END}
;
; Reformulation: pre = P[src] + Q[dst] + e*w1[128] with P = x w1[0:64], Q = x w1[64:128] + b1, and
; out[n] = (sum_e silu(pre_e)) w2 + degree(n) b2.  With p = -log2(e)*pre the sum of p/(1+2^p) over the edges
; and one division per node; a denominator that leaves the f32 range, a non-finite sum or an input that does
; not fit the fixed-size lists sends the workgroup to an exact edge-by-edge path (K_slow).
;
;  phase 1: sort the own edges by bin in LDS, store them with an offset table, store the own rows of P (bf16)
;  hand-off: write-through stores, then table entries that carry a tag drawn for this launch (published in
;            d_debug); consumers poll the entries (bounded; giving up also leads to K_slow)
;  loop   : tiles of 16 edges x 128 hidden units. P rows arrive by LDS-DMA, transposed LDS reads with zero
.amdgcn_target "amdgcn-amd-amdhsa--gfx950"
.text""")
    gen_kernel(a)
    a(f"""
.section .rodata,"a"
.p2align 6
.amdhsa_kernel {KNAME}
  .amdhsa_next_free_vgpr {NVGPR}
  .amdhsa_next_free_sgpr 102
  .amdhsa_accum_offset {NVGPR}
  .amdhsa_group_segment_fixed_size 0
  .amdhsa_kernarg_size 88
  .amdhsa_user_sgpr_count 2
  .amdhsa_user_sgpr_kernarg_segment_ptr 1
  .amdhsa_system_sgpr_workgroup_id_x 1
  .amdhsa_float_denorm_mode_32 3
.end_amdhsa_kernel""")
    open(out, "w").write(a.text())

if __name__ == "__main__":
    main()
```
